```python
import torch

def _softmax(x, axis=-1):
    return torch.softmax(x, dim=axis)

def _gelu(x):
    return torch.nn.functional.gelu(x, approximate='tanh')

def _silu(x):
    return torch.nn.functional.silu(x)

def _sigmoid(x):
    return torch.sigmoid(x)

def _layernorm(x, axis=-1, eps=1e-05):
    m = x.mean(dim=axis, keepdim=True)
    v = x.var(dim=axis, keepdim=True, unbiased=False)
    return (x - m) / torch.sqrt(v + eps)

def _scatter_add(tgt, idx, src, axis=0):
    return tgt.clone().index_add_(axis, idx, src)

def _segment_sum(src, seg, n):
    out = torch.zeros((n,) + src.shape[1:], dtype=src.dtype)
    return out.index_add_(0, seg, src)

def _pad(x, pw):
    flat = tuple((v for pair in reversed(pw) for v in pair))
    return torch.nn.functional.pad(x, flat)
kernel_name = 'adaLN_cond__sliding_block_cached__glu_gated_reglu__decode'

def setup_inputs():

    _w = lambda a: (lambda t: t.to(torch.bfloat16) if t.is_floating_point() else t)(torch.as_tensor(a))

    def _A_setup():
        B, Sq, D = (2, 1, 512)
        Hq, Hkv, Sk, Dh = (32, 8, 8192, 128)
        assert Hq % Hkv == 0, (Hq, Hkv)
        return {'x': _w((lambda *s: torch.randn(*s, dtype=torch.bfloat16) * 0.1)(B, Sq, D)), 'k_cache': _w((lambda *s: torch.randn(*s, dtype=torch.bfloat16) * 0.8)(B, Hkv, Sk, Dh)), 'v_cache': _w((lambda *s: torch.randn(*s, dtype=torch.bfloat16) * 3.2)(B, Hkv, Sk, Dh)), 'wq': _w((lambda *s: torch.randn(*s, dtype=torch.bfloat16) * 0.8)(D, Hq * Dh) * D ** (-0.5)), 'wo': _w((lambda *s: torch.randn(*s, dtype=torch.bfloat16) * 3.2)(Hq * Dh, D) * (Hq * Dh) ** (-0.5))}
    _A_in = _A_setup()

    def _B_setup():
        B, S, D, F = (2, 1, 512, 1792)
        return {'x': _w((lambda *s: torch.randn(*s, dtype=torch.bfloat16) * 0.1)(B, S, D)), 'W_gate': _w((lambda *s: torch.randn(*s, dtype=torch.bfloat16) * 3.2)(D, F) * (2.0 / D) ** 0.5), 'W_up': _w((lambda *s: torch.randn(*s, dtype=torch.bfloat16) * 3.2)(D, F) * (2.0 / D) ** 0.5), 'W_down': _w((lambda *s: torch.randn(*s, dtype=torch.bfloat16) * 3.2)(F, D) * (1.0 / F) ** 0.5)}
    _B_in = _B_setup()
    return {'A_x': _A_in['x'], 'A_k_cache': _A_in['k_cache'], 'A_v_cache': _A_in['v_cache'], 'A_wq': _A_in['wq'], 'A_wo': _A_in['wo'], 'B_x': _B_in['x'], 'B_W_gate': _B_in['W_gate'], 'B_W_up': _B_in['W_up'], 'B_W_down': _B_in['W_down'], 'c': _w((lambda *s: torch.randn(*s, dtype=torch.bfloat16) * 0.1)(2, 512) * 8.0), 'w_mod': _w((lambda *s: torch.randn(*s, dtype=torch.bfloat16) * 0.1)(512, 6 * 512) * 512 ** (-0.5) * 8.0)}

def reference(A_x, A_k_cache, A_v_cache, A_wq, A_wo, B_x, B_W_gate, B_W_up, B_W_down, c, w_mod):

    def _A_ref(x, k_cache, v_cache, wq, wo):
        B, Sq, D = x.shape
        Hq, Dh = (32, 128)
        Hkv, Sk = (k_cache.shape[1], k_cache.shape[2])
        W = min(4096, max(256, Sk // 4))
        rep = Hq // Hkv
        q = (lambda x, *d: x.permute(*d))((x @ wq).reshape(B, Sq, Hq, Dh), 0, 2, 1, 3)
        k = (lambda x, n, axis: torch.repeat_interleave(x, n, dim=axis))(k_cache[:, :, Sk - W:, :], rep, axis=1)
        v = (lambda x, n, axis: torch.repeat_interleave(x, n, dim=axis))(v_cache[:, :, Sk - W:, :], rep, axis=1)
        scores = torch.einsum('bhqd,bhkd->bhqk', q, k) * Dh ** (-0.5)
        p = _softmax(scores, axis=-1)
        o = torch.einsum('bhqk,bhkd->bhqd', p, v)
        return (lambda x, *d: x.permute(*d))(o, 0, 2, 1, 3).reshape(B, Sq, Hq * Dh) @ wo

    def _B_ref(x, W_gate, W_up, W_down):
        gate = torch.einsum('bsd,df->bsf', x, W_gate)
        up = torch.einsum('bsd,df->bsf', x, W_up)
        gate = gate * (lambda x, dt: x.to(dt))(gate > 0, gate.dtype)
        h = gate * up
        return torch.einsum('bsf,fd->bsd', h, W_down)
    x = A_x
    mod = (_silu(c) @ w_mod).reshape(c.shape[0], 6, 1, -1)
    sa, ca, ga, sb, cb, gb = (mod[:, 0].clone(), mod[:, 1].clone(), mod[:, 2].clone(), mod[:, 3].clone(), mod[:, 4].clone(), mod[:, 5].clone())
    h = _layernorm(x, axis=-1) * (1 + ca) + sa
    x = x + ga * _A_ref(h, A_k_cache, A_v_cache, A_wq, A_wo)
    h = _layernorm(x, axis=-1) * (1 + cb) + sb
    x = x + gb * _B_ref(h, B_W_gate, B_W_up, B_W_down)
    return x
```

```python
import re

TRANS = ("v_exp_f32", "v_log_f32", "v_rcp_f32", "v_rsq_f32", "v_sqrt_f32", "v_sin_f32", "v_cos_f32")

def _regs(tok, kind):
    tok = tok.strip()
    tok = tok.lstrip("-")
    if tok.startswith("abs(") or tok.startswith("|"):
        tok = tok.strip("|")
        tok = tok[4:-1] if tok.startswith("abs(") else tok
    m = re.fullmatch(kind + r"(\d+)", tok)
    if m: return {int(m.group(1))}
    m = re.fullmatch(kind + r"\[(\d+):(\d+)\]", tok)
    if m: return set(range(int(m.group(1)), int(m.group(2)) + 1))
    if kind == "s":
        if tok == "vcc": return {106, 107}
        if tok == "m0": return {124}
        if tok == "exec": return {126, 127}
    return set()

class Ins:
    def __init__(self, text):
        self.text = text
        t = text.split(";")[0].strip()
        parts = t.split(None, 1)
        self.op = parts[0]
        rest = parts[1] if len(parts) > 1 else ""
        ops = [o.strip() for o in rest.split(",")] if rest else []
        if ops:
            rest2 = re.sub(r"quad_perm:\[[^\]]*\]", "QP", rest)
            ops = [o.strip() for o in rest2.split(",")]
            ops[-1] = ops[-1].split()[0] if ops[-1] else ops[-1]
        self.ops = ops
        op = self.op
        self.mfma = op.startswith("v_mfma")
        self.valu = op.startswith("v_") and not self.mfma
        self.trans = any(op.startswith(x) for x in TRANS)
        self.dpp = "_dpp" in op
        self.perml = op.startswith("v_permlane")
        self.dot = op.startswith("v_dot")
        self.vmem = op.startswith("buffer_") or op.startswith("global_")
        self.ds = op.startswith("ds_")
        self.salu = op.startswith("s_")
        self.lds_dma = self.vmem and re.search(r"\blds\b", rest) is not None
        self.vw = set(); self.vr = set(); self.sw = set(); self.sr = set()
        self.srcc = set(); self.store_data = set()
        if self.valu:
            if op.startswith("v_cmp") or op.startswith("v_readfirstlane") or op.startswith("v_readlane"):
                self.sw = _regs(ops[0], "s")
                srcs = ops[1:]
            else:
                self.vw = _regs(ops[0], "v")
                srcs = ops[1:]
                if op.startswith(("v_fmac", "v_dot2c", "v_writelane")) or self.dpp or self.perml:
                    self.vr |= self.vw
                if self.perml:
                    self.vw |= _regs(ops[1], "v")
            for s in srcs:
                self.vr |= _regs(s, "v"); self.sr |= _regs(s, "s")
        elif self.mfma:
            self.vw = _regs(ops[0], "v")
            self.ab = _regs(ops[1], "v") | _regs(ops[2], "v")
            self.srcc = _regs(ops[3], "v")
            self.vr = self.ab | self.srcc
            self.passes = 8 if "32x32" in op else 4
        elif self.vmem:
            if "_load" in op and not self.lds_dma:
                self.vw = _regs(ops[0], "v"); srcs = ops[1:]
            else:
                srcs = ops
                if "_store" in op and ("x4" in op or "x3" in op):
                    self.store_data = _regs(ops[0], "v") if op.startswith("buffer_") else _regs(ops[1], "v")
            for s in srcs:
                self.vr |= _regs(s, "v"); self.sr |= _regs(s, "s")
        elif self.ds:
            if op.startswith(("ds_read", "ds_bpermute", "ds_permute", "ds_swizzle")):
                self.vw = _regs(ops[0], "v"); srcs = ops[1:]
            else:
                srcs = ops
            for s in srcs:
                self.vr |= _regs(s, "v")
        elif self.salu:
            if ops and not op.startswith(("s_cmp", "s_cbranch", "s_branch", "s_waitcnt", "s_nop", "s_barrier", "s_endpgm", "s_setprio", "s_sleep", "s_bitcmp")):
                self.sw = _regs(ops[0], "s")
        self.states = 1
        if op == "s_nop":
            self.states = int(ops[0], 0) + 1

def need(p, c):
    n = 0
    if p.valu:
        if c.mfma and (p.vw & c.vr): n = max(n, 3 if p.dot else 2)
        if c.valu and c.dpp and (p.vw & c.vr): n = max(n, 2)
        if c.perml and (p.vw & c.vr): n = max(n, 2)
        if c.op.startswith(("v_readfirstlane", "v_readlane")) and (p.vw & c.vr): n = max(n, 1)
        if p.trans and c.valu and not c.trans and (p.vw & c.vr): n = max(n, 1)
        if p.trans and (c.vmem or c.ds) and (p.vw & c.vr): n = max(n, 1)
        if p.sw and c.valu and (p.sw & c.sr): n = max(n, 2)
        if p.sw and c.op.startswith(("v_readlane", "v_writelane")) and (p.sw & c.sr): n = max(n, 4)
        if p.sw and c.vmem and (p.sw & c.sr): n = max(n, 5)
        if p.sw and c.salu: pass
        if p.dot and (p.vw & (c.vr | c.vw)) and not (c.op == p.op and not (p.vw & (c.vr - c.vw - _regs(c.ops[-1], "v")))):
            n = max(n, 3)
        if "sdwa" in p.op and c.valu and (p.vw & c.vr): n = max(n, 1)
    if p.mfma:
        big = {4: 8, 8: 12}[p.passes]
        if c.mfma:
            if p.vw & c.ab: n = max(n, big)
            if p.vw & c.srcc and not (p.vw == c.srcc and p.passes == c.passes): n = max(n, {4: 6, 8: 10}[p.passes])
            if p.vw & c.vw and not (p.vw == c.srcc): n = max(n, big)
        elif c.valu or c.vmem or c.ds:
            if p.vw & (c.vr | c.vw): n = max(n, big)
            if c.valu and (p.srcc & c.vw): n = max(n, {4: 3, 8: 7}[p.passes])
    if p.store_data and (c.valu or c.mfma) and (p.store_data & c.vw): n = max(n, 2)
    if p.store_data and (c.vmem or c.ds) and (p.store_data & c.vw): n = max(n, 1)
    if p.salu and 124 in p.sw and c.lds_dma: n = max(n, 1)
    return n

class Asm:
    def __init__(self):
        self.lines = []
        self.hist = []
        self.pos = 0
        self.nops = 0
        self.ninstr = 0
    def raw(self, text):
        self.lines.append(text)
    def label(self, name):
        self.lines.append(name + ":")
    def __call__(self, text):
        for ln in text.split("\n"):
            ln = ln.strip()
            if not ln: continue
            if ln.startswith(";") or ln.startswith("."):
                self.lines.append(ln); continue
            if ln.endswith(":"):
                self.lines.append(ln); continue
            ins = Ins(ln)
            req = 0
            for p, pos_after in self.hist[-24:]:
                k = need(p, ins)
                if k:
                    req = max(req, k - (self.pos - pos_after))
            if req > 0:
                self.lines.append(f"    s_nop {req-1}")
                self.pos += req
                self.nops += 1
            self.lines.append("    " + ln)
            self.pos += ins.states
            self.hist.append((ins, self.pos))
            self.ninstr += 1
    def text(self):
        return "\n".join(self.lines) + "\n"
```

```python
import sys, math, struct
sys.path.insert(0, "work")
from asmlib import Asm

NAME = "adaLN_cond__sliding_block_cached__glu_gated_reglu__decode"
OPT = dict(stamps=0, nt="nt", limit=20000, refresh=3)
for a in sys.argv[1:]:
    k, v = a.split("=")
    OPT[k] = int(v) if v.lstrip("-").isdigit() else v
STAMPS = OPT["stamps"]; NT = OPT["nt"] if OPT["nt"] != "-" else ""
LIMIT = OPT["limit"]; REFRESH = OPT["refresh"]

def f32(x): return "0x%08x" % struct.unpack("<I", struct.pack("<f", x))[0]

TOK = 0x100; H1G = 0x8000; QG = 0x10000
CLR = 0x100000
OG = CLR; MG = CLR + 0x20000; X4 = CLR + 0x30000; Y4 = CLR + 0x38000
G5 = CLR + 0x40000; SG = CLR + 0x5C000; ST5 = CLR + 0x5D000; US5 = CLR + 0x60000
Y6 = 0x200000; DBG = 0x400000
WS_BYTES = 0x800000
TAGC = 0x9E3779B9
KREG = 0; VREG = 65536; QL = 131072; PL = QL + 2048; YL0 = PL + 2048; YL1 = YL0 + 8192; MISC = YL1 + 8192
PA = 0; WQL = 16384; WOL = 49152; XL = 81920; RED = XL + 1024
LDS_BYTES = MISC + 256
C1 = 128 ** -0.5 * math.log2(math.e)

A = Asm()
hdr = open(f"cdna_kernels/{NAME}.s.ref").read().split("\n")
for ln in hdr:
    if ln.startswith("; @launch"):
        A.raw(f"; @launch grid=(256,1,1) block=(512,1,1) lds={LDS_BYTES}")
        break
    A.raw(ln)
A.raw('.amdgcn_target "amdgcn-amd-amdhsa--gfx950"')
A.raw(f".text\n.globl {NAME}_kernel\n.p2align 8\n.type {NAME}_kernel,@function\n{NAME}_kernel:")

sWV, sG, sIDX = "s3", "s4", "s5"
RA, RB, RW, RC, RD, RE, RF = "s[8:11]", "s[12:15]", "s[16:19]", "s[20:23]", "s[24:27]", "s[28:31]", "s[32:35]"
sTAG, sCNT = "s36", "s37"
nstamp = [0]
def STAMP(n):
    if STAMPS:
        A(f"s_memrealtime s[{64+2*n}:{65+2*n}]")

DPPM = "row_mask:0xf bank_mask:0xf"
lbl = [0]
def L(p):
    lbl[0] += 1
    return f"L_{p}_{lbl[0]}"

def srd(r, nbytes):
    b = int(r[2:r.index(":")])
    A(f"s_mov_b32 s{b+2}, {nbytes}\ns_mov_b32 s{b+3}, 0x00020000")
def kload(r, off):
    b = int(r[2:r.index(":")])
    A(f"s_load_dwordx2 s[{b}:{b+1}], s[0:1], {off}")

def poll(loads, check, refresh=None, first_issued=False, first_wait=0):
    top, done, chk = L("poll"), L("got"), L("chk")
    A(f"s_mov_b32 {sCNT}, 0")
    if first_issued:
        A(f"s_waitcnt vmcnt({first_wait})")
        A(f"s_branch {chk}")
    A.label(top)
    if refresh:
        sk = L("nr")
        A(f"s_cmp_lg_u32 {sCNT}, {REFRESH}\ns_cbranch_scc1 {sk}")
        refresh()
        A.label(sk)
    loads()
    A("s_waitcnt vmcnt(0)")
    if first_issued:
        A.label(chk)
    check()
    A(f"s_cbranch_vccz {done}")
    A(f"s_add_u32 {sCNT}, {sCNT}, 1\ns_cmp_lt_u32 {sCNT}, {LIMIT}\ns_cbranch_scc1 {top}")
    A.label(done)

def chk_empty4(r, tmp):
    A(f"v_max3_u32 v{tmp}, v{r}, v{r+1}, v{r+2}\nv_max_u32 v{tmp}, v{tmp}, v{r+3}\nv_cmp_eq_u32 vcc, -1, v{tmp}")

def pack4(src, pk, pk2, tmp):
    A(f"v_mov_b32_dpp v{tmp}, v{src} quad_perm:[1,1,3,3] {DPPM}")
    A(f"v_cvt_pk_bf16_f32 v{pk}, v{src}, v{tmp}")
    A(f"v_mov_b32_dpp v{pk2}, v{pk} quad_perm:[2,2,2,2] {DPPM}")

def setexec(lo, hi):
    A(f"s_mov_b32 exec_lo, {lo:#x}\ns_mov_b32 exec_hi, {hi:#x}")
def fullexec():
    A("s_mov_b64 exec, -1")

STAMP(0)
if STAMPS:
    for i in range(1, 16): A(f"s_mov_b32 s{64+2*i}, 0")
A("s_cmp_ge_u32 s2, 256\ns_cbranch_scc1 L_end")
A("s_lshr_b32 s5, s2, 3")
kload(RW, 104)
A("s_getpc_b64 s[38:39]")
A("s_cmp_ge_u32 s5, 16\ns_cbranch_scc1 L_W")

kload(RA, 8); kload(RB, 16); kload(RC, 48); kload(RD, 56); kload(RE, 64)
vL, vGQ, vLI = 0, 1, 2
def common_setup():
    A("v_lshrrev_b32 v1, 6, v0")
    A("v_and_b32 v0, 63, v0")
    A("v_readfirstlane_b32 s3, v1")
    A("s_and_b32 s4, s2, 7")
    A("v_lshrrev_b32 v1, 4, v0")
    A("v_and_b32 v2, 15, v0")
    srd(RW, WS_BYTES)
def code_prefetch(tmp, dst):
    A("s_and_b32 s38, s38, 0xffffff00")
    A(f"v_lshlrev_b32 v{tmp}, 7, v2")
    A(f"s_lshl_b32 s40, s3, 11")
    A(f"v_add_u32 v{tmp}, s40, v{tmp}")
    A(f"global_load_dword v{dst}, v{tmp}, s[38:39]")
code_prefetch.n = 0
A.label("L_pc0")
common_setup()
vE, vO, vT0, vT1, vT2, vT3 = 3, 4, 5, 6, 7, 8
vKA = 10
vQ = 14
vKF = 16
vVF = 48
vQF = 80
vS = 96
vP = 104
vOA = 108
vOP = 112
vST = 114
vOAD, vSAD = 116, 117
vDF = 118
vU, vSS = 126, 127
vPF = 9
srd(RA, 33554432); srd(RB, 33554432)
A(f"v_lshlrev_b32 v{vT0}, 1, v{vGQ}")
A(f"v_xor_b32 v{vT0}, v{vLI}, v{vT0}")
A(f"v_lshlrev_b32 v{vT0}, 4, v{vT0}")
A(f"v_lshl_or_b32 v{vE}, v{vGQ}, 8, v{vT0}")
A(f"v_xor_b32 v{vO}, 0x80, v{vE}")
code_prefetch(vT0, vPF)
A("s_and_b32 s41, s5, 8\ns_add_u32 s41, s41, s4\ns_lshl_b32 s41, s41, 21")
A("s_and_b32 s42, s5, 7\ns_lshl_b32 s42, s42, 16\ns_add_u32 s41, s41, s42")
A("s_lshl_b32 s43, s3, 13\ns_add_u32 s41, s41, s43")
A(f"s_add_u32 s41, s41, {6144*256}")
A("s_add_u32 s42, s41, 4096")
A("s_mov_b32 m0, s43")
A("s_waitcnt lgkmcnt(0)")
STAMP(1)
def dma4(r, soff):
    for u in range(4):
        A(f"buffer_load_dwordx4 v{vE if u%2==0 else vO}, {r}, {soff} offen offset:{u*1024} {NT} lds")
dma4(RA, "s41")
A("s_add_u32 m0, m0, 4096")
A(f"s_load_dword {sTAG}, s[16:17], 0")
dma4(RA, "s42")
A(f"s_add_u32 m0, m0, {VREG-4096}")
A("s_nop 0")
dma4(RB, "s41")
A("s_add_u32 m0, m0, 4096")
A("s_nop 0")
dma4(RB, "s42")
A("s_lshr_b32 s44, s5, 3\ns_lshl_b32 s45, s4, 1\ns_add_u32 s44, s44, s45\ns_lshl_b32 s44, s44, 12")
A(f"s_lshl_b32 s45, s3, 9\ns_add_u32 s44, s44, s45\ns_add_u32 s44, s44, {QG}")
A(f"v_lshlrev_b32 v{vT1}, 3, v{vL}")
def q_load():
    A(f"buffer_load_dwordx2 v[{vQ}:{vQ+1}], v{vT1}, {RW}, s44 offen sc1")
q_load()
STAMP(2)
A(f"v_cmp_gt_u32 vcc, 4, v{vL}")
A(f"v_lshlrev_b32 v{vT2}, 2, v{vL}")
A(f"v_mov_b32 v{vT3}, 0xff800000")
A(f"v_add_u32 v{vT2}, {MISC}, v{vT2}")
A(f"v_cndmask_b32 v{vT3}, 0, v{vT3}, vcc")
A(f"ds_write_b32 v{vT2}, v{vT3}")
A(f"v_and_b32 v{vT2}, 7, v{vLI}\nv_lshlrev_b32 v{vT2}, 1, v{vT2}\nv_xor_b32 v{vT2}, v{vGQ}, v{vT2}")
A(f"v_lshlrev_b32 v{vT2}, 4, v{vT2}\nv_lshl_or_b32 v{vT2}, v{vLI}, 8, v{vT2}")
A(f"v_add_u32 v{vKA}, s43, v{vT2}")
for t in range(1, 4):
    A(f"v_xor_b32 v{vKA+t}, {t*64:#x}, v{vKA}")
A("s_cmp_lt_u32 s4, 7")
A("s_cselect_b32 s22, 1835008, 0\ns_cselect_b32 s26, 1835008, 0\ns_cselect_b32 s30, 1835008, 0")
A("s_mov_b32 s23, 0x00020000\ns_mov_b32 s27, 0x00020000\ns_mov_b32 s31, 0x00020000")
sFB, sKS, sPHI = "s46", "s47", "s48"
A("s_lshr_b32 s46, s5, 2\ns_lshl_b32 s45, s4, 2\ns_add_u32 s46, s46, s45")
A("s_and_b32 s47, s5, 3")
A("s_lshl_b32 s48, s4, 4\ns_add_u32 s48, s48, s5")
A("s_lshl_b32 s49, s47, 7\ns_lshl_b32 s45, s3, 4\ns_add_u32 s49, s49, s45\ns_mul_i32 s49, s49, 3584")
A("s_lshl_b32 s45, s46, 7\ns_add_u32 s49, s49, s45")
A(f"s_add_u32 s50, s49, {8*3584-1024}")
A("s_lshl_b32 s51, s48, 14\ns_lshl_b32 s45, s3, 7\ns_add_u32 s51, s51, s45")
A(f"s_add_u32 s52, s51, {8*1024-1024}")
A(f"v_lshrrev_b32 v{vT2}, 3, v{vL}\nv_and_b32 v{vT3}, 7, v{vL}\nv_lshlrev_b32 v{vT3}, 4, v{vT3}")
A(f"v_mul_u32_u24 v{vE}, 3584, v{vT2}\nv_add_u32 v{vE}, v{vE}, v{vT3}")
A(f"v_lshl_or_b32 v{vO}, v{vT2}, 10, v{vT3}")
A("s_waitcnt vmcnt(9)")
STAMP(3)
for T in range(2):
    for t in range(4):
        r = vKF + (T*4+t)*4
        A(f"ds_read_b128 v[{r}:{r+3}], v{vKA+t} offset:{T*4096}")
A("s_mov_b32 m0, s43")
A("s_waitcnt lgkmcnt(0)")
A(f"s_add_u32 {sTAG}, {sTAG}, {TAGC:#x}")
A(f"buffer_load_dwordx4 v{vE}, {RC}, s49 offen {NT} lds")
A(f"buffer_load_dwordx4 v{vE}, {RC}, s50 offen offset:1024 {NT} lds")
A("s_add_u32 m0, m0, 2048\ns_nop 0")
A(f"buffer_load_dwordx4 v{vE}, {RD}, s49 offen {NT} lds")
A(f"buffer_load_dwordx4 v{vE}, {RD}, s50 offen offset:1024 {NT} lds")
A("s_add_u32 m0, m0, 2048\ns_nop 0")
A(f"buffer_load_dwordx4 v{vO}, {RE}, s51 offen {NT} lds")
A(f"buffer_load_dwordx4 v{vO}, {RE}, s52 offen offset:1024 {NT} lds")
vQW, vQR, vVR, vMX, vPW = 10, 11, 12, 13, 3
A(f"v_lshrrev_b32 v{vT2}, 2, v{vL}\nv_lshlrev_b32 v{vT2}, 7, v{vT2}\nv_and_b32 v{vT3}, 3, v{vL}")
A(f"v_lshl_or_b32 v{vT2}, v{vT3}, 2, v{vT2}")
A(f"s_lshl_b32 s45, s3, 4\ns_add_u32 s45, s45, {QL}")
A(f"v_add_u32 v{vQW}, s45, v{vT2}")
A(f"v_and_b32 v{vT2}, 7, v{vLI}\nv_lshl_or_b32 v{vT2}, v{vGQ}, 3, v{vT2}\nv_lshlrev_b32 v{vT2}, 4, v{vT2}")
A(f"v_add_u32 v{vQR}, {QL}, v{vT2}")
A(f"v_lshrrev_b32 v{vT2}, 2, v{vL}")
A(f"v_and_b32 v{vT0}, 7, v{vT2}\nv_xor_b32 v{vT0}, s3, v{vT0}\nv_lshlrev_b32 v{vT0}, 5, v{vT0}")
A(f"v_lshl_or_b32 v{vT0}, v{vT2}, 8, v{vT0}\nv_lshl_or_b32 v{vT0}, v{vT3}, 3, v{vT0}")
A(f"v_add_u32 v{vVR}, {VREG}, v{vT0}")
A(f"v_lshlrev_b32 v{vT0}, 2, v{vT3}\nv_add_u32 v{vMX}, {MISC}, v{vT0}")
A(f"v_lshl_or_b32 v{vT0}, v{vGQ}, 2, v{vT3}\nv_lshlrev_b32 v{vT0}, 4, v{vT0}")
vPR = 4
A(f"v_add_u32 v{vPR}, {PL}, v{vT0}")
A(f"s_lshl_b32 s45, s3, 8\nv_add_u32 v{vPW}, s45, v{vPR}")
A(f"v_lshlrev_b32 v{vT0}, 3, v{vGQ}\nv_lshl_or_b32 v{vOAD}, v{vT3}, 12, v{vT0}")
A("s_lshl_b32 s53, s4, 14\ns_lshr_b32 s45, s3, 1\ns_lshl_b32 s45, s45, 10\ns_add_u32 s53, s53, s45")
A("s_lshl_b32 s45, s5, 6\ns_add_u32 s53, s53, s45\ns_and_b32 s45, s3, 1\ns_lshl_b32 s45, s45, 5\ns_add_u32 s53, s53, s45")
A(f"s_add_u32 s53, s53, {OG}")
A(f"v_lshlrev_b32 v{vSAD}, 7, v{vT3}")
A(f"s_lshl_b32 s54, s4, 9\ns_lshl_b32 s45, s5, 3\ns_add_u32 s54, s54, s45\ns_add_u32 s54, s54, {SG}")
A(f"s_mov_b32 s55, {f32(C1)}")
poll(q_load, lambda: A(f"v_cmp_ne_u32 vcc, {sTAG}, v{vQ+1}"), first_issued=True, first_wait=6)
STAMP(4)
A(f"ds_write_b32 v{vQW}, v{vQ}")
A("s_waitcnt lgkmcnt(0)\ns_barrier")
STAMP(5)
for t in range(4):
    A(f"ds_read_b128 v[{vQF+4*t}:{vQF+4*t+3}], v{vQR} offset:{t*512}")
A("s_waitcnt lgkmcnt(0)")
for kb in range(8):
    for T in range(2):
        r = vVF + kb*4 + T*2
        A(f"ds_read_b64_tr_b16 v[{r}:{r+1}], v{vVR} offset:{(32*kb+16*T)*256}")
    if kb < 4:
        t = kb
        for T in range(2):
            k = vKF + (T*4+t)*4; s = vS + 4*T
            c = "0" if t == 0 else f"v[{s}:{s+3}]"
            A(f"v_mfma_f32_16x16x32_bf16 v[{s}:{s+3}], v[{k}:{k+3}], v[{vQF+4*t}:{vQF+4*t+3}], {c}")
for i in range(8):
    A(f"v_add_f32_dpp v{vS+i}, v{vS+i}, v{vS+i} row_ror:4 {DPPM}")
A(f"v_max3_f32 v{vT0}, v{vS}, v{vS+1}, v{vS+2}\nv_max3_f32 v{vT2}, v{vS+3}, v{vS+4}, v{vS+5}")
A(f"v_max3_f32 v{vT0}, v{vT0}, v{vS+6}, v{vS+7}\nv_max_f32 v{vT0}, v{vT0}, v{vT2}")
setexec(0x000f000f, 0x000f000f)
A(f"ds_max_f32 v{vMX}, v{vT0}")
A("s_waitcnt lgkmcnt(0)\ns_barrier")
A(f"ds_read_b32 v{vT0}, v{vMX}")
A("s_waitcnt lgkmcnt(0)")
A(f"v_mul_f32 v{vST}, s55, v{vT0}")
for i in range(8):
    A(f"v_fma_f32 v{vS+i}, v{vS+i}, s55, -v{vST}")
for i in range(8):
    A(f"v_exp_f32 v{vS+i}, v{vS+i}")
for i in range(4):
    A(f"v_cvt_pk_bf16_f32 v{vP+i}, v{vS+2*i}, v{vS+2*i+1}")
A(f"ds_write_b128 v{vPW}, v[{vP}:{vP+3}]")
A(f"v_add_f32 v{vT0}, v{vS}, v{vS+1}\nv_add_f32 v{vT2}, v{vS+2}, v{vS+3}\nv_add_f32 v{vT3}, v{vS+4}, v{vS+5}\nv_add_f32 v{vT1}, v{vS+6}, v{vS+7}")
A(f"v_add_f32 v{vT0}, v{vT0}, v{vT2}\nv_add_f32 v{vT3}, v{vT3}, v{vT1}\nv_add_f32 v{vT0}, v{vT0}, v{vT3}")
A(f"ds_add_f32 v{vMX}, v{vT0} offset:16")
fullexec()
A("s_waitcnt lgkmcnt(0)\ns_barrier")
STAMP(6)
if STAMPS: A("s_waitcnt lgkmcnt(0)")
A(f"ds_read_b32 v{vST+1}, v{vMX} offset:16")
for kb in range(8):
    r = vKF + kb*4
    A(f"ds_read_b128 v[{r}:{r+3}], v{vPR} offset:{kb*256}")
sk = L("nst")
A(f"s_cmp_lg_u32 s3, 0\ns_cbranch_scc1 {sk}")
A("s_waitcnt lgkmcnt(8)")
A("s_mov_b64 exec, 15")
A(f"buffer_store_dwordx2 v[{vST}:{vST+1}], v{vSAD}, {RW}, s54 offen")
fullexec()
A.label(sk)
for kb in range(8):
    A(f"s_waitcnt lgkmcnt({7-kb})")
    c = "0" if kb == 0 else f"v[{vOA}:{vOA+3}]"
    A(f"v_mfma_f32_16x16x32_bf16 v[{vOA}:{vOA+3}], v[{vVF+kb*4}:{vVF+kb*4+3}], v[{vKF+kb*4}:{vKF+kb*4+3}], {c}")
setexec(0x000f000f, 0x000f000f)
A(f"v_cvt_pk_bf16_f32 v{vOP}, v{vOA}, v{vOA+1}\nv_cvt_pk_bf16_f32 v{vOP+1}, v{vOA+2}, v{vOA+3}")
A(f"buffer_store_dwordx2 v[{vOP}:{vOP+1}], v{vOAD}, {RW}, s53 offen")
fullexec()
STAMP(7)
def o_restore():
    setexec(0x000f000f, 0x000f000f)
    A(f"buffer_store_dwordx2 v[{vOP}:{vOP+1}], v{vOAD}, {RW}, s53 offen sc1")
    sk = L("nst")
    A(f"s_cmp_lg_u32 s3, 0\ns_cbranch_scc1 {sk}")
    A("s_mov_b64 exec, 15")
    A(f"buffer_store_dwordx2 v[{vST}:{vST+1}], v{vSAD}, {RW}, s54 offen sc1")
    A.label(sk)
    fullexec()
vOF, vYW, vYR, vWR, vGA = 10, 11, 12, 13, 3
vY = 16
A(f"v_lshlrev_b32 v{vT0}, 4, v{vGQ}\nv_lshl_or_b32 v{vOF}, v{vLI}, 6, v{vT0}")
A("s_cmp_lt_u32 s4, 7\ns_cbranch_scc1 L_ffn")
A(f"s_lshl_b32 s45, s3, 11\ns_add_u32 s45, s45, {X4}")
A(f"s_mov_b32 {sCNT}, 0")
A.label("L_g7")
A(f"buffer_load_dwordx4 v[{vY}:{vY+3}], v{vOF}, {RW}, s45 offen sc1")
A("s_waitcnt vmcnt(0)")
chk_empty4(vY, vT0)
A("s_cbranch_vccz L_g7d")
A(f"s_add_u32 {sCNT}, {sCNT}, 1\ns_cmp_lt_u32 {sCNT}, 6\ns_cbranch_scc1 L_g7")
A.label("L_g7d")
o_restore()
A("s_branch L_exit")
A.label("L_ffn")
A("s_lshr_b32 s56, s3, 2\ns_and_b32 s57, s3, 3")
A("s_lshl_b32 s45, s47, 2\ns_add_u32 s45, s45, s57\ns_lshl_b32 s45, s45, 10")
A("s_lshl_b32 s58, s56, 14")
A(f"s_sub_u32 s59, s45, s58\ns_add_u32 s59, s59, {MG + 2*16384}")
A(f"s_add_u32 s60, s45, s58\ns_add_u32 s60, s60, {Y4}")
A(f"v_lshlrev_b32 v{vT1}, 4, v{vL}")
A(f"v_add_u32 v{vYR}, {YL0}, v{vT1}")
A(f"s_lshl_b32 s45, s3, 10\nv_add_u32 v{vYW}, s45, v{vYR}")
A(f"v_lshrrev_b32 v{vT0}, 1, v{vGQ}\nv_lshlrev_b32 v{vT0}, 13, v{vT0}")
A(f"v_and_b32 v{vT2}, 1, v{vGQ}\nv_lshl_or_b32 v{vT0}, v{vT2}, 10, v{vT0}")
A(f"v_lshrrev_b32 v{vT2}, 2, v{vLI}\nv_lshl_or_b32 v{vT0}, v{vT2}, 7, v{vT0}")
A(f"v_and_b32 v{vT3}, 3, v{vL}\nv_lshl_or_b32 v{vT0}, v{vT3}, 3, v{vT0}")
A("s_lshl_b32 s45, s56, 11\ns_lshl_b32 s58, s57, 5\ns_add_u32 s45, s45, s58")
A(f"v_add_u32 v{vWR}, s45, v{vT0}")
vDR = 4
A(f"v_lshrrev_b32 v{vT0}, 2, v{vL}\nv_lshlrev_b32 v{vT0}, 7, v{vT0}\nv_lshl_or_b32 v{vT0}, v{vT3}, 3, v{vT0}")
A(f"s_add_u32 s45, s43, 4096\nv_add_u32 v{vDR}, s45, v{vT0}")
A(f"v_lshrrev_b32 v{vT0}, 1, v{vGQ}\nv_lshlrev_b32 v{vT0}, 3, v{vT0}\nv_lshl_or_b32 v{vT0}, v{vT2}, 4, v{vT0}\nv_or_b32 v{vT0}, v{vT0}, v{vT3}")
A(f"v_lshlrev_b32 v{vGA}, 4, v{vT0}")
vUA = 14
A(f"v_and_b32 v{vT2}, 1, v{vGQ}\nv_lshl_or_b32 v{vUA}, v{vT2}, 10, v{vGA}")
A("s_lshl_b32 s45, s46, 2\ns_add_u32 s45, s45, s57")
A("s_lshl_b32 s58, s56, 6\ns_lshl_b32 s61, s47, 2\ns_add_u32 s58, s58, s61")
A(f"s_lshl_b32 s61, s45, 10\ns_add_u32 s61, s61, s58\ns_add_u32 s61, s61, {G5}")
A(f"s_lshl_b32 s62, s45, 11\ns_add_u32 s62, s62, s58\ns_add_u32 s62, s62, {US5}")
poll(lambda: A(f"buffer_load_dwordx4 v[{vY}:{vY+3}], v{vOF}, {RW}, s59 offen sc1"), lambda: chk_empty4(vY, vT0))
A(f"ds_write_b128 v{vYW}, v[{vY}:{vY+3}]")
A("s_waitcnt lgkmcnt(0)\ns_barrier")
STAMP(8)
vWF = 80; vYO = 48
for k in range(4):
    for h in range(2):
        r = vWF + 4*k + 2*h
        A(f"ds_read_b64_tr_b16 v[{r}:{r+1}], v{vWR} offset:{k*16384 + h*512}")
for u in range(8):
    A(f"ds_read_b128 v[{vYO+4*u}:{vYO+4*u+3}], v{vYR} offset:{u*1024}")
A("s_waitcnt lgkmcnt(0)")
for tau in range(4):
    A(f"ds_read_b64_tr_b16 v[{vDF+2*tau}:{vDF+2*tau+1}], v{vDR} offset:{tau*32}")
for k in range(4):
    for pi in range(2):
        u = 4*pi + k; d = vS + 4*pi
        c = "0" if k == 0 else f"v[{d}:{d+3}]"
        A(f"v_mfma_f32_16x16x32_bf16 v[{d}:{d+3}], v[{vYO+4*u}:{vYO+4*u+3}], v[{vWF+4*k}:{vWF+4*k+3}], {c}")
for pi in range(2):
    d = vS + 4*pi
    A(f"v_add_f32 v{d}, v{d}, v{d+1}\nv_add_f32 v{d+2}, v{d+2}, v{d+3}")
for pi in range(2):
    d = vS + 4*pi
    A(f"v_add_f32 v{d}, v{d}, v{d+2}")
A(f"v_permlane16_swap_b32 v{vS}, v{vS+4}")
A(f"v_add_f32 v{vS}, v{vS}, v{vS+4}")
A(f"buffer_store_dword v{vS}, v{vUA}, {RW}, s62 offen sc1")
o_restore()
A(f"s_lshl_b32 s45, s48, 11\ns_add_u32 s45, s45, {US5}")
def us_loads():
    A(f"buffer_load_dwordx4 v[20:23], v{vT1}, {RW}, s45 offen sc1")
    A(f"buffer_load_dwordx4 v[24:27], v{vT1}, {RW}, s45 offen offset:1024 sc1")
def us_chk():
    A("v_add_f32 v20, v20, v21\nv_add_f32 v22, v22, v23\nv_add_f32 v24, v24, v25\nv_add_f32 v26, v26, v27")
    A(f"v_add_f32 v{vU}, v20, v22\nv_add_f32 v{vSS}, v24, v26")
    A(f"v_cmp_u_f32 vcc, v{vU}, v{vSS}")
poll(us_loads, us_chk)
STAMP(9)
A(f"s_lshl_b32 s63, s48, 10\ns_add_u32 s63, s63, {G5}")
A(f"s_lshl_b32 s40, s4, 8\ns_add_u32 s40, s40, {ST5}")
vSTA, vY6A = 15, 28
A(f"v_and_b32 v{vT0}, 7, v{vL}\nv_lshlrev_b32 v{vT0}, 5, v{vT0}\nv_lshrrev_b32 v{vT2}, 3, v{vLI}\nv_lshl_or_b32 v{vSTA}, v{vT2}, 4, v{vT0}")
A(f"v_lshrrev_b32 v{vT0}, 1, v{vGQ}\nv_lshl_or_b32 v{vT0}, v{vT2}, 2, v{vT0}\nv_lshlrev_b32 v{vT0}, 12, v{vT0}")
A(f"v_and_b32 v{vT2}, 1, v{vGQ}\nv_lshl_or_b32 v{vY6A}, v{vT2}, 4, v{vT0}")
A(f"s_lshl_b32 s49, s3, 16\ns_lshl_b32 s45, s48, 5\ns_add_u32 s49, s49, s45\ns_add_u32 s49, s49, {Y6}")
A("s_add_u32 s50, s49, 8192\ns_add_u32 s51, s49, 32768\ns_add_u32 s52, s49, 40960")
A(f"s_mov_b32 s41, {f32(1.0/512)}\ns_mov_b32 s42, {f32(1e-5)}")
poll(lambda: A(f"buffer_load_dwordx4 v[{vY}:{vY+3}], v{vOF}, {RW}, s60 offen sc1"), lambda: chk_empty4(vY, vT0))
STAMP(10)
A(f"ds_write_b128 v{vYW}, v[{vY}:{vY+3}] offset:8192")
A("s_waitcnt lgkmcnt(0)\ns_barrier")
for u in range(8):
    A(f"ds_read_b128 v[{vYO+4*u}:{vYO+4*u+3}], v{vYR} offset:{8192+u*1024}")
for u in range(8):
    A(f"s_waitcnt lgkmcnt({7-u})")
    c = "0" if u == 0 else f"v[{vS}:{vS+3}]"
    k = u & 3
    A(f"v_mfma_f32_16x16x32_bf16 v[{vS}:{vS+3}], v[{vYO+4*u}:{vYO+4*u+3}], v[{vWF+4*k}:{vWF+4*k+3}], {c}")
vG = 29
A(f"v_add_f32 v{vS}, v{vS}, v{vS+1}\nv_add_f32 v{vS+2}, v{vS+2}, v{vS+3}")
A(f"v_add_f32 v{vS+1}, v{vS}, v{vS+2}\nv_add_f32 v{vS}, v{vS}, v{vS+2}")
A(f"v_permlane16_swap_b32 v{vS}, v{vS+1}")
A(f"v_add_f32 v{vG}, v{vS}, v{vS+1}")
def g_store(fl):
    setexec(0x0000ffff, 0x0000ffff)
    A(f"buffer_store_dword v{vG}, v{vGA}, {RW}, s61 offen {fl}")
    fullexec()
g_store("")
STAMP(11)
def g_loads():
    A(f"buffer_load_dwordx4 v[24:27], v{vSTA}, {RW}, s40 offen sc1")
    A(f"buffer_load_dwordx4 v[20:23], v{vT1}, {RW}, s63 offen sc1")
def g_chk():
    A("v_add_f32 v24, v24, v26\nv_add_f32 v25, v25, v27")
    A("v_add_f32 v20, v20, v21\nv_add_f32 v22, v22, v23")
    A(f"v_add_f32_dpp v24, v24, v24 quad_perm:[1,0,3,2] {DPPM}\nv_add_f32_dpp v25, v25, v25 quad_perm:[1,0,3,2] {DPPM}")
    A("v_add_f32 v20, v20, v22")
    A(f"v_add_f32_dpp v24, v24, v24 quad_perm:[2,3,0,1] {DPPM}\nv_add_f32_dpp v25, v25, v25 quad_perm:[2,3,0,1] {DPPM}")
    A("v_add_f32 v26, v24, v25")
    A("v_cmp_u_f32 vcc, v20, v26")
poll(g_loads, g_chk, refresh=lambda: g_store("sc1"))
STAMP(12)
A(f"v_add_f32_dpp v24, v24, v24 row_half_mirror {DPPM}\nv_add_f32_dpp v25, v25, v25 row_half_mirror {DPPM}")
A("v_mul_f32 v24, s41, v24")
A("v_fma_f32 v25, v25, s41, s42") if False else None
A("v_mov_b32 v26, s42")
A("v_fmac_f32 v26, s41, v25")
A("v_fma_f32 v26, -v24, v24, v26")
A(f"v_fma_f32 v20, -v24, v{vU}, v20")
A("v_rsq_f32 v26, v26")
A(f"v_fma_f32 v20, v20, v26, v{vSS}")
A("v_max_f32 v21, 0, v20")
A(f"v_mul_f32_dpp v22, v20, v21 row_shl:4 {DPPM}")
pack4(22, 24, 25, 23)
for tau in range(4):
    d = 32 + 4*tau
    A(f"v_mfma_f32_16x16x16_bf16 v[{d}:{d+3}], v[{vDF+2*tau}:{vDF+2*tau+1}], v[24:25], 0")
setexec(0x01010101, 0x01010101)
for tau in range(4):
    d = 32 + 4*tau
    A(f"buffer_store_dwordx4 v[{d}:{d+3}], v{vY6A}, {RW}, s{49+tau} offen sc1")
g_store("sc1")
STAMP(13)
A("s_branch L_exit")

A(".p2align 6")
A.label("L_W")
kload(RA, 80); kload(RB, 24); kload(RC, 32); kload(RD, 0); kload(RE, 72); kload(RF, 88)
A.label("L_pc1")
common_setup()
sW, sHP, sCB = "s5", "s6", "s7"
A("s_sub_u32 s5, s5, 16\ns_lshr_b32 s6, s5, 3\ns_and_b32 s7, s5, 7")
srd(RA, 3145728); srd(RB, 4194304); srd(RC, 4194304); srd(RD, 2048); srd(RE, 2048); srd(RF, 2048)
wM, wQ, wO, wTR, wT0, wT1, wT2, wT3, wPF = 3, 4, 5, 6, 7, 8, 9, 10, 11
code_prefetch(wT0, wPF)
A(f"v_lshrrev_b32 v{wT0}, 3, v0\nv_and_b32 v{wT1}, 7, v0\nv_lshlrev_b32 v{wT1}, 4, v{wT1}")
A(f"v_mul_u32_u24 v{wM}, 6144, v{wT0}\nv_add_u32 v{wM}, v{wM}, v{wT1}")
A(f"v_lshl_or_b32 v{wQ}, v{wT0}, 13, v{wT1}\nv_lshl_or_b32 v{wO}, v{wT0}, 10, v{wT1}")
A("s_lshl_b32 s41, s7, 6\ns_lshl_b32 s45, s3, 3\ns_add_u32 s41, s41, s45\ns_mul_i32 s41, s41, 6144")
A("s_lshl_b32 s42, s3, 10")
A("s_lshl_b32 s43, s6, 8\ns_lshl_b32 s45, s3, 5\ns_add_u32 s43, s43, s45")
A("s_lshl_b32 s44, s43, 13\ns_lshl_b32 s45, s4, 10\ns_add_u32 s44, s44, s45\ns_lshl_b32 s46, s7, 7\ns_add_u32 s44, s44, s46")
A("s_lshl_b32 s45, s4, 9\ns_add_u32 s47, s43, s45\ns_lshl_b32 s47, s47, 10\ns_add_u32 s47, s47, s46")
A("s_lshl_b32 s48, s3, 12")
A(f"v_lshrrev_b32 v{wT0}, 5, v0\nv_and_b32 v{wT1}, 31, v0\nv_lshlrev_b32 v{wT1}, 2, v{wT1}\nv_lshl_or_b32 v{wT2}, v{wT0}, 10, v{wT1}")
wC = 12; wX = 16
wXS = 13
A(f"v_and_b32 v{wT3}, 1, v1\nv_lshl_or_b32 v{wT0}, v{wT0}, 4, v2\nv_lshlrev_b32 v{wT0}, 5, v{wT0}\nv_lshl_or_b32 v{wT0}, v{wT3}, 10, v{wT0}")
A(f"v_lshlrev_b32 v{wT1}, 1, v2\nv_lshl_or_b32 v{wT1}, v{wT3}, 10, v{wT1}")
A("s_lshl_b32 s49, s4, 7\ns_and_b32 s45, s3, 3\ns_lshl_b32 s45, s45, 5\ns_add_u32 s50, s49, s45")
A(f"v_mov_b32 v{wXS}, 0\nv_mov_b32 v75, 0\nv_mov_b32 v81, 0")
A("s_add_u32 s51, s41, s49\ns_add_u32 s52, s51, 1024")
A("s_mov_b32 m0, s42")
A("s_waitcnt lgkmcnt(0)")
STAMP(1)
A(f"s_load_dword {sTAG}, s[16:17], 0")
A(f"buffer_load_dword v{wC}, v{wT2}, {RE}, s46 offen")
def wq_dma():
    A(f"s_add_u32 m0, s48, {WQL}")
    for u in range(4):
        if u: A(f"s_add_u32 s44, s44, {8*8192-1024}")
        else: A("s_nop 0")
        A(f"buffer_load_dwordx4 v{wQ}, {RB}, s44 offen offset:{u*1024} {NT} lds")
def unit_dma(s0, s1):
    A(f"buffer_load_dwordx4 v{wM}, {RA}, {s0} offen {NT} lds")
    A("s_add_u32 m0, s42, 8192\ns_nop 0")
    A(f"buffer_load_dwordx4 v{wM}, {RA}, {s1} offen {NT} lds")
wXO = 24
def silu_operand(cnt):
    A(f"s_waitcnt vmcnt({cnt})")
    A(f"v_lshlrev_b32 v32, 16, v{wC}\nv_and_b32 v33, 0xffff0000, v{wC}")
    A(f"v_mul_f32 v34, {f32(-math.log2(math.e))}, v32\nv_mul_f32 v35, {f32(-math.log2(math.e))}, v33")
    A("v_exp_f32 v34, v34\nv_exp_f32 v35, v35")
    A("v_add_f32 v34, 1.0, v34\nv_add_f32 v35, 1.0, v35")
    A("v_rcp_f32 v34, v34\nv_rcp_f32 v35, v35")
    A("v_mul_f32 v32, v32, v34\nv_mul_f32 v33, v33, v35")
    A("v_cvt_pk_bf16_f32 v32, v32, v33")
    A(f"s_and_b32 s45, s3, 3\ns_lshl_b32 s45, s45, 8\ns_add_u32 s45, s45, {XL}")
    A("v_lshlrev_b32 v33, 2, v0\nv_add_u32 v33, s45, v33")
    A("ds_write_b32 v33, v32")
    A("v_bfe_u32 v34, v2, 2, 1\nv_lshlrev_b32 v34, 7, v34\nv_lshl_or_b32 v34, v1, 4, v34\nv_add_u32 v34, s45, v34")
    A("s_waitcnt lgkmcnt(0)")
    A(f"ds_read_b128 v[{wXO}:{wXO+3}], v34\nds_read_b128 v[{wXO+4}:{wXO+7}], v34 offset:64")
def tr_setup():
    A(f"v_lshrrev_b32 v{wTR}, 2, v2\nv_lshl_or_b32 v{wTR}, v1, 3, v{wTR}\nv_lshlrev_b32 v{wTR}, 7, v{wTR}")
    A(f"v_and_b32 v32, 3, v0\nv_lshl_or_b32 v{wTR}, v32, 3, v{wTR}")
wWF = 40
wD = 56
def unit_mfma(s_c0, s_c1):
    A(f"s_lshl_b32 s45, s3, 5\nv_add_u32 v32, s45, v{wTR}")
    for seg in range(2):
        for k in range(2):
            for h in range(2):
                r = wWF + seg*8 + k*4 + h*2
                A(f"ds_read_b64_tr_b16 v[{r}:{r+1}], v32 offset:{PA + seg*8192 + k*4096 + h*512}")
    for i in range(4):
        A(f"v_mov_b32 v{wD+i}, {s_c0}\nv_mov_b32 v{wD+4+i}, {s_c1}")
    A("s_waitcnt lgkmcnt(0)")
    for k in range(2):
        for seg in range(2):
            d = wD + 4*seg; r = wWF + seg*8 + k*4
            A(f"v_mfma_f32_16x16x32_bf16 v[{d}:{d+3}], v[{wXO+4*k}:{wXO+4*k+3}], v[{r}:{r+3}], v[{d}:{d+3}]")

A("s_cmp_ge_u32 s5, 8\ns_cbranch_scc1 L_clear")
A(f"buffer_load_dwordx4 v[{wX}:{wX+3}], v{wT0}, {RD}, 0 offen")
A(f"buffer_load_dwordx4 v[{wX+4}:{wX+7}], v{wT0}, {RD}, 0 offen offset:16")
A(f"buffer_load_short_d16_hi v{wXS}, v{wT1}, {RD}, s50 offen")
unit_dma("s51", "s52")
wq_dma()
tr_setup()
silu_operand(9)
A("s_waitcnt vmcnt(6)")
A("v_mov_b32 v36, 0\nv_mov_b32 v37, 0\nv_mov_b32 v38, 0x3f803f80")
for i in range(8):
    A(f"v_dot2c_f32_bf16 v36, v{wX+i}, v38\nv_dot2c_f32_bf16 v37, v{wX+i}, v{wX+i}")
for m in ("quad_perm:[1,0,3,2]", "quad_perm:[2,3,0,1]", "row_half_mirror", "row_mirror"):
    A(f"v_add_f32_dpp v36, v36, v36 {m} {DPPM}\nv_add_f32_dpp v37, v37, v37 {m} {DPPM}")
A("v_mov_b32 v38, v36\nv_mov_b32 v39, v37")
A("v_permlane32_swap_b32 v36, v38\nv_permlane32_swap_b32 v37, v39")
A("v_add_f32 v36, v36, v38\nv_add_f32 v37, v37, v39")
A(f"v_mul_f32 v36, {f32(1.0/512)}, v36\nv_mov_b32 v38, {f32(1e-5)}\nv_fmac_f32 v38, {f32(1.0/512)}, v37")
A("v_fma_f32 v38, -v36, v36, v38\nv_rsq_f32 v38, v38")
A(f"v_sub_f32 v{wXS}, v{wXS}, v36\nv_mul_f32 v{wXS}, v{wXS}, v38")
A("v_bfe_u32 v36, v2, 2, 1\nv_lshlrev_b32 v36, 7, v36\nv_and_b32 v37, 1, v1\nv_lshl_or_b32 v36, v37, 6, v36")
A("v_lshrrev_b32 v37, 3, v2\nv_lshl_or_b32 v36, v37, 4, v36")
A("s_lshl_b32 s53, s4, 1\ns_lshr_b32 s45, s3, 1\ns_add_u32 s53, s53, s45\ns_lshl_b32 s53, s53, 11")
A("s_lshl_b32 s45, s7, 8\ns_add_u32 s53, s53, s45\ns_and_b32 s45, s3, 1\ns_lshl_b32 s45, s45, 5\ns_add_u32 s53, s53, s45")
A(f"s_add_u32 s53, s53, {H1G}")
A("s_cmp_eq_u32 s7, 0\ns_cselect_b32 s54, 1.0, 0")
A(f"s_add_u32 {sTAG}, {sTAG}, {TAGC:#x}")
A("s_waitcnt vmcnt(4)\ns_barrier")
STAMP(2)
A("s_cmp_ge_u32 s3, 4\ns_cbranch_scc1 L_B")
unit_mfma("0", "s54")
A(f"v_fma_f32 v32, v{wXS}, v{wD+4}, v{wD}")
A(f"v_mov_b32 v{wD+9}, {sTAG}\nv_mov_b32 v{wD+11}, {sTAG}")
pack4(32, wD+8, wD+10, 33)
setexec(0x11111111, 0)
A(f"buffer_store_dwordx4 v[{wD+8}:{wD+11}], v36, {RW}, s53 offen sc1")
fullexec()
STAMP(3)
A("s_branch L_B")
A.label("L_clear")
A("v_mov_b32 v32, -1\nv_mov_b32 v33, -1\nv_mov_b32 v34, -1\nv_mov_b32 v35, -1")
A("s_lshl_b32 s53, s4, 3\ns_add_u32 s53, s53, s7\ns_mul_i32 s54, s53, 10240")
A(f"s_add_u32 s54, s54, {CLR}\ns_add_u32 s55, s54, s42\ns_lshl_b32 s45, s3, 8\ns_add_u32 s54, s54, s45\ns_add_u32 s54, s54, 8192")
A("v_lshlrev_b32 v36, 4, v0\nv_lshlrev_b32 v37, 2, v0")
A(f"buffer_store_dwordx4 v[32:35], v36, {RW}, s55 offen sc1")
A(f"buffer_store_dword v32, v37, {RW}, s54 offen sc1")
A("s_waitcnt vmcnt(0) lgkmcnt(0)")
wq_dma()
A(f"s_add_u32 {sTAG}, {sTAG}, {TAGC:#x}")
A("s_barrier")
STAMP(2)
sk = L("ntok")
A(f"s_cmp_lg_u32 s3, 0\ns_cbranch_scc1 {sk}")
A(f"v_mov_b32 v36, {sTAG}\nv_mov_b32 v37, 0\ns_lshl_b32 s53, s53, 2\ns_add_u32 s53, s53, {TOK}")
A("s_mov_b64 exec, 1")
A(f"buffer_store_dword v36, v37, {RW}, s53 offen sc1")
fullexec()
A.label(sk)
tr_setup()
silu_operand(5)
STAMP(3)
A.label("L_B")
def blk_frags(base):
    A(f"s_add_u32 s45, s48, {base}\nv_add_u32 v32, s45, v{wTR}")
    for t in range(4):
        for h in range(2):
            r = wWF + 4*t + 2*h
            A(f"ds_read_b64_tr_b16 v[{r}:{r+1}], v32 offset:{t*32 + h*512}")
wRW, wRR = 14, 15
A(f"v_lshlrev_b32 v{wT3}, 2, v0")
A(f"s_lshl_b32 s45, s3, 9\ns_add_u32 s45, s45, {RED}\nv_add_u32 v{wRW}, s45, v{wT3}")
A(f"s_lshl_b32 s45, s3, 8\ns_add_u32 s45, s45, {RED}\nv_add_u32 v{wRR}, s45, v{wT3}")
A(f"v_and_b32 v{wT0}, 7, v2\nv_lshlrev_b32 v{wT0}, 8, v{wT0}\nv_lshrrev_b32 v{wT1}, 3, v2\nv_lshl_or_b32 v{wT0}, v{wT1}, 6, v{wT0}\nv_lshl_or_b32 v{wT0}, v1, 4, v{wT0}")
A(f"s_lshl_b32 s53, s43, 6\ns_add_u32 s53, s53, {H1G}")
wQA = 72; wQD = 76
A(f"v_and_b32 v{wT1}, 31, v0\nv_lshlrev_b32 v{wT1}, 2, v{wT1}\nv_lshrrev_b32 v{wT2}, 5, v0\nv_lshl_or_b32 v{wQA}, v{wT2}, 12, v{wT1}")
A(f"s_lshl_b32 s56, s4, 13\ns_lshl_b32 s45, s5, 8\ns_add_u32 s56, s56, s45\ns_lshl_b32 s45, s3, 7\ns_add_u32 s56, s56, s45\ns_add_u32 s56, s56, {QG}")
A(f"v_mov_b32 v{wQD+1}, {sTAG}\nv_mov_b32 v{wQD+3}, {sTAG}")
A(f"s_movk_i32 s57, {TOK}")
A("s_waitcnt vmcnt(0)")
blk_frags(WQL)
STAMP(4)
def h1_loads():
    A(f"buffer_load_dwordx4 v[16:19], v{wT0}, {RW}, s53 offen sc1")
    A(f"buffer_load_dwordx4 v[20:23], v{wT0}, {RW}, s53 offen offset:128 sc1")
    A(f"buffer_load_dword v33, v{wT3}, {RW}, s57 offen sc1")
def h1_chk():
    A(f"v_xor_b32 v33, {sTAG}, v33")
    for r in (17, 19, 21, 23):
        A(f"v_bitop3_b32 v33, v{r}, {sTAG}, v33 bitop3:0xbe")
    A("v_cmp_ne_u32 vcc, 0, v33")
poll(h1_loads, h1_chk)
STAMP(5)
A("v_mov_b32 v17, v18\nv_mov_b32 v18, v20\nv_mov_b32 v19, v22")
A("s_waitcnt lgkmcnt(0)")
def blk_mfma(op):
    for t in range(4):
        d = wD + 4*t
        A(f"v_mfma_f32_16x16x32_bf16 v[{d}:{d+3}], v[{op}:{op+3}], v[{wWF+4*t}:{wWF+4*t+3}], 0")
def blk_reduce():
    A(f"v_permlane16_swap_b32 v{wD}, v{wD+4}\nv_permlane16_swap_b32 v{wD+8}, v{wD+12}")
    A(f"v_add_f32 v{wD}, v{wD}, v{wD+4}\nv_add_f32 v{wD+8}, v{wD+8}, v{wD+12}")
    A(f"ds_write2st64_b32 v{wRW}, v{wD}, v{wD+8} offset0:0 offset1:1")
    A("s_waitcnt lgkmcnt(0)\ns_barrier")
def blk_final():
    for i in range(4):
        A(f"ds_read2st64_b32 v[{32+2*i}:{33+2*i}], v{wRR} offset0:{4*i} offset1:{4*i+2}")
    A("s_waitcnt lgkmcnt(0)")
    A("v_add_f32 v32, v32, v33\nv_add_f32 v34, v34, v35\nv_add_f32 v36, v36, v37\nv_add_f32 v38, v38, v39")
    A("v_add_f32 v32, v32, v34\nv_add_f32 v36, v36, v38\nv_add_f32 v32, v32, v36")
blk_mfma(16)
A("s_lshl_b32 s58, s4, 1\ns_add_u32 s58, s58, s6")
A("s_lshl_b32 s45, s58, 8\ns_add_u32 s51, s41, s45\ns_add_u32 s51, s51, 2048\ns_add_u32 s52, s51, 128")
for t in range(4):
    d = wD + 4*t
    A(f"v_add_f32 v{d}, v{d}, v{d+1}\nv_add_f32 v{d+2}, v{d+2}, v{d+3}")
for t in range(4):
    d = wD + 4*t
    A(f"v_add_f32 v{d}, v{d}, v{d+2}")
blk_reduce()
def q_store(fl):
    setexec(0x11111111, 0x11111111)
    A(f"buffer_store_dwordx4 v[{wQD}:{wQD+3}], v{wQA}, {RW}, s56 offen {fl}")
    fullexec()
sk = L("nq")
A(f"s_cmp_ge_u32 s3, 2\ns_cbranch_scc1 {sk}")
blk_final()
pack4(32, wQD, wQD+2, 33)
q_store("")
A.label(sk)
STAMP(6)
A("s_mov_b32 m0, s42\ns_nop 0")
unit_dma("s51", "s52")
A(f"s_lshl_b32 s59, s5, 3\ns_add_u32 s59, s59, s4\ns_lshl_b32 s59, s59, 12\ns_add_u32 s59, s59, {Y6}")
wL16 = 73
A(f"v_lshlrev_b32 v{wL16}, 4, v0")
sk = L("ncl")
A(f"s_cmp_lt_u32 s3, 4\ns_cbranch_scc1 {sk}")
A("s_cmp_eq_u32 s3, 7\ns_cselect_b32 s45, 32, 64")
A("v_cmp_gt_u32 vcc, s45, v0")
A("v_cndmask_b32 v32, 0, -1, vcc\nv_mov_b32 v33, v32\nv_mov_b32 v34, v32\nv_mov_b32 v35, v32")
A("s_add_u32 s45, s59, s42\ns_sub_u32 s45, s45, 4096")
A(f"buffer_store_dwordx4 v[32:35], v{wL16}, {RW}, s45 offen sc1")
A.label(sk)
A("v_lshrrev_b32 v36, 1, v1\nv_lshlrev_b32 v36, 11, v36\nv_and_b32 v37, 1, v1\nv_lshl_or_b32 v36, v37, 9, v36\nv_lshl_or_b32 v36, v2, 1, v36")
A("s_lshl_b32 s53, s58, 12\ns_lshr_b32 s45, s3, 1\ns_lshl_b32 s45, s45, 10\ns_add_u32 s53, s53, s45")
A("s_lshl_b32 s45, s7, 6\ns_add_u32 s53, s53, s45\ns_and_b32 s45, s3, 1\ns_lshl_b32 s45, s45, 5\ns_add_u32 s53, s53, s45")
A(f"s_add_u32 s53, s53, {MG}")
A("s_lshr_b32 s45, s58, 2\ns_lshl_b32 s45, s45, 3\ns_or_b32 s45, s45, s7\ns_cmp_eq_u32 s45, 16\ns_cselect_b32 s54, 1.0, 0")
A("s_waitcnt vmcnt(0)")
A(f"s_add_u32 m0, s48, {WOL}")
for u in range(4):
    if u: A(f"s_add_u32 s47, s47, {8*1024-1024}")
    else: A("s_nop 0")
    A(f"buffer_load_dwordx4 v{wO}, {RC}, s47 offen offset:{u*1024} {NT} lds")
A("s_barrier")
STAMP(7)
sk = L("nmb")
A(f"s_cmp_ge_u32 s3, 4\ns_cbranch_scc1 {sk}")
unit_mfma("s54", "s54")
A("v_cmp_gt_u32 vcc, 32, v0")
A(f"v_cndmask_b32 v32, v{wD+4}, v{wD}, vcc")
pack4(32, 34, 35, 33)
setexec(0x11111111, 0x11111111)
A(f"buffer_store_dwordx2 v[34:35], v36, {RW}, s53 offen sc1")
fullexec()
A(f"s_cmp_ge_u32 s3, 2\ns_cbranch_scc1 {sk}")
q_store("sc1")
wGA, wCB, wXA, wXAD = 74, 75, 80, 81
A(f"v_and_b32 v36, 31, v0\nv_lshlrev_b32 v36, 1, v36\nv_lshrrev_b32 v37, 5, v0\nv_lshl_or_b32 v{wXAD}, v37, 9, v36")
A("v_lshl_or_b32 v37, v37, 10, v36")
A("s_lshl_b32 s60, s7, 1\ns_add_u32 s60, s60, s3")
A("s_lshl_b32 s45, s60, 6")
A(f"v_mov_b32 v{wXA}, 0")
A("s_cmp_lg_u32 s58, 0\ns_cselect_b32 s45, 0x10000, s45")
A(f"buffer_load_short_d16_hi v{wXA}, v37, {RD}, s45 offen")
A(f"s_lshl_b32 s60, s60, 10\ns_add_u32 s61, s60, {MG}\ns_add_u32 s62, s60, {MG+2*16384}")
for i in range(16):
    A(f"v_mov_b32 v{84+i}, 0")
def mg_loads():
    for p in range(8):
        A(f"buffer_load_short_d16_hi v{84+p}, v{wXAD}, {RW}, s61 offen offset:{p*64} sc1")
        A(f"buffer_load_short_d16_hi v{92+p}, v{wXAD}, {RW}, s62 offen offset:{p*64} sc1")
def sum8(dst, r):
    A(f"v_add_f32 v32, v{r}, v{r+1}\nv_add_f32 v33, v{r+2}, v{r+3}\nv_add_f32 v34, v{r+4}, v{r+5}\nv_add_f32 v35, v{r+6}, v{r+7}")
    A(f"v_add_f32 v32, v32, v33\nv_add_f32 v34, v34, v35\nv_add_f32 v{dst}, v32, v34")
def mg_chk():
    sum8(wGA, 84); sum8(wCB, 92)
    A(f"v_cmp_u_f32 vcc, v{wGA}, v{wCB}")
poll(mg_loads, mg_chk)
A(f"s_lshl_b32 s45, s6, 14\ns_add_u32 s60, s60, s45\ns_lshl_b32 s45, s4, 6\ns_add_u32 s60, s60, s45\ns_add_u32 s61, s60, {Y4}\ns_add_u32 s60, s60, {X4}")
A.label(sk)
wGB, wE0, wE1, wOUT, wBP = 74, 84, 88, 75, 80
sk = L("nw2")
A(f"s_cmp_lg_u32 s3, 2\ns_cbranch_scc1 {sk}")
A("v_and_b32 v32, 1, v0\nv_lshlrev_b32 v32, 2, v32\nv_lshrrev_b32 v33, 5, v0\nv_or_b32 v32, v32, v33\nv_and_b32 v33, 1, v1\nv_lshl_or_b32 v32, v33, 1, v32")
A("s_and_b32 s45, s4, 3\ns_lshl_b32 s45, s45, 3\nv_add_u32 v32, s45, v32")
A("s_lshr_b32 s60, s4, 2")
A(f"s_lshl_b32 s45, s60, 5\nv_add_u32 v33, s45, v32\nv_lshlrev_b32 v{wBP}, 2, v33")
A(f"v_lshlrev_b32 v{wOUT}, 1, v32")
A(f"s_lshl_b32 s61, s5, 10\ns_lshl_b32 s45, s60, 9\ns_add_u32 s61, s61, s45\ns_add_u32 s61, s61, {MG+3*16384}")
A("s_lshl_b32 s62, s60, 10\ns_lshl_b32 s45, s5, 6\ns_add_u32 s62, s62, s45")
for i in range(8):
    A(f"v_mov_b32 v{92+i}, 0")
def gb_loads():
    for p in range(8):
        A(f"buffer_load_short_d16_hi v{92+p}, v{wOUT}, {RW}, s61 offen offset:{p*64} sc1")
def gb_chk():
    sum8(wGB, 92)
    A(f"v_cmp_u_f32 vcc, v{wGB}, v{wGB}")
poll(gb_loads, gb_chk)
A("v_and_b32 v32, 1, v0\nv_lshlrev_b32 v32, 4, v32\nv_mov_b32 v33, 0x3f80\nv_lshlrev_b32 v32, v32, v33")
A("v_lshrrev_b32 v33, 3, v2\nv_sub_u32 v33, v1, v33\nv_lshlrev_b32 v33, 2, v33\nv_bfe_u32 v34, v2, 1, 2\nv_add_u32 v33, v33, v34")
for t in range(2):
    for r in range(4):
        A(f"v_cmp_eq_u32 vcc, {8*t + r}, v33")
        A(f"v_cndmask_b32 v{wE0+4*t+r}, 0, v32, vcc")
A.label(sk)
STAMP(8)
wOF = 12; wF = 100
A(f"v_lshlrev_b32 v32, 4, v1\nv_lshl_or_b32 v{wOF}, v2, 6, v32")
A(f"s_lshl_b32 s53, s4, 14\ns_lshl_b32 s45, s43, 5\ns_add_u32 s53, s53, s45\ns_add_u32 s53, s53, {OG}")
A(f"s_lshl_b32 s54, s4, 9\ns_lshr_b32 s45, s43, 7\ns_lshl_b32 s45, s45, 7\ns_add_u32 s54, s54, s45\ns_add_u32 s54, s54, {SG}")
A(f"v_lshrrev_b32 v{wT0}, 5, v0\nv_lshlrev_b32 v{wT0}, 6, v{wT0}")
A("v_and_b32 v33, 1, v1\nv_cmp_eq_u32 s[38:39], 1, v33")
A("s_waitcnt vmcnt(0)")
blk_frags(WOL)
STAMP(9)
def sg_loads():
    for i in range(4):
        A(f"buffer_load_dwordx4 v[{16+4*i}:{19+4*i}], v{wT0}, {RW}, s54 offen offset:{16*i} sc1")
def sg_chk():
    A("v_add_f32 v32, v17, v19\nv_add_f32 v33, v21, v23\nv_add_f32 v34, v25, v27\nv_add_f32 v35, v29, v31")
    A("v_max3_f32 v36, v16, v18, v20\nv_max3_f32 v37, v22, v24, v26")
    A("v_add_f32 v32, v32, v33\nv_add_f32 v34, v34, v35")
    A("v_max3_f32 v36, v36, v28, v30")
    A("v_cmp_u_f32 vcc, v32, v34")
poll(sg_loads, sg_chk)
def o_loads():
    A(f"buffer_load_dwordx4 v[104:107], v{wOF}, {RW}, s53 offen sc1")
o_loads()
A("v_max_f32 v36, v36, v37")
for i in range(8):
    A(f"v_sub_f32 v{16+2*i}, v{16+2*i}, v36")
for i in range(8):
    A(f"v_exp_f32 v{16+2*i}, v{16+2*i}")
A("v_mul_f32 v32, v16, v17\nv_mul_f32 v33, v18, v19")
for i in range(2, 8):
    A(f"v_fmac_f32 v{32 + (i&1)}, v{16+2*i}, v{17+2*i}")
A("v_add_f32 v32, v32, v33")
A("v_rcp_f32 v32, v32")
for r in range(4):
    A(f"v_cndmask_b32 v{wF+r}, v{16+2*r}, v{24+2*r}, s[38:39]")
for r in range(4):
    A(f"v_mul_f32 v{wF+r}, v{wF+r}, v32")
STAMP(10)
poll(o_loads, lambda: chk_empty4(104, 33), first_issued=True, first_wait=0)
STAMP(11)
A("s_waitcnt lgkmcnt(0)")
blk_mfma(104)
for t in range(4):
    A(f"v_mul_f32 v{wD+4*t}, v{wD+4*t}, v{wF}")
for r in range(1, 4):
    for t in range(4):
        A(f"v_fmac_f32 v{wD+4*t}, v{wD+4*t+r}, v{wF+r}")
blk_reduce()
A("s_cmp_gt_u32 s3, 2\ns_cbranch_scc1 L_exit")
A("s_cmp_eq_u32 s3, 2\ns_cbranch_scc1 L_fin")
blk_final()
A(f"v_fma_f32 v32, v32, v{wGA}, v{wXA}")
A(f"v_mul_f32 v36, v32, v{wCB}")
A(f"v_mov_b32_dpp v33, v32 quad_perm:[1,1,3,3] {DPPM}")
A(f"v_mov_b32_dpp v37, v36 quad_perm:[1,1,3,3] {DPPM}")
A("v_cvt_pk_bf16_f32 v34, v32, v33\nv_cvt_pk_bf16_f32 v38, v36, v37")
A(f"v_mov_b32_dpp v35, v34 quad_perm:[2,2,2,2] {DPPM}")
A(f"v_mov_b32_dpp v39, v38 quad_perm:[2,2,2,2] {DPPM}")
setexec(0x11111111, 0x11111111)
A(f"buffer_store_dwordx2 v[38:39], v{wXAD}, {RW}, s61 offen sc1")
A(f"buffer_store_dwordx2 v[34:35], v{wXAD}, {RW}, s60 offen sc1")
fullexec()
STAMP(12)
A("s_branch L_exit")
A.label("L_fin")
A(f"s_lshl_b32 s53, s5, 10\ns_add_u32 s53, s53, {X4}\ns_add_u32 s54, s53, 16384")
A(f"s_lshl_b32 s55, s4, 8\ns_lshl_b32 s45, s7, 5\ns_add_u32 s55, s55, s45\ns_lshl_b32 s45, s6, 3\ns_add_u32 s55, s55, s45\ns_add_u32 s55, s55, {ST5}")
A("v_lshrrev_b32 v40, 1, v1\nv_lshlrev_b32 v40, 4, v40\nv_and_b32 v41, 1, v1\nv_lshl_or_b32 v40, v41, 2, v40")
def x4_loads():
    A(f"buffer_load_dwordx4 v[16:19], v{wOF}, {RW}, s53 offen sc1")
    A(f"buffer_load_dwordx4 v[20:23], v{wOF}, {RW}, s54 offen sc1")
def x4_chk():
    A("v_max3_u32 v33, v16, v17, v18\nv_max3_u32 v34, v19, v20, v21\nv_max3_u32 v33, v33, v22, v23\nv_max_u32 v33, v33, v34\nv_cmp_eq_u32 vcc, -1, v33")
poll(x4_loads, x4_chk)
STAMP(12)
for hp in range(2):
    for t in range(2):
        d = wD + 4*t
        c = "0" if hp == 0 else f"v[{d}:{d+3}]"
        A(f"v_mfma_f32_16x16x32_bf16 v[{d}:{d+3}], v[{16+4*hp}:{19+4*hp}], v[{wE0+4*t}:{wE0+4*t+3}], {c}")
for t in range(2):
    d = wD + 4*t
    A(f"v_add_f32 v{d}, v{d}, v{d+1}\nv_add_f32 v{d+2}, v{d+2}, v{d+3}")
for t in range(2):
    d = wD + 4*t
    A(f"v_add_f32 v{d}, v{d}, v{d+2}")
A(f"v_permlane16_swap_b32 v{wD}, v{wD+4}")
A(f"v_add_f32 v42, v{wD}, v{wD+4}")
A("v_mov_b32 v43, v42\nv_mul_f32 v44, v42, v42")
A("v_permlane16_swap_b32 v43, v44")
A("v_add_f32 v43, v43, v44")
for m in ("quad_perm:[1,0,3,2]", "quad_perm:[2,3,0,1]", "row_half_mirror", "row_mirror"):
    A(f"v_add_f32_dpp v43, v43, v43 {m} {DPPM}")
def st_store(fl):
    setexec(0x00010001, 0x00010001)
    A(f"buffer_store_dword v43, v40, {RW}, s55 offen {fl}")
    fullexec()
st_store("")
STAMP(13)
A(f"ds_bpermute_b32 v42, v{wBP}, v42")
def y6_loads():
    for i in range(4):
        A(f"buffer_load_dwordx4 v[{16+4*i}:{19+4*i}], v{wL16}, {RW}, s59 offen offset:{1024*i} sc1")
def y6_chk():
    for r in range(4):
        A(f"v_add_f32 v{16+r}, v{16+r}, v{20+r}\nv_add_f32 v{24+r}, v{24+r}, v{28+r}")
    for r in range(4):
        A(f"v_add_f32 v{16+r}, v{16+r}, v{24+r}")
    A("v_permlane32_swap_b32 v16, v17\nv_permlane32_swap_b32 v18, v19")
    A("v_add_f32 v16, v16, v17\nv_add_f32 v18, v18, v19")
    A("v_permlane16_swap_b32 v16, v18")
    A("v_add_f32 v16, v16, v18")
    A("v_cmp_u_f32 vcc, v16, v16")
poll(y6_loads, y6_chk, refresh=lambda: st_store("sc1"))
STAMP(14)
for m in ("row_ror:8", "row_ror:4", "row_ror:2"):
    A(f"v_add_f32_dpp v16, v16, v16 {m} {DPPM}")
A("s_waitcnt lgkmcnt(0)")
A(f"v_fma_f32 v16, v16, v{wGB}, v42")
A("v_cvt_pk_bf16_f32 v16, v16, v16")
setexec(0x00030003, 0x00030003)
A(f"buffer_store_short v16, v{wOUT}, {RF}, s62 offen")
A("s_cmp_lg_u32 s2, 128\ns_cbranch_scc1 L_exit")
A(f"s_sub_u32 s45, {sTAG}, {TAGC-1:#x}")
A("v_mov_b32 v17, s45\nv_mov_b32 v18, 0")
A("s_mov_b64 exec, 1")
A(f"buffer_store_dword v17, v18, {RW}, 0 offen sc1")
A.label("L_exit")
if STAMPS:
    STAMP(15)
    A("s_waitcnt lgkmcnt(0)")
    A("s_mov_b64 exec, 1")
    A(f"s_lshl_b32 s45, s2, 3\ns_add_u32 s45, s45, s3\ns_lshl_b32 s45, s45, 6\ns_add_u32 s45, s45, {DBG}")
    A("v_mov_b32 v0, 0")
    for q in range(4):
        for i in range(4):
            A(f"v_mov_b32 v{4+4*q+i}, s{64+2*(4*q+i)}")
        A(f"buffer_store_dwordx4 v[{4+4*q}:{7+4*q}], v0, {RW}, s45 offen offset:{16*q}")
A.label("L_end")
A("s_endpgm")
A.label("L_codeend")
A.raw(f".fill (16384 - (L_codeend - {NAME}_kernel)) / 4, 4, 0xbf810000")
A.raw(f""".section .rodata,"a"
.p2align 6
.amdhsa_kernel {NAME}_kernel
  .amdhsa_next_free_vgpr 128
  .amdhsa_next_free_sgpr 96
  .amdhsa_accum_offset 128
  .amdhsa_group_segment_fixed_size 0
  .amdhsa_kernarg_size 112
  .amdhsa_user_sgpr_count 2
  .amdhsa_user_sgpr_kernarg_segment_ptr 1
  .amdhsa_system_sgpr_workgroup_id_x 1
  .amdhsa_float_denorm_mode_32 3
.end_amdhsa_kernel""")
sys.stdout.write(A.text())
sys.stderr.write(f"instrs={A.ninstr} nops={A.nops}\n")
```

```python
import sys, math, struct
sys.path.insert(0, "work")
from asmlib import Asm

NAME = "adaLN_cond__sliding_block_cached__glu_gated_reglu__decode"
OPT = dict(stamps=0, nt="nt", limit=20000, refresh=255, psleep=0, pf=1, pfnt="", smallnt="", slow=1, qn=4, trg=0, mb_at="q", touch=1, qpipe=1, s1=6, s2=1, sent=1, trgmax=24, kvbar=1, abl="")
for a in sys.argv[1:]:
    k, v = a.split("=")
    OPT[k] = int(v) if v.lstrip("-").isdigit() else v
STAMPS = OPT["stamps"]; NT = OPT["nt"] if OPT["nt"] != "-" else ""
LIMIT = OPT["limit"]; REFRESH = OPT["refresh"]; SNT = OPT["smallnt"]

def f32(x): return "0x%08x" % struct.unpack("<I", struct.pack("<f", x))[0]

TRG = 0x1000; H1G = 0x8000; QG = 0x10000
CLR = 0x100000
OG = CLR; MG = CLR + 0x20000; X4 = CLR + 0x30000; Y4 = CLR + 0x38000
G5 = CLR + 0x40000; SG = CLR + 0x5C000; ST5 = CLR + 0x5D000; US5 = CLR + 0x60000
Y6 = 0x180000; DBG = 0x400000
WS_BYTES = 0x800000
TAGC = 0x9E3779B9
VREG = 65536; PA = 131072; XL = 147456; QL = XL + 1024; PL = QL + 2048; MISC = PL + 2048
FG = 0; FD = 32768; YL0 = 131072
WQL = 0; WOL = 32768; PB = 65536; RED = XL + 1024
LDS_BYTES = MISC + 256
C1 = 128 ** -0.5 * math.log2(math.e)

A = Asm()
hdr = open(f"cdna_kernels/{NAME}.s.ref").read().split("\n")
for ln in hdr:
    if ln.startswith("; @launch"):
        A.raw(f"; @launch grid=(256,1,1) block=(512,1,1) lds={LDS_BYTES}")
        break
    A.raw(ln)
A.raw('.amdgcn_target "amdgcn-amd-amdhsa--gfx950"')
A.raw(f".text\n.globl {NAME}_kernel\n.p2align 8\n.type {NAME}_kernel,@function\n{NAME}_kernel:")

RA, RB, RW, RC, RD, RE, RF = "s[8:11]", "s[12:15]", "s[16:19]", "s[20:23]", "s[24:27]", "s[28:31]", "s[32:35]"
sTAG, sCNT, sT = "s36", "s37", "s45"
def STAMP(n):
    if STAMPS:
        A(f"s_memrealtime s[{64+2*n}:{65+2*n}]")
DPPM = "row_mask:0xf bank_mask:0xf"
lbl = [0]
def L(p):
    lbl[0] += 1
    return f"L_{p}_{lbl[0]}"
def srd(r, nbytes):
    b = int(r[2:r.index(":")])
    A(f"s_mov_b32 s{b+2}, {nbytes}\ns_mov_b32 s{b+3}, 0x00020000")
def kload(r, off):
    b = int(r[2:r.index(":")])
    A(f"s_load_dwordx2 s[{b}:{b+1}], s[0:1], {off}")

def SX(dst, const, *terms):
    first = True
    for t in terms:
        src, rs, w, ls = (t[0], 0, 0, t[1]) if len(t) == 2 else t
        d = dst if first else sT
        cur = src
        if w:
            if rs == 0: A(f"s_and_b32 {d}, {cur}, {(1<<w)-1}")
            else: A(f"s_bfe_u32 {d}, {cur}, {(w<<16)|rs:#x}")
            cur = d
        elif rs:
            A(f"s_lshr_b32 {d}, {cur}, {rs}"); cur = d
        if first:
            if ls: A(f"s_lshl_b32 {d}, {cur}, {ls}")
            elif cur != d: A(f"s_mov_b32 {d}, {cur}")
        else:
            if 1 <= ls <= 4: A(f"s_lshl{ls}_add_u32 {dst}, {cur}, {dst}")
            else:
                if ls: A(f"s_lshl_b32 {sT}, {cur}, {ls}"); cur = sT
                A(f"s_add_u32 {dst}, {dst}, {cur}")
        first = False
    if const: A(f"s_add_u32 {dst}, {dst}, {const:#x}")
def VX(dst, tmp, add, *terms):
    first = True
    for rs, w, ls in terms:
        if rs == 4 and w == 2: cur = "v1"
        elif rs == 0 and w == 4: cur = "v2"
        elif rs == 0 and w == 6: cur = "v0"
        else:
            d = f"v{dst}" if first else f"v{tmp}"
            if rs + w == 6: A(f"v_lshrrev_b32 {d}, {rs}, v0")
            elif rs == 0: A(f"v_and_b32 {d}, {(1<<w)-1}, v0")
            else: A(f"v_bfe_u32 {d}, v0, {rs}, {w}")
            cur = d
        if first:
            if ls: A(f"v_lshlrev_b32 v{dst}, {ls}, {cur}")
            elif cur != f"v{dst}": A(f"v_mov_b32 v{dst}, {cur}")
        else:
            if ls: A(f"v_lshl_or_b32 v{dst}, {cur}, {ls}, v{dst}")
            else: A(f"v_or_b32 v{dst}, {cur}, v{dst}")
        first = False
    if add: A(f"v_add_u32 v{dst}, {add}, v{dst}")

def await_any(load, valid, sleep):
    if not OPT["sent"]: return
    top, done = L("aw"), L("awd")
    A(f"s_mov_b32 {sCNT}, 0")
    A.label(top)
    load()
    A("s_waitcnt vmcnt(0)")
    valid()
    A(f"s_cbranch_vccnz {done}")
    A(f"s_sleep {sleep}\ns_add_u32 {sCNT}, {sCNT}, 1\ns_cmp_lt_u32 {sCNT}, 64\ns_cbranch_scc1 {top}")
    A.label(done)
def poll(loads, check, first_issued=False, first_wait=0, sleep=0):
    top, done, chk = L("poll"), L("got"), L("chk")
    A(f"s_mov_b32 {sCNT}, 0")
    if first_issued:
        A(f"s_waitcnt vmcnt({first_wait})")
        A(f"s_branch {chk}")
    A.label(top)
    loads()
    A("s_waitcnt vmcnt(0)")
    if first_issued:
        A.label(chk)
    check()
    A(f"s_cbranch_vccz {done}")
    if sleep: A(f"s_sleep {sleep}")
    A(f"s_add_u32 {sCNT}, {sCNT}, 1")
    A(f"s_and_b32 {sT}, {sCNT}, {REFRESH}\ns_cbranch_scc1 {top}")
    A("buffer_wbl2 sc1")
    A(f"s_cmp_lt_u32 {sCNT}, {LIMIT}\ns_cbranch_scc1 {top}")
    A.label(done)
def chk_empty4(r, tmp):
    A(f"v_max3_u32 v{tmp}, v{r}, v{r+1}, v{r+2}\nv_max_u32 v{tmp}, v{tmp}, v{r+3}\nv_cmp_eq_u32 vcc, -1, v{tmp}")
def pack4(src, pk, pk2, tmp):
    A(f"v_mov_b32_dpp v{tmp}, v{src} quad_perm:[1,1,3,3] {DPPM}")
    A(f"v_cvt_pk_bf16_f32 v{pk}, v{src}, v{tmp}")
    A(f"v_mov_b32_dpp v{pk2}, v{pk} quad_perm:[2,2,2,2] {DPPM}")
def setexec(lo, hi):
    A(f"s_mov_b32 exec_lo, {lo:#x}\ns_mov_b32 exec_hi, {hi:#x}")
def fullexec():
    A("s_mov_b64 exec, -1")
def mfma(d, a, b, c):
    cc = "0" if c is None else f"v[{c}:{c+3}]"
    A(f"v_mfma_f32_16x16x32_bf16 v[{d}:{d+3}], v[{a}:{a+3}], v[{b}:{b+3}], {cc}")
def rowsum(ds):
    for d in ds: A(f"v_add_f32 v{d}, v{d}, v{d+1}\nv_add_f32 v{d+2}, v{d+2}, v{d+3}")
    for d in ds: A(f"v_add_f32 v{d}, v{d}, v{d+2}")
def code_prefetch(tmp, dst):
    sk = L("npf")
    A(f"s_cmp_lt_u32 s3, 6\ns_cbranch_scc1 {sk}")
    A("s_and_b32 s38, s38, 0xffffff00")
    A(f"v_lshlrev_b32 v{tmp}, 7, v0")
    A(f"s_and_b32 s40, s3, 1\ns_lshl_b32 s40, s40, 13")
    A(f"v_add_u32 v{tmp}, s40, v{tmp}")
    if not OPT["pf"]: A(f"v_mov_b32 v{tmp}, 0")
    A(f"global_load_dword v{dst}, v{tmp}, s[38:39] {OPT['pfnt']}")
    A.label(sk)

wM, wQ, wO, wTR, T0, T1, T2, T3, vPF = 3, 4, 5, 6, 7, 8, 9, 10, 11
wC = 12; wXS = 13; wX = 16; wXO = 24; wWF = 40; wD = 56
def swz_chunk(dst):
    A(f"v_lshlrev_b32 v{dst}, 1, v1\nv_xor_b32 v{dst}, v0, v{dst}\nv_and_b32 v{dst}, 7, v{dst}\nv_lshlrev_b32 v{dst}, 4, v{dst}")
def unit_dma(srdr, s0, s1, base):
    A(f"s_add_u32 m0, s42, {base}")
    A(f"buffer_load_dwordx4 v{wM}, {srdr}, {s0} offen {NT} lds")
    A(f"s_add_u32 m0, s42, {base+8192}")
    A(f"buffer_load_dwordx4 v{wM}, {srdr}, {s1} offen {NT} lds")
def tr_setup():
    VX(wTR, 32, 0, (2, 4, 7), (3, 2, 5), (0, 2, 3))
    SX("s40", XL, ("s3", 0, 2, 8))
    VX(82, 32, "s40", (0, 6, 2))
    VX(83, 32, "s40", (2, 1, 7), (4, 2, 3))
def silu_operand(cnt):
    A(f"s_waitcnt vmcnt({cnt})")
    A(f"v_lshlrev_b32 v32, 16, v{wC}\nv_and_b32 v33, 0xffff0000, v{wC}")
    A(f"v_mul_f32 v34, {f32(-math.log2(math.e))}, v32\nv_mul_f32 v35, {f32(-math.log2(math.e))}, v33")
    A("v_exp_f32 v34, v34\nv_exp_f32 v35, v35")
    A("v_add_f32 v34, 1.0, v34\nv_add_f32 v35, 1.0, v35")
    A("v_rcp_f32 v34, v34\nv_rcp_f32 v35, v35")
    A("v_mul_f32 v32, v32, v34\nv_mul_f32 v33, v33, v35")
    A("v_cvt_pk_bf16_f32 v32, v32, v33")
    A("ds_write_b32 v82, v32")
    A("s_waitcnt lgkmcnt(0)")
    A(f"ds_read2_b64 v[{wXO}:{wXO+3}], v83 offset0:0 offset1:4\nds_read2_b64 v[{wXO+4}:{wXO+7}], v83 offset0:8 offset1:12")
def unit_mfma(s_c0, s_c1, base):
    SX("s40", 0, ("s3", 0, 2, 5)); A(f"v_xor_b32 v32, s40, v{wTR}\nv_add_u32 v32, {base}, v32")
    for k in range(2):
        for seg in range(2):
            for h in range(2):
                r = wWF + seg*8 + k*4 + h*2
                A(f"ds_read_b64_tr_b16 v[{r}:{r+1}], v32 offset:{seg*8192 + k*4096 + h*2048}")
    for i in range(4):
        A(f"v_mov_b32 v{wD+i}, {s_c0}\nv_mov_b32 v{wD+4+i}, {s_c1}")
    A("s_waitcnt lgkmcnt(0)")
    for k in range(2):
        for seg in range(2):
            mfma(wD + 4*seg, wXO + 4*k, wWF + seg*8 + k*4, wD + 4*seg)
def sum8(dst, r):
    A(f"v_add_f32 v32, v{r}, v{r+1}\nv_add_f32 v33, v{r+2}, v{r+3}\nv_add_f32 v34, v{r+4}, v{r+5}\nv_add_f32 v35, v{r+6}, v{r+7}")
    A(f"v_add_f32 v32, v32, v33\nv_add_f32 v34, v34, v35\nv_add_f32 v{dst}, v32, v34")

STAMP(0)
if STAMPS:
    for i in range(1, 16): A(f"s_mov_b32 s{64+2*i}, 0")
A("s_cmp_ge_u32 s2, 256\ns_cbranch_scc1 L_end")
kload(RW, 104); kload(RC, 80); kload(RE, 72); kload(RD, 0)
A("s_getpc_b64 s[38:39]")
A("v_lshrrev_b32 v1, 6, v0")
A("v_and_b32 v0, 63, v0")
A("s_and_b32 s4, s2, 7")
A("v_readfirstlane_b32 s3, v1")
A("v_lshrrev_b32 v1, 4, v0")
A("v_and_b32 v2, 15, v0")
A("s_bfe_u32 s5, s2, 0x40003\ns_bfe_u32 s6, s2, 0x10006\ns_bfe_u32 s7, s2, 0x30003")
A("s_lshl1_add_u32 s58, s4, s6")
A("s_cmp_ge_u32 s2, 128\ns_cselect_b32 s40, 24, 8\ns_cselect_b32 s41, 32, 16")
A("s_load_dwordx2 s[8:9], s[0:1], s40\ns_load_dwordx2 s[12:13], s[0:1], s41")
A("s_cselect_b32 s10, 22, 25\ns_lshl_b32 s10, 1, s10")
A("s_mov_b32 s14, s10\ns_mov_b32 s11, 0x00020000\ns_mov_b32 s15, 0x00020000")
code_prefetch(T0, vPF)
srd(RW, WS_BYTES); srd(RC, 3145728); srd(RE, 2048); srd(RD, 2048)
swz_chunk(T1)
A(f"v_lshrrev_b32 v{T0}, 3, v0")
A(f"v_mul_u32_u24 v{wM}, 6144, v{T0}\nv_add_u32 v{wM}, v{wM}, v{T1}")
SX("s41", 0, ("s7", 6), ("s3", 3))
A("s_mul_i32 s41, s41, 6144")
A("s_lshl_b32 s42, s3, 10\ns_lshl_b32 s46, s7, 7")
VX(T2, T3, 0, (5, 1, 10), (0, 5, 2))
A("s_cmp_ge_u32 s2, 128\ns_cbranch_scc1 L_W")

vE, vO, vQO = 120, 121, 122
vKA = 108
vQ = 14
vKF = 16
vVF = 48
vQF = 80
vS = 96
vP = 104
vOA = 108
vST = 114
vOAD, vSAD = 116, 117
QN = OPT["qn"]; SLOW = max(1, OPT["slow"])
A(f"v_lshlrev_b32 v{T3}, 1, v1\nv_xor_b32 v{T3}, v2, v{T3}\nv_lshlrev_b32 v{T3}, 4, v{T3}")
A(f"v_lshl_or_b32 v{vE}, v1, 8, v{T3}\nv_xor_b32 v{vO}, 0x80, v{vE}")
A("s_lshl_b32 s43, s3, 13")
SX("s56", 6144*256, ("s6", 24), ("s4", 21), ("s7", 16), ("s43", 0))
A("s_add_u32 s57, s56, 4096")
def kv_dma(u):
    r = RA if u < 8 else RB
    A(f"buffer_load_dwordx4 v{vE if u%2==0 else vO}, {r}, {'s56' if u%8 < 4 else 's57'} offen offset:{(u%4)*1024} {NT} lds")
A("s_cmp_ge_u32 s4, 4\ns_cbranch_scc1 L_nA")
if "noA" in OPT["abl"]: A("s_branch L_nA")
A("s_lshl_b32 s49, s58, 7\ns_add_u32 s51, s41, s49\ns_add_u32 s52, s51, 1024")
VX(T0, T3, 0, (4, 1, 10), (5, 1, 8), (0, 4, 4))
VX(T1, T3, 0, (4, 1, 10), (0, 4, 1))
SX("s50", 0, ("s3", 0, 2, 5), ("s49", 0))
A(f"v_mov_b32 v{wXS}, 0")
A("s_waitcnt lgkmcnt(0)")
unit_dma(RC, "s51", "s52", PA)
A(f"s_load_dword {sTAG}, s[16:17], 0")
sk = L("nx0")
A(f"s_cmp_ge_u32 s3, 4\ns_cbranch_scc1 {sk}")
A(f"buffer_load_dword v{wC}, v{T2}, {RE}, s46 offen {SNT}")
A(f"buffer_load_dwordx4 v[{wX}:{wX+3}], v{T0}, {RD}, 0 offen {SNT}")
A(f"buffer_load_dwordx4 v[{wX+4}:{wX+7}], v{T0}, {RD}, 0 offen offset:512 {SNT}")
A(f"buffer_load_short_d16_hi v{wXS}, v{T1}, {RD}, s50 offen {SNT}")
A.label(sk)
A("v_mov_b32 v32, -1\nv_mov_b32 v33, -1\nv_mov_b32 v34, -1\nv_mov_b32 v35, -1")
SX("s54", CLR, ("s58", 16), ("s7", 13), ("s42", 0))
A("v_lshlrev_b32 v38, 4, v0")
if "noclr" in OPT["abl"]: A("v_mov_b32 v38, 0x7ffffff0")
A(f"buffer_store_dwordx4 v[32:35], v38, {RW}, s54 offen sc1")
A("s_barrier")
A("s_mov_b32 m0, s43")
for u in range(SLOW): kv_dma(u)
AW = SLOW
tr_setup()
VX(39, 32, 0, (4, 1, 6), (2, 2, 4))
sk = L("nx1")
A(f"s_cmp_ge_u32 s3, 4\ns_cbranch_scc1 {sk}")
SX("s53", H1G, ("s58", 12), ("s3", 10), ("s46", 0))
A("s_cmp_eq_u32 s7, 0\ns_cselect_b32 s54, 1.0, 0")
silu_operand(4 + AW)
A(f"s_waitcnt vmcnt({1+AW})")
A("v_mov_b32 v36, 0\nv_mov_b32 v37, 0\nv_mov_b32 v38, 0x3f803f80")
for i in range(8):
    A(f"v_dot2c_f32_bf16 v36, v{wX+i}, v38\nv_dot2c_f32_bf16 v37, v{wX+i}, v{wX+i}")
for m in ("quad_perm:[1,0,3,2]", "quad_perm:[2,3,0,1]", "row_half_mirror", "row_mirror"):
    A(f"v_add_f32_dpp v36, v36, v36 {m} {DPPM}\nv_add_f32_dpp v37, v37, v37 {m} {DPPM}")
A("v_mov_b32 v38, v36\nv_mov_b32 v35, v37")
A("v_permlane32_swap_b32 v36, v38\nv_permlane32_swap_b32 v37, v35")
A("v_add_f32 v36, v36, v38\nv_add_f32 v37, v37, v35")
A(f"v_mul_f32 v36, {f32(1.0/512)}, v36\nv_mov_b32 v38, {f32(1e-5)}\nv_fmac_f32 v38, {f32(1.0/512)}, v37")
A("v_fma_f32 v38, -v36, v36, v38\nv_rsq_f32 v38, v38")
A(f"v_sub_f32 v{wXS}, v{wXS}, v36\nv_mul_f32 v{wXS}, v{wXS}, v38")
A.label(sk)
A(f"s_waitcnt vmcnt({AW}) lgkmcnt(0)")
A(f"s_add_u32 {sTAG}, {sTAG}, {TAGC:#x}")
A("s_barrier")
sk = L("na2")
A(f"s_cmp_ge_u32 s3, 4\ns_cbranch_scc1 {sk}")
unit_mfma("0", "s54", PA)
A(f"v_mov_b32 v{wD+9}, {sTAG}\nv_mov_b32 v{wD+11}, {sTAG}")
A(f"v_fma_f32 v32, v{wXS}, v{wD+4}, v{wD}")
pack4(32, wD+8, wD+10, 33)
setexec(0x11111111, 0)
A(f"buffer_store_dwordx4 v[{wD+8}:{wD+11}], v39, {RW}, s53 offen sc1")
fullexec()
STAMP(9)
A.label(sk)
A("s_barrier")
A("s_branch L_kv")
A.label("L_nA")
A("s_mov_b32 m0, s43")
A("s_waitcnt lgkmcnt(0)")
for u in range(SLOW): kv_dma(u)
A(f"s_load_dword {sTAG}, s[16:17], 0")
A(f"s_waitcnt {'vmcnt(0) ' if OPT['slow'] else ''}lgkmcnt(0)")
A(f"s_add_u32 {sTAG}, {sTAG}, {TAGC:#x}")
A.label("L_kv")
kload(RC, 48); kload(RD, 56); kload(RE, 64)
for u in range(SLOW, 8):
    if u == 4: A("s_add_u32 m0, m0, 4096")
    kv_dma(u)
TRGF = OPT["trg"]
if TRGF:
    SX("s60", TRG, ("s4", 7), ("s5", 2))
    A("s_cmp_eq_u32 s3, 7\ns_cselect_b32 s40, 0, 0x7ffffff0")
    A(f"v_mov_b32 v126, {sTAG}\nv_mov_b32 v127, s40")
SX("s44", QG, ("s58", 12), ("s3", 10))
vQ = 100
A(f"v_lshlrev_b32 v{vQO}, 4, v0")
wG, wDO, fMF = 124, 125, 123
swz_chunk(T1)
A(f"v_lshrrev_b32 v{T0}, 3, v0\nv_mul_u32_u24 v{wG}, 3584, v{T0}\nv_add_u32 v{wG}, v{wG}, v{T1}\nv_lshl_or_b32 v{wDO}, v{T0}, 10, v{T1}")
srd(RC, 1835008); srd(RD, 1835008); srd(RE, 1835008)
SX("s63", 0, ("s4", 4), ("s5", 0))
SX("s49", 0, ("s63", 0, 2, 7), ("s3", 4))
A("s_mul_i32 s49, s49, 3584")
SX("s50", 0, ("s63", 2, 0, 7))
A(f"s_add_u32 s49, s49, s50\ns_add_u32 s50, s49, {8*3584-1024}")
SX("s51", 0, ("s63", 14), ("s3", 7))
A(f"s_add_u32 s52, s51, {8*1024-1024}")
VX(fMF, T2, 0, (0, 3, 7), (3, 1, 5), (4, 2, 3))
SX("s59", MG + 8*4096, ("s63", 0, 2, 12), ("s3", 1, 1, 6), ("s3", 0, 1, 11))
SX("s40", 0, ("s3", 2, 0, 14)); A("s_sub_u32 s59, s59, s40")
A("s_lshl_b32 s42, s3, 11")
VX(T2, 0, 0, (0, 3, 1))
A(f"v_xor_b32 v{T2}, v1, v{T2}\nv_lshlrev_b32 v{T2}, 4, v{T2}\nv_lshl_or_b32 v{T2}, v2, 8, v{T2}")
A(f"v_add_u32 v{vKA}, s43, v{T2}")
for t in range(1, 4):
    A(f"v_xor_b32 v{vKA+t}, {t*64:#x}, v{vKA}")
vQW, vQR, vVR, vMX, vPW, vPR, vMW = 3, 4, 5, 6, 12, 13, 112
SX("s40", QL, ("s3", 5))
VX(vQW, T2, "s40", (1, 4, 7), (5, 1, 4), (0, 1, 3))
VX(vQR, T2, QL, (4, 2, 7), (0, 3, 4))
A(f"v_bfe_u32 v{T0}, v0, 2, 3\nv_xor_b32 v{T0}, s3, v{T0}")
VX(vVR, T2, VREG, (2, 4, 8), (0, 2, 3))
A(f"v_lshl_or_b32 v{vVR}, v{T0}, 5, v{vVR}")
VX(vMX, T2, MISC, (0, 2, 5))
A(f"s_lshl_b32 s40, s3, 2\nv_add_u32 v{vMW}, s40, v{vMX}")
VX(vPR, T2, PL, (4, 2, 6), (0, 2, 4))
A(f"s_lshl_b32 s40, s3, 8\nv_add_u32 v{vPW}, s40, v{vPR}")
VX(vOAD, T2, 0, (0, 2, 12), (4, 2, 4))
SX("s53", OG, ("s4", 14), ("s3", 1, 0, 10), ("s5", 6), ("s3", 0, 1, 3))
VX(vSAD, T2, 0, (0, 2, 7))
SX("s54", SG, ("s4", 9), ("s5", 3))
A(f"s_mov_b32 s55, {f32(C1)}")
A(f"v_mov_b32 v{T0}, 0")
A("s_waitcnt lgkmcnt(0)")
if OPT["touch"]:
    sk = L("ntc")
    A(f"s_cmp_lg_u32 s3, 1\ns_cbranch_scc1 {sk}")
    for r in (RC, RD, RE):
        A(f"buffer_load_dword v{vPF}, v{T0}, {r}, 0 offen {NT}")
    A.label(sk)
A(f"s_add_u32 m0, m0, {VREG-4096}")
if OPT["kvbar"]: A("s_barrier")
for u in range(8, 16):
    if u == 12: A("s_add_u32 m0, m0, 4096")
    if u == TRGF: A(f"buffer_store_dword v126, v127, {RW}, s60 offen")
    kv_dma(u)
STAMP(2)
if OPT["abl"]:
    A("s_waitcnt vmcnt(0)")
    STAMP(4)
    A("s_branch L_exit")
A(f"s_waitcnt vmcnt({9 if TRGF else 8})")
for T in range(2):
    for t in range(4):
        r = vKF + (T*4+t)*4
        A(f"ds_read_b128 v[{r}:{r+3}], v{vKA+t} offset:{T*4096}")
sk = L("nqp")
A(f"s_cmp_ge_u32 s3, 4\ns_cbranch_scc1 {sk}")
def q_load():
    A(f"buffer_load_dwordx4 v[{vQ}:{vQ+3}], v{vQO}, {RW}, s44 offen sc1")
def q_chk():
    A(f"v_xor_b32 v{T0}, {sTAG}, v{vQ+1}\nv_bitop3_b32 v{T0}, v{vQ+3}, {sTAG}, v{T0} bitop3:0xbe\nv_cmp_ne_u32 vcc, 0, v{T0}")
poll(q_load, q_chk, sleep=OPT['s2'])
STAMP(4)
A(f"v_mov_b32 v{vQ+1}, v{vQ+2}")
A(f"ds_write_b64 v{vQW}, v[{vQ}:{vQ+1}]")
A.label(sk)
A("s_waitcnt lgkmcnt(0)\ns_barrier")
STAMP(5)
for t in range(4):
    A(f"ds_read_b128 v[{vQF+4*t}:{vQF+4*t+3}], v{vQR} offset:{t*512}")
A("s_waitcnt lgkmcnt(0)")
def v_tr(kb, T):
    r = vVF + kb*4 + T*2
    A(f"ds_read_b64_tr_b16 v[{r}:{r+1}], v{vVR} offset:{(32*kb+16*T)*256}")
EARLY_T = []
for kb in range(8):
    if kb < 4:
        for T in range(2):
            mfma(vS + 4*T, vKF + (T*4+kb)*4, vQF + 4*kb, None if kb == 0 else vS + 4*T)
    for T in EARLY_T: v_tr(kb, T)
for i in range(8):
    A(f"v_add_f32_dpp v{vS+i}, v{vS+i}, v{vS+i} row_ror:4 {DPPM}")
A(f"v_max3_f32 v{T0}, v{vS}, v{vS+1}, v{vS+2}\nv_max3_f32 v{T2}, v{vS+3}, v{vS+4}, v{vS+5}")
A(f"v_max3_f32 v{T0}, v{T0}, v{vS+6}, v{vS+7}\nv_max_f32 v{T3}, v{T0}, v{T2}\nv_max_f32 v{T0}, v{T0}, v{T2}")
A(f"v_permlane32_swap_b32 v{T0}, v{T3}")
A(f"v_max_f32 v{T2}, v{T0}, v{T3}\nv_max_f32 v{T0}, v{T0}, v{T3}")
A(f"v_permlane16_swap_b32 v{T0}, v{T2}")
A(f"v_max_f32 v{T0}, v{T0}, v{T2}")
A(f"ds_write_b32 v{vMW}, v{T0}")
STAMP(14)
A("s_waitcnt lgkmcnt(0)\ns_barrier")
A(f"ds_read_b128 v[{vQF}:{vQF+3}], v{vMX}\nds_read_b128 v[{vQF+4}:{vQF+7}], v{vMX} offset:16")
A("s_waitcnt lgkmcnt(0)")
A(f"v_max3_f32 v{T0}, v{vQF}, v{vQF+1}, v{vQF+2}\nv_max3_f32 v{T2}, v{vQF+3}, v{vQF+4}, v{vQF+5}")
A(f"v_max3_f32 v{T0}, v{T0}, v{vQF+6}, v{vQF+7}\nv_max_f32 v{T0}, v{T0}, v{T2}")
A(f"v_mul_f32 v{vST}, s55, v{T0}")
for i in range(8):
    A(f"v_fma_f32 v{vS+i}, v{vS+i}, s55, -v{vST}")
for i in range(8):
    A(f"v_exp_f32 v{vS+i}, v{vS+i}")
for i in range(4):
    A(f"v_cvt_pk_bf16_f32 v{vP+i}, v{vS+2*i}, v{vS+2*i+1}")
A(f"ds_write_b128 v{vPW}, v[{vP}:{vP+3}]")
rowsum([vS, vS+4])
A(f"v_add_f32 v{T0}, v{vS}, v{vS+4}\nv_add_f32 v{T3}, v{vS}, v{vS+4}")
A(f"v_permlane32_swap_b32 v{T0}, v{T3}")
A(f"v_add_f32 v{T2}, v{T0}, v{T3}\nv_add_f32 v{T0}, v{T0}, v{T3}")
A(f"v_permlane16_swap_b32 v{T0}, v{T2}")
A(f"v_add_f32 v{T0}, v{T0}, v{T2}")
A(f"ds_write_b32 v{vMW}, v{T0} offset:128")
A("s_waitcnt lgkmcnt(0)\ns_barrier")
STAMP(3)
if STAMPS: A("s_waitcnt lgkmcnt(0)")
LATE_T = [T for T in range(2) if T not in EARLY_T]
A(f"ds_read_b128 v[{vQF}:{vQF+3}], v{vMX} offset:128\nds_read_b128 v[{vQF+4}:{vQF+7}], v{vMX} offset:144")
for kb in range(8):
    r = vKF + kb*4
    A(f"ds_read_b128 v[{r}:{r+3}], v{vPR} offset:{kb*256}")
def st_pub(vm=None):
    sk = L("nst"); sk2 = L("nsu")
    A(f"s_cmp_lg_u32 s3, 0\ns_cbranch_scc1 {sk}")
    A("s_waitcnt lgkmcnt(8)")
    rowsum([vQF, vQF+4])
    A(f"v_add_f32 v{vST+1}, v{vQF}, v{vQF+4}")
    A("s_mov_b64 exec, 15")
    A(f"buffer_store_dwordx2 v[{vST}:{vST+1}], v{vSAD}, {RW}, s54 offen")
    fullexec()
    if vm is not None:
        A(f"s_waitcnt vmcnt({vm})\ns_branch {sk2}")
    A.label(sk)
    if vm is not None:
        A(f"s_waitcnt vmcnt({vm-1})")
        A.label(sk2)
if LATE_T:
    st_pub(1)
    A("s_waitcnt lgkmcnt(0)\ns_barrier")
    STAMP(6)
    if STAMPS: A("s_waitcnt lgkmcnt(0)")
    per = len(LATE_T)
    AHEAD = 8 if per == 1 else 6
    for kb in range(AHEAD):
        for T in LATE_T: v_tr(kb, T)
    for kb in range(8):
        A(f"s_waitcnt lgkmcnt({(min(8, AHEAD + kb) - kb - 1) * per})")
        mfma(vOA, vVF + kb*4, vKF + kb*4, None if kb == 0 else vOA)
        if AHEAD + kb < 8:
            for T in LATE_T: v_tr(AHEAD + kb, T)
else:
    st_pub()
    for kb in range(8):
        A(f"s_waitcnt lgkmcnt({7-kb})")
        mfma(vOA, vVF + kb*4, vKF + kb*4, None if kb == 0 else vOA)
setexec(0x000f000f, 0x000f000f)
A(f"v_cvt_pk_bf16_f32 v{vP}, v{vOA}, v{vOA+1}\nv_cvt_pk_bf16_f32 v{vP+1}, v{vOA+2}, v{vOA+3}")
A(f"buffer_store_dwordx2 v[{vP}:{vP+1}], v{vOAD}, {RW}, s53 offen")
fullexec()
STAMP(7)
A("s_cmp_lt_u32 s4, 7\ns_cbranch_scc1 L_ffn")
A("s_cmp_lg_u32 s3, 0\ns_cbranch_scc1 L_exit")
VX(T1, T2, 0, (3, 1, 14), (0, 3, 11))
A(f"s_mov_b32 s46, {X4 + 7*128:#x}")
poll(lambda: A(f"buffer_load_dword v16, v{T1}, {RW}, s46 offen sc1"), lambda: A(f"v_cmp_eq_u32 vcc, -1, v16"), sleep=8)
A("s_branch L_exit")
A.label("L_ffn")
def mf_loads():
    A(f"buffer_load_dwordx2 v[16:17], v{fMF}, {RW}, s59 offen sc1")
    A(f"buffer_load_dwordx2 v[18:19], v{fMF}, {RW}, s59 offen offset:1024 sc1")
mf_loads()
A(f"s_add_u32 m0, s42, {FG}")
A(f"buffer_load_dwordx4 v{wG}, {RC}, s49 offen {NT} lds")
A(f"buffer_load_dwordx4 v{wG}, {RC}, s50 offen offset:1024 {NT} lds")
A(f"s_add_u32 m0, s42, {FG+16384}")
A(f"buffer_load_dwordx4 v{wG}, {RD}, s49 offen {NT} lds")
A(f"buffer_load_dwordx4 v{wG}, {RD}, s50 offen offset:1024 {NT} lds")
A(f"s_add_u32 m0, s42, {FD}")
A(f"buffer_load_dwordx4 v{wDO}, {RE}, s51 offen {NT} lds")
A(f"buffer_load_dwordx4 v{wDO}, {RE}, s52 offen offset:1024 {NT} lds")
fYW, fYR, fWR, fGA, fGR, fSTA, fY6A = 113, 114, 115, 116, 118, 119, 120
fG, fU, fS = 121, 122, 117
wOF, wTA = 72, 108
VX(wTR, 32, 0, (2, 4, 7), (3, 2, 5), (0, 2, 3))
A("s_lshr_b32 s56, s3, 2\ns_and_b32 s57, s3, 3")
VX(fYR, 32, YL0, (0, 6, 4))
A(f"s_lshl_b32 s40, s3, 10\nv_add_u32 v{fYW}, s40, v{fYR}")
A(f"s_lshl_b32 s40, s57, 5\nv_xor_b32 v{fWR}, s40, v{wTR}")
SX("s40", FG, ("s56", 14)); A(f"v_add_u32 v{fWR}, s40, v{fWR}")
VX(fGA, 32, 0, (0, 6, 2))
SX("s61", G5 - 64, ("s63", 2, 0, 12), ("s57", 10), ("s63", 0, 2, 8), ("s56", 7))
A(f"s_add_u32 s62, s61, {US5-G5}")
VX(fGR, 32, 0, (2, 1, 7), (3, 1, 6), (4, 2, 4), (0, 2, 2))
VX(fSTA, 32, 0, (0, 3, 5), (3, 1, 4))
VX(fY6A, 32, 0, (3, 1, 14), (5, 1, 12), (4, 1, 4))
VX(wOF, 32, 0, (0, 3, 7), (3, 1, 6), (4, 2, 4))
SX("s47", Y4, ("s56", 14), ("s63", 0, 2, 12), ("s57", 10))
SX("s55", ST5, ("s4", 8))
SX("s49", Y6, ("s3", 16), ("s63", 5))
A("s_add_u32 s50, s49, 8192\ns_add_u32 s51, s49, 32768\ns_add_u32 s52, s49, 40960")
A(f"s_mov_b32 s41, {f32(1.0/512)}\ns_mov_b32 s43, {f32(1e-5)}")
A(f"s_add_u32 s40, s42, {FD}\nv_add_u32 v{wTA}, s40, v{wTR}")
for t in range(1, 4):
    A(f"v_xor_b32 v{wTA+t}, {t*32:#x}, v{wTA}")
poll(mf_loads, lambda: chk_empty4(16, 33), first_issued=True, first_wait=6, sleep=4)
A(f"ds_write_b128 v{fYW}, v[16:19]")
A("s_waitcnt vmcnt(0) lgkmcnt(0)\ns_barrier")
STAMP(10)
fWF = 84; fYO = 16
YO = [16, 20, 24, 28, 32, 36, 100, 104]
for k in range(4):
    for h in range(2):
        r = fWF + 4*k + 2*h
        A(f"ds_read_b64_tr_b16 v[{r}:{r+1}], v{fWR} offset:{k*4096 + h*2048}")
for u in range(8):
    A(f"ds_read_b128 v[{YO[u]}:{YO[u]+3}], v{fYR} offset:{u*1024}")
A("s_waitcnt lgkmcnt(0)")
for k in range(4):
    for pi in range(2):
        mfma(wD + 4*pi, YO[4*pi+k], fWF + 4*k, None if k == 0 else wD + 4*pi)
rowsum([wD, wD+4])
A(f"v_permlane16_swap_b32 v{wD}, v{wD+4}")
A(f"v_add_f32 v{wD+1}, v{wD}, v{wD+4}\nv_add_f32 v{wD}, v{wD}, v{wD+4}")
A(f"v_permlane16_swap_b32 v{wD}, v{wD+1}")
A(f"v_cvt_pk_bf16_f32 v{wD}, v{wD}, v{wD+1}")
setexec(0xffff0000, 0x0000ffff)
A(f"buffer_store_dword v{wD}, v{fGA}, {RW}, s62 offen sc1")
fullexec()
STAMP(1)
SX("s53", G5, ("s63", 10))
A(f"s_add_u32 s54, s53, {US5-G5}")
def us_loads():
    for k in range(4):
        A(f"buffer_load_dword v{40+k}, v{fGR}, {RW}, s54 offen offset:{256*k} sc1")
def y_load():
    A(f"buffer_load_dwordx4 v[16:19], v{wOF}, {RW}, s47 offen sc1")
fDF = 64
for tau in range(4):
    A(f"ds_read_b64_tr_b16 v[{fDF+2*tau}:{fDF+2*tau+1}], v{wTA+tau}")
poll(y_load, lambda: chk_empty4(16, 33))
STAMP(11)
A(f"ds_write_b128 v{fYW}, v[16:19] offset:8192")
us_loads()
A("s_waitcnt lgkmcnt(0)\ns_barrier")
for u in range(8):
    A(f"ds_read_b128 v[{YO[u]}:{YO[u]+3}], v{fYR} offset:{8192+u*1024}")
for u in range(8):
    A(f"s_waitcnt lgkmcnt({7-u})")
    mfma(wD, YO[u], fWF + 4*(u & 3), None if u == 0 else wD)
A(f"v_add_f32 v{wD}, v{wD}, v{wD+1}\nv_add_f32 v{wD+2}, v{wD+2}, v{wD+3}")
A(f"v_add_f32 v{wD+1}, v{wD}, v{wD+2}\nv_add_f32 v{wD}, v{wD}, v{wD+2}")
A(f"v_permlane16_swap_b32 v{wD}, v{wD+1}")
A(f"v_add_f32 v{fG}, v{wD}, v{wD+1}")
def g_store(fl):
    setexec(0xffff0000, 0x0000ffff)
    A(f"buffer_store_dword v{fG}, v{fGA}, {RW}, s61 offen {fl}")
g_store("")
fullexec()
STAMP(12)
def g_loads():
    A(f"buffer_load_dwordx4 v[24:27], v{fSTA}, {RW}, s55 offen sc1")
    for k in range(4):
        A(f"buffer_load_dword v{20+k}, v{fGR}, {RW}, s53 offen offset:{256*k} sc1")
poll(us_loads, lambda: chk_empty4(40, 33), first_issued=True, first_wait=1)
g_loads()
for k in range(4):
    A(f"v_lshlrev_b32 v{44+k}, 16, v{40+k}\nv_and_b32 v{40+k}, 0xffff0000, v{40+k}")
rowsum([44, 40])
A(f"v_mov_b32 v{fU}, v44\nv_mov_b32 v{fS}, v40")
def g_chk():
    A("v_add_f32 v24, v24, v26\nv_add_f32 v25, v25, v27")
    A("v_add_f32 v20, v20, v21\nv_add_f32 v22, v22, v23")
    A(f"v_add_f32_dpp v24, v24, v24 quad_perm:[1,0,3,2] {DPPM}\nv_add_f32_dpp v25, v25, v25 quad_perm:[1,0,3,2] {DPPM}")
    A("v_add_f32 v20, v20, v22")
    A(f"v_add_f32_dpp v24, v24, v24 quad_perm:[2,3,0,1] {DPPM}\nv_add_f32_dpp v25, v25, v25 quad_perm:[2,3,0,1] {DPPM}")
    A("v_add_f32 v26, v24, v25")
    A("v_cmp_u_f32 vcc, v20, v26")
poll(g_loads, g_chk, first_issued=True)
STAMP(13)
A(f"v_add_f32_dpp v24, v24, v24 row_half_mirror {DPPM}\nv_add_f32_dpp v25, v25, v25 row_half_mirror {DPPM}")
A("v_mov_b32 v26, s43")
A("v_mul_f32 v24, s41, v24")
A("v_fmac_f32 v26, s41, v25")
A("v_fma_f32 v26, -v24, v24, v26")
A(f"v_fma_f32 v20, -v24, v{fU}, v20")
A("v_rsq_f32 v26, v26")
A(f"v_fma_f32 v20, v20, v26, v{fS}")
A("v_max_f32 v21, 0, v20")
A(f"v_mul_f32_dpp v22, v20, v21 row_shl:4 {DPPM}")
pack4(22, 24, 25, 23)
for tau in range(4):
    d = 32 + 4*tau
    A(f"v_mfma_f32_16x16x16_bf16 v[{d}:{d+3}], v[{fDF+2*tau}:{fDF+2*tau+1}], v[24:25], 0")
setexec(0x01010101, 0x01010101)
for tau in range(4):
    d = 32 + 4*tau
    A(f"buffer_store_dwordx4 v[{d}:{d+3}], v{fY6A}, {RW}, s{49+tau} offen sc1")
STAMP(8)
A("s_waitcnt vmcnt(0)")
g_store("sc1")
A("s_branch L_exit")

A(".p2align 6")
A.label("L_W")
A(f"v_lshl_or_b32 v{wQ}, v{T0}, 13, v{T1}\nv_lshl_or_b32 v{wO}, v{T0}, 10, v{T1}")
kload(RF, 88)
A("s_lshl_b32 s48, s3, 12")
SX("s43", 0, ("s6", 8), ("s3", 5))
SX("s44", 0, ("s43", 13), ("s4", 10), ("s46", 0))
SX("s51", 2048, ("s58", 8), ("s41", 0))
A("s_add_u32 s52, s51, 128\ns_add_u32 s49, s51, 2048\ns_add_u32 s50, s52, 2048")
A(f"s_add_u32 m0, s48, {WQL}")
A("s_waitcnt lgkmcnt(0)")
STAMP(1)
if "noW" in OPT["abl"]: A("s_branch L_exit")
for u in range(4):
    if u: A(f"s_add_u32 s44, s44, {8*8192-1024}")
    A(f"buffer_load_dwordx4 v{wQ}, {RA}, s44 offen offset:{u*1024} {NT} lds")
A(f"s_load_dword {sTAG}, s[16:17], 0")
A(f"buffer_load_dword v{wC}, v{T2}, {RE}, s46 offen {SNT}")
srd(RF, 2048)
A("v_mov_b32 v75, 0\nv_mov_b32 v113, 0")
SX("s47", 0, ("s4", 19), ("s43", 10), ("s46", 0))
if OPT["touch"]:
    sk = L("ntc")
    A(f"s_cmp_lg_u32 s3, 5\ns_cbranch_scc1 {sk}")
    A(f"buffer_load_dword v{vPF}, v75, {RB}, s47 offen {NT}")
    A(f"buffer_load_dword v{vPF}, v75, {RC}, s51 offen {NT}")
    A(f"buffer_load_dword v{vPF}, v75, {RF}, 0 offen")
    A.label(sk)
tr_setup()
wRW, wRR, wOF, wTA = 14, 15, 72, 108
SX("s40", RED, ("s3", 9)); VX(wRW, 32, "s40", (0, 6, 2))
SX("s40", RED, ("s3", 8)); VX(wRR, 32, "s40", (0, 6, 2))
VX(wOF, 32, 0, (0, 3, 7), (3, 1, 6), (4, 2, 4))
SX("s53", H1G, ("s43", 6))
VX(T3, 32, 0, (0, 2, 12))
A("s_xor_b32 s57, s6, 1")
SX("s57", H1G + 4, ("s57", 14), ("s3", 7))
wQA = 73; wQD = 76; wMD = 74; wMA = 13
VX(wQA, 32, 0, (5, 1, 12), (0, 5, 2))
SX("s56", QG, ("s4", 13), ("s5", 8), ("s3", 7))
A(f"v_add_u32 v{wTA}, s48, v{wTR}")
for t in range(1, 4):
    A(f"v_xor_b32 v{wTA+t}, {t*32:#x}, v{wTA}")
VX(wMA, 32, 0, (0, 6, 1))
SX("s55", MG, ("s58", 12), ("s3", 10), ("s46", 0))
SX("s40", 0, ("s58", 2, 0, 3), ("s7", 0))
A("s_cmp_eq_u32 s40, 16\ns_cselect_b32 s41, 1.0, 0")
silu_operand(0)
A(f"s_add_u32 {sTAG}, {sTAG}, {TAGC:#x}")
A(f"v_mov_b32 v{wQD+1}, {sTAG}\nv_mov_b32 v{wQD+3}, {sTAG}")
def blk_frags(off):
    for t in range(4):
        for h in range(2):
            r = wWF + 4*t + 2*h
            A(f"ds_read_b64_tr_b16 v[{r}:{r+1}], v{wTA+t} offset:{off + h*2048}")
blk_frags(WQL)
STAMP(3)
if OPT["abl"]: A("s_branch L_exit")
def h1_loads():
    A(f"buffer_load_dwordx4 v[16:19], v{wOF}, {RW}, s53 offen sc1")
    A(f"buffer_load_dwordx4 v[20:23], v{wOF}, {RW}, s53 offen offset:1024 sc1")
    A(f"buffer_load_dword v33, v{T3}, {RW}, s57 offen sc1")
def h1_chk():
    A(f"v_xor_b32 v33, {sTAG}, v33")
    for r in (17, 19, 21, 23):
        A(f"v_bitop3_b32 v33, v{r}, {sTAG}, v33 bitop3:0xbe")
    A("v_cmp_ne_u32 vcc, 0, v33")
await_any(lambda: A(f"buffer_load_dword v33, v{T3}, {RW}, s57 offen sc1"), lambda: A(f"v_cmp_eq_u32 vcc, {sTAG}, v33"), OPT["s1"])
poll(h1_loads, h1_chk, sleep=OPT["s2"])
STAMP(4)
A("v_mov_b32 v17, v18\nv_mov_b32 v18, v20\nv_mov_b32 v19, v22")
A("s_waitcnt lgkmcnt(0)")
def blk_mfma(op):
    for t in range(4):
        mfma(wD + 4*t, op, wWF + 4*t, None)
def blk_reduce():
    A(f"v_permlane16_swap_b32 v{wD}, v{wD+4}\nv_permlane16_swap_b32 v{wD+8}, v{wD+12}")
    A(f"v_add_f32 v{wD}, v{wD}, v{wD+4}\nv_add_f32 v{wD+8}, v{wD+8}, v{wD+12}")
    A(f"ds_write2st64_b32 v{wRW}, v{wD}, v{wD+8} offset0:0 offset1:1")
    A("s_waitcnt lgkmcnt(0)\ns_barrier")
def blk_final():
    for i in range(4):
        A(f"ds_read2st64_b32 v[{32+2*i}:{33+2*i}], v{wRR} offset0:{4*i} offset1:{4*i+2}")
    A("s_waitcnt lgkmcnt(0)")
    A("v_add_f32 v32, v32, v33\nv_add_f32 v34, v34, v35\nv_add_f32 v36, v36, v37\nv_add_f32 v38, v38, v39")
    A("v_add_f32 v32, v32, v34\nv_add_f32 v36, v36, v38\nv_add_f32 v32, v32, v36")
blk_mfma(16)
rowsum([wD, wD+4, wD+8, wD+12])
blk_reduce()
sk = L("nq"); sk2 = L("nm")
A(f"s_cmp_ge_u32 s3, 2\ns_cbranch_scc1 {sk}")
blk_final()
pack4(32, wQD, wQD+2, 33)
setexec(0x11111111, 0x11111111)
A(f"buffer_store_dwordx4 v[{wQD}:{wQD+3}], v{wQA}, {RW}, s56 offen")
A.label(sk)
STAMP(5)
fullexec()
A("s_barrier")
unit_dma(RC, "s51", "s52", PB)
SX("s59", Y6, ("s5", 15), ("s4", 12))
A("s_cmp_eq_u32 s3, 7\ns_cselect_b32 s40, 0, -1")
A("v_mov_b32 v36, s40\nv_mov_b32 v37, s40\nv_lshlrev_b32 v38, 3, v0")
SX("s40", 0, ("s3", 9), ("s59", 0))
A(f"buffer_store_dwordx2 v[36:37], v38, {RW}, s40 offen sc1")
wGA, wCB, wXA, wXAD = 74, 75, 80, 81
VX(T1, 32, 0, (0, 4, 6), (4, 2, 4))
SX("s53", OG, ("s4", 14), ("s43", 5))
SX("s54", SG, ("s4", 9), ("s43", 7, 0, 7))
A(f"v_lshlrev_b32 v{T0}, 2, v1\nv_xor_b32 v{T0}, v0, v{T0}\nv_and_b32 v{T0}, 7, v{T0}\nv_lshlrev_b32 v{T0}, 3, v{T0}")
A(f"v_lshrrev_b32 v32, 5, v0\nv_lshl_or_b32 v{T0}, v32, 6, v{T0}")
VX(wXAD, 32, 0, (5, 1, 6), (2, 2, 4), (4, 1, 3))
SX("s60", X4, ("s7", 11), ("s3", 10), ("s6", 14), ("s4", 7))
A(f"s_add_u32 s44, s60, {Y4-X4}")
A("s_waitcnt vmcnt(0)\ns_barrier")
STAMP(2)
sk = L("nmb")
A(f"s_cmp_ge_u32 s3, 4\ns_cbranch_scc1 {sk}")
unit_mfma("s41", "s41", PB)
A("v_cmp_gt_u32 vcc, 32, v0")
A(f"v_cndmask_b32 v32, v{wD+4}, v{wD}, vcc")
pack4(32, 34, 35, 33)
setexec(0x11111111, 0x11111111)
A(f"buffer_store_dwordx2 v[34:35], v{wMA}, {RW}, s55 offen sc1")
fullexec()
A.label(sk)
if OPT["trg"]:
    VX(39, 32, 0, (0, 4, 2))
    SX("s40", TRG, ("s4", 7))
    A(f"s_mov_b32 {sCNT}, 0")
    A.label("L_trg")
    A(f"buffer_load_dword v33, v39, {RW}, s40 offen sc1")
    A("s_waitcnt vmcnt(0)")
    A(f"v_cmp_ne_u32 vcc, {sTAG}, v33")
    A("s_cbranch_vccz L_trgd")
    A(f"s_sleep 4\ns_add_u32 {sCNT}, {sCNT}, 1\ns_cmp_lt_u32 {sCNT}, {OPT['trgmax']}\ns_cbranch_scc1 L_trg")
    A.label("L_trgd")
    STAMP(6)
A(f"s_add_u32 m0, s48, {WOL}")
for u in range(4):
    if u: A(f"s_add_u32 s47, s47, {8*1024-1024}")
    A(f"buffer_load_dwordx4 v{wO}, {RB}, s47 offen offset:{u*1024} {NT} lds")
sk = L("ncs")
A(f"s_cmp_ge_u32 s3, 2\ns_cbranch_scc1 {sk}")
VX(38, 37, 0, (4, 1, 10), (5, 1, 5), (0, 4, 1))
SX("s49", MG, ("s7", 1, 0, 12), ("s7", 0, 1, 6), ("s3", 11))
A(f"s_add_u32 s50, s49, {2*16384}")
VX(37, 36, 0, (5, 1, 10), (0, 5, 1))
SX("s40", 0, ("s7", 7), ("s3", 6))
A(f"v_mov_b32 v{wXA}, 0")
sk2 = L("nx")
A(f"s_cmp_lg_u32 s58, 0\ns_cbranch_scc1 {sk2}")
A(f"buffer_load_short_d16_hi v{wXA}, v37, {RD}, s40 offen")
A.label(sk2)
for i in range(16):
    A(f"v_mov_b32 v{84+i}, 0")
def mg_loads():
    for p in range(8):
        A(f"buffer_load_short_d16_hi v{84+p}, v38, {RW}, s49 offen offset:{p*128} sc1")
        A(f"buffer_load_short_d16_hi v{92+p}, v38, {RW}, s50 offen offset:{p*128} sc1")
def mg_chk():
    sum8(wGA, 84); sum8(wCB, 92)
    A(f"v_cmp_u_f32 vcc, v{wGA}, v{wCB}")
poll(mg_loads, mg_chk, sleep=8)
A.label(sk)
sk = L("nw2")
A(f"s_cmp_lg_u32 s3, 2\ns_cbranch_scc1 {sk}")
tGB, tE, tOUT, tBP, tOF, tL16 = 74, 84, 75, 80, 72, 73
VX(38, 33, 0, (0, 1, 3), (5, 1, 1), (4, 1, 2))
SX("s61", MG + 12*4096, ("s5", 2, 0, 12), ("s5", 1, 1, 6), ("s5", 0, 1, 11), ("s4", 1, 1, 10), ("s4", 2, 0, 5), ("s4", 0, 1, 4))
for i in range(8):
    A(f"v_mov_b32 v{92+i}, 0")
def gb_loads():
    for p in range(8):
        A(f"buffer_load_short_d16_hi v{92+p}, v38, {RW}, s61 offen offset:{p*128} sc1")
gb_loads()
SX("s40", 0, ("s4", 0, 2, 4)); A(f"v_add_u32 v{tOUT}, s40, v38")
SX("s40", 0, ("s4", 2, 0, 7)); A(f"v_lshl_add_u32 v{tBP}, v{tOUT}, 1, s40")
SX("s62", 0, ("s4", 2, 0, 10), ("s5", 6))
A("v_and_b32 v32, 1, v0\nv_lshlrev_b32 v32, 4, v32\nv_mov_b32 v33, 0x3f80\nv_lshlrev_b32 v32, v32, v33")
A("v_lshrrev_b32 v33, 2, v2\nv_sub_u32 v33, v1, v33\nv_bfe_u32 v34, v0, 1, 1\nv_lshl_or_b32 v33, v33, 1, v34")
for r in range(2):
    A(f"v_cmp_eq_u32 vcc, {r}, v33")
    A(f"v_cndmask_b32 v{tE+r}, 0, v32, vcc")
    A(f"v_mov_b32 v{tE+6+r}, v{tE+r}")
for r in (2, 3, 4, 5):
    A(f"v_mov_b32 v{tE+r}, 0")
A(f"v_lshlrev_b32 v{tL16}, 4, v0")
SX("s49", X4, ("s5", 10))
A("s_add_u32 s50, s49, 16384")
SX("s55", ST5, ("s4", 8), ("s7", 5), ("s6", 3))
VX(113, 33, 0, (5, 1, 4), (4, 1, 2))
def gb_chk():
    sum8(tGB, 92)
    A(f"v_cmp_u_f32 vcc, v{tGB}, v{tGB}")
poll(gb_loads, gb_chk, first_issued=True, sleep=8)
A.label(sk)
A("s_waitcnt vmcnt(0)")
blk_frags(WOL)
STAMP(7)
wF = 100
sg_load = lambda: A(f"buffer_load_dwordx2 v[16:17], v{T0}, {RW}, s54 offen sc1")
await_any(sg_load, lambda: A("v_cmp_o_f32 vcc, v17, v17"), OPT["s1"])
poll(sg_load, lambda: A("v_cmp_u_f32 vcc, v17, v17"), first_issued=True, sleep=2*OPT["s2"])
def o_loads():
    A(f"buffer_load_dwordx4 v[104:107], v{T1}, {RW}, s53 offen sc1")
o_loads()
A(f"v_max_f32_dpp v18, v16, v16 quad_perm:[1,0,3,2] {DPPM}")
A(f"v_max_f32_dpp v18, v18, v18 quad_perm:[2,3,0,1] {DPPM}")
A(f"v_max_f32_dpp v18, v18, v18 row_half_mirror {DPPM}")
A("v_sub_f32 v16, v16, v18\nv_exp_f32 v16, v16\nv_mul_f32 v17, v16, v17")
for m in ("quad_perm:[1,0,3,2]", "quad_perm:[2,3,0,1]", "row_half_mirror"):
    A(f"v_add_f32_dpp v17, v17, v17 {m} {DPPM}")
A(f"v_rcp_f32 v17, v17\nv_mul_f32 v{wF}, v16, v17")
STAMP(8)
poll(o_loads, lambda: chk_empty4(104, 33), first_issued=True, first_wait=0)
STAMP(9)
A("s_waitcnt lgkmcnt(0)")
blk_mfma(104)
for t in range(4):
    A(f"v_mul_f32_dpp v{wD+4*t}, v{wF}, v{wD+4*t} row_newbcast:0 {DPPM}")
for r in range(1, 4):
    for t in range(4):
        A(f"v_fmac_f32_dpp v{wD+4*t}, v{wF}, v{wD+4*t+r} row_newbcast:{r} {DPPM}")
blk_reduce()
A("s_cmp_gt_u32 s3, 2\ns_cbranch_scc1 L_exit")
A("s_cmp_eq_u32 s3, 2\ns_cbranch_scc1 L_fin")
blk_final()
A(f"v_fma_f32 v32, v32, v{wGA}, v{wXA}")
A(f"v_mul_f32 v36, v32, v{wCB}")
A(f"v_mov_b32_dpp v33, v32 quad_perm:[1,1,3,3] {DPPM}")
A(f"v_mov_b32_dpp v37, v36 quad_perm:[1,1,3,3] {DPPM}")
A("v_cvt_pk_bf16_f32 v34, v32, v33\nv_cvt_pk_bf16_f32 v38, v36, v37")
A(f"v_mov_b32_dpp v35, v34 quad_perm:[2,2,2,2] {DPPM}")
A(f"v_mov_b32_dpp v39, v38 quad_perm:[2,2,2,2] {DPPM}")
setexec(0x11111111, 0x11111111)
A(f"buffer_store_dwordx2 v[38:39], v{wXAD}, {RW}, s44 offen sc1")
A(f"buffer_store_dwordx2 v[34:35], v{wXAD}, {RW}, s60 offen sc1")
fullexec()
STAMP(10)
A("s_branch L_exit")
A.label("L_fin")
def x4_loads():
    A(f"buffer_load_dwordx4 v[16:19], v{tOF}, {RW}, s49 offen sc1")
    A(f"buffer_load_dwordx4 v[20:23], v{tOF}, {RW}, s50 offen sc1")
def x4_chk():
    A("v_max3_u32 v33, v16, v17, v18\nv_max3_u32 v34, v19, v20, v21\nv_max3_u32 v33, v33, v22, v23\nv_max_u32 v33, v33, v34\nv_cmp_eq_u32 vcc, -1, v33")
poll(x4_loads, x4_chk)
STAMP(11)
for hp in range(2):
    for t in range(2):
        mfma(wD + 4*t, 16 + 4*hp, tE + 4*t, None if hp == 0 else wD + 4*t)
rowsum([wD, wD+4])
A(f"v_permlane16_swap_b32 v{wD}, v{wD+4}")
A(f"v_add_f32 v42, v{wD}, v{wD+4}")
A("v_mov_b32 v43, v42\nv_mul_f32 v44, v42, v42")
A("v_permlane16_swap_b32 v43, v44")
A("v_add_f32 v43, v43, v44")
for m in ("quad_perm:[1,0,3,2]", "quad_perm:[2,3,0,1]", "row_half_mirror", "row_mirror"):
    A(f"v_add_f32_dpp v43, v43, v43 {m} {DPPM}")
setexec(0x00010001, 0x00010001)
A(f"buffer_store_dword v43, v113, {RW}, s55 offen")
fullexec()
STAMP(12)
A(f"ds_bpermute_b32 v42, v{tBP}, v42")
def y6_loads():
    for i in range(4):
        A(f"buffer_load_dwordx4 v[{16+4*i}:{19+4*i}], v{tL16}, {RW}, s59 offen offset:{1024*i} sc1")
def y6_chk():
    for r in range(4):
        A(f"v_add_f32 v{16+r}, v{16+r}, v{20+r}\nv_add_f32 v{24+r}, v{24+r}, v{28+r}")
    for r in range(4):
        A(f"v_add_f32 v{16+r}, v{16+r}, v{24+r}")
    A("v_permlane32_swap_b32 v16, v17\nv_permlane32_swap_b32 v18, v19")
    A("v_add_f32 v16, v16, v17\nv_add_f32 v18, v18, v19")
    A("v_permlane16_swap_b32 v16, v18")
    A("v_add_f32 v16, v16, v18")
    A("v_cmp_u_f32 vcc, v16, v16")
await_any(lambda: A(f"buffer_load_dword v16, v{tL16}, {RW}, s59 offen sc1"), lambda: A("v_cmp_o_f32 vcc, v16, v16"), 2)
poll(y6_loads, y6_chk)
STAMP(13)
for m in ("row_ror:8", "row_ror:4", "row_ror:2"):
    A(f"v_add_f32_dpp v16, v16, v16 {m} {DPPM}")
A("s_waitcnt lgkmcnt(0)")
A(f"v_fma_f32 v16, v16, v{tGB}, v42")
A("v_cvt_pk_bf16_f32 v16, v16, v16")
setexec(0x00030003, 0x00030003)
A(f"buffer_store_short v16, v{tOUT}, {RF}, s62 offen")
A("s_cmp_lg_u32 s2, 128\ns_cbranch_scc1 L_exit")
A(f"s_sub_u32 s40, {sTAG}, {TAGC-1:#x}")
A("v_mov_b32 v17, s40\nv_mov_b32 v18, 0")
A("s_mov_b64 exec, 1")
A(f"buffer_store_dword v17, v18, {RW}, 0 offen sc1")

A.label("L_exit")
if STAMPS:
    STAMP(15)
    A("s_waitcnt lgkmcnt(0)")
    A("s_mov_b64 exec, 1")
    SX("s40", DBG, ("s2", 9), ("s3", 6))
    A("v_mov_b32 v0, 0")
    for q in range(4):
        for i in range(4):
            A(f"v_mov_b32 v{4+4*q+i}, s{64+2*(4*q+i)}")
        A(f"buffer_store_dwordx4 v[{4+4*q}:{7+4*q}], v0, {RW}, s40 offen offset:{16*q}")
A.label("L_end")
A("s_endpgm")
A.label("L_codeend")
A.raw(f".fill (16384 - (L_codeend - {NAME}_kernel)) / 4, 4, 0xbf810000")
A.raw(f""".section .rodata,"a"
.p2align 6
.amdhsa_kernel {NAME}_kernel
  .amdhsa_next_free_vgpr 128
  .amdhsa_next_free_sgpr 96
  .amdhsa_accum_offset 128
  .amdhsa_group_segment_fixed_size 0
  .amdhsa_kernarg_size 112
  .amdhsa_user_sgpr_count 2
  .amdhsa_user_sgpr_kernarg_segment_ptr 1
  .amdhsa_system_sgpr_workgroup_id_x 1
  .amdhsa_float_denorm_mode_32 3
.end_amdhsa_kernel""")
sys.stdout.write(A.text())
sys.stderr.write(f"instrs={A.ninstr} nops={A.nops}\n")
```

```python
import sys, math, struct
sys.path.insert(0, "work")
from asmlib import Asm

NAME = "adaLN_cond__sliding_block_cached__glu_gated_reglu__decode"
OPT = dict(stamps=0, nt="nt", limit=20000, refresh=255, psleep=0, pf=1, pfnt="", smallnt="", slow=1, qn=4, trg=0, mb_at="q", touch=1, qpipe=1, s1=6, s2=1, sent=1, trgmax=24, kvbar=1, abl="")
for a in sys.argv[1:]:
    k, v = a.split("=")
    OPT[k] = int(v) if v.lstrip("-").isdigit() else v
STAMPS = OPT["stamps"]; NT = OPT["nt"] if OPT["nt"] != "-" else ""
LIMIT = OPT["limit"]; REFRESH = OPT["refresh"]; SNT = OPT["smallnt"]

def f32(x): return "0x%08x" % struct.unpack("<I", struct.pack("<f", x))[0]

TRG = 0x1000; H1G = 0x8000; QG = 0x10000
CLR = 0x100000
OG = CLR; MG = CLR + 0x20000; X4 = CLR + 0x30000; Y4 = CLR + 0x38000
G5 = CLR + 0x40000; SG = CLR + 0x5C000; ST5 = CLR + 0x5D000; US5 = CLR + 0x60000
Y6 = 0x180000; DBG = 0x400000
WS_BYTES = 0x800000
TAGC = 0x9E3779B9
VREG = 65536; PA = 131072; XL = 147456; QL = XL + 1024; PL = QL + 2048; MISC = PL + 2048
FG = 0; FD = 32768; YL0 = 131072
WQL = 0; WOL = 32768; PB = 65536; RED = XL + 1024
LDS_BYTES = MISC + 256
C1 = 128 ** -0.5 * math.log2(math.e)

A = Asm()
hdr = open(f"cdna_kernels/{NAME}.s.ref").read().split("\n")
for ln in hdr:
    if ln.startswith("; @launch"):
        A.raw(f"; @launch grid=(256,1,1) block=(512,1,1) lds={LDS_BYTES}")
        break
    A.raw(ln)
A.raw('.amdgcn_target "amdgcn-amd-amdhsa--gfx950"')
A.raw(f".text\n.globl {NAME}_kernel\n.p2align 8\n.type {NAME}_kernel,@function\n{NAME}_kernel:")

RA, RB, RW, RC, RD, RE, RF = "s[8:11]", "s[12:15]", "s[16:19]", "s[20:23]", "s[24:27]", "s[28:31]", "s[32:35]"
sTAG, sCNT, sT = "s36", "s37", "s45"
def STAMP(n):
    if STAMPS:
        A(f"s_memrealtime s[{64+2*n}:{65+2*n}]")
DPPM = "row_mask:0xf bank_mask:0xf"
lbl = [0]
def L(p):
    lbl[0] += 1
    return f"L_{p}_{lbl[0]}"
def srd(r, nbytes):
    b = int(r[2:r.index(":")])
    A(f"s_mov_b32 s{b+2}, {nbytes}\ns_mov_b32 s{b+3}, 0x00020000")
def kload(r, off):
    b = int(r[2:r.index(":")])
    A(f"s_load_dwordx2 s[{b}:{b+1}], s[0:1], {off}")

def SX(dst, const, *terms):
    first = True
    for t in terms:
        src, rs, w, ls = (t[0], 0, 0, t[1]) if len(t) == 2 else t
        d = dst if first else sT
        cur = src
        if w:
            if rs == 0: A(f"s_and_b32 {d}, {cur}, {(1<<w)-1}")
            else: A(f"s_bfe_u32 {d}, {cur}, {(w<<16)|rs:#x}")
            cur = d
        elif rs:
            A(f"s_lshr_b32 {d}, {cur}, {rs}"); cur = d
        if first:
            if ls: A(f"s_lshl_b32 {d}, {cur}, {ls}")
            elif cur != d: A(f"s_mov_b32 {d}, {cur}")
        else:
            if 1 <= ls <= 4: A(f"s_lshl{ls}_add_u32 {dst}, {cur}, {dst}")
            else:
                if ls: A(f"s_lshl_b32 {sT}, {cur}, {ls}"); cur = sT
                A(f"s_add_u32 {dst}, {dst}, {cur}")
        first = False
    if const: A(f"s_add_u32 {dst}, {dst}, {const:#x}")
def VX(dst, tmp, add, *terms):
    first = True
    for rs, w, ls in terms:
        if rs == 4 and w == 2: cur = "v1"
        elif rs == 0 and w == 4: cur = "v2"
        elif rs == 0 and w == 6: cur = "v0"
        else:
            d = f"v{dst}" if first else f"v{tmp}"
            if rs + w == 6: A(f"v_lshrrev_b32 {d}, {rs}, v0")
            elif rs == 0: A(f"v_and_b32 {d}, {(1<<w)-1}, v0")
            else: A(f"v_bfe_u32 {d}, v0, {rs}, {w}")
            cur = d
        if first:
            if ls: A(f"v_lshlrev_b32 v{dst}, {ls}, {cur}")
            elif cur != f"v{dst}": A(f"v_mov_b32 v{dst}, {cur}")
        else:
            if ls: A(f"v_lshl_or_b32 v{dst}, {cur}, {ls}, v{dst}")
            else: A(f"v_or_b32 v{dst}, {cur}, v{dst}")
        first = False
    if add: A(f"v_add_u32 v{dst}, {add}, v{dst}")

def await_any(load, valid, sleep):
    if not OPT["sent"]: return
    top, done = L("aw"), L("awd")
    A(f"s_mov_b32 {sCNT}, 0")
    A.label(top)
    load()
    A("s_waitcnt vmcnt(0)")
    valid()
    A(f"s_cbranch_vccnz {done}")
    A(f"s_sleep {sleep}\ns_add_u32 {sCNT}, {sCNT}, 1\ns_cmp_lt_u32 {sCNT}, 64\ns_cbranch_scc1 {top}")
    A.label(done)
def poll(loads, check, first_issued=False, first_wait=0, sleep=0):
    top, done, chk = L("poll"), L("got"), L("chk")
    A(f"s_mov_b32 {sCNT}, 0")
    if first_issued:
        A(f"s_waitcnt vmcnt({first_wait})")
        A(f"s_branch {chk}")
    A.label(top)
    loads()
    A("s_waitcnt vmcnt(0)")
    if first_issued:
        A.label(chk)
    check()
    A(f"s_cbranch_vccz {done}")
    if sleep: A(f"s_sleep {sleep}")
    A(f"s_add_u32 {sCNT}, {sCNT}, 1")
    A(f"s_and_b32 {sT}, {sCNT}, {REFRESH}\ns_cbranch_scc1 {top}")
    A("buffer_wbl2 sc1")
    A(f"s_cmp_lt_u32 {sCNT}, {LIMIT}\ns_cbranch_scc1 {top}")
    A.label(done)
def chk_empty4(r, tmp):
    A(f"v_max3_u32 v{tmp}, v{r}, v{r+1}, v{r+2}\nv_max_u32 v{tmp}, v{tmp}, v{r+3}\nv_cmp_eq_u32 vcc, -1, v{tmp}")
def pack4(src, pk, pk2, tmp):
    A(f"v_mov_b32_dpp v{tmp}, v{src} quad_perm:[1,1,3,3] {DPPM}")
    A(f"v_cvt_pk_bf16_f32 v{pk}, v{src}, v{tmp}")
    A(f"v_mov_b32_dpp v{pk2}, v{pk} quad_perm:[2,2,2,2] {DPPM}")
def setexec(lo, hi):
    A(f"s_mov_b32 exec_lo, {lo:#x}\ns_mov_b32 exec_hi, {hi:#x}")
def fullexec():
    A("s_mov_b64 exec, -1")
def mfma(d, a, b, c):
    cc = "0" if c is None else f"v[{c}:{c+3}]"
    A(f"v_mfma_f32_16x16x32_bf16 v[{d}:{d+3}], v[{a}:{a+3}], v[{b}:{b+3}], {cc}")
def rowsum(ds):
    for d in ds: A(f"v_add_f32 v{d}, v{d}, v{d+1}\nv_add_f32 v{d+2}, v{d+2}, v{d+3}")
    for d in ds: A(f"v_add_f32 v{d}, v{d}, v{d+2}")
def code_prefetch(tmp, dst):
    sk = L("npf")
    A(f"s_cmp_lt_u32 s3, 6\ns_cbranch_scc1 {sk}")
    A("s_and_b32 s38, s38, 0xffffff00")
    A(f"v_lshlrev_b32 v{tmp}, 7, v0")
    A(f"s_and_b32 s40, s3, 1\ns_lshl_b32 s40, s40, 13")
    A(f"v_add_u32 v{tmp}, s40, v{tmp}")
    if not OPT["pf"]: A(f"v_mov_b32 v{tmp}, 0")
    A(f"global_load_dword v{dst}, v{tmp}, s[38:39] {OPT['pfnt']}")
    A.label(sk)

wM, wQ, wO, wTR, T0, T1, T2, T3, vPF = 3, 4, 5, 6, 7, 8, 9, 10, 11
wC = 12; wXS = 13; wX = 16; wXO = 24; wWF = 40; wD = 56
def swz_chunk(dst):
    A(f"v_lshlrev_b32 v{dst}, 1, v1\nv_xor_b32 v{dst}, v0, v{dst}\nv_and_b32 v{dst}, 7, v{dst}\nv_lshlrev_b32 v{dst}, 4, v{dst}")
def unit_dma(srdr, s0, s1, base):
    A(f"s_add_u32 m0, s42, {base}")
    A(f"buffer_load_dwordx4 v{wM}, {srdr}, {s0} offen {NT} lds")
    A(f"s_add_u32 m0, s42, {base+8192}")
    A(f"buffer_load_dwordx4 v{wM}, {srdr}, {s1} offen {NT} lds")
def tr_setup():
    VX(wTR, 32, 0, (2, 4, 7), (3, 2, 5), (0, 2, 3))
    SX("s40", XL, ("s3", 0, 2, 8))
    VX(82, 32, "s40", (0, 6, 2))
    VX(83, 32, "s40", (2, 1, 7), (4, 2, 3))
def silu_operand(cnt):
    A(f"s_waitcnt vmcnt({cnt})")
    A(f"v_lshlrev_b32 v32, 16, v{wC}\nv_and_b32 v33, 0xffff0000, v{wC}")
    A(f"v_mul_f32 v34, {f32(-math.log2(math.e))}, v32\nv_mul_f32 v35, {f32(-math.log2(math.e))}, v33")
    A("v_exp_f32 v34, v34\nv_exp_f32 v35, v35")
    A("v_add_f32 v34, 1.0, v34\nv_add_f32 v35, 1.0, v35")
    A("v_rcp_f32 v34, v34\nv_rcp_f32 v35, v35")
    A("v_mul_f32 v32, v32, v34\nv_mul_f32 v33, v33, v35")
    A("v_cvt_pk_bf16_f32 v32, v32, v33")
    A("ds_write_b32 v82, v32")
    A("s_waitcnt lgkmcnt(0)")
    A(f"ds_read2_b64 v[{wXO}:{wXO+3}], v83 offset0:0 offset1:4\nds_read2_b64 v[{wXO+4}:{wXO+7}], v83 offset0:8 offset1:12")
def unit_mfma(s_c0, s_c1, base):
    SX("s40", 0, ("s3", 0, 2, 5)); A(f"v_xor_b32 v32, s40, v{wTR}\nv_add_u32 v32, {base}, v32")
    for k in range(2):
        for seg in range(2):
            for h in range(2):
                r = wWF + seg*8 + k*4 + h*2
                A(f"ds_read_b64_tr_b16 v[{r}:{r+1}], v32 offset:{seg*8192 + k*4096 + h*2048}")
    for i in range(4):
        A(f"v_mov_b32 v{wD+i}, {s_c0}\nv_mov_b32 v{wD+4+i}, {s_c1}")
    A("s_waitcnt lgkmcnt(0)")
    for k in range(2):
        for seg in range(2):
            mfma(wD + 4*seg, wXO + 4*k, wWF + seg*8 + k*4, wD + 4*seg)
def sum8(dst, r):
    A(f"v_add_f32 v32, v{r}, v{r+1}\nv_add_f32 v33, v{r+2}, v{r+3}\nv_add_f32 v34, v{r+4}, v{r+5}\nv_add_f32 v35, v{r+6}, v{r+7}")
    A(f"v_add_f32 v32, v32, v33\nv_add_f32 v34, v34, v35\nv_add_f32 v{dst}, v32, v34")

STAMP(0)
if STAMPS:
    for i in range(1, 16): A(f"s_mov_b32 s{64+2*i}, 0")
A("s_cmp_ge_u32 s2, 256\ns_cbranch_scc1 L_end")
kload(RW, 104); kload(RC, 80); kload(RE, 72); kload(RD, 0)
A("s_getpc_b64 s[38:39]")
A("v_lshrrev_b32 v1, 6, v0")
A("v_and_b32 v0, 63, v0")
A("s_and_b32 s4, s2, 7")
A("v_readfirstlane_b32 s3, v1")
A("v_lshrrev_b32 v1, 4, v0")
A("v_and_b32 v2, 15, v0")
A("s_bfe_u32 s5, s2, 0x40003\ns_bfe_u32 s6, s2, 0x10006\ns_bfe_u32 s7, s2, 0x30003")
A("s_lshl1_add_u32 s58, s4, s6")
A("s_cmp_ge_u32 s2, 128\ns_cselect_b32 s40, 24, 8\ns_cselect_b32 s41, 32, 16")
A("s_load_dwordx2 s[8:9], s[0:1], s40\ns_load_dwordx2 s[12:13], s[0:1], s41")
A("s_cselect_b32 s10, 22, 25\ns_lshl_b32 s10, 1, s10")
A("s_mov_b32 s14, s10\ns_mov_b32 s11, 0x00020000\ns_mov_b32 s15, 0x00020000")
code_prefetch(T0, vPF)
srd(RW, WS_BYTES); srd(RC, 3145728); srd(RE, 2048); srd(RD, 2048)
swz_chunk(T1)
A(f"v_lshrrev_b32 v{T0}, 3, v0")
A(f"v_mul_u32_u24 v{wM}, 6144, v{T0}\nv_add_u32 v{wM}, v{wM}, v{T1}")
SX("s41", 0, ("s7", 6), ("s3", 3))
A("s_mul_i32 s41, s41, 6144")
A("s_lshl_b32 s42, s3, 10\ns_lshl_b32 s46, s7, 7")
VX(T2, T3, 0, (5, 1, 10), (0, 5, 2))
A("s_cmp_ge_u32 s2, 128\ns_cbranch_scc1 L_W")

vE, vO, vQO = 120, 121, 122
vKA = 108
vQ = 14
vKF = 16
vVF = 48
vQF = 80
vS = 96
vP = 104
vOA = 108
vST = 114
vOAD, vSAD = 116, 117
QN = OPT["qn"]; SLOW = max(1, OPT["slow"])
A(f"v_lshlrev_b32 v{T3}, 1, v1\nv_xor_b32 v{T3}, v2, v{T3}\nv_lshlrev_b32 v{T3}, 4, v{T3}")
A(f"v_lshl_or_b32 v{vE}, v1, 8, v{T3}\nv_xor_b32 v{vO}, 0x80, v{vE}")
A("s_lshl_b32 s43, s3, 13")
SX("s56", 6144*256, ("s6", 24), ("s4", 21), ("s7", 16), ("s43", 0))
A("s_add_u32 s57, s56, 4096")
def kv_dma(u):
    r = RA if u < 8 else RB
    A(f"buffer_load_dwordx4 v{vE if u%2==0 else vO}, {r}, {'s56' if u%8 < 4 else 's57'} offen offset:{(u%4)*1024} {NT} lds")
A("s_cmp_ge_u32 s4, 4\ns_cbranch_scc1 L_nA")
if "noA" in OPT["abl"]: A("s_branch L_nA")
A("s_lshl_b32 s49, s58, 7\ns_add_u32 s51, s41, s49\ns_add_u32 s52, s51, 1024")
VX(T0, T3, 0, (4, 1, 10), (5, 1, 8), (0, 4, 4))
VX(T1, T3, 0, (4, 1, 10), (0, 4, 1))
SX("s50", 0, ("s3", 0, 2, 5), ("s49", 0))
A(f"v_mov_b32 v{wXS}, 0")
A("s_waitcnt lgkmcnt(0)")
unit_dma(RC, "s51", "s52", PA)
A(f"s_load_dword {sTAG}, s[16:17], 0")
sk = L("nx0")
A(f"s_cmp_ge_u32 s3, 4\ns_cbranch_scc1 {sk}")
A(f"buffer_load_dword v{wC}, v{T2}, {RE}, s46 offen {SNT}")
A(f"buffer_load_dwordx4 v[{wX}:{wX+3}], v{T0}, {RD}, 0 offen {SNT}")
A(f"buffer_load_dwordx4 v[{wX+4}:{wX+7}], v{T0}, {RD}, 0 offen offset:512 {SNT}")
A(f"buffer_load_short_d16_hi v{wXS}, v{T1}, {RD}, s50 offen {SNT}")
A.label(sk)
A("v_mov_b32 v32, -1\nv_mov_b32 v33, -1\nv_mov_b32 v34, -1\nv_mov_b32 v35, -1")
SX("s54", CLR, ("s58", 16), ("s7", 13), ("s42", 0))
A("v_lshlrev_b32 v38, 4, v0")
if "noclr" in OPT["abl"]: A("v_mov_b32 v38, 0x7ffffff0")
A(f"buffer_store_dwordx4 v[32:35], v38, {RW}, s54 offen sc1")
A("s_barrier")
A("s_mov_b32 m0, s43")
for u in range(SLOW): kv_dma(u)
AW = SLOW
tr_setup()
VX(39, 32, 0, (4, 1, 6), (2, 2, 4))
sk = L("nx1")
A(f"s_cmp_ge_u32 s3, 4\ns_cbranch_scc1 {sk}")
SX("s53", H1G, ("s58", 12), ("s3", 10), ("s46", 0))
A("s_cmp_eq_u32 s7, 0\ns_cselect_b32 s54, 1.0, 0")
silu_operand(4 + AW)
A(f"s_waitcnt vmcnt({1+AW})")
A("v_mov_b32 v36, 0\nv_mov_b32 v37, 0\nv_mov_b32 v38, 0x3f803f80")
for i in range(8):
    A(f"v_dot2c_f32_bf16 v36, v{wX+i}, v38\nv_dot2c_f32_bf16 v37, v{wX+i}, v{wX+i}")
for m in ("quad_perm:[1,0,3,2]", "quad_perm:[2,3,0,1]", "row_half_mirror", "row_mirror"):
    A(f"v_add_f32_dpp v36, v36, v36 {m} {DPPM}\nv_add_f32_dpp v37, v37, v37 {m} {DPPM}")
A("v_mov_b32 v38, v36\nv_mov_b32 v35, v37")
A("v_permlane32_swap_b32 v36, v38\nv_permlane32_swap_b32 v37, v35")
A("v_add_f32 v36, v36, v38\nv_add_f32 v37, v37, v35")
A(f"v_mul_f32 v36, {f32(1.0/512)}, v36\nv_mov_b32 v38, {f32(1e-5)}\nv_fmac_f32 v38, {f32(1.0/512)}, v37")
A("v_fma_f32 v38, -v36, v36, v38\nv_rsq_f32 v38, v38")
A(f"v_sub_f32 v{wXS}, v{wXS}, v36\nv_mul_f32 v{wXS}, v{wXS}, v38")
A.label(sk)
A(f"s_waitcnt vmcnt({AW}) lgkmcnt(0)")
A(f"s_add_u32 {sTAG}, {sTAG}, {TAGC:#x}")
A("s_barrier")
sk = L("na2")
A(f"s_cmp_ge_u32 s3, 4\ns_cbranch_scc1 {sk}")
unit_mfma("0", "s54", PA)
A(f"v_mov_b32 v{wD+9}, {sTAG}\nv_mov_b32 v{wD+11}, {sTAG}")
A(f"v_fma_f32 v32, v{wXS}, v{wD+4}, v{wD}")
pack4(32, wD+8, wD+10, 33)
setexec(0x11111111, 0)
A(f"buffer_store_dwordx4 v[{wD+8}:{wD+11}], v39, {RW}, s53 offen sc1")
fullexec()
STAMP(9)
A.label(sk)
A("s_barrier")
A("s_branch L_kv")
A.label("L_nA")
A("s_mov_b32 m0, s43")
A("s_waitcnt lgkmcnt(0)")
for u in range(SLOW): kv_dma(u)
A(f"s_load_dword {sTAG}, s[16:17], 0")
A(f"s_waitcnt {'vmcnt(0) ' if OPT['slow'] else ''}lgkmcnt(0)")
A(f"s_add_u32 {sTAG}, {sTAG}, {TAGC:#x}")
A.label("L_kv")
kload(RC, 48); kload(RD, 56); kload(RE, 64)
for u in range(SLOW, 8):
    if u == 4: A("s_add_u32 m0, m0, 4096")
    kv_dma(u)
TRGF = OPT["trg"]
if TRGF:
    SX("s60", TRG, ("s4", 7), ("s5", 2))
    A("s_cmp_eq_u32 s3, 7\ns_cselect_b32 s40, 0, 0x7ffffff0")
    A(f"v_mov_b32 v126, {sTAG}\nv_mov_b32 v127, s40")
SX("s44", QG, ("s58", 12), ("s3", 10))
vQ = 100
A(f"v_lshlrev_b32 v{vQO}, 4, v0")
wG, wDO, fMF = 124, 125, 123
swz_chunk(T1)
A(f"v_lshrrev_b32 v{T0}, 3, v0\nv_mul_u32_u24 v{wG}, 3584, v{T0}\nv_add_u32 v{wG}, v{wG}, v{T1}\nv_lshl_or_b32 v{wDO}, v{T0}, 10, v{T1}")
srd(RC, 1835008); srd(RD, 1835008); srd(RE, 1835008)
SX("s63", 0, ("s4", 4), ("s5", 0))
SX("s49", 0, ("s63", 0, 2, 7), ("s3", 4))
A("s_mul_i32 s49, s49, 3584")
SX("s50", 0, ("s63", 2, 0, 7))
A(f"s_add_u32 s49, s49, s50\ns_add_u32 s50, s49, {8*3584-1024}")
SX("s51", 0, ("s63", 14), ("s3", 7))
A(f"s_add_u32 s52, s51, {8*1024-1024}")
VX(fMF, T2, 0, (0, 3, 7), (3, 1, 5), (4, 2, 3))
SX("s59", MG + 8*4096, ("s63", 0, 2, 12), ("s3", 1, 1, 6), ("s3", 0, 1, 11))
SX("s40", 0, ("s3", 2, 0, 14)); A("s_sub_u32 s59, s59, s40")
A("s_lshl_b32 s42, s3, 11")
VX(T2, 0, 0, (0, 3, 1))
A(f"v_xor_b32 v{T2}, v1, v{T2}\nv_lshlrev_b32 v{T2}, 4, v{T2}\nv_lshl_or_b32 v{T2}, v2, 8, v{T2}")
A(f"v_add_u32 v{vKA}, s43, v{T2}")
for t in range(1, 4):
    A(f"v_xor_b32 v{vKA+t}, {t*64:#x}, v{vKA}")
vQW, vQR, vVR, vMX, vPW, vPR, vMW = 3, 4, 5, 6, 12, 13, 112
SX("s40", QL, ("s3", 5))
VX(vQW, T2, "s40", (1, 4, 7), (5, 1, 4), (0, 1, 3))
VX(vQR, T2, QL, (4, 2, 7), (0, 3, 4))
A(f"v_bfe_u32 v{T0}, v0, 2, 3\nv_xor_b32 v{T0}, s3, v{T0}")
VX(vVR, T2, VREG, (2, 4, 8), (0, 2, 3))
A(f"v_lshl_or_b32 v{vVR}, v{T0}, 5, v{vVR}")
VX(vMX, T2, MISC, (0, 2, 5))
A(f"s_lshl_b32 s40, s3, 2\nv_add_u32 v{vMW}, s40, v{vMX}")
VX(vPR, T2, PL, (4, 2, 6), (0, 2, 4))
A(f"s_lshl_b32 s40, s3, 8\nv_add_u32 v{vPW}, s40, v{vPR}")
VX(vOAD, T2, 0, (0, 2, 12), (4, 2, 4))
SX("s53", OG, ("s4", 14), ("s3", 1, 0, 10), ("s5", 6), ("s3", 0, 1, 3))
VX(vSAD, T2, 0, (0, 2, 7))
SX("s54", SG, ("s4", 9), ("s5", 3))
A(f"s_mov_b32 s55, {f32(C1)}")
A(f"v_mov_b32 v{T0}, 0")
A("s_waitcnt lgkmcnt(0)")
if OPT["touch"]:
    sk = L("ntc")
    A(f"s_cmp_lg_u32 s3, 1\ns_cbranch_scc1 {sk}")
    for r in (RC, RD, RE):
        A(f"buffer_load_dword v{vPF}, v{T0}, {r}, 0 offen {NT}")
    A.label(sk)
A(f"s_add_u32 m0, m0, {VREG-4096}")
if OPT["kvbar"]: A("s_barrier")
for u in range(8, 16):
    if u == 12: A("s_add_u32 m0, m0, 4096")
    if u == TRGF: A(f"buffer_store_dword v126, v127, {RW}, s60 offen")
    kv_dma(u)
STAMP(2)
if OPT["abl"]:
    A("s_waitcnt vmcnt(0)")
    STAMP(4)
    A("s_branch L_exit")
A(f"s_waitcnt vmcnt({9 if TRGF else 8})")
for T in range(2):
    for t in range(4):
        r = vKF + (T*4+t)*4
        A(f"ds_read_b128 v[{r}:{r+3}], v{vKA+t} offset:{T*4096}")
sk = L("nqp")
A(f"s_cmp_ge_u32 s3, 4\ns_cbranch_scc1 {sk}")
def q_load():
    A(f"buffer_load_dwordx4 v[{vQ}:{vQ+3}], v{vQO}, {RW}, s44 offen sc1")
def q_chk():
    A(f"v_xor_b32 v{T0}, {sTAG}, v{vQ+1}\nv_bitop3_b32 v{T0}, v{vQ+3}, {sTAG}, v{T0} bitop3:0xbe\nv_cmp_ne_u32 vcc, 0, v{T0}")
poll(q_load, q_chk, sleep=OPT['s2'])
STAMP(4)
A(f"v_mov_b32 v{vQ+1}, v{vQ+2}")
A(f"ds_write_b64 v{vQW}, v[{vQ}:{vQ+1}]")
A.label(sk)
A("s_waitcnt lgkmcnt(0)\ns_barrier")
STAMP(5)
for t in range(4):
    A(f"ds_read_b128 v[{vQF+4*t}:{vQF+4*t+3}], v{vQR} offset:{t*512}")
A("s_waitcnt lgkmcnt(0)")
def v_tr(kb, T):
    r = vVF + kb*4 + T*2
    A(f"ds_read_b64_tr_b16 v[{r}:{r+1}], v{vVR} offset:{(32*kb+16*T)*256}")
EARLY_T = []
for kb in range(8):
    if kb < 4:
        for T in range(2):
            mfma(vS + 4*T, vKF + (T*4+kb)*4, vQF + 4*kb, None if kb == 0 else vS + 4*T)
    for T in EARLY_T: v_tr(kb, T)
for i in range(8):
    A(f"v_add_f32_dpp v{vS+i}, v{vS+i}, v{vS+i} row_ror:4 {DPPM}")
A(f"v_max3_f32 v{T0}, v{vS}, v{vS+1}, v{vS+2}\nv_max3_f32 v{T2}, v{vS+3}, v{vS+4}, v{vS+5}")
A(f"v_max3_f32 v{T0}, v{T0}, v{vS+6}, v{vS+7}\nv_max_f32 v{T3}, v{T0}, v{T2}\nv_max_f32 v{T0}, v{T0}, v{T2}")
A(f"v_permlane32_swap_b32 v{T0}, v{T3}")
A(f"v_max_f32 v{T2}, v{T0}, v{T3}\nv_max_f32 v{T0}, v{T0}, v{T3}")
A(f"v_permlane16_swap_b32 v{T0}, v{T2}")
A(f"v_max_f32 v{T0}, v{T0}, v{T2}")
A(f"ds_write_b32 v{vMW}, v{T0}")
STAMP(14)
A("s_waitcnt lgkmcnt(0)\ns_barrier")
A(f"ds_read_b128 v[{vQF}:{vQF+3}], v{vMX}\nds_read_b128 v[{vQF+4}:{vQF+7}], v{vMX} offset:16")
A("s_waitcnt lgkmcnt(0)")
A(f"v_max3_f32 v{T0}, v{vQF}, v{vQF+1}, v{vQF+2}\nv_max3_f32 v{T2}, v{vQF+3}, v{vQF+4}, v{vQF+5}")
A(f"v_max3_f32 v{T0}, v{T0}, v{vQF+6}, v{vQF+7}\nv_max_f32 v{T0}, v{T0}, v{T2}")
A(f"v_mul_f32 v{vST}, s55, v{T0}")
for i in range(8):
    A(f"v_fma_f32 v{vS+i}, v{vS+i}, s55, -v{vST}")
for i in range(8):
    A(f"v_exp_f32 v{vS+i}, v{vS+i}")
for i in range(4):
    A(f"v_cvt_pk_bf16_f32 v{vP+i}, v{vS+2*i}, v{vS+2*i+1}")
A(f"ds_write_b128 v{vPW}, v[{vP}:{vP+3}]")
rowsum([vS, vS+4])
A(f"v_add_f32 v{T0}, v{vS}, v{vS+4}\nv_add_f32 v{T3}, v{vS}, v{vS+4}")
A(f"v_permlane32_swap_b32 v{T0}, v{T3}")
A(f"v_add_f32 v{T2}, v{T0}, v{T3}\nv_add_f32 v{T0}, v{T0}, v{T3}")
A(f"v_permlane16_swap_b32 v{T0}, v{T2}")
A(f"v_add_f32 v{T0}, v{T0}, v{T2}")
A(f"ds_write_b32 v{vMW}, v{T0} offset:128")
A("s_waitcnt lgkmcnt(0)\ns_barrier")
STAMP(3)
if STAMPS: A("s_waitcnt lgkmcnt(0)")
LATE_T = [T for T in range(2) if T not in EARLY_T]
A(f"ds_read_b128 v[{vQF}:{vQF+3}], v{vMX} offset:128\nds_read_b128 v[{vQF+4}:{vQF+7}], v{vMX} offset:144")
for kb in range(8):
    r = vKF + kb*4
    A(f"ds_read_b128 v[{r}:{r+3}], v{vPR} offset:{kb*256}")
def st_pub(vm=None):
    sk = L("nst"); sk2 = L("nsu")
    A(f"s_cmp_lg_u32 s3, 0\ns_cbranch_scc1 {sk}")
    A("s_waitcnt lgkmcnt(8)")
    rowsum([vQF, vQF+4])
    A(f"v_add_f32 v{vST+1}, v{vQF}, v{vQF+4}")
    A("s_mov_b64 exec, 15")
    A(f"buffer_store_dwordx2 v[{vST}:{vST+1}], v{vSAD}, {RW}, s54 offen")
    fullexec()
    if vm is not None:
        A(f"s_waitcnt vmcnt({vm})\ns_branch {sk2}")
    A.label(sk)
    if vm is not None:
        A(f"s_waitcnt vmcnt({vm-1})")
        A.label(sk2)
if LATE_T:
    st_pub(1)
    A("s_waitcnt lgkmcnt(0)\ns_barrier")
    STAMP(6)
    if STAMPS: A("s_waitcnt lgkmcnt(0)")
    per = len(LATE_T)
    AHEAD = 8 if per == 1 else 6
    for kb in range(AHEAD):
        for T in LATE_T: v_tr(kb, T)
    for kb in range(8):
        A(f"s_waitcnt lgkmcnt({(min(8, AHEAD + kb) - kb - 1) * per})")
        mfma(vOA, vVF + kb*4, vKF + kb*4, None if kb == 0 else vOA)
        if AHEAD + kb < 8:
            for T in LATE_T: v_tr(AHEAD + kb, T)
else:
    st_pub()
    for kb in range(8):
        A(f"s_waitcnt lgkmcnt({7-kb})")
        mfma(vOA, vVF + kb*4, vKF + kb*4, None if kb == 0 else vOA)
setexec(0x000f000f, 0x000f000f)
A(f"v_cvt_pk_bf16_f32 v{vP}, v{vOA}, v{vOA+1}\nv_cvt_pk_bf16_f32 v{vP+1}, v{vOA+2}, v{vOA+3}")
A(f"buffer_store_dwordx2 v[{vP}:{vP+1}], v{vOAD}, {RW}, s53 offen")
fullexec()
STAMP(7)
A("s_cmp_lt_u32 s4, 7\ns_cbranch_scc1 L_ffn")
A("s_cmp_lg_u32 s3, 0\ns_cbranch_scc1 L_exit")
VX(T1, T2, 0, (3, 1, 14), (0, 3, 11))
A(f"s_mov_b32 s46, {X4 + 7*128:#x}")
poll(lambda: A(f"buffer_load_dword v16, v{T1}, {RW}, s46 offen sc1"), lambda: A(f"v_cmp_eq_u32 vcc, -1, v16"), sleep=8)
A("s_branch L_exit")
A.label("L_ffn")
def mf_loads():
    A(f"buffer_load_dwordx2 v[16:17], v{fMF}, {RW}, s59 offen sc1")
    A(f"buffer_load_dwordx2 v[18:19], v{fMF}, {RW}, s59 offen offset:1024 sc1")
mf_loads()
A(f"s_add_u32 m0, s42, {FG}")
A(f"buffer_load_dwordx4 v{wG}, {RC}, s49 offen {NT} lds")
A(f"buffer_load_dwordx4 v{wG}, {RC}, s50 offen offset:1024 {NT} lds")
A(f"s_add_u32 m0, s42, {FG+16384}")
A(f"buffer_load_dwordx4 v{wG}, {RD}, s49 offen {NT} lds")
A(f"buffer_load_dwordx4 v{wG}, {RD}, s50 offen offset:1024 {NT} lds")
A(f"s_add_u32 m0, s42, {FD}")
A(f"buffer_load_dwordx4 v{wDO}, {RE}, s51 offen {NT} lds")
A(f"buffer_load_dwordx4 v{wDO}, {RE}, s52 offen offset:1024 {NT} lds")
fYW, fYR, fWR, fGA, fGR, fSTA, fY6A = 113, 114, 115, 116, 118, 119, 120
fG, fU, fS = 121, 122, 117
wOF, wTA = 72, 108
VX(wTR, 32, 0, (2, 4, 7), (3, 2, 5), (0, 2, 3))
A("s_lshr_b32 s56, s3, 2\ns_and_b32 s57, s3, 3")
VX(fYR, 32, YL0, (0, 6, 4))
A(f"s_lshl_b32 s40, s3, 10\nv_add_u32 v{fYW}, s40, v{fYR}")
A(f"s_lshl_b32 s40, s57, 5\nv_xor_b32 v{fWR}, s40, v{wTR}")
SX("s40", FG, ("s56", 14)); A(f"v_add_u32 v{fWR}, s40, v{fWR}")
VX(fGA, 32, 0, (0, 6, 2))
SX("s61", G5 - 64, ("s63", 2, 0, 12), ("s57", 10), ("s63", 0, 2, 8), ("s56", 7))
A(f"s_add_u32 s62, s61, {US5-G5}")
VX(fGR, 32, 0, (2, 1, 7), (3, 1, 6), (4, 2, 4), (0, 2, 2))
VX(fSTA, 32, 0, (0, 3, 5), (3, 1, 4))
VX(fY6A, 32, 0, (3, 1, 14), (5, 1, 12), (4, 1, 4))
VX(wOF, 32, 0, (0, 3, 7), (3, 1, 6), (4, 2, 4))
SX("s47", Y4, ("s56", 14), ("s63", 0, 2, 12), ("s57", 10))
SX("s55", ST5, ("s4", 8))
SX("s49", Y6, ("s3", 16), ("s63", 5))
A("s_add_u32 s50, s49, 8192\ns_add_u32 s51, s49, 32768\ns_add_u32 s52, s49, 40960")
A(f"s_mov_b32 s41, {f32(1.0/512)}\ns_mov_b32 s43, {f32(1e-5)}")
A(f"s_add_u32 s40, s42, {FD}\nv_add_u32 v{wTA}, s40, v{wTR}")
for t in range(1, 4):
    A(f"v_xor_b32 v{wTA+t}, {t*32:#x}, v{wTA}")
poll(mf_loads, lambda: chk_empty4(16, 33), first_issued=True, first_wait=6, sleep=4)
A(f"ds_write_b128 v{fYW}, v[16:19]")
A("s_waitcnt vmcnt(0) lgkmcnt(0)\ns_barrier")
STAMP(10)
fWF = 84; fYO = 16
YO = [16, 20, 24, 28, 32, 36, 100, 104]
for k in range(4):
    for h in range(2):
        r = fWF + 4*k + 2*h
        A(f"ds_read_b64_tr_b16 v[{r}:{r+1}], v{fWR} offset:{k*4096 + h*2048}")
for u in range(8):
    A(f"ds_read_b128 v[{YO[u]}:{YO[u]+3}], v{fYR} offset:{u*1024}")
A("s_waitcnt lgkmcnt(0)")
for k in range(4):
    for pi in range(2):
        mfma(wD + 4*pi, YO[4*pi+k], fWF + 4*k, None if k == 0 else wD + 4*pi)
rowsum([wD, wD+4])
A(f"v_permlane16_swap_b32 v{wD}, v{wD+4}")
A(f"v_add_f32 v{wD+1}, v{wD}, v{wD+4}\nv_add_f32 v{wD}, v{wD}, v{wD+4}")
A(f"v_permlane16_swap_b32 v{wD}, v{wD+1}")
A(f"v_cvt_pk_bf16_f32 v{wD}, v{wD}, v{wD+1}")
setexec(0xffff0000, 0x0000ffff)
A(f"buffer_store_dword v{wD}, v{fGA}, {RW}, s62 offen sc1")
fullexec()
STAMP(1)
SX("s53", G5, ("s63", 10))
A(f"s_add_u32 s54, s53, {US5-G5}")
def us_loads():
    for k in range(4):
        A(f"buffer_load_dword v{40+k}, v{fGR}, {RW}, s54 offen offset:{256*k} sc1")
def y_load():
    A(f"buffer_load_dwordx4 v[16:19], v{wOF}, {RW}, s47 offen sc1")
fDF = 64
for tau in range(4):
    A(f"ds_read_b64_tr_b16 v[{fDF+2*tau}:{fDF+2*tau+1}], v{wTA+tau}")
poll(y_load, lambda: chk_empty4(16, 33))
STAMP(11)
A(f"ds_write_b128 v{fYW}, v[16:19] offset:8192")
us_loads()
A("s_waitcnt lgkmcnt(0)\ns_barrier")
for u in range(8):
    A(f"ds_read_b128 v[{YO[u]}:{YO[u]+3}], v{fYR} offset:{8192+u*1024}")
for u in range(8):
    A(f"s_waitcnt lgkmcnt({7-u})")
    mfma(wD, YO[u], fWF + 4*(u & 3), None if u == 0 else wD)
A(f"v_add_f32 v{wD}, v{wD}, v{wD+1}\nv_add_f32 v{wD+2}, v{wD+2}, v{wD+3}")
A(f"v_add_f32 v{wD+1}, v{wD}, v{wD+2}\nv_add_f32 v{wD}, v{wD}, v{wD+2}")
A(f"v_permlane16_swap_b32 v{wD}, v{wD+1}")
A(f"v_add_f32 v{fG}, v{wD}, v{wD+1}")
def g_store(fl):
    setexec(0xffff0000, 0x0000ffff)
    A(f"buffer_store_dword v{fG}, v{fGA}, {RW}, s61 offen {fl}")
g_store("")
fullexec()
STAMP(12)
def g_loads():
    A(f"buffer_load_dwordx4 v[24:27], v{fSTA}, {RW}, s55 offen sc1")
    for k in range(4):
        A(f"buffer_load_dword v{20+k}, v{fGR}, {RW}, s53 offen offset:{256*k} sc1")
poll(us_loads, lambda: chk_empty4(40, 33), first_issued=True, first_wait=1)
g_loads()
for k in range(4):
    A(f"v_lshlrev_b32 v{44+k}, 16, v{40+k}\nv_and_b32 v{40+k}, 0xffff0000, v{40+k}")
rowsum([44, 40])
A(f"v_mov_b32 v{fU}, v44\nv_mov_b32 v{fS}, v40")
def g_chk():
    A("v_add_f32 v24, v24, v26\nv_add_f32 v25, v25, v27")
    A("v_add_f32 v20, v20, v21\nv_add_f32 v22, v22, v23")
    A(f"v_add_f32_dpp v24, v24, v24 quad_perm:[1,0,3,2] {DPPM}\nv_add_f32_dpp v25, v25, v25 quad_perm:[1,0,3,2] {DPPM}")
    A("v_add_f32 v20, v20, v22")
    A(f"v_add_f32_dpp v24, v24, v24 quad_perm:[2,3,0,1] {DPPM}\nv_add_f32_dpp v25, v25, v25 quad_perm:[2,3,0,1] {DPPM}")
    A("v_add_f32 v26, v24, v25")
    A("v_cmp_u_f32 vcc, v20, v26")
poll(g_loads, g_chk, first_issued=True)
STAMP(13)
A(f"v_add_f32_dpp v24, v24, v24 row_half_mirror {DPPM}\nv_add_f32_dpp v25, v25, v25 row_half_mirror {DPPM}")
A("v_mov_b32 v26, s43")
A("v_mul_f32 v24, s41, v24")
A("v_fmac_f32 v26, s41, v25")
A("v_fma_f32 v26, -v24, v24, v26")
A(f"v_fma_f32 v20, -v24, v{fU}, v20")
A("v_rsq_f32 v26, v26")
A(f"v_fma_f32 v20, v20, v26, v{fS}")
A("v_max_f32 v21, 0, v20")
A(f"v_mul_f32_dpp v22, v20, v21 row_shl:4 {DPPM}")
pack4(22, 24, 25, 23)
for tau in range(4):
    d = 32 + 4*tau
    A(f"v_mfma_f32_16x16x16_bf16 v[{d}:{d+3}], v[{fDF+2*tau}:{fDF+2*tau+1}], v[24:25], 0")
setexec(0x01010101, 0x01010101)
for tau in range(4):
    d = 32 + 4*tau
    A(f"buffer_store_dwordx4 v[{d}:{d+3}], v{fY6A}, {RW}, s{49+tau} offen sc1")
STAMP(8)
A("s_waitcnt vmcnt(0)")
g_store("sc1")
A("s_branch L_exit")

A(".p2align 6")
A.label("L_W")
A(f"v_lshl_or_b32 v{wQ}, v{T0}, 13, v{T1}\nv_lshl_or_b32 v{wO}, v{T0}, 10, v{T1}")
kload(RF, 88)
A("s_lshl_b32 s48, s3, 12")
SX("s43", 0, ("s6", 8), ("s3", 5))
SX("s44", 0, ("s43", 13), ("s4", 10), ("s46", 0))
SX("s51", 2048, ("s58", 8), ("s41", 0))
A("s_add_u32 s52, s51, 128\ns_add_u32 s49, s51, 2048\ns_add_u32 s50, s52, 2048")
A(f"s_add_u32 m0, s48, {WQL}")
A("s_waitcnt lgkmcnt(0)")
STAMP(1)
if "noW" in OPT["abl"]: A("s_branch L_exit")
for u in range(4):
    if u: A(f"s_add_u32 s44, s44, {8*8192-1024}")
    A(f"buffer_load_dwordx4 v{wQ}, {RA}, s44 offen offset:{u*1024} {NT} lds")
A(f"s_load_dword {sTAG}, s[16:17], 0")
A(f"buffer_load_dword v{wC}, v{T2}, {RE}, s46 offen {SNT}")
srd(RF, 2048)
A("v_mov_b32 v75, 0\nv_mov_b32 v113, 0")
SX("s47", 0, ("s4", 19), ("s43", 10), ("s46", 0))
if OPT["touch"]:
    sk = L("ntc")
    A(f"s_cmp_lg_u32 s3, 5\ns_cbranch_scc1 {sk}")
    A(f"buffer_load_dword v{vPF}, v75, {RB}, s47 offen {NT}")
    A(f"buffer_load_dword v{vPF}, v75, {RC}, s51 offen {NT}")
    A(f"buffer_load_dword v{vPF}, v75, {RF}, 0 offen")
    A.label(sk)
tr_setup()
wRW, wRR, wOF, wTA = 14, 15, 72, 108
SX("s40", RED, ("s3", 9)); VX(wRW, 32, "s40", (0, 6, 2))
SX("s40", RED, ("s3", 8)); VX(wRR, 32, "s40", (0, 6, 2))
VX(wOF, 32, 0, (0, 3, 7), (3, 1, 6), (4, 2, 4))
SX("s53", H1G, ("s43", 6))
VX(T3, 32, 0, (0, 2, 12))
A("s_xor_b32 s57, s6, 1")
SX("s57", H1G + 4, ("s57", 14), ("s3", 7))
wQA = 73; wQD = 76; wMD = 74; wMA = 13
VX(wQA, 32, 0, (5, 1, 12), (0, 5, 2))
SX("s56", QG, ("s4", 13), ("s5", 8), ("s3", 7))
A(f"v_add_u32 v{wTA}, s48, v{wTR}")
for t in range(1, 4):
    A(f"v_xor_b32 v{wTA+t}, {t*32:#x}, v{wTA}")
VX(wMA, 32, 0, (0, 6, 1))
SX("s55", MG, ("s58", 12), ("s3", 10), ("s46", 0))
SX("s40", 0, ("s58", 2, 0, 3), ("s7", 0))
A("s_cmp_eq_u32 s40, 16\ns_cselect_b32 s41, 1.0, 0")
silu_operand(0)
A(f"s_add_u32 {sTAG}, {sTAG}, {TAGC:#x}")
A(f"v_mov_b32 v{wQD+1}, {sTAG}\nv_mov_b32 v{wQD+3}, {sTAG}")
def blk_frags(off):
    for t in range(4):
        for h in range(2):
            r = wWF + 4*t + 2*h
            A(f"ds_read_b64_tr_b16 v[{r}:{r+1}], v{wTA+t} offset:{off + h*2048}")
blk_frags(WQL)
STAMP(3)
if OPT["abl"]: A("s_branch L_exit")
def h1_loads():
    A(f"buffer_load_dwordx4 v[16:19], v{wOF}, {RW}, s53 offen sc1")
    A(f"buffer_load_dwordx4 v[20:23], v{wOF}, {RW}, s53 offen offset:1024 sc1")
    A(f"buffer_load_dword v33, v{T3}, {RW}, s57 offen sc1")
def h1_chk():
    A(f"v_xor_b32 v33, {sTAG}, v33")
    for r in (17, 19, 21, 23):
        A(f"v_bitop3_b32 v33, v{r}, {sTAG}, v33 bitop3:0xbe")
    A("v_cmp_ne_u32 vcc, 0, v33")
await_any(lambda: A(f"buffer_load_dword v33, v{T3}, {RW}, s57 offen sc1"), lambda: A(f"v_cmp_eq_u32 vcc, {sTAG}, v33"), OPT["s1"])
poll(h1_loads, h1_chk, sleep=OPT["s2"])
STAMP(4)
A("v_mov_b32 v17, v18\nv_mov_b32 v18, v20\nv_mov_b32 v19, v22")
A("s_waitcnt lgkmcnt(0)")
def blk_mfma(op):
    for t in range(4):
        mfma(wD + 4*t, op, wWF + 4*t, None)
def blk_reduce():
    A(f"v_permlane16_swap_b32 v{wD}, v{wD+4}\nv_permlane16_swap_b32 v{wD+8}, v{wD+12}")
    A(f"v_add_f32 v{wD}, v{wD}, v{wD+4}\nv_add_f32 v{wD+8}, v{wD+8}, v{wD+12}")
    A(f"ds_write2st64_b32 v{wRW}, v{wD}, v{wD+8} offset0:0 offset1:1")
    A("s_waitcnt lgkmcnt(0)\ns_barrier")
def blk_final():
    for i in range(4):
        A(f"ds_read2st64_b32 v[{32+2*i}:{33+2*i}], v{wRR} offset0:{4*i} offset1:{4*i+2}")
    A("s_waitcnt lgkmcnt(0)")
    A("v_add_f32 v32, v32, v33\nv_add_f32 v34, v34, v35\nv_add_f32 v36, v36, v37\nv_add_f32 v38, v38, v39")
    A("v_add_f32 v32, v32, v34\nv_add_f32 v36, v36, v38\nv_add_f32 v32, v32, v36")
blk_mfma(16)
rowsum([wD, wD+4, wD+8, wD+12])
blk_reduce()
sk = L("nq"); sk2 = L("nm")
A(f"s_cmp_ge_u32 s3, 2\ns_cbranch_scc1 {sk}")
blk_final()
pack4(32, wQD, wQD+2, 33)
setexec(0x11111111, 0x11111111)
A(f"buffer_store_dwordx4 v[{wQD}:{wQD+3}], v{wQA}, {RW}, s56 offen")
A.label(sk)
STAMP(5)
fullexec()
A("s_barrier")
unit_dma(RC, "s51", "s52", PB)
SX("s59", Y6, ("s5", 15), ("s4", 12))
A("s_cmp_eq_u32 s3, 7\ns_cselect_b32 s40, 0, -1")
A("v_mov_b32 v36, s40\nv_mov_b32 v37, s40\nv_lshlrev_b32 v38, 3, v0")
SX("s40", 0, ("s3", 9), ("s59", 0))
A(f"buffer_store_dwordx2 v[36:37], v38, {RW}, s40 offen sc1")
wGA, wCB, wXA, wXAD = 74, 75, 80, 81
VX(T1, 32, 0, (0, 4, 6), (4, 2, 4))
SX("s53", OG, ("s4", 14), ("s43", 5))
SX("s54", SG, ("s4", 9), ("s43", 7, 0, 7))
A(f"v_lshlrev_b32 v{T0}, 2, v1\nv_xor_b32 v{T0}, v0, v{T0}\nv_and_b32 v{T0}, 7, v{T0}\nv_lshlrev_b32 v{T0}, 3, v{T0}")
A(f"v_lshrrev_b32 v32, 5, v0\nv_lshl_or_b32 v{T0}, v32, 6, v{T0}")
VX(wXAD, 32, 0, (5, 1, 6), (2, 2, 4), (4, 1, 3))
SX("s60", X4, ("s7", 11), ("s3", 10), ("s6", 14), ("s4", 7))
A(f"s_add_u32 s44, s60, {Y4-X4}")
A("s_waitcnt vmcnt(0)\ns_barrier")
STAMP(2)
sk = L("nmb")
A(f"s_cmp_ge_u32 s3, 4\ns_cbranch_scc1 {sk}")
unit_mfma("s41", "s41", PB)
A("v_cmp_gt_u32 vcc, 32, v0")
A(f"v_cndmask_b32 v32, v{wD+4}, v{wD}, vcc")
pack4(32, 34, 35, 33)
setexec(0x11111111, 0x11111111)
A(f"buffer_store_dwordx2 v[34:35], v{wMA}, {RW}, s55 offen sc1")
fullexec()
A.label(sk)
if OPT["trg"]:
    VX(39, 32, 0, (0, 4, 2))
    SX("s40", TRG, ("s4", 7))
    A(f"s_mov_b32 {sCNT}, 0")
    A.label("L_trg")
    A(f"buffer_load_dword v33, v39, {RW}, s40 offen sc1")
    A("s_waitcnt vmcnt(0)")
    A(f"v_cmp_ne_u32 vcc, {sTAG}, v33")
    A("s_cbranch_vccz L_trgd")
    A(f"s_sleep 4\ns_add_u32 {sCNT}, {sCNT}, 1\ns_cmp_lt_u32 {sCNT}, {OPT['trgmax']}\ns_cbranch_scc1 L_trg")
    A.label("L_trgd")
    STAMP(6)
A(f"s_add_u32 m0, s48, {WOL}")
for u in range(4):
    if u: A(f"s_add_u32 s47, s47, {8*1024-1024}")
    A(f"buffer_load_dwordx4 v{wO}, {RB}, s47 offen offset:{u*1024} {NT} lds")
sk = L("ncs")
A(f"s_cmp_ge_u32 s3, 2\ns_cbranch_scc1 {sk}")
VX(38, 37, 0, (4, 1, 10), (5, 1, 5), (0, 4, 1))
SX("s49", MG, ("s7", 1, 0, 12), ("s7", 0, 1, 6), ("s3", 11))
A(f"s_add_u32 s50, s49, {2*16384}")
VX(37, 36, 0, (5, 1, 10), (0, 5, 1))
SX("s40", 0, ("s7", 7), ("s3", 6))
A(f"v_mov_b32 v{wXA}, 0")
sk2 = L("nx")
A(f"s_cmp_lg_u32 s58, 0\ns_cbranch_scc1 {sk2}")
A(f"buffer_load_short_d16_hi v{wXA}, v37, {RD}, s40 offen")
A.label(sk2)
for i in range(16):
    A(f"v_mov_b32 v{84+i}, 0")
def mg_loads():
    for p in range(8):
        A(f"buffer_load_short_d16_hi v{84+p}, v38, {RW}, s49 offen offset:{p*128} sc1")
        A(f"buffer_load_short_d16_hi v{92+p}, v38, {RW}, s50 offen offset:{p*128} sc1")
def mg_chk():
    sum8(wGA, 84); sum8(wCB, 92)
    A(f"v_cmp_u_f32 vcc, v{wGA}, v{wCB}")
poll(mg_loads, mg_chk, sleep=8)
A.label(sk)
sk = L("nw2")
A(f"s_cmp_lg_u32 s3, 2\ns_cbranch_scc1 {sk}")
tGB, tE, tOUT, tBP, tOF, tL16 = 74, 84, 75, 80, 72, 73
VX(38, 33, 0, (0, 1, 3), (5, 1, 1), (4, 1, 2))
SX("s61", MG + 12*4096, ("s5", 2, 0, 12), ("s5", 1, 1, 6), ("s5", 0, 1, 11), ("s4", 1, 1, 10), ("s4", 2, 0, 5), ("s4", 0, 1, 4))
for i in range(8):
    A(f"v_mov_b32 v{92+i}, 0")
def gb_loads():
    for p in range(8):
        A(f"buffer_load_short_d16_hi v{92+p}, v38, {RW}, s61 offen offset:{p*128} sc1")
gb_loads()
SX("s40", 0, ("s4", 0, 2, 4)); A(f"v_add_u32 v{tOUT}, s40, v38")
SX("s40", 0, ("s4", 2, 0, 7)); A(f"v_lshl_add_u32 v{tBP}, v{tOUT}, 1, s40")
SX("s62", 0, ("s4", 2, 0, 10), ("s5", 6))
A("v_and_b32 v32, 1, v0\nv_lshlrev_b32 v32, 4, v32\nv_mov_b32 v33, 0x3f80\nv_lshlrev_b32 v32, v32, v33")
A("v_lshrrev_b32 v33, 2, v2\nv_sub_u32 v33, v1, v33\nv_bfe_u32 v34, v0, 1, 1\nv_lshl_or_b32 v33, v33, 1, v34")
for r in range(2):
    A(f"v_cmp_eq_u32 vcc, {r}, v33")
    A(f"v_cndmask_b32 v{tE+r}, 0, v32, vcc")
    A(f"v_mov_b32 v{tE+6+r}, v{tE+r}")
for r in (2, 3, 4, 5):
    A(f"v_mov_b32 v{tE+r}, 0")
A(f"v_lshlrev_b32 v{tL16}, 4, v0")
SX("s49", X4, ("s5", 10))
A("s_add_u32 s50, s49, 16384")
SX("s55", ST5, ("s4", 8), ("s7", 5), ("s6", 3))
VX(113, 33, 0, (5, 1, 4), (4, 1, 2))
def gb_chk():
    sum8(tGB, 92)
    A(f"v_cmp_u_f32 vcc, v{tGB}, v{tGB}")
poll(gb_loads, gb_chk, first_issued=True, sleep=8)
A.label(sk)
A("s_waitcnt vmcnt(0)")
blk_frags(WOL)
STAMP(7)
wF = 100
sg_load = lambda: A(f"buffer_load_dwordx2 v[16:17], v{T0}, {RW}, s54 offen sc1")
await_any(sg_load, lambda: A("v_cmp_o_f32 vcc, v17, v17"), OPT["s1"])
poll(sg_load, lambda: A("v_cmp_u_f32 vcc, v17, v17"), first_issued=True, sleep=2*OPT["s2"])
def o_loads():
    A(f"buffer_load_dwordx4 v[104:107], v{T1}, {RW}, s53 offen sc1")
o_loads()
A(f"v_max_f32_dpp v18, v16, v16 quad_perm:[1,0,3,2] {DPPM}")
A(f"v_max_f32_dpp v18, v18, v18 quad_perm:[2,3,0,1] {DPPM}")
A(f"v_max_f32_dpp v18, v18, v18 row_half_mirror {DPPM}")
A("v_sub_f32 v16, v16, v18\nv_exp_f32 v16, v16\nv_mul_f32 v17, v16, v17")
for m in ("quad_perm:[1,0,3,2]", "quad_perm:[2,3,0,1]", "row_half_mirror"):
    A(f"v_add_f32_dpp v17, v17, v17 {m} {DPPM}")
A(f"v_rcp_f32 v17, v17\nv_mul_f32 v{wF}, v16, v17")
STAMP(8)
poll(o_loads, lambda: chk_empty4(104, 33), first_issued=True, first_wait=0)
STAMP(9)
A("s_waitcnt lgkmcnt(0)")
blk_mfma(104)
for t in range(4):
    A(f"v_mul_f32_dpp v{wD+4*t}, v{wF}, v{wD+4*t} row_newbcast:0 {DPPM}")
for r in range(1, 4):
    for t in range(4):
        A(f"v_fmac_f32_dpp v{wD+4*t}, v{wF}, v{wD+4*t+r} row_newbcast:{r} {DPPM}")
blk_reduce()
A("s_cmp_gt_u32 s3, 2\ns_cbranch_scc1 L_exit")
A("s_cmp_eq_u32 s3, 2\ns_cbranch_scc1 L_fin")
blk_final()
A(f"v_fma_f32 v32, v32, v{wGA}, v{wXA}")
A(f"v_mul_f32 v36, v32, v{wCB}")
A(f"v_mov_b32_dpp v33, v32 quad_perm:[1,1,3,3] {DPPM}")
A(f"v_mov_b32_dpp v37, v36 quad_perm:[1,1,3,3] {DPPM}")
A("v_cvt_pk_bf16_f32 v34, v32, v33\nv_cvt_pk_bf16_f32 v38, v36, v37")
A(f"v_mov_b32_dpp v35, v34 quad_perm:[2,2,2,2] {DPPM}")
A(f"v_mov_b32_dpp v39, v38 quad_perm:[2,2,2,2] {DPPM}")
setexec(0x11111111, 0x11111111)
A(f"buffer_store_dwordx2 v[38:39], v{wXAD}, {RW}, s44 offen sc1")
A(f"buffer_store_dwordx2 v[34:35], v{wXAD}, {RW}, s60 offen sc1")
fullexec()
STAMP(10)
A("s_branch L_exit")
A.label("L_fin")
def x4_loads():
    A(f"buffer_load_dwordx4 v[16:19], v{tOF}, {RW}, s49 offen sc1")
    A(f"buffer_load_dwordx4 v[20:23], v{tOF}, {RW}, s50 offen sc1")
def x4_chk():
    A("v_max3_u32 v33, v16, v17, v18\nv_max3_u32 v34, v19, v20, v21\nv_max3_u32 v33, v33, v22, v23\nv_max_u32 v33, v33, v34\nv_cmp_eq_u32 vcc, -1, v33")
poll(x4_loads, x4_chk)
STAMP(11)
for hp in range(2):
    for t in range(2):
        mfma(wD + 4*t, 16 + 4*hp, tE + 4*t, None if hp == 0 else wD + 4*t)
rowsum([wD, wD+4])
A(f"v_permlane16_swap_b32 v{wD}, v{wD+4}")
A(f"v_add_f32 v42, v{wD}, v{wD+4}")
A("v_mov_b32 v43, v42\nv_mul_f32 v44, v42, v42")
A("v_permlane16_swap_b32 v43, v44")
A("v_add_f32 v43, v43, v44")
for m in ("quad_perm:[1,0,3,2]", "quad_perm:[2,3,0,1]", "row_half_mirror", "row_mirror"):
    A(f"v_add_f32_dpp v43, v43, v43 {m} {DPPM}")
setexec(0x00010001, 0x00010001)
A(f"buffer_store_dword v43, v113, {RW}, s55 offen")
fullexec()
STAMP(12)
A(f"ds_bpermute_b32 v42, v{tBP}, v42")
def y6_loads():
    for i in range(4):
        A(f"buffer_load_dwordx4 v[{16+4*i}:{19+4*i}], v{tL16}, {RW}, s59 offen offset:{1024*i} sc1")
def y6_chk():
    for r in range(4):
        A(f"v_add_f32 v{16+r}, v{16+r}, v{20+r}\nv_add_f32 v{24+r}, v{24+r}, v{28+r}")
    for r in range(4):
        A(f"v_add_f32 v{16+r}, v{16+r}, v{24+r}")
    A("v_permlane32_swap_b32 v16, v17\nv_permlane32_swap_b32 v18, v19")
    A("v_add_f32 v16, v16, v17\nv_add_f32 v18, v18, v19")
    A("v_permlane16_swap_b32 v16, v18")
    A("v_add_f32 v16, v16, v18")
    A("v_cmp_u_f32 vcc, v16, v16")
await_any(lambda: A(f"buffer_load_dword v16, v{tL16}, {RW}, s59 offen sc1"), lambda: A("v_cmp_o_f32 vcc, v16, v16"), 2)
poll(y6_loads, y6_chk)
STAMP(13)
for m in ("row_ror:8", "row_ror:4", "row_ror:2"):
    A(f"v_add_f32_dpp v16, v16, v16 {m} {DPPM}")
A("s_waitcnt lgkmcnt(0)")
A(f"v_fma_f32 v16, v16, v{tGB}, v42")
A("v_cvt_pk_bf16_f32 v16, v16, v16")
setexec(0x00030003, 0x00030003)
A(f"buffer_store_short v16, v{tOUT}, {RF}, s62 offen")
A("s_cmp_lg_u32 s2, 128\ns_cbranch_scc1 L_exit")
A(f"s_sub_u32 s40, {sTAG}, {TAGC-1:#x}")
A("v_mov_b32 v17, s40\nv_mov_b32 v18, 0")
A("s_mov_b64 exec, 1")
A(f"buffer_store_dword v17, v18, {RW}, 0 offen sc1")

A.label("L_exit")
if STAMPS == 1:
    STAMP(15)
    A("s_waitcnt lgkmcnt(0)")
    A("s_mov_b64 exec, 1")
    SX("s40", DBG, ("s2", 9), ("s3", 6))
    A("v_mov_b32 v0, 0")
    for q in range(4):
        for i in range(4):
            A(f"v_mov_b32 v{4+4*q+i}, s{64+2*(4*q+i)}")
        A(f"buffer_store_dwordx4 v[{4+4*q}:{7+4*q}], v0, {RW}, s40 offen offset:{16*q}")
if STAMPS == 2:
    STAMP(15)
    A("s_load_dwordx2 s[32:33], s[0:1], 96")
    A("s_mov_b32 s34, 256\ns_mov_b32 s35, 0x00020000")
    A("s_waitcnt lgkmcnt(0)")
    fullexec()
    A("v_mov_b32 v4, 0\nv_mbcnt_lo_u32_b32 v5, -1, 0\nv_lshlrev_b32 v5, 2, v5")
    A("s_cmp_ge_u32 s2, 128\ns_cbranch_scc1 L_dw")
    A("s_cmp_lg_u32 s3, 0\ns_cbranch_scc1 L_end")
    A("s_not_b32 s40, s64\nv_writelane_b32 v4, s40, 0")
    for i, st in enumerate([9, 2, 5, 7, 10, 11, 8]):
        A(f"v_writelane_b32 v4, s{64+2*st}, {i+1}")
    A("s_branch L_dd")
    A.label("L_dw")
    A("s_cmp_lg_u32 s3, 2\ns_cbranch_scc1 L_end")
    for i, st in enumerate([0, 3, 4, 5, 7, 9, 11, 15]):
        A(f"v_writelane_b32 v4, s{64+2*st}, {i+8}")
    A.label("L_dd")
    A("s_mov_b64 exec, 0xffff")
    A("buffer_atomic_umax v4, v5, s[32:35], 0 offen")
A.label("L_end")
A("s_endpgm")
A.label("L_codeend")
A.raw(f".fill (16384 - (L_codeend - {NAME}_kernel)) / 4, 4, 0xbf810000")
A.raw(f""".section .rodata,"a"
.p2align 6
.amdhsa_kernel {NAME}_kernel
  .amdhsa_next_free_vgpr 128
  .amdhsa_next_free_sgpr 96
  .amdhsa_accum_offset 128
  .amdhsa_group_segment_fixed_size 0
  .amdhsa_kernarg_size 112
  .amdhsa_user_sgpr_count 2
  .amdhsa_user_sgpr_kernarg_segment_ptr 1
  .amdhsa_system_sgpr_workgroup_id_x 1
  .amdhsa_float_denorm_mode_32 3
.end_amdhsa_kernel""")
sys.stdout.write(A.text())
sys.stderr.write(f"instrs={A.ninstr} nops={A.nops}\n")
```

```python
import sys, math, struct
sys.path.insert(0, "work")
from asmlib import Asm

NAME = "adaLN_cond__sliding_block_cached__glu_gated_reglu__decode"
OPT = dict(stamps=0, nt="nt", limit=20000, refresh=255, psleep=0, pf=1, pfnt="", smallnt="", slow=0, gtrg=0, gw=7, gmask=7, fpf=0, wo_after_c=0, fpfbar=1, fpfl="", uslocal=1, qn=4, trg=0, mb_at="kv", touch=0, ltouch=1, ahold=8, wqpf=0, wqpfl="", ehold=0, depth=0, ffn_first=0, ser=1, obar=1, gu_b1=0, wo_mb=1, h1at=0, depth_until=16, qpipe=1, s1=6, s2=1, sent=1, trgmax=24, kvbar=1, abl="")
for a in sys.argv[1:]:
    k, v = a.split("=")
    OPT[k] = int(v) if v.lstrip("-").isdigit() else v
STAMPS = OPT["stamps"]; NT = OPT["nt"] if OPT["nt"] != "-" else ""
LIMIT = OPT["limit"]; REFRESH = OPT["refresh"]; SNT = OPT["smallnt"]

def f32(x): return "0x%08x" % struct.unpack("<I", struct.pack("<f", x))[0]

TRG = 0x1000; H1G = 0x8000; QG = 0x10000; MGT = 0x20000
CLR = 0x100000
OG = CLR; MG = CLR + 0x20000; X4 = CLR + 0x30000; Y4 = CLR + 0x38000
G5 = CLR + 0x40000; SG = CLR + 0x5C000; ST5 = CLR + 0x5D000; US5 = CLR + 0x60000
Y6 = 0x180000; DBG = 0x400000
WS_BYTES = 0x800000
TAGC = 0x9E3779B9
VREG = 65536; PA = 131072; XL = 147456; QL = XL + 1024; PL = QL + 2048; MISC = PL + 2048
FG = 0; FD = 32768; YL0 = 131072
WQL = 0; WOL = 32768; PB = 65536; RED = XL + 1024
LDS_BYTES = MISC + 256
C1 = 128 ** -0.5 * math.log2(math.e)

A = Asm()
hdr = open(f"cdna_kernels/{NAME}.s.ref").read().split("\n")
for ln in hdr:
    if ln.startswith("; @launch"):
        A.raw(f"; @launch grid=(256,1,1) block=(512,1,1) lds={LDS_BYTES}")
        break
    A.raw(ln)
A.raw('.amdgcn_target "amdgcn-amd-amdhsa--gfx950"')
A.raw(f".text\n.globl {NAME}_kernel\n.p2align 8\n.type {NAME}_kernel,@function\n{NAME}_kernel:")

RA, RB, RW, RC, RD, RE, RF = "s[8:11]", "s[12:15]", "s[16:19]", "s[20:23]", "s[24:27]", "s[28:31]", "s[32:35]"
sTAG, sCNT, sT = "s36", "s37", "s45"
def STAMP(n):
    if STAMPS:
        A(f"s_memrealtime s[{64+2*n}:{65+2*n}]")
DPPM = "row_mask:0xf bank_mask:0xf"
lbl = [0]
def L(p):
    lbl[0] += 1
    return f"L_{p}_{lbl[0]}"
def srd(r, nbytes):
    b = int(r[2:r.index(":")])
    A(f"s_mov_b32 s{b+2}, {nbytes}\ns_mov_b32 s{b+3}, 0x00020000")
def kload(r, off):
    b = int(r[2:r.index(":")])
    A(f"s_load_dwordx2 s[{b}:{b+1}], s[0:1], {off}")

def SX(dst, const, *terms):
    first = True
    for t in terms:
        src, rs, w, ls = (t[0], 0, 0, t[1]) if len(t) == 2 else t
        d = dst if first else sT
        cur = src
        if w:
            if rs == 0: A(f"s_and_b32 {d}, {cur}, {(1<<w)-1}")
            else: A(f"s_bfe_u32 {d}, {cur}, {(w<<16)|rs:#x}")
            cur = d
        elif rs:
            A(f"s_lshr_b32 {d}, {cur}, {rs}"); cur = d
        if first:
            if ls: A(f"s_lshl_b32 {d}, {cur}, {ls}")
            elif cur != d: A(f"s_mov_b32 {d}, {cur}")
        else:
            if 1 <= ls <= 4: A(f"s_lshl{ls}_add_u32 {dst}, {cur}, {dst}")
            else:
                if ls: A(f"s_lshl_b32 {sT}, {cur}, {ls}"); cur = sT
                A(f"s_add_u32 {dst}, {dst}, {cur}")
        first = False
    if const: A(f"s_add_u32 {dst}, {dst}, {const:#x}")
def VX(dst, tmp, add, *terms):
    first = True
    for rs, w, ls in terms:
        if rs == 4 and w == 2: cur = "v1"
        elif rs == 0 and w == 4: cur = "v2"
        elif rs == 0 and w == 6: cur = "v0"
        else:
            d = f"v{dst}" if first else f"v{tmp}"
            if rs + w == 6: A(f"v_lshrrev_b32 {d}, {rs}, v0")
            elif rs == 0: A(f"v_and_b32 {d}, {(1<<w)-1}, v0")
            else: A(f"v_bfe_u32 {d}, v0, {rs}, {w}")
            cur = d
        if first:
            if ls: A(f"v_lshlrev_b32 v{dst}, {ls}, {cur}")
            elif cur != f"v{dst}": A(f"v_mov_b32 v{dst}, {cur}")
        else:
            if ls: A(f"v_lshl_or_b32 v{dst}, {cur}, {ls}, v{dst}")
            else: A(f"v_or_b32 v{dst}, {cur}, v{dst}")
        first = False
    if add: A(f"v_add_u32 v{dst}, {add}, v{dst}")

def await_any(load, valid, sleep):
    if not OPT["sent"]: return
    top, done = L("aw"), L("awd")
    A(f"s_mov_b32 {sCNT}, 0")
    A.label(top)
    load()
    A("s_waitcnt vmcnt(0)")
    valid()
    A(f"s_cbranch_vccnz {done}")
    A(f"s_sleep {sleep}\ns_add_u32 {sCNT}, {sCNT}, 1\ns_cmp_lt_u32 {sCNT}, 64\ns_cbranch_scc1 {top}")
    A.label(done)
def poll(loads, check, first_issued=False, first_wait=0, sleep=0):
    top, done, chk = L("poll"), L("got"), L("chk")
    A(f"s_mov_b32 {sCNT}, 0")
    if first_issued:
        A(f"s_waitcnt vmcnt({first_wait})")
        A(f"s_branch {chk}")
    A.label(top)
    loads()
    A("s_waitcnt vmcnt(0)")
    if first_issued:
        A.label(chk)
    check()
    A(f"s_cbranch_vccz {done}")
    if sleep: A(f"s_sleep {sleep}")
    A(f"s_add_u32 {sCNT}, {sCNT}, 1")
    A(f"s_and_b32 {sT}, {sCNT}, {REFRESH}\ns_cbranch_scc1 {top}")
    A("buffer_wbl2 sc1")
    A(f"s_cmp_lt_u32 {sCNT}, {LIMIT}\ns_cbranch_scc1 {top}")
    A.label(done)
def chk_empty4(r, tmp):
    A(f"v_max3_u32 v{tmp}, v{r}, v{r+1}, v{r+2}\nv_max_u32 v{tmp}, v{tmp}, v{r+3}\nv_cmp_eq_u32 vcc, -1, v{tmp}")
def pack4(src, pk, pk2, tmp):
    A(f"v_mov_b32_dpp v{tmp}, v{src} quad_perm:[1,1,3,3] {DPPM}")
    A(f"v_cvt_pk_bf16_f32 v{pk}, v{src}, v{tmp}")
    A(f"v_mov_b32_dpp v{pk2}, v{pk} quad_perm:[2,2,2,2] {DPPM}")
def setexec(lo, hi):
    A(f"s_mov_b32 exec_lo, {lo:#x}\ns_mov_b32 exec_hi, {hi:#x}")
def fullexec():
    A("s_mov_b64 exec, -1")
def mfma(d, a, b, c):
    cc = "0" if c is None else f"v[{c}:{c+3}]"
    A(f"v_mfma_f32_16x16x32_bf16 v[{d}:{d+3}], v[{a}:{a+3}], v[{b}:{b+3}], {cc}")
def rowsum(ds):
    for d in ds: A(f"v_add_f32 v{d}, v{d}, v{d+1}\nv_add_f32 v{d+2}, v{d+2}, v{d+3}")
    for d in ds: A(f"v_add_f32 v{d}, v{d}, v{d+2}")
def code_prefetch(tmp, dst):
    sk = L("npf")
    A(f"s_cmp_lt_u32 s3, 6\ns_cbranch_scc1 {sk}")
    A("s_and_b32 s38, s38, 0xffffff00")
    A(f"v_lshlrev_b32 v{tmp}, 7, v0")
    A(f"s_and_b32 s40, s3, 1\ns_lshl_b32 s40, s40, 13")
    A(f"v_add_u32 v{tmp}, s40, v{tmp}")
    if not OPT["pf"]: A(f"v_mov_b32 v{tmp}, 0")
    A(f"global_load_dword v{dst}, v{tmp}, s[38:39] {OPT['pfnt']}")
    A.label(sk)

wM, wQ, wO, wTR, T0, T1, T2, T3, vPF = 3, 4, 5, 6, 7, 8, 9, 10, 11
wC = 12; wXS = 13; wX = 16; wXO = 24; wWF = 40; wD = 56
def swz_chunk(dst):
    A(f"v_lshlrev_b32 v{dst}, 1, v1\nv_xor_b32 v{dst}, v0, v{dst}\nv_and_b32 v{dst}, 7, v{dst}\nv_lshlrev_b32 v{dst}, 4, v{dst}")
def unit_dma(srdr, s0, s1, base):
    A(f"s_add_u32 m0, s42, {base}")
    A(f"buffer_load_dwordx4 v{wM}, {srdr}, {s0} offen {NT} lds")
    A(f"s_add_u32 m0, s42, {base+8192}")
    A(f"buffer_load_dwordx4 v{wM}, {srdr}, {s1} offen {NT} lds")
def tr_setup():
    VX(wTR, 32, 0, (2, 4, 7), (3, 2, 5), (0, 2, 3))
    SX("s40", XL, ("s3", 0, 2, 8))
    VX(82, 32, "s40", (0, 6, 2))
    VX(83, 32, "s40", (2, 1, 7), (4, 2, 3))
def silu_operand(cnt):
    A(f"s_waitcnt vmcnt({cnt})")
    A(f"v_lshlrev_b32 v32, 16, v{wC}\nv_and_b32 v33, 0xffff0000, v{wC}")
    A(f"v_mul_f32 v34, {f32(-math.log2(math.e))}, v32\nv_mul_f32 v35, {f32(-math.log2(math.e))}, v33")
    A("v_exp_f32 v34, v34\nv_exp_f32 v35, v35")
    A("v_add_f32 v34, 1.0, v34\nv_add_f32 v35, 1.0, v35")
    A("v_rcp_f32 v34, v34\nv_rcp_f32 v35, v35")
    A("v_mul_f32 v32, v32, v34\nv_mul_f32 v33, v33, v35")
    A("v_cvt_pk_bf16_f32 v32, v32, v33")
    A("ds_write_b32 v82, v32")
    A("s_waitcnt lgkmcnt(0)")
    A(f"ds_read2_b64 v[{wXO}:{wXO+3}], v83 offset0:0 offset1:4\nds_read2_b64 v[{wXO+4}:{wXO+7}], v83 offset0:8 offset1:12")
def unit_pre(s_c0, s_c1, base):
    SX("s40", 0, ("s3", 0, 2, 5)); A(f"v_xor_b32 v112, s40, v{wTR}\nv_add_u32 v112, {base}, v112")
    for i in range(4):
        A(f"v_mov_b32 v{wD+i}, {s_c0}\nv_mov_b32 v{wD+4+i}, {s_c1}")
def unit_go():
    if STAMPS: A("s_waitcnt lgkmcnt(0)")
    for k in range(2):
        for seg in range(2):
            for h in range(2):
                r = wWF + seg*8 + k*4 + h*2
                A(f"ds_read_b64_tr_b16 v[{r}:{r+1}], v112 offset:{seg*8192 + k*4096 + h*2048}")
    for k in range(2):
        for seg in range(2):
            A(f"s_waitcnt lgkmcnt({6 - 4*k - 2*seg})")
            mfma(wD + 4*seg, wXO + 4*k, wWF + seg*8 + k*4, wD + 4*seg)
def unit_mfma(s_c0, s_c1, base):
    unit_pre(s_c0, s_c1, base); unit_go()
def tagged_loads(r, va, so):
    A(f"buffer_load_dwordx4 v[{r}:{r+3}], v{va}, {RW}, {so} offen sc1")
    A(f"buffer_load_dwordx4 v[{r+4}:{r+7}], v{va}, {RW}, {so} offen offset:1024 sc1")
def tagged_chk(rs, tmp, extra=None):
    tags = [r + i for r in rs for i in (1, 3, 5, 7)] + ([extra] if extra else [])
    A(f"v_xor_b32 v{tmp}, {sTAG}, v{tags[-1]}")
    for t in tags[:-1]:
        A(f"v_bitop3_b32 v{tmp}, v{t}, {sTAG}, v{tmp} bitop3:0xbe")
    A(f"v_cmp_ne_u32 vcc, 0, v{tmp}")
def tagged_pack(r):
    A(f"v_mov_b32 v{r+1}, v{r+2}\nv_mov_b32 v{r+2}, v{r+4}\nv_mov_b32 v{r+3}, v{r+6}")
def sum8(dst, r):
    A(f"v_add_f32 v32, v{r}, v{r+1}\nv_add_f32 v33, v{r+2}, v{r+3}\nv_add_f32 v34, v{r+4}, v{r+5}\nv_add_f32 v35, v{r+6}, v{r+7}")
    A(f"v_add_f32 v32, v32, v33\nv_add_f32 v34, v34, v35\nv_add_f32 v{dst}, v32, v34")

STAMP(0)
A("s_cmp_ge_u32 s2, 256\ns_cbranch_scc1 L_end")
A("s_cmp_ge_u32 s2, 128\ns_cselect_b32 s40, 24, 8")
A("s_load_dwordx2 s[8:9], s[0:1], s40")
kload(RC, 80); kload(RW, 104)
A("v_readfirstlane_b32 s3, v0")
A("s_getpc_b64 s[38:39]")
A("v_and_b32 v0, 63, v0")
A("s_mov_b32 s11, 0x00020000")
A("v_lshrrev_b32 v1, 4, v0")
A("v_and_b32 v2, 15, v0")
A("s_cbranch_scc1 L_W")
def ids():
    A("s_and_b32 s4, s2, 7\ns_bfe_u32 s6, s2, 0x10006\ns_bfe_u32 s7, s2, 0x30003")
def ids2():
    A("s_lshr_b32 s3, s3, 6\ns_bfe_u32 s5, s2, 0x40003\ns_lshl1_add_u32 s58, s4, s6")
    if STAMPS:
        for i in range(2, 16): A(f"s_mov_b32 s{64+2*i}, 0")
    srd(RW, WS_BYTES)

vE, vO, vQO = 120, 121, 122
vKA = 108
vQ = 14
vKF = 16
vVF = 48
vQF = 80
vS = 96
vP = 104
vOA = 108
vST = 114
vOAD, vSAD = 116, 117
kload(RB, 16); kload(RE, 72)
if OPT["wqpf"]: kload(RF, 24)
ids()
A(f"v_lshlrev_b32 v{T3}, 1, v1\nv_xor_b32 v{T3}, v2, v{T3}\nv_lshlrev_b32 v{T3}, 4, v{T3}")
A(f"v_lshl_or_b32 v{vE}, v1, 8, v{T3}\nv_xor_b32 v{vO}, 0x80, v{vE}")
A(f"v_and_b32 v{T1}, 0x70, v{T3}\nv_lshrrev_b32 v{T0}, 3, v0")
A("s_lshl_b32 s43, s3, 7\ns_mov_b32 s10, 33554432")
SX("s56", 6144*256, ("s6", 24), ("s4", 21), ("s7", 16), ("s43", 0))
A("s_add_u32 s57, s56, 4096")
srd(RB, 33554432)
if OPT["wqpf"]:
    srd(RF, 4194304)
    A(f"v_lshl_or_b32 v{wQ}, v{T0}, 13, v{T1}")
    SX("s44", 0, ("s6", 21), ("s3", 12 if OPT["wqpf"] == 1 else 11), ("s4", 10), ("s7", 7))
ids2()
if STAMPS: A("s_mov_b32 s66, 0")
def kv_dma(u):
    r = RA if u < 8 else RB
    A(f"buffer_load_dwordx4 v{vE if u%2==0 else vO}, {r}, {'s56' if u%8 < 4 else 's57'} offen offset:{(u%4)*1024} {NT} lds")
A("s_waitcnt lgkmcnt(0)")
if "noKV" in OPT["abl"]: A("s_branch L_exit")
A(f"s_load_dword {sTAG}, s[16:17], 0")
if OPT["wqpf"] == 1:
    sk = L("npq")
    A(f"s_cmp_ge_u32 s4, 4\ns_cbranch_scc1 {sk}")
    for u in range(4):
        if u: A(f"s_add_u32 s44, s44, {8*8192}")
        A(f"buffer_load_dwordx4 v[16:19], v{wQ}, {RF}, s44 offen {OPT['wqpfl']}")
    if OPT["ehold"]: A("s_waitcnt vmcnt(0)")
    else: A("s_barrier")
    A.label(sk)
if OPT["wqpf"] == 2:
    for u in range(2):
        if u: A(f"s_add_u32 s44, s44, {8*8192}")
        A(f"buffer_load_dwordx4 v[16:19], v{wQ}, {RF}, s44 offen {OPT['wqpfl']}")
    if OPT["ehold"]: A("s_waitcnt vmcnt(0)")
    else: A("s_barrier")
sk = L("nmu")
A(f"s_cmp_ge_u32 s4, 4\ns_cbranch_scc1 {sk}")
A(f"v_mul_u32_u24 v{wM}, 6144, v{T0}\nv_add_u32 v{wM}, v{wM}, v{T1}")
srd(RC, 3145728); srd(RE, 2048)
SX("s51", 0, ("s7", 6), ("s3", 3))
A("s_mul_i32 s51, s51, 6144\ns_lshl_b32 s42, s3, 10\ns_lshl_b32 s46, s7, 7")
SX("s40", 2048, ("s58", 8)); A("s_add_u32 s51, s51, s40")
for j, o in enumerate((0, 128, 2048, 2048+128)):
    A(f"s_add_u32 m0, s42, {VREG + j*8192 - o}")
    A(f"buffer_load_dwordx4 v{wM}, {RC}, s51 offen offset:{o} {NT} lds")
VX(T2, T3, 0, (5, 1, 10), (0, 5, 2))
A(f"buffer_load_dword v{wC}, v{T2}, {RE}, s46 offen {SNT}")
A.label(sk)
if OPT["pf"] == 1: code_prefetch(T2, vPF)
A("s_mov_b32 m0, s43")
for u in range(8):
    if u == 4: A("s_add_u32 m0, m0, 4096")
    kv_dma(u)
    if u == 0 and OPT["slow"] == 1: A("s_waitcnt vmcnt(0)")
A("s_waitcnt lgkmcnt(0)")
A(f"s_add_u32 {sTAG}, {sTAG}, {TAGC:#x}")
GT = OPT["gtrg"]
if GT:
    SX("s60", TRG, ("s4", 7))
    SX("s40", 0, ("s5", 3), ("s3", 0))
    A(f"s_cmp_eq_u32 s40, {120 + OPT['gw']}\ns_cselect_b32 s40, 0, 0x7ffffff0")
    A(f"v_mov_b32 v126, {sTAG}\nv_mov_b32 v127, s40")
sk = L("nmb")
A(f"s_cmp_ge_u32 s4, 4\ns_cbranch_scc1 {sk}")
tr_setup()
VX(39, 32, 0, (5, 1, 12), (4, 1, 6), (2, 2, 4))
SX("s53", MGT, ("s58", 13), ("s3", 2, 0, 16), ("s3", 0, 2, 10), ("s46", 0))
SX("s40", 0, ("s58", 2, 0, 3), ("s3", 2, 0, 4), ("s7", 0))
A("s_cmp_eq_u32 s40, 16\ns_cselect_b32 s54, 1.0, 0")
SX("s41", VREG, ("s3", 2, 0, 14))
unit_pre("s54", "s54", "s41")
silu_operand(8)
A(f"v_mov_b32 v{wD+9}, {sTAG}\nv_mov_b32 v{wD+11}, {sTAG}")
A("s_waitcnt lgkmcnt(0)\ns_barrier")
unit_go()
A("s_barrier")
A("v_cmp_gt_u32 vcc, 32, v0")
A(f"v_cndmask_b32 v32, v{wD+4}, v{wD}, vcc")
pack4(32, wD+8, wD+10, 33)
setexec(0x11111111, 0x11111111)
A(f"buffer_store_dwordx4 v[{wD+8}:{wD+11}], v39, {RW}, s53 offen sc1")
fullexec()
STAMP(9)
A.label(sk)
A(f"s_add_u32 m0, m0, {VREG-4096}")
for u in range(8, 16):
    if u == 12: A("s_add_u32 m0, m0, 4096")
    if GT and u == GT: A(f"buffer_store_dword v126, v127, {RW}, s60 offen sc1")
    kv_dma(u)
STAMP(2)
if OPT["abl"]:
    A("s_waitcnt vmcnt(0)")
    STAMP(4)
    A("s_branch L_exit")
kload(RC, 48); kload(RD, 56); kload(RE, 64)
FF = OPT["ffn_first"]
if FF: FG = VREG; FD = VREG + 32768
wG, wDO, fMF = 124, 125, 123
A(f"v_mul_u32_u24 v{wG}, 3584, v{T0}\nv_add_u32 v{wG}, v{wG}, v{T1}\nv_lshl_or_b32 v{wDO}, v{T0}, 10, v{T1}")
A("s_cmp_lt_u32 s4, 7")
A("s_cselect_b32 s22, 1835008, 0\ns_cselect_b32 s26, 1835008, 0\ns_cselect_b32 s30, 1835008, 0")
A("s_mov_b32 s23, 0x00020000\ns_mov_b32 s27, 0x00020000\ns_mov_b32 s31, 0x00020000")
SX("s63", 0, ("s4", 4), ("s5", 0))
SX("s49", 0, ("s63", 0, 2, 7), ("s3", 4))
A("s_mul_i32 s49, s49, 3584")
SX("s50", 0, ("s63", 2, 0, 7))
A(f"s_add_u32 s49, s49, s50\ns_add_u32 s50, s49, {8*3584-1024}")
SX("s51", 0, ("s63", 14), ("s3", 7))
A(f"s_add_u32 s52, s51, {8*1024-1024}")
A("s_lshl_b32 s42, s3, 11")
def gu_dma():
    A(f"s_add_u32 m0, s42, {FG}")
    A(f"buffer_load_dwordx4 v{wG}, {RC}, s49 offen {NT} lds")
    A(f"buffer_load_dwordx4 v{wG}, {RC}, s50 offen offset:1024 {NT} lds")
    A(f"s_add_u32 m0, s42, {FG+16384}")
    A(f"buffer_load_dwordx4 v{wG}, {RD}, s49 offen {NT} lds")
    A(f"buffer_load_dwordx4 v{wG}, {RD}, s50 offen offset:1024 {NT} lds")
def dn_dma():
    A(f"s_add_u32 m0, s42, {FD}")
    A(f"buffer_load_dwordx4 v{wDO}, {RE}, s51 offen {NT} lds")
    A(f"buffer_load_dwordx4 v{wDO}, {RE}, s52 offen offset:1024 {NT} lds")
def ffn_dma():
    gu_dma(); dn_dma()
GB1 = OPT["gu_b1"] and OPT["ser"] and not FF
SX("s44", QG, ("s58", 12), ("s3", 10))
vQ = 100
A(f"v_lshlrev_b32 v{vQO}, 4, v0")
VX(fMF, T2, 0, (0, 3, 7), (3, 1, 6), (4, 2, 4))
SX("s59", MGT + 2*32768, ("s63", 0, 2, 13), ("s3", 0, 2, 11))
SX("s40", 0, ("s3", 2, 0, 15)); A("s_sub_u32 s59, s59, s40")
VX(T2, 0, 0, (0, 3, 1))
A(f"v_xor_b32 v{T2}, v1, v{T2}\nv_lshlrev_b32 v{T2}, 4, v{T2}\nv_lshl_or_b32 v{T2}, v2, 8, v{T2}")
A(f"v_add_u32 v{vKA}, s43, v{T2}")
for t in range(1, 4):
    A(f"v_xor_b32 v{vKA+t}, {t*64:#x}, v{vKA}")
vQW, vQR, vVR, vMX, vPW, vPR, vMW = 3, 4, 5, 6, 12, 13, 112
SX("s40", QL, ("s3", 5))
VX(vQW, T2, "s40", (1, 4, 7), (5, 1, 4), (0, 1, 3))
VX(vQR, T2, QL, (4, 2, 7), (0, 3, 4))
A(f"v_bfe_u32 v{T0}, v0, 2, 3\nv_xor_b32 v{T0}, s3, v{T0}")
VX(vVR, T2, VREG, (2, 4, 8), (0, 2, 3))
A(f"v_lshl_or_b32 v{vVR}, v{T0}, 5, v{vVR}")
VX(vMX, T2, MISC, (0, 2, 5))
A(f"s_lshl_b32 s40, s3, 2\nv_add_u32 v{vMW}, s40, v{vMX}")
VX(vPR, T2, PL, (4, 2, 6), (0, 2, 4))
A(f"s_lshl_b32 s40, s3, 8\nv_add_u32 v{vPW}, s40, v{vPR}")
VX(vOAD, T2, 0, (0, 2, 12), (4, 2, 4))
SX("s53", OG, ("s4", 14), ("s3", 1, 0, 10), ("s5", 6), ("s3", 0, 1, 3))
VX(vSAD, T2, 0, (0, 2, 7))
SX("s54", SG, ("s4", 9), ("s5", 3))
A(f"s_mov_b32 s55, {f32(C1)}")
fWF = 128 if FF else 84
fDF = 144 if FF else 64
def ffn_frag_addr(wr, ta, tr):
    VX(tr, 32, 0, (2, 4, 7), (3, 2, 5), (0, 2, 3))
    SX("s40", 0, ("s3", 0, 2, 5)); A(f"v_xor_b32 v{wr}, s40, v{tr}")
    SX("s40", FG, ("s3", 2, 0, 14)); A(f"v_add_u32 v{wr}, s40, v{wr}")
    A(f"s_add_u32 s40, s42, {FD}\nv_add_u32 v{ta}, s40, v{tr}")
    for t in range(1, 4):
        A(f"v_xor_b32 v{ta+t}, {t*32:#x}, v{ta}")
def w_frags(wr):
    for k in range(4):
        for h in range(2):
            r = fWF + 4*k + 2*h
            A(f"ds_read_b64_tr_b16 v[{r}:{r+1}], v{wr} offset:{k*4096 + h*2048}")
def d_frags(ta):
    for tau in range(4):
        A(f"ds_read_b64_tr_b16 v[{fDF+2*tau}:{fDF+2*tau+1}], v{ta+tau}")
A(f"s_waitcnt vmcnt({9 if GT > 8 else 8})")
for T in range(2):
    for t in range(4):
        r = vKF + (T*4+t)*4
        A(f"ds_read_b128 v[{r}:{r+3}], v{vKA+t} offset:{T*4096}")
sk = L("nqp")
A(f"s_cmp_ge_u32 s3, 4\ns_cbranch_scc1 {sk}")
def q_load():
    A(f"buffer_load_dwordx4 v[{vQ}:{vQ+3}], v{vQO}, {RW}, s44 offen sc1")
def q_chk():
    A(f"v_xor_b32 v{T0}, {sTAG}, v{vQ+1}\nv_bitop3_b32 v{T0}, v{vQ+3}, {sTAG}, v{T0} bitop3:0xbe\nv_cmp_ne_u32 vcc, 0, v{T0}")
poll(q_load, q_chk, sleep=OPT['s2'])
STAMP(4)
A(f"v_mov_b32 v{vQ+1}, v{vQ+2}")
A(f"ds_write_b64 v{vQW}, v[{vQ}:{vQ+1}]")
A.label(sk)
A(f"s_waitcnt {'vmcnt(0) ' if OPT['ser'] else ''}lgkmcnt(0)\ns_barrier")
STAMP(5)
for t in range(4):
    A(f"ds_read_b128 v[{vQF+4*t}:{vQF+4*t+3}], v{vQR} offset:{t*512}")
if GB1: gu_dma()
A("s_waitcnt lgkmcnt(0)")
def v_tr(kb, T):
    r = vVF + kb*4 + T*2
    A(f"ds_read_b64_tr_b16 v[{r}:{r+1}], v{vVR} offset:{(32*kb+16*T)*256}")
EARLY_T = [0, 1] if OPT['ser'] else []
for kb in range(8):
    if kb < 4:
        for T in range(2):
            mfma(vS + 4*T, vKF + (T*4+kb)*4, vQF + 4*kb, None if kb == 0 else vS + 4*T)
    for T in EARLY_T: v_tr(kb, T)
for i in range(8):
    A(f"v_add_f32_dpp v{vS+i}, v{vS+i}, v{vS+i} row_ror:4 {DPPM}")
A(f"v_max3_f32 v{T0}, v{vS}, v{vS+1}, v{vS+2}\nv_max3_f32 v{T2}, v{vS+3}, v{vS+4}, v{vS+5}")
A(f"v_max3_f32 v{T0}, v{T0}, v{vS+6}, v{vS+7}\nv_max_f32 v{T3}, v{T0}, v{T2}\nv_max_f32 v{T0}, v{T0}, v{T2}")
A(f"v_permlane32_swap_b32 v{T0}, v{T3}")
A(f"v_max_f32 v{T2}, v{T0}, v{T3}\nv_max_f32 v{T0}, v{T0}, v{T3}")
A(f"v_permlane16_swap_b32 v{T0}, v{T2}")
A(f"v_max_f32 v{T0}, v{T0}, v{T2}")
A(f"ds_write_b32 v{vMW}, v{T0}")
STAMP(14)
A("s_waitcnt lgkmcnt(0)\ns_barrier")
A(f"ds_read_b128 v[{vQF}:{vQF+3}], v{vMX}\nds_read_b128 v[{vQF+4}:{vQF+7}], v{vMX} offset:16")
A("s_waitcnt lgkmcnt(0)")
A(f"v_max3_f32 v{T0}, v{vQF}, v{vQF+1}, v{vQF+2}\nv_max3_f32 v{T2}, v{vQF+3}, v{vQF+4}, v{vQF+5}")
A(f"v_max3_f32 v{T0}, v{T0}, v{vQF+6}, v{vQF+7}\nv_max_f32 v{T0}, v{T0}, v{T2}")
A(f"v_mul_f32 v{vST}, s55, v{T0}")
for i in range(8):
    A(f"v_fma_f32 v{vS+i}, v{vS+i}, s55, -v{vST}")
for i in range(8):
    A(f"v_exp_f32 v{vS+i}, v{vS+i}")
for i in range(4):
    A(f"v_cvt_pk_bf16_f32 v{vP+i}, v{vS+2*i}, v{vS+2*i+1}")
A(f"ds_write_b128 v{vPW}, v[{vP}:{vP+3}]")
rowsum([vS, vS+4])
A(f"v_add_f32 v{T0}, v{vS}, v{vS+4}\nv_add_f32 v{T3}, v{vS}, v{vS+4}")
A(f"v_permlane32_swap_b32 v{T0}, v{T3}")
A(f"v_add_f32 v{T2}, v{T0}, v{T3}\nv_add_f32 v{T0}, v{T0}, v{T3}")
A(f"v_permlane16_swap_b32 v{T0}, v{T2}")
A(f"v_add_f32 v{T0}, v{T0}, v{T2}")
A(f"ds_write_b32 v{vMW}, v{T0} offset:128")
A("s_waitcnt lgkmcnt(0)\ns_barrier")
STAMP(3)
if STAMPS: A("s_waitcnt lgkmcnt(0)")
LATE_T = [T for T in range(2) if T not in EARLY_T]
A(f"ds_read_b128 v[{vQF}:{vQF+3}], v{vMX} offset:128\nds_read_b128 v[{vQF+4}:{vQF+7}], v{vMX} offset:144")
for kb in range(8):
    r = vKF + kb*4
    A(f"ds_read_b128 v[{r}:{r+3}], v{vPR} offset:{kb*256}")
def st_pub(vm=None):
    sk = L("nst"); sk2 = L("nsu")
    A(f"s_cmp_lg_u32 s3, 0\ns_cbranch_scc1 {sk}")
    A("s_waitcnt lgkmcnt(8)")
    rowsum([vQF, vQF+4])
    A(f"v_add_f32 v{vST+1}, v{vQF}, v{vQF+4}")
    A("s_mov_b64 exec, 15")
    A(f"buffer_store_dwordx2 v[{vST}:{vST+1}], v{vSAD}, {RW}, s54 offen")
    fullexec()
    if vm is not None:
        A(f"s_waitcnt vmcnt({vm})\ns_branch {sk2}")
    A.label(sk)
    if vm is not None:
        A(f"s_waitcnt vmcnt({vm-1})")
        A.label(sk2)
if LATE_T:
    st_pub(1)
    A("s_waitcnt lgkmcnt(0)\ns_barrier")
    STAMP(6)
    if STAMPS: A("s_waitcnt lgkmcnt(0)")
    per = len(LATE_T)
    AHEAD = 8 if per == 1 else 6
    for kb in range(AHEAD):
        for T in LATE_T: v_tr(kb, T)
    for kb in range(8):
        A(f"s_waitcnt lgkmcnt({(min(8, AHEAD + kb) - kb - 1) * per})")
        mfma(vOA, vVF + kb*4, vKF + kb*4, None if kb == 0 else vOA)
        if AHEAD + kb < 8:
            for T in LATE_T: v_tr(AHEAD + kb, T)
else:
    st_pub()
    for kb in range(8):
        A(f"s_waitcnt lgkmcnt({7-kb})")
        mfma(vOA, vVF + kb*4, vKF + kb*4, None if kb == 0 else vOA)
setexec(0x000f000f, 0x000f000f)
A(f"v_cvt_pk_bf16_f32 v{vP}, v{vOA}, v{vOA+1}\nv_cvt_pk_bf16_f32 v{vP+1}, v{vOA+2}, v{vOA+3}")
A(f"buffer_store_dwordx2 v[{vP}:{vP+1}], v{vOAD}, {RW}, s53 offen")
fullexec()
STAMP(7)
A("s_cmp_lt_u32 s4, 7\ns_cbranch_scc1 L_ffn")
A("s_cmp_lg_u32 s3, 0\ns_cbranch_scc1 L_exit")
VX(T1, T2, 0, (3, 1, 14), (0, 3, 11))
A(f"s_mov_b32 s46, {X4 + 7*128:#x}")
poll(lambda: A(f"buffer_load_dword v16, v{T1}, {RW}, s46 offen sc1"), lambda: A(f"v_cmp_eq_u32 vcc, -1, v16"), sleep=8)
A("s_branch L_exit")
A.label("L_ffn")
def mf_loads():
    tagged_loads(16, fMF, "s59")
SX("s55", ST5, ("s4", 8))
SX("s53", G5, ("s63", 10))
A(f"s_add_u32 s54, s53, {US5-G5}")
if OPT["ltouch"]:
    sk = L("nlt")
    A(f"s_cmp_lg_u32 s3, 7\ns_cbranch_scc1 {sk}")
    A(f"buffer_load_dwordx4 v[28:31], v{vQO}, {RW}, s53 offen sc1")
    A(f"buffer_load_dwordx4 v[28:31], v{vQO}, {RW}, s54 offen sc1")
    A(f"buffer_load_dword v28, v{vSAD}, {RW}, s55 offen sc1")
    A.label(sk)
mf_loads()
if GB1: dn_dma()
elif not FF:
    if OPT["obar"]: A("s_barrier")
    ffn_dma()
fYW, fYR, fWR, fGA, fGR, fSTA, fY6A = 113, 114, 115, 116, 118, 119, 120
fG, fU, fS = 121, 122, 117
wOF, wTA = fMF, 108
if not FF: ffn_frag_addr(fWR, wTA, wTR)
A("s_lshr_b32 s56, s3, 2\ns_and_b32 s57, s3, 3")
VX(fYR, 32, YL0, (0, 6, 4))
A(f"s_lshl_b32 s40, s3, 10\nv_add_u32 v{fYW}, s40, v{fYR}")
VX(fGA, 32, 0, (0, 6, 2))
SX("s61", G5 - 64, ("s63", 2, 0, 12), ("s57", 10), ("s63", 0, 2, 8), ("s56", 7))
A(f"s_add_u32 s62, s61, {US5-G5}")
VX(fGR, 32, 0, (2, 1, 7), (3, 1, 6), (4, 2, 4), (0, 2, 2))
VX(fSTA, 32, 0, (0, 3, 5), (3, 1, 4))
VX(fY6A, 32, 0, (3, 1, 14), (5, 1, 12), (4, 1, 4))
SX("s47", Y4, ("s56", 14), ("s63", 0, 2, 12), ("s57", 10))
SX("s49", Y6, ("s3", 16), ("s63", 5))
A("s_add_u32 s50, s49, 8192\ns_add_u32 s51, s49, 32768\ns_add_u32 s52, s49, 40960")
A(f"s_mov_b32 s41, {f32(1.0/512)}\ns_mov_b32 s43, {f32(1e-5)}")
poll(mf_loads, lambda: tagged_chk([16], 33), first_issued=True, first_wait=0 if FF else (2 if GB1 else 6), sleep=4)
tagged_pack(16)
A(f"ds_write_b128 v{fYW}, v[16:19]")
A("s_waitcnt vmcnt(0) lgkmcnt(0)\ns_barrier")
STAMP(10)
def y_load():
    A(f"buffer_load_dwordx4 v[76:79], v{wOF}, {RW}, s47 offen sc1")
y_load()
YO = [16, 20, 24, 28, 32, 36, 100, 104]
if not FF: w_frags(fWR)
for u in range(8):
    A(f"ds_read_b128 v[{YO[u]}:{YO[u]+3}], v{fYR} offset:{u*1024}")
A("s_waitcnt lgkmcnt(0)")
for k in range(4):
    for pi in range(2):
        mfma(wD + 4*pi, YO[4*pi+k], fWF + 4*k, None if k == 0 else wD + 4*pi)
rowsum([wD, wD+4])
A(f"v_permlane16_swap_b32 v{wD}, v{wD+4}")
A(f"v_add_f32 v{wD+1}, v{wD}, v{wD+4}\nv_add_f32 v{wD}, v{wD}, v{wD+4}")
A(f"v_permlane16_swap_b32 v{wD}, v{wD+1}")
A(f"v_cvt_pk_bf16_f32 v126, v{wD}, v{wD+1}")
setexec(0xffff0000, 0x0000ffff)
A(f"buffer_store_dword v126, v{fGA}, {RW}, s62 offen {'' if OPT['uslocal'] else 'sc1'}")
fullexec()
STAMP(1)
def us_loads():
    for k in range(4):
        A(f"buffer_load_dword v{40+k}, v{fGR}, {RW}, s54 offen offset:{256*k} sc1")
if not FF: d_frags(wTA)
poll(y_load, lambda: chk_empty4(76, 33), first_issued=True, first_wait=1)
STAMP(11)
A(f"ds_write_b128 v{fYW}, v[76:79] offset:8192")
us_loads()
A("s_waitcnt lgkmcnt(0)\ns_barrier")
for u in range(8):
    A(f"ds_read_b128 v[{YO[u]}:{YO[u]+3}], v{fYR} offset:{8192+u*1024}")
for u in range(8):
    A(f"s_waitcnt lgkmcnt({7-u})")
    mfma(wD, YO[u], fWF + 4*(u & 3), None if u == 0 else wD)
A(f"v_add_f32 v{wD}, v{wD}, v{wD+1}\nv_add_f32 v{wD+2}, v{wD+2}, v{wD+3}")
A(f"v_add_f32 v{wD+1}, v{wD}, v{wD+2}\nv_add_f32 v{wD}, v{wD}, v{wD+2}")
A(f"v_permlane16_swap_b32 v{wD}, v{wD+1}")
A(f"v_add_f32 v{fG}, v{wD}, v{wD+1}")
def g_store(fl):
    setexec(0xffff0000, 0x0000ffff)
    A(f"buffer_store_dword v{fG}, v{fGA}, {RW}, s61 offen {fl}")
g_store("")
fullexec()
STAMP(12)
def g_loads():
    A(f"buffer_load_dwordx4 v[24:27], v{fSTA}, {RW}, s55 offen sc1")
    for k in range(4):
        A(f"buffer_load_dword v{20+k}, v{fGR}, {RW}, s53 offen offset:{256*k} sc1")
poll(us_loads, lambda: chk_empty4(40, 33), first_issued=True, first_wait=1)
g_loads()
for k in range(4):
    A(f"v_lshlrev_b32 v{44+k}, 16, v{40+k}\nv_and_b32 v{40+k}, 0xffff0000, v{40+k}")
rowsum([44, 40])
A(f"v_mov_b32 v{fU}, v44\nv_mov_b32 v{fS}, v40")
def g_chk():
    A("v_add_f32 v24, v24, v26\nv_add_f32 v25, v25, v27")
    A("v_add_f32 v20, v20, v21\nv_add_f32 v22, v22, v23")
    A(f"v_add_f32_dpp v24, v24, v24 quad_perm:[1,0,3,2] {DPPM}\nv_add_f32_dpp v25, v25, v25 quad_perm:[1,0,3,2] {DPPM}")
    A("v_add_f32 v20, v20, v22")
    A(f"v_add_f32_dpp v24, v24, v24 quad_perm:[2,3,0,1] {DPPM}\nv_add_f32_dpp v25, v25, v25 quad_perm:[2,3,0,1] {DPPM}")
    A("v_add_f32 v26, v24, v25")
    A("v_cmp_u_f32 vcc, v20, v26")
poll(g_loads, g_chk, first_issued=True)
STAMP(13)
A(f"v_add_f32_dpp v24, v24, v24 row_half_mirror {DPPM}\nv_add_f32_dpp v25, v25, v25 row_half_mirror {DPPM}")
A("v_mov_b32 v26, s43")
A("v_mul_f32 v24, s41, v24")
A("v_fmac_f32 v26, s41, v25")
A("v_fma_f32 v26, -v24, v24, v26")
A(f"v_fma_f32 v20, -v24, v{fU}, v20")
A("v_rsq_f32 v26, v26")
A(f"v_fma_f32 v20, v20, v26, v{fS}")
A("v_max_f32 v21, 0, v20")
A(f"v_mul_f32_dpp v22, v20, v21 row_shl:4 {DPPM}")
pack4(22, 24, 25, 23)
for tau in range(4):
    d = 32 + 4*tau
    A(f"v_mfma_f32_16x16x16_bf16 v[{d}:{d+3}], v[{fDF+2*tau}:{fDF+2*tau+1}], v[24:25], 0")
setexec(0x01010101, 0x01010101)
for tau in range(4):
    d = 32 + 4*tau
    A(f"buffer_store_dwordx4 v[{d}:{d+3}], v{fY6A}, {RW}, s{49+tau} offen sc1")
STAMP(8)
A("s_waitcnt vmcnt(0)")
g_store("sc1")
if OPT["uslocal"]: A(f"buffer_store_dword v126, v{fGA}, {RW}, s62 offen sc1")
A("s_branch L_exit")

A(".p2align 6")
A.label("L_W")
kload(RE, 72); kload(RD, 0)
ids()
swz_chunk(T1)
A(f"v_lshrrev_b32 v{T0}, 3, v0")
A("s_lshl_b32 s46, s7, 7")
def w_common():
    kload(RB, 32); kload(RF, 88)
    A(f"s_load_dword {sTAG}, s[16:17], 0")
    ids2()
    A(f"v_lshl_or_b32 v{wO}, v{T0}, 10, v{T1}")
    srd(RB, 4194304); srd(RD, 2048)
def wq_setup(sh):
    A(f"v_lshl_or_b32 v{wQ}, v{T0}, 13, v{T1}")
    A("s_mov_b32 s10, 4194304")
    A(f"s_lshl_b32 s48, s3, {12-sh}")
    SX("s43", 0, ("s6", 8), ("s48", 7, 0, 0))
    SX("s44", 0, ("s43", 13), ("s4", 10), ("s46", 0))
def wq_dma():
    A(f"s_add_u32 m0, s48, {WQL}")
    for u in range(4):
        if u: A(f"s_add_u32 s44, s44, {8*8192-1024}")
        A(f"buffer_load_dwordx4 v{wQ}, {RA}, s44 offen offset:{u*1024} {NT} lds")
def c_setup():
    VX(T2, T3, 0, (5, 1, 10), (0, 5, 2))
    srd(RE, 2048)
A("s_cmp_ge_u32 s4, 4\ns_cbranch_scc1 L_nA")
A("s_lshl1_add_u32 s49, s4, s6\ns_lshl_b32 s49, s49, 7")
A("s_cmp_lt_u32 s3, 256\ns_cbranch_scc1 L_A1")
A(f"v_mul_u32_u24 v{wM}, 6144, v{T0}\nv_add_u32 v{wM}, v{wM}, v{T1}")
srd(RC, 3145728)
A("s_sub_u32 s40, s3, 256")
SX("s61", 0, ("s7", 6), ("s40", 2, 0, 0))
A(f"s_mul_i32 s61, s61, 6144\ns_add_u32 s61, s61, s49\ns_add_u32 s62, s61, {8*6144-1024}")
A(f"s_lshl_b32 s40, s40, 5\ns_add_u32 m0, s40, {PA}")
A("s_waitcnt lgkmcnt(0)")
STAMP(1)
A(f"buffer_load_dwordx4 v{wM}, {RC}, s61 offen {NT} lds")
A(f"buffer_load_dwordx4 v{wM}, {RC}, s62 offen offset:1024 {NT} lds")
A(f"s_add_u32 m0, s40, {PA+8192-1024}")
A(f"buffer_load_dwordx4 v{wM}, {RC}, s61 offen offset:1024 {NT} lds")
A(f"buffer_load_dwordx4 v{wM}, {RC}, s62 offen offset:2048 {NT} lds")
A("v_mov_b32 v32, -1\nv_mov_b32 v33, -1\nv_mov_b32 v34, -1\nv_mov_b32 v35, -1")
SX("s54", CLR, ("s49", 9), ("s7", 13), ("s40", 0))
A("v_lshlrev_b32 v38, 4, v0")
srd(RW, WS_BYTES)
A(f"buffer_store_dwordx4 v[32:35], v38, {RW}, s54 offen sc1")
A(f"buffer_store_dwordx4 v[32:35], v38, {RW}, s54 offen offset:1024 sc1")
w_common()
if OPT["pf"] == 2: code_prefetch(T2, vPF)
wq_setup(0)
AH = OPT["ahold"]
if AH < 8:
    A("s_barrier")
    wq_dma()
tr_setup()
if OPT["abl"]:
    A(f"s_waitcnt vmcnt({3 + (4 if AH < 8 else 0)})"); STAMP(8)
A(f"s_waitcnt vmcnt({4 if AH < 8 else 0}) lgkmcnt(0)")
if OPT["abl"]: STAMP(9)
A(f"s_add_u32 {sTAG}, {sTAG}, {TAGC:#x}")
A("s_barrier")
if AH == 8:
    A("s_barrier")
    wq_dma()
A("s_branch L_B")
A.label("L_A1")
c_setup()
VX(36, T3, 0, (4, 1, 10), (5, 1, 8), (0, 4, 4))
srd(RD, 2048)
A("s_waitcnt lgkmcnt(0)")
STAMP(1)
A(f"buffer_load_dword v{wC}, v{T2}, {RE}, s46 offen {SNT}")
A(f"buffer_load_dwordx4 v[{wX}:{wX+3}], v36, {RD}, 0 offen {SNT}")
A(f"buffer_load_dwordx4 v[{wX+4}:{wX+7}], v36, {RD}, 0 offen offset:512 {SNT}")
VX(37, T3, 0, (4, 1, 10), (0, 4, 1))
A(f"s_lshr_b32 s50, s3, 1\ns_add_u32 s50, s50, s49\nv_mov_b32 v{wXS}, 0")
A(f"buffer_load_short_d16_hi v{wXS}, v37, {RD}, s50 offen {SNT}")
if AH < 8: A("s_barrier")
w_common()
wq_setup(0)
tr_setup()
VX(39, 32, 0, (4, 1, 6), (2, 2, 4))
SX("s53", H1G, ("s58", 12), ("s3", 10), ("s46", 0))
A("s_cmp_eq_u32 s7, 0\ns_cselect_b32 s54, 1.0, 0")
unit_pre("0", "s54", PA)
silu_operand(3)
if OPT["abl"]: STAMP(6)
A(f"s_waitcnt vmcnt(0)")
A("v_mov_b32 v36, 0\nv_mov_b32 v37, 0\nv_mov_b32 v38, 0x3f803f80")
for i in range(8):
    A(f"v_dot2c_f32_bf16 v36, v{wX+i}, v38\nv_dot2c_f32_bf16 v37, v{wX+i}, v{wX+i}")
for m in ("quad_perm:[1,0,3,2]", "quad_perm:[2,3,0,1]", "row_half_mirror", "row_mirror"):
    A(f"v_add_f32_dpp v36, v36, v36 {m} {DPPM}\nv_add_f32_dpp v37, v37, v37 {m} {DPPM}")
A("v_mov_b32 v38, v36\nv_mov_b32 v35, v37")
A("v_permlane32_swap_b32 v36, v38\nv_permlane32_swap_b32 v37, v35")
A("v_add_f32 v36, v36, v38\nv_add_f32 v37, v37, v35")
A(f"v_mul_f32 v36, {f32(1.0/512)}, v36\nv_mov_b32 v38, {f32(1e-5)}\nv_fmac_f32 v38, {f32(1.0/512)}, v37")
A("v_fma_f32 v38, -v36, v36, v38\nv_rsq_f32 v38, v38")
A(f"v_sub_f32 v{wXS}, v{wXS}, v36\nv_mul_f32 v{wXS}, v{wXS}, v38")
A(f"s_add_u32 {sTAG}, {sTAG}, {TAGC:#x}")
A(f"v_mov_b32 v{wD+9}, {sTAG}\nv_mov_b32 v{wD+11}, {sTAG}")
if OPT["abl"]: STAMP(7)
A("s_waitcnt lgkmcnt(0)\ns_barrier")
if OPT["abl"]: STAMP(10)
unit_go()
A(f"v_fma_f32 v32, v{wXS}, v{wD+4}, v{wD}")
pack4(32, wD+8, wD+10, 33)
setexec(0x11111111, 0)
A(f"buffer_store_dwordx4 v[{wD+8}:{wD+11}], v39, {RW}, s53 offen sc1")
fullexec()
STAMP(14)
if AH == 8: A("s_barrier")
wq_dma()
A("s_branch L_B")
A.label("L_nA")
wq_setup(6)
A("s_waitcnt lgkmcnt(0)")
STAMP(1)
if OPT["wqpf"] == 2:
    sk = L("nh0")
    A(f"s_cmp_lt_u32 s3, 256\ns_cbranch_scc1 {sk}")
wq_dma()
if OPT["wqpf"] == 2: A.label(sk)
w_common()
if OPT["pf"] == 2: code_prefetch(T2, vPF)
tr_setup()
if OPT["wqpf"] == 2:
    sk = L("nh1")
    A(f"s_waitcnt vmcnt(1)\ns_barrier\ns_cmp_ge_u32 s3, 4\ns_cbranch_scc1 {sk}")
    wq_dma()
    A.label(sk)
A("s_waitcnt lgkmcnt(0)")
A(f"s_add_u32 {sTAG}, {sTAG}, {TAGC:#x}")
A.label("L_B")
srd(RF, 2048)
SX("s47", 0, ("s4", 19), ("s43", 10), ("s46", 0))
wRW, wRR, wOF, wTA = 14, 15, 72, 108
SX("s40", RED, ("s3", 9)); VX(wRW, 32, "s40", (0, 6, 2))
SX("s40", RED, ("s3", 8)); VX(wRR, 32, "s40", (0, 6, 2))
VX(wOF, 32, 0, (0, 3, 7), (3, 1, 6), (4, 2, 4))
SX("s53", H1G, ("s43", 6))
VX(T3, 32, 0, (0, 2, 12))
A("s_xor_b32 s57, s6, 1")
SX("s57", H1G + 4, ("s57", 14), ("s3", 7))
wQA = 73; wQD = 76
VX(wQA, 32, 0, (5, 1, 12), (0, 5, 2))
SX("s56", QG, ("s4", 13), ("s5", 8), ("s3", 7))
A(f"v_add_u32 v{wTA}, s48, v{wTR}")
for t in range(1, 4):
    A(f"v_xor_b32 v{wTA+t}, {t*32:#x}, v{wTA}")
A(f"v_mov_b32 v{wQD+1}, {sTAG}\nv_mov_b32 v{wQD+3}, {sTAG}")
wGA, wCB, wXA, wXAD = 74, 75, 80, 81
tE, tOUT, tBP, tOF, tL16 = 84, 114, 115, 72, 116
SX("s59", Y6, ("s5", 15), ("s4", 12))
A("s_cmp_eq_u32 s3, 7\ns_cselect_b32 s40, 0, -1")
A("v_mov_b32 v118, s40\nv_mov_b32 v119, s40\nv_lshlrev_b32 v117, 3, v0")
SX("s41", 0, ("s3", 9), ("s59", 0))
VX(T1, 32, 0, (0, 4, 6), (4, 2, 4))
SX("s51", OG, ("s4", 14), ("s43", 5))
SX("s54", SG, ("s4", 9), ("s43", 7, 0, 7))
A(f"v_lshlrev_b32 v{T0}, 2, v1\nv_xor_b32 v{T0}, v0, v{T0}\nv_and_b32 v{T0}, 7, v{T0}\nv_lshlrev_b32 v{T0}, 3, v{T0}")
A(f"v_lshrrev_b32 v32, 5, v0\nv_lshl_or_b32 v{T0}, v32, 6, v{T0}")
VX(wXAD, 32, 0, (5, 1, 6), (2, 2, 4), (4, 1, 3))
SX("s60", X4, ("s7", 11), ("s3", 10), ("s6", 14), ("s4", 7))
A(f"s_add_u32 s52, s60, {Y4-X4}")
A("v_and_b32 v32, 1, v0\nv_lshlrev_b32 v32, 4, v32\nv_mov_b32 v33, 0x3f80\nv_lshlrev_b32 v32, v32, v33")
A("v_lshrrev_b32 v33, 2, v2\nv_sub_u32 v33, v1, v33\nv_bfe_u32 v34, v0, 1, 1\nv_lshl_or_b32 v33, v33, 1, v34")
for r in range(2):
    A(f"v_cmp_eq_u32 vcc, {r}, v33")
    A(f"v_cndmask_b32 v{tE+r}, 0, v32, vcc")
    A(f"v_mov_b32 v{tE+6+r}, v{tE+r}")
for r in (2, 3, 4, 5):
    A(f"v_mov_b32 v{tE+r}, 0")
VX(38, 33, 0, (0, 1, 3), (5, 1, 1), (4, 1, 2))
SX("s40", 0, ("s4", 0, 2, 4)); A(f"v_add_u32 v{tOUT}, s40, v38")
SX("s40", 0, ("s4", 2, 0, 7)); A(f"v_lshl_add_u32 v{tBP}, v{tOUT}, 1, s40")
SX("s62", 0, ("s4", 2, 0, 10), ("s5", 6))
A(f"v_lshlrev_b32 v{tL16}, 4, v0")
SX("s49", X4, ("s5", 10))
A("s_add_u32 s50, s49, 16384")
SX("s55", ST5, ("s4", 8), ("s7", 5), ("s6", 3))
VX(113, 33, 0, (5, 1, 4), (4, 1, 2))
SX("s61", MGT, ("s7", 12), ("s3", 11))
SX("s40", MGT + 3*32768, ("s5", 11))
A("s_cmp_eq_u32 s3, 2\ns_cselect_b32 s61, s40, s61\ns_cselect_b32 s40, 0, 0x10000\ns_add_u32 s63, s61, s40")
VX(120, 33, 0, (5, 1, 10), (0, 5, 1))
SX("s42", 0, ("s7", 7), ("s3", 6))
A(f"v_mov_b32 v{wXA}, 0")
FPF = OPT["fpf"]
if FPF:
    kload(RC, 48); kload(RE, 56)
    A("s_cmp_lt_u32 s4, 7\ns_cselect_b32 s22, 1835008, 0\ns_cselect_b32 s30, 1835008, 0\ns_mov_b32 s23, 0x00020000\ns_mov_b32 s31, 0x00020000")
    A("v_lshrrev_b32 v32, 3, v0\nv_and_b32 v33, 7, v0\nv_lshlrev_b32 v33, 4, v33\nv_mul_u32_u24 v121, 3584, v32\nv_add_u32 v121, v121, v33")
    SX("s96", 0, ("s5", 0, 2, 7), ("s3", 4))
    A("s_mul_i32 s96, s96, 3584")
    SX("s97", 0, ("s4", 9), ("s5", 2, 0, 7))
    A(f"s_add_u32 s96, s96, s97\ns_add_u32 s97, s96, {8*3584}")
    SX("s98", 0, ("s4", 18), ("s5", 14), ("s3", 11))
def blk_frags(off):
    for t in range(4):
        for h in range(2):
            r = wWF + 4*t + 2*h
            A(f"ds_read_b64_tr_b16 v[{r}:{r+1}], v{wTA+t} offset:{off + h*2048}")
def h1_loads():
    tagged_loads(16, wOF, "s53")
    A(f"buffer_load_dword v33, v{T3}, {RW}, s57 offen sc1")
A(f"s_waitcnt vmcnt({OPT['h1at']})")
h1_loads()
if FPF == 2:
    kload(RA, 64)
    A("s_mov_b32 s10, s22")
A("s_waitcnt vmcnt(3)")
blk_frags(WQL)
STAMP(3)
if OPT["abl"] and "toq" not in OPT["abl"]: A("s_branch L_exit")
poll(h1_loads, lambda: tagged_chk([16], 33, 33), first_issued=True, sleep=OPT["s2"])
STAMP(4)
tagged_pack(16)
A("s_waitcnt lgkmcnt(0)")
def blk_mfma(op):
    for t in range(4):
        mfma(wD + 4*t, op, wWF + 4*t, None)
def blk_reduce():
    A(f"v_permlane16_swap_b32 v{wD}, v{wD+4}\nv_permlane16_swap_b32 v{wD+8}, v{wD+12}")
    A(f"v_add_f32 v{wD}, v{wD}, v{wD+4}\nv_add_f32 v{wD+8}, v{wD+8}, v{wD+12}")
    A(f"ds_write2st64_b32 v{wRW}, v{wD}, v{wD+8} offset0:0 offset1:1")
    A("s_waitcnt lgkmcnt(0)\ns_barrier")
def blk_final():
    for i in range(4):
        A(f"ds_read2st64_b32 v[{32+2*i}:{33+2*i}], v{wRR} offset0:{4*i} offset1:{4*i+2}")
    A("s_waitcnt lgkmcnt(0)")
    A("v_add_f32 v32, v32, v33\nv_add_f32 v34, v34, v35\nv_add_f32 v36, v36, v37\nv_add_f32 v38, v38, v39")
    A("v_add_f32 v32, v32, v34\nv_add_f32 v36, v36, v38\nv_add_f32 v32, v32, v36")
blk_mfma(16)
rowsum([wD, wD+4, wD+8, wD+12])
blk_reduce()
sk = L("nq")
A(f"s_cmp_ge_u32 s3, 2\ns_cbranch_scc1 {sk}")
blk_final()
pack4(32, wQD, wQD+2, 33)
setexec(0x11111111, 0x11111111)
A(f"buffer_store_dwordx4 v[{wQD}:{wQD+3}], v{wQA}, {RW}, s56 offen")
fullexec()
A.label(sk)
STAMP(5)
if OPT["abl"]: A("s_branch L_exit")
A("s_barrier")
def o_loads():
    A(f"buffer_load_dwordx4 v[104:107], v{T1}, {RW}, s51 offen sc1")
def mc_loads():
    tagged_loads(16, wOF, "s61"); tagged_loads(24, wOF, "s63")
sk = L("nc0")
A(f"s_cmp_ge_u32 s3, 3\ns_cbranch_scc1 {sk}")
mc_loads()
A(f"s_cmp_lg_u32 s58, 0\ns_cbranch_scc1 {sk}")
A(f"buffer_load_short_d16_hi v{wXA}, v120, {RD}, s42 offen")
A.label(sk)
A(f"buffer_store_dwordx2 v[118:119], v117, {RW}, s41 offen sc1")
if OPT["ltouch"]: o_loads()
if OPT["gtrg"]:
    A("s_cmp_lg_u32 s3, 3\ns_cbranch_scc1 L_trgd")
    if OPT["gmask"] == 7:
        VX(39, 32, 0, (0, 3, 7)); A(f"s_movk_i32 s40, {TRG}")
    else:
        VX(39, 32, 0, (0, 2, 7)); A(f"s_movk_i32 s40, {TRG + 512}")
    A(f"s_mov_b32 {sCNT}, 0")
    A.label("L_trg")
    A(f"buffer_load_dword v33, v39, {RW}, s40 offen sc1")
    A("s_waitcnt vmcnt(0)")
    A(f"v_cmp_ne_u32 vcc, {sTAG}, v33")
    A("s_cbranch_vccz L_trgd")
    A(f"s_sleep 2\ns_add_u32 {sCNT}, {sCNT}, 1\ns_cmp_lt_u32 {sCNT}, {OPT['trgmax']}\ns_cbranch_scc1 L_trg")
    A.label("L_trgd")
    A("s_barrier")
    STAMP(6)
def wo_dma():
    A(f"s_add_u32 m0, s48, {WOL}")
    for u in range(4):
        if u: A(f"s_add_u32 s47, s47, {8*1024-1024}")
        A(f"buffer_load_dwordx4 v{wO}, {RB}, s47 offen offset:{u*1024} {NT} lds")
WAC = OPT["wo_after_c"]
if not WAC: wo_dma()
NPF = 0
if FPF:
    if OPT["fpfbar"]: A("s_barrier")
    for r in (RC, RE):
        for so in ("s96", "s97"):
            A(f"buffer_load_dwordx4 v[124:127], v121, {r}, {so} offen {OPT['fpfl']}")
    NPF = 4
    if FPF == 2:
        for o in (0, 1024):
            A(f"buffer_load_dwordx4 v[124:127], v{tL16}, {RA}, s98 offen offset:{o} {OPT['fpfl']}")
        NPF = 6
sk = L("nc1")
A(f"s_cmp_ge_u32 s3, 3\ns_cbranch_scc1 {sk}")
poll(mc_loads, lambda: tagged_chk([16, 24], 33), first_issued=True, first_wait=0 if WAC else 4+NPF, sleep=4)
if WAC:
    A("s_barrier"); wo_dma()
tagged_pack(16); tagged_pack(24)
for i in range(2):
    for t in range(2):
        mfma(wD + 8*i + 4*t, 16 + 8*i, tE + 4*t, None)
rowsum([wD, wD+4, wD+8, wD+12])
A(f"v_permlane16_swap_b32 v{wD}, v{wD+4}\nv_permlane16_swap_b32 v{wD+8}, v{wD+12}")
A(f"v_add_f32 v{wGA}, v{wD}, v{wD+4}\nv_add_f32 v{wCB}, v{wD+8}, v{wD+12}")
STAMP(2)
if WAC:
    sk3 = L("nc2")
    A(f"s_branch {sk3}")
A.label(sk)
if WAC:
    A("s_barrier"); wo_dma()
    A.label(sk3)
A(f"s_waitcnt vmcnt({NPF})")
blk_frags(WOL)
STAMP(7)
wF = 100
sg_load = lambda: A(f"buffer_load_dwordx2 v[16:17], v{T0}, {RW}, s54 offen sc1")
await_any(sg_load, lambda: A("v_cmp_o_f32 vcc, v17, v17"), OPT["s1"])
poll(sg_load, lambda: A("v_cmp_u_f32 vcc, v17, v17"), first_issued=True, sleep=2*OPT["s2"])
o_loads()
A(f"v_max_f32_dpp v18, v16, v16 quad_perm:[1,0,3,2] {DPPM}")
A(f"v_max_f32_dpp v18, v18, v18 quad_perm:[2,3,0,1] {DPPM}")
A(f"v_max_f32_dpp v18, v18, v18 row_half_mirror {DPPM}")
A("v_sub_f32 v16, v16, v18\nv_exp_f32 v16, v16\nv_mul_f32 v17, v16, v17")
for m in ("quad_perm:[1,0,3,2]", "quad_perm:[2,3,0,1]", "row_half_mirror"):
    A(f"v_add_f32_dpp v17, v17, v17 {m} {DPPM}")
A(f"v_rcp_f32 v17, v17\nv_mul_f32 v{wF}, v16, v17")
STAMP(8)
poll(o_loads, lambda: chk_empty4(104, 33), first_issued=True, first_wait=0)
STAMP(9)
A("s_waitcnt lgkmcnt(0)")
blk_mfma(104)
for t in range(4):
    A(f"v_mul_f32_dpp v{wD+4*t}, v{wF}, v{wD+4*t} row_newbcast:0 {DPPM}")
for r in range(1, 4):
    for t in range(4):
        A(f"v_fmac_f32_dpp v{wD+4*t}, v{wF}, v{wD+4*t+r} row_newbcast:{r} {DPPM}")
blk_reduce()
A("s_cmp_gt_u32 s3, 2\ns_cbranch_scc1 L_exit")
A("s_cmp_eq_u32 s3, 2\ns_cbranch_scc1 L_fin")
blk_final()
A(f"v_fma_f32 v32, v32, v{wGA}, v{wXA}")
A(f"v_mul_f32 v36, v32, v{wCB}")
A(f"v_mov_b32_dpp v33, v32 quad_perm:[1,1,3,3] {DPPM}")
A(f"v_mov_b32_dpp v37, v36 quad_perm:[1,1,3,3] {DPPM}")
A("v_cvt_pk_bf16_f32 v34, v32, v33\nv_cvt_pk_bf16_f32 v38, v36, v37")
A(f"v_mov_b32_dpp v35, v34 quad_perm:[2,2,2,2] {DPPM}")
A(f"v_mov_b32_dpp v39, v38 quad_perm:[2,2,2,2] {DPPM}")
setexec(0x11111111, 0x11111111)
A(f"buffer_store_dwordx2 v[38:39], v{wXAD}, {RW}, s52 offen sc1")
A(f"buffer_store_dwordx2 v[34:35], v{wXAD}, {RW}, s60 offen sc1")
STAMP(10)
A("s_branch L_exit")
A.label("L_fin")
def x4_loads():
    A(f"buffer_load_dwordx4 v[16:19], v{tOF}, {RW}, s49 offen sc1")
    A(f"buffer_load_dwordx4 v[20:23], v{tOF}, {RW}, s50 offen sc1")
def x4_chk():
    A("v_max3_u32 v33, v16, v17, v18\nv_max3_u32 v34, v19, v20, v21\nv_max3_u32 v33, v33, v22, v23\nv_max_u32 v33, v33, v34\nv_cmp_eq_u32 vcc, -1, v33")
poll(x4_loads, x4_chk)
STAMP(11)
for hp in range(2):
    for t in range(2):
        mfma(wD + 4*t, 16 + 4*hp, tE + 4*t, None if hp == 0 else wD + 4*t)
rowsum([wD, wD+4])
A(f"v_permlane16_swap_b32 v{wD}, v{wD+4}")
A(f"v_add_f32 v42, v{wD}, v{wD+4}")
A("v_mov_b32 v43, v42\nv_mul_f32 v44, v42, v42")
A("v_permlane16_swap_b32 v43, v44")
A("v_add_f32 v43, v43, v44")
for m in ("quad_perm:[1,0,3,2]", "quad_perm:[2,3,0,1]", "row_half_mirror", "row_mirror"):
    A(f"v_add_f32_dpp v43, v43, v43 {m} {DPPM}")
setexec(0x00010001, 0x00010001)
A(f"buffer_store_dword v43, v113, {RW}, s55 offen")
fullexec()
STAMP(12)
A(f"ds_bpermute_b32 v42, v{tBP}, v42\nds_bpermute_b32 v{wGA}, v{tBP}, v{wGA}")
def y6_loads():
    for i in range(4):
        A(f"buffer_load_dwordx4 v[{16+4*i}:{19+4*i}], v{tL16}, {RW}, s59 offen offset:{1024*i} sc1")
def y6_chk():
    for r in range(4):
        A(f"v_add_f32 v{16+r}, v{16+r}, v{20+r}\nv_add_f32 v{24+r}, v{24+r}, v{28+r}")
    for r in range(4):
        A(f"v_add_f32 v{16+r}, v{16+r}, v{24+r}")
    A("v_permlane32_swap_b32 v16, v17\nv_permlane32_swap_b32 v18, v19")
    A("v_add_f32 v16, v16, v17\nv_add_f32 v18, v18, v19")
    A("v_permlane16_swap_b32 v16, v18")
    A("v_add_f32 v16, v16, v18")
    A("v_cmp_u_f32 vcc, v16, v16")
await_any(lambda: A(f"buffer_load_dword v16, v{tL16}, {RW}, s59 offen sc1"), lambda: A("v_cmp_o_f32 vcc, v16, v16"), 2)
poll(y6_loads, y6_chk)
STAMP(13)
for m in ("row_ror:8", "row_ror:4", "row_ror:2"):
    A(f"v_add_f32_dpp v16, v16, v16 {m} {DPPM}")
A("s_waitcnt lgkmcnt(0)")
A(f"v_fma_f32 v16, v16, v{wGA}, v42")
A("v_cvt_pk_bf16_f32 v16, v16, v16")
setexec(0x00030003, 0x00030003)
A(f"buffer_store_short v16, v{tOUT}, {RF}, s62 offen")
A("s_cmp_lg_u32 s2, 128\ns_cbranch_scc1 L_exit")
A(f"s_sub_u32 s40, {sTAG}, {TAGC-1:#x}")
A("v_mov_b32 v17, s40\nv_mov_b32 v18, 0")
A("s_mov_b64 exec, 1")
A(f"buffer_store_dword v17, v18, {RW}, 0 offen sc1")

A.label("L_exit")
if STAMPS == 1:
    STAMP(15)
    A("s_waitcnt lgkmcnt(0)")
    A("s_mov_b64 exec, 1")
    SX("s40", DBG, ("s2", 9), ("s3", 6))
    A("v_mov_b32 v0, 0")
    for q in range(4):
        for i in range(4):
            A(f"v_mov_b32 v{4+4*q+i}, s{64+2*(4*q+i)}")
        A(f"buffer_store_dwordx4 v[{4+4*q}:{7+4*q}], v0, {RW}, s40 offen offset:{16*q}")
if STAMPS == 2:
    STAMP(15)
    A("s_load_dwordx2 s[32:33], s[0:1], 96")
    A("s_mov_b32 s34, 256\ns_mov_b32 s35, 0x00020000")
    A("s_waitcnt lgkmcnt(0)")
    fullexec()
    A("v_mov_b32 v4, 0\nv_mbcnt_lo_u32_b32 v5, -1, 0\nv_lshlrev_b32 v5, 2, v5")
    A("s_cmp_ge_u32 s2, 128\ns_cbranch_scc1 L_dw")
    A("s_cmp_lg_u32 s3, 0\ns_cbranch_scc1 L_end")
    A("s_not_b32 s40, s64\nv_writelane_b32 v4, s40, 0")
    for i, st in enumerate([9, 2, 5, 7, 10, 11, 8]):
        A(f"v_writelane_b32 v4, s{64+2*st}, {i+1}")
    A("s_branch L_dd")
    A.label("L_dw")
    A("s_cmp_lg_u32 s3, 2\ns_cbranch_scc1 L_end")
    for i, st in enumerate([0, 3, 4, 5, 7, 9, 11, 15]):
        A(f"v_writelane_b32 v4, s{64+2*st}, {i+8}")
    A.label("L_dd")
    A("s_mov_b64 exec, 0xffff")
    A("buffer_atomic_umax v4, v5, s[32:35], 0 offen")
A.label("L_end")
A("s_endpgm")
A.label("L_codeend")
A.raw(f".fill (16384 - (L_codeend - {NAME}_kernel)) / 4, 4, 0xbf810000")
A.raw(f""".section .rodata,"a"
.p2align 6
.amdhsa_kernel {NAME}_kernel
  .amdhsa_next_free_vgpr 152
  .amdhsa_next_free_sgpr 100
  .amdhsa_accum_offset 152
  .amdhsa_group_segment_fixed_size 0
  .amdhsa_kernarg_size 112
  .amdhsa_user_sgpr_count 2
  .amdhsa_user_sgpr_kernarg_segment_ptr 1
  .amdhsa_system_sgpr_workgroup_id_x 1
  .amdhsa_float_denorm_mode_32 3
.end_amdhsa_kernel""")
sys.stdout.write(A.text())
sys.stderr.write(f"instrs={A.ninstr} nops={A.nops}\n")
```

```python
import sys, math, struct
sys.path.insert(0, "work")
from asmlib import Asm

NAME = "adaLN_cond__sliding_block_cached__glu_gated_reglu__decode"
OPT = dict(stamps=0, nt="nt", limit=20000, refresh=255, psleep=0, pf=1, pfnt="", smallnt="", slow=0, gtrg=0, gw=7, gmask=7, fpf=0, wo_after_c=0, fpfbar=1, fpfl="", uslocal=1, qn=4, trg=0, mb_at="kv", touch=0, ltouch=1, ahold=8, wqpf=0, wqpfl="", ehold=0, depth=0, ffn_first=0, ser=1, obar=1, gu_b1=0, wo_mb=1, h1at=0, depth_until=16, qpipe=1, s1=6, s2=1, sent=1, trgmax=24, da=0, db=15, dm=4, kvbar=1, abl="")
for a in sys.argv[1:]:
    k, v = a.split("=")
    OPT[k] = int(v) if v.lstrip("-").isdigit() else v
STAMPS = OPT["stamps"]; NT = OPT["nt"] if OPT["nt"] != "-" else ""
LIMIT = OPT["limit"]; REFRESH = OPT["refresh"]; SNT = OPT["smallnt"]

def f32(x): return "0x%08x" % struct.unpack("<I", struct.pack("<f", x))[0]

TRG = 0x1000; H1G = 0x8000; QG = 0x10000; MGT = 0x20000
CLR = 0x100000
OG = CLR; MG = CLR + 0x20000; X4 = CLR + 0x30000; Y4 = CLR + 0x38000
G5 = CLR + 0x40000; SG = CLR + 0x5C000; ST5 = CLR + 0x5D000; US5 = CLR + 0x60000
Y6 = 0x180000; DBG = 0x400000
WS_BYTES = 0x800000
TAGC = 0x9E3779B9
VREG = 65536; PA = 131072; XL = 147456; QL = XL + 1024; PL = QL + 2048; MISC = PL + 2048
FG = 0; FD = 32768; YL0 = 131072
WQL = 0; WOL = 32768; PB = 65536; RED = XL + 1024
LDS_BYTES = MISC + 256
C1 = 128 ** -0.5 * math.log2(math.e)

A = Asm()
hdr = open(f"cdna_kernels/{NAME}.s.ref").read().split("\n")
for ln in hdr:
    if ln.startswith("; @launch"):
        A.raw(f"; @launch grid=(256,1,1) block=(512,1,1) lds={LDS_BYTES}")
        break
    A.raw(ln)
A.raw('.amdgcn_target "amdgcn-amd-amdhsa--gfx950"')
A.raw(f".text\n.globl {NAME}_kernel\n.p2align 8\n.type {NAME}_kernel,@function\n{NAME}_kernel:")

RA, RB, RW, RC, RD, RE, RF = "s[8:11]", "s[12:15]", "s[16:19]", "s[20:23]", "s[24:27]", "s[28:31]", "s[32:35]"
sTAG, sCNT, sT = "s36", "s37", "s45"
def STAMP(n):
    if STAMPS:
        A(f"s_memrealtime s[{64+2*n}:{65+2*n}]")
DPPM = "row_mask:0xf bank_mask:0xf"
lbl = [0]
def L(p):
    lbl[0] += 1
    return f"L_{p}_{lbl[0]}"
def srd(r, nbytes):
    b = int(r[2:r.index(":")])
    A(f"s_mov_b32 s{b+2}, {nbytes}\ns_mov_b32 s{b+3}, 0x00020000")
def kload(r, off):
    b = int(r[2:r.index(":")])
    A(f"s_load_dwordx2 s[{b}:{b+1}], s[0:1], {off}")

def SX(dst, const, *terms):
    first = True
    for t in terms:
        src, rs, w, ls = (t[0], 0, 0, t[1]) if len(t) == 2 else t
        d = dst if first else sT
        cur = src
        if w:
            if rs == 0: A(f"s_and_b32 {d}, {cur}, {(1<<w)-1}")
            else: A(f"s_bfe_u32 {d}, {cur}, {(w<<16)|rs:#x}")
            cur = d
        elif rs:
            A(f"s_lshr_b32 {d}, {cur}, {rs}"); cur = d
        if first:
            if ls: A(f"s_lshl_b32 {d}, {cur}, {ls}")
            elif cur != d: A(f"s_mov_b32 {d}, {cur}")
        else:
            if 1 <= ls <= 4: A(f"s_lshl{ls}_add_u32 {dst}, {cur}, {dst}")
            else:
                if ls: A(f"s_lshl_b32 {sT}, {cur}, {ls}"); cur = sT
                A(f"s_add_u32 {dst}, {dst}, {cur}")
        first = False
    if const: A(f"s_add_u32 {dst}, {dst}, {const:#x}")
def VX(dst, tmp, add, *terms):
    first = True
    for rs, w, ls in terms:
        if rs == 4 and w == 2: cur = "v1"
        elif rs == 0 and w == 4: cur = "v2"
        elif rs == 0 and w == 6: cur = "v0"
        else:
            d = f"v{dst}" if first else f"v{tmp}"
            if rs + w == 6: A(f"v_lshrrev_b32 {d}, {rs}, v0")
            elif rs == 0: A(f"v_and_b32 {d}, {(1<<w)-1}, v0")
            else: A(f"v_bfe_u32 {d}, v0, {rs}, {w}")
            cur = d
        if first:
            if ls: A(f"v_lshlrev_b32 v{dst}, {ls}, {cur}")
            elif cur != f"v{dst}": A(f"v_mov_b32 v{dst}, {cur}")
        else:
            if ls: A(f"v_lshl_or_b32 v{dst}, {cur}, {ls}, v{dst}")
            else: A(f"v_or_b32 v{dst}, {cur}, v{dst}")
        first = False
    if add: A(f"v_add_u32 v{dst}, {add}, v{dst}")

def await_any(load, valid, sleep):
    if not OPT["sent"]: return
    top, done = L("aw"), L("awd")
    A(f"s_mov_b32 {sCNT}, 0")
    A.label(top)
    load()
    A("s_waitcnt vmcnt(0)")
    valid()
    A(f"s_cbranch_vccnz {done}")
    A(f"s_sleep {sleep}\ns_add_u32 {sCNT}, {sCNT}, 1\ns_cmp_lt_u32 {sCNT}, 64\ns_cbranch_scc1 {top}")
    A.label(done)
def poll(loads, check, first_issued=False, first_wait=0, sleep=0):
    top, done, chk = L("poll"), L("got"), L("chk")
    A(f"s_mov_b32 {sCNT}, 0")
    if first_issued:
        A(f"s_waitcnt vmcnt({first_wait})")
        A(f"s_branch {chk}")
    A.label(top)
    loads()
    A("s_waitcnt vmcnt(0)")
    if first_issued:
        A.label(chk)
    check()
    A(f"s_cbranch_vccz {done}")
    if sleep: A(f"s_sleep {sleep}")
    A(f"s_add_u32 {sCNT}, {sCNT}, 1")
    A(f"s_and_b32 {sT}, {sCNT}, {REFRESH}\ns_cbranch_scc1 {top}")
    A("buffer_wbl2 sc1")
    A(f"s_cmp_lt_u32 {sCNT}, {LIMIT}\ns_cbranch_scc1 {top}")
    A.label(done)
def chk_empty4(r, tmp):
    A(f"v_max3_u32 v{tmp}, v{r}, v{r+1}, v{r+2}\nv_max_u32 v{tmp}, v{tmp}, v{r+3}\nv_cmp_eq_u32 vcc, -1, v{tmp}")
def pack4(src, pk, pk2, tmp):
    A(f"v_mov_b32_dpp v{tmp}, v{src} quad_perm:[1,1,3,3] {DPPM}")
    A(f"v_cvt_pk_bf16_f32 v{pk}, v{src}, v{tmp}")
    A(f"v_mov_b32_dpp v{pk2}, v{pk} quad_perm:[2,2,2,2] {DPPM}")
def setexec(lo, hi):
    A(f"s_mov_b32 exec_lo, {lo:#x}\ns_mov_b32 exec_hi, {hi:#x}")
def fullexec():
    A("s_mov_b64 exec, -1")
def mfma(d, a, b, c):
    cc = "0" if c is None else f"v[{c}:{c+3}]"
    A(f"v_mfma_f32_16x16x32_bf16 v[{d}:{d+3}], v[{a}:{a+3}], v[{b}:{b+3}], {cc}")
def rowsum(ds):
    for d in ds: A(f"v_add_f32 v{d}, v{d}, v{d+1}\nv_add_f32 v{d+2}, v{d+2}, v{d+3}")
    for d in ds: A(f"v_add_f32 v{d}, v{d}, v{d+2}")
def code_prefetch(tmp, dst):
    sk = L("npf")
    A(f"s_cmp_lt_u32 s3, 6\ns_cbranch_scc1 {sk}")
    A("s_and_b32 s38, s38, 0xffffff00")
    A(f"v_lshlrev_b32 v{tmp}, 7, v0")
    A(f"s_and_b32 s40, s3, 1\ns_lshl_b32 s40, s40, 13")
    A(f"v_add_u32 v{tmp}, s40, v{tmp}")
    if not OPT["pf"]: A(f"v_mov_b32 v{tmp}, 0")
    A(f"global_load_dword v{dst}, v{tmp}, s[38:39] {OPT['pfnt']}")
    A.label(sk)

wM, wQ, wO, wTR, T0, T1, T2, T3, vPF = 3, 4, 5, 6, 7, 8, 9, 10, 11
wC = 12; wXS = 13; wX = 16; wXO = 24; wWF = 40; wD = 56
def swz_chunk(dst):
    A(f"v_lshlrev_b32 v{dst}, 1, v1\nv_xor_b32 v{dst}, v0, v{dst}\nv_and_b32 v{dst}, 7, v{dst}\nv_lshlrev_b32 v{dst}, 4, v{dst}")
def unit_dma(srdr, s0, s1, base):
    A(f"s_add_u32 m0, s42, {base}")
    A(f"buffer_load_dwordx4 v{wM}, {srdr}, {s0} offen {NT} lds")
    A(f"s_add_u32 m0, s42, {base+8192}")
    A(f"buffer_load_dwordx4 v{wM}, {srdr}, {s1} offen {NT} lds")
def tr_setup():
    VX(wTR, 32, 0, (2, 4, 7), (3, 2, 5), (0, 2, 3))
    SX("s40", XL, ("s3", 0, 2, 8))
    VX(82, 32, "s40", (0, 6, 2))
    VX(83, 32, "s40", (2, 1, 7), (4, 2, 3))
def silu_operand(cnt):
    A(f"s_waitcnt vmcnt({cnt})")
    A(f"v_lshlrev_b32 v32, 16, v{wC}\nv_and_b32 v33, 0xffff0000, v{wC}")
    A(f"v_mul_f32 v34, {f32(-math.log2(math.e))}, v32\nv_mul_f32 v35, {f32(-math.log2(math.e))}, v33")
    A("v_exp_f32 v34, v34\nv_exp_f32 v35, v35")
    A("v_add_f32 v34, 1.0, v34\nv_add_f32 v35, 1.0, v35")
    A("v_rcp_f32 v34, v34\nv_rcp_f32 v35, v35")
    A("v_mul_f32 v32, v32, v34\nv_mul_f32 v33, v33, v35")
    A("v_cvt_pk_bf16_f32 v32, v32, v33")
    A("ds_write_b32 v82, v32")
    A("s_waitcnt lgkmcnt(0)")
    A(f"ds_read2_b64 v[{wXO}:{wXO+3}], v83 offset0:0 offset1:4\nds_read2_b64 v[{wXO+4}:{wXO+7}], v83 offset0:8 offset1:12")
def unit_pre(s_c0, s_c1, base):
    SX("s40", 0, ("s3", 0, 2, 5)); A(f"v_xor_b32 v112, s40, v{wTR}\nv_add_u32 v112, {base}, v112")
    for i in range(4):
        A(f"v_mov_b32 v{wD+i}, {s_c0}\nv_mov_b32 v{wD+4+i}, {s_c1}")
def unit_go():
    if STAMPS: A("s_waitcnt lgkmcnt(0)")
    for k in range(2):
        for seg in range(2):
            for h in range(2):
                r = wWF + seg*8 + k*4 + h*2
                A(f"ds_read_b64_tr_b16 v[{r}:{r+1}], v112 offset:{seg*8192 + k*4096 + h*2048}")
    for k in range(2):
        for seg in range(2):
            A(f"s_waitcnt lgkmcnt({6 - 4*k - 2*seg})")
            mfma(wD + 4*seg, wXO + 4*k, wWF + seg*8 + k*4, wD + 4*seg)
def unit_mfma(s_c0, s_c1, base):
    unit_pre(s_c0, s_c1, base); unit_go()
def tagged_loads(r, va, so):
    A(f"buffer_load_dwordx4 v[{r}:{r+3}], v{va}, {RW}, {so} offen sc1")
    A(f"buffer_load_dwordx4 v[{r+4}:{r+7}], v{va}, {RW}, {so} offen offset:1024 sc1")
def tagged_chk(rs, tmp, extra=None):
    tags = [r + i for r in rs for i in (1, 3, 5, 7)] + ([extra] if extra else [])
    A(f"v_xor_b32 v{tmp}, {sTAG}, v{tags[-1]}")
    for t in tags[:-1]:
        A(f"v_bitop3_b32 v{tmp}, v{t}, {sTAG}, v{tmp} bitop3:0xbe")
    A(f"v_cmp_ne_u32 vcc, 0, v{tmp}")
def tagged_pack(r):
    A(f"v_mov_b32 v{r+1}, v{r+2}\nv_mov_b32 v{r+2}, v{r+4}\nv_mov_b32 v{r+3}, v{r+6}")
def sum8(dst, r):
    A(f"v_add_f32 v32, v{r}, v{r+1}\nv_add_f32 v33, v{r+2}, v{r+3}\nv_add_f32 v34, v{r+4}, v{r+5}\nv_add_f32 v35, v{r+6}, v{r+7}")
    A(f"v_add_f32 v32, v32, v33\nv_add_f32 v34, v34, v35\nv_add_f32 v{dst}, v32, v34")

STAMP(0)
A("s_cmp_ge_u32 s2, 256\ns_cbranch_scc1 L_end")
A("s_cmp_ge_u32 s2, 128\ns_cselect_b32 s40, 24, 8")
A("s_load_dwordx2 s[8:9], s[0:1], s40")
kload(RC, 80); kload(RW, 104)
A("v_readfirstlane_b32 s3, v0")
A("s_getpc_b64 s[38:39]")
A("v_and_b32 v0, 63, v0")
A("s_mov_b32 s11, 0x00020000")
A("v_lshrrev_b32 v1, 4, v0")
A("v_and_b32 v2, 15, v0")
A("s_cbranch_scc1 L_W")
def ids():
    A("s_and_b32 s4, s2, 7\ns_bfe_u32 s6, s2, 0x10006\ns_bfe_u32 s7, s2, 0x30003")
def ids2():
    A("s_lshr_b32 s3, s3, 6\ns_bfe_u32 s5, s2, 0x40003\ns_lshl1_add_u32 s58, s4, s6")
    if STAMPS:
        for i in range(2, 16): A(f"s_mov_b32 s{64+2*i}, 0")
    srd(RW, WS_BYTES)

vE, vO, vQO = 120, 121, 122
vKA = 108
vQ = 14
vKF = 16
vVF = 48
vQF = 80
vS = 96
vP = 104
vOA = 108
vST = 114
vOAD, vSAD = 116, 117
kload(RB, 16); kload(RE, 72)
if OPT["wqpf"]: kload(RF, 24)
ids()
A(f"v_lshlrev_b32 v{T3}, 1, v1\nv_xor_b32 v{T3}, v2, v{T3}\nv_lshlrev_b32 v{T3}, 4, v{T3}")
A(f"v_lshl_or_b32 v{vE}, v1, 8, v{T3}\nv_xor_b32 v{vO}, 0x80, v{vE}")
A(f"v_and_b32 v{T1}, 0x70, v{T3}\nv_lshrrev_b32 v{T0}, 3, v0")
A("s_lshl_b32 s43, s3, 7\ns_mov_b32 s10, 33554432")
SX("s56", 6144*256, ("s6", 24), ("s4", 21), ("s7", 16), ("s43", 0))
A("s_add_u32 s57, s56, 4096")
srd(RB, 33554432)
if OPT["wqpf"]:
    srd(RF, 4194304)
    A(f"v_lshl_or_b32 v{wQ}, v{T0}, 13, v{T1}")
    SX("s44", 0, ("s6", 21), ("s3", 12 if OPT["wqpf"] == 1 else 11), ("s4", 10), ("s7", 7))
ids2()
if STAMPS: A("s_mov_b32 s66, 0")
def kv_dma(u):
    r = RA if u < 8 else RB
    A(f"buffer_load_dwordx4 v{vE if u%2==0 else vO}, {r}, {'s56' if u%8 < 4 else 's57'} offen offset:{(u%4)*1024} {NT} lds")
A("s_waitcnt lgkmcnt(0)")
if "noKV" in OPT["abl"]: A("s_branch L_exit")
A(f"s_load_dword {sTAG}, s[16:17], 0")
if OPT["wqpf"] == 1:
    sk = L("npq")
    A(f"s_cmp_ge_u32 s4, 4\ns_cbranch_scc1 {sk}")
    for u in range(4):
        if u: A(f"s_add_u32 s44, s44, {8*8192}")
        A(f"buffer_load_dwordx4 v[16:19], v{wQ}, {RF}, s44 offen {OPT['wqpfl']}")
    if OPT["ehold"]: A("s_waitcnt vmcnt(0)")
    else: A("s_barrier")
    A.label(sk)
if OPT["wqpf"] == 2:
    for u in range(2):
        if u: A(f"s_add_u32 s44, s44, {8*8192}")
        A(f"buffer_load_dwordx4 v[16:19], v{wQ}, {RF}, s44 offen {OPT['wqpfl']}")
    if OPT["ehold"]: A("s_waitcnt vmcnt(0)")
    else: A("s_barrier")
sk = L("nmu")
A(f"s_cmp_ge_u32 s4, 4\ns_cbranch_scc1 {sk}")
A(f"v_mul_u32_u24 v{wM}, 6144, v{T0}\nv_add_u32 v{wM}, v{wM}, v{T1}")
srd(RC, 3145728); srd(RE, 2048)
SX("s51", 0, ("s7", 6), ("s3", 3))
A("s_mul_i32 s51, s51, 6144\ns_lshl_b32 s42, s3, 10\ns_lshl_b32 s46, s7, 7")
SX("s40", 2048, ("s58", 8)); A("s_add_u32 s51, s51, s40")
for j, o in enumerate((0, 128, 2048, 2048+128)):
    A(f"s_add_u32 m0, s42, {VREG + j*8192 - o}")
    A(f"buffer_load_dwordx4 v{wM}, {RC}, s51 offen offset:{o} {NT} lds")
VX(T2, T3, 0, (5, 1, 10), (0, 5, 2))
A(f"buffer_load_dword v{wC}, v{T2}, {RE}, s46 offen {SNT}")
A.label(sk)
if OPT["pf"] == 1: code_prefetch(T2, vPF)
A("s_mov_b32 m0, s43")
for u in range(8):
    if u == 4: A("s_add_u32 m0, m0, 4096")
    kv_dma(u)
    if u == 0 and OPT["slow"] == 1: A("s_waitcnt vmcnt(0)")
A("s_waitcnt lgkmcnt(0)")
A(f"s_add_u32 {sTAG}, {sTAG}, {TAGC:#x}")
GT = OPT["gtrg"]
if GT:
    SX("s60", TRG, ("s4", 7))
    SX("s40", 0, ("s5", 3), ("s3", 0))
    A(f"s_cmp_eq_u32 s40, {120 + OPT['gw']}\ns_cselect_b32 s40, 0, 0x7ffffff0")
    A(f"v_mov_b32 v126, {sTAG}\nv_mov_b32 v127, s40")
sk = L("nmb")
A(f"s_cmp_ge_u32 s4, 4\ns_cbranch_scc1 {sk}")
tr_setup()
VX(39, 32, 0, (5, 1, 12), (4, 1, 6), (2, 2, 4))
SX("s53", MGT, ("s58", 13), ("s3", 2, 0, 16), ("s3", 0, 2, 10), ("s46", 0))
SX("s40", 0, ("s58", 2, 0, 3), ("s3", 2, 0, 4), ("s7", 0))
A("s_cmp_eq_u32 s40, 16\ns_cselect_b32 s54, 1.0, 0")
SX("s41", VREG, ("s3", 2, 0, 14))
unit_pre("s54", "s54", "s41")
silu_operand(8)
A(f"v_mov_b32 v{wD+9}, {sTAG}\nv_mov_b32 v{wD+11}, {sTAG}")
A("s_waitcnt lgkmcnt(0)\ns_barrier")
unit_go()
A("s_barrier")
A("v_cmp_gt_u32 vcc, 32, v0")
A(f"v_cndmask_b32 v32, v{wD+4}, v{wD}, vcc")
pack4(32, wD+8, wD+10, 33)
setexec(0x11111111, 0x11111111)
A(f"buffer_store_dwordx4 v[{wD+8}:{wD+11}], v39, {RW}, s53 offen sc1")
fullexec()
STAMP(9)
A.label(sk)
A(f"s_add_u32 m0, m0, {VREG-4096}")
for u in range(8, 16):
    if u == 12: A("s_add_u32 m0, m0, 4096")
    if GT and u == GT: A(f"buffer_store_dword v126, v127, {RW}, s60 offen sc1")
    kv_dma(u)
STAMP(2)
if OPT["abl"]:
    A("s_waitcnt vmcnt(0)")
    STAMP(4)
    A("s_branch L_exit")
kload(RC, 48); kload(RD, 56); kload(RE, 64)
FF = OPT["ffn_first"]
if FF: FG = VREG; FD = VREG + 32768
wG, wDO, fMF = 124, 125, 123
A(f"v_mul_u32_u24 v{wG}, 3584, v{T0}\nv_add_u32 v{wG}, v{wG}, v{T1}\nv_lshl_or_b32 v{wDO}, v{T0}, 10, v{T1}")
A("s_cmp_lt_u32 s4, 7")
A("s_cselect_b32 s22, 1835008, 0\ns_cselect_b32 s26, 1835008, 0\ns_cselect_b32 s30, 1835008, 0")
A("s_mov_b32 s23, 0x00020000\ns_mov_b32 s27, 0x00020000\ns_mov_b32 s31, 0x00020000")
SX("s63", 0, ("s4", 4), ("s5", 0))
SX("s49", 0, ("s63", 0, 2, 7), ("s3", 4))
A("s_mul_i32 s49, s49, 3584")
SX("s50", 0, ("s63", 2, 0, 7))
A(f"s_add_u32 s49, s49, s50\ns_add_u32 s50, s49, {8*3584-1024}")
SX("s51", 0, ("s63", 14), ("s3", 7))
A(f"s_add_u32 s52, s51, {8*1024-1024}")
A("s_lshl_b32 s42, s3, 11")
def gu_dma():
    A(f"s_add_u32 m0, s42, {FG}")
    A(f"buffer_load_dwordx4 v{wG}, {RC}, s49 offen {NT} lds")
    A(f"buffer_load_dwordx4 v{wG}, {RC}, s50 offen offset:1024 {NT} lds")
    A(f"s_add_u32 m0, s42, {FG+16384}")
    A(f"buffer_load_dwordx4 v{wG}, {RD}, s49 offen {NT} lds")
    A(f"buffer_load_dwordx4 v{wG}, {RD}, s50 offen offset:1024 {NT} lds")
def dn_dma():
    A(f"s_add_u32 m0, s42, {FD}")
    A(f"buffer_load_dwordx4 v{wDO}, {RE}, s51 offen {NT} lds")
    A(f"buffer_load_dwordx4 v{wDO}, {RE}, s52 offen offset:1024 {NT} lds")
def ffn_dma():
    gu_dma(); dn_dma()
GB1 = OPT["gu_b1"] and OPT["ser"] and not FF
SX("s44", QG, ("s58", 12), ("s3", 10))
vQ = 100
A(f"v_lshlrev_b32 v{vQO}, 4, v0")
VX(fMF, T2, 0, (0, 3, 7), (3, 1, 6), (4, 2, 4))
SX("s59", MGT + 2*32768, ("s63", 0, 2, 13), ("s3", 0, 2, 11))
SX("s40", 0, ("s3", 2, 0, 15)); A("s_sub_u32 s59, s59, s40")
VX(T2, 0, 0, (0, 3, 1))
A(f"v_xor_b32 v{T2}, v1, v{T2}\nv_lshlrev_b32 v{T2}, 4, v{T2}\nv_lshl_or_b32 v{T2}, v2, 8, v{T2}")
A(f"v_add_u32 v{vKA}, s43, v{T2}")
for t in range(1, 4):
    A(f"v_xor_b32 v{vKA+t}, {t*64:#x}, v{vKA}")
vQW, vQR, vVR, vMX, vPW, vPR, vMW = 3, 4, 5, 6, 12, 13, 112
SX("s40", QL, ("s3", 5))
VX(vQW, T2, "s40", (1, 4, 7), (5, 1, 4), (0, 1, 3))
VX(vQR, T2, QL, (4, 2, 7), (0, 3, 4))
A(f"v_bfe_u32 v{T0}, v0, 2, 3\nv_xor_b32 v{T0}, s3, v{T0}")
VX(vVR, T2, VREG, (2, 4, 8), (0, 2, 3))
A(f"v_lshl_or_b32 v{vVR}, v{T0}, 5, v{vVR}")
VX(vMX, T2, MISC, (0, 2, 5))
A(f"s_lshl_b32 s40, s3, 2\nv_add_u32 v{vMW}, s40, v{vMX}")
VX(vPR, T2, PL, (4, 2, 6), (0, 2, 4))
A(f"s_lshl_b32 s40, s3, 8\nv_add_u32 v{vPW}, s40, v{vPR}")
VX(vOAD, T2, 0, (0, 2, 12), (4, 2, 4))
SX("s53", OG, ("s4", 14), ("s3", 1, 0, 10), ("s5", 6), ("s3", 0, 1, 3))
VX(vSAD, T2, 0, (0, 2, 7))
SX("s54", SG, ("s4", 9), ("s5", 3))
A(f"s_mov_b32 s55, {f32(C1)}")
fWF = 128 if FF else 84
fDF = 144 if FF else 64
def ffn_frag_addr(wr, ta, tr):
    VX(tr, 32, 0, (2, 4, 7), (3, 2, 5), (0, 2, 3))
    SX("s40", 0, ("s3", 0, 2, 5)); A(f"v_xor_b32 v{wr}, s40, v{tr}")
    SX("s40", FG, ("s3", 2, 0, 14)); A(f"v_add_u32 v{wr}, s40, v{wr}")
    A(f"s_add_u32 s40, s42, {FD}\nv_add_u32 v{ta}, s40, v{tr}")
    for t in range(1, 4):
        A(f"v_xor_b32 v{ta+t}, {t*32:#x}, v{ta}")
def w_frags(wr):
    for k in range(4):
        for h in range(2):
            r = fWF + 4*k + 2*h
            A(f"ds_read_b64_tr_b16 v[{r}:{r+1}], v{wr} offset:{k*4096 + h*2048}")
def d_frags(ta):
    for tau in range(4):
        A(f"ds_read_b64_tr_b16 v[{fDF+2*tau}:{fDF+2*tau+1}], v{ta+tau}")
A(f"s_waitcnt vmcnt({9 if GT > 8 else 8})")
for T in range(2):
    for t in range(4):
        r = vKF + (T*4+t)*4
        A(f"ds_read_b128 v[{r}:{r+3}], v{vKA+t} offset:{T*4096}")
sk = L("nqp")
A(f"s_cmp_ge_u32 s3, 4\ns_cbranch_scc1 {sk}")
def q_load():
    A(f"buffer_load_dwordx4 v[{vQ}:{vQ+3}], v{vQO}, {RW}, s44 offen sc1")
def q_chk():
    A(f"v_xor_b32 v{T0}, {sTAG}, v{vQ+1}\nv_bitop3_b32 v{T0}, v{vQ+3}, {sTAG}, v{T0} bitop3:0xbe\nv_cmp_ne_u32 vcc, 0, v{T0}")
poll(q_load, q_chk, sleep=OPT['s2'])
STAMP(4)
A(f"v_mov_b32 v{vQ+1}, v{vQ+2}")
A(f"ds_write_b64 v{vQW}, v[{vQ}:{vQ+1}]")
A.label(sk)
A(f"s_waitcnt {'vmcnt(0) ' if OPT['ser'] else ''}lgkmcnt(0)\ns_barrier")
STAMP(5)
for t in range(4):
    A(f"ds_read_b128 v[{vQF+4*t}:{vQF+4*t+3}], v{vQR} offset:{t*512}")
if GB1: gu_dma()
A("s_waitcnt lgkmcnt(0)")
def v_tr(kb, T):
    r = vVF + kb*4 + T*2
    A(f"ds_read_b64_tr_b16 v[{r}:{r+1}], v{vVR} offset:{(32*kb+16*T)*256}")
EARLY_T = [0, 1] if OPT['ser'] else []
for kb in range(8):
    if kb < 4:
        for T in range(2):
            mfma(vS + 4*T, vKF + (T*4+kb)*4, vQF + 4*kb, None if kb == 0 else vS + 4*T)
    for T in EARLY_T: v_tr(kb, T)
for i in range(8):
    A(f"v_add_f32_dpp v{vS+i}, v{vS+i}, v{vS+i} row_ror:4 {DPPM}")
A(f"v_max3_f32 v{T0}, v{vS}, v{vS+1}, v{vS+2}\nv_max3_f32 v{T2}, v{vS+3}, v{vS+4}, v{vS+5}")
A(f"v_max3_f32 v{T0}, v{T0}, v{vS+6}, v{vS+7}\nv_max_f32 v{T3}, v{T0}, v{T2}\nv_max_f32 v{T0}, v{T0}, v{T2}")
A(f"v_permlane32_swap_b32 v{T0}, v{T3}")
A(f"v_max_f32 v{T2}, v{T0}, v{T3}\nv_max_f32 v{T0}, v{T0}, v{T3}")
A(f"v_permlane16_swap_b32 v{T0}, v{T2}")
A(f"v_max_f32 v{T0}, v{T0}, v{T2}")
A(f"ds_write_b32 v{vMW}, v{T0}")
STAMP(14)
A("s_waitcnt lgkmcnt(0)\ns_barrier")
A(f"ds_read_b128 v[{vQF}:{vQF+3}], v{vMX}\nds_read_b128 v[{vQF+4}:{vQF+7}], v{vMX} offset:16")
A("s_waitcnt lgkmcnt(0)")
A(f"v_max3_f32 v{T0}, v{vQF}, v{vQF+1}, v{vQF+2}\nv_max3_f32 v{T2}, v{vQF+3}, v{vQF+4}, v{vQF+5}")
A(f"v_max3_f32 v{T0}, v{T0}, v{vQF+6}, v{vQF+7}\nv_max_f32 v{T0}, v{T0}, v{T2}")
A(f"v_mul_f32 v{vST}, s55, v{T0}")
for i in range(8):
    A(f"v_fma_f32 v{vS+i}, v{vS+i}, s55, -v{vST}")
for i in range(8):
    A(f"v_exp_f32 v{vS+i}, v{vS+i}")
for i in range(4):
    A(f"v_cvt_pk_bf16_f32 v{vP+i}, v{vS+2*i}, v{vS+2*i+1}")
A(f"ds_write_b128 v{vPW}, v[{vP}:{vP+3}]")
rowsum([vS, vS+4])
A(f"v_add_f32 v{T0}, v{vS}, v{vS+4}\nv_add_f32 v{T3}, v{vS}, v{vS+4}")
A(f"v_permlane32_swap_b32 v{T0}, v{T3}")
A(f"v_add_f32 v{T2}, v{T0}, v{T3}\nv_add_f32 v{T0}, v{T0}, v{T3}")
A(f"v_permlane16_swap_b32 v{T0}, v{T2}")
A(f"v_add_f32 v{T0}, v{T0}, v{T2}")
A(f"ds_write_b32 v{vMW}, v{T0} offset:128")
A("s_waitcnt lgkmcnt(0)\ns_barrier")
STAMP(3)
if STAMPS: A("s_waitcnt lgkmcnt(0)")
LATE_T = [T for T in range(2) if T not in EARLY_T]
A(f"ds_read_b128 v[{vQF}:{vQF+3}], v{vMX} offset:128\nds_read_b128 v[{vQF+4}:{vQF+7}], v{vMX} offset:144")
for kb in range(8):
    r = vKF + kb*4
    A(f"ds_read_b128 v[{r}:{r+3}], v{vPR} offset:{kb*256}")
def st_pub(vm=None):
    sk = L("nst"); sk2 = L("nsu")
    A(f"s_cmp_lg_u32 s3, 0\ns_cbranch_scc1 {sk}")
    A("s_waitcnt lgkmcnt(8)")
    rowsum([vQF, vQF+4])
    A(f"v_add_f32 v{vST+1}, v{vQF}, v{vQF+4}")
    A("s_mov_b64 exec, 15")
    A(f"buffer_store_dwordx2 v[{vST}:{vST+1}], v{vSAD}, {RW}, s54 offen")
    fullexec()
    if vm is not None:
        A(f"s_waitcnt vmcnt({vm})\ns_branch {sk2}")
    A.label(sk)
    if vm is not None:
        A(f"s_waitcnt vmcnt({vm-1})")
        A.label(sk2)
if LATE_T:
    st_pub(1)
    A("s_waitcnt lgkmcnt(0)\ns_barrier")
    STAMP(6)
    if STAMPS: A("s_waitcnt lgkmcnt(0)")
    per = len(LATE_T)
    AHEAD = 8 if per == 1 else 6
    for kb in range(AHEAD):
        for T in LATE_T: v_tr(kb, T)
    for kb in range(8):
        A(f"s_waitcnt lgkmcnt({(min(8, AHEAD + kb) - kb - 1) * per})")
        mfma(vOA, vVF + kb*4, vKF + kb*4, None if kb == 0 else vOA)
        if AHEAD + kb < 8:
            for T in LATE_T: v_tr(AHEAD + kb, T)
else:
    st_pub()
    for kb in range(8):
        A(f"s_waitcnt lgkmcnt({7-kb})")
        mfma(vOA, vVF + kb*4, vKF + kb*4, None if kb == 0 else vOA)
setexec(0x000f000f, 0x000f000f)
A(f"v_cvt_pk_bf16_f32 v{vP}, v{vOA}, v{vOA+1}\nv_cvt_pk_bf16_f32 v{vP+1}, v{vOA+2}, v{vOA+3}")
A(f"buffer_store_dwordx2 v[{vP}:{vP+1}], v{vOAD}, {RW}, s53 offen")
fullexec()
STAMP(7)
A("s_cmp_lt_u32 s4, 7\ns_cbranch_scc1 L_ffn")
A("s_cmp_lg_u32 s3, 0\ns_cbranch_scc1 L_exit")
VX(T1, T2, 0, (3, 1, 14), (0, 3, 11))
A(f"s_mov_b32 s46, {X4 + 7*128:#x}")
poll(lambda: A(f"buffer_load_dword v16, v{T1}, {RW}, s46 offen sc1"), lambda: A(f"v_cmp_eq_u32 vcc, -1, v16"), sleep=8)
A("s_branch L_exit")
A.label("L_ffn")
def mf_loads():
    tagged_loads(16, fMF, "s59")
SX("s55", ST5, ("s4", 8))
SX("s53", G5, ("s63", 10))
A(f"s_add_u32 s54, s53, {US5-G5}")
if OPT["ltouch"]:
    sk = L("nlt")
    A(f"s_cmp_lg_u32 s3, 7\ns_cbranch_scc1 {sk}")
    A(f"buffer_load_dwordx4 v[28:31], v{vQO}, {RW}, s53 offen sc1")
    A(f"buffer_load_dwordx4 v[28:31], v{vQO}, {RW}, s54 offen sc1")
    A(f"buffer_load_dword v28, v{vSAD}, {RW}, s55 offen sc1")
    A.label(sk)
mf_loads()
if GB1: dn_dma()
elif not FF:
    if OPT["obar"]: A("s_barrier")
    ffn_dma()
fYW, fYR, fWR, fGA, fGR, fSTA, fY6A = 113, 114, 115, 116, 118, 119, 120
fG, fU, fS = 121, 122, 117
wOF, wTA = fMF, 108
if not FF: ffn_frag_addr(fWR, wTA, wTR)
A("s_lshr_b32 s56, s3, 2\ns_and_b32 s57, s3, 3")
VX(fYR, 32, YL0, (0, 6, 4))
A(f"s_lshl_b32 s40, s3, 10\nv_add_u32 v{fYW}, s40, v{fYR}")
VX(fGA, 32, 0, (0, 6, 2))
SX("s61", G5 - 64, ("s63", 2, 0, 12), ("s57", 10), ("s63", 0, 2, 8), ("s56", 7))
A(f"s_add_u32 s62, s61, {US5-G5}")
VX(fGR, 32, 0, (2, 1, 7), (3, 1, 6), (4, 2, 4), (0, 2, 2))
VX(fSTA, 32, 0, (0, 3, 5), (3, 1, 4))
VX(fY6A, 32, 0, (3, 1, 14), (5, 1, 12), (4, 1, 4))
SX("s47", Y4, ("s56", 14), ("s63", 0, 2, 12), ("s57", 10))
SX("s49", Y6, ("s3", 16), ("s63", 5))
A("s_add_u32 s50, s49, 8192\ns_add_u32 s51, s49, 32768\ns_add_u32 s52, s49, 40960")
A(f"s_mov_b32 s41, {f32(1.0/512)}\ns_mov_b32 s43, {f32(1e-5)}")
poll(mf_loads, lambda: tagged_chk([16], 33), first_issued=True, first_wait=0 if FF else (2 if GB1 else 6), sleep=4)
tagged_pack(16)
A(f"ds_write_b128 v{fYW}, v[16:19]")
A("s_waitcnt vmcnt(0) lgkmcnt(0)\ns_barrier")
STAMP(10)
def y_load():
    A(f"buffer_load_dwordx4 v[76:79], v{wOF}, {RW}, s47 offen sc1")
y_load()
YO = [16, 20, 24, 28, 32, 36, 100, 104]
if not FF: w_frags(fWR)
for u in range(8):
    A(f"ds_read_b128 v[{YO[u]}:{YO[u]+3}], v{fYR} offset:{u*1024}")
A("s_waitcnt lgkmcnt(0)")
for k in range(4):
    for pi in range(2):
        mfma(wD + 4*pi, YO[4*pi+k], fWF + 4*k, None if k == 0 else wD + 4*pi)
rowsum([wD, wD+4])
A(f"v_permlane16_swap_b32 v{wD}, v{wD+4}")
A(f"v_add_f32 v{wD+1}, v{wD}, v{wD+4}\nv_add_f32 v{wD}, v{wD}, v{wD+4}")
A(f"v_permlane16_swap_b32 v{wD}, v{wD+1}")
A(f"v_cvt_pk_bf16_f32 v126, v{wD}, v{wD+1}")
setexec(0xffff0000, 0x0000ffff)
A(f"buffer_store_dword v126, v{fGA}, {RW}, s62 offen {'' if OPT['uslocal'] else 'sc1'}")
fullexec()
STAMP(1)
def us_loads():
    for k in range(4):
        A(f"buffer_load_dword v{40+k}, v{fGR}, {RW}, s54 offen offset:{256*k} sc1")
if not FF: d_frags(wTA)
poll(y_load, lambda: chk_empty4(76, 33), first_issued=True, first_wait=1)
STAMP(11)
A(f"ds_write_b128 v{fYW}, v[76:79] offset:8192")
us_loads()
A("s_waitcnt lgkmcnt(0)\ns_barrier")
for u in range(8):
    A(f"ds_read_b128 v[{YO[u]}:{YO[u]+3}], v{fYR} offset:{8192+u*1024}")
for u in range(8):
    A(f"s_waitcnt lgkmcnt({7-u})")
    mfma(wD, YO[u], fWF + 4*(u & 3), None if u == 0 else wD)
A(f"v_add_f32 v{wD}, v{wD}, v{wD+1}\nv_add_f32 v{wD+2}, v{wD+2}, v{wD+3}")
A(f"v_add_f32 v{wD+1}, v{wD}, v{wD+2}\nv_add_f32 v{wD}, v{wD}, v{wD+2}")
A(f"v_permlane16_swap_b32 v{wD}, v{wD+1}")
A(f"v_add_f32 v{fG}, v{wD}, v{wD+1}")
def g_store(fl):
    setexec(0xffff0000, 0x0000ffff)
    A(f"buffer_store_dword v{fG}, v{fGA}, {RW}, s61 offen {fl}")
g_store("")
fullexec()
STAMP(12)
def g_loads():
    A(f"buffer_load_dwordx4 v[24:27], v{fSTA}, {RW}, s55 offen sc1")
    for k in range(4):
        A(f"buffer_load_dword v{20+k}, v{fGR}, {RW}, s53 offen offset:{256*k} sc1")
poll(us_loads, lambda: chk_empty4(40, 33), first_issued=True, first_wait=1)
g_loads()
for k in range(4):
    A(f"v_lshlrev_b32 v{44+k}, 16, v{40+k}\nv_and_b32 v{40+k}, 0xffff0000, v{40+k}")
rowsum([44, 40])
A(f"v_mov_b32 v{fU}, v44\nv_mov_b32 v{fS}, v40")
def g_chk():
    A("v_add_f32 v24, v24, v26\nv_add_f32 v25, v25, v27")
    A("v_add_f32 v20, v20, v21\nv_add_f32 v22, v22, v23")
    A(f"v_add_f32_dpp v24, v24, v24 quad_perm:[1,0,3,2] {DPPM}\nv_add_f32_dpp v25, v25, v25 quad_perm:[1,0,3,2] {DPPM}")
    A("v_add_f32 v20, v20, v22")
    A(f"v_add_f32_dpp v24, v24, v24 quad_perm:[2,3,0,1] {DPPM}\nv_add_f32_dpp v25, v25, v25 quad_perm:[2,3,0,1] {DPPM}")
    A("v_add_f32 v26, v24, v25")
    A("v_cmp_u_f32 vcc, v20, v26")
poll(g_loads, g_chk, first_issued=True)
STAMP(13)
A(f"v_add_f32_dpp v24, v24, v24 row_half_mirror {DPPM}\nv_add_f32_dpp v25, v25, v25 row_half_mirror {DPPM}")
A("v_mov_b32 v26, s43")
A("v_mul_f32 v24, s41, v24")
A("v_fmac_f32 v26, s41, v25")
A("v_fma_f32 v26, -v24, v24, v26")
A(f"v_fma_f32 v20, -v24, v{fU}, v20")
A("v_rsq_f32 v26, v26")
A(f"v_fma_f32 v20, v20, v26, v{fS}")
A("v_max_f32 v21, 0, v20")
A(f"v_mul_f32_dpp v22, v20, v21 row_shl:4 {DPPM}")
pack4(22, 24, 25, 23)
for tau in range(4):
    d = 32 + 4*tau
    A(f"v_mfma_f32_16x16x16_bf16 v[{d}:{d+3}], v[{fDF+2*tau}:{fDF+2*tau+1}], v[24:25], 0")
setexec(0x01010101, 0x01010101)
for tau in range(4):
    d = 32 + 4*tau
    A(f"buffer_store_dwordx4 v[{d}:{d+3}], v{fY6A}, {RW}, s{49+tau} offen sc1")
STAMP(8)
A("s_waitcnt vmcnt(0)")
g_store("sc1")
if OPT["uslocal"]: A(f"buffer_store_dword v126, v{fGA}, {RW}, s62 offen sc1")
A("s_branch L_exit")

A(".p2align 6")
A.label("L_W")
kload(RE, 72); kload(RD, 0)
ids()
swz_chunk(T1)
A(f"v_lshrrev_b32 v{T0}, 3, v0")
A("s_lshl_b32 s46, s7, 7")
def w_common():
    kload(RB, 32); kload(RF, 88)
    A(f"s_load_dword {sTAG}, s[16:17], 0")
    ids2()
    A(f"v_lshl_or_b32 v{wO}, v{T0}, 10, v{T1}")
    srd(RB, 4194304); srd(RD, 2048)
def wq_setup(sh):
    A(f"v_lshl_or_b32 v{wQ}, v{T0}, 13, v{T1}")
    A("s_mov_b32 s10, 4194304")
    A(f"s_lshl_b32 s48, s3, {12-sh}")
    SX("s43", 0, ("s6", 8), ("s48", 7, 0, 0))
    SX("s44", 0, ("s43", 13), ("s4", 10), ("s46", 0))
def wq_dma():
    A(f"s_add_u32 m0, s48, {WQL}")
    for u in range(4):
        if u: A(f"s_add_u32 s44, s44, {8*8192-1024}")
        A(f"buffer_load_dwordx4 v{wQ}, {RA}, s44 offen offset:{u*1024} {NT} lds")
def c_setup():
    VX(T2, T3, 0, (5, 1, 10), (0, 5, 2))
    srd(RE, 2048)
A("s_cmp_ge_u32 s4, 4\ns_cbranch_scc1 L_nA")
A("s_lshl1_add_u32 s49, s4, s6\ns_lshl_b32 s49, s49, 7")
A("s_cmp_lt_u32 s3, 256\ns_cbranch_scc1 L_A1")
A(f"v_mul_u32_u24 v{wM}, 6144, v{T0}\nv_add_u32 v{wM}, v{wM}, v{T1}")
srd(RC, 3145728)
A("s_sub_u32 s40, s3, 256")
SX("s61", 0, ("s7", 6), ("s40", 2, 0, 0))
A(f"s_mul_i32 s61, s61, 6144\ns_add_u32 s61, s61, s49\ns_add_u32 s62, s61, {8*6144-1024}")
A(f"s_lshl_b32 s40, s40, 5\ns_add_u32 m0, s40, {PA}")
A("s_waitcnt lgkmcnt(0)")
STAMP(1)
A(f"buffer_load_dwordx4 v{wM}, {RC}, s61 offen {NT} lds")
A(f"buffer_load_dwordx4 v{wM}, {RC}, s62 offen offset:1024 {NT} lds")
A(f"s_add_u32 m0, s40, {PA+8192-1024}")
A(f"buffer_load_dwordx4 v{wM}, {RC}, s61 offen offset:1024 {NT} lds")
A(f"buffer_load_dwordx4 v{wM}, {RC}, s62 offen offset:2048 {NT} lds")
A("v_mov_b32 v32, -1\nv_mov_b32 v33, -1\nv_mov_b32 v34, -1\nv_mov_b32 v35, -1")
SX("s54", CLR, ("s49", 9), ("s7", 13), ("s40", 0))
A("v_lshlrev_b32 v38, 4, v0")
srd(RW, WS_BYTES)
A(f"buffer_store_dwordx4 v[32:35], v38, {RW}, s54 offen sc1")
A(f"buffer_store_dwordx4 v[32:35], v38, {RW}, s54 offen offset:1024 sc1")
w_common()
if OPT["pf"] == 2: code_prefetch(T2, vPF)
wq_setup(0)
AH = OPT["ahold"]
if AH < 8:
    A("s_barrier")
    wq_dma()
tr_setup()
if OPT["abl"]:
    A(f"s_waitcnt vmcnt({3 + (4 if AH < 8 else 0)})"); STAMP(8)
A(f"s_waitcnt vmcnt({4 if AH < 8 else 0}) lgkmcnt(0)")
if OPT["abl"]: STAMP(9)
A(f"s_add_u32 {sTAG}, {sTAG}, {TAGC:#x}")
A("s_barrier")
if AH == 8:
    A("s_barrier")
    wq_dma()
A("s_branch L_B")
A.label("L_A1")
c_setup()
VX(36, T3, 0, (4, 1, 10), (5, 1, 8), (0, 4, 4))
srd(RD, 2048)
A("s_waitcnt lgkmcnt(0)")
STAMP(1)
A(f"buffer_load_dword v{wC}, v{T2}, {RE}, s46 offen {SNT}")
A(f"buffer_load_dwordx4 v[{wX}:{wX+3}], v36, {RD}, 0 offen {SNT}")
A(f"buffer_load_dwordx4 v[{wX+4}:{wX+7}], v36, {RD}, 0 offen offset:512 {SNT}")
VX(37, T3, 0, (4, 1, 10), (0, 4, 1))
A(f"s_lshr_b32 s50, s3, 1\ns_add_u32 s50, s50, s49\nv_mov_b32 v{wXS}, 0")
A(f"buffer_load_short_d16_hi v{wXS}, v37, {RD}, s50 offen {SNT}")
if AH < 8: A("s_barrier")
w_common()
wq_setup(0)
tr_setup()
VX(39, 32, 0, (4, 1, 6), (2, 2, 4))
SX("s53", H1G, ("s58", 12), ("s3", 10), ("s46", 0))
A("s_cmp_eq_u32 s7, 0\ns_cselect_b32 s54, 1.0, 0")
unit_pre("0", "s54", PA)
silu_operand(3)
if OPT["abl"]: STAMP(6)
A(f"s_waitcnt vmcnt(0)")
A("v_mov_b32 v36, 0\nv_mov_b32 v37, 0\nv_mov_b32 v38, 0x3f803f80")
for i in range(8):
    A(f"v_dot2c_f32_bf16 v36, v{wX+i}, v38\nv_dot2c_f32_bf16 v37, v{wX+i}, v{wX+i}")
for m in ("quad_perm:[1,0,3,2]", "quad_perm:[2,3,0,1]", "row_half_mirror", "row_mirror"):
    A(f"v_add_f32_dpp v36, v36, v36 {m} {DPPM}\nv_add_f32_dpp v37, v37, v37 {m} {DPPM}")
A("v_mov_b32 v38, v36\nv_mov_b32 v35, v37")
A("v_permlane32_swap_b32 v36, v38\nv_permlane32_swap_b32 v37, v35")
A("v_add_f32 v36, v36, v38\nv_add_f32 v37, v37, v35")
A(f"v_mul_f32 v36, {f32(1.0/512)}, v36\nv_mov_b32 v38, {f32(1e-5)}\nv_fmac_f32 v38, {f32(1.0/512)}, v37")
A("v_fma_f32 v38, -v36, v36, v38\nv_rsq_f32 v38, v38")
A(f"v_sub_f32 v{wXS}, v{wXS}, v36\nv_mul_f32 v{wXS}, v{wXS}, v38")
A(f"s_add_u32 {sTAG}, {sTAG}, {TAGC:#x}")
A(f"v_mov_b32 v{wD+9}, {sTAG}\nv_mov_b32 v{wD+11}, {sTAG}")
if OPT["abl"]: STAMP(7)
A("s_waitcnt lgkmcnt(0)\ns_barrier")
if OPT["abl"]: STAMP(10)
unit_go()
A(f"v_fma_f32 v32, v{wXS}, v{wD+4}, v{wD}")
pack4(32, wD+8, wD+10, 33)
setexec(0x11111111, 0)
A(f"buffer_store_dwordx4 v[{wD+8}:{wD+11}], v39, {RW}, s53 offen sc1")
fullexec()
STAMP(14)
if AH == 8: A("s_barrier")
wq_dma()
A("s_branch L_B")
A.label("L_nA")
wq_setup(6)
A("s_waitcnt lgkmcnt(0)")
STAMP(1)
if OPT["wqpf"] == 2:
    sk = L("nh0")
    A(f"s_cmp_lt_u32 s3, 256\ns_cbranch_scc1 {sk}")
wq_dma()
if OPT["wqpf"] == 2: A.label(sk)
w_common()
if OPT["pf"] == 2: code_prefetch(T2, vPF)
tr_setup()
if OPT["wqpf"] == 2:
    sk = L("nh1")
    A(f"s_waitcnt vmcnt(1)\ns_barrier\ns_cmp_ge_u32 s3, 4\ns_cbranch_scc1 {sk}")
    wq_dma()
    A.label(sk)
A("s_waitcnt lgkmcnt(0)")
A(f"s_add_u32 {sTAG}, {sTAG}, {TAGC:#x}")
A.label("L_B")
srd(RF, 2048)
SX("s47", 0, ("s4", 19), ("s43", 10), ("s46", 0))
wRW, wRR, wOF, wTA = 14, 15, 72, 108
SX("s40", RED, ("s3", 9)); VX(wRW, 32, "s40", (0, 6, 2))
SX("s40", RED, ("s3", 8)); VX(wRR, 32, "s40", (0, 6, 2))
VX(wOF, 32, 0, (0, 3, 7), (3, 1, 6), (4, 2, 4))
SX("s53", H1G, ("s43", 6))
VX(T3, 32, 0, (0, 2, 12))
A("s_xor_b32 s57, s6, 1")
SX("s57", H1G + 4, ("s57", 14), ("s3", 7))
wQA = 73; wQD = 76
VX(wQA, 32, 0, (5, 1, 12), (0, 5, 2))
SX("s56", QG, ("s4", 13), ("s5", 8), ("s3", 7))
A(f"v_add_u32 v{wTA}, s48, v{wTR}")
for t in range(1, 4):
    A(f"v_xor_b32 v{wTA+t}, {t*32:#x}, v{wTA}")
A(f"v_mov_b32 v{wQD+1}, {sTAG}\nv_mov_b32 v{wQD+3}, {sTAG}")
wGA, wCB, wXA, wXAD = 74, 75, 80, 81
tE, tOUT, tBP, tOF, tL16 = 84, 114, 115, 72, 116
SX("s59", Y6, ("s5", 15), ("s4", 12))
A("s_cmp_eq_u32 s3, 7\ns_cselect_b32 s40, 0, -1")
A("v_mov_b32 v118, s40\nv_mov_b32 v119, s40\nv_lshlrev_b32 v117, 3, v0")
SX("s41", 0, ("s3", 9), ("s59", 0))
VX(T1, 32, 0, (0, 4, 6), (4, 2, 4))
SX("s51", OG, ("s4", 14), ("s43", 5))
SX("s54", SG, ("s4", 9), ("s43", 7, 0, 7))
A(f"v_lshlrev_b32 v{T0}, 2, v1\nv_xor_b32 v{T0}, v0, v{T0}\nv_and_b32 v{T0}, 7, v{T0}\nv_lshlrev_b32 v{T0}, 3, v{T0}")
A(f"v_lshrrev_b32 v32, 5, v0\nv_lshl_or_b32 v{T0}, v32, 6, v{T0}")
VX(wXAD, 32, 0, (5, 1, 6), (2, 2, 4), (4, 1, 3))
SX("s60", X4, ("s7", 11), ("s3", 10), ("s6", 14), ("s4", 7))
A(f"s_add_u32 s52, s60, {Y4-X4}")
A("v_and_b32 v32, 1, v0\nv_lshlrev_b32 v32, 4, v32\nv_mov_b32 v33, 0x3f80\nv_lshlrev_b32 v32, v32, v33")
A("v_lshrrev_b32 v33, 2, v2\nv_sub_u32 v33, v1, v33\nv_bfe_u32 v34, v0, 1, 1\nv_lshl_or_b32 v33, v33, 1, v34")
for r in range(2):
    A(f"v_cmp_eq_u32 vcc, {r}, v33")
    A(f"v_cndmask_b32 v{tE+r}, 0, v32, vcc")
    A(f"v_mov_b32 v{tE+6+r}, v{tE+r}")
for r in (2, 3, 4, 5):
    A(f"v_mov_b32 v{tE+r}, 0")
VX(38, 33, 0, (0, 1, 3), (5, 1, 1), (4, 1, 2))
SX("s40", 0, ("s4", 0, 2, 4)); A(f"v_add_u32 v{tOUT}, s40, v38")
SX("s40", 0, ("s4", 2, 0, 7)); A(f"v_lshl_add_u32 v{tBP}, v{tOUT}, 1, s40")
SX("s62", 0, ("s4", 2, 0, 10), ("s5", 6))
A(f"v_lshlrev_b32 v{tL16}, 4, v0")
SX("s49", X4, ("s5", 10))
A("s_add_u32 s50, s49, 16384")
SX("s55", ST5, ("s4", 8), ("s7", 5), ("s6", 3))
VX(113, 33, 0, (5, 1, 4), (4, 1, 2))
SX("s61", MGT, ("s7", 12), ("s3", 11))
SX("s40", MGT + 3*32768, ("s5", 11))
A("s_cmp_eq_u32 s3, 2\ns_cselect_b32 s61, s40, s61\ns_cselect_b32 s40, 0, 0x10000\ns_add_u32 s63, s61, s40")
VX(120, 33, 0, (5, 1, 10), (0, 5, 1))
SX("s42", 0, ("s7", 7), ("s3", 6))
A(f"v_mov_b32 v{wXA}, 0")
FPF = OPT["fpf"]
if FPF:
    kload(RC, 48); kload(RE, 56)
    A("s_cmp_lt_u32 s4, 7\ns_cselect_b32 s22, 1835008, 0\ns_cselect_b32 s30, 1835008, 0\ns_mov_b32 s23, 0x00020000\ns_mov_b32 s31, 0x00020000")
    A("v_lshrrev_b32 v32, 3, v0\nv_and_b32 v33, 7, v0\nv_lshlrev_b32 v33, 4, v33\nv_mul_u32_u24 v121, 3584, v32\nv_add_u32 v121, v121, v33")
    SX("s96", 0, ("s5", 0, 2, 7), ("s3", 4))
    A("s_mul_i32 s96, s96, 3584")
    SX("s97", 0, ("s4", 9), ("s5", 2, 0, 7))
    A(f"s_add_u32 s96, s96, s97\ns_add_u32 s97, s96, {8*3584}")
    SX("s98", 0, ("s4", 18), ("s5", 14), ("s3", 11))
def blk_frags(off):
    for t in range(4):
        for h in range(2):
            r = wWF + 4*t + 2*h
            A(f"ds_read_b64_tr_b16 v[{r}:{r+1}], v{wTA+t} offset:{off + h*2048}")
def h1_loads():
    tagged_loads(16, wOF, "s53")
    A(f"buffer_load_dword v33, v{T3}, {RW}, s57 offen sc1")
A(f"s_waitcnt vmcnt({OPT['h1at']})")
h1_loads()
if FPF == 2:
    kload(RA, 64)
    A("s_mov_b32 s10, s22")
A("s_waitcnt vmcnt(3)")
blk_frags(WQL)
STAMP(3)
if OPT["abl"] and "toq" not in OPT["abl"]: A("s_branch L_exit")
poll(h1_loads, lambda: tagged_chk([16], 33, 33), first_issued=True, sleep=OPT["s2"])
STAMP(4)
tagged_pack(16)
A("s_waitcnt lgkmcnt(0)")
def blk_mfma(op):
    for t in range(4):
        mfma(wD + 4*t, op, wWF + 4*t, None)
def blk_reduce():
    A(f"v_permlane16_swap_b32 v{wD}, v{wD+4}\nv_permlane16_swap_b32 v{wD+8}, v{wD+12}")
    A(f"v_add_f32 v{wD}, v{wD}, v{wD+4}\nv_add_f32 v{wD+8}, v{wD+8}, v{wD+12}")
    A(f"ds_write2st64_b32 v{wRW}, v{wD}, v{wD+8} offset0:0 offset1:1")
    A("s_waitcnt lgkmcnt(0)\ns_barrier")
def blk_final():
    for i in range(4):
        A(f"ds_read2st64_b32 v[{32+2*i}:{33+2*i}], v{wRR} offset0:{4*i} offset1:{4*i+2}")
    A("s_waitcnt lgkmcnt(0)")
    A("v_add_f32 v32, v32, v33\nv_add_f32 v34, v34, v35\nv_add_f32 v36, v36, v37\nv_add_f32 v38, v38, v39")
    A("v_add_f32 v32, v32, v34\nv_add_f32 v36, v36, v38\nv_add_f32 v32, v32, v36")
blk_mfma(16)
rowsum([wD, wD+4, wD+8, wD+12])
blk_reduce()
sk = L("nq")
A(f"s_cmp_ge_u32 s3, 2\ns_cbranch_scc1 {sk}")
blk_final()
pack4(32, wQD, wQD+2, 33)
setexec(0x11111111, 0x11111111)
A(f"buffer_store_dwordx4 v[{wQD}:{wQD+3}], v{wQA}, {RW}, s56 offen")
fullexec()
A.label(sk)
STAMP(5)
if OPT["abl"]: A("s_branch L_exit")
A("s_barrier")
def o_loads():
    A(f"buffer_load_dwordx4 v[104:107], v{T1}, {RW}, s51 offen sc1")
def mc_loads():
    tagged_loads(16, wOF, "s61"); tagged_loads(24, wOF, "s63")
sk = L("nc0")
A(f"s_cmp_ge_u32 s3, 3\ns_cbranch_scc1 {sk}")
mc_loads()
A(f"s_cmp_lg_u32 s58, 0\ns_cbranch_scc1 {sk}")
A(f"buffer_load_short_d16_hi v{wXA}, v120, {RD}, s42 offen")
A.label(sk)
A(f"buffer_store_dwordx2 v[118:119], v117, {RW}, s41 offen sc1")
if OPT["ltouch"]: o_loads()
if OPT["gtrg"]:
    A("s_cmp_lg_u32 s3, 3\ns_cbranch_scc1 L_trgd")
    if OPT["gmask"] == 7:
        VX(39, 32, 0, (0, 3, 7)); A(f"s_movk_i32 s40, {TRG}")
    else:
        VX(39, 32, 0, (0, 2, 7)); A(f"s_movk_i32 s40, {TRG + 512}")
    A(f"s_mov_b32 {sCNT}, 0")
    A.label("L_trg")
    A(f"buffer_load_dword v33, v39, {RW}, s40 offen sc1")
    A("s_waitcnt vmcnt(0)")
    A(f"v_cmp_ne_u32 vcc, {sTAG}, v33")
    A("s_cbranch_vccz L_trgd")
    A(f"s_sleep 2\ns_add_u32 {sCNT}, {sCNT}, 1\ns_cmp_lt_u32 {sCNT}, {OPT['trgmax']}\ns_cbranch_scc1 L_trg")
    A.label("L_trgd")
    A("s_barrier")
    STAMP(6)
def wo_dma():
    A(f"s_add_u32 m0, s48, {WOL}")
    for u in range(4):
        if u: A(f"s_add_u32 s47, s47, {8*1024-1024}")
        A(f"buffer_load_dwordx4 v{wO}, {RB}, s47 offen offset:{u*1024} {NT} lds")
WAC = OPT["wo_after_c"]
if not WAC: wo_dma()
NPF = 0
if FPF:
    if OPT["fpfbar"]: A("s_barrier")
    for r in (RC, RE):
        for so in ("s96", "s97"):
            A(f"buffer_load_dwordx4 v[124:127], v121, {r}, {so} offen {OPT['fpfl']}")
    NPF = 4
    if FPF == 2:
        for o in (0, 1024):
            A(f"buffer_load_dwordx4 v[124:127], v{tL16}, {RA}, s98 offen offset:{o} {OPT['fpfl']}")
        NPF = 6
sk = L("nc1")
A(f"s_cmp_ge_u32 s3, 3\ns_cbranch_scc1 {sk}")
poll(mc_loads, lambda: tagged_chk([16, 24], 33), first_issued=True, first_wait=0 if WAC else 4+NPF, sleep=4)
if WAC:
    A("s_barrier"); wo_dma()
tagged_pack(16); tagged_pack(24)
for i in range(2):
    for t in range(2):
        mfma(wD + 8*i + 4*t, 16 + 8*i, tE + 4*t, None)
rowsum([wD, wD+4, wD+8, wD+12])
A(f"v_permlane16_swap_b32 v{wD}, v{wD+4}\nv_permlane16_swap_b32 v{wD+8}, v{wD+12}")
A(f"v_add_f32 v{wGA}, v{wD}, v{wD+4}\nv_add_f32 v{wCB}, v{wD+8}, v{wD+12}")
STAMP(2)
if WAC:
    sk3 = L("nc2")
    A(f"s_branch {sk3}")
A.label(sk)
if WAC:
    A("s_barrier"); wo_dma()
    A.label(sk3)
A(f"s_waitcnt vmcnt({NPF})")
blk_frags(WOL)
STAMP(7)
wF = 100
sg_load = lambda: A(f"buffer_load_dwordx2 v[16:17], v{T0}, {RW}, s54 offen sc1")
await_any(sg_load, lambda: A("v_cmp_o_f32 vcc, v17, v17"), OPT["s1"])
poll(sg_load, lambda: A("v_cmp_u_f32 vcc, v17, v17"), first_issued=True, sleep=2*OPT["s2"])
o_loads()
A(f"v_max_f32_dpp v18, v16, v16 quad_perm:[1,0,3,2] {DPPM}")
A(f"v_max_f32_dpp v18, v18, v18 quad_perm:[2,3,0,1] {DPPM}")
A(f"v_max_f32_dpp v18, v18, v18 row_half_mirror {DPPM}")
A("v_sub_f32 v16, v16, v18\nv_exp_f32 v16, v16\nv_mul_f32 v17, v16, v17")
for m in ("quad_perm:[1,0,3,2]", "quad_perm:[2,3,0,1]", "row_half_mirror"):
    A(f"v_add_f32_dpp v17, v17, v17 {m} {DPPM}")
A(f"v_rcp_f32 v17, v17\nv_mul_f32 v{wF}, v16, v17")
STAMP(8)
poll(o_loads, lambda: chk_empty4(104, 33), first_issued=True, first_wait=0)
STAMP(9)
A("s_waitcnt lgkmcnt(0)")
blk_mfma(104)
for t in range(4):
    A(f"v_mul_f32_dpp v{wD+4*t}, v{wF}, v{wD+4*t} row_newbcast:0 {DPPM}")
for r in range(1, 4):
    for t in range(4):
        A(f"v_fmac_f32_dpp v{wD+4*t}, v{wF}, v{wD+4*t+r} row_newbcast:{r} {DPPM}")
blk_reduce()
A("s_cmp_gt_u32 s3, 2\ns_cbranch_scc1 L_exit")
A("s_cmp_eq_u32 s3, 2\ns_cbranch_scc1 L_fin")
blk_final()
A(f"v_fma_f32 v32, v32, v{wGA}, v{wXA}")
A(f"v_mul_f32 v36, v32, v{wCB}")
A(f"v_mov_b32_dpp v33, v32 quad_perm:[1,1,3,3] {DPPM}")
A(f"v_mov_b32_dpp v37, v36 quad_perm:[1,1,3,3] {DPPM}")
A("v_cvt_pk_bf16_f32 v34, v32, v33\nv_cvt_pk_bf16_f32 v38, v36, v37")
A(f"v_mov_b32_dpp v35, v34 quad_perm:[2,2,2,2] {DPPM}")
A(f"v_mov_b32_dpp v39, v38 quad_perm:[2,2,2,2] {DPPM}")
setexec(0x11111111, 0x11111111)
A(f"buffer_store_dwordx2 v[38:39], v{wXAD}, {RW}, s52 offen sc1")
A(f"buffer_store_dwordx2 v[34:35], v{wXAD}, {RW}, s60 offen sc1")
STAMP(10)
A("s_branch L_exit")
A.label("L_fin")
def x4_loads():
    A(f"buffer_load_dwordx4 v[16:19], v{tOF}, {RW}, s49 offen sc1")
    A(f"buffer_load_dwordx4 v[20:23], v{tOF}, {RW}, s50 offen sc1")
def x4_chk():
    A("v_max3_u32 v33, v16, v17, v18\nv_max3_u32 v34, v19, v20, v21\nv_max3_u32 v33, v33, v22, v23\nv_max_u32 v33, v33, v34\nv_cmp_eq_u32 vcc, -1, v33")
poll(x4_loads, x4_chk)
STAMP(11)
for hp in range(2):
    for t in range(2):
        mfma(wD + 4*t, 16 + 4*hp, tE + 4*t, None if hp == 0 else wD + 4*t)
rowsum([wD, wD+4])
A(f"v_permlane16_swap_b32 v{wD}, v{wD+4}")
A(f"v_add_f32 v42, v{wD}, v{wD+4}")
A("v_mov_b32 v43, v42\nv_mul_f32 v44, v42, v42")
A("v_permlane16_swap_b32 v43, v44")
A("v_add_f32 v43, v43, v44")
for m in ("quad_perm:[1,0,3,2]", "quad_perm:[2,3,0,1]", "row_half_mirror", "row_mirror"):
    A(f"v_add_f32_dpp v43, v43, v43 {m} {DPPM}")
setexec(0x00010001, 0x00010001)
A(f"buffer_store_dword v43, v113, {RW}, s55 offen")
fullexec()
STAMP(12)
A(f"ds_bpermute_b32 v42, v{tBP}, v42\nds_bpermute_b32 v{wGA}, v{tBP}, v{wGA}")
def y6_loads():
    for i in range(4):
        A(f"buffer_load_dwordx4 v[{16+4*i}:{19+4*i}], v{tL16}, {RW}, s59 offen offset:{1024*i} sc1")
def y6_chk():
    for r in range(4):
        A(f"v_add_f32 v{16+r}, v{16+r}, v{20+r}\nv_add_f32 v{24+r}, v{24+r}, v{28+r}")
    for r in range(4):
        A(f"v_add_f32 v{16+r}, v{16+r}, v{24+r}")
    A("v_permlane32_swap_b32 v16, v17\nv_permlane32_swap_b32 v18, v19")
    A("v_add_f32 v16, v16, v17\nv_add_f32 v18, v18, v19")
    A("v_permlane16_swap_b32 v16, v18")
    A("v_add_f32 v16, v16, v18")
    A("v_cmp_u_f32 vcc, v16, v16")
await_any(lambda: A(f"buffer_load_dword v16, v{tL16}, {RW}, s59 offen sc1"), lambda: A("v_cmp_o_f32 vcc, v16, v16"), 2)
poll(y6_loads, y6_chk)
STAMP(13)
for m in ("row_ror:8", "row_ror:4", "row_ror:2"):
    A(f"v_add_f32_dpp v16, v16, v16 {m} {DPPM}")
A("s_waitcnt lgkmcnt(0)")
A(f"v_fma_f32 v16, v16, v{wGA}, v42")
A("v_cvt_pk_bf16_f32 v16, v16, v16")
setexec(0x00030003, 0x00030003)
A(f"buffer_store_short v16, v{tOUT}, {RF}, s62 offen")
A("s_cmp_lg_u32 s2, 128\ns_cbranch_scc1 L_exit")
A(f"s_sub_u32 s40, {sTAG}, {TAGC-1:#x}")
A("v_mov_b32 v17, s40\nv_mov_b32 v18, 0")
A("s_mov_b64 exec, 1")
A(f"buffer_store_dword v17, v18, {RW}, 0 offen sc1")

if STAMPS == 3:
    STAMP(15)
    A("s_waitcnt lgkmcnt(0)")
    A(f"s_sub_u32 s40, s{64+2*OPT['db']}, s{64+2*OPT['da']}")
    A(f"s_mul_i32 s40, s40, {OPT['dm']}")
    A("s_min_u32 s40, s40, 20000")
    A.label("L_spin")
    A("s_memrealtime s[42:43]\ns_waitcnt lgkmcnt(0)\ns_sub_u32 s41, s42, s94\ns_cmp_lt_u32 s41, s40\ns_cbranch_scc1 L_spin")
A.label("L_exit")
if STAMPS == 1:
    STAMP(15)
    A("s_waitcnt lgkmcnt(0)")
    A("s_mov_b64 exec, 1")
    SX("s40", DBG, ("s2", 9), ("s3", 6))
    A("v_mov_b32 v0, 0")
    for q in range(4):
        for i in range(4):
            A(f"v_mov_b32 v{4+4*q+i}, s{64+2*(4*q+i)}")
        A(f"buffer_store_dwordx4 v[{4+4*q}:{7+4*q}], v0, {RW}, s40 offen offset:{16*q}")
if STAMPS == 2:
    STAMP(15)
    A("s_load_dwordx2 s[32:33], s[0:1], 96")
    A("s_mov_b32 s34, 256\ns_mov_b32 s35, 0x00020000")
    A("s_waitcnt lgkmcnt(0)")
    fullexec()
    A("v_mov_b32 v4, 0\nv_mbcnt_lo_u32_b32 v5, -1, 0\nv_lshlrev_b32 v5, 2, v5")
    A("s_cmp_ge_u32 s2, 128\ns_cbranch_scc1 L_dw")
    A("s_cmp_lg_u32 s3, 0\ns_cbranch_scc1 L_end")
    A("s_not_b32 s40, s64\nv_writelane_b32 v4, s40, 0")
    for i, st in enumerate([9, 2, 5, 7, 10, 11, 8]):
        A(f"v_writelane_b32 v4, s{64+2*st}, {i+1}")
    A("s_branch L_dd")
    A.label("L_dw")
    A("s_cmp_lg_u32 s3, 2\ns_cbranch_scc1 L_end")
    for i, st in enumerate([0, 3, 4, 5, 7, 9, 11, 15]):
        A(f"v_writelane_b32 v4, s{64+2*st}, {i+8}")
    A.label("L_dd")
    A("s_mov_b64 exec, 0xffff")
    A("buffer_atomic_umax v4, v5, s[32:35], 0 offen")
A.label("L_end")
A("s_endpgm")
A.label("L_codeend")
A.raw(f".fill (16384 - (L_codeend - {NAME}_kernel)) / 4, 4, 0xbf810000")
A.raw(f""".section .rodata,"a"
.p2align 6
.amdhsa_kernel {NAME}_kernel
  .amdhsa_next_free_vgpr 152
  .amdhsa_next_free_sgpr 100
  .amdhsa_accum_offset 152
  .amdhsa_group_segment_fixed_size 0
  .amdhsa_kernarg_size 112
  .amdhsa_user_sgpr_count 2
  .amdhsa_user_sgpr_kernarg_segment_ptr 1
  .amdhsa_system_sgpr_workgroup_id_x 1
  .amdhsa_float_denorm_mode_32 3
.end_amdhsa_kernel""")
sys.stdout.write(A.text())
sys.stderr.write(f"instrs={A.ninstr} nops={A.nops}\n")
```

```python
import re

TRANS = ("v_exp_f32", "v_log_f32", "v_rcp_f32", "v_rsq_f32", "v_sqrt_f32", "v_sin_f32", "v_cos_f32")

def _regs(tok, kind):
    tok = tok.strip()
    tok = tok.lstrip("-")
    if tok.startswith("abs(") or tok.startswith("|"):
        tok = tok.strip("|")
        tok = tok[4:-1] if tok.startswith("abs(") else tok
    m = re.fullmatch(kind + r"(\d+)", tok)
    if m: return {int(m.group(1))}
    m = re.fullmatch(kind + r"\[(\d+):(\d+)\]", tok)
    if m: return set(range(int(m.group(1)), int(m.group(2)) + 1))
    if kind == "s":
        if tok == "vcc": return {106, 107}
        if tok == "m0": return {124}
        if tok == "exec": return {126, 127}
    return set()

class Ins:
    def __init__(self, text):
        self.text = text
        t = text.split(";")[0].strip()
        parts = t.split(None, 1)
        self.op = parts[0]
        rest = parts[1] if len(parts) > 1 else ""
        ops = [o.strip() for o in rest.split(",")] if rest else []
        if ops:
            rest2 = re.sub(r"quad_perm:\[[^\]]*\]", "QP", rest)
            ops = [o.strip() for o in rest2.split(",")]
            ops[-1] = ops[-1].split()[0] if ops[-1] else ops[-1]
        self.ops = ops
        op = self.op
        self.mfma = op.startswith("v_mfma")
        self.valu = op.startswith("v_") and not self.mfma
        self.trans = any(op.startswith(x) for x in TRANS)
        self.dpp = "_dpp" in op
        self.perml = op.startswith("v_permlane")
        self.dot = op.startswith("v_dot")
        self.vmem = op.startswith("buffer_") or op.startswith("global_")
        self.ds = op.startswith("ds_")
        self.salu = op.startswith("s_")
        self.lds_dma = self.vmem and re.search(r"\blds\b", rest) is not None
        self.vw = set(); self.vr = set(); self.sw = set(); self.sr = set()
        self.srcc = set(); self.store_data = set()
        if self.valu:
            if op.startswith("v_cmp") or op.startswith("v_readfirstlane") or op.startswith("v_readlane"):
                self.sw = _regs(ops[0], "s")
                srcs = ops[1:]
            else:
                self.vw = _regs(ops[0], "v")
                srcs = ops[1:]
                if op.startswith(("v_fmac", "v_dot2c", "v_writelane")) or self.dpp or self.perml:
                    self.vr |= self.vw
                if self.perml:
                    self.vw |= _regs(ops[1], "v")
            for s in srcs:
                self.vr |= _regs(s, "v"); self.sr |= _regs(s, "s")
        elif self.mfma:
            self.vw = _regs(ops[0], "v")
            self.ab = _regs(ops[1], "v") | _regs(ops[2], "v")
            self.srcc = _regs(ops[3], "v")
            self.vr = self.ab | self.srcc
            self.passes = 8 if "32x32" in op else 4
        elif self.vmem:
            if "_load" in op and not self.lds_dma:
                self.vw = _regs(ops[0], "v"); srcs = ops[1:]
            else:
                srcs = ops
                if "_store" in op and ("x4" in op or "x3" in op):
                    self.store_data = _regs(ops[0], "v") if op.startswith("buffer_") else _regs(ops[1], "v")
            for s in srcs:
                self.vr |= _regs(s, "v"); self.sr |= _regs(s, "s")
        elif self.ds:
            if op.startswith(("ds_read", "ds_bpermute", "ds_permute", "ds_swizzle")):
                self.vw = _regs(ops[0], "v"); srcs = ops[1:]
            else:
                srcs = ops
            for s in srcs:
                self.vr |= _regs(s, "v")
        elif self.salu:
            if ops and not op.startswith(("s_cmp", "s_cbranch", "s_branch", "s_waitcnt", "s_nop", "s_barrier", "s_endpgm", "s_setprio", "s_sleep", "s_bitcmp")):
                self.sw = _regs(ops[0], "s")
        self.states = 1
        if op == "s_nop":
            self.states = int(ops[0], 0) + 1

def need(p, c):
    n = 0
    if p.valu:
        if c.mfma and (p.vw & c.vr): n = max(n, 3 if p.dot else 2)
        if c.valu and c.dpp and (p.vw & c.vr): n = max(n, 2)
        if c.perml and (p.vw & c.vr): n = max(n, 2)
        if c.op.startswith(("v_readfirstlane", "v_readlane")) and (p.vw & c.vr): n = max(n, 1)
        if p.trans and c.valu and not c.trans and (p.vw & c.vr): n = max(n, 1)
        if p.trans and (c.vmem or c.ds) and (p.vw & c.vr): n = max(n, 1)
        if p.sw and c.valu and (p.sw & c.sr): n = max(n, 2)
        if p.sw and c.op.startswith(("v_readlane", "v_writelane")) and (p.sw & c.sr): n = max(n, 4)
        if p.sw and c.vmem and (p.sw & c.sr): n = max(n, 5)
        if p.sw and c.salu: pass
        if p.dot and (p.vw & (c.vr | c.vw)) and not (c.op == p.op and not (p.vw & (c.vr - c.vw - _regs(c.ops[-1], "v")))):
            n = max(n, 3)
        if "sdwa" in p.op and c.valu and (p.vw & c.vr): n = max(n, 1)
    if p.mfma:
        big = {4: 8, 8: 12}[p.passes]
        if c.mfma:
            if p.vw & c.ab: n = max(n, big)
            if p.vw & c.srcc and not (p.vw == c.srcc and p.passes == c.passes): n = max(n, {4: 6, 8: 10}[p.passes])
            if p.vw & c.vw and not (p.vw == c.srcc): n = max(n, big)
        elif c.valu or c.vmem or c.ds:
            if p.vw & (c.vr | c.vw): n = max(n, big)
            if c.valu and (p.srcc & c.vw): n = max(n, {4: 3, 8: 7}[p.passes])
    if p.store_data and (c.valu or c.mfma) and (p.store_data & c.vw): n = max(n, 2)
    if p.store_data and (c.vmem or c.ds) and (p.store_data & c.vw): n = max(n, 1)
    if p.salu and 124 in p.sw and c.lds_dma: n = max(n, 1)
    return n

class Asm:
    def __init__(self):
        self.lines = []
        self.hist = []
        self.pos = 0
        self.nops = 0
        self.ninstr = 0
        self.mute = False
        self.segs = {0: self.lines}
    def raw(self, text):
        self.lines.append(text)
    def label(self, name):
        if self.mute: return
        self.lines.append(name + ":")
    def __call__(self, text):
        if self.mute: return
        for ln in text.split("\n"):
            ln = ln.strip()
            if not ln: continue
            if ln.startswith(";") or ln.startswith("."):
                self.lines.append(ln); continue
            if ln.endswith(":"):
                self.lines.append(ln); continue
            ins = Ins(ln)
            req = 0
            for p, pos_after in self.hist[-24:]:
                k = need(p, ins)
                if k:
                    req = max(req, k - (self.pos - pos_after))
            if req > 0:
                self.lines.append(f"    s_nop {req-1}")
                self.pos += req
                self.nops += 1
            self.lines.append("    " + ln)
            self.pos += ins.states
            self.hist.append((ins, self.pos))
            self.ninstr += 1
    def seg(self, n):
        self.lines = self.segs.setdefault(n, [])
    def text(self):
        return "\n".join(ln for k in sorted(self.segs) for ln in self.segs[k]) + "\n"
```

```python
import sys, math, struct
sys.path.insert(0, "work")
from asmlib import Asm

NAME = "adaLN_cond__sliding_block_cached__glu_gated_reglu__decode"
OPT = dict(stamps=0, nt="nt", limit=20000, refresh=255, psleep=0, pf=3, pfnt="", smallnt="", slow=1, gtrg=0, gw=7, gmask=7, fpf=0, wo_after_c=0, fpfbar=1, fpfl="", uslocal=1, qn=4, trg=0, mb_at="kv", touch=0, ltouch=1, ahold=8, wqpf=0, wqpfl="", ehold=0, depth=0, ffn_first=0, ser=1, obar=1, gu_b1=0, dn_late=0, dn_p=0, diag=0, g_b1=0, wo_mb=1, h1at=0, depth_until=16, qpipe=1, s1=6, s2=1, sent=1, trgmax=24, dj=8, dm=10, kvbar=1, abl="")
for a in sys.argv[1:]:
    k, v = a.split("=")
    OPT[k] = int(v) if v.lstrip("-").isdigit() else v
STAMPS = OPT["stamps"]; NT = OPT["nt"] if OPT["nt"] != "-" else ""
LIMIT = OPT["limit"]; REFRESH = OPT["refresh"]; SNT = OPT["smallnt"]

def f32(x): return "0x%08x" % struct.unpack("<I", struct.pack("<f", x))[0]

TRG = 0x1000; H1G = 0x8000; QG = 0x10000; MGT = 0x20000
CLR = 0x100000
OG = CLR; MG = CLR + 0x20000; X4 = CLR + 0x30000; Y4 = CLR + 0x38000
G5 = CLR + 0x40000; SG = CLR + 0x5C000; ST5 = CLR + 0x5D000; US5 = CLR + 0x60000
Y6 = 0x180000; DBG = 0x400000
WS_BYTES = 0x800000
TAGC = 0x9E3779B9
VREG = 65536; PA = 131072; XL = 147456; QL = XL + 1024; PL = QL + 2048; MISC = PL + 2048
FG = 0; FD = 32768; YL0 = 131072
WQL = 0; WOL = 32768; PB = 65536; RED = XL + 1024
LDS_BYTES = MISC + 256
C1 = 128 ** -0.5 * math.log2(math.e)

A = Asm()
hdr = open(f"cdna_kernels/{NAME}.s.ref").read().split("\n")
for ln in hdr:
    if ln.startswith("; @launch"):
        A.raw(f"; @launch grid=(256,1,1) block=(512,1,1) lds={LDS_BYTES}")
        break
    A.raw(ln)
A.raw('.amdgcn_target "amdgcn-amd-amdhsa--gfx950"')
A.raw(f".text\n.globl {NAME}_kernel\n.p2align 8\n.type {NAME}_kernel,@function\n{NAME}_kernel:")

RA, RB, RW, RC, RD, RE, RF = "s[8:11]", "s[12:15]", "s[16:19]", "s[20:23]", "s[24:27]", "s[28:31]", "s[32:35]"
sTAG, sCNT, sT = "s36", "s37", "s45"
def STAMP(n):
    if STAMPS:
        A(f"s_memrealtime s[{64+2*n}:{65+2*n}]")
DPPM = "row_mask:0xf bank_mask:0xf"
lbl = [0]
def L(p):
    lbl[0] += 1
    return f"L_{p}_{lbl[0]}"
def srd(r, nbytes):
    b = int(r[2:r.index(":")])
    A(f"s_mov_b32 s{b+2}, {nbytes}\ns_mov_b32 s{b+3}, 0x00020000")
def kload(r, off):
    b = int(r[2:r.index(":")])
    A(f"s_load_dwordx2 s[{b}:{b+1}], s[0:1], {off}")

def SX(dst, const, *terms):
    first = True
    for t in terms:
        src, rs, w, ls = (t[0], 0, 0, t[1]) if len(t) == 2 else t
        d = dst if first else sT
        cur = src
        if w:
            if rs == 0: A(f"s_and_b32 {d}, {cur}, {(1<<w)-1}")
            else: A(f"s_bfe_u32 {d}, {cur}, {(w<<16)|rs:#x}")
            cur = d
        elif rs:
            A(f"s_lshr_b32 {d}, {cur}, {rs}"); cur = d
        if first:
            if ls: A(f"s_lshl_b32 {d}, {cur}, {ls}")
            elif cur != d: A(f"s_mov_b32 {d}, {cur}")
        else:
            if 1 <= ls <= 4: A(f"s_lshl{ls}_add_u32 {dst}, {cur}, {dst}")
            else:
                if ls: A(f"s_lshl_b32 {sT}, {cur}, {ls}"); cur = sT
                A(f"s_add_u32 {dst}, {dst}, {cur}")
        first = False
    if const: A(f"s_add_u32 {dst}, {dst}, {const:#x}")
def VX(dst, tmp, add, *terms):
    first = True
    for rs, w, ls in terms:
        if rs == 4 and w == 2: cur = "v1"
        elif rs == 0 and w == 4: cur = "v2"
        elif rs == 0 and w == 6: cur = "v0"
        else:
            d = f"v{dst}" if first else f"v{tmp}"
            if rs + w == 6: A(f"v_lshrrev_b32 {d}, {rs}, v0")
            elif rs == 0: A(f"v_and_b32 {d}, {(1<<w)-1}, v0")
            else: A(f"v_bfe_u32 {d}, v0, {rs}, {w}")
            cur = d
        if first:
            if ls: A(f"v_lshlrev_b32 v{dst}, {ls}, {cur}")
            elif cur != f"v{dst}": A(f"v_mov_b32 v{dst}, {cur}")
        else:
            if ls: A(f"v_lshl_or_b32 v{dst}, {cur}, {ls}, v{dst}")
            else: A(f"v_or_b32 v{dst}, {cur}, v{dst}")
        first = False
    if add: A(f"v_add_u32 v{dst}, {add}, v{dst}")

def await_any(load, valid, sleep):
    if not OPT["sent"]: return
    top, done = L("aw"), L("awd")
    A(f"s_mov_b32 {sCNT}, 0")
    A.label(top)
    load()
    A("s_waitcnt vmcnt(0)")
    valid()
    A(f"s_cbranch_vccnz {done}")
    A(f"s_sleep {sleep}\ns_add_u32 {sCNT}, {sCNT}, 1\ns_cmp_lt_u32 {sCNT}, 64\ns_cbranch_scc1 {top}")
    A.label(done)
def poll(loads, check, first_issued=False, first_wait=0, sleep=0):
    top, done, chk = L("poll"), L("got"), L("chk")
    A(f"s_mov_b32 {sCNT}, 0")
    if first_issued:
        A(f"s_waitcnt vmcnt({first_wait})")
        A(f"s_branch {chk}")
    A.label(top)
    loads()
    A("s_waitcnt vmcnt(0)")
    if first_issued:
        A.label(chk)
    check()
    A(f"s_cbranch_vccz {done}")
    if sleep: A(f"s_sleep {sleep}")
    A(f"s_add_u32 {sCNT}, {sCNT}, 1")
    A(f"s_and_b32 {sT}, {sCNT}, {REFRESH}\ns_cbranch_scc1 {top}")
    A("buffer_wbl2 sc1")
    A(f"s_cmp_lt_u32 {sCNT}, {LIMIT}\ns_cbranch_scc1 {top}")
    A.label(done)
def chk_empty4(r, tmp):
    A(f"v_max3_u32 v{tmp}, v{r}, v{r+1}, v{r+2}\nv_max_u32 v{tmp}, v{tmp}, v{r+3}\nv_cmp_eq_u32 vcc, -1, v{tmp}")
def pack4(src, pk, pk2, tmp):
    A(f"v_mov_b32_dpp v{tmp}, v{src} quad_perm:[1,1,3,3] {DPPM}")
    A(f"v_cvt_pk_bf16_f32 v{pk}, v{src}, v{tmp}")
    A(f"v_mov_b32_dpp v{pk2}, v{pk} quad_perm:[2,2,2,2] {DPPM}")
def setexec(lo, hi):
    A(f"s_mov_b32 exec_lo, {lo:#x}\ns_mov_b32 exec_hi, {hi:#x}")
def fullexec():
    A("s_mov_b64 exec, -1")
def mfma(d, a, b, c):
    cc = "0" if c is None else f"v[{c}:{c+3}]"
    A(f"v_mfma_f32_16x16x32_bf16 v[{d}:{d+3}], v[{a}:{a+3}], v[{b}:{b+3}], {cc}")
def rowsum(ds):
    for d in ds: A(f"v_add_f32 v{d}, v{d}, v{d+1}\nv_add_f32 v{d+2}, v{d+2}, v{d+3}")
    for d in ds: A(f"v_add_f32 v{d}, v{d}, v{d+2}")
def code_prefetch(tmp, dst):
    sk = L("npf")
    A(f"s_cmp_lt_u32 s3, 6\ns_cbranch_scc1 {sk}")
    A("s_and_b32 s38, s38, 0xffffff00")
    A(f"v_lshlrev_b32 v{tmp}, 7, v0")
    A(f"s_and_b32 s40, s3, 1\ns_lshl_b32 s40, s40, 13")
    A(f"v_add_u32 v{tmp}, s40, v{tmp}")
    if not OPT["pf"]: A(f"v_mov_b32 v{tmp}, 0")
    A(f"global_load_dword v{dst}, v{tmp}, s[38:39] {OPT['pfnt']}")
    A.label(sk)

wM, wQ, wO, wTR, T0, T1, T2, T3, vPF = 3, 4, 5, 6, 7, 8, 9, 10, 11
wC = 12; wXS = 13; wX = 16; wXO = 24; wWF = 40; wD = 56
def swz_chunk(dst):
    A(f"v_lshlrev_b32 v{dst}, 1, v1\nv_xor_b32 v{dst}, v0, v{dst}\nv_and_b32 v{dst}, 7, v{dst}\nv_lshlrev_b32 v{dst}, 4, v{dst}")
def unit_dma(srdr, s0, s1, base):
    A(f"s_add_u32 m0, s42, {base}")
    A(f"buffer_load_dwordx4 v{wM}, {srdr}, {s0} offen {NT} lds")
    A(f"s_add_u32 m0, s42, {base+8192}")
    A(f"buffer_load_dwordx4 v{wM}, {srdr}, {s1} offen {NT} lds")
def tr_setup():
    VX(wTR, 32, 0, (2, 4, 7), (3, 2, 5), (0, 2, 3))
    SX("s40", XL, ("s3", 0, 2, 8))
    VX(82, 32, "s40", (0, 6, 2))
    VX(83, 32, "s40", (2, 1, 7), (4, 2, 3))
def silu_operand(cnt):
    A(f"s_waitcnt vmcnt({cnt})")
    A(f"v_lshlrev_b32 v32, 16, v{wC}\nv_and_b32 v33, 0xffff0000, v{wC}")
    A(f"v_mul_f32 v34, {f32(-math.log2(math.e))}, v32\nv_mul_f32 v35, {f32(-math.log2(math.e))}, v33")
    A("v_exp_f32 v34, v34\nv_exp_f32 v35, v35")
    A("v_add_f32 v34, 1.0, v34\nv_add_f32 v35, 1.0, v35")
    A("v_rcp_f32 v34, v34\nv_rcp_f32 v35, v35")
    A("v_mul_f32 v32, v32, v34\nv_mul_f32 v33, v33, v35")
    A("v_cvt_pk_bf16_f32 v32, v32, v33")
    A("ds_write_b32 v82, v32")
    A("s_waitcnt lgkmcnt(0)")
    A(f"ds_read2_b64 v[{wXO}:{wXO+3}], v83 offset0:0 offset1:4\nds_read2_b64 v[{wXO+4}:{wXO+7}], v83 offset0:8 offset1:12")
def unit_pre(s_c0, s_c1, base):
    SX("s40", 0, ("s3", 0, 2, 5)); A(f"v_xor_b32 v112, s40, v{wTR}\nv_add_u32 v112, {base}, v112")
    for i in range(4):
        A(f"v_mov_b32 v{wD+i}, {s_c0}\nv_mov_b32 v{wD+4+i}, {s_c1}")
def unit_go():
    if STAMPS: A("s_waitcnt lgkmcnt(0)")
    for k in range(2):
        for seg in range(2):
            for h in range(2):
                r = wWF + seg*8 + k*4 + h*2
                A(f"ds_read_b64_tr_b16 v[{r}:{r+1}], v112 offset:{seg*8192 + k*4096 + h*2048}")
    for k in range(2):
        for seg in range(2):
            A(f"s_waitcnt lgkmcnt({6 - 4*k - 2*seg})")
            mfma(wD + 4*seg, wXO + 4*k, wWF + seg*8 + k*4, wD + 4*seg)
def unit_mfma(s_c0, s_c1, base):
    unit_pre(s_c0, s_c1, base); unit_go()
def tagged_loads(r, va, so):
    A(f"buffer_load_dwordx4 v[{r}:{r+3}], v{va}, {RW}, {so} offen sc1")
    A(f"buffer_load_dwordx4 v[{r+4}:{r+7}], v{va}, {RW}, {so} offen offset:1024 sc1")
def tagged_chk(rs, tmp, extra=None):
    tags = [r + i for r in rs for i in (1, 3, 5, 7)] + ([extra] if extra else [])
    A(f"v_xor_b32 v{tmp}, {sTAG}, v{tags[-1]}")
    for t in tags[:-1]:
        A(f"v_bitop3_b32 v{tmp}, v{t}, {sTAG}, v{tmp} bitop3:0xbe")
    A(f"v_cmp_ne_u32 vcc, 0, v{tmp}")
def tagged_pack(r):
    A(f"v_mov_b32 v{r+1}, v{r+2}\nv_mov_b32 v{r+2}, v{r+4}\nv_mov_b32 v{r+3}, v{r+6}")
def sum8(dst, r):
    A(f"v_add_f32 v32, v{r}, v{r+1}\nv_add_f32 v33, v{r+2}, v{r+3}\nv_add_f32 v34, v{r+4}, v{r+5}\nv_add_f32 v35, v{r+6}, v{r+7}")
    A(f"v_add_f32 v32, v32, v33\nv_add_f32 v34, v34, v35\nv_add_f32 v{dst}, v32, v34")

STAMP(0)
A("s_cmp_ge_u32 s2, 256\ns_cbranch_scc1 L_end")
A("s_cmp_ge_u32 s2, 128\ns_cselect_b32 s40, 24, 8")
A("s_load_dwordx2 s[8:9], s[0:1], s40")
kload(RC, 80); kload(RW, 104)
A("v_readfirstlane_b32 s3, v0")
A("s_getpc_b64 s[38:39]")
A("v_and_b32 v0, 63, v0")
A("s_mov_b32 s11, 0x00020000")
A("v_lshrrev_b32 v1, 4, v0")
A("v_and_b32 v2, 15, v0")
A("s_cbranch_scc1 L_W")
def ids():
    A("s_and_b32 s4, s2, 7\ns_bfe_u32 s6, s2, 0x10006\ns_bfe_u32 s7, s2, 0x30003")
def ids2():
    A("s_lshr_b32 s3, s3, 6\ns_bfe_u32 s5, s2, 0x40003\ns_lshl1_add_u32 s58, s4, s6")
    if STAMPS:
        for i in range(2, 16): A(f"s_mov_b32 s{64+2*i}, 0")
    srd(RW, WS_BYTES)

vE, vO, vQO = 120, 121, 122
vKA = 108
vQ = 14
vKF = 16
vVF = 48
vQF = 80
vS = 96
vP = 104
vOA = 108
vST = 114
vOAD, vSAD = 116, 117
kload(RB, 16); kload(RE, 72)
if OPT["wqpf"]: kload(RF, 24)
ids()
A(f"v_lshlrev_b32 v{T3}, 1, v1\nv_xor_b32 v{T3}, v2, v{T3}\nv_lshlrev_b32 v{T3}, 4, v{T3}")
A(f"v_lshl_or_b32 v{vE}, v1, 8, v{T3}\nv_xor_b32 v{vO}, 0x80, v{vE}")
A(f"v_and_b32 v{T1}, 0x70, v{T3}\nv_lshrrev_b32 v{T0}, 3, v0")
A("s_lshl_b32 s43, s3, 7\ns_mov_b32 s10, 33554432")
SX("s56", 6144*256, ("s6", 24), ("s4", 21), ("s7", 16), ("s43", 0))
A("s_add_u32 s57, s56, 4096")
srd(RB, 33554432)
if OPT["wqpf"]:
    srd(RF, 4194304)
    A(f"v_lshl_or_b32 v{wQ}, v{T0}, 13, v{T1}")
    SX("s44", 0, ("s6", 21), ("s3", 12 if OPT["wqpf"] == 1 else 11), ("s4", 10), ("s7", 7))
ids2()
if STAMPS: A("s_mov_b32 s66, 0")
def kv_dma(u):
    r = RA if u < 8 else RB
    A(f"buffer_load_dwordx4 v{vE if u%2==0 else vO}, {r}, {'s56' if u%8 < 4 else 's57'} offen offset:{(u%4)*1024} {NT} lds")
A("s_waitcnt lgkmcnt(0)")
if "noKV" in OPT["abl"]: A("s_branch L_exit")
if OPT["pf"] == 3:
    A("s_and_b32 s38, s38, 0xffffff00")
    SX("s40", 0, ("s5", 10), ("s3", 7))
    A("s_load_dword s41, s[38:39], s40")
A(f"s_load_dword {sTAG}, s[16:17], 0")
if OPT["wqpf"] == 1:
    sk = L("npq")
    A(f"s_cmp_ge_u32 s4, 4\ns_cbranch_scc1 {sk}")
    for u in range(4):
        if u: A(f"s_add_u32 s44, s44, {8*8192}")
        A(f"buffer_load_dwordx4 v[16:19], v{wQ}, {RF}, s44 offen {OPT['wqpfl']}")
    if OPT["ehold"]: A("s_waitcnt vmcnt(0)")
    else: A("s_barrier")
    A.label(sk)
if OPT["wqpf"] == 2:
    for u in range(2):
        if u: A(f"s_add_u32 s44, s44, {8*8192}")
        A(f"buffer_load_dwordx4 v[16:19], v{wQ}, {RF}, s44 offen {OPT['wqpfl']}")
    if OPT["ehold"]: A("s_waitcnt vmcnt(0)")
    else: A("s_barrier")
MBK = OPT["mb_at"] == "kv"
A.mute = not MBK
sk = L("nmu")
A(f"s_cmp_ge_u32 s4, 4\ns_cbranch_scc1 {sk}")
A(f"v_mul_u32_u24 v{wM}, 6144, v{T0}\nv_add_u32 v{wM}, v{wM}, v{T1}")
srd(RC, 3145728); srd(RE, 2048)
SX("s51", 0, ("s7", 6), ("s3", 3))
A("s_mul_i32 s51, s51, 6144\ns_lshl_b32 s42, s3, 10\ns_lshl_b32 s46, s7, 7")
SX("s40", 2048, ("s58", 8)); A("s_add_u32 s51, s51, s40")
for j, o in enumerate((0, 128, 2048, 2048+128)):
    A(f"s_add_u32 m0, s42, {VREG + j*8192 - o}")
    A(f"buffer_load_dwordx4 v{wM}, {RC}, s51 offen offset:{o} {NT} lds")
VX(T2, T3, 0, (5, 1, 10), (0, 5, 2))
A(f"buffer_load_dword v{wC}, v{T2}, {RE}, s46 offen {SNT}")
A.label(sk)
A.mute = False
if OPT["pf"] == 1: code_prefetch(T2, vPF)
A("s_mov_b32 m0, s43")
for u in range(8):
    if u == 4: A("s_add_u32 m0, m0, 4096")
    kv_dma(u)
    if u == 0 and OPT["slow"] == 1: A("s_waitcnt vmcnt(0)")
A("s_waitcnt lgkmcnt(0)")
A(f"s_add_u32 {sTAG}, {sTAG}, {TAGC:#x}")
GT = OPT["gtrg"]
if GT:
    SX("s60", TRG, ("s4", 7))
    SX("s40", 0, ("s5", 3), ("s3", 0))
    A(f"s_cmp_eq_u32 s40, {120 + OPT['gw']}\ns_cselect_b32 s40, 0, 0x7ffffff0")
    A(f"v_mov_b32 v126, {sTAG}\nv_mov_b32 v127, s40")
A.mute = not MBK
sk = L("nmb")
A(f"s_cmp_ge_u32 s4, 4\ns_cbranch_scc1 {sk}")
tr_setup()
VX(39, 32, 0, (5, 1, 12), (4, 1, 6), (2, 2, 4))
SX("s53", MGT, ("s58", 13), ("s3", 2, 0, 16), ("s3", 0, 2, 10), ("s46", 0))
SX("s40", 0, ("s58", 2, 0, 3), ("s3", 2, 0, 4), ("s7", 0))
A("s_cmp_eq_u32 s40, 16\ns_cselect_b32 s54, 1.0, 0")
SX("s41", VREG, ("s3", 2, 0, 14))
unit_pre("s54", "s54", "s41")
silu_operand(8)
A(f"v_mov_b32 v{wD+9}, {sTAG}\nv_mov_b32 v{wD+11}, {sTAG}")
A("s_waitcnt lgkmcnt(0)\ns_barrier")
unit_go()
A("s_barrier")
A("v_cmp_gt_u32 vcc, 32, v0")
A(f"v_cndmask_b32 v32, v{wD+4}, v{wD}, vcc")
pack4(32, wD+8, wD+10, 33)
setexec(0x11111111, 0x11111111)
A(f"buffer_store_dwordx4 v[{wD+8}:{wD+11}], v39, {RW}, s53 offen sc1")
fullexec()
STAMP(9)
A.label(sk)
A.mute = False
A(f"s_add_u32 m0, m0, {VREG-4096}")
for u in range(8, 16):
    if u == 12: A("s_add_u32 m0, m0, 4096")
    if GT and u == GT: A(f"buffer_store_dword v126, v127, {RW}, s60 offen sc1")
    kv_dma(u)
STAMP(2)
if STAMPS == 4:
    sk = L("dg")
    SX("s40", 0, ("s2", 3, 0, 3), ("s3", 0))
    A(f"s_cmp_lg_u32 s40, 0\ns_cbranch_scc1 {sk}")
    SX("s40", 0x2000, ("s2", 2))
    A("s_waitcnt lgkmcnt(0)\nv_mov_b32 v16, s64\nv_mov_b32 v17, 0")
    A(f"buffer_store_dword v16, v17, {RW}, s40 offen sc1")
    A("s_waitcnt vmcnt(0)")
    A.label(sk)
if OPT["abl"]:
    A("s_waitcnt vmcnt(0)")
    STAMP(4)
    A("s_branch L_exit")
kload(RC, 48); kload(RD, 56); kload(RE, 64)
FF = OPT["ffn_first"]
if FF: FG = VREG; FD = VREG + 32768
wG, wDO, fMF = 124, 125, 123
A(f"v_mul_u32_u24 v{wG}, 3584, v{T0}\nv_add_u32 v{wG}, v{wG}, v{T1}\nv_lshl_or_b32 v{wDO}, v{T0}, 10, v{T1}")
A("s_cmp_lt_u32 s4, 7")
A("s_cselect_b32 s22, 1835008, 0\ns_cselect_b32 s26, 1835008, 0\ns_cselect_b32 s30, 1835008, 0")
A("s_mov_b32 s23, 0x00020000\ns_mov_b32 s27, 0x00020000\ns_mov_b32 s31, 0x00020000")
SX("s63", 0, ("s4", 4), ("s5", 0))
SX("s49", 0, ("s63", 0, 2, 7), ("s3", 4))
A("s_mul_i32 s49, s49, 3584")
SX("s50", 0, ("s63", 2, 0, 7))
A(f"s_add_u32 s49, s49, s50\ns_add_u32 s50, s49, {8*3584-1024}")
SX("s51", 0, ("s63", 14), ("s3", 7))
A(f"s_add_u32 s52, s51, {8*1024-1024}")
A("s_lshl_b32 s42, s3, 11")
def g_dma():
    A(f"s_add_u32 m0, s42, {FG}")
    A(f"buffer_load_dwordx4 v{wG}, {RC}, s49 offen {NT} lds")
    A(f"buffer_load_dwordx4 v{wG}, {RC}, s50 offen offset:1024 {NT} lds")
def u_dma():
    A(f"s_add_u32 m0, s42, {FG+16384}")
    A(f"buffer_load_dwordx4 v{wG}, {RD}, s49 offen {NT} lds")
    A(f"buffer_load_dwordx4 v{wG}, {RD}, s50 offen offset:1024 {NT} lds")
def gu_dma():
    g_dma(); u_dma()
def dn_dma():
    A(f"s_add_u32 m0, s42, {FD}")
    A(f"buffer_load_dwordx4 v{wDO}, {RE}, s51 offen {NT} lds")
    A(f"buffer_load_dwordx4 v{wDO}, {RE}, s52 offen offset:1024 {NT} lds")
def ffn_dma():
    gu_dma(); dn_dma()
GB1 = OPT["gu_b1"] and OPT["ser"] and not FF
SX("s44", QG, ("s58", 12), ("s3", 10))
vQ = 100
A(f"v_lshlrev_b32 v{vQO}, 4, v0")
VX(fMF, T2, 0, (0, 3, 7), (3, 1, 6), (4, 2, 4))
SX("s59", MGT + 2*32768, ("s63", 0, 2, 13), ("s3", 0, 2, 11))
SX("s40", 0, ("s3", 2, 0, 15)); A("s_sub_u32 s59, s59, s40")
VX(T2, 0, 0, (0, 3, 1))
A(f"v_xor_b32 v{T2}, v1, v{T2}\nv_lshlrev_b32 v{T2}, 4, v{T2}\nv_lshl_or_b32 v{T2}, v2, 8, v{T2}")
A(f"v_add_u32 v{vKA}, s43, v{T2}")
for t in range(1, 4):
    A(f"v_xor_b32 v{vKA+t}, {t*64:#x}, v{vKA}")
vQW, vQR, vVR, vMX, vPW, vPR, vMW = 3, 4, 5, 6, 12, 13, 112
SX("s40", QL, ("s3", 5))
VX(vQW, T2, "s40", (1, 4, 7), (5, 1, 4), (0, 1, 3))
VX(vQR, T2, QL, (4, 2, 7), (0, 3, 4))
A(f"v_bfe_u32 v{T0}, v0, 2, 3\nv_xor_b32 v{T0}, s3, v{T0}")
VX(vVR, T2, VREG, (2, 4, 8), (0, 2, 3))
A(f"v_lshl_or_b32 v{vVR}, v{T0}, 5, v{vVR}")
VX(vMX, T2, MISC, (0, 2, 5))
A(f"s_lshl_b32 s40, s3, 2\nv_add_u32 v{vMW}, s40, v{vMX}")
VX(vPR, T2, PL, (4, 2, 6), (0, 2, 4))
A(f"s_lshl_b32 s40, s3, 8\nv_add_u32 v{vPW}, s40, v{vPR}")
VX(vOAD, T2, 0, (0, 2, 12), (4, 2, 4))
SX("s53", OG, ("s4", 14), ("s3", 1, 0, 10), ("s5", 6), ("s3", 0, 1, 3))
VX(vSAD, T2, 0, (0, 2, 7))
SX("s54", SG, ("s4", 9), ("s5", 3))
A(f"s_mov_b32 s55, {f32(C1)}")
fWF = 128 if FF else 84
fDF = 144 if FF else 64
def ffn_frag_addr(wr, ta, tr):
    VX(tr, 32, 0, (2, 4, 7), (3, 2, 5), (0, 2, 3))
    SX("s40", 0, ("s3", 0, 2, 5)); A(f"v_xor_b32 v{wr}, s40, v{tr}")
    SX("s40", FG, ("s3", 2, 0, 14)); A(f"v_add_u32 v{wr}, s40, v{wr}")
    A(f"s_add_u32 s40, s42, {FD}\nv_add_u32 v{ta}, s40, v{tr}")
    for t in range(1, 4):
        A(f"v_xor_b32 v{ta+t}, {t*32:#x}, v{ta}")
def w_frags(wr):
    for k in range(4):
        for h in range(2):
            r = fWF + 4*k + 2*h
            A(f"ds_read_b64_tr_b16 v[{r}:{r+1}], v{wr} offset:{k*4096 + h*2048}")
def d_frags(ta):
    for tau in range(4):
        A(f"ds_read_b64_tr_b16 v[{fDF+2*tau}:{fDF+2*tau+1}], v{ta+tau}")
A(f"s_waitcnt vmcnt({9 if GT > 8 else 8})")
for T in range(2):
    for t in range(4):
        r = vKF + (T*4+t)*4
        A(f"ds_read_b128 v[{r}:{r+3}], v{vKA+t} offset:{T*4096}")
sk = L("nqp")
A(f"s_cmp_ge_u32 s3, 4\ns_cbranch_scc1 {sk}")
def q_load():
    A(f"buffer_load_dwordx4 v[{vQ}:{vQ+3}], v{vQO}, {RW}, s44 offen sc1")
def q_chk():
    A(f"v_xor_b32 v{T0}, {sTAG}, v{vQ+1}\nv_bitop3_b32 v{T0}, v{vQ+3}, {sTAG}, v{T0} bitop3:0xbe\nv_cmp_ne_u32 vcc, 0, v{T0}")
poll(q_load, q_chk, sleep=OPT['s2'])
STAMP(4)
A(f"v_mov_b32 v{vQ+1}, v{vQ+2}")
A(f"ds_write_b64 v{vQW}, v[{vQ}:{vQ+1}]")
A.label(sk)
A(f"s_waitcnt {'vmcnt(0) ' if OPT['ser'] else ''}lgkmcnt(0)\ns_barrier")
STAMP(5)
for t in range(4):
    A(f"ds_read_b128 v[{vQF+4*t}:{vQF+4*t+3}], v{vQR} offset:{t*512}")
if GB1: gu_dma()
if OPT["g_b1"]: g_dma()
A("s_waitcnt lgkmcnt(0)")
def v_tr(kb, T):
    r = vVF + kb*4 + T*2
    A(f"ds_read_b64_tr_b16 v[{r}:{r+1}], v{vVR} offset:{(32*kb+16*T)*256}")
EARLY_T = [0, 1] if OPT['ser'] else []
for kb in range(8):
    if kb < 4:
        for T in range(2):
            mfma(vS + 4*T, vKF + (T*4+kb)*4, vQF + 4*kb, None if kb == 0 else vS + 4*T)
    for T in EARLY_T: v_tr(kb, T)
for i in range(8):
    A(f"v_add_f32_dpp v{vS+i}, v{vS+i}, v{vS+i} row_ror:4 {DPPM}")
A(f"v_max3_f32 v{T0}, v{vS}, v{vS+1}, v{vS+2}\nv_max3_f32 v{T2}, v{vS+3}, v{vS+4}, v{vS+5}")
A(f"v_max3_f32 v{T0}, v{T0}, v{vS+6}, v{vS+7}\nv_max_f32 v{T3}, v{T0}, v{T2}\nv_max_f32 v{T0}, v{T0}, v{T2}")
A(f"v_permlane32_swap_b32 v{T0}, v{T3}")
A(f"v_max_f32 v{T2}, v{T0}, v{T3}\nv_max_f32 v{T0}, v{T0}, v{T3}")
A(f"v_permlane16_swap_b32 v{T0}, v{T2}")
A(f"v_max_f32 v{T0}, v{T0}, v{T2}")
A(f"ds_write_b32 v{vMW}, v{T0}")
STAMP(14)
if OPT["dn_p"] == 2: dn_dma()
if OPT["dn_p"] == 3: u_dma()
A("s_waitcnt lgkmcnt(0)\ns_barrier")
A(f"ds_read_b128 v[{vQF}:{vQF+3}], v{vMX}\nds_read_b128 v[{vQF+4}:{vQF+7}], v{vMX} offset:16")
A("s_waitcnt lgkmcnt(0)")
A(f"v_max3_f32 v{T0}, v{vQF}, v{vQF+1}, v{vQF+2}\nv_max3_f32 v{T2}, v{vQF+3}, v{vQF+4}, v{vQF+5}")
A(f"v_max3_f32 v{T0}, v{T0}, v{vQF+6}, v{vQF+7}\nv_max_f32 v{T0}, v{T0}, v{T2}")
A(f"v_mul_f32 v{vST}, s55, v{T0}")
for i in range(8):
    A(f"v_fma_f32 v{vS+i}, v{vS+i}, s55, -v{vST}")
for i in range(8):
    A(f"v_exp_f32 v{vS+i}, v{vS+i}")
for i in range(4):
    A(f"v_cvt_pk_bf16_f32 v{vP+i}, v{vS+2*i}, v{vS+2*i+1}")
A(f"ds_write_b128 v{vPW}, v[{vP}:{vP+3}]")
rowsum([vS, vS+4])
A(f"v_add_f32 v{T0}, v{vS}, v{vS+4}\nv_add_f32 v{T3}, v{vS}, v{vS+4}")
A(f"v_permlane32_swap_b32 v{T0}, v{T3}")
A(f"v_add_f32 v{T2}, v{T0}, v{T3}\nv_add_f32 v{T0}, v{T0}, v{T3}")
A(f"v_permlane16_swap_b32 v{T0}, v{T2}")
A(f"v_add_f32 v{T0}, v{T0}, v{T2}")
A(f"ds_write_b32 v{vMW}, v{T0} offset:128")
if OPT["dn_p"] == 3: dn_dma()
A("s_waitcnt lgkmcnt(0)\ns_barrier")
STAMP(3)
if STAMPS: A("s_waitcnt lgkmcnt(0)")
LATE_T = [T for T in range(2) if T not in EARLY_T]
A(f"ds_read_b128 v[{vQF}:{vQF+3}], v{vMX} offset:128\nds_read_b128 v[{vQF+4}:{vQF+7}], v{vMX} offset:144")
for kb in range(8):
    r = vKF + kb*4
    A(f"ds_read_b128 v[{r}:{r+3}], v{vPR} offset:{kb*256}")
def st_pub(vm=None):
    sk = L("nst"); sk2 = L("nsu")
    A(f"s_cmp_lg_u32 s3, 0\ns_cbranch_scc1 {sk}")
    A("s_waitcnt lgkmcnt(8)")
    rowsum([vQF, vQF+4])
    A(f"v_add_f32 v{vST+1}, v{vQF}, v{vQF+4}")
    A("s_mov_b64 exec, 15")
    A(f"buffer_store_dwordx2 v[{vST}:{vST+1}], v{vSAD}, {RW}, s54 offen")
    fullexec()
    if vm is not None:
        A(f"s_waitcnt vmcnt({vm})\ns_branch {sk2}")
    A.label(sk)
    if vm is not None:
        A(f"s_waitcnt vmcnt({vm-1})")
        A.label(sk2)
if LATE_T:
    st_pub(1)
    A("s_waitcnt lgkmcnt(0)\ns_barrier")
    STAMP(6)
    if STAMPS: A("s_waitcnt lgkmcnt(0)")
    per = len(LATE_T)
    AHEAD = 8 if per == 1 else 6
    for kb in range(AHEAD):
        for T in LATE_T: v_tr(kb, T)
    for kb in range(8):
        A(f"s_waitcnt lgkmcnt({(min(8, AHEAD + kb) - kb - 1) * per})")
        mfma(vOA, vVF + kb*4, vKF + kb*4, None if kb == 0 else vOA)
        if AHEAD + kb < 8:
            for T in LATE_T: v_tr(AHEAD + kb, T)
else:
    st_pub()
    if OPT["dn_p"] == 1: dn_dma()
    for kb in range(8):
        A(f"s_waitcnt lgkmcnt({7-kb})")
        mfma(vOA, vVF + kb*4, vKF + kb*4, None if kb == 0 else vOA)
setexec(0x000f000f, 0x000f000f)
A(f"v_cvt_pk_bf16_f32 v{vP}, v{vOA}, v{vOA+1}\nv_cvt_pk_bf16_f32 v{vP+1}, v{vOA+2}, v{vOA+3}")
A(f"buffer_store_dwordx2 v[{vP}:{vP+1}], v{vOAD}, {RW}, s53 offen")
fullexec()
STAMP(7)
A("s_cmp_lt_u32 s4, 7\ns_cbranch_scc1 L_ffn")
A("s_cmp_lg_u32 s3, 0\ns_cbranch_scc1 L_exit")
VX(T1, T2, 0, (3, 1, 14), (0, 3, 11))
A(f"s_mov_b32 s46, {X4 + 7*128:#x}")
poll(lambda: A(f"buffer_load_dword v16, v{T1}, {RW}, s46 offen sc1"), lambda: A(f"v_cmp_eq_u32 vcc, -1, v16"), sleep=8)
A("s_branch L_exit")
A.label("L_ffn")
def mf_loads():
    tagged_loads(16, fMF, "s59")
SX("s55", ST5, ("s4", 8))
SX("s53", G5, ("s63", 10))
A(f"s_add_u32 s54, s53, {US5-G5}")
if OPT["ltouch"]:
    sk = L("nlt")
    A(f"s_cmp_lg_u32 s3, 7\ns_cbranch_scc1 {sk}")
    A(f"buffer_load_dwordx4 v[28:31], v{vQO}, {RW}, s53 offen sc1")
    A(f"buffer_load_dwordx4 v[28:31], v{vQO}, {RW}, s54 offen sc1")
    A(f"buffer_load_dword v28, v{vSAD}, {RW}, s55 offen sc1")
    A.label(sk)
mf_loads()
DL = OPT["dn_late"]
NF = 0
if not GB1 and OPT["dn_p"] != 3:
    if OPT["obar"]: A("s_barrier")
    if not OPT["g_b1"]:
        g_dma(); NF += 2
    u_dma(); NF += 2
if not DL and not OPT["dn_p"]:
    if GB1 and OPT["obar"]: A("s_barrier")
    dn_dma(); NF += 2
fYW, fYR, fWR, fGA, fGR, fSTA, fY6A = 113, 114, 115, 116, 118, 119, 120
fG, fU, fS = 121, 122, 117
wOF, wTA = fMF, 108
if not FF: ffn_frag_addr(fWR, wTA, wTR)
A("s_lshr_b32 s56, s3, 2\ns_and_b32 s57, s3, 3")
VX(fYR, 32, YL0, (0, 6, 4))
A(f"s_lshl_b32 s40, s3, 10\nv_add_u32 v{fYW}, s40, v{fYR}")
VX(fGA, 32, 0, (0, 6, 2))
SX("s61", G5 - 64, ("s63", 2, 0, 12), ("s57", 10), ("s63", 0, 2, 8), ("s56", 7))
A(f"s_add_u32 s62, s61, {US5-G5}")
VX(fGR, 32, 0, (2, 1, 7), (3, 1, 6), (4, 2, 4), (0, 2, 2))
VX(fSTA, 32, 0, (0, 3, 5), (3, 1, 4))
VX(fY6A, 32, 0, (3, 1, 14), (5, 1, 12), (4, 1, 4))
SX("s47", Y4, ("s56", 14), ("s63", 0, 2, 12), ("s57", 10))
SX("s96", Y6, ("s3", 16), ("s63", 5))
A("s_add_u32 s97, s96, 8192\ns_add_u32 s98, s96, 32768\ns_add_u32 s99, s96, 40960")
A(f"s_mov_b32 s41, {f32(1.0/512)}\ns_mov_b32 s43, {f32(1e-5)}")
poll(mf_loads, lambda: tagged_chk([16], 33), first_issued=True, first_wait=NF, sleep=4)
tagged_pack(16)
A(f"ds_write_b128 v{fYW}, v[16:19]")
A("s_waitcnt vmcnt(0) lgkmcnt(0)\ns_barrier")
STAMP(10)
def y_load():
    A(f"buffer_load_dwordx4 v[76:79], v{wOF}, {RW}, s47 offen sc1")
y_load()
if DL: dn_dma()
YO = [16, 20, 24, 28, 32, 36, 100, 104]
if not FF: w_frags(fWR)
for u in range(8):
    A(f"ds_read_b128 v[{YO[u]}:{YO[u]+3}], v{fYR} offset:{u*1024}")
A("s_waitcnt lgkmcnt(0)")
for k in range(4):
    for pi in range(2):
        mfma(wD + 4*pi, YO[4*pi+k], fWF + 4*k, None if k == 0 else wD + 4*pi)
rowsum([wD, wD+4])
A(f"v_permlane16_swap_b32 v{wD}, v{wD+4}")
A(f"v_add_f32 v{wD+1}, v{wD}, v{wD+4}\nv_add_f32 v{wD}, v{wD}, v{wD+4}")
A(f"v_permlane16_swap_b32 v{wD}, v{wD+1}")
A(f"v_cvt_pk_bf16_f32 v126, v{wD}, v{wD+1}")
setexec(0xffff0000, 0x0000ffff)
A(f"buffer_store_dword v126, v{fGA}, {RW}, s62 offen {'' if OPT['uslocal'] else 'sc1'}")
fullexec()
STAMP(1)
def us_loads():
    for k in range(4):
        A(f"buffer_load_dword v{40+k}, v{fGR}, {RW}, s54 offen offset:{256*k} sc1")
if not DL: d_frags(wTA)
poll(y_load, lambda: chk_empty4(76, 33), first_issued=True, first_wait=3 if DL else 1)
STAMP(11)
A(f"ds_write_b128 v{fYW}, v[76:79] offset:8192")
us_loads()
A("s_waitcnt lgkmcnt(0)\ns_barrier")
for u in range(8):
    A(f"ds_read_b128 v[{YO[u]}:{YO[u]+3}], v{fYR} offset:{8192+u*1024}")
for u in range(8):
    A(f"s_waitcnt lgkmcnt({7-u})")
    mfma(wD, YO[u], fWF + 4*(u & 3), None if u == 0 else wD)
A(f"v_add_f32 v{wD}, v{wD}, v{wD+1}\nv_add_f32 v{wD+2}, v{wD+2}, v{wD+3}")
A(f"v_add_f32 v{wD+1}, v{wD}, v{wD+2}\nv_add_f32 v{wD}, v{wD}, v{wD+2}")
A(f"v_permlane16_swap_b32 v{wD}, v{wD+1}")
A(f"v_add_f32 v{fG}, v{wD}, v{wD+1}")
def g_store(fl):
    setexec(0xffff0000, 0x0000ffff)
    A(f"buffer_store_dword v{fG}, v{fGA}, {RW}, s61 offen {fl}")
g_store("")
fullexec()
STAMP(12)
def g_loads():
    A(f"buffer_load_dwordx4 v[24:27], v{fSTA}, {RW}, s55 offen sc1")
    for k in range(4):
        A(f"buffer_load_dword v{20+k}, v{fGR}, {RW}, s53 offen offset:{256*k} sc1")
poll(us_loads, lambda: chk_empty4(40, 33), first_issued=True, first_wait=1)
g_loads()
if DL: d_frags(wTA)
for k in range(4):
    A(f"v_lshlrev_b32 v{44+k}, 16, v{40+k}\nv_and_b32 v{40+k}, 0xffff0000, v{40+k}")
rowsum([44, 40])
A(f"v_mov_b32 v{fU}, v44\nv_mov_b32 v{fS}, v40")
def g_chk():
    A("v_add_f32 v24, v24, v26\nv_add_f32 v25, v25, v27")
    A("v_add_f32 v20, v20, v21\nv_add_f32 v22, v22, v23")
    A(f"v_add_f32_dpp v24, v24, v24 quad_perm:[1,0,3,2] {DPPM}\nv_add_f32_dpp v25, v25, v25 quad_perm:[1,0,3,2] {DPPM}")
    A("v_add_f32 v20, v20, v22")
    A(f"v_add_f32_dpp v24, v24, v24 quad_perm:[2,3,0,1] {DPPM}\nv_add_f32_dpp v25, v25, v25 quad_perm:[2,3,0,1] {DPPM}")
    A("v_add_f32 v26, v24, v25")
    A("v_cmp_u_f32 vcc, v20, v26")
poll(g_loads, g_chk, first_issued=True)
STAMP(13)
A(f"v_add_f32_dpp v24, v24, v24 row_half_mirror {DPPM}\nv_add_f32_dpp v25, v25, v25 row_half_mirror {DPPM}")
A("v_mov_b32 v26, s43")
A("v_mul_f32 v24, s41, v24")
A("v_fmac_f32 v26, s41, v25")
A("v_fma_f32 v26, -v24, v24, v26")
A(f"v_fma_f32 v20, -v24, v{fU}, v20")
A("v_rsq_f32 v26, v26")
A(f"v_fma_f32 v20, v20, v26, v{fS}")
A("v_max_f32 v21, 0, v20")
A(f"v_mul_f32_dpp v22, v20, v21 row_shl:4 {DPPM}")
pack4(22, 24, 25, 23)
if DL: A("s_waitcnt lgkmcnt(0)")
for tau in range(4):
    d = 32 + 4*tau
    A(f"v_mfma_f32_16x16x16_bf16 v[{d}:{d+3}], v[{fDF+2*tau}:{fDF+2*tau+1}], v[24:25], 0")
setexec(0x01010101, 0x01010101)
for tau in range(4):
    d = 32 + 4*tau
    A(f"buffer_store_dwordx4 v[{d}:{d+3}], v{fY6A}, {RW}, s{96+tau} offen sc1")
STAMP(8)
A("s_waitcnt vmcnt(0)")
g_store("sc1")
if OPT["uslocal"]: A(f"buffer_store_dword v126, v{fGA}, {RW}, s62 offen sc1")
A("s_branch L_exit")

A(".p2align 6")
A.label("L_W")
kload(RE, 72); kload(RD, 0)
ids()
swz_chunk(T1)
A(f"v_lshrrev_b32 v{T0}, 3, v0")
A("s_lshl_b32 s46, s7, 7")
def w_common():
    kload(RB, 32); kload(RF, 88)
    A(f"s_load_dword {sTAG}, s[16:17], 0")
    ids2()
    A(f"v_lshl_or_b32 v{wO}, v{T0}, 10, v{T1}")
    srd(RB, 4194304); srd(RD, 2048)
def wq_setup(sh):
    A(f"v_lshl_or_b32 v{wQ}, v{T0}, 13, v{T1}")
    A("s_mov_b32 s10, 4194304")
    A(f"s_lshl_b32 s48, s3, {12-sh}")
    SX("s43", 0, ("s6", 8), ("s48", 7, 0, 0))
    SX("s44", 0, ("s43", 13), ("s4", 10), ("s46", 0))
def wq_dma():
    A(f"s_add_u32 m0, s48, {WQL}")
    for u in range(4):
        if u: A(f"s_add_u32 s44, s44, {8*8192-1024}")
        A(f"buffer_load_dwordx4 v{wQ}, {RA}, s44 offen offset:{u*1024} {NT} lds")
def c_setup():
    VX(T2, T3, 0, (5, 1, 10), (0, 5, 2))
    srd(RE, 2048)
A("s_cmp_ge_u32 s4, 4\ns_cbranch_scc1 L_nA")
A("s_lshl1_add_u32 s49, s4, s6\ns_lshl_b32 s49, s49, 7")
A("s_cmp_lt_u32 s3, 256\ns_cbranch_scc1 L_A1")
A(f"v_mul_u32_u24 v{wM}, 6144, v{T0}\nv_add_u32 v{wM}, v{wM}, v{T1}")
srd(RC, 3145728)
A("s_sub_u32 s40, s3, 256")
SX("s61", 0, ("s7", 6), ("s40", 2, 0, 0))
A(f"s_mul_i32 s61, s61, 6144\ns_add_u32 s61, s61, s49\ns_add_u32 s62, s61, {8*6144-1024}")
A(f"s_lshl_b32 s40, s40, 5\ns_add_u32 m0, s40, {PA}")
A("s_waitcnt lgkmcnt(0)")
STAMP(1)
A(f"buffer_load_dwordx4 v{wM}, {RC}, s61 offen {NT} lds")
A(f"buffer_load_dwordx4 v{wM}, {RC}, s62 offen offset:1024 {NT} lds")
A(f"s_add_u32 m0, s40, {PA+8192-1024}")
A(f"buffer_load_dwordx4 v{wM}, {RC}, s61 offen offset:1024 {NT} lds")
A(f"buffer_load_dwordx4 v{wM}, {RC}, s62 offen offset:2048 {NT} lds")
A("v_mov_b32 v32, -1\nv_mov_b32 v33, -1\nv_mov_b32 v34, -1\nv_mov_b32 v35, -1")
SX("s54", CLR, ("s49", 9), ("s7", 13), ("s40", 0))
A("v_lshlrev_b32 v38, 4, v0")
srd(RW, WS_BYTES)
A(f"buffer_store_dwordx4 v[32:35], v38, {RW}, s54 offen sc1")
A(f"buffer_store_dwordx4 v[32:35], v38, {RW}, s54 offen offset:1024 sc1")
w_common()
if OPT["pf"] == 2: code_prefetch(T2, vPF)
wq_setup(0)
AH = OPT["ahold"]
if AH < 8:
    A("s_barrier")
    wq_dma()
tr_setup()
if OPT["abl"]:
    A(f"s_waitcnt vmcnt({3 + (4 if AH < 8 else 0)})"); STAMP(8)
A(f"s_waitcnt vmcnt({4 if AH < 8 else 0}) lgkmcnt(0)")
if OPT["abl"]: STAMP(9)
A(f"s_add_u32 {sTAG}, {sTAG}, {TAGC:#x}")
A("s_barrier")
if AH == 8:
    A("s_barrier")
    wq_dma()
A("s_branch L_B")
A.label("L_A1")
c_setup()
VX(36, T3, 0, (4, 1, 10), (5, 1, 8), (0, 4, 4))
srd(RD, 2048)
A("s_waitcnt lgkmcnt(0)")
STAMP(1)
A(f"buffer_load_dword v{wC}, v{T2}, {RE}, s46 offen {SNT}")
A(f"buffer_load_dwordx4 v[{wX}:{wX+3}], v36, {RD}, 0 offen {SNT}")
A(f"buffer_load_dwordx4 v[{wX+4}:{wX+7}], v36, {RD}, 0 offen offset:512 {SNT}")
VX(37, T3, 0, (4, 1, 10), (0, 4, 1))
A(f"s_lshr_b32 s50, s3, 1\ns_add_u32 s50, s50, s49\nv_mov_b32 v{wXS}, 0")
A(f"buffer_load_short_d16_hi v{wXS}, v37, {RD}, s50 offen {SNT}")
if AH < 8: A("s_barrier")
w_common()
wq_setup(0)
tr_setup()
VX(39, 32, 0, (4, 1, 6), (2, 2, 4))
SX("s53", H1G, ("s58", 12), ("s3", 10), ("s46", 0))
A("s_cmp_eq_u32 s7, 0\ns_cselect_b32 s54, 1.0, 0")
unit_pre("0", "s54", PA)
silu_operand(3)
if OPT["abl"]: STAMP(6)
A(f"s_waitcnt vmcnt(0)")
A("v_mov_b32 v36, 0\nv_mov_b32 v37, 0\nv_mov_b32 v38, 0x3f803f80")
for i in range(8):
    A(f"v_dot2c_f32_bf16 v36, v{wX+i}, v38\nv_dot2c_f32_bf16 v37, v{wX+i}, v{wX+i}")
for m in ("quad_perm:[1,0,3,2]", "quad_perm:[2,3,0,1]", "row_half_mirror", "row_mirror"):
    A(f"v_add_f32_dpp v36, v36, v36 {m} {DPPM}\nv_add_f32_dpp v37, v37, v37 {m} {DPPM}")
A("v_mov_b32 v38, v36\nv_mov_b32 v35, v37")
A("v_permlane32_swap_b32 v36, v38\nv_permlane32_swap_b32 v37, v35")
A("v_add_f32 v36, v36, v38\nv_add_f32 v37, v37, v35")
A(f"v_mul_f32 v36, {f32(1.0/512)}, v36\nv_mov_b32 v38, {f32(1e-5)}\nv_fmac_f32 v38, {f32(1.0/512)}, v37")
A("v_fma_f32 v38, -v36, v36, v38\nv_rsq_f32 v38, v38")
A(f"v_sub_f32 v{wXS}, v{wXS}, v36\nv_mul_f32 v{wXS}, v{wXS}, v38")
A(f"s_add_u32 {sTAG}, {sTAG}, {TAGC:#x}")
A(f"v_mov_b32 v{wD+9}, {sTAG}\nv_mov_b32 v{wD+11}, {sTAG}")
if OPT["abl"]: STAMP(7)
A("s_waitcnt lgkmcnt(0)\ns_barrier")
if OPT["abl"]: STAMP(10)
unit_go()
A(f"v_fma_f32 v32, v{wXS}, v{wD+4}, v{wD}")
pack4(32, wD+8, wD+10, 33)
setexec(0x11111111, 0)
A(f"buffer_store_dwordx4 v[{wD+8}:{wD+11}], v39, {RW}, s53 offen sc1")
fullexec()
STAMP(14)
if OPT["diag"]:
    A("s_waitcnt vmcnt(0)"); STAMP(13)
if AH == 8: A("s_barrier")
wq_dma()
A("s_branch L_B")
A.label("L_nA")
wq_setup(6)
A("s_waitcnt lgkmcnt(0)")
STAMP(1)
if OPT["wqpf"] == 2:
    sk = L("nh0")
    A(f"s_cmp_lt_u32 s3, 256\ns_cbranch_scc1 {sk}")
wq_dma()
if OPT["wqpf"] == 2: A.label(sk)
MBW = OPT["mb_at"] == "w"
if MBW:
    c_setup()
    A(f"buffer_load_dword v{wC}, v{T2}, {RE}, s46 offen {SNT}")
w_common()
tr_setup()
if MBW: silu_operand(0)
if OPT["pf"] == 2: code_prefetch(T2, vPF)
if OPT["wqpf"] == 2:
    sk = L("nh1")
    A(f"s_waitcnt vmcnt(1)\ns_barrier\ns_cmp_ge_u32 s3, 4\ns_cbranch_scc1 {sk}")
    wq_dma()
    A.label(sk)
A("s_waitcnt lgkmcnt(0)")
A(f"s_add_u32 {sTAG}, {sTAG}, {TAGC:#x}")
A.label("L_B")
if MBW:
    A(f"v_mul_u32_u24 v{wM}, 6144, v{T0}\nv_add_u32 v{wM}, v{wM}, v{T1}")
    srd(RC, 3145728)
    SX("s96", 0, ("s7", 6), ("s3", 3))
    A("s_mul_i32 s96, s96, 6144")
    SX("s40", 2048, ("s58", 8)); A("s_add_u32 s96, s96, s40")
    SX("s97", MGT, ("s58", 13), ("s3", 0, 2, 10), ("s46", 0))
    SX("s40", 0, ("s58", 2, 0, 3), ("s7", 0))
    A("s_cmp_eq_u32 s40, 16\ns_cselect_b32 s98, 1.0, 0")
    VX(122, 32, 0, (5, 1, 12), (4, 1, 6), (2, 2, 4))
srd(RF, 2048)
SX("s47", 0, ("s4", 19), ("s43", 10), ("s46", 0))
wRW, wRR, wOF, wTA = 14, 15, 72, 108
SX("s40", RED, ("s3", 9)); VX(wRW, 32, "s40", (0, 6, 2))
SX("s40", RED, ("s3", 8)); VX(wRR, 32, "s40", (0, 6, 2))
VX(wOF, 32, 0, (0, 3, 7), (3, 1, 6), (4, 2, 4))
SX("s53", H1G, ("s43", 6))
VX(T3, 32, 0, (0, 2, 12))
A("s_xor_b32 s57, s6, 1")
SX("s57", H1G + 4, ("s57", 14), ("s3", 7))
wQA = 73; wQD = 76
VX(wQA, 32, 0, (5, 1, 12), (0, 5, 2))
SX("s56", QG, ("s4", 13), ("s5", 8), ("s3", 7))
A(f"v_add_u32 v{wTA}, s48, v{wTR}")
for t in range(1, 4):
    A(f"v_xor_b32 v{wTA+t}, {t*32:#x}, v{wTA}")
A(f"v_mov_b32 v{wQD+1}, {sTAG}\nv_mov_b32 v{wQD+3}, {sTAG}")
wGA, wCB, wXA, wXAD = 74, 75, 80, 81
tE, tOUT, tBP, tOF, tL16 = 84, 114, 115, 72, 116
SX("s59", Y6, ("s5", 15), ("s4", 12))
A("s_cmp_eq_u32 s3, 7\ns_cselect_b32 s40, 0, -1")
A("v_mov_b32 v118, s40\nv_mov_b32 v119, s40\nv_lshlrev_b32 v117, 3, v0")
SX("s41", 0, ("s3", 9), ("s59", 0))
VX(T1, 32, 0, (0, 4, 6), (4, 2, 4))
SX("s51", OG, ("s4", 14), ("s43", 5))
SX("s54", SG, ("s4", 9), ("s43", 7, 0, 7))
A(f"v_lshlrev_b32 v{T0}, 2, v1\nv_xor_b32 v{T0}, v0, v{T0}\nv_and_b32 v{T0}, 7, v{T0}\nv_lshlrev_b32 v{T0}, 3, v{T0}")
A(f"v_lshrrev_b32 v32, 5, v0\nv_lshl_or_b32 v{T0}, v32, 6, v{T0}")
VX(wXAD, 32, 0, (5, 1, 6), (2, 2, 4), (4, 1, 3))
SX("s60", X4, ("s7", 11), ("s3", 10), ("s6", 14), ("s4", 7))
A(f"s_add_u32 s52, s60, {Y4-X4}")
A("v_and_b32 v32, 1, v0\nv_lshlrev_b32 v32, 4, v32\nv_mov_b32 v33, 0x3f80\nv_lshlrev_b32 v32, v32, v33")
A("v_lshrrev_b32 v33, 2, v2\nv_sub_u32 v33, v1, v33\nv_bfe_u32 v34, v0, 1, 1\nv_lshl_or_b32 v33, v33, 1, v34")
for r in range(2):
    A(f"v_cmp_eq_u32 vcc, {r}, v33")
    A(f"v_cndmask_b32 v{tE+r}, 0, v32, vcc")
    A(f"v_mov_b32 v{tE+6+r}, v{tE+r}")
for r in (2, 3, 4, 5):
    A(f"v_mov_b32 v{tE+r}, 0")
VX(38, 33, 0, (0, 1, 3), (5, 1, 1), (4, 1, 2))
SX("s40", 0, ("s4", 0, 2, 4)); A(f"v_add_u32 v{tOUT}, s40, v38")
SX("s40", 0, ("s4", 2, 0, 7)); A(f"v_lshl_add_u32 v{tBP}, v{tOUT}, 1, s40")
SX("s62", 0, ("s4", 2, 0, 10), ("s5", 6))
A(f"v_lshlrev_b32 v{tL16}, 4, v0")
SX("s49", X4, ("s5", 10))
A("s_add_u32 s50, s49, 16384")
SX("s55", ST5, ("s4", 8), ("s7", 5), ("s6", 3))
VX(113, 33, 0, (5, 1, 4), (4, 1, 2))
SX("s61", MGT, ("s7", 12), ("s3", 11))
SX("s40", MGT + 3*32768, ("s5", 11))
A("s_cmp_eq_u32 s3, 2\ns_cselect_b32 s61, s40, s61\ns_cselect_b32 s40, 0, 0x10000\ns_add_u32 s63, s61, s40")
VX(120, 33, 0, (5, 1, 10), (0, 5, 1))
SX("s42", 0, ("s7", 7), ("s3", 6))
A(f"v_mov_b32 v{wXA}, 0")
def blk_frags(off):
    for t in range(4):
        for h in range(2):
            r = wWF + 4*t + 2*h
            A(f"ds_read_b64_tr_b16 v[{r}:{r+1}], v{wTA+t} offset:{off + h*2048}")
def h1_loads():
    tagged_loads(16, wOF, "s53")
    A(f"buffer_load_dword v33, v{T3}, {RW}, s57 offen sc1")
A(f"s_waitcnt vmcnt({OPT['h1at']})")
h1_loads()
A("s_waitcnt vmcnt(3)")
blk_frags(WQL)
STAMP(3)
if OPT["abl"] and "toq" not in OPT["abl"]: A("s_branch L_exit")
poll(h1_loads, lambda: tagged_chk([16], 33, 33), first_issued=True, sleep=OPT["s2"])
STAMP(4)
if OPT["diag"]:
    A(f"s_waitcnt lgkmcnt(0)\ns_mul_i32 s40, {sCNT}, 10\ns_add_u32 s88, s64, s40")
tagged_pack(16)
A("s_waitcnt lgkmcnt(0)")
def blk_mfma(op):
    for t in range(4):
        mfma(wD + 4*t, op, wWF + 4*t, None)
def blk_reduce():
    A(f"v_permlane16_swap_b32 v{wD}, v{wD+4}\nv_permlane16_swap_b32 v{wD+8}, v{wD+12}")
    A(f"v_add_f32 v{wD}, v{wD}, v{wD+4}\nv_add_f32 v{wD+8}, v{wD+8}, v{wD+12}")
    A(f"ds_write2st64_b32 v{wRW}, v{wD}, v{wD+8} offset0:0 offset1:1")
    A("s_waitcnt lgkmcnt(0)\ns_barrier")
def blk_final():
    for i in range(4):
        A(f"ds_read2st64_b32 v[{32+2*i}:{33+2*i}], v{wRR} offset0:{4*i} offset1:{4*i+2}")
    A("s_waitcnt lgkmcnt(0)")
    A("v_add_f32 v32, v32, v33\nv_add_f32 v34, v34, v35\nv_add_f32 v36, v36, v37\nv_add_f32 v38, v38, v39")
    A("v_add_f32 v32, v32, v34\nv_add_f32 v36, v36, v38\nv_add_f32 v32, v32, v36")
blk_mfma(16)
rowsum([wD, wD+4, wD+8, wD+12])
blk_reduce()
sk = L("nq")
A(f"s_cmp_ge_u32 s3, 2\ns_cbranch_scc1 {sk}")
blk_final()
pack4(32, wQD, wQD+2, 33)
setexec(0x11111111, 0x11111111)
A(f"buffer_store_dwordx4 v[{wQD}:{wQD+3}], v{wQA}, {RW}, s56 offen")
fullexec()
A.label(sk)
STAMP(5)
if OPT["abl"]: A("s_branch L_exit")
A("s_barrier")
def o_loads():
    A(f"buffer_load_dwordx4 v[104:107], v{T1}, {RW}, s51 offen sc1")
def mc_loads():
    tagged_loads(16, wOF, "s61"); tagged_loads(24, wOF, "s63")
def wo_dma():
    A(f"s_add_u32 m0, s48, {WOL}")
    for u in range(4):
        if u: A(f"s_add_u32 s47, s47, {8*1024-1024}")
        A(f"buffer_load_dwordx4 v{wO}, {RB}, s47 offen offset:{u*1024} {NT} lds")
if MBW:
    SX("s40", PB, ("s3", 10)); A("s_mov_b32 m0, s40")
    A(f"buffer_load_dwordx4 v{wM}, {RC}, s96 offen {NT} lds")
    A(f"s_add_u32 m0, s40, {8192-128}")
    A(f"buffer_load_dwordx4 v{wM}, {RC}, s96 offen offset:128 {NT} lds")
sk = L("nc0")
A(f"s_cmp_ge_u32 s3, 3\ns_cbranch_scc1 {sk}")
if not MBW: mc_loads()
A(f"s_cmp_lg_u32 s58, 0\ns_cbranch_scc1 {sk}")
A(f"buffer_load_short_d16_hi v{wXA}, v120, {RD}, s42 offen")
A.label(sk)
A(f"buffer_store_dwordx2 v[118:119], v117, {RW}, s41 offen sc1")
if OPT["ltouch"]: o_loads()
WOE = MBW and OPT["wo_mb"]
if MBW:
    if WOE:
        A("s_barrier"); wo_dma()
    A(f"ds_read2_b64 v[{wXO}:{wXO+3}], v83 offset0:0 offset1:4\nds_read2_b64 v[{wXO+4}:{wXO+7}], v83 offset0:8 offset1:12")
    unit_pre("s98", "s98", PB)
    A(f"v_mov_b32 v{wD+9}, {sTAG}\nv_mov_b32 v{wD+11}, {sTAG}")
    A(f"s_waitcnt vmcnt({6 if WOE else 2}) lgkmcnt(0)\ns_barrier")
    sk = L("nmw")
    A(f"s_cmp_lt_u32 s3, 4\ns_cbranch_scc1 {sk}")
    unit_go()
    A("v_cmp_gt_u32 vcc, 32, v0")
    A(f"v_cndmask_b32 v32, v{wD+4}, v{wD}, vcc")
    pack4(32, wD+8, wD+10, 33)
    setexec(0x11111111, 0x11111111)
    A(f"buffer_store_dwordx4 v[{wD+8}:{wD+11}], v122, {RW}, s97 offen sc1")
    fullexec()
    STAMP(6)
    A.label(sk)
if OPT["gtrg"]:
    A("s_cmp_lg_u32 s3, 3\ns_cbranch_scc1 L_trgd")
    if OPT["gmask"] == 7:
        VX(39, 32, 0, (0, 3, 7)); A(f"s_movk_i32 s40, {TRG}")
    else:
        VX(39, 32, 0, (0, 2, 7)); A(f"s_movk_i32 s40, {TRG + 512}")
    A(f"s_mov_b32 {sCNT}, 0")
    A.label("L_trg")
    A(f"buffer_load_dword v33, v39, {RW}, s40 offen sc1")
    A("s_waitcnt vmcnt(0)")
    A(f"v_cmp_ne_u32 vcc, {sTAG}, v33")
    A("s_cbranch_vccz L_trgd")
    A(f"s_sleep 2\ns_add_u32 {sCNT}, {sCNT}, 1\ns_cmp_lt_u32 {sCNT}, {OPT['trgmax']}\ns_cbranch_scc1 L_trg")
    A.label("L_trgd")
    A("s_barrier")
if not WOE: wo_dma()
sk = L("nc1")
A(f"s_cmp_ge_u32 s3, 3\ns_cbranch_scc1 {sk}")
if MBW: A("s_waitcnt vmcnt(1)")
poll(mc_loads, lambda: tagged_chk([16, 24], 33), first_issued=not MBW, first_wait=4, sleep=2)
tagged_pack(16); tagged_pack(24)
for i in range(2):
    for t in range(2):
        mfma(wD + 8*i + 4*t, 16 + 8*i, tE + 4*t, None)
rowsum([wD, wD+4, wD+8, wD+12])
A(f"v_permlane16_swap_b32 v{wD}, v{wD+4}\nv_permlane16_swap_b32 v{wD+8}, v{wD+12}")
A(f"v_add_f32 v{wGA}, v{wD}, v{wD+4}\nv_add_f32 v{wCB}, v{wD+8}, v{wD+12}")
STAMP(2)
A.label(sk)
A("s_waitcnt vmcnt(0)")
blk_frags(WOL)
STAMP(7)
wF = 100
sg_load = lambda: A(f"buffer_load_dwordx2 v[16:17], v{T0}, {RW}, s54 offen sc1")
await_any(sg_load, lambda: A("v_cmp_o_f32 vcc, v17, v17"), OPT["s1"])
poll(sg_load, lambda: A("v_cmp_u_f32 vcc, v17, v17"), first_issued=True, sleep=2*OPT["s2"])
o_loads()
A(f"v_max_f32_dpp v18, v16, v16 quad_perm:[1,0,3,2] {DPPM}")
A(f"v_max_f32_dpp v18, v18, v18 quad_perm:[2,3,0,1] {DPPM}")
A(f"v_max_f32_dpp v18, v18, v18 row_half_mirror {DPPM}")
A("v_sub_f32 v16, v16, v18\nv_exp_f32 v16, v16\nv_mul_f32 v17, v16, v17")
for m in ("quad_perm:[1,0,3,2]", "quad_perm:[2,3,0,1]", "row_half_mirror"):
    A(f"v_add_f32_dpp v17, v17, v17 {m} {DPPM}")
A(f"v_rcp_f32 v17, v17\nv_mul_f32 v{wF}, v16, v17")
STAMP(8)
poll(o_loads, lambda: chk_empty4(104, 33), first_issued=True, first_wait=0)
STAMP(9)
A("s_waitcnt lgkmcnt(0)")
blk_mfma(104)
for t in range(4):
    A(f"v_mul_f32_dpp v{wD+4*t}, v{wF}, v{wD+4*t} row_newbcast:0 {DPPM}")
for r in range(1, 4):
    for t in range(4):
        A(f"v_fmac_f32_dpp v{wD+4*t}, v{wF}, v{wD+4*t+r} row_newbcast:{r} {DPPM}")
blk_reduce()
A("s_cmp_gt_u32 s3, 2\ns_cbranch_scc1 L_exit")
A("s_cmp_eq_u32 s3, 2\ns_cbranch_scc1 L_fin")
blk_final()
A(f"v_fma_f32 v32, v32, v{wGA}, v{wXA}")
A(f"v_mul_f32 v36, v32, v{wCB}")
A(f"v_mov_b32_dpp v33, v32 quad_perm:[1,1,3,3] {DPPM}")
A(f"v_mov_b32_dpp v37, v36 quad_perm:[1,1,3,3] {DPPM}")
A("v_cvt_pk_bf16_f32 v34, v32, v33\nv_cvt_pk_bf16_f32 v38, v36, v37")
A(f"v_mov_b32_dpp v35, v34 quad_perm:[2,2,2,2] {DPPM}")
A(f"v_mov_b32_dpp v39, v38 quad_perm:[2,2,2,2] {DPPM}")
setexec(0x11111111, 0x11111111)
A(f"buffer_store_dwordx2 v[38:39], v{wXAD}, {RW}, s52 offen sc1")
A(f"buffer_store_dwordx2 v[34:35], v{wXAD}, {RW}, s60 offen sc1")
STAMP(10)
A("s_branch L_exit")
A.label("L_fin")
def x4_loads():
    A(f"buffer_load_dwordx4 v[16:19], v{tOF}, {RW}, s49 offen sc1")
    A(f"buffer_load_dwordx4 v[20:23], v{tOF}, {RW}, s50 offen sc1")
def x4_chk():
    A("v_max3_u32 v33, v16, v17, v18\nv_max3_u32 v34, v19, v20, v21\nv_max3_u32 v33, v33, v22, v23\nv_max_u32 v33, v33, v34\nv_cmp_eq_u32 vcc, -1, v33")
poll(x4_loads, x4_chk)
STAMP(11)
for hp in range(2):
    for t in range(2):
        mfma(wD + 4*t, 16 + 4*hp, tE + 4*t, None if hp == 0 else wD + 4*t)
rowsum([wD, wD+4])
A(f"v_permlane16_swap_b32 v{wD}, v{wD+4}")
A(f"v_add_f32 v42, v{wD}, v{wD+4}")
A("v_mov_b32 v43, v42\nv_mul_f32 v44, v42, v42")
A("v_permlane16_swap_b32 v43, v44")
A("v_add_f32 v43, v43, v44")
for m in ("quad_perm:[1,0,3,2]", "quad_perm:[2,3,0,1]", "row_half_mirror", "row_mirror"):
    A(f"v_add_f32_dpp v43, v43, v43 {m} {DPPM}")
setexec(0x00010001, 0x00010001)
A(f"buffer_store_dword v43, v113, {RW}, s55 offen")
fullexec()
STAMP(12)
A(f"ds_bpermute_b32 v42, v{tBP}, v42\nds_bpermute_b32 v{wGA}, v{tBP}, v{wGA}")
def y6_loads():
    for i in range(4):
        A(f"buffer_load_dwordx4 v[{16+4*i}:{19+4*i}], v{tL16}, {RW}, s59 offen offset:{1024*i} sc1")
def y6_chk():
    for r in range(4):
        A(f"v_add_f32 v{16+r}, v{16+r}, v{20+r}\nv_add_f32 v{24+r}, v{24+r}, v{28+r}")
    for r in range(4):
        A(f"v_add_f32 v{16+r}, v{16+r}, v{24+r}")
    A("v_permlane32_swap_b32 v16, v17\nv_permlane32_swap_b32 v18, v19")
    A("v_add_f32 v16, v16, v17\nv_add_f32 v18, v18, v19")
    A("v_permlane16_swap_b32 v16, v18")
    A("v_add_f32 v16, v16, v18")
    A("v_cmp_u_f32 vcc, v16, v16")
await_any(lambda: A(f"buffer_load_dword v16, v{tL16}, {RW}, s59 offen sc1"), lambda: A("v_cmp_o_f32 vcc, v16, v16"), 2)
poll(y6_loads, y6_chk)
STAMP(13)
for m in ("row_ror:8", "row_ror:4", "row_ror:2"):
    A(f"v_add_f32_dpp v16, v16, v16 {m} {DPPM}")
A("s_waitcnt lgkmcnt(0)")
A(f"v_fma_f32 v16, v16, v{wGA}, v42")
A("v_cvt_pk_bf16_f32 v16, v16, v16")
setexec(0x00030003, 0x00030003)
A(f"buffer_store_short v16, v{tOUT}, {RF}, s62 offen")
A("s_cmp_lg_u32 s2, 128\ns_cbranch_scc1 L_exit")
A(f"s_sub_u32 s40, {sTAG}, {TAGC-1:#x}")
A("v_mov_b32 v17, s40\nv_mov_b32 v18, 0")
A("s_mov_b64 exec, 1")
A(f"buffer_store_dword v17, v18, {RW}, 0 offen sc1")

if STAMPS == 4:
    STAMP(15)
    A("s_movk_i32 s40, 0x2000\ns_load_dwordx8 s[48:55], s[16:17], s40 glc")
    A("s_waitcnt lgkmcnt(0)")
    A("s_mov_b32 s41, s48\ns_mov_b32 s56, s48")
    for j in range(1, 8):
        A(f"s_min_u32 s41, s41, s{48+j}\ns_max_u32 s56, s56, s{48+j}")
    A("s_mov_b32 s57, s94")
    A(f"s_sub_u32 s40, s{48+OPT['dj']}, s41")
    A(f"s_mul_i32 s40, s40, {OPT['dm']}")
    A("s_min_u32 s40, s40, 20000")
    A.label("L_spin")
    A("s_memrealtime s[42:43]\ns_waitcnt lgkmcnt(0)\ns_sub_u32 s41, s42, s94\ns_cmp_lt_u32 s41, s40\ns_cbranch_scc1 L_spin")
A.label("L_exit")
if STAMPS == 1:
    STAMP(15)
    A("s_waitcnt lgkmcnt(0)")
    A("s_mov_b64 exec, 1")
    SX("s40", DBG, ("s2", 9), ("s3", 6))
    A("v_mov_b32 v0, 0")
    for q in range(4):
        for i in range(4):
            A(f"v_mov_b32 v{4+4*q+i}, s{64+2*(4*q+i)}")
        A(f"buffer_store_dwordx4 v[{4+4*q}:{7+4*q}], v0, {RW}, s40 offen offset:{16*q}")
if STAMPS == 2:
    STAMP(15)
    A("s_load_dwordx2 s[32:33], s[0:1], 96")
    A("s_mov_b32 s34, 256\ns_mov_b32 s35, 0x00020000")
    A("s_waitcnt lgkmcnt(0)")
    fullexec()
    A("v_mov_b32 v4, 0\nv_mbcnt_lo_u32_b32 v5, -1, 0\nv_lshlrev_b32 v5, 2, v5")
    A("s_cmp_ge_u32 s2, 128\ns_cbranch_scc1 L_dw")
    A("s_cmp_lg_u32 s3, 0\ns_cbranch_scc1 L_end")
    A("s_not_b32 s40, s64\nv_writelane_b32 v4, s40, 0")
    for i, st in enumerate([9, 2, 5, 7, 10, 11, 8]):
        A(f"v_writelane_b32 v4, s{64+2*st}, {i+1}")
    A("s_branch L_dd")
    A.label("L_dw")
    A("s_cmp_lg_u32 s3, 2\ns_cbranch_scc1 L_end")
    for i, st in enumerate([0, 3, 4, 5, 7, 9, 11, 15]):
        A(f"v_writelane_b32 v4, s{64+2*st}, {i+8}")
    A.label("L_dd")
    A("s_mov_b64 exec, 0xffff")
    A("buffer_atomic_umax v4, v5, s[32:35], 0 offen")
A.label("L_end")
A("s_endpgm")
A.label("L_codeend")
A.raw(f".fill (16384 - (L_codeend - {NAME}_kernel)) / 4, 4, 0xbf810000")
A.raw(f""".section .rodata,"a"
.p2align 6
.amdhsa_kernel {NAME}_kernel
  .amdhsa_next_free_vgpr 152
  .amdhsa_next_free_sgpr 100
  .amdhsa_accum_offset 152
  .amdhsa_group_segment_fixed_size 0
  .amdhsa_kernarg_size 112
  .amdhsa_user_sgpr_count 2
  .amdhsa_user_sgpr_kernarg_segment_ptr 1
  .amdhsa_system_sgpr_workgroup_id_x 1
  .amdhsa_float_denorm_mode_32 3
.end_amdhsa_kernel""")
sys.stdout.write(A.text())
sys.stderr.write(f"instrs={A.ninstr} nops={A.nops}\n")
```

```python
import sys, math, struct
sys.path.insert(0, "work")
from asmlib import Asm

NAME = "adaLN_cond__sliding_block_cached__glu_gated_reglu__decode"
OPT = dict(stamps=0, nt="nt", limit=20000, refresh=255, psleep=0, pf=4, pfnt="", smallnt="", slow=0, gtrg=0, gw=7, gmask=7, fpf=0, wo_after_c=0, fpfbar=1, fpfl="", uslocal=1, qn=4, trg=0, mb_at="kv", touch=0, ltouch=1, ahold=8, wqpf=1, wqpfl="", ehold=0, depth=0, ffn_first=0, ser=1, obar=1, gu_b1=0, dn_late=0, dn_p=0, diag=0, rot=7, vt=1, mbg=3, mbwait=-1, g_b1=0, wo_mb=1, h1at=1, depth_until=16, qpipe=1, s1=6, s2=1, sent=1, trgmax=24, kvbar=1, abl="")
for a in sys.argv[1:]:
    k, v = a.split("=")
    OPT[k] = int(v) if v.lstrip("-").isdigit() else v
STAMPS = OPT["stamps"]; NT = OPT["nt"] if OPT["nt"] != "-" else ""
LIMIT = OPT["limit"]; REFRESH = OPT["refresh"]; SNT = OPT["smallnt"]

def f32(x): return "0x%08x" % struct.unpack("<I", struct.pack("<f", x))[0]

TRG = 0x1000; H1G = 0x8000; QG = 0x10000; MGT = 0x20000
CLR = 0x100000
OG = CLR; MG = CLR + 0x20000; X4 = CLR + 0x30000; Y4 = CLR + 0x38000
G5 = CLR + 0x40000; SG = CLR + 0x5C000; ST5 = CLR + 0x5D000; US5 = CLR + 0x60000
Y6 = 0x180000; DBG = 0x400000
WS_BYTES = 0x800000
TAGC = 0x9E3779B9
VREG = 65536; PA = 131072; XL = 147456; QL = XL + 1024; PL = QL + 2048; MISC = PL + 2048
FG = 0; FD = 32768; YL0 = 131072
WQL = 0; WOL = 32768; PB = 65536; RED = XL + 1024
LDS_BYTES = MISC + 256
C1 = 128 ** -0.5 * math.log2(math.e)

A = Asm()
hdr = open(f"cdna_kernels/{NAME}.s.ref").read().split("\n")
for ln in hdr:
    if ln.startswith("; @launch"):
        A.raw(f"; @launch grid=(256,1,1) block=(512,1,1) lds={LDS_BYTES}")
        break
    A.raw(ln)
A.raw('.amdgcn_target "amdgcn-amd-amdhsa--gfx950"')
A.raw(f".text\n.globl {NAME}_kernel\n.p2align 8\n.type {NAME}_kernel,@function\n{NAME}_kernel:")

RA, RB, RW, RC, RD, RE, RF = "s[8:11]", "s[12:15]", "s[16:19]", "s[20:23]", "s[24:27]", "s[28:31]", "s[32:35]"
sTAG, sCNT, sT = "s36", "s37", "s45"
def STAMP(n):
    if STAMPS:
        A(f"s_memrealtime s[{64+2*n}:{65+2*n}]")
DPPM = "row_mask:0xf bank_mask:0xf"
lbl = [0]
def L(p):
    lbl[0] += 1
    return f"L_{p}_{lbl[0]}"
def srd(r, nbytes):
    b = int(r[2:r.index(":")])
    A((f"s_movk_i32 s{b+2}, {nbytes}" if nbytes < 32768 else f"s_mov_b32 s{b+2}, {nbytes}") + f"\ns_mov_b32 s{b+3}, s11")
def kload(r, off):
    b = int(r[2:r.index(":")])
    A(f"s_load_dwordx2 s[{b}:{b+1}], s[0:1], {off}")

def SX(dst, const, *terms):
    first = True
    for t in terms:
        src, rs, w, ls = (t[0], 0, 0, t[1]) if len(t) == 2 else t
        d = dst if first else sT
        cur = src
        if w:
            if rs == 0: A(f"s_and_b32 {d}, {cur}, {(1<<w)-1}")
            else: A(f"s_bfe_u32 {d}, {cur}, {(w<<16)|rs:#x}")
            cur = d
        elif rs:
            A(f"s_lshr_b32 {d}, {cur}, {rs}"); cur = d
        if first:
            if ls: A(f"s_lshl_b32 {d}, {cur}, {ls}")
            elif cur != d: A(f"s_mov_b32 {d}, {cur}")
        else:
            if 1 <= ls <= 4: A(f"s_lshl{ls}_add_u32 {dst}, {cur}, {dst}")
            else:
                if ls: A(f"s_lshl_b32 {sT}, {cur}, {ls}"); cur = sT
                A(f"s_add_u32 {dst}, {dst}, {cur}")
        first = False
    if const: A(f"s_add_u32 {dst}, {dst}, {const:#x}")
def VX(dst, tmp, add, *terms):
    first = True
    for rs, w, ls in terms:
        if rs == 4 and w == 2: cur = "v1"
        elif rs == 0 and w == 4: cur = "v2"
        elif rs == 0 and w == 6: cur = "v0"
        else:
            d = f"v{dst}" if first else f"v{tmp}"
            if rs + w == 6: A(f"v_lshrrev_b32 {d}, {rs}, v0")
            elif rs == 0: A(f"v_and_b32 {d}, {(1<<w)-1}, v0")
            else: A(f"v_bfe_u32 {d}, v0, {rs}, {w}")
            cur = d
        if first:
            if ls: A(f"v_lshlrev_b32 v{dst}, {ls}, {cur}")
            elif cur != f"v{dst}": A(f"v_mov_b32 v{dst}, {cur}")
        else:
            if ls: A(f"v_lshl_or_b32 v{dst}, {cur}, {ls}, v{dst}")
            else: A(f"v_or_b32 v{dst}, {cur}, v{dst}")
        first = False
    if add: A(f"v_add_u32 v{dst}, {add}, v{dst}")

def cont(n):
    t = L("c")
    A(f"s_branch {t}")
    A.seg(n); A.label(t)
def await_any(load, valid, sleep):
    if not OPT["sent"]: return
    top, done = L("aw"), L("awd")
    A(f"s_mov_b32 {sCNT}, 0")
    A.label(top)
    load()
    A("s_waitcnt vmcnt(0)")
    valid()
    A(f"s_cbranch_vccnz {done}")
    A(f"s_sleep {sleep}\ns_add_u32 {sCNT}, {sCNT}, 1\ns_cmp_lt_u32 {sCNT}, 64\ns_cbranch_scc1 {top}")
    A.label(done)
def poll(loads, check, first_issued=False, first_wait=0, sleep=0):
    top, done, chk = L("poll"), L("got"), L("chk")
    A(f"s_mov_b32 {sCNT}, 0")
    if first_issued:
        A(f"s_waitcnt vmcnt({first_wait})")
        A(f"s_branch {chk}")
    A.label(top)
    loads()
    A("s_waitcnt vmcnt(0)")
    if first_issued:
        A.label(chk)
    check()
    A(f"s_cbranch_vccz {done}")
    if sleep: A(f"s_sleep {sleep}")
    A(f"s_add_u32 {sCNT}, {sCNT}, 1")
    A(f"s_and_b32 {sT}, {sCNT}, {REFRESH}\ns_cbranch_scc1 {top}")
    A("buffer_wbl2 sc1")
    A(f"s_cmp_lt_u32 {sCNT}, {LIMIT}\ns_cbranch_scc1 {top}")
    A.label(done)
def chk_empty4(r, tmp):
    A(f"v_max3_u32 v{tmp}, v{r}, v{r+1}, v{r+2}\nv_max_u32 v{tmp}, v{tmp}, v{r+3}\nv_cmp_eq_u32 vcc, -1, v{tmp}")
def pack4(src, pk, pk2, tmp):
    A(f"v_mov_b32_dpp v{tmp}, v{src} quad_perm:[1,1,3,3] {DPPM}")
    A(f"v_cvt_pk_bf16_f32 v{pk}, v{src}, v{tmp}")
    A(f"v_mov_b32_dpp v{pk2}, v{pk} quad_perm:[2,2,2,2] {DPPM}")
def setexec(lo, hi):
    A(f"s_mov_b32 exec_lo, {lo:#x}\ns_mov_b32 exec_hi, {hi:#x}")
def fullexec():
    A("s_mov_b64 exec, -1")
def mfma(d, a, b, c):
    cc = "0" if c is None else f"v[{c}:{c+3}]"
    A(f"v_mfma_f32_16x16x32_bf16 v[{d}:{d+3}], v[{a}:{a+3}], v[{b}:{b+3}], {cc}")
def rowsum(ds):
    for d in ds: A(f"v_add_f32 v{d}, v{d}, v{d+1}\nv_add_f32 v{d+2}, v{d+2}, v{d+3}")
    for d in ds: A(f"v_add_f32 v{d}, v{d}, v{d+2}")
def code_prefetch(tmp, dst):
    sk = L("npf")
    A(f"s_cmp_lt_u32 s3, 6\ns_cbranch_scc1 {sk}")
    A("s_and_b32 s38, s38, 0xffffff00")
    A(f"v_lshlrev_b32 v{tmp}, 7, v0")
    A(f"s_and_b32 s40, s3, 1\ns_lshl_b32 s40, s40, 13")
    A(f"v_add_u32 v{tmp}, s40, v{tmp}")
    if not OPT["pf"]: A(f"v_mov_b32 v{tmp}, 0")
    A(f"global_load_dword v{dst}, v{tmp}, s[38:39] {OPT['pfnt']}")
    A.label(sk)

wM, wQ, wO, wTR, T0, T1, T2, T3, vPF = 3, 4, 5, 6, 7, 8, 9, 10, 11
wC = 12; wXS = 13; wX = 16; wXO = 24; wWF = 40; wD = 56
def swz_chunk(dst):
    A(f"v_lshlrev_b32 v{dst}, 1, v1\nv_xor_b32 v{dst}, v0, v{dst}\nv_and_b32 v{dst}, 7, v{dst}\nv_lshlrev_b32 v{dst}, 4, v{dst}")
def unit_dma(srdr, s0, s1, base):
    A(f"s_add_u32 m0, s42, {base}")
    A(f"buffer_load_dwordx4 v{wM}, {srdr}, {s0} offen {NT} lds")
    A(f"s_add_u32 m0, s42, {base+8192}")
    A(f"buffer_load_dwordx4 v{wM}, {srdr}, {s1} offen {NT} lds")
def tr_setup():
    VX(wTR, 32, 0, (2, 4, 7), (3, 2, 5), (0, 2, 3))
    SX("s40", XL, ("s3", 0, 2, 8))
    VX(82, 32, "s40", (0, 6, 2))
    VX(83, 32, "s40", (2, 1, 7), (4, 2, 3))
def silu_operand(cnt):
    A(f"s_waitcnt vmcnt({cnt})")
    A(f"v_lshlrev_b32 v32, 16, v{wC}\nv_and_b32 v33, 0xffff0000, v{wC}")
    A(f"v_mul_f32 v34, {f32(-math.log2(math.e))}, v32\nv_mul_f32 v35, {f32(-math.log2(math.e))}, v33")
    A("v_exp_f32 v34, v34\nv_exp_f32 v35, v35")
    A("v_add_f32 v34, 1.0, v34\nv_add_f32 v35, 1.0, v35")
    A("v_rcp_f32 v34, v34\nv_rcp_f32 v35, v35")
    A("v_mul_f32 v32, v32, v34\nv_mul_f32 v33, v33, v35")
    A("v_cvt_pk_bf16_f32 v32, v32, v33")
    A("ds_write_b32 v82, v32")
    A("s_waitcnt lgkmcnt(0)")
    A(f"ds_read2_b64 v[{wXO}:{wXO+3}], v83 offset0:0 offset1:4\nds_read2_b64 v[{wXO+4}:{wXO+7}], v83 offset0:8 offset1:12")
def unit_pre(s_c0, s_c1, base):
    SX("s40", 0, ("s3", 0, 2, 5)); A(f"v_xor_b32 v112, s40, v{wTR}\nv_add_u32 v112, {base}, v112")
    for i in range(4):
        A(f"v_mov_b32 v{wD+i}, {s_c0}\nv_mov_b32 v{wD+4+i}, {s_c1}")
def unit_go():
    if STAMPS: A("s_waitcnt lgkmcnt(0)")
    for k in range(2):
        for seg in range(2):
            for h in range(2):
                r = wWF + seg*8 + k*4 + h*2
                A(f"ds_read_b64_tr_b16 v[{r}:{r+1}], v112 offset:{seg*8192 + k*4096 + h*2048}")
    for k in range(2):
        for seg in range(2):
            A(f"s_waitcnt lgkmcnt({6 - 4*k - 2*seg})")
            mfma(wD + 4*seg, wXO + 4*k, wWF + seg*8 + k*4, wD + 4*seg)
def unit_mfma(s_c0, s_c1, base):
    unit_pre(s_c0, s_c1, base); unit_go()
def tagged_loads(r, va, so):
    A(f"buffer_load_dwordx4 v[{r}:{r+3}], v{va}, {RW}, {so} offen sc1")
    A(f"buffer_load_dwordx4 v[{r+4}:{r+7}], v{va}, {RW}, {so} offen offset:1024 sc1")
def tagged_chk(rs, tmp, extra=None):
    tags = [r + i for r in rs for i in (1, 3, 5, 7)] + ([extra] if extra else [])
    A(f"v_xor_b32 v{tmp}, {sTAG}, v{tags[-1]}")
    for t in tags[:-1]:
        A(f"v_bitop3_b32 v{tmp}, v{t}, {sTAG}, v{tmp} bitop3:0xbe")
    A(f"v_cmp_ne_u32 vcc, 0, v{tmp}")
def tagged_pack(r):
    A(f"v_mov_b32 v{r+1}, v{r+2}\nv_mov_b32 v{r+2}, v{r+4}\nv_mov_b32 v{r+3}, v{r+6}")
def sum8(dst, r):
    A(f"v_add_f32 v32, v{r}, v{r+1}\nv_add_f32 v33, v{r+2}, v{r+3}\nv_add_f32 v34, v{r+4}, v{r+5}\nv_add_f32 v35, v{r+6}, v{r+7}")
    A(f"v_add_f32 v32, v32, v33\nv_add_f32 v34, v34, v35\nv_add_f32 v{dst}, v32, v34")

STAMP(0)
A("s_cmp_ge_u32 s2, 256\ns_cbranch_scc1 L_end")
A("s_cmp_ge_u32 s2, 128\ns_cselect_b32 s40, 24, 8\ns_cselect_b32 s41, 0, 16")
A("s_load_dwordx2 s[8:9], s[0:1], s40")
kload(RC, 80)
A("s_load_dwordx2 s[24:25], s[0:1], s41")
kload(RE, 72); kload(RW, 104)
A("v_readfirstlane_b32 s3, v0")
A("s_getpc_b64 s[38:39]")
if OPT["pf"] == 4:
    A("s_and_b32 s38, s38, 0xffffff00")
    A(f"v_and_b32 v{vPF}, 0x1c0, v0\ns_lshl_b32 s40, s2, 7\ns_and_b32 s40, s40, 0x3c00\nv_lshl_or_b32 v{vPF}, v{vPF}, 1, s40")
    sk = L("npf")
    A(f"s_cmp_ge_u32 s2, 128\ns_cbranch_scc1 {sk}")
    A(f"global_load_dword v{vPF}, v{vPF}, s[38:39]")
    A.label(sk)
A("v_and_b32 v0, 63, v0")
A("s_mov_b32 s11, 0x00020000")
A("v_lshrrev_b32 v1, 4, v0\nv_and_b32 v2, 15, v0")
A(f"s_add_u32 s4, s2, {OPT['rot']}\ns_and_b32 s4, s4, 7\ns_bfe_u32 s6, s2, 0x10006\ns_bfe_u32 s7, s2, 0x30003")
A(f"v_lshlrev_b32 v{T3}, 1, v1\nv_xor_b32 v{T3}, v2, v{T3}\nv_lshlrev_b32 v{T3}, 4, v{T3}")
A("s_lshl1_add_u32 s58, s4, s6\ns_lshl_b32 s46, s7, 7\ns_mov_b32 s27, s11")
A(f"v_and_b32 v{T1}, 0x70, v{T3}\nv_lshrrev_b32 v{T0}, 3, v0")
srd(RC, 3145728); srd(RE, 2048)
A(f"v_mul_u32_u24 v{wM}, 6144, v{T0}\nv_add_u32 v{wM}, v{wM}, v{T1}")
A("s_cmp_ge_u32 s2, 128\ns_cbranch_scc1 L_W")
def ids2():
    A("s_lshr_b32 s3, s3, 6\ns_bfe_u32 s5, s2, 0x40003")
    if STAMPS:
        for i in range(2, 16): A(f"s_mov_b32 s{64+2*i}, 0")
    srd(RW, WS_BYTES)

vE, vO, vQO = 120, 121, 122
vKA = 108
vQ = 14
vKF = 16
vVF = 48
vQF = 80
vS = 96
vP = 104
vOA = 108
vST = 114
vOAD, vSAD = 116, 117
A(f"v_lshl_or_b32 v{vE}, v1, 8, v{T3}\nv_xor_b32 v{vO}, 0x80, v{vE}")
A("s_lshl_b32 s43, s3, 7\ns_mov_b32 s10, 33554432\ns_mov_b32 s26, s10")
SX("s56", 6144*256, ("s6", 24), ("s4", 21), ("s7", 16), ("s43", 0))
A("s_add_u32 s57, s56, 4096\ns_mov_b32 m0, s43")
def kv_dma(u):
    r = RA if u < 8 else RD
    A(f"buffer_load_dwordx4 v{vE if u%2==0 else vO}, {r}, {'s56' if u%8 < 4 else 's57'} offen offset:{(u%4)*1024} {NT} lds")
if OPT["wqpf"]:
    kload(RF, 24)
    A("s_cmp_lt_u32 s4, 4\ns_cselect_b32 s34, 0x400000, 0\ns_mov_b32 s35, s11")
    A(f"v_and_b32 v{wQ}, {31 if OPT['wqpf'] == 1 else 15}, v0\nv_lshlrev_b32 v{wQ}, 13, v{wQ}")
    SX("s44", 0, ("s6", 21), ("s3", 12 if OPT["wqpf"] == 1 else 11), ("s4", 10), ("s46", 0))
A("s_waitcnt lgkmcnt(0)")
if OPT["wqpf"]: A(f"buffer_load_dword v16, v{wQ}, {RF}, s44 offen")
VT = OPT["vt"]
if VT:
    A(f"s_add_u32 m0, s43, {VREG}")
    kv_dma(8)
    A("s_mov_b32 m0, s43")
if OPT["slow"]: kv_dma(0)
if OPT["pf"] == 3:
    A("s_and_b32 s38, s38, 0xffffff00")
    SX("s40", 0, ("s2", 3, 4, 10), ("s3", 1))
    A("s_load_dword s99, s[38:39], s40")
A(f"s_load_dword {sTAG}, s[16:17], 0")
if OPT["slow"]: A("s_waitcnt vmcnt(0)")
def mb_issue():
    SX("s51", 0, ("s7", 6), ("s3", 3, 0, 0))
    A("s_mul_i32 s51, s51, 6144\ns_lshl_b32 s42, s3, 4")
    SX("s40", 2048, ("s58", 8)); A("s_add_u32 s51, s51, s40")
    A(f"s_add_u32 m0, s42, {PA}")
    A(f"buffer_load_dwordx4 v{wM}, {RC}, s51 offen {NT} lds")
    A(f"s_add_u32 m0, s42, {PA + 8192 - 128}")
    A(f"buffer_load_dwordx4 v{wM}, {RC}, s51 offen offset:128 {NT} lds")
    VX(T2, T3, 0, (5, 1, 10), (0, 5, 2))
    A(f"buffer_load_dword v{wC}, v{T2}, {RE}, s46 offen {SNT}")
for u in range(1 if OPT["slow"] else 0, 16):
    if u in (4, 12): A("s_add_u32 m0, m0, 4096")
    if u == 8:
        if OPT["mbg"] != 3: mb_issue()
        A(f"s_add_u32 m0, s43, {VREG}")
        if VT: continue
    if OPT["depth"] and u < OPT["depth_until"]: A(f"s_waitcnt vmcnt({OPT['depth']-1})")
    kv_dma(u)
cont(30)
ids2()
if STAMPS: A("s_mov_b32 s66, 0")
STAMP(2)
if OPT["abl"]:
    A("s_waitcnt vmcnt(0)")
    STAMP(4)
    A("s_branch L_exit")
GT = 0
A("s_waitcnt lgkmcnt(0)")
A(f"s_add_u32 {sTAG}, {sTAG}, {TAGC:#x}")
kload(RC, 48); kload(RD, 56); kload(RE, 64)
FF = OPT["ffn_first"]
if FF: FG = VREG; FD = VREG + 32768
wG, wDO, fMF = 124, 125, 123
A(f"v_mul_u32_u24 v{wG}, 3584, v{T0}\nv_add_u32 v{wG}, v{wG}, v{T1}\nv_lshl_or_b32 v{wDO}, v{T0}, 10, v{T1}")
A("s_cmp_lt_u32 s4, 7")
A("s_cselect_b32 s22, 1835008, 0\ns_cselect_b32 s26, 1835008, 0\ns_cselect_b32 s30, 1835008, 0")
SX("s63", 0, ("s4", 4), ("s5", 0))
SX("s49", 0, ("s63", 0, 2, 7), ("s3", 4))
A("s_mul_i32 s49, s49, 3584")
SX("s50", 0, ("s63", 2, 0, 7))
A(f"s_add_u32 s49, s49, s50\ns_add_u32 s50, s49, {8*3584-1024}")
SX("s51", 0, ("s63", 14), ("s3", 7))
A(f"s_add_u32 s52, s51, {8*1024-1024}")
A("s_lshl_b32 s42, s3, 11")
def g_dma():
    A(f"s_add_u32 m0, s42, {FG}")
    A(f"buffer_load_dwordx4 v{wG}, {RC}, s49 offen {NT} lds")
    A(f"buffer_load_dwordx4 v{wG}, {RC}, s50 offen offset:1024 {NT} lds")
def u_dma():
    A(f"s_add_u32 m0, s42, {FG+16384}")
    A(f"buffer_load_dwordx4 v{wG}, {RD}, s49 offen {NT} lds")
    A(f"buffer_load_dwordx4 v{wG}, {RD}, s50 offen offset:1024 {NT} lds")
def gu_dma():
    g_dma(); u_dma()
def dn_dma():
    A(f"s_add_u32 m0, s42, {FD}")
    A(f"buffer_load_dwordx4 v{wDO}, {RE}, s51 offen {NT} lds")
    A(f"buffer_load_dwordx4 v{wDO}, {RE}, s52 offen offset:1024 {NT} lds")
def ffn_dma():
    gu_dma(); dn_dma()
GB1 = OPT["gu_b1"] and OPT["ser"] and not FF
SX("s44", QG, ("s58", 12), ("s3", 10))
vQ = 100
A(f"v_lshlrev_b32 v{vQO}, 4, v0")
VX(fMF, T2, 0, (0, 3, 7), (3, 1, 6), (4, 2, 4))
SX("s59", MGT + 2*32768, ("s63", 0, 2, 13), ("s3", 0, 2, 11))
SX("s40", 0, ("s3", 2, 0, 15)); A("s_sub_u32 s59, s59, s40")
VX(T2, 0, 0, (0, 3, 1))
A(f"v_xor_b32 v{T2}, v1, v{T2}\nv_lshlrev_b32 v{T2}, 4, v{T2}\nv_lshl_or_b32 v{T2}, v2, 8, v{T2}")
A(f"v_add_u32 v{vKA}, s43, v{T2}")
for t in range(1, 4):
    A(f"v_xor_b32 v{vKA+t}, {t*64:#x}, v{vKA}")
vQW, vQR, vVR, vMX, vPW, vPR, vMW = 3, 4, 5, 6, 113, 13, 112
SX("s40", QL, ("s3", 5))
VX(vQW, T2, "s40", (1, 4, 7), (5, 1, 4), (0, 1, 3))
VX(vQR, T2, QL, (4, 2, 7), (0, 3, 4))
A(f"v_bfe_u32 v{T0}, v0, 2, 3\nv_xor_b32 v{T0}, s3, v{T0}")
VX(vVR, T2, VREG, (2, 4, 8), (0, 2, 3))
A(f"v_lshl_or_b32 v{vVR}, v{T0}, 5, v{vVR}")
VX(vMX, T2, MISC, (0, 2, 5))
A(f"s_lshl_b32 s40, s3, 2\nv_add_u32 v{vMW}, s40, v{vMX}")
VX(vPR, T2, PL, (4, 2, 6), (0, 2, 4))
A(f"s_lshl_b32 s40, s3, 8\nv_add_u32 v{vPW}, s40, v{vPR}")
VX(vOAD, T2, 0, (0, 2, 12), (4, 2, 4))
SX("s53", OG, ("s4", 14), ("s3", 1, 0, 10), ("s5", 6), ("s3", 0, 1, 3))
VX(vSAD, T2, 0, (0, 2, 7))
SX("s54", SG, ("s4", 9), ("s5", 3))
A(f"s_mov_b32 s55, {f32(C1)}")
fWF = 128 if FF else 84
fDF = 144 if FF else 64
def ffn_frag_addr(wr, ta, tr):
    VX(tr, 32, 0, (2, 4, 7), (3, 2, 5), (0, 2, 3))
    SX("s40", 0, ("s3", 0, 2, 5)); A(f"v_xor_b32 v{wr}, s40, v{tr}")
    SX("s40", FG, ("s3", 2, 0, 14)); A(f"v_add_u32 v{wr}, s40, v{wr}")
    A(f"s_add_u32 s40, s42, {FD}\nv_add_u32 v{ta}, s40, v{tr}")
    for t in range(1, 4):
        A(f"v_xor_b32 v{ta+t}, {t*32:#x}, v{ta}")
def w_frags(wr):
    for k in range(4):
        for h in range(2):
            r = fWF + 4*k + 2*h
            A(f"ds_read_b64_tr_b16 v[{r}:{r+1}], v{wr} offset:{k*4096 + h*2048}")
def d_frags(ta):
    for tau in range(4):
        A(f"ds_read_b64_tr_b16 v[{fDF+2*tau}:{fDF+2*tau+1}], v{ta+tau}")
A(f"s_waitcnt vmcnt({7 if VT else 8})")
for T in range(2):
    for t in range(4):
        r = vKF + (T*4+t)*4
        A(f"ds_read_b128 v[{r}:{r+3}], v{vKA+t} offset:{T*4096}")
sk = L("nqp"); skm = L("mbw")
if OPT["mbg"] == 3:
    A(f"s_cmp_lt_u32 s3, 4\ns_cbranch_scc1 {skm}")
    A(f"s_waitcnt vmcnt(0)\ns_branch {sk}")
    A.label(skm)
    A.mute = True
A("s_barrier")
A(f"s_cmp_lt_u32 s3, 4\ns_cbranch_scc1 {skm}")
SX("s40", XL, ("s3", 0, 2, 8))
VX(82, 80, "s40", (0, 6, 2))
VX(83, 80, "s40", (2, 1, 7), (4, 2, 3))
A(f"v_lshlrev_b32 v84, 16, v{wC}\nv_and_b32 v85, 0xffff0000, v{wC}")
A(f"v_mul_f32 v86, {f32(-math.log2(math.e))}, v84\nv_mul_f32 v87, {f32(-math.log2(math.e))}, v85")
A("v_exp_f32 v86, v86\nv_exp_f32 v87, v87\nv_add_f32 v86, 1.0, v86\nv_add_f32 v87, 1.0, v87")
A("v_rcp_f32 v86, v86\nv_rcp_f32 v87, v87\nv_mul_f32 v84, v84, v86\nv_mul_f32 v85, v85, v87")
A("v_cvt_pk_bf16_f32 v84, v84, v85\nds_write_b32 v82, v84")
A("ds_read2_b64 v[144:147], v83 offset0:0 offset1:4\nds_read2_b64 v[148:151], v83 offset0:8 offset1:12")
VX(81, 80, 0, (2, 4, 7), (3, 2, 5), (0, 2, 3))
SX("s40", 0, ("s3", 0, 2, 5)); A(f"v_xor_b32 v81, s40, v81\nv_add_u32 v81, {PA}, v81")
for k in range(2):
    for sg in range(2):
        for hh in range(2):
            r = 128 + sg*8 + k*4 + hh*2
            A(f"ds_read_b64_tr_b16 v[{r}:{r+1}], v81 offset:{sg*8192 + k*4096 + hh*2048}")
SX("s40", 0, ("s58", 2, 0, 3), ("s7", 0))
A("s_cmp_eq_u32 s40, 16\ns_cselect_b32 s41, 1.0, 0")
for i in range(8): A(f"v_mov_b32 v{88+i}, s41")
VX(80, 81, 0, (5, 1, 12), (4, 1, 6), (2, 2, 4))
SX("s41", MGT, ("s58", 13), ("s3", 0, 2, 10), ("s46", 0))
A(f"v_mov_b32 v97, {sTAG}\nv_mov_b32 v99, {sTAG}")
A("s_waitcnt lgkmcnt(0)")
for k in range(2):
    for sg in range(2):
        mfma(88 + 4*sg, 144 + 4*k, 128 + sg*8 + k*4, 88 + 4*sg)
A("v_cmp_gt_u32 vcc, 32, v0")
A("v_cndmask_b32 v84, v92, v88, vcc")
pack4(84, 96, 98, 85)
setexec(0x11111111, 0x11111111)
A(f"buffer_store_dwordx4 v[96:99], v80, {RW}, s41 offen sc1")
fullexec()
STAMP(9)
A(f"s_waitcnt vmcnt(1)\ns_branch {sk}")
A.label(skm)
A.mute = False
def q_load():
    A(f"buffer_load_dwordx4 v[{vQ}:{vQ+3}], v{vQO}, {RW}, s44 offen sc1")
def q_chk():
    A(f"v_xor_b32 v{T0}, {sTAG}, v{vQ+1}\nv_bitop3_b32 v{T0}, v{vQ+3}, {sTAG}, v{T0} bitop3:0xbe\nv_cmp_ne_u32 vcc, 0, v{T0}")
poll(q_load, q_chk, sleep=OPT['s2'])
STAMP(4)
A(f"v_mov_b32 v{vQ+1}, v{vQ+2}")
A(f"ds_write_b64 v{vQW}, v[{vQ}:{vQ+1}]")
A.label(sk)
A("s_waitcnt lgkmcnt(0)\ns_barrier")
STAMP(5)
for t in range(4):
    A(f"ds_read_b128 v[{vQF+4*t}:{vQF+4*t+3}], v{vQR} offset:{t*512}")
if GB1: gu_dma()
if OPT["g_b1"]: g_dma()
A("s_waitcnt lgkmcnt(0)")
def v_tr(kb, T):
    r = vVF + kb*4 + T*2
    A(f"ds_read_b64_tr_b16 v[{r}:{r+1}], v{vVR} offset:{(32*kb+16*T)*256}")
EARLY_T = [0, 1] if OPT['ser'] else []
for kb in range(8):
    if kb < 4:
        for T in range(2):
            mfma(vS + 4*T, vKF + (T*4+kb)*4, vQF + 4*kb, None if kb == 0 else vS + 4*T)
    for T in EARLY_T: v_tr(kb, T)
for i in range(8):
    A(f"v_add_f32_dpp v{vS+i}, v{vS+i}, v{vS+i} row_ror:4 {DPPM}")
A(f"v_max3_f32 v{T0}, v{vS}, v{vS+1}, v{vS+2}\nv_max3_f32 v{T2}, v{vS+3}, v{vS+4}, v{vS+5}")
A(f"v_max3_f32 v{T0}, v{T0}, v{vS+6}, v{vS+7}\nv_max_f32 v{T3}, v{T0}, v{T2}\nv_max_f32 v{T0}, v{T0}, v{T2}")
A(f"v_permlane32_swap_b32 v{T0}, v{T3}")
A(f"v_max_f32 v{T2}, v{T0}, v{T3}\nv_max_f32 v{T0}, v{T0}, v{T3}")
A(f"v_permlane16_swap_b32 v{T0}, v{T2}")
A(f"v_max_f32 v{T0}, v{T0}, v{T2}")
A(f"ds_write_b32 v{vMW}, v{T0}")
STAMP(14)
if OPT["dn_p"] == 2: dn_dma()
if OPT["dn_p"] == 3: u_dma()
A("s_waitcnt lgkmcnt(0)\ns_barrier")
A(f"ds_read_b128 v[{vQF}:{vQF+3}], v{vMX}\nds_read_b128 v[{vQF+4}:{vQF+7}], v{vMX} offset:16")
A("s_waitcnt lgkmcnt(0)")
A(f"v_max3_f32 v{T0}, v{vQF}, v{vQF+1}, v{vQF+2}\nv_max3_f32 v{T2}, v{vQF+3}, v{vQF+4}, v{vQF+5}")
A(f"v_max3_f32 v{T0}, v{T0}, v{vQF+6}, v{vQF+7}\nv_max_f32 v{T0}, v{T0}, v{T2}")
A(f"v_mul_f32 v{vST}, s55, v{T0}")
for i in range(8):
    A(f"v_fma_f32 v{vS+i}, v{vS+i}, s55, -v{vST}")
for i in range(8):
    A(f"v_exp_f32 v{vS+i}, v{vS+i}")
for i in range(4):
    A(f"v_cvt_pk_bf16_f32 v{vP+i}, v{vS+2*i}, v{vS+2*i+1}")
A(f"ds_write_b128 v{vPW}, v[{vP}:{vP+3}]")
rowsum([vS, vS+4])
A(f"v_add_f32 v{T0}, v{vS}, v{vS+4}\nv_add_f32 v{T3}, v{vS}, v{vS+4}")
A(f"v_permlane32_swap_b32 v{T0}, v{T3}")
A(f"v_add_f32 v{T2}, v{T0}, v{T3}\nv_add_f32 v{T0}, v{T0}, v{T3}")
A(f"v_permlane16_swap_b32 v{T0}, v{T2}")
A(f"v_add_f32 v{T0}, v{T0}, v{T2}")
A(f"ds_write_b32 v{vMW}, v{T0} offset:128")
if OPT["dn_p"] == 3: dn_dma()
A("s_waitcnt lgkmcnt(0)\ns_barrier")
STAMP(3)
if STAMPS: A("s_waitcnt lgkmcnt(0)")
LATE_T = [T for T in range(2) if T not in EARLY_T]
A(f"ds_read_b128 v[{vQF}:{vQF+3}], v{vMX} offset:128\nds_read_b128 v[{vQF+4}:{vQF+7}], v{vMX} offset:144")
for kb in range(8):
    r = vKF + kb*4
    A(f"ds_read_b128 v[{r}:{r+3}], v{vPR} offset:{kb*256}")
def st_pub(vm=None):
    sk = L("nst"); sk2 = L("nsu")
    A(f"s_cmp_lg_u32 s3, 0\ns_cbranch_scc1 {sk}")
    A("s_waitcnt lgkmcnt(8)")
    rowsum([vQF, vQF+4])
    A(f"v_add_f32 v{vST+1}, v{vQF}, v{vQF+4}")
    A("s_mov_b64 exec, 15")
    A(f"buffer_store_dwordx2 v[{vST}:{vST+1}], v{vSAD}, {RW}, s54 offen")
    fullexec()
    if vm is not None:
        A(f"s_waitcnt vmcnt({vm})\ns_branch {sk2}")
    A.label(sk)
    if vm is not None:
        A(f"s_waitcnt vmcnt({vm-1})")
        A.label(sk2)
if LATE_T:
    st_pub(1)
    A("s_waitcnt lgkmcnt(0)\ns_barrier")
    STAMP(6)
    if STAMPS: A("s_waitcnt lgkmcnt(0)")
    per = len(LATE_T)
    AHEAD = 8 if per == 1 else 6
    for kb in range(AHEAD):
        for T in LATE_T: v_tr(kb, T)
    for kb in range(8):
        A(f"s_waitcnt lgkmcnt({(min(8, AHEAD + kb) - kb - 1) * per})")
        mfma(vOA, vVF + kb*4, vKF + kb*4, None if kb == 0 else vOA)
        if AHEAD + kb < 8:
            for T in LATE_T: v_tr(AHEAD + kb, T)
else:
    st_pub()
    if OPT["dn_p"] == 1: dn_dma()
    for kb in range(8):
        A(f"s_waitcnt lgkmcnt({7-kb})")
        mfma(vOA, vVF + kb*4, vKF + kb*4, None if kb == 0 else vOA)
setexec(0x000f000f, 0x000f000f)
A(f"v_cvt_pk_bf16_f32 v{vP}, v{vOA}, v{vOA+1}\nv_cvt_pk_bf16_f32 v{vP+1}, v{vOA+2}, v{vOA+3}")
A(f"buffer_store_dwordx2 v[{vP}:{vP+1}], v{vOAD}, {RW}, s53 offen")
fullexec()
STAMP(7)
A("s_cmp_lt_u32 s4, 7\ns_cbranch_scc1 L_ffn")
A("s_cmp_lg_u32 s3, 0\ns_cbranch_scc1 L_exit")
VX(T1, T2, 0, (3, 1, 14), (0, 3, 11))
A(f"s_mov_b32 s46, {X4 + 7*128:#x}")
poll(lambda: A(f"buffer_load_dword v16, v{T1}, {RW}, s46 offen sc1"), lambda: A(f"v_cmp_eq_u32 vcc, -1, v16"), sleep=8)
A("s_branch L_exit")
A.label("L_ffn")
def mf_loads():
    tagged_loads(16, fMF, "s59")
SX("s55", ST5, ("s4", 8))
SX("s53", G5, ("s63", 10))
A(f"s_add_u32 s54, s53, {US5-G5}")
if OPT["ltouch"]:
    sk = L("nlt")
    A(f"s_cmp_lg_u32 s3, 7\ns_cbranch_scc1 {sk}")
    A(f"buffer_load_dwordx4 v[28:31], v{vQO}, {RW}, s53 offen sc1")
    A(f"buffer_load_dwordx4 v[28:31], v{vQO}, {RW}, s54 offen sc1")
    A(f"buffer_load_dword v28, v{vSAD}, {RW}, s55 offen sc1")
    A.label(sk)
mf_loads()
DL = OPT["dn_late"]
NF = 0
if not GB1 and OPT["dn_p"] != 3:
    if OPT["obar"]: A("s_barrier")
    if not OPT["g_b1"]:
        g_dma(); NF += 2
    u_dma(); NF += 2
if not DL and not OPT["dn_p"]:
    if GB1 and OPT["obar"]: A("s_barrier")
    dn_dma(); NF += 2
fYW, fYR, fWR, fGA, fGR, fSTA, fY6A = 113, 114, 115, 116, 118, 119, 120
fG, fU, fS = 121, 122, 117
wOF, wTA = fMF, 108
if not FF: ffn_frag_addr(fWR, wTA, wTR)
A("s_lshr_b32 s56, s3, 2\ns_and_b32 s57, s3, 3")
VX(fYR, 32, YL0, (0, 6, 4))
A(f"s_lshl_b32 s40, s3, 10\nv_add_u32 v{fYW}, s40, v{fYR}")
VX(fGA, 32, 0, (0, 6, 2))
SX("s61", G5 - 64, ("s63", 2, 0, 12), ("s57", 10), ("s63", 0, 2, 8), ("s56", 7))
A(f"s_add_u32 s62, s61, {US5-G5}")
VX(fGR, 32, 0, (2, 1, 7), (3, 1, 6), (4, 2, 4), (0, 2, 2))
VX(fSTA, 32, 0, (0, 3, 5), (3, 1, 4))
VX(fY6A, 32, 0, (3, 1, 14), (5, 1, 12), (4, 1, 4))
SX("s47", Y4, ("s56", 14), ("s63", 0, 2, 12), ("s57", 10))
SX("s96", Y6, ("s3", 16), ("s63", 5))
A("s_add_u32 s97, s96, 8192\ns_add_u32 s98, s96, 32768\ns_add_u32 s99, s96, 40960")
A(f"s_mov_b32 s41, {f32(1.0/512)}\ns_mov_b32 s43, {f32(1e-5)}")
poll(mf_loads, lambda: tagged_chk([16], 33), first_issued=True, first_wait=NF, sleep=4)
tagged_pack(16)
A(f"ds_write_b128 v{fYW}, v[16:19]")
A("s_waitcnt vmcnt(0) lgkmcnt(0)\ns_barrier")
STAMP(10)
def y_load():
    A(f"buffer_load_dwordx4 v[76:79], v{wOF}, {RW}, s47 offen sc1")
y_load()
if DL: dn_dma()
YO = [16, 20, 24, 28, 32, 36, 100, 104]
if not FF: w_frags(fWR)
for u in range(8):
    A(f"ds_read_b128 v[{YO[u]}:{YO[u]+3}], v{fYR} offset:{u*1024}")
A("s_waitcnt lgkmcnt(0)")
for k in range(4):
    for pi in range(2):
        mfma(wD + 4*pi, YO[4*pi+k], fWF + 4*k, None if k == 0 else wD + 4*pi)
rowsum([wD, wD+4])
A(f"v_permlane16_swap_b32 v{wD}, v{wD+4}")
A(f"v_add_f32 v{wD+1}, v{wD}, v{wD+4}\nv_add_f32 v{wD}, v{wD}, v{wD+4}")
A(f"v_permlane16_swap_b32 v{wD}, v{wD+1}")
A(f"v_cvt_pk_bf16_f32 v126, v{wD}, v{wD+1}")
setexec(0xffff0000, 0x0000ffff)
A(f"buffer_store_dword v126, v{fGA}, {RW}, s62 offen {'' if OPT['uslocal'] else 'sc1'}")
fullexec()
STAMP(1)
def us_loads():
    for k in range(4):
        A(f"buffer_load_dword v{40+k}, v{fGR}, {RW}, s54 offen offset:{256*k} sc1")
if not DL: d_frags(wTA)
poll(y_load, lambda: chk_empty4(76, 33), first_issued=True, first_wait=3 if DL else 1)
STAMP(11)
A(f"ds_write_b128 v{fYW}, v[76:79] offset:8192")
us_loads()
A("s_waitcnt lgkmcnt(0)\ns_barrier")
for u in range(8):
    A(f"ds_read_b128 v[{YO[u]}:{YO[u]+3}], v{fYR} offset:{8192+u*1024}")
for u in range(8):
    A(f"s_waitcnt lgkmcnt({7-u})")
    mfma(wD, YO[u], fWF + 4*(u & 3), None if u == 0 else wD)
A(f"v_add_f32 v{wD}, v{wD}, v{wD+1}\nv_add_f32 v{wD+2}, v{wD+2}, v{wD+3}")
A(f"v_add_f32 v{wD+1}, v{wD}, v{wD+2}\nv_add_f32 v{wD}, v{wD}, v{wD+2}")
A(f"v_permlane16_swap_b32 v{wD}, v{wD+1}")
A(f"v_add_f32 v{fG}, v{wD}, v{wD+1}")
def g_store(fl):
    setexec(0xffff0000, 0x0000ffff)
    A(f"buffer_store_dword v{fG}, v{fGA}, {RW}, s61 offen {fl}")
g_store("")
fullexec()
STAMP(12)
def g_loads():
    A(f"buffer_load_dwordx4 v[24:27], v{fSTA}, {RW}, s55 offen sc1")
    for k in range(4):
        A(f"buffer_load_dword v{20+k}, v{fGR}, {RW}, s53 offen offset:{256*k} sc1")
poll(us_loads, lambda: chk_empty4(40, 33), first_issued=True, first_wait=1)
g_loads()
if DL: d_frags(wTA)
for k in range(4):
    A(f"v_lshlrev_b32 v{44+k}, 16, v{40+k}\nv_and_b32 v{40+k}, 0xffff0000, v{40+k}")
rowsum([44, 40])
A(f"v_mov_b32 v{fU}, v44\nv_mov_b32 v{fS}, v40")
def g_chk():
    A("v_add_f32 v24, v24, v26\nv_add_f32 v25, v25, v27")
    A("v_add_f32 v20, v20, v21\nv_add_f32 v22, v22, v23")
    A(f"v_add_f32_dpp v24, v24, v24 quad_perm:[1,0,3,2] {DPPM}\nv_add_f32_dpp v25, v25, v25 quad_perm:[1,0,3,2] {DPPM}")
    A("v_add_f32 v20, v20, v22")
    A(f"v_add_f32_dpp v24, v24, v24 quad_perm:[2,3,0,1] {DPPM}\nv_add_f32_dpp v25, v25, v25 quad_perm:[2,3,0,1] {DPPM}")
    A("v_add_f32 v26, v24, v25")
    A("v_cmp_u_f32 vcc, v20, v26")
poll(g_loads, g_chk, first_issued=True)
STAMP(13)
A(f"v_add_f32_dpp v24, v24, v24 row_half_mirror {DPPM}\nv_add_f32_dpp v25, v25, v25 row_half_mirror {DPPM}")
A("v_mov_b32 v26, s43")
A("v_mul_f32 v24, s41, v24")
A("v_fmac_f32 v26, s41, v25")
A("v_fma_f32 v26, -v24, v24, v26")
A(f"v_fma_f32 v20, -v24, v{fU}, v20")
A("v_rsq_f32 v26, v26")
A(f"v_fma_f32 v20, v20, v26, v{fS}")
A("v_max_f32 v21, 0, v20")
A(f"v_mul_f32_dpp v22, v20, v21 row_shl:4 {DPPM}")
pack4(22, 24, 25, 23)
if DL: A("s_waitcnt lgkmcnt(0)")
for tau in range(4):
    d = 32 + 4*tau
    A(f"v_mfma_f32_16x16x16_bf16 v[{d}:{d+3}], v[{fDF+2*tau}:{fDF+2*tau+1}], v[24:25], 0")
setexec(0x01010101, 0x01010101)
for tau in range(4):
    d = 32 + 4*tau
    A(f"buffer_store_dwordx4 v[{d}:{d+3}], v{fY6A}, {RW}, s{96+tau} offen sc1")
STAMP(8)
A("s_waitcnt vmcnt(0)")
g_store("sc1")
if OPT["uslocal"]: A(f"buffer_store_dword v126, v{fGA}, {RW}, s62 offen sc1")
A("s_branch L_exit")

A.seg(1)
A.label("L_W")
def w_common():
    kload(RB, 32); kload(RF, 88)
    A(f"s_load_dword {sTAG}, s[16:17], 0")
    ids2()
    A(f"v_lshl_or_b32 v{wO}, v{T0}, 10, v{T1}")
    srd(RB, 4194304); A("s_movk_i32 s26, 2048")
def wq_setup(sh):
    A(f"v_lshl_or_b32 v{wQ}, v{T0}, 13, v{T1}")
    A("s_mov_b32 s10, 4194304")
    A(f"s_lshl_b32 s48, s3, {12-sh}")
    SX("s43", 0, ("s6", 8), ("s48", 7, 0, 0))
    SX("s44", 0, ("s43", 13), ("s4", 10), ("s46", 0))
def wq_dma():
    A(f"s_add_u32 m0, s48, {WQL}")
    for u in range(4):
        if u: A(f"s_add_u32 s44, s44, {8*8192-1024}")
        A(f"buffer_load_dwordx4 v{wQ}, {RA}, s44 offen offset:{u*1024} {NT} lds")
def c_setup():
    VX(T2, T3, 0, (5, 1, 10), (0, 5, 2))
if "noW" in OPT["abl"]:
    ids2(); A("s_waitcnt lgkmcnt(0)\ns_branch L_exit")
if "noA" in OPT["abl"]: A("s_branch L_nA")
A("s_cmp_ge_u32 s4, 4\ns_cbranch_scc1 L_nA")
A("s_lshl_b32 s49, s58, 7")
A("s_cmp_lt_u32 s3, 256\ns_cbranch_scc1 L_A1")
A("s_sub_u32 s40, s3, 256")
SX("s61", 0, ("s7", 6), ("s40", 2, 0, 0))
A(f"s_mul_i32 s61, s61, 6144\ns_add_u32 s61, s61, s49\ns_add_u32 s62, s61, {8*6144-1024}")
A(f"s_lshl_b32 s40, s40, 5\ns_add_u32 m0, s40, {PA}")
A("s_waitcnt lgkmcnt(0)")
STAMP(1)
A(f"buffer_load_dwordx4 v{wM}, {RC}, s61 offen {NT} lds")
A(f"buffer_load_dwordx4 v{wM}, {RC}, s62 offen offset:1024 {NT} lds")
A(f"s_add_u32 m0, s40, {PA+8192-1024}")
A(f"buffer_load_dwordx4 v{wM}, {RC}, s61 offen offset:1024 {NT} lds")
A(f"buffer_load_dwordx4 v{wM}, {RC}, s62 offen offset:2048 {NT} lds")
A("v_mov_b32 v32, -1\nv_mov_b32 v33, -1\nv_mov_b32 v34, -1\nv_mov_b32 v35, -1")
SX("s54", CLR, ("s49", 9), ("s7", 13), ("s40", 0))
A("v_lshlrev_b32 v38, 4, v0")
if "noclr" in OPT["abl"]: A("v_mov_b32 v38, 0x7ffffff0")
srd(RW, WS_BYTES)
A(f"buffer_store_dwordx4 v[32:35], v38, {RW}, s54 offen sc1")
A(f"buffer_store_dwordx4 v[32:35], v38, {RW}, s54 offen offset:1024 sc1")
cont(5)
w_common()
if OPT["pf"] == 2: code_prefetch(T2, vPF)
wq_setup(0)
AH = OPT["ahold"]
if AH < 8:
    A("s_barrier")
    wq_dma()
tr_setup()
if OPT["abl"]:
    A(f"s_waitcnt vmcnt({3 + (4 if AH < 8 else 0)})"); STAMP(8)
A(f"s_waitcnt vmcnt({4 if AH < 8 else 0}) lgkmcnt(0)")
if OPT["abl"]: STAMP(9)
A(f"s_add_u32 {sTAG}, {sTAG}, {TAGC:#x}")
A("s_barrier")
if AH == 8:
    A("s_barrier")
    wq_dma()
A("s_branch L_B")
A.seg(3)
A.label("L_A1")
c_setup()
VX(36, T3, 0, (4, 1, 10), (5, 1, 8), (0, 4, 4))
A("s_movk_i32 s26, 2048")
A("s_waitcnt lgkmcnt(0)")
STAMP(1)
A(f"buffer_load_dword v{wC}, v{T2}, {RE}, s46 offen {SNT}")
A(f"buffer_load_dwordx4 v[{wX}:{wX+3}], v36, {RD}, 0 offen {SNT}")
A(f"buffer_load_dwordx4 v[{wX+4}:{wX+7}], v36, {RD}, 0 offen offset:512 {SNT}")
VX(37, T3, 0, (4, 1, 10), (0, 4, 1))
A(f"s_lshr_b32 s50, s3, 1\ns_add_u32 s50, s50, s49\nv_mov_b32 v{wXS}, 0")
A(f"buffer_load_short_d16_hi v{wXS}, v37, {RD}, s50 offen {SNT}")
if AH < 8: A("s_barrier")
w_common()
wq_setup(0)
tr_setup()
VX(39, 32, 0, (4, 1, 6), (2, 2, 4))
SX("s53", H1G, ("s58", 12), ("s3", 10), ("s46", 0))
A("s_cmp_eq_u32 s7, 0\ns_cselect_b32 s54, 1.0, 0")
unit_pre("0", "s54", PA)
silu_operand(3)
if OPT["abl"]: STAMP(6)
A(f"s_waitcnt vmcnt(0)")
A("v_mov_b32 v36, 0\nv_mov_b32 v37, 0\nv_mov_b32 v38, 0x3f803f80")
for i in range(8):
    A(f"v_dot2c_f32_bf16 v36, v{wX+i}, v38\nv_dot2c_f32_bf16 v37, v{wX+i}, v{wX+i}")
for m in ("quad_perm:[1,0,3,2]", "quad_perm:[2,3,0,1]", "row_half_mirror", "row_mirror"):
    A(f"v_add_f32_dpp v36, v36, v36 {m} {DPPM}\nv_add_f32_dpp v37, v37, v37 {m} {DPPM}")
A("v_mov_b32 v38, v36\nv_mov_b32 v35, v37")
A("v_permlane32_swap_b32 v36, v38\nv_permlane32_swap_b32 v37, v35")
A("v_add_f32 v36, v36, v38\nv_add_f32 v37, v37, v35")
A(f"v_mul_f32 v36, {f32(1.0/512)}, v36\nv_mov_b32 v38, {f32(1e-5)}\nv_fmac_f32 v38, {f32(1.0/512)}, v37")
A("v_fma_f32 v38, -v36, v36, v38\nv_rsq_f32 v38, v38")
A(f"v_sub_f32 v{wXS}, v{wXS}, v36\nv_mul_f32 v{wXS}, v{wXS}, v38")
A(f"s_add_u32 {sTAG}, {sTAG}, {TAGC:#x}")
A(f"v_mov_b32 v{wD+9}, {sTAG}\nv_mov_b32 v{wD+11}, {sTAG}")
if OPT["abl"]: STAMP(7)
A("s_waitcnt lgkmcnt(0)\ns_barrier")
if OPT["abl"]: STAMP(10)
unit_go()
A(f"v_fma_f32 v32, v{wXS}, v{wD+4}, v{wD}")
pack4(32, wD+8, wD+10, 33)
setexec(0x11111111, 0)
A(f"buffer_store_dwordx4 v[{wD+8}:{wD+11}], v39, {RW}, s53 offen sc1")
fullexec()
STAMP(14)
if OPT["diag"]:
    A("s_waitcnt vmcnt(0)"); STAMP(13)
if AH == 8: A("s_barrier")
wq_dma()
A("s_branch L_B")
A.seg(2)
A.label("L_nA")
wq_setup(6)
A("s_waitcnt lgkmcnt(0)")
STAMP(1)
if OPT["wqpf"] == 22:
    sk = L("nh0")
    A(f"s_cmp_lt_u32 s3, 256\ns_cbranch_scc1 {sk}")
wq_dma()
if OPT["wqpf"] == 22: A.label(sk)
MBW = False
MBN = OPT["mbg"] == 3
if MBN:
    SX("s51", 0, ("s7", 6), ("s3", 3, 0, 0))
    A("s_mul_i32 s51, s51, 6144\ns_lshl_b32 s42, s3, 4")
    SX("s40", 2048, ("s58", 0, 3, 8)); A("s_add_u32 s51, s51, s40")
    c_setup()
    A(f"buffer_load_dword v{wC}, v{T2}, {RE}, s46 offen {SNT}")
    if OPT["mbwait"] >= 0: A(f"s_waitcnt vmcnt({OPT['mbwait']})")
    else: A("s_barrier")
    for j, o in enumerate((0, 128, 2048, 2048+128)):
        A(f"s_add_u32 m0, s42, {PB + j*8192 - o}")
        A(f"buffer_load_dwordx4 v{wM}, {RC}, s51 offen offset:{o} {NT} lds")
cont(6)
w_common()
tr_setup()
A("s_waitcnt lgkmcnt(0)")
A(f"s_add_u32 {sTAG}, {sTAG}, {TAGC:#x}")
A.label("L_B")
if MBW:
    A(f"v_mul_u32_u24 v{wM}, 6144, v{T0}\nv_add_u32 v{wM}, v{wM}, v{T1}")
    srd(RC, 3145728)
    SX("s96", 0, ("s7", 6), ("s3", 3))
    A("s_mul_i32 s96, s96, 6144")
    SX("s40", 2048, ("s58", 8)); A("s_add_u32 s96, s96, s40")
    SX("s97", MGT, ("s58", 13), ("s3", 0, 2, 10), ("s46", 0))
    SX("s40", 0, ("s58", 2, 0, 3), ("s7", 0))
    A("s_cmp_eq_u32 s40, 16\ns_cselect_b32 s98, 1.0, 0")
    VX(122, 32, 0, (5, 1, 12), (4, 1, 6), (2, 2, 4))
srd(RF, 2048)
SX("s47", 0, ("s4", 19), ("s43", 10), ("s46", 0))
wRW, wRR, wOF, wTA = 14, 15, 72, 108
SX("s40", RED, ("s3", 9)); VX(wRW, 32, "s40", (0, 6, 2))
SX("s40", RED, ("s3", 8)); VX(wRR, 32, "s40", (0, 6, 2))
VX(wOF, 32, 0, (0, 3, 7), (3, 1, 6), (4, 2, 4))
SX("s53", H1G, ("s43", 6))
VX(T3, 32, 0, (0, 2, 12))
A("s_xor_b32 s57, s6, 1")
SX("s57", H1G + 4, ("s57", 14), ("s3", 7))
wQA = 73; wQD = 76
VX(wQA, 32, 0, (5, 1, 12), (0, 5, 2))
SX("s56", QG, ("s4", 13), ("s5", 8), ("s3", 7))
A(f"v_add_u32 v{wTA}, s48, v{wTR}")
for t in range(1, 4):
    A(f"v_xor_b32 v{wTA+t}, {t*32:#x}, v{wTA}")
A(f"v_mov_b32 v{wQD+1}, {sTAG}\nv_mov_b32 v{wQD+3}, {sTAG}")
wGA, wCB, wXA, wXAD = 74, 75, 80, 81
tE, tOUT, tBP, tOF, tL16 = 84, 114, 115, 72, 116
SX("s59", Y6, ("s5", 15), ("s4", 12))
A("s_cmp_eq_u32 s3, 7\ns_cselect_b32 s40, 0, -1")
A("v_mov_b32 v118, s40\nv_mov_b32 v119, s40\nv_lshlrev_b32 v117, 3, v0")
SX("s41", 0, ("s3", 9), ("s59", 0))
VX(T1, 32, 0, (0, 4, 6), (4, 2, 4))
SX("s51", OG, ("s4", 14), ("s43", 5))
SX("s54", SG, ("s4", 9), ("s43", 7, 0, 7))
A(f"v_lshlrev_b32 v{T0}, 2, v1\nv_xor_b32 v{T0}, v0, v{T0}\nv_and_b32 v{T0}, 7, v{T0}\nv_lshlrev_b32 v{T0}, 3, v{T0}")
A(f"v_lshrrev_b32 v32, 5, v0\nv_lshl_or_b32 v{T0}, v32, 6, v{T0}")
VX(wXAD, 32, 0, (5, 1, 6), (2, 2, 4), (4, 1, 3))
SX("s60", X4, ("s7", 11), ("s3", 10), ("s6", 14), ("s4", 7))
A(f"s_add_u32 s52, s60, {Y4-X4}")
A("v_and_b32 v32, 1, v0\nv_lshlrev_b32 v32, 4, v32\nv_mov_b32 v33, 0x3f80\nv_lshlrev_b32 v32, v32, v33")
A("v_lshrrev_b32 v33, 2, v2\nv_sub_u32 v33, v1, v33\nv_bfe_u32 v34, v0, 1, 1\nv_lshl_or_b32 v33, v33, 1, v34")
for r in range(2):
    A(f"v_cmp_eq_u32 vcc, {r}, v33")
    A(f"v_cndmask_b32 v{tE+r}, 0, v32, vcc")
    A(f"v_mov_b32 v{tE+6+r}, v{tE+r}")
for r in (2, 3, 4, 5):
    A(f"v_mov_b32 v{tE+r}, 0")
VX(38, 33, 0, (0, 1, 3), (5, 1, 1), (4, 1, 2))
SX("s40", 0, ("s4", 0, 2, 4)); A(f"v_add_u32 v{tOUT}, s40, v38")
SX("s40", 0, ("s4", 2, 0, 7)); A(f"v_lshl_add_u32 v{tBP}, v{tOUT}, 1, s40")
SX("s62", 0, ("s4", 2, 0, 10), ("s5", 6))
A(f"v_lshlrev_b32 v{tL16}, 4, v0")
SX("s49", X4, ("s5", 10))
A("s_add_u32 s50, s49, 16384")
SX("s55", ST5, ("s4", 8), ("s7", 5), ("s6", 3))
VX(113, 33, 0, (5, 1, 4), (4, 1, 2))
SX("s61", MGT, ("s7", 12), ("s3", 11))
SX("s40", MGT + 3*32768, ("s5", 11))
A("s_cmp_eq_u32 s3, 2\ns_cselect_b32 s61, s40, s61\ns_cselect_b32 s40, 0, 0x10000\ns_add_u32 s63, s61, s40")
VX(120, 33, 0, (5, 1, 10), (0, 5, 1))
SX("s42", 0, ("s7", 7), ("s3", 6))
A(f"v_mov_b32 v{wXA}, 0")
def blk_frags(off):
    for t in range(4):
        for h in range(2):
            r = wWF + 4*t + 2*h
            A(f"ds_read_b64_tr_b16 v[{r}:{r+1}], v{wTA+t} offset:{off + h*2048}")
def h1_loads():
    tagged_loads(16, wOF, "s53")
    A(f"buffer_load_dword v33, v{T3}, {RW}, s57 offen sc1")
if MBN:
    VX(39, 32, 0, (5, 1, 12), (4, 1, 6), (2, 2, 4))
    sk = L("nmb")
    A(f"s_cmp_lt_u32 s4, 4\ns_cbranch_scc1 {sk}")
    SX("s96", MGT, ("s58", 0, 3, 13), ("s3", 2, 0, 16), ("s3", 0, 2, 10), ("s46", 0))
    SX("s40", 0, ("s58", 2, 1, 3), ("s3", 2, 0, 4), ("s7", 0))
    A("s_cmp_eq_u32 s40, 16\ns_cselect_b32 s97, 1.0, 0")
    SX("s98", PB, ("s3", 2, 0, 14))
    silu_operand(4)
    A.label(sk)
A(f"s_waitcnt vmcnt({OPT['h1at']})")
h1_loads()
A("s_waitcnt vmcnt(3)")
blk_frags(WQL)
STAMP(3)
if OPT["abl"] and "toq" not in OPT["abl"]: A("s_branch L_exit")
poll(h1_loads, lambda: tagged_chk([16], 33, 33), first_issued=True, sleep=OPT["s2"])
STAMP(4)
if OPT["diag"]:
    A(f"s_waitcnt lgkmcnt(0)\ns_mul_i32 s40, {sCNT}, 10\ns_add_u32 s88, s64, s40")
tagged_pack(16)
A("s_waitcnt lgkmcnt(0)")
def blk_mfma(op):
    for t in range(4):
        mfma(wD + 4*t, op, wWF + 4*t, None)
def blk_reduce():
    A(f"v_permlane16_swap_b32 v{wD}, v{wD+4}\nv_permlane16_swap_b32 v{wD+8}, v{wD+12}")
    A(f"v_add_f32 v{wD}, v{wD}, v{wD+4}\nv_add_f32 v{wD+8}, v{wD+8}, v{wD+12}")
    A(f"ds_write2st64_b32 v{wRW}, v{wD}, v{wD+8} offset0:0 offset1:1")
    A("s_waitcnt lgkmcnt(0)\ns_barrier")
def blk_final():
    for i in range(4):
        A(f"ds_read2st64_b32 v[{32+2*i}:{33+2*i}], v{wRR} offset0:{4*i} offset1:{4*i+2}")
    A("s_waitcnt lgkmcnt(0)")
    A("v_add_f32 v32, v32, v33\nv_add_f32 v34, v34, v35\nv_add_f32 v36, v36, v37\nv_add_f32 v38, v38, v39")
    A("v_add_f32 v32, v32, v34\nv_add_f32 v36, v36, v38\nv_add_f32 v32, v32, v36")
blk_mfma(16)
rowsum([wD, wD+4, wD+8, wD+12])
blk_reduce()
sk = L("nq")
A(f"s_cmp_ge_u32 s3, 2\ns_cbranch_scc1 {sk}")
blk_final()
pack4(32, wQD, wQD+2, 33)
setexec(0x11111111, 0x11111111)
A(f"buffer_store_dwordx4 v[{wQD}:{wQD+3}], v{wQA}, {RW}, s56 offen")
fullexec()
A.label(sk)
STAMP(5)
if OPT["abl"]: A("s_branch L_exit")
if MBN:
    sk = L("nmc")
    A(f"s_cmp_lt_u32 s4, 4\ns_cbranch_scc1 {sk}")
    VX(39, 32, 0, (5, 1, 12), (4, 1, 6), (2, 2, 4))
    unit_pre("s97", "s97", "s98")
    A(f"v_mov_b32 v{wD+9}, {sTAG}\nv_mov_b32 v{wD+11}, {sTAG}")
    unit_go()
    A("v_cmp_gt_u32 vcc, 32, v0")
    A(f"v_cndmask_b32 v32, v{wD+4}, v{wD}, vcc")
    pack4(32, wD+8, wD+10, 34)
    setexec(0x11111111, 0x11111111)
    A(f"buffer_store_dwordx4 v[{wD+8}:{wD+11}], v39, {RW}, s96 offen sc1")
    fullexec()
    STAMP(6)
    A.label(sk)
A("s_barrier")
def o_loads():
    A(f"buffer_load_dwordx4 v[104:107], v{T1}, {RW}, s51 offen sc1")
def mc_loads():
    tagged_loads(16, wOF, "s61"); tagged_loads(24, wOF, "s63")
def wo_dma():
    A(f"s_add_u32 m0, s48, {WOL}")
    for u in range(4):
        if u: A(f"s_add_u32 s47, s47, {8*1024-1024}")
        A(f"buffer_load_dwordx4 v{wO}, {RB}, s47 offen offset:{u*1024} {NT} lds")
if MBW:
    SX("s40", PB, ("s3", 10)); A("s_mov_b32 m0, s40")
    A(f"buffer_load_dwordx4 v{wM}, {RC}, s96 offen {NT} lds")
    A(f"s_add_u32 m0, s40, {8192-128}")
    A(f"buffer_load_dwordx4 v{wM}, {RC}, s96 offen offset:128 {NT} lds")
sk = L("nc0")
A(f"s_cmp_ge_u32 s3, 3\ns_cbranch_scc1 {sk}")
if not MBW and not MBN: mc_loads()
A(f"s_cmp_lg_u32 s58, 0\ns_cbranch_scc1 {sk}")
A(f"buffer_load_short_d16_hi v{wXA}, v120, {RD}, s42 offen")
A.label(sk)
A(f"buffer_store_dwordx2 v[118:119], v117, {RW}, s41 offen sc1")
if OPT["ltouch"]: o_loads()
WOE = MBW and OPT["wo_mb"]
if MBW:
    if WOE:
        A("s_barrier"); wo_dma()
    A(f"ds_read2_b64 v[{wXO}:{wXO+3}], v83 offset0:0 offset1:4\nds_read2_b64 v[{wXO+4}:{wXO+7}], v83 offset0:8 offset1:12")
    unit_pre("s98", "s98", PB)
    A(f"v_mov_b32 v{wD+9}, {sTAG}\nv_mov_b32 v{wD+11}, {sTAG}")
    A(f"s_waitcnt vmcnt({6 if WOE else 2}) lgkmcnt(0)\ns_barrier")
    sk = L("nmw")
    A(f"s_cmp_lt_u32 s3, 4\ns_cbranch_scc1 {sk}")
    unit_go()
    A("v_cmp_gt_u32 vcc, 32, v0")
    A(f"v_cndmask_b32 v32, v{wD+4}, v{wD}, vcc")
    pack4(32, wD+8, wD+10, 33)
    setexec(0x11111111, 0x11111111)
    A(f"buffer_store_dwordx4 v[{wD+8}:{wD+11}], v122, {RW}, s97 offen sc1")
    fullexec()
    STAMP(6)
    A.label(sk)
if OPT["gtrg"]:
    A("s_cmp_lg_u32 s3, 3\ns_cbranch_scc1 L_trgd")
    if OPT["gmask"] == 7:
        VX(39, 32, 0, (0, 3, 7)); A(f"s_movk_i32 s40, {TRG}")
    else:
        VX(39, 32, 0, (0, 2, 7)); A(f"s_movk_i32 s40, {TRG + 512}")
    A(f"s_mov_b32 {sCNT}, 0")
    A.label("L_trg")
    A(f"buffer_load_dword v33, v39, {RW}, s40 offen sc1")
    A("s_waitcnt vmcnt(0)")
    A(f"v_cmp_ne_u32 vcc, {sTAG}, v33")
    A("s_cbranch_vccz L_trgd")
    A(f"s_sleep 2\ns_add_u32 {sCNT}, {sCNT}, 1\ns_cmp_lt_u32 {sCNT}, {OPT['trgmax']}\ns_cbranch_scc1 L_trg")
    A.label("L_trgd")
    A("s_barrier")
if not WOE: wo_dma()
sk = L("nc1")
A(f"s_cmp_ge_u32 s3, 3\ns_cbranch_scc1 {sk}")
if MBW or MBN: A("s_waitcnt vmcnt(1)")
poll(mc_loads, lambda: tagged_chk([16, 24], 33), first_issued=not (MBW or MBN), first_wait=4, sleep=2)
tagged_pack(16); tagged_pack(24)
for i in range(2):
    for t in range(2):
        mfma(wD + 8*i + 4*t, 16 + 8*i, tE + 4*t, None)
rowsum([wD, wD+4, wD+8, wD+12])
A(f"v_permlane16_swap_b32 v{wD}, v{wD+4}\nv_permlane16_swap_b32 v{wD+8}, v{wD+12}")
A(f"v_add_f32 v{wGA}, v{wD}, v{wD+4}\nv_add_f32 v{wCB}, v{wD+8}, v{wD+12}")
STAMP(2)
A.label(sk)
A("s_waitcnt vmcnt(0)")
blk_frags(WOL)
STAMP(7)
wF = 100
sg_load = lambda: A(f"buffer_load_dwordx2 v[16:17], v{T0}, {RW}, s54 offen sc1")
await_any(sg_load, lambda: A("v_cmp_o_f32 vcc, v17, v17"), OPT["s1"])
poll(sg_load, lambda: A("v_cmp_u_f32 vcc, v17, v17"), first_issued=True, sleep=2*OPT["s2"])
o_loads()
A(f"v_max_f32_dpp v18, v16, v16 quad_perm:[1,0,3,2] {DPPM}")
A(f"v_max_f32_dpp v18, v18, v18 quad_perm:[2,3,0,1] {DPPM}")
A(f"v_max_f32_dpp v18, v18, v18 row_half_mirror {DPPM}")
A("v_sub_f32 v16, v16, v18\nv_exp_f32 v16, v16\nv_mul_f32 v17, v16, v17")
for m in ("quad_perm:[1,0,3,2]", "quad_perm:[2,3,0,1]", "row_half_mirror"):
    A(f"v_add_f32_dpp v17, v17, v17 {m} {DPPM}")
A(f"v_rcp_f32 v17, v17\nv_mul_f32 v{wF}, v16, v17")
STAMP(8)
poll(o_loads, lambda: chk_empty4(104, 33), first_issued=True, first_wait=0)
STAMP(9)
A("s_waitcnt lgkmcnt(0)")
blk_mfma(104)
for t in range(4):
    A(f"v_mul_f32_dpp v{wD+4*t}, v{wF}, v{wD+4*t} row_newbcast:0 {DPPM}")
for r in range(1, 4):
    for t in range(4):
        A(f"v_fmac_f32_dpp v{wD+4*t}, v{wF}, v{wD+4*t+r} row_newbcast:{r} {DPPM}")
blk_reduce()
A("s_cmp_gt_u32 s3, 2\ns_cbranch_scc1 L_exit")
A("s_cmp_eq_u32 s3, 2\ns_cbranch_scc1 L_fin")
blk_final()
A(f"v_fma_f32 v32, v32, v{wGA}, v{wXA}")
A(f"v_mul_f32 v36, v32, v{wCB}")
A(f"v_mov_b32_dpp v33, v32 quad_perm:[1,1,3,3] {DPPM}")
A(f"v_mov_b32_dpp v37, v36 quad_perm:[1,1,3,3] {DPPM}")
A("v_cvt_pk_bf16_f32 v34, v32, v33\nv_cvt_pk_bf16_f32 v38, v36, v37")
A(f"v_mov_b32_dpp v35, v34 quad_perm:[2,2,2,2] {DPPM}")
A(f"v_mov_b32_dpp v39, v38 quad_perm:[2,2,2,2] {DPPM}")
setexec(0x11111111, 0x11111111)
A(f"buffer_store_dwordx2 v[38:39], v{wXAD}, {RW}, s52 offen sc1")
A(f"buffer_store_dwordx2 v[34:35], v{wXAD}, {RW}, s60 offen sc1")
STAMP(10)
A("s_branch L_exit")
A.label("L_fin")
def x4_loads():
    A(f"buffer_load_dwordx4 v[16:19], v{tOF}, {RW}, s49 offen sc1")
    A(f"buffer_load_dwordx4 v[20:23], v{tOF}, {RW}, s50 offen sc1")
def x4_chk():
    A("v_max3_u32 v33, v16, v17, v18\nv_max3_u32 v34, v19, v20, v21\nv_max3_u32 v33, v33, v22, v23\nv_max_u32 v33, v33, v34\nv_cmp_eq_u32 vcc, -1, v33")
poll(x4_loads, x4_chk)
STAMP(11)
for hp in range(2):
    for t in range(2):
        mfma(wD + 4*t, 16 + 4*hp, tE + 4*t, None if hp == 0 else wD + 4*t)
rowsum([wD, wD+4])
A(f"v_permlane16_swap_b32 v{wD}, v{wD+4}")
A(f"v_add_f32 v42, v{wD}, v{wD+4}")
A("v_mov_b32 v43, v42\nv_mul_f32 v44, v42, v42")
A("v_permlane16_swap_b32 v43, v44")
A("v_add_f32 v43, v43, v44")
for m in ("quad_perm:[1,0,3,2]", "quad_perm:[2,3,0,1]", "row_half_mirror", "row_mirror"):
    A(f"v_add_f32_dpp v43, v43, v43 {m} {DPPM}")
setexec(0x00010001, 0x00010001)
A(f"buffer_store_dword v43, v113, {RW}, s55 offen")
fullexec()
STAMP(12)
A(f"ds_bpermute_b32 v42, v{tBP}, v42\nds_bpermute_b32 v{wGA}, v{tBP}, v{wGA}")
def y6_loads():
    for i in range(4):
        A(f"buffer_load_dwordx4 v[{16+4*i}:{19+4*i}], v{tL16}, {RW}, s59 offen offset:{1024*i} sc1")
def y6_chk():
    for r in range(4):
        A(f"v_add_f32 v{16+r}, v{16+r}, v{20+r}\nv_add_f32 v{24+r}, v{24+r}, v{28+r}")
    for r in range(4):
        A(f"v_add_f32 v{16+r}, v{16+r}, v{24+r}")
    A("v_permlane32_swap_b32 v16, v17\nv_permlane32_swap_b32 v18, v19")
    A("v_add_f32 v16, v16, v17\nv_add_f32 v18, v18, v19")
    A("v_permlane16_swap_b32 v16, v18")
    A("v_add_f32 v16, v16, v18")
    A("v_cmp_u_f32 vcc, v16, v16")
await_any(lambda: A(f"buffer_load_dword v16, v{tL16}, {RW}, s59 offen sc1"), lambda: A("v_cmp_o_f32 vcc, v16, v16"), 2)
poll(y6_loads, y6_chk)
STAMP(13)
for m in ("row_ror:8", "row_ror:4", "row_ror:2"):
    A(f"v_add_f32_dpp v16, v16, v16 {m} {DPPM}")
A("s_waitcnt lgkmcnt(0)")
A(f"v_fma_f32 v16, v16, v{wGA}, v42")
A("v_cvt_pk_bf16_f32 v16, v16, v16")
setexec(0x00030003, 0x00030003)
A(f"buffer_store_short v16, v{tOUT}, {RF}, s62 offen")
A("s_cmp_lg_u32 s2, 128\ns_cbranch_scc1 L_exit")
A(f"s_sub_u32 s40, {sTAG}, {TAGC-1:#x}")
A("v_mov_b32 v17, s40\nv_mov_b32 v18, 0")
A("s_mov_b64 exec, 1")
A(f"buffer_store_dword v17, v18, {RW}, 0 offen sc1")

A("s_branch L_exit")
A.seg(40)
A.label("L_exit")
if STAMPS == 1:
    STAMP(15)
    A("s_waitcnt lgkmcnt(0)")
    A("s_mov_b64 exec, 1")
    SX("s40", DBG, ("s2", 9), ("s3", 6))
    A("v_mov_b32 v0, 0")
    for q in range(4):
        for i in range(4):
            A(f"v_mov_b32 v{4+4*q+i}, s{64+2*(4*q+i)}")
        A(f"buffer_store_dwordx4 v[{4+4*q}:{7+4*q}], v0, {RW}, s40 offen offset:{16*q}")
if STAMPS == 2:
    STAMP(15)
    A("s_load_dwordx2 s[32:33], s[0:1], 96")
    A("s_mov_b32 s34, 256\ns_mov_b32 s35, 0x00020000")
    A("s_waitcnt lgkmcnt(0)")
    fullexec()
    A("v_mov_b32 v4, 0\nv_mbcnt_lo_u32_b32 v5, -1, 0\nv_lshlrev_b32 v5, 2, v5")
    A("s_cmp_ge_u32 s2, 128\ns_cbranch_scc1 L_dw")
    A("s_cmp_lg_u32 s3, 0\ns_cbranch_scc1 L_end")
    A("s_not_b32 s40, s64\nv_writelane_b32 v4, s40, 0")
    for i, st in enumerate([9, 2, 5, 7, 10, 11, 8]):
        A(f"v_writelane_b32 v4, s{64+2*st}, {i+1}")
    A("s_branch L_dd")
    A.label("L_dw")
    A("s_cmp_lg_u32 s3, 2\ns_cbranch_scc1 L_end")
    for i, st in enumerate([0, 3, 4, 5, 7, 9, 11, 15]):
        A(f"v_writelane_b32 v4, s{64+2*st}, {i+8}")
    A.label("L_dd")
    A("s_mov_b64 exec, 0xffff")
    A("buffer_atomic_umax v4, v5, s[32:35], 0 offen")
A.label("L_end")
A("s_endpgm")
A.label("L_codeend")
A.raw(f".fill (16384 - (L_codeend - {NAME}_kernel)) / 4, 4, 0xbf810000")
A.raw(f""".section .rodata,"a"
.p2align 6
.amdhsa_kernel {NAME}_kernel
  .amdhsa_next_free_vgpr 152
  .amdhsa_next_free_sgpr 100
  .amdhsa_accum_offset 152
  .amdhsa_group_segment_fixed_size 0
  .amdhsa_kernarg_size 112
  .amdhsa_user_sgpr_count 2
  .amdhsa_user_sgpr_kernarg_segment_ptr 1
  .amdhsa_system_sgpr_workgroup_id_x 1
  .amdhsa_float_denorm_mode_32 3
.end_amdhsa_kernel""")
sys.stdout.write(A.text())
sys.stderr.write(f"instrs={A.ninstr} nops={A.nops}\n")
```

```python
import sys, math, struct
sys.path.insert(0, "work")
from asmlib import Asm

NAME = "adaLN_cond__sliding_block_cached__glu_gated_reglu__decode"
OPT = dict(stamps=0, nt="nt", limit=20000, refresh=255, psleep=0, pf=4, pfnt="", smallnt="", slow=0, gtrg=0, gw=7, gmask=7, fpf=0, wo_after_c=0, fpfbar=1, fpfl="", uslocal=1, qn=4, trg=0, mb_at="kv", touch=0, ltouch=1, ahold=8, wqpf=1, wqpfl="", ehold=0, depth=0, ffn_first=0, ser=1, obar=1, gu_b1=0, dn_late=0, dn_p=0, diag=0, rot=7, vt=1, mbg=3, mbwait=-1, g_b1=0, wo_mb=1, h1at=1, depth_until=16, qpipe=1, s1=6, s2=1, sent=1, trgmax=24, dwg=10, dwv=1, da=0, db=15, dm=20, kvbar=1, abl="")
for a in sys.argv[1:]:
    k, v = a.split("=")
    OPT[k] = int(v) if v.lstrip("-").isdigit() else v
STAMPS = OPT["stamps"]; NT = OPT["nt"] if OPT["nt"] != "-" else ""
LIMIT = OPT["limit"]; REFRESH = OPT["refresh"]; SNT = OPT["smallnt"]

def f32(x): return "0x%08x" % struct.unpack("<I", struct.pack("<f", x))[0]

TRG = 0x1000; H1G = 0x8000; QG = 0x10000; MGT = 0x20000
CLR = 0x100000
OG = CLR; MG = CLR + 0x20000; X4 = CLR + 0x30000; Y4 = CLR + 0x38000
G5 = CLR + 0x40000; SG = CLR + 0x5C000; ST5 = CLR + 0x5D000; US5 = CLR + 0x60000
Y6 = 0x180000; DBG = 0x400000
WS_BYTES = 0x800000
TAGC = 0x9E3779B9
VREG = 65536; PA = 131072; XL = 147456; QL = XL + 1024; PL = QL + 2048; MISC = PL + 2048
FG = 0; FD = 32768; YL0 = 131072
WQL = 0; WOL = 32768; PB = 65536; RED = XL + 1024
LDS_BYTES = MISC + 256
C1 = 128 ** -0.5 * math.log2(math.e)

A = Asm()
hdr = open(f"cdna_kernels/{NAME}.s.ref").read().split("\n")
for ln in hdr:
    if ln.startswith("; @launch"):
        A.raw(f"; @launch grid=(256,1,1) block=(512,1,1) lds={LDS_BYTES}")
        break
    A.raw(ln)
A.raw('.amdgcn_target "amdgcn-amd-amdhsa--gfx950"')
A.raw(f".text\n.globl {NAME}_kernel\n.p2align 8\n.type {NAME}_kernel,@function\n{NAME}_kernel:")

RA, RB, RW, RC, RD, RE, RF = "s[8:11]", "s[12:15]", "s[16:19]", "s[20:23]", "s[24:27]", "s[28:31]", "s[32:35]"
sTAG, sCNT, sT = "s36", "s37", "s45"
def STAMP(n):
    if STAMPS:
        A(f"s_memrealtime s[{64+2*n}:{65+2*n}]")
DPPM = "row_mask:0xf bank_mask:0xf"
lbl = [0]
def L(p):
    lbl[0] += 1
    return f"L_{p}_{lbl[0]}"
def srd(r, nbytes):
    b = int(r[2:r.index(":")])
    A((f"s_movk_i32 s{b+2}, {nbytes}" if nbytes < 32768 else f"s_mov_b32 s{b+2}, {nbytes}") + f"\ns_mov_b32 s{b+3}, s11")
def kload(r, off):
    b = int(r[2:r.index(":")])
    A(f"s_load_dwordx2 s[{b}:{b+1}], s[0:1], {off}")

def SX(dst, const, *terms):
    first = True
    for t in terms:
        src, rs, w, ls = (t[0], 0, 0, t[1]) if len(t) == 2 else t
        d = dst if first else sT
        cur = src
        if w:
            if rs == 0: A(f"s_and_b32 {d}, {cur}, {(1<<w)-1}")
            else: A(f"s_bfe_u32 {d}, {cur}, {(w<<16)|rs:#x}")
            cur = d
        elif rs:
            A(f"s_lshr_b32 {d}, {cur}, {rs}"); cur = d
        if first:
            if ls: A(f"s_lshl_b32 {d}, {cur}, {ls}")
            elif cur != d: A(f"s_mov_b32 {d}, {cur}")
        else:
            if 1 <= ls <= 4: A(f"s_lshl{ls}_add_u32 {dst}, {cur}, {dst}")
            else:
                if ls: A(f"s_lshl_b32 {sT}, {cur}, {ls}"); cur = sT
                A(f"s_add_u32 {dst}, {dst}, {cur}")
        first = False
    if const: A(f"s_add_u32 {dst}, {dst}, {const:#x}")
def VX(dst, tmp, add, *terms):
    first = True
    for rs, w, ls in terms:
        if rs == 4 and w == 2: cur = "v1"
        elif rs == 0 and w == 4: cur = "v2"
        elif rs == 0 and w == 6: cur = "v0"
        else:
            d = f"v{dst}" if first else f"v{tmp}"
            if rs + w == 6: A(f"v_lshrrev_b32 {d}, {rs}, v0")
            elif rs == 0: A(f"v_and_b32 {d}, {(1<<w)-1}, v0")
            else: A(f"v_bfe_u32 {d}, v0, {rs}, {w}")
            cur = d
        if first:
            if ls: A(f"v_lshlrev_b32 v{dst}, {ls}, {cur}")
            elif cur != f"v{dst}": A(f"v_mov_b32 v{dst}, {cur}")
        else:
            if ls: A(f"v_lshl_or_b32 v{dst}, {cur}, {ls}, v{dst}")
            else: A(f"v_or_b32 v{dst}, {cur}, v{dst}")
        first = False
    if add: A(f"v_add_u32 v{dst}, {add}, v{dst}")

def cont(n):
    t = L("c")
    A(f"s_branch {t}")
    A.seg(n); A.label(t)
def await_any(load, valid, sleep):
    if not OPT["sent"]: return
    top, done = L("aw"), L("awd")
    A(f"s_mov_b32 {sCNT}, 0")
    A.label(top)
    load()
    A("s_waitcnt vmcnt(0)")
    valid()
    A(f"s_cbranch_vccnz {done}")
    A(f"s_sleep {sleep}\ns_add_u32 {sCNT}, {sCNT}, 1\ns_cmp_lt_u32 {sCNT}, 64\ns_cbranch_scc1 {top}")
    A.label(done)
def poll(loads, check, first_issued=False, first_wait=0, sleep=0):
    top, done, chk = L("poll"), L("got"), L("chk")
    A(f"s_mov_b32 {sCNT}, 0")
    if first_issued:
        A(f"s_waitcnt vmcnt({first_wait})")
        A(f"s_branch {chk}")
    A.label(top)
    loads()
    A("s_waitcnt vmcnt(0)")
    if first_issued:
        A.label(chk)
    check()
    A(f"s_cbranch_vccz {done}")
    if sleep: A(f"s_sleep {sleep}")
    A(f"s_add_u32 {sCNT}, {sCNT}, 1")
    A(f"s_and_b32 {sT}, {sCNT}, {REFRESH}\ns_cbranch_scc1 {top}")
    A("buffer_wbl2 sc1")
    A(f"s_cmp_lt_u32 {sCNT}, {LIMIT}\ns_cbranch_scc1 {top}")
    A.label(done)
def chk_empty4(r, tmp):
    A(f"v_max3_u32 v{tmp}, v{r}, v{r+1}, v{r+2}\nv_max_u32 v{tmp}, v{tmp}, v{r+3}\nv_cmp_eq_u32 vcc, -1, v{tmp}")
def pack4(src, pk, pk2, tmp):
    A(f"v_mov_b32_dpp v{tmp}, v{src} quad_perm:[1,1,3,3] {DPPM}")
    A(f"v_cvt_pk_bf16_f32 v{pk}, v{src}, v{tmp}")
    A(f"v_mov_b32_dpp v{pk2}, v{pk} quad_perm:[2,2,2,2] {DPPM}")
def setexec(lo, hi):
    A(f"s_mov_b32 exec_lo, {lo:#x}\ns_mov_b32 exec_hi, {hi:#x}")
def fullexec():
    A("s_mov_b64 exec, -1")
def mfma(d, a, b, c):
    cc = "0" if c is None else f"v[{c}:{c+3}]"
    A(f"v_mfma_f32_16x16x32_bf16 v[{d}:{d+3}], v[{a}:{a+3}], v[{b}:{b+3}], {cc}")
def rowsum(ds):
    for d in ds: A(f"v_add_f32 v{d}, v{d}, v{d+1}\nv_add_f32 v{d+2}, v{d+2}, v{d+3}")
    for d in ds: A(f"v_add_f32 v{d}, v{d}, v{d+2}")
def code_prefetch(tmp, dst):
    sk = L("npf")
    A(f"s_cmp_lt_u32 s3, 6\ns_cbranch_scc1 {sk}")
    A("s_and_b32 s38, s38, 0xffffff00")
    A(f"v_lshlrev_b32 v{tmp}, 7, v0")
    A(f"s_and_b32 s40, s3, 1\ns_lshl_b32 s40, s40, 13")
    A(f"v_add_u32 v{tmp}, s40, v{tmp}")
    if not OPT["pf"]: A(f"v_mov_b32 v{tmp}, 0")
    A(f"global_load_dword v{dst}, v{tmp}, s[38:39] {OPT['pfnt']}")
    A.label(sk)

wM, wQ, wO, wTR, T0, T1, T2, T3, vPF = 3, 4, 5, 6, 7, 8, 9, 10, 11
wC = 12; wXS = 13; wX = 16; wXO = 24; wWF = 40; wD = 56
def swz_chunk(dst):
    A(f"v_lshlrev_b32 v{dst}, 1, v1\nv_xor_b32 v{dst}, v0, v{dst}\nv_and_b32 v{dst}, 7, v{dst}\nv_lshlrev_b32 v{dst}, 4, v{dst}")
def unit_dma(srdr, s0, s1, base):
    A(f"s_add_u32 m0, s42, {base}")
    A(f"buffer_load_dwordx4 v{wM}, {srdr}, {s0} offen {NT} lds")
    A(f"s_add_u32 m0, s42, {base+8192}")
    A(f"buffer_load_dwordx4 v{wM}, {srdr}, {s1} offen {NT} lds")
def tr_setup():
    VX(wTR, 32, 0, (2, 4, 7), (3, 2, 5), (0, 2, 3))
    SX("s40", XL, ("s3", 0, 2, 8))
    VX(82, 32, "s40", (0, 6, 2))
    VX(83, 32, "s40", (2, 1, 7), (4, 2, 3))
def silu_operand(cnt):
    A(f"s_waitcnt vmcnt({cnt})")
    A(f"v_lshlrev_b32 v32, 16, v{wC}\nv_and_b32 v33, 0xffff0000, v{wC}")
    A(f"v_mul_f32 v34, {f32(-math.log2(math.e))}, v32\nv_mul_f32 v35, {f32(-math.log2(math.e))}, v33")
    A("v_exp_f32 v34, v34\nv_exp_f32 v35, v35")
    A("v_add_f32 v34, 1.0, v34\nv_add_f32 v35, 1.0, v35")
    A("v_rcp_f32 v34, v34\nv_rcp_f32 v35, v35")
    A("v_mul_f32 v32, v32, v34\nv_mul_f32 v33, v33, v35")
    A("v_cvt_pk_bf16_f32 v32, v32, v33")
    A("ds_write_b32 v82, v32")
    A("s_waitcnt lgkmcnt(0)")
    A(f"ds_read2_b64 v[{wXO}:{wXO+3}], v83 offset0:0 offset1:4\nds_read2_b64 v[{wXO+4}:{wXO+7}], v83 offset0:8 offset1:12")
def unit_pre(s_c0, s_c1, base):
    SX("s40", 0, ("s3", 0, 2, 5)); A(f"v_xor_b32 v112, s40, v{wTR}\nv_add_u32 v112, {base}, v112")
    for i in range(4):
        A(f"v_mov_b32 v{wD+i}, {s_c0}\nv_mov_b32 v{wD+4+i}, {s_c1}")
def unit_go():
    if STAMPS: A("s_waitcnt lgkmcnt(0)")
    for k in range(2):
        for seg in range(2):
            for h in range(2):
                r = wWF + seg*8 + k*4 + h*2
                A(f"ds_read_b64_tr_b16 v[{r}:{r+1}], v112 offset:{seg*8192 + k*4096 + h*2048}")
    for k in range(2):
        for seg in range(2):
            A(f"s_waitcnt lgkmcnt({6 - 4*k - 2*seg})")
            mfma(wD + 4*seg, wXO + 4*k, wWF + seg*8 + k*4, wD + 4*seg)
def unit_mfma(s_c0, s_c1, base):
    unit_pre(s_c0, s_c1, base); unit_go()
def tagged_loads(r, va, so):
    A(f"buffer_load_dwordx4 v[{r}:{r+3}], v{va}, {RW}, {so} offen sc1")
    A(f"buffer_load_dwordx4 v[{r+4}:{r+7}], v{va}, {RW}, {so} offen offset:1024 sc1")
def tagged_chk(rs, tmp, extra=None):
    tags = [r + i for r in rs for i in (1, 3, 5, 7)] + ([extra] if extra else [])
    A(f"v_xor_b32 v{tmp}, {sTAG}, v{tags[-1]}")
    for t in tags[:-1]:
        A(f"v_bitop3_b32 v{tmp}, v{t}, {sTAG}, v{tmp} bitop3:0xbe")
    A(f"v_cmp_ne_u32 vcc, 0, v{tmp}")
def tagged_pack(r):
    A(f"v_mov_b32 v{r+1}, v{r+2}\nv_mov_b32 v{r+2}, v{r+4}\nv_mov_b32 v{r+3}, v{r+6}")
def sum8(dst, r):
    A(f"v_add_f32 v32, v{r}, v{r+1}\nv_add_f32 v33, v{r+2}, v{r+3}\nv_add_f32 v34, v{r+4}, v{r+5}\nv_add_f32 v35, v{r+6}, v{r+7}")
    A(f"v_add_f32 v32, v32, v33\nv_add_f32 v34, v34, v35\nv_add_f32 v{dst}, v32, v34")

STAMP(0)
A("s_cmp_ge_u32 s2, 256\ns_cbranch_scc1 L_end")
A("s_cmp_ge_u32 s2, 128\ns_cselect_b32 s40, 24, 8\ns_cselect_b32 s41, 0, 16")
A("s_load_dwordx2 s[8:9], s[0:1], s40")
kload(RC, 80)
A("s_load_dwordx2 s[24:25], s[0:1], s41")
kload(RE, 72); kload(RW, 104)
A("v_readfirstlane_b32 s3, v0")
A("s_getpc_b64 s[38:39]")
if OPT["pf"] == 4:
    A("s_and_b32 s38, s38, 0xffffff00")
    A(f"v_and_b32 v{vPF}, 0x1c0, v0\ns_lshl_b32 s40, s2, 7\ns_and_b32 s40, s40, 0x3c00\nv_lshl_or_b32 v{vPF}, v{vPF}, 1, s40")
    sk = L("npf")
    A(f"s_cmp_ge_u32 s2, 128\ns_cbranch_scc1 {sk}")
    A(f"global_load_dword v{vPF}, v{vPF}, s[38:39]")
    A.label(sk)
A("v_and_b32 v0, 63, v0")
A("s_mov_b32 s11, 0x00020000")
A("v_lshrrev_b32 v1, 4, v0\nv_and_b32 v2, 15, v0")
A(f"s_add_u32 s4, s2, {OPT['rot']}\ns_and_b32 s4, s4, 7\ns_bfe_u32 s6, s2, 0x10006\ns_bfe_u32 s7, s2, 0x30003")
A(f"v_lshlrev_b32 v{T3}, 1, v1\nv_xor_b32 v{T3}, v2, v{T3}\nv_lshlrev_b32 v{T3}, 4, v{T3}")
A("s_lshl1_add_u32 s58, s4, s6\ns_lshl_b32 s46, s7, 7\ns_mov_b32 s27, s11")
A(f"v_and_b32 v{T1}, 0x70, v{T3}\nv_lshrrev_b32 v{T0}, 3, v0")
srd(RC, 3145728); srd(RE, 2048)
A(f"v_mul_u32_u24 v{wM}, 6144, v{T0}\nv_add_u32 v{wM}, v{wM}, v{T1}")
A("s_cmp_ge_u32 s2, 128\ns_cbranch_scc1 L_W")
def ids2():
    A("s_lshr_b32 s3, s3, 6\ns_bfe_u32 s5, s2, 0x40003")
    if STAMPS:
        for i in range(2, 16): A(f"s_mov_b32 s{64+2*i}, 0")
    srd(RW, WS_BYTES)

vE, vO, vQO = 120, 121, 122
vKA = 108
vQ = 14
vKF = 16
vVF = 48
vQF = 80
vS = 96
vP = 104
vOA = 108
vST = 114
vOAD, vSAD = 116, 117
A(f"v_lshl_or_b32 v{vE}, v1, 8, v{T3}\nv_xor_b32 v{vO}, 0x80, v{vE}")
A("s_lshl_b32 s43, s3, 7\ns_mov_b32 s10, 33554432\ns_mov_b32 s26, s10")
SX("s56", 6144*256, ("s6", 24), ("s4", 21), ("s7", 16), ("s43", 0))
A("s_add_u32 s57, s56, 4096\ns_mov_b32 m0, s43")
def kv_dma(u):
    r = RA if u < 8 else RD
    A(f"buffer_load_dwordx4 v{vE if u%2==0 else vO}, {r}, {'s56' if u%8 < 4 else 's57'} offen offset:{(u%4)*1024} {NT} lds")
if OPT["wqpf"]:
    kload(RF, 24)
    A("s_cmp_lt_u32 s4, 4\ns_cselect_b32 s34, 0x400000, 0\ns_mov_b32 s35, s11")
    A(f"v_and_b32 v{wQ}, {31 if OPT['wqpf'] == 1 else 15}, v0\nv_lshlrev_b32 v{wQ}, 13, v{wQ}")
    SX("s44", 0, ("s6", 21), ("s3", 12 if OPT["wqpf"] == 1 else 11), ("s4", 10), ("s46", 0))
A("s_waitcnt lgkmcnt(0)")
if OPT["wqpf"]: A(f"buffer_load_dword v16, v{wQ}, {RF}, s44 offen")
VT = OPT["vt"]
if VT:
    A(f"s_add_u32 m0, s43, {VREG}")
    kv_dma(8)
    A("s_mov_b32 m0, s43")
if OPT["slow"]: kv_dma(0)
if OPT["pf"] == 3:
    A("s_and_b32 s38, s38, 0xffffff00")
    SX("s40", 0, ("s2", 3, 4, 10), ("s3", 1))
    A("s_load_dword s99, s[38:39], s40")
A(f"s_load_dword {sTAG}, s[16:17], 0")
if OPT["slow"]: A("s_waitcnt vmcnt(0)")
def mb_issue():
    SX("s51", 0, ("s7", 6), ("s3", 3, 0, 0))
    A("s_mul_i32 s51, s51, 6144\ns_lshl_b32 s42, s3, 4")
    SX("s40", 2048, ("s58", 8)); A("s_add_u32 s51, s51, s40")
    A(f"s_add_u32 m0, s42, {PA}")
    A(f"buffer_load_dwordx4 v{wM}, {RC}, s51 offen {NT} lds")
    A(f"s_add_u32 m0, s42, {PA + 8192 - 128}")
    A(f"buffer_load_dwordx4 v{wM}, {RC}, s51 offen offset:128 {NT} lds")
    VX(T2, T3, 0, (5, 1, 10), (0, 5, 2))
    A(f"buffer_load_dword v{wC}, v{T2}, {RE}, s46 offen {SNT}")
for u in range(1 if OPT["slow"] else 0, 16):
    if u in (4, 12): A("s_add_u32 m0, m0, 4096")
    if u == 8:
        if OPT["mbg"] != 3: mb_issue()
        A(f"s_add_u32 m0, s43, {VREG}")
        if VT: continue
    if OPT["depth"] and u < OPT["depth_until"]: A(f"s_waitcnt vmcnt({OPT['depth']-1})")
    kv_dma(u)
cont(30)
ids2()
if STAMPS: A("s_mov_b32 s66, 0")
STAMP(2)
if OPT["abl"]:
    A("s_waitcnt vmcnt(0)")
    STAMP(4)
    A("s_branch L_exit")
GT = 0
A("s_waitcnt lgkmcnt(0)")
A(f"s_add_u32 {sTAG}, {sTAG}, {TAGC:#x}")
kload(RC, 48); kload(RD, 56); kload(RE, 64)
FF = OPT["ffn_first"]
if FF: FG = VREG; FD = VREG + 32768
wG, wDO, fMF = 124, 125, 123
A(f"v_mul_u32_u24 v{wG}, 3584, v{T0}\nv_add_u32 v{wG}, v{wG}, v{T1}\nv_lshl_or_b32 v{wDO}, v{T0}, 10, v{T1}")
A("s_cmp_lt_u32 s4, 7")
A("s_cselect_b32 s22, 1835008, 0\ns_cselect_b32 s26, 1835008, 0\ns_cselect_b32 s30, 1835008, 0")
SX("s63", 0, ("s4", 4), ("s5", 0))
SX("s49", 0, ("s63", 0, 2, 7), ("s3", 4))
A("s_mul_i32 s49, s49, 3584")
SX("s50", 0, ("s63", 2, 0, 7))
A(f"s_add_u32 s49, s49, s50\ns_add_u32 s50, s49, {8*3584-1024}")
SX("s51", 0, ("s63", 14), ("s3", 7))
A(f"s_add_u32 s52, s51, {8*1024-1024}")
A("s_lshl_b32 s42, s3, 11")
def g_dma():
    A(f"s_add_u32 m0, s42, {FG}")
    A(f"buffer_load_dwordx4 v{wG}, {RC}, s49 offen {NT} lds")
    A(f"buffer_load_dwordx4 v{wG}, {RC}, s50 offen offset:1024 {NT} lds")
def u_dma():
    A(f"s_add_u32 m0, s42, {FG+16384}")
    A(f"buffer_load_dwordx4 v{wG}, {RD}, s49 offen {NT} lds")
    A(f"buffer_load_dwordx4 v{wG}, {RD}, s50 offen offset:1024 {NT} lds")
def gu_dma():
    g_dma(); u_dma()
def dn_dma():
    A(f"s_add_u32 m0, s42, {FD}")
    A(f"buffer_load_dwordx4 v{wDO}, {RE}, s51 offen {NT} lds")
    A(f"buffer_load_dwordx4 v{wDO}, {RE}, s52 offen offset:1024 {NT} lds")
def ffn_dma():
    gu_dma(); dn_dma()
GB1 = OPT["gu_b1"] and OPT["ser"] and not FF
SX("s44", QG, ("s58", 12), ("s3", 10))
vQ = 100
A(f"v_lshlrev_b32 v{vQO}, 4, v0")
VX(fMF, T2, 0, (0, 3, 7), (3, 1, 6), (4, 2, 4))
SX("s59", MGT + 2*32768, ("s63", 0, 2, 13), ("s3", 0, 2, 11))
SX("s40", 0, ("s3", 2, 0, 15)); A("s_sub_u32 s59, s59, s40")
VX(T2, 0, 0, (0, 3, 1))
A(f"v_xor_b32 v{T2}, v1, v{T2}\nv_lshlrev_b32 v{T2}, 4, v{T2}\nv_lshl_or_b32 v{T2}, v2, 8, v{T2}")
A(f"v_add_u32 v{vKA}, s43, v{T2}")
for t in range(1, 4):
    A(f"v_xor_b32 v{vKA+t}, {t*64:#x}, v{vKA}")
vQW, vQR, vVR, vMX, vPW, vPR, vMW = 3, 4, 5, 6, 113, 13, 112
SX("s40", QL, ("s3", 5))
VX(vQW, T2, "s40", (1, 4, 7), (5, 1, 4), (0, 1, 3))
VX(vQR, T2, QL, (4, 2, 7), (0, 3, 4))
A(f"v_bfe_u32 v{T0}, v0, 2, 3\nv_xor_b32 v{T0}, s3, v{T0}")
VX(vVR, T2, VREG, (2, 4, 8), (0, 2, 3))
A(f"v_lshl_or_b32 v{vVR}, v{T0}, 5, v{vVR}")
VX(vMX, T2, MISC, (0, 2, 5))
A(f"s_lshl_b32 s40, s3, 2\nv_add_u32 v{vMW}, s40, v{vMX}")
VX(vPR, T2, PL, (4, 2, 6), (0, 2, 4))
A(f"s_lshl_b32 s40, s3, 8\nv_add_u32 v{vPW}, s40, v{vPR}")
VX(vOAD, T2, 0, (0, 2, 12), (4, 2, 4))
SX("s53", OG, ("s4", 14), ("s3", 1, 0, 10), ("s5", 6), ("s3", 0, 1, 3))
VX(vSAD, T2, 0, (0, 2, 7))
SX("s54", SG, ("s4", 9), ("s5", 3))
A(f"s_mov_b32 s55, {f32(C1)}")
fWF = 128 if FF else 84
fDF = 144 if FF else 64
def ffn_frag_addr(wr, ta, tr):
    VX(tr, 32, 0, (2, 4, 7), (3, 2, 5), (0, 2, 3))
    SX("s40", 0, ("s3", 0, 2, 5)); A(f"v_xor_b32 v{wr}, s40, v{tr}")
    SX("s40", FG, ("s3", 2, 0, 14)); A(f"v_add_u32 v{wr}, s40, v{wr}")
    A(f"s_add_u32 s40, s42, {FD}\nv_add_u32 v{ta}, s40, v{tr}")
    for t in range(1, 4):
        A(f"v_xor_b32 v{ta+t}, {t*32:#x}, v{ta}")
def w_frags(wr):
    for k in range(4):
        for h in range(2):
            r = fWF + 4*k + 2*h
            A(f"ds_read_b64_tr_b16 v[{r}:{r+1}], v{wr} offset:{k*4096 + h*2048}")
def d_frags(ta):
    for tau in range(4):
        A(f"ds_read_b64_tr_b16 v[{fDF+2*tau}:{fDF+2*tau+1}], v{ta+tau}")
A(f"s_waitcnt vmcnt({7 if VT else 8})")
for T in range(2):
    for t in range(4):
        r = vKF + (T*4+t)*4
        A(f"ds_read_b128 v[{r}:{r+3}], v{vKA+t} offset:{T*4096}")
sk = L("nqp"); skm = L("mbw")
if OPT["mbg"] == 3:
    A(f"s_cmp_lt_u32 s3, 4\ns_cbranch_scc1 {skm}")
    A(f"s_waitcnt vmcnt(0)\ns_branch {sk}")
    A.label(skm)
    A.mute = True
A("s_barrier")
A(f"s_cmp_lt_u32 s3, 4\ns_cbranch_scc1 {skm}")
SX("s40", XL, ("s3", 0, 2, 8))
VX(82, 80, "s40", (0, 6, 2))
VX(83, 80, "s40", (2, 1, 7), (4, 2, 3))
A(f"v_lshlrev_b32 v84, 16, v{wC}\nv_and_b32 v85, 0xffff0000, v{wC}")
A(f"v_mul_f32 v86, {f32(-math.log2(math.e))}, v84\nv_mul_f32 v87, {f32(-math.log2(math.e))}, v85")
A("v_exp_f32 v86, v86\nv_exp_f32 v87, v87\nv_add_f32 v86, 1.0, v86\nv_add_f32 v87, 1.0, v87")
A("v_rcp_f32 v86, v86\nv_rcp_f32 v87, v87\nv_mul_f32 v84, v84, v86\nv_mul_f32 v85, v85, v87")
A("v_cvt_pk_bf16_f32 v84, v84, v85\nds_write_b32 v82, v84")
A("ds_read2_b64 v[144:147], v83 offset0:0 offset1:4\nds_read2_b64 v[148:151], v83 offset0:8 offset1:12")
VX(81, 80, 0, (2, 4, 7), (3, 2, 5), (0, 2, 3))
SX("s40", 0, ("s3", 0, 2, 5)); A(f"v_xor_b32 v81, s40, v81\nv_add_u32 v81, {PA}, v81")
for k in range(2):
    for sg in range(2):
        for hh in range(2):
            r = 128 + sg*8 + k*4 + hh*2
            A(f"ds_read_b64_tr_b16 v[{r}:{r+1}], v81 offset:{sg*8192 + k*4096 + hh*2048}")
SX("s40", 0, ("s58", 2, 0, 3), ("s7", 0))
A("s_cmp_eq_u32 s40, 16\ns_cselect_b32 s41, 1.0, 0")
for i in range(8): A(f"v_mov_b32 v{88+i}, s41")
VX(80, 81, 0, (5, 1, 12), (4, 1, 6), (2, 2, 4))
SX("s41", MGT, ("s58", 13), ("s3", 0, 2, 10), ("s46", 0))
A(f"v_mov_b32 v97, {sTAG}\nv_mov_b32 v99, {sTAG}")
A("s_waitcnt lgkmcnt(0)")
for k in range(2):
    for sg in range(2):
        mfma(88 + 4*sg, 144 + 4*k, 128 + sg*8 + k*4, 88 + 4*sg)
A("v_cmp_gt_u32 vcc, 32, v0")
A("v_cndmask_b32 v84, v92, v88, vcc")
pack4(84, 96, 98, 85)
setexec(0x11111111, 0x11111111)
A(f"buffer_store_dwordx4 v[96:99], v80, {RW}, s41 offen sc1")
fullexec()
STAMP(9)
A(f"s_waitcnt vmcnt(1)\ns_branch {sk}")
A.label(skm)
A.mute = False
def q_load():
    A(f"buffer_load_dwordx4 v[{vQ}:{vQ+3}], v{vQO}, {RW}, s44 offen sc1")
def q_chk():
    A(f"v_xor_b32 v{T0}, {sTAG}, v{vQ+1}\nv_bitop3_b32 v{T0}, v{vQ+3}, {sTAG}, v{T0} bitop3:0xbe\nv_cmp_ne_u32 vcc, 0, v{T0}")
poll(q_load, q_chk, sleep=OPT['s2'])
STAMP(4)
A(f"v_mov_b32 v{vQ+1}, v{vQ+2}")
A(f"ds_write_b64 v{vQW}, v[{vQ}:{vQ+1}]")
A.label(sk)
A("s_waitcnt lgkmcnt(0)\ns_barrier")
STAMP(5)
for t in range(4):
    A(f"ds_read_b128 v[{vQF+4*t}:{vQF+4*t+3}], v{vQR} offset:{t*512}")
if GB1: gu_dma()
if OPT["g_b1"]: g_dma()
A("s_waitcnt lgkmcnt(0)")
def v_tr(kb, T):
    r = vVF + kb*4 + T*2
    A(f"ds_read_b64_tr_b16 v[{r}:{r+1}], v{vVR} offset:{(32*kb+16*T)*256}")
EARLY_T = [0, 1] if OPT['ser'] else []
for kb in range(8):
    if kb < 4:
        for T in range(2):
            mfma(vS + 4*T, vKF + (T*4+kb)*4, vQF + 4*kb, None if kb == 0 else vS + 4*T)
    for T in EARLY_T: v_tr(kb, T)
for i in range(8):
    A(f"v_add_f32_dpp v{vS+i}, v{vS+i}, v{vS+i} row_ror:4 {DPPM}")
A(f"v_max3_f32 v{T0}, v{vS}, v{vS+1}, v{vS+2}\nv_max3_f32 v{T2}, v{vS+3}, v{vS+4}, v{vS+5}")
A(f"v_max3_f32 v{T0}, v{T0}, v{vS+6}, v{vS+7}\nv_max_f32 v{T3}, v{T0}, v{T2}\nv_max_f32 v{T0}, v{T0}, v{T2}")
A(f"v_permlane32_swap_b32 v{T0}, v{T3}")
A(f"v_max_f32 v{T2}, v{T0}, v{T3}\nv_max_f32 v{T0}, v{T0}, v{T3}")
A(f"v_permlane16_swap_b32 v{T0}, v{T2}")
A(f"v_max_f32 v{T0}, v{T0}, v{T2}")
A(f"ds_write_b32 v{vMW}, v{T0}")
STAMP(14)
if OPT["dn_p"] == 2: dn_dma()
if OPT["dn_p"] == 3: u_dma()
A("s_waitcnt lgkmcnt(0)\ns_barrier")
A(f"ds_read_b128 v[{vQF}:{vQF+3}], v{vMX}\nds_read_b128 v[{vQF+4}:{vQF+7}], v{vMX} offset:16")
A("s_waitcnt lgkmcnt(0)")
A(f"v_max3_f32 v{T0}, v{vQF}, v{vQF+1}, v{vQF+2}\nv_max3_f32 v{T2}, v{vQF+3}, v{vQF+4}, v{vQF+5}")
A(f"v_max3_f32 v{T0}, v{T0}, v{vQF+6}, v{vQF+7}\nv_max_f32 v{T0}, v{T0}, v{T2}")
A(f"v_mul_f32 v{vST}, s55, v{T0}")
for i in range(8):
    A(f"v_fma_f32 v{vS+i}, v{vS+i}, s55, -v{vST}")
for i in range(8):
    A(f"v_exp_f32 v{vS+i}, v{vS+i}")
for i in range(4):
    A(f"v_cvt_pk_bf16_f32 v{vP+i}, v{vS+2*i}, v{vS+2*i+1}")
A(f"ds_write_b128 v{vPW}, v[{vP}:{vP+3}]")
rowsum([vS, vS+4])
A(f"v_add_f32 v{T0}, v{vS}, v{vS+4}\nv_add_f32 v{T3}, v{vS}, v{vS+4}")
A(f"v_permlane32_swap_b32 v{T0}, v{T3}")
A(f"v_add_f32 v{T2}, v{T0}, v{T3}\nv_add_f32 v{T0}, v{T0}, v{T3}")
A(f"v_permlane16_swap_b32 v{T0}, v{T2}")
A(f"v_add_f32 v{T0}, v{T0}, v{T2}")
A(f"ds_write_b32 v{vMW}, v{T0} offset:128")
if OPT["dn_p"] == 3: dn_dma()
A("s_waitcnt lgkmcnt(0)\ns_barrier")
STAMP(3)
if STAMPS: A("s_waitcnt lgkmcnt(0)")
LATE_T = [T for T in range(2) if T not in EARLY_T]
A(f"ds_read_b128 v[{vQF}:{vQF+3}], v{vMX} offset:128\nds_read_b128 v[{vQF+4}:{vQF+7}], v{vMX} offset:144")
for kb in range(8):
    r = vKF + kb*4
    A(f"ds_read_b128 v[{r}:{r+3}], v{vPR} offset:{kb*256}")
def st_pub(vm=None):
    sk = L("nst"); sk2 = L("nsu")
    A(f"s_cmp_lg_u32 s3, 0\ns_cbranch_scc1 {sk}")
    A("s_waitcnt lgkmcnt(8)")
    rowsum([vQF, vQF+4])
    A(f"v_add_f32 v{vST+1}, v{vQF}, v{vQF+4}")
    A("s_mov_b64 exec, 15")
    A(f"buffer_store_dwordx2 v[{vST}:{vST+1}], v{vSAD}, {RW}, s54 offen")
    fullexec()
    if vm is not None:
        A(f"s_waitcnt vmcnt({vm})\ns_branch {sk2}")
    A.label(sk)
    if vm is not None:
        A(f"s_waitcnt vmcnt({vm-1})")
        A.label(sk2)
if LATE_T:
    st_pub(1)
    A("s_waitcnt lgkmcnt(0)\ns_barrier")
    STAMP(6)
    if STAMPS: A("s_waitcnt lgkmcnt(0)")
    per = len(LATE_T)
    AHEAD = 8 if per == 1 else 6
    for kb in range(AHEAD):
        for T in LATE_T: v_tr(kb, T)
    for kb in range(8):
        A(f"s_waitcnt lgkmcnt({(min(8, AHEAD + kb) - kb - 1) * per})")
        mfma(vOA, vVF + kb*4, vKF + kb*4, None if kb == 0 else vOA)
        if AHEAD + kb < 8:
            for T in LATE_T: v_tr(AHEAD + kb, T)
else:
    st_pub()
    if OPT["dn_p"] == 1: dn_dma()
    for kb in range(8):
        A(f"s_waitcnt lgkmcnt({7-kb})")
        mfma(vOA, vVF + kb*4, vKF + kb*4, None if kb == 0 else vOA)
setexec(0x000f000f, 0x000f000f)
A(f"v_cvt_pk_bf16_f32 v{vP}, v{vOA}, v{vOA+1}\nv_cvt_pk_bf16_f32 v{vP+1}, v{vOA+2}, v{vOA+3}")
A(f"buffer_store_dwordx2 v[{vP}:{vP+1}], v{vOAD}, {RW}, s53 offen")
fullexec()
STAMP(7)
A("s_cmp_lt_u32 s4, 7\ns_cbranch_scc1 L_ffn")
A("s_cmp_lg_u32 s3, 0\ns_cbranch_scc1 L_exit")
VX(T1, T2, 0, (3, 1, 14), (0, 3, 11))
A(f"s_mov_b32 s46, {X4 + 7*128:#x}")
poll(lambda: A(f"buffer_load_dword v16, v{T1}, {RW}, s46 offen sc1"), lambda: A(f"v_cmp_eq_u32 vcc, -1, v16"), sleep=8)
A("s_branch L_exit")
A.label("L_ffn")
def mf_loads():
    tagged_loads(16, fMF, "s59")
SX("s55", ST5, ("s4", 8))
SX("s53", G5, ("s63", 10))
A(f"s_add_u32 s54, s53, {US5-G5}")
if OPT["ltouch"]:
    sk = L("nlt")
    A(f"s_cmp_lg_u32 s3, 7\ns_cbranch_scc1 {sk}")
    A(f"buffer_load_dwordx4 v[28:31], v{vQO}, {RW}, s53 offen sc1")
    A(f"buffer_load_dwordx4 v[28:31], v{vQO}, {RW}, s54 offen sc1")
    A(f"buffer_load_dword v28, v{vSAD}, {RW}, s55 offen sc1")
    A.label(sk)
mf_loads()
DL = OPT["dn_late"]
NF = 0
if not GB1 and OPT["dn_p"] != 3:
    if OPT["obar"]: A("s_barrier")
    if not OPT["g_b1"]:
        g_dma(); NF += 2
    u_dma(); NF += 2
if not DL and not OPT["dn_p"]:
    if GB1 and OPT["obar"]: A("s_barrier")
    dn_dma(); NF += 2
fYW, fYR, fWR, fGA, fGR, fSTA, fY6A = 113, 114, 115, 116, 118, 119, 120
fG, fU, fS = 121, 122, 117
wOF, wTA = fMF, 108
if not FF: ffn_frag_addr(fWR, wTA, wTR)
A("s_lshr_b32 s56, s3, 2\ns_and_b32 s57, s3, 3")
VX(fYR, 32, YL0, (0, 6, 4))
A(f"s_lshl_b32 s40, s3, 10\nv_add_u32 v{fYW}, s40, v{fYR}")
VX(fGA, 32, 0, (0, 6, 2))
SX("s61", G5 - 64, ("s63", 2, 0, 12), ("s57", 10), ("s63", 0, 2, 8), ("s56", 7))
A(f"s_add_u32 s62, s61, {US5-G5}")
VX(fGR, 32, 0, (2, 1, 7), (3, 1, 6), (4, 2, 4), (0, 2, 2))
VX(fSTA, 32, 0, (0, 3, 5), (3, 1, 4))
VX(fY6A, 32, 0, (3, 1, 14), (5, 1, 12), (4, 1, 4))
SX("s47", Y4, ("s56", 14), ("s63", 0, 2, 12), ("s57", 10))
SX("s96", Y6, ("s3", 16), ("s63", 5))
A("s_add_u32 s97, s96, 8192\ns_add_u32 s98, s96, 32768\ns_add_u32 s99, s96, 40960")
A(f"s_mov_b32 s41, {f32(1.0/512)}\ns_mov_b32 s43, {f32(1e-5)}")
poll(mf_loads, lambda: tagged_chk([16], 33), first_issued=True, first_wait=NF, sleep=4)
tagged_pack(16)
A(f"ds_write_b128 v{fYW}, v[16:19]")
A("s_waitcnt vmcnt(0) lgkmcnt(0)\ns_barrier")
STAMP(10)
def y_load():
    A(f"buffer_load_dwordx4 v[76:79], v{wOF}, {RW}, s47 offen sc1")
y_load()
if DL: dn_dma()
YO = [16, 20, 24, 28, 32, 36, 100, 104]
if not FF: w_frags(fWR)
for u in range(8):
    A(f"ds_read_b128 v[{YO[u]}:{YO[u]+3}], v{fYR} offset:{u*1024}")
A("s_waitcnt lgkmcnt(0)")
for k in range(4):
    for pi in range(2):
        mfma(wD + 4*pi, YO[4*pi+k], fWF + 4*k, None if k == 0 else wD + 4*pi)
rowsum([wD, wD+4])
A(f"v_permlane16_swap_b32 v{wD}, v{wD+4}")
A(f"v_add_f32 v{wD+1}, v{wD}, v{wD+4}\nv_add_f32 v{wD}, v{wD}, v{wD+4}")
A(f"v_permlane16_swap_b32 v{wD}, v{wD+1}")
A(f"v_cvt_pk_bf16_f32 v126, v{wD}, v{wD+1}")
setexec(0xffff0000, 0x0000ffff)
A(f"buffer_store_dword v126, v{fGA}, {RW}, s62 offen {'' if OPT['uslocal'] else 'sc1'}")
fullexec()
STAMP(1)
def us_loads():
    for k in range(4):
        A(f"buffer_load_dword v{40+k}, v{fGR}, {RW}, s54 offen offset:{256*k} sc1")
if not DL: d_frags(wTA)
poll(y_load, lambda: chk_empty4(76, 33), first_issued=True, first_wait=3 if DL else 1)
STAMP(11)
A(f"ds_write_b128 v{fYW}, v[76:79] offset:8192")
us_loads()
A("s_waitcnt lgkmcnt(0)\ns_barrier")
for u in range(8):
    A(f"ds_read_b128 v[{YO[u]}:{YO[u]+3}], v{fYR} offset:{8192+u*1024}")
for u in range(8):
    A(f"s_waitcnt lgkmcnt({7-u})")
    mfma(wD, YO[u], fWF + 4*(u & 3), None if u == 0 else wD)
A(f"v_add_f32 v{wD}, v{wD}, v{wD+1}\nv_add_f32 v{wD+2}, v{wD+2}, v{wD+3}")
A(f"v_add_f32 v{wD+1}, v{wD}, v{wD+2}\nv_add_f32 v{wD}, v{wD}, v{wD+2}")
A(f"v_permlane16_swap_b32 v{wD}, v{wD+1}")
A(f"v_add_f32 v{fG}, v{wD}, v{wD+1}")
def g_store(fl):
    setexec(0xffff0000, 0x0000ffff)
    A(f"buffer_store_dword v{fG}, v{fGA}, {RW}, s61 offen {fl}")
g_store("")
fullexec()
STAMP(12)
def g_loads():
    A(f"buffer_load_dwordx4 v[24:27], v{fSTA}, {RW}, s55 offen sc1")
    for k in range(4):
        A(f"buffer_load_dword v{20+k}, v{fGR}, {RW}, s53 offen offset:{256*k} sc1")
poll(us_loads, lambda: chk_empty4(40, 33), first_issued=True, first_wait=1)
g_loads()
if DL: d_frags(wTA)
for k in range(4):
    A(f"v_lshlrev_b32 v{44+k}, 16, v{40+k}\nv_and_b32 v{40+k}, 0xffff0000, v{40+k}")
rowsum([44, 40])
A(f"v_mov_b32 v{fU}, v44\nv_mov_b32 v{fS}, v40")
def g_chk():
    A("v_add_f32 v24, v24, v26\nv_add_f32 v25, v25, v27")
    A("v_add_f32 v20, v20, v21\nv_add_f32 v22, v22, v23")
    A(f"v_add_f32_dpp v24, v24, v24 quad_perm:[1,0,3,2] {DPPM}\nv_add_f32_dpp v25, v25, v25 quad_perm:[1,0,3,2] {DPPM}")
    A("v_add_f32 v20, v20, v22")
    A(f"v_add_f32_dpp v24, v24, v24 quad_perm:[2,3,0,1] {DPPM}\nv_add_f32_dpp v25, v25, v25 quad_perm:[2,3,0,1] {DPPM}")
    A("v_add_f32 v26, v24, v25")
    A("v_cmp_u_f32 vcc, v20, v26")
poll(g_loads, g_chk, first_issued=True)
STAMP(13)
A(f"v_add_f32_dpp v24, v24, v24 row_half_mirror {DPPM}\nv_add_f32_dpp v25, v25, v25 row_half_mirror {DPPM}")
A("v_mov_b32 v26, s43")
A("v_mul_f32 v24, s41, v24")
A("v_fmac_f32 v26, s41, v25")
A("v_fma_f32 v26, -v24, v24, v26")
A(f"v_fma_f32 v20, -v24, v{fU}, v20")
A("v_rsq_f32 v26, v26")
A(f"v_fma_f32 v20, v20, v26, v{fS}")
A("v_max_f32 v21, 0, v20")
A(f"v_mul_f32_dpp v22, v20, v21 row_shl:4 {DPPM}")
pack4(22, 24, 25, 23)
if DL: A("s_waitcnt lgkmcnt(0)")
for tau in range(4):
    d = 32 + 4*tau
    A(f"v_mfma_f32_16x16x16_bf16 v[{d}:{d+3}], v[{fDF+2*tau}:{fDF+2*tau+1}], v[24:25], 0")
setexec(0x01010101, 0x01010101)
for tau in range(4):
    d = 32 + 4*tau
    A(f"buffer_store_dwordx4 v[{d}:{d+3}], v{fY6A}, {RW}, s{96+tau} offen sc1")
STAMP(8)
A("s_waitcnt vmcnt(0)")
g_store("sc1")
if OPT["uslocal"]: A(f"buffer_store_dword v126, v{fGA}, {RW}, s62 offen sc1")
A("s_branch L_exit")

A.seg(1)
A.label("L_W")
def w_common():
    kload(RB, 32); kload(RF, 88)
    A(f"s_load_dword {sTAG}, s[16:17], 0")
    ids2()
    A(f"v_lshl_or_b32 v{wO}, v{T0}, 10, v{T1}")
    srd(RB, 4194304); A("s_movk_i32 s26, 2048")
def wq_setup(sh):
    A(f"v_lshl_or_b32 v{wQ}, v{T0}, 13, v{T1}")
    A("s_mov_b32 s10, 4194304")
    A(f"s_lshl_b32 s48, s3, {12-sh}")
    SX("s43", 0, ("s6", 8), ("s48", 7, 0, 0))
    SX("s44", 0, ("s43", 13), ("s4", 10), ("s46", 0))
def wq_dma():
    A(f"s_add_u32 m0, s48, {WQL}")
    for u in range(4):
        if u: A(f"s_add_u32 s44, s44, {8*8192-1024}")
        A(f"buffer_load_dwordx4 v{wQ}, {RA}, s44 offen offset:{u*1024} {NT} lds")
def c_setup():
    VX(T2, T3, 0, (5, 1, 10), (0, 5, 2))
if "noW" in OPT["abl"]:
    ids2(); A("s_waitcnt lgkmcnt(0)\ns_branch L_exit")
if "noA" in OPT["abl"]: A("s_branch L_nA")
A("s_cmp_ge_u32 s4, 4\ns_cbranch_scc1 L_nA")
A("s_lshl_b32 s49, s58, 7")
A("s_cmp_lt_u32 s3, 256\ns_cbranch_scc1 L_A1")
A("s_sub_u32 s40, s3, 256")
SX("s61", 0, ("s7", 6), ("s40", 2, 0, 0))
A(f"s_mul_i32 s61, s61, 6144\ns_add_u32 s61, s61, s49\ns_add_u32 s62, s61, {8*6144-1024}")
A(f"s_lshl_b32 s40, s40, 5\ns_add_u32 m0, s40, {PA}")
A("s_waitcnt lgkmcnt(0)")
STAMP(1)
A(f"buffer_load_dwordx4 v{wM}, {RC}, s61 offen {NT} lds")
A(f"buffer_load_dwordx4 v{wM}, {RC}, s62 offen offset:1024 {NT} lds")
A(f"s_add_u32 m0, s40, {PA+8192-1024}")
A(f"buffer_load_dwordx4 v{wM}, {RC}, s61 offen offset:1024 {NT} lds")
A(f"buffer_load_dwordx4 v{wM}, {RC}, s62 offen offset:2048 {NT} lds")
A("v_mov_b32 v32, -1\nv_mov_b32 v33, -1\nv_mov_b32 v34, -1\nv_mov_b32 v35, -1")
SX("s54", CLR, ("s49", 9), ("s7", 13), ("s40", 0))
A("v_lshlrev_b32 v38, 4, v0")
if "noclr" in OPT["abl"]: A("v_mov_b32 v38, 0x7ffffff0")
srd(RW, WS_BYTES)
A(f"buffer_store_dwordx4 v[32:35], v38, {RW}, s54 offen sc1")
A(f"buffer_store_dwordx4 v[32:35], v38, {RW}, s54 offen offset:1024 sc1")
cont(5)
w_common()
if OPT["pf"] == 2: code_prefetch(T2, vPF)
wq_setup(0)
AH = OPT["ahold"]
if AH < 8:
    A("s_barrier")
    wq_dma()
tr_setup()
if OPT["abl"]:
    A(f"s_waitcnt vmcnt({3 + (4 if AH < 8 else 0)})"); STAMP(8)
A(f"s_waitcnt vmcnt({4 if AH < 8 else 0}) lgkmcnt(0)")
if OPT["abl"]: STAMP(9)
A(f"s_add_u32 {sTAG}, {sTAG}, {TAGC:#x}")
A("s_barrier")
if AH == 8:
    A("s_barrier")
    wq_dma()
A("s_branch L_B")
A.seg(3)
A.label("L_A1")
c_setup()
VX(36, T3, 0, (4, 1, 10), (5, 1, 8), (0, 4, 4))
A("s_movk_i32 s26, 2048")
A("s_waitcnt lgkmcnt(0)")
STAMP(1)
A(f"buffer_load_dword v{wC}, v{T2}, {RE}, s46 offen {SNT}")
A(f"buffer_load_dwordx4 v[{wX}:{wX+3}], v36, {RD}, 0 offen {SNT}")
A(f"buffer_load_dwordx4 v[{wX+4}:{wX+7}], v36, {RD}, 0 offen offset:512 {SNT}")
VX(37, T3, 0, (4, 1, 10), (0, 4, 1))
A(f"s_lshr_b32 s50, s3, 1\ns_add_u32 s50, s50, s49\nv_mov_b32 v{wXS}, 0")
A(f"buffer_load_short_d16_hi v{wXS}, v37, {RD}, s50 offen {SNT}")
if AH < 8: A("s_barrier")
w_common()
wq_setup(0)
tr_setup()
VX(39, 32, 0, (4, 1, 6), (2, 2, 4))
SX("s53", H1G, ("s58", 12), ("s3", 10), ("s46", 0))
A("s_cmp_eq_u32 s7, 0\ns_cselect_b32 s54, 1.0, 0")
unit_pre("0", "s54", PA)
silu_operand(3)
if OPT["abl"]: STAMP(6)
A(f"s_waitcnt vmcnt(0)")
A("v_mov_b32 v36, 0\nv_mov_b32 v37, 0\nv_mov_b32 v38, 0x3f803f80")
for i in range(8):
    A(f"v_dot2c_f32_bf16 v36, v{wX+i}, v38\nv_dot2c_f32_bf16 v37, v{wX+i}, v{wX+i}")
for m in ("quad_perm:[1,0,3,2]", "quad_perm:[2,3,0,1]", "row_half_mirror", "row_mirror"):
    A(f"v_add_f32_dpp v36, v36, v36 {m} {DPPM}\nv_add_f32_dpp v37, v37, v37 {m} {DPPM}")
A("v_mov_b32 v38, v36\nv_mov_b32 v35, v37")
A("v_permlane32_swap_b32 v36, v38\nv_permlane32_swap_b32 v37, v35")
A("v_add_f32 v36, v36, v38\nv_add_f32 v37, v37, v35")
A(f"v_mul_f32 v36, {f32(1.0/512)}, v36\nv_mov_b32 v38, {f32(1e-5)}\nv_fmac_f32 v38, {f32(1.0/512)}, v37")
A("v_fma_f32 v38, -v36, v36, v38\nv_rsq_f32 v38, v38")
A(f"v_sub_f32 v{wXS}, v{wXS}, v36\nv_mul_f32 v{wXS}, v{wXS}, v38")
A(f"s_add_u32 {sTAG}, {sTAG}, {TAGC:#x}")
A(f"v_mov_b32 v{wD+9}, {sTAG}\nv_mov_b32 v{wD+11}, {sTAG}")
if OPT["abl"]: STAMP(7)
A("s_waitcnt lgkmcnt(0)\ns_barrier")
if OPT["abl"]: STAMP(10)
unit_go()
A(f"v_fma_f32 v32, v{wXS}, v{wD+4}, v{wD}")
pack4(32, wD+8, wD+10, 33)
setexec(0x11111111, 0)
A(f"buffer_store_dwordx4 v[{wD+8}:{wD+11}], v39, {RW}, s53 offen sc1")
fullexec()
STAMP(14)
if OPT["diag"]:
    A("s_waitcnt vmcnt(0)"); STAMP(13)
if AH == 8: A("s_barrier")
wq_dma()
A("s_branch L_B")
A.seg(2)
A.label("L_nA")
wq_setup(6)
A("s_waitcnt lgkmcnt(0)")
STAMP(1)
if OPT["wqpf"] == 22:
    sk = L("nh0")
    A(f"s_cmp_lt_u32 s3, 256\ns_cbranch_scc1 {sk}")
wq_dma()
if OPT["wqpf"] == 22: A.label(sk)
MBW = False
MBN = OPT["mbg"] == 3
if MBN:
    SX("s51", 0, ("s7", 6), ("s3", 3, 0, 0))
    A("s_mul_i32 s51, s51, 6144\ns_lshl_b32 s42, s3, 4")
    SX("s40", 2048, ("s58", 0, 3, 8)); A("s_add_u32 s51, s51, s40")
    c_setup()
    A(f"buffer_load_dword v{wC}, v{T2}, {RE}, s46 offen {SNT}")
    if OPT["mbwait"] >= 0: A(f"s_waitcnt vmcnt({OPT['mbwait']})")
    else: A("s_barrier")
    for j, o in enumerate((0, 128, 2048, 2048+128)):
        A(f"s_add_u32 m0, s42, {PB + j*8192 - o}")
        A(f"buffer_load_dwordx4 v{wM}, {RC}, s51 offen offset:{o} {NT} lds")
cont(6)
w_common()
tr_setup()
A("s_waitcnt lgkmcnt(0)")
A(f"s_add_u32 {sTAG}, {sTAG}, {TAGC:#x}")
A.label("L_B")
if MBW:
    A(f"v_mul_u32_u24 v{wM}, 6144, v{T0}\nv_add_u32 v{wM}, v{wM}, v{T1}")
    srd(RC, 3145728)
    SX("s96", 0, ("s7", 6), ("s3", 3))
    A("s_mul_i32 s96, s96, 6144")
    SX("s40", 2048, ("s58", 8)); A("s_add_u32 s96, s96, s40")
    SX("s97", MGT, ("s58", 13), ("s3", 0, 2, 10), ("s46", 0))
    SX("s40", 0, ("s58", 2, 0, 3), ("s7", 0))
    A("s_cmp_eq_u32 s40, 16\ns_cselect_b32 s98, 1.0, 0")
    VX(122, 32, 0, (5, 1, 12), (4, 1, 6), (2, 2, 4))
srd(RF, 2048)
SX("s47", 0, ("s4", 19), ("s43", 10), ("s46", 0))
wRW, wRR, wOF, wTA = 14, 15, 72, 108
SX("s40", RED, ("s3", 9)); VX(wRW, 32, "s40", (0, 6, 2))
SX("s40", RED, ("s3", 8)); VX(wRR, 32, "s40", (0, 6, 2))
VX(wOF, 32, 0, (0, 3, 7), (3, 1, 6), (4, 2, 4))
SX("s53", H1G, ("s43", 6))
VX(T3, 32, 0, (0, 2, 12))
A("s_xor_b32 s57, s6, 1")
SX("s57", H1G + 4, ("s57", 14), ("s3", 7))
wQA = 73; wQD = 76
VX(wQA, 32, 0, (5, 1, 12), (0, 5, 2))
SX("s56", QG, ("s4", 13), ("s5", 8), ("s3", 7))
A(f"v_add_u32 v{wTA}, s48, v{wTR}")
for t in range(1, 4):
    A(f"v_xor_b32 v{wTA+t}, {t*32:#x}, v{wTA}")
A(f"v_mov_b32 v{wQD+1}, {sTAG}\nv_mov_b32 v{wQD+3}, {sTAG}")
wGA, wCB, wXA, wXAD = 74, 75, 80, 81
tE, tOUT, tBP, tOF, tL16 = 84, 114, 115, 72, 116
SX("s59", Y6, ("s5", 15), ("s4", 12))
A("s_cmp_eq_u32 s3, 7\ns_cselect_b32 s40, 0, -1")
A("v_mov_b32 v118, s40\nv_mov_b32 v119, s40\nv_lshlrev_b32 v117, 3, v0")
SX("s41", 0, ("s3", 9), ("s59", 0))
VX(T1, 32, 0, (0, 4, 6), (4, 2, 4))
SX("s51", OG, ("s4", 14), ("s43", 5))
SX("s54", SG, ("s4", 9), ("s43", 7, 0, 7))
A(f"v_lshlrev_b32 v{T0}, 2, v1\nv_xor_b32 v{T0}, v0, v{T0}\nv_and_b32 v{T0}, 7, v{T0}\nv_lshlrev_b32 v{T0}, 3, v{T0}")
A(f"v_lshrrev_b32 v32, 5, v0\nv_lshl_or_b32 v{T0}, v32, 6, v{T0}")
VX(wXAD, 32, 0, (5, 1, 6), (2, 2, 4), (4, 1, 3))
SX("s60", X4, ("s7", 11), ("s3", 10), ("s6", 14), ("s4", 7))
A(f"s_add_u32 s52, s60, {Y4-X4}")
A("v_and_b32 v32, 1, v0\nv_lshlrev_b32 v32, 4, v32\nv_mov_b32 v33, 0x3f80\nv_lshlrev_b32 v32, v32, v33")
A("v_lshrrev_b32 v33, 2, v2\nv_sub_u32 v33, v1, v33\nv_bfe_u32 v34, v0, 1, 1\nv_lshl_or_b32 v33, v33, 1, v34")
for r in range(2):
    A(f"v_cmp_eq_u32 vcc, {r}, v33")
    A(f"v_cndmask_b32 v{tE+r}, 0, v32, vcc")
    A(f"v_mov_b32 v{tE+6+r}, v{tE+r}")
for r in (2, 3, 4, 5):
    A(f"v_mov_b32 v{tE+r}, 0")
VX(38, 33, 0, (0, 1, 3), (5, 1, 1), (4, 1, 2))
SX("s40", 0, ("s4", 0, 2, 4)); A(f"v_add_u32 v{tOUT}, s40, v38")
SX("s40", 0, ("s4", 2, 0, 7)); A(f"v_lshl_add_u32 v{tBP}, v{tOUT}, 1, s40")
SX("s62", 0, ("s4", 2, 0, 10), ("s5", 6))
A(f"v_lshlrev_b32 v{tL16}, 4, v0")
SX("s49", X4, ("s5", 10))
A("s_add_u32 s50, s49, 16384")
SX("s55", ST5, ("s4", 8), ("s7", 5), ("s6", 3))
VX(113, 33, 0, (5, 1, 4), (4, 1, 2))
SX("s61", MGT, ("s7", 12), ("s3", 11))
SX("s40", MGT + 3*32768, ("s5", 11))
A("s_cmp_eq_u32 s3, 2\ns_cselect_b32 s61, s40, s61\ns_cselect_b32 s40, 0, 0x10000\ns_add_u32 s63, s61, s40")
VX(120, 33, 0, (5, 1, 10), (0, 5, 1))
SX("s42", 0, ("s7", 7), ("s3", 6))
A(f"v_mov_b32 v{wXA}, 0")
def blk_frags(off):
    for t in range(4):
        for h in range(2):
            r = wWF + 4*t + 2*h
            A(f"ds_read_b64_tr_b16 v[{r}:{r+1}], v{wTA+t} offset:{off + h*2048}")
def h1_loads():
    tagged_loads(16, wOF, "s53")
    A(f"buffer_load_dword v33, v{T3}, {RW}, s57 offen sc1")
if MBN:
    VX(39, 32, 0, (5, 1, 12), (4, 1, 6), (2, 2, 4))
    sk = L("nmb")
    A(f"s_cmp_lt_u32 s4, 4\ns_cbranch_scc1 {sk}")
    SX("s96", MGT, ("s58", 0, 3, 13), ("s3", 2, 0, 16), ("s3", 0, 2, 10), ("s46", 0))
    SX("s40", 0, ("s58", 2, 1, 3), ("s3", 2, 0, 4), ("s7", 0))
    A("s_cmp_eq_u32 s40, 16\ns_cselect_b32 s97, 1.0, 0")
    SX("s98", PB, ("s3", 2, 0, 14))
    silu_operand(4)
    A.label(sk)
A(f"s_waitcnt vmcnt({OPT['h1at']})")
h1_loads()
A("s_waitcnt vmcnt(3)")
blk_frags(WQL)
STAMP(3)
if OPT["abl"] and "toq" not in OPT["abl"]: A("s_branch L_exit")
poll(h1_loads, lambda: tagged_chk([16], 33, 33), first_issued=True, sleep=OPT["s2"])
STAMP(4)
if OPT["diag"]:
    A(f"s_waitcnt lgkmcnt(0)\ns_mul_i32 s40, {sCNT}, 10\ns_add_u32 s88, s64, s40")
tagged_pack(16)
A("s_waitcnt lgkmcnt(0)")
def blk_mfma(op):
    for t in range(4):
        mfma(wD + 4*t, op, wWF + 4*t, None)
def blk_reduce():
    A(f"v_permlane16_swap_b32 v{wD}, v{wD+4}\nv_permlane16_swap_b32 v{wD+8}, v{wD+12}")
    A(f"v_add_f32 v{wD}, v{wD}, v{wD+4}\nv_add_f32 v{wD+8}, v{wD+8}, v{wD+12}")
    A(f"ds_write2st64_b32 v{wRW}, v{wD}, v{wD+8} offset0:0 offset1:1")
    A("s_waitcnt lgkmcnt(0)\ns_barrier")
def blk_final():
    for i in range(4):
        A(f"ds_read2st64_b32 v[{32+2*i}:{33+2*i}], v{wRR} offset0:{4*i} offset1:{4*i+2}")
    A("s_waitcnt lgkmcnt(0)")
    A("v_add_f32 v32, v32, v33\nv_add_f32 v34, v34, v35\nv_add_f32 v36, v36, v37\nv_add_f32 v38, v38, v39")
    A("v_add_f32 v32, v32, v34\nv_add_f32 v36, v36, v38\nv_add_f32 v32, v32, v36")
blk_mfma(16)
rowsum([wD, wD+4, wD+8, wD+12])
blk_reduce()
sk = L("nq")
A(f"s_cmp_ge_u32 s3, 2\ns_cbranch_scc1 {sk}")
blk_final()
pack4(32, wQD, wQD+2, 33)
setexec(0x11111111, 0x11111111)
A(f"buffer_store_dwordx4 v[{wQD}:{wQD+3}], v{wQA}, {RW}, s56 offen")
fullexec()
A.label(sk)
STAMP(5)
if OPT["abl"]: A("s_branch L_exit")
if MBN:
    sk = L("nmc")
    A(f"s_cmp_lt_u32 s4, 4\ns_cbranch_scc1 {sk}")
    VX(39, 32, 0, (5, 1, 12), (4, 1, 6), (2, 2, 4))
    unit_pre("s97", "s97", "s98")
    A(f"v_mov_b32 v{wD+9}, {sTAG}\nv_mov_b32 v{wD+11}, {sTAG}")
    unit_go()
    A("v_cmp_gt_u32 vcc, 32, v0")
    A(f"v_cndmask_b32 v32, v{wD+4}, v{wD}, vcc")
    pack4(32, wD+8, wD+10, 34)
    setexec(0x11111111, 0x11111111)
    A(f"buffer_store_dwordx4 v[{wD+8}:{wD+11}], v39, {RW}, s96 offen sc1")
    fullexec()
    STAMP(6)
    A.label(sk)
A("s_barrier")
def o_loads():
    A(f"buffer_load_dwordx4 v[104:107], v{T1}, {RW}, s51 offen sc1")
def mc_loads():
    tagged_loads(16, wOF, "s61"); tagged_loads(24, wOF, "s63")
def wo_dma():
    A(f"s_add_u32 m0, s48, {WOL}")
    for u in range(4):
        if u: A(f"s_add_u32 s47, s47, {8*1024-1024}")
        A(f"buffer_load_dwordx4 v{wO}, {RB}, s47 offen offset:{u*1024} {NT} lds")
if MBW:
    SX("s40", PB, ("s3", 10)); A("s_mov_b32 m0, s40")
    A(f"buffer_load_dwordx4 v{wM}, {RC}, s96 offen {NT} lds")
    A(f"s_add_u32 m0, s40, {8192-128}")
    A(f"buffer_load_dwordx4 v{wM}, {RC}, s96 offen offset:128 {NT} lds")
sk = L("nc0")
A(f"s_cmp_ge_u32 s3, 3\ns_cbranch_scc1 {sk}")
if not MBW and not MBN: mc_loads()
A(f"s_cmp_lg_u32 s58, 0\ns_cbranch_scc1 {sk}")
A(f"buffer_load_short_d16_hi v{wXA}, v120, {RD}, s42 offen")
A.label(sk)
A(f"buffer_store_dwordx2 v[118:119], v117, {RW}, s41 offen sc1")
if OPT["ltouch"]: o_loads()
WOE = MBW and OPT["wo_mb"]
if MBW:
    if WOE:
        A("s_barrier"); wo_dma()
    A(f"ds_read2_b64 v[{wXO}:{wXO+3}], v83 offset0:0 offset1:4\nds_read2_b64 v[{wXO+4}:{wXO+7}], v83 offset0:8 offset1:12")
    unit_pre("s98", "s98", PB)
    A(f"v_mov_b32 v{wD+9}, {sTAG}\nv_mov_b32 v{wD+11}, {sTAG}")
    A(f"s_waitcnt vmcnt({6 if WOE else 2}) lgkmcnt(0)\ns_barrier")
    sk = L("nmw")
    A(f"s_cmp_lt_u32 s3, 4\ns_cbranch_scc1 {sk}")
    unit_go()
    A("v_cmp_gt_u32 vcc, 32, v0")
    A(f"v_cndmask_b32 v32, v{wD+4}, v{wD}, vcc")
    pack4(32, wD+8, wD+10, 33)
    setexec(0x11111111, 0x11111111)
    A(f"buffer_store_dwordx4 v[{wD+8}:{wD+11}], v122, {RW}, s97 offen sc1")
    fullexec()
    STAMP(6)
    A.label(sk)
if OPT["gtrg"]:
    A("s_cmp_lg_u32 s3, 3\ns_cbranch_scc1 L_trgd")
    if OPT["gmask"] == 7:
        VX(39, 32, 0, (0, 3, 7)); A(f"s_movk_i32 s40, {TRG}")
    else:
        VX(39, 32, 0, (0, 2, 7)); A(f"s_movk_i32 s40, {TRG + 512}")
    A(f"s_mov_b32 {sCNT}, 0")
    A.label("L_trg")
    A(f"buffer_load_dword v33, v39, {RW}, s40 offen sc1")
    A("s_waitcnt vmcnt(0)")
    A(f"v_cmp_ne_u32 vcc, {sTAG}, v33")
    A("s_cbranch_vccz L_trgd")
    A(f"s_sleep 2\ns_add_u32 {sCNT}, {sCNT}, 1\ns_cmp_lt_u32 {sCNT}, {OPT['trgmax']}\ns_cbranch_scc1 L_trg")
    A.label("L_trgd")
    A("s_barrier")
if not WOE: wo_dma()
sk = L("nc1")
A(f"s_cmp_ge_u32 s3, 3\ns_cbranch_scc1 {sk}")
if MBW or MBN: A("s_waitcnt vmcnt(1)")
poll(mc_loads, lambda: tagged_chk([16, 24], 33), first_issued=not (MBW or MBN), first_wait=4, sleep=2)
tagged_pack(16); tagged_pack(24)
for i in range(2):
    for t in range(2):
        mfma(wD + 8*i + 4*t, 16 + 8*i, tE + 4*t, None)
rowsum([wD, wD+4, wD+8, wD+12])
A(f"v_permlane16_swap_b32 v{wD}, v{wD+4}\nv_permlane16_swap_b32 v{wD+8}, v{wD+12}")
A(f"v_add_f32 v{wGA}, v{wD}, v{wD+4}\nv_add_f32 v{wCB}, v{wD+8}, v{wD+12}")
STAMP(2)
A.label(sk)
A("s_waitcnt vmcnt(0)")
blk_frags(WOL)
STAMP(7)
wF = 100
sg_load = lambda: A(f"buffer_load_dwordx2 v[16:17], v{T0}, {RW}, s54 offen sc1")
await_any(sg_load, lambda: A("v_cmp_o_f32 vcc, v17, v17"), OPT["s1"])
poll(sg_load, lambda: A("v_cmp_u_f32 vcc, v17, v17"), first_issued=True, sleep=2*OPT["s2"])
o_loads()
A(f"v_max_f32_dpp v18, v16, v16 quad_perm:[1,0,3,2] {DPPM}")
A(f"v_max_f32_dpp v18, v18, v18 quad_perm:[2,3,0,1] {DPPM}")
A(f"v_max_f32_dpp v18, v18, v18 row_half_mirror {DPPM}")
A("v_sub_f32 v16, v16, v18\nv_exp_f32 v16, v16\nv_mul_f32 v17, v16, v17")
for m in ("quad_perm:[1,0,3,2]", "quad_perm:[2,3,0,1]", "row_half_mirror"):
    A(f"v_add_f32_dpp v17, v17, v17 {m} {DPPM}")
A(f"v_rcp_f32 v17, v17\nv_mul_f32 v{wF}, v16, v17")
STAMP(8)
poll(o_loads, lambda: chk_empty4(104, 33), first_issued=True, first_wait=0)
STAMP(9)
A("s_waitcnt lgkmcnt(0)")
blk_mfma(104)
for t in range(4):
    A(f"v_mul_f32_dpp v{wD+4*t}, v{wF}, v{wD+4*t} row_newbcast:0 {DPPM}")
for r in range(1, 4):
    for t in range(4):
        A(f"v_fmac_f32_dpp v{wD+4*t}, v{wF}, v{wD+4*t+r} row_newbcast:{r} {DPPM}")
blk_reduce()
A("s_cmp_gt_u32 s3, 2\ns_cbranch_scc1 L_exit")
A("s_cmp_eq_u32 s3, 2\ns_cbranch_scc1 L_fin")
blk_final()
A(f"v_fma_f32 v32, v32, v{wGA}, v{wXA}")
A(f"v_mul_f32 v36, v32, v{wCB}")
A(f"v_mov_b32_dpp v33, v32 quad_perm:[1,1,3,3] {DPPM}")
A(f"v_mov_b32_dpp v37, v36 quad_perm:[1,1,3,3] {DPPM}")
A("v_cvt_pk_bf16_f32 v34, v32, v33\nv_cvt_pk_bf16_f32 v38, v36, v37")
A(f"v_mov_b32_dpp v35, v34 quad_perm:[2,2,2,2] {DPPM}")
A(f"v_mov_b32_dpp v39, v38 quad_perm:[2,2,2,2] {DPPM}")
setexec(0x11111111, 0x11111111)
A(f"buffer_store_dwordx2 v[38:39], v{wXAD}, {RW}, s52 offen sc1")
A(f"buffer_store_dwordx2 v[34:35], v{wXAD}, {RW}, s60 offen sc1")
STAMP(10)
A("s_branch L_exit")
A.label("L_fin")
def x4_loads():
    A(f"buffer_load_dwordx4 v[16:19], v{tOF}, {RW}, s49 offen sc1")
    A(f"buffer_load_dwordx4 v[20:23], v{tOF}, {RW}, s50 offen sc1")
def x4_chk():
    A("v_max3_u32 v33, v16, v17, v18\nv_max3_u32 v34, v19, v20, v21\nv_max3_u32 v33, v33, v22, v23\nv_max_u32 v33, v33, v34\nv_cmp_eq_u32 vcc, -1, v33")
poll(x4_loads, x4_chk)
STAMP(11)
for hp in range(2):
    for t in range(2):
        mfma(wD + 4*t, 16 + 4*hp, tE + 4*t, None if hp == 0 else wD + 4*t)
rowsum([wD, wD+4])
A(f"v_permlane16_swap_b32 v{wD}, v{wD+4}")
A(f"v_add_f32 v42, v{wD}, v{wD+4}")
A("v_mov_b32 v43, v42\nv_mul_f32 v44, v42, v42")
A("v_permlane16_swap_b32 v43, v44")
A("v_add_f32 v43, v43, v44")
for m in ("quad_perm:[1,0,3,2]", "quad_perm:[2,3,0,1]", "row_half_mirror", "row_mirror"):
    A(f"v_add_f32_dpp v43, v43, v43 {m} {DPPM}")
setexec(0x00010001, 0x00010001)
A(f"buffer_store_dword v43, v113, {RW}, s55 offen")
fullexec()
STAMP(12)
A(f"ds_bpermute_b32 v42, v{tBP}, v42\nds_bpermute_b32 v{wGA}, v{tBP}, v{wGA}")
def y6_loads():
    for i in range(4):
        A(f"buffer_load_dwordx4 v[{16+4*i}:{19+4*i}], v{tL16}, {RW}, s59 offen offset:{1024*i} sc1")
def y6_chk():
    for r in range(4):
        A(f"v_add_f32 v{16+r}, v{16+r}, v{20+r}\nv_add_f32 v{24+r}, v{24+r}, v{28+r}")
    for r in range(4):
        A(f"v_add_f32 v{16+r}, v{16+r}, v{24+r}")
    A("v_permlane32_swap_b32 v16, v17\nv_permlane32_swap_b32 v18, v19")
    A("v_add_f32 v16, v16, v17\nv_add_f32 v18, v18, v19")
    A("v_permlane16_swap_b32 v16, v18")
    A("v_add_f32 v16, v16, v18")
    A("v_cmp_u_f32 vcc, v16, v16")
await_any(lambda: A(f"buffer_load_dword v16, v{tL16}, {RW}, s59 offen sc1"), lambda: A("v_cmp_o_f32 vcc, v16, v16"), 2)
poll(y6_loads, y6_chk)
STAMP(13)
for m in ("row_ror:8", "row_ror:4", "row_ror:2"):
    A(f"v_add_f32_dpp v16, v16, v16 {m} {DPPM}")
A("s_waitcnt lgkmcnt(0)")
A(f"v_fma_f32 v16, v16, v{wGA}, v42")
A("v_cvt_pk_bf16_f32 v16, v16, v16")
setexec(0x00030003, 0x00030003)
A(f"buffer_store_short v16, v{tOUT}, {RF}, s62 offen")
A("s_cmp_lg_u32 s2, 128\ns_cbranch_scc1 L_exit")
A(f"s_sub_u32 s40, {sTAG}, {TAGC-1:#x}")
A("v_mov_b32 v17, s40\nv_mov_b32 v18, 0")
A("s_mov_b64 exec, 1")
A(f"buffer_store_dword v17, v18, {RW}, 0 offen sc1")

A("s_branch L_exit")
A.seg(40)
A.label("L_exit")
if STAMPS == 1:
    STAMP(15)
    A("s_waitcnt lgkmcnt(0)")
    A("s_mov_b64 exec, 1")
    SX("s40", DBG, ("s2", 9), ("s3", 6))
    A("v_mov_b32 v0, 0")
    for q in range(4):
        for i in range(4):
            A(f"v_mov_b32 v{4+4*q+i}, s{64+2*(4*q+i)}")
        A(f"buffer_store_dwordx4 v[{4+4*q}:{7+4*q}], v0, {RW}, s40 offen offset:{16*q}")
if STAMPS == 3:
    STAMP(15)
    A("s_waitcnt lgkmcnt(0)")
    SX("s40", 0, ("s2", 3), ("s3", 0))
    A(f"s_cmp_lg_u32 s40, {OPT['dwg']*8 + OPT['dwv']}\ns_cbranch_scc1 L_end")
    A(f"s_sub_u32 s40, s{64+2*OPT['db']}, s{64+2*OPT['da']}")
    A(f"s_mul_i32 s40, s40, {OPT['dm']}")
    A("s_min_u32 s40, s40, 30000")
    A.label("L_spin")
    A("s_memrealtime s[42:43]\ns_waitcnt lgkmcnt(0)\ns_sub_u32 s41, s42, s94\ns_cmp_lt_u32 s41, s40\ns_cbranch_scc1 L_spin")
if STAMPS == 2:
    STAMP(15)
    A("s_load_dwordx2 s[32:33], s[0:1], 96")
    A("s_mov_b32 s34, 256\ns_mov_b32 s35, 0x00020000")
    A("s_waitcnt lgkmcnt(0)")
    fullexec()
    A("v_mov_b32 v4, 0\nv_mbcnt_lo_u32_b32 v5, -1, 0\nv_lshlrev_b32 v5, 2, v5")
    A("s_cmp_ge_u32 s2, 128\ns_cbranch_scc1 L_dw")
    A("s_cmp_lg_u32 s3, 0\ns_cbranch_scc1 L_end")
    A("s_not_b32 s40, s64\nv_writelane_b32 v4, s40, 0")
    for i, st in enumerate([9, 2, 5, 7, 10, 11, 8]):
        A(f"v_writelane_b32 v4, s{64+2*st}, {i+1}")
    A("s_branch L_dd")
    A.label("L_dw")
    A("s_cmp_lg_u32 s3, 2\ns_cbranch_scc1 L_end")
    for i, st in enumerate([0, 3, 4, 5, 7, 9, 11, 15]):
        A(f"v_writelane_b32 v4, s{64+2*st}, {i+8}")
    A.label("L_dd")
    A("s_mov_b64 exec, 0xffff")
    A("buffer_atomic_umax v4, v5, s[32:35], 0 offen")
A.label("L_end")
A("s_endpgm")
A.label("L_codeend")
A.raw(f".fill (16384 - (L_codeend - {NAME}_kernel)) / 4, 4, 0xbf810000")
A.raw(f""".section .rodata,"a"
.p2align 6
.amdhsa_kernel {NAME}_kernel
  .amdhsa_next_free_vgpr 152
  .amdhsa_next_free_sgpr 100
  .amdhsa_accum_offset 152
  .amdhsa_group_segment_fixed_size 0
  .amdhsa_kernarg_size 112
  .amdhsa_user_sgpr_count 2
  .amdhsa_user_sgpr_kernarg_segment_ptr 1
  .amdhsa_system_sgpr_workgroup_id_x 1
  .amdhsa_float_denorm_mode_32 3
.end_amdhsa_kernel""")
sys.stdout.write(A.text())
sys.stderr.write(f"instrs={A.ninstr} nops={A.nops}\n")
```

```python
import sys, math, struct
sys.path.insert(0, "work")
from asmlib import Asm

NAME = "adaLN_cond__sliding_block_cached__glu_gated_reglu__decode"
OPT = dict(stamps=0, nt="nt", limit=20000, refresh=255, psleep=0, pf=4, pfnt="", smallnt="", slow=0, gtrg=0, gw=7, gmask=7, fpf=0, wo_after_c=0, fpfbar=1, fpfl="", uslocal=1, qn=4, trg=0, mb_at="kv", touch=0, ltouch=1, ahold=8, wqpf=1, wqpfl="", ehold=0, depth=0, ffn_first=0, ser=1, obar=1, gu_b1=0, dn_late=0, dn_p=0, diag=0, rot=7, vt=1, wfirst=0, gufirst=1, mfb1=1, mbearly=1, ftouch=0, ftouch2=0, mbg=3, mbwait=-1, g_b1=0, wo_mb=1, h1at=1, depth_until=16, qpipe=1, s1=6, s2=1, sent=1, trgmax=24, dwg=10, dwv=1, da=0, db=15, dm=20, kvbar=1, abl="")
for a in sys.argv[1:]:
    k, v = a.split("=")
    OPT[k] = int(v) if v.lstrip("-").isdigit() else v
STAMPS = OPT["stamps"]; NT = OPT["nt"] if OPT["nt"] != "-" else ""
LIMIT = OPT["limit"]; REFRESH = OPT["refresh"]; SNT = OPT["smallnt"]

def f32(x): return "0x%08x" % struct.unpack("<I", struct.pack("<f", x))[0]

TRG = 0x1000; H1G = 0x8000; QG = 0x10000; MGT = 0x20000
CLR = 0x100000
OG = CLR; MG = CLR + 0x20000; X4 = CLR + 0x30000; Y4 = CLR + 0x38000
G5 = CLR + 0x40000; SG = CLR + 0x5C000; ST5 = CLR + 0x5D000; US5 = CLR + 0x60000
Y6 = 0x180000; DBG = 0x400000
WS_BYTES = 0x800000
TAGC = 0x9E3779B9
VREG = 65536; PA = 131072; XL = 147456; QL = XL + 1024; PL = QL + 2048; MISC = PL + 2048
FG = 0; FD = 32768; YL0 = 131072
WQL = 0; WOL = 32768; PB = 65536; RED = XL + 1024
LDS_BYTES = MISC + 256
C1 = 128 ** -0.5 * math.log2(math.e)

A = Asm()
hdr = open(f"cdna_kernels/{NAME}.s.ref").read().split("\n")
for ln in hdr:
    if ln.startswith("; @launch"):
        A.raw(f"; @launch grid=(256,1,1) block=(512,1,1) lds={LDS_BYTES}")
        break
    A.raw(ln)
A.raw('.amdgcn_target "amdgcn-amd-amdhsa--gfx950"')
A.raw(f".text\n.globl {NAME}_kernel\n.p2align 8\n.type {NAME}_kernel,@function\n{NAME}_kernel:")

RA, RB, RW, RC, RD, RE, RF = "s[8:11]", "s[12:15]", "s[16:19]", "s[20:23]", "s[24:27]", "s[28:31]", "s[32:35]"
sTAG, sCNT, sT = "s36", "s37", "s45"
def STAMP(n):
    if STAMPS:
        A(f"s_memrealtime s[{64+2*n}:{65+2*n}]")
DPPM = "row_mask:0xf bank_mask:0xf"
lbl = [0]
def L(p):
    lbl[0] += 1
    return f"L_{p}_{lbl[0]}"
def srd(r, nbytes):
    b = int(r[2:r.index(":")])
    A((f"s_movk_i32 s{b+2}, {nbytes}" if nbytes < 32768 else f"s_mov_b32 s{b+2}, {nbytes}") + f"\ns_mov_b32 s{b+3}, s11")
def kload(r, off):
    b = int(r[2:r.index(":")])
    A(f"s_load_dwordx2 s[{b}:{b+1}], s[0:1], {off}")

def SX(dst, const, *terms):
    first = True
    for t in terms:
        src, rs, w, ls = (t[0], 0, 0, t[1]) if len(t) == 2 else t
        d = dst if first else sT
        cur = src
        if w:
            if rs == 0: A(f"s_and_b32 {d}, {cur}, {(1<<w)-1}")
            else: A(f"s_bfe_u32 {d}, {cur}, {(w<<16)|rs:#x}")
            cur = d
        elif rs:
            A(f"s_lshr_b32 {d}, {cur}, {rs}"); cur = d
        if first:
            if ls: A(f"s_lshl_b32 {d}, {cur}, {ls}")
            elif cur != d: A(f"s_mov_b32 {d}, {cur}")
        else:
            if 1 <= ls <= 4: A(f"s_lshl{ls}_add_u32 {dst}, {cur}, {dst}")
            else:
                if ls: A(f"s_lshl_b32 {sT}, {cur}, {ls}"); cur = sT
                A(f"s_add_u32 {dst}, {dst}, {cur}")
        first = False
    if const: A(f"s_add_u32 {dst}, {dst}, {const:#x}")
def VX(dst, tmp, add, *terms):
    first = True
    for rs, w, ls in terms:
        if rs == 4 and w == 2: cur = "v1"
        elif rs == 0 and w == 4: cur = "v2"
        elif rs == 0 and w == 6: cur = "v0"
        else:
            d = f"v{dst}" if first else f"v{tmp}"
            if rs + w == 6: A(f"v_lshrrev_b32 {d}, {rs}, v0")
            elif rs == 0: A(f"v_and_b32 {d}, {(1<<w)-1}, v0")
            else: A(f"v_bfe_u32 {d}, v0, {rs}, {w}")
            cur = d
        if first:
            if ls: A(f"v_lshlrev_b32 v{dst}, {ls}, {cur}")
            elif cur != f"v{dst}": A(f"v_mov_b32 v{dst}, {cur}")
        else:
            if ls: A(f"v_lshl_or_b32 v{dst}, {cur}, {ls}, v{dst}")
            else: A(f"v_or_b32 v{dst}, {cur}, v{dst}")
        first = False
    if add: A(f"v_add_u32 v{dst}, {add}, v{dst}")

def cont(n):
    t = L("c")
    A(f"s_branch {t}")
    A.seg(n); A.label(t)
def await_any(load, valid, sleep):
    if not OPT["sent"]: return
    top, done = L("aw"), L("awd")
    A(f"s_mov_b32 {sCNT}, 0")
    A.label(top)
    load()
    A("s_waitcnt vmcnt(0)")
    valid()
    A(f"s_cbranch_vccnz {done}")
    A(f"s_sleep {sleep}\ns_add_u32 {sCNT}, {sCNT}, 1\ns_cmp_lt_u32 {sCNT}, 64\ns_cbranch_scc1 {top}")
    A.label(done)
def poll(loads, check, first_issued=False, first_wait=0, sleep=0):
    top, done, chk = L("poll"), L("got"), L("chk")
    A(f"s_mov_b32 {sCNT}, 0")
    if first_issued:
        A(f"s_waitcnt vmcnt({first_wait})")
        A(f"s_branch {chk}")
    A.label(top)
    loads()
    A("s_waitcnt vmcnt(0)")
    if first_issued:
        A.label(chk)
    check()
    A(f"s_cbranch_vccz {done}")
    if sleep: A(f"s_sleep {sleep}")
    A(f"s_add_u32 {sCNT}, {sCNT}, 1")
    A(f"s_and_b32 {sT}, {sCNT}, {REFRESH}\ns_cbranch_scc1 {top}")
    A("buffer_wbl2 sc1")
    A(f"s_cmp_lt_u32 {sCNT}, {LIMIT}\ns_cbranch_scc1 {top}")
    A.label(done)
def chk_empty4(r, tmp):
    A(f"v_max3_u32 v{tmp}, v{r}, v{r+1}, v{r+2}\nv_max_u32 v{tmp}, v{tmp}, v{r+3}\nv_cmp_eq_u32 vcc, -1, v{tmp}")
def pack4(src, pk, pk2, tmp):
    A(f"v_mov_b32_dpp v{tmp}, v{src} quad_perm:[1,1,3,3] {DPPM}")
    A(f"v_cvt_pk_bf16_f32 v{pk}, v{src}, v{tmp}")
    A(f"v_mov_b32_dpp v{pk2}, v{pk} quad_perm:[2,2,2,2] {DPPM}")
def setexec(lo, hi):
    A(f"s_mov_b32 exec_lo, {lo:#x}\ns_mov_b32 exec_hi, {hi:#x}")
def fullexec():
    A("s_mov_b64 exec, -1")
def mfma(d, a, b, c):
    cc = "0" if c is None else f"v[{c}:{c+3}]"
    A(f"v_mfma_f32_16x16x32_bf16 v[{d}:{d+3}], v[{a}:{a+3}], v[{b}:{b+3}], {cc}")
def rowsum(ds):
    for d in ds: A(f"v_add_f32 v{d}, v{d}, v{d+1}\nv_add_f32 v{d+2}, v{d+2}, v{d+3}")
    for d in ds: A(f"v_add_f32 v{d}, v{d}, v{d+2}")
def code_prefetch(tmp, dst):
    sk = L("npf")
    A(f"s_cmp_lt_u32 s3, 6\ns_cbranch_scc1 {sk}")
    A("s_and_b32 s38, s38, 0xffffff00")
    A(f"v_lshlrev_b32 v{tmp}, 7, v0")
    A(f"s_and_b32 s40, s3, 1\ns_lshl_b32 s40, s40, 13")
    A(f"v_add_u32 v{tmp}, s40, v{tmp}")
    if not OPT["pf"]: A(f"v_mov_b32 v{tmp}, 0")
    A(f"global_load_dword v{dst}, v{tmp}, s[38:39] {OPT['pfnt']}")
    A.label(sk)

wM, wQ, wO, wTR, T0, T1, T2, T3, vPF = 3, 4, 5, 6, 7, 8, 9, 10, 11
wC = 12; wXS = 13; wX = 16; wXO = 24; wWF = 40; wD = 56
def swz_chunk(dst):
    A(f"v_lshlrev_b32 v{dst}, 1, v1\nv_xor_b32 v{dst}, v0, v{dst}\nv_and_b32 v{dst}, 7, v{dst}\nv_lshlrev_b32 v{dst}, 4, v{dst}")
def unit_dma(srdr, s0, s1, base):
    A(f"s_add_u32 m0, s42, {base}")
    A(f"buffer_load_dwordx4 v{wM}, {srdr}, {s0} offen {NT} lds")
    A(f"s_add_u32 m0, s42, {base+8192}")
    A(f"buffer_load_dwordx4 v{wM}, {srdr}, {s1} offen {NT} lds")
def tr_setup():
    VX(wTR, 32, 0, (2, 4, 7), (3, 2, 5), (0, 2, 3))
    SX("s40", XL, ("s3", 0, 2, 8))
    VX(82, 32, "s40", (0, 6, 2))
    VX(83, 32, "s40", (2, 1, 7), (4, 2, 3))
def silu_operand(cnt):
    A(f"s_waitcnt vmcnt({cnt})")
    A(f"v_lshlrev_b32 v32, 16, v{wC}\nv_and_b32 v33, 0xffff0000, v{wC}")
    A(f"v_mul_f32 v34, {f32(-math.log2(math.e))}, v32\nv_mul_f32 v35, {f32(-math.log2(math.e))}, v33")
    A("v_exp_f32 v34, v34\nv_exp_f32 v35, v35")
    A("v_add_f32 v34, 1.0, v34\nv_add_f32 v35, 1.0, v35")
    A("v_rcp_f32 v34, v34\nv_rcp_f32 v35, v35")
    A("v_mul_f32 v32, v32, v34\nv_mul_f32 v33, v33, v35")
    A("v_cvt_pk_bf16_f32 v32, v32, v33")
    A("ds_write_b32 v82, v32")
    A("s_waitcnt lgkmcnt(0)")
    A(f"ds_read2_b64 v[{wXO}:{wXO+3}], v83 offset0:0 offset1:4\nds_read2_b64 v[{wXO+4}:{wXO+7}], v83 offset0:8 offset1:12")
def unit_pre(s_c0, s_c1, base):
    SX("s40", 0, ("s3", 0, 2, 5)); A(f"v_xor_b32 v112, s40, v{wTR}\nv_add_u32 v112, {base}, v112")
    for i in range(4):
        A(f"v_mov_b32 v{wD+i}, {s_c0}\nv_mov_b32 v{wD+4+i}, {s_c1}")
def unit_go():
    if STAMPS: A("s_waitcnt lgkmcnt(0)")
    for k in range(2):
        for seg in range(2):
            for h in range(2):
                r = wWF + seg*8 + k*4 + h*2
                A(f"ds_read_b64_tr_b16 v[{r}:{r+1}], v112 offset:{seg*8192 + k*4096 + h*2048}")
    for k in range(2):
        for seg in range(2):
            A(f"s_waitcnt lgkmcnt({6 - 4*k - 2*seg})")
            mfma(wD + 4*seg, wXO + 4*k, wWF + seg*8 + k*4, wD + 4*seg)
def unit_mfma(s_c0, s_c1, base):
    unit_pre(s_c0, s_c1, base); unit_go()
def tagged_loads(r, va, so):
    A(f"buffer_load_dwordx4 v[{r}:{r+3}], v{va}, {RW}, {so} offen sc1")
    A(f"buffer_load_dwordx4 v[{r+4}:{r+7}], v{va}, {RW}, {so} offen offset:1024 sc1")
def tagged_chk(rs, tmp, extra=None):
    tags = [r + i for r in rs for i in (1, 3, 5, 7)] + ([extra] if extra else [])
    A(f"v_xor_b32 v{tmp}, {sTAG}, v{tags[-1]}")
    for t in tags[:-1]:
        A(f"v_bitop3_b32 v{tmp}, v{t}, {sTAG}, v{tmp} bitop3:0xbe")
    A(f"v_cmp_ne_u32 vcc, 0, v{tmp}")
def tagged_pack(r):
    A(f"v_mov_b32 v{r+1}, v{r+2}\nv_mov_b32 v{r+2}, v{r+4}\nv_mov_b32 v{r+3}, v{r+6}")
def sum8(dst, r):
    A(f"v_add_f32 v32, v{r}, v{r+1}\nv_add_f32 v33, v{r+2}, v{r+3}\nv_add_f32 v34, v{r+4}, v{r+5}\nv_add_f32 v35, v{r+6}, v{r+7}")
    A(f"v_add_f32 v32, v32, v33\nv_add_f32 v34, v34, v35\nv_add_f32 v{dst}, v32, v34")

STAMP(0)
A("s_cmp_ge_u32 s2, 256\ns_cbranch_scc1 L_end")
A("s_cmp_ge_u32 s2, 128\ns_cselect_b32 s40, 24, 8\ns_cselect_b32 s41, 0, 16")
A("s_load_dwordx2 s[8:9], s[0:1], s40")
kload(RC, 80)
A("s_load_dwordx2 s[24:25], s[0:1], s41")
kload(RE, 72); kload(RW, 104)
A("v_readfirstlane_b32 s3, v0")
A("s_getpc_b64 s[38:39]")
if OPT["pf"] == 4:
    A("s_and_b32 s38, s38, 0xffffff00")
    A(f"v_and_b32 v{vPF}, 0x1c0, v0\ns_lshl_b32 s40, s2, 7\ns_and_b32 s40, s40, 0x3c00\nv_lshl_or_b32 v{vPF}, v{vPF}, 1, s40")
    sk = L("npf")
    A(f"s_cmp_ge_u32 s2, 128\ns_cbranch_scc1 {sk}")
    A(f"global_load_dword v{vPF}, v{vPF}, s[38:39]")
    A.label(sk)
A("v_and_b32 v0, 63, v0")
A("s_mov_b32 s11, 0x00020000")
A("v_lshrrev_b32 v1, 4, v0\nv_and_b32 v2, 15, v0")
A(f"s_add_u32 s4, s2, {OPT['rot']}\ns_and_b32 s4, s4, 7\ns_bfe_u32 s6, s2, 0x10006\ns_bfe_u32 s7, s2, 0x30003")
A(f"v_lshlrev_b32 v{T3}, 1, v1\nv_xor_b32 v{T3}, v2, v{T3}\nv_lshlrev_b32 v{T3}, 4, v{T3}")
A("s_lshl1_add_u32 s58, s4, s6\ns_lshl_b32 s46, s7, 7\ns_mov_b32 s27, s11")
A(f"v_and_b32 v{T1}, 0x70, v{T3}\nv_lshrrev_b32 v{T0}, 3, v0")
srd(RC, 3145728); srd(RE, 2048)
A(f"v_mul_u32_u24 v{wM}, 6144, v{T0}\nv_add_u32 v{wM}, v{wM}, v{T1}")
if OPT["wfirst"]:
    A("s_cmp_lt_u32 s2, 128\ns_cbranch_scc1 L_KV")
    A.seg(OPT["wfirst"]); A.label("L_KV")
else:
    A("s_cmp_ge_u32 s2, 128\ns_cbranch_scc1 L_W")
def ids2():
    A("s_lshr_b32 s3, s3, 6\ns_bfe_u32 s5, s2, 0x40003")
    if STAMPS:
        for i in range(2, 16): A(f"s_mov_b32 s{64+2*i}, 0")
    srd(RW, WS_BYTES)

vE, vO, vQO = 120, 121, 122
vKA = 108
vQ = 14
vKF = 16
vVF = 48
vQF = 80
vS = 96
vP = 104
vOA = 108
vST = 114
vOAD, vSAD = 116, 117
A(f"v_lshl_or_b32 v{vE}, v1, 8, v{T3}\nv_xor_b32 v{vO}, 0x80, v{vE}")
A("s_lshl_b32 s43, s3, 7\ns_mov_b32 s10, 33554432\ns_mov_b32 s26, s10")
SX("s56", 6144*256, ("s6", 24), ("s4", 21), ("s7", 16), ("s43", 0))
A("s_add_u32 s57, s56, 4096\ns_mov_b32 m0, s43")
def kv_dma(u):
    r = RA if u < 8 else RD
    A(f"buffer_load_dwordx4 v{vE if u%2==0 else vO}, {r}, {'s56' if u%8 < 4 else 's57'} offen offset:{(u%4)*1024} {NT} lds")
if OPT["wqpf"]:
    kload(RF, 24)
    A("s_cmp_lt_u32 s4, 4\ns_cselect_b32 s34, 0x400000, 0\ns_mov_b32 s35, s11")
    A(f"v_and_b32 v{wQ}, {31 if OPT['wqpf'] == 1 else 15}, v0\nv_lshlrev_b32 v{wQ}, 13, v{wQ}")
    SX("s44", 0, ("s6", 21), ("s3", 12 if OPT["wqpf"] == 1 else 11), ("s4", 10), ("s46", 0))
A("s_waitcnt lgkmcnt(0)")
if OPT["wqpf"]: A(f"buffer_load_dword v16, v{wQ}, {RF}, s44 offen")
VT = OPT["vt"]
if VT:
    A(f"s_add_u32 m0, s43, {VREG}")
    kv_dma(8)
    A("s_mov_b32 m0, s43")
if OPT["slow"]: kv_dma(0)
if OPT["pf"] == 3:
    A("s_and_b32 s38, s38, 0xffffff00")
    SX("s40", 0, ("s2", 3, 4, 10), ("s3", 1))
    A("s_load_dword s99, s[38:39], s40")
A(f"s_load_dword {sTAG}, s[16:17], 0")
if OPT["slow"]: A("s_waitcnt vmcnt(0)")
def mb_issue():
    SX("s51", 0, ("s7", 6), ("s3", 3, 0, 0))
    A("s_mul_i32 s51, s51, 6144\ns_lshl_b32 s42, s3, 4")
    SX("s40", 2048, ("s58", 8)); A("s_add_u32 s51, s51, s40")
    A(f"s_add_u32 m0, s42, {PA}")
    A(f"buffer_load_dwordx4 v{wM}, {RC}, s51 offen {NT} lds")
    A(f"s_add_u32 m0, s42, {PA + 8192 - 128}")
    A(f"buffer_load_dwordx4 v{wM}, {RC}, s51 offen offset:128 {NT} lds")
    VX(T2, T3, 0, (5, 1, 10), (0, 5, 2))
    A(f"buffer_load_dword v{wC}, v{T2}, {RE}, s46 offen {SNT}")
for u in range(1 if OPT["slow"] else 0, 16):
    if u in (4, 12): A("s_add_u32 m0, m0, 4096")
    if u == 8:
        if OPT["mbg"] != 3: mb_issue()
        A(f"s_add_u32 m0, s43, {VREG}")
        if VT: continue
    if OPT["depth"] and u < OPT["depth_until"]: A(f"s_waitcnt vmcnt({OPT['depth']-1})")
    kv_dma(u)
cont(30)
ids2()
if STAMPS: A("s_mov_b32 s66, 0")
STAMP(2)
if OPT["abl"]:
    A("s_waitcnt vmcnt(0)")
    STAMP(4)
    A("s_branch L_exit")
GT = 0
A("s_waitcnt lgkmcnt(0)")
A(f"s_add_u32 {sTAG}, {sTAG}, {TAGC:#x}")
kload(RC, 48); kload(RD, 56); kload(RE, 64)
FF = OPT["ffn_first"]
if FF: FG = VREG; FD = VREG + 32768
wG, wDO, fMF = 124, 125, 123
A(f"v_mul_u32_u24 v{wG}, 3584, v{T0}\nv_add_u32 v{wG}, v{wG}, v{T1}\nv_lshl_or_b32 v{wDO}, v{T0}, 10, v{T1}")
A("s_cmp_lt_u32 s4, 7")
A("s_cselect_b32 s22, 1835008, 0\ns_cselect_b32 s26, 1835008, 0\ns_cselect_b32 s30, 1835008, 0")
SX("s63", 0, ("s4", 4), ("s5", 0))
SX("s49", 0, ("s63", 0, 2, 7), ("s3", 4))
A("s_mul_i32 s49, s49, 3584")
SX("s50", 0, ("s63", 2, 0, 7))
A(f"s_add_u32 s49, s49, s50\ns_add_u32 s50, s49, {8*3584-1024}")
SX("s51", 0, ("s63", 14), ("s3", 7))
A(f"s_add_u32 s52, s51, {8*1024-1024}")
A("s_lshl_b32 s42, s3, 11")
def g_dma():
    A(f"s_add_u32 m0, s42, {FG}")
    A(f"buffer_load_dwordx4 v{wG}, {RC}, s49 offen {NT} lds")
    A(f"buffer_load_dwordx4 v{wG}, {RC}, s50 offen offset:1024 {NT} lds")
def u_dma():
    A(f"s_add_u32 m0, s42, {FG+16384}")
    A(f"buffer_load_dwordx4 v{wG}, {RD}, s49 offen {NT} lds")
    A(f"buffer_load_dwordx4 v{wG}, {RD}, s50 offen offset:1024 {NT} lds")
def gu_dma():
    g_dma(); u_dma()
def dn_dma():
    A(f"s_add_u32 m0, s42, {FD}")
    A(f"buffer_load_dwordx4 v{wDO}, {RE}, s51 offen {NT} lds")
    A(f"buffer_load_dwordx4 v{wDO}, {RE}, s52 offen offset:1024 {NT} lds")
def ffn_dma():
    gu_dma(); dn_dma()
GB1 = OPT["gu_b1"] and OPT["ser"] and not FF
SX("s98", ST5, ("s4", 8))
SX("s96", G5, ("s63", 10))
A(f"s_add_u32 s97, s96, {US5-G5}")
if OPT["ftouch"]:
    A("v_mul_u32_u24 v118, 3584, v2\nv_lshlrev_b32 v119, 10, v2")
SX("s44", QG, ("s58", 12), ("s3", 10))
vQ = 100
A(f"v_lshlrev_b32 v{vQO}, 4, v0")
VX(fMF, T2, 0, (0, 3, 7), (3, 1, 6), (4, 2, 4))
SX("s59", MGT + 2*32768, ("s63", 0, 2, 13), ("s3", 0, 2, 11))
SX("s40", 0, ("s3", 2, 0, 15)); A("s_sub_u32 s59, s59, s40")
VX(T2, 0, 0, (0, 3, 1))
A(f"v_xor_b32 v{T2}, v1, v{T2}\nv_lshlrev_b32 v{T2}, 4, v{T2}\nv_lshl_or_b32 v{T2}, v2, 8, v{T2}")
A(f"v_add_u32 v{vKA}, s43, v{T2}")
for t in range(1, 4):
    A(f"v_xor_b32 v{vKA+t}, {t*64:#x}, v{vKA}")
vQW, vQR, vVR, vMX, vPW, vPR, vMW = 3, 4, 5, 6, 113, 13, 112
SX("s40", QL, ("s3", 5))
VX(vQW, T2, "s40", (1, 4, 7), (5, 1, 4), (0, 1, 3))
VX(vQR, T2, QL, (4, 2, 7), (0, 3, 4))
A(f"v_bfe_u32 v{T0}, v0, 2, 3\nv_xor_b32 v{T0}, s3, v{T0}")
VX(vVR, T2, VREG, (2, 4, 8), (0, 2, 3))
A(f"v_lshl_or_b32 v{vVR}, v{T0}, 5, v{vVR}")
VX(vMX, T2, MISC, (0, 2, 5))
A(f"s_lshl_b32 s40, s3, 2\nv_add_u32 v{vMW}, s40, v{vMX}")
VX(vPR, T2, PL, (4, 2, 6), (0, 2, 4))
A(f"s_lshl_b32 s40, s3, 8\nv_add_u32 v{vPW}, s40, v{vPR}")
VX(vOAD, T2, 0, (0, 2, 12), (4, 2, 4))
SX("s53", OG, ("s4", 14), ("s3", 1, 0, 10), ("s5", 6), ("s3", 0, 1, 3))
VX(vSAD, T2, 0, (0, 2, 7))
SX("s54", SG, ("s4", 9), ("s5", 3))
A(f"s_mov_b32 s55, {f32(C1)}")
fWF = 128 if FF else 84
fDF = 144 if FF else 64
def ffn_frag_addr(wr, ta, tr):
    VX(tr, 32, 0, (2, 4, 7), (3, 2, 5), (0, 2, 3))
    SX("s40", 0, ("s3", 0, 2, 5)); A(f"v_xor_b32 v{wr}, s40, v{tr}")
    SX("s40", FG, ("s3", 2, 0, 14)); A(f"v_add_u32 v{wr}, s40, v{wr}")
    A(f"s_add_u32 s40, s42, {FD}\nv_add_u32 v{ta}, s40, v{tr}")
    for t in range(1, 4):
        A(f"v_xor_b32 v{ta+t}, {t*32:#x}, v{ta}")
def w_frags(wr):
    for k in range(4):
        for h in range(2):
            r = fWF + 4*k + 2*h
            A(f"ds_read_b64_tr_b16 v[{r}:{r+1}], v{wr} offset:{k*4096 + h*2048}")
def d_frags(ta):
    for tau in range(4):
        A(f"ds_read_b64_tr_b16 v[{fDF+2*tau}:{fDF+2*tau+1}], v{ta+tau}")
A(f"s_waitcnt vmcnt({7 if VT else 8})")
for T in range(2):
    for t in range(4):
        r = vKF + (T*4+t)*4
        A(f"ds_read_b128 v[{r}:{r+3}], v{vKA+t} offset:{T*4096}")
sk = L("nqp"); skm = L("mbw")
if OPT["mbg"] == 3:
    A(f"s_cmp_lt_u32 s3, 4\ns_cbranch_scc1 {skm}")
    A(f"s_waitcnt vmcnt(0)\ns_branch {sk}")
    A.label(skm)
    A.mute = True
A("s_barrier")
A(f"s_cmp_lt_u32 s3, 4\ns_cbranch_scc1 {skm}")
SX("s40", XL, ("s3", 0, 2, 8))
VX(82, 80, "s40", (0, 6, 2))
VX(83, 80, "s40", (2, 1, 7), (4, 2, 3))
A(f"v_lshlrev_b32 v84, 16, v{wC}\nv_and_b32 v85, 0xffff0000, v{wC}")
A(f"v_mul_f32 v86, {f32(-math.log2(math.e))}, v84\nv_mul_f32 v87, {f32(-math.log2(math.e))}, v85")
A("v_exp_f32 v86, v86\nv_exp_f32 v87, v87\nv_add_f32 v86, 1.0, v86\nv_add_f32 v87, 1.0, v87")
A("v_rcp_f32 v86, v86\nv_rcp_f32 v87, v87\nv_mul_f32 v84, v84, v86\nv_mul_f32 v85, v85, v87")
A("v_cvt_pk_bf16_f32 v84, v84, v85\nds_write_b32 v82, v84")
A("ds_read2_b64 v[144:147], v83 offset0:0 offset1:4\nds_read2_b64 v[148:151], v83 offset0:8 offset1:12")
VX(81, 80, 0, (2, 4, 7), (3, 2, 5), (0, 2, 3))
SX("s40", 0, ("s3", 0, 2, 5)); A(f"v_xor_b32 v81, s40, v81\nv_add_u32 v81, {PA}, v81")
for k in range(2):
    for sg in range(2):
        for hh in range(2):
            r = 128 + sg*8 + k*4 + hh*2
            A(f"ds_read_b64_tr_b16 v[{r}:{r+1}], v81 offset:{sg*8192 + k*4096 + hh*2048}")
SX("s40", 0, ("s58", 2, 0, 3), ("s7", 0))
A("s_cmp_eq_u32 s40, 16\ns_cselect_b32 s41, 1.0, 0")
for i in range(8): A(f"v_mov_b32 v{88+i}, s41")
VX(80, 81, 0, (5, 1, 12), (4, 1, 6), (2, 2, 4))
SX("s41", MGT, ("s58", 13), ("s3", 0, 2, 10), ("s46", 0))
A(f"v_mov_b32 v97, {sTAG}\nv_mov_b32 v99, {sTAG}")
A("s_waitcnt lgkmcnt(0)")
for k in range(2):
    for sg in range(2):
        mfma(88 + 4*sg, 144 + 4*k, 128 + sg*8 + k*4, 88 + 4*sg)
A("v_cmp_gt_u32 vcc, 32, v0")
A("v_cndmask_b32 v84, v92, v88, vcc")
pack4(84, 96, 98, 85)
setexec(0x11111111, 0x11111111)
A(f"buffer_store_dwordx4 v[96:99], v80, {RW}, s41 offen sc1")
fullexec()
STAMP(9)
A(f"s_waitcnt vmcnt(1)\ns_branch {sk}")
A.label(skm)
A.mute = False
def q_load():
    A(f"buffer_load_dwordx4 v[{vQ}:{vQ+3}], v{vQO}, {RW}, s44 offen sc1")
def q_chk():
    A(f"v_xor_b32 v{T0}, {sTAG}, v{vQ+1}\nv_bitop3_b32 v{T0}, v{vQ+3}, {sTAG}, v{T0} bitop3:0xbe\nv_cmp_ne_u32 vcc, 0, v{T0}")
poll(q_load, q_chk, sleep=OPT['s2'])
STAMP(4)
A(f"v_mov_b32 v{vQ+1}, v{vQ+2}")
A(f"ds_write_b64 v{vQW}, v[{vQ}:{vQ+1}]")
A.label(sk)
A("s_waitcnt lgkmcnt(0)\ns_barrier")
STAMP(5)
for t in range(4):
    A(f"ds_read_b128 v[{vQF+4*t}:{vQF+4*t+3}], v{vQR} offset:{t*512}")
if GB1: gu_dma()
if OPT["g_b1"]: g_dma()
def f_touch(n):
    A("s_mov_b64 exec, 0xffff")
    if n & 1: A(f"buffer_load_dword v{vPF}, v118, {RC}, s49 offen")
    if n & 2: A(f"buffer_load_dword v{vPF}, v118, {RD}, s49 offen")
    if n & 4: A(f"buffer_load_dword v{vPF}, v119, {RE}, s51 offen")
    fullexec()
if OPT["ftouch"]: f_touch(OPT["ftouch"])
vMF = 128
def mf_loads():
    tagged_loads(vMF, fMF, "s59")
def l_touch(a, b, c):
    sk = L("nlt")
    A(f"s_cmp_lg_u32 s3, 7\ns_cbranch_scc1 {sk}")
    A(f"buffer_load_dwordx4 v[136:139], v{vQO}, {RW}, {a} offen sc1")
    A(f"buffer_load_dwordx4 v[136:139], v{vQO}, {RW}, {b} offen sc1")
    A(f"buffer_load_dword v136, v{vSAD}, {RW}, {c} offen sc1")
    A.label(sk)
if OPT["mfb1"]:
    mf_loads()
    l_touch("s96", "s97", "s98")
A("s_waitcnt lgkmcnt(0)")
def v_tr(kb, T):
    r = vVF + kb*4 + T*2
    A(f"ds_read_b64_tr_b16 v[{r}:{r+1}], v{vVR} offset:{(32*kb+16*T)*256}")
EARLY_T = [0, 1] if OPT['ser'] else []
for kb in range(8):
    if kb < 4:
        for T in range(2):
            mfma(vS + 4*T, vKF + (T*4+kb)*4, vQF + 4*kb, None if kb == 0 else vS + 4*T)
    for T in EARLY_T: v_tr(kb, T)
for i in range(8):
    A(f"v_add_f32_dpp v{vS+i}, v{vS+i}, v{vS+i} row_ror:4 {DPPM}")
A(f"v_max3_f32 v{T0}, v{vS}, v{vS+1}, v{vS+2}\nv_max3_f32 v{T2}, v{vS+3}, v{vS+4}, v{vS+5}")
A(f"v_max3_f32 v{T0}, v{T0}, v{vS+6}, v{vS+7}\nv_max_f32 v{T3}, v{T0}, v{T2}\nv_max_f32 v{T0}, v{T0}, v{T2}")
A(f"v_permlane32_swap_b32 v{T0}, v{T3}")
A(f"v_max_f32 v{T2}, v{T0}, v{T3}\nv_max_f32 v{T0}, v{T0}, v{T3}")
A(f"v_permlane16_swap_b32 v{T0}, v{T2}")
A(f"v_max_f32 v{T0}, v{T0}, v{T2}")
A(f"ds_write_b32 v{vMW}, v{T0}")
STAMP(14)
if OPT["ftouch2"]: f_touch(OPT["ftouch2"])
if OPT["dn_p"] == 2: dn_dma()
if OPT["dn_p"] == 3: u_dma()
A("s_waitcnt lgkmcnt(0)\ns_barrier")
A(f"ds_read_b128 v[{vQF}:{vQF+3}], v{vMX}\nds_read_b128 v[{vQF+4}:{vQF+7}], v{vMX} offset:16")
A("s_waitcnt lgkmcnt(0)")
A(f"v_max3_f32 v{T0}, v{vQF}, v{vQF+1}, v{vQF+2}\nv_max3_f32 v{T2}, v{vQF+3}, v{vQF+4}, v{vQF+5}")
A(f"v_max3_f32 v{T0}, v{T0}, v{vQF+6}, v{vQF+7}\nv_max_f32 v{T0}, v{T0}, v{T2}")
A(f"v_mul_f32 v{vST}, s55, v{T0}")
for i in range(8):
    A(f"v_fma_f32 v{vS+i}, v{vS+i}, s55, -v{vST}")
for i in range(8):
    A(f"v_exp_f32 v{vS+i}, v{vS+i}")
for i in range(4):
    A(f"v_cvt_pk_bf16_f32 v{vP+i}, v{vS+2*i}, v{vS+2*i+1}")
A(f"ds_write_b128 v{vPW}, v[{vP}:{vP+3}]")
rowsum([vS, vS+4])
A(f"v_add_f32 v{T0}, v{vS}, v{vS+4}\nv_add_f32 v{T3}, v{vS}, v{vS+4}")
A(f"v_permlane32_swap_b32 v{T0}, v{T3}")
A(f"v_add_f32 v{T2}, v{T0}, v{T3}\nv_add_f32 v{T0}, v{T0}, v{T3}")
A(f"v_permlane16_swap_b32 v{T0}, v{T2}")
A(f"v_add_f32 v{T0}, v{T0}, v{T2}")
A(f"ds_write_b32 v{vMW}, v{T0} offset:128")
if OPT["dn_p"] == 3: dn_dma()
A("s_waitcnt lgkmcnt(0)\ns_barrier")
STAMP(3)
if STAMPS: A("s_waitcnt lgkmcnt(0)")
LATE_T = [T for T in range(2) if T not in EARLY_T]
A(f"ds_read_b128 v[{vQF}:{vQF+3}], v{vMX} offset:128\nds_read_b128 v[{vQF+4}:{vQF+7}], v{vMX} offset:144")
for kb in range(8):
    r = vKF + kb*4
    A(f"ds_read_b128 v[{r}:{r+3}], v{vPR} offset:{kb*256}")
def st_pub(vm=None):
    sk = L("nst"); sk2 = L("nsu")
    A(f"s_cmp_lg_u32 s3, 0\ns_cbranch_scc1 {sk}")
    A("s_waitcnt lgkmcnt(8)")
    rowsum([vQF, vQF+4])
    A(f"v_add_f32 v{vST+1}, v{vQF}, v{vQF+4}")
    A("s_mov_b64 exec, 15")
    A(f"buffer_store_dwordx2 v[{vST}:{vST+1}], v{vSAD}, {RW}, s54 offen")
    fullexec()
    if vm is not None:
        A(f"s_waitcnt vmcnt({vm})\ns_branch {sk2}")
    A.label(sk)
    if vm is not None:
        A(f"s_waitcnt vmcnt({vm-1})")
        A.label(sk2)
if LATE_T:
    st_pub(1)
    A("s_waitcnt lgkmcnt(0)\ns_barrier")
    STAMP(6)
    if STAMPS: A("s_waitcnt lgkmcnt(0)")
    per = len(LATE_T)
    AHEAD = 8 if per == 1 else 6
    for kb in range(AHEAD):
        for T in LATE_T: v_tr(kb, T)
    for kb in range(8):
        A(f"s_waitcnt lgkmcnt({(min(8, AHEAD + kb) - kb - 1) * per})")
        mfma(vOA, vVF + kb*4, vKF + kb*4, None if kb == 0 else vOA)
        if AHEAD + kb < 8:
            for T in LATE_T: v_tr(AHEAD + kb, T)
else:
    st_pub()
    if OPT["dn_p"] == 1: dn_dma()
    for kb in range(8):
        A(f"s_waitcnt lgkmcnt({7-kb})")
        mfma(vOA, vVF + kb*4, vKF + kb*4, None if kb == 0 else vOA)
setexec(0x000f000f, 0x000f000f)
A(f"v_cvt_pk_bf16_f32 v{vP}, v{vOA}, v{vOA+1}\nv_cvt_pk_bf16_f32 v{vP+1}, v{vOA+2}, v{vOA+3}")
A(f"buffer_store_dwordx2 v[{vP}:{vP+1}], v{vOAD}, {RW}, s53 offen")
fullexec()
STAMP(7)
A("s_cmp_lt_u32 s4, 7\ns_cbranch_scc1 L_ffn")
A("s_cmp_lg_u32 s3, 0\ns_cbranch_scc1 L_exit")
VX(T1, T2, 0, (3, 1, 14), (0, 3, 11))
A(f"s_mov_b32 s46, {X4 + 7*128:#x}")
poll(lambda: A(f"buffer_load_dword v16, v{T1}, {RW}, s46 offen sc1"), lambda: A(f"v_cmp_eq_u32 vcc, -1, v16"), sleep=8)
A("s_branch L_exit")
A.label("L_ffn")
SX("s55", ST5, ("s4", 8))
SX("s53", G5, ("s63", 10))
A(f"s_add_u32 s54, s53, {US5-G5}")
if not OPT["mfb1"]:
    l_touch("s53", "s54", "s55")
    mf_loads()
DL = OPT["dn_late"]
NF = 0
if not GB1 and OPT["dn_p"] != 3:
    if OPT["obar"]: A("s_barrier")
    if not OPT["g_b1"]:
        g_dma(); NF += 2
    u_dma(); NF += 2
if not DL and not OPT["dn_p"]:
    if (GB1 and OPT["obar"]) or OPT["gufirst"]: A("s_barrier")
    dn_dma(); NF += 2
fYW, fYR, fWR, fGA, fGR, fSTA, fY6A = 113, 114, 115, 116, 118, 119, 120
fG, fU, fS = 121, 122, 117
wOF, wTA = fMF, 108
if not FF: ffn_frag_addr(fWR, wTA, wTR)
A("s_lshr_b32 s56, s3, 2\ns_and_b32 s57, s3, 3")
VX(fYR, 32, YL0, (0, 6, 4))
A(f"s_lshl_b32 s40, s3, 10\nv_add_u32 v{fYW}, s40, v{fYR}")
VX(fGA, 32, 0, (0, 6, 2))
SX("s61", G5 - 64, ("s63", 2, 0, 12), ("s57", 10), ("s63", 0, 2, 8), ("s56", 7))
A(f"s_add_u32 s62, s61, {US5-G5}")
VX(fGR, 32, 0, (2, 1, 7), (3, 1, 6), (4, 2, 4), (0, 2, 2))
VX(fSTA, 32, 0, (0, 3, 5), (3, 1, 4))
VX(fY6A, 32, 0, (3, 1, 14), (5, 1, 12), (4, 1, 4))
SX("s47", Y4, ("s56", 14), ("s63", 0, 2, 12), ("s57", 10))
SX("s96", Y6, ("s3", 16), ("s63", 5))
A("s_add_u32 s97, s96, 8192\ns_add_u32 s98, s96, 32768\ns_add_u32 s99, s96, 40960")
A(f"s_mov_b32 s41, {f32(1.0/512)}\ns_mov_b32 s43, {f32(1e-5)}")
poll(mf_loads, lambda: tagged_chk([vMF], 33), first_issued=True, first_wait=NF, sleep=4)
tagged_pack(vMF)
A(f"ds_write_b128 v{fYW}, v[{vMF}:{vMF+3}]")
def y_load():
    A(f"buffer_load_dwordx4 v[76:79], v{wOF}, {RW}, s47 offen sc1")
GF = OPT["gufirst"]
A(f"s_waitcnt vmcnt({2 if GF else 0}) lgkmcnt(0)\ns_barrier")
STAMP(10)
y_load()
if DL: dn_dma()
YO = [16, 20, 24, 28, 32, 36, 100, 104]
if not FF: w_frags(fWR)
for u in range(8):
    A(f"ds_read_b128 v[{YO[u]}:{YO[u]+3}], v{fYR} offset:{u*1024}")
A("s_waitcnt lgkmcnt(0)")
for k in range(4):
    for pi in range(2):
        mfma(wD + 4*pi, YO[4*pi+k], fWF + 4*k, None if k == 0 else wD + 4*pi)
rowsum([wD, wD+4])
A(f"v_permlane16_swap_b32 v{wD}, v{wD+4}")
A(f"v_add_f32 v{wD+1}, v{wD}, v{wD+4}\nv_add_f32 v{wD}, v{wD}, v{wD+4}")
A(f"v_permlane16_swap_b32 v{wD}, v{wD+1}")
A(f"v_cvt_pk_bf16_f32 v126, v{wD}, v{wD+1}")
setexec(0xffff0000, 0x0000ffff)
A(f"buffer_store_dword v126, v{fGA}, {RW}, s62 offen {'' if OPT['uslocal'] else 'sc1'}")
fullexec()
STAMP(1)
def us_loads():
    for k in range(4):
        A(f"buffer_load_dword v{40+k}, v{fGR}, {RW}, s54 offen offset:{256*k} sc1")
if not DL and not GF: d_frags(wTA)
poll(y_load, lambda: chk_empty4(76, 33), first_issued=True, first_wait=3 if DL else 1)
STAMP(11)
A(f"ds_write_b128 v{fYW}, v[76:79] offset:8192")
us_loads()
A("s_waitcnt lgkmcnt(0)\ns_barrier")
for u in range(8):
    A(f"ds_read_b128 v[{YO[u]}:{YO[u]+3}], v{fYR} offset:{8192+u*1024}")
for u in range(8):
    A(f"s_waitcnt lgkmcnt({7-u})")
    mfma(wD, YO[u], fWF + 4*(u & 3), None if u == 0 else wD)
A(f"v_add_f32 v{wD}, v{wD}, v{wD+1}\nv_add_f32 v{wD+2}, v{wD+2}, v{wD+3}")
A(f"v_add_f32 v{wD+1}, v{wD}, v{wD+2}\nv_add_f32 v{wD}, v{wD}, v{wD+2}")
A(f"v_permlane16_swap_b32 v{wD}, v{wD+1}")
A(f"v_add_f32 v{fG}, v{wD}, v{wD+1}")
def g_store(fl):
    setexec(0xffff0000, 0x0000ffff)
    A(f"buffer_store_dword v{fG}, v{fGA}, {RW}, s61 offen {fl}")
g_store("")
fullexec()
STAMP(12)
def g_loads():
    A(f"buffer_load_dwordx4 v[24:27], v{fSTA}, {RW}, s55 offen sc1")
    for k in range(4):
        A(f"buffer_load_dword v{20+k}, v{fGR}, {RW}, s53 offen offset:{256*k} sc1")
poll(us_loads, lambda: chk_empty4(40, 33), first_issued=True, first_wait=1)
g_loads()
if DL or GF: d_frags(wTA)
for k in range(4):
    A(f"v_lshlrev_b32 v{44+k}, 16, v{40+k}\nv_and_b32 v{40+k}, 0xffff0000, v{40+k}")
rowsum([44, 40])
A(f"v_mov_b32 v{fU}, v44\nv_mov_b32 v{fS}, v40")
def g_chk():
    A("v_add_f32 v24, v24, v26\nv_add_f32 v25, v25, v27")
    A("v_add_f32 v20, v20, v21\nv_add_f32 v22, v22, v23")
    A(f"v_add_f32_dpp v24, v24, v24 quad_perm:[1,0,3,2] {DPPM}\nv_add_f32_dpp v25, v25, v25 quad_perm:[1,0,3,2] {DPPM}")
    A("v_add_f32 v20, v20, v22")
    A(f"v_add_f32_dpp v24, v24, v24 quad_perm:[2,3,0,1] {DPPM}\nv_add_f32_dpp v25, v25, v25 quad_perm:[2,3,0,1] {DPPM}")
    A("v_add_f32 v26, v24, v25")
    A("v_cmp_u_f32 vcc, v20, v26")
poll(g_loads, g_chk, first_issued=True)
STAMP(13)
A(f"v_add_f32_dpp v24, v24, v24 row_half_mirror {DPPM}\nv_add_f32_dpp v25, v25, v25 row_half_mirror {DPPM}")
A("v_mov_b32 v26, s43")
A("v_mul_f32 v24, s41, v24")
A("v_fmac_f32 v26, s41, v25")
A("v_fma_f32 v26, -v24, v24, v26")
A(f"v_fma_f32 v20, -v24, v{fU}, v20")
A("v_rsq_f32 v26, v26")
A(f"v_fma_f32 v20, v20, v26, v{fS}")
A("v_max_f32 v21, 0, v20")
A(f"v_mul_f32_dpp v22, v20, v21 row_shl:4 {DPPM}")
pack4(22, 24, 25, 23)
if DL or GF: A("s_waitcnt lgkmcnt(0)")
for tau in range(4):
    d = 32 + 4*tau
    A(f"v_mfma_f32_16x16x16_bf16 v[{d}:{d+3}], v[{fDF+2*tau}:{fDF+2*tau+1}], v[24:25], 0")
setexec(0x01010101, 0x01010101)
for tau in range(4):
    d = 32 + 4*tau
    A(f"buffer_store_dwordx4 v[{d}:{d+3}], v{fY6A}, {RW}, s{96+tau} offen sc1")
STAMP(8)
A("s_waitcnt vmcnt(0)")
g_store("sc1")
if OPT["uslocal"]: A(f"buffer_store_dword v126, v{fGA}, {RW}, s62 offen sc1")
A("s_branch L_exit")

A.seg(1)
A.label("L_W")
def w_common():
    kload(RB, 32); kload(RF, 88)
    A(f"s_load_dword {sTAG}, s[16:17], 0")
    ids2()
    A(f"v_lshl_or_b32 v{wO}, v{T0}, 10, v{T1}")
    srd(RB, 4194304); A("s_movk_i32 s26, 2048")
def wq_setup(sh):
    A(f"v_lshl_or_b32 v{wQ}, v{T0}, 13, v{T1}")
    A("s_mov_b32 s10, 4194304")
    A(f"s_lshl_b32 s48, s3, {12-sh}")
    SX("s43", 0, ("s6", 8), ("s48", 7, 0, 0))
    SX("s44", 0, ("s43", 13), ("s4", 10), ("s46", 0))
def wq_dma():
    A(f"s_add_u32 m0, s48, {WQL}")
    for u in range(4):
        if u: A(f"s_add_u32 s44, s44, {8*8192-1024}")
        A(f"buffer_load_dwordx4 v{wQ}, {RA}, s44 offen offset:{u*1024} {NT} lds")
def c_setup():
    VX(T2, T3, 0, (5, 1, 10), (0, 5, 2))
if "noW" in OPT["abl"]:
    ids2(); A("s_waitcnt lgkmcnt(0)\ns_branch L_exit")
if "noA" in OPT["abl"]: A("s_branch L_nA")
A("s_cmp_ge_u32 s4, 4\ns_cbranch_scc1 L_nA")
A("s_lshl_b32 s49, s58, 7")
A("s_cmp_lt_u32 s3, 256\ns_cbranch_scc1 L_A1")
A("s_sub_u32 s40, s3, 256")
SX("s61", 0, ("s7", 6), ("s40", 2, 0, 0))
A(f"s_mul_i32 s61, s61, 6144\ns_add_u32 s61, s61, s49\ns_add_u32 s62, s61, {8*6144-1024}")
A(f"s_lshl_b32 s40, s40, 5\ns_add_u32 m0, s40, {PA}")
A("s_waitcnt lgkmcnt(0)")
STAMP(1)
A(f"buffer_load_dwordx4 v{wM}, {RC}, s61 offen {NT} lds")
A(f"buffer_load_dwordx4 v{wM}, {RC}, s62 offen offset:1024 {NT} lds")
A(f"s_add_u32 m0, s40, {PA+8192-1024}")
A(f"buffer_load_dwordx4 v{wM}, {RC}, s61 offen offset:1024 {NT} lds")
A(f"buffer_load_dwordx4 v{wM}, {RC}, s62 offen offset:2048 {NT} lds")
A("v_mov_b32 v32, -1\nv_mov_b32 v33, -1\nv_mov_b32 v34, -1\nv_mov_b32 v35, -1")
SX("s54", CLR, ("s49", 9), ("s7", 13), ("s40", 0))
A("v_lshlrev_b32 v38, 4, v0")
if "noclr" in OPT["abl"]: A("v_mov_b32 v38, 0x7ffffff0")
srd(RW, WS_BYTES)
A(f"buffer_store_dwordx4 v[32:35], v38, {RW}, s54 offen sc1")
A(f"buffer_store_dwordx4 v[32:35], v38, {RW}, s54 offen offset:1024 sc1")
cont(5)
w_common()
if OPT["pf"] == 2: code_prefetch(T2, vPF)
wq_setup(0)
AH = OPT["ahold"]
if AH < 8:
    A("s_barrier")
    wq_dma()
tr_setup()
if OPT["abl"]:
    A(f"s_waitcnt vmcnt({3 + (4 if AH < 8 else 0)})"); STAMP(8)
A(f"s_waitcnt vmcnt({4 if AH < 8 else 0}) lgkmcnt(0)")
if OPT["abl"]: STAMP(9)
A(f"s_add_u32 {sTAG}, {sTAG}, {TAGC:#x}")
A("s_barrier")
if AH == 8:
    A("s_barrier")
    wq_dma()
A("s_branch L_B")
A.seg(1.5 if OPT["wfirst"] else 3)
A.label("L_A1")
c_setup()
VX(36, T3, 0, (4, 1, 10), (5, 1, 8), (0, 4, 4))
A("s_movk_i32 s26, 2048")
A("s_waitcnt lgkmcnt(0)")
STAMP(1)
A(f"buffer_load_dword v{wC}, v{T2}, {RE}, s46 offen {SNT}")
A(f"buffer_load_dwordx4 v[{wX}:{wX+3}], v36, {RD}, 0 offen {SNT}")
A(f"buffer_load_dwordx4 v[{wX+4}:{wX+7}], v36, {RD}, 0 offen offset:512 {SNT}")
VX(37, T3, 0, (4, 1, 10), (0, 4, 1))
A(f"s_lshr_b32 s50, s3, 1\ns_add_u32 s50, s50, s49\nv_mov_b32 v{wXS}, 0")
A(f"buffer_load_short_d16_hi v{wXS}, v37, {RD}, s50 offen {SNT}")
if OPT["wfirst"] == 3: cont(4)
if AH < 8: A("s_barrier")
w_common()
wq_setup(0)
tr_setup()
VX(39, 32, 0, (4, 1, 6), (2, 2, 4))
SX("s53", H1G, ("s58", 12), ("s3", 10), ("s46", 0))
A("s_cmp_eq_u32 s7, 0\ns_cselect_b32 s54, 1.0, 0")
unit_pre("0", "s54", PA)
silu_operand(3)
if OPT["abl"]: STAMP(6)
A(f"s_waitcnt vmcnt(0)")
A("v_mov_b32 v36, 0\nv_mov_b32 v37, 0\nv_mov_b32 v38, 0x3f803f80")
for i in range(8):
    A(f"v_dot2c_f32_bf16 v36, v{wX+i}, v38\nv_dot2c_f32_bf16 v37, v{wX+i}, v{wX+i}")
for m in ("quad_perm:[1,0,3,2]", "quad_perm:[2,3,0,1]", "row_half_mirror", "row_mirror"):
    A(f"v_add_f32_dpp v36, v36, v36 {m} {DPPM}\nv_add_f32_dpp v37, v37, v37 {m} {DPPM}")
A("v_mov_b32 v38, v36\nv_mov_b32 v35, v37")
A("v_permlane32_swap_b32 v36, v38\nv_permlane32_swap_b32 v37, v35")
A("v_add_f32 v36, v36, v38\nv_add_f32 v37, v37, v35")
A(f"v_mul_f32 v36, {f32(1.0/512)}, v36\nv_mov_b32 v38, {f32(1e-5)}\nv_fmac_f32 v38, {f32(1.0/512)}, v37")
A("v_fma_f32 v38, -v36, v36, v38\nv_rsq_f32 v38, v38")
A(f"v_sub_f32 v{wXS}, v{wXS}, v36\nv_mul_f32 v{wXS}, v{wXS}, v38")
A(f"s_add_u32 {sTAG}, {sTAG}, {TAGC:#x}")
A(f"v_mov_b32 v{wD+9}, {sTAG}\nv_mov_b32 v{wD+11}, {sTAG}")
if OPT["abl"]: STAMP(7)
A("s_waitcnt lgkmcnt(0)\ns_barrier")
if OPT["abl"]: STAMP(10)
unit_go()
A(f"v_fma_f32 v32, v{wXS}, v{wD+4}, v{wD}")
pack4(32, wD+8, wD+10, 33)
setexec(0x11111111, 0)
A(f"buffer_store_dwordx4 v[{wD+8}:{wD+11}], v39, {RW}, s53 offen sc1")
fullexec()
STAMP(14)
if OPT["diag"]:
    A("s_waitcnt vmcnt(0)"); STAMP(13)
if AH == 8: A("s_barrier")
wq_dma()
A("s_branch L_B")
A.seg(2)
A.label("L_nA")
wq_setup(6)
A("s_waitcnt lgkmcnt(0)")
STAMP(1)
if OPT["wqpf"] == 22:
    sk = L("nh0")
    A(f"s_cmp_lt_u32 s3, 256\ns_cbranch_scc1 {sk}")
wq_dma()
if OPT["wqpf"] == 22: A.label(sk)
MBW = False
MBN = OPT["mbg"] == 3
if MBN:
    SX("s51", 0, ("s7", 6), ("s3", 3, 0, 0))
    A("s_mul_i32 s51, s51, 6144\ns_lshl_b32 s42, s3, 4")
    SX("s40", 2048, ("s58", 0, 3, 8)); A("s_add_u32 s51, s51, s40")
    c_setup()
    A(f"buffer_load_dword v{wC}, v{T2}, {RE}, s46 offen {SNT}")
    if OPT["mbwait"] >= 0: A(f"s_waitcnt vmcnt({OPT['mbwait']})")
    else: A("s_barrier")
    for j, o in enumerate((0, 128, 2048, 2048+128)):
        A(f"s_add_u32 m0, s42, {PB + j*8192 - o}")
        A(f"buffer_load_dwordx4 v{wM}, {RC}, s51 offen offset:{o} {NT} lds")
cont(6)
w_common()
tr_setup()
A("s_waitcnt lgkmcnt(0)")
A(f"s_add_u32 {sTAG}, {sTAG}, {TAGC:#x}")
A.label("L_B")
if MBW:
    A(f"v_mul_u32_u24 v{wM}, 6144, v{T0}\nv_add_u32 v{wM}, v{wM}, v{T1}")
    srd(RC, 3145728)
    SX("s96", 0, ("s7", 6), ("s3", 3))
    A("s_mul_i32 s96, s96, 6144")
    SX("s40", 2048, ("s58", 8)); A("s_add_u32 s96, s96, s40")
    SX("s97", MGT, ("s58", 13), ("s3", 0, 2, 10), ("s46", 0))
    SX("s40", 0, ("s58", 2, 0, 3), ("s7", 0))
    A("s_cmp_eq_u32 s40, 16\ns_cselect_b32 s98, 1.0, 0")
    VX(122, 32, 0, (5, 1, 12), (4, 1, 6), (2, 2, 4))
srd(RF, 2048)
SX("s47", 0, ("s4", 19), ("s43", 10), ("s46", 0))
wRW, wRR, wOF, wTA = 14, 15, 72, 108
SX("s40", RED, ("s3", 9)); VX(wRW, 32, "s40", (0, 6, 2))
SX("s40", RED, ("s3", 8)); VX(wRR, 32, "s40", (0, 6, 2))
VX(wOF, 32, 0, (0, 3, 7), (3, 1, 6), (4, 2, 4))
SX("s53", H1G, ("s43", 6))
VX(T3, 32, 0, (0, 2, 12))
A("s_xor_b32 s57, s6, 1")
SX("s57", H1G + 4, ("s57", 14), ("s3", 7))
wQA = 73; wQD = 76
VX(wQA, 32, 0, (5, 1, 12), (0, 5, 2))
SX("s56", QG, ("s4", 13), ("s5", 8), ("s3", 7))
A(f"v_add_u32 v{wTA}, s48, v{wTR}")
for t in range(1, 4):
    A(f"v_xor_b32 v{wTA+t}, {t*32:#x}, v{wTA}")
A(f"v_mov_b32 v{wQD+1}, {sTAG}\nv_mov_b32 v{wQD+3}, {sTAG}")
wGA, wCB, wXA, wXAD = 74, 75, 80, 81
tE, tOUT, tBP, tOF, tL16 = 84, 114, 115, 72, 116
SX("s59", Y6, ("s5", 15), ("s4", 12))
A("s_cmp_eq_u32 s3, 7\ns_cselect_b32 s40, 0, -1")
A("v_mov_b32 v118, s40\nv_mov_b32 v119, s40\nv_lshlrev_b32 v117, 3, v0")
SX("s41", 0, ("s3", 9), ("s59", 0))
VX(T1, 32, 0, (0, 4, 6), (4, 2, 4))
SX("s51", OG, ("s4", 14), ("s43", 5))
SX("s54", SG, ("s4", 9), ("s43", 7, 0, 7))
A(f"v_lshlrev_b32 v{T0}, 2, v1\nv_xor_b32 v{T0}, v0, v{T0}\nv_and_b32 v{T0}, 7, v{T0}\nv_lshlrev_b32 v{T0}, 3, v{T0}")
A(f"v_lshrrev_b32 v32, 5, v0\nv_lshl_or_b32 v{T0}, v32, 6, v{T0}")
VX(wXAD, 32, 0, (5, 1, 6), (2, 2, 4), (4, 1, 3))
SX("s60", X4, ("s7", 11), ("s3", 10), ("s6", 14), ("s4", 7))
A(f"s_add_u32 s52, s60, {Y4-X4}")
A("v_and_b32 v32, 1, v0\nv_lshlrev_b32 v32, 4, v32\nv_mov_b32 v33, 0x3f80\nv_lshlrev_b32 v32, v32, v33")
A("v_lshrrev_b32 v33, 2, v2\nv_sub_u32 v33, v1, v33\nv_bfe_u32 v34, v0, 1, 1\nv_lshl_or_b32 v33, v33, 1, v34")
for r in range(2):
    A(f"v_cmp_eq_u32 vcc, {r}, v33")
    A(f"v_cndmask_b32 v{tE+r}, 0, v32, vcc")
    A(f"v_mov_b32 v{tE+6+r}, v{tE+r}")
for r in (2, 3, 4, 5):
    A(f"v_mov_b32 v{tE+r}, 0")
VX(38, 33, 0, (0, 1, 3), (5, 1, 1), (4, 1, 2))
SX("s40", 0, ("s4", 0, 2, 4)); A(f"v_add_u32 v{tOUT}, s40, v38")
SX("s40", 0, ("s4", 2, 0, 7)); A(f"v_lshl_add_u32 v{tBP}, v{tOUT}, 1, s40")
SX("s62", 0, ("s4", 2, 0, 10), ("s5", 6))
A(f"v_lshlrev_b32 v{tL16}, 4, v0")
SX("s49", X4, ("s5", 10))
A("s_add_u32 s50, s49, 16384")
SX("s55", ST5, ("s4", 8), ("s7", 5), ("s6", 3))
VX(113, 33, 0, (5, 1, 4), (4, 1, 2))
SX("s61", MGT, ("s7", 12), ("s3", 11))
SX("s40", MGT + 3*32768, ("s5", 11))
A("s_cmp_eq_u32 s3, 2\ns_cselect_b32 s61, s40, s61\ns_cselect_b32 s40, 0, 0x10000\ns_add_u32 s63, s61, s40")
VX(120, 33, 0, (5, 1, 10), (0, 5, 1))
SX("s42", 0, ("s7", 7), ("s3", 6))
A(f"v_mov_b32 v{wXA}, 0")
def blk_frags(off):
    for t in range(4):
        for h in range(2):
            r = wWF + 4*t + 2*h
            A(f"ds_read_b64_tr_b16 v[{r}:{r+1}], v{wTA+t} offset:{off + h*2048}")
def h1_loads():
    tagged_loads(16, wOF, "s53")
    A(f"buffer_load_dword v33, v{T3}, {RW}, s57 offen sc1")
if MBN:
    VX(39, 32, 0, (5, 1, 12), (4, 1, 6), (2, 2, 4))
    sk = L("nmb")
    A(f"s_cmp_lt_u32 s4, 4\ns_cbranch_scc1 {sk}")
    SX("s96", MGT, ("s58", 0, 3, 13), ("s3", 2, 0, 16), ("s3", 0, 2, 10), ("s46", 0))
    SX("s40", 0, ("s58", 2, 1, 3), ("s3", 2, 0, 4), ("s7", 0))
    A("s_cmp_eq_u32 s40, 16\ns_cselect_b32 s97, 1.0, 0")
    SX("s98", PB, ("s3", 2, 0, 14))
    silu_operand(4)
    A.label(sk)
def mb_blk(early):
    sk = L("nmc")
    A(f"s_cmp_lt_u32 s4, 4\ns_cbranch_scc1 {sk}")
    VX(39, 32, 0, (5, 1, 12), (4, 1, 6), (2, 2, 4))
    unit_pre("s97", "s97", "s98")
    A(f"v_mov_b32 v{wD+9}, {sTAG}\nv_mov_b32 v{wD+11}, {sTAG}")
    if early: A("s_waitcnt vmcnt(3) lgkmcnt(0)\ns_barrier")
    unit_go()
    A("v_cmp_gt_u32 vcc, 32, v0")
    A(f"v_cndmask_b32 v32, v{wD+4}, v{wD}, vcc")
    pack4(32, wD+8, wD+10, 34)
    setexec(0x11111111, 0x11111111)
    A(f"buffer_store_dwordx4 v[{wD+8}:{wD+11}], v39, {RW}, s96 offen sc1")
    fullexec()
    STAMP(6)
    A.label(sk)
A(f"s_waitcnt vmcnt({OPT['h1at']})")
h1_loads()
if OPT["mbearly"]: mb_blk(True)
A("s_waitcnt vmcnt(3)")
blk_frags(WQL)
STAMP(3)
if OPT["abl"] and "toq" not in OPT["abl"]: A("s_branch L_exit")
if OPT["mbearly"]:
    sk = L("nw0")
    A(f"s_cmp_ge_u32 s4, 4\ns_cbranch_scc1 {sk}")
    A("s_waitcnt vmcnt(0)")
    A.label(sk)
poll(h1_loads, lambda: tagged_chk([16], 33, 33), first_issued=True, first_wait=OPT["mbearly"], sleep=OPT["s2"])
STAMP(4)
if OPT["diag"]:
    A(f"s_waitcnt lgkmcnt(0)\ns_mul_i32 s40, {sCNT}, 10\ns_add_u32 s88, s64, s40")
tagged_pack(16)
A("s_waitcnt lgkmcnt(0)")
def blk_mfma(op):
    for t in range(4):
        mfma(wD + 4*t, op, wWF + 4*t, None)
def blk_reduce():
    A(f"v_permlane16_swap_b32 v{wD}, v{wD+4}\nv_permlane16_swap_b32 v{wD+8}, v{wD+12}")
    A(f"v_add_f32 v{wD}, v{wD}, v{wD+4}\nv_add_f32 v{wD+8}, v{wD+8}, v{wD+12}")
    A(f"ds_write2st64_b32 v{wRW}, v{wD}, v{wD+8} offset0:0 offset1:1")
    A("s_waitcnt lgkmcnt(0)\ns_barrier")
def blk_final():
    for i in range(4):
        A(f"ds_read2st64_b32 v[{32+2*i}:{33+2*i}], v{wRR} offset0:{4*i} offset1:{4*i+2}")
    A("s_waitcnt lgkmcnt(0)")
    A("v_add_f32 v32, v32, v33\nv_add_f32 v34, v34, v35\nv_add_f32 v36, v36, v37\nv_add_f32 v38, v38, v39")
    A("v_add_f32 v32, v32, v34\nv_add_f32 v36, v36, v38\nv_add_f32 v32, v32, v36")
blk_mfma(16)
rowsum([wD, wD+4, wD+8, wD+12])
blk_reduce()
sk = L("nq")
A(f"s_cmp_ge_u32 s3, 2\ns_cbranch_scc1 {sk}")
blk_final()
pack4(32, wQD, wQD+2, 33)
setexec(0x11111111, 0x11111111)
A(f"buffer_store_dwordx4 v[{wQD}:{wQD+3}], v{wQA}, {RW}, s56 offen")
fullexec()
A.label(sk)
STAMP(5)
if OPT["abl"]: A("s_branch L_exit")
if not OPT["mbearly"]: mb_blk(False)
A("s_barrier")
def o_loads():
    A(f"buffer_load_dwordx4 v[104:107], v{T1}, {RW}, s51 offen sc1")
def mc_loads():
    tagged_loads(16, wOF, "s61"); tagged_loads(24, wOF, "s63")
def wo_dma():
    A(f"s_add_u32 m0, s48, {WOL}")
    for u in range(4):
        if u: A(f"s_add_u32 s47, s47, {8*1024-1024}")
        A(f"buffer_load_dwordx4 v{wO}, {RB}, s47 offen offset:{u*1024} {NT} lds")
if MBW:
    SX("s40", PB, ("s3", 10)); A("s_mov_b32 m0, s40")
    A(f"buffer_load_dwordx4 v{wM}, {RC}, s96 offen {NT} lds")
    A(f"s_add_u32 m0, s40, {8192-128}")
    A(f"buffer_load_dwordx4 v{wM}, {RC}, s96 offen offset:128 {NT} lds")
sk = L("nc0")
A(f"s_cmp_ge_u32 s3, 3\ns_cbranch_scc1 {sk}")
MCE = not MBW and (not MBN or OPT['mbearly'])
if MCE: mc_loads()
A(f"s_cmp_lg_u32 s58, 0\ns_cbranch_scc1 {sk}")
A(f"buffer_load_short_d16_hi v{wXA}, v120, {RD}, s42 offen")
A.label(sk)
A(f"buffer_store_dwordx2 v[118:119], v117, {RW}, s41 offen sc1")
if OPT["ltouch"]: o_loads()
WOE = MBW and OPT["wo_mb"]
if MBW:
    if WOE:
        A("s_barrier"); wo_dma()
    A(f"ds_read2_b64 v[{wXO}:{wXO+3}], v83 offset0:0 offset1:4\nds_read2_b64 v[{wXO+4}:{wXO+7}], v83 offset0:8 offset1:12")
    unit_pre("s98", "s98", PB)
    A(f"v_mov_b32 v{wD+9}, {sTAG}\nv_mov_b32 v{wD+11}, {sTAG}")
    A(f"s_waitcnt vmcnt({6 if WOE else 2}) lgkmcnt(0)\ns_barrier")
    sk = L("nmw")
    A(f"s_cmp_lt_u32 s3, 4\ns_cbranch_scc1 {sk}")
    unit_go()
    A("v_cmp_gt_u32 vcc, 32, v0")
    A(f"v_cndmask_b32 v32, v{wD+4}, v{wD}, vcc")
    pack4(32, wD+8, wD+10, 33)
    setexec(0x11111111, 0x11111111)
    A(f"buffer_store_dwordx4 v[{wD+8}:{wD+11}], v122, {RW}, s97 offen sc1")
    fullexec()
    STAMP(6)
    A.label(sk)
if OPT["gtrg"]:
    A("s_cmp_lg_u32 s3, 3\ns_cbranch_scc1 L_trgd")
    if OPT["gmask"] == 7:
        VX(39, 32, 0, (0, 3, 7)); A(f"s_movk_i32 s40, {TRG}")
    else:
        VX(39, 32, 0, (0, 2, 7)); A(f"s_movk_i32 s40, {TRG + 512}")
    A(f"s_mov_b32 {sCNT}, 0")
    A.label("L_trg")
    A(f"buffer_load_dword v33, v39, {RW}, s40 offen sc1")
    A("s_waitcnt vmcnt(0)")
    A(f"v_cmp_ne_u32 vcc, {sTAG}, v33")
    A("s_cbranch_vccz L_trgd")
    A(f"s_sleep 2\ns_add_u32 {sCNT}, {sCNT}, 1\ns_cmp_lt_u32 {sCNT}, {OPT['trgmax']}\ns_cbranch_scc1 L_trg")
    A.label("L_trgd")
    A("s_barrier")
if not WOE: wo_dma()
sk = L("nc1")
A(f"s_cmp_ge_u32 s3, 3\ns_cbranch_scc1 {sk}")
if not MCE: A("s_waitcnt vmcnt(1)")
poll(mc_loads, lambda: tagged_chk([16, 24], 33), first_issued=MCE, first_wait=4, sleep=2)
tagged_pack(16); tagged_pack(24)
for i in range(2):
    for t in range(2):
        mfma(wD + 8*i + 4*t, 16 + 8*i, tE + 4*t, None)
rowsum([wD, wD+4, wD+8, wD+12])
A(f"v_permlane16_swap_b32 v{wD}, v{wD+4}\nv_permlane16_swap_b32 v{wD+8}, v{wD+12}")
A(f"v_add_f32 v{wGA}, v{wD}, v{wD+4}\nv_add_f32 v{wCB}, v{wD+8}, v{wD+12}")
STAMP(2)
A.label(sk)
A("s_waitcnt vmcnt(0)")
blk_frags(WOL)
STAMP(7)
wF = 100
sg_load = lambda: A(f"buffer_load_dwordx2 v[16:17], v{T0}, {RW}, s54 offen sc1")
await_any(sg_load, lambda: A("v_cmp_o_f32 vcc, v17, v17"), OPT["s1"])
poll(sg_load, lambda: A("v_cmp_u_f32 vcc, v17, v17"), first_issued=True, sleep=2*OPT["s2"])
o_loads()
A(f"v_max_f32_dpp v18, v16, v16 quad_perm:[1,0,3,2] {DPPM}")
A(f"v_max_f32_dpp v18, v18, v18 quad_perm:[2,3,0,1] {DPPM}")
A(f"v_max_f32_dpp v18, v18, v18 row_half_mirror {DPPM}")
A("v_sub_f32 v16, v16, v18\nv_exp_f32 v16, v16\nv_mul_f32 v17, v16, v17")
for m in ("quad_perm:[1,0,3,2]", "quad_perm:[2,3,0,1]", "row_half_mirror"):
    A(f"v_add_f32_dpp v17, v17, v17 {m} {DPPM}")
A(f"v_rcp_f32 v17, v17\nv_mul_f32 v{wF}, v16, v17")
STAMP(8)
poll(o_loads, lambda: chk_empty4(104, 33), first_issued=True, first_wait=0)
STAMP(9)
A("s_waitcnt lgkmcnt(0)")
blk_mfma(104)
for t in range(4):
    A(f"v_mul_f32_dpp v{wD+4*t}, v{wF}, v{wD+4*t} row_newbcast:0 {DPPM}")
for r in range(1, 4):
    for t in range(4):
        A(f"v_fmac_f32_dpp v{wD+4*t}, v{wF}, v{wD+4*t+r} row_newbcast:{r} {DPPM}")
blk_reduce()
A("s_cmp_gt_u32 s3, 2\ns_cbranch_scc1 L_exit")
A("s_cmp_eq_u32 s3, 2\ns_cbranch_scc1 L_fin")
blk_final()
A(f"v_fma_f32 v32, v32, v{wGA}, v{wXA}")
A(f"v_mul_f32 v36, v32, v{wCB}")
A(f"v_mov_b32_dpp v33, v32 quad_perm:[1,1,3,3] {DPPM}")
A(f"v_mov_b32_dpp v37, v36 quad_perm:[1,1,3,3] {DPPM}")
A("v_cvt_pk_bf16_f32 v34, v32, v33\nv_cvt_pk_bf16_f32 v38, v36, v37")
A(f"v_mov_b32_dpp v35, v34 quad_perm:[2,2,2,2] {DPPM}")
A(f"v_mov_b32_dpp v39, v38 quad_perm:[2,2,2,2] {DPPM}")
setexec(0x11111111, 0x11111111)
A(f"buffer_store_dwordx2 v[38:39], v{wXAD}, {RW}, s52 offen sc1")
A(f"buffer_store_dwordx2 v[34:35], v{wXAD}, {RW}, s60 offen sc1")
STAMP(10)
A("s_branch L_exit")
A.label("L_fin")
def x4_loads():
    A(f"buffer_load_dwordx4 v[16:19], v{tOF}, {RW}, s49 offen sc1")
    A(f"buffer_load_dwordx4 v[20:23], v{tOF}, {RW}, s50 offen sc1")
def x4_chk():
    A("v_max3_u32 v33, v16, v17, v18\nv_max3_u32 v34, v19, v20, v21\nv_max3_u32 v33, v33, v22, v23\nv_max_u32 v33, v33, v34\nv_cmp_eq_u32 vcc, -1, v33")
poll(x4_loads, x4_chk)
STAMP(11)
for hp in range(2):
    for t in range(2):
        mfma(wD + 4*t, 16 + 4*hp, tE + 4*t, None if hp == 0 else wD + 4*t)
rowsum([wD, wD+4])
A(f"v_permlane16_swap_b32 v{wD}, v{wD+4}")
A(f"v_add_f32 v42, v{wD}, v{wD+4}")
A("v_mov_b32 v43, v42\nv_mul_f32 v44, v42, v42")
A("v_permlane16_swap_b32 v43, v44")
A("v_add_f32 v43, v43, v44")
for m in ("quad_perm:[1,0,3,2]", "quad_perm:[2,3,0,1]", "row_half_mirror", "row_mirror"):
    A(f"v_add_f32_dpp v43, v43, v43 {m} {DPPM}")
setexec(0x00010001, 0x00010001)
A(f"buffer_store_dword v43, v113, {RW}, s55 offen")
fullexec()
STAMP(12)
A(f"ds_bpermute_b32 v42, v{tBP}, v42\nds_bpermute_b32 v{wGA}, v{tBP}, v{wGA}")
def y6_loads():
    for i in range(4):
        A(f"buffer_load_dwordx4 v[{16+4*i}:{19+4*i}], v{tL16}, {RW}, s59 offen offset:{1024*i} sc1")
def y6_chk():
    for r in range(4):
        A(f"v_add_f32 v{16+r}, v{16+r}, v{20+r}\nv_add_f32 v{24+r}, v{24+r}, v{28+r}")
    for r in range(4):
        A(f"v_add_f32 v{16+r}, v{16+r}, v{24+r}")
    A("v_permlane32_swap_b32 v16, v17\nv_permlane32_swap_b32 v18, v19")
    A("v_add_f32 v16, v16, v17\nv_add_f32 v18, v18, v19")
    A("v_permlane16_swap_b32 v16, v18")
    A("v_add_f32 v16, v16, v18")
    A("v_cmp_u_f32 vcc, v16, v16")
await_any(lambda: A(f"buffer_load_dword v16, v{tL16}, {RW}, s59 offen sc1"), lambda: A("v_cmp_o_f32 vcc, v16, v16"), 2)
poll(y6_loads, y6_chk)
STAMP(13)
for m in ("row_ror:8", "row_ror:4", "row_ror:2"):
    A(f"v_add_f32_dpp v16, v16, v16 {m} {DPPM}")
A("s_waitcnt lgkmcnt(0)")
A(f"v_fma_f32 v16, v16, v{wGA}, v42")
A("v_cvt_pk_bf16_f32 v16, v16, v16")
setexec(0x00030003, 0x00030003)
A(f"buffer_store_short v16, v{tOUT}, {RF}, s62 offen")
A("s_cmp_lg_u32 s2, 128\ns_cbranch_scc1 L_exit")
A(f"s_sub_u32 s40, {sTAG}, {TAGC-1:#x}")
A("v_mov_b32 v17, s40\nv_mov_b32 v18, 0")
A("s_mov_b64 exec, 1")
A(f"buffer_store_dword v17, v18, {RW}, 0 offen sc1")

A("s_branch L_exit")
A.seg(40)
A.label("L_exit")
if STAMPS == 1:
    STAMP(15)
    A("s_waitcnt lgkmcnt(0)")
    A("s_mov_b64 exec, 1")
    SX("s40", DBG, ("s2", 9), ("s3", 6))
    A("v_mov_b32 v0, 0")
    for q in range(4):
        for i in range(4):
            A(f"v_mov_b32 v{4+4*q+i}, s{64+2*(4*q+i)}")
        A(f"buffer_store_dwordx4 v[{4+4*q}:{7+4*q}], v0, {RW}, s40 offen offset:{16*q}")
if STAMPS == 3:
    STAMP(15)
    A("s_waitcnt lgkmcnt(0)")
    SX("s40", 0, ("s2", 3), ("s3", 0))
    A(f"s_cmp_lg_u32 s40, {OPT['dwg']*8 + OPT['dwv']}\ns_cbranch_scc1 L_end")
    A(f"s_sub_u32 s40, s{64+2*OPT['db']}, s{64+2*OPT['da']}")
    A(f"s_mul_i32 s40, s40, {OPT['dm']}")
    A("s_min_u32 s40, s40, 30000")
    A.label("L_spin")
    A("s_memrealtime s[42:43]\ns_waitcnt lgkmcnt(0)\ns_sub_u32 s41, s42, s94\ns_cmp_lt_u32 s41, s40\ns_cbranch_scc1 L_spin")
if STAMPS == 2:
    STAMP(15)
    A("s_load_dwordx2 s[32:33], s[0:1], 96")
    A("s_mov_b32 s34, 256\ns_mov_b32 s35, 0x00020000")
    A("s_waitcnt lgkmcnt(0)")
    fullexec()
    A("v_mov_b32 v4, 0\nv_mbcnt_lo_u32_b32 v5, -1, 0\nv_lshlrev_b32 v5, 2, v5")
    A("s_cmp_ge_u32 s2, 128\ns_cbranch_scc1 L_dw")
    A("s_cmp_lg_u32 s3, 0\ns_cbranch_scc1 L_end")
    A("s_not_b32 s40, s64\nv_writelane_b32 v4, s40, 0")
    for i, st in enumerate([9, 2, 5, 7, 10, 11, 8]):
        A(f"v_writelane_b32 v4, s{64+2*st}, {i+1}")
    A("s_branch L_dd")
    A.label("L_dw")
    A("s_cmp_lg_u32 s3, 2\ns_cbranch_scc1 L_end")
    for i, st in enumerate([0, 3, 4, 5, 7, 9, 11, 15]):
        A(f"v_writelane_b32 v4, s{64+2*st}, {i+8}")
    A.label("L_dd")
    A("s_mov_b64 exec, 0xffff")
    A("buffer_atomic_umax v4, v5, s[32:35], 0 offen")
A.label("L_end")
A("s_endpgm")
A.label("L_codeend")
A.raw(f".fill (16384 - (L_codeend - {NAME}_kernel)) / 4, 4, 0xbf810000")
A.raw(f""".section .rodata,"a"
.p2align 6
.amdhsa_kernel {NAME}_kernel
  .amdhsa_next_free_vgpr 152
  .amdhsa_next_free_sgpr 100
  .amdhsa_accum_offset 152
  .amdhsa_group_segment_fixed_size 0
  .amdhsa_kernarg_size 112
  .amdhsa_user_sgpr_count 2
  .amdhsa_user_sgpr_kernarg_segment_ptr 1
  .amdhsa_system_sgpr_workgroup_id_x 1
  .amdhsa_float_denorm_mode_32 3
.end_amdhsa_kernel""")
sys.stdout.write(A.text())
sys.stderr.write(f"instrs={A.ninstr} nops={A.nops}\n")
```

```python
import sys, math, struct
sys.path.insert(0, "work")
from asmlib import Asm

NAME = "adaLN_cond__sliding_block_cached__glu_gated_reglu__decode"
OPT = dict(stamps=0, nt="nt", limit=20000, refresh=255, psleep=0, pf=4, pfnt="", smallnt="", slow=0, gtrg=0, gw=7, gmask=7, fpf=0, wo_after_c=0, fpfbar=1, fpfl="", uslocal=1, qn=4, trg=0, mb_at="kv", touch=0, ltouch=1, ahold=8, wqpf=1, wqpfl="", ehold=0, depth=0, ffn_first=0, ser=1, obar=1, gu_b1=0, dn_late=0, dn_p=0, diag=0, rot=7, vt=1, wfirst=0, gufirst=1, mfb1=1, mbearly=1, ftouch=0, ftouch2=0, mbg=3, mbwait=-1, g_b1=0, wo_mb=1, h1at=1, depth_until=16, qpipe=1, s1=6, s2=1, sent=1, trgmax=24, dwg=10, dwv=1, da=0, db=15, dm=20, kvbar=1, abl="")
for a in sys.argv[1:]:
    k, v = a.split("=")
    OPT[k] = int(v) if v.lstrip("-").isdigit() else v
STAMPS = OPT["stamps"]; NT = OPT["nt"] if OPT["nt"] != "-" else ""
LIMIT = OPT["limit"]; REFRESH = OPT["refresh"]; SNT = OPT["smallnt"]

def f32(x): return "0x%08x" % struct.unpack("<I", struct.pack("<f", x))[0]

TRG = 0x1000; H1G = 0x8000; QG = 0x10000; MGT = 0x20000
CLR = 0x100000
OG = CLR; MG = CLR + 0x20000; X4 = CLR + 0x30000; Y4 = CLR + 0x38000
G5 = CLR + 0x40000; SG = CLR + 0x5C000; ST5 = CLR + 0x5D000; US5 = CLR + 0x60000
Y6 = 0x180000; DBG = 0x400000
WS_BYTES = 0x800000
TAGC = 0x9E3779B9
VREG = 65536; PA = 131072; XL = 147456; QL = XL + 1024; PL = QL + 2048; MISC = PL + 2048
FG = 0; FD = 32768; YL0 = 131072
WQL = 0; WOL = 32768; PB = 65536; RED = XL + 1024
LDS_BYTES = MISC + 256
C1 = 128 ** -0.5 * math.log2(math.e)

A = Asm()
hdr = open(f"cdna_kernels/{NAME}.s.ref").read().split("\n")
for ln in hdr:
    if ln.startswith("; @launch"):
        A.raw(f"; @launch grid=(256,1,1) block=(512,1,1) lds={LDS_BYTES}")
        break
    A.raw(ln)
A.raw('.amdgcn_target "amdgcn-amd-amdhsa--gfx950"')
A.raw(f".text\n.globl {NAME}_kernel\n.p2align 8\n.type {NAME}_kernel,@function\n{NAME}_kernel:")

RA, RB, RW, RC, RD, RE, RF = "s[8:11]", "s[12:15]", "s[16:19]", "s[20:23]", "s[24:27]", "s[28:31]", "s[32:35]"
sTAG, sCNT, sT = "s36", "s37", "s45"
def STAMP(n):
    if STAMPS:
        A(f"s_memrealtime s[{64+2*n}:{65+2*n}]")
DPPM = "row_mask:0xf bank_mask:0xf"
lbl = [0]
def L(p):
    lbl[0] += 1
    return f"L_{p}_{lbl[0]}"
def srd(r, nbytes):
    b = int(r[2:r.index(":")])
    A((f"s_movk_i32 s{b+2}, {nbytes}" if nbytes < 32768 else f"s_mov_b32 s{b+2}, {nbytes}") + f"\ns_mov_b32 s{b+3}, s11")
def kload(r, off):
    b = int(r[2:r.index(":")])
    A(f"s_load_dwordx2 s[{b}:{b+1}], s[0:1], {off}")

def SX(dst, const, *terms):
    first = True
    for t in terms:
        src, rs, w, ls = (t[0], 0, 0, t[1]) if len(t) == 2 else t
        d = dst if first else sT
        cur = src
        if w:
            if rs == 0: A(f"s_and_b32 {d}, {cur}, {(1<<w)-1}")
            else: A(f"s_bfe_u32 {d}, {cur}, {(w<<16)|rs:#x}")
            cur = d
        elif rs:
            A(f"s_lshr_b32 {d}, {cur}, {rs}"); cur = d
        if first:
            if ls: A(f"s_lshl_b32 {d}, {cur}, {ls}")
            elif cur != d: A(f"s_mov_b32 {d}, {cur}")
        else:
            if 1 <= ls <= 4: A(f"s_lshl{ls}_add_u32 {dst}, {cur}, {dst}")
            else:
                if ls: A(f"s_lshl_b32 {sT}, {cur}, {ls}"); cur = sT
                A(f"s_add_u32 {dst}, {dst}, {cur}")
        first = False
    if const: A(f"s_add_u32 {dst}, {dst}, {const:#x}")
def VX(dst, tmp, add, *terms):
    first = True
    for rs, w, ls in terms:
        if rs == 4 and w == 2: cur = "v1"
        elif rs == 0 and w == 4: cur = "v2"
        elif rs == 0 and w == 6: cur = "v0"
        else:
            d = f"v{dst}" if first else f"v{tmp}"
            if rs + w == 6: A(f"v_lshrrev_b32 {d}, {rs}, v0")
            elif rs == 0: A(f"v_and_b32 {d}, {(1<<w)-1}, v0")
            else: A(f"v_bfe_u32 {d}, v0, {rs}, {w}")
            cur = d
        if first:
            if ls: A(f"v_lshlrev_b32 v{dst}, {ls}, {cur}")
            elif cur != f"v{dst}": A(f"v_mov_b32 v{dst}, {cur}")
        else:
            if ls: A(f"v_lshl_or_b32 v{dst}, {cur}, {ls}, v{dst}")
            else: A(f"v_or_b32 v{dst}, {cur}, v{dst}")
        first = False
    if add: A(f"v_add_u32 v{dst}, {add}, v{dst}")

def cont(n):
    t = L("c")
    A(f"s_branch {t}")
    A.seg(n); A.label(t)
def await_any(load, valid, sleep):
    if not OPT["sent"]: return
    top, done = L("aw"), L("awd")
    A(f"s_mov_b32 {sCNT}, 0")
    A.label(top)
    load()
    A("s_waitcnt vmcnt(0)")
    valid()
    A(f"s_cbranch_vccnz {done}")
    A(f"s_sleep {sleep}\ns_add_u32 {sCNT}, {sCNT}, 1\ns_cmp_lt_u32 {sCNT}, 64\ns_cbranch_scc1 {top}")
    A.label(done)
def poll(loads, check, first_issued=False, first_wait=0, sleep=0):
    top, done, chk = L("poll"), L("got"), L("chk")
    A(f"s_mov_b32 {sCNT}, 0")
    if first_issued:
        A(f"s_waitcnt vmcnt({first_wait})")
        A(f"s_branch {chk}")
    A.label(top)
    loads()
    A("s_waitcnt vmcnt(0)")
    if first_issued:
        A.label(chk)
    check()
    A(f"s_cbranch_vccz {done}")
    if sleep: A(f"s_sleep {sleep}")
    A(f"s_add_u32 {sCNT}, {sCNT}, 1")
    A(f"s_and_b32 {sT}, {sCNT}, {REFRESH}\ns_cbranch_scc1 {top}")
    A("buffer_wbl2 sc1")
    A(f"s_cmp_lt_u32 {sCNT}, {LIMIT}\ns_cbranch_scc1 {top}")
    A.label(done)
def chk_empty4(r, tmp):
    A(f"v_max3_u32 v{tmp}, v{r}, v{r+1}, v{r+2}\nv_max_u32 v{tmp}, v{tmp}, v{r+3}\nv_cmp_eq_u32 vcc, -1, v{tmp}")
def pack4(src, pk, pk2, tmp):
    A(f"v_mov_b32_dpp v{tmp}, v{src} quad_perm:[1,1,3,3] {DPPM}")
    A(f"v_cvt_pk_bf16_f32 v{pk}, v{src}, v{tmp}")
    A(f"v_mov_b32_dpp v{pk2}, v{pk} quad_perm:[2,2,2,2] {DPPM}")
def setexec(lo, hi):
    A(f"s_mov_b32 exec_lo, {lo:#x}\ns_mov_b32 exec_hi, {hi:#x}")
def fullexec():
    A("s_mov_b64 exec, -1")
def mfma(d, a, b, c):
    cc = "0" if c is None else f"v[{c}:{c+3}]"
    A(f"v_mfma_f32_16x16x32_bf16 v[{d}:{d+3}], v[{a}:{a+3}], v[{b}:{b+3}], {cc}")
def rowsum(ds):
    for d in ds: A(f"v_add_f32 v{d}, v{d}, v{d+1}\nv_add_f32 v{d+2}, v{d+2}, v{d+3}")
    for d in ds: A(f"v_add_f32 v{d}, v{d}, v{d+2}")
def code_prefetch(tmp, dst):
    sk = L("npf")
    A(f"s_cmp_lt_u32 s3, 6\ns_cbranch_scc1 {sk}")
    A("s_and_b32 s38, s38, 0xffffff00")
    A(f"v_lshlrev_b32 v{tmp}, 7, v0")
    A(f"s_and_b32 s40, s3, 1\ns_lshl_b32 s40, s40, 13")
    A(f"v_add_u32 v{tmp}, s40, v{tmp}")
    if not OPT["pf"]: A(f"v_mov_b32 v{tmp}, 0")
    A(f"global_load_dword v{dst}, v{tmp}, s[38:39] {OPT['pfnt']}")
    A.label(sk)

wM, wQ, wO, wTR, T0, T1, T2, T3, vPF = 3, 4, 5, 6, 7, 8, 9, 10, 11
wC = 12; wXS = 13; wX = 16; wXO = 24; wWF = 40; wD = 56
def swz_chunk(dst):
    A(f"v_lshlrev_b32 v{dst}, 1, v1\nv_xor_b32 v{dst}, v0, v{dst}\nv_and_b32 v{dst}, 7, v{dst}\nv_lshlrev_b32 v{dst}, 4, v{dst}")
def unit_dma(srdr, s0, s1, base):
    A(f"s_add_u32 m0, s42, {base}")
    A(f"buffer_load_dwordx4 v{wM}, {srdr}, {s0} offen {NT} lds")
    A(f"s_add_u32 m0, s42, {base+8192}")
    A(f"buffer_load_dwordx4 v{wM}, {srdr}, {s1} offen {NT} lds")
def tr_setup():
    VX(wTR, 32, 0, (2, 4, 7), (3, 2, 5), (0, 2, 3))
    SX("s40", XL, ("s3", 0, 2, 8))
    VX(82, 32, "s40", (0, 6, 2))
    VX(83, 32, "s40", (2, 1, 7), (4, 2, 3))
def silu_operand(cnt):
    A(f"s_waitcnt vmcnt({cnt})")
    A(f"v_lshlrev_b32 v32, 16, v{wC}\nv_and_b32 v33, 0xffff0000, v{wC}")
    A(f"v_mul_f32 v34, {f32(-math.log2(math.e))}, v32\nv_mul_f32 v35, {f32(-math.log2(math.e))}, v33")
    A("v_exp_f32 v34, v34\nv_exp_f32 v35, v35")
    A("v_add_f32 v34, 1.0, v34\nv_add_f32 v35, 1.0, v35")
    A("v_rcp_f32 v34, v34\nv_rcp_f32 v35, v35")
    A("v_mul_f32 v32, v32, v34\nv_mul_f32 v33, v33, v35")
    A("v_cvt_pk_bf16_f32 v32, v32, v33")
    A("ds_write_b32 v82, v32")
    A("s_waitcnt lgkmcnt(0)")
    A(f"ds_read2_b64 v[{wXO}:{wXO+3}], v83 offset0:0 offset1:4\nds_read2_b64 v[{wXO+4}:{wXO+7}], v83 offset0:8 offset1:12")
def unit_pre(s_c0, s_c1, base):
    SX("s40", 0, ("s3", 0, 2, 5)); A(f"v_xor_b32 v112, s40, v{wTR}\nv_add_u32 v112, {base}, v112")
    for i in range(4):
        A(f"v_mov_b32 v{wD+i}, {s_c0}\nv_mov_b32 v{wD+4+i}, {s_c1}")
def unit_go():
    if STAMPS: A("s_waitcnt lgkmcnt(0)")
    for k in range(2):
        for seg in range(2):
            for h in range(2):
                r = wWF + seg*8 + k*4 + h*2
                A(f"ds_read_b64_tr_b16 v[{r}:{r+1}], v112 offset:{seg*8192 + k*4096 + h*2048}")
    for k in range(2):
        for seg in range(2):
            A(f"s_waitcnt lgkmcnt({6 - 4*k - 2*seg})")
            mfma(wD + 4*seg, wXO + 4*k, wWF + seg*8 + k*4, wD + 4*seg)
def unit_mfma(s_c0, s_c1, base):
    unit_pre(s_c0, s_c1, base); unit_go()
def tagged_loads(r, va, so):
    A(f"buffer_load_dwordx4 v[{r}:{r+3}], v{va}, {RW}, {so} offen sc1")
    A(f"buffer_load_dwordx4 v[{r+4}:{r+7}], v{va}, {RW}, {so} offen offset:1024 sc1")
def tagged_chk(rs, tmp, extra=None):
    tags = [r + i for r in rs for i in (1, 3, 5, 7)] + ([extra] if extra else [])
    A(f"v_xor_b32 v{tmp}, {sTAG}, v{tags[-1]}")
    for t in tags[:-1]:
        A(f"v_bitop3_b32 v{tmp}, v{t}, {sTAG}, v{tmp} bitop3:0xbe")
    A(f"v_cmp_ne_u32 vcc, 0, v{tmp}")
def tagged_pack(r):
    A(f"v_mov_b32 v{r+1}, v{r+2}\nv_mov_b32 v{r+2}, v{r+4}\nv_mov_b32 v{r+3}, v{r+6}")
def sum8(dst, r):
    A(f"v_add_f32 v32, v{r}, v{r+1}\nv_add_f32 v33, v{r+2}, v{r+3}\nv_add_f32 v34, v{r+4}, v{r+5}\nv_add_f32 v35, v{r+6}, v{r+7}")
    A(f"v_add_f32 v32, v32, v33\nv_add_f32 v34, v34, v35\nv_add_f32 v{dst}, v32, v34")

STAMP(0)
A("s_cmp_ge_u32 s2, 256\ns_cbranch_scc1 L_end")
A("s_cmp_ge_u32 s2, 128\ns_cselect_b32 s40, 24, 8\ns_cselect_b32 s41, 0, 16")
A("s_load_dwordx2 s[8:9], s[0:1], s40")
kload(RC, 80)
A("s_load_dwordx2 s[24:25], s[0:1], s41")
kload(RE, 72); kload(RW, 104)
A("v_readfirstlane_b32 s3, v0")
A("s_getpc_b64 s[38:39]")
if OPT["pf"] == 4:
    A("s_and_b32 s38, s38, 0xffffff00")
    A(f"v_and_b32 v{vPF}, 0x1c0, v0\ns_lshl_b32 s40, s2, 7\ns_and_b32 s40, s40, 0x3c00\nv_lshl_or_b32 v{vPF}, v{vPF}, 1, s40")
    sk = L("npf")
    A(f"s_cmp_ge_u32 s2, 128\ns_cbranch_scc1 {sk}")
    A(f"global_load_dword v{vPF}, v{vPF}, s[38:39]")
    A.label(sk)
A("v_and_b32 v0, 63, v0")
A("s_mov_b32 s11, 0x00020000")
A("v_lshrrev_b32 v1, 4, v0\nv_and_b32 v2, 15, v0")
A(f"s_add_u32 s4, s2, {OPT['rot']}\ns_and_b32 s4, s4, 7\ns_bfe_u32 s6, s2, 0x10006\ns_bfe_u32 s7, s2, 0x30003")
A(f"v_lshlrev_b32 v{T3}, 1, v1\nv_xor_b32 v{T3}, v2, v{T3}\nv_lshlrev_b32 v{T3}, 4, v{T3}")
A("s_lshl1_add_u32 s58, s4, s6\ns_lshl_b32 s46, s7, 7\ns_mov_b32 s27, s11")
A(f"v_and_b32 v{T1}, 0x70, v{T3}\nv_lshrrev_b32 v{T0}, 3, v0")
srd(RC, 3145728); srd(RE, 2048)
A(f"v_mul_u32_u24 v{wM}, 6144, v{T0}\nv_add_u32 v{wM}, v{wM}, v{T1}")
if OPT["wfirst"]:
    A("s_cmp_lt_u32 s2, 128\ns_cbranch_scc1 L_KV")
    A.seg(OPT["wfirst"]); A.label("L_KV")
else:
    A("s_cmp_ge_u32 s2, 128\ns_cbranch_scc1 L_W")
def ids2():
    A("s_lshr_b32 s3, s3, 6\ns_bfe_u32 s5, s2, 0x40003")
    if STAMPS:
        for i in range(2, 16): A(f"s_mov_b32 s{64+2*i}, 0")
    srd(RW, WS_BYTES)

vE, vO, vQO = 120, 121, 122
vKA = 108
vQ = 14
vKF = 16
vVF = 48
vQF = 80
vS = 96
vP = 104
vOA = 108
vST = 114
vOAD, vSAD = 116, 117
A(f"v_lshl_or_b32 v{vE}, v1, 8, v{T3}\nv_xor_b32 v{vO}, 0x80, v{vE}")
A("s_lshl_b32 s43, s3, 7\ns_mov_b32 s10, 33554432\ns_mov_b32 s26, s10")
SX("s56", 6144*256, ("s6", 24), ("s4", 21), ("s7", 16), ("s43", 0))
A("s_add_u32 s57, s56, 4096\ns_mov_b32 m0, s43")
def kv_dma(u):
    r = RA if u < 8 else RD
    A(f"buffer_load_dwordx4 v{vE if u%2==0 else vO}, {r}, {'s56' if u%8 < 4 else 's57'} offen offset:{(u%4)*1024} {NT} lds")
if OPT["wqpf"]:
    kload(RF, 24)
    A("s_cmp_lt_u32 s4, 4\ns_cselect_b32 s34, 0x400000, 0\ns_mov_b32 s35, s11")
    A(f"v_and_b32 v{wQ}, {31 if OPT['wqpf'] == 1 else 15}, v0\nv_lshlrev_b32 v{wQ}, 13, v{wQ}")
    SX("s44", 0, ("s6", 21), ("s3", 12 if OPT["wqpf"] == 1 else 11), ("s4", 10), ("s46", 0))
A("s_waitcnt lgkmcnt(0)")
if OPT["wqpf"]: A(f"buffer_load_dword v16, v{wQ}, {RF}, s44 offen")
VT = OPT["vt"]
if VT:
    A(f"s_add_u32 m0, s43, {VREG}")
    kv_dma(8)
    A("s_mov_b32 m0, s43")
if OPT["slow"]: kv_dma(0)
if OPT["pf"] == 3:
    A("s_and_b32 s38, s38, 0xffffff00")
    SX("s40", 0, ("s2", 3, 4, 10), ("s3", 1))
    A("s_load_dword s99, s[38:39], s40")
A(f"s_load_dword {sTAG}, s[16:17], 0")
if OPT["slow"]: A("s_waitcnt vmcnt(0)")
def mb_issue():
    SX("s51", 0, ("s7", 6), ("s3", 3, 0, 0))
    A("s_mul_i32 s51, s51, 6144\ns_lshl_b32 s42, s3, 4")
    SX("s40", 2048, ("s58", 8)); A("s_add_u32 s51, s51, s40")
    A(f"s_add_u32 m0, s42, {PA}")
    A(f"buffer_load_dwordx4 v{wM}, {RC}, s51 offen {NT} lds")
    A(f"s_add_u32 m0, s42, {PA + 8192 - 128}")
    A(f"buffer_load_dwordx4 v{wM}, {RC}, s51 offen offset:128 {NT} lds")
    VX(T2, T3, 0, (5, 1, 10), (0, 5, 2))
    A(f"buffer_load_dword v{wC}, v{T2}, {RE}, s46 offen {SNT}")
for u in range(1 if OPT["slow"] else 0, 16):
    if u in (4, 12): A("s_add_u32 m0, m0, 4096")
    if u == 8:
        if OPT["mbg"] != 3: mb_issue()
        A(f"s_add_u32 m0, s43, {VREG}")
        if VT: continue
    if OPT["depth"] and u < OPT["depth_until"]: A(f"s_waitcnt vmcnt({OPT['depth']-1})")
    kv_dma(u)
cont(30)
ids2()
if STAMPS: A("s_mov_b32 s66, 0")
STAMP(2)
if OPT["abl"]:
    A("s_waitcnt vmcnt(0)")
    STAMP(4)
    A("s_branch L_exit")
GT = 0
A("s_waitcnt lgkmcnt(0)")
A(f"s_add_u32 {sTAG}, {sTAG}, {TAGC:#x}")
kload(RC, 48); kload(RD, 56); kload(RE, 64)
FF = OPT["ffn_first"]
if FF: FG = VREG; FD = VREG + 32768
wG, wDO, fMF = 124, 125, 123
A(f"v_mul_u32_u24 v{wG}, 3584, v{T0}\nv_add_u32 v{wG}, v{wG}, v{T1}\nv_lshl_or_b32 v{wDO}, v{T0}, 10, v{T1}")
A("s_cmp_lt_u32 s4, 7")
A("s_cselect_b32 s22, 1835008, 0\ns_cselect_b32 s26, 1835008, 0\ns_cselect_b32 s30, 1835008, 0")
SX("s63", 0, ("s4", 4), ("s5", 0))
SX("s49", 0, ("s63", 0, 2, 7), ("s3", 4))
A("s_mul_i32 s49, s49, 3584")
SX("s50", 0, ("s63", 2, 0, 7))
A(f"s_add_u32 s49, s49, s50\ns_add_u32 s50, s49, {8*3584-1024}")
SX("s51", 0, ("s63", 14), ("s3", 7))
A(f"s_add_u32 s52, s51, {8*1024-1024}")
A("s_lshl_b32 s42, s3, 11")
def g_dma():
    A(f"s_add_u32 m0, s42, {FG}")
    A(f"buffer_load_dwordx4 v{wG}, {RC}, s49 offen {NT} lds")
    A(f"buffer_load_dwordx4 v{wG}, {RC}, s50 offen offset:1024 {NT} lds")
def u_dma():
    A(f"s_add_u32 m0, s42, {FG+16384}")
    A(f"buffer_load_dwordx4 v{wG}, {RD}, s49 offen {NT} lds")
    A(f"buffer_load_dwordx4 v{wG}, {RD}, s50 offen offset:1024 {NT} lds")
def gu_dma():
    g_dma(); u_dma()
def dn_dma():
    A(f"s_add_u32 m0, s42, {FD}")
    A(f"buffer_load_dwordx4 v{wDO}, {RE}, s51 offen {NT} lds")
    A(f"buffer_load_dwordx4 v{wDO}, {RE}, s52 offen offset:1024 {NT} lds")
def ffn_dma():
    gu_dma(); dn_dma()
GB1 = OPT["gu_b1"] and OPT["ser"] and not FF
SX("s98", ST5, ("s4", 8))
SX("s96", G5, ("s63", 10))
A(f"s_add_u32 s97, s96, {US5-G5}")
if OPT["ftouch"]:
    A("v_mul_u32_u24 v118, 3584, v2\nv_lshlrev_b32 v119, 10, v2")
SX("s44", QG, ("s58", 12), ("s3", 10))
vQ = 100
A(f"v_lshlrev_b32 v{vQO}, 4, v0")
VX(fMF, T2, 0, (0, 3, 7), (3, 1, 6), (4, 2, 4))
SX("s59", MGT + 2*32768, ("s63", 0, 2, 13), ("s3", 0, 2, 11))
SX("s40", 0, ("s3", 2, 0, 15)); A("s_sub_u32 s59, s59, s40")
VX(T2, 0, 0, (0, 3, 1))
A(f"v_xor_b32 v{T2}, v1, v{T2}\nv_lshlrev_b32 v{T2}, 4, v{T2}\nv_lshl_or_b32 v{T2}, v2, 8, v{T2}")
A(f"v_add_u32 v{vKA}, s43, v{T2}")
for t in range(1, 4):
    A(f"v_xor_b32 v{vKA+t}, {t*64:#x}, v{vKA}")
vQW, vQR, vVR, vMX, vPW, vPR, vMW = 3, 4, 5, 6, 113, 13, 112
SX("s40", QL, ("s3", 5))
VX(vQW, T2, "s40", (1, 4, 7), (5, 1, 4), (0, 1, 3))
VX(vQR, T2, QL, (4, 2, 7), (0, 3, 4))
A(f"v_bfe_u32 v{T0}, v0, 2, 3\nv_xor_b32 v{T0}, s3, v{T0}")
VX(vVR, T2, VREG, (2, 4, 8), (0, 2, 3))
A(f"v_lshl_or_b32 v{vVR}, v{T0}, 5, v{vVR}")
VX(vMX, T2, MISC, (0, 2, 5))
A(f"s_lshl_b32 s40, s3, 2\nv_add_u32 v{vMW}, s40, v{vMX}")
VX(vPR, T2, PL, (4, 2, 6), (0, 2, 4))
A(f"s_lshl_b32 s40, s3, 8\nv_add_u32 v{vPW}, s40, v{vPR}")
VX(vOAD, T2, 0, (0, 2, 12), (4, 2, 4))
SX("s53", OG, ("s4", 14), ("s3", 1, 0, 10), ("s5", 6), ("s3", 0, 1, 3))
VX(vSAD, T2, 0, (0, 2, 7))
SX("s54", SG, ("s4", 9), ("s5", 3))
A(f"s_mov_b32 s55, {f32(C1)}")
fWF = 128 if FF else 84
fDF = 144 if FF else 64
def ffn_frag_addr(wr, ta, tr):
    VX(tr, 32, 0, (2, 4, 7), (3, 2, 5), (0, 2, 3))
    SX("s40", 0, ("s3", 0, 2, 5)); A(f"v_xor_b32 v{wr}, s40, v{tr}")
    SX("s40", FG, ("s3", 2, 0, 14)); A(f"v_add_u32 v{wr}, s40, v{wr}")
    A(f"s_add_u32 s40, s42, {FD}\nv_add_u32 v{ta}, s40, v{tr}")
    for t in range(1, 4):
        A(f"v_xor_b32 v{ta+t}, {t*32:#x}, v{ta}")
def w_frags(wr):
    for k in range(4):
        for h in range(2):
            r = fWF + 4*k + 2*h
            A(f"ds_read_b64_tr_b16 v[{r}:{r+1}], v{wr} offset:{k*4096 + h*2048}")
def d_frags(ta):
    for tau in range(4):
        A(f"ds_read_b64_tr_b16 v[{fDF+2*tau}:{fDF+2*tau+1}], v{ta+tau}")
A(f"s_waitcnt vmcnt({7 if VT else 8})")
for T in range(2):
    for t in range(4):
        r = vKF + (T*4+t)*4
        A(f"ds_read_b128 v[{r}:{r+3}], v{vKA+t} offset:{T*4096}")
sk = L("nqp"); skm = L("mbw")
if OPT["mbg"] == 3:
    A(f"s_cmp_lt_u32 s3, 4\ns_cbranch_scc1 {skm}")
    A(f"s_waitcnt vmcnt(0)\ns_branch {sk}")
    A.label(skm)
    A.mute = True
A("s_barrier")
A(f"s_cmp_lt_u32 s3, 4\ns_cbranch_scc1 {skm}")
SX("s40", XL, ("s3", 0, 2, 8))
VX(82, 80, "s40", (0, 6, 2))
VX(83, 80, "s40", (2, 1, 7), (4, 2, 3))
A(f"v_lshlrev_b32 v84, 16, v{wC}\nv_and_b32 v85, 0xffff0000, v{wC}")
A(f"v_mul_f32 v86, {f32(-math.log2(math.e))}, v84\nv_mul_f32 v87, {f32(-math.log2(math.e))}, v85")
A("v_exp_f32 v86, v86\nv_exp_f32 v87, v87\nv_add_f32 v86, 1.0, v86\nv_add_f32 v87, 1.0, v87")
A("v_rcp_f32 v86, v86\nv_rcp_f32 v87, v87\nv_mul_f32 v84, v84, v86\nv_mul_f32 v85, v85, v87")
A("v_cvt_pk_bf16_f32 v84, v84, v85\nds_write_b32 v82, v84")
A("ds_read2_b64 v[144:147], v83 offset0:0 offset1:4\nds_read2_b64 v[148:151], v83 offset0:8 offset1:12")
VX(81, 80, 0, (2, 4, 7), (3, 2, 5), (0, 2, 3))
SX("s40", 0, ("s3", 0, 2, 5)); A(f"v_xor_b32 v81, s40, v81\nv_add_u32 v81, {PA}, v81")
for k in range(2):
    for sg in range(2):
        for hh in range(2):
            r = 128 + sg*8 + k*4 + hh*2
            A(f"ds_read_b64_tr_b16 v[{r}:{r+1}], v81 offset:{sg*8192 + k*4096 + hh*2048}")
SX("s40", 0, ("s58", 2, 0, 3), ("s7", 0))
A("s_cmp_eq_u32 s40, 16\ns_cselect_b32 s41, 1.0, 0")
for i in range(8): A(f"v_mov_b32 v{88+i}, s41")
VX(80, 81, 0, (5, 1, 12), (4, 1, 6), (2, 2, 4))
SX("s41", MGT, ("s58", 13), ("s3", 0, 2, 10), ("s46", 0))
A(f"v_mov_b32 v97, {sTAG}\nv_mov_b32 v99, {sTAG}")
A("s_waitcnt lgkmcnt(0)")
for k in range(2):
    for sg in range(2):
        mfma(88 + 4*sg, 144 + 4*k, 128 + sg*8 + k*4, 88 + 4*sg)
A("v_cmp_gt_u32 vcc, 32, v0")
A("v_cndmask_b32 v84, v92, v88, vcc")
pack4(84, 96, 98, 85)
setexec(0x11111111, 0x11111111)
A(f"buffer_store_dwordx4 v[96:99], v80, {RW}, s41 offen sc1")
fullexec()
STAMP(9)
A(f"s_waitcnt vmcnt(1)\ns_branch {sk}")
A.label(skm)
A.mute = False
def q_load():
    A(f"buffer_load_dwordx4 v[{vQ}:{vQ+3}], v{vQO}, {RW}, s44 offen sc1")
def q_chk():
    A(f"v_xor_b32 v{T0}, {sTAG}, v{vQ+1}\nv_bitop3_b32 v{T0}, v{vQ+3}, {sTAG}, v{T0} bitop3:0xbe\nv_cmp_ne_u32 vcc, 0, v{T0}")
poll(q_load, q_chk, sleep=OPT['s2'])
STAMP(4)
A(f"v_mov_b32 v{vQ+1}, v{vQ+2}")
A(f"ds_write_b64 v{vQW}, v[{vQ}:{vQ+1}]")
A.label(sk)
A("s_waitcnt lgkmcnt(0)\ns_barrier")
STAMP(5)
for t in range(4):
    A(f"ds_read_b128 v[{vQF+4*t}:{vQF+4*t+3}], v{vQR} offset:{t*512}")
if GB1: gu_dma()
if OPT["g_b1"]: g_dma()
def f_touch(n):
    A("s_mov_b64 exec, 0xffff")
    if n & 1: A(f"buffer_load_dword v{vPF}, v118, {RC}, s49 offen")
    if n & 2: A(f"buffer_load_dword v{vPF}, v118, {RD}, s49 offen")
    if n & 4: A(f"buffer_load_dword v{vPF}, v119, {RE}, s51 offen")
    fullexec()
if OPT["ftouch"]: f_touch(OPT["ftouch"])
vMF = 128
def mf_loads():
    tagged_loads(vMF, fMF, "s59")
def l_touch(a, b, c):
    sk = L("nlt")
    A(f"s_cmp_lg_u32 s3, 7\ns_cbranch_scc1 {sk}")
    A(f"buffer_load_dwordx4 v[136:139], v{vQO}, {RW}, {a} offen sc1")
    A(f"buffer_load_dwordx4 v[136:139], v{vQO}, {RW}, {b} offen sc1")
    A(f"buffer_load_dword v136, v{vSAD}, {RW}, {c} offen sc1")
    A.label(sk)
if OPT["mfb1"]:
    mf_loads()
    l_touch("s96", "s97", "s98")
A("s_waitcnt lgkmcnt(0)")
def v_tr(kb, T):
    r = vVF + kb*4 + T*2
    A(f"ds_read_b64_tr_b16 v[{r}:{r+1}], v{vVR} offset:{(32*kb+16*T)*256}")
EARLY_T = [0, 1] if OPT['ser'] else []
for kb in range(8):
    if kb < 4:
        for T in range(2):
            mfma(vS + 4*T, vKF + (T*4+kb)*4, vQF + 4*kb, None if kb == 0 else vS + 4*T)
    for T in EARLY_T: v_tr(kb, T)
for i in range(8):
    A(f"v_add_f32_dpp v{vS+i}, v{vS+i}, v{vS+i} row_ror:4 {DPPM}")
A(f"v_max3_f32 v{T0}, v{vS}, v{vS+1}, v{vS+2}\nv_max3_f32 v{T2}, v{vS+3}, v{vS+4}, v{vS+5}")
A(f"v_max3_f32 v{T0}, v{T0}, v{vS+6}, v{vS+7}\nv_max_f32 v{T3}, v{T0}, v{T2}\nv_max_f32 v{T0}, v{T0}, v{T2}")
A(f"v_permlane32_swap_b32 v{T0}, v{T3}")
A(f"v_max_f32 v{T2}, v{T0}, v{T3}\nv_max_f32 v{T0}, v{T0}, v{T3}")
A(f"v_permlane16_swap_b32 v{T0}, v{T2}")
A(f"v_max_f32 v{T0}, v{T0}, v{T2}")
A(f"ds_write_b32 v{vMW}, v{T0}")
STAMP(14)
if OPT["ftouch2"]: f_touch(OPT["ftouch2"])
if OPT["dn_p"] == 2: dn_dma()
if OPT["dn_p"] == 3: u_dma()
A("s_waitcnt lgkmcnt(0)\ns_barrier")
A(f"ds_read_b128 v[{vQF}:{vQF+3}], v{vMX}\nds_read_b128 v[{vQF+4}:{vQF+7}], v{vMX} offset:16")
A("s_waitcnt lgkmcnt(0)")
A(f"v_max3_f32 v{T0}, v{vQF}, v{vQF+1}, v{vQF+2}\nv_max3_f32 v{T2}, v{vQF+3}, v{vQF+4}, v{vQF+5}")
A(f"v_max3_f32 v{T0}, v{T0}, v{vQF+6}, v{vQF+7}\nv_max_f32 v{T0}, v{T0}, v{T2}")
A(f"v_mul_f32 v{vST}, s55, v{T0}")
for i in range(8):
    A(f"v_fma_f32 v{vS+i}, v{vS+i}, s55, -v{vST}")
for i in range(8):
    A(f"v_exp_f32 v{vS+i}, v{vS+i}")
for i in range(4):
    A(f"v_cvt_pk_bf16_f32 v{vP+i}, v{vS+2*i}, v{vS+2*i+1}")
A(f"ds_write_b128 v{vPW}, v[{vP}:{vP+3}]")
rowsum([vS, vS+4])
A(f"v_add_f32 v{T0}, v{vS}, v{vS+4}\nv_add_f32 v{T3}, v{vS}, v{vS+4}")
A(f"v_permlane32_swap_b32 v{T0}, v{T3}")
A(f"v_add_f32 v{T2}, v{T0}, v{T3}\nv_add_f32 v{T0}, v{T0}, v{T3}")
A(f"v_permlane16_swap_b32 v{T0}, v{T2}")
A(f"v_add_f32 v{T0}, v{T0}, v{T2}")
A(f"ds_write_b32 v{vMW}, v{T0} offset:128")
if OPT["dn_p"] == 3: dn_dma()
A("s_waitcnt lgkmcnt(0)\ns_barrier")
STAMP(3)
if STAMPS: A("s_waitcnt lgkmcnt(0)")
LATE_T = [T for T in range(2) if T not in EARLY_T]
A(f"ds_read_b128 v[{vQF}:{vQF+3}], v{vMX} offset:128\nds_read_b128 v[{vQF+4}:{vQF+7}], v{vMX} offset:144")
for kb in range(8):
    r = vKF + kb*4
    A(f"ds_read_b128 v[{r}:{r+3}], v{vPR} offset:{kb*256}")
def st_pub(vm=None):
    sk = L("nst"); sk2 = L("nsu")
    A(f"s_cmp_lg_u32 s3, 0\ns_cbranch_scc1 {sk}")
    A("s_waitcnt lgkmcnt(8)")
    rowsum([vQF, vQF+4])
    A(f"v_add_f32 v{vST+1}, v{vQF}, v{vQF+4}")
    A("s_mov_b64 exec, 15")
    A(f"buffer_store_dwordx2 v[{vST}:{vST+1}], v{vSAD}, {RW}, s54 offen")
    fullexec()
    if vm is not None:
        A(f"s_waitcnt vmcnt({vm})\ns_branch {sk2}")
    A.label(sk)
    if vm is not None:
        A(f"s_waitcnt vmcnt({vm-1})")
        A.label(sk2)
if LATE_T:
    st_pub(1)
    A("s_waitcnt lgkmcnt(0)\ns_barrier")
    STAMP(6)
    if STAMPS: A("s_waitcnt lgkmcnt(0)")
    per = len(LATE_T)
    AHEAD = 8 if per == 1 else 6
    for kb in range(AHEAD):
        for T in LATE_T: v_tr(kb, T)
    for kb in range(8):
        A(f"s_waitcnt lgkmcnt({(min(8, AHEAD + kb) - kb - 1) * per})")
        mfma(vOA, vVF + kb*4, vKF + kb*4, None if kb == 0 else vOA)
        if AHEAD + kb < 8:
            for T in LATE_T: v_tr(AHEAD + kb, T)
else:
    st_pub()
    if OPT["dn_p"] == 1: dn_dma()
    for kb in range(8):
        A(f"s_waitcnt lgkmcnt({7-kb})")
        mfma(vOA, vVF + kb*4, vKF + kb*4, None if kb == 0 else vOA)
setexec(0x000f000f, 0x000f000f)
A(f"v_cvt_pk_bf16_f32 v{vP}, v{vOA}, v{vOA+1}\nv_cvt_pk_bf16_f32 v{vP+1}, v{vOA+2}, v{vOA+3}")
A(f"buffer_store_dwordx2 v[{vP}:{vP+1}], v{vOAD}, {RW}, s53 offen")
fullexec()
STAMP(7)
A("s_cmp_lt_u32 s4, 7\ns_cbranch_scc1 L_ffn")
A("s_cmp_lg_u32 s3, 0\ns_cbranch_scc1 L_exit")
VX(T1, T2, 0, (3, 1, 14), (0, 3, 11))
A(f"s_mov_b32 s46, {X4 + 7*128:#x}")
poll(lambda: A(f"buffer_load_dword v16, v{T1}, {RW}, s46 offen sc1"), lambda: A(f"v_cmp_eq_u32 vcc, -1, v16"), sleep=8)
A("s_branch L_exit")
A.label("L_ffn")
SX("s55", ST5, ("s4", 8))
SX("s53", G5, ("s63", 10))
A(f"s_add_u32 s54, s53, {US5-G5}")
if not OPT["mfb1"]:
    l_touch("s53", "s54", "s55")
    mf_loads()
DL = OPT["dn_late"]
NF = 0
if not GB1 and OPT["dn_p"] != 3:
    if OPT["obar"]: A("s_barrier")
    if not OPT["g_b1"]:
        g_dma(); NF += 2
    u_dma(); NF += 2
if not DL and not OPT["dn_p"]:
    if (GB1 and OPT["obar"]) or OPT["gufirst"]: A("s_barrier")
    dn_dma(); NF += 2
fYW, fYR, fWR, fGA, fGR, fSTA, fY6A = 113, 114, 115, 116, 118, 119, 120
fG, fU, fS = 121, 122, 117
wOF, wTA = fMF, 108
if not FF: ffn_frag_addr(fWR, wTA, wTR)
A("s_lshr_b32 s56, s3, 2\ns_and_b32 s57, s3, 3")
VX(fYR, 32, YL0, (0, 6, 4))
A(f"s_lshl_b32 s40, s3, 10\nv_add_u32 v{fYW}, s40, v{fYR}")
VX(fGA, 32, 0, (0, 6, 2))
SX("s61", G5 - 64, ("s63", 2, 0, 12), ("s57", 10), ("s63", 0, 2, 8), ("s56", 7))
A(f"s_add_u32 s62, s61, {US5-G5}")
VX(fGR, 32, 0, (2, 1, 7), (3, 1, 6), (4, 2, 4), (0, 2, 2))
VX(fSTA, 32, 0, (0, 3, 5), (3, 1, 4))
VX(fY6A, 32, 0, (3, 1, 14), (5, 1, 12), (4, 1, 4))
SX("s47", Y4, ("s56", 14), ("s63", 0, 2, 12), ("s57", 10))
SX("s96", Y6, ("s3", 16), ("s63", 5))
A("s_add_u32 s97, s96, 8192\ns_add_u32 s98, s96, 32768\ns_add_u32 s99, s96, 40960")
A(f"s_mov_b32 s41, {f32(1.0/512)}\ns_mov_b32 s43, {f32(1e-5)}")
poll(mf_loads, lambda: tagged_chk([vMF], 33), first_issued=True, first_wait=NF, sleep=4)
tagged_pack(vMF)
A(f"ds_write_b128 v{fYW}, v[{vMF}:{vMF+3}]")
def y_load():
    A(f"buffer_load_dwordx4 v[76:79], v{wOF}, {RW}, s47 offen sc1")
GF = OPT["gufirst"]
A(f"s_waitcnt vmcnt({2 if GF else 0}) lgkmcnt(0)\ns_barrier")
STAMP(10)
y_load()
if DL: dn_dma()
YO = [16, 20, 24, 28, 32, 36, 100, 104]
if not FF: w_frags(fWR)
for u in range(8):
    A(f"ds_read_b128 v[{YO[u]}:{YO[u]+3}], v{fYR} offset:{u*1024}")
A("s_waitcnt lgkmcnt(0)")
for k in range(4):
    for pi in range(2):
        mfma(wD + 4*pi, YO[4*pi+k], fWF + 4*k, None if k == 0 else wD + 4*pi)
rowsum([wD, wD+4])
A(f"v_permlane16_swap_b32 v{wD}, v{wD+4}")
A(f"v_add_f32 v{wD+1}, v{wD}, v{wD+4}\nv_add_f32 v{wD}, v{wD}, v{wD+4}")
A(f"v_permlane16_swap_b32 v{wD}, v{wD+1}")
A(f"v_cvt_pk_bf16_f32 v126, v{wD}, v{wD+1}")
setexec(0xffff0000, 0x0000ffff)
A(f"buffer_store_dword v126, v{fGA}, {RW}, s62 offen {'' if OPT['uslocal'] else 'sc1'}")
fullexec()
STAMP(1)
def us_loads():
    for k in range(4):
        A(f"buffer_load_dword v{40+k}, v{fGR}, {RW}, s54 offen offset:{256*k} sc1")
if not DL and not GF: d_frags(wTA)
poll(y_load, lambda: chk_empty4(76, 33), first_issued=True, first_wait=3 if DL else 1)
STAMP(11)
A(f"ds_write_b128 v{fYW}, v[76:79] offset:8192")
us_loads()
A("s_waitcnt lgkmcnt(0)\ns_barrier")
for u in range(8):
    A(f"ds_read_b128 v[{YO[u]}:{YO[u]+3}], v{fYR} offset:{8192+u*1024}")
for u in range(8):
    A(f"s_waitcnt lgkmcnt({7-u})")
    mfma(wD, YO[u], fWF + 4*(u & 3), None if u == 0 else wD)
A(f"v_add_f32 v{wD}, v{wD}, v{wD+1}\nv_add_f32 v{wD+2}, v{wD+2}, v{wD+3}")
A(f"v_add_f32 v{wD+1}, v{wD}, v{wD+2}\nv_add_f32 v{wD}, v{wD}, v{wD+2}")
A(f"v_permlane16_swap_b32 v{wD}, v{wD+1}")
A(f"v_add_f32 v{fG}, v{wD}, v{wD+1}")
def g_store(fl):
    setexec(0xffff0000, 0x0000ffff)
    A(f"buffer_store_dword v{fG}, v{fGA}, {RW}, s61 offen {fl}")
g_store("")
fullexec()
STAMP(12)
def g_loads():
    A(f"buffer_load_dwordx4 v[24:27], v{fSTA}, {RW}, s55 offen sc1")
    for k in range(4):
        A(f"buffer_load_dword v{20+k}, v{fGR}, {RW}, s53 offen offset:{256*k} sc1")
poll(us_loads, lambda: chk_empty4(40, 33), first_issued=True, first_wait=1)
g_loads()
if DL or GF: d_frags(wTA)
for k in range(4):
    A(f"v_lshlrev_b32 v{44+k}, 16, v{40+k}\nv_and_b32 v{40+k}, 0xffff0000, v{40+k}")
rowsum([44, 40])
A(f"v_mov_b32 v{fU}, v44\nv_mov_b32 v{fS}, v40")
def g_chk():
    A("v_add_f32 v24, v24, v26\nv_add_f32 v25, v25, v27")
    A("v_add_f32 v20, v20, v21\nv_add_f32 v22, v22, v23")
    A(f"v_add_f32_dpp v24, v24, v24 quad_perm:[1,0,3,2] {DPPM}\nv_add_f32_dpp v25, v25, v25 quad_perm:[1,0,3,2] {DPPM}")
    A("v_add_f32 v20, v20, v22")
    A(f"v_add_f32_dpp v24, v24, v24 quad_perm:[2,3,0,1] {DPPM}\nv_add_f32_dpp v25, v25, v25 quad_perm:[2,3,0,1] {DPPM}")
    A("v_add_f32 v26, v24, v25")
    A("v_cmp_u_f32 vcc, v20, v26")
poll(g_loads, g_chk, first_issued=True)
STAMP(13)
A(f"v_add_f32_dpp v24, v24, v24 row_half_mirror {DPPM}\nv_add_f32_dpp v25, v25, v25 row_half_mirror {DPPM}")
A("v_mov_b32 v26, s43")
A("v_mul_f32 v24, s41, v24")
A("v_fmac_f32 v26, s41, v25")
A("v_fma_f32 v26, -v24, v24, v26")
A(f"v_fma_f32 v20, -v24, v{fU}, v20")
A("v_rsq_f32 v26, v26")
A(f"v_fma_f32 v20, v20, v26, v{fS}")
A("v_max_f32 v21, 0, v20")
A(f"v_mul_f32_dpp v22, v20, v21 row_shl:4 {DPPM}")
pack4(22, 24, 25, 23)
if DL or GF: A("s_waitcnt lgkmcnt(0)")
for tau in range(4):
    d = 32 + 4*tau
    A(f"v_mfma_f32_16x16x16_bf16 v[{d}:{d+3}], v[{fDF+2*tau}:{fDF+2*tau+1}], v[24:25], 0")
setexec(0x01010101, 0x01010101)
for tau in range(4):
    d = 32 + 4*tau
    A(f"buffer_store_dwordx4 v[{d}:{d+3}], v{fY6A}, {RW}, s{96+tau} offen sc1")
STAMP(8)
A("s_waitcnt vmcnt(0)")
g_store("sc1")
if OPT["uslocal"]: A(f"buffer_store_dword v126, v{fGA}, {RW}, s62 offen sc1")
A("s_branch L_exit")

A.seg(1)
A.label("L_W")
def w_common():
    kload(RB, 32); kload(RF, 88)
    A(f"s_load_dword {sTAG}, s[16:17], 0")
    ids2()
    A(f"v_lshl_or_b32 v{wO}, v{T0}, 10, v{T1}")
    srd(RB, 4194304); A("s_movk_i32 s26, 2048")
def wq_setup(sh):
    A(f"v_lshl_or_b32 v{wQ}, v{T0}, 13, v{T1}")
    A("s_mov_b32 s10, 4194304")
    A(f"s_lshl_b32 s48, s3, {12-sh}")
    SX("s43", 0, ("s6", 8), ("s48", 7, 0, 0))
    SX("s44", 0, ("s43", 13), ("s4", 10), ("s46", 0))
def wq_dma():
    A(f"s_add_u32 m0, s48, {WQL}")
    for u in range(4):
        if u: A(f"s_add_u32 s44, s44, {8*8192-1024}")
        A(f"buffer_load_dwordx4 v{wQ}, {RA}, s44 offen offset:{u*1024} {NT} lds")
def c_setup():
    VX(T2, T3, 0, (5, 1, 10), (0, 5, 2))
if "noW" in OPT["abl"]:
    ids2(); A("s_waitcnt lgkmcnt(0)\ns_branch L_exit")
if "noA" in OPT["abl"]: A("s_branch L_nA")
A("s_cmp_ge_u32 s4, 4\ns_cbranch_scc1 L_nA")
A("s_lshl_b32 s49, s58, 7")
A("s_cmp_lt_u32 s3, 256\ns_cbranch_scc1 L_A1")
A("s_sub_u32 s40, s3, 256")
SX("s61", 0, ("s7", 6), ("s40", 2, 0, 0))
A(f"s_mul_i32 s61, s61, 6144\ns_add_u32 s61, s61, s49\ns_add_u32 s62, s61, {8*6144-1024}")
A(f"s_lshl_b32 s40, s40, 5\ns_add_u32 m0, s40, {PA}")
A("s_waitcnt lgkmcnt(0)")
STAMP(1)
A(f"buffer_load_dwordx4 v{wM}, {RC}, s61 offen {NT} lds")
A(f"buffer_load_dwordx4 v{wM}, {RC}, s62 offen offset:1024 {NT} lds")
A(f"s_add_u32 m0, s40, {PA+8192-1024}")
A(f"buffer_load_dwordx4 v{wM}, {RC}, s61 offen offset:1024 {NT} lds")
A(f"buffer_load_dwordx4 v{wM}, {RC}, s62 offen offset:2048 {NT} lds")
A("v_mov_b32 v32, -1\nv_mov_b32 v33, -1\nv_mov_b32 v34, -1\nv_mov_b32 v35, -1")
SX("s54", CLR, ("s49", 9), ("s7", 13), ("s40", 0))
A("v_lshlrev_b32 v38, 4, v0")
if "noclr" in OPT["abl"]: A("v_mov_b32 v38, 0x7ffffff0")
srd(RW, WS_BYTES)
A(f"buffer_store_dwordx4 v[32:35], v38, {RW}, s54 offen sc1")
A(f"buffer_store_dwordx4 v[32:35], v38, {RW}, s54 offen offset:1024 sc1")
cont(5)
w_common()
if OPT["pf"] == 2: code_prefetch(T2, vPF)
wq_setup(0)
AH = OPT["ahold"]
if AH < 8:
    A("s_barrier")
    wq_dma()
tr_setup()
if STAMPS == 3: STAMP(13)
if OPT["abl"] or STAMPS == 3:
    A(f"s_waitcnt vmcnt({2 + (4 if AH < 8 else 0)})"); STAMP(8 if OPT["abl"] else 11)
A(f"s_waitcnt vmcnt({4 if AH < 8 else 0}) lgkmcnt(0)")
if OPT["abl"]: STAMP(9)
if STAMPS == 3: STAMP(12)
A(f"s_add_u32 {sTAG}, {sTAG}, {TAGC:#x}")
A("s_barrier")
if AH == 8:
    A("s_barrier")
    wq_dma()
A("s_branch L_B")
A.seg(1.5 if OPT["wfirst"] else 3)
A.label("L_A1")
c_setup()
VX(36, T3, 0, (4, 1, 10), (5, 1, 8), (0, 4, 4))
A("s_movk_i32 s26, 2048")
A("s_waitcnt lgkmcnt(0)")
STAMP(1)
A(f"buffer_load_dword v{wC}, v{T2}, {RE}, s46 offen {SNT}")
A(f"buffer_load_dwordx4 v[{wX}:{wX+3}], v36, {RD}, 0 offen {SNT}")
A(f"buffer_load_dwordx4 v[{wX+4}:{wX+7}], v36, {RD}, 0 offen offset:512 {SNT}")
VX(37, T3, 0, (4, 1, 10), (0, 4, 1))
A(f"s_lshr_b32 s50, s3, 1\ns_add_u32 s50, s50, s49\nv_mov_b32 v{wXS}, 0")
A(f"buffer_load_short_d16_hi v{wXS}, v37, {RD}, s50 offen {SNT}")
if OPT["wfirst"] == 3: cont(4)
if AH < 8: A("s_barrier")
w_common()
wq_setup(0)
tr_setup()
VX(39, 32, 0, (4, 1, 6), (2, 2, 4))
SX("s53", H1G, ("s58", 12), ("s3", 10), ("s46", 0))
A("s_cmp_eq_u32 s7, 0\ns_cselect_b32 s54, 1.0, 0")
unit_pre("0", "s54", PA)
silu_operand(3)
if OPT["abl"]: STAMP(6)
if STAMPS == 3: STAMP(11)
A(f"s_waitcnt vmcnt(0)")
A("v_mov_b32 v36, 0\nv_mov_b32 v37, 0\nv_mov_b32 v38, 0x3f803f80")
for i in range(8):
    A(f"v_dot2c_f32_bf16 v36, v{wX+i}, v38\nv_dot2c_f32_bf16 v37, v{wX+i}, v{wX+i}")
for m in ("quad_perm:[1,0,3,2]", "quad_perm:[2,3,0,1]", "row_half_mirror", "row_mirror"):
    A(f"v_add_f32_dpp v36, v36, v36 {m} {DPPM}\nv_add_f32_dpp v37, v37, v37 {m} {DPPM}")
A("v_mov_b32 v38, v36\nv_mov_b32 v35, v37")
A("v_permlane32_swap_b32 v36, v38\nv_permlane32_swap_b32 v37, v35")
A("v_add_f32 v36, v36, v38\nv_add_f32 v37, v37, v35")
A(f"v_mul_f32 v36, {f32(1.0/512)}, v36\nv_mov_b32 v38, {f32(1e-5)}\nv_fmac_f32 v38, {f32(1.0/512)}, v37")
A("v_fma_f32 v38, -v36, v36, v38\nv_rsq_f32 v38, v38")
A(f"v_sub_f32 v{wXS}, v{wXS}, v36\nv_mul_f32 v{wXS}, v{wXS}, v38")
A(f"s_add_u32 {sTAG}, {sTAG}, {TAGC:#x}")
A(f"v_mov_b32 v{wD+9}, {sTAG}\nv_mov_b32 v{wD+11}, {sTAG}")
if OPT["abl"]: STAMP(7)
if STAMPS == 3: STAMP(12)
A("s_waitcnt lgkmcnt(0)\ns_barrier")
if OPT["abl"]: STAMP(10)
unit_go()
A(f"v_fma_f32 v32, v{wXS}, v{wD+4}, v{wD}")
pack4(32, wD+8, wD+10, 33)
setexec(0x11111111, 0)
A(f"buffer_store_dwordx4 v[{wD+8}:{wD+11}], v39, {RW}, s53 offen sc1")
fullexec()
STAMP(14)
if OPT["diag"]:
    A("s_waitcnt vmcnt(0)"); STAMP(13)
if AH == 8: A("s_barrier")
wq_dma()
A("s_branch L_B")
A.seg(2)
A.label("L_nA")
wq_setup(6)
A("s_waitcnt lgkmcnt(0)")
STAMP(1)
if OPT["wqpf"] == 22:
    sk = L("nh0")
    A(f"s_cmp_lt_u32 s3, 256\ns_cbranch_scc1 {sk}")
wq_dma()
if OPT["wqpf"] == 22: A.label(sk)
MBW = False
MBN = OPT["mbg"] == 3
if MBN:
    SX("s51", 0, ("s7", 6), ("s3", 3, 0, 0))
    A("s_mul_i32 s51, s51, 6144\ns_lshl_b32 s42, s3, 4")
    SX("s40", 2048, ("s58", 0, 3, 8)); A("s_add_u32 s51, s51, s40")
    c_setup()
    A(f"buffer_load_dword v{wC}, v{T2}, {RE}, s46 offen {SNT}")
    if OPT["mbwait"] >= 0: A(f"s_waitcnt vmcnt({OPT['mbwait']})")
    else: A("s_barrier")
    for j, o in enumerate((0, 128, 2048, 2048+128)):
        A(f"s_add_u32 m0, s42, {PB + j*8192 - o}")
        A(f"buffer_load_dwordx4 v{wM}, {RC}, s51 offen offset:{o} {NT} lds")
cont(6)
w_common()
tr_setup()
A("s_waitcnt lgkmcnt(0)")
A(f"s_add_u32 {sTAG}, {sTAG}, {TAGC:#x}")
A.label("L_B")
if MBW:
    A(f"v_mul_u32_u24 v{wM}, 6144, v{T0}\nv_add_u32 v{wM}, v{wM}, v{T1}")
    srd(RC, 3145728)
    SX("s96", 0, ("s7", 6), ("s3", 3))
    A("s_mul_i32 s96, s96, 6144")
    SX("s40", 2048, ("s58", 8)); A("s_add_u32 s96, s96, s40")
    SX("s97", MGT, ("s58", 13), ("s3", 0, 2, 10), ("s46", 0))
    SX("s40", 0, ("s58", 2, 0, 3), ("s7", 0))
    A("s_cmp_eq_u32 s40, 16\ns_cselect_b32 s98, 1.0, 0")
    VX(122, 32, 0, (5, 1, 12), (4, 1, 6), (2, 2, 4))
srd(RF, 2048)
SX("s47", 0, ("s4", 19), ("s43", 10), ("s46", 0))
wRW, wRR, wOF, wTA = 14, 15, 72, 108
SX("s40", RED, ("s3", 9)); VX(wRW, 32, "s40", (0, 6, 2))
SX("s40", RED, ("s3", 8)); VX(wRR, 32, "s40", (0, 6, 2))
VX(wOF, 32, 0, (0, 3, 7), (3, 1, 6), (4, 2, 4))
SX("s53", H1G, ("s43", 6))
VX(T3, 32, 0, (0, 2, 12))
A("s_xor_b32 s57, s6, 1")
SX("s57", H1G + 4, ("s57", 14), ("s3", 7))
wQA = 73; wQD = 76
VX(wQA, 32, 0, (5, 1, 12), (0, 5, 2))
SX("s56", QG, ("s4", 13), ("s5", 8), ("s3", 7))
A(f"v_add_u32 v{wTA}, s48, v{wTR}")
for t in range(1, 4):
    A(f"v_xor_b32 v{wTA+t}, {t*32:#x}, v{wTA}")
A(f"v_mov_b32 v{wQD+1}, {sTAG}\nv_mov_b32 v{wQD+3}, {sTAG}")
wGA, wCB, wXA, wXAD = 74, 75, 80, 81
tE, tOUT, tBP, tOF, tL16 = 84, 114, 115, 72, 116
SX("s59", Y6, ("s5", 15), ("s4", 12))
A("s_cmp_eq_u32 s3, 7\ns_cselect_b32 s40, 0, -1")
A("v_mov_b32 v118, s40\nv_mov_b32 v119, s40\nv_lshlrev_b32 v117, 3, v0")
SX("s41", 0, ("s3", 9), ("s59", 0))
VX(T1, 32, 0, (0, 4, 6), (4, 2, 4))
SX("s51", OG, ("s4", 14), ("s43", 5))
SX("s54", SG, ("s4", 9), ("s43", 7, 0, 7))
A(f"v_lshlrev_b32 v{T0}, 2, v1\nv_xor_b32 v{T0}, v0, v{T0}\nv_and_b32 v{T0}, 7, v{T0}\nv_lshlrev_b32 v{T0}, 3, v{T0}")
A(f"v_lshrrev_b32 v32, 5, v0\nv_lshl_or_b32 v{T0}, v32, 6, v{T0}")
VX(wXAD, 32, 0, (5, 1, 6), (2, 2, 4), (4, 1, 3))
SX("s60", X4, ("s7", 11), ("s3", 10), ("s6", 14), ("s4", 7))
A(f"s_add_u32 s52, s60, {Y4-X4}")
A("v_and_b32 v32, 1, v0\nv_lshlrev_b32 v32, 4, v32\nv_mov_b32 v33, 0x3f80\nv_lshlrev_b32 v32, v32, v33")
A("v_lshrrev_b32 v33, 2, v2\nv_sub_u32 v33, v1, v33\nv_bfe_u32 v34, v0, 1, 1\nv_lshl_or_b32 v33, v33, 1, v34")
for r in range(2):
    A(f"v_cmp_eq_u32 vcc, {r}, v33")
    A(f"v_cndmask_b32 v{tE+r}, 0, v32, vcc")
    A(f"v_mov_b32 v{tE+6+r}, v{tE+r}")
for r in (2, 3, 4, 5):
    A(f"v_mov_b32 v{tE+r}, 0")
VX(38, 33, 0, (0, 1, 3), (5, 1, 1), (4, 1, 2))
SX("s40", 0, ("s4", 0, 2, 4)); A(f"v_add_u32 v{tOUT}, s40, v38")
SX("s40", 0, ("s4", 2, 0, 7)); A(f"v_lshl_add_u32 v{tBP}, v{tOUT}, 1, s40")
SX("s62", 0, ("s4", 2, 0, 10), ("s5", 6))
A(f"v_lshlrev_b32 v{tL16}, 4, v0")
SX("s49", X4, ("s5", 10))
A("s_add_u32 s50, s49, 16384")
SX("s55", ST5, ("s4", 8), ("s7", 5), ("s6", 3))
VX(113, 33, 0, (5, 1, 4), (4, 1, 2))
SX("s61", MGT, ("s7", 12), ("s3", 11))
SX("s40", MGT + 3*32768, ("s5", 11))
A("s_cmp_eq_u32 s3, 2\ns_cselect_b32 s61, s40, s61\ns_cselect_b32 s40, 0, 0x10000\ns_add_u32 s63, s61, s40")
VX(120, 33, 0, (5, 1, 10), (0, 5, 1))
SX("s42", 0, ("s7", 7), ("s3", 6))
A(f"v_mov_b32 v{wXA}, 0")
def blk_frags(off):
    for t in range(4):
        for h in range(2):
            r = wWF + 4*t + 2*h
            A(f"ds_read_b64_tr_b16 v[{r}:{r+1}], v{wTA+t} offset:{off + h*2048}")
def h1_loads():
    tagged_loads(16, wOF, "s53")
    A(f"buffer_load_dword v33, v{T3}, {RW}, s57 offen sc1")
if MBN:
    VX(39, 32, 0, (5, 1, 12), (4, 1, 6), (2, 2, 4))
    sk = L("nmb")
    A(f"s_cmp_lt_u32 s4, 4\ns_cbranch_scc1 {sk}")
    SX("s96", MGT, ("s58", 0, 3, 13), ("s3", 2, 0, 16), ("s3", 0, 2, 10), ("s46", 0))
    SX("s40", 0, ("s58", 2, 1, 3), ("s3", 2, 0, 4), ("s7", 0))
    A("s_cmp_eq_u32 s40, 16\ns_cselect_b32 s97, 1.0, 0")
    SX("s98", PB, ("s3", 2, 0, 14))
    silu_operand(4)
    A.label(sk)
def mb_blk(early):
    sk = L("nmc")
    A(f"s_cmp_lt_u32 s4, 4\ns_cbranch_scc1 {sk}")
    VX(39, 32, 0, (5, 1, 12), (4, 1, 6), (2, 2, 4))
    unit_pre("s97", "s97", "s98")
    A(f"v_mov_b32 v{wD+9}, {sTAG}\nv_mov_b32 v{wD+11}, {sTAG}")
    if early: A("s_waitcnt vmcnt(3) lgkmcnt(0)\ns_barrier")
    unit_go()
    A("v_cmp_gt_u32 vcc, 32, v0")
    A(f"v_cndmask_b32 v32, v{wD+4}, v{wD}, vcc")
    pack4(32, wD+8, wD+10, 34)
    setexec(0x11111111, 0x11111111)
    A(f"buffer_store_dwordx4 v[{wD+8}:{wD+11}], v39, {RW}, s96 offen sc1")
    fullexec()
    STAMP(6)
    A.label(sk)
A(f"s_waitcnt vmcnt({OPT['h1at']})")
h1_loads()
if OPT["mbearly"]: mb_blk(True)
A("s_waitcnt vmcnt(3)")
blk_frags(WQL)
STAMP(3)
if OPT["abl"] and "toq" not in OPT["abl"]: A("s_branch L_exit")
if OPT["mbearly"]:
    sk = L("nw0")
    A(f"s_cmp_ge_u32 s4, 4\ns_cbranch_scc1 {sk}")
    A("s_waitcnt vmcnt(0)")
    A.label(sk)
poll(h1_loads, lambda: tagged_chk([16], 33, 33), first_issued=True, first_wait=OPT["mbearly"], sleep=OPT["s2"])
STAMP(4)
if OPT["diag"]:
    A(f"s_waitcnt lgkmcnt(0)\ns_mul_i32 s40, {sCNT}, 10\ns_add_u32 s88, s64, s40")
tagged_pack(16)
A("s_waitcnt lgkmcnt(0)")
def blk_mfma(op):
    for t in range(4):
        mfma(wD + 4*t, op, wWF + 4*t, None)
def blk_reduce():
    A(f"v_permlane16_swap_b32 v{wD}, v{wD+4}\nv_permlane16_swap_b32 v{wD+8}, v{wD+12}")
    A(f"v_add_f32 v{wD}, v{wD}, v{wD+4}\nv_add_f32 v{wD+8}, v{wD+8}, v{wD+12}")
    A(f"ds_write2st64_b32 v{wRW}, v{wD}, v{wD+8} offset0:0 offset1:1")
    A("s_waitcnt lgkmcnt(0)\ns_barrier")
def blk_final():
    for i in range(4):
        A(f"ds_read2st64_b32 v[{32+2*i}:{33+2*i}], v{wRR} offset0:{4*i} offset1:{4*i+2}")
    A("s_waitcnt lgkmcnt(0)")
    A("v_add_f32 v32, v32, v33\nv_add_f32 v34, v34, v35\nv_add_f32 v36, v36, v37\nv_add_f32 v38, v38, v39")
    A("v_add_f32 v32, v32, v34\nv_add_f32 v36, v36, v38\nv_add_f32 v32, v32, v36")
blk_mfma(16)
rowsum([wD, wD+4, wD+8, wD+12])
blk_reduce()
sk = L("nq")
A(f"s_cmp_ge_u32 s3, 2\ns_cbranch_scc1 {sk}")
blk_final()
pack4(32, wQD, wQD+2, 33)
setexec(0x11111111, 0x11111111)
A(f"buffer_store_dwordx4 v[{wQD}:{wQD+3}], v{wQA}, {RW}, s56 offen")
fullexec()
A.label(sk)
STAMP(5)
if OPT["abl"]: A("s_branch L_exit")
if not OPT["mbearly"]: mb_blk(False)
A("s_barrier")
def o_loads():
    A(f"buffer_load_dwordx4 v[104:107], v{T1}, {RW}, s51 offen sc1")
def mc_loads():
    tagged_loads(16, wOF, "s61"); tagged_loads(24, wOF, "s63")
def wo_dma():
    A(f"s_add_u32 m0, s48, {WOL}")
    for u in range(4):
        if u: A(f"s_add_u32 s47, s47, {8*1024-1024}")
        A(f"buffer_load_dwordx4 v{wO}, {RB}, s47 offen offset:{u*1024} {NT} lds")
if MBW:
    SX("s40", PB, ("s3", 10)); A("s_mov_b32 m0, s40")
    A(f"buffer_load_dwordx4 v{wM}, {RC}, s96 offen {NT} lds")
    A(f"s_add_u32 m0, s40, {8192-128}")
    A(f"buffer_load_dwordx4 v{wM}, {RC}, s96 offen offset:128 {NT} lds")
sk = L("nc0")
A(f"s_cmp_ge_u32 s3, 3\ns_cbranch_scc1 {sk}")
MCE = not MBW and (not MBN or OPT['mbearly'])
if MCE: mc_loads()
A(f"s_cmp_lg_u32 s58, 0\ns_cbranch_scc1 {sk}")
A(f"buffer_load_short_d16_hi v{wXA}, v120, {RD}, s42 offen")
A.label(sk)
A(f"buffer_store_dwordx2 v[118:119], v117, {RW}, s41 offen sc1")
if OPT["ltouch"]: o_loads()
WOE = MBW and OPT["wo_mb"]
if MBW:
    if WOE:
        A("s_barrier"); wo_dma()
    A(f"ds_read2_b64 v[{wXO}:{wXO+3}], v83 offset0:0 offset1:4\nds_read2_b64 v[{wXO+4}:{wXO+7}], v83 offset0:8 offset1:12")
    unit_pre("s98", "s98", PB)
    A(f"v_mov_b32 v{wD+9}, {sTAG}\nv_mov_b32 v{wD+11}, {sTAG}")
    A(f"s_waitcnt vmcnt({6 if WOE else 2}) lgkmcnt(0)\ns_barrier")
    sk = L("nmw")
    A(f"s_cmp_lt_u32 s3, 4\ns_cbranch_scc1 {sk}")
    unit_go()
    A("v_cmp_gt_u32 vcc, 32, v0")
    A(f"v_cndmask_b32 v32, v{wD+4}, v{wD}, vcc")
    pack4(32, wD+8, wD+10, 33)
    setexec(0x11111111, 0x11111111)
    A(f"buffer_store_dwordx4 v[{wD+8}:{wD+11}], v122, {RW}, s97 offen sc1")
    fullexec()
    STAMP(6)
    A.label(sk)
if OPT["gtrg"]:
    A("s_cmp_lg_u32 s3, 3\ns_cbranch_scc1 L_trgd")
    if OPT["gmask"] == 7:
        VX(39, 32, 0, (0, 3, 7)); A(f"s_movk_i32 s40, {TRG}")
    else:
        VX(39, 32, 0, (0, 2, 7)); A(f"s_movk_i32 s40, {TRG + 512}")
    A(f"s_mov_b32 {sCNT}, 0")
    A.label("L_trg")
    A(f"buffer_load_dword v33, v39, {RW}, s40 offen sc1")
    A("s_waitcnt vmcnt(0)")
    A(f"v_cmp_ne_u32 vcc, {sTAG}, v33")
    A("s_cbranch_vccz L_trgd")
    A(f"s_sleep 2\ns_add_u32 {sCNT}, {sCNT}, 1\ns_cmp_lt_u32 {sCNT}, {OPT['trgmax']}\ns_cbranch_scc1 L_trg")
    A.label("L_trgd")
    A("s_barrier")
if not WOE: wo_dma()
sk = L("nc1")
A(f"s_cmp_ge_u32 s3, 3\ns_cbranch_scc1 {sk}")
if not MCE: A("s_waitcnt vmcnt(1)")
poll(mc_loads, lambda: tagged_chk([16, 24], 33), first_issued=MCE, first_wait=4, sleep=2)
tagged_pack(16); tagged_pack(24)
for i in range(2):
    for t in range(2):
        mfma(wD + 8*i + 4*t, 16 + 8*i, tE + 4*t, None)
rowsum([wD, wD+4, wD+8, wD+12])
A(f"v_permlane16_swap_b32 v{wD}, v{wD+4}\nv_permlane16_swap_b32 v{wD+8}, v{wD+12}")
A(f"v_add_f32 v{wGA}, v{wD}, v{wD+4}\nv_add_f32 v{wCB}, v{wD+8}, v{wD+12}")
STAMP(2)
A.label(sk)
A("s_waitcnt vmcnt(0)")
blk_frags(WOL)
STAMP(7)
wF = 100
sg_load = lambda: A(f"buffer_load_dwordx2 v[16:17], v{T0}, {RW}, s54 offen sc1")
await_any(sg_load, lambda: A("v_cmp_o_f32 vcc, v17, v17"), OPT["s1"])
poll(sg_load, lambda: A("v_cmp_u_f32 vcc, v17, v17"), first_issued=True, sleep=2*OPT["s2"])
o_loads()
A(f"v_max_f32_dpp v18, v16, v16 quad_perm:[1,0,3,2] {DPPM}")
A(f"v_max_f32_dpp v18, v18, v18 quad_perm:[2,3,0,1] {DPPM}")
A(f"v_max_f32_dpp v18, v18, v18 row_half_mirror {DPPM}")
A("v_sub_f32 v16, v16, v18\nv_exp_f32 v16, v16\nv_mul_f32 v17, v16, v17")
for m in ("quad_perm:[1,0,3,2]", "quad_perm:[2,3,0,1]", "row_half_mirror"):
    A(f"v_add_f32_dpp v17, v17, v17 {m} {DPPM}")
A(f"v_rcp_f32 v17, v17\nv_mul_f32 v{wF}, v16, v17")
STAMP(8)
poll(o_loads, lambda: chk_empty4(104, 33), first_issued=True, first_wait=0)
STAMP(9)
A("s_waitcnt lgkmcnt(0)")
blk_mfma(104)
for t in range(4):
    A(f"v_mul_f32_dpp v{wD+4*t}, v{wF}, v{wD+4*t} row_newbcast:0 {DPPM}")
for r in range(1, 4):
    for t in range(4):
        A(f"v_fmac_f32_dpp v{wD+4*t}, v{wF}, v{wD+4*t+r} row_newbcast:{r} {DPPM}")
blk_reduce()
A("s_cmp_gt_u32 s3, 2\ns_cbranch_scc1 L_exit")
A("s_cmp_eq_u32 s3, 2\ns_cbranch_scc1 L_fin")
blk_final()
A(f"v_fma_f32 v32, v32, v{wGA}, v{wXA}")
A(f"v_mul_f32 v36, v32, v{wCB}")
A(f"v_mov_b32_dpp v33, v32 quad_perm:[1,1,3,3] {DPPM}")
A(f"v_mov_b32_dpp v37, v36 quad_perm:[1,1,3,3] {DPPM}")
A("v_cvt_pk_bf16_f32 v34, v32, v33\nv_cvt_pk_bf16_f32 v38, v36, v37")
A(f"v_mov_b32_dpp v35, v34 quad_perm:[2,2,2,2] {DPPM}")
A(f"v_mov_b32_dpp v39, v38 quad_perm:[2,2,2,2] {DPPM}")
setexec(0x11111111, 0x11111111)
A(f"buffer_store_dwordx2 v[38:39], v{wXAD}, {RW}, s52 offen sc1")
A(f"buffer_store_dwordx2 v[34:35], v{wXAD}, {RW}, s60 offen sc1")
STAMP(10)
A("s_branch L_exit")
A.label("L_fin")
def x4_loads():
    A(f"buffer_load_dwordx4 v[16:19], v{tOF}, {RW}, s49 offen sc1")
    A(f"buffer_load_dwordx4 v[20:23], v{tOF}, {RW}, s50 offen sc1")
def x4_chk():
    A("v_max3_u32 v33, v16, v17, v18\nv_max3_u32 v34, v19, v20, v21\nv_max3_u32 v33, v33, v22, v23\nv_max_u32 v33, v33, v34\nv_cmp_eq_u32 vcc, -1, v33")
poll(x4_loads, x4_chk)
STAMP(11)
for hp in range(2):
    for t in range(2):
        mfma(wD + 4*t, 16 + 4*hp, tE + 4*t, None if hp == 0 else wD + 4*t)
rowsum([wD, wD+4])
A(f"v_permlane16_swap_b32 v{wD}, v{wD+4}")
A(f"v_add_f32 v42, v{wD}, v{wD+4}")
A("v_mov_b32 v43, v42\nv_mul_f32 v44, v42, v42")
A("v_permlane16_swap_b32 v43, v44")
A("v_add_f32 v43, v43, v44")
for m in ("quad_perm:[1,0,3,2]", "quad_perm:[2,3,0,1]", "row_half_mirror", "row_mirror"):
    A(f"v_add_f32_dpp v43, v43, v43 {m} {DPPM}")
setexec(0x00010001, 0x00010001)
A(f"buffer_store_dword v43, v113, {RW}, s55 offen")
fullexec()
STAMP(12)
A(f"ds_bpermute_b32 v42, v{tBP}, v42\nds_bpermute_b32 v{wGA}, v{tBP}, v{wGA}")
def y6_loads():
    for i in range(4):
        A(f"buffer_load_dwordx4 v[{16+4*i}:{19+4*i}], v{tL16}, {RW}, s59 offen offset:{1024*i} sc1")
def y6_chk():
    for r in range(4):
        A(f"v_add_f32 v{16+r}, v{16+r}, v{20+r}\nv_add_f32 v{24+r}, v{24+r}, v{28+r}")
    for r in range(4):
        A(f"v_add_f32 v{16+r}, v{16+r}, v{24+r}")
    A("v_permlane32_swap_b32 v16, v17\nv_permlane32_swap_b32 v18, v19")
    A("v_add_f32 v16, v16, v17\nv_add_f32 v18, v18, v19")
    A("v_permlane16_swap_b32 v16, v18")
    A("v_add_f32 v16, v16, v18")
    A("v_cmp_u_f32 vcc, v16, v16")
await_any(lambda: A(f"buffer_load_dword v16, v{tL16}, {RW}, s59 offen sc1"), lambda: A("v_cmp_o_f32 vcc, v16, v16"), 2)
poll(y6_loads, y6_chk)
STAMP(13)
for m in ("row_ror:8", "row_ror:4", "row_ror:2"):
    A(f"v_add_f32_dpp v16, v16, v16 {m} {DPPM}")
A("s_waitcnt lgkmcnt(0)")
A(f"v_fma_f32 v16, v16, v{wGA}, v42")
A("v_cvt_pk_bf16_f32 v16, v16, v16")
setexec(0x00030003, 0x00030003)
A(f"buffer_store_short v16, v{tOUT}, {RF}, s62 offen")
A("s_cmp_lg_u32 s2, 128\ns_cbranch_scc1 L_exit")
A(f"s_sub_u32 s40, {sTAG}, {TAGC-1:#x}")
A("v_mov_b32 v17, s40\nv_mov_b32 v18, 0")
A("s_mov_b64 exec, 1")
A(f"buffer_store_dword v17, v18, {RW}, 0 offen sc1")

A("s_branch L_exit")
A.seg(40)
A.label("L_exit")
if STAMPS == 1:
    STAMP(15)
    A("s_waitcnt lgkmcnt(0)")
    A("s_mov_b64 exec, 1")
    SX("s40", DBG, ("s2", 9), ("s3", 6))
    A("v_mov_b32 v0, 0")
    for q in range(4):
        for i in range(4):
            A(f"v_mov_b32 v{4+4*q+i}, s{64+2*(4*q+i)}")
        A(f"buffer_store_dwordx4 v[{4+4*q}:{7+4*q}], v0, {RW}, s40 offen offset:{16*q}")
if STAMPS == 3:
    STAMP(15)
    A("s_waitcnt lgkmcnt(0)")
    SX("s40", 0, ("s2", 3), ("s3", 0))
    A(f"s_cmp_lg_u32 s40, {OPT['dwg']*8 + OPT['dwv']}\ns_cbranch_scc1 L_end")
    A(f"s_sub_u32 s40, s{64+2*OPT['db']}, s{64+2*OPT['da']}")
    A(f"s_mul_i32 s40, s40, {OPT['dm']}")
    A("s_min_u32 s40, s40, 30000")
    A.label("L_spin")
    A("s_memrealtime s[42:43]\ns_waitcnt lgkmcnt(0)\ns_sub_u32 s41, s42, s94\ns_cmp_lt_u32 s41, s40\ns_cbranch_scc1 L_spin")
if STAMPS == 2:
    STAMP(15)
    A("s_load_dwordx2 s[32:33], s[0:1], 96")
    A("s_mov_b32 s34, 256\ns_mov_b32 s35, 0x00020000")
    A("s_waitcnt lgkmcnt(0)")
    fullexec()
    A("v_mov_b32 v4, 0\nv_mbcnt_lo_u32_b32 v5, -1, 0\nv_lshlrev_b32 v5, 2, v5")
    A("s_cmp_ge_u32 s2, 128\ns_cbranch_scc1 L_dw")
    A("s_cmp_lg_u32 s3, 0\ns_cbranch_scc1 L_end")
    A("s_not_b32 s40, s64\nv_writelane_b32 v4, s40, 0")
    for i, st in enumerate([9, 2, 5, 7, 10, 11, 8]):
        A(f"v_writelane_b32 v4, s{64+2*st}, {i+1}")
    A("s_branch L_dd")
    A.label("L_dw")
    A("s_cmp_lg_u32 s3, 2\ns_cbranch_scc1 L_end")
    for i, st in enumerate([0, 3, 4, 5, 7, 9, 11, 15]):
        A(f"v_writelane_b32 v4, s{64+2*st}, {i+8}")
    A.label("L_dd")
    A("s_mov_b64 exec, 0xffff")
    A("buffer_atomic_umax v4, v5, s[32:35], 0 offen")
A.label("L_end")
A("s_endpgm")
A.label("L_codeend")
A.raw(f".fill (16384 - (L_codeend - {NAME}_kernel)) / 4, 4, 0xbf810000")
A.raw(f""".section .rodata,"a"
.p2align 6
.amdhsa_kernel {NAME}_kernel
  .amdhsa_next_free_vgpr 152
  .amdhsa_next_free_sgpr 100
  .amdhsa_accum_offset 152
  .amdhsa_group_segment_fixed_size 0
  .amdhsa_kernarg_size 112
  .amdhsa_user_sgpr_count 2
  .amdhsa_user_sgpr_kernarg_segment_ptr 1
  .amdhsa_system_sgpr_workgroup_id_x 1
  .amdhsa_float_denorm_mode_32 3
.end_amdhsa_kernel""")
sys.stdout.write(A.text())
sys.stderr.write(f"instrs={A.ninstr} nops={A.nops}\n")
```

```python
import sys, math, struct
sys.path.insert(0, "work")
from asmlib import Asm

NAME = "adaLN_cond__sliding_block_cached__glu_gated_reglu__decode"
OPT = dict(stamps=0, nt="nt", limit=20000, refresh=255, psleep=0, pf=4, pfnt="", smallnt="", slow=0, gtrg=0, gw=7, gmask=7, fpf=0, wo_after_c=0, fpfbar=1, fpfl="", uslocal=1, qn=4, trg=0, mb_at="kv", touch=0, ltouch=1, ahold=4, wqpf=0, wqpfl="", ehold=0, depth=0, ffn_first=0, ser=1, obar=1, gu_b1=0, dn_late=0, dn_p=0, diag=0, rot=7, vt=1, wfirst=3, tok=1, gufirst=1, mfb1=1, mbearly=1, ftouch=0, ftouch2=0, mbg=3, mbwait=-1, g_b1=0, wo_mb=1, h1at=1, depth_until=16, qpipe=1, s1=6, s2=1, sent=1, trgmax=24, dwg=10, dwv=1, da=0, db=15, dm=20, kvbar=1, abl="")
for a in sys.argv[1:]:
    k, v = a.split("=")
    OPT[k] = int(v) if v.lstrip("-").isdigit() else v
STAMPS = OPT["stamps"]; NT = OPT["nt"] if OPT["nt"] != "-" else ""
LIMIT = OPT["limit"]; REFRESH = OPT["refresh"]; SNT = OPT["smallnt"]

def f32(x): return "0x%08x" % struct.unpack("<I", struct.pack("<f", x))[0]

TRG = 0x1000; TOK = 0x4000; H1G = 0x8000; QG = 0x10000; MGT = 0x20000
CLR = 0x100000
OG = CLR; MG = CLR + 0x20000; X4 = CLR + 0x30000; Y4 = CLR + 0x38000
G5 = CLR + 0x40000; SG = CLR + 0x5C000; ST5 = CLR + 0x5D000; US5 = CLR + 0x60000
Y6 = 0x180000; DBG = 0x400000
WS_BYTES = 0x800000
TAGC = 0x9E3779B9
VREG = 65536; PA = 131072; XL = 147456; QL = XL + 1024; PL = QL + 2048; MISC = PL + 2048
FG = 0; FD = 32768; YL0 = 131072
WQL = 0; WOL = 32768; PB = 65536; RED = XL + 1024
LDS_BYTES = MISC + 256
C1 = 128 ** -0.5 * math.log2(math.e)

A = Asm()
hdr = open(f"cdna_kernels/{NAME}.s.ref").read().split("\n")
for ln in hdr:
    if ln.startswith("; @launch"):
        A.raw(f"; @launch grid=(256,1,1) block=(512,1,1) lds={LDS_BYTES}")
        break
    A.raw(ln)
A.raw('.amdgcn_target "amdgcn-amd-amdhsa--gfx950"')
A.raw(f".text\n.globl {NAME}_kernel\n.p2align 8\n.type {NAME}_kernel,@function\n{NAME}_kernel:")

RA, RB, RW, RC, RD, RE, RF = "s[8:11]", "s[12:15]", "s[16:19]", "s[20:23]", "s[24:27]", "s[28:31]", "s[32:35]"
sTAG, sCNT, sT = "s36", "s37", "s45"
def STAMP(n):
    if STAMPS:
        A(f"s_memrealtime s[{64+2*n}:{65+2*n}]")
DPPM = "row_mask:0xf bank_mask:0xf"
lbl = [0]
def L(p):
    lbl[0] += 1
    return f"L_{p}_{lbl[0]}"
def srd(r, nbytes):
    b = int(r[2:r.index(":")])
    A((f"s_movk_i32 s{b+2}, {nbytes}" if nbytes < 32768 else f"s_mov_b32 s{b+2}, {nbytes}") + f"\ns_mov_b32 s{b+3}, s11")
def kload(r, off):
    b = int(r[2:r.index(":")])
    A(f"s_load_dwordx2 s[{b}:{b+1}], s[0:1], {off}")

def SX(dst, const, *terms):
    first = True
    for t in terms:
        src, rs, w, ls = (t[0], 0, 0, t[1]) if len(t) == 2 else t
        d = dst if first else sT
        cur = src
        if w:
            if rs == 0: A(f"s_and_b32 {d}, {cur}, {(1<<w)-1}")
            else: A(f"s_bfe_u32 {d}, {cur}, {(w<<16)|rs:#x}")
            cur = d
        elif rs:
            A(f"s_lshr_b32 {d}, {cur}, {rs}"); cur = d
        if first:
            if ls: A(f"s_lshl_b32 {d}, {cur}, {ls}")
            elif cur != d: A(f"s_mov_b32 {d}, {cur}")
        else:
            if 1 <= ls <= 4: A(f"s_lshl{ls}_add_u32 {dst}, {cur}, {dst}")
            else:
                if ls: A(f"s_lshl_b32 {sT}, {cur}, {ls}"); cur = sT
                A(f"s_add_u32 {dst}, {dst}, {cur}")
        first = False
    if const: A(f"s_add_u32 {dst}, {dst}, {const:#x}")
def VX(dst, tmp, add, *terms):
    first = True
    for rs, w, ls in terms:
        if rs == 4 and w == 2: cur = "v1"
        elif rs == 0 and w == 4: cur = "v2"
        elif rs == 0 and w == 6: cur = "v0"
        else:
            d = f"v{dst}" if first else f"v{tmp}"
            if rs + w == 6: A(f"v_lshrrev_b32 {d}, {rs}, v0")
            elif rs == 0: A(f"v_and_b32 {d}, {(1<<w)-1}, v0")
            else: A(f"v_bfe_u32 {d}, v0, {rs}, {w}")
            cur = d
        if first:
            if ls: A(f"v_lshlrev_b32 v{dst}, {ls}, {cur}")
            elif cur != f"v{dst}": A(f"v_mov_b32 v{dst}, {cur}")
        else:
            if ls: A(f"v_lshl_or_b32 v{dst}, {cur}, {ls}, v{dst}")
            else: A(f"v_or_b32 v{dst}, {cur}, v{dst}")
        first = False
    if add: A(f"v_add_u32 v{dst}, {add}, v{dst}")

def cont(n):
    t = L("c")
    A(f"s_branch {t}")
    A.seg(n); A.label(t)
def await_any(load, valid, sleep):
    if not OPT["sent"]: return
    top, done = L("aw"), L("awd")
    A(f"s_mov_b32 {sCNT}, 0")
    A.label(top)
    load()
    A("s_waitcnt vmcnt(0)")
    valid()
    A(f"s_cbranch_vccnz {done}")
    A(f"s_sleep {sleep}\ns_add_u32 {sCNT}, {sCNT}, 1\ns_cmp_lt_u32 {sCNT}, 64\ns_cbranch_scc1 {top}")
    A.label(done)
def poll(loads, check, first_issued=False, first_wait=0, sleep=0):
    top, done, chk = L("poll"), L("got"), L("chk")
    A(f"s_mov_b32 {sCNT}, 0")
    if first_issued:
        A(f"s_waitcnt vmcnt({first_wait})")
        A(f"s_branch {chk}")
    A.label(top)
    loads()
    A("s_waitcnt vmcnt(0)")
    if first_issued:
        A.label(chk)
    check()
    A(f"s_cbranch_vccz {done}")
    if sleep: A(f"s_sleep {sleep}")
    A(f"s_add_u32 {sCNT}, {sCNT}, 1")
    A(f"s_and_b32 {sT}, {sCNT}, {REFRESH}\ns_cbranch_scc1 {top}")
    A("buffer_wbl2 sc1")
    A(f"s_cmp_lt_u32 {sCNT}, {LIMIT}\ns_cbranch_scc1 {top}")
    A.label(done)
def chk_empty4(r, tmp):
    A(f"v_max3_u32 v{tmp}, v{r}, v{r+1}, v{r+2}\nv_max_u32 v{tmp}, v{tmp}, v{r+3}\nv_cmp_eq_u32 vcc, -1, v{tmp}")
def pack4(src, pk, pk2, tmp):
    A(f"v_mov_b32_dpp v{tmp}, v{src} quad_perm:[1,1,3,3] {DPPM}")
    A(f"v_cvt_pk_bf16_f32 v{pk}, v{src}, v{tmp}")
    A(f"v_mov_b32_dpp v{pk2}, v{pk} quad_perm:[2,2,2,2] {DPPM}")
def setexec(lo, hi):
    A(f"s_mov_b32 exec_lo, {lo:#x}\ns_mov_b32 exec_hi, {hi:#x}")
def fullexec():
    A("s_mov_b64 exec, -1")
def mfma(d, a, b, c):
    cc = "0" if c is None else f"v[{c}:{c+3}]"
    A(f"v_mfma_f32_16x16x32_bf16 v[{d}:{d+3}], v[{a}:{a+3}], v[{b}:{b+3}], {cc}")
def rowsum(ds):
    for d in ds: A(f"v_add_f32 v{d}, v{d}, v{d+1}\nv_add_f32 v{d+2}, v{d+2}, v{d+3}")
    for d in ds: A(f"v_add_f32 v{d}, v{d}, v{d+2}")
def code_prefetch(tmp, dst):
    sk = L("npf")
    A(f"s_cmp_lt_u32 s3, 6\ns_cbranch_scc1 {sk}")
    A("s_and_b32 s38, s38, 0xffffff00")
    A(f"v_lshlrev_b32 v{tmp}, 7, v0")
    A(f"s_and_b32 s40, s3, 1\ns_lshl_b32 s40, s40, 13")
    A(f"v_add_u32 v{tmp}, s40, v{tmp}")
    if not OPT["pf"]: A(f"v_mov_b32 v{tmp}, 0")
    A(f"global_load_dword v{dst}, v{tmp}, s[38:39] {OPT['pfnt']}")
    A.label(sk)

wM, wQ, wO, wTR, T0, T1, T2, T3, vPF = 3, 4, 5, 6, 7, 8, 9, 10, 11
wC = 12; wXS = 13; wX = 16; wXO = 24; wWF = 40; wD = 56
def swz_chunk(dst):
    A(f"v_lshlrev_b32 v{dst}, 1, v1\nv_xor_b32 v{dst}, v0, v{dst}\nv_and_b32 v{dst}, 7, v{dst}\nv_lshlrev_b32 v{dst}, 4, v{dst}")
def unit_dma(srdr, s0, s1, base):
    A(f"s_add_u32 m0, s42, {base}")
    A(f"buffer_load_dwordx4 v{wM}, {srdr}, {s0} offen {NT} lds")
    A(f"s_add_u32 m0, s42, {base+8192}")
    A(f"buffer_load_dwordx4 v{wM}, {srdr}, {s1} offen {NT} lds")
def tr_setup():
    VX(wTR, 32, 0, (2, 4, 7), (3, 2, 5), (0, 2, 3))
    SX("s40", XL, ("s3", 0, 2, 8))
    VX(82, 32, "s40", (0, 6, 2))
    VX(83, 32, "s40", (2, 1, 7), (4, 2, 3))
def silu_operand(cnt):
    A(f"s_waitcnt vmcnt({cnt})")
    A(f"v_lshlrev_b32 v32, 16, v{wC}\nv_and_b32 v33, 0xffff0000, v{wC}")
    A(f"v_mul_f32 v34, {f32(-math.log2(math.e))}, v32\nv_mul_f32 v35, {f32(-math.log2(math.e))}, v33")
    A("v_exp_f32 v34, v34\nv_exp_f32 v35, v35")
    A("v_add_f32 v34, 1.0, v34\nv_add_f32 v35, 1.0, v35")
    A("v_rcp_f32 v34, v34\nv_rcp_f32 v35, v35")
    A("v_mul_f32 v32, v32, v34\nv_mul_f32 v33, v33, v35")
    A("v_cvt_pk_bf16_f32 v32, v32, v33")
    A("ds_write_b32 v82, v32")
    A("s_waitcnt lgkmcnt(0)")
    A(f"ds_read2_b64 v[{wXO}:{wXO+3}], v83 offset0:0 offset1:4\nds_read2_b64 v[{wXO+4}:{wXO+7}], v83 offset0:8 offset1:12")
def unit_pre(s_c0, s_c1, base):
    SX("s40", 0, ("s3", 0, 2, 5)); A(f"v_xor_b32 v112, s40, v{wTR}\nv_add_u32 v112, {base}, v112")
    for i in range(4):
        A(f"v_mov_b32 v{wD+i}, {s_c0}\nv_mov_b32 v{wD+4+i}, {s_c1}")
def unit_go():
    if STAMPS: A("s_waitcnt lgkmcnt(0)")
    for k in range(2):
        for seg in range(2):
            for h in range(2):
                r = wWF + seg*8 + k*4 + h*2
                A(f"ds_read_b64_tr_b16 v[{r}:{r+1}], v112 offset:{seg*8192 + k*4096 + h*2048}")
    for k in range(2):
        for seg in range(2):
            A(f"s_waitcnt lgkmcnt({6 - 4*k - 2*seg})")
            mfma(wD + 4*seg, wXO + 4*k, wWF + seg*8 + k*4, wD + 4*seg)
def unit_mfma(s_c0, s_c1, base):
    unit_pre(s_c0, s_c1, base); unit_go()
def tagged_loads(r, va, so):
    A(f"buffer_load_dwordx4 v[{r}:{r+3}], v{va}, {RW}, {so} offen sc1")
    A(f"buffer_load_dwordx4 v[{r+4}:{r+7}], v{va}, {RW}, {so} offen offset:1024 sc1")
def tagged_chk(rs, tmp, extra=None):
    tags = [r + i for r in rs for i in (1, 3, 5, 7)] + ([extra] if extra else [])
    A(f"v_xor_b32 v{tmp}, {sTAG}, v{tags[-1]}")
    for t in tags[:-1]:
        A(f"v_bitop3_b32 v{tmp}, v{t}, {sTAG}, v{tmp} bitop3:0xbe")
    A(f"v_cmp_ne_u32 vcc, 0, v{tmp}")
def tagged_pack(r):
    A(f"v_mov_b32 v{r+1}, v{r+2}\nv_mov_b32 v{r+2}, v{r+4}\nv_mov_b32 v{r+3}, v{r+6}")
def tok_wait(va, so, r):
    def chk():
        A(f"v_xor_b32 v{r}, {sTAG}, v{r}")
        for i in (1, 2, 3): A(f"v_bitop3_b32 v{r}, v{r+i}, {sTAG}, v{r} bitop3:0xbe")
        A(f"v_cmp_ne_u32 vcc, 0, v{r}")
    poll(lambda: A(f"buffer_load_dwordx4 v[{r}:{r+3}], v{va}, {RW}, {so} offen sc1"), chk, sleep=2)
def sum8(dst, r):
    A(f"v_add_f32 v32, v{r}, v{r+1}\nv_add_f32 v33, v{r+2}, v{r+3}\nv_add_f32 v34, v{r+4}, v{r+5}\nv_add_f32 v35, v{r+6}, v{r+7}")
    A(f"v_add_f32 v32, v32, v33\nv_add_f32 v34, v34, v35\nv_add_f32 v{dst}, v32, v34")

STAMP(0)
A("s_cmp_ge_u32 s2, 256\ns_cbranch_scc1 L_end")
A("s_cmp_ge_u32 s2, 128\ns_cselect_b32 s40, 24, 8\ns_cselect_b32 s41, 0, 16")
A("s_load_dwordx2 s[8:9], s[0:1], s40")
kload(RC, 80)
A("s_load_dwordx2 s[24:25], s[0:1], s41")
kload(RE, 72); kload(RW, 104)
A("v_readfirstlane_b32 s3, v0")
A("s_getpc_b64 s[38:39]")
if OPT["pf"] == 4:
    A("s_and_b32 s38, s38, 0xffffff00")
    A(f"v_and_b32 v{vPF}, 0x1c0, v0\ns_lshl_b32 s40, s2, 7\ns_and_b32 s40, s40, 0x3c00\nv_lshl_or_b32 v{vPF}, v{vPF}, 1, s40")
    sk = L("npf")
    A(f"s_cmp_ge_u32 s2, 128\ns_cbranch_scc1 {sk}")
    A(f"global_load_dword v{vPF}, v{vPF}, s[38:39]")
    A.label(sk)
A("v_and_b32 v0, 63, v0")
A("s_mov_b32 s11, 0x00020000")
A("v_lshrrev_b32 v1, 4, v0\nv_and_b32 v2, 15, v0")
A(f"s_add_u32 s4, s2, {OPT['rot']}\ns_and_b32 s4, s4, 7\ns_bfe_u32 s6, s2, 0x10006\ns_bfe_u32 s7, s2, 0x30003")
A(f"v_lshlrev_b32 v{T3}, 1, v1\nv_xor_b32 v{T3}, v2, v{T3}\nv_lshlrev_b32 v{T3}, 4, v{T3}")
A("s_lshl1_add_u32 s58, s4, s6\ns_lshl_b32 s46, s7, 7\ns_mov_b32 s27, s11")
A(f"v_and_b32 v{T1}, 0x70, v{T3}\nv_lshrrev_b32 v{T0}, 3, v0")
srd(RC, 3145728); srd(RE, 2048)
A(f"v_mul_u32_u24 v{wM}, 6144, v{T0}\nv_add_u32 v{wM}, v{wM}, v{T1}")
if OPT["wfirst"]:
    A("s_cmp_lt_u32 s2, 128\ns_cbranch_scc1 L_KV")
    A.seg(OPT["wfirst"]); A.label("L_KV")
else:
    A("s_cmp_ge_u32 s2, 128\ns_cbranch_scc1 L_W")
def ids2():
    A("s_lshr_b32 s3, s3, 6\ns_bfe_u32 s5, s2, 0x40003")
    if STAMPS:
        for i in range(2, 16): A(f"s_mov_b32 s{64+2*i}, 0")
    srd(RW, WS_BYTES)

vE, vO, vQO = 120, 121, 122
vKA = 108
vQ = 14
vKF = 16
vVF = 48
vQF = 80
vS = 96
vP = 104
vOA = 108
vST = 114
vOAD, vSAD = 116, 117
A(f"v_lshl_or_b32 v{vE}, v1, 8, v{T3}\nv_xor_b32 v{vO}, 0x80, v{vE}")
A("s_lshl_b32 s43, s3, 7\ns_mov_b32 s10, 33554432\ns_mov_b32 s26, s10")
SX("s56", 6144*256, ("s6", 24), ("s4", 21), ("s7", 16), ("s43", 0))
A("s_add_u32 s57, s56, 4096\ns_mov_b32 m0, s43")
def kv_dma(u):
    r = RA if u < 8 else RD
    A(f"buffer_load_dwordx4 v{vE if u%2==0 else vO}, {r}, {'s56' if u%8 < 4 else 's57'} offen offset:{(u%4)*1024} {NT} lds")
if OPT["wqpf"]:
    kload(RF, 24)
    A("s_cmp_lt_u32 s4, 4\ns_cselect_b32 s34, 0x400000, 0\ns_mov_b32 s35, s11")
    A(f"v_and_b32 v{wQ}, {31 if OPT['wqpf'] == 1 else 15}, v0\nv_lshlrev_b32 v{wQ}, 13, v{wQ}")
    SX("s44", 0, ("s6", 21), ("s3", 12 if OPT["wqpf"] == 1 else 11), ("s4", 10), ("s46", 0))
A("s_waitcnt lgkmcnt(0)")
if OPT["wqpf"]: A(f"buffer_load_dword v16, v{wQ}, {RF}, s44 offen")
VT = OPT["vt"]
if VT:
    A(f"s_add_u32 m0, s43, {VREG}")
    kv_dma(8)
    A("s_mov_b32 m0, s43")
if OPT["slow"]: kv_dma(0)
if OPT["pf"] == 3:
    A("s_and_b32 s38, s38, 0xffffff00")
    SX("s40", 0, ("s2", 3, 4, 10), ("s3", 1))
    A("s_load_dword s99, s[38:39], s40")
A(f"s_load_dword {sTAG}, s[16:17], 0")
if OPT["slow"]: A("s_waitcnt vmcnt(0)")
def mb_issue():
    SX("s51", 0, ("s7", 6), ("s3", 3, 0, 0))
    A("s_mul_i32 s51, s51, 6144\ns_lshl_b32 s42, s3, 4")
    SX("s40", 2048, ("s58", 8)); A("s_add_u32 s51, s51, s40")
    A(f"s_add_u32 m0, s42, {PA}")
    A(f"buffer_load_dwordx4 v{wM}, {RC}, s51 offen {NT} lds")
    A(f"s_add_u32 m0, s42, {PA + 8192 - 128}")
    A(f"buffer_load_dwordx4 v{wM}, {RC}, s51 offen offset:128 {NT} lds")
    VX(T2, T3, 0, (5, 1, 10), (0, 5, 2))
    A(f"buffer_load_dword v{wC}, v{T2}, {RE}, s46 offen {SNT}")
for u in range(1 if OPT["slow"] else 0, 16):
    if u in (4, 12): A("s_add_u32 m0, m0, 4096")
    if u == 8:
        if OPT["mbg"] != 3: mb_issue()
        A(f"s_add_u32 m0, s43, {VREG}")
        if VT: continue
    if OPT["depth"] and u < OPT["depth_until"]: A(f"s_waitcnt vmcnt({OPT['depth']-1})")
    kv_dma(u)
cont(30)
ids2()
if STAMPS: A("s_mov_b32 s66, 0")
STAMP(2)
if OPT["abl"]:
    A("s_waitcnt vmcnt(0)")
    STAMP(4)
    A("s_branch L_exit")
GT = 0
A("s_waitcnt lgkmcnt(0)")
A(f"s_add_u32 {sTAG}, {sTAG}, {TAGC:#x}")
kload(RC, 48); kload(RD, 56); kload(RE, 64)
FF = OPT["ffn_first"]
if FF: FG = VREG; FD = VREG + 32768
wG, wDO, fMF = 124, 125, 123
A(f"v_mul_u32_u24 v{wG}, 3584, v{T0}\nv_add_u32 v{wG}, v{wG}, v{T1}\nv_lshl_or_b32 v{wDO}, v{T0}, 10, v{T1}")
A("s_cmp_lt_u32 s4, 7")
A("s_cselect_b32 s22, 1835008, 0\ns_cselect_b32 s26, 1835008, 0\ns_cselect_b32 s30, 1835008, 0")
SX("s63", 0, ("s4", 4), ("s5", 0))
SX("s49", 0, ("s63", 0, 2, 7), ("s3", 4))
A("s_mul_i32 s49, s49, 3584")
SX("s50", 0, ("s63", 2, 0, 7))
A(f"s_add_u32 s49, s49, s50\ns_add_u32 s50, s49, {8*3584-1024}")
SX("s51", 0, ("s63", 14), ("s3", 7))
A(f"s_add_u32 s52, s51, {8*1024-1024}")
A("s_lshl_b32 s42, s3, 11")
def g_dma():
    A(f"s_add_u32 m0, s42, {FG}")
    A(f"buffer_load_dwordx4 v{wG}, {RC}, s49 offen {NT} lds")
    A(f"buffer_load_dwordx4 v{wG}, {RC}, s50 offen offset:1024 {NT} lds")
def u_dma():
    A(f"s_add_u32 m0, s42, {FG+16384}")
    A(f"buffer_load_dwordx4 v{wG}, {RD}, s49 offen {NT} lds")
    A(f"buffer_load_dwordx4 v{wG}, {RD}, s50 offen offset:1024 {NT} lds")
def gu_dma():
    g_dma(); u_dma()
def dn_dma():
    A(f"s_add_u32 m0, s42, {FD}")
    A(f"buffer_load_dwordx4 v{wDO}, {RE}, s51 offen {NT} lds")
    A(f"buffer_load_dwordx4 v{wDO}, {RE}, s52 offen offset:1024 {NT} lds")
def ffn_dma():
    gu_dma(); dn_dma()
GB1 = OPT["gu_b1"] and OPT["ser"] and not FF
SX("s98", ST5, ("s4", 8))
SX("s96", G5, ("s63", 10))
A(f"s_add_u32 s97, s96, {US5-G5}")
if OPT["ftouch"]:
    A("v_mul_u32_u24 v118, 3584, v2\nv_lshlrev_b32 v119, 10, v2")
SX("s44", QG, ("s58", 12), ("s3", 10))
vQ = 100
A(f"v_lshlrev_b32 v{vQO}, 4, v0")
VX(fMF, T2, 0, (0, 3, 7), (3, 1, 6), (4, 2, 4))
SX("s59", MGT + 2*32768, ("s63", 0, 2, 13), ("s3", 0, 2, 11))
SX("s40", 0, ("s3", 2, 0, 15)); A("s_sub_u32 s59, s59, s40")
VX(T2, 0, 0, (0, 3, 1))
A(f"v_xor_b32 v{T2}, v1, v{T2}\nv_lshlrev_b32 v{T2}, 4, v{T2}\nv_lshl_or_b32 v{T2}, v2, 8, v{T2}")
A(f"v_add_u32 v{vKA}, s43, v{T2}")
for t in range(1, 4):
    A(f"v_xor_b32 v{vKA+t}, {t*64:#x}, v{vKA}")
vQW, vQR, vVR, vMX, vPW, vPR, vMW = 3, 4, 5, 6, 113, 13, 112
SX("s40", QL, ("s3", 5))
VX(vQW, T2, "s40", (1, 4, 7), (5, 1, 4), (0, 1, 3))
VX(vQR, T2, QL, (4, 2, 7), (0, 3, 4))
A(f"v_bfe_u32 v{T0}, v0, 2, 3\nv_xor_b32 v{T0}, s3, v{T0}")
VX(vVR, T2, VREG, (2, 4, 8), (0, 2, 3))
A(f"v_lshl_or_b32 v{vVR}, v{T0}, 5, v{vVR}")
VX(vMX, T2, MISC, (0, 2, 5))
A(f"s_lshl_b32 s40, s3, 2\nv_add_u32 v{vMW}, s40, v{vMX}")
VX(vPR, T2, PL, (4, 2, 6), (0, 2, 4))
A(f"s_lshl_b32 s40, s3, 8\nv_add_u32 v{vPW}, s40, v{vPR}")
VX(vOAD, T2, 0, (0, 2, 12), (4, 2, 4))
SX("s53", OG, ("s4", 14), ("s3", 1, 0, 10), ("s5", 6), ("s3", 0, 1, 3))
VX(vSAD, T2, 0, (0, 2, 7))
SX("s54", SG, ("s4", 9), ("s5", 3))
A(f"s_mov_b32 s55, {f32(C1)}")
fWF = 128 if FF else 84
fDF = 144 if FF else 64
def ffn_frag_addr(wr, ta, tr):
    VX(tr, 32, 0, (2, 4, 7), (3, 2, 5), (0, 2, 3))
    SX("s40", 0, ("s3", 0, 2, 5)); A(f"v_xor_b32 v{wr}, s40, v{tr}")
    SX("s40", FG, ("s3", 2, 0, 14)); A(f"v_add_u32 v{wr}, s40, v{wr}")
    A(f"s_add_u32 s40, s42, {FD}\nv_add_u32 v{ta}, s40, v{tr}")
    for t in range(1, 4):
        A(f"v_xor_b32 v{ta+t}, {t*32:#x}, v{ta}")
def w_frags(wr):
    for k in range(4):
        for h in range(2):
            r = fWF + 4*k + 2*h
            A(f"ds_read_b64_tr_b16 v[{r}:{r+1}], v{wr} offset:{k*4096 + h*2048}")
def d_frags(ta):
    for tau in range(4):
        A(f"ds_read_b64_tr_b16 v[{fDF+2*tau}:{fDF+2*tau+1}], v{ta+tau}")
A(f"s_waitcnt vmcnt({7 if VT else 8})")
for T in range(2):
    for t in range(4):
        r = vKF + (T*4+t)*4
        A(f"ds_read_b128 v[{r}:{r+3}], v{vKA+t} offset:{T*4096}")
sk = L("nqp"); skm = L("mbw")
if OPT["mbg"] == 3:
    A(f"s_cmp_lt_u32 s3, 4\ns_cbranch_scc1 {skm}")
    if OPT["tok"]:
        sk3 = L("ntv")
        A(f"s_cmp_lg_u32 s3, 4\ns_cbranch_scc1 {sk3}")
        A(f"v_lshlrev_b32 v80, 7, v0\ns_movk_i32 s41, {TOK}")
        tok_wait(80, "s41", 84)
        A.label(sk3)
    A(f"s_waitcnt vmcnt(0)\ns_branch {sk}")
    A.label(skm)
    A.mute = True
A("s_barrier")
A(f"s_cmp_lt_u32 s3, 4\ns_cbranch_scc1 {skm}")
SX("s40", XL, ("s3", 0, 2, 8))
VX(82, 80, "s40", (0, 6, 2))
VX(83, 80, "s40", (2, 1, 7), (4, 2, 3))
A(f"v_lshlrev_b32 v84, 16, v{wC}\nv_and_b32 v85, 0xffff0000, v{wC}")
A(f"v_mul_f32 v86, {f32(-math.log2(math.e))}, v84\nv_mul_f32 v87, {f32(-math.log2(math.e))}, v85")
A("v_exp_f32 v86, v86\nv_exp_f32 v87, v87\nv_add_f32 v86, 1.0, v86\nv_add_f32 v87, 1.0, v87")
A("v_rcp_f32 v86, v86\nv_rcp_f32 v87, v87\nv_mul_f32 v84, v84, v86\nv_mul_f32 v85, v85, v87")
A("v_cvt_pk_bf16_f32 v84, v84, v85\nds_write_b32 v82, v84")
A("ds_read2_b64 v[144:147], v83 offset0:0 offset1:4\nds_read2_b64 v[148:151], v83 offset0:8 offset1:12")
VX(81, 80, 0, (2, 4, 7), (3, 2, 5), (0, 2, 3))
SX("s40", 0, ("s3", 0, 2, 5)); A(f"v_xor_b32 v81, s40, v81\nv_add_u32 v81, {PA}, v81")
for k in range(2):
    for sg in range(2):
        for hh in range(2):
            r = 128 + sg*8 + k*4 + hh*2
            A(f"ds_read_b64_tr_b16 v[{r}:{r+1}], v81 offset:{sg*8192 + k*4096 + hh*2048}")
SX("s40", 0, ("s58", 2, 0, 3), ("s7", 0))
A("s_cmp_eq_u32 s40, 16\ns_cselect_b32 s41, 1.0, 0")
for i in range(8): A(f"v_mov_b32 v{88+i}, s41")
VX(80, 81, 0, (5, 1, 12), (4, 1, 6), (2, 2, 4))
SX("s41", MGT, ("s58", 13), ("s3", 0, 2, 10), ("s46", 0))
A(f"v_mov_b32 v97, {sTAG}\nv_mov_b32 v99, {sTAG}")
A("s_waitcnt lgkmcnt(0)")
for k in range(2):
    for sg in range(2):
        mfma(88 + 4*sg, 144 + 4*k, 128 + sg*8 + k*4, 88 + 4*sg)
A("v_cmp_gt_u32 vcc, 32, v0")
A("v_cndmask_b32 v84, v92, v88, vcc")
pack4(84, 96, 98, 85)
setexec(0x11111111, 0x11111111)
A(f"buffer_store_dwordx4 v[96:99], v80, {RW}, s41 offen sc1")
fullexec()
STAMP(9)
A(f"s_waitcnt vmcnt(1)\ns_branch {sk}")
A.label(skm)
A.mute = False
def q_load():
    A(f"buffer_load_dwordx4 v[{vQ}:{vQ+3}], v{vQO}, {RW}, s44 offen sc1")
def q_chk():
    A(f"v_xor_b32 v{T0}, {sTAG}, v{vQ+1}\nv_bitop3_b32 v{T0}, v{vQ+3}, {sTAG}, v{T0} bitop3:0xbe\nv_cmp_ne_u32 vcc, 0, v{T0}")
poll(q_load, q_chk, sleep=OPT['s2'])
STAMP(4)
A(f"v_mov_b32 v{vQ+1}, v{vQ+2}")
A(f"ds_write_b64 v{vQW}, v[{vQ}:{vQ+1}]")
A.label(sk)
A("s_waitcnt lgkmcnt(0)\ns_barrier")
STAMP(5)
for t in range(4):
    A(f"ds_read_b128 v[{vQF+4*t}:{vQF+4*t+3}], v{vQR} offset:{t*512}")
if GB1: gu_dma()
if OPT["g_b1"]: g_dma()
def f_touch(n):
    A("s_mov_b64 exec, 0xffff")
    if n & 1: A(f"buffer_load_dword v{vPF}, v118, {RC}, s49 offen")
    if n & 2: A(f"buffer_load_dword v{vPF}, v118, {RD}, s49 offen")
    if n & 4: A(f"buffer_load_dword v{vPF}, v119, {RE}, s51 offen")
    fullexec()
if OPT["ftouch"]: f_touch(OPT["ftouch"])
vMF = 128
def mf_loads():
    tagged_loads(vMF, fMF, "s59")
def l_touch(a, b, c):
    sk = L("nlt")
    A(f"s_cmp_lg_u32 s3, 7\ns_cbranch_scc1 {sk}")
    A(f"buffer_load_dwordx4 v[136:139], v{vQO}, {RW}, {a} offen sc1")
    A(f"buffer_load_dwordx4 v[136:139], v{vQO}, {RW}, {b} offen sc1")
    A(f"buffer_load_dword v136, v{vSAD}, {RW}, {c} offen sc1")
    A.label(sk)
if OPT["mfb1"]:
    mf_loads()
    l_touch("s96", "s97", "s98")
A("s_waitcnt lgkmcnt(0)")
def v_tr(kb, T):
    r = vVF + kb*4 + T*2
    A(f"ds_read_b64_tr_b16 v[{r}:{r+1}], v{vVR} offset:{(32*kb+16*T)*256}")
EARLY_T = [0, 1] if OPT['ser'] else []
for kb in range(8):
    if kb < 4:
        for T in range(2):
            mfma(vS + 4*T, vKF + (T*4+kb)*4, vQF + 4*kb, None if kb == 0 else vS + 4*T)
    for T in EARLY_T: v_tr(kb, T)
for i in range(8):
    A(f"v_add_f32_dpp v{vS+i}, v{vS+i}, v{vS+i} row_ror:4 {DPPM}")
A(f"v_max3_f32 v{T0}, v{vS}, v{vS+1}, v{vS+2}\nv_max3_f32 v{T2}, v{vS+3}, v{vS+4}, v{vS+5}")
A(f"v_max3_f32 v{T0}, v{T0}, v{vS+6}, v{vS+7}\nv_max_f32 v{T3}, v{T0}, v{T2}\nv_max_f32 v{T0}, v{T0}, v{T2}")
A(f"v_permlane32_swap_b32 v{T0}, v{T3}")
A(f"v_max_f32 v{T2}, v{T0}, v{T3}\nv_max_f32 v{T0}, v{T0}, v{T3}")
A(f"v_permlane16_swap_b32 v{T0}, v{T2}")
A(f"v_max_f32 v{T0}, v{T0}, v{T2}")
A(f"ds_write_b32 v{vMW}, v{T0}")
STAMP(14)
if OPT["ftouch2"]: f_touch(OPT["ftouch2"])
if OPT["dn_p"] == 2: dn_dma()
if OPT["dn_p"] == 3: u_dma()
A("s_waitcnt lgkmcnt(0)\ns_barrier")
A(f"ds_read_b128 v[{vQF}:{vQF+3}], v{vMX}\nds_read_b128 v[{vQF+4}:{vQF+7}], v{vMX} offset:16")
A("s_waitcnt lgkmcnt(0)")
A(f"v_max3_f32 v{T0}, v{vQF}, v{vQF+1}, v{vQF+2}\nv_max3_f32 v{T2}, v{vQF+3}, v{vQF+4}, v{vQF+5}")
A(f"v_max3_f32 v{T0}, v{T0}, v{vQF+6}, v{vQF+7}\nv_max_f32 v{T0}, v{T0}, v{T2}")
A(f"v_mul_f32 v{vST}, s55, v{T0}")
for i in range(8):
    A(f"v_fma_f32 v{vS+i}, v{vS+i}, s55, -v{vST}")
for i in range(8):
    A(f"v_exp_f32 v{vS+i}, v{vS+i}")
for i in range(4):
    A(f"v_cvt_pk_bf16_f32 v{vP+i}, v{vS+2*i}, v{vS+2*i+1}")
A(f"ds_write_b128 v{vPW}, v[{vP}:{vP+3}]")
rowsum([vS, vS+4])
A(f"v_add_f32 v{T0}, v{vS}, v{vS+4}\nv_add_f32 v{T3}, v{vS}, v{vS+4}")
A(f"v_permlane32_swap_b32 v{T0}, v{T3}")
A(f"v_add_f32 v{T2}, v{T0}, v{T3}\nv_add_f32 v{T0}, v{T0}, v{T3}")
A(f"v_permlane16_swap_b32 v{T0}, v{T2}")
A(f"v_add_f32 v{T0}, v{T0}, v{T2}")
A(f"ds_write_b32 v{vMW}, v{T0} offset:128")
if OPT["dn_p"] == 3: dn_dma()
A("s_waitcnt lgkmcnt(0)\ns_barrier")
STAMP(3)
if STAMPS: A("s_waitcnt lgkmcnt(0)")
LATE_T = [T for T in range(2) if T not in EARLY_T]
A(f"ds_read_b128 v[{vQF}:{vQF+3}], v{vMX} offset:128\nds_read_b128 v[{vQF+4}:{vQF+7}], v{vMX} offset:144")
for kb in range(8):
    r = vKF + kb*4
    A(f"ds_read_b128 v[{r}:{r+3}], v{vPR} offset:{kb*256}")
def st_pub(vm=None):
    sk = L("nst"); sk2 = L("nsu")
    A(f"s_cmp_lg_u32 s3, 0\ns_cbranch_scc1 {sk}")
    A("s_waitcnt lgkmcnt(8)")
    rowsum([vQF, vQF+4])
    A(f"v_add_f32 v{vST+1}, v{vQF}, v{vQF+4}")
    A("s_mov_b64 exec, 15")
    A(f"buffer_store_dwordx2 v[{vST}:{vST+1}], v{vSAD}, {RW}, s54 offen")
    fullexec()
    if vm is not None:
        A(f"s_waitcnt vmcnt({vm})\ns_branch {sk2}")
    A.label(sk)
    if vm is not None:
        A(f"s_waitcnt vmcnt({vm-1})")
        A.label(sk2)
if LATE_T:
    st_pub(1)
    A("s_waitcnt lgkmcnt(0)\ns_barrier")
    STAMP(6)
    if STAMPS: A("s_waitcnt lgkmcnt(0)")
    per = len(LATE_T)
    AHEAD = 8 if per == 1 else 6
    for kb in range(AHEAD):
        for T in LATE_T: v_tr(kb, T)
    for kb in range(8):
        A(f"s_waitcnt lgkmcnt({(min(8, AHEAD + kb) - kb - 1) * per})")
        mfma(vOA, vVF + kb*4, vKF + kb*4, None if kb == 0 else vOA)
        if AHEAD + kb < 8:
            for T in LATE_T: v_tr(AHEAD + kb, T)
else:
    st_pub()
    if OPT["dn_p"] == 1: dn_dma()
    for kb in range(8):
        A(f"s_waitcnt lgkmcnt({7-kb})")
        mfma(vOA, vVF + kb*4, vKF + kb*4, None if kb == 0 else vOA)
setexec(0x000f000f, 0x000f000f)
A(f"v_cvt_pk_bf16_f32 v{vP}, v{vOA}, v{vOA+1}\nv_cvt_pk_bf16_f32 v{vP+1}, v{vOA+2}, v{vOA+3}")
A(f"buffer_store_dwordx2 v[{vP}:{vP+1}], v{vOAD}, {RW}, s53 offen")
fullexec()
STAMP(7)
A("s_cmp_lt_u32 s4, 7\ns_cbranch_scc1 L_ffn")
A("s_cmp_lg_u32 s3, 0\ns_cbranch_scc1 L_exit")
VX(T1, T2, 0, (3, 1, 14), (0, 3, 11))
A(f"s_mov_b32 s46, {X4 + 7*128:#x}")
poll(lambda: A(f"buffer_load_dword v16, v{T1}, {RW}, s46 offen sc1"), lambda: A(f"v_cmp_eq_u32 vcc, -1, v16"), sleep=8)
A("s_branch L_exit")
A.label("L_ffn")
SX("s55", ST5, ("s4", 8))
SX("s53", G5, ("s63", 10))
A(f"s_add_u32 s54, s53, {US5-G5}")
if not OPT["mfb1"]:
    l_touch("s53", "s54", "s55")
    mf_loads()
DL = OPT["dn_late"]
NF = 0
if not GB1 and OPT["dn_p"] != 3:
    if OPT["obar"]: A("s_barrier")
    if not OPT["g_b1"]:
        g_dma(); NF += 2
    u_dma(); NF += 2
if not DL and not OPT["dn_p"]:
    if (GB1 and OPT["obar"]) or OPT["gufirst"]: A("s_barrier")
    dn_dma(); NF += 2
fYW, fYR, fWR, fGA, fGR, fSTA, fY6A = 113, 114, 115, 116, 118, 119, 120
fG, fU, fS = 121, 122, 117
wOF, wTA = fMF, 108
if not FF: ffn_frag_addr(fWR, wTA, wTR)
A("s_lshr_b32 s56, s3, 2\ns_and_b32 s57, s3, 3")
VX(fYR, 32, YL0, (0, 6, 4))
A(f"s_lshl_b32 s40, s3, 10\nv_add_u32 v{fYW}, s40, v{fYR}")
VX(fGA, 32, 0, (0, 6, 2))
SX("s61", G5 - 64, ("s63", 2, 0, 12), ("s57", 10), ("s63", 0, 2, 8), ("s56", 7))
A(f"s_add_u32 s62, s61, {US5-G5}")
VX(fGR, 32, 0, (2, 1, 7), (3, 1, 6), (4, 2, 4), (0, 2, 2))
VX(fSTA, 32, 0, (0, 3, 5), (3, 1, 4))
VX(fY6A, 32, 0, (3, 1, 14), (5, 1, 12), (4, 1, 4))
SX("s47", Y4, ("s56", 14), ("s63", 0, 2, 12), ("s57", 10))
SX("s96", Y6, ("s3", 16), ("s63", 5))
A("s_add_u32 s97, s96, 8192\ns_add_u32 s98, s96, 32768\ns_add_u32 s99, s96, 40960")
A(f"s_mov_b32 s41, {f32(1.0/512)}\ns_mov_b32 s43, {f32(1e-5)}")
poll(mf_loads, lambda: tagged_chk([vMF], 33), first_issued=True, first_wait=NF, sleep=4)
tagged_pack(vMF)
A(f"ds_write_b128 v{fYW}, v[{vMF}:{vMF+3}]")
def y_load():
    A(f"buffer_load_dwordx4 v[76:79], v{wOF}, {RW}, s47 offen sc1")
GF = OPT["gufirst"]
A(f"s_waitcnt vmcnt({2 if GF else 0}) lgkmcnt(0)\ns_barrier")
STAMP(10)
y_load()
if DL: dn_dma()
YO = [16, 20, 24, 28, 32, 36, 100, 104]
if not FF: w_frags(fWR)
for u in range(8):
    A(f"ds_read_b128 v[{YO[u]}:{YO[u]+3}], v{fYR} offset:{u*1024}")
A("s_waitcnt lgkmcnt(0)")
for k in range(4):
    for pi in range(2):
        mfma(wD + 4*pi, YO[4*pi+k], fWF + 4*k, None if k == 0 else wD + 4*pi)
rowsum([wD, wD+4])
A(f"v_permlane16_swap_b32 v{wD}, v{wD+4}")
A(f"v_add_f32 v{wD+1}, v{wD}, v{wD+4}\nv_add_f32 v{wD}, v{wD}, v{wD+4}")
A(f"v_permlane16_swap_b32 v{wD}, v{wD+1}")
A(f"v_cvt_pk_bf16_f32 v126, v{wD}, v{wD+1}")
setexec(0xffff0000, 0x0000ffff)
A(f"buffer_store_dword v126, v{fGA}, {RW}, s62 offen {'' if OPT['uslocal'] else 'sc1'}")
fullexec()
STAMP(1)
def us_loads():
    for k in range(4):
        A(f"buffer_load_dword v{40+k}, v{fGR}, {RW}, s54 offen offset:{256*k} sc1")
if not DL and not GF: d_frags(wTA)
poll(y_load, lambda: chk_empty4(76, 33), first_issued=True, first_wait=3 if DL else 1)
STAMP(11)
A(f"ds_write_b128 v{fYW}, v[76:79] offset:8192")
us_loads()
A("s_waitcnt lgkmcnt(0)\ns_barrier")
for u in range(8):
    A(f"ds_read_b128 v[{YO[u]}:{YO[u]+3}], v{fYR} offset:{8192+u*1024}")
for u in range(8):
    A(f"s_waitcnt lgkmcnt({7-u})")
    mfma(wD, YO[u], fWF + 4*(u & 3), None if u == 0 else wD)
A(f"v_add_f32 v{wD}, v{wD}, v{wD+1}\nv_add_f32 v{wD+2}, v{wD+2}, v{wD+3}")
A(f"v_add_f32 v{wD+1}, v{wD}, v{wD+2}\nv_add_f32 v{wD}, v{wD}, v{wD+2}")
A(f"v_permlane16_swap_b32 v{wD}, v{wD+1}")
A(f"v_add_f32 v{fG}, v{wD}, v{wD+1}")
def g_store(fl):
    setexec(0xffff0000, 0x0000ffff)
    A(f"buffer_store_dword v{fG}, v{fGA}, {RW}, s61 offen {fl}")
g_store("")
fullexec()
STAMP(12)
def g_loads():
    A(f"buffer_load_dwordx4 v[24:27], v{fSTA}, {RW}, s55 offen sc1")
    for k in range(4):
        A(f"buffer_load_dword v{20+k}, v{fGR}, {RW}, s53 offen offset:{256*k} sc1")
poll(us_loads, lambda: chk_empty4(40, 33), first_issued=True, first_wait=1)
g_loads()
if DL or GF: d_frags(wTA)
for k in range(4):
    A(f"v_lshlrev_b32 v{44+k}, 16, v{40+k}\nv_and_b32 v{40+k}, 0xffff0000, v{40+k}")
rowsum([44, 40])
A(f"v_mov_b32 v{fU}, v44\nv_mov_b32 v{fS}, v40")
def g_chk():
    A("v_add_f32 v24, v24, v26\nv_add_f32 v25, v25, v27")
    A("v_add_f32 v20, v20, v21\nv_add_f32 v22, v22, v23")
    A(f"v_add_f32_dpp v24, v24, v24 quad_perm:[1,0,3,2] {DPPM}\nv_add_f32_dpp v25, v25, v25 quad_perm:[1,0,3,2] {DPPM}")
    A("v_add_f32 v20, v20, v22")
    A(f"v_add_f32_dpp v24, v24, v24 quad_perm:[2,3,0,1] {DPPM}\nv_add_f32_dpp v25, v25, v25 quad_perm:[2,3,0,1] {DPPM}")
    A("v_add_f32 v26, v24, v25")
    A("v_cmp_u_f32 vcc, v20, v26")
poll(g_loads, g_chk, first_issued=True)
STAMP(13)
A(f"v_add_f32_dpp v24, v24, v24 row_half_mirror {DPPM}\nv_add_f32_dpp v25, v25, v25 row_half_mirror {DPPM}")
A("v_mov_b32 v26, s43")
A("v_mul_f32 v24, s41, v24")
A("v_fmac_f32 v26, s41, v25")
A("v_fma_f32 v26, -v24, v24, v26")
A(f"v_fma_f32 v20, -v24, v{fU}, v20")
A("v_rsq_f32 v26, v26")
A(f"v_fma_f32 v20, v20, v26, v{fS}")
A("v_max_f32 v21, 0, v20")
A(f"v_mul_f32_dpp v22, v20, v21 row_shl:4 {DPPM}")
pack4(22, 24, 25, 23)
if DL or GF: A("s_waitcnt lgkmcnt(0)")
for tau in range(4):
    d = 32 + 4*tau
    A(f"v_mfma_f32_16x16x16_bf16 v[{d}:{d+3}], v[{fDF+2*tau}:{fDF+2*tau+1}], v[24:25], 0")
setexec(0x01010101, 0x01010101)
for tau in range(4):
    d = 32 + 4*tau
    A(f"buffer_store_dwordx4 v[{d}:{d+3}], v{fY6A}, {RW}, s{96+tau} offen sc1")
STAMP(8)
A("s_waitcnt vmcnt(0)")
g_store("sc1")
if OPT["uslocal"]: A(f"buffer_store_dword v126, v{fGA}, {RW}, s62 offen sc1")
A("s_branch L_exit")

A.seg(1)
A.label("L_W")
def w_common(first=True):
    kload(RB, 32); kload(RF, 88)
    if first:
        A(f"s_load_dword {sTAG}, s[16:17], 0")
        ids2()
    A(f"v_lshl_or_b32 v{wO}, v{T0}, 10, v{T1}")
    srd(RB, 4194304); A("s_movk_i32 s26, 2048")
def wq_setup(sh):
    A(f"v_lshl_or_b32 v{wQ}, v{T0}, 13, v{T1}")
    A("s_mov_b32 s10, 4194304")
    A(f"s_lshl_b32 s48, s3, {12-sh}")
    SX("s43", 0, ("s6", 8), ("s48", 7, 0, 0))
    SX("s44", 0, ("s43", 13), ("s4", 10), ("s46", 0))
def wq_dma():
    A(f"s_add_u32 m0, s48, {WQL}")
    for u in range(4):
        if u: A(f"s_add_u32 s44, s44, {8*8192-1024}")
        A(f"buffer_load_dwordx4 v{wQ}, {RA}, s44 offen offset:{u*1024} {NT} lds")
def c_setup():
    VX(T2, T3, 0, (5, 1, 10), (0, 5, 2))
if "noW" in OPT["abl"]:
    ids2(); A("s_waitcnt lgkmcnt(0)\ns_branch L_exit")
if "noA" in OPT["abl"]: A("s_branch L_nA")
A("s_cmp_ge_u32 s4, 4\ns_cbranch_scc1 L_nA")
A("s_lshl_b32 s49, s58, 7")
A("s_cmp_lt_u32 s3, 256\ns_cbranch_scc1 L_A1")
A("s_sub_u32 s40, s3, 256")
SX("s61", 0, ("s7", 6), ("s40", 2, 0, 0))
A(f"s_mul_i32 s61, s61, 6144\ns_add_u32 s61, s61, s49\ns_add_u32 s62, s61, {8*6144-1024}")
A(f"s_lshl_b32 s40, s40, 5\ns_add_u32 m0, s40, {PA}")
A("s_waitcnt lgkmcnt(0)")
STAMP(1)
A(f"buffer_load_dwordx4 v{wM}, {RC}, s61 offen {NT} lds")
A(f"buffer_load_dwordx4 v{wM}, {RC}, s62 offen offset:1024 {NT} lds")
A(f"s_add_u32 m0, s40, {PA+8192-1024}")
A(f"buffer_load_dwordx4 v{wM}, {RC}, s61 offen offset:1024 {NT} lds")
A(f"buffer_load_dwordx4 v{wM}, {RC}, s62 offen offset:2048 {NT} lds")
TK = OPT["tok"]
AH = OPT["ahold"]
def clears():
    A("v_mov_b32 v32, -1\nv_mov_b32 v33, -1\nv_mov_b32 v34, -1\nv_mov_b32 v35, -1")
    SX("s54", CLR, ("s49", 9), ("s7", 13), ("s60", 0))
    A("v_lshlrev_b32 v38, 4, v0")
    A(f"buffer_store_dwordx4 v[32:35], v38, {RW}, s54 offen sc1")
    A(f"buffer_store_dwordx4 v[32:35], v38, {RW}, s54 offen offset:1024 sc1")
A("s_mov_b32 s60, s40")
if not TK:
    srd(RW, WS_BYTES); clears()
if AH < 8:
    wq_setup(6)
    A("s_barrier")
    wq_dma()
cont(5)
w_common()
if AH == 8: wq_setup(0)
NB = (4 if AH < 8 else 0)
A(f"s_waitcnt vmcnt({NB})")
if OPT["abl"]: STAMP(9)
if STAMPS == 3: STAMP(12)
A("s_barrier")
if AH == 8:
    A("s_barrier")
    wq_dma()
if TK: clears()
tr_setup()
A("s_waitcnt lgkmcnt(0)")
A(f"s_add_u32 {sTAG}, {sTAG}, {TAGC:#x}")
A("s_branch L_B")
A.seg(1.5 if OPT["wfirst"] else 3)
A.label("L_A1")
c_setup()
VX(36, T3, 0, (4, 1, 10), (5, 1, 8), (0, 4, 4))
A("s_movk_i32 s26, 2048")
A("s_waitcnt lgkmcnt(0)")
STAMP(1)
A(f"buffer_load_dword v{wC}, v{T2}, {RE}, s46 offen {SNT}")
A(f"buffer_load_dwordx4 v[{wX}:{wX+3}], v36, {RD}, 0 offen {SNT}")
A(f"buffer_load_dwordx4 v[{wX+4}:{wX+7}], v36, {RD}, 0 offen offset:512 {SNT}")
VX(37, T3, 0, (4, 1, 10), (0, 4, 1))
A(f"s_lshr_b32 s50, s3, 1\ns_add_u32 s50, s50, s49\nv_mov_b32 v{wXS}, 0")
A(f"buffer_load_short_d16_hi v{wXS}, v37, {RD}, s50 offen {SNT}")
if OPT["wfirst"] == 3: cont(4)
if AH < 8: A("s_barrier")
A(f"s_load_dword {sTAG}, s[16:17], 0")
ids2()
tr_setup()
VX(39, 32, 0, (4, 1, 6), (2, 2, 4))
SX("s53", H1G, ("s58", 12), ("s3", 10), ("s46", 0))
A("s_cmp_eq_u32 s7, 0\ns_cselect_b32 s54, 1.0, 0")
unit_pre("0", "s54", PA)
silu_operand(3)
if OPT["abl"]: STAMP(6)
if STAMPS == 3: STAMP(11)
A(f"s_waitcnt vmcnt(0)")
A("v_mov_b32 v36, 0\nv_mov_b32 v37, 0\nv_mov_b32 v38, 0x3f803f80")
for i in range(8):
    A(f"v_dot2c_f32_bf16 v36, v{wX+i}, v38\nv_dot2c_f32_bf16 v37, v{wX+i}, v{wX+i}")
for m in ("quad_perm:[1,0,3,2]", "quad_perm:[2,3,0,1]", "row_half_mirror", "row_mirror"):
    A(f"v_add_f32_dpp v36, v36, v36 {m} {DPPM}\nv_add_f32_dpp v37, v37, v37 {m} {DPPM}")
A("v_mov_b32 v38, v36\nv_mov_b32 v35, v37")
A("v_permlane32_swap_b32 v36, v38\nv_permlane32_swap_b32 v37, v35")
A("v_add_f32 v36, v36, v38\nv_add_f32 v37, v37, v35")
A(f"v_mul_f32 v36, {f32(1.0/512)}, v36\nv_mov_b32 v38, {f32(1e-5)}\nv_fmac_f32 v38, {f32(1.0/512)}, v37")
A("v_fma_f32 v38, -v36, v36, v38\nv_rsq_f32 v38, v38")
A(f"v_sub_f32 v{wXS}, v{wXS}, v36\nv_mul_f32 v{wXS}, v{wXS}, v38")
A(f"s_add_u32 {sTAG}, {sTAG}, {TAGC:#x}")
A(f"v_mov_b32 v{wD+9}, {sTAG}\nv_mov_b32 v{wD+11}, {sTAG}")
if OPT["abl"]: STAMP(7)
if STAMPS == 3: STAMP(12)
A("s_waitcnt lgkmcnt(0)\ns_barrier")
if OPT["abl"]: STAMP(10)
unit_go()
A(f"v_fma_f32 v32, v{wXS}, v{wD+4}, v{wD}")
pack4(32, wD+8, wD+10, 33)
setexec(0x11111111, 0)
A(f"buffer_store_dwordx4 v[{wD+8}:{wD+11}], v39, {RW}, s53 offen sc1")
fullexec()
STAMP(14)
if OPT["diag"]:
    A("s_waitcnt vmcnt(0)"); STAMP(13)
if AH == 8: A("s_barrier")
wq_setup(0)
wq_dma()
w_common(False)
A("s_branch L_B")
A.seg(2)
A.label("L_nA")
wq_setup(6)
A("s_waitcnt lgkmcnt(0)")
STAMP(1)
if OPT["wqpf"] == 22:
    sk = L("nh0")
    A(f"s_cmp_lt_u32 s3, 256\ns_cbranch_scc1 {sk}")
wq_dma()
if OPT["wqpf"] == 22: A.label(sk)
MBW = False
MBN = OPT["mbg"] == 3
if MBN:
    SX("s51", 0, ("s7", 6), ("s3", 3, 0, 0))
    A("s_mul_i32 s51, s51, 6144\ns_lshl_b32 s42, s3, 4")
    SX("s40", 2048, ("s58", 0, 3, 8)); A("s_add_u32 s51, s51, s40")
    c_setup()
    A(f"buffer_load_dword v{wC}, v{T2}, {RE}, s46 offen {SNT}")
    if OPT["mbwait"] >= 0: A(f"s_waitcnt vmcnt({OPT['mbwait']})")
    else: A("s_barrier")
    for j, o in enumerate((0, 128, 2048, 2048+128)):
        A(f"s_add_u32 m0, s42, {PB + j*8192 - o}")
        A(f"buffer_load_dwordx4 v{wM}, {RC}, s51 offen offset:{o} {NT} lds")
cont(6)
w_common()
tr_setup()
A("s_waitcnt lgkmcnt(0)")
A(f"s_add_u32 {sTAG}, {sTAG}, {TAGC:#x}")
A.label("L_B")
if MBW:
    A(f"v_mul_u32_u24 v{wM}, 6144, v{T0}\nv_add_u32 v{wM}, v{wM}, v{T1}")
    srd(RC, 3145728)
    SX("s96", 0, ("s7", 6), ("s3", 3))
    A("s_mul_i32 s96, s96, 6144")
    SX("s40", 2048, ("s58", 8)); A("s_add_u32 s96, s96, s40")
    SX("s97", MGT, ("s58", 13), ("s3", 0, 2, 10), ("s46", 0))
    SX("s40", 0, ("s58", 2, 0, 3), ("s7", 0))
    A("s_cmp_eq_u32 s40, 16\ns_cselect_b32 s98, 1.0, 0")
    VX(122, 32, 0, (5, 1, 12), (4, 1, 6), (2, 2, 4))
srd(RF, 2048)
SX("s47", 0, ("s4", 19), ("s43", 10), ("s46", 0))
wRW, wRR, wOF, wTA = 14, 15, 72, 108
SX("s40", RED, ("s3", 9)); VX(wRW, 32, "s40", (0, 6, 2))
SX("s40", RED, ("s3", 8)); VX(wRR, 32, "s40", (0, 6, 2))
VX(wOF, 32, 0, (0, 3, 7), (3, 1, 6), (4, 2, 4))
SX("s53", H1G, ("s43", 6))
if TK:
    VX(T3, 32, 0, (0, 6, 7)); A(f"s_movk_i32 s57, {TOK}")
else:
    VX(T3, 32, 0, (0, 2, 12))
    A("s_xor_b32 s57, s6, 1")
    SX("s57", H1G + 4, ("s57", 14), ("s3", 7))
wQA = 73; wQD = 76
VX(wQA, 32, 0, (5, 1, 12), (0, 5, 2))
SX("s56", QG, ("s4", 13), ("s5", 8), ("s3", 7))
A(f"v_add_u32 v{wTA}, s48, v{wTR}")
for t in range(1, 4):
    A(f"v_xor_b32 v{wTA+t}, {t*32:#x}, v{wTA}")
A(f"v_mov_b32 v{wQD+1}, {sTAG}\nv_mov_b32 v{wQD+3}, {sTAG}")
wGA, wCB, wXA, wXAD = 74, 75, 80, 81
tE, tOUT, tBP, tOF, tL16 = 84, 114, 115, 72, 116
SX("s59", Y6, ("s5", 15), ("s4", 12))
A("s_cmp_eq_u32 s3, 7\ns_cselect_b32 s40, 0, -1")
A("v_mov_b32 v118, s40\nv_mov_b32 v119, s40\nv_lshlrev_b32 v117, 3, v0")
SX("s41", 0, ("s3", 9), ("s59", 0))
VX(T1, 32, 0, (0, 4, 6), (4, 2, 4))
SX("s51", OG, ("s4", 14), ("s43", 5))
SX("s54", SG, ("s4", 9), ("s43", 7, 0, 7))
A(f"v_lshlrev_b32 v{T0}, 2, v1\nv_xor_b32 v{T0}, v0, v{T0}\nv_and_b32 v{T0}, 7, v{T0}\nv_lshlrev_b32 v{T0}, 3, v{T0}")
A(f"v_lshrrev_b32 v32, 5, v0\nv_lshl_or_b32 v{T0}, v32, 6, v{T0}")
VX(wXAD, 32, 0, (5, 1, 6), (2, 2, 4), (4, 1, 3))
SX("s60", X4, ("s7", 11), ("s3", 10), ("s6", 14), ("s4", 7))
A(f"s_add_u32 s52, s60, {Y4-X4}")
A("v_and_b32 v32, 1, v0\nv_lshlrev_b32 v32, 4, v32\nv_mov_b32 v33, 0x3f80\nv_lshlrev_b32 v32, v32, v33")
A("v_lshrrev_b32 v33, 2, v2\nv_sub_u32 v33, v1, v33\nv_bfe_u32 v34, v0, 1, 1\nv_lshl_or_b32 v33, v33, 1, v34")
for r in range(2):
    A(f"v_cmp_eq_u32 vcc, {r}, v33")
    A(f"v_cndmask_b32 v{tE+r}, 0, v32, vcc")
    A(f"v_mov_b32 v{tE+6+r}, v{tE+r}")
for r in (2, 3, 4, 5):
    A(f"v_mov_b32 v{tE+r}, 0")
VX(38, 33, 0, (0, 1, 3), (5, 1, 1), (4, 1, 2))
SX("s40", 0, ("s4", 0, 2, 4)); A(f"v_add_u32 v{tOUT}, s40, v38")
SX("s40", 0, ("s4", 2, 0, 7)); A(f"v_lshl_add_u32 v{tBP}, v{tOUT}, 1, s40")
SX("s62", 0, ("s4", 2, 0, 10), ("s5", 6))
A(f"v_lshlrev_b32 v{tL16}, 4, v0")
SX("s49", X4, ("s5", 10))
A("s_add_u32 s50, s49, 16384")
SX("s55", ST5, ("s4", 8), ("s7", 5), ("s6", 3))
VX(113, 33, 0, (5, 1, 4), (4, 1, 2))
SX("s61", MGT, ("s7", 12), ("s3", 11))
SX("s40", MGT + 3*32768, ("s5", 11))
A("s_cmp_eq_u32 s3, 2\ns_cselect_b32 s61, s40, s61\ns_cselect_b32 s40, 0, 0x10000\ns_add_u32 s63, s61, s40")
VX(120, 33, 0, (5, 1, 10), (0, 5, 1))
SX("s42", 0, ("s7", 7), ("s3", 6))
A(f"v_mov_b32 v{wXA}, 0")
def blk_frags(off):
    for t in range(4):
        for h in range(2):
            r = wWF + 4*t + 2*h
            A(f"ds_read_b64_tr_b16 v[{r}:{r+1}], v{wTA+t} offset:{off + h*2048}")
def h1_loads():
    tagged_loads(16, wOF, "s53")
    if not TK: A(f"buffer_load_dword v33, v{T3}, {RW}, s57 offen sc1")
NH = 2 if TK else 3
if MBN:
    VX(39, 32, 0, (5, 1, 12), (4, 1, 6), (2, 2, 4))
    sk = L("nmb")
    A(f"s_cmp_lt_u32 s4, 4\ns_cbranch_scc1 {sk}")
    SX("s96", MGT, ("s58", 0, 3, 13), ("s3", 2, 0, 16), ("s3", 0, 2, 10), ("s46", 0))
    SX("s40", 0, ("s58", 2, 1, 3), ("s3", 2, 0, 4), ("s7", 0))
    A("s_cmp_eq_u32 s40, 16\ns_cselect_b32 s97, 1.0, 0")
    SX("s98", PB, ("s3", 2, 0, 14))
    silu_operand(4)
    A.label(sk)
def mb_blk(early):
    sk = L("nmc")
    A(f"s_cmp_lt_u32 s4, 4\ns_cbranch_scc1 {sk}")
    VX(39, 32, 0, (5, 1, 12), (4, 1, 6), (2, 2, 4))
    unit_pre("s97", "s97", "s98")
    A(f"v_mov_b32 v{wD+9}, {sTAG}\nv_mov_b32 v{wD+11}, {sTAG}")
    if early: A(f"s_waitcnt vmcnt({NH}) lgkmcnt(0)\ns_barrier")
    unit_go()
    A("v_cmp_gt_u32 vcc, 32, v0")
    A(f"v_cndmask_b32 v32, v{wD+4}, v{wD}, vcc")
    pack4(32, wD+8, wD+10, 34)
    setexec(0x11111111, 0x11111111)
    A(f"buffer_store_dwordx4 v[{wD+8}:{wD+11}], v39, {RW}, s96 offen sc1")
    fullexec()
    STAMP(6)
    A.label(sk)
A(f"s_waitcnt vmcnt({OPT['h1at']})")
h1_loads()
if OPT["mbearly"]: mb_blk(True)
A(f"s_waitcnt vmcnt({NH})")
if TK:
    sk = L("ntk")
    A(f"s_cmp_ge_u32 s4, 4\ns_cbranch_scc1 {sk}\ns_cmp_lt_u32 s3, 4\ns_cbranch_scc1 {sk}")
    SX("s40", TOK - 16, ("s58", 10), ("s46", 0), ("s3", 2))
    A(f"s_mov_b64 exec, 1\nbuffer_store_dword v{wQD+1}, v0, {RW}, s40 offen sc1")
    fullexec()
    A.label(sk)
blk_frags(WQL)
STAMP(3)
if OPT["abl"] and "toq" not in OPT["abl"]: A("s_branch L_exit")
if OPT["mbearly"]:
    sk = L("nw0")
    A(f"s_cmp_ge_u32 s4, 4\ns_cbranch_scc1 {sk}")
    if TK: A(f"s_cmp_ge_u32 s3, 4\ns_cbranch_scc1 {sk}")
    A("s_waitcnt vmcnt(0)")
    A.label(sk)
poll(h1_loads, lambda: tagged_chk([16], 33, None if TK else 33), first_issued=True, first_wait=OPT["mbearly"], sleep=OPT["s2"])
STAMP(4)
if OPT["diag"]:
    A(f"s_waitcnt lgkmcnt(0)\ns_mul_i32 s40, {sCNT}, 10\ns_add_u32 s88, s64, s40")
tagged_pack(16)
A("s_waitcnt lgkmcnt(0)")
def blk_mfma(op):
    for t in range(4):
        mfma(wD + 4*t, op, wWF + 4*t, None)
def blk_reduce():
    A(f"v_permlane16_swap_b32 v{wD}, v{wD+4}\nv_permlane16_swap_b32 v{wD+8}, v{wD+12}")
    A(f"v_add_f32 v{wD}, v{wD}, v{wD+4}\nv_add_f32 v{wD+8}, v{wD+8}, v{wD+12}")
    A(f"ds_write2st64_b32 v{wRW}, v{wD}, v{wD+8} offset0:0 offset1:1")
    A("s_waitcnt lgkmcnt(0)\ns_barrier")
def blk_final():
    for i in range(4):
        A(f"ds_read2st64_b32 v[{32+2*i}:{33+2*i}], v{wRR} offset0:{4*i} offset1:{4*i+2}")
    A("s_waitcnt lgkmcnt(0)")
    A("v_add_f32 v32, v32, v33\nv_add_f32 v34, v34, v35\nv_add_f32 v36, v36, v37\nv_add_f32 v38, v38, v39")
    A("v_add_f32 v32, v32, v34\nv_add_f32 v36, v36, v38\nv_add_f32 v32, v32, v36")
blk_mfma(16)
rowsum([wD, wD+4, wD+8, wD+12])
blk_reduce()
sk = L("nq")
A(f"s_cmp_ge_u32 s3, 2\ns_cbranch_scc1 {sk}")
blk_final()
pack4(32, wQD, wQD+2, 33)
setexec(0x11111111, 0x11111111)
A(f"buffer_store_dwordx4 v[{wQD}:{wQD+3}], v{wQA}, {RW}, s56 offen")
fullexec()
A.label(sk)
STAMP(5)
if OPT["abl"]: A("s_branch L_exit")
if not OPT["mbearly"]: mb_blk(False)
if TK:
    sk = L("ntc")
    A(f"s_cmp_lg_u32 s3, 3\ns_cbranch_scc1 {sk}")
    tok_wait(T3, "s57", 32)
    A.label(sk)
A("s_barrier")
def o_loads():
    A(f"buffer_load_dwordx4 v[104:107], v{T1}, {RW}, s51 offen sc1")
def mc_loads():
    tagged_loads(16, wOF, "s61"); tagged_loads(24, wOF, "s63")
def wo_dma():
    A(f"s_add_u32 m0, s48, {WOL}")
    for u in range(4):
        if u: A(f"s_add_u32 s47, s47, {8*1024-1024}")
        A(f"buffer_load_dwordx4 v{wO}, {RB}, s47 offen offset:{u*1024} {NT} lds")
if MBW:
    SX("s40", PB, ("s3", 10)); A("s_mov_b32 m0, s40")
    A(f"buffer_load_dwordx4 v{wM}, {RC}, s96 offen {NT} lds")
    A(f"s_add_u32 m0, s40, {8192-128}")
    A(f"buffer_load_dwordx4 v{wM}, {RC}, s96 offen offset:128 {NT} lds")
sk = L("nc0")
A(f"s_cmp_ge_u32 s3, 3\ns_cbranch_scc1 {sk}")
MCE = not MBW and (not MBN or OPT['mbearly'])
if MCE: mc_loads()
A(f"s_cmp_lg_u32 s58, 0\ns_cbranch_scc1 {sk}")
A(f"buffer_load_short_d16_hi v{wXA}, v120, {RD}, s42 offen")
A.label(sk)
A(f"buffer_store_dwordx2 v[118:119], v117, {RW}, s41 offen sc1")
if OPT["ltouch"]: o_loads()
WOE = MBW and OPT["wo_mb"]
if MBW:
    if WOE:
        A("s_barrier"); wo_dma()
    A(f"ds_read2_b64 v[{wXO}:{wXO+3}], v83 offset0:0 offset1:4\nds_read2_b64 v[{wXO+4}:{wXO+7}], v83 offset0:8 offset1:12")
    unit_pre("s98", "s98", PB)
    A(f"v_mov_b32 v{wD+9}, {sTAG}\nv_mov_b32 v{wD+11}, {sTAG}")
    A(f"s_waitcnt vmcnt({6 if WOE else 2}) lgkmcnt(0)\ns_barrier")
    sk = L("nmw")
    A(f"s_cmp_lt_u32 s3, 4\ns_cbranch_scc1 {sk}")
    unit_go()
    A("v_cmp_gt_u32 vcc, 32, v0")
    A(f"v_cndmask_b32 v32, v{wD+4}, v{wD}, vcc")
    pack4(32, wD+8, wD+10, 33)
    setexec(0x11111111, 0x11111111)
    A(f"buffer_store_dwordx4 v[{wD+8}:{wD+11}], v122, {RW}, s97 offen sc1")
    fullexec()
    STAMP(6)
    A.label(sk)
if OPT["gtrg"]:
    A("s_cmp_lg_u32 s3, 3\ns_cbranch_scc1 L_trgd")
    if OPT["gmask"] == 7:
        VX(39, 32, 0, (0, 3, 7)); A(f"s_movk_i32 s40, {TRG}")
    else:
        VX(39, 32, 0, (0, 2, 7)); A(f"s_movk_i32 s40, {TRG + 512}")
    A(f"s_mov_b32 {sCNT}, 0")
    A.label("L_trg")
    A(f"buffer_load_dword v33, v39, {RW}, s40 offen sc1")
    A("s_waitcnt vmcnt(0)")
    A(f"v_cmp_ne_u32 vcc, {sTAG}, v33")
    A("s_cbranch_vccz L_trgd")
    A(f"s_sleep 2\ns_add_u32 {sCNT}, {sCNT}, 1\ns_cmp_lt_u32 {sCNT}, {OPT['trgmax']}\ns_cbranch_scc1 L_trg")
    A.label("L_trgd")
    A("s_barrier")
if not WOE: wo_dma()
sk = L("nc1")
A(f"s_cmp_ge_u32 s3, 3\ns_cbranch_scc1 {sk}")
if not MCE: A("s_waitcnt vmcnt(1)")
poll(mc_loads, lambda: tagged_chk([16, 24], 33), first_issued=MCE, first_wait=4, sleep=2)
tagged_pack(16); tagged_pack(24)
for i in range(2):
    for t in range(2):
        mfma(wD + 8*i + 4*t, 16 + 8*i, tE + 4*t, None)
rowsum([wD, wD+4, wD+8, wD+12])
A(f"v_permlane16_swap_b32 v{wD}, v{wD+4}\nv_permlane16_swap_b32 v{wD+8}, v{wD+12}")
A(f"v_add_f32 v{wGA}, v{wD}, v{wD+4}\nv_add_f32 v{wCB}, v{wD+8}, v{wD+12}")
STAMP(2)
A.label(sk)
A("s_waitcnt vmcnt(0)")
blk_frags(WOL)
STAMP(7)
wF = 100
sg_load = lambda: A(f"buffer_load_dwordx2 v[16:17], v{T0}, {RW}, s54 offen sc1")
await_any(sg_load, lambda: A("v_cmp_o_f32 vcc, v17, v17"), OPT["s1"])
poll(sg_load, lambda: A("v_cmp_u_f32 vcc, v17, v17"), first_issued=True, sleep=2*OPT["s2"])
o_loads()
A(f"v_max_f32_dpp v18, v16, v16 quad_perm:[1,0,3,2] {DPPM}")
A(f"v_max_f32_dpp v18, v18, v18 quad_perm:[2,3,0,1] {DPPM}")
A(f"v_max_f32_dpp v18, v18, v18 row_half_mirror {DPPM}")
A("v_sub_f32 v16, v16, v18\nv_exp_f32 v16, v16\nv_mul_f32 v17, v16, v17")
for m in ("quad_perm:[1,0,3,2]", "quad_perm:[2,3,0,1]", "row_half_mirror"):
    A(f"v_add_f32_dpp v17, v17, v17 {m} {DPPM}")
A(f"v_rcp_f32 v17, v17\nv_mul_f32 v{wF}, v16, v17")
STAMP(8)
poll(o_loads, lambda: chk_empty4(104, 33), first_issued=True, first_wait=0)
STAMP(9)
A("s_waitcnt lgkmcnt(0)")
blk_mfma(104)
for t in range(4):
    A(f"v_mul_f32_dpp v{wD+4*t}, v{wF}, v{wD+4*t} row_newbcast:0 {DPPM}")
for r in range(1, 4):
    for t in range(4):
        A(f"v_fmac_f32_dpp v{wD+4*t}, v{wF}, v{wD+4*t+r} row_newbcast:{r} {DPPM}")
blk_reduce()
A("s_cmp_gt_u32 s3, 2\ns_cbranch_scc1 L_exit")
A("s_cmp_eq_u32 s3, 2\ns_cbranch_scc1 L_fin")
blk_final()
A(f"v_fma_f32 v32, v32, v{wGA}, v{wXA}")
A(f"v_mul_f32 v36, v32, v{wCB}")
A(f"v_mov_b32_dpp v33, v32 quad_perm:[1,1,3,3] {DPPM}")
A(f"v_mov_b32_dpp v37, v36 quad_perm:[1,1,3,3] {DPPM}")
A("v_cvt_pk_bf16_f32 v34, v32, v33\nv_cvt_pk_bf16_f32 v38, v36, v37")
A(f"v_mov_b32_dpp v35, v34 quad_perm:[2,2,2,2] {DPPM}")
A(f"v_mov_b32_dpp v39, v38 quad_perm:[2,2,2,2] {DPPM}")
setexec(0x11111111, 0x11111111)
A(f"buffer_store_dwordx2 v[38:39], v{wXAD}, {RW}, s52 offen sc1")
A(f"buffer_store_dwordx2 v[34:35], v{wXAD}, {RW}, s60 offen sc1")
STAMP(10)
A("s_branch L_exit")
A.label("L_fin")
def x4_loads():
    A(f"buffer_load_dwordx4 v[16:19], v{tOF}, {RW}, s49 offen sc1")
    A(f"buffer_load_dwordx4 v[20:23], v{tOF}, {RW}, s50 offen sc1")
def x4_chk():
    A("v_max3_u32 v33, v16, v17, v18\nv_max3_u32 v34, v19, v20, v21\nv_max3_u32 v33, v33, v22, v23\nv_max_u32 v33, v33, v34\nv_cmp_eq_u32 vcc, -1, v33")
poll(x4_loads, x4_chk)
STAMP(11)
for hp in range(2):
    for t in range(2):
        mfma(wD + 4*t, 16 + 4*hp, tE + 4*t, None if hp == 0 else wD + 4*t)
rowsum([wD, wD+4])
A(f"v_permlane16_swap_b32 v{wD}, v{wD+4}")
A(f"v_add_f32 v42, v{wD}, v{wD+4}")
A("v_mov_b32 v43, v42\nv_mul_f32 v44, v42, v42")
A("v_permlane16_swap_b32 v43, v44")
A("v_add_f32 v43, v43, v44")
for m in ("quad_perm:[1,0,3,2]", "quad_perm:[2,3,0,1]", "row_half_mirror", "row_mirror"):
    A(f"v_add_f32_dpp v43, v43, v43 {m} {DPPM}")
setexec(0x00010001, 0x00010001)
A(f"buffer_store_dword v43, v113, {RW}, s55 offen")
fullexec()
STAMP(12)
A(f"ds_bpermute_b32 v42, v{tBP}, v42\nds_bpermute_b32 v{wGA}, v{tBP}, v{wGA}")
def y6_loads():
    for i in range(4):
        A(f"buffer_load_dwordx4 v[{16+4*i}:{19+4*i}], v{tL16}, {RW}, s59 offen offset:{1024*i} sc1")
def y6_chk():
    for r in range(4):
        A(f"v_add_f32 v{16+r}, v{16+r}, v{20+r}\nv_add_f32 v{24+r}, v{24+r}, v{28+r}")
    for r in range(4):
        A(f"v_add_f32 v{16+r}, v{16+r}, v{24+r}")
    A("v_permlane32_swap_b32 v16, v17\nv_permlane32_swap_b32 v18, v19")
    A("v_add_f32 v16, v16, v17\nv_add_f32 v18, v18, v19")
    A("v_permlane16_swap_b32 v16, v18")
    A("v_add_f32 v16, v16, v18")
    A("v_cmp_u_f32 vcc, v16, v16")
await_any(lambda: A(f"buffer_load_dword v16, v{tL16}, {RW}, s59 offen sc1"), lambda: A("v_cmp_o_f32 vcc, v16, v16"), 2)
poll(y6_loads, y6_chk)
STAMP(13)
for m in ("row_ror:8", "row_ror:4", "row_ror:2"):
    A(f"v_add_f32_dpp v16, v16, v16 {m} {DPPM}")
A("s_waitcnt lgkmcnt(0)")
A(f"v_fma_f32 v16, v16, v{wGA}, v42")
A("v_cvt_pk_bf16_f32 v16, v16, v16")
setexec(0x00030003, 0x00030003)
A(f"buffer_store_short v16, v{tOUT}, {RF}, s62 offen")
A("s_cmp_lg_u32 s2, 128\ns_cbranch_scc1 L_exit")
A(f"s_sub_u32 s40, {sTAG}, {TAGC-1:#x}")
A("v_mov_b32 v17, s40\nv_mov_b32 v18, 0")
A("s_mov_b64 exec, 1")
A(f"buffer_store_dword v17, v18, {RW}, 0 offen sc1")

A("s_branch L_exit")
A.seg(40)
A.label("L_exit")
if STAMPS == 1:
    STAMP(15)
    A("s_waitcnt lgkmcnt(0)")
    A("s_mov_b64 exec, 1")
    SX("s40", DBG, ("s2", 9), ("s3", 6))
    A("v_mov_b32 v0, 0")
    for q in range(4):
        for i in range(4):
            A(f"v_mov_b32 v{4+4*q+i}, s{64+2*(4*q+i)}")
        A(f"buffer_store_dwordx4 v[{4+4*q}:{7+4*q}], v0, {RW}, s40 offen offset:{16*q}")
if STAMPS == 3:
    STAMP(15)
    A("s_waitcnt lgkmcnt(0)")
    SX("s40", 0, ("s2", 3), ("s3", 0))
    A(f"s_cmp_lg_u32 s40, {OPT['dwg']*8 + OPT['dwv']}\ns_cbranch_scc1 L_end")
    A(f"s_sub_u32 s40, s{64+2*OPT['db']}, s{64+2*OPT['da']}")
    A(f"s_mul_i32 s40, s40, {OPT['dm']}")
    A("s_min_u32 s40, s40, 30000")
    A.label("L_spin")
    A("s_memrealtime s[42:43]\ns_waitcnt lgkmcnt(0)\ns_sub_u32 s41, s42, s94\ns_cmp_lt_u32 s41, s40\ns_cbranch_scc1 L_spin")
if STAMPS == 2:
    STAMP(15)
    A("s_load_dwordx2 s[32:33], s[0:1], 96")
    A("s_mov_b32 s34, 256\ns_mov_b32 s35, 0x00020000")
    A("s_waitcnt lgkmcnt(0)")
    fullexec()
    A("v_mov_b32 v4, 0\nv_mbcnt_lo_u32_b32 v5, -1, 0\nv_lshlrev_b32 v5, 2, v5")
    A("s_cmp_ge_u32 s2, 128\ns_cbranch_scc1 L_dw")
    A("s_cmp_lg_u32 s3, 0\ns_cbranch_scc1 L_end")
    A("s_not_b32 s40, s64\nv_writelane_b32 v4, s40, 0")
    for i, st in enumerate([9, 2, 5, 7, 10, 11, 8]):
        A(f"v_writelane_b32 v4, s{64+2*st}, {i+1}")
    A("s_branch L_dd")
    A.label("L_dw")
    A("s_cmp_lg_u32 s3, 2\ns_cbranch_scc1 L_end")
    for i, st in enumerate([0, 3, 4, 5, 7, 9, 11, 15]):
        A(f"v_writelane_b32 v4, s{64+2*st}, {i+8}")
    A.label("L_dd")
    A("s_mov_b64 exec, 0xffff")
    A("buffer_atomic_umax v4, v5, s[32:35], 0 offen")
A.label("L_end")
A("s_endpgm")
A.label("L_codeend")
A.raw(f".fill (16384 - (L_codeend - {NAME}_kernel)) / 4, 4, 0xbf810000")
A.raw(f""".section .rodata,"a"
.p2align 6
.amdhsa_kernel {NAME}_kernel
  .amdhsa_next_free_vgpr 152
  .amdhsa_next_free_sgpr 100
  .amdhsa_accum_offset 152
  .amdhsa_group_segment_fixed_size 0
  .amdhsa_kernarg_size 112
  .amdhsa_user_sgpr_count 2
  .amdhsa_user_sgpr_kernarg_segment_ptr 1
  .amdhsa_system_sgpr_workgroup_id_x 1
  .amdhsa_float_denorm_mode_32 3
.end_amdhsa_kernel""")
sys.stdout.write(A.text())
sys.stderr.write(f"instrs={A.ninstr} nops={A.nops}\n")
```

```python
import sys, math, struct
sys.path.insert(0, "work")
from asmlib import Asm

NAME = "adaLN_cond__sliding_block_cached__glu_gated_reglu__decode"
OPT = dict(stamps=0, nt="nt", limit=20000, refresh=255, psleep=0, pf=4, pfnt="", smallnt="", slow=0, gtrg=0, gw=7, gmask=7, fpf=0, wo_after_c=0, fpfbar=1, fpfl="", uslocal=1, qn=4, trg=0, mb_at="kv", touch=0, ltouch=1, ahold=4, wqpf=0, wqpfl="", ehold=0, depth=0, ffn_first=0, ser=1, obar=1, gu_b1=0, dn_late=0, dn_p=0, diag=0, rot=7, vt=1, wfirst=3, tok=1, gufirst=1, mfb1=1, mbearly=1, ftouch=0, ftouch2=0, mbg=3, mbwait=-1, g_b1=0, wo_mb=1, h1at=1, depth_until=16, qpipe=1, s1=6, s2=1, sent=1, trgmax=24, dwg=10, dwv=1, da=0, db=15, dm=20, kvbar=1, abl="")
for a in sys.argv[1:]:
    k, v = a.split("=")
    OPT[k] = int(v) if v.lstrip("-").isdigit() else v
STAMPS = OPT["stamps"]; NT = OPT["nt"] if OPT["nt"] != "-" else ""
LIMIT = OPT["limit"]; REFRESH = OPT["refresh"]; SNT = OPT["smallnt"]

def f32(x): return "0x%08x" % struct.unpack("<I", struct.pack("<f", x))[0]

TRG = 0x1000; TOK = 0x4000; H1G = 0x8000; QG = 0x10000; MGT = 0x20000
CLR = 0x100000
OG = CLR; MG = CLR + 0x20000; X4 = CLR + 0x30000; Y4 = CLR + 0x38000
G5 = CLR + 0x40000; SG = CLR + 0x5C000; ST5 = CLR + 0x5D000; US5 = CLR + 0x60000
Y6 = 0x180000; DBG = 0x400000
WS_BYTES = 0x800000
TAGC = 0x9E3779B9
VREG = 65536; PA = 131072; XL = 147456; QL = XL + 1024; PL = QL + 2048; MISC = PL + 2048
FG = 0; FD = 32768; YL0 = 131072
WQL = 0; WOL = 32768; PB = 65536; RED = XL + 1024
LDS_BYTES = MISC + 256
C1 = 128 ** -0.5 * math.log2(math.e)

A = Asm()
hdr = open(f"cdna_kernels/{NAME}.s.ref").read().split("\n")
for ln in hdr:
    if ln.startswith("; @launch"):
        A.raw(f"; @launch grid=(256,1,1) block=(512,1,1) lds={LDS_BYTES}")
        break
    A.raw(ln)
A.raw('.amdgcn_target "amdgcn-amd-amdhsa--gfx950"')
A.raw(f".text\n.globl {NAME}_kernel\n.p2align 8\n.type {NAME}_kernel,@function\n{NAME}_kernel:")

RA, RB, RW, RC, RD, RE, RF = "s[8:11]", "s[12:15]", "s[16:19]", "s[20:23]", "s[24:27]", "s[28:31]", "s[32:35]"
sTAG, sCNT, sT = "s36", "s37", "s45"
def STAMP(n):
    if STAMPS:
        A(f"s_memrealtime s[{64+2*n}:{65+2*n}]")
DPPM = "row_mask:0xf bank_mask:0xf"
lbl = [0]
def L(p):
    lbl[0] += 1
    return f"L_{p}_{lbl[0]}"
def srd(r, nbytes):
    b = int(r[2:r.index(":")])
    A((f"s_movk_i32 s{b+2}, {nbytes}" if nbytes < 32768 else f"s_mov_b32 s{b+2}, {nbytes}") + f"\ns_mov_b32 s{b+3}, s11")
def kload(r, off):
    b = int(r[2:r.index(":")])
    A(f"s_load_dwordx2 s[{b}:{b+1}], s[0:1], {off}")

def SX(dst, const, *terms):
    first = True
    for t in terms:
        src, rs, w, ls = (t[0], 0, 0, t[1]) if len(t) == 2 else t
        d = dst if first else sT
        cur = src
        if w:
            if rs == 0: A(f"s_and_b32 {d}, {cur}, {(1<<w)-1}")
            else: A(f"s_bfe_u32 {d}, {cur}, {(w<<16)|rs:#x}")
            cur = d
        elif rs:
            A(f"s_lshr_b32 {d}, {cur}, {rs}"); cur = d
        if first:
            if ls: A(f"s_lshl_b32 {d}, {cur}, {ls}")
            elif cur != d: A(f"s_mov_b32 {d}, {cur}")
        else:
            if 1 <= ls <= 4: A(f"s_lshl{ls}_add_u32 {dst}, {cur}, {dst}")
            else:
                if ls: A(f"s_lshl_b32 {sT}, {cur}, {ls}"); cur = sT
                A(f"s_add_u32 {dst}, {dst}, {cur}")
        first = False
    if const: A(f"s_add_u32 {dst}, {dst}, {const:#x}")
def VX(dst, tmp, add, *terms):
    first = True
    for rs, w, ls in terms:
        if rs == 4 and w == 2: cur = "v1"
        elif rs == 0 and w == 4: cur = "v2"
        elif rs == 0 and w == 6: cur = "v0"
        else:
            d = f"v{dst}" if first else f"v{tmp}"
            if rs + w == 6: A(f"v_lshrrev_b32 {d}, {rs}, v0")
            elif rs == 0: A(f"v_and_b32 {d}, {(1<<w)-1}, v0")
            else: A(f"v_bfe_u32 {d}, v0, {rs}, {w}")
            cur = d
        if first:
            if ls: A(f"v_lshlrev_b32 v{dst}, {ls}, {cur}")
            elif cur != f"v{dst}": A(f"v_mov_b32 v{dst}, {cur}")
        else:
            if ls: A(f"v_lshl_or_b32 v{dst}, {cur}, {ls}, v{dst}")
            else: A(f"v_or_b32 v{dst}, {cur}, v{dst}")
        first = False
    if add: A(f"v_add_u32 v{dst}, {add}, v{dst}")

def cont(n):
    t = L("c")
    A(f"s_branch {t}")
    A.seg(n); A.label(t)
def await_any(load, valid, sleep):
    if not OPT["sent"]: return
    top, done = L("aw"), L("awd")
    A(f"s_mov_b32 {sCNT}, 0")
    A.label(top)
    load()
    A("s_waitcnt vmcnt(0)")
    valid()
    A(f"s_cbranch_vccnz {done}")
    A(f"s_sleep {sleep}\ns_add_u32 {sCNT}, {sCNT}, 1\ns_cmp_lt_u32 {sCNT}, 64\ns_cbranch_scc1 {top}")
    A.label(done)
def poll(loads, check, first_issued=False, first_wait=0, sleep=0):
    top, done, chk = L("poll"), L("got"), L("chk")
    A(f"s_mov_b32 {sCNT}, 0")
    if first_issued:
        A(f"s_waitcnt vmcnt({first_wait})")
        A(f"s_branch {chk}")
    A.label(top)
    loads()
    A("s_waitcnt vmcnt(0)")
    if first_issued:
        A.label(chk)
    check()
    A(f"s_cbranch_vccz {done}")
    if sleep: A(f"s_sleep {sleep}")
    A(f"s_add_u32 {sCNT}, {sCNT}, 1")
    A(f"s_and_b32 {sT}, {sCNT}, {REFRESH}\ns_cbranch_scc1 {top}")
    A("buffer_wbl2 sc1")
    A(f"s_cmp_lt_u32 {sCNT}, {LIMIT}\ns_cbranch_scc1 {top}")
    A.label(done)
def chk_empty4(r, tmp):
    A(f"v_max3_u32 v{tmp}, v{r}, v{r+1}, v{r+2}\nv_max_u32 v{tmp}, v{tmp}, v{r+3}\nv_cmp_eq_u32 vcc, -1, v{tmp}")
def pack4(src, pk, pk2, tmp):
    A(f"v_mov_b32_dpp v{tmp}, v{src} quad_perm:[1,1,3,3] {DPPM}")
    A(f"v_cvt_pk_bf16_f32 v{pk}, v{src}, v{tmp}")
    A(f"v_mov_b32_dpp v{pk2}, v{pk} quad_perm:[2,2,2,2] {DPPM}")
def setexec(lo, hi):
    A(f"s_mov_b32 exec_lo, {lo:#x}\ns_mov_b32 exec_hi, {hi:#x}")
def fullexec():
    A("s_mov_b64 exec, -1")
def mfma(d, a, b, c):
    cc = "0" if c is None else f"v[{c}:{c+3}]"
    A(f"v_mfma_f32_16x16x32_bf16 v[{d}:{d+3}], v[{a}:{a+3}], v[{b}:{b+3}], {cc}")
def rowsum(ds):
    for d in ds: A(f"v_add_f32 v{d}, v{d}, v{d+1}\nv_add_f32 v{d+2}, v{d+2}, v{d+3}")
    for d in ds: A(f"v_add_f32 v{d}, v{d}, v{d+2}")
def code_prefetch(tmp, dst):
    sk = L("npf")
    A(f"s_cmp_lt_u32 s3, 6\ns_cbranch_scc1 {sk}")
    A("s_and_b32 s38, s38, 0xffffff00")
    A(f"v_lshlrev_b32 v{tmp}, 7, v0")
    A(f"s_and_b32 s40, s3, 1\ns_lshl_b32 s40, s40, 13")
    A(f"v_add_u32 v{tmp}, s40, v{tmp}")
    if not OPT["pf"]: A(f"v_mov_b32 v{tmp}, 0")
    A(f"global_load_dword v{dst}, v{tmp}, s[38:39] {OPT['pfnt']}")
    A.label(sk)

wM, wQ, wO, wTR, T0, T1, T2, T3, vPF = 3, 4, 5, 6, 7, 8, 9, 10, 11
wC = 12; wXS = 13; wX = 16; wXO = 24; wWF = 40; wD = 56
def swz_chunk(dst):
    A(f"v_lshlrev_b32 v{dst}, 1, v1\nv_xor_b32 v{dst}, v0, v{dst}\nv_and_b32 v{dst}, 7, v{dst}\nv_lshlrev_b32 v{dst}, 4, v{dst}")
def unit_dma(srdr, s0, s1, base):
    A(f"s_add_u32 m0, s42, {base}")
    A(f"buffer_load_dwordx4 v{wM}, {srdr}, {s0} offen {NT} lds")
    A(f"s_add_u32 m0, s42, {base+8192}")
    A(f"buffer_load_dwordx4 v{wM}, {srdr}, {s1} offen {NT} lds")
def tr_setup():
    VX(wTR, 32, 0, (2, 4, 7), (3, 2, 5), (0, 2, 3))
    SX("s40", XL, ("s3", 0, 2, 8))
    VX(82, 32, "s40", (0, 6, 2))
    VX(83, 32, "s40", (2, 1, 7), (4, 2, 3))
def silu_operand(cnt):
    A(f"s_waitcnt vmcnt({cnt})")
    A(f"v_lshlrev_b32 v32, 16, v{wC}\nv_and_b32 v33, 0xffff0000, v{wC}")
    A(f"v_mul_f32 v34, {f32(-math.log2(math.e))}, v32\nv_mul_f32 v35, {f32(-math.log2(math.e))}, v33")
    A("v_exp_f32 v34, v34\nv_exp_f32 v35, v35")
    A("v_add_f32 v34, 1.0, v34\nv_add_f32 v35, 1.0, v35")
    A("v_rcp_f32 v34, v34\nv_rcp_f32 v35, v35")
    A("v_mul_f32 v32, v32, v34\nv_mul_f32 v33, v33, v35")
    A("v_cvt_pk_bf16_f32 v32, v32, v33")
    A("ds_write_b32 v82, v32")
    A("s_waitcnt lgkmcnt(0)")
    A(f"ds_read2_b64 v[{wXO}:{wXO+3}], v83 offset0:0 offset1:4\nds_read2_b64 v[{wXO+4}:{wXO+7}], v83 offset0:8 offset1:12")
def unit_pre(s_c0, s_c1, base):
    SX("s40", 0, ("s3", 0, 2, 5)); A(f"v_xor_b32 v112, s40, v{wTR}\nv_add_u32 v112, {base}, v112")
    for i in range(4):
        A(f"v_mov_b32 v{wD+i}, {s_c0}\nv_mov_b32 v{wD+4+i}, {s_c1}")
def unit_go():
    if STAMPS: A("s_waitcnt lgkmcnt(0)")
    for k in range(2):
        for seg in range(2):
            for h in range(2):
                r = wWF + seg*8 + k*4 + h*2
                A(f"ds_read_b64_tr_b16 v[{r}:{r+1}], v112 offset:{seg*8192 + k*4096 + h*2048}")
    for k in range(2):
        for seg in range(2):
            A(f"s_waitcnt lgkmcnt({6 - 4*k - 2*seg})")
            mfma(wD + 4*seg, wXO + 4*k, wWF + seg*8 + k*4, wD + 4*seg)
def unit_mfma(s_c0, s_c1, base):
    unit_pre(s_c0, s_c1, base); unit_go()
def tagged_loads(r, va, so):
    A(f"buffer_load_dwordx4 v[{r}:{r+3}], v{va}, {RW}, {so} offen sc1")
    A(f"buffer_load_dwordx4 v[{r+4}:{r+7}], v{va}, {RW}, {so} offen offset:1024 sc1")
def tagged_chk(rs, tmp, extra=None):
    tags = [r + i for r in rs for i in (1, 3, 5, 7)] + ([extra] if extra else [])
    A(f"v_xor_b32 v{tmp}, {sTAG}, v{tags[-1]}")
    for t in tags[:-1]:
        A(f"v_bitop3_b32 v{tmp}, v{t}, {sTAG}, v{tmp} bitop3:0xbe")
    A(f"v_cmp_ne_u32 vcc, 0, v{tmp}")
def tagged_pack(r):
    A(f"v_mov_b32 v{r+1}, v{r+2}\nv_mov_b32 v{r+2}, v{r+4}\nv_mov_b32 v{r+3}, v{r+6}")
def tok_wait(va, so, r):
    def chk():
        A(f"v_xor_b32 v{r}, {sTAG}, v{r}")
        for i in (1, 2, 3): A(f"v_bitop3_b32 v{r}, v{r+i}, {sTAG}, v{r} bitop3:0xbe")
        A(f"v_cmp_ne_u32 vcc, 0, v{r}")
    poll(lambda: A(f"buffer_load_dwordx4 v[{r}:{r+3}], v{va}, {RW}, {so} offen sc1"), chk, sleep=2)
def sum8(dst, r):
    A(f"v_add_f32 v32, v{r}, v{r+1}\nv_add_f32 v33, v{r+2}, v{r+3}\nv_add_f32 v34, v{r+4}, v{r+5}\nv_add_f32 v35, v{r+6}, v{r+7}")
    A(f"v_add_f32 v32, v32, v33\nv_add_f32 v34, v34, v35\nv_add_f32 v{dst}, v32, v34")

STAMP(0)
A("s_cmp_ge_u32 s2, 256\ns_cbranch_scc1 L_end")
A("s_cmp_ge_u32 s2, 128\ns_cselect_b32 s40, 24, 8\ns_cselect_b32 s41, 0, 16")
A("s_load_dwordx2 s[8:9], s[0:1], s40")
kload(RC, 80)
A("s_load_dwordx2 s[24:25], s[0:1], s41")
kload(RE, 72); kload(RW, 104)
A("v_readfirstlane_b32 s3, v0")
A("s_getpc_b64 s[38:39]")
if OPT["pf"] == 4:
    A("s_and_b32 s38, s38, 0xffffff00")
    A(f"v_and_b32 v{vPF}, 0x1c0, v0\ns_lshl_b32 s40, s2, 7\ns_and_b32 s40, s40, 0x3c00\nv_lshl_or_b32 v{vPF}, v{vPF}, 1, s40")
    sk = L("npf")
    A(f"s_cmp_ge_u32 s2, 128\ns_cbranch_scc1 {sk}")
    A(f"global_load_dword v{vPF}, v{vPF}, s[38:39]")
    A.label(sk)
A("v_and_b32 v0, 63, v0")
A("s_mov_b32 s11, 0x00020000")
A("v_lshrrev_b32 v1, 4, v0\nv_and_b32 v2, 15, v0")
A(f"s_add_u32 s4, s2, {OPT['rot']}\ns_and_b32 s4, s4, 7\ns_bfe_u32 s6, s2, 0x10006\ns_bfe_u32 s7, s2, 0x30003")
A(f"v_lshlrev_b32 v{T3}, 1, v1\nv_xor_b32 v{T3}, v2, v{T3}\nv_lshlrev_b32 v{T3}, 4, v{T3}")
A("s_lshl1_add_u32 s58, s4, s6\ns_lshl_b32 s46, s7, 7\ns_mov_b32 s27, s11")
A(f"v_and_b32 v{T1}, 0x70, v{T3}\nv_lshrrev_b32 v{T0}, 3, v0")
srd(RC, 3145728); srd(RE, 2048)
A(f"v_mul_u32_u24 v{wM}, 6144, v{T0}\nv_add_u32 v{wM}, v{wM}, v{T1}")
if OPT["wfirst"]:
    A("s_cmp_lt_u32 s2, 128\ns_cbranch_scc1 L_KV")
    A.seg(OPT["wfirst"]); A.label("L_KV")
else:
    A("s_cmp_ge_u32 s2, 128\ns_cbranch_scc1 L_W")
def ids2():
    A("s_lshr_b32 s3, s3, 6\ns_bfe_u32 s5, s2, 0x40003")
    if STAMPS:
        for i in range(2, 16): A(f"s_mov_b32 s{64+2*i}, 0")
    srd(RW, WS_BYTES)

vE, vO, vQO = 120, 121, 122
vKA = 108
vQ = 14
vKF = 16
vVF = 48
vQF = 80
vS = 96
vP = 104
vOA = 108
vST = 114
vOAD, vSAD = 116, 117
A(f"v_lshl_or_b32 v{vE}, v1, 8, v{T3}\nv_xor_b32 v{vO}, 0x80, v{vE}")
A("s_lshl_b32 s43, s3, 7\ns_mov_b32 s10, 33554432\ns_mov_b32 s26, s10")
SX("s56", 6144*256, ("s6", 24), ("s4", 21), ("s7", 16), ("s43", 0))
A("s_add_u32 s57, s56, 4096\ns_mov_b32 m0, s43")
def kv_dma(u):
    r = RA if u < 8 else RD
    A(f"buffer_load_dwordx4 v{vE if u%2==0 else vO}, {r}, {'s56' if u%8 < 4 else 's57'} offen offset:{(u%4)*1024} {NT} lds")
if OPT["wqpf"]:
    kload(RF, 24)
    A("s_cmp_lt_u32 s4, 4\ns_cselect_b32 s34, 0x400000, 0\ns_mov_b32 s35, s11")
    A(f"v_and_b32 v{wQ}, {31 if OPT['wqpf'] == 1 else 15}, v0\nv_lshlrev_b32 v{wQ}, 13, v{wQ}")
    SX("s44", 0, ("s6", 21), ("s3", 12 if OPT["wqpf"] == 1 else 11), ("s4", 10), ("s46", 0))
A("s_waitcnt lgkmcnt(0)")
if OPT["diag"] == 5: A("s_memrealtime s[100:101]")
if OPT["wqpf"]: A(f"buffer_load_dword v16, v{wQ}, {RF}, s44 offen")
VT = OPT["vt"]
if VT:
    A(f"s_add_u32 m0, s43, {VREG}")
    kv_dma(8)
    A("s_mov_b32 m0, s43")
if OPT["slow"]: kv_dma(0)
if OPT["pf"] == 3:
    A("s_and_b32 s38, s38, 0xffffff00")
    SX("s40", 0, ("s2", 3, 4, 10), ("s3", 1))
    A("s_load_dword s99, s[38:39], s40")
A(f"s_load_dword {sTAG}, s[16:17], 0")
if OPT["slow"]: A("s_waitcnt vmcnt(0)")
def mb_issue():
    SX("s51", 0, ("s7", 6), ("s3", 3, 0, 0))
    A("s_mul_i32 s51, s51, 6144\ns_lshl_b32 s42, s3, 4")
    SX("s40", 2048, ("s58", 8)); A("s_add_u32 s51, s51, s40")
    A(f"s_add_u32 m0, s42, {PA}")
    A(f"buffer_load_dwordx4 v{wM}, {RC}, s51 offen {NT} lds")
    A(f"s_add_u32 m0, s42, {PA + 8192 - 128}")
    A(f"buffer_load_dwordx4 v{wM}, {RC}, s51 offen offset:128 {NT} lds")
    VX(T2, T3, 0, (5, 1, 10), (0, 5, 2))
    A(f"buffer_load_dword v{wC}, v{T2}, {RE}, s46 offen {SNT}")
for u in range(1 if OPT["slow"] else 0, 16):
    if u in (4, 12): A("s_add_u32 m0, m0, 4096")
    if u == 8:
        if OPT["mbg"] != 3: mb_issue()
        A(f"s_add_u32 m0, s43, {VREG}")
        if VT: continue
    if OPT["depth"] and u < OPT["depth_until"]: A(f"s_waitcnt vmcnt({OPT['depth']-1})")
    kv_dma(u)
cont(30)
ids2()
if STAMPS: A("s_mov_b32 s66, 0")
STAMP(2)
if OPT["abl"]:
    A("s_waitcnt vmcnt(0)")
    STAMP(4)
    A("s_branch L_exit")
GT = 0
A("s_waitcnt lgkmcnt(0)")
if OPT["diag"] == 5: A("s_mov_b32 s76, s100")
A(f"s_add_u32 {sTAG}, {sTAG}, {TAGC:#x}")
kload(RC, 48); kload(RD, 56); kload(RE, 64)
FF = OPT["ffn_first"]
if FF: FG = VREG; FD = VREG + 32768
wG, wDO, fMF = 124, 125, 123
A(f"v_mul_u32_u24 v{wG}, 3584, v{T0}\nv_add_u32 v{wG}, v{wG}, v{T1}\nv_lshl_or_b32 v{wDO}, v{T0}, 10, v{T1}")
A("s_cmp_lt_u32 s4, 7")
A("s_cselect_b32 s22, 1835008, 0\ns_cselect_b32 s26, 1835008, 0\ns_cselect_b32 s30, 1835008, 0")
SX("s63", 0, ("s4", 4), ("s5", 0))
SX("s49", 0, ("s63", 0, 2, 7), ("s3", 4))
A("s_mul_i32 s49, s49, 3584")
SX("s50", 0, ("s63", 2, 0, 7))
A(f"s_add_u32 s49, s49, s50\ns_add_u32 s50, s49, {8*3584-1024}")
SX("s51", 0, ("s63", 14), ("s3", 7))
A(f"s_add_u32 s52, s51, {8*1024-1024}")
A("s_lshl_b32 s42, s3, 11")
def g_dma():
    A(f"s_add_u32 m0, s42, {FG}")
    A(f"buffer_load_dwordx4 v{wG}, {RC}, s49 offen {NT} lds")
    A(f"buffer_load_dwordx4 v{wG}, {RC}, s50 offen offset:1024 {NT} lds")
def u_dma():
    A(f"s_add_u32 m0, s42, {FG+16384}")
    A(f"buffer_load_dwordx4 v{wG}, {RD}, s49 offen {NT} lds")
    A(f"buffer_load_dwordx4 v{wG}, {RD}, s50 offen offset:1024 {NT} lds")
def gu_dma():
    g_dma(); u_dma()
def dn_dma():
    A(f"s_add_u32 m0, s42, {FD}")
    A(f"buffer_load_dwordx4 v{wDO}, {RE}, s51 offen {NT} lds")
    A(f"buffer_load_dwordx4 v{wDO}, {RE}, s52 offen offset:1024 {NT} lds")
def ffn_dma():
    gu_dma(); dn_dma()
GB1 = OPT["gu_b1"] and OPT["ser"] and not FF
SX("s98", ST5, ("s4", 8))
SX("s96", G5, ("s63", 10))
A(f"s_add_u32 s97, s96, {US5-G5}")
if OPT["ftouch"]:
    A("v_mul_u32_u24 v118, 3584, v2\nv_lshlrev_b32 v119, 10, v2")
SX("s44", QG, ("s58", 12), ("s3", 10))
vQ = 100
A(f"v_lshlrev_b32 v{vQO}, 4, v0")
VX(fMF, T2, 0, (0, 3, 7), (3, 1, 6), (4, 2, 4))
SX("s59", MGT + 2*32768, ("s63", 0, 2, 13), ("s3", 0, 2, 11))
SX("s40", 0, ("s3", 2, 0, 15)); A("s_sub_u32 s59, s59, s40")
VX(T2, 0, 0, (0, 3, 1))
A(f"v_xor_b32 v{T2}, v1, v{T2}\nv_lshlrev_b32 v{T2}, 4, v{T2}\nv_lshl_or_b32 v{T2}, v2, 8, v{T2}")
A(f"v_add_u32 v{vKA}, s43, v{T2}")
for t in range(1, 4):
    A(f"v_xor_b32 v{vKA+t}, {t*64:#x}, v{vKA}")
vQW, vQR, vVR, vMX, vPW, vPR, vMW = 3, 4, 5, 6, 113, 13, 112
SX("s40", QL, ("s3", 5))
VX(vQW, T2, "s40", (1, 4, 7), (5, 1, 4), (0, 1, 3))
VX(vQR, T2, QL, (4, 2, 7), (0, 3, 4))
A(f"v_bfe_u32 v{T0}, v0, 2, 3\nv_xor_b32 v{T0}, s3, v{T0}")
VX(vVR, T2, VREG, (2, 4, 8), (0, 2, 3))
A(f"v_lshl_or_b32 v{vVR}, v{T0}, 5, v{vVR}")
VX(vMX, T2, MISC, (0, 2, 5))
A(f"s_lshl_b32 s40, s3, 2\nv_add_u32 v{vMW}, s40, v{vMX}")
VX(vPR, T2, PL, (4, 2, 6), (0, 2, 4))
A(f"s_lshl_b32 s40, s3, 8\nv_add_u32 v{vPW}, s40, v{vPR}")
VX(vOAD, T2, 0, (0, 2, 12), (4, 2, 4))
SX("s53", OG, ("s4", 14), ("s3", 1, 0, 10), ("s5", 6), ("s3", 0, 1, 3))
VX(vSAD, T2, 0, (0, 2, 7))
SX("s54", SG, ("s4", 9), ("s5", 3))
A(f"s_mov_b32 s55, {f32(C1)}")
fWF = 128 if FF else 84
fDF = 144 if FF else 64
def ffn_frag_addr(wr, ta, tr):
    VX(tr, 32, 0, (2, 4, 7), (3, 2, 5), (0, 2, 3))
    SX("s40", 0, ("s3", 0, 2, 5)); A(f"v_xor_b32 v{wr}, s40, v{tr}")
    SX("s40", FG, ("s3", 2, 0, 14)); A(f"v_add_u32 v{wr}, s40, v{wr}")
    A(f"s_add_u32 s40, s42, {FD}\nv_add_u32 v{ta}, s40, v{tr}")
    for t in range(1, 4):
        A(f"v_xor_b32 v{ta+t}, {t*32:#x}, v{ta}")
def w_frags(wr):
    for k in range(4):
        for h in range(2):
            r = fWF + 4*k + 2*h
            A(f"ds_read_b64_tr_b16 v[{r}:{r+1}], v{wr} offset:{k*4096 + h*2048}")
def d_frags(ta):
    for tau in range(4):
        A(f"ds_read_b64_tr_b16 v[{fDF+2*tau}:{fDF+2*tau+1}], v{ta+tau}")
A(f"s_waitcnt vmcnt({7 if VT else 8})")
for T in range(2):
    for t in range(4):
        r = vKF + (T*4+t)*4
        A(f"ds_read_b128 v[{r}:{r+3}], v{vKA+t} offset:{T*4096}")
sk = L("nqp"); skm = L("mbw")
if OPT["mbg"] == 3:
    A(f"s_cmp_lt_u32 s3, 4\ns_cbranch_scc1 {skm}")
    if OPT["tok"]:
        sk3 = L("ntv")
        A(f"s_cmp_lg_u32 s3, 4\ns_cbranch_scc1 {sk3}")
        A(f"v_lshlrev_b32 v80, 7, v0\ns_movk_i32 s41, {TOK}")
        tok_wait(80, "s41", 84)
        A.label(sk3)
    A(f"s_waitcnt vmcnt(0)\ns_branch {sk}")
    A.label(skm)
    A.mute = True
A("s_barrier")
A(f"s_cmp_lt_u32 s3, 4\ns_cbranch_scc1 {skm}")
SX("s40", XL, ("s3", 0, 2, 8))
VX(82, 80, "s40", (0, 6, 2))
VX(83, 80, "s40", (2, 1, 7), (4, 2, 3))
A(f"v_lshlrev_b32 v84, 16, v{wC}\nv_and_b32 v85, 0xffff0000, v{wC}")
A(f"v_mul_f32 v86, {f32(-math.log2(math.e))}, v84\nv_mul_f32 v87, {f32(-math.log2(math.e))}, v85")
A("v_exp_f32 v86, v86\nv_exp_f32 v87, v87\nv_add_f32 v86, 1.0, v86\nv_add_f32 v87, 1.0, v87")
A("v_rcp_f32 v86, v86\nv_rcp_f32 v87, v87\nv_mul_f32 v84, v84, v86\nv_mul_f32 v85, v85, v87")
A("v_cvt_pk_bf16_f32 v84, v84, v85\nds_write_b32 v82, v84")
A("ds_read2_b64 v[144:147], v83 offset0:0 offset1:4\nds_read2_b64 v[148:151], v83 offset0:8 offset1:12")
VX(81, 80, 0, (2, 4, 7), (3, 2, 5), (0, 2, 3))
SX("s40", 0, ("s3", 0, 2, 5)); A(f"v_xor_b32 v81, s40, v81\nv_add_u32 v81, {PA}, v81")
for k in range(2):
    for sg in range(2):
        for hh in range(2):
            r = 128 + sg*8 + k*4 + hh*2
            A(f"ds_read_b64_tr_b16 v[{r}:{r+1}], v81 offset:{sg*8192 + k*4096 + hh*2048}")
SX("s40", 0, ("s58", 2, 0, 3), ("s7", 0))
A("s_cmp_eq_u32 s40, 16\ns_cselect_b32 s41, 1.0, 0")
for i in range(8): A(f"v_mov_b32 v{88+i}, s41")
VX(80, 81, 0, (5, 1, 12), (4, 1, 6), (2, 2, 4))
SX("s41", MGT, ("s58", 13), ("s3", 0, 2, 10), ("s46", 0))
A(f"v_mov_b32 v97, {sTAG}\nv_mov_b32 v99, {sTAG}")
A("s_waitcnt lgkmcnt(0)")
for k in range(2):
    for sg in range(2):
        mfma(88 + 4*sg, 144 + 4*k, 128 + sg*8 + k*4, 88 + 4*sg)
A("v_cmp_gt_u32 vcc, 32, v0")
A("v_cndmask_b32 v84, v92, v88, vcc")
pack4(84, 96, 98, 85)
setexec(0x11111111, 0x11111111)
A(f"buffer_store_dwordx4 v[96:99], v80, {RW}, s41 offen sc1")
fullexec()
STAMP(9)
A(f"s_waitcnt vmcnt(1)\ns_branch {sk}")
A.label(skm)
A.mute = False
def q_load():
    A(f"buffer_load_dwordx4 v[{vQ}:{vQ+3}], v{vQO}, {RW}, s44 offen sc1")
def q_chk():
    A(f"v_xor_b32 v{T0}, {sTAG}, v{vQ+1}\nv_bitop3_b32 v{T0}, v{vQ+3}, {sTAG}, v{T0} bitop3:0xbe\nv_cmp_ne_u32 vcc, 0, v{T0}")
poll(q_load, q_chk, sleep=OPT['s2'])
STAMP(4)
A(f"v_mov_b32 v{vQ+1}, v{vQ+2}")
A(f"ds_write_b64 v{vQW}, v[{vQ}:{vQ+1}]")
A.label(sk)
A("s_waitcnt lgkmcnt(0)\ns_barrier")
STAMP(5)
for t in range(4):
    A(f"ds_read_b128 v[{vQF+4*t}:{vQF+4*t+3}], v{vQR} offset:{t*512}")
if GB1: gu_dma()
if OPT["g_b1"]: g_dma()
def f_touch(n):
    A("s_mov_b64 exec, 0xffff")
    if n & 1: A(f"buffer_load_dword v{vPF}, v118, {RC}, s49 offen")
    if n & 2: A(f"buffer_load_dword v{vPF}, v118, {RD}, s49 offen")
    if n & 4: A(f"buffer_load_dword v{vPF}, v119, {RE}, s51 offen")
    fullexec()
if OPT["ftouch"]: f_touch(OPT["ftouch"])
vMF = 128
def mf_loads():
    tagged_loads(vMF, fMF, "s59")
def l_touch(a, b, c):
    sk = L("nlt")
    A(f"s_cmp_lg_u32 s3, 7\ns_cbranch_scc1 {sk}")
    A(f"buffer_load_dwordx4 v[136:139], v{vQO}, {RW}, {a} offen sc1")
    A(f"buffer_load_dwordx4 v[136:139], v{vQO}, {RW}, {b} offen sc1")
    A(f"buffer_load_dword v136, v{vSAD}, {RW}, {c} offen sc1")
    A.label(sk)
if OPT["mfb1"]:
    mf_loads()
    l_touch("s96", "s97", "s98")
A("s_waitcnt lgkmcnt(0)")
def v_tr(kb, T):
    r = vVF + kb*4 + T*2
    A(f"ds_read_b64_tr_b16 v[{r}:{r+1}], v{vVR} offset:{(32*kb+16*T)*256}")
EARLY_T = [0, 1] if OPT['ser'] else []
for kb in range(8):
    if kb < 4:
        for T in range(2):
            mfma(vS + 4*T, vKF + (T*4+kb)*4, vQF + 4*kb, None if kb == 0 else vS + 4*T)
    for T in EARLY_T: v_tr(kb, T)
for i in range(8):
    A(f"v_add_f32_dpp v{vS+i}, v{vS+i}, v{vS+i} row_ror:4 {DPPM}")
A(f"v_max3_f32 v{T0}, v{vS}, v{vS+1}, v{vS+2}\nv_max3_f32 v{T2}, v{vS+3}, v{vS+4}, v{vS+5}")
A(f"v_max3_f32 v{T0}, v{T0}, v{vS+6}, v{vS+7}\nv_max_f32 v{T3}, v{T0}, v{T2}\nv_max_f32 v{T0}, v{T0}, v{T2}")
A(f"v_permlane32_swap_b32 v{T0}, v{T3}")
A(f"v_max_f32 v{T2}, v{T0}, v{T3}\nv_max_f32 v{T0}, v{T0}, v{T3}")
A(f"v_permlane16_swap_b32 v{T0}, v{T2}")
A(f"v_max_f32 v{T0}, v{T0}, v{T2}")
A(f"ds_write_b32 v{vMW}, v{T0}")
STAMP(14)
if OPT["ftouch2"]: f_touch(OPT["ftouch2"])
if OPT["dn_p"] == 2: dn_dma()
if OPT["dn_p"] == 3: u_dma()
A("s_waitcnt lgkmcnt(0)\ns_barrier")
A(f"ds_read_b128 v[{vQF}:{vQF+3}], v{vMX}\nds_read_b128 v[{vQF+4}:{vQF+7}], v{vMX} offset:16")
A("s_waitcnt lgkmcnt(0)")
A(f"v_max3_f32 v{T0}, v{vQF}, v{vQF+1}, v{vQF+2}\nv_max3_f32 v{T2}, v{vQF+3}, v{vQF+4}, v{vQF+5}")
A(f"v_max3_f32 v{T0}, v{T0}, v{vQF+6}, v{vQF+7}\nv_max_f32 v{T0}, v{T0}, v{T2}")
A(f"v_mul_f32 v{vST}, s55, v{T0}")
for i in range(8):
    A(f"v_fma_f32 v{vS+i}, v{vS+i}, s55, -v{vST}")
for i in range(8):
    A(f"v_exp_f32 v{vS+i}, v{vS+i}")
for i in range(4):
    A(f"v_cvt_pk_bf16_f32 v{vP+i}, v{vS+2*i}, v{vS+2*i+1}")
A(f"ds_write_b128 v{vPW}, v[{vP}:{vP+3}]")
rowsum([vS, vS+4])
A(f"v_add_f32 v{T0}, v{vS}, v{vS+4}\nv_add_f32 v{T3}, v{vS}, v{vS+4}")
A(f"v_permlane32_swap_b32 v{T0}, v{T3}")
A(f"v_add_f32 v{T2}, v{T0}, v{T3}\nv_add_f32 v{T0}, v{T0}, v{T3}")
A(f"v_permlane16_swap_b32 v{T0}, v{T2}")
A(f"v_add_f32 v{T0}, v{T0}, v{T2}")
A(f"ds_write_b32 v{vMW}, v{T0} offset:128")
if OPT["dn_p"] == 3: dn_dma()
A("s_waitcnt lgkmcnt(0)\ns_barrier")
STAMP(3)
if STAMPS: A("s_waitcnt lgkmcnt(0)")
LATE_T = [T for T in range(2) if T not in EARLY_T]
A(f"ds_read_b128 v[{vQF}:{vQF+3}], v{vMX} offset:128\nds_read_b128 v[{vQF+4}:{vQF+7}], v{vMX} offset:144")
for kb in range(8):
    r = vKF + kb*4
    A(f"ds_read_b128 v[{r}:{r+3}], v{vPR} offset:{kb*256}")
def st_pub(vm=None):
    sk = L("nst"); sk2 = L("nsu")
    A(f"s_cmp_lg_u32 s3, 0\ns_cbranch_scc1 {sk}")
    A("s_waitcnt lgkmcnt(8)")
    rowsum([vQF, vQF+4])
    A(f"v_add_f32 v{vST+1}, v{vQF}, v{vQF+4}")
    A("s_mov_b64 exec, 15")
    A(f"buffer_store_dwordx2 v[{vST}:{vST+1}], v{vSAD}, {RW}, s54 offen")
    fullexec()
    if vm is not None:
        A(f"s_waitcnt vmcnt({vm})\ns_branch {sk2}")
    A.label(sk)
    if vm is not None:
        A(f"s_waitcnt vmcnt({vm-1})")
        A.label(sk2)
if LATE_T:
    st_pub(1)
    A("s_waitcnt lgkmcnt(0)\ns_barrier")
    STAMP(6)
    if STAMPS: A("s_waitcnt lgkmcnt(0)")
    per = len(LATE_T)
    AHEAD = 8 if per == 1 else 6
    for kb in range(AHEAD):
        for T in LATE_T: v_tr(kb, T)
    for kb in range(8):
        A(f"s_waitcnt lgkmcnt({(min(8, AHEAD + kb) - kb - 1) * per})")
        mfma(vOA, vVF + kb*4, vKF + kb*4, None if kb == 0 else vOA)
        if AHEAD + kb < 8:
            for T in LATE_T: v_tr(AHEAD + kb, T)
else:
    st_pub()
    if OPT["dn_p"] == 1: dn_dma()
    for kb in range(8):
        A(f"s_waitcnt lgkmcnt({7-kb})")
        mfma(vOA, vVF + kb*4, vKF + kb*4, None if kb == 0 else vOA)
setexec(0x000f000f, 0x000f000f)
A(f"v_cvt_pk_bf16_f32 v{vP}, v{vOA}, v{vOA+1}\nv_cvt_pk_bf16_f32 v{vP+1}, v{vOA+2}, v{vOA+3}")
A(f"buffer_store_dwordx2 v[{vP}:{vP+1}], v{vOAD}, {RW}, s53 offen")
fullexec()
STAMP(7)
A("s_cmp_lt_u32 s4, 7\ns_cbranch_scc1 L_ffn")
A("s_cmp_lg_u32 s3, 0\ns_cbranch_scc1 L_exit")
VX(T1, T2, 0, (3, 1, 14), (0, 3, 11))
A(f"s_mov_b32 s46, {X4 + 7*128:#x}")
poll(lambda: A(f"buffer_load_dword v16, v{T1}, {RW}, s46 offen sc1"), lambda: A(f"v_cmp_eq_u32 vcc, -1, v16"), sleep=8)
A("s_branch L_exit")
A.label("L_ffn")
SX("s55", ST5, ("s4", 8))
SX("s53", G5, ("s63", 10))
A(f"s_add_u32 s54, s53, {US5-G5}")
if not OPT["mfb1"]:
    l_touch("s53", "s54", "s55")
    mf_loads()
DL = OPT["dn_late"]
NF = 0
if not GB1 and OPT["dn_p"] != 3:
    if OPT["obar"]: A("s_barrier")
    if not OPT["g_b1"]:
        g_dma(); NF += 2
    u_dma(); NF += 2
if not DL and not OPT["dn_p"]:
    if (GB1 and OPT["obar"]) or OPT["gufirst"]: A("s_barrier")
    dn_dma(); NF += 2
fYW, fYR, fWR, fGA, fGR, fSTA, fY6A = 113, 114, 115, 116, 118, 119, 120
fG, fU, fS = 121, 122, 117
wOF, wTA = fMF, 108
if not FF: ffn_frag_addr(fWR, wTA, wTR)
A("s_lshr_b32 s56, s3, 2\ns_and_b32 s57, s3, 3")
VX(fYR, 32, YL0, (0, 6, 4))
A(f"s_lshl_b32 s40, s3, 10\nv_add_u32 v{fYW}, s40, v{fYR}")
VX(fGA, 32, 0, (0, 6, 2))
SX("s61", G5 - 64, ("s63", 2, 0, 12), ("s57", 10), ("s63", 0, 2, 8), ("s56", 7))
A(f"s_add_u32 s62, s61, {US5-G5}")
VX(fGR, 32, 0, (2, 1, 7), (3, 1, 6), (4, 2, 4), (0, 2, 2))
VX(fSTA, 32, 0, (0, 3, 5), (3, 1, 4))
VX(fY6A, 32, 0, (3, 1, 14), (5, 1, 12), (4, 1, 4))
SX("s47", Y4, ("s56", 14), ("s63", 0, 2, 12), ("s57", 10))
SX("s96", Y6, ("s3", 16), ("s63", 5))
A("s_add_u32 s97, s96, 8192\ns_add_u32 s98, s96, 32768\ns_add_u32 s99, s96, 40960")
A(f"s_mov_b32 s41, {f32(1.0/512)}\ns_mov_b32 s43, {f32(1e-5)}")
poll(mf_loads, lambda: tagged_chk([vMF], 33), first_issued=True, first_wait=NF, sleep=4)
tagged_pack(vMF)
A(f"ds_write_b128 v{fYW}, v[{vMF}:{vMF+3}]")
def y_load():
    A(f"buffer_load_dwordx4 v[76:79], v{wOF}, {RW}, s47 offen sc1")
GF = OPT["gufirst"]
A(f"s_waitcnt vmcnt({2 if GF else 0}) lgkmcnt(0)\ns_barrier")
STAMP(10)
y_load()
if DL: dn_dma()
YO = [16, 20, 24, 28, 32, 36, 100, 104]
if not FF: w_frags(fWR)
for u in range(8):
    A(f"ds_read_b128 v[{YO[u]}:{YO[u]+3}], v{fYR} offset:{u*1024}")
A("s_waitcnt lgkmcnt(0)")
for k in range(4):
    for pi in range(2):
        mfma(wD + 4*pi, YO[4*pi+k], fWF + 4*k, None if k == 0 else wD + 4*pi)
rowsum([wD, wD+4])
A(f"v_permlane16_swap_b32 v{wD}, v{wD+4}")
A(f"v_add_f32 v{wD+1}, v{wD}, v{wD+4}\nv_add_f32 v{wD}, v{wD}, v{wD+4}")
A(f"v_permlane16_swap_b32 v{wD}, v{wD+1}")
A(f"v_cvt_pk_bf16_f32 v126, v{wD}, v{wD+1}")
setexec(0xffff0000, 0x0000ffff)
A(f"buffer_store_dword v126, v{fGA}, {RW}, s62 offen {'' if OPT['uslocal'] else 'sc1'}")
fullexec()
STAMP(1)
def us_loads():
    for k in range(4):
        A(f"buffer_load_dword v{40+k}, v{fGR}, {RW}, s54 offen offset:{256*k} sc1")
if not DL and not GF: d_frags(wTA)
poll(y_load, lambda: chk_empty4(76, 33), first_issued=True, first_wait=3 if DL else 1)
STAMP(11)
A(f"ds_write_b128 v{fYW}, v[76:79] offset:8192")
us_loads()
A("s_waitcnt lgkmcnt(0)\ns_barrier")
for u in range(8):
    A(f"ds_read_b128 v[{YO[u]}:{YO[u]+3}], v{fYR} offset:{8192+u*1024}")
for u in range(8):
    A(f"s_waitcnt lgkmcnt({7-u})")
    mfma(wD, YO[u], fWF + 4*(u & 3), None if u == 0 else wD)
A(f"v_add_f32 v{wD}, v{wD}, v{wD+1}\nv_add_f32 v{wD+2}, v{wD+2}, v{wD+3}")
A(f"v_add_f32 v{wD+1}, v{wD}, v{wD+2}\nv_add_f32 v{wD}, v{wD}, v{wD+2}")
A(f"v_permlane16_swap_b32 v{wD}, v{wD+1}")
A(f"v_add_f32 v{fG}, v{wD}, v{wD+1}")
def g_store(fl):
    setexec(0xffff0000, 0x0000ffff)
    A(f"buffer_store_dword v{fG}, v{fGA}, {RW}, s61 offen {fl}")
g_store("")
fullexec()
STAMP(12)
def g_loads():
    A(f"buffer_load_dwordx4 v[24:27], v{fSTA}, {RW}, s55 offen sc1")
    for k in range(4):
        A(f"buffer_load_dword v{20+k}, v{fGR}, {RW}, s53 offen offset:{256*k} sc1")
poll(us_loads, lambda: chk_empty4(40, 33), first_issued=True, first_wait=1)
g_loads()
if DL or GF: d_frags(wTA)
for k in range(4):
    A(f"v_lshlrev_b32 v{44+k}, 16, v{40+k}\nv_and_b32 v{40+k}, 0xffff0000, v{40+k}")
rowsum([44, 40])
A(f"v_mov_b32 v{fU}, v44\nv_mov_b32 v{fS}, v40")
def g_chk():
    A("v_add_f32 v24, v24, v26\nv_add_f32 v25, v25, v27")
    A("v_add_f32 v20, v20, v21\nv_add_f32 v22, v22, v23")
    A(f"v_add_f32_dpp v24, v24, v24 quad_perm:[1,0,3,2] {DPPM}\nv_add_f32_dpp v25, v25, v25 quad_perm:[1,0,3,2] {DPPM}")
    A("v_add_f32 v20, v20, v22")
    A(f"v_add_f32_dpp v24, v24, v24 quad_perm:[2,3,0,1] {DPPM}\nv_add_f32_dpp v25, v25, v25 quad_perm:[2,3,0,1] {DPPM}")
    A("v_add_f32 v26, v24, v25")
    A("v_cmp_u_f32 vcc, v20, v26")
poll(g_loads, g_chk, first_issued=True)
STAMP(13)
A(f"v_add_f32_dpp v24, v24, v24 row_half_mirror {DPPM}\nv_add_f32_dpp v25, v25, v25 row_half_mirror {DPPM}")
A("v_mov_b32 v26, s43")
A("v_mul_f32 v24, s41, v24")
A("v_fmac_f32 v26, s41, v25")
A("v_fma_f32 v26, -v24, v24, v26")
A(f"v_fma_f32 v20, -v24, v{fU}, v20")
A("v_rsq_f32 v26, v26")
A(f"v_fma_f32 v20, v20, v26, v{fS}")
A("v_max_f32 v21, 0, v20")
A(f"v_mul_f32_dpp v22, v20, v21 row_shl:4 {DPPM}")
pack4(22, 24, 25, 23)
if DL or GF: A("s_waitcnt lgkmcnt(0)")
for tau in range(4):
    d = 32 + 4*tau
    A(f"v_mfma_f32_16x16x16_bf16 v[{d}:{d+3}], v[{fDF+2*tau}:{fDF+2*tau+1}], v[24:25], 0")
setexec(0x01010101, 0x01010101)
for tau in range(4):
    d = 32 + 4*tau
    A(f"buffer_store_dwordx4 v[{d}:{d+3}], v{fY6A}, {RW}, s{96+tau} offen sc1")
STAMP(8)
A("s_waitcnt vmcnt(0)")
g_store("sc1")
if OPT["uslocal"]: A(f"buffer_store_dword v126, v{fGA}, {RW}, s62 offen sc1")
A("s_branch L_exit")

A.seg(1)
A.label("L_W")
def w_common(first=True):
    kload(RB, 32); kload(RF, 88)
    if first:
        A(f"s_load_dword {sTAG}, s[16:17], 0")
        ids2()
    A(f"v_lshl_or_b32 v{wO}, v{T0}, 10, v{T1}")
    srd(RB, 4194304); A("s_movk_i32 s26, 2048")
def wq_setup(sh):
    A(f"v_lshl_or_b32 v{wQ}, v{T0}, 13, v{T1}")
    A("s_mov_b32 s10, 4194304")
    A(f"s_lshl_b32 s48, s3, {12-sh}")
    SX("s43", 0, ("s6", 8), ("s48", 7, 0, 0))
    SX("s44", 0, ("s43", 13), ("s4", 10), ("s46", 0))
def wq_dma():
    A(f"s_add_u32 m0, s48, {WQL}")
    for u in range(4):
        if u: A(f"s_add_u32 s44, s44, {8*8192-1024}")
        A(f"buffer_load_dwordx4 v{wQ}, {RA}, s44 offen offset:{u*1024} {NT} lds")
def c_setup():
    VX(T2, T3, 0, (5, 1, 10), (0, 5, 2))
if "noW" in OPT["abl"]:
    ids2(); A("s_waitcnt lgkmcnt(0)\ns_branch L_exit")
if "noA" in OPT["abl"]: A("s_branch L_nA")
A("s_cmp_ge_u32 s4, 4\ns_cbranch_scc1 L_nA")
A("s_lshl_b32 s49, s58, 7")
A("s_cmp_lt_u32 s3, 256\ns_cbranch_scc1 L_A1")
A("s_sub_u32 s40, s3, 256")
SX("s61", 0, ("s7", 6), ("s40", 2, 0, 0))
A(f"s_mul_i32 s61, s61, 6144\ns_add_u32 s61, s61, s49\ns_add_u32 s62, s61, {8*6144-1024}")
A(f"s_lshl_b32 s40, s40, 5\ns_add_u32 m0, s40, {PA}")
if OPT["diag"] == 2: STAMP(1)
A("s_waitcnt lgkmcnt(0)")
if OPT["diag"] not in (2, 3, 4): STAMP(1)
A(f"buffer_load_dwordx4 v{wM}, {RC}, s61 offen {NT} lds")
A(f"buffer_load_dwordx4 v{wM}, {RC}, s62 offen offset:1024 {NT} lds")
A(f"s_add_u32 m0, s40, {PA+8192-1024}")
A(f"buffer_load_dwordx4 v{wM}, {RC}, s61 offen offset:1024 {NT} lds")
A(f"buffer_load_dwordx4 v{wM}, {RC}, s62 offen offset:2048 {NT} lds")
TK = OPT["tok"]
AH = OPT["ahold"]
def clears():
    A("v_mov_b32 v32, -1\nv_mov_b32 v33, -1\nv_mov_b32 v34, -1\nv_mov_b32 v35, -1")
    SX("s54", CLR, ("s49", 9), ("s7", 13), ("s60", 0))
    A("v_lshlrev_b32 v38, 4, v0")
    A(f"buffer_store_dwordx4 v[32:35], v38, {RW}, s54 offen sc1")
    A(f"buffer_store_dwordx4 v[32:35], v38, {RW}, s54 offen offset:1024 sc1")
A("s_mov_b32 s60, s40")
if not TK:
    srd(RW, WS_BYTES); clears()
if AH < 8:
    wq_setup(6)
    A("s_barrier")
    wq_dma()
if OPT["diag"] == 3: STAMP(1)
cont(5)
if OPT["diag"] == 4: STAMP(1)
w_common()
if AH == 8: wq_setup(0)
NB = (4 if AH < 8 else 0)
A(f"s_waitcnt vmcnt({NB})")
if OPT["abl"]: STAMP(9)
if STAMPS == 3: STAMP(12)
A("s_barrier")
if AH == 8:
    A("s_barrier")
    wq_dma()
if TK: clears()
tr_setup()
A("s_waitcnt lgkmcnt(0)")
A(f"s_add_u32 {sTAG}, {sTAG}, {TAGC:#x}")
A("s_branch L_B")
A.seg(1.5 if OPT["wfirst"] else 3)
A.label("L_A1")
c_setup()
VX(36, T3, 0, (4, 1, 10), (5, 1, 8), (0, 4, 4))
A("s_movk_i32 s26, 2048")
A("s_waitcnt lgkmcnt(0)")
STAMP(1)
A(f"buffer_load_dword v{wC}, v{T2}, {RE}, s46 offen {SNT}")
A(f"buffer_load_dwordx4 v[{wX}:{wX+3}], v36, {RD}, 0 offen {SNT}")
A(f"buffer_load_dwordx4 v[{wX+4}:{wX+7}], v36, {RD}, 0 offen offset:512 {SNT}")
VX(37, T3, 0, (4, 1, 10), (0, 4, 1))
A(f"s_lshr_b32 s50, s3, 1\ns_add_u32 s50, s50, s49\nv_mov_b32 v{wXS}, 0")
A(f"buffer_load_short_d16_hi v{wXS}, v37, {RD}, s50 offen {SNT}")
if OPT["wfirst"] == 3: cont(4)
if AH < 8: A("s_barrier")
A(f"s_load_dword {sTAG}, s[16:17], 0")
ids2()
tr_setup()
VX(39, 32, 0, (4, 1, 6), (2, 2, 4))
SX("s53", H1G, ("s58", 12), ("s3", 10), ("s46", 0))
A("s_cmp_eq_u32 s7, 0\ns_cselect_b32 s54, 1.0, 0")
unit_pre("0", "s54", PA)
silu_operand(3)
if OPT["abl"]: STAMP(6)
if STAMPS == 3: STAMP(11)
A(f"s_waitcnt vmcnt(0)")
A("v_mov_b32 v36, 0\nv_mov_b32 v37, 0\nv_mov_b32 v38, 0x3f803f80")
for i in range(8):
    A(f"v_dot2c_f32_bf16 v36, v{wX+i}, v38\nv_dot2c_f32_bf16 v37, v{wX+i}, v{wX+i}")
for m in ("quad_perm:[1,0,3,2]", "quad_perm:[2,3,0,1]", "row_half_mirror", "row_mirror"):
    A(f"v_add_f32_dpp v36, v36, v36 {m} {DPPM}\nv_add_f32_dpp v37, v37, v37 {m} {DPPM}")
A("v_mov_b32 v38, v36\nv_mov_b32 v35, v37")
A("v_permlane32_swap_b32 v36, v38\nv_permlane32_swap_b32 v37, v35")
A("v_add_f32 v36, v36, v38\nv_add_f32 v37, v37, v35")
A(f"v_mul_f32 v36, {f32(1.0/512)}, v36\nv_mov_b32 v38, {f32(1e-5)}\nv_fmac_f32 v38, {f32(1.0/512)}, v37")
A("v_fma_f32 v38, -v36, v36, v38\nv_rsq_f32 v38, v38")
A(f"v_sub_f32 v{wXS}, v{wXS}, v36\nv_mul_f32 v{wXS}, v{wXS}, v38")
A(f"s_add_u32 {sTAG}, {sTAG}, {TAGC:#x}")
A(f"v_mov_b32 v{wD+9}, {sTAG}\nv_mov_b32 v{wD+11}, {sTAG}")
if OPT["abl"]: STAMP(7)
if STAMPS == 3: STAMP(12)
A("s_waitcnt lgkmcnt(0)\ns_barrier")
if OPT["abl"]: STAMP(10)
unit_go()
A(f"v_fma_f32 v32, v{wXS}, v{wD+4}, v{wD}")
pack4(32, wD+8, wD+10, 33)
setexec(0x11111111, 0)
A(f"buffer_store_dwordx4 v[{wD+8}:{wD+11}], v39, {RW}, s53 offen sc1")
fullexec()
STAMP(14)
if OPT["diag"] == 1:
    A("s_waitcnt vmcnt(0)"); STAMP(13)
if AH == 8: A("s_barrier")
wq_setup(0)
wq_dma()
w_common(False)
A("s_branch L_B")
A.seg(2)
A.label("L_nA")
wq_setup(6)
A("s_waitcnt lgkmcnt(0)")
STAMP(1)
if OPT["wqpf"] == 22:
    sk = L("nh0")
    A(f"s_cmp_lt_u32 s3, 256\ns_cbranch_scc1 {sk}")
wq_dma()
if OPT["wqpf"] == 22: A.label(sk)
MBW = False
MBN = OPT["mbg"] == 3
if MBN:
    SX("s51", 0, ("s7", 6), ("s3", 3, 0, 0))
    A("s_mul_i32 s51, s51, 6144\ns_lshl_b32 s42, s3, 4")
    SX("s40", 2048, ("s58", 0, 3, 8)); A("s_add_u32 s51, s51, s40")
    c_setup()
    A(f"buffer_load_dword v{wC}, v{T2}, {RE}, s46 offen {SNT}")
    if OPT["mbwait"] >= 0: A(f"s_waitcnt vmcnt({OPT['mbwait']})")
    else: A("s_barrier")
    for j, o in enumerate((0, 128, 2048, 2048+128)):
        A(f"s_add_u32 m0, s42, {PB + j*8192 - o}")
        A(f"buffer_load_dwordx4 v{wM}, {RC}, s51 offen offset:{o} {NT} lds")
cont(6)
w_common()
tr_setup()
A("s_waitcnt lgkmcnt(0)")
A(f"s_add_u32 {sTAG}, {sTAG}, {TAGC:#x}")
A.label("L_B")
if MBW:
    A(f"v_mul_u32_u24 v{wM}, 6144, v{T0}\nv_add_u32 v{wM}, v{wM}, v{T1}")
    srd(RC, 3145728)
    SX("s96", 0, ("s7", 6), ("s3", 3))
    A("s_mul_i32 s96, s96, 6144")
    SX("s40", 2048, ("s58", 8)); A("s_add_u32 s96, s96, s40")
    SX("s97", MGT, ("s58", 13), ("s3", 0, 2, 10), ("s46", 0))
    SX("s40", 0, ("s58", 2, 0, 3), ("s7", 0))
    A("s_cmp_eq_u32 s40, 16\ns_cselect_b32 s98, 1.0, 0")
    VX(122, 32, 0, (5, 1, 12), (4, 1, 6), (2, 2, 4))
srd(RF, 2048)
SX("s47", 0, ("s4", 19), ("s43", 10), ("s46", 0))
wRW, wRR, wOF, wTA = 14, 15, 72, 108
SX("s40", RED, ("s3", 9)); VX(wRW, 32, "s40", (0, 6, 2))
SX("s40", RED, ("s3", 8)); VX(wRR, 32, "s40", (0, 6, 2))
VX(wOF, 32, 0, (0, 3, 7), (3, 1, 6), (4, 2, 4))
SX("s53", H1G, ("s43", 6))
if TK:
    VX(T3, 32, 0, (0, 6, 7)); A(f"s_movk_i32 s57, {TOK}")
else:
    VX(T3, 32, 0, (0, 2, 12))
    A("s_xor_b32 s57, s6, 1")
    SX("s57", H1G + 4, ("s57", 14), ("s3", 7))
wQA = 73; wQD = 76
VX(wQA, 32, 0, (5, 1, 12), (0, 5, 2))
SX("s56", QG, ("s4", 13), ("s5", 8), ("s3", 7))
A(f"v_add_u32 v{wTA}, s48, v{wTR}")
for t in range(1, 4):
    A(f"v_xor_b32 v{wTA+t}, {t*32:#x}, v{wTA}")
A(f"v_mov_b32 v{wQD+1}, {sTAG}\nv_mov_b32 v{wQD+3}, {sTAG}")
wGA, wCB, wXA, wXAD = 74, 75, 80, 81
tE, tOUT, tBP, tOF, tL16 = 84, 114, 115, 72, 116
SX("s59", Y6, ("s5", 15), ("s4", 12))
A("s_cmp_eq_u32 s3, 7\ns_cselect_b32 s40, 0, -1")
A("v_mov_b32 v118, s40\nv_mov_b32 v119, s40\nv_lshlrev_b32 v117, 3, v0")
SX("s41", 0, ("s3", 9), ("s59", 0))
VX(T1, 32, 0, (0, 4, 6), (4, 2, 4))
SX("s51", OG, ("s4", 14), ("s43", 5))
SX("s54", SG, ("s4", 9), ("s43", 7, 0, 7))
A(f"v_lshlrev_b32 v{T0}, 2, v1\nv_xor_b32 v{T0}, v0, v{T0}\nv_and_b32 v{T0}, 7, v{T0}\nv_lshlrev_b32 v{T0}, 3, v{T0}")
A(f"v_lshrrev_b32 v32, 5, v0\nv_lshl_or_b32 v{T0}, v32, 6, v{T0}")
VX(wXAD, 32, 0, (5, 1, 6), (2, 2, 4), (4, 1, 3))
SX("s60", X4, ("s7", 11), ("s3", 10), ("s6", 14), ("s4", 7))
A(f"s_add_u32 s52, s60, {Y4-X4}")
A("v_and_b32 v32, 1, v0\nv_lshlrev_b32 v32, 4, v32\nv_mov_b32 v33, 0x3f80\nv_lshlrev_b32 v32, v32, v33")
A("v_lshrrev_b32 v33, 2, v2\nv_sub_u32 v33, v1, v33\nv_bfe_u32 v34, v0, 1, 1\nv_lshl_or_b32 v33, v33, 1, v34")
for r in range(2):
    A(f"v_cmp_eq_u32 vcc, {r}, v33")
    A(f"v_cndmask_b32 v{tE+r}, 0, v32, vcc")
    A(f"v_mov_b32 v{tE+6+r}, v{tE+r}")
for r in (2, 3, 4, 5):
    A(f"v_mov_b32 v{tE+r}, 0")
VX(38, 33, 0, (0, 1, 3), (5, 1, 1), (4, 1, 2))
SX("s40", 0, ("s4", 0, 2, 4)); A(f"v_add_u32 v{tOUT}, s40, v38")
SX("s40", 0, ("s4", 2, 0, 7)); A(f"v_lshl_add_u32 v{tBP}, v{tOUT}, 1, s40")
SX("s62", 0, ("s4", 2, 0, 10), ("s5", 6))
A(f"v_lshlrev_b32 v{tL16}, 4, v0")
SX("s49", X4, ("s5", 10))
A("s_add_u32 s50, s49, 16384")
SX("s55", ST5, ("s4", 8), ("s7", 5), ("s6", 3))
VX(113, 33, 0, (5, 1, 4), (4, 1, 2))
SX("s61", MGT, ("s7", 12), ("s3", 11))
SX("s40", MGT + 3*32768, ("s5", 11))
A("s_cmp_eq_u32 s3, 2\ns_cselect_b32 s61, s40, s61\ns_cselect_b32 s40, 0, 0x10000\ns_add_u32 s63, s61, s40")
VX(120, 33, 0, (5, 1, 10), (0, 5, 1))
SX("s42", 0, ("s7", 7), ("s3", 6))
A(f"v_mov_b32 v{wXA}, 0")
def blk_frags(off):
    for t in range(4):
        for h in range(2):
            r = wWF + 4*t + 2*h
            A(f"ds_read_b64_tr_b16 v[{r}:{r+1}], v{wTA+t} offset:{off + h*2048}")
def h1_loads():
    tagged_loads(16, wOF, "s53")
    if not TK: A(f"buffer_load_dword v33, v{T3}, {RW}, s57 offen sc1")
NH = 2 if TK else 3
if MBN:
    VX(39, 32, 0, (5, 1, 12), (4, 1, 6), (2, 2, 4))
    sk = L("nmb")
    A(f"s_cmp_lt_u32 s4, 4\ns_cbranch_scc1 {sk}")
    SX("s96", MGT, ("s58", 0, 3, 13), ("s3", 2, 0, 16), ("s3", 0, 2, 10), ("s46", 0))
    SX("s40", 0, ("s58", 2, 1, 3), ("s3", 2, 0, 4), ("s7", 0))
    A("s_cmp_eq_u32 s40, 16\ns_cselect_b32 s97, 1.0, 0")
    SX("s98", PB, ("s3", 2, 0, 14))
    silu_operand(4)
    A.label(sk)
def mb_blk(early):
    sk = L("nmc")
    A(f"s_cmp_lt_u32 s4, 4\ns_cbranch_scc1 {sk}")
    VX(39, 32, 0, (5, 1, 12), (4, 1, 6), (2, 2, 4))
    unit_pre("s97", "s97", "s98")
    A(f"v_mov_b32 v{wD+9}, {sTAG}\nv_mov_b32 v{wD+11}, {sTAG}")
    if early: A(f"s_waitcnt vmcnt({NH}) lgkmcnt(0)\ns_barrier")
    unit_go()
    A("v_cmp_gt_u32 vcc, 32, v0")
    A(f"v_cndmask_b32 v32, v{wD+4}, v{wD}, vcc")
    pack4(32, wD+8, wD+10, 34)
    setexec(0x11111111, 0x11111111)
    A(f"buffer_store_dwordx4 v[{wD+8}:{wD+11}], v39, {RW}, s96 offen sc1")
    fullexec()
    STAMP(6)
    A.label(sk)
A(f"s_waitcnt vmcnt({OPT['h1at']})")
h1_loads()
if OPT["mbearly"]: mb_blk(True)
A(f"s_waitcnt vmcnt({NH})")
if TK:
    sk = L("ntk")
    A(f"s_cmp_ge_u32 s4, 4\ns_cbranch_scc1 {sk}\ns_cmp_lt_u32 s3, 4\ns_cbranch_scc1 {sk}")
    SX("s40", TOK - 16, ("s58", 10), ("s46", 0), ("s3", 2))
    A(f"s_mov_b64 exec, 1\nbuffer_store_dword v{wQD+1}, v0, {RW}, s40 offen sc1")
    fullexec()
    A.label(sk)
blk_frags(WQL)
STAMP(3)
if OPT["abl"] and "toq" not in OPT["abl"]: A("s_branch L_exit")
if OPT["mbearly"]:
    sk = L("nw0")
    A(f"s_cmp_ge_u32 s4, 4\ns_cbranch_scc1 {sk}")
    if TK: A(f"s_cmp_ge_u32 s3, 4\ns_cbranch_scc1 {sk}")
    A("s_waitcnt vmcnt(0)")
    A.label(sk)
poll(h1_loads, lambda: tagged_chk([16], 33, None if TK else 33), first_issued=True, first_wait=OPT["mbearly"], sleep=OPT["s2"])
STAMP(4)
if OPT["diag"] == 1:
    A(f"s_waitcnt lgkmcnt(0)\ns_mul_i32 s40, {sCNT}, 10\ns_add_u32 s88, s64, s40")
tagged_pack(16)
A("s_waitcnt lgkmcnt(0)")
def blk_mfma(op):
    for t in range(4):
        mfma(wD + 4*t, op, wWF + 4*t, None)
def blk_reduce():
    A(f"v_permlane16_swap_b32 v{wD}, v{wD+4}\nv_permlane16_swap_b32 v{wD+8}, v{wD+12}")
    A(f"v_add_f32 v{wD}, v{wD}, v{wD+4}\nv_add_f32 v{wD+8}, v{wD+8}, v{wD+12}")
    A(f"ds_write2st64_b32 v{wRW}, v{wD}, v{wD+8} offset0:0 offset1:1")
    A("s_waitcnt lgkmcnt(0)\ns_barrier")
def blk_final():
    for i in range(4):
        A(f"ds_read2st64_b32 v[{32+2*i}:{33+2*i}], v{wRR} offset0:{4*i} offset1:{4*i+2}")
    A("s_waitcnt lgkmcnt(0)")
    A("v_add_f32 v32, v32, v33\nv_add_f32 v34, v34, v35\nv_add_f32 v36, v36, v37\nv_add_f32 v38, v38, v39")
    A("v_add_f32 v32, v32, v34\nv_add_f32 v36, v36, v38\nv_add_f32 v32, v32, v36")
blk_mfma(16)
rowsum([wD, wD+4, wD+8, wD+12])
blk_reduce()
sk = L("nq")
A(f"s_cmp_ge_u32 s3, 2\ns_cbranch_scc1 {sk}")
blk_final()
pack4(32, wQD, wQD+2, 33)
setexec(0x11111111, 0x11111111)
A(f"buffer_store_dwordx4 v[{wQD}:{wQD+3}], v{wQA}, {RW}, s56 offen")
fullexec()
A.label(sk)
STAMP(5)
if OPT["abl"]: A("s_branch L_exit")
if not OPT["mbearly"]: mb_blk(False)
if TK:
    sk = L("ntc")
    A(f"s_cmp_lg_u32 s3, 3\ns_cbranch_scc1 {sk}")
    tok_wait(T3, "s57", 32)
    A.label(sk)
A("s_barrier")
def o_loads():
    A(f"buffer_load_dwordx4 v[104:107], v{T1}, {RW}, s51 offen sc1")
def mc_loads():
    tagged_loads(16, wOF, "s61"); tagged_loads(24, wOF, "s63")
def wo_dma():
    A(f"s_add_u32 m0, s48, {WOL}")
    for u in range(4):
        if u: A(f"s_add_u32 s47, s47, {8*1024-1024}")
        A(f"buffer_load_dwordx4 v{wO}, {RB}, s47 offen offset:{u*1024} {NT} lds")
if MBW:
    SX("s40", PB, ("s3", 10)); A("s_mov_b32 m0, s40")
    A(f"buffer_load_dwordx4 v{wM}, {RC}, s96 offen {NT} lds")
    A(f"s_add_u32 m0, s40, {8192-128}")
    A(f"buffer_load_dwordx4 v{wM}, {RC}, s96 offen offset:128 {NT} lds")
sk = L("nc0")
A(f"s_cmp_ge_u32 s3, 3\ns_cbranch_scc1 {sk}")
MCE = not MBW and (not MBN or OPT['mbearly'])
if MCE: mc_loads()
A(f"s_cmp_lg_u32 s58, 0\ns_cbranch_scc1 {sk}")
A(f"buffer_load_short_d16_hi v{wXA}, v120, {RD}, s42 offen")
A.label(sk)
A(f"buffer_store_dwordx2 v[118:119], v117, {RW}, s41 offen sc1")
if OPT["ltouch"]: o_loads()
WOE = MBW and OPT["wo_mb"]
if MBW:
    if WOE:
        A("s_barrier"); wo_dma()
    A(f"ds_read2_b64 v[{wXO}:{wXO+3}], v83 offset0:0 offset1:4\nds_read2_b64 v[{wXO+4}:{wXO+7}], v83 offset0:8 offset1:12")
    unit_pre("s98", "s98", PB)
    A(f"v_mov_b32 v{wD+9}, {sTAG}\nv_mov_b32 v{wD+11}, {sTAG}")
    A(f"s_waitcnt vmcnt({6 if WOE else 2}) lgkmcnt(0)\ns_barrier")
    sk = L("nmw")
    A(f"s_cmp_lt_u32 s3, 4\ns_cbranch_scc1 {sk}")
    unit_go()
    A("v_cmp_gt_u32 vcc, 32, v0")
    A(f"v_cndmask_b32 v32, v{wD+4}, v{wD}, vcc")
    pack4(32, wD+8, wD+10, 33)
    setexec(0x11111111, 0x11111111)
    A(f"buffer_store_dwordx4 v[{wD+8}:{wD+11}], v122, {RW}, s97 offen sc1")
    fullexec()
    STAMP(6)
    A.label(sk)
if OPT["gtrg"]:
    A("s_cmp_lg_u32 s3, 3\ns_cbranch_scc1 L_trgd")
    if OPT["gmask"] == 7:
        VX(39, 32, 0, (0, 3, 7)); A(f"s_movk_i32 s40, {TRG}")
    else:
        VX(39, 32, 0, (0, 2, 7)); A(f"s_movk_i32 s40, {TRG + 512}")
    A(f"s_mov_b32 {sCNT}, 0")
    A.label("L_trg")
    A(f"buffer_load_dword v33, v39, {RW}, s40 offen sc1")
    A("s_waitcnt vmcnt(0)")
    A(f"v_cmp_ne_u32 vcc, {sTAG}, v33")
    A("s_cbranch_vccz L_trgd")
    A(f"s_sleep 2\ns_add_u32 {sCNT}, {sCNT}, 1\ns_cmp_lt_u32 {sCNT}, {OPT['trgmax']}\ns_cbranch_scc1 L_trg")
    A.label("L_trgd")
    A("s_barrier")
if not WOE: wo_dma()
sk = L("nc1")
A(f"s_cmp_ge_u32 s3, 3\ns_cbranch_scc1 {sk}")
if not MCE: A("s_waitcnt vmcnt(1)")
poll(mc_loads, lambda: tagged_chk([16, 24], 33), first_issued=MCE, first_wait=4, sleep=2)
tagged_pack(16); tagged_pack(24)
for i in range(2):
    for t in range(2):
        mfma(wD + 8*i + 4*t, 16 + 8*i, tE + 4*t, None)
rowsum([wD, wD+4, wD+8, wD+12])
A(f"v_permlane16_swap_b32 v{wD}, v{wD+4}\nv_permlane16_swap_b32 v{wD+8}, v{wD+12}")
A(f"v_add_f32 v{wGA}, v{wD}, v{wD+4}\nv_add_f32 v{wCB}, v{wD+8}, v{wD+12}")
STAMP(2)
A.label(sk)
A("s_waitcnt vmcnt(0)")
blk_frags(WOL)
STAMP(7)
wF = 100
sg_load = lambda: A(f"buffer_load_dwordx2 v[16:17], v{T0}, {RW}, s54 offen sc1")
await_any(sg_load, lambda: A("v_cmp_o_f32 vcc, v17, v17"), OPT["s1"])
poll(sg_load, lambda: A("v_cmp_u_f32 vcc, v17, v17"), first_issued=True, sleep=2*OPT["s2"])
o_loads()
A(f"v_max_f32_dpp v18, v16, v16 quad_perm:[1,0,3,2] {DPPM}")
A(f"v_max_f32_dpp v18, v18, v18 quad_perm:[2,3,0,1] {DPPM}")
A(f"v_max_f32_dpp v18, v18, v18 row_half_mirror {DPPM}")
A("v_sub_f32 v16, v16, v18\nv_exp_f32 v16, v16\nv_mul_f32 v17, v16, v17")
for m in ("quad_perm:[1,0,3,2]", "quad_perm:[2,3,0,1]", "row_half_mirror"):
    A(f"v_add_f32_dpp v17, v17, v17 {m} {DPPM}")
A(f"v_rcp_f32 v17, v17\nv_mul_f32 v{wF}, v16, v17")
STAMP(8)
poll(o_loads, lambda: chk_empty4(104, 33), first_issued=True, first_wait=0)
STAMP(9)
A("s_waitcnt lgkmcnt(0)")
blk_mfma(104)
for t in range(4):
    A(f"v_mul_f32_dpp v{wD+4*t}, v{wF}, v{wD+4*t} row_newbcast:0 {DPPM}")
for r in range(1, 4):
    for t in range(4):
        A(f"v_fmac_f32_dpp v{wD+4*t}, v{wF}, v{wD+4*t+r} row_newbcast:{r} {DPPM}")
blk_reduce()
A("s_cmp_gt_u32 s3, 2\ns_cbranch_scc1 L_exit")
A("s_cmp_eq_u32 s3, 2\ns_cbranch_scc1 L_fin")
blk_final()
A(f"v_fma_f32 v32, v32, v{wGA}, v{wXA}")
A(f"v_mul_f32 v36, v32, v{wCB}")
A(f"v_mov_b32_dpp v33, v32 quad_perm:[1,1,3,3] {DPPM}")
A(f"v_mov_b32_dpp v37, v36 quad_perm:[1,1,3,3] {DPPM}")
A("v_cvt_pk_bf16_f32 v34, v32, v33\nv_cvt_pk_bf16_f32 v38, v36, v37")
A(f"v_mov_b32_dpp v35, v34 quad_perm:[2,2,2,2] {DPPM}")
A(f"v_mov_b32_dpp v39, v38 quad_perm:[2,2,2,2] {DPPM}")
setexec(0x11111111, 0x11111111)
A(f"buffer_store_dwordx2 v[38:39], v{wXAD}, {RW}, s52 offen sc1")
A(f"buffer_store_dwordx2 v[34:35], v{wXAD}, {RW}, s60 offen sc1")
STAMP(10)
A("s_branch L_exit")
A.label("L_fin")
def x4_loads():
    A(f"buffer_load_dwordx4 v[16:19], v{tOF}, {RW}, s49 offen sc1")
    A(f"buffer_load_dwordx4 v[20:23], v{tOF}, {RW}, s50 offen sc1")
def x4_chk():
    A("v_max3_u32 v33, v16, v17, v18\nv_max3_u32 v34, v19, v20, v21\nv_max3_u32 v33, v33, v22, v23\nv_max_u32 v33, v33, v34\nv_cmp_eq_u32 vcc, -1, v33")
poll(x4_loads, x4_chk)
STAMP(11)
for hp in range(2):
    for t in range(2):
        mfma(wD + 4*t, 16 + 4*hp, tE + 4*t, None if hp == 0 else wD + 4*t)
rowsum([wD, wD+4])
A(f"v_permlane16_swap_b32 v{wD}, v{wD+4}")
A(f"v_add_f32 v42, v{wD}, v{wD+4}")
A("v_mov_b32 v43, v42\nv_mul_f32 v44, v42, v42")
A("v_permlane16_swap_b32 v43, v44")
A("v_add_f32 v43, v43, v44")
for m in ("quad_perm:[1,0,3,2]", "quad_perm:[2,3,0,1]", "row_half_mirror", "row_mirror"):
    A(f"v_add_f32_dpp v43, v43, v43 {m} {DPPM}")
setexec(0x00010001, 0x00010001)
A(f"buffer_store_dword v43, v113, {RW}, s55 offen")
fullexec()
STAMP(12)
A(f"ds_bpermute_b32 v42, v{tBP}, v42\nds_bpermute_b32 v{wGA}, v{tBP}, v{wGA}")
def y6_loads():
    for i in range(4):
        A(f"buffer_load_dwordx4 v[{16+4*i}:{19+4*i}], v{tL16}, {RW}, s59 offen offset:{1024*i} sc1")
def y6_chk():
    for r in range(4):
        A(f"v_add_f32 v{16+r}, v{16+r}, v{20+r}\nv_add_f32 v{24+r}, v{24+r}, v{28+r}")
    for r in range(4):
        A(f"v_add_f32 v{16+r}, v{16+r}, v{24+r}")
    A("v_permlane32_swap_b32 v16, v17\nv_permlane32_swap_b32 v18, v19")
    A("v_add_f32 v16, v16, v17\nv_add_f32 v18, v18, v19")
    A("v_permlane16_swap_b32 v16, v18")
    A("v_add_f32 v16, v16, v18")
    A("v_cmp_u_f32 vcc, v16, v16")
await_any(lambda: A(f"buffer_load_dword v16, v{tL16}, {RW}, s59 offen sc1"), lambda: A("v_cmp_o_f32 vcc, v16, v16"), 2)
poll(y6_loads, y6_chk)
STAMP(13)
for m in ("row_ror:8", "row_ror:4", "row_ror:2"):
    A(f"v_add_f32_dpp v16, v16, v16 {m} {DPPM}")
A("s_waitcnt lgkmcnt(0)")
A(f"v_fma_f32 v16, v16, v{wGA}, v42")
A("v_cvt_pk_bf16_f32 v16, v16, v16")
setexec(0x00030003, 0x00030003)
A(f"buffer_store_short v16, v{tOUT}, {RF}, s62 offen")
A("s_cmp_lg_u32 s2, 128\ns_cbranch_scc1 L_exit")
A(f"s_sub_u32 s40, {sTAG}, {TAGC-1:#x}")
A("v_mov_b32 v17, s40\nv_mov_b32 v18, 0")
A("s_mov_b64 exec, 1")
A(f"buffer_store_dword v17, v18, {RW}, 0 offen sc1")

A("s_branch L_exit")
A.seg(40)
A.label("L_exit")
if STAMPS == 1:
    STAMP(15)
    A("s_waitcnt lgkmcnt(0)")
    A("s_mov_b64 exec, 1")
    SX("s40", DBG, ("s2", 9), ("s3", 6))
    A("v_mov_b32 v0, 0")
    for q in range(4):
        for i in range(4):
            A(f"v_mov_b32 v{4+4*q+i}, s{64+2*(4*q+i)}")
        A(f"buffer_store_dwordx4 v[{4+4*q}:{7+4*q}], v0, {RW}, s40 offen offset:{16*q}")
if STAMPS == 3:
    STAMP(15)
    A("s_waitcnt lgkmcnt(0)")
    SX("s40", 0, ("s2", 3), ("s3", 0))
    A(f"s_cmp_lg_u32 s40, {OPT['dwg']*8 + OPT['dwv']}\ns_cbranch_scc1 L_end")
    A(f"s_sub_u32 s40, s{64+2*OPT['db']}, s{64+2*OPT['da']}")
    A(f"s_mul_i32 s40, s40, {OPT['dm']}")
    A("s_min_u32 s40, s40, 30000")
    A.label("L_spin")
    A("s_memrealtime s[42:43]\ns_waitcnt lgkmcnt(0)\ns_sub_u32 s41, s42, s94\ns_cmp_lt_u32 s41, s40\ns_cbranch_scc1 L_spin")
if STAMPS == 2:
    STAMP(15)
    A("s_load_dwordx2 s[32:33], s[0:1], 96")
    A("s_mov_b32 s34, 256\ns_mov_b32 s35, 0x00020000")
    A("s_waitcnt lgkmcnt(0)")
    fullexec()
    A("v_mov_b32 v4, 0\nv_mbcnt_lo_u32_b32 v5, -1, 0\nv_lshlrev_b32 v5, 2, v5")
    A("s_cmp_ge_u32 s2, 128\ns_cbranch_scc1 L_dw")
    A("s_cmp_lg_u32 s3, 0\ns_cbranch_scc1 L_end")
    A("s_not_b32 s40, s64\nv_writelane_b32 v4, s40, 0")
    for i, st in enumerate([9, 2, 5, 7, 10, 11, 8]):
        A(f"v_writelane_b32 v4, s{64+2*st}, {i+1}")
    A("s_branch L_dd")
    A.label("L_dw")
    A("s_cmp_lg_u32 s3, 2\ns_cbranch_scc1 L_end")
    for i, st in enumerate([0, 3, 4, 5, 7, 9, 11, 15]):
        A(f"v_writelane_b32 v4, s{64+2*st}, {i+8}")
    A.label("L_dd")
    A("s_mov_b64 exec, 0xffff")
    A("buffer_atomic_umax v4, v5, s[32:35], 0 offen")
A.label("L_end")
A("s_endpgm")
A.label("L_codeend")
A.raw(f".fill (16384 - (L_codeend - {NAME}_kernel)) / 4, 4, 0xbf810000")
A.raw(f""".section .rodata,"a"
.p2align 6
.amdhsa_kernel {NAME}_kernel
  .amdhsa_next_free_vgpr 152
  .amdhsa_next_free_sgpr 102
  .amdhsa_accum_offset 152
  .amdhsa_group_segment_fixed_size 0
  .amdhsa_kernarg_size 112
  .amdhsa_user_sgpr_count 2
  .amdhsa_user_sgpr_kernarg_segment_ptr 1
  .amdhsa_system_sgpr_workgroup_id_x 1
  .amdhsa_float_denorm_mode_32 3
.end_amdhsa_kernel""")
sys.stdout.write(A.text())
sys.stderr.write(f"instrs={A.ninstr} nops={A.nops}\n")
```

```python
import sys, math, struct
sys.path.insert(0, "work")
from asmlib import Asm

NAME = "adaLN_cond__sliding_block_cached__glu_gated_reglu__decode"
OPT = dict(stamps=0, nt="nt", limit=20000, refresh=255, psleep=0, pf=4, pfnt="", smallnt="", slow=0, gtrg=0, gw=7, gmask=7, fpf=0, wo_after_c=0, fpfbar=1, fpfl="", uslocal=1, qn=4, trg=0, mb_at="kv", touch=0, ltouch=1, ahold=4, wqpf=0, wqpfl="", ehold=0, depth=0, ffn_first=0, ser=1, obar=1, gu_b1=0, dn_late=0, dn_p=0, diag=0, rot=7, vt=1, asplit=1, wmode=0, ptouch=0, nv1=3, wfirst=3, tok=1, gufirst=1, mfb1=1, mbearly=1, ftouch=0, ftouch2=0, mbg=3, mbwait=-1, g_b1=0, wo_mb=1, h1at=1, depth_until=16, qpipe=1, s1=6, s2=1, sent=1, trgmax=24, dwg=10, dwv=1, da=0, db=15, dm=20, kvbar=1, abl="")
for a in sys.argv[1:]:
    k, v = a.split("=")
    OPT[k] = int(v) if v.lstrip("-").isdigit() else v
STAMPS = OPT["stamps"]; NT = OPT["nt"] if OPT["nt"] != "-" else ""
LIMIT = OPT["limit"]; REFRESH = OPT["refresh"]; SNT = OPT["smallnt"]

def f32(x): return "0x%08x" % struct.unpack("<I", struct.pack("<f", x))[0]

TRG = 0x1000; TOK = 0x4000; H1G = 0x8000; QG = 0x10000; MGT = 0x20000
CLR = 0x100000
OG = CLR; MG = CLR + 0x20000; X4 = CLR + 0x30000; Y4 = CLR + 0x38000
G5 = CLR + 0x40000; SG = CLR + 0x5C000; ST5 = CLR + 0x5D000; US5 = CLR + 0x60000
Y6 = 0x180000; DBG = 0x400000
WS_BYTES = 0x800000
TAGC = 0x9E3779B9
VREG = 65536; PA = 131072; XL = 147456; QL = XL + 1024; PL = QL + 2048; MISC = PL + 2048
FG = 0; FD = 32768; YL0 = 131072
WQL = 0; WOL = 32768; PB = 65536; RED = XL + 1024
LDS_BYTES = MISC + 256
C1 = 128 ** -0.5 * math.log2(math.e)

A = Asm()
hdr = open(f"cdna_kernels/{NAME}.s.ref").read().split("\n")
for ln in hdr:
    if ln.startswith("; @launch"):
        A.raw(f"; @launch grid=(256,1,1) block=(512,1,1) lds={LDS_BYTES}")
        break
    A.raw(ln)
A.raw('.amdgcn_target "amdgcn-amd-amdhsa--gfx950"')
A.raw(f".text\n.globl {NAME}_kernel\n.p2align 8\n.type {NAME}_kernel,@function\n{NAME}_kernel:")

RA, RB, RW, RC, RD, RE, RF = "s[8:11]", "s[12:15]", "s[16:19]", "s[20:23]", "s[24:27]", "s[28:31]", "s[32:35]"
sTAG, sCNT, sT = "s36", "s37", "s45"
def STAMP(n):
    if STAMPS:
        A(f"s_memrealtime s[{64+2*n}:{65+2*n}]")
DPPM = "row_mask:0xf bank_mask:0xf"
lbl = [0]
def L(p):
    lbl[0] += 1
    return f"L_{p}_{lbl[0]}"
def srd(r, nbytes):
    b = int(r[2:r.index(":")])
    A((f"s_movk_i32 s{b+2}, {nbytes}" if nbytes < 32768 else f"s_mov_b32 s{b+2}, {nbytes}") + f"\ns_mov_b32 s{b+3}, s11")
def kload(r, off):
    b = int(r[2:r.index(":")])
    A(f"s_load_dwordx2 s[{b}:{b+1}], s[0:1], {off}")

def SX(dst, const, *terms):
    first = True
    for t in terms:
        src, rs, w, ls = (t[0], 0, 0, t[1]) if len(t) == 2 else t
        d = dst if first else sT
        cur = src
        if w:
            if rs == 0: A(f"s_and_b32 {d}, {cur}, {(1<<w)-1}")
            else: A(f"s_bfe_u32 {d}, {cur}, {(w<<16)|rs:#x}")
            cur = d
        elif rs:
            A(f"s_lshr_b32 {d}, {cur}, {rs}"); cur = d
        if first:
            if ls: A(f"s_lshl_b32 {d}, {cur}, {ls}")
            elif cur != d: A(f"s_mov_b32 {d}, {cur}")
        else:
            if 1 <= ls <= 4: A(f"s_lshl{ls}_add_u32 {dst}, {cur}, {dst}")
            else:
                if ls: A(f"s_lshl_b32 {sT}, {cur}, {ls}"); cur = sT
                A(f"s_add_u32 {dst}, {dst}, {cur}")
        first = False
    if const: A(f"s_add_u32 {dst}, {dst}, {const:#x}")
def VX(dst, tmp, add, *terms):
    first = True
    for rs, w, ls in terms:
        if rs == 4 and w == 2: cur = "v1"
        elif rs == 0 and w == 4: cur = "v2"
        elif rs == 0 and w == 6: cur = "v0"
        else:
            d = f"v{dst}" if first else f"v{tmp}"
            if rs + w == 6: A(f"v_lshrrev_b32 {d}, {rs}, v0")
            elif rs == 0: A(f"v_and_b32 {d}, {(1<<w)-1}, v0")
            else: A(f"v_bfe_u32 {d}, v0, {rs}, {w}")
            cur = d
        if first:
            if ls: A(f"v_lshlrev_b32 v{dst}, {ls}, {cur}")
            elif cur != f"v{dst}": A(f"v_mov_b32 v{dst}, {cur}")
        else:
            if ls: A(f"v_lshl_or_b32 v{dst}, {cur}, {ls}, v{dst}")
            else: A(f"v_or_b32 v{dst}, {cur}, v{dst}")
        first = False
    if add: A(f"v_add_u32 v{dst}, {add}, v{dst}")

def cont(n):
    t = L("c")
    A(f"s_branch {t}")
    A.seg(n); A.label(t)
def await_any(load, valid, sleep):
    if not OPT["sent"]: return
    top, done = L("aw"), L("awd")
    A(f"s_mov_b32 {sCNT}, 0")
    A.label(top)
    load()
    A("s_waitcnt vmcnt(0)")
    valid()
    A(f"s_cbranch_vccnz {done}")
    A(f"s_sleep {sleep}\ns_add_u32 {sCNT}, {sCNT}, 1\ns_cmp_lt_u32 {sCNT}, 64\ns_cbranch_scc1 {top}")
    A.label(done)
def poll(loads, check, first_issued=False, first_wait=0, sleep=0):
    top, done, chk = L("poll"), L("got"), L("chk")
    A(f"s_mov_b32 {sCNT}, 0")
    if first_issued:
        A(f"s_waitcnt vmcnt({first_wait})")
        A(f"s_branch {chk}")
    A.label(top)
    loads()
    A("s_waitcnt vmcnt(0)")
    if first_issued:
        A.label(chk)
    check()
    A(f"s_cbranch_vccz {done}")
    if sleep: A(f"s_sleep {sleep}")
    A(f"s_add_u32 {sCNT}, {sCNT}, 1")
    A(f"s_and_b32 {sT}, {sCNT}, {REFRESH}\ns_cbranch_scc1 {top}")
    A("buffer_wbl2 sc1")
    A(f"s_cmp_lt_u32 {sCNT}, {LIMIT}\ns_cbranch_scc1 {top}")
    A.label(done)
def chk_empty4(r, tmp):
    A(f"v_max3_u32 v{tmp}, v{r}, v{r+1}, v{r+2}\nv_max_u32 v{tmp}, v{tmp}, v{r+3}\nv_cmp_eq_u32 vcc, -1, v{tmp}")
def pack4(src, pk, pk2, tmp):
    A(f"v_mov_b32_dpp v{tmp}, v{src} quad_perm:[1,1,3,3] {DPPM}")
    A(f"v_cvt_pk_bf16_f32 v{pk}, v{src}, v{tmp}")
    A(f"v_mov_b32_dpp v{pk2}, v{pk} quad_perm:[2,2,2,2] {DPPM}")
def setexec(lo, hi):
    A(f"s_mov_b32 exec_lo, {lo:#x}\ns_mov_b32 exec_hi, {hi:#x}")
def fullexec():
    A("s_mov_b64 exec, -1")
def mfma(d, a, b, c):
    cc = "0" if c is None else f"v[{c}:{c+3}]"
    A(f"v_mfma_f32_16x16x32_bf16 v[{d}:{d+3}], v[{a}:{a+3}], v[{b}:{b+3}], {cc}")
def rowsum(ds):
    for d in ds: A(f"v_add_f32 v{d}, v{d}, v{d+1}\nv_add_f32 v{d+2}, v{d+2}, v{d+3}")
    for d in ds: A(f"v_add_f32 v{d}, v{d}, v{d+2}")
def code_prefetch(tmp, dst):
    sk = L("npf")
    A(f"s_cmp_lt_u32 s3, 6\ns_cbranch_scc1 {sk}")
    A("s_and_b32 s38, s38, 0xffffff00")
    A(f"v_lshlrev_b32 v{tmp}, 7, v0")
    A(f"s_and_b32 s40, s3, 1\ns_lshl_b32 s40, s40, 13")
    A(f"v_add_u32 v{tmp}, s40, v{tmp}")
    if not OPT["pf"]: A(f"v_mov_b32 v{tmp}, 0")
    A(f"global_load_dword v{dst}, v{tmp}, s[38:39] {OPT['pfnt']}")
    A.label(sk)

wM, wQ, wO, wTR, T0, T1, T2, T3, vPF = 3, 4, 5, 6, 7, 8, 9, 10, 11
wC = 12; wXS = 13; wX = 16; wXO = 24; wWF = 40; wD = 56
def swz_chunk(dst):
    A(f"v_lshlrev_b32 v{dst}, 1, v1\nv_xor_b32 v{dst}, v0, v{dst}\nv_and_b32 v{dst}, 7, v{dst}\nv_lshlrev_b32 v{dst}, 4, v{dst}")
def unit_dma(srdr, s0, s1, base):
    A(f"s_add_u32 m0, s42, {base}")
    A(f"buffer_load_dwordx4 v{wM}, {srdr}, {s0} offen {NT} lds")
    A(f"s_add_u32 m0, s42, {base+8192}")
    A(f"buffer_load_dwordx4 v{wM}, {srdr}, {s1} offen {NT} lds")
def tr_setup():
    VX(wTR, 32, 0, (2, 4, 7), (3, 2, 5), (0, 2, 3))
    SX("s40", XL, ("s3", 0, 2, 8))
    VX(82, 32, "s40", (0, 6, 2))
    VX(83, 32, "s40", (2, 1, 7), (4, 2, 3))
def silu_operand(cnt):
    A(f"s_waitcnt vmcnt({cnt})")
    A(f"v_lshlrev_b32 v32, 16, v{wC}\nv_and_b32 v33, 0xffff0000, v{wC}")
    A(f"v_mul_f32 v34, {f32(-math.log2(math.e))}, v32\nv_mul_f32 v35, {f32(-math.log2(math.e))}, v33")
    A("v_exp_f32 v34, v34\nv_exp_f32 v35, v35")
    A("v_add_f32 v34, 1.0, v34\nv_add_f32 v35, 1.0, v35")
    A("v_rcp_f32 v34, v34\nv_rcp_f32 v35, v35")
    A("v_mul_f32 v32, v32, v34\nv_mul_f32 v33, v33, v35")
    A("v_cvt_pk_bf16_f32 v32, v32, v33")
    A("ds_write_b32 v82, v32")
    A("s_waitcnt lgkmcnt(0)")
    A(f"ds_read2_b64 v[{wXO}:{wXO+3}], v83 offset0:0 offset1:4\nds_read2_b64 v[{wXO+4}:{wXO+7}], v83 offset0:8 offset1:12")
def unit_pre(s_c0, s_c1, base):
    SX("s40", 0, ("s3", 0, 2, 5)); A(f"v_xor_b32 v112, s40, v{wTR}\nv_add_u32 v112, {base}, v112")
    for i in range(4):
        A(f"v_mov_b32 v{wD+i}, {s_c0}\nv_mov_b32 v{wD+4+i}, {s_c1}")
def unit_go():
    if STAMPS: A("s_waitcnt lgkmcnt(0)")
    for k in range(2):
        for seg in range(2):
            for h in range(2):
                r = wWF + seg*8 + k*4 + h*2
                A(f"ds_read_b64_tr_b16 v[{r}:{r+1}], v112 offset:{seg*8192 + k*4096 + h*2048}")
    for k in range(2):
        for seg in range(2):
            A(f"s_waitcnt lgkmcnt({6 - 4*k - 2*seg})")
            mfma(wD + 4*seg, wXO + 4*k, wWF + seg*8 + k*4, wD + 4*seg)
def unit_mfma(s_c0, s_c1, base):
    unit_pre(s_c0, s_c1, base); unit_go()
def tagged_loads(r, va, so):
    A(f"buffer_load_dwordx4 v[{r}:{r+3}], v{va}, {RW}, {so} offen sc1")
    A(f"buffer_load_dwordx4 v[{r+4}:{r+7}], v{va}, {RW}, {so} offen offset:1024 sc1")
def tagged_chk(rs, tmp, extra=None):
    tags = [r + i for r in rs for i in (1, 3, 5, 7)] + ([extra] if extra else [])
    A(f"v_xor_b32 v{tmp}, {sTAG}, v{tags[-1]}")
    for t in tags[:-1]:
        A(f"v_bitop3_b32 v{tmp}, v{t}, {sTAG}, v{tmp} bitop3:0xbe")
    A(f"v_cmp_ne_u32 vcc, 0, v{tmp}")
def tagged_pack(r):
    A(f"v_mov_b32 v{r+1}, v{r+2}\nv_mov_b32 v{r+2}, v{r+4}\nv_mov_b32 v{r+3}, v{r+6}")
def tok_wait(va, so, r, fw=None):
    def chk():
        A(f"v_xor_b32 v{r}, {sTAG}, v{r}")
        for i in (1, 2, 3): A(f"v_bitop3_b32 v{r}, v{r+i}, {sTAG}, v{r} bitop3:0xbe")
        A(f"v_cmp_ne_u32 vcc, 0, v{r}")
    poll(lambda: A(f"buffer_load_dwordx4 v[{r}:{r+3}], v{va}, {RW}, {so} offen sc1"), chk, sleep=2, first_issued=fw is not None, first_wait=fw or 0)
def sum8(dst, r):
    A(f"v_add_f32 v32, v{r}, v{r+1}\nv_add_f32 v33, v{r+2}, v{r+3}\nv_add_f32 v34, v{r+4}, v{r+5}\nv_add_f32 v35, v{r+6}, v{r+7}")
    A(f"v_add_f32 v32, v32, v33\nv_add_f32 v34, v34, v35\nv_add_f32 v{dst}, v32, v34")

STAMP(0)
A("s_cmp_ge_u32 s2, 256\ns_cbranch_scc1 L_end")
A("s_cmp_ge_u32 s2, 128\ns_cselect_b32 s40, 24, 8\ns_cselect_b32 s41, 0, 16")
A("s_load_dwordx2 s[8:9], s[0:1], s40")
if OPT["diag"] == 6: A("s_waitcnt lgkmcnt(0)\ns_memrealtime s[100:101]")
kload(RC, 80)
A("s_load_dwordx2 s[24:25], s[0:1], s41")
kload(RE, 72); kload(RW, 104)
if OPT["diag"] == 7: A("s_memrealtime s[100:101]")
A("v_readfirstlane_b32 s3, v0")
A("s_getpc_b64 s[38:39]")
if OPT["pf"] == 4:
    A("s_and_b32 s38, s38, 0xffffff00")
    A(f"v_and_b32 v{vPF}, 0x1c0, v0\ns_lshl_b32 s40, s2, 7\ns_and_b32 s40, s40, 0x3c00\nv_lshl_or_b32 v{vPF}, v{vPF}, 1, s40")
    sk = L("npf")
    A(f"s_cmp_ge_u32 s2, 128\ns_cbranch_scc1 {sk}")
    A(f"global_load_dword v{vPF}, v{vPF}, s[38:39]")
    A.label(sk)
A("v_and_b32 v0, 63, v0")
if OPT["diag"] == 8: A("s_memrealtime s[100:101]")
A("s_mov_b32 s11, 0x00020000")
A("v_lshrrev_b32 v1, 4, v0\nv_and_b32 v2, 15, v0")
A(f"s_add_u32 s4, s2, {OPT['rot']}\ns_and_b32 s4, s4, 7\ns_bfe_u32 s6, s2, 0x10006\ns_bfe_u32 s7, s2, 0x30003")
A(f"v_lshlrev_b32 v{T3}, 1, v1\nv_xor_b32 v{T3}, v2, v{T3}\nv_lshlrev_b32 v{T3}, 4, v{T3}")
A("s_lshl1_add_u32 s58, s4, s6\ns_lshl_b32 s46, s7, 7\ns_mov_b32 s27, s11")
A(f"v_and_b32 v{T1}, 0x70, v{T3}\nv_lshrrev_b32 v{T0}, 3, v0")
if OPT["diag"] == 9: A("s_memrealtime s[100:101]")
srd(RC, 3145728); srd(RE, 2048)
A(f"v_mul_u32_u24 v{wM}, 6144, v{T0}\nv_add_u32 v{wM}, v{wM}, v{T1}")
if OPT["diag"] == 10: A("s_memrealtime s[100:101]")
if OPT["wfirst"]:
    A("s_cmp_lt_u32 s2, 128\ns_cbranch_scc1 L_KV")
    A.seg(OPT["wfirst"]); A.label("L_KV")
else:
    A("s_cmp_ge_u32 s2, 128\ns_cbranch_scc1 L_W")
def ids2():
    A("s_lshr_b32 s3, s3, 6\ns_bfe_u32 s5, s2, 0x40003")
    if STAMPS:
        for i in range(2, 16): A(f"s_mov_b32 s{64+2*i}, 0")
    srd(RW, WS_BYTES)

vE, vO, vQO = 120, 121, 122
vKA = 108
vQ = 14
vKF = 16
vVF = 48
vQF = 80
vS = 96
vP = 104
vOA = 108
vST = 114
vOAD, vSAD = 116, 117
A(f"v_lshl_or_b32 v{vE}, v1, 8, v{T3}\nv_xor_b32 v{vO}, 0x80, v{vE}")
A("s_lshl_b32 s43, s3, 7\ns_mov_b32 s10, 33554432\ns_mov_b32 s26, s10")
SX("s56", 6144*256, ("s6", 24), ("s4", 21), ("s7", 16), ("s43", 0))
A("s_add_u32 s57, s56, 4096\ns_mov_b32 m0, s43")
def kv_dma(u):
    r = RA if u < 8 else RD
    A(f"buffer_load_dwordx4 v{vE if u%2==0 else vO}, {r}, {'s56' if u%8 < 4 else 's57'} offen offset:{(u%4)*1024} {NT} lds")
if OPT["wqpf"]:
    kload(RF, 24)
    A("s_cmp_lt_u32 s4, 4\ns_cselect_b32 s34, 0x400000, 0\ns_mov_b32 s35, s11")
    A(f"v_and_b32 v{wQ}, {31 if OPT['wqpf'] == 1 else 15}, v0\nv_lshlrev_b32 v{wQ}, 13, v{wQ}")
    SX("s44", 0, ("s6", 21), ("s3", 12 if OPT["wqpf"] == 1 else 11), ("s4", 10), ("s46", 0))
A("s_waitcnt lgkmcnt(0)")
if OPT["diag"] == 5: A("s_memrealtime s[100:101]")
if OPT["wqpf"]: A(f"buffer_load_dword v16, v{wQ}, {RF}, s44 offen")
VT = OPT["vt"]
if VT:
    A(f"s_add_u32 m0, s43, {VREG}")
    kv_dma(8)
    A("s_mov_b32 m0, s43")
if OPT["slow"]: kv_dma(0)
if OPT["pf"] == 3:
    A("s_and_b32 s38, s38, 0xffffff00")
    SX("s40", 0, ("s2", 3, 4, 10), ("s3", 1))
    A("s_load_dword s99, s[38:39], s40")
A(f"s_load_dword {sTAG}, s[16:17], 0")
if OPT["slow"]: A("s_waitcnt vmcnt(0)")
def mb_issue():
    SX("s51", 0, ("s7", 6), ("s3", 3, 0, 0))
    A("s_mul_i32 s51, s51, 6144\ns_lshl_b32 s42, s3, 4")
    SX("s40", 2048, ("s58", 8)); A("s_add_u32 s51, s51, s40")
    A(f"s_add_u32 m0, s42, {PA}")
    A(f"buffer_load_dwordx4 v{wM}, {RC}, s51 offen {NT} lds")
    A(f"s_add_u32 m0, s42, {PA + 8192 - 128}")
    A(f"buffer_load_dwordx4 v{wM}, {RC}, s51 offen offset:128 {NT} lds")
    VX(T2, T3, 0, (5, 1, 10), (0, 5, 2))
    A(f"buffer_load_dword v{wC}, v{T2}, {RE}, s46 offen {SNT}")
for u in range(1 if OPT["slow"] else 0, 16):
    if u in (4, 12): A("s_add_u32 m0, m0, 4096")
    if u == 8:
        if OPT["mbg"] != 3: mb_issue()
        A(f"s_add_u32 m0, s43, {VREG}")
        if VT: continue
    if OPT["depth"] and u < OPT["depth_until"]: A(f"s_waitcnt vmcnt({OPT['depth']-1})")
    kv_dma(u)
cont(30)
ids2()
if STAMPS: A("s_mov_b32 s66, 0")
STAMP(2)
if OPT["abl"]:
    A("s_waitcnt vmcnt(0)")
    STAMP(4)
    A("s_branch L_exit")
GT = 0
A("s_waitcnt lgkmcnt(0)")
if OPT["diag"] >= 5: A("s_mov_b32 s76, s100")
A(f"s_add_u32 {sTAG}, {sTAG}, {TAGC:#x}")
kload(RC, 48); kload(RD, 56); kload(RE, 64)
FF = OPT["ffn_first"]
if FF: FG = VREG; FD = VREG + 32768
wG, wDO, fMF = 124, 125, 123
A(f"v_mul_u32_u24 v{wG}, 3584, v{T0}\nv_add_u32 v{wG}, v{wG}, v{T1}\nv_lshl_or_b32 v{wDO}, v{T0}, 10, v{T1}")
A("s_cmp_lt_u32 s4, 7")
A("s_cselect_b32 s22, 1835008, 0\ns_cselect_b32 s26, 1835008, 0\ns_cselect_b32 s30, 1835008, 0")
SX("s63", 0, ("s4", 4), ("s5", 0))
SX("s49", 0, ("s63", 0, 2, 7), ("s3", 4))
A("s_mul_i32 s49, s49, 3584")
SX("s50", 0, ("s63", 2, 0, 7))
A(f"s_add_u32 s49, s49, s50\ns_add_u32 s50, s49, {8*3584-1024}")
SX("s51", 0, ("s63", 14), ("s3", 7))
A(f"s_add_u32 s52, s51, {8*1024-1024}")
A("s_lshl_b32 s42, s3, 11")
def g_dma():
    A(f"s_add_u32 m0, s42, {FG}")
    A(f"buffer_load_dwordx4 v{wG}, {RC}, s49 offen {NT} lds")
    A(f"buffer_load_dwordx4 v{wG}, {RC}, s50 offen offset:1024 {NT} lds")
def u_dma():
    A(f"s_add_u32 m0, s42, {FG+16384}")
    A(f"buffer_load_dwordx4 v{wG}, {RD}, s49 offen {NT} lds")
    A(f"buffer_load_dwordx4 v{wG}, {RD}, s50 offen offset:1024 {NT} lds")
def gu_dma():
    g_dma(); u_dma()
def dn_dma():
    A(f"s_add_u32 m0, s42, {FD}")
    A(f"buffer_load_dwordx4 v{wDO}, {RE}, s51 offen {NT} lds")
    A(f"buffer_load_dwordx4 v{wDO}, {RE}, s52 offen offset:1024 {NT} lds")
def ffn_dma():
    gu_dma(); dn_dma()
GB1 = OPT["gu_b1"] and OPT["ser"] and not FF
SX("s98", ST5, ("s4", 8))
SX("s96", G5, ("s63", 10))
A(f"s_add_u32 s97, s96, {US5-G5}")
if OPT["ftouch"]:
    A("v_mul_u32_u24 v118, 3584, v2\nv_lshlrev_b32 v119, 10, v2")
SX("s44", QG, ("s58", 12), ("s3", 10))
vQ = 100
A(f"v_lshlrev_b32 v{vQO}, 4, v0")
VX(fMF, T2, 0, (0, 3, 7), (3, 1, 6), (4, 2, 4))
SX("s59", MGT + 2*32768, ("s63", 0, 2, 13), ("s3", 0, 2, 11))
SX("s40", 0, ("s3", 2, 0, 15)); A("s_sub_u32 s59, s59, s40")
VX(T2, 0, 0, (0, 3, 1))
A(f"v_xor_b32 v{T2}, v1, v{T2}\nv_lshlrev_b32 v{T2}, 4, v{T2}\nv_lshl_or_b32 v{T2}, v2, 8, v{T2}")
A(f"v_add_u32 v{vKA}, s43, v{T2}")
for t in range(1, 4):
    A(f"v_xor_b32 v{vKA+t}, {t*64:#x}, v{vKA}")
vQW, vQR, vVR, vMX, vPW, vPR, vMW = 3, 4, 5, 6, 113, 13, 112
SX("s40", QL, ("s3", 5))
VX(vQW, T2, "s40", (1, 4, 7), (5, 1, 4), (0, 1, 3))
VX(vQR, T2, QL, (4, 2, 7), (0, 3, 4))
A(f"v_bfe_u32 v{T0}, v0, 2, 3\nv_xor_b32 v{T0}, s3, v{T0}")
VX(vVR, T2, VREG, (2, 4, 8), (0, 2, 3))
A(f"v_lshl_or_b32 v{vVR}, v{T0}, 5, v{vVR}")
VX(vMX, T2, MISC, (0, 2, 5))
A(f"s_lshl_b32 s40, s3, 2\nv_add_u32 v{vMW}, s40, v{vMX}")
VX(vPR, T2, PL, (4, 2, 6), (0, 2, 4))
A(f"s_lshl_b32 s40, s3, 8\nv_and_b32 v{T2}, 12, v0\nv_add3_u32 v{vPW}, s40, v{vPR}, v{T2}")
A("s_mov_b32 s60, 0xf0f0f0f0\ns_mov_b32 s61, s60\ns_mov_b32 s46, 0xff00ff00\ns_mov_b32 s47, s46")
VX(vOAD, T2, 0, (0, 2, 12), (4, 2, 4))
SX("s53", OG, ("s4", 14), ("s3", 1, 0, 10), ("s5", 6), ("s3", 0, 1, 3))
VX(vSAD, T2, 0, (0, 2, 7))
SX("s54", SG, ("s4", 9), ("s5", 3))
A(f"s_mov_b32 s55, {f32(C1)}")
fWF = 128 if FF else 84
fDF = 144 if FF else 64
def ffn_frag_addr(wr, ta, tr):
    VX(tr, 32, 0, (2, 4, 7), (3, 2, 5), (0, 2, 3))
    SX("s40", 0, ("s3", 0, 2, 5)); A(f"v_xor_b32 v{wr}, s40, v{tr}")
    SX("s40", FG, ("s3", 2, 0, 14)); A(f"v_add_u32 v{wr}, s40, v{wr}")
    A(f"s_add_u32 s40, s42, {FD}\nv_add_u32 v{ta}, s40, v{tr}")
    for t in range(1, 4):
        A(f"v_xor_b32 v{ta+t}, {t*32:#x}, v{ta}")
def w_frags(wr):
    for k in range(4):
        for h in range(2):
            r = fWF + 4*k + 2*h
            A(f"ds_read_b64_tr_b16 v[{r}:{r+1}], v{wr} offset:{k*4096 + h*2048}")
def d_frags(ta):
    for tau in range(4):
        A(f"ds_read_b64_tr_b16 v[{fDF+2*tau}:{fDF+2*tau+1}], v{ta+tau}")
A(f"s_waitcnt vmcnt({7 if VT else 8})")
for T in range(2):
    for t in range(4):
        r = vKF + (T*4+t)*4
        A(f"ds_read_b128 v[{r}:{r+3}], v{vKA+t} offset:{T*4096}")
sk = L("nqp"); skm = L("mbw")
if OPT["mbg"] == 3:
    A(f"s_cmp_lt_u32 s3, 4\ns_cbranch_scc1 {skm}")
    if OPT["tok"]:
        sk3 = L("ntv")
        A(f"s_cmp_lg_u32 s3, 4\ns_cbranch_scc1 {sk3}")
        A(f"v_lshlrev_b32 v80, 7, v0\ns_movk_i32 s41, {TOK}")
        tok_wait(80, "s41", 84)
        A(f"buffer_load_dwordx4 v[136:139], v{vQO}, {RW}, s96 offen sc1")
        A(f"buffer_load_dwordx4 v[136:139], v{vQO}, {RW}, s97 offen sc1")
        A(f"buffer_load_dword v136, v{vSAD}, {RW}, s98 offen sc1")
        A(f"s_branch {sk}")
        A.label(sk3)
    A(f"s_waitcnt vmcnt(0)\ns_branch {sk}")
    A.label(skm)
    A.mute = True
A("s_barrier")
A(f"s_cmp_lt_u32 s3, 4\ns_cbranch_scc1 {skm}")
SX("s40", XL, ("s3", 0, 2, 8))
VX(82, 80, "s40", (0, 6, 2))
VX(83, 80, "s40", (2, 1, 7), (4, 2, 3))
A(f"v_lshlrev_b32 v84, 16, v{wC}\nv_and_b32 v85, 0xffff0000, v{wC}")
A(f"v_mul_f32 v86, {f32(-math.log2(math.e))}, v84\nv_mul_f32 v87, {f32(-math.log2(math.e))}, v85")
A("v_exp_f32 v86, v86\nv_exp_f32 v87, v87\nv_add_f32 v86, 1.0, v86\nv_add_f32 v87, 1.0, v87")
A("v_rcp_f32 v86, v86\nv_rcp_f32 v87, v87\nv_mul_f32 v84, v84, v86\nv_mul_f32 v85, v85, v87")
A("v_cvt_pk_bf16_f32 v84, v84, v85\nds_write_b32 v82, v84")
A("ds_read2_b64 v[144:147], v83 offset0:0 offset1:4\nds_read2_b64 v[148:151], v83 offset0:8 offset1:12")
VX(81, 80, 0, (2, 4, 7), (3, 2, 5), (0, 2, 3))
SX("s40", 0, ("s3", 0, 2, 5)); A(f"v_xor_b32 v81, s40, v81\nv_add_u32 v81, {PA}, v81")
for k in range(2):
    for sg in range(2):
        for hh in range(2):
            r = 128 + sg*8 + k*4 + hh*2
            A(f"ds_read_b64_tr_b16 v[{r}:{r+1}], v81 offset:{sg*8192 + k*4096 + hh*2048}")
SX("s40", 0, ("s58", 2, 0, 3), ("s7", 0))
A("s_cmp_eq_u32 s40, 16\ns_cselect_b32 s41, 1.0, 0")
for i in range(8): A(f"v_mov_b32 v{88+i}, s41")
VX(80, 81, 0, (5, 1, 12), (4, 1, 6), (2, 2, 4))
SX("s41", MGT, ("s58", 13), ("s3", 0, 2, 10), ("s46", 0))
A(f"v_mov_b32 v97, {sTAG}\nv_mov_b32 v99, {sTAG}")
A("s_waitcnt lgkmcnt(0)")
for k in range(2):
    for sg in range(2):
        mfma(88 + 4*sg, 144 + 4*k, 128 + sg*8 + k*4, 88 + 4*sg)
A("v_cmp_gt_u32 vcc, 32, v0")
A("v_cndmask_b32 v84, v92, v88, vcc")
pack4(84, 96, 98, 85)
setexec(0x11111111, 0x11111111)
A(f"buffer_store_dwordx4 v[96:99], v80, {RW}, s41 offen sc1")
fullexec()
STAMP(9)
A(f"s_waitcnt vmcnt(1)\ns_branch {sk}")
A.label(skm)
A.mute = False
def q_load():
    A(f"buffer_load_dwordx4 v[{vQ}:{vQ+3}], v{vQO}, {RW}, s44 offen sc1")
def q_chk():
    A(f"v_xor_b32 v{T0}, {sTAG}, v{vQ+1}\nv_bitop3_b32 v{T0}, v{vQ+3}, {sTAG}, v{T0} bitop3:0xbe\nv_cmp_ne_u32 vcc, 0, v{T0}")
poll(q_load, q_chk, sleep=OPT['s2'])
STAMP(4)
A(f"v_mov_b32 v{vQ+1}, v{vQ+2}")
A(f"ds_write_b64 v{vQW}, v[{vQ}:{vQ+1}]")
A.label(sk)
A("s_waitcnt lgkmcnt(0)\ns_barrier")
STAMP(5)
for t in range(4):
    A(f"ds_read_b128 v[{vQF+4*t}:{vQF+4*t+3}], v{vQR} offset:{t*512}")
if GB1: gu_dma()
if OPT["g_b1"]: g_dma()
def f_touch(n):
    A("s_mov_b64 exec, 0xffff")
    if n & 1: A(f"buffer_load_dword v{vPF}, v118, {RC}, s49 offen")
    if n & 2: A(f"buffer_load_dword v{vPF}, v118, {RD}, s49 offen")
    if n & 4: A(f"buffer_load_dword v{vPF}, v119, {RE}, s51 offen")
    fullexec()
if OPT["ftouch"]: f_touch(OPT["ftouch"])
vMF = 128
def mf_loads():
    tagged_loads(vMF, fMF, "s59")
def l_touch(a, b, c):
    sk = L("nlt")
    A(f"s_cmp_lg_u32 s3, 7\ns_cbranch_scc1 {sk}")
    A(f"buffer_load_dwordx4 v[136:139], v{vQO}, {RW}, {a} offen sc1")
    A(f"buffer_load_dwordx4 v[136:139], v{vQO}, {RW}, {b} offen sc1")
    A(f"buffer_load_dword v136, v{vSAD}, {RW}, {c} offen sc1")
    A.label(sk)
def v_tr(kb, T):
    r = vVF + kb*4 + T*2
    A(f"ds_read_b64_tr_b16 v[{r}:{r+1}], v{vVR} offset:{(32*kb+16*T)*256}")
EARLY_T = [0, 1]
NV1 = OPT["nv1"]
if STAMPS: A("s_waitcnt lgkmcnt(0)")
for t in range(4):
    A(f"s_waitcnt lgkmcnt({3-t})")
    for T in range(2):
        mfma(vS + 4*T, vKF + (T*4+t)*4, vQF + 4*t, None if t == 0 else vS + 4*T)
for kb in range(NV1):
    v_tr(kb, 0); v_tr(kb, 1)
for i in range(8):
    A(f"v_add_f32_dpp v{vS+i}, v{vS+i}, v{vS+i} row_ror:4 {DPPM}")
A(f"v_max3_f32 v{T0}, v{vS}, v{vS+1}, v{vS+2}\nv_max3_f32 v{T2}, v{vS+3}, v{vS+4}, v{vS+5}")
A(f"v_max3_f32 v{T0}, v{T0}, v{vS+6}, v{vS+7}\nv_max_f32 v{T3}, v{T0}, v{T2}\nv_max_f32 v{T0}, v{T0}, v{T2}")
A(f"v_cndmask_b32 v{vS}, v{vS}, v{vS+2}, s[60:61]\nv_cndmask_b32 v{vS+1}, v{vS+1}, v{vS+3}, s[60:61]")
A(f"v_permlane32_swap_b32 v{T0}, v{T3}")
A(f"v_max_f32 v{T2}, v{T0}, v{T3}\nv_max_f32 v{T0}, v{T0}, v{T3}")
A(f"v_cndmask_b32 v{vS+4}, v{vS+4}, v{vS+6}, s[60:61]\nv_cndmask_b32 v{vS+5}, v{vS+5}, v{vS+7}, s[60:61]")
A(f"v_permlane16_swap_b32 v{T0}, v{T2}")
A(f"v_max_f32 v{T0}, v{T0}, v{T2}")
A(f"ds_write_b32 v{vMW}, v{T0}")
A(f"v_cndmask_b32 v{vS}, v{vS}, v{vS+4}, s[46:47]\nv_cndmask_b32 v{vS+1}, v{vS+1}, v{vS+5}, s[46:47]")
A(f"v_mul_f32 v{vS}, s55, v{vS}\nv_mul_f32 v{vS+1}, s55, v{vS+1}")
STAMP(14)
A("s_waitcnt lgkmcnt(0)\ns_barrier")
A(f"ds_read_b128 v[{vQF}:{vQF+3}], v{vMX}\nds_read_b128 v[{vQF+4}:{vQF+7}], v{vMX} offset:16")
for kb in range(NV1, min(8, NV1 + 6)):
    v_tr(kb, 0); v_tr(kb, 1)
A(f"s_waitcnt lgkmcnt({2*(min(8, NV1+6) - NV1)})")
A(f"v_max3_f32 v{T0}, v{vQF}, v{vQF+1}, v{vQF+2}\nv_max3_f32 v{T2}, v{vQF+3}, v{vQF+4}, v{vQF+5}")
A(f"v_max3_f32 v{T0}, v{T0}, v{vQF+6}, v{vQF+7}\nv_max_f32 v{T0}, v{T0}, v{T2}")
A(f"v_fma_f32 v{vS}, -v{T0}, s55, v{vS}\nv_fma_f32 v{vS+1}, -v{T0}, s55, v{vS+1}")
A(f"v_exp_f32 v{vS}, v{vS}\nv_exp_f32 v{vS+1}, v{vS+1}")
A(f"v_mul_f32 v{vST}, s55, v{T0}")
A(f"v_cvt_pk_bf16_f32 v{vP}, v{vS}, v{vS+1}")
A(f"v_add_f32 v{T0}, v{vS}, v{vS+1}")
A(f"ds_write_b32 v{vPW}, v{vP}")
A(f"v_add_f32_dpp v{T0}, v{T0}, v{T0} row_ror:4 {DPPM}")
if OPT["mfb1"]: mf_loads()
A(f"v_add_f32_dpp v{T3}, v{T0}, v{T0} row_ror:8 {DPPM}\nv_add_f32_dpp v{T0}, v{T0}, v{T0} row_ror:8 {DPPM}")
A(f"v_permlane32_swap_b32 v{T0}, v{T3}")
A(f"v_add_f32 v{T2}, v{T0}, v{T3}\nv_add_f32 v{T0}, v{T0}, v{T3}")
A(f"v_permlane16_swap_b32 v{T0}, v{T2}")
A(f"v_add_f32 v{T0}, v{T0}, v{T2}")
A(f"ds_write_b32 v{vMW}, v{T0} offset:128")
if OPT["dn_p"] == 3: dn_dma()
A("s_waitcnt lgkmcnt(0)\ns_barrier")
STAMP(3)
if STAMPS: A("s_waitcnt lgkmcnt(0)")
LATE_T = [T for T in range(2) if T not in EARLY_T]
A(f"ds_read_b128 v[{vQF}:{vQF+3}], v{vMX} offset:128\nds_read_b128 v[{vQF+4}:{vQF+7}], v{vMX} offset:144")
for kb in range(8):
    r = vKF + kb*4
    A(f"ds_read_b128 v[{r}:{r+3}], v{vPR} offset:{kb*256}")
def st_pub(vm=None):
    sk = L("nst"); sk2 = L("nsu")
    A(f"s_cmp_lg_u32 s3, 0\ns_cbranch_scc1 {sk}")
    A("s_waitcnt lgkmcnt(8)")
    rowsum([vQF, vQF+4])
    A(f"v_add_f32 v{vST+1}, v{vQF}, v{vQF+4}")
    A("s_mov_b64 exec, 15")
    A(f"buffer_store_dwordx2 v[{vST}:{vST+1}], v{vSAD}, {RW}, s54 offen")
    fullexec()
    if vm is not None:
        A(f"s_waitcnt vmcnt({vm})\ns_branch {sk2}")
    A.label(sk)
    if vm is not None:
        A(f"s_waitcnt vmcnt({vm-1})")
        A.label(sk2)
if LATE_T:
    st_pub(1)
    A("s_waitcnt lgkmcnt(0)\ns_barrier")
    STAMP(6)
    if STAMPS: A("s_waitcnt lgkmcnt(0)")
    per = len(LATE_T)
    AHEAD = 8 if per == 1 else 6
    for kb in range(AHEAD):
        for T in LATE_T: v_tr(kb, T)
    for kb in range(8):
        A(f"s_waitcnt lgkmcnt({(min(8, AHEAD + kb) - kb - 1) * per})")
        mfma(vOA, vVF + kb*4, vKF + kb*4, None if kb == 0 else vOA)
        if AHEAD + kb < 8:
            for T in LATE_T: v_tr(AHEAD + kb, T)
else:
    st_pub()
    if OPT["dn_p"] == 1: dn_dma()
    for kb in range(8):
        A(f"s_waitcnt lgkmcnt({7-kb})")
        mfma(vOA, vVF + kb*4, vKF + kb*4, None if kb == 0 else vOA)
setexec(0x000f000f, 0x000f000f)
A(f"v_cvt_pk_bf16_f32 v{vP}, v{vOA}, v{vOA+1}\nv_cvt_pk_bf16_f32 v{vP+1}, v{vOA+2}, v{vOA+3}")
A(f"buffer_store_dwordx2 v[{vP}:{vP+1}], v{vOAD}, {RW}, s53 offen")
fullexec()
STAMP(7)
A("s_cmp_lt_u32 s4, 7\ns_cbranch_scc1 L_ffn")
A("s_cmp_lg_u32 s3, 0\ns_cbranch_scc1 L_exit")
VX(T1, T2, 0, (3, 1, 14), (0, 3, 11))
A(f"s_mov_b32 s46, {X4 + 7*128:#x}")
poll(lambda: A(f"buffer_load_dword v16, v{T1}, {RW}, s46 offen sc1"), lambda: A(f"v_cmp_eq_u32 vcc, -1, v16"), sleep=8)
A("s_branch L_exit")
A.label("L_ffn")
SX("s55", ST5, ("s4", 8))
SX("s53", G5, ("s63", 10))
A(f"s_add_u32 s54, s53, {US5-G5}")
if not OPT["mfb1"]:
    l_touch("s53", "s54", "s55")
    mf_loads()
DL = OPT["dn_late"]
NF = 0
if not GB1 and OPT["dn_p"] != 3:
    if OPT["obar"]: A("s_barrier")
    if not OPT["g_b1"]:
        g_dma(); NF += 2
    u_dma(); NF += 2
if not DL and not OPT["dn_p"]:
    if (GB1 and OPT["obar"]) or OPT["gufirst"]: A("s_barrier")
    dn_dma(); NF += 2
fYW, fYR, fWR, fGA, fGR, fSTA, fY6A = 113, 114, 115, 116, 118, 119, 120
fG, fU, fS = 121, 122, 117
wOF, wTA = fMF, 108
if not FF: ffn_frag_addr(fWR, wTA, wTR)
A("s_lshr_b32 s56, s3, 2\ns_and_b32 s57, s3, 3")
VX(fYR, 32, YL0, (0, 6, 4))
A(f"s_lshl_b32 s40, s3, 10\nv_add_u32 v{fYW}, s40, v{fYR}")
VX(fGA, 32, 0, (0, 6, 2))
SX("s61", G5 - 64, ("s63", 2, 0, 12), ("s57", 10), ("s63", 0, 2, 8), ("s56", 7))
A(f"s_add_u32 s62, s61, {US5-G5}")
VX(fGR, 32, 0, (2, 1, 7), (3, 1, 6), (4, 2, 4), (0, 2, 2))
VX(fSTA, 32, 0, (0, 3, 5), (3, 1, 4))
VX(fY6A, 32, 0, (3, 1, 14), (5, 1, 12), (4, 1, 4))
SX("s47", Y4, ("s56", 14), ("s63", 0, 2, 12), ("s57", 10))
SX("s96", Y6, ("s3", 16), ("s63", 5))
A("s_add_u32 s97, s96, 8192\ns_add_u32 s98, s96, 32768\ns_add_u32 s99, s96, 40960")
A(f"s_mov_b32 s41, {f32(1.0/512)}\ns_mov_b32 s43, {f32(1e-5)}")
poll(mf_loads, lambda: tagged_chk([vMF], 33), first_issued=True, first_wait=NF, sleep=4)
tagged_pack(vMF)
A(f"ds_write_b128 v{fYW}, v[{vMF}:{vMF+3}]")
def y_load():
    A(f"buffer_load_dwordx4 v[76:79], v{wOF}, {RW}, s47 offen sc1")
GF = OPT["gufirst"]
A(f"s_waitcnt vmcnt({2 if GF else 0}) lgkmcnt(0)\ns_barrier")
STAMP(10)
y_load()
if DL: dn_dma()
YO = [16, 20, 24, 28, 32, 36, 100, 104]
if not FF: w_frags(fWR)
for u in range(8):
    A(f"ds_read_b128 v[{YO[u]}:{YO[u]+3}], v{fYR} offset:{u*1024}")
A("s_waitcnt lgkmcnt(0)")
for k in range(4):
    for pi in range(2):
        mfma(wD + 4*pi, YO[4*pi+k], fWF + 4*k, None if k == 0 else wD + 4*pi)
rowsum([wD, wD+4])
A(f"v_permlane16_swap_b32 v{wD}, v{wD+4}")
A(f"v_add_f32 v{wD+1}, v{wD}, v{wD+4}\nv_add_f32 v{wD}, v{wD}, v{wD+4}")
A(f"v_permlane16_swap_b32 v{wD}, v{wD+1}")
A(f"v_cvt_pk_bf16_f32 v126, v{wD}, v{wD+1}")
setexec(0xffff0000, 0x0000ffff)
A(f"buffer_store_dword v126, v{fGA}, {RW}, s62 offen {'' if OPT['uslocal'] else 'sc1'}")
fullexec()
STAMP(1)
def us_loads():
    for k in range(4):
        A(f"buffer_load_dword v{40+k}, v{fGR}, {RW}, s54 offen offset:{256*k} sc1")
if not DL and not GF: d_frags(wTA)
poll(y_load, lambda: chk_empty4(76, 33), first_issued=True, first_wait=3 if DL else 1)
STAMP(11)
A(f"ds_write_b128 v{fYW}, v[76:79] offset:8192")
us_loads()
A("s_waitcnt lgkmcnt(0)\ns_barrier")
for u in range(8):
    A(f"ds_read_b128 v[{YO[u]}:{YO[u]+3}], v{fYR} offset:{8192+u*1024}")
for u in range(8):
    A(f"s_waitcnt lgkmcnt({7-u})")
    mfma(wD, YO[u], fWF + 4*(u & 3), None if u == 0 else wD)
A(f"v_add_f32 v{wD}, v{wD}, v{wD+1}\nv_add_f32 v{wD+2}, v{wD+2}, v{wD+3}")
A(f"v_add_f32 v{wD+1}, v{wD}, v{wD+2}\nv_add_f32 v{wD}, v{wD}, v{wD+2}")
A(f"v_permlane16_swap_b32 v{wD}, v{wD+1}")
A(f"v_add_f32 v{fG}, v{wD}, v{wD+1}")
def g_store(fl):
    setexec(0xffff0000, 0x0000ffff)
    A(f"buffer_store_dword v{fG}, v{fGA}, {RW}, s61 offen {fl}")
g_store("")
fullexec()
STAMP(12)
def g_loads():
    A(f"buffer_load_dwordx4 v[24:27], v{fSTA}, {RW}, s55 offen sc1")
    for k in range(4):
        A(f"buffer_load_dword v{20+k}, v{fGR}, {RW}, s53 offen offset:{256*k} sc1")
poll(us_loads, lambda: chk_empty4(40, 33), first_issued=True, first_wait=1)
g_loads()
if DL or GF: d_frags(wTA)
for k in range(4):
    A(f"v_lshlrev_b32 v{44+k}, 16, v{40+k}\nv_and_b32 v{40+k}, 0xffff0000, v{40+k}")
rowsum([44, 40])
A(f"v_mov_b32 v{fU}, v44\nv_mov_b32 v{fS}, v40")
def g_chk():
    A("v_add_f32 v24, v24, v26\nv_add_f32 v25, v25, v27")
    A("v_add_f32 v20, v20, v21\nv_add_f32 v22, v22, v23")
    A(f"v_add_f32_dpp v24, v24, v24 quad_perm:[1,0,3,2] {DPPM}\nv_add_f32_dpp v25, v25, v25 quad_perm:[1,0,3,2] {DPPM}")
    A("v_add_f32 v20, v20, v22")
    A(f"v_add_f32_dpp v24, v24, v24 quad_perm:[2,3,0,1] {DPPM}\nv_add_f32_dpp v25, v25, v25 quad_perm:[2,3,0,1] {DPPM}")
    A("v_add_f32 v26, v24, v25")
    A("v_cmp_u_f32 vcc, v20, v26")
poll(g_loads, g_chk, first_issued=True)
STAMP(13)
A(f"v_add_f32_dpp v24, v24, v24 row_half_mirror {DPPM}\nv_add_f32_dpp v25, v25, v25 row_half_mirror {DPPM}")
A("v_mov_b32 v26, s43")
A("v_mul_f32 v24, s41, v24")
A("v_fmac_f32 v26, s41, v25")
A("v_fma_f32 v26, -v24, v24, v26")
A(f"v_fma_f32 v20, -v24, v{fU}, v20")
A("v_rsq_f32 v26, v26")
A(f"v_fma_f32 v20, v20, v26, v{fS}")
A("v_max_f32 v21, 0, v20")
A(f"v_mul_f32_dpp v22, v20, v21 row_shl:4 {DPPM}")
pack4(22, 24, 25, 23)
if DL or GF: A("s_waitcnt lgkmcnt(0)")
for tau in range(4):
    d = 32 + 4*tau
    A(f"v_mfma_f32_16x16x16_bf16 v[{d}:{d+3}], v[{fDF+2*tau}:{fDF+2*tau+1}], v[24:25], 0")
setexec(0x01010101, 0x01010101)
for tau in range(4):
    d = 32 + 4*tau
    A(f"buffer_store_dwordx4 v[{d}:{d+3}], v{fY6A}, {RW}, s{96+tau} offen sc1")
STAMP(8)
A("s_waitcnt vmcnt(0)")
g_store("sc1")
if OPT["uslocal"]: A(f"buffer_store_dword v126, v{fGA}, {RW}, s62 offen sc1")
A("s_branch L_exit")

A.seg(1)
A.label("L_W")
AS = OPT["asplit"]
IS_NA = "s_cmp_lg_u32 s6, 0" if AS else "s_cmp_ge_u32 s4, 4"
IS_A = "s_cmp_eq_u32 s6, 0" if AS else "s_cmp_lt_u32 s4, 4"
sDB = "s4" if AS else "s58"
def w_common(first=True):
    kload(RB, 32); kload(RF, 88)
    if first:
        A(f"s_load_dword {sTAG}, s[16:17], 0")
        ids2()
    A(f"v_lshl_or_b32 v{wO}, v{T0}, 10, v{T1}")
    srd(RB, 4194304); A("s_movk_i32 s26, 2048")
def wq_setup(sh):
    A(f"v_lshl_or_b32 v{wQ}, v{T0}, 13, v{T1}")
    A("s_mov_b32 s10, 4194304")
    A(f"s_lshl_b32 s48, s3, {12-sh}")
    SX("s43", 0, ("s6", 8), ("s48", 7, 0, 0))
    SX("s44", 0, ("s43", 13), ("s4", 10), ("s46", 0))
def wq_dma():
    A(f"s_add_u32 m0, s48, {WQL}")
    for u in range(4):
        if u: A(f"s_add_u32 s44, s44, {8*8192-1024}")
        A(f"buffer_load_dwordx4 v{wQ}, {RA}, s44 offen offset:{u*1024} {NT} lds")
def c_setup():
    VX(T2, T3, 0, (5, 1, 10), (0, 5, 2))
if "noW" in OPT["abl"]:
    ids2(); A("s_waitcnt lgkmcnt(0)\ns_branch L_exit")
if "noA" in OPT["abl"]: A("s_branch L_nA")
A(f"{IS_NA}\ns_cbranch_scc1 L_nA")
A(f"s_lshl_b32 s49, {sDB}, 7")
A("s_cmp_lt_u32 s3, 256\ns_cbranch_scc1 L_A1")
A("s_sub_u32 s40, s3, 256")
SX("s61", 0, ("s7", 6), ("s40", 2, 0, 0))
A(f"s_mul_i32 s61, s61, 6144\ns_add_u32 s61, s61, s49\ns_add_u32 s62, s61, {8*6144-1024}")
A(f"s_lshl_b32 s40, s40, 5\ns_add_u32 m0, s40, {PA}")
if OPT["diag"] == 2: STAMP(1)
A("s_waitcnt lgkmcnt(0)")
if OPT["diag"] not in (2, 3, 4): STAMP(1)
A(f"buffer_load_dwordx4 v{wM}, {RC}, s61 offen {NT} lds")
A(f"buffer_load_dwordx4 v{wM}, {RC}, s62 offen offset:1024 {NT} lds")
A(f"s_add_u32 m0, s40, {PA+8192-1024}")
A(f"buffer_load_dwordx4 v{wM}, {RC}, s61 offen offset:1024 {NT} lds")
A(f"buffer_load_dwordx4 v{wM}, {RC}, s62 offen offset:2048 {NT} lds")
TK = OPT["tok"]
AH = OPT["ahold"]
def clears():
    A("v_mov_b32 v32, -1\nv_mov_b32 v33, -1\nv_mov_b32 v34, -1\nv_mov_b32 v35, -1")
    SX("s54", CLR, ("s49", 9), ("s7", 13), ("s60", 0))
    A("v_lshlrev_b32 v38, 4, v0")
    A(f"buffer_store_dwordx4 v[32:35], v38, {RW}, s54 offen sc1")
    A(f"buffer_store_dwordx4 v[32:35], v38, {RW}, s54 offen offset:1024 sc1")
A("s_mov_b32 s60, s40")
if not TK:
    srd(RW, WS_BYTES); clears()
if AH < 8:
    wq_setup(6)
    A("s_barrier")
    wq_dma()
if OPT["diag"] == 3: STAMP(1)
cont(5)
if OPT["diag"] == 4: STAMP(1)
w_common()
if AH == 8: wq_setup(0)
NB = (4 if AH < 8 else 0)
A(f"s_waitcnt vmcnt({NB})")
if OPT["abl"]: STAMP(9)
if STAMPS == 3: STAMP(12)
A("s_barrier")
if AH == 8:
    A("s_barrier")
    wq_dma()
if TK: clears()
tr_setup()
A("s_waitcnt lgkmcnt(0)")
A(f"s_add_u32 {sTAG}, {sTAG}, {TAGC:#x}")
A("s_branch L_B")
A.seg(1.5 if OPT["wfirst"] else 3)
A.label("L_A1")
c_setup()
VX(36, T3, 0, (4, 1, 10), (5, 1, 8), (0, 4, 4))
A("s_movk_i32 s26, 2048")
A("s_waitcnt lgkmcnt(0)")
STAMP(1)
A(f"buffer_load_dword v{wC}, v{T2}, {RE}, s46 offen {SNT}")
A(f"buffer_load_dwordx4 v[{wX}:{wX+3}], v36, {RD}, 0 offen {SNT}")
A(f"buffer_load_dwordx4 v[{wX+4}:{wX+7}], v36, {RD}, 0 offen offset:512 {SNT}")
VX(37, T3, 0, (4, 1, 10), (0, 4, 1))
A(f"s_lshr_b32 s50, s3, 1\ns_add_u32 s50, s50, s49\nv_mov_b32 v{wXS}, 0")
A(f"buffer_load_short_d16_hi v{wXS}, v37, {RD}, s50 offen {SNT}")
if OPT["wfirst"] == 3: cont(4)
if AH < 8: A("s_barrier")
A(f"s_load_dword {sTAG}, s[16:17], 0")
ids2()
tr_setup()
VX(39, 32, 0, (4, 1, 6), (2, 2, 4))
SX("s53", H1G, (sDB, 12), ("s3", 10), ("s46", 0))
A("s_cmp_eq_u32 s7, 0\ns_cselect_b32 s54, 1.0, 0")
unit_pre("0", "s54", PA)
silu_operand(3)
if OPT["abl"]: STAMP(6)
if STAMPS == 3: STAMP(11)
A(f"s_waitcnt vmcnt(0)")
A("v_mov_b32 v36, 0\nv_mov_b32 v37, 0\nv_mov_b32 v38, 0x3f803f80")
for i in range(8):
    A(f"v_dot2c_f32_bf16 v36, v{wX+i}, v38\nv_dot2c_f32_bf16 v37, v{wX+i}, v{wX+i}")
for m in ("quad_perm:[1,0,3,2]", "quad_perm:[2,3,0,1]", "row_half_mirror", "row_mirror"):
    A(f"v_add_f32_dpp v36, v36, v36 {m} {DPPM}\nv_add_f32_dpp v37, v37, v37 {m} {DPPM}")
A("v_mov_b32 v38, v36\nv_mov_b32 v35, v37")
A("v_permlane32_swap_b32 v36, v38\nv_permlane32_swap_b32 v37, v35")
A("v_add_f32 v36, v36, v38\nv_add_f32 v37, v37, v35")
A(f"v_mul_f32 v36, {f32(1.0/512)}, v36\nv_mov_b32 v38, {f32(1e-5)}\nv_fmac_f32 v38, {f32(1.0/512)}, v37")
A("v_fma_f32 v38, -v36, v36, v38\nv_rsq_f32 v38, v38")
A(f"v_sub_f32 v{wXS}, v{wXS}, v36\nv_mul_f32 v{wXS}, v{wXS}, v38")
A(f"s_add_u32 {sTAG}, {sTAG}, {TAGC:#x}")
A(f"v_mov_b32 v{wD+9}, {sTAG}\nv_mov_b32 v{wD+11}, {sTAG}")
if OPT["abl"]: STAMP(7)
if STAMPS == 3: STAMP(12)
A("s_waitcnt lgkmcnt(0)\ns_barrier")
if OPT["abl"]: STAMP(10)
unit_go()
A(f"v_fma_f32 v32, v{wXS}, v{wD+4}, v{wD}")
pack4(32, wD+8, wD+10, 33)
setexec(0x11111111, 0)
A(f"buffer_store_dwordx4 v[{wD+8}:{wD+11}], v39, {RW}, s53 offen sc1")
fullexec()
STAMP(14)
if OPT["diag"] == 1:
    A("s_waitcnt vmcnt(0)"); STAMP(13)
if AH == 8: A("s_barrier")
wq_setup(0)
wq_dma()
w_common(False)
A("s_branch L_B")
A.seg(2)
A.label("L_nA")
wq_setup(6)
A("s_waitcnt lgkmcnt(0)")
STAMP(1)
if OPT["wqpf"] == 22:
    sk = L("nh0")
    A(f"s_cmp_lt_u32 s3, 256\ns_cbranch_scc1 {sk}")
wq_dma()
if OPT["wqpf"] == 22: A.label(sk)
MBW = OPT["wmode"] in (1, 2)
MB2 = OPT["wmode"] == 2
MBN = OPT["wmode"] == 0
if OPT["ptouch"] and AS:
    SX("s40", 0, ("s3", 11), ("s4", 10), ("s46", 0))
    A(f"v_lshlrev_b32 v32, 13, v2")
    if OPT["ptouch"] == 1: A("s_barrier")
    A(f"buffer_load_dword v{vPF}, v32, {RA}, s40 offen")
if MBW:
    c_setup()
    A(f"buffer_load_dword v{wC}, v{T2}, {RE}, s46 offen {SNT}")
if MBN:
    SX("s51", 0, ("s7", 6), ("s3", 3, 0, 0))
    A("s_mul_i32 s51, s51, 6144\ns_lshl_b32 s42, s3, 4")
    SX("s40", 2048, (sDB, 0, 3, 8)); A("s_add_u32 s51, s51, s40")
    c_setup()
    A(f"buffer_load_dword v{wC}, v{T2}, {RE}, s46 offen {SNT}")
    if OPT["mbwait"] >= 0: A(f"s_waitcnt vmcnt({OPT['mbwait']})")
    else: A("s_barrier")
    for j, o in enumerate((0, 128, 2048, 2048+128)):
        A(f"s_add_u32 m0, s42, {PB + j*8192 - o}")
        A(f"buffer_load_dwordx4 v{wM}, {RC}, s51 offen offset:{o} {NT} lds")
cont(6)
w_common()
tr_setup()
A("s_waitcnt lgkmcnt(0)")
A(f"s_add_u32 {sTAG}, {sTAG}, {TAGC:#x}")
A.label("L_B")
def mw_dma():
    SX("s40", PB, ("s3", 10)); A("s_mov_b32 m0, s40")
    A(f"buffer_load_dwordx4 v{wM}, {RC}, s96 offen {NT} lds")
    A(f"s_add_u32 m0, s40, {8192-128}")
    A(f"buffer_load_dwordx4 v{wM}, {RC}, s96 offen offset:128 {NT} lds")
def mw_compute(vm):
    A(f"ds_read2_b64 v[{wXO}:{wXO+3}], v83 offset0:0 offset1:4\nds_read2_b64 v[{wXO+4}:{wXO+7}], v83 offset0:8 offset1:12")
    unit_pre("s98", "s98", PB)
    A(f"v_mov_b32 v{wD+9}, {sTAG}\nv_mov_b32 v{wD+11}, {sTAG}")
    A(f"s_waitcnt vmcnt({vm}) lgkmcnt(0)\ns_barrier")
    sk = L("nmw")
    A(f"s_cmp_ge_u32 s3, 4\ns_cbranch_scc1 {sk}" if vm == 2 else f"s_cmp_lt_u32 s3, 4\ns_cbranch_scc1 {sk}")
    unit_go()
    A("v_cmp_gt_u32 vcc, 32, v0")
    A(f"v_cndmask_b32 v36, v{wD+4}, v{wD}, vcc")
    pack4(36, wD+8, wD+10, 37)
    setexec(0x11111111, 0x11111111)
    A(f"buffer_store_dwordx4 v[{wD+8}:{wD+11}], v122, {RW}, s97 offen sc1")
    fullexec()
    STAMP(6)
    A.label(sk)
if MBW:
    if MB2: SX("s99", 0, ("s4", 0), ("s4", 2, 0, 2), ("s6", 2))
    else: A("s_mov_b32 s99, s58")
    SX("s96", 0, ("s7", 6), ("s3", 3))
    A("s_mul_i32 s96, s96, 6144")
    SX("s40", 2048, ("s99", 8)); A("s_add_u32 s96, s96, s40")
    if MB2:
        sk = L("nm2")
        A(f"{IS_NA}\ns_cbranch_scc1 {sk}")
        mw_dma()
        A.label(sk)
    SX("s97", MGT, ("s99", 13), ("s3", 0, 2, 10), ("s46", 0))
    SX("s40", 0, ("s99", 2, 0, 3), ("s7", 0))
    A("s_cmp_eq_u32 s40, 16\ns_cselect_b32 s98, 1.0, 0")
    VX(122, 32, 0, (5, 1, 12), (4, 1, 6), (2, 2, 4))
srd(RF, 2048)
SX("s47", 0, ("s4", 19), ("s43", 10), ("s46", 0))
wRW, wRR, wOF, wTA = 14, 15, 72, 108
SX("s40", RED, ("s3", 9)); VX(wRW, 32, "s40", (0, 6, 2))
SX("s40", RED, ("s3", 8)); VX(wRR, 32, "s40", (0, 6, 2))
VX(wOF, 32, 0, (0, 3, 7), (3, 1, 6), (4, 2, 4))
SX("s53", H1G, ("s43", 6))
if TK:
    VX(T3, 32, 0, (0, 6, 7)); A(f"s_movk_i32 s57, {TOK}")
else:
    VX(T3, 32, 0, (0, 2, 12))
    A("s_xor_b32 s57, s6, 1")
    SX("s57", H1G + 4, ("s57", 14), ("s3", 7))
wQA = 73; wQD = 76
VX(wQA, 32, 0, (5, 1, 12), (0, 5, 2))
SX("s56", QG, ("s4", 13), ("s5", 8), ("s3", 7))
A(f"v_add_u32 v{wTA}, s48, v{wTR}")
for t in range(1, 4):
    A(f"v_xor_b32 v{wTA+t}, {t*32:#x}, v{wTA}")
A(f"v_mov_b32 v{wQD+1}, {sTAG}\nv_mov_b32 v{wQD+3}, {sTAG}")
wGA, wCB, wXA, wXAD = 74, 75, 80, 81
tE, tOUT, tBP, tOF, tL16 = 84, 114, 115, 72, 116
SX("s59", Y6, ("s5", 15), ("s4", 12))
A("s_cmp_eq_u32 s3, 7\ns_cselect_b32 s40, 0, -1")
A("v_mov_b32 v118, s40\nv_mov_b32 v119, s40\nv_lshlrev_b32 v117, 3, v0")
SX("s41", 0, ("s3", 9), ("s59", 0))
VX(T1, 32, 0, (0, 4, 6), (4, 2, 4))
SX("s51", OG, ("s4", 14), ("s43", 5))
SX("s54", SG, ("s4", 9), ("s43", 7, 0, 7))
A(f"v_lshlrev_b32 v{T0}, 2, v1\nv_xor_b32 v{T0}, v0, v{T0}\nv_and_b32 v{T0}, 7, v{T0}\nv_lshlrev_b32 v{T0}, 3, v{T0}")
A(f"v_lshrrev_b32 v32, 5, v0\nv_lshl_or_b32 v{T0}, v32, 6, v{T0}")
VX(wXAD, 32, 0, (5, 1, 6), (2, 2, 4), (4, 1, 3))
SX("s60", X4, ("s7", 11), ("s3", 10), ("s6", 14), ("s4", 7))
A(f"s_add_u32 s52, s60, {Y4-X4}")
A("v_and_b32 v32, 1, v0\nv_lshlrev_b32 v32, 4, v32\nv_mov_b32 v33, 0x3f80\nv_lshlrev_b32 v32, v32, v33")
A("v_lshrrev_b32 v33, 2, v2\nv_sub_u32 v33, v1, v33\nv_bfe_u32 v34, v0, 1, 1\nv_lshl_or_b32 v33, v33, 1, v34")
for r in range(2):
    A(f"v_cmp_eq_u32 vcc, {r}, v33")
    A(f"v_cndmask_b32 v{tE+r}, 0, v32, vcc")
    A(f"v_mov_b32 v{tE+6+r}, v{tE+r}")
for r in (2, 3, 4, 5):
    A(f"v_mov_b32 v{tE+r}, 0")
VX(38, 33, 0, (0, 1, 3), (5, 1, 1), (4, 1, 2))
SX("s40", 0, ("s4", 0, 2, 4)); A(f"v_add_u32 v{tOUT}, s40, v38")
SX("s40", 0, ("s4", 2, 0, 7)); A(f"v_lshl_add_u32 v{tBP}, v{tOUT}, 1, s40")
SX("s62", 0, ("s4", 2, 0, 10), ("s5", 6))
A(f"v_lshlrev_b32 v{tL16}, 4, v0")
SX("s49", X4, ("s5", 10))
A("s_add_u32 s50, s49, 16384")
SX("s55", ST5, ("s4", 8), ("s7", 5), ("s6", 3))
VX(113, 33, 0, (5, 1, 4), (4, 1, 2))
SX("s61", MGT, ("s7", 12), ("s3", 11))
SX("s40", MGT + 3*32768, ("s5", 11))
A("s_cmp_eq_u32 s3, 2\ns_cselect_b32 s61, s40, s61\ns_cselect_b32 s40, 0, 0x10000\ns_add_u32 s63, s61, s40")
VX(120, 33, 0, (5, 1, 10), (0, 5, 1))
SX("s42", 0, ("s7", 7), ("s3", 6))
A(f"v_mov_b32 v{wXA}, 0")
def blk_frags(off):
    for t in range(4):
        for h in range(2):
            r = wWF + 4*t + 2*h
            A(f"ds_read_b64_tr_b16 v[{r}:{r+1}], v{wTA+t} offset:{off + h*2048}")
def h1_loads():
    tagged_loads(16, wOF, "s53")
    if not TK: A(f"buffer_load_dword v33, v{T3}, {RW}, s57 offen sc1")
NH = 2 if TK else 3
if MBN:
    VX(39, 32, 0, (5, 1, 12), (4, 1, 6), (2, 2, 4))
    sk = L("nmb")
    A(f"{IS_A}\ns_cbranch_scc1 {sk}")
    SX("s96", MGT, (sDB, 0, 3, 13), ("s3", 2, 0, 16), ("s3", 0, 2, 10), ("s46", 0))
    SX("s40", 0, (sDB, 2, 1, 3), ("s3", 2, 0, 4), ("s7", 0))
    A("s_cmp_eq_u32 s40, 16\ns_cselect_b32 s97, 1.0, 0")
    SX("s98", PB, ("s3", 2, 0, 14))
    silu_operand(4)
    A.label(sk)
def mb_blk(early):
    sk = L("nmc")
    A(f"{IS_A}\ns_cbranch_scc1 {sk}")
    VX(39, 32, 0, (5, 1, 12), (4, 1, 6), (2, 2, 4))
    unit_pre("s97", "s97", "s98")
    A(f"v_mov_b32 v{wD+9}, {sTAG}\nv_mov_b32 v{wD+11}, {sTAG}")
    if early: A(f"s_waitcnt vmcnt({NH}) lgkmcnt(0)\ns_barrier")
    unit_go()
    A("v_cmp_gt_u32 vcc, 32, v0")
    A(f"v_cndmask_b32 v32, v{wD+4}, v{wD}, vcc")
    pack4(32, wD+8, wD+10, 34)
    setexec(0x11111111, 0x11111111)
    A(f"buffer_store_dwordx4 v[{wD+8}:{wD+11}], v39, {RW}, s96 offen sc1")
    fullexec()
    STAMP(6)
    A.label(sk)
A(f"s_waitcnt vmcnt({OPT['h1at']})")
h1_loads()
if MBN and OPT["mbearly"]: mb_blk(True)
if MB2:
    sk = L("nm3")
    A(f"{IS_NA}\ns_cbranch_scc1 {sk}")
    mw_compute(2)
    A.label(sk)
A(f"s_waitcnt vmcnt({NH})")
if MBW:
    sk = L("nsl")
    A(f"{IS_A}\ns_cbranch_scc1 {sk}")
    silu_operand(NH)
    A.label(sk)
if TK:
    sk = L("ntk")
    A(f"{IS_NA}\ns_cbranch_scc1 {sk}\ns_cmp_lt_u32 s3, 4\ns_cbranch_scc1 {sk}")
    SX("s40", TOK - 16, (sDB, 10), ("s46", 0), ("s3", 2))
    A(f"s_mov_b64 exec, 1\nbuffer_store_dword v{wQD+1}, v0, {RW}, s40 offen sc1")
    fullexec()
    A.label(sk)
blk_frags(WQL)
STAMP(3)
if OPT["abl"] and "toq" not in OPT["abl"]: A("s_branch L_exit")
sk = L("nw0"); sk2 = L("nw1")
A(f"{IS_NA}\ns_cbranch_scc1 {sk if MBN and OPT['mbearly'] else sk2}")
if MB2: A(f"s_branch {sk}")
elif TK: A(f"s_cmp_ge_u32 s3, 4\ns_cbranch_scc1 {sk}")
A.label(sk2)
A("s_waitcnt vmcnt(0)")
A.label(sk)
poll(h1_loads, lambda: tagged_chk([16], 33, None if TK else 33), first_issued=True, first_wait=1, sleep=OPT["s2"])
STAMP(4)
if OPT["diag"] == 1:
    A(f"s_waitcnt lgkmcnt(0)\ns_mul_i32 s40, {sCNT}, 10\ns_add_u32 s88, s64, s40")
tagged_pack(16)
A("s_waitcnt lgkmcnt(0)")
def blk_mfma(op):
    for t in range(4):
        mfma(wD + 4*t, op, wWF + 4*t, None)
def blk_reduce():
    A(f"v_permlane16_swap_b32 v{wD}, v{wD+4}\nv_permlane16_swap_b32 v{wD+8}, v{wD+12}")
    A(f"v_add_f32 v{wD}, v{wD}, v{wD+4}\nv_add_f32 v{wD+8}, v{wD+8}, v{wD+12}")
    A(f"ds_write2st64_b32 v{wRW}, v{wD}, v{wD+8} offset0:0 offset1:1")
    A("s_waitcnt lgkmcnt(0)\ns_barrier")
def blk_final():
    for i in range(4):
        A(f"ds_read2st64_b32 v[{32+2*i}:{33+2*i}], v{wRR} offset0:{4*i} offset1:{4*i+2}")
    A("s_waitcnt lgkmcnt(0)")
    A("v_add_f32 v32, v32, v33\nv_add_f32 v34, v34, v35\nv_add_f32 v36, v36, v37\nv_add_f32 v38, v38, v39")
    A("v_add_f32 v32, v32, v34\nv_add_f32 v36, v36, v38\nv_add_f32 v32, v32, v36")
blk_mfma(16)
rowsum([wD, wD+4, wD+8, wD+12])
blk_reduce()
sk = L("nq")
A(f"s_cmp_ge_u32 s3, 2\ns_cbranch_scc1 {sk}")
blk_final()
pack4(32, wQD, wQD+2, 33)
setexec(0x11111111, 0x11111111)
A(f"buffer_store_dwordx4 v[{wQD}:{wQD+3}], v{wQA}, {RW}, s56 offen")
fullexec()
A.label(sk)
STAMP(5)
if OPT["abl"]: A("s_branch L_exit")
if MBN and not OPT["mbearly"]: mb_blk(False)
if TK:
    sk = L("ntc")
    A(f"s_cmp_lg_u32 s3, 3\ns_cbranch_scc1 {sk}")
    A(f"buffer_load_dwordx4 v[32:35], v{T3}, {RW}, s57 offen sc1")
    A.label(sk)
A("s_barrier")
def o_loads():
    A(f"buffer_load_dwordx4 v[104:107], v{T1}, {RW}, s51 offen sc1")
def mc_loads():
    tagged_loads(128, wOF, "s61"); tagged_loads(136, wOF, "s63")
def wo_dma():
    A(f"s_add_u32 m0, s48, {WOL}")
    for u in range(4):
        if u: A(f"s_add_u32 s47, s47, {8*1024-1024}")
        A(f"buffer_load_dwordx4 v{wO}, {RB}, s47 offen offset:{u*1024} {NT} lds")
if MBW:
    sk = L("nm4")
    if MB2: A(f"{IS_A}\ns_cbranch_scc1 {sk}")
    mw_dma()
    A.label(sk)
NCW = 2 if MB2 else 3
sk = L("nc0")
A(f"s_cmp_ge_u32 s3, {NCW}\ns_cbranch_scc1 {sk}")
MCE = MB2 or (not MBW and (not MBN or OPT['mbearly']))
if MCE: mc_loads()
A(f"s_cmp_lg_u32 s58, 0\ns_cbranch_scc1 {sk}")
A(f"buffer_load_short_d16_hi v{wXA}, v120, {RD}, s42 offen")
A.label(sk)
A(f"buffer_store_dwordx2 v[118:119], v117, {RW}, s41 offen sc1")
if not TK: o_loads()
WOE = MBW and OPT["wo_mb"]
if MBW:
    if WOE:
        A("s_barrier"); wo_dma()
    sk5 = L("nm5")
    if MB2: A(f"{IS_A}\ns_cbranch_scc1 {sk5}")
    mw_compute(5 if WOE else 1)
    A.label(sk5)
if OPT["gtrg"]:
    A("s_cmp_lg_u32 s3, 3\ns_cbranch_scc1 L_trgd")
    if OPT["gmask"] == 7:
        VX(39, 32, 0, (0, 3, 7)); A(f"s_movk_i32 s40, {TRG}")
    else:
        VX(39, 32, 0, (0, 2, 7)); A(f"s_movk_i32 s40, {TRG + 512}")
    A(f"s_mov_b32 {sCNT}, 0")
    A.label("L_trg")
    A(f"buffer_load_dword v33, v39, {RW}, s40 offen sc1")
    A("s_waitcnt vmcnt(0)")
    A(f"v_cmp_ne_u32 vcc, {sTAG}, v33")
    A("s_cbranch_vccz L_trgd")
    A(f"s_sleep 2\ns_add_u32 {sCNT}, {sCNT}, 1\ns_cmp_lt_u32 {sCNT}, {OPT['trgmax']}\ns_cbranch_scc1 L_trg")
    A.label("L_trgd")
    A("s_barrier")
if not WOE: wo_dma()
if TK:
    sk = L("ntd")
    A(f"s_cmp_lg_u32 s3, 3\ns_cbranch_scc1 {sk}")
    tok_wait(T3, "s57", 32, 5)
    A.label(sk)
    A("s_barrier")
    o_loads()
sk = L("nc1")
A(f"s_cmp_ge_u32 s3, {NCW}\ns_cbranch_scc1 {sk}")
if not MCE: A("s_waitcnt vmcnt(2)")
poll(mc_loads, lambda: tagged_chk([128, 136], 33), first_issued=MCE, first_wait=4+TK, sleep=2)
tagged_pack(128); tagged_pack(136)
for i in range(2):
    for t in range(2):
        mfma(wD + 8*i + 4*t, 128 + 8*i, tE + 4*t, None)
rowsum([wD, wD+4, wD+8, wD+12])
A(f"v_permlane16_swap_b32 v{wD}, v{wD+4}\nv_permlane16_swap_b32 v{wD+8}, v{wD+12}")
A(f"v_add_f32 v{wGA}, v{wD}, v{wD+4}\nv_add_f32 v{wCB}, v{wD+8}, v{wD+12}")
STAMP(2)
A.label(sk)
A(f"s_waitcnt vmcnt({TK})")
blk_frags(WOL)
STAMP(7)
wF = 100
sg_load = lambda: A(f"buffer_load_dwordx2 v[16:17], v{T0}, {RW}, s54 offen sc1")
await_any(sg_load, lambda: A("v_cmp_o_f32 vcc, v17, v17"), OPT["s1"])
poll(sg_load, lambda: A("v_cmp_u_f32 vcc, v17, v17"), first_issued=True, sleep=2*OPT["s2"])
o_loads()
A(f"v_max_f32_dpp v18, v16, v16 quad_perm:[1,0,3,2] {DPPM}")
A(f"v_max_f32_dpp v18, v18, v18 quad_perm:[2,3,0,1] {DPPM}")
A(f"v_max_f32_dpp v18, v18, v18 row_half_mirror {DPPM}")
A("v_sub_f32 v16, v16, v18\nv_exp_f32 v16, v16\nv_mul_f32 v17, v16, v17")
for m in ("quad_perm:[1,0,3,2]", "quad_perm:[2,3,0,1]", "row_half_mirror"):
    A(f"v_add_f32_dpp v17, v17, v17 {m} {DPPM}")
A(f"v_rcp_f32 v17, v17\nv_mul_f32 v{wF}, v16, v17")
STAMP(8)
poll(o_loads, lambda: chk_empty4(104, 33), first_issued=True, first_wait=0)
STAMP(9)
A("s_waitcnt lgkmcnt(0)")
blk_mfma(104)
for t in range(4):
    A(f"v_mul_f32_dpp v{wD+4*t}, v{wF}, v{wD+4*t} row_newbcast:0 {DPPM}")
for r in range(1, 4):
    for t in range(4):
        A(f"v_fmac_f32_dpp v{wD+4*t}, v{wF}, v{wD+4*t+r} row_newbcast:{r} {DPPM}")
blk_reduce()
A("s_cmp_gt_u32 s3, 2\ns_cbranch_scc1 L_exit")
A("s_cmp_eq_u32 s3, 2\ns_cbranch_scc1 L_fin")
blk_final()
A(f"v_fma_f32 v32, v32, v{wGA}, v{wXA}")
A(f"v_mul_f32 v36, v32, v{wCB}")
A(f"v_mov_b32_dpp v33, v32 quad_perm:[1,1,3,3] {DPPM}")
A(f"v_mov_b32_dpp v37, v36 quad_perm:[1,1,3,3] {DPPM}")
A("v_cvt_pk_bf16_f32 v34, v32, v33\nv_cvt_pk_bf16_f32 v38, v36, v37")
A(f"v_mov_b32_dpp v35, v34 quad_perm:[2,2,2,2] {DPPM}")
A(f"v_mov_b32_dpp v39, v38 quad_perm:[2,2,2,2] {DPPM}")
setexec(0x11111111, 0x11111111)
A(f"buffer_store_dwordx2 v[38:39], v{wXAD}, {RW}, s52 offen sc1")
A(f"buffer_store_dwordx2 v[34:35], v{wXAD}, {RW}, s60 offen sc1")
STAMP(10)
A("s_branch L_exit")
A.label("L_fin")
if MB2:
    poll(lambda: tagged_loads(128, wOF, "s61"), lambda: tagged_chk([128], 33), sleep=2)
    tagged_pack(128)
    for t in range(2):
        mfma(wD + 4*t, 128, tE + 4*t, None)
    rowsum([wD, wD+4])
    A(f"v_permlane16_swap_b32 v{wD}, v{wD+4}")
    A(f"v_add_f32 v{wGA}, v{wD}, v{wD+4}")
def x4_loads():
    A(f"buffer_load_dwordx4 v[16:19], v{tOF}, {RW}, s49 offen sc1")
    A(f"buffer_load_dwordx4 v[20:23], v{tOF}, {RW}, s50 offen sc1")
def x4_chk():
    A("v_max3_u32 v33, v16, v17, v18\nv_max3_u32 v34, v19, v20, v21\nv_max3_u32 v33, v33, v22, v23\nv_max_u32 v33, v33, v34\nv_cmp_eq_u32 vcc, -1, v33")
poll(x4_loads, x4_chk)
STAMP(11)
for hp in range(2):
    for t in range(2):
        mfma(wD + 4*t, 16 + 4*hp, tE + 4*t, None if hp == 0 else wD + 4*t)
rowsum([wD, wD+4])
A(f"v_permlane16_swap_b32 v{wD}, v{wD+4}")
A(f"v_add_f32 v42, v{wD}, v{wD+4}")
A("v_mov_b32 v43, v42\nv_mul_f32 v44, v42, v42")
A("v_permlane16_swap_b32 v43, v44")
A("v_add_f32 v43, v43, v44")
for m in ("quad_perm:[1,0,3,2]", "quad_perm:[2,3,0,1]", "row_half_mirror", "row_mirror"):
    A(f"v_add_f32_dpp v43, v43, v43 {m} {DPPM}")
setexec(0x00010001, 0x00010001)
A(f"buffer_store_dword v43, v113, {RW}, s55 offen")
fullexec()
STAMP(12)
A(f"ds_bpermute_b32 v42, v{tBP}, v42\nds_bpermute_b32 v{wGA}, v{tBP}, v{wGA}")
def y6_loads():
    for i in range(4):
        A(f"buffer_load_dwordx4 v[{16+4*i}:{19+4*i}], v{tL16}, {RW}, s59 offen offset:{1024*i} sc1")
def y6_chk():
    for r in range(4):
        A(f"v_add_f32 v{16+r}, v{16+r}, v{20+r}\nv_add_f32 v{24+r}, v{24+r}, v{28+r}")
    for r in range(4):
        A(f"v_add_f32 v{16+r}, v{16+r}, v{24+r}")
    A("v_permlane32_swap_b32 v16, v17\nv_permlane32_swap_b32 v18, v19")
    A("v_add_f32 v16, v16, v17\nv_add_f32 v18, v18, v19")
    A("v_permlane16_swap_b32 v16, v18")
    A("v_add_f32 v16, v16, v18")
    A("v_cmp_u_f32 vcc, v16, v16")
await_any(lambda: A(f"buffer_load_dword v16, v{tL16}, {RW}, s59 offen sc1"), lambda: A("v_cmp_o_f32 vcc, v16, v16"), 2)
poll(y6_loads, y6_chk)
STAMP(13)
for m in ("row_ror:8", "row_ror:4", "row_ror:2"):
    A(f"v_add_f32_dpp v16, v16, v16 {m} {DPPM}")
A("s_waitcnt lgkmcnt(0)")
A(f"v_fma_f32 v16, v16, v{wGA}, v42")
A("v_cvt_pk_bf16_f32 v16, v16, v16")
setexec(0x00030003, 0x00030003)
A(f"buffer_store_short v16, v{tOUT}, {RF}, s62 offen")
A("s_cmp_lg_u32 s2, 128\ns_cbranch_scc1 L_exit")
A(f"s_sub_u32 s40, {sTAG}, {TAGC-1:#x}")
A("v_mov_b32 v17, s40\nv_mov_b32 v18, 0")
A("s_mov_b64 exec, 1")
A(f"buffer_store_dword v17, v18, {RW}, 0 offen sc1")

A("s_branch L_exit")
A.seg(40)
A.label("L_exit")
if STAMPS == 1:
    STAMP(15)
    A("s_waitcnt lgkmcnt(0)")
    A("s_mov_b64 exec, 1")
    SX("s40", DBG, ("s2", 9), ("s3", 6))
    A("v_mov_b32 v0, 0")
    for q in range(4):
        for i in range(4):
            A(f"v_mov_b32 v{4+4*q+i}, s{64+2*(4*q+i)}")
        A(f"buffer_store_dwordx4 v[{4+4*q}:{7+4*q}], v0, {RW}, s40 offen offset:{16*q}")
if STAMPS == 3:
    STAMP(15)
    A("s_waitcnt lgkmcnt(0)")
    SX("s40", 0, ("s2", 3), ("s3", 0))
    A(f"s_cmp_lg_u32 s40, {OPT['dwg']*8 + OPT['dwv']}\ns_cbranch_scc1 L_end")
    A(f"s_sub_u32 s40, s{64+2*OPT['db']}, s{64+2*OPT['da']}")
    A(f"s_mul_i32 s40, s40, {OPT['dm']}")
    A("s_min_u32 s40, s40, 30000")
    A.label("L_spin")
    A("s_memrealtime s[42:43]\ns_waitcnt lgkmcnt(0)\ns_sub_u32 s41, s42, s94\ns_cmp_lt_u32 s41, s40\ns_cbranch_scc1 L_spin")
if STAMPS == 2:
    STAMP(15)
    A("s_load_dwordx2 s[32:33], s[0:1], 96")
    A("s_mov_b32 s34, 256\ns_mov_b32 s35, 0x00020000")
    A("s_waitcnt lgkmcnt(0)")
    fullexec()
    A("v_mov_b32 v4, 0\nv_mbcnt_lo_u32_b32 v5, -1, 0\nv_lshlrev_b32 v5, 2, v5")
    A("s_cmp_ge_u32 s2, 128\ns_cbranch_scc1 L_dw")
    A("s_cmp_lg_u32 s3, 0\ns_cbranch_scc1 L_end")
    A("s_not_b32 s40, s64\nv_writelane_b32 v4, s40, 0")
    for i, st in enumerate([9, 2, 5, 7, 10, 11, 8]):
        A(f"v_writelane_b32 v4, s{64+2*st}, {i+1}")
    A("s_branch L_dd")
    A.label("L_dw")
    A("s_cmp_lg_u32 s3, 2\ns_cbranch_scc1 L_end")
    for i, st in enumerate([0, 3, 4, 5, 7, 9, 11, 15]):
        A(f"v_writelane_b32 v4, s{64+2*st}, {i+8}")
    A.label("L_dd")
    A("s_mov_b64 exec, 0xffff")
    A("buffer_atomic_umax v4, v5, s[32:35], 0 offen")
A.label("L_end")
A("s_endpgm")
A.label("L_codeend")
A.raw(f".fill (16384 - (L_codeend - {NAME}_kernel)) / 4, 4, 0xbf810000")
A.raw(f""".section .rodata,"a"
.p2align 6
.amdhsa_kernel {NAME}_kernel
  .amdhsa_next_free_vgpr 152
  .amdhsa_next_free_sgpr 102
  .amdhsa_accum_offset 152
  .amdhsa_group_segment_fixed_size 0
  .amdhsa_kernarg_size 112
  .amdhsa_user_sgpr_count 2
  .amdhsa_user_sgpr_kernarg_segment_ptr 1
  .amdhsa_system_sgpr_workgroup_id_x 1
  .amdhsa_float_denorm_mode_32 3
.end_amdhsa_kernel""")
sys.stdout.write(A.text())
sys.stderr.write(f"instrs={A.ninstr} nops={A.nops}\n")
```

```python
import sys, math, struct
sys.path.insert(0, "work")
from asmlib import Asm

NAME = "adaLN_cond__sliding_block_cached__glu_gated_reglu__decode"
OPT = dict(stamps=0, nt="nt", limit=20000, refresh=255, psleep=0, pf=4, pfnt="", smallnt="", slow=0, gtrg=0, gw=7, gmask=7, fpf=0, wo_after_c=0, fpfbar=1, fpfl="", uslocal=1, qn=4, trg=0, mb_at="kv", touch=0, ltouch=1, ahold=4, wqpf=0, wqpfl="", ehold=0, depth=0, ffn_first=0, ser=1, obar=1, gu_b1=0, dn_late=0, dn_p=0, diag=0, rot=7, vt=1, r3=5, ns=16, help=0, helpbar=1, tokl=7, asplit=1, wmode=0, ptouch=0, nv1=3, wfirst=3, tok=1, gufirst=1, mfb1=1, mbearly=1, ftouch=0, ftouch2=0, mbg=3, mbwait=-1, g_b1=0, wo_mb=1, h1at=1, depth_until=16, qpipe=1, s1=6, s2=1, sent=1, trgmax=24, dwg=10, dwv=1, da=0, db=15, dm=20, kvbar=1, abl="")
for a in sys.argv[1:]:
    k, v = a.split("=")
    OPT[k] = int(v) if v.lstrip("-").isdigit() else v
STAMPS = OPT["stamps"]; NT = OPT["nt"] if OPT["nt"] != "-" else ""
LIMIT = OPT["limit"]; REFRESH = OPT["refresh"]; SNT = OPT["smallnt"]

def f32(x): return "0x%08x" % struct.unpack("<I", struct.pack("<f", x))[0]

TRG = 0x1000; TOK = 0x4000; H1G = 0x8000; QG = 0x10000; MGT = 0x20000
CLR = 0x100000
OG = CLR; MG = CLR + 0x20000; X4 = CLR + 0x30000; Y4 = CLR + 0x38000
G5 = CLR + 0x40000; SG = CLR + 0x5C000; ST5 = CLR + 0x5D000; US5 = CLR + 0x60000
Y6 = 0x180000; DBG = 0x400000
WS_BYTES = 0x800000
TAGC = 0x9E3779B9
VREG = 65536; PA = 131072; XL = 147456; QL = XL + 1024; PL = QL + 2048; MISC = PL + 2048
FG = 0; FD = 32768; YL0 = 131072
WQL = 0; WOL = 32768; PB = 65536; RED = XL + 1024
LDS_BYTES = MISC + 256
C1 = 128 ** -0.5 * math.log2(math.e)

A = Asm()
hdr = open(f"cdna_kernels/{NAME}.s.ref").read().split("\n")
for ln in hdr:
    if ln.startswith("; @launch"):
        A.raw(f"; @launch grid=(256,1,1) block=(512,1,1) lds={LDS_BYTES}")
        break
    A.raw(ln)
A.raw('.amdgcn_target "amdgcn-amd-amdhsa--gfx950"')
A.raw(f".text\n.globl {NAME}_kernel\n.p2align 8\n.type {NAME}_kernel,@function\n{NAME}_kernel:")

RA, RB, RW, RC, RD, RE, RF = "s[8:11]", "s[12:15]", "s[16:19]", "s[20:23]", "s[24:27]", "s[28:31]", "s[32:35]"
sTAG, sCNT, sT = "s36", "s37", "s45"
def STAMP(n):
    if STAMPS:
        A(f"s_memrealtime s[{64+2*n}:{65+2*n}]")
DPPM = "row_mask:0xf bank_mask:0xf"
lbl = [0]
def L(p):
    lbl[0] += 1
    return f"L_{p}_{lbl[0]}"
def srd(r, nbytes):
    b = int(r[2:r.index(":")])
    A((f"s_movk_i32 s{b+2}, {nbytes}" if nbytes < 32768 else f"s_mov_b32 s{b+2}, {nbytes}") + f"\ns_mov_b32 s{b+3}, s11")
def kload(r, off):
    b = int(r[2:r.index(":")])
    A(f"s_load_dwordx2 s[{b}:{b+1}], s[0:1], {off}")

def SX(dst, const, *terms):
    first = True
    for t in terms:
        src, rs, w, ls = (t[0], 0, 0, t[1]) if len(t) == 2 else t
        d = dst if first else sT
        cur = src
        if w:
            if rs == 0: A(f"s_and_b32 {d}, {cur}, {(1<<w)-1}")
            else: A(f"s_bfe_u32 {d}, {cur}, {(w<<16)|rs:#x}")
            cur = d
        elif rs:
            A(f"s_lshr_b32 {d}, {cur}, {rs}"); cur = d
        if first:
            if ls: A(f"s_lshl_b32 {d}, {cur}, {ls}")
            elif cur != d: A(f"s_mov_b32 {d}, {cur}")
        else:
            if 1 <= ls <= 4: A(f"s_lshl{ls}_add_u32 {dst}, {cur}, {dst}")
            else:
                if ls: A(f"s_lshl_b32 {sT}, {cur}, {ls}"); cur = sT
                A(f"s_add_u32 {dst}, {dst}, {cur}")
        first = False
    if const: A(f"s_add_u32 {dst}, {dst}, {const:#x}")
def VX(dst, tmp, add, *terms):
    first = True
    for rs, w, ls in terms:
        if rs == 4 and w == 2: cur = "v1"
        elif rs == 0 and w == 4: cur = "v2"
        elif rs == 0 and w == 6: cur = "v0"
        else:
            d = f"v{dst}" if first else f"v{tmp}"
            if rs + w == 6: A(f"v_lshrrev_b32 {d}, {rs}, v0")
            elif rs == 0: A(f"v_and_b32 {d}, {(1<<w)-1}, v0")
            else: A(f"v_bfe_u32 {d}, v0, {rs}, {w}")
            cur = d
        if first:
            if ls: A(f"v_lshlrev_b32 v{dst}, {ls}, {cur}")
            elif cur != f"v{dst}": A(f"v_mov_b32 v{dst}, {cur}")
        else:
            if ls: A(f"v_lshl_or_b32 v{dst}, {cur}, {ls}, v{dst}")
            else: A(f"v_or_b32 v{dst}, {cur}, v{dst}")
        first = False
    if add: A(f"v_add_u32 v{dst}, {add}, v{dst}")

def cont(n):
    t = L("c")
    A(f"s_branch {t}")
    A.seg(n); A.label(t)
def await_any(load, valid, sleep):
    if not OPT["sent"]: return
    top, done = L("aw"), L("awd")
    A(f"s_mov_b32 {sCNT}, 0")
    A.label(top)
    load()
    A("s_waitcnt vmcnt(0)")
    valid()
    A(f"s_cbranch_vccnz {done}")
    A(f"s_sleep {sleep}\ns_add_u32 {sCNT}, {sCNT}, 1\ns_cmp_lt_u32 {sCNT}, 64\ns_cbranch_scc1 {top}")
    A.label(done)
def poll(loads, check, first_issued=False, first_wait=0, sleep=0):
    top, done, chk = L("poll"), L("got"), L("chk")
    A(f"s_mov_b32 {sCNT}, 0")
    if first_issued:
        A(f"s_waitcnt vmcnt({first_wait})")
        A(f"s_branch {chk}")
    A.label(top)
    loads()
    A("s_waitcnt vmcnt(0)")
    if first_issued:
        A.label(chk)
    check()
    A(f"s_cbranch_vccz {done}")
    if sleep: A(f"s_sleep {sleep}")
    A(f"s_add_u32 {sCNT}, {sCNT}, 1")
    A(f"s_and_b32 {sT}, {sCNT}, {REFRESH}\ns_cbranch_scc1 {top}")
    A("buffer_wbl2 sc1")
    A(f"s_cmp_lt_u32 {sCNT}, {LIMIT}\ns_cbranch_scc1 {top}")
    A.label(done)
def chk_empty4(r, tmp):
    A(f"v_max3_u32 v{tmp}, v{r}, v{r+1}, v{r+2}\nv_max_u32 v{tmp}, v{tmp}, v{r+3}\nv_cmp_eq_u32 vcc, -1, v{tmp}")
def pack4(src, pk, pk2, tmp):
    A(f"v_mov_b32_dpp v{tmp}, v{src} quad_perm:[1,1,3,3] {DPPM}")
    A(f"v_cvt_pk_bf16_f32 v{pk}, v{src}, v{tmp}")
    A(f"v_mov_b32_dpp v{pk2}, v{pk} quad_perm:[2,2,2,2] {DPPM}")
def setexec(lo, hi):
    A(f"s_mov_b32 exec_lo, {lo:#x}\ns_mov_b32 exec_hi, {hi:#x}")
def fullexec():
    A("s_mov_b64 exec, -1")
def mfma(d, a, b, c):
    cc = "0" if c is None else f"v[{c}:{c+3}]"
    A(f"v_mfma_f32_16x16x32_bf16 v[{d}:{d+3}], v[{a}:{a+3}], v[{b}:{b+3}], {cc}")
def rowsum(ds):
    for d in ds: A(f"v_add_f32 v{d}, v{d}, v{d+1}\nv_add_f32 v{d+2}, v{d+2}, v{d+3}")
    for d in ds: A(f"v_add_f32 v{d}, v{d}, v{d+2}")
def code_prefetch(tmp, dst):
    sk = L("npf")
    A(f"s_cmp_lt_u32 s3, 6\ns_cbranch_scc1 {sk}")
    A("s_and_b32 s38, s38, 0xffffff00")
    A(f"v_lshlrev_b32 v{tmp}, 7, v0")
    A(f"s_and_b32 s40, s3, 1\ns_lshl_b32 s40, s40, 13")
    A(f"v_add_u32 v{tmp}, s40, v{tmp}")
    if not OPT["pf"]: A(f"v_mov_b32 v{tmp}, 0")
    A(f"global_load_dword v{dst}, v{tmp}, s[38:39] {OPT['pfnt']}")
    A.label(sk)

wM, wQ, wO, wTR, T0, T1, T2, T3, vPF = 3, 4, 5, 6, 7, 8, 9, 10, 11
wC = 12; wXS = 13; wX = 16; wXO = 24; wWF = 40; wD = 56
def swz_chunk(dst):
    A(f"v_lshlrev_b32 v{dst}, 1, v1\nv_xor_b32 v{dst}, v0, v{dst}\nv_and_b32 v{dst}, 7, v{dst}\nv_lshlrev_b32 v{dst}, 4, v{dst}")
def unit_dma(srdr, s0, s1, base):
    A(f"s_add_u32 m0, s42, {base}")
    A(f"buffer_load_dwordx4 v{wM}, {srdr}, {s0} offen {NT} lds")
    A(f"s_add_u32 m0, s42, {base+8192}")
    A(f"buffer_load_dwordx4 v{wM}, {srdr}, {s1} offen {NT} lds")
def tr_setup():
    VX(wTR, 32, 0, (2, 4, 7), (3, 2, 5), (0, 2, 3))
    SX("s40", XL, ("s3", 0, 2, 8))
    VX(82, 32, "s40", (0, 6, 2))
    VX(83, 32, "s40", (2, 1, 7), (4, 2, 3))
def silu_operand(cnt):
    A(f"s_waitcnt vmcnt({cnt})")
    A(f"v_lshlrev_b32 v32, 16, v{wC}\nv_and_b32 v33, 0xffff0000, v{wC}")
    A(f"v_mul_f32 v34, {f32(-math.log2(math.e))}, v32\nv_mul_f32 v35, {f32(-math.log2(math.e))}, v33")
    A("v_exp_f32 v34, v34\nv_exp_f32 v35, v35")
    A("v_add_f32 v34, 1.0, v34\nv_add_f32 v35, 1.0, v35")
    A("v_rcp_f32 v34, v34\nv_rcp_f32 v35, v35")
    A("v_mul_f32 v32, v32, v34\nv_mul_f32 v33, v33, v35")
    A("v_cvt_pk_bf16_f32 v32, v32, v33")
    A("ds_write_b32 v82, v32")
    A("s_waitcnt lgkmcnt(0)")
    A(f"ds_read2_b64 v[{wXO}:{wXO+3}], v83 offset0:0 offset1:4\nds_read2_b64 v[{wXO+4}:{wXO+7}], v83 offset0:8 offset1:12")
def unit_pre(s_c0, s_c1, base):
    SX("s40", 0, ("s3", 0, 2, 5)); A(f"v_xor_b32 v112, s40, v{wTR}\nv_add_u32 v112, {base}, v112")
    for i in range(4):
        A(f"v_mov_b32 v{wD+i}, {s_c0}\nv_mov_b32 v{wD+4+i}, {s_c1}")
def unit_go():
    if STAMPS: A("s_waitcnt lgkmcnt(0)")
    for k in range(2):
        for seg in range(2):
            for h in range(2):
                r = wWF + seg*8 + k*4 + h*2
                A(f"ds_read_b64_tr_b16 v[{r}:{r+1}], v112 offset:{seg*8192 + k*4096 + h*2048}")
    for k in range(2):
        for seg in range(2):
            A(f"s_waitcnt lgkmcnt({6 - 4*k - 2*seg})")
            mfma(wD + 4*seg, wXO + 4*k, wWF + seg*8 + k*4, wD + 4*seg)
def unit_mfma(s_c0, s_c1, base):
    unit_pre(s_c0, s_c1, base); unit_go()
def tagged_loads(r, va, so):
    A(f"buffer_load_dwordx4 v[{r}:{r+3}], v{va}, {RW}, {so} offen sc1")
    A(f"buffer_load_dwordx4 v[{r+4}:{r+7}], v{va}, {RW}, {so} offen offset:1024 sc1")
def tagged_chk(rs, tmp, extra=None):
    tags = [r + i for r in rs for i in (1, 3, 5, 7)] + ([extra] if extra else [])
    A(f"v_xor_b32 v{tmp}, {sTAG}, v{tags[-1]}")
    for t in tags[:-1]:
        A(f"v_bitop3_b32 v{tmp}, v{t}, {sTAG}, v{tmp} bitop3:0xbe")
    A(f"v_cmp_ne_u32 vcc, 0, v{tmp}")
def tagged_pack(r):
    A(f"v_mov_b32 v{r+1}, v{r+2}\nv_mov_b32 v{r+2}, v{r+4}\nv_mov_b32 v{r+3}, v{r+6}")
def tok_wait(va, so, r, fw=None):
    def chk():
        A(f"v_xor_b32 v{r}, {sTAG}, v{r}")
        for i in (1, 2, 3): A(f"v_bitop3_b32 v{r}, v{r+i}, {sTAG}, v{r} bitop3:0xbe")
        A(f"v_cmp_ne_u32 vcc, 0, v{r}")
    poll(lambda: A(f"buffer_load_dwordx4 v[{r}:{r+3}], v{va}, {RW}, {so} offen sc1"), chk, sleep=2, first_issued=fw is not None, first_wait=fw or 0)
def sum8(dst, r):
    A(f"v_add_f32 v32, v{r}, v{r+1}\nv_add_f32 v33, v{r+2}, v{r+3}\nv_add_f32 v34, v{r+4}, v{r+5}\nv_add_f32 v35, v{r+6}, v{r+7}")
    A(f"v_add_f32 v32, v32, v33\nv_add_f32 v34, v34, v35\nv_add_f32 v{dst}, v32, v34")

STAMP(0)
A("s_cmp_ge_u32 s2, 256\ns_cbranch_scc1 L_end")
A("s_cmp_ge_u32 s2, 128\ns_cselect_b32 s40, 24, 8\ns_cselect_b32 s41, 0, 16")
A("s_load_dwordx2 s[8:9], s[0:1], s40")
if OPT["diag"] == 6: A("s_waitcnt lgkmcnt(0)\ns_memrealtime s[100:101]")
kload(RC, 80)
A("s_load_dwordx2 s[24:25], s[0:1], s41")
kload(RE, 72); kload(RW, 104)
if OPT["diag"] == 7: A("s_memrealtime s[100:101]")
A("v_readfirstlane_b32 s3, v0")
A("s_getpc_b64 s[38:39]")
if OPT["pf"] == 4:
    A("s_and_b32 s38, s38, 0xffffff00")
    A(f"v_and_b32 v{vPF}, 0x1c0, v0\ns_lshl_b32 s40, s2, 7\ns_and_b32 s40, s40, 0x3c00\nv_lshl_or_b32 v{vPF}, v{vPF}, 1, s40")
    sk = L("npf")
    A(f"s_cmp_ge_u32 s2, 128\ns_cbranch_scc1 {sk}")
    A(f"global_load_dword v{vPF}, v{vPF}, s[38:39]")
    A.label(sk)
A("v_and_b32 v0, 63, v0")
if OPT["diag"] == 8: A("s_memrealtime s[100:101]")
A("s_mov_b32 s11, 0x00020000")
A("v_lshrrev_b32 v1, 4, v0\nv_and_b32 v2, 15, v0")
A(f"s_add_u32 s4, s2, {OPT['rot']}\ns_and_b32 s4, s4, 7\ns_bfe_u32 s6, s2, 0x10006\ns_bfe_u32 s7, s2, 0x30003")
A(f"v_lshlrev_b32 v{T3}, 1, v1\nv_xor_b32 v{T3}, v2, v{T3}\nv_lshlrev_b32 v{T3}, 4, v{T3}")
A("s_lshl1_add_u32 s58, s4, s6\ns_lshl_b32 s46, s7, 7\ns_mov_b32 s27, s11")
A(f"v_and_b32 v{T1}, 0x70, v{T3}\nv_lshrrev_b32 v{T0}, 3, v0")
if OPT["diag"] == 9: A("s_memrealtime s[100:101]")
srd(RC, 3145728); srd(RE, 2048)
A(f"v_mul_u32_u24 v{wM}, 6144, v{T0}\nv_add_u32 v{wM}, v{wM}, v{T1}")
if OPT["diag"] == 10: A("s_memrealtime s[100:101]")
if OPT["wfirst"]:
    A("s_cmp_lt_u32 s2, 128\ns_cbranch_scc1 L_KV")
    A.seg(OPT["wfirst"]); A.label("L_KV")
else:
    A("s_cmp_ge_u32 s2, 128\ns_cbranch_scc1 L_W")
def ids2():
    A("s_lshr_b32 s3, s3, 6\ns_bfe_u32 s5, s2, 0x40003")
    if STAMPS:
        for i in range(2, 16): A(f"s_mov_b32 s{64+2*i}, 0")
    srd(RW, WS_BYTES)

vE, vO, vQO = 120, 121, 122
vKA = 108
vQ = 14
vKF = 16
vVF = 48
vQF = 80
vS = 96
vP = 104
vOA = 108
vST = 114
vOAD, vSAD = 116, 117
A(f"v_lshl_or_b32 v{vE}, v1, 8, v{T3}\nv_xor_b32 v{vO}, 0x80, v{vE}")
A("s_lshl_b32 s43, s3, 7\ns_mov_b32 s10, 33554432\ns_mov_b32 s26, s10")
SX("s56", 6144*256, ("s6", 24), ("s4", 21), ("s7", 16), ("s43", 0))
A("s_add_u32 s57, s56, 4096\ns_mov_b32 m0, s43")
def kv_dma(u):
    r = RA if u < 8 else RD
    A(f"buffer_load_dwordx4 v{vE if u%2==0 else vO}, {r}, {'s56' if u%8 < 4 else 's57'} offen offset:{(u%4)*1024} {NT} lds")
HELP = OPT["help"]
if HELP & 1:
    kload(RF, 24); srd(RF, 4194304)
    A(f"v_lshlrev_b32 v{wQ}, 13, v{T0}")
    SX("s44", 0, ("s6", 19), ("s3", 10), ("s4", 10), ("s46", 0))
if HELP & 2:
    A(f"v_and_b32 v{T2}, 0x40, v{T1}\nv_add_u32 v{T2}, v{wM}, v{T2}\nv_add_u32 v{T2}, v{T2}, v{T1}") if False else None
    A(f"v_mul_u32_u24 v{T2}, 6144, v{T0}\nv_and_b32 v{wO}, 1, v0\nv_lshl_add_u32 v{T2}, v{wO}, 7, v{T2}")
    SX("s51", 0, ("s7", 6), ("s3", 3, 0, 0))
    A("s_mul_i32 s51, s51, 6144")
    SX("s40", 2048, ("s4", 8), ("s6", 11)); A("s_add_u32 s51, s51, s40")
A("s_waitcnt lgkmcnt(0)")
if OPT["diag"] == 5: A("s_memrealtime s[100:101]")
if HELP & 1: A(f"buffer_load_dword v16, v{wQ}, {RF}, s44 offen")
if HELP & 2: A(f"buffer_load_dword v17, v{T2}, {RC}, s51 offen")
if HELP and OPT["helpbar"]: A("s_barrier")
VT = OPT["vt"]
if VT:
    A(f"s_add_u32 m0, s43, {VREG}")
    kv_dma(8)
    A("s_mov_b32 m0, s43")
if OPT["slow"]: kv_dma(0)
if OPT["pf"] == 3:
    A("s_and_b32 s38, s38, 0xffffff00")
    SX("s40", 0, ("s2", 3, 4, 10), ("s3", 1))
    A("s_load_dword s99, s[38:39], s40")
A(f"s_load_dword {sTAG}, s[16:17], 0")
if OPT["slow"]: A("s_waitcnt vmcnt(0)")
def mb_issue():
    SX("s51", 0, ("s7", 6), ("s3", 3, 0, 0))
    A("s_mul_i32 s51, s51, 6144\ns_lshl_b32 s42, s3, 4")
    SX("s40", 2048, ("s58", 8)); A("s_add_u32 s51, s51, s40")
    A(f"s_add_u32 m0, s42, {PA}")
    A(f"buffer_load_dwordx4 v{wM}, {RC}, s51 offen {NT} lds")
    A(f"s_add_u32 m0, s42, {PA + 8192 - 128}")
    A(f"buffer_load_dwordx4 v{wM}, {RC}, s51 offen offset:128 {NT} lds")
    VX(T2, T3, 0, (5, 1, 10), (0, 5, 2))
    A(f"buffer_load_dword v{wC}, v{T2}, {RE}, s46 offen {SNT}")
def kv_issue(u0, u1):
    for u in range(u0, u1):
        if u in (4, 12): A("s_add_u32 m0, m0, 4096")
        if u == 8:
            A(f"s_add_u32 m0, s43, {VREG}")
            if VT: continue
        kv_dma(u)
NS = OPT["ns"]
kv_issue(1 if OPT["slow"] else 0, NS)
cont(30)
ids2()
if STAMPS: A("s_mov_b32 s66, 0")
def after_issue():
    STAMP(2)
    if OPT["abl"]:
        A("s_waitcnt vmcnt(0)")
        STAMP(4)
        A("s_branch L_exit")
    if OPT["tokl"]:
        sk = L("ntl")
        A(f"s_cmp_lg_u32 s3, 7\ns_cbranch_scc1 {sk}")
        A(f"s_waitcnt vmcnt({OPT['tokl']})")
        A(f"buffer_load_dwordx4 v[144:147], v140, {RW}, s41 offen sc1")
        A.label(sk)
GT = 0
A(f"v_lshlrev_b32 v140, 7, v0\ns_movk_i32 s41, {TOK}")
if NS == 16: after_issue()
kload(RC, 48); kload(RB, 56); kload(RE, 64)
FF = OPT["ffn_first"]
if FF: FG = VREG; FD = VREG + 32768
wG, wDO, fMF = 124, 125, 123
A(f"v_mul_u32_u24 v{wG}, 3584, v{T0}\nv_add_u32 v{wG}, v{wG}, v{T1}\nv_lshl_or_b32 v{wDO}, v{T0}, 10, v{T1}")
A("s_cmp_lt_u32 s4, 7")
A("s_cselect_b32 s22, 1835008, 0\ns_cselect_b32 s14, 1835008, 0\ns_mov_b32 s15, s11\ns_cselect_b32 s30, 1835008, 0")
SX("s63", 0, ("s4", 4), ("s5", 0))
SX("s49", 0, ("s63", 0, 2, 7), ("s3", 4))
A("s_mul_i32 s49, s49, 3584")
SX("s50", 0, ("s63", 2, 0, 7))
A(f"s_add_u32 s49, s49, s50\ns_add_u32 s50, s49, {8*3584-1024}")
SX("s51", 0, ("s63", 14), ("s3", 7))
A(f"s_add_u32 s52, s51, {8*1024-1024}")
A("s_lshl_b32 s42, s3, 11")
def g_dma():
    A(f"s_add_u32 m0, s42, {FG}")
    A(f"buffer_load_dwordx4 v{wG}, {RC}, s49 offen {NT} lds")
    A(f"buffer_load_dwordx4 v{wG}, {RC}, s50 offen offset:1024 {NT} lds")
def u_dma():
    A(f"s_add_u32 m0, s42, {FG+16384}")
    A(f"buffer_load_dwordx4 v{wG}, {RB}, s49 offen {NT} lds")
    A(f"buffer_load_dwordx4 v{wG}, {RB}, s50 offen offset:1024 {NT} lds")
def gu_dma():
    g_dma(); u_dma()
def dn_dma():
    A(f"s_add_u32 m0, s42, {FD}")
    A(f"buffer_load_dwordx4 v{wDO}, {RE}, s51 offen {NT} lds")
    A(f"buffer_load_dwordx4 v{wDO}, {RE}, s52 offen offset:1024 {NT} lds")
def ffn_dma():
    gu_dma(); dn_dma()
GB1 = OPT["gu_b1"] and OPT["ser"] and not FF
SX("s98", ST5, ("s4", 8))
SX("s96", G5, ("s63", 10))
A(f"s_add_u32 s97, s96, {US5-G5}")
if OPT["ftouch"]:
    A("v_mul_u32_u24 v118, 3584, v2\nv_lshlrev_b32 v119, 10, v2")
SX("s44", QG, ("s58", 12), ("s3", 10))
vQ = 100
A(f"v_lshlrev_b32 v{vQO}, 4, v0")
VX(fMF, T2, 0, (0, 3, 7), (3, 1, 6), (4, 2, 4))
SX("s59", MGT + 2*32768, ("s63", 0, 2, 13), ("s3", 0, 2, 11))
SX("s40", 0, ("s3", 2, 0, 15)); A("s_sub_u32 s59, s59, s40")
VX(T2, 0, 0, (0, 3, 1))
A(f"v_xor_b32 v{T2}, v1, v{T2}\nv_lshlrev_b32 v{T2}, 4, v{T2}\nv_lshl_or_b32 v{T2}, v2, 8, v{T2}")
A(f"v_add_u32 v{vKA}, s43, v{T2}")
for t in range(1, 4):
    A(f"v_xor_b32 v{vKA+t}, {t*64:#x}, v{vKA}")
vQW, vQR, vVR, vMX, vPW, vPR, vMW = 3, 4, 5, 6, 113, 13, 112
SX("s40", QL, ("s3", 5))
VX(vQW, T2, "s40", (1, 4, 7), (5, 1, 4), (0, 1, 3))
VX(vQR, T2, QL, (4, 2, 7), (0, 3, 4))
A(f"v_bfe_u32 v{T0}, v0, 2, 3\nv_xor_b32 v{T0}, s3, v{T0}")
VX(vVR, T2, VREG, (2, 4, 8), (0, 2, 3))
A(f"v_lshl_or_b32 v{vVR}, v{T0}, 5, v{vVR}")
VX(vMX, T2, MISC, (0, 2, 5))
A(f"s_lshl_b32 s40, s3, 2\nv_add_u32 v{vMW}, s40, v{vMX}")
VX(vPR, T2, PL, (4, 2, 6), (0, 2, 4))
A(f"s_lshl_b32 s40, s3, 8\nv_and_b32 v{T2}, 12, v0\nv_add3_u32 v{vPW}, s40, v{vPR}, v{T2}")
A("s_mov_b32 s60, 0xf0f0f0f0\ns_mov_b32 s61, s60\ns_mov_b32 s46, 0xff00ff00\ns_mov_b32 s47, s46")
VX(vOAD, T2, 0, (0, 2, 12), (4, 2, 4))
SX("s53", OG, ("s4", 14), ("s3", 1, 0, 10), ("s5", 6), ("s3", 0, 1, 3))
VX(vSAD, T2, 0, (0, 2, 7))
SX("s54", SG, ("s4", 9), ("s5", 3))
A(f"s_mov_b32 s55, {f32(C1)}")
fWF = 128 if FF else 84
fDF = 144 if FF else 64
def ffn_frag_addr(wr, ta, tr):
    VX(tr, 32, 0, (2, 4, 7), (3, 2, 5), (0, 2, 3))
    SX("s40", 0, ("s3", 0, 2, 5)); A(f"v_xor_b32 v{wr}, s40, v{tr}")
    SX("s40", FG, ("s3", 2, 0, 14)); A(f"v_add_u32 v{wr}, s40, v{wr}")
    A(f"s_add_u32 s40, s42, {FD}\nv_add_u32 v{ta}, s40, v{tr}")
    for t in range(1, 4):
        A(f"v_xor_b32 v{ta+t}, {t*32:#x}, v{ta}")
def w_frags(wr):
    for k in range(4):
        for h in range(2):
            r = fWF + 4*k + 2*h
            A(f"ds_read_b64_tr_b16 v[{r}:{r+1}], v{wr} offset:{k*4096 + h*2048}")
def d_frags(ta):
    for tau in range(4):
        A(f"ds_read_b64_tr_b16 v[{fDF+2*tau}:{fDF+2*tau+1}], v{ta+tau}")
if NS < 16:
    kv_issue(NS, 16)
    after_issue()
A(f"s_waitcnt vmcnt({7 if VT else 8}) lgkmcnt(0)")
if OPT["diag"] >= 5: A("s_mov_b32 s76, s100")
A(f"s_add_u32 {sTAG}, {sTAG}, {TAGC:#x}")
for T in range(2):
    for t in range(4):
        r = vKF + (T*4+t)*4
        A(f"ds_read_b128 v[{r}:{r+3}], v{vKA+t} offset:{T*4096}")
sk = L("nqp"); skm = L("mbw")
if OPT["mbg"] == 3:
    A(f"s_cmp_lt_u32 s3, 4\ns_cbranch_scc1 {skm}")
    if not OPT["tokl"]:
        if OPT["tok"]:
            sk3 = L("ntv")
            A(f"s_cmp_lg_u32 s3, 4\ns_cbranch_scc1 {sk3}")
            A(f"v_lshlrev_b32 v80, 7, v0\ns_movk_i32 s41, {TOK}")
            tok_wait(80, "s41", 84)
            A(f"buffer_load_dwordx4 v[136:139], v{vQO}, {RW}, s96 offen sc1")
            A(f"buffer_load_dwordx4 v[136:139], v{vQO}, {RW}, s97 offen sc1")
            A(f"buffer_load_dword v136, v{vSAD}, {RW}, s98 offen sc1")
            A(f"s_branch {sk}")
            A.label(sk3)
    A(f"s_waitcnt vmcnt(0)\ns_branch {sk}")
    A.label(skm)
    A.mute = True
A("s_barrier")
A(f"s_cmp_lt_u32 s3, 4\ns_cbranch_scc1 {skm}")
SX("s40", XL, ("s3", 0, 2, 8))
VX(82, 80, "s40", (0, 6, 2))
VX(83, 80, "s40", (2, 1, 7), (4, 2, 3))
A(f"v_lshlrev_b32 v84, 16, v{wC}\nv_and_b32 v85, 0xffff0000, v{wC}")
A(f"v_mul_f32 v86, {f32(-math.log2(math.e))}, v84\nv_mul_f32 v87, {f32(-math.log2(math.e))}, v85")
A("v_exp_f32 v86, v86\nv_exp_f32 v87, v87\nv_add_f32 v86, 1.0, v86\nv_add_f32 v87, 1.0, v87")
A("v_rcp_f32 v86, v86\nv_rcp_f32 v87, v87\nv_mul_f32 v84, v84, v86\nv_mul_f32 v85, v85, v87")
A("v_cvt_pk_bf16_f32 v84, v84, v85\nds_write_b32 v82, v84")
A("ds_read2_b64 v[144:147], v83 offset0:0 offset1:4\nds_read2_b64 v[148:151], v83 offset0:8 offset1:12")
VX(81, 80, 0, (2, 4, 7), (3, 2, 5), (0, 2, 3))
SX("s40", 0, ("s3", 0, 2, 5)); A(f"v_xor_b32 v81, s40, v81\nv_add_u32 v81, {PA}, v81")
for k in range(2):
    for sg in range(2):
        for hh in range(2):
            r = 128 + sg*8 + k*4 + hh*2
            A(f"ds_read_b64_tr_b16 v[{r}:{r+1}], v81 offset:{sg*8192 + k*4096 + hh*2048}")
SX("s40", 0, ("s58", 2, 0, 3), ("s7", 0))
A("s_cmp_eq_u32 s40, 16\ns_cselect_b32 s41, 1.0, 0")
for i in range(8): A(f"v_mov_b32 v{88+i}, s41")
VX(80, 81, 0, (5, 1, 12), (4, 1, 6), (2, 2, 4))
SX("s41", MGT, ("s58", 13), ("s3", 0, 2, 10), ("s46", 0))
A(f"v_mov_b32 v97, {sTAG}\nv_mov_b32 v99, {sTAG}")
A("s_waitcnt lgkmcnt(0)")
for k in range(2):
    for sg in range(2):
        mfma(88 + 4*sg, 144 + 4*k, 128 + sg*8 + k*4, 88 + 4*sg)
A("v_cmp_gt_u32 vcc, 32, v0")
A("v_cndmask_b32 v84, v92, v88, vcc")
pack4(84, 96, 98, 85)
setexec(0x11111111, 0x11111111)
A(f"buffer_store_dwordx4 v[96:99], v80, {RW}, s41 offen sc1")
fullexec()
STAMP(9)
A(f"s_waitcnt vmcnt(1)\ns_branch {sk}")
A.label(skm)
A.mute = False
def q_load():
    A(f"buffer_load_dwordx4 v[{vQ}:{vQ+3}], v{vQO}, {RW}, s44 offen sc1")
def q_chk():
    A(f"v_xor_b32 v{T0}, {sTAG}, v{vQ+1}\nv_bitop3_b32 v{T0}, v{vQ+3}, {sTAG}, v{T0} bitop3:0xbe\nv_cmp_ne_u32 vcc, 0, v{T0}")
poll(q_load, q_chk, sleep=OPT['s2'])
STAMP(4)
A(f"v_mov_b32 v{vQ+1}, v{vQ+2}")
A(f"ds_write_b64 v{vQW}, v[{vQ}:{vQ+1}]")
A.label(sk)
A("s_waitcnt lgkmcnt(0)\ns_barrier")
STAMP(5)
for t in range(4):
    A(f"ds_read_b128 v[{vQF+4*t}:{vQF+4*t+3}], v{vQR} offset:{t*512}")
if GB1: gu_dma()
if OPT["g_b1"]: g_dma()
def f_touch(n):
    A("s_mov_b64 exec, 0xffff")
    if n & 1: A(f"buffer_load_dword v{vPF}, v118, {RC}, s49 offen")
    if n & 2: A(f"buffer_load_dword v{vPF}, v118, {RB}, s49 offen")
    if n & 4: A(f"buffer_load_dword v{vPF}, v119, {RE}, s51 offen")
    fullexec()
if OPT["ftouch"]: f_touch(OPT["ftouch"])
vMF = 128
def mf_loads():
    tagged_loads(vMF, fMF, "s59")
def l_touch(a, b, c):
    sk = L("nlt")
    A(f"s_cmp_lg_u32 s3, 7\ns_cbranch_scc1 {sk}")
    A(f"buffer_load_dwordx4 v[136:139], v{vQO}, {RW}, {a} offen sc1")
    A(f"buffer_load_dwordx4 v[136:139], v{vQO}, {RW}, {b} offen sc1")
    A(f"buffer_load_dword v136, v{vSAD}, {RW}, {c} offen sc1")
    A.label(sk)
def v_tr(kb, T):
    r = vVF + kb*4 + T*2
    A(f"ds_read_b64_tr_b16 v[{r}:{r+1}], v{vVR} offset:{(32*kb+16*T)*256}")
EARLY_T = [0, 1]
NV1 = OPT["nv1"]
if STAMPS: A("s_waitcnt lgkmcnt(0)")
for t in range(4):
    A(f"s_waitcnt lgkmcnt({3-t})")
    for T in range(2):
        mfma(vS + 4*T, vKF + (T*4+t)*4, vQF + 4*t, None if t == 0 else vS + 4*T)
for kb in range(NV1):
    v_tr(kb, 0); v_tr(kb, 1)
for i in range(8):
    A(f"v_add_f32_dpp v{vS+i}, v{vS+i}, v{vS+i} row_ror:4 {DPPM}")
A(f"v_max3_f32 v{T0}, v{vS}, v{vS+1}, v{vS+2}\nv_max3_f32 v{T2}, v{vS+3}, v{vS+4}, v{vS+5}")
A(f"v_max3_f32 v{T0}, v{T0}, v{vS+6}, v{vS+7}\nv_max_f32 v{T3}, v{T0}, v{T2}\nv_max_f32 v{T0}, v{T0}, v{T2}")
A(f"v_cndmask_b32 v{vS}, v{vS}, v{vS+2}, s[60:61]\nv_cndmask_b32 v{vS+1}, v{vS+1}, v{vS+3}, s[60:61]")
A(f"v_permlane32_swap_b32 v{T0}, v{T3}")
A(f"v_max_f32 v{T2}, v{T0}, v{T3}\nv_max_f32 v{T0}, v{T0}, v{T3}")
A(f"v_cndmask_b32 v{vS+4}, v{vS+4}, v{vS+6}, s[60:61]\nv_cndmask_b32 v{vS+5}, v{vS+5}, v{vS+7}, s[60:61]")
A(f"v_permlane16_swap_b32 v{T0}, v{T2}")
A(f"v_max_f32 v{T0}, v{T0}, v{T2}")
A(f"ds_write_b32 v{vMW}, v{T0}")
A(f"v_cndmask_b32 v{vS}, v{vS}, v{vS+4}, s[46:47]\nv_cndmask_b32 v{vS+1}, v{vS+1}, v{vS+5}, s[46:47]")
A(f"v_mul_f32 v{vS}, s55, v{vS}\nv_mul_f32 v{vS+1}, s55, v{vS+1}")
STAMP(14)
if OPT["tokl"]:
    sk = L("ntm")
    A(f"s_cmp_lg_u32 s3, 7\ns_cbranch_scc1 {sk}")
    tok_wait(140, "s41", 144, 0)
    A(f"buffer_load_dwordx4 v[136:139], v{vQO}, {RW}, s96 offen sc1")
    A(f"buffer_load_dwordx4 v[136:139], v{vQO}, {RW}, s97 offen sc1")
    A(f"buffer_load_dword v136, v{vSAD}, {RW}, s98 offen sc1")
    A.label(sk)
A("s_waitcnt lgkmcnt(0)\ns_barrier")
A(f"ds_read_b128 v[{vQF}:{vQF+3}], v{vMX}\nds_read_b128 v[{vQF+4}:{vQF+7}], v{vMX} offset:16")
for kb in range(NV1, min(8, NV1 + 6)):
    v_tr(kb, 0); v_tr(kb, 1)
A(f"s_waitcnt lgkmcnt({2*(min(8, NV1+6) - NV1)})")
A(f"v_max3_f32 v{T0}, v{vQF}, v{vQF+1}, v{vQF+2}\nv_max3_f32 v{T2}, v{vQF+3}, v{vQF+4}, v{vQF+5}")
A(f"v_max3_f32 v{T0}, v{T0}, v{vQF+6}, v{vQF+7}\nv_max_f32 v{T0}, v{T0}, v{T2}")
A(f"v_fma_f32 v{vS}, -v{T0}, s55, v{vS}\nv_fma_f32 v{vS+1}, -v{T0}, s55, v{vS+1}")
A(f"v_exp_f32 v{vS}, v{vS}\nv_exp_f32 v{vS+1}, v{vS+1}")
A(f"v_mul_f32 v{vST}, s55, v{T0}")
A(f"v_cvt_pk_bf16_f32 v{vP}, v{vS}, v{vS+1}")
A(f"v_add_f32 v{T0}, v{vS}, v{vS+1}")
A(f"ds_write_b32 v{vPW}, v{vP}")
A(f"v_add_f32_dpp v{T0}, v{T0}, v{T0} row_ror:4 {DPPM}")
if OPT["mfb1"]: mf_loads()
A(f"v_add_f32_dpp v{T3}, v{T0}, v{T0} row_ror:8 {DPPM}\nv_add_f32_dpp v{T0}, v{T0}, v{T0} row_ror:8 {DPPM}")
A(f"v_permlane32_swap_b32 v{T0}, v{T3}")
A(f"v_add_f32 v{T2}, v{T0}, v{T3}\nv_add_f32 v{T0}, v{T0}, v{T3}")
A(f"v_permlane16_swap_b32 v{T0}, v{T2}")
A(f"v_add_f32 v{T0}, v{T0}, v{T2}")
A(f"ds_write_b32 v{vMW}, v{T0} offset:128")
if OPT["dn_p"] == 3: dn_dma()
A("s_waitcnt lgkmcnt(0)\ns_barrier")
STAMP(3)
if STAMPS: A("s_waitcnt lgkmcnt(0)")
LATE_T = [T for T in range(2) if T not in EARLY_T]
A(f"ds_read_b128 v[{vQF}:{vQF+3}], v{vMX} offset:128\nds_read_b128 v[{vQF+4}:{vQF+7}], v{vMX} offset:144")
for kb in range(8):
    r = vKF + kb*4
    A(f"ds_read_b128 v[{r}:{r+3}], v{vPR} offset:{kb*256}")
def st_pub(vm=None):
    sk = L("nst"); sk2 = L("nsu")
    A(f"s_cmp_lg_u32 s3, 0\ns_cbranch_scc1 {sk}")
    A("s_waitcnt lgkmcnt(8)")
    rowsum([vQF, vQF+4])
    A(f"v_add_f32 v{vST+1}, v{vQF}, v{vQF+4}")
    A("s_mov_b64 exec, 15")
    A(f"buffer_store_dwordx2 v[{vST}:{vST+1}], v{vSAD}, {RW}, s54 offen")
    fullexec()
    if vm is not None:
        A(f"s_waitcnt vmcnt({vm})\ns_branch {sk2}")
    A.label(sk)
    if vm is not None:
        A(f"s_waitcnt vmcnt({vm-1})")
        A.label(sk2)
if LATE_T:
    st_pub(1)
    A("s_waitcnt lgkmcnt(0)\ns_barrier")
    STAMP(6)
    if STAMPS: A("s_waitcnt lgkmcnt(0)")
    per = len(LATE_T)
    AHEAD = 8 if per == 1 else 6
    for kb in range(AHEAD):
        for T in LATE_T: v_tr(kb, T)
    for kb in range(8):
        A(f"s_waitcnt lgkmcnt({(min(8, AHEAD + kb) - kb - 1) * per})")
        mfma(vOA, vVF + kb*4, vKF + kb*4, None if kb == 0 else vOA)
        if AHEAD + kb < 8:
            for T in LATE_T: v_tr(AHEAD + kb, T)
else:
    st_pub()
    if OPT["dn_p"] == 1: dn_dma()
    for kb in range(8):
        A(f"s_waitcnt lgkmcnt({7-kb})")
        mfma(vOA, vVF + kb*4, vKF + kb*4, None if kb == 0 else vOA)
setexec(0x000f000f, 0x000f000f)
A(f"v_cvt_pk_bf16_f32 v{vP}, v{vOA}, v{vOA+1}\nv_cvt_pk_bf16_f32 v{vP+1}, v{vOA+2}, v{vOA+3}")
A(f"buffer_store_dwordx2 v[{vP}:{vP+1}], v{vOAD}, {RW}, s53 offen")
fullexec()
STAMP(7)
A("s_cmp_lt_u32 s4, 7\ns_cbranch_scc1 L_ffn")
A("s_cmp_lg_u32 s3, 0\ns_cbranch_scc1 L_exit")
VX(T1, T2, 0, (3, 1, 14), (0, 3, 11))
A(f"s_mov_b32 s46, {X4 + 7*128:#x}")
poll(lambda: A(f"buffer_load_dword v16, v{T1}, {RW}, s46 offen sc1"), lambda: A(f"v_cmp_eq_u32 vcc, -1, v16"), sleep=8)
A("s_branch L_exit")
A.label("L_ffn")
SX("s55", ST5, ("s4", 8))
SX("s53", G5, ("s63", 10))
A(f"s_add_u32 s54, s53, {US5-G5}")
if not OPT["mfb1"]:
    l_touch("s53", "s54", "s55")
    mf_loads()
DL = OPT["dn_late"]
NF = 0
if not GB1 and OPT["dn_p"] != 3:
    if OPT["obar"]: A("s_barrier")
    if not OPT["g_b1"]:
        g_dma(); NF += 2
    u_dma(); NF += 2
if not DL and not OPT["dn_p"]:
    if (GB1 and OPT["obar"]) or OPT["gufirst"]: A("s_barrier")
    dn_dma(); NF += 2
fYW, fYR, fWR, fGA, fGR, fSTA, fY6A = 113, 114, 115, 116, 118, 119, 120
fG, fU, fS = 121, 122, 117
wOF, wTA = fMF, 108
if not FF: ffn_frag_addr(fWR, wTA, wTR)
A("s_lshr_b32 s56, s3, 2\ns_and_b32 s57, s3, 3")
VX(fYR, 32, YL0, (0, 6, 4))
A(f"s_lshl_b32 s40, s3, 10\nv_add_u32 v{fYW}, s40, v{fYR}")
VX(fGA, 32, 0, (0, 6, 2))
SX("s61", G5 - 64, ("s63", 2, 0, 12), ("s57", 10), ("s63", 0, 2, 8), ("s56", 7))
A(f"s_add_u32 s62, s61, {US5-G5}")
VX(fGR, 32, 0, (2, 1, 7), (3, 1, 6), (4, 2, 4), (0, 2, 2))
VX(fSTA, 32, 0, (0, 3, 5), (3, 1, 4))
VX(fY6A, 32, 0, (3, 1, 14), (5, 1, 12), (4, 1, 4))
SX("s47", Y4, ("s56", 14), ("s63", 0, 2, 12), ("s57", 10))
SX("s96", Y6, ("s3", 16), ("s63", 5))
A("s_add_u32 s97, s96, 8192\ns_add_u32 s98, s96, 32768\ns_add_u32 s99, s96, 40960")
A(f"s_mov_b32 s41, {f32(1.0/512)}\ns_mov_b32 s43, {f32(1e-5)}")
poll(mf_loads, lambda: tagged_chk([vMF], 33), first_issued=True, first_wait=NF, sleep=4)
tagged_pack(vMF)
A(f"ds_write_b128 v{fYW}, v[{vMF}:{vMF+3}]")
def y_load():
    A(f"buffer_load_dwordx4 v[76:79], v{wOF}, {RW}, s47 offen sc1")
GF = OPT["gufirst"]
A(f"s_waitcnt vmcnt({2 if GF else 0}) lgkmcnt(0)\ns_barrier")
STAMP(10)
y_load()
if DL: dn_dma()
YO = [16, 20, 24, 28, 32, 36, 100, 104]
if not FF: w_frags(fWR)
for u in range(8):
    A(f"ds_read_b128 v[{YO[u]}:{YO[u]+3}], v{fYR} offset:{u*1024}")
A("s_waitcnt lgkmcnt(0)")
for k in range(4):
    for pi in range(2):
        mfma(wD + 4*pi, YO[4*pi+k], fWF + 4*k, None if k == 0 else wD + 4*pi)
rowsum([wD, wD+4])
A(f"v_permlane16_swap_b32 v{wD}, v{wD+4}")
A(f"v_add_f32 v{wD+1}, v{wD}, v{wD+4}\nv_add_f32 v{wD}, v{wD}, v{wD+4}")
A(f"v_permlane16_swap_b32 v{wD}, v{wD+1}")
A(f"v_cvt_pk_bf16_f32 v126, v{wD}, v{wD+1}")
setexec(0xffff0000, 0x0000ffff)
A(f"buffer_store_dword v126, v{fGA}, {RW}, s62 offen {'' if OPT['uslocal'] else 'sc1'}")
fullexec()
STAMP(1)
def us_loads():
    for k in range(4):
        A(f"buffer_load_dword v{40+k}, v{fGR}, {RW}, s54 offen offset:{256*k} sc1")
if not DL and not GF: d_frags(wTA)
poll(y_load, lambda: chk_empty4(76, 33), first_issued=True, first_wait=3 if DL else 1)
STAMP(11)
A(f"ds_write_b128 v{fYW}, v[76:79] offset:8192")
us_loads()
A("s_waitcnt lgkmcnt(0)\ns_barrier")
for u in range(8):
    A(f"ds_read_b128 v[{YO[u]}:{YO[u]+3}], v{fYR} offset:{8192+u*1024}")
for u in range(8):
    A(f"s_waitcnt lgkmcnt({7-u})")
    mfma(wD, YO[u], fWF + 4*(u & 3), None if u == 0 else wD)
A(f"v_add_f32 v{wD}, v{wD}, v{wD+1}\nv_add_f32 v{wD+2}, v{wD+2}, v{wD+3}")
A(f"v_add_f32 v{wD+1}, v{wD}, v{wD+2}\nv_add_f32 v{wD}, v{wD}, v{wD+2}")
A(f"v_permlane16_swap_b32 v{wD}, v{wD+1}")
A(f"v_add_f32 v{fG}, v{wD}, v{wD+1}")
def g_store(fl):
    setexec(0xffff0000, 0x0000ffff)
    A(f"buffer_store_dword v{fG}, v{fGA}, {RW}, s61 offen {fl}")
g_store("")
fullexec()
STAMP(12)
def g_loads():
    A(f"buffer_load_dwordx4 v[24:27], v{fSTA}, {RW}, s55 offen sc1")
    for k in range(4):
        A(f"buffer_load_dword v{20+k}, v{fGR}, {RW}, s53 offen offset:{256*k} sc1")
poll(us_loads, lambda: chk_empty4(40, 33), first_issued=True, first_wait=1)
g_loads()
if DL or GF: d_frags(wTA)
for k in range(4):
    A(f"v_lshlrev_b32 v{44+k}, 16, v{40+k}\nv_and_b32 v{40+k}, 0xffff0000, v{40+k}")
rowsum([44, 40])
A(f"v_mov_b32 v{fU}, v44\nv_mov_b32 v{fS}, v40")
def g_chk():
    A("v_add_f32 v24, v24, v26\nv_add_f32 v25, v25, v27")
    A("v_add_f32 v20, v20, v21\nv_add_f32 v22, v22, v23")
    A(f"v_add_f32_dpp v24, v24, v24 quad_perm:[1,0,3,2] {DPPM}\nv_add_f32_dpp v25, v25, v25 quad_perm:[1,0,3,2] {DPPM}")
    A("v_add_f32 v20, v20, v22")
    A(f"v_add_f32_dpp v24, v24, v24 quad_perm:[2,3,0,1] {DPPM}\nv_add_f32_dpp v25, v25, v25 quad_perm:[2,3,0,1] {DPPM}")
    A("v_add_f32 v26, v24, v25")
    A("v_cmp_u_f32 vcc, v20, v26")
poll(g_loads, g_chk, first_issued=True)
STAMP(13)
A(f"v_add_f32_dpp v24, v24, v24 row_half_mirror {DPPM}\nv_add_f32_dpp v25, v25, v25 row_half_mirror {DPPM}")
A("v_mov_b32 v26, s43")
A("v_mul_f32 v24, s41, v24")
A("v_fmac_f32 v26, s41, v25")
A("v_fma_f32 v26, -v24, v24, v26")
A(f"v_fma_f32 v20, -v24, v{fU}, v20")
A("v_rsq_f32 v26, v26")
A(f"v_fma_f32 v20, v20, v26, v{fS}")
A("v_max_f32 v21, 0, v20")
A(f"v_mul_f32_dpp v22, v20, v21 row_shl:4 {DPPM}")
pack4(22, 24, 25, 23)
if DL or GF: A("s_waitcnt lgkmcnt(0)")
for tau in range(4):
    d = 32 + 4*tau
    A(f"v_mfma_f32_16x16x16_bf16 v[{d}:{d+3}], v[{fDF+2*tau}:{fDF+2*tau+1}], v[24:25], 0")
setexec(0x01010101, 0x01010101)
for tau in range(4):
    d = 32 + 4*tau
    A(f"buffer_store_dwordx4 v[{d}:{d+3}], v{fY6A}, {RW}, s{96+tau} offen sc1")
STAMP(8)
A("s_waitcnt vmcnt(0)")
g_store("sc1")
if OPT["uslocal"]: A(f"buffer_store_dword v126, v{fGA}, {RW}, s62 offen sc1")
A("s_branch L_exit")

A.seg(1)
A.label("L_W")
AS = OPT["asplit"]
IS_NA = "s_cmp_lg_u32 s6, 0" if AS else "s_cmp_ge_u32 s4, 4"
IS_A = "s_cmp_eq_u32 s6, 0" if AS else "s_cmp_lt_u32 s4, 4"
sDB = "s4" if AS else "s58"
def w_common(first=True):
    kload(RB, 32); kload(RF, 88)
    if first:
        A(f"s_load_dword {sTAG}, s[16:17], 0")
        ids2()
    A(f"v_lshl_or_b32 v{wO}, v{T0}, 10, v{T1}")
    srd(RB, 4194304); A("s_movk_i32 s26, 2048")
def wq_setup(sh):
    A(f"v_lshl_or_b32 v{wQ}, v{T0}, 13, v{T1}")
    A("s_mov_b32 s10, 4194304")
    A(f"s_lshl_b32 s48, s3, {12-sh}")
    SX("s43", 0, ("s6", 8), ("s48", 7, 0, 0))
    SX("s44", 0, ("s43", 13), ("s4", 10), ("s46", 0))
def wq_dma():
    A(f"s_add_u32 m0, s48, {WQL}")
    for u in range(4):
        if u: A(f"s_add_u32 s44, s44, {8*8192-1024}")
        A(f"buffer_load_dwordx4 v{wQ}, {RA}, s44 offen offset:{u*1024} {NT} lds")
def c_setup():
    VX(T2, T3, 0, (5, 1, 10), (0, 5, 2))
if "noW" in OPT["abl"]:
    ids2(); A("s_waitcnt lgkmcnt(0)\ns_branch L_exit")
if "noA" in OPT["abl"]: A("s_branch L_nA")
A(f"{IS_NA}\ns_cbranch_scc1 L_nA")
A(f"s_lshl_b32 s49, {sDB}, 7")
A("s_cmp_lt_u32 s3, 256\ns_cbranch_scc1 L_A1")
A("s_sub_u32 s40, s3, 256")
SX("s61", 0, ("s7", 6), ("s40", 2, 0, 0))
A(f"s_mul_i32 s61, s61, 6144\ns_add_u32 s61, s61, s49\ns_add_u32 s62, s61, {8*6144-1024}")
A(f"s_lshl_b32 s40, s40, 5\ns_add_u32 m0, s40, {PA}")
if OPT["diag"] == 2: STAMP(1)
A("s_waitcnt lgkmcnt(0)")
if OPT["diag"] not in (2, 3, 4): STAMP(1)
A(f"buffer_load_dwordx4 v{wM}, {RC}, s61 offen {NT} lds")
A(f"buffer_load_dwordx4 v{wM}, {RC}, s62 offen offset:1024 {NT} lds")
A(f"s_add_u32 m0, s40, {PA+8192-1024}")
A(f"buffer_load_dwordx4 v{wM}, {RC}, s61 offen offset:1024 {NT} lds")
A(f"buffer_load_dwordx4 v{wM}, {RC}, s62 offen offset:2048 {NT} lds")
TK = OPT["tok"]
AH = OPT["ahold"]
def clears():
    A("v_mov_b32 v32, -1\nv_mov_b32 v33, -1\nv_mov_b32 v34, -1\nv_mov_b32 v35, -1")
    SX("s54", CLR, ("s49", 9), ("s7", 13), ("s60", 0))
    A("v_lshlrev_b32 v38, 4, v0")
    A(f"buffer_store_dwordx4 v[32:35], v38, {RW}, s54 offen sc1")
    A(f"buffer_store_dwordx4 v[32:35], v38, {RW}, s54 offen offset:1024 sc1")
A("s_mov_b32 s60, s40")
if not TK:
    srd(RW, WS_BYTES); clears()
if AH < 8:
    wq_setup(6)
    A("s_barrier")
    wq_dma()
if OPT["diag"] == 3: STAMP(1)
cont(5)
if OPT["diag"] == 4: STAMP(1)
w_common()
if AH == 8: wq_setup(0)
NB = (4 if AH < 8 else 0)
A(f"s_waitcnt vmcnt({NB})")
if OPT["abl"]: STAMP(9)
if STAMPS == 3: STAMP(12)
A("s_barrier")
if AH == 8:
    A("s_barrier")
    wq_dma()
if TK: clears()
tr_setup()
A("s_waitcnt lgkmcnt(0)")
A(f"s_add_u32 {sTAG}, {sTAG}, {TAGC:#x}")
A("s_branch L_B")
A.seg(1.5 if OPT["wfirst"] else 3)
A.label("L_A1")
c_setup()
VX(36, T3, 0, (4, 1, 10), (5, 1, 8), (0, 4, 4))
A("s_movk_i32 s26, 2048")
A("s_waitcnt lgkmcnt(0)")
STAMP(1)
A(f"buffer_load_dword v{wC}, v{T2}, {RE}, s46 offen {SNT}")
A(f"buffer_load_dwordx4 v[{wX}:{wX+3}], v36, {RD}, 0 offen {SNT}")
A(f"buffer_load_dwordx4 v[{wX+4}:{wX+7}], v36, {RD}, 0 offen offset:512 {SNT}")
VX(37, T3, 0, (4, 1, 10), (0, 4, 1))
A(f"s_lshr_b32 s50, s3, 1\ns_add_u32 s50, s50, s49\nv_mov_b32 v{wXS}, 0")
A(f"buffer_load_short_d16_hi v{wXS}, v37, {RD}, s50 offen {SNT}")
if OPT["wfirst"] == 3: cont(4)
if AH < 8: A("s_barrier")
A(f"s_load_dword {sTAG}, s[16:17], 0")
ids2()
tr_setup()
VX(39, 32, 0, (4, 1, 6), (2, 2, 4))
SX("s53", H1G, (sDB, 12), ("s3", 10), ("s46", 0))
A("s_cmp_eq_u32 s7, 0\ns_cselect_b32 s54, 1.0, 0")
unit_pre("0", "s54", PA)
silu_operand(3)
if OPT["abl"]: STAMP(6)
if STAMPS == 3: STAMP(11)
A(f"s_waitcnt vmcnt(0)")
A("v_mov_b32 v36, 0\nv_mov_b32 v37, 0\nv_mov_b32 v38, 0x3f803f80")
for i in range(8):
    A(f"v_dot2c_f32_bf16 v36, v{wX+i}, v38\nv_dot2c_f32_bf16 v37, v{wX+i}, v{wX+i}")
for m in ("quad_perm:[1,0,3,2]", "quad_perm:[2,3,0,1]", "row_half_mirror", "row_mirror"):
    A(f"v_add_f32_dpp v36, v36, v36 {m} {DPPM}\nv_add_f32_dpp v37, v37, v37 {m} {DPPM}")
A("v_mov_b32 v38, v36\nv_mov_b32 v35, v37")
A("v_permlane32_swap_b32 v36, v38\nv_permlane32_swap_b32 v37, v35")
A("v_add_f32 v36, v36, v38\nv_add_f32 v37, v37, v35")
A(f"v_mul_f32 v36, {f32(1.0/512)}, v36\nv_mov_b32 v38, {f32(1e-5)}\nv_fmac_f32 v38, {f32(1.0/512)}, v37")
A("v_fma_f32 v38, -v36, v36, v38\nv_rsq_f32 v38, v38")
A(f"v_sub_f32 v{wXS}, v{wXS}, v36\nv_mul_f32 v{wXS}, v{wXS}, v38")
A(f"s_add_u32 {sTAG}, {sTAG}, {TAGC:#x}")
A(f"v_mov_b32 v{wD+9}, {sTAG}\nv_mov_b32 v{wD+11}, {sTAG}")
if OPT["abl"]: STAMP(7)
if STAMPS == 3: STAMP(12)
A("s_waitcnt lgkmcnt(0)\ns_barrier")
if OPT["abl"]: STAMP(10)
unit_go()
A(f"v_fma_f32 v32, v{wXS}, v{wD+4}, v{wD}")
pack4(32, wD+8, wD+10, 33)
setexec(0x11111111, 0)
A(f"buffer_store_dwordx4 v[{wD+8}:{wD+11}], v39, {RW}, s53 offen sc1")
fullexec()
STAMP(14)
if OPT["diag"] == 1:
    A("s_waitcnt vmcnt(0)"); STAMP(13)
if AH == 8: A("s_barrier")
wq_setup(0)
wq_dma()
w_common(False)
A("s_branch L_B")
A.seg(2)
A.label("L_nA")
wq_setup(6)
R3 = OPT["r3"]
SX("s51", 0, ("s7", 6), ("s3", 3, 0, 0))
if R3 & 1: SX("s52", 384, ("s51", 13), ("s4", 10))
A("s_mul_i32 s51, s51, 6144")
A("s_waitcnt lgkmcnt(0)")
STAMP(1)
if R3 & 2:
    sk = L("n3a")
    A(f"s_cmp_lg_u32 s4, 3\ns_cbranch_scc1 {sk}")
    A(f"buffer_load_dword v{vPF}, v{wM}, {RC}, s51 offen offset:{1024+384}")
    A.label(sk)
if R3 & 1: A(f"buffer_load_dword v{vPF}, v{wQ}, {RA}, s52 offen")
if OPT["wqpf"] == 22:
    sk = L("nh0")
    A(f"s_cmp_lt_u32 s3, 256\ns_cbranch_scc1 {sk}")
wq_dma()
if OPT["wqpf"] == 22: A.label(sk)
MBW = OPT["wmode"] in (1, 2)
MB2 = OPT["wmode"] == 2
MBN = OPT["wmode"] == 0
if OPT["ptouch"] and AS:
    SX("s40", 0, ("s3", 11), ("s4", 10), ("s46", 0))
    A(f"v_lshlrev_b32 v32, 13, v2")
    if OPT["ptouch"] == 1: A("s_barrier")
    A(f"buffer_load_dword v{vPF}, v32, {RA}, s40 offen")
if MBW:
    c_setup()
    A(f"buffer_load_dword v{wC}, v{T2}, {RE}, s46 offen {SNT}")
if MBN:
    A("s_lshl_b32 s42, s3, 4")
    SX("s40", 2048, (sDB, 0, 3, 8)); A("s_add_u32 s51, s51, s40")
    c_setup()
    A(f"buffer_load_dword v{wC}, v{T2}, {RE}, s46 offen {SNT}")
    if OPT["mbwait"] >= 0: A(f"s_waitcnt vmcnt({OPT['mbwait']})")
    else: A("s_barrier")
    for j, o in enumerate((0, 128, 2048, 2048+128)):
        A(f"s_add_u32 m0, s42, {PB + j*8192 - o}")
        A(f"buffer_load_dwordx4 v{wM}, {RC}, s51 offen offset:{o} {NT} lds")
cont(6)
w_common()
tr_setup()
A("s_waitcnt lgkmcnt(0)")
A(f"s_add_u32 {sTAG}, {sTAG}, {TAGC:#x}")
A.label("L_B")
def mw_dma():
    SX("s40", PB, ("s3", 10)); A("s_mov_b32 m0, s40")
    A(f"buffer_load_dwordx4 v{wM}, {RC}, s96 offen {NT} lds")
    A(f"s_add_u32 m0, s40, {8192-128}")
    A(f"buffer_load_dwordx4 v{wM}, {RC}, s96 offen offset:128 {NT} lds")
def mw_compute(vm):
    A(f"ds_read2_b64 v[{wXO}:{wXO+3}], v83 offset0:0 offset1:4\nds_read2_b64 v[{wXO+4}:{wXO+7}], v83 offset0:8 offset1:12")
    unit_pre("s98", "s98", PB)
    A(f"v_mov_b32 v{wD+9}, {sTAG}\nv_mov_b32 v{wD+11}, {sTAG}")
    A(f"s_waitcnt vmcnt({vm}) lgkmcnt(0)\ns_barrier")
    sk = L("nmw")
    A(f"s_cmp_ge_u32 s3, 4\ns_cbranch_scc1 {sk}" if vm == 2 else f"s_cmp_lt_u32 s3, 4\ns_cbranch_scc1 {sk}")
    unit_go()
    A("v_cmp_gt_u32 vcc, 32, v0")
    A(f"v_cndmask_b32 v36, v{wD+4}, v{wD}, vcc")
    pack4(36, wD+8, wD+10, 37)
    setexec(0x11111111, 0x11111111)
    A(f"buffer_store_dwordx4 v[{wD+8}:{wD+11}], v122, {RW}, s97 offen sc1")
    fullexec()
    STAMP(6)
    A.label(sk)
if MBW:
    if MB2: SX("s99", 0, ("s4", 0), ("s4", 2, 0, 2), ("s6", 2))
    else: A("s_mov_b32 s99, s58")
    SX("s96", 0, ("s7", 6), ("s3", 3))
    A("s_mul_i32 s96, s96, 6144")
    SX("s40", 2048, ("s99", 8)); A("s_add_u32 s96, s96, s40")
    if MB2:
        sk = L("nm2")
        A(f"{IS_NA}\ns_cbranch_scc1 {sk}")
        mw_dma()
        A.label(sk)
    SX("s97", MGT, ("s99", 13), ("s3", 0, 2, 10), ("s46", 0))
    SX("s40", 0, ("s99", 2, 0, 3), ("s7", 0))
    A("s_cmp_eq_u32 s40, 16\ns_cselect_b32 s98, 1.0, 0")
    VX(122, 32, 0, (5, 1, 12), (4, 1, 6), (2, 2, 4))
srd(RF, 2048)
SX("s47", 0, ("s4", 19), ("s43", 10), ("s46", 0))
wRW, wRR, wOF, wTA = 14, 15, 72, 108
SX("s40", RED, ("s3", 9)); VX(wRW, 32, "s40", (0, 6, 2))
SX("s40", RED, ("s3", 8)); VX(wRR, 32, "s40", (0, 6, 2))
VX(wOF, 32, 0, (0, 3, 7), (3, 1, 6), (4, 2, 4))
SX("s53", H1G, ("s43", 6))
if TK:
    VX(T3, 32, 0, (0, 6, 7)); A(f"s_movk_i32 s57, {TOK}")
else:
    VX(T3, 32, 0, (0, 2, 12))
    A("s_xor_b32 s57, s6, 1")
    SX("s57", H1G + 4, ("s57", 14), ("s3", 7))
wQA = 73; wQD = 76
VX(wQA, 32, 0, (5, 1, 12), (0, 5, 2))
SX("s56", QG, ("s4", 13), ("s5", 8), ("s3", 7))
A(f"v_add_u32 v{wTA}, s48, v{wTR}")
for t in range(1, 4):
    A(f"v_xor_b32 v{wTA+t}, {t*32:#x}, v{wTA}")
A(f"v_mov_b32 v{wQD+1}, {sTAG}\nv_mov_b32 v{wQD+3}, {sTAG}")
wGA, wCB, wXA, wXAD = 74, 75, 80, 81
tE, tOUT, tBP, tOF, tL16 = 84, 114, 115, 72, 116
SX("s59", Y6, ("s5", 15), ("s4", 12))
A("s_cmp_eq_u32 s3, 7\ns_cselect_b32 s40, 0, -1")
A("v_mov_b32 v118, s40\nv_mov_b32 v119, s40\nv_lshlrev_b32 v117, 3, v0")
SX("s41", 0, ("s3", 9), ("s59", 0))
VX(T1, 32, 0, (0, 4, 6), (4, 2, 4))
SX("s51", OG, ("s4", 14), ("s43", 5))
SX("s54", SG, ("s4", 9), ("s43", 7, 0, 7))
A(f"v_lshlrev_b32 v{T0}, 2, v1\nv_xor_b32 v{T0}, v0, v{T0}\nv_and_b32 v{T0}, 7, v{T0}\nv_lshlrev_b32 v{T0}, 3, v{T0}")
A(f"v_lshrrev_b32 v32, 5, v0\nv_lshl_or_b32 v{T0}, v32, 6, v{T0}")
VX(wXAD, 32, 0, (5, 1, 6), (2, 2, 4), (4, 1, 3))
SX("s60", X4, ("s7", 11), ("s3", 10), ("s6", 14), ("s4", 7))
A(f"s_add_u32 s52, s60, {Y4-X4}")
A("v_and_b32 v32, 1, v0\nv_lshlrev_b32 v32, 4, v32\nv_mov_b32 v33, 0x3f80\nv_lshlrev_b32 v32, v32, v33")
A("v_lshrrev_b32 v33, 2, v2\nv_sub_u32 v33, v1, v33\nv_bfe_u32 v34, v0, 1, 1\nv_lshl_or_b32 v33, v33, 1, v34")
for r in range(2):
    A(f"v_cmp_eq_u32 vcc, {r}, v33")
    A(f"v_cndmask_b32 v{tE+r}, 0, v32, vcc")
    A(f"v_mov_b32 v{tE+6+r}, v{tE+r}")
for r in (2, 3, 4, 5):
    A(f"v_mov_b32 v{tE+r}, 0")
VX(38, 33, 0, (0, 1, 3), (5, 1, 1), (4, 1, 2))
SX("s40", 0, ("s4", 0, 2, 4)); A(f"v_add_u32 v{tOUT}, s40, v38")
SX("s40", 0, ("s4", 2, 0, 7)); A(f"v_lshl_add_u32 v{tBP}, v{tOUT}, 1, s40")
SX("s62", 0, ("s4", 2, 0, 10), ("s5", 6))
A(f"v_lshlrev_b32 v{tL16}, 4, v0")
SX("s49", X4, ("s5", 10))
A("s_add_u32 s50, s49, 16384")
SX("s55", ST5, ("s4", 8), ("s7", 5), ("s6", 3))
VX(113, 33, 0, (5, 1, 4), (4, 1, 2))
SX("s61", MGT, ("s7", 12), ("s3", 11))
SX("s40", MGT + 3*32768, ("s5", 11))
A("s_cmp_eq_u32 s3, 2\ns_cselect_b32 s61, s40, s61\ns_cselect_b32 s40, 0, 0x10000\ns_add_u32 s63, s61, s40")
VX(120, 33, 0, (5, 1, 10), (0, 5, 1))
SX("s42", 0, ("s7", 7), ("s3", 6))
A(f"v_mov_b32 v{wXA}, 0")
def blk_frags(off):
    for t in range(4):
        for h in range(2):
            r = wWF + 4*t + 2*h
            A(f"ds_read_b64_tr_b16 v[{r}:{r+1}], v{wTA+t} offset:{off + h*2048}")
def h1_loads():
    tagged_loads(16, wOF, "s53")
    if not TK: A(f"buffer_load_dword v33, v{T3}, {RW}, s57 offen sc1")
NH = 2 if TK else 3
if MBN:
    VX(39, 32, 0, (5, 1, 12), (4, 1, 6), (2, 2, 4))
    sk = L("nmb")
    A(f"{IS_A}\ns_cbranch_scc1 {sk}")
    SX("s96", MGT, (sDB, 0, 3, 13), ("s3", 2, 0, 16), ("s3", 0, 2, 10), ("s46", 0))
    SX("s40", 0, (sDB, 2, 1, 3), ("s3", 2, 0, 4), ("s7", 0))
    A("s_cmp_eq_u32 s40, 16\ns_cselect_b32 s97, 1.0, 0")
    SX("s98", PB, ("s3", 2, 0, 14))
    silu_operand(4)
    A.label(sk)
def mb_blk(early):
    sk = L("nmc")
    A(f"{IS_A}\ns_cbranch_scc1 {sk}")
    VX(39, 32, 0, (5, 1, 12), (4, 1, 6), (2, 2, 4))
    unit_pre("s97", "s97", "s98")
    A(f"v_mov_b32 v{wD+9}, {sTAG}\nv_mov_b32 v{wD+11}, {sTAG}")
    if early: A(f"s_waitcnt vmcnt({NH}) lgkmcnt(0)\ns_barrier")
    unit_go()
    A("v_cmp_gt_u32 vcc, 32, v0")
    A(f"v_cndmask_b32 v32, v{wD+4}, v{wD}, vcc")
    pack4(32, wD+8, wD+10, 34)
    setexec(0x11111111, 0x11111111)
    A(f"buffer_store_dwordx4 v[{wD+8}:{wD+11}], v39, {RW}, s96 offen sc1")
    fullexec()
    STAMP(6)
    A.label(sk)
if TK:
    sk = L("ntk")
    A(f"{IS_NA}\ns_cbranch_scc1 {sk}\ns_cmp_lt_u32 s3, 4\ns_cbranch_scc1 {sk}")
    A("s_waitcnt vmcnt(0)")
    SX("s40", TOK - 16, (sDB, 10), ("s46", 0), ("s3", 2))
    A(f"s_mov_b64 exec, 1\nbuffer_store_dword v{wQD+1}, v0, {RW}, s40 offen sc1")
    fullexec()
    A.label(sk)
A(f"s_waitcnt vmcnt({OPT['h1at']})")
h1_loads()
if MBN and OPT["mbearly"]: mb_blk(True)
if MB2:
    sk = L("nm3")
    A(f"{IS_NA}\ns_cbranch_scc1 {sk}")
    mw_compute(2)
    A.label(sk)
A(f"s_waitcnt vmcnt({NH})")
if MBW:
    sk = L("nsl")
    A(f"{IS_A}\ns_cbranch_scc1 {sk}")
    silu_operand(NH)
    A.label(sk)
blk_frags(WQL)
STAMP(3)
if OPT["abl"] and "toq" not in OPT["abl"]: A("s_branch L_exit")
sk = L("nw0"); sk2 = L("nw1")
A(f"{IS_NA}\ns_cbranch_scc1 {sk if MBN and OPT['mbearly'] else sk2}")
if MB2: A(f"s_branch {sk}")
A.label(sk2)
A("s_waitcnt vmcnt(0)")
A.label(sk)
poll(h1_loads, lambda: tagged_chk([16], 33, None if TK else 33), first_issued=True, first_wait=1, sleep=OPT["s2"])
STAMP(4)
if OPT["diag"] == 1:
    A(f"s_waitcnt lgkmcnt(0)\ns_mul_i32 s40, {sCNT}, 10\ns_add_u32 s88, s64, s40")
tagged_pack(16)
A("s_waitcnt lgkmcnt(0)")
def blk_mfma(op):
    for t in range(4):
        mfma(wD + 4*t, op, wWF + 4*t, None)
def blk_reduce():
    A(f"v_permlane16_swap_b32 v{wD}, v{wD+4}\nv_permlane16_swap_b32 v{wD+8}, v{wD+12}")
    A(f"v_add_f32 v{wD}, v{wD}, v{wD+4}\nv_add_f32 v{wD+8}, v{wD+8}, v{wD+12}")
    A(f"ds_write2st64_b32 v{wRW}, v{wD}, v{wD+8} offset0:0 offset1:1")
    A("s_waitcnt lgkmcnt(0)\ns_barrier")
def blk_final():
    for i in range(4):
        A(f"ds_read2st64_b32 v[{32+2*i}:{33+2*i}], v{wRR} offset0:{4*i} offset1:{4*i+2}")
    A("s_waitcnt lgkmcnt(0)")
    A("v_add_f32 v32, v32, v33\nv_add_f32 v34, v34, v35\nv_add_f32 v36, v36, v37\nv_add_f32 v38, v38, v39")
    A("v_add_f32 v32, v32, v34\nv_add_f32 v36, v36, v38\nv_add_f32 v32, v32, v36")
blk_mfma(16)
rowsum([wD, wD+4, wD+8, wD+12])
blk_reduce()
sk = L("nq")
A(f"s_cmp_ge_u32 s3, 2\ns_cbranch_scc1 {sk}")
blk_final()
pack4(32, wQD, wQD+2, 33)
setexec(0x11111111, 0x11111111)
A(f"buffer_store_dwordx4 v[{wQD}:{wQD+3}], v{wQA}, {RW}, s56 offen")
fullexec()
A.label(sk)
STAMP(5)
if OPT["abl"]: A("s_branch L_exit")
if MBN and not OPT["mbearly"]: mb_blk(False)
if TK:
    sk = L("ntc")
    A(f"s_cmp_lg_u32 s3, 3\ns_cbranch_scc1 {sk}")
    A(f"buffer_load_dwordx4 v[32:35], v{T3}, {RW}, s57 offen sc1")
    A.label(sk)
A("s_barrier")
def o_loads():
    A(f"buffer_load_dwordx4 v[104:107], v{T1}, {RW}, s51 offen sc1")
def mc_loads():
    tagged_loads(128, wOF, "s61"); tagged_loads(136, wOF, "s63")
def wo_dma():
    if R3 & 4:
        SX("s40", 384, ("s4", 19), ("s5", 15), ("s3", 12))
        A(f"v_lshlrev_b32 v39, 10, v1\nbuffer_load_dword v{vPF}, v39, {RB}, s40 offen")
    A(f"s_add_u32 m0, s48, {WOL}")
    for u in range(4):
        if u: A(f"s_add_u32 s47, s47, {8*1024-1024}")
        A(f"buffer_load_dwordx4 v{wO}, {RB}, s47 offen offset:{u*1024} {NT} lds")
if MBW:
    sk = L("nm4")
    if MB2: A(f"{IS_A}\ns_cbranch_scc1 {sk}")
    mw_dma()
    A.label(sk)
NCW = 2 if MB2 else 3
sk = L("nc0")
A(f"s_cmp_ge_u32 s3, {NCW}\ns_cbranch_scc1 {sk}")
MCE = MB2 or (not MBW and (not MBN or OPT['mbearly']))
if MCE: mc_loads()
A(f"s_cmp_lg_u32 s58, 0\ns_cbranch_scc1 {sk}")
A(f"buffer_load_short_d16_hi v{wXA}, v120, {RD}, s42 offen")
A.label(sk)
A(f"buffer_store_dwordx2 v[118:119], v117, {RW}, s41 offen sc1")
if not TK: o_loads()
WOE = MBW and OPT["wo_mb"]
if MBW:
    if WOE:
        A("s_barrier"); wo_dma()
    sk5 = L("nm5")
    if MB2: A(f"{IS_A}\ns_cbranch_scc1 {sk5}")
    mw_compute(5 if WOE else 1)
    A.label(sk5)
if OPT["gtrg"]:
    A("s_cmp_lg_u32 s3, 3\ns_cbranch_scc1 L_trgd")
    if OPT["gmask"] == 7:
        VX(39, 32, 0, (0, 3, 7)); A(f"s_movk_i32 s40, {TRG}")
    else:
        VX(39, 32, 0, (0, 2, 7)); A(f"s_movk_i32 s40, {TRG + 512}")
    A(f"s_mov_b32 {sCNT}, 0")
    A.label("L_trg")
    A(f"buffer_load_dword v33, v39, {RW}, s40 offen sc1")
    A("s_waitcnt vmcnt(0)")
    A(f"v_cmp_ne_u32 vcc, {sTAG}, v33")
    A("s_cbranch_vccz L_trgd")
    A(f"s_sleep 2\ns_add_u32 {sCNT}, {sCNT}, 1\ns_cmp_lt_u32 {sCNT}, {OPT['trgmax']}\ns_cbranch_scc1 L_trg")
    A.label("L_trgd")
    A("s_barrier")
if not WOE: wo_dma()
if TK:
    sk = L("ntd")
    A(f"s_cmp_lg_u32 s3, 3\ns_cbranch_scc1 {sk}")
    tok_wait(T3, "s57", 32, 5 + (1 if R3 & 4 else 0))
    A.label(sk)
    A("s_barrier")
    o_loads()
sk = L("nc1")
A(f"s_cmp_ge_u32 s3, {NCW}\ns_cbranch_scc1 {sk}")
if not MCE: A("s_waitcnt vmcnt(2)")
poll(mc_loads, lambda: tagged_chk([128, 136], 33), first_issued=MCE, first_wait=4+TK, sleep=2)
tagged_pack(128); tagged_pack(136)
for i in range(2):
    for t in range(2):
        mfma(wD + 8*i + 4*t, 128 + 8*i, tE + 4*t, None)
rowsum([wD, wD+4, wD+8, wD+12])
A(f"v_permlane16_swap_b32 v{wD}, v{wD+4}\nv_permlane16_swap_b32 v{wD+8}, v{wD+12}")
A(f"v_add_f32 v{wGA}, v{wD}, v{wD+4}\nv_add_f32 v{wCB}, v{wD+8}, v{wD+12}")
STAMP(2)
A.label(sk)
A(f"s_waitcnt vmcnt({TK})")
blk_frags(WOL)
STAMP(7)
wF = 100
sg_load = lambda: A(f"buffer_load_dwordx2 v[16:17], v{T0}, {RW}, s54 offen sc1")
await_any(sg_load, lambda: A("v_cmp_o_f32 vcc, v17, v17"), OPT["s1"])
poll(sg_load, lambda: A("v_cmp_u_f32 vcc, v17, v17"), first_issued=True, sleep=2*OPT["s2"])
o_loads()
A(f"v_max_f32_dpp v18, v16, v16 quad_perm:[1,0,3,2] {DPPM}")
A(f"v_max_f32_dpp v18, v18, v18 quad_perm:[2,3,0,1] {DPPM}")
A(f"v_max_f32_dpp v18, v18, v18 row_half_mirror {DPPM}")
A("v_sub_f32 v16, v16, v18\nv_exp_f32 v16, v16\nv_mul_f32 v17, v16, v17")
for m in ("quad_perm:[1,0,3,2]", "quad_perm:[2,3,0,1]", "row_half_mirror"):
    A(f"v_add_f32_dpp v17, v17, v17 {m} {DPPM}")
A(f"v_rcp_f32 v17, v17\nv_mul_f32 v{wF}, v16, v17")
STAMP(8)
poll(o_loads, lambda: chk_empty4(104, 33), first_issued=True, first_wait=0)
STAMP(9)
A("s_waitcnt lgkmcnt(0)")
blk_mfma(104)
for t in range(4):
    A(f"v_mul_f32_dpp v{wD+4*t}, v{wF}, v{wD+4*t} row_newbcast:0 {DPPM}")
for r in range(1, 4):
    for t in range(4):
        A(f"v_fmac_f32_dpp v{wD+4*t}, v{wF}, v{wD+4*t+r} row_newbcast:{r} {DPPM}")
blk_reduce()
A("s_cmp_gt_u32 s3, 2\ns_cbranch_scc1 L_exit")
A("s_cmp_eq_u32 s3, 2\ns_cbranch_scc1 L_fin")
blk_final()
A(f"v_fma_f32 v32, v32, v{wGA}, v{wXA}")
A(f"v_mul_f32 v36, v32, v{wCB}")
A(f"v_mov_b32_dpp v33, v32 quad_perm:[1,1,3,3] {DPPM}")
A(f"v_mov_b32_dpp v37, v36 quad_perm:[1,1,3,3] {DPPM}")
A("v_cvt_pk_bf16_f32 v34, v32, v33\nv_cvt_pk_bf16_f32 v38, v36, v37")
A(f"v_mov_b32_dpp v35, v34 quad_perm:[2,2,2,2] {DPPM}")
A(f"v_mov_b32_dpp v39, v38 quad_perm:[2,2,2,2] {DPPM}")
setexec(0x11111111, 0x11111111)
A(f"buffer_store_dwordx2 v[38:39], v{wXAD}, {RW}, s52 offen sc1")
A(f"buffer_store_dwordx2 v[34:35], v{wXAD}, {RW}, s60 offen sc1")
STAMP(10)
A("s_branch L_exit")
A.label("L_fin")
if MB2:
    poll(lambda: tagged_loads(128, wOF, "s61"), lambda: tagged_chk([128], 33), sleep=2)
    tagged_pack(128)
    for t in range(2):
        mfma(wD + 4*t, 128, tE + 4*t, None)
    rowsum([wD, wD+4])
    A(f"v_permlane16_swap_b32 v{wD}, v{wD+4}")
    A(f"v_add_f32 v{wGA}, v{wD}, v{wD+4}")
def x4_loads():
    A(f"buffer_load_dwordx4 v[16:19], v{tOF}, {RW}, s49 offen sc1")
    A(f"buffer_load_dwordx4 v[20:23], v{tOF}, {RW}, s50 offen sc1")
def x4_chk():
    A("v_max3_u32 v33, v16, v17, v18\nv_max3_u32 v34, v19, v20, v21\nv_max3_u32 v33, v33, v22, v23\nv_max_u32 v33, v33, v34\nv_cmp_eq_u32 vcc, -1, v33")
poll(x4_loads, x4_chk)
STAMP(11)
for hp in range(2):
    for t in range(2):
        mfma(wD + 4*t, 16 + 4*hp, tE + 4*t, None if hp == 0 else wD + 4*t)
rowsum([wD, wD+4])
A(f"v_permlane16_swap_b32 v{wD}, v{wD+4}")
A(f"v_add_f32 v42, v{wD}, v{wD+4}")
A("v_mov_b32 v43, v42\nv_mul_f32 v44, v42, v42")
A("v_permlane16_swap_b32 v43, v44")
A("v_add_f32 v43, v43, v44")
for m in ("quad_perm:[1,0,3,2]", "quad_perm:[2,3,0,1]", "row_half_mirror", "row_mirror"):
    A(f"v_add_f32_dpp v43, v43, v43 {m} {DPPM}")
setexec(0x00010001, 0x00010001)
A(f"buffer_store_dword v43, v113, {RW}, s55 offen")
fullexec()
STAMP(12)
A(f"ds_bpermute_b32 v42, v{tBP}, v42\nds_bpermute_b32 v{wGA}, v{tBP}, v{wGA}")
def y6_loads():
    for i in range(4):
        A(f"buffer_load_dwordx4 v[{16+4*i}:{19+4*i}], v{tL16}, {RW}, s59 offen offset:{1024*i} sc1")
def y6_chk():
    for r in range(4):
        A(f"v_add_f32 v{16+r}, v{16+r}, v{20+r}\nv_add_f32 v{24+r}, v{24+r}, v{28+r}")
    for r in range(4):
        A(f"v_add_f32 v{16+r}, v{16+r}, v{24+r}")
    A("v_permlane32_swap_b32 v16, v17\nv_permlane32_swap_b32 v18, v19")
    A("v_add_f32 v16, v16, v17\nv_add_f32 v18, v18, v19")
    A("v_permlane16_swap_b32 v16, v18")
    A("v_add_f32 v16, v16, v18")
    A("v_cmp_u_f32 vcc, v16, v16")
await_any(lambda: A(f"buffer_load_dword v16, v{tL16}, {RW}, s59 offen sc1"), lambda: A("v_cmp_o_f32 vcc, v16, v16"), 2)
poll(y6_loads, y6_chk)
STAMP(13)
for m in ("row_ror:8", "row_ror:4", "row_ror:2"):
    A(f"v_add_f32_dpp v16, v16, v16 {m} {DPPM}")
A("s_waitcnt lgkmcnt(0)")
A(f"v_fma_f32 v16, v16, v{wGA}, v42")
A("v_cvt_pk_bf16_f32 v16, v16, v16")
setexec(0x00030003, 0x00030003)
A(f"buffer_store_short v16, v{tOUT}, {RF}, s62 offen")
A("s_cmp_lg_u32 s2, 128\ns_cbranch_scc1 L_exit")
A(f"s_sub_u32 s40, {sTAG}, {TAGC-1:#x}")
A("v_mov_b32 v17, s40\nv_mov_b32 v18, 0")
A("s_mov_b64 exec, 1")
A(f"buffer_store_dword v17, v18, {RW}, 0 offen sc1")

A("s_branch L_exit")
A.seg(40)
A.label("L_exit")
if STAMPS == 1:
    STAMP(15)
    A("s_waitcnt lgkmcnt(0)")
    A("s_mov_b64 exec, 1")
    SX("s40", DBG, ("s2", 9), ("s3", 6))
    A("v_mov_b32 v0, 0")
    for q in range(4):
        for i in range(4):
            A(f"v_mov_b32 v{4+4*q+i}, s{64+2*(4*q+i)}")
        A(f"buffer_store_dwordx4 v[{4+4*q}:{7+4*q}], v0, {RW}, s40 offen offset:{16*q}")
if STAMPS == 3:
    STAMP(15)
    A("s_waitcnt lgkmcnt(0)")
    SX("s40", 0, ("s2", 3), ("s3", 0))
    A(f"s_cmp_lg_u32 s40, {OPT['dwg']*8 + OPT['dwv']}\ns_cbranch_scc1 L_end")
    A(f"s_sub_u32 s40, s{64+2*OPT['db']}, s{64+2*OPT['da']}")
    A(f"s_mul_i32 s40, s40, {OPT['dm']}")
    A("s_min_u32 s40, s40, 30000")
    A.label("L_spin")
    A("s_memrealtime s[42:43]\ns_waitcnt lgkmcnt(0)\ns_sub_u32 s41, s42, s94\ns_cmp_lt_u32 s41, s40\ns_cbranch_scc1 L_spin")
if STAMPS == 2:
    STAMP(15)
    A("s_load_dwordx2 s[32:33], s[0:1], 96")
    A("s_mov_b32 s34, 256\ns_mov_b32 s35, 0x00020000")
    A("s_waitcnt lgkmcnt(0)")
    fullexec()
    A("v_mov_b32 v4, 0\nv_mbcnt_lo_u32_b32 v5, -1, 0\nv_lshlrev_b32 v5, 2, v5")
    A("s_cmp_ge_u32 s2, 128\ns_cbranch_scc1 L_dw")
    A("s_cmp_lg_u32 s3, 0\ns_cbranch_scc1 L_end")
    A("s_not_b32 s40, s64\nv_writelane_b32 v4, s40, 0")
    for i, st in enumerate([9, 2, 5, 7, 10, 11, 8]):
        A(f"v_writelane_b32 v4, s{64+2*st}, {i+1}")
    A("s_branch L_dd")
    A.label("L_dw")
    A("s_cmp_lg_u32 s3, 2\ns_cbranch_scc1 L_end")
    for i, st in enumerate([0, 3, 4, 5, 7, 9, 11, 15]):
        A(f"v_writelane_b32 v4, s{64+2*st}, {i+8}")
    A.label("L_dd")
    A("s_mov_b64 exec, 0xffff")
    A("buffer_atomic_umax v4, v5, s[32:35], 0 offen")
A.label("L_end")
A("s_endpgm")
A.label("L_codeend")
A.raw(f".fill (16384 - (L_codeend - {NAME}_kernel)) / 4, 4, 0xbf810000")
A.raw(f""".section .rodata,"a"
.p2align 6
.amdhsa_kernel {NAME}_kernel
  .amdhsa_next_free_vgpr 152
  .amdhsa_next_free_sgpr 102
  .amdhsa_accum_offset 152
  .amdhsa_group_segment_fixed_size 0
  .amdhsa_kernarg_size 112
  .amdhsa_user_sgpr_count 2
  .amdhsa_user_sgpr_kernarg_segment_ptr 1
  .amdhsa_system_sgpr_workgroup_id_x 1
  .amdhsa_float_denorm_mode_32 3
.end_amdhsa_kernel""")
sys.stdout.write(A.text())
sys.stderr.write(f"instrs={A.ninstr} nops={A.nops}\n")
```

```python
import sys, math, struct
sys.path.insert(0, "work")
from asmlib import Asm

NAME = "adaLN_cond__sliding_block_cached__glu_gated_reglu__decode"
OPT = dict(stamps=0, nt="nt", limit=20000, refresh=255, psleep=0, pf=4, pfnt="", smallnt="", slow=0, gtrg=0, gw=7, gmask=7, fpf=0, wo_after_c=0, fpfbar=1, fpfl="", uslocal=1, qn=4, trg=0, mb_at="kv", touch=0, ltouch=1, ahold=4, wqpf=0, wqpfl="", ehold=0, depth=0, ffn_first=0, ser=1, obar=1, gu_b1=0, dn_late=0, dn_p=0, diag=0, rot=7, vt=1, r3=7, swp=0, ns=16, help=0, helpbar=1, tokl=7, asplit=1, wmode=0, ptouch=0, nv1=3, wfirst=3, tok=1, gufirst=1, mfb1=1, mbearly=1, ftouch=0, ftouch2=0, mbg=3, mbwait=-1, g_b1=0, wo_mb=1, h1at=1, depth_until=16, qpipe=1, s1=6, s2=1, sent=1, trgmax=24, dwg=10, dwv=1, da=0, db=15, dm=20, kvbar=1, abl="")
for a in sys.argv[1:]:
    k, v = a.split("=")
    OPT[k] = int(v) if v.lstrip("-").isdigit() else v
STAMPS = OPT["stamps"]; NT = OPT["nt"] if OPT["nt"] != "-" else ""
LIMIT = OPT["limit"]; REFRESH = OPT["refresh"]; SNT = OPT["smallnt"]

def f32(x): return "0x%08x" % struct.unpack("<I", struct.pack("<f", x))[0]

TRG = 0x1000; TOK = 0x4000; H1G = 0x8000; QG = 0x10000; MGT = 0x20000
CLR = 0x100000
OG = CLR; MG = CLR + 0x20000; X4 = CLR + 0x30000; Y4 = CLR + 0x38000
G5 = CLR + 0x40000; SG = CLR + 0x5C000; ST5 = CLR + 0x5D000; US5 = CLR + 0x60000
Y6 = 0x180000; DBG = 0x400000
WS_BYTES = 0x800000
TAGC = 0x9E3779B9
VREG = 65536; PA = 131072; XL = 147456; QL = XL + 1024; PL = QL + 2048; MISC = PL + 2048
FG = 0; FD = 32768; YL0 = 131072
WQL = 0; WOL = 32768; PB = 65536; RED = XL + 1024
LDS_BYTES = MISC + 256
C1 = 128 ** -0.5 * math.log2(math.e)

A = Asm()
hdr = open(f"cdna_kernels/{NAME}.s.ref").read().split("\n")
for ln in hdr:
    if ln.startswith("; @launch"):
        A.raw(f"; @launch grid=(256,1,1) block=(512,1,1) lds={LDS_BYTES}")
        break
    A.raw(ln)
A.raw('.amdgcn_target "amdgcn-amd-amdhsa--gfx950"')
A.raw(f".text\n.globl {NAME}_kernel\n.p2align 8\n.type {NAME}_kernel,@function\n{NAME}_kernel:")

RA, RB, RW, RC, RD, RE, RF = "s[8:11]", "s[12:15]", "s[16:19]", "s[20:23]", "s[24:27]", "s[28:31]", "s[32:35]"
sTAG, sCNT, sT = "s36", "s37", "s45"
def STAMP(n):
    if STAMPS:
        A(f"s_memrealtime s[{64+2*n}:{65+2*n}]")
DPPM = "row_mask:0xf bank_mask:0xf"
lbl = [0]
def L(p):
    lbl[0] += 1
    return f"L_{p}_{lbl[0]}"
def srd(r, nbytes):
    b = int(r[2:r.index(":")])
    A((f"s_movk_i32 s{b+2}, {nbytes}" if nbytes < 32768 else f"s_mov_b32 s{b+2}, {nbytes}") + f"\ns_mov_b32 s{b+3}, s11")
def kload(r, off):
    b = int(r[2:r.index(":")])
    A(f"s_load_dwordx2 s[{b}:{b+1}], s[0:1], {off}")

def SX(dst, const, *terms):
    first = True
    for t in terms:
        src, rs, w, ls = (t[0], 0, 0, t[1]) if len(t) == 2 else t
        d = dst if first else sT
        cur = src
        if w:
            if rs == 0: A(f"s_and_b32 {d}, {cur}, {(1<<w)-1}")
            else: A(f"s_bfe_u32 {d}, {cur}, {(w<<16)|rs:#x}")
            cur = d
        elif rs:
            A(f"s_lshr_b32 {d}, {cur}, {rs}"); cur = d
        if first:
            if ls: A(f"s_lshl_b32 {d}, {cur}, {ls}")
            elif cur != d: A(f"s_mov_b32 {d}, {cur}")
        else:
            if 1 <= ls <= 4: A(f"s_lshl{ls}_add_u32 {dst}, {cur}, {dst}")
            else:
                if ls: A(f"s_lshl_b32 {sT}, {cur}, {ls}"); cur = sT
                A(f"s_add_u32 {dst}, {dst}, {cur}")
        first = False
    if const: A(f"s_add_u32 {dst}, {dst}, {const:#x}")
def VX(dst, tmp, add, *terms):
    first = True
    for rs, w, ls in terms:
        if rs == 4 and w == 2: cur = "v1"
        elif rs == 0 and w == 4: cur = "v2"
        elif rs == 0 and w == 6: cur = "v0"
        else:
            d = f"v{dst}" if first else f"v{tmp}"
            if rs + w == 6: A(f"v_lshrrev_b32 {d}, {rs}, v0")
            elif rs == 0: A(f"v_and_b32 {d}, {(1<<w)-1}, v0")
            else: A(f"v_bfe_u32 {d}, v0, {rs}, {w}")
            cur = d
        if first:
            if ls: A(f"v_lshlrev_b32 v{dst}, {ls}, {cur}")
            elif cur != f"v{dst}": A(f"v_mov_b32 v{dst}, {cur}")
        else:
            if ls: A(f"v_lshl_or_b32 v{dst}, {cur}, {ls}, v{dst}")
            else: A(f"v_or_b32 v{dst}, {cur}, v{dst}")
        first = False
    if add: A(f"v_add_u32 v{dst}, {add}, v{dst}")

def cont(n):
    t = L("c")
    A(f"s_branch {t}")
    A.seg(n); A.label(t)
def await_any(load, valid, sleep):
    if not OPT["sent"]: return
    top, done = L("aw"), L("awd")
    A(f"s_mov_b32 {sCNT}, 0")
    A.label(top)
    load()
    A("s_waitcnt vmcnt(0)")
    valid()
    A(f"s_cbranch_vccnz {done}")
    A(f"s_sleep {sleep}\ns_add_u32 {sCNT}, {sCNT}, 1\ns_cmp_lt_u32 {sCNT}, 64\ns_cbranch_scc1 {top}")
    A.label(done)
def poll(loads, check, first_issued=False, first_wait=0, sleep=0):
    top, done, chk = L("poll"), L("got"), L("chk")
    A(f"s_mov_b32 {sCNT}, 0")
    if first_issued:
        A(f"s_waitcnt vmcnt({first_wait})")
        A(f"s_branch {chk}")
    A.label(top)
    loads()
    A("s_waitcnt vmcnt(0)")
    if first_issued:
        A.label(chk)
    check()
    A(f"s_cbranch_vccz {done}")
    if sleep: A(f"s_sleep {sleep}")
    A(f"s_add_u32 {sCNT}, {sCNT}, 1")
    A(f"s_and_b32 {sT}, {sCNT}, {REFRESH}\ns_cbranch_scc1 {top}")
    A("buffer_wbl2 sc1")
    A(f"s_cmp_lt_u32 {sCNT}, {LIMIT}\ns_cbranch_scc1 {top}")
    A.label(done)
def chk_empty4(r, tmp):
    A(f"v_max3_u32 v{tmp}, v{r}, v{r+1}, v{r+2}\nv_max_u32 v{tmp}, v{tmp}, v{r+3}\nv_cmp_eq_u32 vcc, -1, v{tmp}")
def pack4(src, pk, pk2, tmp):
    A(f"v_mov_b32_dpp v{tmp}, v{src} quad_perm:[1,1,3,3] {DPPM}")
    A(f"v_cvt_pk_bf16_f32 v{pk}, v{src}, v{tmp}")
    A(f"v_mov_b32_dpp v{pk2}, v{pk} quad_perm:[2,2,2,2] {DPPM}")
def setexec(lo, hi):
    A(f"s_mov_b32 exec_lo, {lo:#x}\ns_mov_b32 exec_hi, {hi:#x}")
def fullexec():
    A("s_mov_b64 exec, -1")
def mfma(d, a, b, c):
    cc = "0" if c is None else f"v[{c}:{c+3}]"
    A(f"v_mfma_f32_16x16x32_bf16 v[{d}:{d+3}], v[{a}:{a+3}], v[{b}:{b+3}], {cc}")
def rowsum(ds):
    for d in ds: A(f"v_add_f32 v{d}, v{d}, v{d+1}\nv_add_f32 v{d+2}, v{d+2}, v{d+3}")
    for d in ds: A(f"v_add_f32 v{d}, v{d}, v{d+2}")
def code_prefetch(tmp, dst):
    sk = L("npf")
    A(f"s_cmp_lt_u32 s3, 6\ns_cbranch_scc1 {sk}")
    A("s_and_b32 s38, s38, 0xffffff00")
    A(f"v_lshlrev_b32 v{tmp}, 7, v0")
    A(f"s_and_b32 s40, s3, 1\ns_lshl_b32 s40, s40, 13")
    A(f"v_add_u32 v{tmp}, s40, v{tmp}")
    if not OPT["pf"]: A(f"v_mov_b32 v{tmp}, 0")
    A(f"global_load_dword v{dst}, v{tmp}, s[38:39] {OPT['pfnt']}")
    A.label(sk)

wM, wQ, wO, wTR, T0, T1, T2, T3, vPF = 3, 4, 5, 6, 7, 8, 9, 10, 11
wC = 12; wXS = 13; wX = 16; wXO = 24; wWF = 40; wD = 56
def swz_chunk(dst):
    A(f"v_lshlrev_b32 v{dst}, 1, v1\nv_xor_b32 v{dst}, v0, v{dst}\nv_and_b32 v{dst}, 7, v{dst}\nv_lshlrev_b32 v{dst}, 4, v{dst}")
def unit_dma(srdr, s0, s1, base):
    A(f"s_add_u32 m0, s42, {base}")
    A(f"buffer_load_dwordx4 v{wM}, {srdr}, {s0} offen {NT} lds")
    A(f"s_add_u32 m0, s42, {base+8192}")
    A(f"buffer_load_dwordx4 v{wM}, {srdr}, {s1} offen {NT} lds")
def tr_setup():
    VX(wTR, 32, 0, (2, 4, 7), (3, 2, 5), (0, 2, 3))
    SX("s40", XL, ("s3", 0, 2, 8))
    VX(82, 32, "s40", (0, 6, 2))
    VX(83, 32, "s40", (2, 1, 7), (4, 2, 3))
def silu_operand(cnt):
    A(f"s_waitcnt vmcnt({cnt})")
    A(f"v_lshlrev_b32 v32, 16, v{wC}\nv_and_b32 v33, 0xffff0000, v{wC}")
    A(f"v_mul_f32 v34, {f32(-math.log2(math.e))}, v32\nv_mul_f32 v35, {f32(-math.log2(math.e))}, v33")
    A("v_exp_f32 v34, v34\nv_exp_f32 v35, v35")
    A("v_add_f32 v34, 1.0, v34\nv_add_f32 v35, 1.0, v35")
    A("v_rcp_f32 v34, v34\nv_rcp_f32 v35, v35")
    A("v_mul_f32 v32, v32, v34\nv_mul_f32 v33, v33, v35")
    A("v_cvt_pk_bf16_f32 v32, v32, v33")
    A("ds_write_b32 v82, v32")
    A("s_waitcnt lgkmcnt(0)")
    A(f"ds_read2_b64 v[{wXO}:{wXO+3}], v83 offset0:0 offset1:4\nds_read2_b64 v[{wXO+4}:{wXO+7}], v83 offset0:8 offset1:12")
def unit_pre(s_c0, s_c1, base):
    SX("s40", 0, ("s3", 0, 2, 5)); A(f"v_xor_b32 v112, s40, v{wTR}\nv_add_u32 v112, {base}, v112")
    for i in range(4):
        A(f"v_mov_b32 v{wD+i}, {s_c0}\nv_mov_b32 v{wD+4+i}, {s_c1}")
def unit_go():
    if STAMPS: A("s_waitcnt lgkmcnt(0)")
    for k in range(2):
        for seg in range(2):
            for h in range(2):
                r = wWF + seg*8 + k*4 + h*2
                A(f"ds_read_b64_tr_b16 v[{r}:{r+1}], v112 offset:{seg*8192 + k*4096 + h*2048}")
    for k in range(2):
        for seg in range(2):
            A(f"s_waitcnt lgkmcnt({6 - 4*k - 2*seg})")
            mfma(wD + 4*seg, wXO + 4*k, wWF + seg*8 + k*4, wD + 4*seg)
def unit_mfma(s_c0, s_c1, base):
    unit_pre(s_c0, s_c1, base); unit_go()
def tagged_loads(r, va, so):
    A(f"buffer_load_dwordx4 v[{r}:{r+3}], v{va}, {RW}, {so} offen sc1")
    A(f"buffer_load_dwordx4 v[{r+4}:{r+7}], v{va}, {RW}, {so} offen offset:1024 sc1")
def tagged_chk(rs, tmp, extra=None):
    tags = [r + i for r in rs for i in (1, 3, 5, 7)] + ([extra] if extra else [])
    A(f"v_xor_b32 v{tmp}, {sTAG}, v{tags[-1]}")
    for t in tags[:-1]:
        A(f"v_bitop3_b32 v{tmp}, v{t}, {sTAG}, v{tmp} bitop3:0xbe")
    A(f"v_cmp_ne_u32 vcc, 0, v{tmp}")
def tagged_pack(r):
    A(f"v_mov_b32 v{r+1}, v{r+2}\nv_mov_b32 v{r+2}, v{r+4}\nv_mov_b32 v{r+3}, v{r+6}")
def tok_wait(va, so, r, fw=None):
    def chk():
        A(f"v_xor_b32 v{r}, {sTAG}, v{r}")
        for i in (1, 2, 3): A(f"v_bitop3_b32 v{r}, v{r+i}, {sTAG}, v{r} bitop3:0xbe")
        A(f"v_cmp_ne_u32 vcc, 0, v{r}")
    poll(lambda: A(f"buffer_load_dwordx4 v[{r}:{r+3}], v{va}, {RW}, {so} offen sc1"), chk, sleep=2, first_issued=fw is not None, first_wait=fw or 0)
def sum8(dst, r):
    A(f"v_add_f32 v32, v{r}, v{r+1}\nv_add_f32 v33, v{r+2}, v{r+3}\nv_add_f32 v34, v{r+4}, v{r+5}\nv_add_f32 v35, v{r+6}, v{r+7}")
    A(f"v_add_f32 v32, v32, v33\nv_add_f32 v34, v34, v35\nv_add_f32 v{dst}, v32, v34")

STAMP(0)
A("s_cmp_ge_u32 s2, 256\ns_cbranch_scc1 L_end")
A("s_cmp_ge_u32 s2, 128\ns_cselect_b32 s40, 24, 8\ns_cselect_b32 s41, 0, 16")
A("s_load_dwordx2 s[8:9], s[0:1], s40")
if OPT["diag"] == 6: A("s_waitcnt lgkmcnt(0)\ns_memrealtime s[100:101]")
kload(RC, 80)
A("s_load_dwordx2 s[24:25], s[0:1], s41")
kload(RE, 72); kload(RW, 104)
if OPT["diag"] == 7: A("s_memrealtime s[100:101]")
A("v_readfirstlane_b32 s3, v0")
A("s_getpc_b64 s[38:39]")
if OPT["pf"] == 4:
    A("s_and_b32 s38, s38, 0xffffff00")
    A(f"v_and_b32 v{vPF}, 0x1c0, v0\ns_lshl_b32 s40, s2, 7\ns_and_b32 s40, s40, 0x3c00\nv_lshl_or_b32 v{vPF}, v{vPF}, 1, s40")
    sk = L("npf")
    A(f"s_cmp_ge_u32 s2, 128\ns_cbranch_scc1 {sk}")
    A(f"global_load_dword v{vPF}, v{vPF}, s[38:39]")
    A.label(sk)
A("v_and_b32 v0, 63, v0")
if OPT["diag"] == 8: A("s_memrealtime s[100:101]")
A("s_mov_b32 s11, 0x00020000")
A("v_lshrrev_b32 v1, 4, v0\nv_and_b32 v2, 15, v0")
A(f"s_add_u32 s4, s2, {OPT['rot']}\ns_and_b32 s4, s4, 7\ns_bfe_u32 s6, s2, 0x10006\ns_bfe_u32 s7, s2, 0x30003")
A(f"v_lshlrev_b32 v{T3}, 1, v1\nv_xor_b32 v{T3}, v2, v{T3}\nv_lshlrev_b32 v{T3}, 4, v{T3}")
A("s_lshl1_add_u32 s58, s4, s6\ns_lshl_b32 s46, s7, 7\ns_mov_b32 s27, s11")
A(f"v_and_b32 v{T1}, 0x70, v{T3}\nv_lshrrev_b32 v{T0}, 3, v0")
if OPT["diag"] == 9: A("s_memrealtime s[100:101]")
srd(RC, 3145728); srd(RE, 2048)
A(f"v_mul_u32_u24 v{wM}, 6144, v{T0}\nv_add_u32 v{wM}, v{wM}, v{T1}")
if OPT["diag"] == 10: A("s_memrealtime s[100:101]")
if OPT["wfirst"]:
    A("s_cmp_lt_u32 s2, 128\ns_cbranch_scc1 L_KV")
    A.seg(OPT["wfirst"]); A.label("L_KV")
else:
    A("s_cmp_ge_u32 s2, 128\ns_cbranch_scc1 L_W")
def ids2():
    A("s_lshr_b32 s3, s3, 6\ns_bfe_u32 s5, s2, 0x40003")
    if STAMPS:
        for i in range(2, 16): A(f"s_mov_b32 s{64+2*i}, 0")
    srd(RW, WS_BYTES)

vE, vO, vQO = 120, 121, 122
vKA = 108
vQ = 14
vKF = 16
vVF = 48
vQF = 80
vS = 96
vP = 104
vOA = 108
vST = 114
vOAD, vSAD = 116, 117
A(f"v_lshl_or_b32 v{vE}, v1, 8, v{T3}\nv_xor_b32 v{vO}, 0x80, v{vE}")
A("s_lshl_b32 s43, s3, 7\ns_mov_b32 s10, 33554432\ns_mov_b32 s26, s10")
SX("s56", 6144*256, ("s6", 24), ("s4", 21), ("s7", 16), ("s43", 0))
A("s_add_u32 s57, s56, 4096\ns_mov_b32 m0, s43")
def kv_dma(u):
    r = RA if u < 8 else RD
    A(f"buffer_load_dwordx4 v{vE if u%2==0 else vO}, {r}, {'s56' if u%8 < 4 else 's57'} offen offset:{(u%4)*1024} {NT} lds")
HELP = OPT["help"]
if HELP & 1:
    kload(RF, 24); srd(RF, 4194304)
    A(f"v_lshlrev_b32 v{wQ}, 13, v{T0}")
    SX("s44", 0, ("s6", 19), ("s3", 10), ("s4", 10), ("s46", 0))
if HELP & 2:
    A(f"v_and_b32 v{T2}, 0x40, v{T1}\nv_add_u32 v{T2}, v{wM}, v{T2}\nv_add_u32 v{T2}, v{T2}, v{T1}") if False else None
    A(f"v_mul_u32_u24 v{T2}, 6144, v{T0}\nv_and_b32 v{wO}, 1, v0\nv_lshl_add_u32 v{T2}, v{wO}, 7, v{T2}")
    SX("s51", 0, ("s7", 6), ("s3", 3, 0, 0))
    A("s_mul_i32 s51, s51, 6144")
    SX("s40", 2048, ("s4", 8), ("s6", 11)); A("s_add_u32 s51, s51, s40")
A("s_waitcnt lgkmcnt(0)")
if OPT["diag"] == 5: A("s_memrealtime s[100:101]")
if HELP & 1: A(f"buffer_load_dword v16, v{wQ}, {RF}, s44 offen")
if HELP & 2: A(f"buffer_load_dword v17, v{T2}, {RC}, s51 offen")
if HELP and OPT["helpbar"]: A("s_barrier")
VT = OPT["vt"]
if VT:
    A(f"s_add_u32 m0, s43, {VREG}")
    kv_dma(8)
    A("s_mov_b32 m0, s43")
if OPT["slow"]: kv_dma(0)
if OPT["pf"] == 3:
    A("s_and_b32 s38, s38, 0xffffff00")
    SX("s40", 0, ("s2", 3, 4, 10), ("s3", 1))
    A("s_load_dword s99, s[38:39], s40")
A(f"s_load_dword {sTAG}, s[16:17], 0")
if OPT["slow"]: A("s_waitcnt vmcnt(0)")
def mb_issue():
    SX("s51", 0, ("s7", 6), ("s3", 3, 0, 0))
    A("s_mul_i32 s51, s51, 6144\ns_lshl_b32 s42, s3, 4")
    SX("s40", 2048, ("s58", 8)); A("s_add_u32 s51, s51, s40")
    A(f"s_add_u32 m0, s42, {PA}")
    A(f"buffer_load_dwordx4 v{wM}, {RC}, s51 offen {NT} lds")
    A(f"s_add_u32 m0, s42, {PA + 8192 - 128}")
    A(f"buffer_load_dwordx4 v{wM}, {RC}, s51 offen offset:128 {NT} lds")
    VX(T2, T3, 0, (5, 1, 10), (0, 5, 2))
    A(f"buffer_load_dword v{wC}, v{T2}, {RE}, s46 offen {SNT}")
def kv_issue(u0, u1):
    for u in range(u0, u1):
        if u in (4, 12): A("s_add_u32 m0, m0, 4096")
        if u == 8:
            A(f"s_add_u32 m0, s43, {VREG}")
            if VT: continue
        kv_dma(u)
NS = OPT["ns"]
kv_issue(1 if OPT["slow"] else 0, NS)
cont(30)
ids2()
if STAMPS: A("s_mov_b32 s66, 0")
def after_issue():
    STAMP(2)
    if OPT["abl"]:
        A("s_waitcnt vmcnt(0)")
        STAMP(4)
        A("s_branch L_exit")
    if OPT["tokl"]:
        sk = L("ntl")
        A(f"s_cmp_lg_u32 s3, 7\ns_cbranch_scc1 {sk}")
        A(f"s_waitcnt vmcnt({OPT['tokl']})")
        A(f"buffer_load_dwordx4 v[144:147], v140, {RW}, s41 offen sc1")
        A.label(sk)
GT = 0
A(f"v_lshlrev_b32 v140, 7, v0\ns_movk_i32 s41, {TOK}")
if NS == 16: after_issue()
kload(RC, 48); kload(RB, 56); kload(RE, 64)
FF = OPT["ffn_first"]
if FF: FG = VREG; FD = VREG + 32768
wG, wDO, fMF = 124, 125, 123
A(f"v_mul_u32_u24 v{wG}, 3584, v{T0}\nv_add_u32 v{wG}, v{wG}, v{T1}\nv_lshl_or_b32 v{wDO}, v{T0}, 10, v{T1}")
A("s_cmp_lt_u32 s4, 7")
A("s_cselect_b32 s22, 1835008, 0\ns_cselect_b32 s14, 1835008, 0\ns_mov_b32 s15, s11\ns_cselect_b32 s30, 1835008, 0")
SX("s63", 0, ("s4", 4), ("s5", 0))
SX("s49", 0, ("s63", 0, 2, 7), ("s3", 4))
A("s_mul_i32 s49, s49, 3584")
SX("s50", 0, ("s63", 2, 0, 7))
A(f"s_add_u32 s49, s49, s50\ns_add_u32 s50, s49, {8*3584-1024}")
SX("s51", 0, ("s63", 14), ("s3", 7))
A(f"s_add_u32 s52, s51, {8*1024-1024}")
A("s_lshl_b32 s42, s3, 11")
def g_dma():
    A(f"s_add_u32 m0, s42, {FG}")
    A(f"buffer_load_dwordx4 v{wG}, {RC}, s49 offen {NT} lds")
    A(f"buffer_load_dwordx4 v{wG}, {RC}, s50 offen offset:1024 {NT} lds")
def u_dma():
    A(f"s_add_u32 m0, s42, {FG+16384}")
    A(f"buffer_load_dwordx4 v{wG}, {RB}, s49 offen {NT} lds")
    A(f"buffer_load_dwordx4 v{wG}, {RB}, s50 offen offset:1024 {NT} lds")
def gu_dma():
    g_dma(); u_dma()
def dn_dma():
    A(f"s_add_u32 m0, s42, {FD}")
    A(f"buffer_load_dwordx4 v{wDO}, {RE}, s51 offen {NT} lds")
    A(f"buffer_load_dwordx4 v{wDO}, {RE}, s52 offen offset:1024 {NT} lds")
def ffn_dma():
    gu_dma(); dn_dma()
GB1 = OPT["gu_b1"] and OPT["ser"] and not FF
SX("s98", ST5, ("s4", 8))
SX("s96", G5, ("s63", 10))
A(f"s_add_u32 s97, s96, {US5-G5}")
if OPT["ftouch"]:
    A("v_mul_u32_u24 v118, 3584, v2\nv_lshlrev_b32 v119, 10, v2")
SX("s44", QG, ("s58", 12), ("s3", 10))
vQ = 100
A(f"v_lshlrev_b32 v{vQO}, 4, v0")
VX(fMF, T2, 0, (0, 3, 7), (3, 1, 6), (4, 2, 4))
SX("s59", MGT + 2*32768, ("s63", 0, 2, 13), ("s3", 0, 2, 11))
SX("s40", 0, ("s3", 2, 0, 15)); A("s_sub_u32 s59, s59, s40")
VX(T2, 0, 0, (0, 3, 1))
A(f"v_xor_b32 v{T2}, v1, v{T2}\nv_lshlrev_b32 v{T2}, 4, v{T2}\nv_lshl_or_b32 v{T2}, v2, 8, v{T2}")
A(f"v_add_u32 v{vKA}, s43, v{T2}")
for t in range(1, 4):
    A(f"v_xor_b32 v{vKA+t}, {t*64:#x}, v{vKA}")
vQW, vQR, vVR, vMX, vPW, vPR, vMW = 3, 4, 5, 6, 113, 13, 112
SX("s40", QL, ("s3", 5))
VX(vQW, T2, "s40", (1, 4, 7), (5, 1, 4), (0, 1, 3))
VX(vQR, T2, QL, (4, 2, 7), (0, 3, 4))
A(f"v_bfe_u32 v{T0}, v0, 2, 3\nv_xor_b32 v{T0}, s3, v{T0}")
VX(vVR, T2, VREG, (2, 4, 8), (0, 2, 3))
A(f"v_lshl_or_b32 v{vVR}, v{T0}, 5, v{vVR}")
VX(vMX, T2, MISC, (0, 2, 5))
A(f"s_lshl_b32 s40, s3, 2\nv_add_u32 v{vMW}, s40, v{vMX}")
VX(vPR, T2, PL, (4, 2, 6), (0, 2, 4))
A(f"s_lshl_b32 s40, s3, 8\nv_and_b32 v{T2}, 12, v0\nv_add3_u32 v{vPW}, s40, v{vPR}, v{T2}")
A("s_mov_b32 s60, 0xf0f0f0f0\ns_mov_b32 s61, s60\ns_mov_b32 s46, 0xff00ff00\ns_mov_b32 s47, s46")
VX(vOAD, T2, 0, (0, 2, 12), (4, 2, 4))
SX("s53", OG, ("s4", 14), ("s3", 1, 0, 10), ("s5", 6), ("s3", 0, 1, 3))
VX(vSAD, T2, 0, (0, 2, 7))
SX("s54", SG, ("s4", 9), ("s5", 3))
A(f"s_mov_b32 s55, {f32(C1)}")
fWF = 128 if FF else 84
fDF = 144 if FF else 64
def ffn_frag_addr(wr, ta, tr):
    VX(tr, 32, 0, (2, 4, 7), (3, 2, 5), (0, 2, 3))
    SX("s40", 0, ("s3", 0, 2, 5)); A(f"v_xor_b32 v{wr}, s40, v{tr}")
    SX("s40", FG, ("s3", 2, 0, 14)); A(f"v_add_u32 v{wr}, s40, v{wr}")
    A(f"s_add_u32 s40, s42, {FD}\nv_add_u32 v{ta}, s40, v{tr}")
    for t in range(1, 4):
        A(f"v_xor_b32 v{ta+t}, {t*32:#x}, v{ta}")
def w_frags(wr):
    for k in range(4):
        for h in range(2):
            r = fWF + 4*k + 2*h
            A(f"ds_read_b64_tr_b16 v[{r}:{r+1}], v{wr} offset:{k*4096 + h*2048}")
def d_frags(ta):
    for tau in range(4):
        A(f"ds_read_b64_tr_b16 v[{fDF+2*tau}:{fDF+2*tau+1}], v{ta+tau}")
if NS < 16:
    kv_issue(NS, 16)
    after_issue()
A(f"s_waitcnt vmcnt({7 if VT else 8}) lgkmcnt(0)")
if OPT["diag"] >= 5: A("s_mov_b32 s76, s100")
A(f"s_add_u32 {sTAG}, {sTAG}, {TAGC:#x}")
for T in range(2):
    for t in range(4):
        r = vKF + (T*4+t)*4
        A(f"ds_read_b128 v[{r}:{r+3}], v{vKA+t} offset:{T*4096}")
sk = L("nqp"); skm = L("mbw")
if OPT["mbg"] == 3:
    A(f"s_cmp_lt_u32 s3, 4\ns_cbranch_scc1 {skm}")
    if not OPT["tokl"]:
        if OPT["tok"]:
            sk3 = L("ntv")
            A(f"s_cmp_lg_u32 s3, 4\ns_cbranch_scc1 {sk3}")
            A(f"v_lshlrev_b32 v80, 7, v0\ns_movk_i32 s41, {TOK}")
            tok_wait(80, "s41", 84)
            A(f"buffer_load_dwordx4 v[136:139], v{vQO}, {RW}, s96 offen sc1")
            A(f"buffer_load_dwordx4 v[136:139], v{vQO}, {RW}, s97 offen sc1")
            A(f"buffer_load_dword v136, v{vSAD}, {RW}, s98 offen sc1")
            A(f"s_branch {sk}")
            A.label(sk3)
    A(f"s_waitcnt vmcnt(0)\ns_branch {sk}")
    A.label(skm)
    A.mute = True
A("s_barrier")
A(f"s_cmp_lt_u32 s3, 4\ns_cbranch_scc1 {skm}")
SX("s40", XL, ("s3", 0, 2, 8))
VX(82, 80, "s40", (0, 6, 2))
VX(83, 80, "s40", (2, 1, 7), (4, 2, 3))
A(f"v_lshlrev_b32 v84, 16, v{wC}\nv_and_b32 v85, 0xffff0000, v{wC}")
A(f"v_mul_f32 v86, {f32(-math.log2(math.e))}, v84\nv_mul_f32 v87, {f32(-math.log2(math.e))}, v85")
A("v_exp_f32 v86, v86\nv_exp_f32 v87, v87\nv_add_f32 v86, 1.0, v86\nv_add_f32 v87, 1.0, v87")
A("v_rcp_f32 v86, v86\nv_rcp_f32 v87, v87\nv_mul_f32 v84, v84, v86\nv_mul_f32 v85, v85, v87")
A("v_cvt_pk_bf16_f32 v84, v84, v85\nds_write_b32 v82, v84")
A("ds_read2_b64 v[144:147], v83 offset0:0 offset1:4\nds_read2_b64 v[148:151], v83 offset0:8 offset1:12")
VX(81, 80, 0, (2, 4, 7), (3, 2, 5), (0, 2, 3))
SX("s40", 0, ("s3", 0, 2, 5)); A(f"v_xor_b32 v81, s40, v81\nv_add_u32 v81, {PA}, v81")
for k in range(2):
    for sg in range(2):
        for hh in range(2):
            r = 128 + sg*8 + k*4 + hh*2
            A(f"ds_read_b64_tr_b16 v[{r}:{r+1}], v81 offset:{sg*8192 + k*4096 + hh*2048}")
SX("s40", 0, ("s58", 2, 0, 3), ("s7", 0))
A("s_cmp_eq_u32 s40, 16\ns_cselect_b32 s41, 1.0, 0")
for i in range(8): A(f"v_mov_b32 v{88+i}, s41")
VX(80, 81, 0, (5, 1, 12), (4, 1, 6), (2, 2, 4))
SX("s41", MGT, ("s58", 13), ("s3", 0, 2, 10), ("s46", 0))
A(f"v_mov_b32 v97, {sTAG}\nv_mov_b32 v99, {sTAG}")
A("s_waitcnt lgkmcnt(0)")
for k in range(2):
    for sg in range(2):
        mfma(88 + 4*sg, 144 + 4*k, 128 + sg*8 + k*4, 88 + 4*sg)
A("v_cmp_gt_u32 vcc, 32, v0")
A("v_cndmask_b32 v84, v92, v88, vcc")
pack4(84, 96, 98, 85)
setexec(0x11111111, 0x11111111)
A(f"buffer_store_dwordx4 v[96:99], v80, {RW}, s41 offen sc1")
fullexec()
STAMP(9)
A(f"s_waitcnt vmcnt(1)\ns_branch {sk}")
A.label(skm)
A.mute = False
def q_load():
    A(f"buffer_load_dwordx4 v[{vQ}:{vQ+3}], v{vQO}, {RW}, s44 offen sc1")
def q_chk():
    A(f"v_xor_b32 v{T0}, {sTAG}, v{vQ+1}\nv_bitop3_b32 v{T0}, v{vQ+3}, {sTAG}, v{T0} bitop3:0xbe\nv_cmp_ne_u32 vcc, 0, v{T0}")
poll(q_load, q_chk, sleep=OPT['s2'])
STAMP(4)
A(f"v_mov_b32 v{vQ+1}, v{vQ+2}")
A(f"ds_write_b64 v{vQW}, v[{vQ}:{vQ+1}]")
A.label(sk)
A("s_waitcnt lgkmcnt(0)\ns_barrier")
STAMP(5)
for t in range(4):
    A(f"ds_read_b128 v[{vQF+4*t}:{vQF+4*t+3}], v{vQR} offset:{t*512}")
if GB1: gu_dma()
if OPT["g_b1"]: g_dma()
def f_touch(n):
    A("s_mov_b64 exec, 0xffff")
    if n & 1: A(f"buffer_load_dword v{vPF}, v118, {RC}, s49 offen")
    if n & 2: A(f"buffer_load_dword v{vPF}, v118, {RB}, s49 offen")
    if n & 4: A(f"buffer_load_dword v{vPF}, v119, {RE}, s51 offen")
    fullexec()
if OPT["ftouch"]: f_touch(OPT["ftouch"])
vMF = 128
def mf_loads():
    tagged_loads(vMF, fMF, "s59")
def l_touch(a, b, c):
    sk = L("nlt")
    A(f"s_cmp_lg_u32 s3, 7\ns_cbranch_scc1 {sk}")
    A(f"buffer_load_dwordx4 v[136:139], v{vQO}, {RW}, {a} offen sc1")
    A(f"buffer_load_dwordx4 v[136:139], v{vQO}, {RW}, {b} offen sc1")
    A(f"buffer_load_dword v136, v{vSAD}, {RW}, {c} offen sc1")
    A.label(sk)
def v_tr(kb, T):
    r = vVF + kb*4 + T*2
    A(f"ds_read_b64_tr_b16 v[{r}:{r+1}], v{vVR} offset:{(32*kb+16*T)*256}")
EARLY_T = [0, 1]
NV1 = OPT["nv1"]
if STAMPS: A("s_waitcnt lgkmcnt(0)")
for t in range(4):
    A(f"s_waitcnt lgkmcnt({3-t})")
    for T in range(2):
        mfma(vS + 4*T, vKF + (T*4+t)*4, vQF + 4*t, None if t == 0 else vS + 4*T)
for kb in range(NV1):
    v_tr(kb, 0); v_tr(kb, 1)
for i in range(8):
    A(f"v_add_f32_dpp v{vS+i}, v{vS+i}, v{vS+i} row_ror:4 {DPPM}")
A(f"v_max3_f32 v{T0}, v{vS}, v{vS+1}, v{vS+2}\nv_max3_f32 v{T2}, v{vS+3}, v{vS+4}, v{vS+5}")
A(f"v_max3_f32 v{T0}, v{T0}, v{vS+6}, v{vS+7}\nv_max_f32 v{T3}, v{T0}, v{T2}\nv_max_f32 v{T0}, v{T0}, v{T2}")
A(f"v_cndmask_b32 v{vS}, v{vS}, v{vS+2}, s[60:61]\nv_cndmask_b32 v{vS+1}, v{vS+1}, v{vS+3}, s[60:61]")
A(f"v_permlane32_swap_b32 v{T0}, v{T3}")
A(f"v_max_f32 v{T2}, v{T0}, v{T3}\nv_max_f32 v{T0}, v{T0}, v{T3}")
A(f"v_cndmask_b32 v{vS+4}, v{vS+4}, v{vS+6}, s[60:61]\nv_cndmask_b32 v{vS+5}, v{vS+5}, v{vS+7}, s[60:61]")
A(f"v_permlane16_swap_b32 v{T0}, v{T2}")
A(f"v_max_f32 v{T0}, v{T0}, v{T2}")
A(f"ds_write_b32 v{vMW}, v{T0}")
A(f"v_cndmask_b32 v{vS}, v{vS}, v{vS+4}, s[46:47]\nv_cndmask_b32 v{vS+1}, v{vS+1}, v{vS+5}, s[46:47]")
A(f"v_mul_f32 v{vS}, s55, v{vS}\nv_mul_f32 v{vS+1}, s55, v{vS+1}")
STAMP(14)
if OPT["tokl"]:
    sk = L("ntm")
    A(f"s_cmp_lg_u32 s3, 7\ns_cbranch_scc1 {sk}")
    tok_wait(140, "s41", 144, 0)
    A(f"buffer_load_dwordx4 v[136:139], v{vQO}, {RW}, s96 offen sc1")
    A(f"buffer_load_dwordx4 v[136:139], v{vQO}, {RW}, s97 offen sc1")
    A(f"buffer_load_dword v136, v{vSAD}, {RW}, s98 offen sc1")
    A.label(sk)
A("s_waitcnt lgkmcnt(0)\ns_barrier")
A(f"ds_read_b128 v[{vQF}:{vQF+3}], v{vMX}\nds_read_b128 v[{vQF+4}:{vQF+7}], v{vMX} offset:16")
for kb in range(NV1, min(8, NV1 + 6)):
    v_tr(kb, 0); v_tr(kb, 1)
A(f"s_waitcnt lgkmcnt({2*(min(8, NV1+6) - NV1)})")
A(f"v_max3_f32 v{T0}, v{vQF}, v{vQF+1}, v{vQF+2}\nv_max3_f32 v{T2}, v{vQF+3}, v{vQF+4}, v{vQF+5}")
A(f"v_max3_f32 v{T0}, v{T0}, v{vQF+6}, v{vQF+7}\nv_max_f32 v{T0}, v{T0}, v{T2}")
A(f"v_fma_f32 v{vS}, -v{T0}, s55, v{vS}\nv_fma_f32 v{vS+1}, -v{T0}, s55, v{vS+1}")
A(f"v_exp_f32 v{vS}, v{vS}\nv_exp_f32 v{vS+1}, v{vS+1}")
A(f"v_mul_f32 v{vST}, s55, v{T0}")
A(f"v_cvt_pk_bf16_f32 v{vP}, v{vS}, v{vS+1}")
A(f"v_add_f32 v{T0}, v{vS}, v{vS+1}")
A(f"ds_write_b32 v{vPW}, v{vP}")
A(f"v_add_f32_dpp v{T0}, v{T0}, v{T0} row_ror:4 {DPPM}")
if OPT["mfb1"]: mf_loads()
A(f"v_add_f32_dpp v{T3}, v{T0}, v{T0} row_ror:8 {DPPM}\nv_add_f32_dpp v{T0}, v{T0}, v{T0} row_ror:8 {DPPM}")
A(f"v_permlane32_swap_b32 v{T0}, v{T3}")
A(f"v_add_f32 v{T2}, v{T0}, v{T3}\nv_add_f32 v{T0}, v{T0}, v{T3}")
A(f"v_permlane16_swap_b32 v{T0}, v{T2}")
A(f"v_add_f32 v{T0}, v{T0}, v{T2}")
A(f"ds_write_b32 v{vMW}, v{T0} offset:128")
if OPT["dn_p"] == 3: dn_dma()
A("s_waitcnt lgkmcnt(0)\ns_barrier")
STAMP(3)
if STAMPS: A("s_waitcnt lgkmcnt(0)")
LATE_T = [T for T in range(2) if T not in EARLY_T]
A(f"ds_read_b128 v[{vQF}:{vQF+3}], v{vMX} offset:128\nds_read_b128 v[{vQF+4}:{vQF+7}], v{vMX} offset:144")
for kb in range(8):
    r = vKF + kb*4
    A(f"ds_read_b128 v[{r}:{r+3}], v{vPR} offset:{kb*256}")
def st_pub(vm=None):
    sk = L("nst"); sk2 = L("nsu")
    A(f"s_cmp_lg_u32 s3, 0\ns_cbranch_scc1 {sk}")
    A("s_waitcnt lgkmcnt(8)")
    rowsum([vQF, vQF+4])
    A(f"v_add_f32 v{vST+1}, v{vQF}, v{vQF+4}")
    A("s_mov_b64 exec, 15")
    A(f"buffer_store_dwordx2 v[{vST}:{vST+1}], v{vSAD}, {RW}, s54 offen")
    fullexec()
    if vm is not None:
        A(f"s_waitcnt vmcnt({vm})\ns_branch {sk2}")
    A.label(sk)
    if vm is not None:
        A(f"s_waitcnt vmcnt({vm-1})")
        A.label(sk2)
if LATE_T:
    st_pub(1)
    A("s_waitcnt lgkmcnt(0)\ns_barrier")
    STAMP(6)
    if STAMPS: A("s_waitcnt lgkmcnt(0)")
    per = len(LATE_T)
    AHEAD = 8 if per == 1 else 6
    for kb in range(AHEAD):
        for T in LATE_T: v_tr(kb, T)
    for kb in range(8):
        A(f"s_waitcnt lgkmcnt({(min(8, AHEAD + kb) - kb - 1) * per})")
        mfma(vOA, vVF + kb*4, vKF + kb*4, None if kb == 0 else vOA)
        if AHEAD + kb < 8:
            for T in LATE_T: v_tr(AHEAD + kb, T)
else:
    st_pub()
    if OPT["dn_p"] == 1: dn_dma()
    for kb in range(8):
        A(f"s_waitcnt lgkmcnt({7-kb})")
        mfma(vOA, vVF + kb*4, vKF + kb*4, None if kb == 0 else vOA)
setexec(0x000f000f, 0x000f000f)
A(f"v_cvt_pk_bf16_f32 v{vP}, v{vOA}, v{vOA+1}\nv_cvt_pk_bf16_f32 v{vP+1}, v{vOA+2}, v{vOA+3}")
A(f"buffer_store_dwordx2 v[{vP}:{vP+1}], v{vOAD}, {RW}, s53 offen")
fullexec()
STAMP(7)
A("s_cmp_lt_u32 s4, 7\ns_cbranch_scc1 L_ffn")
A("s_cmp_lg_u32 s3, 0\ns_cbranch_scc1 L_exit")
VX(T1, T2, 0, (3, 1, 14), (0, 3, 11))
A(f"s_mov_b32 s46, {X4 + 7*128:#x}")
poll(lambda: A(f"buffer_load_dword v16, v{T1}, {RW}, s46 offen sc1"), lambda: A(f"v_cmp_eq_u32 vcc, -1, v16"), sleep=8)
A("s_branch L_exit")
A.label("L_ffn")
SX("s55", ST5, ("s4", 8))
SX("s53", G5, ("s63", 10))
A(f"s_add_u32 s54, s53, {US5-G5}")
if not OPT["mfb1"]:
    l_touch("s53", "s54", "s55")
    mf_loads()
DL = OPT["dn_late"]
NF = 0
if not GB1 and OPT["dn_p"] != 3:
    if OPT["obar"]: A("s_barrier")
    if not OPT["g_b1"]:
        g_dma(); NF += 2
    u_dma(); NF += 2
if not DL and not OPT["dn_p"]:
    if (GB1 and OPT["obar"]) or OPT["gufirst"]: A("s_barrier")
    dn_dma(); NF += 2
fYW, fYR, fWR, fGA, fGR, fSTA, fY6A = 113, 114, 115, 116, 118, 119, 120
fG, fU, fS = 121, 122, 117
wOF, wTA = fMF, 108
if not FF: ffn_frag_addr(fWR, wTA, wTR)
A("s_lshr_b32 s56, s3, 2\ns_and_b32 s57, s3, 3")
VX(fYR, 32, YL0, (0, 6, 4))
A(f"s_lshl_b32 s40, s3, 10\nv_add_u32 v{fYW}, s40, v{fYR}")
VX(fGA, 32, 0, (0, 6, 2))
SX("s61", G5 - 64, ("s63", 2, 0, 12), ("s57", 10), ("s63", 0, 2, 8), ("s56", 7))
A(f"s_add_u32 s62, s61, {US5-G5}")
VX(fGR, 32, 0, (2, 1, 7), (3, 1, 6), (4, 2, 4), (0, 2, 2))
VX(fSTA, 32, 0, (0, 3, 5), (3, 1, 4))
VX(fY6A, 32, 0, (3, 1, 14), (5, 1, 12), (4, 1, 4))
SX("s47", Y4, ("s56", 14), ("s63", 0, 2, 12), ("s57", 10))
SX("s96", Y6, ("s3", 16), ("s63", 5))
A("s_add_u32 s97, s96, 8192\ns_add_u32 s98, s96, 32768\ns_add_u32 s99, s96, 40960")
A(f"s_mov_b32 s41, {f32(1.0/512)}\ns_mov_b32 s43, {f32(1e-5)}")
poll(mf_loads, lambda: tagged_chk([vMF], 33), first_issued=True, first_wait=NF, sleep=4)
tagged_pack(vMF)
A(f"ds_write_b128 v{fYW}, v[{vMF}:{vMF+3}]")
def y_load():
    A(f"buffer_load_dwordx4 v[76:79], v{wOF}, {RW}, s47 offen sc1")
GF = OPT["gufirst"]
A(f"s_waitcnt vmcnt({2 if GF else 0}) lgkmcnt(0)\ns_barrier")
STAMP(10)
y_load()
if DL: dn_dma()
YO = [16, 20, 24, 28, 32, 36, 100, 104]
if not FF: w_frags(fWR)
for u in range(8):
    A(f"ds_read_b128 v[{YO[u]}:{YO[u]+3}], v{fYR} offset:{u*1024}")
A("s_waitcnt lgkmcnt(0)")
for k in range(4):
    for pi in range(2):
        mfma(wD + 4*pi, YO[4*pi+k], fWF + 4*k, None if k == 0 else wD + 4*pi)
rowsum([wD, wD+4])
A(f"v_permlane16_swap_b32 v{wD}, v{wD+4}")
A(f"v_add_f32 v{wD+1}, v{wD}, v{wD+4}\nv_add_f32 v{wD}, v{wD}, v{wD+4}")
A(f"v_permlane16_swap_b32 v{wD}, v{wD+1}")
A(f"v_cvt_pk_bf16_f32 v126, v{wD}, v{wD+1}")
setexec(0xffff0000, 0x0000ffff)
A(f"buffer_store_dword v126, v{fGA}, {RW}, s62 offen {'' if OPT['uslocal'] else 'sc1'}")
fullexec()
STAMP(1)
def us_loads():
    for k in range(4):
        A(f"buffer_load_dword v{40+k}, v{fGR}, {RW}, s54 offen offset:{256*k} sc1")
if not DL and not GF: d_frags(wTA)
poll(y_load, lambda: chk_empty4(76, 33), first_issued=True, first_wait=3 if DL else 1)
STAMP(11)
A(f"ds_write_b128 v{fYW}, v[76:79] offset:8192")
us_loads()
A("s_waitcnt lgkmcnt(0)\ns_barrier")
for u in range(8):
    A(f"ds_read_b128 v[{YO[u]}:{YO[u]+3}], v{fYR} offset:{8192+u*1024}")
for u in range(8):
    A(f"s_waitcnt lgkmcnt({7-u})")
    mfma(wD, YO[u], fWF + 4*(u & 3), None if u == 0 else wD)
A(f"v_add_f32 v{wD}, v{wD}, v{wD+1}\nv_add_f32 v{wD+2}, v{wD+2}, v{wD+3}")
A(f"v_add_f32 v{wD+1}, v{wD}, v{wD+2}\nv_add_f32 v{wD}, v{wD}, v{wD+2}")
A(f"v_permlane16_swap_b32 v{wD}, v{wD+1}")
A(f"v_add_f32 v{fG}, v{wD}, v{wD+1}")
def g_store(fl):
    setexec(0xffff0000, 0x0000ffff)
    A(f"buffer_store_dword v{fG}, v{fGA}, {RW}, s61 offen {fl}")
g_store("")
fullexec()
STAMP(12)
def g_loads():
    A(f"buffer_load_dwordx4 v[24:27], v{fSTA}, {RW}, s55 offen sc1")
    for k in range(4):
        A(f"buffer_load_dword v{20+k}, v{fGR}, {RW}, s53 offen offset:{256*k} sc1")
poll(us_loads, lambda: chk_empty4(40, 33), first_issued=True, first_wait=1)
g_loads()
if DL or GF: d_frags(wTA)
for k in range(4):
    A(f"v_lshlrev_b32 v{44+k}, 16, v{40+k}\nv_and_b32 v{40+k}, 0xffff0000, v{40+k}")
rowsum([44, 40])
A(f"v_mov_b32 v{fU}, v44\nv_mov_b32 v{fS}, v40")
def g_chk():
    A("v_add_f32 v24, v24, v26\nv_add_f32 v25, v25, v27")
    A("v_add_f32 v20, v20, v21\nv_add_f32 v22, v22, v23")
    A(f"v_add_f32_dpp v24, v24, v24 quad_perm:[1,0,3,2] {DPPM}\nv_add_f32_dpp v25, v25, v25 quad_perm:[1,0,3,2] {DPPM}")
    A("v_add_f32 v20, v20, v22")
    A(f"v_add_f32_dpp v24, v24, v24 quad_perm:[2,3,0,1] {DPPM}\nv_add_f32_dpp v25, v25, v25 quad_perm:[2,3,0,1] {DPPM}")
    A("v_add_f32 v26, v24, v25")
    A("v_cmp_u_f32 vcc, v20, v26")
poll(g_loads, g_chk, first_issued=True)
STAMP(13)
A(f"v_add_f32_dpp v24, v24, v24 row_half_mirror {DPPM}\nv_add_f32_dpp v25, v25, v25 row_half_mirror {DPPM}")
A("v_mov_b32 v26, s43")
A("v_mul_f32 v24, s41, v24")
A("v_fmac_f32 v26, s41, v25")
A("v_fma_f32 v26, -v24, v24, v26")
A(f"v_fma_f32 v20, -v24, v{fU}, v20")
A("v_rsq_f32 v26, v26")
A(f"v_fma_f32 v20, v20, v26, v{fS}")
A("v_max_f32 v21, 0, v20")
A(f"v_mul_f32_dpp v22, v20, v21 row_shl:4 {DPPM}")
pack4(22, 24, 25, 23)
if DL or GF: A("s_waitcnt lgkmcnt(0)")
for tau in range(4):
    d = 32 + 4*tau
    A(f"v_mfma_f32_16x16x16_bf16 v[{d}:{d+3}], v[{fDF+2*tau}:{fDF+2*tau+1}], v[24:25], 0")
setexec(0x01010101, 0x01010101)
for tau in range(4):
    d = 32 + 4*tau
    A(f"buffer_store_dwordx4 v[{d}:{d+3}], v{fY6A}, {RW}, s{96+tau} offen sc1")
STAMP(8)
A("s_waitcnt vmcnt(0)")
g_store("sc1")
if OPT["uslocal"]: A(f"buffer_store_dword v126, v{fGA}, {RW}, s62 offen sc1")
A("s_branch L_exit")

A.seg(1)
A.label("L_W")
AS = OPT["asplit"]
IS_NA = "s_cmp_lg_u32 s6, 0" if AS else "s_cmp_ge_u32 s4, 4"
IS_A = "s_cmp_eq_u32 s6, 0" if AS else "s_cmp_lt_u32 s4, 4"
sDB = "s4" if AS else "s58"
if OPT["swp"] >= 0:
    X1 = 2*OPT["swp"] + 1
    A(f"s_cmp_eq_u32 s58, {X1}\ns_cselect_b32 s100, 14, s58\ns_cmp_eq_u32 s58, 14\ns_cselect_b32 s101, {X1}, s100\ns_lshr_b32 s100, s101, 1")
    IS_NA = "s_bitcmp1_b32 s101, 0"; IS_A = "s_bitcmp0_b32 s101, 0"; sDB = "s100"
def w_common(first=True):
    kload(RB, 32); kload(RF, 88)
    if first:
        A(f"s_load_dword {sTAG}, s[16:17], 0")
        ids2()
    A(f"v_lshl_or_b32 v{wO}, v{T0}, 10, v{T1}")
    srd(RB, 4194304); A("s_movk_i32 s26, 2048")
def wq_setup(sh):
    A(f"v_lshl_or_b32 v{wQ}, v{T0}, 13, v{T1}")
    A("s_mov_b32 s10, 4194304")
    A(f"s_lshl_b32 s48, s3, {12-sh}")
    SX("s43", 0, ("s6", 8), ("s48", 7, 0, 0))
    SX("s44", 0, ("s43", 13), ("s4", 10), ("s46", 0))
def wq_dma():
    A(f"s_add_u32 m0, s48, {WQL}")
    for u in range(4):
        if u: A(f"s_add_u32 s44, s44, {8*8192-1024}")
        A(f"buffer_load_dwordx4 v{wQ}, {RA}, s44 offen offset:{u*1024} {NT} lds")
def c_setup():
    VX(T2, T3, 0, (5, 1, 10), (0, 5, 2))
if "noW" in OPT["abl"]:
    ids2(); A("s_waitcnt lgkmcnt(0)\ns_branch L_exit")
if "noA" in OPT["abl"]: A("s_branch L_nA")
A(f"{IS_NA}\ns_cbranch_scc1 L_nA")
A(f"s_lshl_b32 s49, {sDB}, 7")
A("s_cmp_lt_u32 s3, 256\ns_cbranch_scc1 L_A1")
A("s_sub_u32 s40, s3, 256")
SX("s61", 0, ("s7", 6), ("s40", 2, 0, 0))
A(f"s_mul_i32 s61, s61, 6144\ns_add_u32 s61, s61, s49\ns_add_u32 s62, s61, {8*6144-1024}")
A(f"s_lshl_b32 s40, s40, 5\ns_add_u32 m0, s40, {PA}")
if OPT["diag"] == 2: STAMP(1)
A("s_waitcnt lgkmcnt(0)")
if OPT["diag"] not in (2, 3, 4): STAMP(1)
A(f"buffer_load_dwordx4 v{wM}, {RC}, s61 offen {NT} lds")
A(f"buffer_load_dwordx4 v{wM}, {RC}, s62 offen offset:1024 {NT} lds")
A(f"s_add_u32 m0, s40, {PA+8192-1024}")
A(f"buffer_load_dwordx4 v{wM}, {RC}, s61 offen offset:1024 {NT} lds")
A(f"buffer_load_dwordx4 v{wM}, {RC}, s62 offen offset:2048 {NT} lds")
TK = OPT["tok"]
AH = OPT["ahold"]
def clears():
    A("v_mov_b32 v32, -1\nv_mov_b32 v33, -1\nv_mov_b32 v34, -1\nv_mov_b32 v35, -1")
    SX("s54", CLR, ("s49", 9), ("s7", 13), ("s60", 0))
    A("v_lshlrev_b32 v38, 4, v0")
    A(f"buffer_store_dwordx4 v[32:35], v38, {RW}, s54 offen sc1")
    A(f"buffer_store_dwordx4 v[32:35], v38, {RW}, s54 offen offset:1024 sc1")
A("s_mov_b32 s60, s40")
if not TK:
    srd(RW, WS_BYTES); clears()
if AH < 8:
    wq_setup(6)
    A("s_barrier")
    wq_dma()
if OPT["diag"] == 3: STAMP(1)
cont(5)
if OPT["diag"] == 4: STAMP(1)
w_common()
if AH == 8: wq_setup(0)
NB = (4 if AH < 8 else 0)
A(f"s_waitcnt vmcnt({NB})")
if OPT["abl"]: STAMP(9)
if STAMPS == 3: STAMP(12)
A("s_barrier")
if AH == 8:
    A("s_barrier")
    wq_dma()
if TK: clears()
tr_setup()
A("s_waitcnt lgkmcnt(0)")
A(f"s_add_u32 {sTAG}, {sTAG}, {TAGC:#x}")
A("s_branch L_B")
A.seg(1.5 if OPT["wfirst"] else 3)
A.label("L_A1")
c_setup()
VX(36, T3, 0, (4, 1, 10), (5, 1, 8), (0, 4, 4))
A("s_movk_i32 s26, 2048")
A("s_waitcnt lgkmcnt(0)")
STAMP(1)
A(f"buffer_load_dword v{wC}, v{T2}, {RE}, s46 offen {SNT}")
A(f"buffer_load_dwordx4 v[{wX}:{wX+3}], v36, {RD}, 0 offen {SNT}")
A(f"buffer_load_dwordx4 v[{wX+4}:{wX+7}], v36, {RD}, 0 offen offset:512 {SNT}")
VX(37, T3, 0, (4, 1, 10), (0, 4, 1))
A(f"s_lshr_b32 s50, s3, 1\ns_add_u32 s50, s50, s49\nv_mov_b32 v{wXS}, 0")
A(f"buffer_load_short_d16_hi v{wXS}, v37, {RD}, s50 offen {SNT}")
if OPT["wfirst"] == 3: cont(4)
if AH < 8: A("s_barrier")
A(f"s_load_dword {sTAG}, s[16:17], 0")
ids2()
tr_setup()
VX(39, 32, 0, (4, 1, 6), (2, 2, 4))
SX("s53", H1G, (sDB, 12), ("s3", 10), ("s46", 0))
A("s_cmp_eq_u32 s7, 0\ns_cselect_b32 s54, 1.0, 0")
unit_pre("0", "s54", PA)
silu_operand(3)
if OPT["abl"]: STAMP(6)
if STAMPS == 3: STAMP(11)
A(f"s_waitcnt vmcnt(0)")
A("v_mov_b32 v36, 0\nv_mov_b32 v37, 0\nv_mov_b32 v38, 0x3f803f80")
for i in range(8):
    A(f"v_dot2c_f32_bf16 v36, v{wX+i}, v38\nv_dot2c_f32_bf16 v37, v{wX+i}, v{wX+i}")
for m in ("quad_perm:[1,0,3,2]", "quad_perm:[2,3,0,1]", "row_half_mirror", "row_mirror"):
    A(f"v_add_f32_dpp v36, v36, v36 {m} {DPPM}\nv_add_f32_dpp v37, v37, v37 {m} {DPPM}")
A("v_mov_b32 v38, v36\nv_mov_b32 v35, v37")
A("v_permlane32_swap_b32 v36, v38\nv_permlane32_swap_b32 v37, v35")
A("v_add_f32 v36, v36, v38\nv_add_f32 v37, v37, v35")
A(f"v_mul_f32 v36, {f32(1.0/512)}, v36\nv_mov_b32 v38, {f32(1e-5)}\nv_fmac_f32 v38, {f32(1.0/512)}, v37")
A("v_fma_f32 v38, -v36, v36, v38\nv_rsq_f32 v38, v38")
A(f"v_sub_f32 v{wXS}, v{wXS}, v36\nv_mul_f32 v{wXS}, v{wXS}, v38")
A(f"s_add_u32 {sTAG}, {sTAG}, {TAGC:#x}")
A(f"v_mov_b32 v{wD+9}, {sTAG}\nv_mov_b32 v{wD+11}, {sTAG}")
if OPT["abl"]: STAMP(7)
if STAMPS == 3: STAMP(12)
A("s_waitcnt lgkmcnt(0)\ns_barrier")
if OPT["abl"]: STAMP(10)
unit_go()
A(f"v_fma_f32 v32, v{wXS}, v{wD+4}, v{wD}")
pack4(32, wD+8, wD+10, 33)
setexec(0x11111111, 0)
A(f"buffer_store_dwordx4 v[{wD+8}:{wD+11}], v39, {RW}, s53 offen sc1")
fullexec()
STAMP(14)
if OPT["diag"] == 1:
    A("s_waitcnt vmcnt(0)"); STAMP(13)
if AH == 8: A("s_barrier")
wq_setup(0)
wq_dma()
w_common(False)
A("s_branch L_B")
A.seg(2)
A.label("L_nA")
wq_setup(6)
R3 = OPT["r3"]
SX("s51", 0, ("s7", 6), ("s3", 3, 0, 0))
if R3 & 1: SX("s52", 384, ("s51", 13), ("s4", 10))
A("s_mul_i32 s51, s51, 6144")
A("s_waitcnt lgkmcnt(0)")
STAMP(1)
if R3 & 2:
    sk = L("n3a")
    A(f"s_cmp_lg_u32 s4, 3\ns_cbranch_scc1 {sk}")
    A(f"buffer_load_dword v{vPF}, v{wM}, {RC}, s51 offen offset:{1024+384}")
    A.label(sk)
if R3 & 1: A(f"buffer_load_dword v{vPF}, v{wQ}, {RA}, s52 offen")
if OPT["wqpf"] == 22:
    sk = L("nh0")
    A(f"s_cmp_lt_u32 s3, 256\ns_cbranch_scc1 {sk}")
wq_dma()
if OPT["wqpf"] == 22: A.label(sk)
MBW = OPT["wmode"] in (1, 2)
MB2 = OPT["wmode"] == 2
MBN = OPT["wmode"] == 0
if OPT["ptouch"] and AS:
    SX("s40", 0, ("s3", 11), ("s4", 10), ("s46", 0))
    A(f"v_lshlrev_b32 v32, 13, v2")
    if OPT["ptouch"] == 1: A("s_barrier")
    A(f"buffer_load_dword v{vPF}, v32, {RA}, s40 offen")
if MBW:
    c_setup()
    A(f"buffer_load_dword v{wC}, v{T2}, {RE}, s46 offen {SNT}")
if MBN:
    A("s_lshl_b32 s42, s3, 4")
    SX("s40", 2048, (sDB, 0, 3, 8)); A("s_add_u32 s51, s51, s40")
    c_setup()
    A(f"buffer_load_dword v{wC}, v{T2}, {RE}, s46 offen {SNT}")
    if OPT["mbwait"] >= 0: A(f"s_waitcnt vmcnt({OPT['mbwait']})")
    else: A("s_barrier")
    for j, o in enumerate((0, 128, 2048, 2048+128)):
        A(f"s_add_u32 m0, s42, {PB + j*8192 - o}")
        A(f"buffer_load_dwordx4 v{wM}, {RC}, s51 offen offset:{o} {NT} lds")
cont(6)
w_common()
tr_setup()
A("s_waitcnt lgkmcnt(0)")
A(f"s_add_u32 {sTAG}, {sTAG}, {TAGC:#x}")
A.label("L_B")
def mw_dma():
    SX("s40", PB, ("s3", 10)); A("s_mov_b32 m0, s40")
    A(f"buffer_load_dwordx4 v{wM}, {RC}, s96 offen {NT} lds")
    A(f"s_add_u32 m0, s40, {8192-128}")
    A(f"buffer_load_dwordx4 v{wM}, {RC}, s96 offen offset:128 {NT} lds")
def mw_compute(vm):
    A(f"ds_read2_b64 v[{wXO}:{wXO+3}], v83 offset0:0 offset1:4\nds_read2_b64 v[{wXO+4}:{wXO+7}], v83 offset0:8 offset1:12")
    unit_pre("s98", "s98", PB)
    A(f"v_mov_b32 v{wD+9}, {sTAG}\nv_mov_b32 v{wD+11}, {sTAG}")
    A(f"s_waitcnt vmcnt({vm}) lgkmcnt(0)\ns_barrier")
    sk = L("nmw")
    A(f"s_cmp_ge_u32 s3, 4\ns_cbranch_scc1 {sk}" if vm == 2 else f"s_cmp_lt_u32 s3, 4\ns_cbranch_scc1 {sk}")
    unit_go()
    A("v_cmp_gt_u32 vcc, 32, v0")
    A(f"v_cndmask_b32 v36, v{wD+4}, v{wD}, vcc")
    pack4(36, wD+8, wD+10, 37)
    setexec(0x11111111, 0x11111111)
    A(f"buffer_store_dwordx4 v[{wD+8}:{wD+11}], v122, {RW}, s97 offen sc1")
    fullexec()
    STAMP(6)
    A.label(sk)
if MBW:
    if MB2: SX("s99", 0, ("s4", 0), ("s4", 2, 0, 2), ("s6", 2))
    else: A("s_mov_b32 s99, s58")
    SX("s96", 0, ("s7", 6), ("s3", 3))
    A("s_mul_i32 s96, s96, 6144")
    SX("s40", 2048, ("s99", 8)); A("s_add_u32 s96, s96, s40")
    if MB2:
        sk = L("nm2")
        A(f"{IS_NA}\ns_cbranch_scc1 {sk}")
        mw_dma()
        A.label(sk)
    SX("s97", MGT, ("s99", 13), ("s3", 0, 2, 10), ("s46", 0))
    SX("s40", 0, ("s99", 2, 0, 3), ("s7", 0))
    A("s_cmp_eq_u32 s40, 16\ns_cselect_b32 s98, 1.0, 0")
    VX(122, 32, 0, (5, 1, 12), (4, 1, 6), (2, 2, 4))
srd(RF, 2048)
SX("s47", 0, ("s4", 19), ("s43", 10), ("s46", 0))
wRW, wRR, wOF, wTA = 14, 15, 72, 108
SX("s40", RED, ("s3", 9)); VX(wRW, 32, "s40", (0, 6, 2))
SX("s40", RED, ("s3", 8)); VX(wRR, 32, "s40", (0, 6, 2))
VX(wOF, 32, 0, (0, 3, 7), (3, 1, 6), (4, 2, 4))
SX("s53", H1G, ("s43", 6))
if TK:
    VX(T3, 32, 0, (0, 6, 7)); A(f"s_movk_i32 s57, {TOK}")
else:
    VX(T3, 32, 0, (0, 2, 12))
    A("s_xor_b32 s57, s6, 1")
    SX("s57", H1G + 4, ("s57", 14), ("s3", 7))
wQA = 73; wQD = 76
VX(wQA, 32, 0, (5, 1, 12), (0, 5, 2))
SX("s56", QG, ("s4", 13), ("s5", 8), ("s3", 7))
A(f"v_add_u32 v{wTA}, s48, v{wTR}")
for t in range(1, 4):
    A(f"v_xor_b32 v{wTA+t}, {t*32:#x}, v{wTA}")
A(f"v_mov_b32 v{wQD+1}, {sTAG}\nv_mov_b32 v{wQD+3}, {sTAG}")
wGA, wCB, wXA, wXAD = 74, 75, 80, 81
tE, tOUT, tBP, tOF, tL16 = 84, 114, 115, 72, 116
SX("s59", Y6, ("s5", 15), ("s4", 12))
A("s_cmp_eq_u32 s3, 7\ns_cselect_b32 s40, 0, -1")
A("v_mov_b32 v118, s40\nv_mov_b32 v119, s40\nv_lshlrev_b32 v117, 3, v0")
SX("s41", 0, ("s3", 9), ("s59", 0))
VX(T1, 32, 0, (0, 4, 6), (4, 2, 4))
SX("s51", OG, ("s4", 14), ("s43", 5))
SX("s54", SG, ("s4", 9), ("s43", 7, 0, 7))
A(f"v_lshlrev_b32 v{T0}, 2, v1\nv_xor_b32 v{T0}, v0, v{T0}\nv_and_b32 v{T0}, 7, v{T0}\nv_lshlrev_b32 v{T0}, 3, v{T0}")
A(f"v_lshrrev_b32 v32, 5, v0\nv_lshl_or_b32 v{T0}, v32, 6, v{T0}")
VX(wXAD, 32, 0, (5, 1, 6), (2, 2, 4), (4, 1, 3))
SX("s60", X4, ("s7", 11), ("s3", 10), ("s6", 14), ("s4", 7))
A(f"s_add_u32 s52, s60, {Y4-X4}")
A("v_and_b32 v32, 1, v0\nv_lshlrev_b32 v32, 4, v32\nv_mov_b32 v33, 0x3f80\nv_lshlrev_b32 v32, v32, v33")
A("v_lshrrev_b32 v33, 2, v2\nv_sub_u32 v33, v1, v33\nv_bfe_u32 v34, v0, 1, 1\nv_lshl_or_b32 v33, v33, 1, v34")
for r in range(2):
    A(f"v_cmp_eq_u32 vcc, {r}, v33")
    A(f"v_cndmask_b32 v{tE+r}, 0, v32, vcc")
    A(f"v_mov_b32 v{tE+6+r}, v{tE+r}")
for r in (2, 3, 4, 5):
    A(f"v_mov_b32 v{tE+r}, 0")
VX(38, 33, 0, (0, 1, 3), (5, 1, 1), (4, 1, 2))
SX("s40", 0, ("s4", 0, 2, 4)); A(f"v_add_u32 v{tOUT}, s40, v38")
SX("s40", 0, ("s4", 2, 0, 7)); A(f"v_lshl_add_u32 v{tBP}, v{tOUT}, 1, s40")
SX("s62", 0, ("s4", 2, 0, 10), ("s5", 6))
A(f"v_lshlrev_b32 v{tL16}, 4, v0")
SX("s49", X4, ("s5", 10))
A("s_add_u32 s50, s49, 16384")
SX("s55", ST5, ("s4", 8), ("s7", 5), ("s6", 3))
VX(113, 33, 0, (5, 1, 4), (4, 1, 2))
SX("s61", MGT, ("s7", 12), ("s3", 11))
SX("s40", MGT + 3*32768, ("s5", 11))
A("s_cmp_eq_u32 s3, 2\ns_cselect_b32 s61, s40, s61\ns_cselect_b32 s40, 0, 0x10000\ns_add_u32 s63, s61, s40")
VX(120, 33, 0, (5, 1, 10), (0, 5, 1))
SX("s42", 0, ("s7", 7), ("s3", 6))
A(f"v_mov_b32 v{wXA}, 0")
def blk_frags(off):
    for t in range(4):
        for h in range(2):
            r = wWF + 4*t + 2*h
            A(f"ds_read_b64_tr_b16 v[{r}:{r+1}], v{wTA+t} offset:{off + h*2048}")
def h1_loads():
    tagged_loads(16, wOF, "s53")
    if not TK: A(f"buffer_load_dword v33, v{T3}, {RW}, s57 offen sc1")
NH = 2 if TK else 3
if MBN:
    VX(39, 32, 0, (5, 1, 12), (4, 1, 6), (2, 2, 4))
    sk = L("nmb")
    A(f"{IS_A}\ns_cbranch_scc1 {sk}")
    SX("s96", MGT, (sDB, 0, 3, 13), ("s3", 2, 0, 16), ("s3", 0, 2, 10), ("s46", 0))
    SX("s40", 0, (sDB, 2, 1, 3), ("s3", 2, 0, 4), ("s7", 0))
    A("s_cmp_eq_u32 s40, 16\ns_cselect_b32 s97, 1.0, 0")
    SX("s98", PB, ("s3", 2, 0, 14))
    silu_operand(4)
    A.label(sk)
def mb_blk(early):
    sk = L("nmc")
    A(f"{IS_A}\ns_cbranch_scc1 {sk}")
    VX(39, 32, 0, (5, 1, 12), (4, 1, 6), (2, 2, 4))
    unit_pre("s97", "s97", "s98")
    A(f"v_mov_b32 v{wD+9}, {sTAG}\nv_mov_b32 v{wD+11}, {sTAG}")
    if early: A(f"s_waitcnt vmcnt({NH}) lgkmcnt(0)\ns_barrier")
    unit_go()
    A("v_cmp_gt_u32 vcc, 32, v0")
    A(f"v_cndmask_b32 v32, v{wD+4}, v{wD}, vcc")
    pack4(32, wD+8, wD+10, 34)
    setexec(0x11111111, 0x11111111)
    A(f"buffer_store_dwordx4 v[{wD+8}:{wD+11}], v39, {RW}, s96 offen sc1")
    fullexec()
    STAMP(6)
    A.label(sk)
if TK:
    sk = L("ntk")
    A(f"{IS_NA}\ns_cbranch_scc1 {sk}\ns_cmp_lt_u32 s3, 4\ns_cbranch_scc1 {sk}")
    A("s_waitcnt vmcnt(0)")
    SX("s40", TOK - 16, (sDB, 10), ("s46", 0), ("s3", 2))
    A(f"s_mov_b64 exec, 1\nbuffer_store_dword v{wQD+1}, v0, {RW}, s40 offen sc1")
    fullexec()
    A.label(sk)
A(f"s_waitcnt vmcnt({OPT['h1at']})")
h1_loads()
if MBN and OPT["mbearly"]: mb_blk(True)
if MB2:
    sk = L("nm3")
    A(f"{IS_NA}\ns_cbranch_scc1 {sk}")
    mw_compute(2)
    A.label(sk)
A(f"s_waitcnt vmcnt({NH})")
if MBW:
    sk = L("nsl")
    A(f"{IS_A}\ns_cbranch_scc1 {sk}")
    silu_operand(NH)
    A.label(sk)
blk_frags(WQL)
STAMP(3)
if OPT["abl"] and "toq" not in OPT["abl"]: A("s_branch L_exit")
sk = L("nw0"); sk2 = L("nw1")
A(f"{IS_NA}\ns_cbranch_scc1 {sk if MBN and OPT['mbearly'] else sk2}")
if MB2: A(f"s_branch {sk}")
A.label(sk2)
A("s_waitcnt vmcnt(0)")
A.label(sk)
poll(h1_loads, lambda: tagged_chk([16], 33, None if TK else 33), first_issued=True, first_wait=1, sleep=OPT["s2"])
STAMP(4)
if OPT["diag"] == 1:
    A(f"s_waitcnt lgkmcnt(0)\ns_mul_i32 s40, {sCNT}, 10\ns_add_u32 s88, s64, s40")
tagged_pack(16)
A("s_waitcnt lgkmcnt(0)")
def blk_mfma(op):
    for t in range(4):
        mfma(wD + 4*t, op, wWF + 4*t, None)
def blk_reduce():
    A(f"v_permlane16_swap_b32 v{wD}, v{wD+4}\nv_permlane16_swap_b32 v{wD+8}, v{wD+12}")
    A(f"v_add_f32 v{wD}, v{wD}, v{wD+4}\nv_add_f32 v{wD+8}, v{wD+8}, v{wD+12}")
    A(f"ds_write2st64_b32 v{wRW}, v{wD}, v{wD+8} offset0:0 offset1:1")
    A("s_waitcnt lgkmcnt(0)\ns_barrier")
def blk_final():
    for i in range(4):
        A(f"ds_read2st64_b32 v[{32+2*i}:{33+2*i}], v{wRR} offset0:{4*i} offset1:{4*i+2}")
    A("s_waitcnt lgkmcnt(0)")
    A("v_add_f32 v32, v32, v33\nv_add_f32 v34, v34, v35\nv_add_f32 v36, v36, v37\nv_add_f32 v38, v38, v39")
    A("v_add_f32 v32, v32, v34\nv_add_f32 v36, v36, v38\nv_add_f32 v32, v32, v36")
blk_mfma(16)
rowsum([wD, wD+4, wD+8, wD+12])
blk_reduce()
sk = L("nq")
A(f"s_cmp_ge_u32 s3, 2\ns_cbranch_scc1 {sk}")
blk_final()
pack4(32, wQD, wQD+2, 33)
setexec(0x11111111, 0x11111111)
A(f"buffer_store_dwordx4 v[{wQD}:{wQD+3}], v{wQA}, {RW}, s56 offen")
fullexec()
A.label(sk)
STAMP(5)
if OPT["abl"]: A("s_branch L_exit")
if MBN and not OPT["mbearly"]: mb_blk(False)
if TK:
    sk = L("ntc")
    A(f"s_cmp_lg_u32 s3, 3\ns_cbranch_scc1 {sk}")
    A(f"buffer_load_dwordx4 v[32:35], v{T3}, {RW}, s57 offen sc1")
    A.label(sk)
A("s_barrier")
def o_loads():
    A(f"buffer_load_dwordx4 v[104:107], v{T1}, {RW}, s51 offen sc1")
def mc_loads():
    tagged_loads(128, wOF, "s61"); tagged_loads(136, wOF, "s63")
def wo_dma():
    if R3 & 4:
        SX("s40", 384, ("s4", 19), ("s5", 15), ("s3", 12))
        A(f"v_lshlrev_b32 v39, 10, v1\nbuffer_load_dword v{vPF}, v39, {RB}, s40 offen")
    A(f"s_add_u32 m0, s48, {WOL}")
    for u in range(4):
        if u: A(f"s_add_u32 s47, s47, {8*1024-1024}")
        A(f"buffer_load_dwordx4 v{wO}, {RB}, s47 offen offset:{u*1024} {NT} lds")
if MBW:
    sk = L("nm4")
    if MB2: A(f"{IS_A}\ns_cbranch_scc1 {sk}")
    mw_dma()
    A.label(sk)
NCW = 2 if MB2 else 3
sk = L("nc0")
A(f"s_cmp_ge_u32 s3, {NCW}\ns_cbranch_scc1 {sk}")
MCE = MB2 or (not MBW and (not MBN or OPT['mbearly']))
if MCE: mc_loads()
A(f"s_cmp_lg_u32 s58, 0\ns_cbranch_scc1 {sk}")
A(f"buffer_load_short_d16_hi v{wXA}, v120, {RD}, s42 offen")
A.label(sk)
A(f"buffer_store_dwordx2 v[118:119], v117, {RW}, s41 offen sc1")
if not TK: o_loads()
WOE = MBW and OPT["wo_mb"]
if MBW:
    if WOE:
        A("s_barrier"); wo_dma()
    sk5 = L("nm5")
    if MB2: A(f"{IS_A}\ns_cbranch_scc1 {sk5}")
    mw_compute(5 if WOE else 1)
    A.label(sk5)
if OPT["gtrg"]:
    A("s_cmp_lg_u32 s3, 3\ns_cbranch_scc1 L_trgd")
    if OPT["gmask"] == 7:
        VX(39, 32, 0, (0, 3, 7)); A(f"s_movk_i32 s40, {TRG}")
    else:
        VX(39, 32, 0, (0, 2, 7)); A(f"s_movk_i32 s40, {TRG + 512}")
    A(f"s_mov_b32 {sCNT}, 0")
    A.label("L_trg")
    A(f"buffer_load_dword v33, v39, {RW}, s40 offen sc1")
    A("s_waitcnt vmcnt(0)")
    A(f"v_cmp_ne_u32 vcc, {sTAG}, v33")
    A("s_cbranch_vccz L_trgd")
    A(f"s_sleep 2\ns_add_u32 {sCNT}, {sCNT}, 1\ns_cmp_lt_u32 {sCNT}, {OPT['trgmax']}\ns_cbranch_scc1 L_trg")
    A.label("L_trgd")
    A("s_barrier")
if not WOE: wo_dma()
if TK:
    sk = L("ntd")
    A(f"s_cmp_lg_u32 s3, 3\ns_cbranch_scc1 {sk}")
    tok_wait(T3, "s57", 32, 5 + (1 if R3 & 4 else 0))
    A.label(sk)
    A("s_barrier")
    o_loads()
sk = L("nc1")
A(f"s_cmp_ge_u32 s3, {NCW}\ns_cbranch_scc1 {sk}")
if not MCE: A("s_waitcnt vmcnt(2)")
poll(mc_loads, lambda: tagged_chk([128, 136], 33), first_issued=MCE, first_wait=4+TK, sleep=2)
tagged_pack(128); tagged_pack(136)
for i in range(2):
    for t in range(2):
        mfma(wD + 8*i + 4*t, 128 + 8*i, tE + 4*t, None)
rowsum([wD, wD+4, wD+8, wD+12])
A(f"v_permlane16_swap_b32 v{wD}, v{wD+4}\nv_permlane16_swap_b32 v{wD+8}, v{wD+12}")
A(f"v_add_f32 v{wGA}, v{wD}, v{wD+4}\nv_add_f32 v{wCB}, v{wD+8}, v{wD+12}")
STAMP(2)
A.label(sk)
A(f"s_waitcnt vmcnt({TK})")
blk_frags(WOL)
STAMP(7)
wF = 100
sg_load = lambda: A(f"buffer_load_dwordx2 v[16:17], v{T0}, {RW}, s54 offen sc1")
await_any(sg_load, lambda: A("v_cmp_o_f32 vcc, v17, v17"), OPT["s1"])
poll(sg_load, lambda: A("v_cmp_u_f32 vcc, v17, v17"), first_issued=True, sleep=2*OPT["s2"])
o_loads()
A(f"v_max_f32_dpp v18, v16, v16 quad_perm:[1,0,3,2] {DPPM}")
A(f"v_max_f32_dpp v18, v18, v18 quad_perm:[2,3,0,1] {DPPM}")
A(f"v_max_f32_dpp v18, v18, v18 row_half_mirror {DPPM}")
A("v_sub_f32 v16, v16, v18\nv_exp_f32 v16, v16\nv_mul_f32 v17, v16, v17")
for m in ("quad_perm:[1,0,3,2]", "quad_perm:[2,3,0,1]", "row_half_mirror"):
    A(f"v_add_f32_dpp v17, v17, v17 {m} {DPPM}")
A(f"v_rcp_f32 v17, v17\nv_mul_f32 v{wF}, v16, v17")
STAMP(8)
poll(o_loads, lambda: chk_empty4(104, 33), first_issued=True, first_wait=0)
STAMP(9)
A("s_waitcnt lgkmcnt(0)")
blk_mfma(104)
for t in range(4):
    A(f"v_mul_f32_dpp v{wD+4*t}, v{wF}, v{wD+4*t} row_newbcast:0 {DPPM}")
for r in range(1, 4):
    for t in range(4):
        A(f"v_fmac_f32_dpp v{wD+4*t}, v{wF}, v{wD+4*t+r} row_newbcast:{r} {DPPM}")
blk_reduce()
A("s_cmp_gt_u32 s3, 2\ns_cbranch_scc1 L_exit")
A("s_cmp_eq_u32 s3, 2\ns_cbranch_scc1 L_fin")
blk_final()
A(f"v_fma_f32 v32, v32, v{wGA}, v{wXA}")
A(f"v_mul_f32 v36, v32, v{wCB}")
A(f"v_mov_b32_dpp v33, v32 quad_perm:[1,1,3,3] {DPPM}")
A(f"v_mov_b32_dpp v37, v36 quad_perm:[1,1,3,3] {DPPM}")
A("v_cvt_pk_bf16_f32 v34, v32, v33\nv_cvt_pk_bf16_f32 v38, v36, v37")
A(f"v_mov_b32_dpp v35, v34 quad_perm:[2,2,2,2] {DPPM}")
A(f"v_mov_b32_dpp v39, v38 quad_perm:[2,2,2,2] {DPPM}")
setexec(0x11111111, 0x11111111)
A(f"buffer_store_dwordx2 v[38:39], v{wXAD}, {RW}, s52 offen sc1")
A(f"buffer_store_dwordx2 v[34:35], v{wXAD}, {RW}, s60 offen sc1")
STAMP(10)
A("s_branch L_exit")
A.label("L_fin")
if MB2:
    poll(lambda: tagged_loads(128, wOF, "s61"), lambda: tagged_chk([128], 33), sleep=2)
    tagged_pack(128)
    for t in range(2):
        mfma(wD + 4*t, 128, tE + 4*t, None)
    rowsum([wD, wD+4])
    A(f"v_permlane16_swap_b32 v{wD}, v{wD+4}")
    A(f"v_add_f32 v{wGA}, v{wD}, v{wD+4}")
def x4_loads():
    A(f"buffer_load_dwordx4 v[16:19], v{tOF}, {RW}, s49 offen sc1")
    A(f"buffer_load_dwordx4 v[20:23], v{tOF}, {RW}, s50 offen sc1")
def x4_chk():
    A("v_max3_u32 v33, v16, v17, v18\nv_max3_u32 v34, v19, v20, v21\nv_max3_u32 v33, v33, v22, v23\nv_max_u32 v33, v33, v34\nv_cmp_eq_u32 vcc, -1, v33")
poll(x4_loads, x4_chk)
STAMP(11)
for hp in range(2):
    for t in range(2):
        mfma(wD + 4*t, 16 + 4*hp, tE + 4*t, None if hp == 0 else wD + 4*t)
rowsum([wD, wD+4])
A(f"v_permlane16_swap_b32 v{wD}, v{wD+4}")
A(f"v_add_f32 v42, v{wD}, v{wD+4}")
A("v_mov_b32 v43, v42\nv_mul_f32 v44, v42, v42")
A("v_permlane16_swap_b32 v43, v44")
A("v_add_f32 v43, v43, v44")
for m in ("quad_perm:[1,0,3,2]", "quad_perm:[2,3,0,1]", "row_half_mirror", "row_mirror"):
    A(f"v_add_f32_dpp v43, v43, v43 {m} {DPPM}")
setexec(0x00010001, 0x00010001)
A(f"buffer_store_dword v43, v113, {RW}, s55 offen")
fullexec()
STAMP(12)
A(f"ds_bpermute_b32 v42, v{tBP}, v42\nds_bpermute_b32 v{wGA}, v{tBP}, v{wGA}")
def y6_loads():
    for i in range(4):
        A(f"buffer_load_dwordx4 v[{16+4*i}:{19+4*i}], v{tL16}, {RW}, s59 offen offset:{1024*i} sc1")
def y6_chk():
    for r in range(4):
        A(f"v_add_f32 v{16+r}, v{16+r}, v{20+r}\nv_add_f32 v{24+r}, v{24+r}, v{28+r}")
    for r in range(4):
        A(f"v_add_f32 v{16+r}, v{16+r}, v{24+r}")
    A("v_permlane32_swap_b32 v16, v17\nv_permlane32_swap_b32 v18, v19")
    A("v_add_f32 v16, v16, v17\nv_add_f32 v18, v18, v19")
    A("v_permlane16_swap_b32 v16, v18")
    A("v_add_f32 v16, v16, v18")
    A("v_cmp_u_f32 vcc, v16, v16")
await_any(lambda: A(f"buffer_load_dword v16, v{tL16}, {RW}, s59 offen sc1"), lambda: A("v_cmp_o_f32 vcc, v16, v16"), 2)
poll(y6_loads, y6_chk)
STAMP(13)
for m in ("row_ror:8", "row_ror:4", "row_ror:2"):
    A(f"v_add_f32_dpp v16, v16, v16 {m} {DPPM}")
A("s_waitcnt lgkmcnt(0)")
A(f"v_fma_f32 v16, v16, v{wGA}, v42")
A("v_cvt_pk_bf16_f32 v16, v16, v16")
setexec(0x00030003, 0x00030003)
A(f"buffer_store_short v16, v{tOUT}, {RF}, s62 offen")
A("s_cmp_lg_u32 s2, 128\ns_cbranch_scc1 L_exit")
A(f"s_sub_u32 s40, {sTAG}, {TAGC-1:#x}")
A("v_mov_b32 v17, s40\nv_mov_b32 v18, 0")
A("s_mov_b64 exec, 1")
A(f"buffer_store_dword v17, v18, {RW}, 0 offen sc1")

A("s_branch L_exit")
A.seg(40)
A.label("L_exit")
if STAMPS == 1:
    STAMP(15)
    A("s_waitcnt lgkmcnt(0)")
    A("s_mov_b64 exec, 1")
    SX("s40", DBG, ("s2", 9), ("s3", 6))
    A("v_mov_b32 v0, 0")
    for q in range(4):
        for i in range(4):
            A(f"v_mov_b32 v{4+4*q+i}, s{64+2*(4*q+i)}")
        A(f"buffer_store_dwordx4 v[{4+4*q}:{7+4*q}], v0, {RW}, s40 offen offset:{16*q}")
if STAMPS == 3:
    STAMP(15)
    A("s_waitcnt lgkmcnt(0)")
    SX("s40", 0, ("s2", 3), ("s3", 0))
    A(f"s_cmp_lg_u32 s40, {OPT['dwg']*8 + OPT['dwv']}\ns_cbranch_scc1 L_end")
    A(f"s_sub_u32 s40, s{64+2*OPT['db']}, s{64+2*OPT['da']}")
    A(f"s_mul_i32 s40, s40, {OPT['dm']}")
    A("s_min_u32 s40, s40, 30000")
    A.label("L_spin")
    A("s_memrealtime s[42:43]\ns_waitcnt lgkmcnt(0)\ns_sub_u32 s41, s42, s94\ns_cmp_lt_u32 s41, s40\ns_cbranch_scc1 L_spin")
if STAMPS == 2:
    STAMP(15)
    A("s_load_dwordx2 s[32:33], s[0:1], 96")
    A("s_mov_b32 s34, 256\ns_mov_b32 s35, 0x00020000")
    A("s_waitcnt lgkmcnt(0)")
    fullexec()
    A("v_mov_b32 v4, 0\nv_mbcnt_lo_u32_b32 v5, -1, 0\nv_lshlrev_b32 v5, 2, v5")
    A("s_cmp_ge_u32 s2, 128\ns_cbranch_scc1 L_dw")
    A("s_cmp_lg_u32 s3, 0\ns_cbranch_scc1 L_end")
    A("s_not_b32 s40, s64\nv_writelane_b32 v4, s40, 0")
    for i, st in enumerate([9, 2, 5, 7, 10, 11, 8]):
        A(f"v_writelane_b32 v4, s{64+2*st}, {i+1}")
    A("s_branch L_dd")
    A.label("L_dw")
    A("s_cmp_lg_u32 s3, 2\ns_cbranch_scc1 L_end")
    for i, st in enumerate([0, 3, 4, 5, 7, 9, 11, 15]):
        A(f"v_writelane_b32 v4, s{64+2*st}, {i+8}")
    A.label("L_dd")
    A("s_mov_b64 exec, 0xffff")
    A("buffer_atomic_umax v4, v5, s[32:35], 0 offen")
A.label("L_end")
A("s_endpgm")
A.label("L_codeend")
A.raw(f".fill (16384 - (L_codeend - {NAME}_kernel)) / 4, 4, 0xbf810000")
A.raw(f""".section .rodata,"a"
.p2align 6
.amdhsa_kernel {NAME}_kernel
  .amdhsa_next_free_vgpr 152
  .amdhsa_next_free_sgpr 102
  .amdhsa_accum_offset 152
  .amdhsa_group_segment_fixed_size 0
  .amdhsa_kernarg_size 112
  .amdhsa_user_sgpr_count 2
  .amdhsa_user_sgpr_kernarg_segment_ptr 1
  .amdhsa_system_sgpr_workgroup_id_x 1
  .amdhsa_float_denorm_mode_32 3
.end_amdhsa_kernel""")
sys.stdout.write(A.text())
sys.stderr.write(f"instrs={A.ninstr} nops={A.nops}\n")
```

```python
import sys, math, struct
sys.path.insert(0, "work")
from asmlib import Asm

NAME = "adaLN_cond__sliding_block_cached__glu_gated_reglu__decode"
OPT = dict(stamps=0, nt="nt", limit=20000, refresh=255, psleep=0, pf=4, pfnt="", smallnt="", slow=0, gtrg=0, gw=7, gmask=7, fpf=0, wo_after_c=0, fpfbar=1, fpfl="", uslocal=1, qn=4, trg=0, mb_at="kv", touch=0, ltouch=1, ahold=4, wqpf=0, wqpfl="", ehold=0, depth=0, ffn_first=0, ser=1, obar=1, gu_b1=0, dn_late=0, dn_p=0, diag=0, rot=7, vt=1, r3=7, swp=-1, ns=16, help=0, helpbar=1, tokl=7, asplit=1, wmode=0, ptouch=0, nv1=3, wfirst=3, tok=1, gufirst=1, mfb1=1, mbearly=1, ftouch=0, ftouch2=0, mbg=3, mbwait=-1, g_b1=0, wo_mb=1, h1at=1, depth_until=16, qpipe=1, s1=6, s2=1, sent=1, trgmax=24, drole=0, dwg=10, dwv=1, da=0, db=15, dm=20, kvbar=1, abl="")
for a in sys.argv[1:]:
    k, v = a.split("=")
    OPT[k] = int(v) if v.lstrip("-").isdigit() else v
STAMPS = OPT["stamps"]; NT = OPT["nt"] if OPT["nt"] != "-" else ""
LIMIT = OPT["limit"]; REFRESH = OPT["refresh"]; SNT = OPT["smallnt"]

def f32(x): return "0x%08x" % struct.unpack("<I", struct.pack("<f", x))[0]

TRG = 0x1000; TOK = 0x4000; H1G = 0x8000; QG = 0x10000; MGT = 0x20000
CLR = 0x100000
OG = CLR; MG = CLR + 0x20000; X4 = CLR + 0x30000; Y4 = CLR + 0x38000
G5 = CLR + 0x40000; SG = CLR + 0x5C000; ST5 = CLR + 0x5D000; US5 = CLR + 0x60000
Y6 = 0x180000; DBG = 0x400000
WS_BYTES = 0x800000
TAGC = 0x9E3779B9
VREG = 65536; PA = 131072; XL = 147456; QL = XL + 1024; PL = QL + 2048; MISC = PL + 2048
FG = 0; FD = 32768; YL0 = 131072
WQL = 0; WOL = 32768; PB = 65536; RED = XL + 1024
LDS_BYTES = MISC + 256
C1 = 128 ** -0.5 * math.log2(math.e)

A = Asm()
hdr = open(f"cdna_kernels/{NAME}.s.ref").read().split("\n")
for ln in hdr:
    if ln.startswith("; @launch"):
        A.raw(f"; @launch grid=(256,1,1) block=(512,1,1) lds={LDS_BYTES}")
        break
    A.raw(ln)
A.raw('.amdgcn_target "amdgcn-amd-amdhsa--gfx950"')
A.raw(f".text\n.globl {NAME}_kernel\n.p2align 8\n.type {NAME}_kernel,@function\n{NAME}_kernel:")

RA, RB, RW, RC, RD, RE, RF = "s[8:11]", "s[12:15]", "s[16:19]", "s[20:23]", "s[24:27]", "s[28:31]", "s[32:35]"
sTAG, sCNT, sT = "s36", "s37", "s45"
def STAMP(n):
    if STAMPS:
        A(f"s_memrealtime s[{64+2*n}:{65+2*n}]")
DPPM = "row_mask:0xf bank_mask:0xf"
lbl = [0]
def L(p):
    lbl[0] += 1
    return f"L_{p}_{lbl[0]}"
def srd(r, nbytes):
    b = int(r[2:r.index(":")])
    A((f"s_movk_i32 s{b+2}, {nbytes}" if nbytes < 32768 else f"s_mov_b32 s{b+2}, {nbytes}") + f"\ns_mov_b32 s{b+3}, s11")
def kload(r, off):
    b = int(r[2:r.index(":")])
    A(f"s_load_dwordx2 s[{b}:{b+1}], s[0:1], {off}")

def SX(dst, const, *terms):
    first = True
    for t in terms:
        src, rs, w, ls = (t[0], 0, 0, t[1]) if len(t) == 2 else t
        d = dst if first else sT
        cur = src
        if w:
            if rs == 0: A(f"s_and_b32 {d}, {cur}, {(1<<w)-1}")
            else: A(f"s_bfe_u32 {d}, {cur}, {(w<<16)|rs:#x}")
            cur = d
        elif rs:
            A(f"s_lshr_b32 {d}, {cur}, {rs}"); cur = d
        if first:
            if ls: A(f"s_lshl_b32 {d}, {cur}, {ls}")
            elif cur != d: A(f"s_mov_b32 {d}, {cur}")
        else:
            if 1 <= ls <= 4: A(f"s_lshl{ls}_add_u32 {dst}, {cur}, {dst}")
            else:
                if ls: A(f"s_lshl_b32 {sT}, {cur}, {ls}"); cur = sT
                A(f"s_add_u32 {dst}, {dst}, {cur}")
        first = False
    if const: A(f"s_add_u32 {dst}, {dst}, {const:#x}")
def VX(dst, tmp, add, *terms):
    first = True
    for rs, w, ls in terms:
        if rs == 4 and w == 2: cur = "v1"
        elif rs == 0 and w == 4: cur = "v2"
        elif rs == 0 and w == 6: cur = "v0"
        else:
            d = f"v{dst}" if first else f"v{tmp}"
            if rs + w == 6: A(f"v_lshrrev_b32 {d}, {rs}, v0")
            elif rs == 0: A(f"v_and_b32 {d}, {(1<<w)-1}, v0")
            else: A(f"v_bfe_u32 {d}, v0, {rs}, {w}")
            cur = d
        if first:
            if ls: A(f"v_lshlrev_b32 v{dst}, {ls}, {cur}")
            elif cur != f"v{dst}": A(f"v_mov_b32 v{dst}, {cur}")
        else:
            if ls: A(f"v_lshl_or_b32 v{dst}, {cur}, {ls}, v{dst}")
            else: A(f"v_or_b32 v{dst}, {cur}, v{dst}")
        first = False
    if add: A(f"v_add_u32 v{dst}, {add}, v{dst}")

def cont(n):
    t = L("c")
    A(f"s_branch {t}")
    A.seg(n); A.label(t)
def await_any(load, valid, sleep):
    if not OPT["sent"]: return
    top, done = L("aw"), L("awd")
    A(f"s_mov_b32 {sCNT}, 0")
    A.label(top)
    load()
    A("s_waitcnt vmcnt(0)")
    valid()
    A(f"s_cbranch_vccnz {done}")
    A(f"s_sleep {sleep}\ns_add_u32 {sCNT}, {sCNT}, 1\ns_cmp_lt_u32 {sCNT}, 64\ns_cbranch_scc1 {top}")
    A.label(done)
def poll(loads, check, first_issued=False, first_wait=0, sleep=0):
    top, done, chk = L("poll"), L("got"), L("chk")
    A(f"s_mov_b32 {sCNT}, 0")
    if first_issued:
        A(f"s_waitcnt vmcnt({first_wait})")
        A(f"s_branch {chk}")
    A.label(top)
    loads()
    A("s_waitcnt vmcnt(0)")
    if first_issued:
        A.label(chk)
    check()
    A(f"s_cbranch_vccz {done}")
    if sleep: A(f"s_sleep {sleep}")
    A(f"s_add_u32 {sCNT}, {sCNT}, 1")
    A(f"s_and_b32 {sT}, {sCNT}, {REFRESH}\ns_cbranch_scc1 {top}")
    A("buffer_wbl2 sc1")
    A(f"s_cmp_lt_u32 {sCNT}, {LIMIT}\ns_cbranch_scc1 {top}")
    A.label(done)
def chk_empty4(r, tmp):
    A(f"v_max3_u32 v{tmp}, v{r}, v{r+1}, v{r+2}\nv_max_u32 v{tmp}, v{tmp}, v{r+3}\nv_cmp_eq_u32 vcc, -1, v{tmp}")
def pack4(src, pk, pk2, tmp):
    A(f"v_mov_b32_dpp v{tmp}, v{src} quad_perm:[1,1,3,3] {DPPM}")
    A(f"v_cvt_pk_bf16_f32 v{pk}, v{src}, v{tmp}")
    A(f"v_mov_b32_dpp v{pk2}, v{pk} quad_perm:[2,2,2,2] {DPPM}")
def setexec(lo, hi):
    A(f"s_mov_b32 exec_lo, {lo:#x}\ns_mov_b32 exec_hi, {hi:#x}")
def fullexec():
    A("s_mov_b64 exec, -1")
def mfma(d, a, b, c):
    cc = "0" if c is None else f"v[{c}:{c+3}]"
    A(f"v_mfma_f32_16x16x32_bf16 v[{d}:{d+3}], v[{a}:{a+3}], v[{b}:{b+3}], {cc}")
def rowsum(ds):
    for d in ds: A(f"v_add_f32 v{d}, v{d}, v{d+1}\nv_add_f32 v{d+2}, v{d+2}, v{d+3}")
    for d in ds: A(f"v_add_f32 v{d}, v{d}, v{d+2}")
def code_prefetch(tmp, dst):
    sk = L("npf")
    A(f"s_cmp_lt_u32 s3, 6\ns_cbranch_scc1 {sk}")
    A("s_and_b32 s38, s38, 0xffffff00")
    A(f"v_lshlrev_b32 v{tmp}, 7, v0")
    A(f"s_and_b32 s40, s3, 1\ns_lshl_b32 s40, s40, 13")
    A(f"v_add_u32 v{tmp}, s40, v{tmp}")
    if not OPT["pf"]: A(f"v_mov_b32 v{tmp}, 0")
    A(f"global_load_dword v{dst}, v{tmp}, s[38:39] {OPT['pfnt']}")
    A.label(sk)

wM, wQ, wO, wTR, T0, T1, T2, T3, vPF = 3, 4, 5, 6, 7, 8, 9, 10, 11
wC = 12; wXS = 13; wX = 16; wXO = 24; wWF = 40; wD = 56
def swz_chunk(dst):
    A(f"v_lshlrev_b32 v{dst}, 1, v1\nv_xor_b32 v{dst}, v0, v{dst}\nv_and_b32 v{dst}, 7, v{dst}\nv_lshlrev_b32 v{dst}, 4, v{dst}")
def unit_dma(srdr, s0, s1, base):
    A(f"s_add_u32 m0, s42, {base}")
    A(f"buffer_load_dwordx4 v{wM}, {srdr}, {s0} offen {NT} lds")
    A(f"s_add_u32 m0, s42, {base+8192}")
    A(f"buffer_load_dwordx4 v{wM}, {srdr}, {s1} offen {NT} lds")
def tr_setup():
    VX(wTR, 32, 0, (2, 4, 7), (3, 2, 5), (0, 2, 3))
    SX("s40", XL, ("s3", 0, 2, 8))
    VX(82, 32, "s40", (0, 6, 2))
    VX(83, 32, "s40", (2, 1, 7), (4, 2, 3))
def silu_operand(cnt):
    A(f"s_waitcnt vmcnt({cnt})")
    A(f"v_lshlrev_b32 v32, 16, v{wC}\nv_and_b32 v33, 0xffff0000, v{wC}")
    A(f"v_mul_f32 v34, {f32(-math.log2(math.e))}, v32\nv_mul_f32 v35, {f32(-math.log2(math.e))}, v33")
    A("v_exp_f32 v34, v34\nv_exp_f32 v35, v35")
    A("v_add_f32 v34, 1.0, v34\nv_add_f32 v35, 1.0, v35")
    A("v_rcp_f32 v34, v34\nv_rcp_f32 v35, v35")
    A("v_mul_f32 v32, v32, v34\nv_mul_f32 v33, v33, v35")
    A("v_cvt_pk_bf16_f32 v32, v32, v33")
    A("ds_write_b32 v82, v32")
    A("s_waitcnt lgkmcnt(0)")
    A(f"ds_read2_b64 v[{wXO}:{wXO+3}], v83 offset0:0 offset1:4\nds_read2_b64 v[{wXO+4}:{wXO+7}], v83 offset0:8 offset1:12")
def unit_pre(s_c0, s_c1, base):
    SX("s40", 0, ("s3", 0, 2, 5)); A(f"v_xor_b32 v112, s40, v{wTR}\nv_add_u32 v112, {base}, v112")
    for i in range(4):
        A(f"v_mov_b32 v{wD+i}, {s_c0}\nv_mov_b32 v{wD+4+i}, {s_c1}")
def unit_go():
    if STAMPS: A("s_waitcnt lgkmcnt(0)")
    for k in range(2):
        for seg in range(2):
            for h in range(2):
                r = wWF + seg*8 + k*4 + h*2
                A(f"ds_read_b64_tr_b16 v[{r}:{r+1}], v112 offset:{seg*8192 + k*4096 + h*2048}")
    for k in range(2):
        for seg in range(2):
            A(f"s_waitcnt lgkmcnt({6 - 4*k - 2*seg})")
            mfma(wD + 4*seg, wXO + 4*k, wWF + seg*8 + k*4, wD + 4*seg)
def unit_mfma(s_c0, s_c1, base):
    unit_pre(s_c0, s_c1, base); unit_go()
def tagged_loads(r, va, so):
    A(f"buffer_load_dwordx4 v[{r}:{r+3}], v{va}, {RW}, {so} offen sc1")
    A(f"buffer_load_dwordx4 v[{r+4}:{r+7}], v{va}, {RW}, {so} offen offset:1024 sc1")
def tagged_chk(rs, tmp, extra=None):
    tags = [r + i for r in rs for i in (1, 3, 5, 7)] + ([extra] if extra else [])
    A(f"v_xor_b32 v{tmp}, {sTAG}, v{tags[-1]}")
    for t in tags[:-1]:
        A(f"v_bitop3_b32 v{tmp}, v{t}, {sTAG}, v{tmp} bitop3:0xbe")
    A(f"v_cmp_ne_u32 vcc, 0, v{tmp}")
def tagged_pack(r):
    A(f"v_mov_b32 v{r+1}, v{r+2}\nv_mov_b32 v{r+2}, v{r+4}\nv_mov_b32 v{r+3}, v{r+6}")
def tok_wait(va, so, r, fw=None):
    def chk():
        A(f"v_xor_b32 v{r}, {sTAG}, v{r}")
        for i in (1, 2, 3): A(f"v_bitop3_b32 v{r}, v{r+i}, {sTAG}, v{r} bitop3:0xbe")
        A(f"v_cmp_ne_u32 vcc, 0, v{r}")
    poll(lambda: A(f"buffer_load_dwordx4 v[{r}:{r+3}], v{va}, {RW}, {so} offen sc1"), chk, sleep=2, first_issued=fw is not None, first_wait=fw or 0)
def sum8(dst, r):
    A(f"v_add_f32 v32, v{r}, v{r+1}\nv_add_f32 v33, v{r+2}, v{r+3}\nv_add_f32 v34, v{r+4}, v{r+5}\nv_add_f32 v35, v{r+6}, v{r+7}")
    A(f"v_add_f32 v32, v32, v33\nv_add_f32 v34, v34, v35\nv_add_f32 v{dst}, v32, v34")

STAMP(0)
A("s_cmp_ge_u32 s2, 256\ns_cbranch_scc1 L_end")
A("s_cmp_ge_u32 s2, 128\ns_cselect_b32 s40, 24, 8\ns_cselect_b32 s41, 0, 16")
A("s_load_dwordx2 s[8:9], s[0:1], s40")
if OPT["diag"] == 6: A("s_waitcnt lgkmcnt(0)\ns_memrealtime s[100:101]")
kload(RC, 80)
A("s_load_dwordx2 s[24:25], s[0:1], s41")
kload(RE, 72); kload(RW, 104)
if OPT["diag"] == 7: A("s_memrealtime s[100:101]")
A("v_readfirstlane_b32 s3, v0")
A("s_getpc_b64 s[38:39]")
if OPT["pf"] == 4:
    A("s_and_b32 s38, s38, 0xffffff00")
    A(f"v_and_b32 v{vPF}, 0x1c0, v0\ns_lshl_b32 s40, s2, 7\ns_and_b32 s40, s40, 0x3c00\nv_lshl_or_b32 v{vPF}, v{vPF}, 1, s40")
    sk = L("npf")
    A(f"s_cmp_ge_u32 s2, 128\ns_cbranch_scc1 {sk}")
    A(f"global_load_dword v{vPF}, v{vPF}, s[38:39]")
    A.label(sk)
A("v_and_b32 v0, 63, v0")
if OPT["diag"] == 8: A("s_memrealtime s[100:101]")
A("s_mov_b32 s11, 0x00020000")
A("v_lshrrev_b32 v1, 4, v0\nv_and_b32 v2, 15, v0")
A(f"s_add_u32 s4, s2, {OPT['rot']}\ns_and_b32 s4, s4, 7\ns_bfe_u32 s6, s2, 0x10006\ns_bfe_u32 s7, s2, 0x30003")
A(f"v_lshlrev_b32 v{T3}, 1, v1\nv_xor_b32 v{T3}, v2, v{T3}\nv_lshlrev_b32 v{T3}, 4, v{T3}")
A("s_lshl1_add_u32 s58, s4, s6\ns_lshl_b32 s46, s7, 7\ns_mov_b32 s27, s11")
A(f"v_and_b32 v{T1}, 0x70, v{T3}\nv_lshrrev_b32 v{T0}, 3, v0")
if OPT["diag"] == 9: A("s_memrealtime s[100:101]")
srd(RC, 3145728); srd(RE, 2048)
A(f"v_mul_u32_u24 v{wM}, 6144, v{T0}\nv_add_u32 v{wM}, v{wM}, v{T1}")
if OPT["diag"] == 10: A("s_memrealtime s[100:101]")
if OPT["wfirst"]:
    A("s_cmp_lt_u32 s2, 128\ns_cbranch_scc1 L_KV")
    A.seg(OPT["wfirst"]); A.label("L_KV")
else:
    A("s_cmp_ge_u32 s2, 128\ns_cbranch_scc1 L_W")
def ids2():
    A("s_lshr_b32 s3, s3, 6\ns_bfe_u32 s5, s2, 0x40003")
    if STAMPS:
        for i in range(2, 16): A(f"s_mov_b32 s{64+2*i}, 0")
    srd(RW, WS_BYTES)

vE, vO, vQO = 120, 121, 122
vKA = 108
vQ = 14
vKF = 16
vVF = 48
vQF = 80
vS = 96
vP = 104
vOA = 108
vST = 114
vOAD, vSAD = 116, 117
A(f"v_lshl_or_b32 v{vE}, v1, 8, v{T3}\nv_xor_b32 v{vO}, 0x80, v{vE}")
A("s_lshl_b32 s43, s3, 7\ns_mov_b32 s10, 33554432\ns_mov_b32 s26, s10")
SX("s56", 6144*256, ("s6", 24), ("s4", 21), ("s7", 16), ("s43", 0))
A("s_add_u32 s57, s56, 4096\ns_mov_b32 m0, s43")
def kv_dma(u):
    r = RA if u < 8 else RD
    A(f"buffer_load_dwordx4 v{vE if u%2==0 else vO}, {r}, {'s56' if u%8 < 4 else 's57'} offen offset:{(u%4)*1024} {NT} lds")
HELP = OPT["help"]
if HELP & 1:
    kload(RF, 24); srd(RF, 4194304)
    A(f"v_lshlrev_b32 v{wQ}, 13, v{T0}")
    SX("s44", 0, ("s6", 19), ("s3", 10), ("s4", 10), ("s46", 0))
if HELP & 2:
    A(f"v_and_b32 v{T2}, 0x40, v{T1}\nv_add_u32 v{T2}, v{wM}, v{T2}\nv_add_u32 v{T2}, v{T2}, v{T1}") if False else None
    A(f"v_mul_u32_u24 v{T2}, 6144, v{T0}\nv_and_b32 v{wO}, 1, v0\nv_lshl_add_u32 v{T2}, v{wO}, 7, v{T2}")
    SX("s51", 0, ("s7", 6), ("s3", 3, 0, 0))
    A("s_mul_i32 s51, s51, 6144")
    SX("s40", 2048, ("s4", 8), ("s6", 11)); A("s_add_u32 s51, s51, s40")
A("s_waitcnt lgkmcnt(0)")
if OPT["diag"] == 5: A("s_memrealtime s[100:101]")
if HELP & 1: A(f"buffer_load_dword v16, v{wQ}, {RF}, s44 offen")
if HELP & 2: A(f"buffer_load_dword v17, v{T2}, {RC}, s51 offen")
if HELP and OPT["helpbar"]: A("s_barrier")
VT = OPT["vt"]
if VT:
    A(f"s_add_u32 m0, s43, {VREG}")
    kv_dma(8)
    A("s_mov_b32 m0, s43")
if OPT["slow"]: kv_dma(0)
if OPT["pf"] == 3:
    A("s_and_b32 s38, s38, 0xffffff00")
    SX("s40", 0, ("s2", 3, 4, 10), ("s3", 1))
    A("s_load_dword s99, s[38:39], s40")
A(f"s_load_dword {sTAG}, s[16:17], 0")
if OPT["slow"]: A("s_waitcnt vmcnt(0)")
def mb_issue():
    SX("s51", 0, ("s7", 6), ("s3", 3, 0, 0))
    A("s_mul_i32 s51, s51, 6144\ns_lshl_b32 s42, s3, 4")
    SX("s40", 2048, ("s58", 8)); A("s_add_u32 s51, s51, s40")
    A(f"s_add_u32 m0, s42, {PA}")
    A(f"buffer_load_dwordx4 v{wM}, {RC}, s51 offen {NT} lds")
    A(f"s_add_u32 m0, s42, {PA + 8192 - 128}")
    A(f"buffer_load_dwordx4 v{wM}, {RC}, s51 offen offset:128 {NT} lds")
    VX(T2, T3, 0, (5, 1, 10), (0, 5, 2))
    A(f"buffer_load_dword v{wC}, v{T2}, {RE}, s46 offen {SNT}")
def kv_issue(u0, u1):
    for u in range(u0, u1):
        if u in (4, 12): A("s_add_u32 m0, m0, 4096")
        if u == 8:
            A(f"s_add_u32 m0, s43, {VREG}")
            if VT: continue
        kv_dma(u)
NS = OPT["ns"]
kv_issue(1 if OPT["slow"] else 0, NS)
cont(30)
ids2()
if STAMPS: A("s_mov_b32 s66, 0")
def after_issue():
    STAMP(2)
    if OPT["abl"]:
        A("s_waitcnt vmcnt(0)")
        STAMP(4)
        A("s_branch L_exit")
    if OPT["tokl"]:
        sk = L("ntl")
        A(f"s_cmp_lg_u32 s3, 7\ns_cbranch_scc1 {sk}")
        A(f"s_waitcnt vmcnt({OPT['tokl']})")
        A(f"buffer_load_dwordx4 v[144:147], v140, {RW}, s41 offen sc1")
        A.label(sk)
GT = 0
A(f"v_lshlrev_b32 v140, 7, v0\ns_movk_i32 s41, {TOK}")
if NS == 16: after_issue()
kload(RC, 48); kload(RB, 56); kload(RE, 64)
FF = OPT["ffn_first"]
if FF: FG = VREG; FD = VREG + 32768
wG, wDO, fMF = 124, 125, 123
A(f"v_mul_u32_u24 v{wG}, 3584, v{T0}\nv_add_u32 v{wG}, v{wG}, v{T1}\nv_lshl_or_b32 v{wDO}, v{T0}, 10, v{T1}")
A("s_cmp_lt_u32 s4, 7")
A("s_cselect_b32 s22, 1835008, 0\ns_cselect_b32 s14, 1835008, 0\ns_mov_b32 s15, s11\ns_cselect_b32 s30, 1835008, 0")
SX("s63", 0, ("s4", 4), ("s5", 0))
SX("s49", 0, ("s63", 0, 2, 7), ("s3", 4))
A("s_mul_i32 s49, s49, 3584")
SX("s50", 0, ("s63", 2, 0, 7))
A(f"s_add_u32 s49, s49, s50\ns_add_u32 s50, s49, {8*3584-1024}")
SX("s51", 0, ("s63", 14), ("s3", 7))
A(f"s_add_u32 s52, s51, {8*1024-1024}")
A("s_lshl_b32 s42, s3, 11")
def g_dma():
    A(f"s_add_u32 m0, s42, {FG}")
    A(f"buffer_load_dwordx4 v{wG}, {RC}, s49 offen {NT} lds")
    A(f"buffer_load_dwordx4 v{wG}, {RC}, s50 offen offset:1024 {NT} lds")
def u_dma():
    A(f"s_add_u32 m0, s42, {FG+16384}")
    A(f"buffer_load_dwordx4 v{wG}, {RB}, s49 offen {NT} lds")
    A(f"buffer_load_dwordx4 v{wG}, {RB}, s50 offen offset:1024 {NT} lds")
def gu_dma():
    g_dma(); u_dma()
def dn_dma():
    A(f"s_add_u32 m0, s42, {FD}")
    A(f"buffer_load_dwordx4 v{wDO}, {RE}, s51 offen {NT} lds")
    A(f"buffer_load_dwordx4 v{wDO}, {RE}, s52 offen offset:1024 {NT} lds")
def ffn_dma():
    gu_dma(); dn_dma()
GB1 = OPT["gu_b1"] and OPT["ser"] and not FF
SX("s98", ST5, ("s4", 8))
SX("s96", G5, ("s63", 10))
A(f"s_add_u32 s97, s96, {US5-G5}")
if OPT["ftouch"]:
    A("v_mul_u32_u24 v118, 3584, v2\nv_lshlrev_b32 v119, 10, v2")
SX("s44", QG, ("s58", 12), ("s3", 10))
vQ = 100
A(f"v_lshlrev_b32 v{vQO}, 4, v0")
VX(fMF, T2, 0, (0, 3, 7), (3, 1, 6), (4, 2, 4))
SX("s59", MGT + 2*32768, ("s63", 0, 2, 13), ("s3", 0, 2, 11))
SX("s40", 0, ("s3", 2, 0, 15)); A("s_sub_u32 s59, s59, s40")
VX(T2, 0, 0, (0, 3, 1))
A(f"v_xor_b32 v{T2}, v1, v{T2}\nv_lshlrev_b32 v{T2}, 4, v{T2}\nv_lshl_or_b32 v{T2}, v2, 8, v{T2}")
A(f"v_add_u32 v{vKA}, s43, v{T2}")
for t in range(1, 4):
    A(f"v_xor_b32 v{vKA+t}, {t*64:#x}, v{vKA}")
vQW, vQR, vVR, vMX, vPW, vPR, vMW = 3, 4, 5, 6, 113, 13, 112
SX("s40", QL, ("s3", 5))
VX(vQW, T2, "s40", (1, 4, 7), (5, 1, 4), (0, 1, 3))
VX(vQR, T2, QL, (4, 2, 7), (0, 3, 4))
A(f"v_bfe_u32 v{T0}, v0, 2, 3\nv_xor_b32 v{T0}, s3, v{T0}")
VX(vVR, T2, VREG, (2, 4, 8), (0, 2, 3))
A(f"v_lshl_or_b32 v{vVR}, v{T0}, 5, v{vVR}")
VX(vMX, T2, MISC, (0, 2, 5))
A(f"s_lshl_b32 s40, s3, 2\nv_add_u32 v{vMW}, s40, v{vMX}")
VX(vPR, T2, PL, (4, 2, 6), (0, 2, 4))
A(f"s_lshl_b32 s40, s3, 8\nv_and_b32 v{T2}, 12, v0\nv_add3_u32 v{vPW}, s40, v{vPR}, v{T2}")
A("s_mov_b32 s60, 0xf0f0f0f0\ns_mov_b32 s61, s60\ns_mov_b32 s46, 0xff00ff00\ns_mov_b32 s47, s46")
VX(vOAD, T2, 0, (0, 2, 12), (4, 2, 4))
SX("s53", OG, ("s4", 14), ("s3", 1, 0, 10), ("s5", 6), ("s3", 0, 1, 3))
VX(vSAD, T2, 0, (0, 2, 7))
SX("s54", SG, ("s4", 9), ("s5", 3))
A(f"s_mov_b32 s55, {f32(C1)}")
fWF = 128 if FF else 84
fDF = 144 if FF else 64
def ffn_frag_addr(wr, ta, tr):
    VX(tr, 32, 0, (2, 4, 7), (3, 2, 5), (0, 2, 3))
    SX("s40", 0, ("s3", 0, 2, 5)); A(f"v_xor_b32 v{wr}, s40, v{tr}")
    SX("s40", FG, ("s3", 2, 0, 14)); A(f"v_add_u32 v{wr}, s40, v{wr}")
    A(f"s_add_u32 s40, s42, {FD}\nv_add_u32 v{ta}, s40, v{tr}")
    for t in range(1, 4):
        A(f"v_xor_b32 v{ta+t}, {t*32:#x}, v{ta}")
def w_frags(wr):
    for k in range(4):
        for h in range(2):
            r = fWF + 4*k + 2*h
            A(f"ds_read_b64_tr_b16 v[{r}:{r+1}], v{wr} offset:{k*4096 + h*2048}")
def d_frags(ta):
    for tau in range(4):
        A(f"ds_read_b64_tr_b16 v[{fDF+2*tau}:{fDF+2*tau+1}], v{ta+tau}")
if NS < 16:
    kv_issue(NS, 16)
    after_issue()
A(f"s_waitcnt vmcnt({7 if VT else 8}) lgkmcnt(0)")
if OPT["diag"] >= 5: A("s_mov_b32 s76, s100")
A(f"s_add_u32 {sTAG}, {sTAG}, {TAGC:#x}")
for T in range(2):
    for t in range(4):
        r = vKF + (T*4+t)*4
        A(f"ds_read_b128 v[{r}:{r+3}], v{vKA+t} offset:{T*4096}")
sk = L("nqp"); skm = L("mbw")
if OPT["mbg"] == 3:
    A(f"s_cmp_lt_u32 s3, 4\ns_cbranch_scc1 {skm}")
    if not OPT["tokl"]:
        if OPT["tok"]:
            sk3 = L("ntv")
            A(f"s_cmp_lg_u32 s3, 4\ns_cbranch_scc1 {sk3}")
            A(f"v_lshlrev_b32 v80, 7, v0\ns_movk_i32 s41, {TOK}")
            tok_wait(80, "s41", 84)
            A(f"buffer_load_dwordx4 v[136:139], v{vQO}, {RW}, s96 offen sc1")
            A(f"buffer_load_dwordx4 v[136:139], v{vQO}, {RW}, s97 offen sc1")
            A(f"buffer_load_dword v136, v{vSAD}, {RW}, s98 offen sc1")
            A(f"s_branch {sk}")
            A.label(sk3)
    A(f"s_waitcnt vmcnt(0)\ns_branch {sk}")
    A.label(skm)
    A.mute = True
A("s_barrier")
A(f"s_cmp_lt_u32 s3, 4\ns_cbranch_scc1 {skm}")
SX("s40", XL, ("s3", 0, 2, 8))
VX(82, 80, "s40", (0, 6, 2))
VX(83, 80, "s40", (2, 1, 7), (4, 2, 3))
A(f"v_lshlrev_b32 v84, 16, v{wC}\nv_and_b32 v85, 0xffff0000, v{wC}")
A(f"v_mul_f32 v86, {f32(-math.log2(math.e))}, v84\nv_mul_f32 v87, {f32(-math.log2(math.e))}, v85")
A("v_exp_f32 v86, v86\nv_exp_f32 v87, v87\nv_add_f32 v86, 1.0, v86\nv_add_f32 v87, 1.0, v87")
A("v_rcp_f32 v86, v86\nv_rcp_f32 v87, v87\nv_mul_f32 v84, v84, v86\nv_mul_f32 v85, v85, v87")
A("v_cvt_pk_bf16_f32 v84, v84, v85\nds_write_b32 v82, v84")
A("ds_read2_b64 v[144:147], v83 offset0:0 offset1:4\nds_read2_b64 v[148:151], v83 offset0:8 offset1:12")
VX(81, 80, 0, (2, 4, 7), (3, 2, 5), (0, 2, 3))
SX("s40", 0, ("s3", 0, 2, 5)); A(f"v_xor_b32 v81, s40, v81\nv_add_u32 v81, {PA}, v81")
for k in range(2):
    for sg in range(2):
        for hh in range(2):
            r = 128 + sg*8 + k*4 + hh*2
            A(f"ds_read_b64_tr_b16 v[{r}:{r+1}], v81 offset:{sg*8192 + k*4096 + hh*2048}")
SX("s40", 0, ("s58", 2, 0, 3), ("s7", 0))
A("s_cmp_eq_u32 s40, 16\ns_cselect_b32 s41, 1.0, 0")
for i in range(8): A(f"v_mov_b32 v{88+i}, s41")
VX(80, 81, 0, (5, 1, 12), (4, 1, 6), (2, 2, 4))
SX("s41", MGT, ("s58", 13), ("s3", 0, 2, 10), ("s46", 0))
A(f"v_mov_b32 v97, {sTAG}\nv_mov_b32 v99, {sTAG}")
A("s_waitcnt lgkmcnt(0)")
for k in range(2):
    for sg in range(2):
        mfma(88 + 4*sg, 144 + 4*k, 128 + sg*8 + k*4, 88 + 4*sg)
A("v_cmp_gt_u32 vcc, 32, v0")
A("v_cndmask_b32 v84, v92, v88, vcc")
pack4(84, 96, 98, 85)
setexec(0x11111111, 0x11111111)
A(f"buffer_store_dwordx4 v[96:99], v80, {RW}, s41 offen sc1")
fullexec()
STAMP(9)
A(f"s_waitcnt vmcnt(1)\ns_branch {sk}")
A.label(skm)
A.mute = False
def q_load():
    A(f"buffer_load_dwordx4 v[{vQ}:{vQ+3}], v{vQO}, {RW}, s44 offen sc1")
def q_chk():
    A(f"v_xor_b32 v{T0}, {sTAG}, v{vQ+1}\nv_bitop3_b32 v{T0}, v{vQ+3}, {sTAG}, v{T0} bitop3:0xbe\nv_cmp_ne_u32 vcc, 0, v{T0}")
poll(q_load, q_chk, sleep=OPT['s2'])
STAMP(4)
A(f"v_mov_b32 v{vQ+1}, v{vQ+2}")
A(f"ds_write_b64 v{vQW}, v[{vQ}:{vQ+1}]")
A.label(sk)
A("s_waitcnt lgkmcnt(0)\ns_barrier")
STAMP(5)
for t in range(4):
    A(f"ds_read_b128 v[{vQF+4*t}:{vQF+4*t+3}], v{vQR} offset:{t*512}")
if GB1: gu_dma()
if OPT["g_b1"]: g_dma()
def f_touch(n):
    A("s_mov_b64 exec, 0xffff")
    if n & 1: A(f"buffer_load_dword v{vPF}, v118, {RC}, s49 offen")
    if n & 2: A(f"buffer_load_dword v{vPF}, v118, {RB}, s49 offen")
    if n & 4: A(f"buffer_load_dword v{vPF}, v119, {RE}, s51 offen")
    fullexec()
if OPT["ftouch"]: f_touch(OPT["ftouch"])
vMF = 128
def mf_loads():
    tagged_loads(vMF, fMF, "s59")
def l_touch(a, b, c):
    sk = L("nlt")
    A(f"s_cmp_lg_u32 s3, 7\ns_cbranch_scc1 {sk}")
    A(f"buffer_load_dwordx4 v[136:139], v{vQO}, {RW}, {a} offen sc1")
    A(f"buffer_load_dwordx4 v[136:139], v{vQO}, {RW}, {b} offen sc1")
    A(f"buffer_load_dword v136, v{vSAD}, {RW}, {c} offen sc1")
    A.label(sk)
def v_tr(kb, T):
    r = vVF + kb*4 + T*2
    A(f"ds_read_b64_tr_b16 v[{r}:{r+1}], v{vVR} offset:{(32*kb+16*T)*256}")
EARLY_T = [0, 1]
NV1 = OPT["nv1"]
if STAMPS: A("s_waitcnt lgkmcnt(0)")
for t in range(4):
    A(f"s_waitcnt lgkmcnt({3-t})")
    for T in range(2):
        mfma(vS + 4*T, vKF + (T*4+t)*4, vQF + 4*t, None if t == 0 else vS + 4*T)
for kb in range(NV1):
    v_tr(kb, 0); v_tr(kb, 1)
for i in range(8):
    A(f"v_add_f32_dpp v{vS+i}, v{vS+i}, v{vS+i} row_ror:4 {DPPM}")
A(f"v_max3_f32 v{T0}, v{vS}, v{vS+1}, v{vS+2}\nv_max3_f32 v{T2}, v{vS+3}, v{vS+4}, v{vS+5}")
A(f"v_max3_f32 v{T0}, v{T0}, v{vS+6}, v{vS+7}\nv_max_f32 v{T3}, v{T0}, v{T2}\nv_max_f32 v{T0}, v{T0}, v{T2}")
A(f"v_cndmask_b32 v{vS}, v{vS}, v{vS+2}, s[60:61]\nv_cndmask_b32 v{vS+1}, v{vS+1}, v{vS+3}, s[60:61]")
A(f"v_permlane32_swap_b32 v{T0}, v{T3}")
A(f"v_max_f32 v{T2}, v{T0}, v{T3}\nv_max_f32 v{T0}, v{T0}, v{T3}")
A(f"v_cndmask_b32 v{vS+4}, v{vS+4}, v{vS+6}, s[60:61]\nv_cndmask_b32 v{vS+5}, v{vS+5}, v{vS+7}, s[60:61]")
A(f"v_permlane16_swap_b32 v{T0}, v{T2}")
A(f"v_max_f32 v{T0}, v{T0}, v{T2}")
A(f"ds_write_b32 v{vMW}, v{T0}")
A(f"v_cndmask_b32 v{vS}, v{vS}, v{vS+4}, s[46:47]\nv_cndmask_b32 v{vS+1}, v{vS+1}, v{vS+5}, s[46:47]")
A(f"v_mul_f32 v{vS}, s55, v{vS}\nv_mul_f32 v{vS+1}, s55, v{vS+1}")
STAMP(14)
if OPT["tokl"]:
    sk = L("ntm")
    A(f"s_cmp_lg_u32 s3, 7\ns_cbranch_scc1 {sk}")
    tok_wait(140, "s41", 144, 0)
    A(f"buffer_load_dwordx4 v[136:139], v{vQO}, {RW}, s96 offen sc1")
    A(f"buffer_load_dwordx4 v[136:139], v{vQO}, {RW}, s97 offen sc1")
    A(f"buffer_load_dword v136, v{vSAD}, {RW}, s98 offen sc1")
    A.label(sk)
A("s_waitcnt lgkmcnt(0)\ns_barrier")
A(f"ds_read_b128 v[{vQF}:{vQF+3}], v{vMX}\nds_read_b128 v[{vQF+4}:{vQF+7}], v{vMX} offset:16")
for kb in range(NV1, min(8, NV1 + 6)):
    v_tr(kb, 0); v_tr(kb, 1)
A(f"s_waitcnt lgkmcnt({2*(min(8, NV1+6) - NV1)})")
A(f"v_max3_f32 v{T0}, v{vQF}, v{vQF+1}, v{vQF+2}\nv_max3_f32 v{T2}, v{vQF+3}, v{vQF+4}, v{vQF+5}")
A(f"v_max3_f32 v{T0}, v{T0}, v{vQF+6}, v{vQF+7}\nv_max_f32 v{T0}, v{T0}, v{T2}")
A(f"v_fma_f32 v{vS}, -v{T0}, s55, v{vS}\nv_fma_f32 v{vS+1}, -v{T0}, s55, v{vS+1}")
A(f"v_exp_f32 v{vS}, v{vS}\nv_exp_f32 v{vS+1}, v{vS+1}")
A(f"v_mul_f32 v{vST}, s55, v{T0}")
A(f"v_cvt_pk_bf16_f32 v{vP}, v{vS}, v{vS+1}")
A(f"v_add_f32 v{T0}, v{vS}, v{vS+1}")
A(f"ds_write_b32 v{vPW}, v{vP}")
A(f"v_add_f32_dpp v{T0}, v{T0}, v{T0} row_ror:4 {DPPM}")
if OPT["mfb1"]: mf_loads()
A(f"v_add_f32_dpp v{T3}, v{T0}, v{T0} row_ror:8 {DPPM}\nv_add_f32_dpp v{T0}, v{T0}, v{T0} row_ror:8 {DPPM}")
A(f"v_permlane32_swap_b32 v{T0}, v{T3}")
A(f"v_add_f32 v{T2}, v{T0}, v{T3}\nv_add_f32 v{T0}, v{T0}, v{T3}")
A(f"v_permlane16_swap_b32 v{T0}, v{T2}")
A(f"v_add_f32 v{T0}, v{T0}, v{T2}")
A(f"ds_write_b32 v{vMW}, v{T0} offset:128")
if OPT["dn_p"] == 3: dn_dma()
A("s_waitcnt lgkmcnt(0)\ns_barrier")
STAMP(3)
if STAMPS: A("s_waitcnt lgkmcnt(0)")
LATE_T = [T for T in range(2) if T not in EARLY_T]
A(f"ds_read_b128 v[{vQF}:{vQF+3}], v{vMX} offset:128\nds_read_b128 v[{vQF+4}:{vQF+7}], v{vMX} offset:144")
for kb in range(8):
    r = vKF + kb*4
    A(f"ds_read_b128 v[{r}:{r+3}], v{vPR} offset:{kb*256}")
def st_pub(vm=None):
    sk = L("nst"); sk2 = L("nsu")
    A(f"s_cmp_lg_u32 s3, 0\ns_cbranch_scc1 {sk}")
    A("s_waitcnt lgkmcnt(8)")
    rowsum([vQF, vQF+4])
    A(f"v_add_f32 v{vST+1}, v{vQF}, v{vQF+4}")
    A("s_mov_b64 exec, 15")
    A(f"buffer_store_dwordx2 v[{vST}:{vST+1}], v{vSAD}, {RW}, s54 offen")
    fullexec()
    if vm is not None:
        A(f"s_waitcnt vmcnt({vm})\ns_branch {sk2}")
    A.label(sk)
    if vm is not None:
        A(f"s_waitcnt vmcnt({vm-1})")
        A.label(sk2)
if LATE_T:
    st_pub(1)
    A("s_waitcnt lgkmcnt(0)\ns_barrier")
    STAMP(6)
    if STAMPS: A("s_waitcnt lgkmcnt(0)")
    per = len(LATE_T)
    AHEAD = 8 if per == 1 else 6
    for kb in range(AHEAD):
        for T in LATE_T: v_tr(kb, T)
    for kb in range(8):
        A(f"s_waitcnt lgkmcnt({(min(8, AHEAD + kb) - kb - 1) * per})")
        mfma(vOA, vVF + kb*4, vKF + kb*4, None if kb == 0 else vOA)
        if AHEAD + kb < 8:
            for T in LATE_T: v_tr(AHEAD + kb, T)
else:
    st_pub()
    if OPT["dn_p"] == 1: dn_dma()
    for kb in range(8):
        A(f"s_waitcnt lgkmcnt({7-kb})")
        mfma(vOA, vVF + kb*4, vKF + kb*4, None if kb == 0 else vOA)
setexec(0x000f000f, 0x000f000f)
A(f"v_cvt_pk_bf16_f32 v{vP}, v{vOA}, v{vOA+1}\nv_cvt_pk_bf16_f32 v{vP+1}, v{vOA+2}, v{vOA+3}")
A(f"buffer_store_dwordx2 v[{vP}:{vP+1}], v{vOAD}, {RW}, s53 offen")
fullexec()
STAMP(7)
A("s_cmp_lt_u32 s4, 7\ns_cbranch_scc1 L_ffn")
A("s_cmp_lg_u32 s3, 0\ns_cbranch_scc1 L_exit")
VX(T1, T2, 0, (3, 1, 14), (0, 3, 11))
A(f"s_mov_b32 s46, {X4 + 7*128:#x}")
poll(lambda: A(f"buffer_load_dword v16, v{T1}, {RW}, s46 offen sc1"), lambda: A(f"v_cmp_eq_u32 vcc, -1, v16"), sleep=8)
A("s_branch L_exit")
A.label("L_ffn")
SX("s55", ST5, ("s4", 8))
SX("s53", G5, ("s63", 10))
A(f"s_add_u32 s54, s53, {US5-G5}")
if not OPT["mfb1"]:
    l_touch("s53", "s54", "s55")
    mf_loads()
DL = OPT["dn_late"]
NF = 0
if not GB1 and OPT["dn_p"] != 3:
    if OPT["obar"]: A("s_barrier")
    if not OPT["g_b1"]:
        g_dma(); NF += 2
    u_dma(); NF += 2
if not DL and not OPT["dn_p"]:
    if (GB1 and OPT["obar"]) or OPT["gufirst"]: A("s_barrier")
    dn_dma(); NF += 2
fYW, fYR, fWR, fGA, fGR, fSTA, fY6A = 113, 114, 115, 116, 118, 119, 120
fG, fU, fS = 121, 122, 117
wOF, wTA = fMF, 108
if not FF: ffn_frag_addr(fWR, wTA, wTR)
A("s_lshr_b32 s56, s3, 2\ns_and_b32 s57, s3, 3")
VX(fYR, 32, YL0, (0, 6, 4))
A(f"s_lshl_b32 s40, s3, 10\nv_add_u32 v{fYW}, s40, v{fYR}")
VX(fGA, 32, 0, (0, 6, 2))
SX("s61", G5 - 64, ("s63", 2, 0, 12), ("s57", 10), ("s63", 0, 2, 8), ("s56", 7))
A(f"s_add_u32 s62, s61, {US5-G5}")
VX(fGR, 32, 0, (2, 1, 7), (3, 1, 6), (4, 2, 4), (0, 2, 2))
VX(fSTA, 32, 0, (0, 3, 5), (3, 1, 4))
VX(fY6A, 32, 0, (3, 1, 14), (5, 1, 12), (4, 1, 4))
SX("s47", Y4, ("s56", 14), ("s63", 0, 2, 12), ("s57", 10))
SX("s96", Y6, ("s3", 16), ("s63", 5))
A("s_add_u32 s97, s96, 8192\ns_add_u32 s98, s96, 32768\ns_add_u32 s99, s96, 40960")
A(f"s_mov_b32 s41, {f32(1.0/512)}\ns_mov_b32 s43, {f32(1e-5)}")
poll(mf_loads, lambda: tagged_chk([vMF], 33), first_issued=True, first_wait=NF, sleep=4)
tagged_pack(vMF)
A(f"ds_write_b128 v{fYW}, v[{vMF}:{vMF+3}]")
def y_load():
    A(f"buffer_load_dwordx4 v[76:79], v{wOF}, {RW}, s47 offen sc1")
GF = OPT["gufirst"]
A(f"s_waitcnt vmcnt({2 if GF else 0}) lgkmcnt(0)\ns_barrier")
STAMP(10)
y_load()
if DL: dn_dma()
YO = [16, 20, 24, 28, 32, 36, 100, 104]
if not FF: w_frags(fWR)
for u in range(8):
    A(f"ds_read_b128 v[{YO[u]}:{YO[u]+3}], v{fYR} offset:{u*1024}")
A("s_waitcnt lgkmcnt(0)")
for k in range(4):
    for pi in range(2):
        mfma(wD + 4*pi, YO[4*pi+k], fWF + 4*k, None if k == 0 else wD + 4*pi)
rowsum([wD, wD+4])
A(f"v_permlane16_swap_b32 v{wD}, v{wD+4}")
A(f"v_add_f32 v{wD+1}, v{wD}, v{wD+4}\nv_add_f32 v{wD}, v{wD}, v{wD+4}")
A(f"v_permlane16_swap_b32 v{wD}, v{wD+1}")
A(f"v_cvt_pk_bf16_f32 v126, v{wD}, v{wD+1}")
setexec(0xffff0000, 0x0000ffff)
A(f"buffer_store_dword v126, v{fGA}, {RW}, s62 offen {'' if OPT['uslocal'] else 'sc1'}")
fullexec()
STAMP(1)
def us_loads():
    for k in range(4):
        A(f"buffer_load_dword v{40+k}, v{fGR}, {RW}, s54 offen offset:{256*k} sc1")
if not DL and not GF: d_frags(wTA)
poll(y_load, lambda: chk_empty4(76, 33), first_issued=True, first_wait=3 if DL else 1)
STAMP(11)
A(f"ds_write_b128 v{fYW}, v[76:79] offset:8192")
us_loads()
A("s_waitcnt lgkmcnt(0)\ns_barrier")
for u in range(8):
    A(f"ds_read_b128 v[{YO[u]}:{YO[u]+3}], v{fYR} offset:{8192+u*1024}")
for u in range(8):
    A(f"s_waitcnt lgkmcnt({7-u})")
    mfma(wD, YO[u], fWF + 4*(u & 3), None if u == 0 else wD)
A(f"v_add_f32 v{wD}, v{wD}, v{wD+1}\nv_add_f32 v{wD+2}, v{wD+2}, v{wD+3}")
A(f"v_add_f32 v{wD+1}, v{wD}, v{wD+2}\nv_add_f32 v{wD}, v{wD}, v{wD+2}")
A(f"v_permlane16_swap_b32 v{wD}, v{wD+1}")
A(f"v_add_f32 v{fG}, v{wD}, v{wD+1}")
def g_store(fl):
    setexec(0xffff0000, 0x0000ffff)
    A(f"buffer_store_dword v{fG}, v{fGA}, {RW}, s61 offen {fl}")
g_store("")
fullexec()
STAMP(12)
def g_loads():
    A(f"buffer_load_dwordx4 v[24:27], v{fSTA}, {RW}, s55 offen sc1")
    for k in range(4):
        A(f"buffer_load_dword v{20+k}, v{fGR}, {RW}, s53 offen offset:{256*k} sc1")
poll(us_loads, lambda: chk_empty4(40, 33), first_issued=True, first_wait=1)
g_loads()
if DL or GF: d_frags(wTA)
for k in range(4):
    A(f"v_lshlrev_b32 v{44+k}, 16, v{40+k}\nv_and_b32 v{40+k}, 0xffff0000, v{40+k}")
rowsum([44, 40])
A(f"v_mov_b32 v{fU}, v44\nv_mov_b32 v{fS}, v40")
def g_chk():
    A("v_add_f32 v24, v24, v26\nv_add_f32 v25, v25, v27")
    A("v_add_f32 v20, v20, v21\nv_add_f32 v22, v22, v23")
    A(f"v_add_f32_dpp v24, v24, v24 quad_perm:[1,0,3,2] {DPPM}\nv_add_f32_dpp v25, v25, v25 quad_perm:[1,0,3,2] {DPPM}")
    A("v_add_f32 v20, v20, v22")
    A(f"v_add_f32_dpp v24, v24, v24 quad_perm:[2,3,0,1] {DPPM}\nv_add_f32_dpp v25, v25, v25 quad_perm:[2,3,0,1] {DPPM}")
    A("v_add_f32 v26, v24, v25")
    A("v_cmp_u_f32 vcc, v20, v26")
poll(g_loads, g_chk, first_issued=True)
STAMP(13)
A(f"v_add_f32_dpp v24, v24, v24 row_half_mirror {DPPM}\nv_add_f32_dpp v25, v25, v25 row_half_mirror {DPPM}")
A("v_mov_b32 v26, s43")
A("v_mul_f32 v24, s41, v24")
A("v_fmac_f32 v26, s41, v25")
A("v_fma_f32 v26, -v24, v24, v26")
A(f"v_fma_f32 v20, -v24, v{fU}, v20")
A("v_rsq_f32 v26, v26")
A(f"v_fma_f32 v20, v20, v26, v{fS}")
A("v_max_f32 v21, 0, v20")
A(f"v_mul_f32_dpp v22, v20, v21 row_shl:4 {DPPM}")
pack4(22, 24, 25, 23)
if DL or GF: A("s_waitcnt lgkmcnt(0)")
for tau in range(4):
    d = 32 + 4*tau
    A(f"v_mfma_f32_16x16x16_bf16 v[{d}:{d+3}], v[{fDF+2*tau}:{fDF+2*tau+1}], v[24:25], 0")
setexec(0x01010101, 0x01010101)
for tau in range(4):
    d = 32 + 4*tau
    A(f"buffer_store_dwordx4 v[{d}:{d+3}], v{fY6A}, {RW}, s{96+tau} offen sc1")
STAMP(8)
A("s_waitcnt vmcnt(0)")
g_store("sc1")
if OPT["uslocal"]: A(f"buffer_store_dword v126, v{fGA}, {RW}, s62 offen sc1")
A("s_branch L_exit")

A.seg(1)
A.label("L_W")
AS = OPT["asplit"]
IS_NA = "s_cmp_lg_u32 s6, 0" if AS else "s_cmp_ge_u32 s4, 4"
IS_A = "s_cmp_eq_u32 s6, 0" if AS else "s_cmp_lt_u32 s4, 4"
sDB = "s4" if AS else "s58"
if OPT["swp"] >= 0:
    X1 = 2*OPT["swp"] + 1
    A(f"s_cmp_eq_u32 s58, {X1}\ns_cselect_b32 s100, 14, s58\ns_cmp_eq_u32 s58, 14\ns_cselect_b32 s101, {X1}, s100\ns_lshr_b32 s100, s101, 1")
    IS_NA = "s_bitcmp1_b32 s101, 0"; IS_A = "s_bitcmp0_b32 s101, 0"; sDB = "s100"
def w_common(first=True):
    kload(RB, 32); kload(RF, 88)
    if first:
        A(f"s_load_dword {sTAG}, s[16:17], 0")
        ids2()
    A(f"v_lshl_or_b32 v{wO}, v{T0}, 10, v{T1}")
    srd(RB, 4194304); A("s_movk_i32 s26, 2048")
def wq_setup(sh):
    A(f"v_lshl_or_b32 v{wQ}, v{T0}, 13, v{T1}")
    A("s_mov_b32 s10, 4194304")
    A(f"s_lshl_b32 s48, s3, {12-sh}")
    SX("s43", 0, ("s6", 8), ("s48", 7, 0, 0))
    SX("s44", 0, ("s43", 13), ("s4", 10), ("s46", 0))
def wq_dma():
    A(f"s_add_u32 m0, s48, {WQL}")
    for u in range(4):
        if u: A(f"s_add_u32 s44, s44, {8*8192-1024}")
        A(f"buffer_load_dwordx4 v{wQ}, {RA}, s44 offen offset:{u*1024} {NT} lds")
def c_setup():
    VX(T2, T3, 0, (5, 1, 10), (0, 5, 2))
if "noW" in OPT["abl"]:
    ids2(); A("s_waitcnt lgkmcnt(0)\ns_branch L_exit")
if "noA" in OPT["abl"]: A("s_branch L_nA")
A(f"{IS_NA}\ns_cbranch_scc1 L_nA")
A(f"s_lshl_b32 s49, {sDB}, 7")
A("s_cmp_lt_u32 s3, 256\ns_cbranch_scc1 L_A1")
A("s_sub_u32 s40, s3, 256")
SX("s61", 0, ("s7", 6), ("s40", 2, 0, 0))
A(f"s_mul_i32 s61, s61, 6144\ns_add_u32 s61, s61, s49\ns_add_u32 s62, s61, {8*6144-1024}")
A(f"s_lshl_b32 s40, s40, 5\ns_add_u32 m0, s40, {PA}")
if OPT["diag"] == 2: STAMP(1)
A("s_waitcnt lgkmcnt(0)")
if OPT["diag"] not in (2, 3, 4): STAMP(1)
A(f"buffer_load_dwordx4 v{wM}, {RC}, s61 offen {NT} lds")
A(f"buffer_load_dwordx4 v{wM}, {RC}, s62 offen offset:1024 {NT} lds")
A(f"s_add_u32 m0, s40, {PA+8192-1024}")
A(f"buffer_load_dwordx4 v{wM}, {RC}, s61 offen offset:1024 {NT} lds")
A(f"buffer_load_dwordx4 v{wM}, {RC}, s62 offen offset:2048 {NT} lds")
TK = OPT["tok"]
AH = OPT["ahold"]
def clears():
    A("v_mov_b32 v32, -1\nv_mov_b32 v33, -1\nv_mov_b32 v34, -1\nv_mov_b32 v35, -1")
    SX("s54", CLR, ("s49", 9), ("s7", 13), ("s60", 0))
    A("v_lshlrev_b32 v38, 4, v0")
    A(f"buffer_store_dwordx4 v[32:35], v38, {RW}, s54 offen sc1")
    A(f"buffer_store_dwordx4 v[32:35], v38, {RW}, s54 offen offset:1024 sc1")
A("s_mov_b32 s60, s40")
if not TK:
    srd(RW, WS_BYTES); clears()
if AH < 8:
    wq_setup(6)
    A("s_barrier")
    wq_dma()
if OPT["diag"] == 3: STAMP(1)
cont(5)
if OPT["diag"] == 4: STAMP(1)
w_common()
if AH == 8: wq_setup(0)
NB = (4 if AH < 8 else 0)
A(f"s_waitcnt vmcnt({NB})")
if OPT["abl"]: STAMP(9)
if STAMPS == 3: STAMP(12)
A("s_barrier")
if AH == 8:
    A("s_barrier")
    wq_dma()
if TK: clears()
tr_setup()
A("s_waitcnt lgkmcnt(0)")
A(f"s_add_u32 {sTAG}, {sTAG}, {TAGC:#x}")
A("s_branch L_B")
A.seg(1.5 if OPT["wfirst"] else 3)
A.label("L_A1")
c_setup()
VX(36, T3, 0, (4, 1, 10), (5, 1, 8), (0, 4, 4))
A("s_movk_i32 s26, 2048")
A("s_waitcnt lgkmcnt(0)")
STAMP(1)
A(f"buffer_load_dword v{wC}, v{T2}, {RE}, s46 offen {SNT}")
A(f"buffer_load_dwordx4 v[{wX}:{wX+3}], v36, {RD}, 0 offen {SNT}")
A(f"buffer_load_dwordx4 v[{wX+4}:{wX+7}], v36, {RD}, 0 offen offset:512 {SNT}")
VX(37, T3, 0, (4, 1, 10), (0, 4, 1))
A(f"s_lshr_b32 s50, s3, 1\ns_add_u32 s50, s50, s49\nv_mov_b32 v{wXS}, 0")
A(f"buffer_load_short_d16_hi v{wXS}, v37, {RD}, s50 offen {SNT}")
if OPT["wfirst"] == 3: cont(4)
if AH < 8: A("s_barrier")
A(f"s_load_dword {sTAG}, s[16:17], 0")
ids2()
tr_setup()
VX(39, 32, 0, (4, 1, 6), (2, 2, 4))
SX("s53", H1G, (sDB, 12), ("s3", 10), ("s46", 0))
A("s_cmp_eq_u32 s7, 0\ns_cselect_b32 s54, 1.0, 0")
unit_pre("0", "s54", PA)
silu_operand(3)
if OPT["abl"]: STAMP(6)
if STAMPS == 3: STAMP(11)
A(f"s_waitcnt vmcnt(0)")
A("v_mov_b32 v36, 0\nv_mov_b32 v37, 0\nv_mov_b32 v38, 0x3f803f80")
for i in range(8):
    A(f"v_dot2c_f32_bf16 v36, v{wX+i}, v38\nv_dot2c_f32_bf16 v37, v{wX+i}, v{wX+i}")
for m in ("quad_perm:[1,0,3,2]", "quad_perm:[2,3,0,1]", "row_half_mirror", "row_mirror"):
    A(f"v_add_f32_dpp v36, v36, v36 {m} {DPPM}\nv_add_f32_dpp v37, v37, v37 {m} {DPPM}")
A("v_mov_b32 v38, v36\nv_mov_b32 v35, v37")
A("v_permlane32_swap_b32 v36, v38\nv_permlane32_swap_b32 v37, v35")
A("v_add_f32 v36, v36, v38\nv_add_f32 v37, v37, v35")
A(f"v_mul_f32 v36, {f32(1.0/512)}, v36\nv_mov_b32 v38, {f32(1e-5)}\nv_fmac_f32 v38, {f32(1.0/512)}, v37")
A("v_fma_f32 v38, -v36, v36, v38\nv_rsq_f32 v38, v38")
A(f"v_sub_f32 v{wXS}, v{wXS}, v36\nv_mul_f32 v{wXS}, v{wXS}, v38")
A(f"s_add_u32 {sTAG}, {sTAG}, {TAGC:#x}")
A(f"v_mov_b32 v{wD+9}, {sTAG}\nv_mov_b32 v{wD+11}, {sTAG}")
if OPT["abl"]: STAMP(7)
if STAMPS == 3: STAMP(12)
A("s_waitcnt lgkmcnt(0)\ns_barrier")
if OPT["abl"]: STAMP(10)
unit_go()
A(f"v_fma_f32 v32, v{wXS}, v{wD+4}, v{wD}")
pack4(32, wD+8, wD+10, 33)
setexec(0x11111111, 0)
A(f"buffer_store_dwordx4 v[{wD+8}:{wD+11}], v39, {RW}, s53 offen sc1")
fullexec()
STAMP(14)
if OPT["diag"] == 1:
    A("s_waitcnt vmcnt(0)"); STAMP(13)
if AH == 8: A("s_barrier")
wq_setup(0)
wq_dma()
w_common(False)
A("s_branch L_B")
A.seg(2)
A.label("L_nA")
wq_setup(6)
R3 = OPT["r3"]
SX("s51", 0, ("s7", 6), ("s3", 3, 0, 0))
if R3 & 1: SX("s52", 384, ("s51", 13), ("s4", 10))
A("s_mul_i32 s51, s51, 6144")
A("s_waitcnt lgkmcnt(0)")
STAMP(1)
if R3 & 2:
    sk = L("n3a")
    A(f"s_cmp_lg_u32 s4, 3\ns_cbranch_scc1 {sk}")
    A(f"buffer_load_dword v{vPF}, v{wM}, {RC}, s51 offen offset:{1024+384}")
    A.label(sk)
if R3 & 1: A(f"buffer_load_dword v{vPF}, v{wQ}, {RA}, s52 offen")
if OPT["wqpf"] == 22:
    sk = L("nh0")
    A(f"s_cmp_lt_u32 s3, 256\ns_cbranch_scc1 {sk}")
wq_dma()
if OPT["wqpf"] == 22: A.label(sk)
MBW = OPT["wmode"] in (1, 2)
MB2 = OPT["wmode"] == 2
MBN = OPT["wmode"] == 0
if OPT["ptouch"] and AS:
    SX("s40", 0, ("s3", 11), ("s4", 10), ("s46", 0))
    A(f"v_lshlrev_b32 v32, 13, v2")
    if OPT["ptouch"] == 1: A("s_barrier")
    A(f"buffer_load_dword v{vPF}, v32, {RA}, s40 offen")
if MBW:
    c_setup()
    A(f"buffer_load_dword v{wC}, v{T2}, {RE}, s46 offen {SNT}")
if MBN:
    A("s_lshl_b32 s42, s3, 4")
    SX("s40", 2048, (sDB, 0, 3, 8)); A("s_add_u32 s51, s51, s40")
    c_setup()
    A(f"buffer_load_dword v{wC}, v{T2}, {RE}, s46 offen {SNT}")
    if OPT["mbwait"] >= 0: A(f"s_waitcnt vmcnt({OPT['mbwait']})")
    else: A("s_barrier")
    for j, o in enumerate((0, 128, 2048, 2048+128)):
        A(f"s_add_u32 m0, s42, {PB + j*8192 - o}")
        A(f"buffer_load_dwordx4 v{wM}, {RC}, s51 offen offset:{o} {NT} lds")
cont(6)
w_common()
tr_setup()
A("s_waitcnt lgkmcnt(0)")
A(f"s_add_u32 {sTAG}, {sTAG}, {TAGC:#x}")
A.label("L_B")
def mw_dma():
    SX("s40", PB, ("s3", 10)); A("s_mov_b32 m0, s40")
    A(f"buffer_load_dwordx4 v{wM}, {RC}, s96 offen {NT} lds")
    A(f"s_add_u32 m0, s40, {8192-128}")
    A(f"buffer_load_dwordx4 v{wM}, {RC}, s96 offen offset:128 {NT} lds")
def mw_compute(vm):
    A(f"ds_read2_b64 v[{wXO}:{wXO+3}], v83 offset0:0 offset1:4\nds_read2_b64 v[{wXO+4}:{wXO+7}], v83 offset0:8 offset1:12")
    unit_pre("s98", "s98", PB)
    A(f"v_mov_b32 v{wD+9}, {sTAG}\nv_mov_b32 v{wD+11}, {sTAG}")
    A(f"s_waitcnt vmcnt({vm}) lgkmcnt(0)\ns_barrier")
    sk = L("nmw")
    A(f"s_cmp_ge_u32 s3, 4\ns_cbranch_scc1 {sk}" if vm == 2 else f"s_cmp_lt_u32 s3, 4\ns_cbranch_scc1 {sk}")
    unit_go()
    A("v_cmp_gt_u32 vcc, 32, v0")
    A(f"v_cndmask_b32 v36, v{wD+4}, v{wD}, vcc")
    pack4(36, wD+8, wD+10, 37)
    setexec(0x11111111, 0x11111111)
    A(f"buffer_store_dwordx4 v[{wD+8}:{wD+11}], v122, {RW}, s97 offen sc1")
    fullexec()
    STAMP(6)
    A.label(sk)
if MBW:
    if MB2: SX("s99", 0, ("s4", 0), ("s4", 2, 0, 2), ("s6", 2))
    else: A("s_mov_b32 s99, s58")
    SX("s96", 0, ("s7", 6), ("s3", 3))
    A("s_mul_i32 s96, s96, 6144")
    SX("s40", 2048, ("s99", 8)); A("s_add_u32 s96, s96, s40")
    if MB2:
        sk = L("nm2")
        A(f"{IS_NA}\ns_cbranch_scc1 {sk}")
        mw_dma()
        A.label(sk)
    SX("s97", MGT, ("s99", 13), ("s3", 0, 2, 10), ("s46", 0))
    SX("s40", 0, ("s99", 2, 0, 3), ("s7", 0))
    A("s_cmp_eq_u32 s40, 16\ns_cselect_b32 s98, 1.0, 0")
    VX(122, 32, 0, (5, 1, 12), (4, 1, 6), (2, 2, 4))
srd(RF, 2048)
SX("s47", 0, ("s4", 19), ("s43", 10), ("s46", 0))
wRW, wRR, wOF, wTA = 14, 15, 72, 108
SX("s40", RED, ("s3", 9)); VX(wRW, 32, "s40", (0, 6, 2))
SX("s40", RED, ("s3", 8)); VX(wRR, 32, "s40", (0, 6, 2))
VX(wOF, 32, 0, (0, 3, 7), (3, 1, 6), (4, 2, 4))
SX("s53", H1G, ("s43", 6))
if TK:
    VX(T3, 32, 0, (0, 6, 7)); A(f"s_movk_i32 s57, {TOK}")
else:
    VX(T3, 32, 0, (0, 2, 12))
    A("s_xor_b32 s57, s6, 1")
    SX("s57", H1G + 4, ("s57", 14), ("s3", 7))
wQA = 73; wQD = 76
VX(wQA, 32, 0, (5, 1, 12), (0, 5, 2))
SX("s56", QG, ("s4", 13), ("s5", 8), ("s3", 7))
A(f"v_add_u32 v{wTA}, s48, v{wTR}")
for t in range(1, 4):
    A(f"v_xor_b32 v{wTA+t}, {t*32:#x}, v{wTA}")
A(f"v_mov_b32 v{wQD+1}, {sTAG}\nv_mov_b32 v{wQD+3}, {sTAG}")
wGA, wCB, wXA, wXAD = 74, 75, 80, 81
tE, tOUT, tBP, tOF, tL16 = 84, 114, 115, 72, 116
SX("s59", Y6, ("s5", 15), ("s4", 12))
A("s_cmp_eq_u32 s3, 7\ns_cselect_b32 s40, 0, -1")
A("v_mov_b32 v118, s40\nv_mov_b32 v119, s40\nv_lshlrev_b32 v117, 3, v0")
SX("s41", 0, ("s3", 9), ("s59", 0))
VX(T1, 32, 0, (0, 4, 6), (4, 2, 4))
SX("s51", OG, ("s4", 14), ("s43", 5))
SX("s54", SG, ("s4", 9), ("s43", 7, 0, 7))
A(f"v_lshlrev_b32 v{T0}, 2, v1\nv_xor_b32 v{T0}, v0, v{T0}\nv_and_b32 v{T0}, 7, v{T0}\nv_lshlrev_b32 v{T0}, 3, v{T0}")
A(f"v_lshrrev_b32 v32, 5, v0\nv_lshl_or_b32 v{T0}, v32, 6, v{T0}")
VX(wXAD, 32, 0, (5, 1, 6), (2, 2, 4), (4, 1, 3))
SX("s60", X4, ("s7", 11), ("s3", 10), ("s6", 14), ("s4", 7))
A(f"s_add_u32 s52, s60, {Y4-X4}")
A("v_and_b32 v32, 1, v0\nv_lshlrev_b32 v32, 4, v32\nv_mov_b32 v33, 0x3f80\nv_lshlrev_b32 v32, v32, v33")
A("v_lshrrev_b32 v33, 2, v2\nv_sub_u32 v33, v1, v33\nv_bfe_u32 v34, v0, 1, 1\nv_lshl_or_b32 v33, v33, 1, v34")
for r in range(2):
    A(f"v_cmp_eq_u32 vcc, {r}, v33")
    A(f"v_cndmask_b32 v{tE+r}, 0, v32, vcc")
    A(f"v_mov_b32 v{tE+6+r}, v{tE+r}")
for r in (2, 3, 4, 5):
    A(f"v_mov_b32 v{tE+r}, 0")
VX(38, 33, 0, (0, 1, 3), (5, 1, 1), (4, 1, 2))
SX("s40", 0, ("s4", 0, 2, 4)); A(f"v_add_u32 v{tOUT}, s40, v38")
SX("s40", 0, ("s4", 2, 0, 7)); A(f"v_lshl_add_u32 v{tBP}, v{tOUT}, 1, s40")
SX("s62", 0, ("s4", 2, 0, 10), ("s5", 6))
A(f"v_lshlrev_b32 v{tL16}, 4, v0")
SX("s49", X4, ("s5", 10))
A("s_add_u32 s50, s49, 16384")
SX("s55", ST5, ("s4", 8), ("s7", 5), ("s6", 3))
VX(113, 33, 0, (5, 1, 4), (4, 1, 2))
SX("s61", MGT, ("s7", 12), ("s3", 11))
SX("s40", MGT + 3*32768, ("s5", 11))
A("s_cmp_eq_u32 s3, 2\ns_cselect_b32 s61, s40, s61\ns_cselect_b32 s40, 0, 0x10000\ns_add_u32 s63, s61, s40")
VX(120, 33, 0, (5, 1, 10), (0, 5, 1))
SX("s42", 0, ("s7", 7), ("s3", 6))
A(f"v_mov_b32 v{wXA}, 0")
def blk_frags(off):
    for t in range(4):
        for h in range(2):
            r = wWF + 4*t + 2*h
            A(f"ds_read_b64_tr_b16 v[{r}:{r+1}], v{wTA+t} offset:{off + h*2048}")
def h1_loads():
    tagged_loads(16, wOF, "s53")
    if not TK: A(f"buffer_load_dword v33, v{T3}, {RW}, s57 offen sc1")
NH = 2 if TK else 3
if MBN:
    VX(39, 32, 0, (5, 1, 12), (4, 1, 6), (2, 2, 4))
    sk = L("nmb")
    A(f"{IS_A}\ns_cbranch_scc1 {sk}")
    SX("s96", MGT, (sDB, 0, 3, 13), ("s3", 2, 0, 16), ("s3", 0, 2, 10), ("s46", 0))
    SX("s40", 0, (sDB, 2, 1, 3), ("s3", 2, 0, 4), ("s7", 0))
    A("s_cmp_eq_u32 s40, 16\ns_cselect_b32 s97, 1.0, 0")
    SX("s98", PB, ("s3", 2, 0, 14))
    silu_operand(4)
    A.label(sk)
def mb_blk(early):
    sk = L("nmc")
    A(f"{IS_A}\ns_cbranch_scc1 {sk}")
    VX(39, 32, 0, (5, 1, 12), (4, 1, 6), (2, 2, 4))
    unit_pre("s97", "s97", "s98")
    A(f"v_mov_b32 v{wD+9}, {sTAG}\nv_mov_b32 v{wD+11}, {sTAG}")
    if early: A(f"s_waitcnt vmcnt({NH}) lgkmcnt(0)\ns_barrier")
    unit_go()
    A("v_cmp_gt_u32 vcc, 32, v0")
    A(f"v_cndmask_b32 v32, v{wD+4}, v{wD}, vcc")
    pack4(32, wD+8, wD+10, 34)
    setexec(0x11111111, 0x11111111)
    A(f"buffer_store_dwordx4 v[{wD+8}:{wD+11}], v39, {RW}, s96 offen sc1")
    fullexec()
    STAMP(6)
    A.label(sk)
if TK:
    sk = L("ntk")
    A(f"{IS_NA}\ns_cbranch_scc1 {sk}\ns_cmp_lt_u32 s3, 4\ns_cbranch_scc1 {sk}")
    A("s_waitcnt vmcnt(0)")
    SX("s40", TOK - 16, (sDB, 10), ("s46", 0), ("s3", 2))
    A(f"s_mov_b64 exec, 1\nbuffer_store_dword v{wQD+1}, v0, {RW}, s40 offen sc1")
    fullexec()
    A.label(sk)
A(f"s_waitcnt vmcnt({OPT['h1at']})")
h1_loads()
if MBN and OPT["mbearly"]: mb_blk(True)
if MB2:
    sk = L("nm3")
    A(f"{IS_NA}\ns_cbranch_scc1 {sk}")
    mw_compute(2)
    A.label(sk)
A(f"s_waitcnt vmcnt({NH})")
if MBW:
    sk = L("nsl")
    A(f"{IS_A}\ns_cbranch_scc1 {sk}")
    silu_operand(NH)
    A.label(sk)
blk_frags(WQL)
STAMP(3)
if OPT["abl"] and "toq" not in OPT["abl"]: A("s_branch L_exit")
sk = L("nw0"); sk2 = L("nw1")
A(f"{IS_NA}\ns_cbranch_scc1 {sk if MBN and OPT['mbearly'] else sk2}")
if MB2: A(f"s_branch {sk}")
A.label(sk2)
A("s_waitcnt vmcnt(0)")
A.label(sk)
poll(h1_loads, lambda: tagged_chk([16], 33, None if TK else 33), first_issued=True, first_wait=1, sleep=OPT["s2"])
STAMP(4)
if OPT["diag"] == 1:
    A(f"s_waitcnt lgkmcnt(0)\ns_mul_i32 s40, {sCNT}, 10\ns_add_u32 s88, s64, s40")
tagged_pack(16)
A("s_waitcnt lgkmcnt(0)")
def blk_mfma(op):
    for t in range(4):
        mfma(wD + 4*t, op, wWF + 4*t, None)
def blk_reduce():
    A(f"v_permlane16_swap_b32 v{wD}, v{wD+4}\nv_permlane16_swap_b32 v{wD+8}, v{wD+12}")
    A(f"v_add_f32 v{wD}, v{wD}, v{wD+4}\nv_add_f32 v{wD+8}, v{wD+8}, v{wD+12}")
    A(f"ds_write2st64_b32 v{wRW}, v{wD}, v{wD+8} offset0:0 offset1:1")
    A("s_waitcnt lgkmcnt(0)\ns_barrier")
def blk_final():
    for i in range(4):
        A(f"ds_read2st64_b32 v[{32+2*i}:{33+2*i}], v{wRR} offset0:{4*i} offset1:{4*i+2}")
    A("s_waitcnt lgkmcnt(0)")
    A("v_add_f32 v32, v32, v33\nv_add_f32 v34, v34, v35\nv_add_f32 v36, v36, v37\nv_add_f32 v38, v38, v39")
    A("v_add_f32 v32, v32, v34\nv_add_f32 v36, v36, v38\nv_add_f32 v32, v32, v36")
blk_mfma(16)
rowsum([wD, wD+4, wD+8, wD+12])
blk_reduce()
sk = L("nq")
A(f"s_cmp_ge_u32 s3, 2\ns_cbranch_scc1 {sk}")
blk_final()
pack4(32, wQD, wQD+2, 33)
setexec(0x11111111, 0x11111111)
A(f"buffer_store_dwordx4 v[{wQD}:{wQD+3}], v{wQA}, {RW}, s56 offen")
fullexec()
A.label(sk)
STAMP(5)
if OPT["abl"]: A("s_branch L_exit")
if MBN and not OPT["mbearly"]: mb_blk(False)
if TK:
    sk = L("ntc")
    A(f"s_cmp_lg_u32 s3, 3\ns_cbranch_scc1 {sk}")
    A(f"buffer_load_dwordx4 v[32:35], v{T3}, {RW}, s57 offen sc1")
    A.label(sk)
A("s_barrier")
def o_loads():
    A(f"buffer_load_dwordx4 v[104:107], v{T1}, {RW}, s51 offen sc1")
def mc_loads():
    tagged_loads(128, wOF, "s61"); tagged_loads(136, wOF, "s63")
def wo_dma():
    if R3 & 4:
        SX("s40", 384, ("s4", 19), ("s5", 15), ("s3", 12))
        A(f"v_lshlrev_b32 v39, 10, v1\nbuffer_load_dword v{vPF}, v39, {RB}, s40 offen")
    A(f"s_add_u32 m0, s48, {WOL}")
    for u in range(4):
        if u: A(f"s_add_u32 s47, s47, {8*1024-1024}")
        A(f"buffer_load_dwordx4 v{wO}, {RB}, s47 offen offset:{u*1024} {NT} lds")
if MBW:
    sk = L("nm4")
    if MB2: A(f"{IS_A}\ns_cbranch_scc1 {sk}")
    mw_dma()
    A.label(sk)
NCW = 2 if MB2 else 3
sk = L("nc0")
A(f"s_cmp_ge_u32 s3, {NCW}\ns_cbranch_scc1 {sk}")
MCE = MB2 or (not MBW and (not MBN or OPT['mbearly']))
if MCE: mc_loads()
A(f"s_cmp_lg_u32 s58, 0\ns_cbranch_scc1 {sk}")
A(f"buffer_load_short_d16_hi v{wXA}, v120, {RD}, s42 offen")
A.label(sk)
A(f"buffer_store_dwordx2 v[118:119], v117, {RW}, s41 offen sc1")
if not TK: o_loads()
WOE = MBW and OPT["wo_mb"]
if MBW:
    if WOE:
        A("s_barrier"); wo_dma()
    sk5 = L("nm5")
    if MB2: A(f"{IS_A}\ns_cbranch_scc1 {sk5}")
    mw_compute(5 if WOE else 1)
    A.label(sk5)
if OPT["gtrg"]:
    A("s_cmp_lg_u32 s3, 3\ns_cbranch_scc1 L_trgd")
    if OPT["gmask"] == 7:
        VX(39, 32, 0, (0, 3, 7)); A(f"s_movk_i32 s40, {TRG}")
    else:
        VX(39, 32, 0, (0, 2, 7)); A(f"s_movk_i32 s40, {TRG + 512}")
    A(f"s_mov_b32 {sCNT}, 0")
    A.label("L_trg")
    A(f"buffer_load_dword v33, v39, {RW}, s40 offen sc1")
    A("s_waitcnt vmcnt(0)")
    A(f"v_cmp_ne_u32 vcc, {sTAG}, v33")
    A("s_cbranch_vccz L_trgd")
    A(f"s_sleep 2\ns_add_u32 {sCNT}, {sCNT}, 1\ns_cmp_lt_u32 {sCNT}, {OPT['trgmax']}\ns_cbranch_scc1 L_trg")
    A.label("L_trgd")
    A("s_barrier")
if not WOE: wo_dma()
if TK:
    sk = L("ntd")
    A(f"s_cmp_lg_u32 s3, 3\ns_cbranch_scc1 {sk}")
    tok_wait(T3, "s57", 32, 5 + (1 if R3 & 4 else 0))
    A.label(sk)
    A("s_barrier")
    o_loads()
sk = L("nc1")
A(f"s_cmp_ge_u32 s3, {NCW}\ns_cbranch_scc1 {sk}")
if not MCE: A("s_waitcnt vmcnt(2)")
poll(mc_loads, lambda: tagged_chk([128, 136], 33), first_issued=MCE, first_wait=4+TK, sleep=2)
tagged_pack(128); tagged_pack(136)
for i in range(2):
    for t in range(2):
        mfma(wD + 8*i + 4*t, 128 + 8*i, tE + 4*t, None)
rowsum([wD, wD+4, wD+8, wD+12])
A(f"v_permlane16_swap_b32 v{wD}, v{wD+4}\nv_permlane16_swap_b32 v{wD+8}, v{wD+12}")
A(f"v_add_f32 v{wGA}, v{wD}, v{wD+4}\nv_add_f32 v{wCB}, v{wD+8}, v{wD+12}")
STAMP(2)
A.label(sk)
A(f"s_waitcnt vmcnt({TK})")
blk_frags(WOL)
STAMP(7)
wF = 100
sg_load = lambda: A(f"buffer_load_dwordx2 v[16:17], v{T0}, {RW}, s54 offen sc1")
await_any(sg_load, lambda: A("v_cmp_o_f32 vcc, v17, v17"), OPT["s1"])
poll(sg_load, lambda: A("v_cmp_u_f32 vcc, v17, v17"), first_issued=True, sleep=2*OPT["s2"])
o_loads()
A(f"v_max_f32_dpp v18, v16, v16 quad_perm:[1,0,3,2] {DPPM}")
A(f"v_max_f32_dpp v18, v18, v18 quad_perm:[2,3,0,1] {DPPM}")
A(f"v_max_f32_dpp v18, v18, v18 row_half_mirror {DPPM}")
A("v_sub_f32 v16, v16, v18\nv_exp_f32 v16, v16\nv_mul_f32 v17, v16, v17")
for m in ("quad_perm:[1,0,3,2]", "quad_perm:[2,3,0,1]", "row_half_mirror"):
    A(f"v_add_f32_dpp v17, v17, v17 {m} {DPPM}")
A(f"v_rcp_f32 v17, v17\nv_mul_f32 v{wF}, v16, v17")
STAMP(8)
poll(o_loads, lambda: chk_empty4(104, 33), first_issued=True, first_wait=0)
STAMP(9)
A("s_waitcnt lgkmcnt(0)")
blk_mfma(104)
for t in range(4):
    A(f"v_mul_f32_dpp v{wD+4*t}, v{wF}, v{wD+4*t} row_newbcast:0 {DPPM}")
for r in range(1, 4):
    for t in range(4):
        A(f"v_fmac_f32_dpp v{wD+4*t}, v{wF}, v{wD+4*t+r} row_newbcast:{r} {DPPM}")
blk_reduce()
A("s_cmp_gt_u32 s3, 2\ns_cbranch_scc1 L_exit")
A("s_cmp_eq_u32 s3, 2\ns_cbranch_scc1 L_fin")
blk_final()
A(f"v_fma_f32 v32, v32, v{wGA}, v{wXA}")
A(f"v_mul_f32 v36, v32, v{wCB}")
A(f"v_mov_b32_dpp v33, v32 quad_perm:[1,1,3,3] {DPPM}")
A(f"v_mov_b32_dpp v37, v36 quad_perm:[1,1,3,3] {DPPM}")
A("v_cvt_pk_bf16_f32 v34, v32, v33\nv_cvt_pk_bf16_f32 v38, v36, v37")
A(f"v_mov_b32_dpp v35, v34 quad_perm:[2,2,2,2] {DPPM}")
A(f"v_mov_b32_dpp v39, v38 quad_perm:[2,2,2,2] {DPPM}")
setexec(0x11111111, 0x11111111)
A(f"buffer_store_dwordx2 v[38:39], v{wXAD}, {RW}, s52 offen sc1")
A(f"buffer_store_dwordx2 v[34:35], v{wXAD}, {RW}, s60 offen sc1")
STAMP(10)
A("s_branch L_exit")
A.label("L_fin")
if MB2:
    poll(lambda: tagged_loads(128, wOF, "s61"), lambda: tagged_chk([128], 33), sleep=2)
    tagged_pack(128)
    for t in range(2):
        mfma(wD + 4*t, 128, tE + 4*t, None)
    rowsum([wD, wD+4])
    A(f"v_permlane16_swap_b32 v{wD}, v{wD+4}")
    A(f"v_add_f32 v{wGA}, v{wD}, v{wD+4}")
def x4_loads():
    A(f"buffer_load_dwordx4 v[16:19], v{tOF}, {RW}, s49 offen sc1")
    A(f"buffer_load_dwordx4 v[20:23], v{tOF}, {RW}, s50 offen sc1")
def x4_chk():
    A("v_max3_u32 v33, v16, v17, v18\nv_max3_u32 v34, v19, v20, v21\nv_max3_u32 v33, v33, v22, v23\nv_max_u32 v33, v33, v34\nv_cmp_eq_u32 vcc, -1, v33")
poll(x4_loads, x4_chk)
STAMP(11)
for hp in range(2):
    for t in range(2):
        mfma(wD + 4*t, 16 + 4*hp, tE + 4*t, None if hp == 0 else wD + 4*t)
rowsum([wD, wD+4])
A(f"v_permlane16_swap_b32 v{wD}, v{wD+4}")
A(f"v_add_f32 v42, v{wD}, v{wD+4}")
A("v_mov_b32 v43, v42\nv_mul_f32 v44, v42, v42")
A("v_permlane16_swap_b32 v43, v44")
A("v_add_f32 v43, v43, v44")
for m in ("quad_perm:[1,0,3,2]", "quad_perm:[2,3,0,1]", "row_half_mirror", "row_mirror"):
    A(f"v_add_f32_dpp v43, v43, v43 {m} {DPPM}")
setexec(0x00010001, 0x00010001)
A(f"buffer_store_dword v43, v113, {RW}, s55 offen")
fullexec()
STAMP(12)
A(f"ds_bpermute_b32 v42, v{tBP}, v42\nds_bpermute_b32 v{wGA}, v{tBP}, v{wGA}")
def y6_loads():
    for i in range(4):
        A(f"buffer_load_dwordx4 v[{16+4*i}:{19+4*i}], v{tL16}, {RW}, s59 offen offset:{1024*i} sc1")
def y6_chk():
    for r in range(4):
        A(f"v_add_f32 v{16+r}, v{16+r}, v{20+r}\nv_add_f32 v{24+r}, v{24+r}, v{28+r}")
    for r in range(4):
        A(f"v_add_f32 v{16+r}, v{16+r}, v{24+r}")
    A("v_permlane32_swap_b32 v16, v17\nv_permlane32_swap_b32 v18, v19")
    A("v_add_f32 v16, v16, v17\nv_add_f32 v18, v18, v19")
    A("v_permlane16_swap_b32 v16, v18")
    A("v_add_f32 v16, v16, v18")
    A("v_cmp_u_f32 vcc, v16, v16")
await_any(lambda: A(f"buffer_load_dword v16, v{tL16}, {RW}, s59 offen sc1"), lambda: A("v_cmp_o_f32 vcc, v16, v16"), 2)
poll(y6_loads, y6_chk)
STAMP(13)
for m in ("row_ror:8", "row_ror:4", "row_ror:2"):
    A(f"v_add_f32_dpp v16, v16, v16 {m} {DPPM}")
A("s_waitcnt lgkmcnt(0)")
A(f"v_fma_f32 v16, v16, v{wGA}, v42")
A("v_cvt_pk_bf16_f32 v16, v16, v16")
setexec(0x00030003, 0x00030003)
A(f"buffer_store_short v16, v{tOUT}, {RF}, s62 offen")
A("s_cmp_lg_u32 s2, 128\ns_cbranch_scc1 L_exit")
A(f"s_sub_u32 s40, {sTAG}, {TAGC-1:#x}")
A("v_mov_b32 v17, s40\nv_mov_b32 v18, 0")
A("s_mov_b64 exec, 1")
A(f"buffer_store_dword v17, v18, {RW}, 0 offen sc1")

A("s_branch L_exit")
A.seg(40)
A.label("L_exit")
if STAMPS == 1:
    STAMP(15)
    A("s_waitcnt lgkmcnt(0)")
    A("s_mov_b64 exec, 1")
    SX("s40", DBG, ("s2", 9), ("s3", 6))
    A("v_mov_b32 v0, 0")
    for q in range(4):
        for i in range(4):
            A(f"v_mov_b32 v{4+4*q+i}, s{64+2*(4*q+i)}")
        A(f"buffer_store_dwordx4 v[{4+4*q}:{7+4*q}], v0, {RW}, s40 offen offset:{16*q}")
if STAMPS == 5:
    STAMP(15)
    A("s_waitcnt lgkmcnt(0)")
    A("s_mov_b64 exec, 1")
    SX("s40", DBG, ("s2", 6), ("s3", 3))
    A(f"v_mov_b32 v0, 0\nv_mov_b32 v4, s64\nv_mov_b32 v5, s{64+2*OPT['db']}")
    A(f"buffer_store_dwordx2 v[4:5], v0, {RW}, s40 offen sc1")
    SX("s40", 0, ("s2", 3), ("s3", 0))
    A(f"s_cmp_lg_u32 s40, {129*8+2}\ns_cbranch_scc1 L_end")
    A.label("L_w3")
    A("s_memrealtime s[42:43]\ns_waitcnt lgkmcnt(0)\ns_sub_u32 s41, s42, s94\ns_cmp_lt_u32 s41, 300\ns_cbranch_scc1 L_w3")
    fullexec()
    A("v_mbcnt_lo_u32_b32 v1, -1, 0\nv_mbcnt_hi_u32_b32 v1, -1, v1\nv_lshlrev_b32 v1, 4, v1")
    A(f"s_mov_b32 s40, {DBG + OPT['drole']*8192}")
    for i in range(8):
        if i == 4: A("s_add_u32 s40, s40, 4096")
        A(f"buffer_load_dwordx4 v[{8+4*i}:{11+4*i}], v1, {RW}, s40 offen offset:{(i%4)*1024} sc1")
    A("s_waitcnt vmcnt(0)")
    for i in range(1, 16):
        A(f"v_min_u32 v8, v8, v{8+2*i}\nv_max_u32 v9, v9, v{9+2*i}")
    A("v_readlane_b32 s44, v8, 0\nv_readlane_b32 s45, v9, 0")
    for l in range(1, 64):
        A(f"v_readlane_b32 s46, v8, {l}\nv_readlane_b32 s47, v9, {l}\ns_nop 3\ns_min_u32 s44, s44, s46\ns_max_u32 s45, s45, s47")
    A(f"s_sub_u32 s40, s45, s44\ns_mul_i32 s40, s40, {OPT['dm']}\ns_add_u32 s40, s40, 600\ns_min_u32 s40, s40, 30000")
    A.label("L_spin")
    A("s_memrealtime s[42:43]\ns_waitcnt lgkmcnt(0)\ns_sub_u32 s41, s42, s94\ns_cmp_lt_u32 s41, s40\ns_cbranch_scc1 L_spin")
if STAMPS == 3:
    STAMP(15)
    A("s_waitcnt lgkmcnt(0)")
    SX("s40", 0, ("s2", 3), ("s3", 0))
    A(f"s_cmp_lg_u32 s40, {OPT['dwg']*8 + OPT['dwv']}\ns_cbranch_scc1 L_end")
    A(f"s_sub_u32 s40, s{64+2*OPT['db']}, s{64+2*OPT['da']}")
    A(f"s_mul_i32 s40, s40, {OPT['dm']}")
    A("s_min_u32 s40, s40, 30000")
    A.label("L_spin")
    A("s_memrealtime s[42:43]\ns_waitcnt lgkmcnt(0)\ns_sub_u32 s41, s42, s94\ns_cmp_lt_u32 s41, s40\ns_cbranch_scc1 L_spin")
if STAMPS == 2:
    STAMP(15)
    A("s_load_dwordx2 s[32:33], s[0:1], 96")
    A("s_mov_b32 s34, 256\ns_mov_b32 s35, 0x00020000")
    A("s_waitcnt lgkmcnt(0)")
    fullexec()
    A("v_mov_b32 v4, 0\nv_mbcnt_lo_u32_b32 v5, -1, 0\nv_lshlrev_b32 v5, 2, v5")
    A("s_cmp_ge_u32 s2, 128\ns_cbranch_scc1 L_dw")
    A("s_cmp_lg_u32 s3, 0\ns_cbranch_scc1 L_end")
    A("s_not_b32 s40, s64\nv_writelane_b32 v4, s40, 0")
    for i, st in enumerate([9, 2, 5, 7, 10, 11, 8]):
        A(f"v_writelane_b32 v4, s{64+2*st}, {i+1}")
    A("s_branch L_dd")
    A.label("L_dw")
    A("s_cmp_lg_u32 s3, 2\ns_cbranch_scc1 L_end")
    for i, st in enumerate([0, 3, 4, 5, 7, 9, 11, 15]):
        A(f"v_writelane_b32 v4, s{64+2*st}, {i+8}")
    A.label("L_dd")
    A("s_mov_b64 exec, 0xffff")
    A("buffer_atomic_umax v4, v5, s[32:35], 0 offen")
A.label("L_end")
A("s_endpgm")
A.label("L_codeend")
A.raw(f".fill (16384 - (L_codeend - {NAME}_kernel)) / 4, 4, 0xbf810000")
A.raw(f""".section .rodata,"a"
.p2align 6
.amdhsa_kernel {NAME}_kernel
  .amdhsa_next_free_vgpr 152
  .amdhsa_next_free_sgpr 102
  .amdhsa_accum_offset 152
  .amdhsa_group_segment_fixed_size 0
  .amdhsa_kernarg_size 112
  .amdhsa_user_sgpr_count 2
  .amdhsa_user_sgpr_kernarg_segment_ptr 1
  .amdhsa_system_sgpr_workgroup_id_x 1
  .amdhsa_float_denorm_mode_32 3
.end_amdhsa_kernel""")
sys.stdout.write(A.text())
sys.stderr.write(f"instrs={A.ninstr} nops={A.nops}\n")
```

```python
import sys, math, struct
sys.path.insert(0, "work")
from asmlib import Asm

NAME = "adaLN_cond__sliding_block_cached__glu_gated_reglu__decode"
OPT = dict(stamps=0, nt="nt", limit=20000, refresh=255, psleep=0, pf=4, pfnt="", smallnt="", slow=0, gtrg=0, gw=7, gmask=7, fpf=0, wo_after_c=0, fpfbar=1, fpfl="", uslocal=1, qn=4, trg=0, mb_at="kv", touch=0, ltouch=1, ahold=4, wqpf=0, wqpfl="", ehold=0, depth=0, ffn_first=0, ser=1, obar=1, gu_b1=0, dn_late=0, dn_p=0, diag=0, rot=7, vt=1, tokf=1, r3=7, swp=-1, ns=16, help=0, helpbar=1, tokl=7, asplit=1, wmode=0, ptouch=0, nv1=3, wfirst=3, tok=1, gufirst=1, mfb1=1, mbearly=1, ftouch=0, ftouch2=0, mbg=3, mbwait=-1, g_b1=0, wo_mb=1, h1at=1, depth_until=16, qpipe=1, s1=6, s2=1, sent=1, trgmax=24, drole=0, dwg=10, dwv=1, da=0, db=15, dm=20, kvbar=1, abl="")
for a in sys.argv[1:]:
    k, v = a.split("=")
    OPT[k] = int(v) if v.lstrip("-").isdigit() else v
STAMPS = OPT["stamps"]; NT = OPT["nt"] if OPT["nt"] != "-" else ""
LIMIT = OPT["limit"]; REFRESH = OPT["refresh"]; SNT = OPT["smallnt"]

def f32(x): return "0x%08x" % struct.unpack("<I", struct.pack("<f", x))[0]

TRG = 0x1000; TOK = 0x4000; H1G = 0x8000; QG = 0x10000; MGT = 0x20000
CLR = 0x100000
OG = CLR; MG = CLR + 0x20000; X4 = CLR + 0x30000; Y4 = CLR + 0x38000
G5 = CLR + 0x40000; SG = CLR + 0x5C000; ST5 = CLR + 0x5D000; US5 = CLR + 0x60000
Y6 = 0x180000; DBG = 0x400000
WS_BYTES = 0x800000
TAGC = 0x9E3779B9
VREG = 65536; PA = 131072; XL = 147456; QL = XL + 1024; PL = QL + 2048; MISC = PL + 2048
FG = 0; FD = 32768; YL0 = 131072
WQL = 0; WOL = 32768; PB = 65536; RED = XL + 1024
LDS_BYTES = MISC + 256
C1 = 128 ** -0.5 * math.log2(math.e)

A = Asm()
hdr = open(f"cdna_kernels/{NAME}.s.ref").read().split("\n")
for ln in hdr:
    if ln.startswith("; @launch"):
        A.raw(f"; @launch grid=(256,1,1) block=(512,1,1) lds={LDS_BYTES}")
        break
    A.raw(ln)
A.raw('.amdgcn_target "amdgcn-amd-amdhsa--gfx950"')
A.raw(f".text\n.globl {NAME}_kernel\n.p2align 8\n.type {NAME}_kernel,@function\n{NAME}_kernel:")

RA, RB, RW, RC, RD, RE, RF = "s[8:11]", "s[12:15]", "s[16:19]", "s[20:23]", "s[24:27]", "s[28:31]", "s[32:35]"
sTAG, sCNT, sT = "s36", "s37", "s45"
def STAMP(n):
    if STAMPS:
        A(f"s_memrealtime s[{64+2*n}:{65+2*n}]")
DPPM = "row_mask:0xf bank_mask:0xf"
lbl = [0]
def L(p):
    lbl[0] += 1
    return f"L_{p}_{lbl[0]}"
def srd(r, nbytes):
    b = int(r[2:r.index(":")])
    A((f"s_movk_i32 s{b+2}, {nbytes}" if nbytes < 32768 else f"s_mov_b32 s{b+2}, {nbytes}") + f"\ns_mov_b32 s{b+3}, s11")
def kload(r, off):
    b = int(r[2:r.index(":")])
    A(f"s_load_dwordx2 s[{b}:{b+1}], s[0:1], {off}")

def SX(dst, const, *terms):
    first = True
    for t in terms:
        src, rs, w, ls = (t[0], 0, 0, t[1]) if len(t) == 2 else t
        d = dst if first else sT
        cur = src
        if w:
            if rs == 0: A(f"s_and_b32 {d}, {cur}, {(1<<w)-1}")
            else: A(f"s_bfe_u32 {d}, {cur}, {(w<<16)|rs:#x}")
            cur = d
        elif rs:
            A(f"s_lshr_b32 {d}, {cur}, {rs}"); cur = d
        if first:
            if ls: A(f"s_lshl_b32 {d}, {cur}, {ls}")
            elif cur != d: A(f"s_mov_b32 {d}, {cur}")
        else:
            if 1 <= ls <= 4: A(f"s_lshl{ls}_add_u32 {dst}, {cur}, {dst}")
            else:
                if ls: A(f"s_lshl_b32 {sT}, {cur}, {ls}"); cur = sT
                A(f"s_add_u32 {dst}, {dst}, {cur}")
        first = False
    if const: A(f"s_add_u32 {dst}, {dst}, {const:#x}")
def VX(dst, tmp, add, *terms):
    first = True
    for rs, w, ls in terms:
        if rs == 4 and w == 2: cur = "v1"
        elif rs == 0 and w == 4: cur = "v2"
        elif rs == 0 and w == 6: cur = "v0"
        else:
            d = f"v{dst}" if first else f"v{tmp}"
            if rs + w == 6: A(f"v_lshrrev_b32 {d}, {rs}, v0")
            elif rs == 0: A(f"v_and_b32 {d}, {(1<<w)-1}, v0")
            else: A(f"v_bfe_u32 {d}, v0, {rs}, {w}")
            cur = d
        if first:
            if ls: A(f"v_lshlrev_b32 v{dst}, {ls}, {cur}")
            elif cur != f"v{dst}": A(f"v_mov_b32 v{dst}, {cur}")
        else:
            if ls: A(f"v_lshl_or_b32 v{dst}, {cur}, {ls}, v{dst}")
            else: A(f"v_or_b32 v{dst}, {cur}, v{dst}")
        first = False
    if add: A(f"v_add_u32 v{dst}, {add}, v{dst}")

def cont(n):
    t = L("c")
    A(f"s_branch {t}")
    A.seg(n); A.label(t)
def await_any(load, valid, sleep):
    if not OPT["sent"]: return
    top, done = L("aw"), L("awd")
    A(f"s_mov_b32 {sCNT}, 0")
    A.label(top)
    load()
    A("s_waitcnt vmcnt(0)")
    valid()
    A(f"s_cbranch_vccnz {done}")
    A(f"s_sleep {sleep}\ns_add_u32 {sCNT}, {sCNT}, 1\ns_cmp_lt_u32 {sCNT}, 64\ns_cbranch_scc1 {top}")
    A.label(done)
def poll(loads, check, first_issued=False, first_wait=0, sleep=0, anyok=False):
    top, done, chk = L("poll"), L("got"), L("chk")
    A(f"s_mov_b32 {sCNT}, 0")
    if first_issued:
        A(f"s_waitcnt vmcnt({first_wait})")
        A(f"s_branch {chk}")
    A.label(top)
    loads()
    A("s_waitcnt vmcnt(0)")
    if first_issued:
        A.label(chk)
    check()
    A(f"s_cbranch_vcc{'n' if anyok else ''}z {done}")
    if sleep: A(f"s_sleep {sleep}")
    A(f"s_add_u32 {sCNT}, {sCNT}, 1")
    A(f"s_and_b32 {sT}, {sCNT}, {REFRESH}\ns_cbranch_scc1 {top}")
    A("buffer_wbl2 sc1")
    A(f"s_cmp_lt_u32 {sCNT}, {LIMIT}\ns_cbranch_scc1 {top}")
    A.label(done)
def chk_empty4(r, tmp):
    A(f"v_max3_u32 v{tmp}, v{r}, v{r+1}, v{r+2}\nv_max_u32 v{tmp}, v{tmp}, v{r+3}\nv_cmp_eq_u32 vcc, -1, v{tmp}")
def pack4(src, pk, pk2, tmp):
    A(f"v_mov_b32_dpp v{tmp}, v{src} quad_perm:[1,1,3,3] {DPPM}")
    A(f"v_cvt_pk_bf16_f32 v{pk}, v{src}, v{tmp}")
    A(f"v_mov_b32_dpp v{pk2}, v{pk} quad_perm:[2,2,2,2] {DPPM}")
def setexec(lo, hi):
    A(f"s_mov_b32 exec_lo, {lo:#x}\ns_mov_b32 exec_hi, {hi:#x}")
def fullexec():
    A("s_mov_b64 exec, -1")
def mfma(d, a, b, c):
    cc = "0" if c is None else f"v[{c}:{c+3}]"
    A(f"v_mfma_f32_16x16x32_bf16 v[{d}:{d+3}], v[{a}:{a+3}], v[{b}:{b+3}], {cc}")
def rowsum(ds):
    for d in ds: A(f"v_add_f32 v{d}, v{d}, v{d+1}\nv_add_f32 v{d+2}, v{d+2}, v{d+3}")
    for d in ds: A(f"v_add_f32 v{d}, v{d}, v{d+2}")
def code_prefetch(tmp, dst):
    sk = L("npf")
    A(f"s_cmp_lt_u32 s3, 6\ns_cbranch_scc1 {sk}")
    A("s_and_b32 s38, s38, 0xffffff00")
    A(f"v_lshlrev_b32 v{tmp}, 7, v0")
    A(f"s_and_b32 s40, s3, 1\ns_lshl_b32 s40, s40, 13")
    A(f"v_add_u32 v{tmp}, s40, v{tmp}")
    if not OPT["pf"]: A(f"v_mov_b32 v{tmp}, 0")
    A(f"global_load_dword v{dst}, v{tmp}, s[38:39] {OPT['pfnt']}")
    A.label(sk)

wM, wQ, wO, wTR, T0, T1, T2, T3, vPF = 3, 4, 5, 6, 7, 8, 9, 10, 11
wC = 12; wXS = 13; wX = 16; wXO = 24; wWF = 40; wD = 56
def swz_chunk(dst):
    A(f"v_lshlrev_b32 v{dst}, 1, v1\nv_xor_b32 v{dst}, v0, v{dst}\nv_and_b32 v{dst}, 7, v{dst}\nv_lshlrev_b32 v{dst}, 4, v{dst}")
def unit_dma(srdr, s0, s1, base):
    A(f"s_add_u32 m0, s42, {base}")
    A(f"buffer_load_dwordx4 v{wM}, {srdr}, {s0} offen {NT} lds")
    A(f"s_add_u32 m0, s42, {base+8192}")
    A(f"buffer_load_dwordx4 v{wM}, {srdr}, {s1} offen {NT} lds")
def tr_setup():
    VX(wTR, 32, 0, (2, 4, 7), (3, 2, 5), (0, 2, 3))
    SX("s40", XL, ("s3", 0, 2, 8))
    VX(82, 32, "s40", (0, 6, 2))
    VX(83, 32, "s40", (2, 1, 7), (4, 2, 3))
def silu_operand(cnt):
    A(f"s_waitcnt vmcnt({cnt})")
    A(f"v_lshlrev_b32 v32, 16, v{wC}\nv_and_b32 v33, 0xffff0000, v{wC}")
    A(f"v_mul_f32 v34, {f32(-math.log2(math.e))}, v32\nv_mul_f32 v35, {f32(-math.log2(math.e))}, v33")
    A("v_exp_f32 v34, v34\nv_exp_f32 v35, v35")
    A("v_add_f32 v34, 1.0, v34\nv_add_f32 v35, 1.0, v35")
    A("v_rcp_f32 v34, v34\nv_rcp_f32 v35, v35")
    A("v_mul_f32 v32, v32, v34\nv_mul_f32 v33, v33, v35")
    A("v_cvt_pk_bf16_f32 v32, v32, v33")
    A("ds_write_b32 v82, v32")
    A("s_waitcnt lgkmcnt(0)")
    A(f"ds_read2_b64 v[{wXO}:{wXO+3}], v83 offset0:0 offset1:4\nds_read2_b64 v[{wXO+4}:{wXO+7}], v83 offset0:8 offset1:12")
def unit_pre(s_c0, s_c1, base):
    SX("s40", 0, ("s3", 0, 2, 5)); A(f"v_xor_b32 v112, s40, v{wTR}\nv_add_u32 v112, {base}, v112")
    for i in range(4):
        A(f"v_mov_b32 v{wD+i}, {s_c0}\nv_mov_b32 v{wD+4+i}, {s_c1}")
def unit_go():
    if STAMPS: A("s_waitcnt lgkmcnt(0)")
    for k in range(2):
        for seg in range(2):
            for h in range(2):
                r = wWF + seg*8 + k*4 + h*2
                A(f"ds_read_b64_tr_b16 v[{r}:{r+1}], v112 offset:{seg*8192 + k*4096 + h*2048}")
    for k in range(2):
        for seg in range(2):
            A(f"s_waitcnt lgkmcnt({6 - 4*k - 2*seg})")
            mfma(wD + 4*seg, wXO + 4*k, wWF + seg*8 + k*4, wD + 4*seg)
def unit_mfma(s_c0, s_c1, base):
    unit_pre(s_c0, s_c1, base); unit_go()
def tagged_loads(r, va, so):
    A(f"buffer_load_dwordx4 v[{r}:{r+3}], v{va}, {RW}, {so} offen sc1")
    A(f"buffer_load_dwordx4 v[{r+4}:{r+7}], v{va}, {RW}, {so} offen offset:1024 sc1")
def tagged_chk(rs, tmp, extra=None):
    tags = [r + i for r in rs for i in (1, 3, 5, 7)] + ([extra] if extra else [])
    A(f"v_xor_b32 v{tmp}, {sTAG}, v{tags[-1]}")
    for t in tags[:-1]:
        A(f"v_bitop3_b32 v{tmp}, v{t}, {sTAG}, v{tmp} bitop3:0xbe")
    A(f"v_cmp_ne_u32 vcc, 0, v{tmp}")
def tagged_pack(r):
    A(f"v_mov_b32 v{r+1}, v{r+2}\nv_mov_b32 v{r+2}, v{r+4}\nv_mov_b32 v{r+3}, v{r+6}")
def tok_wait(va, so, r, fw=None):
    def chk():
        A(f"v_xor_b32 v{r}, {sTAG}, v{r}")
        for i in (1, 2, 3): A(f"v_bitop3_b32 v{r}, v{r+i}, {sTAG}, v{r} bitop3:0xbe")
        A(f"v_cmp_ne_u32 vcc, 0, v{r}")
    poll(lambda: A(f"buffer_load_dwordx4 v[{r}:{r+3}], v{va}, {RW}, {so} offen sc1"), chk, sleep=2, first_issued=fw is not None, first_wait=fw or 0)
def sum8(dst, r):
    A(f"v_add_f32 v32, v{r}, v{r+1}\nv_add_f32 v33, v{r+2}, v{r+3}\nv_add_f32 v34, v{r+4}, v{r+5}\nv_add_f32 v35, v{r+6}, v{r+7}")
    A(f"v_add_f32 v32, v32, v33\nv_add_f32 v34, v34, v35\nv_add_f32 v{dst}, v32, v34")

STAMP(0)
A("s_cmp_ge_u32 s2, 256\ns_cbranch_scc1 L_end")
A("s_cmp_ge_u32 s2, 128\ns_cselect_b32 s40, 24, 8\ns_cselect_b32 s41, 0, 16")
A("s_load_dwordx2 s[8:9], s[0:1], s40")
if OPT["diag"] == 6: A("s_waitcnt lgkmcnt(0)\ns_memrealtime s[100:101]")
kload(RC, 80)
A("s_load_dwordx2 s[24:25], s[0:1], s41")
kload(RE, 72); kload(RW, 104)
if OPT["diag"] == 7: A("s_memrealtime s[100:101]")
A("v_readfirstlane_b32 s3, v0")
A("s_getpc_b64 s[38:39]")
if OPT["pf"] == 4:
    A("s_and_b32 s38, s38, 0xffffff00")
    A(f"v_and_b32 v{vPF}, 0x1c0, v0\ns_lshl_b32 s40, s2, 7\ns_and_b32 s40, s40, 0x3c00\nv_lshl_or_b32 v{vPF}, v{vPF}, 1, s40")
    sk = L("npf")
    A(f"s_cmp_ge_u32 s2, 128\ns_cbranch_scc1 {sk}")
    A(f"global_load_dword v{vPF}, v{vPF}, s[38:39]")
    A.label(sk)
A("v_and_b32 v0, 63, v0")
if OPT["diag"] == 8: A("s_memrealtime s[100:101]")
A("s_mov_b32 s11, 0x00020000")
A("v_lshrrev_b32 v1, 4, v0\nv_and_b32 v2, 15, v0")
A(f"s_add_u32 s4, s2, {OPT['rot']}\ns_and_b32 s4, s4, 7\ns_bfe_u32 s6, s2, 0x10006\ns_bfe_u32 s7, s2, 0x30003")
A(f"v_lshlrev_b32 v{T3}, 1, v1\nv_xor_b32 v{T3}, v2, v{T3}\nv_lshlrev_b32 v{T3}, 4, v{T3}")
A("s_lshl1_add_u32 s58, s4, s6\ns_lshl_b32 s46, s7, 7\ns_mov_b32 s27, s11")
A(f"v_and_b32 v{T1}, 0x70, v{T3}\nv_lshrrev_b32 v{T0}, 3, v0")
if OPT["diag"] == 9: A("s_memrealtime s[100:101]")
srd(RC, 3145728); srd(RE, 2048)
A(f"v_mul_u32_u24 v{wM}, 6144, v{T0}\nv_add_u32 v{wM}, v{wM}, v{T1}")
if OPT["diag"] == 10: A("s_memrealtime s[100:101]")
if OPT["wfirst"]:
    A("s_cmp_lt_u32 s2, 128\ns_cbranch_scc1 L_KV")
    A.seg(OPT["wfirst"]); A.label("L_KV")
else:
    A("s_cmp_ge_u32 s2, 128\ns_cbranch_scc1 L_W")
def ids2():
    A("s_lshr_b32 s3, s3, 6\ns_bfe_u32 s5, s2, 0x40003")
    if STAMPS:
        for i in range(2, 16): A(f"s_mov_b32 s{64+2*i}, 0")
    srd(RW, WS_BYTES)

vE, vO, vQO = 120, 121, 122
vKA = 108
vQ = 14
vKF = 16
vVF = 48
vQF = 80
vS = 96
vP = 104
vOA = 108
vST = 114
vOAD, vSAD = 116, 117
A(f"v_lshl_or_b32 v{vE}, v1, 8, v{T3}\nv_xor_b32 v{vO}, 0x80, v{vE}")
A("s_lshl_b32 s43, s3, 7\ns_mov_b32 s10, 33554432\ns_mov_b32 s26, s10")
SX("s56", 6144*256, ("s6", 24), ("s4", 21), ("s7", 16), ("s43", 0))
A("s_add_u32 s57, s56, 4096\ns_mov_b32 m0, s43")
def kv_dma(u):
    r = RA if u < 8 else RD
    A(f"buffer_load_dwordx4 v{vE if u%2==0 else vO}, {r}, {'s56' if u%8 < 4 else 's57'} offen offset:{(u%4)*1024} {NT} lds")
HELP = OPT["help"]
if HELP & 1:
    kload(RF, 24); srd(RF, 4194304)
    A(f"v_lshlrev_b32 v{wQ}, 13, v{T0}")
    SX("s44", 0, ("s6", 19), ("s3", 10), ("s4", 10), ("s46", 0))
if HELP & 2:
    A(f"v_and_b32 v{T2}, 0x40, v{T1}\nv_add_u32 v{T2}, v{wM}, v{T2}\nv_add_u32 v{T2}, v{T2}, v{T1}") if False else None
    A(f"v_mul_u32_u24 v{T2}, 6144, v{T0}\nv_and_b32 v{wO}, 1, v0\nv_lshl_add_u32 v{T2}, v{wO}, 7, v{T2}")
    SX("s51", 0, ("s7", 6), ("s3", 3, 0, 0))
    A("s_mul_i32 s51, s51, 6144")
    SX("s40", 2048, ("s4", 8), ("s6", 11)); A("s_add_u32 s51, s51, s40")
A("s_waitcnt lgkmcnt(0)")
if OPT["diag"] == 5: A("s_memrealtime s[100:101]")
if HELP & 1: A(f"buffer_load_dword v16, v{wQ}, {RF}, s44 offen")
if HELP & 2: A(f"buffer_load_dword v17, v{T2}, {RC}, s51 offen")
if HELP and OPT["helpbar"]: A("s_barrier")
VT = OPT["vt"]
if VT:
    A(f"s_add_u32 m0, s43, {VREG}")
    kv_dma(8)
    A("s_mov_b32 m0, s43")
if OPT["slow"]: kv_dma(0)
if OPT["pf"] == 3:
    A("s_and_b32 s38, s38, 0xffffff00")
    SX("s40", 0, ("s2", 3, 4, 10), ("s3", 1))
    A("s_load_dword s99, s[38:39], s40")
A(f"s_load_dword {sTAG}, s[16:17], 0")
if OPT["slow"]: A("s_waitcnt vmcnt(0)")
def mb_issue():
    SX("s51", 0, ("s7", 6), ("s3", 3, 0, 0))
    A("s_mul_i32 s51, s51, 6144\ns_lshl_b32 s42, s3, 4")
    SX("s40", 2048, ("s58", 8)); A("s_add_u32 s51, s51, s40")
    A(f"s_add_u32 m0, s42, {PA}")
    A(f"buffer_load_dwordx4 v{wM}, {RC}, s51 offen {NT} lds")
    A(f"s_add_u32 m0, s42, {PA + 8192 - 128}")
    A(f"buffer_load_dwordx4 v{wM}, {RC}, s51 offen offset:128 {NT} lds")
    VX(T2, T3, 0, (5, 1, 10), (0, 5, 2))
    A(f"buffer_load_dword v{wC}, v{T2}, {RE}, s46 offen {SNT}")
def kv_issue(u0, u1):
    for u in range(u0, u1):
        if u in (4, 12): A("s_add_u32 m0, m0, 4096")
        if u == 8:
            A(f"s_add_u32 m0, s43, {VREG}")
            if VT: continue
        kv_dma(u)
NS = OPT["ns"]
kv_issue(1 if OPT["slow"] else 0, NS)
cont(30)
ids2()
if STAMPS: A("s_mov_b32 s66, 0")
def after_issue():
    if OPT["tokf"]:
        sk = L("ntw")
        A(f"s_cmp_lg_u32 s3, 0\ns_cbranch_scc1 {sk}")
        A(f"buffer_load_dword v144, v140, {RW}, s41 offen sc1")
        A(f"s_waitcnt vmcnt(8)")
        A.label(sk)
    STAMP(2)
    if OPT["abl"]:
        A("s_waitcnt vmcnt(0)")
        STAMP(4)
        A("s_branch L_exit")
    if OPT["tokl"] and not OPT["tokf"]:
        sk = L("ntl")
        A(f"s_cmp_lg_u32 s3, 7\ns_cbranch_scc1 {sk}")
        A(f"s_waitcnt vmcnt({OPT['tokl']})")
        A(f"buffer_load_dwordx4 v[144:147], v140, {RW}, s41 offen sc1")
        A.label(sk)
GT = 0
if OPT["tokf"]:
    A("v_lshlrev_b32 v140, 2, v2"); SX("s41", TRG, ("s4", 7))
else: A(f"v_lshlrev_b32 v140, 7, v0\ns_movk_i32 s41, {TOK}")
if NS == 16: after_issue()
kload(RC, 48); kload(RB, 56); kload(RE, 64)
FF = OPT["ffn_first"]
if FF: FG = VREG; FD = VREG + 32768
wG, wDO, fMF = 124, 125, 123
A(f"v_mul_u32_u24 v{wG}, 3584, v{T0}\nv_add_u32 v{wG}, v{wG}, v{T1}\nv_lshl_or_b32 v{wDO}, v{T0}, 10, v{T1}")
A("s_cmp_lt_u32 s4, 7")
A("s_cselect_b32 s22, 1835008, 0\ns_cselect_b32 s14, 1835008, 0\ns_mov_b32 s15, s11\ns_cselect_b32 s30, 1835008, 0")
SX("s63", 0, ("s4", 4), ("s5", 0))
SX("s49", 0, ("s63", 0, 2, 7), ("s3", 4))
A("s_mul_i32 s49, s49, 3584")
SX("s50", 0, ("s63", 2, 0, 7))
A(f"s_add_u32 s49, s49, s50\ns_add_u32 s50, s49, {8*3584-1024}")
SX("s51", 0, ("s63", 14), ("s3", 7))
A(f"s_add_u32 s52, s51, {8*1024-1024}")
A("s_lshl_b32 s42, s3, 11")
def g_dma():
    A(f"s_add_u32 m0, s42, {FG}")
    A(f"buffer_load_dwordx4 v{wG}, {RC}, s49 offen {NT} lds")
    A(f"buffer_load_dwordx4 v{wG}, {RC}, s50 offen offset:1024 {NT} lds")
def u_dma():
    A(f"s_add_u32 m0, s42, {FG+16384}")
    A(f"buffer_load_dwordx4 v{wG}, {RB}, s49 offen {NT} lds")
    A(f"buffer_load_dwordx4 v{wG}, {RB}, s50 offen offset:1024 {NT} lds")
def gu_dma():
    g_dma(); u_dma()
def dn_dma():
    A(f"s_add_u32 m0, s42, {FD}")
    A(f"buffer_load_dwordx4 v{wDO}, {RE}, s51 offen {NT} lds")
    A(f"buffer_load_dwordx4 v{wDO}, {RE}, s52 offen offset:1024 {NT} lds")
def ffn_dma():
    gu_dma(); dn_dma()
GB1 = OPT["gu_b1"] and OPT["ser"] and not FF
SX("s98", ST5, ("s4", 8))
SX("s96", G5, ("s63", 10))
A(f"s_add_u32 s97, s96, {US5-G5}")
if OPT["ftouch"]:
    A("v_mul_u32_u24 v118, 3584, v2\nv_lshlrev_b32 v119, 10, v2")
SX("s44", QG, ("s58", 12), ("s3", 10))
vQ = 100
A(f"v_lshlrev_b32 v{vQO}, 4, v0")
VX(fMF, T2, 0, (0, 3, 7), (3, 1, 6), (4, 2, 4))
SX("s59", MGT + 2*32768, ("s63", 0, 2, 13), ("s3", 0, 2, 11))
SX("s40", 0, ("s3", 2, 0, 15)); A("s_sub_u32 s59, s59, s40")
VX(T2, 0, 0, (0, 3, 1))
A(f"v_xor_b32 v{T2}, v1, v{T2}\nv_lshlrev_b32 v{T2}, 4, v{T2}\nv_lshl_or_b32 v{T2}, v2, 8, v{T2}")
A(f"v_add_u32 v{vKA}, s43, v{T2}")
for t in range(1, 4):
    A(f"v_xor_b32 v{vKA+t}, {t*64:#x}, v{vKA}")
vQW, vQR, vVR, vMX, vPW, vPR, vMW = 3, 4, 5, 6, 113, 13, 112
SX("s40", QL, ("s3", 5))
VX(vQW, T2, "s40", (1, 4, 7), (5, 1, 4), (0, 1, 3))
VX(vQR, T2, QL, (4, 2, 7), (0, 3, 4))
A(f"v_bfe_u32 v{T0}, v0, 2, 3\nv_xor_b32 v{T0}, s3, v{T0}")
VX(vVR, T2, VREG, (2, 4, 8), (0, 2, 3))
A(f"v_lshl_or_b32 v{vVR}, v{T0}, 5, v{vVR}")
VX(vMX, T2, MISC, (0, 2, 5))
A(f"s_lshl_b32 s40, s3, 2\nv_add_u32 v{vMW}, s40, v{vMX}")
VX(vPR, T2, PL, (4, 2, 6), (0, 2, 4))
A(f"s_lshl_b32 s40, s3, 8\nv_and_b32 v{T2}, 12, v0\nv_add3_u32 v{vPW}, s40, v{vPR}, v{T2}")
A("s_mov_b32 s60, 0xf0f0f0f0\ns_mov_b32 s61, s60\ns_mov_b32 s46, 0xff00ff00\ns_mov_b32 s47, s46")
VX(vOAD, T2, 0, (0, 2, 12), (4, 2, 4))
SX("s53", OG, ("s4", 14), ("s3", 1, 0, 10), ("s5", 6), ("s3", 0, 1, 3))
VX(vSAD, T2, 0, (0, 2, 7))
SX("s54", SG, ("s4", 9), ("s5", 3))
A(f"s_mov_b32 s55, {f32(C1)}")
fWF = 128 if FF else 84
fDF = 144 if FF else 64
def ffn_frag_addr(wr, ta, tr):
    VX(tr, 32, 0, (2, 4, 7), (3, 2, 5), (0, 2, 3))
    SX("s40", 0, ("s3", 0, 2, 5)); A(f"v_xor_b32 v{wr}, s40, v{tr}")
    SX("s40", FG, ("s3", 2, 0, 14)); A(f"v_add_u32 v{wr}, s40, v{wr}")
    A(f"s_add_u32 s40, s42, {FD}\nv_add_u32 v{ta}, s40, v{tr}")
    for t in range(1, 4):
        A(f"v_xor_b32 v{ta+t}, {t*32:#x}, v{ta}")
def w_frags(wr):
    for k in range(4):
        for h in range(2):
            r = fWF + 4*k + 2*h
            A(f"ds_read_b64_tr_b16 v[{r}:{r+1}], v{wr} offset:{k*4096 + h*2048}")
def d_frags(ta):
    for tau in range(4):
        A(f"ds_read_b64_tr_b16 v[{fDF+2*tau}:{fDF+2*tau+1}], v{ta+tau}")
if NS < 16:
    kv_issue(NS, 16)
    after_issue()
A(f"s_waitcnt vmcnt({7 if VT else 8}) lgkmcnt(0)")
if OPT["diag"] >= 5: A("s_mov_b32 s76, s100")
A(f"s_add_u32 {sTAG}, {sTAG}, {TAGC:#x}")
for T in range(2):
    for t in range(4):
        r = vKF + (T*4+t)*4
        A(f"ds_read_b128 v[{r}:{r+3}], v{vKA+t} offset:{T*4096}")
sk = L("nqp"); skm = L("mbw")
if OPT["mbg"] == 3:
    A(f"s_cmp_lt_u32 s3, 4\ns_cbranch_scc1 {skm}")
    if not OPT["tokl"]:
        if OPT["tok"]:
            sk3 = L("ntv")
            A(f"s_cmp_lg_u32 s3, 4\ns_cbranch_scc1 {sk3}")
            A(f"v_lshlrev_b32 v80, 7, v0\ns_movk_i32 s41, {TOK}")
            tok_wait(80, "s41", 84)
            A(f"buffer_load_dwordx4 v[136:139], v{vQO}, {RW}, s96 offen sc1")
            A(f"buffer_load_dwordx4 v[136:139], v{vQO}, {RW}, s97 offen sc1")
            A(f"buffer_load_dword v136, v{vSAD}, {RW}, s98 offen sc1")
            A(f"s_branch {sk}")
            A.label(sk3)
    A(f"s_waitcnt vmcnt(0)\ns_branch {sk}")
    A.label(skm)
    A.mute = True
A("s_barrier")
A(f"s_cmp_lt_u32 s3, 4\ns_cbranch_scc1 {skm}")
SX("s40", XL, ("s3", 0, 2, 8))
VX(82, 80, "s40", (0, 6, 2))
VX(83, 80, "s40", (2, 1, 7), (4, 2, 3))
A(f"v_lshlrev_b32 v84, 16, v{wC}\nv_and_b32 v85, 0xffff0000, v{wC}")
A(f"v_mul_f32 v86, {f32(-math.log2(math.e))}, v84\nv_mul_f32 v87, {f32(-math.log2(math.e))}, v85")
A("v_exp_f32 v86, v86\nv_exp_f32 v87, v87\nv_add_f32 v86, 1.0, v86\nv_add_f32 v87, 1.0, v87")
A("v_rcp_f32 v86, v86\nv_rcp_f32 v87, v87\nv_mul_f32 v84, v84, v86\nv_mul_f32 v85, v85, v87")
A("v_cvt_pk_bf16_f32 v84, v84, v85\nds_write_b32 v82, v84")
A("ds_read2_b64 v[144:147], v83 offset0:0 offset1:4\nds_read2_b64 v[148:151], v83 offset0:8 offset1:12")
VX(81, 80, 0, (2, 4, 7), (3, 2, 5), (0, 2, 3))
SX("s40", 0, ("s3", 0, 2, 5)); A(f"v_xor_b32 v81, s40, v81\nv_add_u32 v81, {PA}, v81")
for k in range(2):
    for sg in range(2):
        for hh in range(2):
            r = 128 + sg*8 + k*4 + hh*2
            A(f"ds_read_b64_tr_b16 v[{r}:{r+1}], v81 offset:{sg*8192 + k*4096 + hh*2048}")
SX("s40", 0, ("s58", 2, 0, 3), ("s7", 0))
A("s_cmp_eq_u32 s40, 16\ns_cselect_b32 s41, 1.0, 0")
for i in range(8): A(f"v_mov_b32 v{88+i}, s41")
VX(80, 81, 0, (5, 1, 12), (4, 1, 6), (2, 2, 4))
SX("s41", MGT, ("s58", 13), ("s3", 0, 2, 10), ("s46", 0))
A(f"v_mov_b32 v97, {sTAG}\nv_mov_b32 v99, {sTAG}")
A("s_waitcnt lgkmcnt(0)")
for k in range(2):
    for sg in range(2):
        mfma(88 + 4*sg, 144 + 4*k, 128 + sg*8 + k*4, 88 + 4*sg)
A("v_cmp_gt_u32 vcc, 32, v0")
A("v_cndmask_b32 v84, v92, v88, vcc")
pack4(84, 96, 98, 85)
setexec(0x11111111, 0x11111111)
A(f"buffer_store_dwordx4 v[96:99], v80, {RW}, s41 offen sc1")
fullexec()
STAMP(9)
A(f"s_waitcnt vmcnt(1)\ns_branch {sk}")
A.label(skm)
A.mute = False
def q_load():
    A(f"buffer_load_dwordx4 v[{vQ}:{vQ+3}], v{vQO}, {RW}, s44 offen sc1")
def q_chk():
    A(f"v_xor_b32 v{T0}, {sTAG}, v{vQ+1}\nv_bitop3_b32 v{T0}, v{vQ+3}, {sTAG}, v{T0} bitop3:0xbe\nv_cmp_ne_u32 vcc, 0, v{T0}")
poll(q_load, q_chk, sleep=OPT['s2'])
STAMP(4)
A(f"v_mov_b32 v{vQ+1}, v{vQ+2}")
A(f"ds_write_b64 v{vQW}, v[{vQ}:{vQ+1}]")
A.label(sk)
A("s_waitcnt lgkmcnt(0)\ns_barrier")
STAMP(5)
for t in range(4):
    A(f"ds_read_b128 v[{vQF+4*t}:{vQF+4*t+3}], v{vQR} offset:{t*512}")
tf_load = lambda: A(f"buffer_load_dword v144, v140, {RW}, s41 offen sc1")
if OPT["tokf"]:
    sk = L("ntf")
    A(f"s_cmp_lg_u32 s3, 7\ns_cbranch_scc1 {sk}")
    tf_load()
    A.label(sk)
if GB1: gu_dma()
if OPT["g_b1"]: g_dma()
def f_touch(n):
    A("s_mov_b64 exec, 0xffff")
    if n & 1: A(f"buffer_load_dword v{vPF}, v118, {RC}, s49 offen")
    if n & 2: A(f"buffer_load_dword v{vPF}, v118, {RB}, s49 offen")
    if n & 4: A(f"buffer_load_dword v{vPF}, v119, {RE}, s51 offen")
    fullexec()
if OPT["ftouch"]: f_touch(OPT["ftouch"])
vMF = 128
def mf_loads():
    tagged_loads(vMF, fMF, "s59")
def l_touch(a, b, c):
    sk = L("nlt")
    A(f"s_cmp_lg_u32 s3, 7\ns_cbranch_scc1 {sk}")
    A(f"buffer_load_dwordx4 v[136:139], v{vQO}, {RW}, {a} offen sc1")
    A(f"buffer_load_dwordx4 v[136:139], v{vQO}, {RW}, {b} offen sc1")
    A(f"buffer_load_dword v136, v{vSAD}, {RW}, {c} offen sc1")
    A.label(sk)
def v_tr(kb, T):
    r = vVF + kb*4 + T*2
    A(f"ds_read_b64_tr_b16 v[{r}:{r+1}], v{vVR} offset:{(32*kb+16*T)*256}")
EARLY_T = [0, 1]
NV1 = OPT["nv1"]
if STAMPS: A("s_waitcnt lgkmcnt(0)")
for t in range(4):
    A(f"s_waitcnt lgkmcnt({3-t})")
    for T in range(2):
        mfma(vS + 4*T, vKF + (T*4+t)*4, vQF + 4*t, None if t == 0 else vS + 4*T)
for kb in range(NV1):
    v_tr(kb, 0); v_tr(kb, 1)
for i in range(8):
    A(f"v_add_f32_dpp v{vS+i}, v{vS+i}, v{vS+i} row_ror:4 {DPPM}")
A(f"v_max3_f32 v{T0}, v{vS}, v{vS+1}, v{vS+2}\nv_max3_f32 v{T2}, v{vS+3}, v{vS+4}, v{vS+5}")
A(f"v_max3_f32 v{T0}, v{T0}, v{vS+6}, v{vS+7}\nv_max_f32 v{T3}, v{T0}, v{T2}\nv_max_f32 v{T0}, v{T0}, v{T2}")
A(f"v_cndmask_b32 v{vS}, v{vS}, v{vS+2}, s[60:61]\nv_cndmask_b32 v{vS+1}, v{vS+1}, v{vS+3}, s[60:61]")
A(f"v_permlane32_swap_b32 v{T0}, v{T3}")
A(f"v_max_f32 v{T2}, v{T0}, v{T3}\nv_max_f32 v{T0}, v{T0}, v{T3}")
A(f"v_cndmask_b32 v{vS+4}, v{vS+4}, v{vS+6}, s[60:61]\nv_cndmask_b32 v{vS+5}, v{vS+5}, v{vS+7}, s[60:61]")
A(f"v_permlane16_swap_b32 v{T0}, v{T2}")
A(f"v_max_f32 v{T0}, v{T0}, v{T2}")
A(f"ds_write_b32 v{vMW}, v{T0}")
A(f"v_cndmask_b32 v{vS}, v{vS}, v{vS+4}, s[46:47]\nv_cndmask_b32 v{vS+1}, v{vS+1}, v{vS+5}, s[46:47]")
A(f"v_mul_f32 v{vS}, s55, v{vS}\nv_mul_f32 v{vS+1}, s55, v{vS+1}")
STAMP(14)
if OPT["tokl"]:
    sk = L("ntm")
    A(f"s_cmp_lg_u32 s3, 7\ns_cbranch_scc1 {sk}")
    if OPT["tokf"]: poll(tf_load, lambda: A(f"v_cmp_eq_u32 vcc, {sTAG}, v144"), first_issued=True, anyok=True)
    else: tok_wait(140, "s41", 144, 0)
    A(f"buffer_load_dwordx4 v[136:139], v{vQO}, {RW}, s96 offen sc1")
    A(f"buffer_load_dwordx4 v[136:139], v{vQO}, {RW}, s97 offen sc1")
    A(f"buffer_load_dword v136, v{vSAD}, {RW}, s98 offen sc1")
    A.label(sk)
A("s_waitcnt lgkmcnt(0)\ns_barrier")
A(f"ds_read_b128 v[{vQF}:{vQF+3}], v{vMX}\nds_read_b128 v[{vQF+4}:{vQF+7}], v{vMX} offset:16")
for kb in range(NV1, min(8, NV1 + 6)):
    v_tr(kb, 0); v_tr(kb, 1)
A(f"s_waitcnt lgkmcnt({2*(min(8, NV1+6) - NV1)})")
A(f"v_max3_f32 v{T0}, v{vQF}, v{vQF+1}, v{vQF+2}\nv_max3_f32 v{T2}, v{vQF+3}, v{vQF+4}, v{vQF+5}")
A(f"v_max3_f32 v{T0}, v{T0}, v{vQF+6}, v{vQF+7}\nv_max_f32 v{T0}, v{T0}, v{T2}")
A(f"v_fma_f32 v{vS}, -v{T0}, s55, v{vS}\nv_fma_f32 v{vS+1}, -v{T0}, s55, v{vS+1}")
A(f"v_exp_f32 v{vS}, v{vS}\nv_exp_f32 v{vS+1}, v{vS+1}")
A(f"v_mul_f32 v{vST}, s55, v{T0}")
A(f"v_cvt_pk_bf16_f32 v{vP}, v{vS}, v{vS+1}")
A(f"v_add_f32 v{T0}, v{vS}, v{vS+1}")
A(f"ds_write_b32 v{vPW}, v{vP}")
A(f"v_add_f32_dpp v{T0}, v{T0}, v{T0} row_ror:4 {DPPM}")
if OPT["mfb1"]: mf_loads()
A(f"v_add_f32_dpp v{T3}, v{T0}, v{T0} row_ror:8 {DPPM}\nv_add_f32_dpp v{T0}, v{T0}, v{T0} row_ror:8 {DPPM}")
A(f"v_permlane32_swap_b32 v{T0}, v{T3}")
A(f"v_add_f32 v{T2}, v{T0}, v{T3}\nv_add_f32 v{T0}, v{T0}, v{T3}")
A(f"v_permlane16_swap_b32 v{T0}, v{T2}")
A(f"v_add_f32 v{T0}, v{T0}, v{T2}")
A(f"ds_write_b32 v{vMW}, v{T0} offset:128")
if OPT["dn_p"] == 3: dn_dma()
A("s_waitcnt lgkmcnt(0)\ns_barrier")
STAMP(3)
if STAMPS: A("s_waitcnt lgkmcnt(0)")
LATE_T = [T for T in range(2) if T not in EARLY_T]
A(f"ds_read_b128 v[{vQF}:{vQF+3}], v{vMX} offset:128\nds_read_b128 v[{vQF+4}:{vQF+7}], v{vMX} offset:144")
for kb in range(8):
    r = vKF + kb*4
    A(f"ds_read_b128 v[{r}:{r+3}], v{vPR} offset:{kb*256}")
def st_pub(vm=None):
    sk = L("nst"); sk2 = L("nsu")
    A(f"s_cmp_lg_u32 s3, 0\ns_cbranch_scc1 {sk}")
    A("s_waitcnt lgkmcnt(8)")
    rowsum([vQF, vQF+4])
    A(f"v_add_f32 v{vST+1}, v{vQF}, v{vQF+4}")
    A("s_mov_b64 exec, 15")
    A(f"buffer_store_dwordx2 v[{vST}:{vST+1}], v{vSAD}, {RW}, s54 offen")
    fullexec()
    if vm is not None:
        A(f"s_waitcnt vmcnt({vm})\ns_branch {sk2}")
    A.label(sk)
    if vm is not None:
        A(f"s_waitcnt vmcnt({vm-1})")
        A.label(sk2)
if LATE_T:
    st_pub(1)
    A("s_waitcnt lgkmcnt(0)\ns_barrier")
    STAMP(6)
    if STAMPS: A("s_waitcnt lgkmcnt(0)")
    per = len(LATE_T)
    AHEAD = 8 if per == 1 else 6
    for kb in range(AHEAD):
        for T in LATE_T: v_tr(kb, T)
    for kb in range(8):
        A(f"s_waitcnt lgkmcnt({(min(8, AHEAD + kb) - kb - 1) * per})")
        mfma(vOA, vVF + kb*4, vKF + kb*4, None if kb == 0 else vOA)
        if AHEAD + kb < 8:
            for T in LATE_T: v_tr(AHEAD + kb, T)
else:
    st_pub()
    if OPT["dn_p"] == 1: dn_dma()
    for kb in range(8):
        A(f"s_waitcnt lgkmcnt({7-kb})")
        mfma(vOA, vVF + kb*4, vKF + kb*4, None if kb == 0 else vOA)
setexec(0x000f000f, 0x000f000f)
A(f"v_cvt_pk_bf16_f32 v{vP}, v{vOA}, v{vOA+1}\nv_cvt_pk_bf16_f32 v{vP+1}, v{vOA+2}, v{vOA+3}")
A(f"buffer_store_dwordx2 v[{vP}:{vP+1}], v{vOAD}, {RW}, s53 offen")
fullexec()
STAMP(7)
A("s_cmp_lt_u32 s4, 7\ns_cbranch_scc1 L_ffn")
A("s_cmp_lg_u32 s3, 0\ns_cbranch_scc1 L_exit")
VX(T1, T2, 0, (3, 1, 14), (0, 3, 11))
A(f"s_mov_b32 s46, {X4 + 7*128:#x}")
poll(lambda: A(f"buffer_load_dword v16, v{T1}, {RW}, s46 offen sc1"), lambda: A(f"v_cmp_eq_u32 vcc, -1, v16"), sleep=8)
A("s_branch L_exit")
A.label("L_ffn")
SX("s55", ST5, ("s4", 8))
SX("s53", G5, ("s63", 10))
A(f"s_add_u32 s54, s53, {US5-G5}")
if not OPT["mfb1"]:
    l_touch("s53", "s54", "s55")
    mf_loads()
DL = OPT["dn_late"]
NF = 0
if not GB1 and OPT["dn_p"] != 3:
    if OPT["obar"]: A("s_barrier")
    if not OPT["g_b1"]:
        g_dma(); NF += 2
    u_dma(); NF += 2
if not DL and not OPT["dn_p"]:
    if (GB1 and OPT["obar"]) or OPT["gufirst"]: A("s_barrier")
    dn_dma(); NF += 2
fYW, fYR, fWR, fGA, fGR, fSTA, fY6A = 113, 114, 115, 116, 118, 119, 120
fG, fU, fS = 121, 122, 117
wOF, wTA = fMF, 108
if not FF: ffn_frag_addr(fWR, wTA, wTR)
A("s_lshr_b32 s56, s3, 2\ns_and_b32 s57, s3, 3")
VX(fYR, 32, YL0, (0, 6, 4))
A(f"s_lshl_b32 s40, s3, 10\nv_add_u32 v{fYW}, s40, v{fYR}")
VX(fGA, 32, 0, (0, 6, 2))
SX("s61", G5 - 64, ("s63", 2, 0, 12), ("s57", 10), ("s63", 0, 2, 8), ("s56", 7))
A(f"s_add_u32 s62, s61, {US5-G5}")
VX(fGR, 32, 0, (2, 1, 7), (3, 1, 6), (4, 2, 4), (0, 2, 2))
VX(fSTA, 32, 0, (0, 3, 5), (3, 1, 4))
VX(fY6A, 32, 0, (3, 1, 14), (5, 1, 12), (4, 1, 4))
SX("s47", Y4, ("s56", 14), ("s63", 0, 2, 12), ("s57", 10))
SX("s96", Y6, ("s3", 16), ("s63", 5))
A("s_add_u32 s97, s96, 8192\ns_add_u32 s98, s96, 32768\ns_add_u32 s99, s96, 40960")
A(f"s_mov_b32 s41, {f32(1.0/512)}\ns_mov_b32 s43, {f32(1e-5)}")
poll(mf_loads, lambda: tagged_chk([vMF], 33), first_issued=True, first_wait=NF, sleep=4)
tagged_pack(vMF)
A(f"ds_write_b128 v{fYW}, v[{vMF}:{vMF+3}]")
def y_load():
    A(f"buffer_load_dwordx4 v[76:79], v{wOF}, {RW}, s47 offen sc1")
GF = OPT["gufirst"]
A(f"s_waitcnt vmcnt({2 if GF else 0}) lgkmcnt(0)\ns_barrier")
STAMP(10)
y_load()
if DL: dn_dma()
YO = [16, 20, 24, 28, 32, 36, 100, 104]
if not FF: w_frags(fWR)
for u in range(8):
    A(f"ds_read_b128 v[{YO[u]}:{YO[u]+3}], v{fYR} offset:{u*1024}")
A("s_waitcnt lgkmcnt(0)")
for k in range(4):
    for pi in range(2):
        mfma(wD + 4*pi, YO[4*pi+k], fWF + 4*k, None if k == 0 else wD + 4*pi)
rowsum([wD, wD+4])
A(f"v_permlane16_swap_b32 v{wD}, v{wD+4}")
A(f"v_add_f32 v{wD+1}, v{wD}, v{wD+4}\nv_add_f32 v{wD}, v{wD}, v{wD+4}")
A(f"v_permlane16_swap_b32 v{wD}, v{wD+1}")
A(f"v_cvt_pk_bf16_f32 v126, v{wD}, v{wD+1}")
setexec(0xffff0000, 0x0000ffff)
A(f"buffer_store_dword v126, v{fGA}, {RW}, s62 offen {'' if OPT['uslocal'] else 'sc1'}")
fullexec()
STAMP(1)
def us_loads():
    for k in range(4):
        A(f"buffer_load_dword v{40+k}, v{fGR}, {RW}, s54 offen offset:{256*k} sc1")
if not DL and not GF: d_frags(wTA)
poll(y_load, lambda: chk_empty4(76, 33), first_issued=True, first_wait=3 if DL else 1)
STAMP(11)
A(f"ds_write_b128 v{fYW}, v[76:79] offset:8192")
us_loads()
A("s_waitcnt lgkmcnt(0)\ns_barrier")
for u in range(8):
    A(f"ds_read_b128 v[{YO[u]}:{YO[u]+3}], v{fYR} offset:{8192+u*1024}")
for u in range(8):
    A(f"s_waitcnt lgkmcnt({7-u})")
    mfma(wD, YO[u], fWF + 4*(u & 3), None if u == 0 else wD)
A(f"v_add_f32 v{wD}, v{wD}, v{wD+1}\nv_add_f32 v{wD+2}, v{wD+2}, v{wD+3}")
A(f"v_add_f32 v{wD+1}, v{wD}, v{wD+2}\nv_add_f32 v{wD}, v{wD}, v{wD+2}")
A(f"v_permlane16_swap_b32 v{wD}, v{wD+1}")
A(f"v_add_f32 v{fG}, v{wD}, v{wD+1}")
def g_store(fl):
    setexec(0xffff0000, 0x0000ffff)
    A(f"buffer_store_dword v{fG}, v{fGA}, {RW}, s61 offen {fl}")
g_store("")
fullexec()
STAMP(12)
def g_loads():
    A(f"buffer_load_dwordx4 v[24:27], v{fSTA}, {RW}, s55 offen sc1")
    for k in range(4):
        A(f"buffer_load_dword v{20+k}, v{fGR}, {RW}, s53 offen offset:{256*k} sc1")
poll(us_loads, lambda: chk_empty4(40, 33), first_issued=True, first_wait=1)
g_loads()
if DL or GF: d_frags(wTA)
for k in range(4):
    A(f"v_lshlrev_b32 v{44+k}, 16, v{40+k}\nv_and_b32 v{40+k}, 0xffff0000, v{40+k}")
rowsum([44, 40])
A(f"v_mov_b32 v{fU}, v44\nv_mov_b32 v{fS}, v40")
def g_chk():
    A("v_add_f32 v24, v24, v26\nv_add_f32 v25, v25, v27")
    A("v_add_f32 v20, v20, v21\nv_add_f32 v22, v22, v23")
    A(f"v_add_f32_dpp v24, v24, v24 quad_perm:[1,0,3,2] {DPPM}\nv_add_f32_dpp v25, v25, v25 quad_perm:[1,0,3,2] {DPPM}")
    A("v_add_f32 v20, v20, v22")
    A(f"v_add_f32_dpp v24, v24, v24 quad_perm:[2,3,0,1] {DPPM}\nv_add_f32_dpp v25, v25, v25 quad_perm:[2,3,0,1] {DPPM}")
    A("v_add_f32 v26, v24, v25")
    A("v_cmp_u_f32 vcc, v20, v26")
poll(g_loads, g_chk, first_issued=True)
STAMP(13)
A(f"v_add_f32_dpp v24, v24, v24 row_half_mirror {DPPM}\nv_add_f32_dpp v25, v25, v25 row_half_mirror {DPPM}")
A("v_mov_b32 v26, s43")
A("v_mul_f32 v24, s41, v24")
A("v_fmac_f32 v26, s41, v25")
A("v_fma_f32 v26, -v24, v24, v26")
A(f"v_fma_f32 v20, -v24, v{fU}, v20")
A("v_rsq_f32 v26, v26")
A(f"v_fma_f32 v20, v20, v26, v{fS}")
A("v_max_f32 v21, 0, v20")
A(f"v_mul_f32_dpp v22, v20, v21 row_shl:4 {DPPM}")
pack4(22, 24, 25, 23)
if DL or GF: A("s_waitcnt lgkmcnt(0)")
for tau in range(4):
    d = 32 + 4*tau
    A(f"v_mfma_f32_16x16x16_bf16 v[{d}:{d+3}], v[{fDF+2*tau}:{fDF+2*tau+1}], v[24:25], 0")
setexec(0x01010101, 0x01010101)
for tau in range(4):
    d = 32 + 4*tau
    A(f"buffer_store_dwordx4 v[{d}:{d+3}], v{fY6A}, {RW}, s{96+tau} offen sc1")
STAMP(8)
A("s_waitcnt vmcnt(0)")
g_store("sc1")
if OPT["uslocal"]: A(f"buffer_store_dword v126, v{fGA}, {RW}, s62 offen sc1")
A("s_branch L_exit")

A.seg(1)
A.label("L_W")
AS = OPT["asplit"]
IS_NA = "s_cmp_lg_u32 s6, 0" if AS else "s_cmp_ge_u32 s4, 4"
IS_A = "s_cmp_eq_u32 s6, 0" if AS else "s_cmp_lt_u32 s4, 4"
sDB = "s4" if AS else "s58"
if OPT["swp"] >= 0:
    X1 = 2*OPT["swp"] + 1
    A(f"s_cmp_eq_u32 s58, {X1}\ns_cselect_b32 s100, 14, s58\ns_cmp_eq_u32 s58, 14\ns_cselect_b32 s101, {X1}, s100\ns_lshr_b32 s100, s101, 1")
    IS_NA = "s_bitcmp1_b32 s101, 0"; IS_A = "s_bitcmp0_b32 s101, 0"; sDB = "s100"
def w_common(first=True):
    kload(RB, 32); kload(RF, 88)
    if first:
        A(f"s_load_dword {sTAG}, s[16:17], 0")
        ids2()
    A(f"v_lshl_or_b32 v{wO}, v{T0}, 10, v{T1}")
    srd(RB, 4194304); A("s_movk_i32 s26, 2048")
def wq_setup(sh):
    A(f"v_lshl_or_b32 v{wQ}, v{T0}, 13, v{T1}")
    A("s_mov_b32 s10, 4194304")
    A(f"s_lshl_b32 s48, s3, {12-sh}")
    SX("s43", 0, ("s6", 8), ("s48", 7, 0, 0))
    SX("s44", 0, ("s43", 13), ("s4", 10), ("s46", 0))
def wq_dma():
    A(f"s_add_u32 m0, s48, {WQL}")
    for u in range(4):
        if u: A(f"s_add_u32 s44, s44, {8*8192-1024}")
        A(f"buffer_load_dwordx4 v{wQ}, {RA}, s44 offen offset:{u*1024} {NT} lds")
def c_setup():
    VX(T2, T3, 0, (5, 1, 10), (0, 5, 2))
if "noW" in OPT["abl"]:
    ids2(); A("s_waitcnt lgkmcnt(0)\ns_branch L_exit")
if "noA" in OPT["abl"]: A("s_branch L_nA")
A(f"{IS_NA}\ns_cbranch_scc1 L_nA")
A(f"s_lshl_b32 s49, {sDB}, 7")
A("s_cmp_lt_u32 s3, 256\ns_cbranch_scc1 L_A1")
A("s_sub_u32 s40, s3, 256")
SX("s61", 0, ("s7", 6), ("s40", 2, 0, 0))
A(f"s_mul_i32 s61, s61, 6144\ns_add_u32 s61, s61, s49\ns_add_u32 s62, s61, {8*6144-1024}")
A(f"s_lshl_b32 s40, s40, 5\ns_add_u32 m0, s40, {PA}")
if OPT["diag"] == 2: STAMP(1)
A("s_waitcnt lgkmcnt(0)")
if OPT["diag"] not in (2, 3, 4): STAMP(1)
A(f"buffer_load_dwordx4 v{wM}, {RC}, s61 offen {NT} lds")
A(f"buffer_load_dwordx4 v{wM}, {RC}, s62 offen offset:1024 {NT} lds")
A(f"s_add_u32 m0, s40, {PA+8192-1024}")
A(f"buffer_load_dwordx4 v{wM}, {RC}, s61 offen offset:1024 {NT} lds")
A(f"buffer_load_dwordx4 v{wM}, {RC}, s62 offen offset:2048 {NT} lds")
TK = OPT["tok"]
AH = OPT["ahold"]
def clears():
    A("v_mov_b32 v32, -1\nv_mov_b32 v33, -1\nv_mov_b32 v34, -1\nv_mov_b32 v35, -1")
    SX("s54", CLR, ("s49", 9), ("s7", 13), ("s60", 0))
    A("v_lshlrev_b32 v38, 4, v0")
    A(f"buffer_store_dwordx4 v[32:35], v38, {RW}, s54 offen sc1")
    A(f"buffer_store_dwordx4 v[32:35], v38, {RW}, s54 offen offset:1024 sc1")
A("s_mov_b32 s60, s40")
if not TK:
    srd(RW, WS_BYTES); clears()
if AH < 8:
    wq_setup(6)
    A("s_barrier")
    wq_dma()
if OPT["diag"] == 3: STAMP(1)
cont(5)
if OPT["diag"] == 4: STAMP(1)
w_common()
if AH == 8: wq_setup(0)
NB = (4 if AH < 8 else 0)
A(f"s_waitcnt vmcnt({NB})")
if OPT["abl"]: STAMP(9)
if STAMPS == 3: STAMP(12)
A("s_barrier")
if AH == 8:
    A("s_barrier")
    wq_dma()
if TK: clears()
tr_setup()
A("s_waitcnt lgkmcnt(0)")
A(f"s_add_u32 {sTAG}, {sTAG}, {TAGC:#x}")
A("s_branch L_B")
A.seg(1.5 if OPT["wfirst"] else 3)
A.label("L_A1")
c_setup()
VX(36, T3, 0, (4, 1, 10), (5, 1, 8), (0, 4, 4))
A("s_movk_i32 s26, 2048")
A("s_waitcnt lgkmcnt(0)")
STAMP(1)
A(f"buffer_load_dword v{wC}, v{T2}, {RE}, s46 offen {SNT}")
A(f"buffer_load_dwordx4 v[{wX}:{wX+3}], v36, {RD}, 0 offen {SNT}")
A(f"buffer_load_dwordx4 v[{wX+4}:{wX+7}], v36, {RD}, 0 offen offset:512 {SNT}")
VX(37, T3, 0, (4, 1, 10), (0, 4, 1))
A(f"s_lshr_b32 s50, s3, 1\ns_add_u32 s50, s50, s49\nv_mov_b32 v{wXS}, 0")
A(f"buffer_load_short_d16_hi v{wXS}, v37, {RD}, s50 offen {SNT}")
if OPT["wfirst"] == 3: cont(4)
if AH < 8: A("s_barrier")
A(f"s_load_dword {sTAG}, s[16:17], 0")
ids2()
tr_setup()
VX(39, 32, 0, (4, 1, 6), (2, 2, 4))
SX("s53", H1G, (sDB, 12), ("s3", 10), ("s46", 0))
A("s_cmp_eq_u32 s7, 0\ns_cselect_b32 s54, 1.0, 0")
unit_pre("0", "s54", PA)
silu_operand(3)
if OPT["abl"]: STAMP(6)
if STAMPS == 3: STAMP(11)
A(f"s_waitcnt vmcnt(0)")
A("v_mov_b32 v36, 0\nv_mov_b32 v37, 0\nv_mov_b32 v38, 0x3f803f80")
for i in range(8):
    A(f"v_dot2c_f32_bf16 v36, v{wX+i}, v38\nv_dot2c_f32_bf16 v37, v{wX+i}, v{wX+i}")
for m in ("quad_perm:[1,0,3,2]", "quad_perm:[2,3,0,1]", "row_half_mirror", "row_mirror"):
    A(f"v_add_f32_dpp v36, v36, v36 {m} {DPPM}\nv_add_f32_dpp v37, v37, v37 {m} {DPPM}")
A("v_mov_b32 v38, v36\nv_mov_b32 v35, v37")
A("v_permlane32_swap_b32 v36, v38\nv_permlane32_swap_b32 v37, v35")
A("v_add_f32 v36, v36, v38\nv_add_f32 v37, v37, v35")
A(f"v_mul_f32 v36, {f32(1.0/512)}, v36\nv_mov_b32 v38, {f32(1e-5)}\nv_fmac_f32 v38, {f32(1.0/512)}, v37")
A("v_fma_f32 v38, -v36, v36, v38\nv_rsq_f32 v38, v38")
A(f"v_sub_f32 v{wXS}, v{wXS}, v36\nv_mul_f32 v{wXS}, v{wXS}, v38")
A(f"s_add_u32 {sTAG}, {sTAG}, {TAGC:#x}")
A(f"v_mov_b32 v{wD+9}, {sTAG}\nv_mov_b32 v{wD+11}, {sTAG}")
if OPT["abl"]: STAMP(7)
if STAMPS == 3: STAMP(12)
A("s_waitcnt lgkmcnt(0)\ns_barrier")
if OPT["abl"]: STAMP(10)
unit_go()
A(f"v_fma_f32 v32, v{wXS}, v{wD+4}, v{wD}")
pack4(32, wD+8, wD+10, 33)
setexec(0x11111111, 0)
A(f"buffer_store_dwordx4 v[{wD+8}:{wD+11}], v39, {RW}, s53 offen sc1")
fullexec()
STAMP(14)
if OPT["diag"] == 1:
    A("s_waitcnt vmcnt(0)"); STAMP(13)
if AH == 8: A("s_barrier")
wq_setup(0)
wq_dma()
w_common(False)
A("s_branch L_B")
A.seg(2)
A.label("L_nA")
wq_setup(6)
R3 = OPT["r3"]
SX("s51", 0, ("s7", 6), ("s3", 3, 0, 0))
if R3 & 1: SX("s52", 384, ("s51", 13), ("s4", 10))
A("s_mul_i32 s51, s51, 6144")
A("s_waitcnt lgkmcnt(0)")
STAMP(1)
if R3 & 2:
    sk = L("n3a")
    A(f"s_cmp_lg_u32 s4, 3\ns_cbranch_scc1 {sk}")
    A(f"buffer_load_dword v{vPF}, v{wM}, {RC}, s51 offen offset:{1024+384}")
    A.label(sk)
if R3 & 1: A(f"buffer_load_dword v{vPF}, v{wQ}, {RA}, s52 offen")
if OPT["wqpf"] == 22:
    sk = L("nh0")
    A(f"s_cmp_lt_u32 s3, 256\ns_cbranch_scc1 {sk}")
wq_dma()
if OPT["wqpf"] == 22: A.label(sk)
MBW = OPT["wmode"] in (1, 2)
MB2 = OPT["wmode"] == 2
MBN = OPT["wmode"] == 0
if OPT["ptouch"] and AS:
    SX("s40", 0, ("s3", 11), ("s4", 10), ("s46", 0))
    A(f"v_lshlrev_b32 v32, 13, v2")
    if OPT["ptouch"] == 1: A("s_barrier")
    A(f"buffer_load_dword v{vPF}, v32, {RA}, s40 offen")
if MBW:
    c_setup()
    A(f"buffer_load_dword v{wC}, v{T2}, {RE}, s46 offen {SNT}")
if MBN:
    A("s_lshl_b32 s42, s3, 4")
    SX("s40", 2048, (sDB, 0, 3, 8)); A("s_add_u32 s51, s51, s40")
    c_setup()
    A(f"buffer_load_dword v{wC}, v{T2}, {RE}, s46 offen {SNT}")
    if OPT["mbwait"] >= 0: A(f"s_waitcnt vmcnt({OPT['mbwait']})")
    else: A("s_barrier")
    for j, o in enumerate((0, 128, 2048, 2048+128)):
        A(f"s_add_u32 m0, s42, {PB + j*8192 - o}")
        A(f"buffer_load_dwordx4 v{wM}, {RC}, s51 offen offset:{o} {NT} lds")
cont(6)
w_common()
tr_setup()
A("s_waitcnt lgkmcnt(0)")
A(f"s_add_u32 {sTAG}, {sTAG}, {TAGC:#x}")
A.label("L_B")
def mw_dma():
    SX("s40", PB, ("s3", 10)); A("s_mov_b32 m0, s40")
    A(f"buffer_load_dwordx4 v{wM}, {RC}, s96 offen {NT} lds")
    A(f"s_add_u32 m0, s40, {8192-128}")
    A(f"buffer_load_dwordx4 v{wM}, {RC}, s96 offen offset:128 {NT} lds")
def mw_compute(vm):
    A(f"ds_read2_b64 v[{wXO}:{wXO+3}], v83 offset0:0 offset1:4\nds_read2_b64 v[{wXO+4}:{wXO+7}], v83 offset0:8 offset1:12")
    unit_pre("s98", "s98", PB)
    A(f"v_mov_b32 v{wD+9}, {sTAG}\nv_mov_b32 v{wD+11}, {sTAG}")
    A(f"s_waitcnt vmcnt({vm}) lgkmcnt(0)\ns_barrier")
    sk = L("nmw")
    A(f"s_cmp_ge_u32 s3, 4\ns_cbranch_scc1 {sk}" if vm == 2 else f"s_cmp_lt_u32 s3, 4\ns_cbranch_scc1 {sk}")
    unit_go()
    A("v_cmp_gt_u32 vcc, 32, v0")
    A(f"v_cndmask_b32 v36, v{wD+4}, v{wD}, vcc")
    pack4(36, wD+8, wD+10, 37)
    setexec(0x11111111, 0x11111111)
    A(f"buffer_store_dwordx4 v[{wD+8}:{wD+11}], v122, {RW}, s97 offen sc1")
    fullexec()
    STAMP(6)
    A.label(sk)
if MBW:
    if MB2: SX("s99", 0, ("s4", 0), ("s4", 2, 0, 2), ("s6", 2))
    else: A("s_mov_b32 s99, s58")
    SX("s96", 0, ("s7", 6), ("s3", 3))
    A("s_mul_i32 s96, s96, 6144")
    SX("s40", 2048, ("s99", 8)); A("s_add_u32 s96, s96, s40")
    if MB2:
        sk = L("nm2")
        A(f"{IS_NA}\ns_cbranch_scc1 {sk}")
        mw_dma()
        A.label(sk)
    SX("s97", MGT, ("s99", 13), ("s3", 0, 2, 10), ("s46", 0))
    SX("s40", 0, ("s99", 2, 0, 3), ("s7", 0))
    A("s_cmp_eq_u32 s40, 16\ns_cselect_b32 s98, 1.0, 0")
    VX(122, 32, 0, (5, 1, 12), (4, 1, 6), (2, 2, 4))
srd(RF, 2048)
SX("s47", 0, ("s4", 19), ("s43", 10), ("s46", 0))
wRW, wRR, wOF, wTA = 14, 15, 72, 108
SX("s40", RED, ("s3", 9)); VX(wRW, 32, "s40", (0, 6, 2))
SX("s40", RED, ("s3", 8)); VX(wRR, 32, "s40", (0, 6, 2))
VX(wOF, 32, 0, (0, 3, 7), (3, 1, 6), (4, 2, 4))
SX("s53", H1G, ("s43", 6))
if TK:
    VX(T3, 32, 0, (0, 6, 7)); A(f"s_movk_i32 s57, {TOK}")
else:
    VX(T3, 32, 0, (0, 2, 12))
    A("s_xor_b32 s57, s6, 1")
    SX("s57", H1G + 4, ("s57", 14), ("s3", 7))
wQA = 73; wQD = 76
VX(wQA, 32, 0, (5, 1, 12), (0, 5, 2))
SX("s56", QG, ("s4", 13), ("s5", 8), ("s3", 7))
A(f"v_add_u32 v{wTA}, s48, v{wTR}")
for t in range(1, 4):
    A(f"v_xor_b32 v{wTA+t}, {t*32:#x}, v{wTA}")
A(f"v_mov_b32 v{wQD+1}, {sTAG}\nv_mov_b32 v{wQD+3}, {sTAG}")
wGA, wCB, wXA, wXAD = 74, 75, 80, 81
tE, tOUT, tBP, tOF, tL16 = 84, 114, 115, 72, 116
SX("s59", Y6, ("s5", 15), ("s4", 12))
A("s_cmp_eq_u32 s3, 7\ns_cselect_b32 s40, 0, -1")
A("v_mov_b32 v118, s40\nv_mov_b32 v119, s40\nv_lshlrev_b32 v117, 3, v0")
SX("s41", 0, ("s3", 9), ("s59", 0))
VX(T1, 32, 0, (0, 4, 6), (4, 2, 4))
SX("s51", OG, ("s4", 14), ("s43", 5))
SX("s54", SG, ("s4", 9), ("s43", 7, 0, 7))
A(f"v_lshlrev_b32 v{T0}, 2, v1\nv_xor_b32 v{T0}, v0, v{T0}\nv_and_b32 v{T0}, 7, v{T0}\nv_lshlrev_b32 v{T0}, 3, v{T0}")
A(f"v_lshrrev_b32 v32, 5, v0\nv_lshl_or_b32 v{T0}, v32, 6, v{T0}")
VX(wXAD, 32, 0, (5, 1, 6), (2, 2, 4), (4, 1, 3))
SX("s60", X4, ("s7", 11), ("s3", 10), ("s6", 14), ("s4", 7))
A(f"s_add_u32 s52, s60, {Y4-X4}")
A("v_and_b32 v32, 1, v0\nv_lshlrev_b32 v32, 4, v32\nv_mov_b32 v33, 0x3f80\nv_lshlrev_b32 v32, v32, v33")
A("v_lshrrev_b32 v33, 2, v2\nv_sub_u32 v33, v1, v33\nv_bfe_u32 v34, v0, 1, 1\nv_lshl_or_b32 v33, v33, 1, v34")
for r in range(2):
    A(f"v_cmp_eq_u32 vcc, {r}, v33")
    A(f"v_cndmask_b32 v{tE+r}, 0, v32, vcc")
    A(f"v_mov_b32 v{tE+6+r}, v{tE+r}")
for r in (2, 3, 4, 5):
    A(f"v_mov_b32 v{tE+r}, 0")
VX(38, 33, 0, (0, 1, 3), (5, 1, 1), (4, 1, 2))
SX("s40", 0, ("s4", 0, 2, 4)); A(f"v_add_u32 v{tOUT}, s40, v38")
SX("s40", 0, ("s4", 2, 0, 7)); A(f"v_lshl_add_u32 v{tBP}, v{tOUT}, 1, s40")
SX("s62", 0, ("s4", 2, 0, 10), ("s5", 6))
A(f"v_lshlrev_b32 v{tL16}, 4, v0")
SX("s49", X4, ("s5", 10))
A("s_add_u32 s50, s49, 16384")
SX("s55", ST5, ("s4", 8), ("s7", 5), ("s6", 3))
VX(113, 33, 0, (5, 1, 4), (4, 1, 2))
SX("s61", MGT, ("s7", 12), ("s3", 11))
SX("s40", MGT + 3*32768, ("s5", 11))
A("s_cmp_eq_u32 s3, 2\ns_cselect_b32 s61, s40, s61\ns_cselect_b32 s40, 0, 0x10000\ns_add_u32 s63, s61, s40")
VX(120, 33, 0, (5, 1, 10), (0, 5, 1))
SX("s42", 0, ("s7", 7), ("s3", 6))
A(f"v_mov_b32 v{wXA}, 0")
def blk_frags(off):
    for t in range(4):
        for h in range(2):
            r = wWF + 4*t + 2*h
            A(f"ds_read_b64_tr_b16 v[{r}:{r+1}], v{wTA+t} offset:{off + h*2048}")
def h1_loads():
    tagged_loads(16, wOF, "s53")
    if not TK: A(f"buffer_load_dword v33, v{T3}, {RW}, s57 offen sc1")
NH = 2 if TK else 3
if MBN:
    VX(39, 32, 0, (5, 1, 12), (4, 1, 6), (2, 2, 4))
    sk = L("nmb")
    A(f"{IS_A}\ns_cbranch_scc1 {sk}")
    SX("s96", MGT, (sDB, 0, 3, 13), ("s3", 2, 0, 16), ("s3", 0, 2, 10), ("s46", 0))
    SX("s40", 0, (sDB, 2, 1, 3), ("s3", 2, 0, 4), ("s7", 0))
    A("s_cmp_eq_u32 s40, 16\ns_cselect_b32 s97, 1.0, 0")
    SX("s98", PB, ("s3", 2, 0, 14))
    silu_operand(4)
    A.label(sk)
def mb_blk(early):
    sk = L("nmc")
    A(f"{IS_A}\ns_cbranch_scc1 {sk}")
    VX(39, 32, 0, (5, 1, 12), (4, 1, 6), (2, 2, 4))
    unit_pre("s97", "s97", "s98")
    A(f"v_mov_b32 v{wD+9}, {sTAG}\nv_mov_b32 v{wD+11}, {sTAG}")
    if early: A(f"s_waitcnt vmcnt({NH}) lgkmcnt(0)\ns_barrier")
    unit_go()
    A("v_cmp_gt_u32 vcc, 32, v0")
    A(f"v_cndmask_b32 v32, v{wD+4}, v{wD}, vcc")
    pack4(32, wD+8, wD+10, 34)
    setexec(0x11111111, 0x11111111)
    A(f"buffer_store_dwordx4 v[{wD+8}:{wD+11}], v39, {RW}, s96 offen sc1")
    fullexec()
    STAMP(6)
    A.label(sk)
if TK:
    sk = L("ntk")
    A(f"{IS_NA}\ns_cbranch_scc1 {sk}\ns_cmp_lt_u32 s3, 4\ns_cbranch_scc1 {sk}")
    A("s_waitcnt vmcnt(0)")
    SX("s40", TOK - 16, (sDB, 10), ("s46", 0), ("s3", 2))
    A(f"s_mov_b64 exec, 1\nbuffer_store_dword v{wQD+1}, v0, {RW}, s40 offen sc1")
    fullexec()
    A.label(sk)
A(f"s_waitcnt vmcnt({OPT['h1at']})")
h1_loads()
if MBN and OPT["mbearly"]: mb_blk(True)
if MB2:
    sk = L("nm3")
    A(f"{IS_NA}\ns_cbranch_scc1 {sk}")
    mw_compute(2)
    A.label(sk)
A(f"s_waitcnt vmcnt({NH})")
if MBW:
    sk = L("nsl")
    A(f"{IS_A}\ns_cbranch_scc1 {sk}")
    silu_operand(NH)
    A.label(sk)
blk_frags(WQL)
STAMP(3)
if OPT["abl"] and "toq" not in OPT["abl"]: A("s_branch L_exit")
sk = L("nw0"); sk2 = L("nw1")
A(f"{IS_NA}\ns_cbranch_scc1 {sk if MBN and OPT['mbearly'] else sk2}")
if MB2: A(f"s_branch {sk}")
A.label(sk2)
A("s_waitcnt vmcnt(0)")
A.label(sk)
poll(h1_loads, lambda: tagged_chk([16], 33, None if TK else 33), first_issued=True, first_wait=1, sleep=OPT["s2"])
STAMP(4)
if OPT["diag"] == 1:
    A(f"s_waitcnt lgkmcnt(0)\ns_mul_i32 s40, {sCNT}, 10\ns_add_u32 s88, s64, s40")
tagged_pack(16)
A("s_waitcnt lgkmcnt(0)")
def blk_mfma(op):
    for t in range(4):
        mfma(wD + 4*t, op, wWF + 4*t, None)
def blk_reduce():
    A(f"v_permlane16_swap_b32 v{wD}, v{wD+4}\nv_permlane16_swap_b32 v{wD+8}, v{wD+12}")
    A(f"v_add_f32 v{wD}, v{wD}, v{wD+4}\nv_add_f32 v{wD+8}, v{wD+8}, v{wD+12}")
    A(f"ds_write2st64_b32 v{wRW}, v{wD}, v{wD+8} offset0:0 offset1:1")
    A("s_waitcnt lgkmcnt(0)\ns_barrier")
def blk_final():
    for i in range(4):
        A(f"ds_read2st64_b32 v[{32+2*i}:{33+2*i}], v{wRR} offset0:{4*i} offset1:{4*i+2}")
    A("s_waitcnt lgkmcnt(0)")
    A("v_add_f32 v32, v32, v33\nv_add_f32 v34, v34, v35\nv_add_f32 v36, v36, v37\nv_add_f32 v38, v38, v39")
    A("v_add_f32 v32, v32, v34\nv_add_f32 v36, v36, v38\nv_add_f32 v32, v32, v36")
blk_mfma(16)
rowsum([wD, wD+4, wD+8, wD+12])
blk_reduce()
sk = L("nq")
A(f"s_cmp_ge_u32 s3, 2\ns_cbranch_scc1 {sk}")
blk_final()
pack4(32, wQD, wQD+2, 33)
setexec(0x11111111, 0x11111111)
A(f"buffer_store_dwordx4 v[{wQD}:{wQD+3}], v{wQA}, {RW}, s56 offen")
fullexec()
A.label(sk)
STAMP(5)
if OPT["abl"]: A("s_branch L_exit")
if MBN and not OPT["mbearly"]: mb_blk(False)
if TK:
    sk = L("ntc")
    A(f"s_cmp_lg_u32 s3, 3\ns_cbranch_scc1 {sk}")
    A(f"buffer_load_dwordx4 v[32:35], v{T3}, {RW}, s57 offen sc1")
    A.label(sk)
A("s_barrier")
def o_loads():
    A(f"buffer_load_dwordx4 v[104:107], v{T1}, {RW}, s51 offen sc1")
def mc_loads():
    tagged_loads(128, wOF, "s61"); tagged_loads(136, wOF, "s63")
def wo_dma():
    if R3 & 4:
        SX("s40", 384, ("s4", 19), ("s5", 15), ("s3", 12))
        A(f"v_lshlrev_b32 v39, 10, v1\nbuffer_load_dword v{vPF}, v39, {RB}, s40 offen")
    A(f"s_add_u32 m0, s48, {WOL}")
    for u in range(4):
        if u: A(f"s_add_u32 s47, s47, {8*1024-1024}")
        A(f"buffer_load_dwordx4 v{wO}, {RB}, s47 offen offset:{u*1024} {NT} lds")
if MBW:
    sk = L("nm4")
    if MB2: A(f"{IS_A}\ns_cbranch_scc1 {sk}")
    mw_dma()
    A.label(sk)
NCW = 2 if MB2 else 3
sk = L("nc0")
A(f"s_cmp_ge_u32 s3, {NCW}\ns_cbranch_scc1 {sk}")
MCE = MB2 or (not MBW and (not MBN or OPT['mbearly']))
if MCE: mc_loads()
A(f"s_cmp_lg_u32 s58, 0\ns_cbranch_scc1 {sk}")
A(f"buffer_load_short_d16_hi v{wXA}, v120, {RD}, s42 offen")
A.label(sk)
A(f"buffer_store_dwordx2 v[118:119], v117, {RW}, s41 offen sc1")
if not TK: o_loads()
WOE = MBW and OPT["wo_mb"]
if MBW:
    if WOE:
        A("s_barrier"); wo_dma()
    sk5 = L("nm5")
    if MB2: A(f"{IS_A}\ns_cbranch_scc1 {sk5}")
    mw_compute(5 if WOE else 1)
    A.label(sk5)
if OPT["gtrg"]:
    A("s_cmp_lg_u32 s3, 3\ns_cbranch_scc1 L_trgd")
    if OPT["gmask"] == 7:
        VX(39, 32, 0, (0, 3, 7)); A(f"s_movk_i32 s40, {TRG}")
    else:
        VX(39, 32, 0, (0, 2, 7)); A(f"s_movk_i32 s40, {TRG + 512}")
    A(f"s_mov_b32 {sCNT}, 0")
    A.label("L_trg")
    A(f"buffer_load_dword v33, v39, {RW}, s40 offen sc1")
    A("s_waitcnt vmcnt(0)")
    A(f"v_cmp_ne_u32 vcc, {sTAG}, v33")
    A("s_cbranch_vccz L_trgd")
    A(f"s_sleep 2\ns_add_u32 {sCNT}, {sCNT}, 1\ns_cmp_lt_u32 {sCNT}, {OPT['trgmax']}\ns_cbranch_scc1 L_trg")
    A.label("L_trgd")
    A("s_barrier")
if not WOE: wo_dma()
if TK:
    sk = L("ntd")
    A(f"s_cmp_lg_u32 s3, 3\ns_cbranch_scc1 {sk}")
    tok_wait(T3, "s57", 32, 5 + (1 if R3 & 4 else 0))
    if OPT["tokf"]:
        SX("s40", TRG, ("s4", 7), ("s5", 2))
        A(f"s_mov_b64 exec, 1\nbuffer_store_dword v{wQD+1}, v0, {RW}, s40 offen")
        fullexec()
    A.label(sk)
    A("s_barrier")
    o_loads()
sk = L("nc1")
A(f"s_cmp_ge_u32 s3, {NCW}\ns_cbranch_scc1 {sk}")
if not MCE: A("s_waitcnt vmcnt(2)")
poll(mc_loads, lambda: tagged_chk([128, 136], 33), first_issued=MCE, first_wait=4+TK, sleep=2)
tagged_pack(128); tagged_pack(136)
for i in range(2):
    for t in range(2):
        mfma(wD + 8*i + 4*t, 128 + 8*i, tE + 4*t, None)
rowsum([wD, wD+4, wD+8, wD+12])
A(f"v_permlane16_swap_b32 v{wD}, v{wD+4}\nv_permlane16_swap_b32 v{wD+8}, v{wD+12}")
A(f"v_add_f32 v{wGA}, v{wD}, v{wD+4}\nv_add_f32 v{wCB}, v{wD+8}, v{wD+12}")
STAMP(2)
A.label(sk)
A(f"s_waitcnt vmcnt({TK})")
blk_frags(WOL)
STAMP(7)
wF = 100
sg_load = lambda: A(f"buffer_load_dwordx2 v[16:17], v{T0}, {RW}, s54 offen sc1")
await_any(sg_load, lambda: A("v_cmp_o_f32 vcc, v17, v17"), OPT["s1"])
poll(sg_load, lambda: A("v_cmp_u_f32 vcc, v17, v17"), first_issued=True, sleep=2*OPT["s2"])
o_loads()
A(f"v_max_f32_dpp v18, v16, v16 quad_perm:[1,0,3,2] {DPPM}")
A(f"v_max_f32_dpp v18, v18, v18 quad_perm:[2,3,0,1] {DPPM}")
A(f"v_max_f32_dpp v18, v18, v18 row_half_mirror {DPPM}")
A("v_sub_f32 v16, v16, v18\nv_exp_f32 v16, v16\nv_mul_f32 v17, v16, v17")
for m in ("quad_perm:[1,0,3,2]", "quad_perm:[2,3,0,1]", "row_half_mirror"):
    A(f"v_add_f32_dpp v17, v17, v17 {m} {DPPM}")
A(f"v_rcp_f32 v17, v17\nv_mul_f32 v{wF}, v16, v17")
STAMP(8)
poll(o_loads, lambda: chk_empty4(104, 33), first_issued=True, first_wait=0)
STAMP(9)
A("s_waitcnt lgkmcnt(0)")
blk_mfma(104)
for t in range(4):
    A(f"v_mul_f32_dpp v{wD+4*t}, v{wF}, v{wD+4*t} row_newbcast:0 {DPPM}")
for r in range(1, 4):
    for t in range(4):
        A(f"v_fmac_f32_dpp v{wD+4*t}, v{wF}, v{wD+4*t+r} row_newbcast:{r} {DPPM}")
blk_reduce()
A("s_cmp_gt_u32 s3, 2\ns_cbranch_scc1 L_exit")
A("s_cmp_eq_u32 s3, 2\ns_cbranch_scc1 L_fin")
blk_final()
A(f"v_fma_f32 v32, v32, v{wGA}, v{wXA}")
A(f"v_mul_f32 v36, v32, v{wCB}")
A(f"v_mov_b32_dpp v33, v32 quad_perm:[1,1,3,3] {DPPM}")
A(f"v_mov_b32_dpp v37, v36 quad_perm:[1,1,3,3] {DPPM}")
A("v_cvt_pk_bf16_f32 v34, v32, v33\nv_cvt_pk_bf16_f32 v38, v36, v37")
A(f"v_mov_b32_dpp v35, v34 quad_perm:[2,2,2,2] {DPPM}")
A(f"v_mov_b32_dpp v39, v38 quad_perm:[2,2,2,2] {DPPM}")
setexec(0x11111111, 0x11111111)
A(f"buffer_store_dwordx2 v[38:39], v{wXAD}, {RW}, s52 offen sc1")
A(f"buffer_store_dwordx2 v[34:35], v{wXAD}, {RW}, s60 offen sc1")
STAMP(10)
A("s_branch L_exit")
A.label("L_fin")
if MB2:
    poll(lambda: tagged_loads(128, wOF, "s61"), lambda: tagged_chk([128], 33), sleep=2)
    tagged_pack(128)
    for t in range(2):
        mfma(wD + 4*t, 128, tE + 4*t, None)
    rowsum([wD, wD+4])
    A(f"v_permlane16_swap_b32 v{wD}, v{wD+4}")
    A(f"v_add_f32 v{wGA}, v{wD}, v{wD+4}")
def x4_loads():
    A(f"buffer_load_dwordx4 v[16:19], v{tOF}, {RW}, s49 offen sc1")
    A(f"buffer_load_dwordx4 v[20:23], v{tOF}, {RW}, s50 offen sc1")
def x4_chk():
    A("v_max3_u32 v33, v16, v17, v18\nv_max3_u32 v34, v19, v20, v21\nv_max3_u32 v33, v33, v22, v23\nv_max_u32 v33, v33, v34\nv_cmp_eq_u32 vcc, -1, v33")
poll(x4_loads, x4_chk)
STAMP(11)
for hp in range(2):
    for t in range(2):
        mfma(wD + 4*t, 16 + 4*hp, tE + 4*t, None if hp == 0 else wD + 4*t)
rowsum([wD, wD+4])
A(f"v_permlane16_swap_b32 v{wD}, v{wD+4}")
A(f"v_add_f32 v42, v{wD}, v{wD+4}")
A("v_mov_b32 v43, v42\nv_mul_f32 v44, v42, v42")
A("v_permlane16_swap_b32 v43, v44")
A("v_add_f32 v43, v43, v44")
for m in ("quad_perm:[1,0,3,2]", "quad_perm:[2,3,0,1]", "row_half_mirror", "row_mirror"):
    A(f"v_add_f32_dpp v43, v43, v43 {m} {DPPM}")
setexec(0x00010001, 0x00010001)
A(f"buffer_store_dword v43, v113, {RW}, s55 offen")
fullexec()
STAMP(12)
A(f"ds_bpermute_b32 v42, v{tBP}, v42\nds_bpermute_b32 v{wGA}, v{tBP}, v{wGA}")
def y6_loads():
    for i in range(4):
        A(f"buffer_load_dwordx4 v[{16+4*i}:{19+4*i}], v{tL16}, {RW}, s59 offen offset:{1024*i} sc1")
def y6_chk():
    for r in range(4):
        A(f"v_add_f32 v{16+r}, v{16+r}, v{20+r}\nv_add_f32 v{24+r}, v{24+r}, v{28+r}")
    for r in range(4):
        A(f"v_add_f32 v{16+r}, v{16+r}, v{24+r}")
    A("v_permlane32_swap_b32 v16, v17\nv_permlane32_swap_b32 v18, v19")
    A("v_add_f32 v16, v16, v17\nv_add_f32 v18, v18, v19")
    A("v_permlane16_swap_b32 v16, v18")
    A("v_add_f32 v16, v16, v18")
    A("v_cmp_u_f32 vcc, v16, v16")
await_any(lambda: A(f"buffer_load_dword v16, v{tL16}, {RW}, s59 offen sc1"), lambda: A("v_cmp_o_f32 vcc, v16, v16"), 2)
poll(y6_loads, y6_chk)
STAMP(13)
for m in ("row_ror:8", "row_ror:4", "row_ror:2"):
    A(f"v_add_f32_dpp v16, v16, v16 {m} {DPPM}")
A("s_waitcnt lgkmcnt(0)")
A(f"v_fma_f32 v16, v16, v{wGA}, v42")
A("v_cvt_pk_bf16_f32 v16, v16, v16")
setexec(0x00030003, 0x00030003)
A(f"buffer_store_short v16, v{tOUT}, {RF}, s62 offen")
A("s_cmp_lg_u32 s2, 128\ns_cbranch_scc1 L_exit")
A(f"s_sub_u32 s40, {sTAG}, {TAGC-1:#x}")
A("v_mov_b32 v17, s40\nv_mov_b32 v18, 0")
A("s_mov_b64 exec, 1")
A(f"buffer_store_dword v17, v18, {RW}, 0 offen sc1")

A("s_branch L_exit")
A.seg(40)
A.label("L_exit")
if STAMPS == 1:
    STAMP(15)
    A("s_waitcnt lgkmcnt(0)")
    A("s_mov_b64 exec, 1")
    SX("s40", DBG, ("s2", 9), ("s3", 6))
    A("v_mov_b32 v0, 0")
    for q in range(4):
        for i in range(4):
            A(f"v_mov_b32 v{4+4*q+i}, s{64+2*(4*q+i)}")
        A(f"buffer_store_dwordx4 v[{4+4*q}:{7+4*q}], v0, {RW}, s40 offen offset:{16*q}")
if STAMPS == 5:
    STAMP(15)
    A("s_waitcnt lgkmcnt(0)")
    A("s_mov_b64 exec, 1")
    SX("s40", DBG, ("s2", 6), ("s3", 3))
    A(f"v_mov_b32 v0, 0\nv_mov_b32 v4, s64\nv_mov_b32 v5, s{64+2*OPT['db']}")
    A(f"buffer_store_dwordx2 v[4:5], v0, {RW}, s40 offen sc1")
    SX("s40", 0, ("s2", 3), ("s3", 0))
    A(f"s_cmp_lg_u32 s40, {129*8+2}\ns_cbranch_scc1 L_end")
    A.label("L_w3")
    A("s_memrealtime s[42:43]\ns_waitcnt lgkmcnt(0)\ns_sub_u32 s41, s42, s94\ns_cmp_lt_u32 s41, 300\ns_cbranch_scc1 L_w3")
    fullexec()
    A("v_mbcnt_lo_u32_b32 v1, -1, 0\nv_mbcnt_hi_u32_b32 v1, -1, v1\nv_lshlrev_b32 v1, 4, v1")
    A(f"s_mov_b32 s40, {DBG + OPT['drole']*8192}")
    for i in range(8):
        if i == 4: A("s_add_u32 s40, s40, 4096")
        A(f"buffer_load_dwordx4 v[{8+4*i}:{11+4*i}], v1, {RW}, s40 offen offset:{(i%4)*1024} sc1")
    A("s_waitcnt vmcnt(0)")
    for i in range(1, 16):
        A(f"v_min_u32 v8, v8, v{8+2*i}\nv_max_u32 v9, v9, v{9+2*i}")
    A("v_readlane_b32 s44, v8, 0\nv_readlane_b32 s45, v9, 0")
    for l in range(1, 64):
        A(f"v_readlane_b32 s46, v8, {l}\nv_readlane_b32 s47, v9, {l}\ns_nop 3\ns_min_u32 s44, s44, s46\ns_max_u32 s45, s45, s47")
    A(f"s_sub_u32 s40, s45, s44\ns_mul_i32 s40, s40, {OPT['dm']}\ns_add_u32 s40, s40, 600\ns_min_u32 s40, s40, 30000")
    A.label("L_spin")
    A("s_memrealtime s[42:43]\ns_waitcnt lgkmcnt(0)\ns_sub_u32 s41, s42, s94\ns_cmp_lt_u32 s41, s40\ns_cbranch_scc1 L_spin")
if STAMPS == 3:
    STAMP(15)
    A("s_waitcnt lgkmcnt(0)")
    SX("s40", 0, ("s2", 3), ("s3", 0))
    A(f"s_cmp_lg_u32 s40, {OPT['dwg']*8 + OPT['dwv']}\ns_cbranch_scc1 L_end")
    A(f"s_sub_u32 s40, s{64+2*OPT['db']}, s{64+2*OPT['da']}")
    A(f"s_mul_i32 s40, s40, {OPT['dm']}")
    A("s_min_u32 s40, s40, 30000")
    A.label("L_spin")
    A("s_memrealtime s[42:43]\ns_waitcnt lgkmcnt(0)\ns_sub_u32 s41, s42, s94\ns_cmp_lt_u32 s41, s40\ns_cbranch_scc1 L_spin")
if STAMPS == 2:
    STAMP(15)
    A("s_load_dwordx2 s[32:33], s[0:1], 96")
    A("s_mov_b32 s34, 256\ns_mov_b32 s35, 0x00020000")
    A("s_waitcnt lgkmcnt(0)")
    fullexec()
    A("v_mov_b32 v4, 0\nv_mbcnt_lo_u32_b32 v5, -1, 0\nv_lshlrev_b32 v5, 2, v5")
    A("s_cmp_ge_u32 s2, 128\ns_cbranch_scc1 L_dw")
    A("s_cmp_lg_u32 s3, 0\ns_cbranch_scc1 L_end")
    A("s_not_b32 s40, s64\nv_writelane_b32 v4, s40, 0")
    for i, st in enumerate([9, 2, 5, 7, 10, 11, 8]):
        A(f"v_writelane_b32 v4, s{64+2*st}, {i+1}")
    A("s_branch L_dd")
    A.label("L_dw")
    A("s_cmp_lg_u32 s3, 2\ns_cbranch_scc1 L_end")
    for i, st in enumerate([0, 3, 4, 5, 7, 9, 11, 15]):
        A(f"v_writelane_b32 v4, s{64+2*st}, {i+8}")
    A.label("L_dd")
    A("s_mov_b64 exec, 0xffff")
    A("buffer_atomic_umax v4, v5, s[32:35], 0 offen")
A.label("L_end")
A("s_endpgm")
A.label("L_codeend")
A.raw(f".fill (16384 - (L_codeend - {NAME}_kernel)) / 4, 4, 0xbf810000")
A.raw(f""".section .rodata,"a"
.p2align 6
.amdhsa_kernel {NAME}_kernel
  .amdhsa_next_free_vgpr 152
  .amdhsa_next_free_sgpr 102
  .amdhsa_accum_offset 152
  .amdhsa_group_segment_fixed_size 0
  .amdhsa_kernarg_size 112
  .amdhsa_user_sgpr_count 2
  .amdhsa_user_sgpr_kernarg_segment_ptr 1
  .amdhsa_system_sgpr_workgroup_id_x 1
  .amdhsa_float_denorm_mode_32 3
.end_amdhsa_kernel""")
sys.stdout.write(A.text())
sys.stderr.write(f"instrs={A.ninstr} nops={A.nops}\n")
```

```python
import sys, math, struct
sys.path.insert(0, "work")
from asmlib import Asm

NAME = "adaLN_cond__sliding_block_cached__glu_gated_reglu__decode"
OPT = dict(stamps=0, nt="nt", limit=20000, refresh=255, psleep=0, pf=4, pfnt="", smallnt="", slow=0, gtrg=0, gw=7, gmask=7, fpf=0, wo_after_c=0, fpfbar=1, fpfl="", uslocal=1, qn=4, trg=0, mb_at="kv", touch=0, ltouch=1, ahold=4, wqpf=0, wqpfl="", ehold=0, depth=0, ffn_first=0, ser=1, obar=1, gu_b1=0, dn_late=0, dn_p=0, diag=0, rot=7, vt=1, tokf=0, r3=7, swp=-1, ns=16, help=0, helpbar=1, tokl=7, asplit=1, wmode=0, ptouch=0, nv1=3, wfirst=3, tok=1, gufirst=1, mfb1=1, mbearly=1, ftouch=0, ftouch2=0, mbg=3, mbwait=-1, g_b1=0, wo_mb=1, h1at=1, depth_until=16, qpipe=1, s1=6, s2=1, sent=1, trgmax=24, drole=0, dwg=10, dwv=1, da=0, db=15, dm=20, kvbar=1, abl="")
for a in sys.argv[1:]:
    k, v = a.split("=")
    OPT[k] = int(v) if v.lstrip("-").isdigit() else v
STAMPS = OPT["stamps"]; NT = OPT["nt"] if OPT["nt"] != "-" else ""
LIMIT = OPT["limit"]; REFRESH = OPT["refresh"]; SNT = OPT["smallnt"]

def f32(x): return "0x%08x" % struct.unpack("<I", struct.pack("<f", x))[0]

TRG = 0x1000; TOK = 0x4000; H1G = 0x8000; QG = 0x10000; MGT = 0x20000
CLR = 0x100000
OG = CLR; MG = CLR + 0x20000; X4 = CLR + 0x30000; Y4 = CLR + 0x38000
G5 = CLR + 0x40000; SG = CLR + 0x5C000; ST5 = CLR + 0x5D000; US5 = CLR + 0x60000
Y6 = 0x180000; DBG = 0x400000
WS_BYTES = 0x800000
TAGC = 0x9E3779B9
VREG = 65536; PA = 131072; XL = 147456; QL = XL + 1024; PL = QL + 2048; MISC = PL + 2048
FG = 0; FD = 32768; YL0 = 131072
WQL = 0; WOL = 32768; PB = 65536; RED = XL + 1024
LDS_BYTES = MISC + 256
C1 = 128 ** -0.5 * math.log2(math.e)

A = Asm()
hdr = open(f"cdna_kernels/{NAME}.s.ref").read().split("\n")
for ln in hdr:
    if ln.startswith("; @launch"):
        A.raw(f"; @launch grid=(256,1,1) block=(512,1,1) lds={LDS_BYTES}")
        break
    A.raw(ln)
A.raw('.amdgcn_target "amdgcn-amd-amdhsa--gfx950"')
A.raw(f".text\n.globl {NAME}_kernel\n.p2align 8\n.type {NAME}_kernel,@function\n{NAME}_kernel:")

RA, RB, RW, RC, RD, RE, RF = "s[8:11]", "s[12:15]", "s[16:19]", "s[20:23]", "s[24:27]", "s[28:31]", "s[32:35]"
sTAG, sCNT, sT = "s36", "s37", "s45"
def STAMP(n):
    if STAMPS:
        A(f"s_memrealtime s[{64+2*n}:{65+2*n}]")
DPPM = "row_mask:0xf bank_mask:0xf"
lbl = [0]
def L(p):
    lbl[0] += 1
    return f"L_{p}_{lbl[0]}"
def srd(r, nbytes):
    b = int(r[2:r.index(":")])
    A((f"s_movk_i32 s{b+2}, {nbytes}" if nbytes < 32768 else f"s_mov_b32 s{b+2}, {nbytes}") + f"\ns_mov_b32 s{b+3}, s11")
def kload(r, off):
    b = int(r[2:r.index(":")])
    A(f"s_load_dwordx2 s[{b}:{b+1}], s[0:1], {off}")

def SX(dst, const, *terms):
    first = True
    for t in terms:
        src, rs, w, ls = (t[0], 0, 0, t[1]) if len(t) == 2 else t
        d = dst if first else sT
        cur = src
        if w:
            if rs == 0: A(f"s_and_b32 {d}, {cur}, {(1<<w)-1}")
            else: A(f"s_bfe_u32 {d}, {cur}, {(w<<16)|rs:#x}")
            cur = d
        elif rs:
            A(f"s_lshr_b32 {d}, {cur}, {rs}"); cur = d
        if first:
            if ls: A(f"s_lshl_b32 {d}, {cur}, {ls}")
            elif cur != d: A(f"s_mov_b32 {d}, {cur}")
        else:
            if 1 <= ls <= 4: A(f"s_lshl{ls}_add_u32 {dst}, {cur}, {dst}")
            else:
                if ls: A(f"s_lshl_b32 {sT}, {cur}, {ls}"); cur = sT
                A(f"s_add_u32 {dst}, {dst}, {cur}")
        first = False
    if const: A(f"s_add_u32 {dst}, {dst}, {const:#x}")
def VX(dst, tmp, add, *terms):
    first = True
    for rs, w, ls in terms:
        if rs == 4 and w == 2: cur = "v1"
        elif rs == 0 and w == 4: cur = "v2"
        elif rs == 0 and w == 6: cur = "v0"
        else:
            d = f"v{dst}" if first else f"v{tmp}"
            if rs + w == 6: A(f"v_lshrrev_b32 {d}, {rs}, v0")
            elif rs == 0: A(f"v_and_b32 {d}, {(1<<w)-1}, v0")
            else: A(f"v_bfe_u32 {d}, v0, {rs}, {w}")
            cur = d
        if first:
            if ls: A(f"v_lshlrev_b32 v{dst}, {ls}, {cur}")
            elif cur != f"v{dst}": A(f"v_mov_b32 v{dst}, {cur}")
        else:
            if ls: A(f"v_lshl_or_b32 v{dst}, {cur}, {ls}, v{dst}")
            else: A(f"v_or_b32 v{dst}, {cur}, v{dst}")
        first = False
    if add: A(f"v_add_u32 v{dst}, {add}, v{dst}")

def cont(n):
    t = L("c")
    A(f"s_branch {t}")
    A.seg(n); A.label(t)
def await_any(load, valid, sleep):
    if not OPT["sent"]: return
    top, done = L("aw"), L("awd")
    A(f"s_mov_b32 {sCNT}, 0")
    A.label(top)
    load()
    A("s_waitcnt vmcnt(0)")
    valid()
    A(f"s_cbranch_vccnz {done}")
    A(f"s_sleep {sleep}\ns_add_u32 {sCNT}, {sCNT}, 1\ns_cmp_lt_u32 {sCNT}, 64\ns_cbranch_scc1 {top}")
    A.label(done)
def poll(loads, check, first_issued=False, first_wait=0, sleep=0, anyok=False):
    top, done, chk = L("poll"), L("got"), L("chk")
    A(f"s_mov_b32 {sCNT}, 0")
    if first_issued:
        A(f"s_waitcnt vmcnt({first_wait})")
        A(f"s_branch {chk}")
    A.label(top)
    loads()
    A("s_waitcnt vmcnt(0)")
    if first_issued:
        A.label(chk)
    check()
    A(f"s_cbranch_vcc{'n' if anyok else ''}z {done}")
    if sleep: A(f"s_sleep {sleep}")
    A(f"s_add_u32 {sCNT}, {sCNT}, 1")
    A(f"s_and_b32 {sT}, {sCNT}, {REFRESH}\ns_cbranch_scc1 {top}")
    A("buffer_wbl2 sc1")
    A(f"s_cmp_lt_u32 {sCNT}, {LIMIT}\ns_cbranch_scc1 {top}")
    A.label(done)
def chk_empty4(r, tmp):
    A(f"v_max3_u32 v{tmp}, v{r}, v{r+1}, v{r+2}\nv_max_u32 v{tmp}, v{tmp}, v{r+3}\nv_cmp_eq_u32 vcc, -1, v{tmp}")
def pack4(src, pk, pk2, tmp):
    A(f"v_mov_b32_dpp v{tmp}, v{src} quad_perm:[1,1,3,3] {DPPM}")
    A(f"v_cvt_pk_bf16_f32 v{pk}, v{src}, v{tmp}")
    A(f"v_mov_b32_dpp v{pk2}, v{pk} quad_perm:[2,2,2,2] {DPPM}")
def setexec(lo, hi):
    A(f"s_mov_b32 exec_lo, {lo:#x}\ns_mov_b32 exec_hi, {hi:#x}")
def fullexec():
    A("s_mov_b64 exec, -1")
def mfma(d, a, b, c):
    cc = "0" if c is None else f"v[{c}:{c+3}]"
    A(f"v_mfma_f32_16x16x32_bf16 v[{d}:{d+3}], v[{a}:{a+3}], v[{b}:{b+3}], {cc}")
def rowsum(ds):
    for d in ds: A(f"v_add_f32 v{d}, v{d}, v{d+1}\nv_add_f32 v{d+2}, v{d+2}, v{d+3}")
    for d in ds: A(f"v_add_f32 v{d}, v{d}, v{d+2}")
def code_prefetch(tmp, dst):
    sk = L("npf")
    A(f"s_cmp_lt_u32 s3, 6\ns_cbranch_scc1 {sk}")
    A("s_and_b32 s38, s38, 0xffffff00")
    A(f"v_lshlrev_b32 v{tmp}, 7, v0")
    A(f"s_and_b32 s40, s3, 1\ns_lshl_b32 s40, s40, 13")
    A(f"v_add_u32 v{tmp}, s40, v{tmp}")
    if not OPT["pf"]: A(f"v_mov_b32 v{tmp}, 0")
    A(f"global_load_dword v{dst}, v{tmp}, s[38:39] {OPT['pfnt']}")
    A.label(sk)

wM, wQ, wO, wTR, T0, T1, T2, T3, vPF = 3, 4, 5, 6, 7, 8, 9, 10, 11
wC = 12; wXS = 13; wX = 16; wXO = 24; wWF = 40; wD = 56
def swz_chunk(dst):
    A(f"v_lshlrev_b32 v{dst}, 1, v1\nv_xor_b32 v{dst}, v0, v{dst}\nv_and_b32 v{dst}, 7, v{dst}\nv_lshlrev_b32 v{dst}, 4, v{dst}")
def unit_dma(srdr, s0, s1, base):
    A(f"s_add_u32 m0, s42, {base}")
    A(f"buffer_load_dwordx4 v{wM}, {srdr}, {s0} offen {NT} lds")
    A(f"s_add_u32 m0, s42, {base+8192}")
    A(f"buffer_load_dwordx4 v{wM}, {srdr}, {s1} offen {NT} lds")
def tr_setup():
    VX(wTR, 32, 0, (2, 4, 7), (3, 2, 5), (0, 2, 3))
    SX("s40", XL, ("s3", 0, 2, 8))
    VX(82, 32, "s40", (0, 6, 2))
    VX(83, 32, "s40", (2, 1, 7), (4, 2, 3))
def silu_operand(cnt):
    A(f"s_waitcnt vmcnt({cnt})")
    A(f"v_lshlrev_b32 v32, 16, v{wC}\nv_and_b32 v33, 0xffff0000, v{wC}")
    A(f"v_mul_f32 v34, {f32(-math.log2(math.e))}, v32\nv_mul_f32 v35, {f32(-math.log2(math.e))}, v33")
    A("v_exp_f32 v34, v34\nv_exp_f32 v35, v35")
    A("v_add_f32 v34, 1.0, v34\nv_add_f32 v35, 1.0, v35")
    A("v_rcp_f32 v34, v34\nv_rcp_f32 v35, v35")
    A("v_mul_f32 v32, v32, v34\nv_mul_f32 v33, v33, v35")
    A("v_cvt_pk_bf16_f32 v32, v32, v33")
    A("ds_write_b32 v82, v32")
    A("s_waitcnt lgkmcnt(0)")
    A(f"ds_read2_b64 v[{wXO}:{wXO+3}], v83 offset0:0 offset1:4\nds_read2_b64 v[{wXO+4}:{wXO+7}], v83 offset0:8 offset1:12")
def unit_pre(s_c0, s_c1, base):
    SX("s40", 0, ("s3", 0, 2, 5)); A(f"v_xor_b32 v112, s40, v{wTR}\nv_add_u32 v112, {base}, v112")
    for i in range(4):
        A(f"v_mov_b32 v{wD+i}, {s_c0}\nv_mov_b32 v{wD+4+i}, {s_c1}")
def unit_go():
    if STAMPS: A("s_waitcnt lgkmcnt(0)")
    for k in range(2):
        for seg in range(2):
            for h in range(2):
                r = wWF + seg*8 + k*4 + h*2
                A(f"ds_read_b64_tr_b16 v[{r}:{r+1}], v112 offset:{seg*8192 + k*4096 + h*2048}")
    for k in range(2):
        for seg in range(2):
            A(f"s_waitcnt lgkmcnt({6 - 4*k - 2*seg})")
            mfma(wD + 4*seg, wXO + 4*k, wWF + seg*8 + k*4, wD + 4*seg)
def unit_mfma(s_c0, s_c1, base):
    unit_pre(s_c0, s_c1, base); unit_go()
def tagged_loads(r, va, so):
    A(f"buffer_load_dwordx4 v[{r}:{r+3}], v{va}, {RW}, {so} offen sc1")
    A(f"buffer_load_dwordx4 v[{r+4}:{r+7}], v{va}, {RW}, {so} offen offset:1024 sc1")
def tagged_chk(rs, tmp, extra=None):
    tags = [r + i for r in rs for i in (1, 3, 5, 7)] + ([extra] if extra else [])
    A(f"v_xor_b32 v{tmp}, {sTAG}, v{tags[-1]}")
    for t in tags[:-1]:
        A(f"v_bitop3_b32 v{tmp}, v{t}, {sTAG}, v{tmp} bitop3:0xbe")
    A(f"v_cmp_ne_u32 vcc, 0, v{tmp}")
def tagged_pack(r):
    A(f"v_mov_b32 v{r+1}, v{r+2}\nv_mov_b32 v{r+2}, v{r+4}\nv_mov_b32 v{r+3}, v{r+6}")
def tok_wait(va, so, r, fw=None):
    def chk():
        A(f"v_xor_b32 v{r}, {sTAG}, v{r}")
        for i in (1, 2, 3): A(f"v_bitop3_b32 v{r}, v{r+i}, {sTAG}, v{r} bitop3:0xbe")
        A(f"v_cmp_ne_u32 vcc, 0, v{r}")
    poll(lambda: A(f"buffer_load_dwordx4 v[{r}:{r+3}], v{va}, {RW}, {so} offen sc1"), chk, sleep=2, first_issued=fw is not None, first_wait=fw or 0)
def sum8(dst, r):
    A(f"v_add_f32 v32, v{r}, v{r+1}\nv_add_f32 v33, v{r+2}, v{r+3}\nv_add_f32 v34, v{r+4}, v{r+5}\nv_add_f32 v35, v{r+6}, v{r+7}")
    A(f"v_add_f32 v32, v32, v33\nv_add_f32 v34, v34, v35\nv_add_f32 v{dst}, v32, v34")

STAMP(0)
A("s_cmp_ge_u32 s2, 256\ns_cbranch_scc1 L_end")
A("s_cmp_ge_u32 s2, 128\ns_cselect_b32 s40, 24, 8\ns_cselect_b32 s41, 0, 16")
A("s_load_dwordx2 s[8:9], s[0:1], s40")
if OPT["diag"] == 6: A("s_waitcnt lgkmcnt(0)\ns_memrealtime s[100:101]")
kload(RC, 80)
A("s_load_dwordx2 s[24:25], s[0:1], s41")
kload(RE, 72); kload(RW, 104)
if OPT["diag"] == 7: A("s_memrealtime s[100:101]")
A("v_readfirstlane_b32 s3, v0")
A("s_getpc_b64 s[38:39]")
if OPT["pf"] == 4:
    A("s_and_b32 s38, s38, 0xffffff00")
    A(f"v_and_b32 v{vPF}, 0x1c0, v0\ns_lshl_b32 s40, s2, 7\ns_and_b32 s40, s40, 0x3c00\nv_lshl_or_b32 v{vPF}, v{vPF}, 1, s40")
    sk = L("npf")
    A(f"s_cmp_ge_u32 s2, 128\ns_cbranch_scc1 {sk}")
    A(f"global_load_dword v{vPF}, v{vPF}, s[38:39]")
    A.label(sk)
A("v_and_b32 v0, 63, v0")
if OPT["diag"] == 8: A("s_memrealtime s[100:101]")
A("s_mov_b32 s11, 0x00020000")
A("v_lshrrev_b32 v1, 4, v0\nv_and_b32 v2, 15, v0")
A(f"s_add_u32 s4, s2, {OPT['rot']}\ns_and_b32 s4, s4, 7\ns_bfe_u32 s6, s2, 0x10006\ns_bfe_u32 s7, s2, 0x30003")
A(f"v_lshlrev_b32 v{T3}, 1, v1\nv_xor_b32 v{T3}, v2, v{T3}\nv_lshlrev_b32 v{T3}, 4, v{T3}")
A("s_lshl1_add_u32 s58, s4, s6\ns_lshl_b32 s46, s7, 7\ns_mov_b32 s27, s11")
A(f"v_and_b32 v{T1}, 0x70, v{T3}\nv_lshrrev_b32 v{T0}, 3, v0")
if OPT["diag"] == 9: A("s_memrealtime s[100:101]")
srd(RC, 3145728); srd(RE, 2048)
A(f"v_mul_u32_u24 v{wM}, 6144, v{T0}\nv_add_u32 v{wM}, v{wM}, v{T1}")
if OPT["diag"] == 10: A("s_memrealtime s[100:101]")
if OPT["wfirst"]:
    A("s_cmp_lt_u32 s2, 128\ns_cbranch_scc1 L_KV")
    A.seg(OPT["wfirst"]); A.label("L_KV")
else:
    A("s_cmp_ge_u32 s2, 128\ns_cbranch_scc1 L_W")
def ids2():
    A("s_lshr_b32 s3, s3, 6\ns_bfe_u32 s5, s2, 0x40003")
    if STAMPS:
        for i in range(2, 16): A(f"s_mov_b32 s{64+2*i}, 0")
    srd(RW, WS_BYTES)

vE, vO, vQO = 120, 121, 122
vKA = 108
vQ = 14
vKF = 16
vVF = 48
vQF = 80
vS = 96
vP = 104
vOA = 108
vST = 114
vOAD, vSAD = 116, 117
A(f"v_lshl_or_b32 v{vE}, v1, 8, v{T3}\nv_xor_b32 v{vO}, 0x80, v{vE}")
A("s_lshl_b32 s43, s3, 7\ns_mov_b32 s10, 33554432\ns_mov_b32 s26, s10")
SX("s56", 6144*256, ("s6", 24), ("s4", 21), ("s7", 16), ("s43", 0))
A("s_add_u32 s57, s56, 4096\ns_mov_b32 m0, s43")
def kv_dma(u):
    r = RA if u < 8 else RD
    A(f"buffer_load_dwordx4 v{vE if u%2==0 else vO}, {r}, {'s56' if u%8 < 4 else 's57'} offen offset:{(u%4)*1024} {NT} lds")
HELP = OPT["help"]
if HELP & 1:
    kload(RF, 24); srd(RF, 4194304)
    A(f"v_lshlrev_b32 v{wQ}, 13, v{T0}")
    SX("s44", 0, ("s6", 19), ("s3", 10), ("s4", 10), ("s46", 0))
if HELP & 2:
    A(f"v_and_b32 v{T2}, 0x40, v{T1}\nv_add_u32 v{T2}, v{wM}, v{T2}\nv_add_u32 v{T2}, v{T2}, v{T1}") if False else None
    A(f"v_mul_u32_u24 v{T2}, 6144, v{T0}\nv_and_b32 v{wO}, 1, v0\nv_lshl_add_u32 v{T2}, v{wO}, 7, v{T2}")
    SX("s51", 0, ("s7", 6), ("s3", 3, 0, 0))
    A("s_mul_i32 s51, s51, 6144")
    SX("s40", 2048, ("s4", 8), ("s6", 11)); A("s_add_u32 s51, s51, s40")
A("s_waitcnt lgkmcnt(0)")
if OPT["diag"] == 5: A("s_memrealtime s[100:101]")
if HELP & 1: A(f"buffer_load_dword v16, v{wQ}, {RF}, s44 offen")
if HELP & 2: A(f"buffer_load_dword v17, v{T2}, {RC}, s51 offen")
if HELP and OPT["helpbar"]: A("s_barrier")
VT = OPT["vt"]
if VT:
    A(f"s_add_u32 m0, s43, {VREG}")
    kv_dma(8)
    A("s_mov_b32 m0, s43")
if OPT["slow"]: kv_dma(0)
if OPT["pf"] == 3:
    A("s_and_b32 s38, s38, 0xffffff00")
    SX("s40", 0, ("s2", 3, 4, 10), ("s3", 1))
    A("s_load_dword s99, s[38:39], s40")
A(f"s_load_dword {sTAG}, s[16:17], 0")
if OPT["slow"]: A("s_waitcnt vmcnt(0)")
def mb_issue():
    SX("s51", 0, ("s7", 6), ("s3", 3, 0, 0))
    A("s_mul_i32 s51, s51, 6144\ns_lshl_b32 s42, s3, 4")
    SX("s40", 2048, ("s58", 8)); A("s_add_u32 s51, s51, s40")
    A(f"s_add_u32 m0, s42, {PA}")
    A(f"buffer_load_dwordx4 v{wM}, {RC}, s51 offen {NT} lds")
    A(f"s_add_u32 m0, s42, {PA + 8192 - 128}")
    A(f"buffer_load_dwordx4 v{wM}, {RC}, s51 offen offset:128 {NT} lds")
    VX(T2, T3, 0, (5, 1, 10), (0, 5, 2))
    A(f"buffer_load_dword v{wC}, v{T2}, {RE}, s46 offen {SNT}")
def kv_issue(u0, u1):
    for u in range(u0, u1):
        if u in (4, 12): A("s_add_u32 m0, m0, 4096")
        if u == 8:
            A(f"s_add_u32 m0, s43, {VREG}")
            if VT: continue
        kv_dma(u)
NS = OPT["ns"]
kv_issue(1 if OPT["slow"] else 0, NS)
cont(30)
ids2()
if STAMPS: A("s_mov_b32 s66, 0")
def after_issue():
    if OPT["tokf"]:
        sk = L("ntw")
        A(f"s_cmp_lg_u32 s3, 0\ns_cbranch_scc1 {sk}")
        A(f"buffer_load_dword v144, v140, {RW}, s41 offen sc1")
        A.label(sk)
    STAMP(2)
    if OPT["abl"]:
        A("s_waitcnt vmcnt(0)")
        STAMP(4)
        A("s_branch L_exit")
    if OPT["tokl"] and not OPT["tokf"]:
        sk = L("ntl")
        A(f"s_cmp_lg_u32 s3, 7\ns_cbranch_scc1 {sk}")
        A(f"s_waitcnt vmcnt({OPT['tokl']})")
        A(f"buffer_load_dwordx4 v[144:147], v140, {RW}, s41 offen sc1")
        A.label(sk)
GT = 0
if OPT["tokf"]:
    A("v_lshlrev_b32 v140, 2, v2"); SX("s41", TRG, ("s4", 7))
else: A(f"v_lshlrev_b32 v140, 7, v0\ns_movk_i32 s41, {TOK}")
if NS == 16: after_issue()
kload(RC, 48); kload(RB, 56); kload(RE, 64)
FF = OPT["ffn_first"]
if FF: FG = VREG; FD = VREG + 32768
wG, wDO, fMF = 124, 125, 123
A(f"v_mul_u32_u24 v{wG}, 3584, v{T0}\nv_add_u32 v{wG}, v{wG}, v{T1}\nv_lshl_or_b32 v{wDO}, v{T0}, 10, v{T1}")
A("s_cmp_lt_u32 s4, 7")
A("s_cselect_b32 s22, 1835008, 0\ns_cselect_b32 s14, 1835008, 0\ns_mov_b32 s15, s11\ns_cselect_b32 s30, 1835008, 0")
SX("s63", 0, ("s4", 4), ("s5", 0))
SX("s49", 0, ("s63", 0, 2, 7), ("s3", 4))
A("s_mul_i32 s49, s49, 3584")
SX("s50", 0, ("s63", 2, 0, 7))
A(f"s_add_u32 s49, s49, s50\ns_add_u32 s50, s49, {8*3584-1024}")
SX("s51", 0, ("s63", 14), ("s3", 7))
A(f"s_add_u32 s52, s51, {8*1024-1024}")
A("s_lshl_b32 s42, s3, 11")
def g_dma():
    A(f"s_add_u32 m0, s42, {FG}")
    A(f"buffer_load_dwordx4 v{wG}, {RC}, s49 offen {NT} lds")
    A(f"buffer_load_dwordx4 v{wG}, {RC}, s50 offen offset:1024 {NT} lds")
def u_dma():
    A(f"s_add_u32 m0, s42, {FG+16384}")
    A(f"buffer_load_dwordx4 v{wG}, {RB}, s49 offen {NT} lds")
    A(f"buffer_load_dwordx4 v{wG}, {RB}, s50 offen offset:1024 {NT} lds")
def gu_dma():
    g_dma(); u_dma()
def dn_dma():
    A(f"s_add_u32 m0, s42, {FD}")
    A(f"buffer_load_dwordx4 v{wDO}, {RE}, s51 offen {NT} lds")
    A(f"buffer_load_dwordx4 v{wDO}, {RE}, s52 offen offset:1024 {NT} lds")
def ffn_dma():
    gu_dma(); dn_dma()
GB1 = OPT["gu_b1"] and OPT["ser"] and not FF
SX("s98", ST5, ("s4", 8))
SX("s96", G5, ("s63", 10))
A(f"s_add_u32 s97, s96, {US5-G5}")
if OPT["ftouch"]:
    A("v_mul_u32_u24 v118, 3584, v2\nv_lshlrev_b32 v119, 10, v2")
SX("s44", QG, ("s58", 12), ("s3", 10))
vQ = 100
A(f"v_lshlrev_b32 v{vQO}, 4, v0")
VX(fMF, T2, 0, (0, 3, 7), (3, 1, 6), (4, 2, 4))
SX("s59", MGT + 2*32768, ("s63", 0, 2, 13), ("s3", 0, 2, 11))
SX("s40", 0, ("s3", 2, 0, 15)); A("s_sub_u32 s59, s59, s40")
VX(T2, 0, 0, (0, 3, 1))
A(f"v_xor_b32 v{T2}, v1, v{T2}\nv_lshlrev_b32 v{T2}, 4, v{T2}\nv_lshl_or_b32 v{T2}, v2, 8, v{T2}")
A(f"v_add_u32 v{vKA}, s43, v{T2}")
for t in range(1, 4):
    A(f"v_xor_b32 v{vKA+t}, {t*64:#x}, v{vKA}")
vQW, vQR, vVR, vMX, vPW, vPR, vMW = 3, 4, 5, 6, 113, 13, 112
SX("s40", QL, ("s3", 5))
VX(vQW, T2, "s40", (1, 4, 7), (5, 1, 4), (0, 1, 3))
VX(vQR, T2, QL, (4, 2, 7), (0, 3, 4))
A(f"v_bfe_u32 v{T0}, v0, 2, 3\nv_xor_b32 v{T0}, s3, v{T0}")
VX(vVR, T2, VREG, (2, 4, 8), (0, 2, 3))
A(f"v_lshl_or_b32 v{vVR}, v{T0}, 5, v{vVR}")
VX(vMX, T2, MISC, (0, 2, 5))
A(f"s_lshl_b32 s40, s3, 2\nv_add_u32 v{vMW}, s40, v{vMX}")
VX(vPR, T2, PL, (4, 2, 6), (0, 2, 4))
A(f"s_lshl_b32 s40, s3, 8\nv_and_b32 v{T2}, 12, v0\nv_add3_u32 v{vPW}, s40, v{vPR}, v{T2}")
A("s_mov_b32 s60, 0xf0f0f0f0\ns_mov_b32 s61, s60\ns_mov_b32 s46, 0xff00ff00\ns_mov_b32 s47, s46")
VX(vOAD, T2, 0, (0, 2, 12), (4, 2, 4))
SX("s53", OG, ("s4", 14), ("s3", 1, 0, 10), ("s5", 6), ("s3", 0, 1, 3))
VX(vSAD, T2, 0, (0, 2, 7))
SX("s54", SG, ("s4", 9), ("s5", 3))
A(f"s_mov_b32 s55, {f32(C1)}")
fWF = 128 if FF else 84
fDF = 144 if FF else 64
def ffn_frag_addr(wr, ta, tr):
    VX(tr, 32, 0, (2, 4, 7), (3, 2, 5), (0, 2, 3))
    SX("s40", 0, ("s3", 0, 2, 5)); A(f"v_xor_b32 v{wr}, s40, v{tr}")
    SX("s40", FG, ("s3", 2, 0, 14)); A(f"v_add_u32 v{wr}, s40, v{wr}")
    A(f"s_add_u32 s40, s42, {FD}\nv_add_u32 v{ta}, s40, v{tr}")
    for t in range(1, 4):
        A(f"v_xor_b32 v{ta+t}, {t*32:#x}, v{ta}")
def w_frags(wr):
    for k in range(4):
        for h in range(2):
            r = fWF + 4*k + 2*h
            A(f"ds_read_b64_tr_b16 v[{r}:{r+1}], v{wr} offset:{k*4096 + h*2048}")
def d_frags(ta):
    for tau in range(4):
        A(f"ds_read_b64_tr_b16 v[{fDF+2*tau}:{fDF+2*tau+1}], v{ta+tau}")
if NS < 16:
    kv_issue(NS, 16)
    after_issue()
A(f"s_waitcnt vmcnt({7 if VT else 8}) lgkmcnt(0)")
if OPT["diag"] >= 5: A("s_mov_b32 s76, s100")
A(f"s_add_u32 {sTAG}, {sTAG}, {TAGC:#x}")
for T in range(2):
    for t in range(4):
        r = vKF + (T*4+t)*4
        A(f"ds_read_b128 v[{r}:{r+3}], v{vKA+t} offset:{T*4096}")
sk = L("nqp"); skm = L("mbw")
if OPT["mbg"] == 3:
    A(f"s_cmp_lt_u32 s3, 4\ns_cbranch_scc1 {skm}")
    if not OPT["tokl"]:
        if OPT["tok"]:
            sk3 = L("ntv")
            A(f"s_cmp_lg_u32 s3, 4\ns_cbranch_scc1 {sk3}")
            A(f"v_lshlrev_b32 v80, 7, v0\ns_movk_i32 s41, {TOK}")
            tok_wait(80, "s41", 84)
            A(f"buffer_load_dwordx4 v[136:139], v{vQO}, {RW}, s96 offen sc1")
            A(f"buffer_load_dwordx4 v[136:139], v{vQO}, {RW}, s97 offen sc1")
            A(f"buffer_load_dword v136, v{vSAD}, {RW}, s98 offen sc1")
            A(f"s_branch {sk}")
            A.label(sk3)
    A(f"s_waitcnt vmcnt(0)\ns_branch {sk}")
    A.label(skm)
    A.mute = True
A("s_barrier")
A(f"s_cmp_lt_u32 s3, 4\ns_cbranch_scc1 {skm}")
SX("s40", XL, ("s3", 0, 2, 8))
VX(82, 80, "s40", (0, 6, 2))
VX(83, 80, "s40", (2, 1, 7), (4, 2, 3))
A(f"v_lshlrev_b32 v84, 16, v{wC}\nv_and_b32 v85, 0xffff0000, v{wC}")
A(f"v_mul_f32 v86, {f32(-math.log2(math.e))}, v84\nv_mul_f32 v87, {f32(-math.log2(math.e))}, v85")
A("v_exp_f32 v86, v86\nv_exp_f32 v87, v87\nv_add_f32 v86, 1.0, v86\nv_add_f32 v87, 1.0, v87")
A("v_rcp_f32 v86, v86\nv_rcp_f32 v87, v87\nv_mul_f32 v84, v84, v86\nv_mul_f32 v85, v85, v87")
A("v_cvt_pk_bf16_f32 v84, v84, v85\nds_write_b32 v82, v84")
A("ds_read2_b64 v[144:147], v83 offset0:0 offset1:4\nds_read2_b64 v[148:151], v83 offset0:8 offset1:12")
VX(81, 80, 0, (2, 4, 7), (3, 2, 5), (0, 2, 3))
SX("s40", 0, ("s3", 0, 2, 5)); A(f"v_xor_b32 v81, s40, v81\nv_add_u32 v81, {PA}, v81")
for k in range(2):
    for sg in range(2):
        for hh in range(2):
            r = 128 + sg*8 + k*4 + hh*2
            A(f"ds_read_b64_tr_b16 v[{r}:{r+1}], v81 offset:{sg*8192 + k*4096 + hh*2048}")
SX("s40", 0, ("s58", 2, 0, 3), ("s7", 0))
A("s_cmp_eq_u32 s40, 16\ns_cselect_b32 s41, 1.0, 0")
for i in range(8): A(f"v_mov_b32 v{88+i}, s41")
VX(80, 81, 0, (5, 1, 12), (4, 1, 6), (2, 2, 4))
SX("s41", MGT, ("s58", 13), ("s3", 0, 2, 10), ("s46", 0))
A(f"v_mov_b32 v97, {sTAG}\nv_mov_b32 v99, {sTAG}")
A("s_waitcnt lgkmcnt(0)")
for k in range(2):
    for sg in range(2):
        mfma(88 + 4*sg, 144 + 4*k, 128 + sg*8 + k*4, 88 + 4*sg)
A("v_cmp_gt_u32 vcc, 32, v0")
A("v_cndmask_b32 v84, v92, v88, vcc")
pack4(84, 96, 98, 85)
setexec(0x11111111, 0x11111111)
A(f"buffer_store_dwordx4 v[96:99], v80, {RW}, s41 offen sc1")
fullexec()
STAMP(9)
A(f"s_waitcnt vmcnt(1)\ns_branch {sk}")
A.label(skm)
A.mute = False
def q_load():
    A(f"buffer_load_dwordx4 v[{vQ}:{vQ+3}], v{vQO}, {RW}, s44 offen sc1")
def q_chk():
    A(f"v_xor_b32 v{T0}, {sTAG}, v{vQ+1}\nv_bitop3_b32 v{T0}, v{vQ+3}, {sTAG}, v{T0} bitop3:0xbe\nv_cmp_ne_u32 vcc, 0, v{T0}")
poll(q_load, q_chk, sleep=OPT['s2'])
STAMP(4)
A(f"v_mov_b32 v{vQ+1}, v{vQ+2}")
A(f"ds_write_b64 v{vQW}, v[{vQ}:{vQ+1}]")
A.label(sk)
A("s_waitcnt lgkmcnt(0)\ns_barrier")
STAMP(5)
for t in range(4):
    A(f"ds_read_b128 v[{vQF+4*t}:{vQF+4*t+3}], v{vQR} offset:{t*512}")
tf_load = lambda: A(f"buffer_load_dword v144, v140, {RW}, s41 offen sc1")
if OPT["tokf"]:
    sk = L("ntf")
    A(f"s_cmp_lg_u32 s3, 7\ns_cbranch_scc1 {sk}")
    tf_load()
    A.label(sk)
if GB1: gu_dma()
if OPT["g_b1"]: g_dma()
def f_touch(n):
    A("s_mov_b64 exec, 0xffff")
    if n & 1: A(f"buffer_load_dword v{vPF}, v118, {RC}, s49 offen")
    if n & 2: A(f"buffer_load_dword v{vPF}, v118, {RB}, s49 offen")
    if n & 4: A(f"buffer_load_dword v{vPF}, v119, {RE}, s51 offen")
    fullexec()
if OPT["ftouch"]: f_touch(OPT["ftouch"])
vMF = 128
def mf_loads():
    tagged_loads(vMF, fMF, "s59")
def l_touch(a, b, c):
    sk = L("nlt")
    A(f"s_cmp_lg_u32 s3, 7\ns_cbranch_scc1 {sk}")
    A(f"buffer_load_dwordx4 v[136:139], v{vQO}, {RW}, {a} offen sc1")
    A(f"buffer_load_dwordx4 v[136:139], v{vQO}, {RW}, {b} offen sc1")
    A(f"buffer_load_dword v136, v{vSAD}, {RW}, {c} offen sc1")
    A.label(sk)
def v_tr(kb, T):
    r = vVF + kb*4 + T*2
    A(f"ds_read_b64_tr_b16 v[{r}:{r+1}], v{vVR} offset:{(32*kb+16*T)*256}")
EARLY_T = [0, 1]
NV1 = OPT["nv1"]
if STAMPS: A("s_waitcnt lgkmcnt(0)")
for t in range(4):
    A(f"s_waitcnt lgkmcnt({3-t})")
    for T in range(2):
        mfma(vS + 4*T, vKF + (T*4+t)*4, vQF + 4*t, None if t == 0 else vS + 4*T)
for kb in range(NV1):
    v_tr(kb, 0); v_tr(kb, 1)
for i in range(8):
    A(f"v_add_f32_dpp v{vS+i}, v{vS+i}, v{vS+i} row_ror:4 {DPPM}")
A(f"v_max3_f32 v{T0}, v{vS}, v{vS+1}, v{vS+2}\nv_max3_f32 v{T2}, v{vS+3}, v{vS+4}, v{vS+5}")
A(f"v_max3_f32 v{T0}, v{T0}, v{vS+6}, v{vS+7}\nv_max_f32 v{T3}, v{T0}, v{T2}\nv_max_f32 v{T0}, v{T0}, v{T2}")
A(f"v_cndmask_b32 v{vS}, v{vS}, v{vS+2}, s[60:61]\nv_cndmask_b32 v{vS+1}, v{vS+1}, v{vS+3}, s[60:61]")
A(f"v_permlane32_swap_b32 v{T0}, v{T3}")
A(f"v_max_f32 v{T2}, v{T0}, v{T3}\nv_max_f32 v{T0}, v{T0}, v{T3}")
A(f"v_cndmask_b32 v{vS+4}, v{vS+4}, v{vS+6}, s[60:61]\nv_cndmask_b32 v{vS+5}, v{vS+5}, v{vS+7}, s[60:61]")
A(f"v_permlane16_swap_b32 v{T0}, v{T2}")
A(f"v_max_f32 v{T0}, v{T0}, v{T2}")
A(f"ds_write_b32 v{vMW}, v{T0}")
A(f"v_cndmask_b32 v{vS}, v{vS}, v{vS+4}, s[46:47]\nv_cndmask_b32 v{vS+1}, v{vS+1}, v{vS+5}, s[46:47]")
A(f"v_mul_f32 v{vS}, s55, v{vS}\nv_mul_f32 v{vS+1}, s55, v{vS+1}")
STAMP(14)
if OPT["tokl"]:
    sk = L("ntm")
    A(f"s_cmp_lg_u32 s3, 7\ns_cbranch_scc1 {sk}")
    if OPT["tokf"]: poll(tf_load, lambda: A(f"v_cmp_eq_u32 vcc, {sTAG}, v144"), first_issued=True, anyok=True)
    else: tok_wait(140, "s41", 144, 0)
    A(f"buffer_load_dwordx4 v[136:139], v{vQO}, {RW}, s96 offen sc1")
    A(f"buffer_load_dwordx4 v[136:139], v{vQO}, {RW}, s97 offen sc1")
    A(f"buffer_load_dword v136, v{vSAD}, {RW}, s98 offen sc1")
    A.label(sk)
A("s_waitcnt lgkmcnt(0)\ns_barrier")
A(f"ds_read_b128 v[{vQF}:{vQF+3}], v{vMX}\nds_read_b128 v[{vQF+4}:{vQF+7}], v{vMX} offset:16")
for kb in range(NV1, min(8, NV1 + 6)):
    v_tr(kb, 0); v_tr(kb, 1)
A(f"s_waitcnt lgkmcnt({2*(min(8, NV1+6) - NV1)})")
A(f"v_max3_f32 v{T0}, v{vQF}, v{vQF+1}, v{vQF+2}\nv_max3_f32 v{T2}, v{vQF+3}, v{vQF+4}, v{vQF+5}")
A(f"v_max3_f32 v{T0}, v{T0}, v{vQF+6}, v{vQF+7}\nv_max_f32 v{T0}, v{T0}, v{T2}")
A(f"v_fma_f32 v{vS}, -v{T0}, s55, v{vS}\nv_fma_f32 v{vS+1}, -v{T0}, s55, v{vS+1}")
A(f"v_exp_f32 v{vS}, v{vS}\nv_exp_f32 v{vS+1}, v{vS+1}")
A(f"v_mul_f32 v{vST}, s55, v{T0}")
A(f"v_cvt_pk_bf16_f32 v{vP}, v{vS}, v{vS+1}")
A(f"v_add_f32 v{T0}, v{vS}, v{vS+1}")
A(f"ds_write_b32 v{vPW}, v{vP}")
A(f"v_add_f32_dpp v{T0}, v{T0}, v{T0} row_ror:4 {DPPM}")
if OPT["mfb1"]: mf_loads()
A(f"v_add_f32_dpp v{T3}, v{T0}, v{T0} row_ror:8 {DPPM}\nv_add_f32_dpp v{T0}, v{T0}, v{T0} row_ror:8 {DPPM}")
A(f"v_permlane32_swap_b32 v{T0}, v{T3}")
A(f"v_add_f32 v{T2}, v{T0}, v{T3}\nv_add_f32 v{T0}, v{T0}, v{T3}")
A(f"v_permlane16_swap_b32 v{T0}, v{T2}")
A(f"v_add_f32 v{T0}, v{T0}, v{T2}")
A(f"ds_write_b32 v{vMW}, v{T0} offset:128")
if OPT["dn_p"] == 3: dn_dma()
A("s_waitcnt lgkmcnt(0)\ns_barrier")
STAMP(3)
if STAMPS: A("s_waitcnt lgkmcnt(0)")
LATE_T = [T for T in range(2) if T not in EARLY_T]
A(f"ds_read_b128 v[{vQF}:{vQF+3}], v{vMX} offset:128\nds_read_b128 v[{vQF+4}:{vQF+7}], v{vMX} offset:144")
for kb in range(8):
    r = vKF + kb*4
    A(f"ds_read_b128 v[{r}:{r+3}], v{vPR} offset:{kb*256}")
def st_pub(vm=None):
    sk = L("nst"); sk2 = L("nsu")
    A(f"s_cmp_lg_u32 s3, 0\ns_cbranch_scc1 {sk}")
    A("s_waitcnt lgkmcnt(8)")
    rowsum([vQF, vQF+4])
    A(f"v_add_f32 v{vST+1}, v{vQF}, v{vQF+4}")
    A("s_mov_b64 exec, 15")
    A(f"buffer_store_dwordx2 v[{vST}:{vST+1}], v{vSAD}, {RW}, s54 offen")
    fullexec()
    if vm is not None:
        A(f"s_waitcnt vmcnt({vm})\ns_branch {sk2}")
    A.label(sk)
    if vm is not None:
        A(f"s_waitcnt vmcnt({vm-1})")
        A.label(sk2)
if LATE_T:
    st_pub(1)
    A("s_waitcnt lgkmcnt(0)\ns_barrier")
    STAMP(6)
    if STAMPS: A("s_waitcnt lgkmcnt(0)")
    per = len(LATE_T)
    AHEAD = 8 if per == 1 else 6
    for kb in range(AHEAD):
        for T in LATE_T: v_tr(kb, T)
    for kb in range(8):
        A(f"s_waitcnt lgkmcnt({(min(8, AHEAD + kb) - kb - 1) * per})")
        mfma(vOA, vVF + kb*4, vKF + kb*4, None if kb == 0 else vOA)
        if AHEAD + kb < 8:
            for T in LATE_T: v_tr(AHEAD + kb, T)
else:
    st_pub()
    if OPT["dn_p"] == 1: dn_dma()
    for kb in range(8):
        A(f"s_waitcnt lgkmcnt({7-kb})")
        mfma(vOA, vVF + kb*4, vKF + kb*4, None if kb == 0 else vOA)
setexec(0x000f000f, 0x000f000f)
A(f"v_cvt_pk_bf16_f32 v{vP}, v{vOA}, v{vOA+1}\nv_cvt_pk_bf16_f32 v{vP+1}, v{vOA+2}, v{vOA+3}")
A(f"buffer_store_dwordx2 v[{vP}:{vP+1}], v{vOAD}, {RW}, s53 offen")
fullexec()
STAMP(7)
A("s_cmp_lt_u32 s4, 7\ns_cbranch_scc1 L_ffn")
A("s_cmp_lg_u32 s3, 0\ns_cbranch_scc1 L_exit")
VX(T1, T2, 0, (3, 1, 14), (0, 3, 11))
A(f"s_mov_b32 s46, {X4 + 7*128:#x}")
poll(lambda: A(f"buffer_load_dword v16, v{T1}, {RW}, s46 offen sc1"), lambda: A(f"v_cmp_eq_u32 vcc, -1, v16"), sleep=8)
A("s_branch L_exit")
A.label("L_ffn")
SX("s55", ST5, ("s4", 8))
SX("s53", G5, ("s63", 10))
A(f"s_add_u32 s54, s53, {US5-G5}")
if not OPT["mfb1"]:
    l_touch("s53", "s54", "s55")
    mf_loads()
DL = OPT["dn_late"]
NF = 0
if not GB1 and OPT["dn_p"] != 3:
    if OPT["obar"]: A("s_barrier")
    if not OPT["g_b1"]:
        g_dma(); NF += 2
    u_dma(); NF += 2
if not DL and not OPT["dn_p"]:
    if (GB1 and OPT["obar"]) or OPT["gufirst"]: A("s_barrier")
    dn_dma(); NF += 2
fYW, fYR, fWR, fGA, fGR, fSTA, fY6A = 113, 114, 115, 116, 118, 119, 120
fG, fU, fS = 121, 122, 117
wOF, wTA = fMF, 108
if not FF: ffn_frag_addr(fWR, wTA, wTR)
A("s_lshr_b32 s56, s3, 2\ns_and_b32 s57, s3, 3")
VX(fYR, 32, YL0, (0, 6, 4))
A(f"s_lshl_b32 s40, s3, 10\nv_add_u32 v{fYW}, s40, v{fYR}")
VX(fGA, 32, 0, (0, 6, 2))
SX("s61", G5 - 64, ("s63", 2, 0, 12), ("s57", 10), ("s63", 0, 2, 8), ("s56", 7))
A(f"s_add_u32 s62, s61, {US5-G5}")
VX(fGR, 32, 0, (2, 1, 7), (3, 1, 6), (4, 2, 4), (0, 2, 2))
VX(fSTA, 32, 0, (0, 3, 5), (3, 1, 4))
VX(fY6A, 32, 0, (3, 1, 14), (5, 1, 12), (4, 1, 4))
SX("s47", Y4, ("s56", 14), ("s63", 0, 2, 12), ("s57", 10))
SX("s96", Y6, ("s3", 16), ("s63", 5))
A("s_add_u32 s97, s96, 8192\ns_add_u32 s98, s96, 32768\ns_add_u32 s99, s96, 40960")
A(f"s_mov_b32 s41, {f32(1.0/512)}\ns_mov_b32 s43, {f32(1e-5)}")
poll(mf_loads, lambda: tagged_chk([vMF], 33), first_issued=True, first_wait=NF, sleep=4)
tagged_pack(vMF)
A(f"ds_write_b128 v{fYW}, v[{vMF}:{vMF+3}]")
def y_load():
    A(f"buffer_load_dwordx4 v[76:79], v{wOF}, {RW}, s47 offen sc1")
GF = OPT["gufirst"]
A(f"s_waitcnt vmcnt({2 if GF else 0}) lgkmcnt(0)\ns_barrier")
STAMP(10)
y_load()
if DL: dn_dma()
YO = [16, 20, 24, 28, 32, 36, 100, 104]
if not FF: w_frags(fWR)
for u in range(8):
    A(f"ds_read_b128 v[{YO[u]}:{YO[u]+3}], v{fYR} offset:{u*1024}")
A("s_waitcnt lgkmcnt(0)")
for k in range(4):
    for pi in range(2):
        mfma(wD + 4*pi, YO[4*pi+k], fWF + 4*k, None if k == 0 else wD + 4*pi)
rowsum([wD, wD+4])
A(f"v_permlane16_swap_b32 v{wD}, v{wD+4}")
A(f"v_add_f32 v{wD+1}, v{wD}, v{wD+4}\nv_add_f32 v{wD}, v{wD}, v{wD+4}")
A(f"v_permlane16_swap_b32 v{wD}, v{wD+1}")
A(f"v_cvt_pk_bf16_f32 v126, v{wD}, v{wD+1}")
setexec(0xffff0000, 0x0000ffff)
A(f"buffer_store_dword v126, v{fGA}, {RW}, s62 offen {'' if OPT['uslocal'] else 'sc1'}")
fullexec()
STAMP(1)
def us_loads():
    for k in range(4):
        A(f"buffer_load_dword v{40+k}, v{fGR}, {RW}, s54 offen offset:{256*k} sc1")
if not DL and not GF: d_frags(wTA)
poll(y_load, lambda: chk_empty4(76, 33), first_issued=True, first_wait=3 if DL else 1)
STAMP(11)
A(f"ds_write_b128 v{fYW}, v[76:79] offset:8192")
us_loads()
A("s_waitcnt lgkmcnt(0)\ns_barrier")
for u in range(8):
    A(f"ds_read_b128 v[{YO[u]}:{YO[u]+3}], v{fYR} offset:{8192+u*1024}")
for u in range(8):
    A(f"s_waitcnt lgkmcnt({7-u})")
    mfma(wD, YO[u], fWF + 4*(u & 3), None if u == 0 else wD)
A(f"v_add_f32 v{wD}, v{wD}, v{wD+1}\nv_add_f32 v{wD+2}, v{wD+2}, v{wD+3}")
A(f"v_add_f32 v{wD+1}, v{wD}, v{wD+2}\nv_add_f32 v{wD}, v{wD}, v{wD+2}")
A(f"v_permlane16_swap_b32 v{wD}, v{wD+1}")
A(f"v_add_f32 v{fG}, v{wD}, v{wD+1}")
def g_store(fl):
    setexec(0xffff0000, 0x0000ffff)
    A(f"buffer_store_dword v{fG}, v{fGA}, {RW}, s61 offen {fl}")
g_store("")
fullexec()
STAMP(12)
def g_loads():
    A(f"buffer_load_dwordx4 v[24:27], v{fSTA}, {RW}, s55 offen sc1")
    for k in range(4):
        A(f"buffer_load_dword v{20+k}, v{fGR}, {RW}, s53 offen offset:{256*k} sc1")
poll(us_loads, lambda: chk_empty4(40, 33), first_issued=True, first_wait=1)
g_loads()
if DL or GF: d_frags(wTA)
for k in range(4):
    A(f"v_lshlrev_b32 v{44+k}, 16, v{40+k}\nv_and_b32 v{40+k}, 0xffff0000, v{40+k}")
rowsum([44, 40])
A(f"v_mov_b32 v{fU}, v44\nv_mov_b32 v{fS}, v40")
def g_chk():
    A("v_add_f32 v24, v24, v26\nv_add_f32 v25, v25, v27")
    A("v_add_f32 v20, v20, v21\nv_add_f32 v22, v22, v23")
    A(f"v_add_f32_dpp v24, v24, v24 quad_perm:[1,0,3,2] {DPPM}\nv_add_f32_dpp v25, v25, v25 quad_perm:[1,0,3,2] {DPPM}")
    A("v_add_f32 v20, v20, v22")
    A(f"v_add_f32_dpp v24, v24, v24 quad_perm:[2,3,0,1] {DPPM}\nv_add_f32_dpp v25, v25, v25 quad_perm:[2,3,0,1] {DPPM}")
    A("v_add_f32 v26, v24, v25")
    A("v_cmp_u_f32 vcc, v20, v26")
poll(g_loads, g_chk, first_issued=True)
STAMP(13)
A(f"v_add_f32_dpp v24, v24, v24 row_half_mirror {DPPM}\nv_add_f32_dpp v25, v25, v25 row_half_mirror {DPPM}")
A("v_mov_b32 v26, s43")
A("v_mul_f32 v24, s41, v24")
A("v_fmac_f32 v26, s41, v25")
A("v_fma_f32 v26, -v24, v24, v26")
A(f"v_fma_f32 v20, -v24, v{fU}, v20")
A("v_rsq_f32 v26, v26")
A(f"v_fma_f32 v20, v20, v26, v{fS}")
A("v_max_f32 v21, 0, v20")
A(f"v_mul_f32_dpp v22, v20, v21 row_shl:4 {DPPM}")
pack4(22, 24, 25, 23)
if DL or GF: A("s_waitcnt lgkmcnt(0)")
for tau in range(4):
    d = 32 + 4*tau
    A(f"v_mfma_f32_16x16x16_bf16 v[{d}:{d+3}], v[{fDF+2*tau}:{fDF+2*tau+1}], v[24:25], 0")
setexec(0x01010101, 0x01010101)
for tau in range(4):
    d = 32 + 4*tau
    A(f"buffer_store_dwordx4 v[{d}:{d+3}], v{fY6A}, {RW}, s{96+tau} offen sc1")
STAMP(8)
A("s_waitcnt vmcnt(0)")
g_store("sc1")
if OPT["uslocal"]: A(f"buffer_store_dword v126, v{fGA}, {RW}, s62 offen sc1")
A("s_branch L_exit")

A.seg(1)
A.label("L_W")
AS = OPT["asplit"]
IS_NA = "s_cmp_lg_u32 s6, 0" if AS else "s_cmp_ge_u32 s4, 4"
IS_A = "s_cmp_eq_u32 s6, 0" if AS else "s_cmp_lt_u32 s4, 4"
sDB = "s4" if AS else "s58"
if OPT["swp"] >= 0:
    X1 = 2*OPT["swp"] + 1
    A(f"s_cmp_eq_u32 s58, {X1}\ns_cselect_b32 s100, 14, s58\ns_cmp_eq_u32 s58, 14\ns_cselect_b32 s101, {X1}, s100\ns_lshr_b32 s100, s101, 1")
    IS_NA = "s_bitcmp1_b32 s101, 0"; IS_A = "s_bitcmp0_b32 s101, 0"; sDB = "s100"
def w_common(first=True):
    kload(RB, 32); kload(RF, 88)
    if first:
        A(f"s_load_dword {sTAG}, s[16:17], 0")
        ids2()
    A(f"v_lshl_or_b32 v{wO}, v{T0}, 10, v{T1}")
    srd(RB, 4194304); A("s_movk_i32 s26, 2048")
def wq_setup(sh):
    A(f"v_lshl_or_b32 v{wQ}, v{T0}, 13, v{T1}")
    A("s_mov_b32 s10, 4194304")
    A(f"s_lshl_b32 s48, s3, {12-sh}")
    SX("s43", 0, ("s6", 8), ("s48", 7, 0, 0))
    SX("s44", 0, ("s43", 13), ("s4", 10), ("s46", 0))
def wq_dma():
    A(f"s_add_u32 m0, s48, {WQL}")
    for u in range(4):
        if u: A(f"s_add_u32 s44, s44, {8*8192-1024}")
        A(f"buffer_load_dwordx4 v{wQ}, {RA}, s44 offen offset:{u*1024} {NT} lds")
def c_setup():
    VX(T2, T3, 0, (5, 1, 10), (0, 5, 2))
if "noW" in OPT["abl"]:
    ids2(); A("s_waitcnt lgkmcnt(0)\ns_branch L_exit")
if "noA" in OPT["abl"]: A("s_branch L_nA")
A(f"{IS_NA}\ns_cbranch_scc1 L_nA")
A(f"s_lshl_b32 s49, {sDB}, 7")
A("s_cmp_lt_u32 s3, 256\ns_cbranch_scc1 L_A1")
A("s_sub_u32 s40, s3, 256")
SX("s61", 0, ("s7", 6), ("s40", 2, 0, 0))
A(f"s_mul_i32 s61, s61, 6144\ns_add_u32 s61, s61, s49\ns_add_u32 s62, s61, {8*6144-1024}")
A(f"s_lshl_b32 s40, s40, 5\ns_add_u32 m0, s40, {PA}")
if OPT["diag"] == 2: STAMP(1)
A("s_waitcnt lgkmcnt(0)")
if OPT["diag"] not in (2, 3, 4): STAMP(1)
A(f"buffer_load_dwordx4 v{wM}, {RC}, s61 offen {NT} lds")
A(f"buffer_load_dwordx4 v{wM}, {RC}, s62 offen offset:1024 {NT} lds")
A(f"s_add_u32 m0, s40, {PA+8192-1024}")
A(f"buffer_load_dwordx4 v{wM}, {RC}, s61 offen offset:1024 {NT} lds")
A(f"buffer_load_dwordx4 v{wM}, {RC}, s62 offen offset:2048 {NT} lds")
TK = OPT["tok"]
AH = OPT["ahold"]
def clears():
    A("v_mov_b32 v32, -1\nv_mov_b32 v33, -1\nv_mov_b32 v34, -1\nv_mov_b32 v35, -1")
    SX("s54", CLR, ("s49", 9), ("s7", 13), ("s60", 0))
    A("v_lshlrev_b32 v38, 4, v0")
    A(f"buffer_store_dwordx4 v[32:35], v38, {RW}, s54 offen sc1")
    A(f"buffer_store_dwordx4 v[32:35], v38, {RW}, s54 offen offset:1024 sc1")
A("s_mov_b32 s60, s40")
if not TK:
    srd(RW, WS_BYTES); clears()
if AH < 8:
    wq_setup(6)
    A("s_barrier")
    wq_dma()
if OPT["diag"] == 3: STAMP(1)
cont(5)
if OPT["diag"] == 4: STAMP(1)
w_common()
if AH == 8: wq_setup(0)
NB = (4 if AH < 8 else 0)
A(f"s_waitcnt vmcnt({NB})")
if OPT["abl"]: STAMP(9)
if STAMPS == 3: STAMP(12)
A("s_barrier")
if AH == 8:
    A("s_barrier")
    wq_dma()
if TK: clears()
tr_setup()
A("s_waitcnt lgkmcnt(0)")
A(f"s_add_u32 {sTAG}, {sTAG}, {TAGC:#x}")
A("s_branch L_B")
A.seg(1.5 if OPT["wfirst"] else 3)
A.label("L_A1")
c_setup()
VX(36, T3, 0, (4, 1, 10), (5, 1, 8), (0, 4, 4))
A("s_movk_i32 s26, 2048")
A("s_waitcnt lgkmcnt(0)")
STAMP(1)
A(f"buffer_load_dword v{wC}, v{T2}, {RE}, s46 offen {SNT}")
A(f"buffer_load_dwordx4 v[{wX}:{wX+3}], v36, {RD}, 0 offen {SNT}")
A(f"buffer_load_dwordx4 v[{wX+4}:{wX+7}], v36, {RD}, 0 offen offset:512 {SNT}")
VX(37, T3, 0, (4, 1, 10), (0, 4, 1))
A(f"s_lshr_b32 s50, s3, 1\ns_add_u32 s50, s50, s49\nv_mov_b32 v{wXS}, 0")
A(f"buffer_load_short_d16_hi v{wXS}, v37, {RD}, s50 offen {SNT}")
if OPT["wfirst"] == 3: cont(4)
if AH < 8: A("s_barrier")
A(f"s_load_dword {sTAG}, s[16:17], 0")
ids2()
tr_setup()
VX(39, 32, 0, (4, 1, 6), (2, 2, 4))
SX("s53", H1G, (sDB, 12), ("s3", 10), ("s46", 0))
A("s_cmp_eq_u32 s7, 0\ns_cselect_b32 s54, 1.0, 0")
unit_pre("0", "s54", PA)
silu_operand(3)
if OPT["abl"]: STAMP(6)
if STAMPS == 3: STAMP(11)
A(f"s_waitcnt vmcnt(0)")
A("v_mov_b32 v36, 0\nv_mov_b32 v37, 0\nv_mov_b32 v38, 0x3f803f80")
for i in range(8):
    A(f"v_dot2c_f32_bf16 v36, v{wX+i}, v38\nv_dot2c_f32_bf16 v37, v{wX+i}, v{wX+i}")
for m in ("quad_perm:[1,0,3,2]", "quad_perm:[2,3,0,1]", "row_half_mirror", "row_mirror"):
    A(f"v_add_f32_dpp v36, v36, v36 {m} {DPPM}\nv_add_f32_dpp v37, v37, v37 {m} {DPPM}")
A("v_mov_b32 v38, v36\nv_mov_b32 v35, v37")
A("v_permlane32_swap_b32 v36, v38\nv_permlane32_swap_b32 v37, v35")
A("v_add_f32 v36, v36, v38\nv_add_f32 v37, v37, v35")
A(f"v_mul_f32 v36, {f32(1.0/512)}, v36\nv_mov_b32 v38, {f32(1e-5)}\nv_fmac_f32 v38, {f32(1.0/512)}, v37")
A("v_fma_f32 v38, -v36, v36, v38\nv_rsq_f32 v38, v38")
A(f"v_sub_f32 v{wXS}, v{wXS}, v36\nv_mul_f32 v{wXS}, v{wXS}, v38")
A(f"s_add_u32 {sTAG}, {sTAG}, {TAGC:#x}")
A(f"v_mov_b32 v{wD+9}, {sTAG}\nv_mov_b32 v{wD+11}, {sTAG}")
if OPT["abl"]: STAMP(7)
if STAMPS == 3: STAMP(12)
A("s_waitcnt lgkmcnt(0)\ns_barrier")
if OPT["abl"]: STAMP(10)
unit_go()
A(f"v_fma_f32 v32, v{wXS}, v{wD+4}, v{wD}")
pack4(32, wD+8, wD+10, 33)
setexec(0x11111111, 0)
A(f"buffer_store_dwordx4 v[{wD+8}:{wD+11}], v39, {RW}, s53 offen sc1")
fullexec()
STAMP(14)
if OPT["diag"] == 1:
    A("s_waitcnt vmcnt(0)"); STAMP(13)
if AH == 8: A("s_barrier")
wq_setup(0)
wq_dma()
w_common(False)
A("s_branch L_B")
A.seg(2)
A.label("L_nA")
wq_setup(6)
R3 = OPT["r3"]
SX("s51", 0, ("s7", 6), ("s3", 3, 0, 0))
if R3 & 1: SX("s52", 384, ("s51", 13), ("s4", 10))
A("s_mul_i32 s51, s51, 6144")
A("s_waitcnt lgkmcnt(0)")
STAMP(1)
if R3 & 2:
    sk = L("n3a")
    A(f"s_cmp_lg_u32 s4, 3\ns_cbranch_scc1 {sk}")
    A(f"buffer_load_dword v{vPF}, v{wM}, {RC}, s51 offen offset:{1024+384}")
    A.label(sk)
if R3 & 1: A(f"buffer_load_dword v{vPF}, v{wQ}, {RA}, s52 offen")
if OPT["wqpf"] == 22:
    sk = L("nh0")
    A(f"s_cmp_lt_u32 s3, 256\ns_cbranch_scc1 {sk}")
wq_dma()
if OPT["wqpf"] == 22: A.label(sk)
MBW = OPT["wmode"] in (1, 2)
MB2 = OPT["wmode"] == 2
MBN = OPT["wmode"] == 0
if OPT["ptouch"] and AS:
    SX("s40", 0, ("s3", 11), ("s4", 10), ("s46", 0))
    A(f"v_lshlrev_b32 v32, 13, v2")
    if OPT["ptouch"] == 1: A("s_barrier")
    A(f"buffer_load_dword v{vPF}, v32, {RA}, s40 offen")
if MBW:
    c_setup()
    A(f"buffer_load_dword v{wC}, v{T2}, {RE}, s46 offen {SNT}")
if MBN:
    A("s_lshl_b32 s42, s3, 4")
    SX("s40", 2048, (sDB, 0, 3, 8)); A("s_add_u32 s51, s51, s40")
    c_setup()
    A(f"buffer_load_dword v{wC}, v{T2}, {RE}, s46 offen {SNT}")
    if OPT["mbwait"] >= 0: A(f"s_waitcnt vmcnt({OPT['mbwait']})")
    else: A("s_barrier")
    for j, o in enumerate((0, 128, 2048, 2048+128)):
        A(f"s_add_u32 m0, s42, {PB + j*8192 - o}")
        A(f"buffer_load_dwordx4 v{wM}, {RC}, s51 offen offset:{o} {NT} lds")
cont(6)
w_common()
tr_setup()
A("s_waitcnt lgkmcnt(0)")
A(f"s_add_u32 {sTAG}, {sTAG}, {TAGC:#x}")
A.label("L_B")
def mw_dma():
    SX("s40", PB, ("s3", 10)); A("s_mov_b32 m0, s40")
    A(f"buffer_load_dwordx4 v{wM}, {RC}, s96 offen {NT} lds")
    A(f"s_add_u32 m0, s40, {8192-128}")
    A(f"buffer_load_dwordx4 v{wM}, {RC}, s96 offen offset:128 {NT} lds")
def mw_compute(vm):
    A(f"ds_read2_b64 v[{wXO}:{wXO+3}], v83 offset0:0 offset1:4\nds_read2_b64 v[{wXO+4}:{wXO+7}], v83 offset0:8 offset1:12")
    unit_pre("s98", "s98", PB)
    A(f"v_mov_b32 v{wD+9}, {sTAG}\nv_mov_b32 v{wD+11}, {sTAG}")
    A(f"s_waitcnt vmcnt({vm}) lgkmcnt(0)\ns_barrier")
    sk = L("nmw")
    A(f"s_cmp_ge_u32 s3, 4\ns_cbranch_scc1 {sk}" if vm == 2 else f"s_cmp_lt_u32 s3, 4\ns_cbranch_scc1 {sk}")
    unit_go()
    A("v_cmp_gt_u32 vcc, 32, v0")
    A(f"v_cndmask_b32 v36, v{wD+4}, v{wD}, vcc")
    pack4(36, wD+8, wD+10, 37)
    setexec(0x11111111, 0x11111111)
    A(f"buffer_store_dwordx4 v[{wD+8}:{wD+11}], v122, {RW}, s97 offen sc1")
    fullexec()
    STAMP(6)
    A.label(sk)
if MBW:
    if MB2: SX("s99", 0, ("s4", 0), ("s4", 2, 0, 2), ("s6", 2))
    else: A("s_mov_b32 s99, s58")
    SX("s96", 0, ("s7", 6), ("s3", 3))
    A("s_mul_i32 s96, s96, 6144")
    SX("s40", 2048, ("s99", 8)); A("s_add_u32 s96, s96, s40")
    if MB2:
        sk = L("nm2")
        A(f"{IS_NA}\ns_cbranch_scc1 {sk}")
        mw_dma()
        A.label(sk)
    SX("s97", MGT, ("s99", 13), ("s3", 0, 2, 10), ("s46", 0))
    SX("s40", 0, ("s99", 2, 0, 3), ("s7", 0))
    A("s_cmp_eq_u32 s40, 16\ns_cselect_b32 s98, 1.0, 0")
    VX(122, 32, 0, (5, 1, 12), (4, 1, 6), (2, 2, 4))
srd(RF, 2048)
SX("s47", 0, ("s4", 19), ("s43", 10), ("s46", 0))
wRW, wRR, wOF, wTA = 14, 15, 72, 108
SX("s40", RED, ("s3", 9)); VX(wRW, 32, "s40", (0, 6, 2))
SX("s40", RED, ("s3", 8)); VX(wRR, 32, "s40", (0, 6, 2))
VX(wOF, 32, 0, (0, 3, 7), (3, 1, 6), (4, 2, 4))
SX("s53", H1G, ("s43", 6))
if TK:
    VX(T3, 32, 0, (0, 6, 7)); A(f"s_movk_i32 s57, {TOK}")
else:
    VX(T3, 32, 0, (0, 2, 12))
    A("s_xor_b32 s57, s6, 1")
    SX("s57", H1G + 4, ("s57", 14), ("s3", 7))
wQA = 73; wQD = 76
VX(wQA, 32, 0, (5, 1, 12), (0, 5, 2))
SX("s56", QG, ("s4", 13), ("s5", 8), ("s3", 7))
A(f"v_add_u32 v{wTA}, s48, v{wTR}")
for t in range(1, 4):
    A(f"v_xor_b32 v{wTA+t}, {t*32:#x}, v{wTA}")
A(f"v_mov_b32 v{wQD+1}, {sTAG}\nv_mov_b32 v{wQD+3}, {sTAG}")
wGA, wCB, wXA, wXAD = 74, 75, 80, 81
tE, tOUT, tBP, tOF, tL16 = 84, 114, 115, 72, 116
SX("s59", Y6, ("s5", 15), ("s4", 12))
A("s_cmp_eq_u32 s3, 7\ns_cselect_b32 s40, 0, -1")
A("v_mov_b32 v118, s40\nv_mov_b32 v119, s40\nv_lshlrev_b32 v117, 3, v0")
SX("s41", 0, ("s3", 9), ("s59", 0))
VX(T1, 32, 0, (0, 4, 6), (4, 2, 4))
SX("s51", OG, ("s4", 14), ("s43", 5))
SX("s54", SG, ("s4", 9), ("s43", 7, 0, 7))
A(f"v_lshlrev_b32 v{T0}, 2, v1\nv_xor_b32 v{T0}, v0, v{T0}\nv_and_b32 v{T0}, 7, v{T0}\nv_lshlrev_b32 v{T0}, 3, v{T0}")
A(f"v_lshrrev_b32 v32, 5, v0\nv_lshl_or_b32 v{T0}, v32, 6, v{T0}")
VX(wXAD, 32, 0, (5, 1, 6), (2, 2, 4), (4, 1, 3))
SX("s60", X4, ("s7", 11), ("s3", 10), ("s6", 14), ("s4", 7))
A(f"s_add_u32 s52, s60, {Y4-X4}")
A("v_and_b32 v32, 1, v0\nv_lshlrev_b32 v32, 4, v32\nv_mov_b32 v33, 0x3f80\nv_lshlrev_b32 v32, v32, v33")
A("v_lshrrev_b32 v33, 2, v2\nv_sub_u32 v33, v1, v33\nv_bfe_u32 v34, v0, 1, 1\nv_lshl_or_b32 v33, v33, 1, v34")
for r in range(2):
    A(f"v_cmp_eq_u32 vcc, {r}, v33")
    A(f"v_cndmask_b32 v{tE+r}, 0, v32, vcc")
    A(f"v_mov_b32 v{tE+6+r}, v{tE+r}")
for r in (2, 3, 4, 5):
    A(f"v_mov_b32 v{tE+r}, 0")
VX(38, 33, 0, (0, 1, 3), (5, 1, 1), (4, 1, 2))
SX("s40", 0, ("s4", 0, 2, 4)); A(f"v_add_u32 v{tOUT}, s40, v38")
SX("s40", 0, ("s4", 2, 0, 7)); A(f"v_lshl_add_u32 v{tBP}, v{tOUT}, 1, s40")
SX("s62", 0, ("s4", 2, 0, 10), ("s5", 6))
A(f"v_lshlrev_b32 v{tL16}, 4, v0")
SX("s49", X4, ("s5", 10))
A("s_add_u32 s50, s49, 16384")
SX("s55", ST5, ("s4", 8), ("s7", 5), ("s6", 3))
VX(113, 33, 0, (5, 1, 4), (4, 1, 2))
SX("s61", MGT, ("s7", 12), ("s3", 11))
SX("s40", MGT + 3*32768, ("s5", 11))
A("s_cmp_eq_u32 s3, 2\ns_cselect_b32 s61, s40, s61\ns_cselect_b32 s40, 0, 0x10000\ns_add_u32 s63, s61, s40")
VX(120, 33, 0, (5, 1, 10), (0, 5, 1))
SX("s42", 0, ("s7", 7), ("s3", 6))
A(f"v_mov_b32 v{wXA}, 0")
def blk_frags(off):
    for t in range(4):
        for h in range(2):
            r = wWF + 4*t + 2*h
            A(f"ds_read_b64_tr_b16 v[{r}:{r+1}], v{wTA+t} offset:{off + h*2048}")
def h1_loads():
    tagged_loads(16, wOF, "s53")
    if not TK: A(f"buffer_load_dword v33, v{T3}, {RW}, s57 offen sc1")
NH = 2 if TK else 3
if MBN:
    VX(39, 32, 0, (5, 1, 12), (4, 1, 6), (2, 2, 4))
    sk = L("nmb")
    A(f"{IS_A}\ns_cbranch_scc1 {sk}")
    SX("s96", MGT, (sDB, 0, 3, 13), ("s3", 2, 0, 16), ("s3", 0, 2, 10), ("s46", 0))
    SX("s40", 0, (sDB, 2, 1, 3), ("s3", 2, 0, 4), ("s7", 0))
    A("s_cmp_eq_u32 s40, 16\ns_cselect_b32 s97, 1.0, 0")
    SX("s98", PB, ("s3", 2, 0, 14))
    silu_operand(4)
    A.label(sk)
def mb_blk(early):
    sk = L("nmc")
    A(f"{IS_A}\ns_cbranch_scc1 {sk}")
    VX(39, 32, 0, (5, 1, 12), (4, 1, 6), (2, 2, 4))
    unit_pre("s97", "s97", "s98")
    A(f"v_mov_b32 v{wD+9}, {sTAG}\nv_mov_b32 v{wD+11}, {sTAG}")
    if early: A(f"s_waitcnt vmcnt({NH}) lgkmcnt(0)\ns_barrier")
    unit_go()
    A("v_cmp_gt_u32 vcc, 32, v0")
    A(f"v_cndmask_b32 v32, v{wD+4}, v{wD}, vcc")
    pack4(32, wD+8, wD+10, 34)
    setexec(0x11111111, 0x11111111)
    A(f"buffer_store_dwordx4 v[{wD+8}:{wD+11}], v39, {RW}, s96 offen sc1")
    fullexec()
    STAMP(6)
    A.label(sk)
if TK:
    sk = L("ntk")
    A(f"{IS_NA}\ns_cbranch_scc1 {sk}\ns_cmp_lt_u32 s3, 4\ns_cbranch_scc1 {sk}")
    A("s_waitcnt vmcnt(0)")
    SX("s40", TOK - 16, (sDB, 10), ("s46", 0), ("s3", 2))
    A(f"s_mov_b64 exec, 1\nbuffer_store_dword v{wQD+1}, v0, {RW}, s40 offen sc1")
    fullexec()
    A.label(sk)
A(f"s_waitcnt vmcnt({OPT['h1at']})")
h1_loads()
if MBN and OPT["mbearly"]: mb_blk(True)
if MB2:
    sk = L("nm3")
    A(f"{IS_NA}\ns_cbranch_scc1 {sk}")
    mw_compute(2)
    A.label(sk)
A(f"s_waitcnt vmcnt({NH})")
if MBW:
    sk = L("nsl")
    A(f"{IS_A}\ns_cbranch_scc1 {sk}")
    silu_operand(NH)
    A.label(sk)
blk_frags(WQL)
STAMP(3)
if OPT["abl"] and "toq" not in OPT["abl"]: A("s_branch L_exit")
sk = L("nw0"); sk2 = L("nw1")
A(f"{IS_NA}\ns_cbranch_scc1 {sk if MBN and OPT['mbearly'] else sk2}")
if MB2: A(f"s_branch {sk}")
A.label(sk2)
A("s_waitcnt vmcnt(0)")
A.label(sk)
poll(h1_loads, lambda: tagged_chk([16], 33, None if TK else 33), first_issued=True, first_wait=1, sleep=OPT["s2"])
STAMP(4)
if OPT["diag"] == 1:
    A(f"s_waitcnt lgkmcnt(0)\ns_mul_i32 s40, {sCNT}, 10\ns_add_u32 s88, s64, s40")
tagged_pack(16)
A("s_waitcnt lgkmcnt(0)")
def blk_mfma(op):
    for t in range(4):
        mfma(wD + 4*t, op, wWF + 4*t, None)
def blk_reduce():
    A(f"v_permlane16_swap_b32 v{wD}, v{wD+4}\nv_permlane16_swap_b32 v{wD+8}, v{wD+12}")
    A(f"v_add_f32 v{wD}, v{wD}, v{wD+4}\nv_add_f32 v{wD+8}, v{wD+8}, v{wD+12}")
    A(f"ds_write2st64_b32 v{wRW}, v{wD}, v{wD+8} offset0:0 offset1:1")
    A("s_waitcnt lgkmcnt(0)\ns_barrier")
def blk_final():
    for i in range(4):
        A(f"ds_read2st64_b32 v[{32+2*i}:{33+2*i}], v{wRR} offset0:{4*i} offset1:{4*i+2}")
    A("s_waitcnt lgkmcnt(0)")
    A("v_add_f32 v32, v32, v33\nv_add_f32 v34, v34, v35\nv_add_f32 v36, v36, v37\nv_add_f32 v38, v38, v39")
    A("v_add_f32 v32, v32, v34\nv_add_f32 v36, v36, v38\nv_add_f32 v32, v32, v36")
blk_mfma(16)
rowsum([wD, wD+4, wD+8, wD+12])
blk_reduce()
sk = L("nq")
A(f"s_cmp_ge_u32 s3, 2\ns_cbranch_scc1 {sk}")
blk_final()
pack4(32, wQD, wQD+2, 33)
setexec(0x11111111, 0x11111111)
A(f"buffer_store_dwordx4 v[{wQD}:{wQD+3}], v{wQA}, {RW}, s56 offen")
fullexec()
A.label(sk)
STAMP(5)
if OPT["abl"]: A("s_branch L_exit")
if MBN and not OPT["mbearly"]: mb_blk(False)
if TK:
    sk = L("ntc")
    A(f"s_cmp_lg_u32 s3, 3\ns_cbranch_scc1 {sk}")
    A(f"buffer_load_dwordx4 v[32:35], v{T3}, {RW}, s57 offen sc1")
    A.label(sk)
A("s_barrier")
def o_loads():
    A(f"buffer_load_dwordx4 v[104:107], v{T1}, {RW}, s51 offen sc1")
def mc_loads():
    tagged_loads(128, wOF, "s61"); tagged_loads(136, wOF, "s63")
def wo_dma():
    if R3 & 4:
        SX("s40", 384, ("s4", 19), ("s5", 15), ("s3", 12))
        A(f"v_lshlrev_b32 v39, 10, v1\nbuffer_load_dword v{vPF}, v39, {RB}, s40 offen")
    A(f"s_add_u32 m0, s48, {WOL}")
    for u in range(4):
        if u: A(f"s_add_u32 s47, s47, {8*1024-1024}")
        A(f"buffer_load_dwordx4 v{wO}, {RB}, s47 offen offset:{u*1024} {NT} lds")
if MBW:
    sk = L("nm4")
    if MB2: A(f"{IS_A}\ns_cbranch_scc1 {sk}")
    mw_dma()
    A.label(sk)
NCW = 2 if MB2 else 3
sk = L("nc0")
A(f"s_cmp_ge_u32 s3, {NCW}\ns_cbranch_scc1 {sk}")
MCE = MB2 or (not MBW and (not MBN or OPT['mbearly']))
if MCE: mc_loads()
A(f"s_cmp_lg_u32 s58, 0\ns_cbranch_scc1 {sk}")
A(f"buffer_load_short_d16_hi v{wXA}, v120, {RD}, s42 offen")
A.label(sk)
A(f"buffer_store_dwordx2 v[118:119], v117, {RW}, s41 offen sc1")
if not TK: o_loads()
WOE = MBW and OPT["wo_mb"]
if MBW:
    if WOE:
        A("s_barrier"); wo_dma()
    sk5 = L("nm5")
    if MB2: A(f"{IS_A}\ns_cbranch_scc1 {sk5}")
    mw_compute(5 if WOE else 1)
    A.label(sk5)
if OPT["gtrg"]:
    A("s_cmp_lg_u32 s3, 3\ns_cbranch_scc1 L_trgd")
    if OPT["gmask"] == 7:
        VX(39, 32, 0, (0, 3, 7)); A(f"s_movk_i32 s40, {TRG}")
    else:
        VX(39, 32, 0, (0, 2, 7)); A(f"s_movk_i32 s40, {TRG + 512}")
    A(f"s_mov_b32 {sCNT}, 0")
    A.label("L_trg")
    A(f"buffer_load_dword v33, v39, {RW}, s40 offen sc1")
    A("s_waitcnt vmcnt(0)")
    A(f"v_cmp_ne_u32 vcc, {sTAG}, v33")
    A("s_cbranch_vccz L_trgd")
    A(f"s_sleep 2\ns_add_u32 {sCNT}, {sCNT}, 1\ns_cmp_lt_u32 {sCNT}, {OPT['trgmax']}\ns_cbranch_scc1 L_trg")
    A.label("L_trgd")
    A("s_barrier")
if not WOE: wo_dma()
if TK:
    sk = L("ntd")
    A(f"s_cmp_lg_u32 s3, 3\ns_cbranch_scc1 {sk}")
    tok_wait(T3, "s57", 32, 5 + (1 if R3 & 4 else 0))
    if OPT["tokf"]:
        SX("s40", TRG, ("s4", 7), ("s5", 2))
        A(f"s_mov_b64 exec, 1\nbuffer_store_dword v{wQD+1}, v0, {RW}, s40 offen")
        fullexec()
    A.label(sk)
    A("s_barrier")
    o_loads()
sk = L("nc1")
A(f"s_cmp_ge_u32 s3, {NCW}\ns_cbranch_scc1 {sk}")
if not MCE: A("s_waitcnt vmcnt(2)")
poll(mc_loads, lambda: tagged_chk([128, 136], 33), first_issued=MCE, first_wait=4+TK, sleep=2)
tagged_pack(128); tagged_pack(136)
for i in range(2):
    for t in range(2):
        mfma(wD + 8*i + 4*t, 128 + 8*i, tE + 4*t, None)
rowsum([wD, wD+4, wD+8, wD+12])
A(f"v_permlane16_swap_b32 v{wD}, v{wD+4}\nv_permlane16_swap_b32 v{wD+8}, v{wD+12}")
A(f"v_add_f32 v{wGA}, v{wD}, v{wD+4}\nv_add_f32 v{wCB}, v{wD+8}, v{wD+12}")
STAMP(2)
A.label(sk)
A(f"s_waitcnt vmcnt({TK})")
blk_frags(WOL)
STAMP(7)
wF = 100
sg_load = lambda: A(f"buffer_load_dwordx2 v[16:17], v{T0}, {RW}, s54 offen sc1")
await_any(sg_load, lambda: A("v_cmp_o_f32 vcc, v17, v17"), OPT["s1"])
poll(sg_load, lambda: A("v_cmp_u_f32 vcc, v17, v17"), first_issued=True, sleep=2*OPT["s2"])
o_loads()
A(f"v_max_f32_dpp v18, v16, v16 quad_perm:[1,0,3,2] {DPPM}")
A(f"v_max_f32_dpp v18, v18, v18 quad_perm:[2,3,0,1] {DPPM}")
A(f"v_max_f32_dpp v18, v18, v18 row_half_mirror {DPPM}")
A("v_sub_f32 v16, v16, v18\nv_exp_f32 v16, v16\nv_mul_f32 v17, v16, v17")
for m in ("quad_perm:[1,0,3,2]", "quad_perm:[2,3,0,1]", "row_half_mirror"):
    A(f"v_add_f32_dpp v17, v17, v17 {m} {DPPM}")
A(f"v_rcp_f32 v17, v17\nv_mul_f32 v{wF}, v16, v17")
STAMP(8)
poll(o_loads, lambda: chk_empty4(104, 33), first_issued=True, first_wait=0)
STAMP(9)
A("s_waitcnt lgkmcnt(0)")
blk_mfma(104)
for t in range(4):
    A(f"v_mul_f32_dpp v{wD+4*t}, v{wF}, v{wD+4*t} row_newbcast:0 {DPPM}")
for r in range(1, 4):
    for t in range(4):
        A(f"v_fmac_f32_dpp v{wD+4*t}, v{wF}, v{wD+4*t+r} row_newbcast:{r} {DPPM}")
blk_reduce()
A("s_cmp_gt_u32 s3, 2\ns_cbranch_scc1 L_exit")
A("s_cmp_eq_u32 s3, 2\ns_cbranch_scc1 L_fin")
blk_final()
A(f"v_fma_f32 v32, v32, v{wGA}, v{wXA}")
A(f"v_mul_f32 v36, v32, v{wCB}")
A(f"v_mov_b32_dpp v33, v32 quad_perm:[1,1,3,3] {DPPM}")
A(f"v_mov_b32_dpp v37, v36 quad_perm:[1,1,3,3] {DPPM}")
A("v_cvt_pk_bf16_f32 v34, v32, v33\nv_cvt_pk_bf16_f32 v38, v36, v37")
A(f"v_mov_b32_dpp v35, v34 quad_perm:[2,2,2,2] {DPPM}")
A(f"v_mov_b32_dpp v39, v38 quad_perm:[2,2,2,2] {DPPM}")
setexec(0x11111111, 0x11111111)
A(f"buffer_store_dwordx2 v[38:39], v{wXAD}, {RW}, s52 offen sc1")
A(f"buffer_store_dwordx2 v[34:35], v{wXAD}, {RW}, s60 offen sc1")
STAMP(10)
A("s_branch L_exit")
A.label("L_fin")
if MB2:
    poll(lambda: tagged_loads(128, wOF, "s61"), lambda: tagged_chk([128], 33), sleep=2)
    tagged_pack(128)
    for t in range(2):
        mfma(wD + 4*t, 128, tE + 4*t, None)
    rowsum([wD, wD+4])
    A(f"v_permlane16_swap_b32 v{wD}, v{wD+4}")
    A(f"v_add_f32 v{wGA}, v{wD}, v{wD+4}")
def x4_loads():
    A(f"buffer_load_dwordx4 v[16:19], v{tOF}, {RW}, s49 offen sc1")
    A(f"buffer_load_dwordx4 v[20:23], v{tOF}, {RW}, s50 offen sc1")
def x4_chk():
    A("v_max3_u32 v33, v16, v17, v18\nv_max3_u32 v34, v19, v20, v21\nv_max3_u32 v33, v33, v22, v23\nv_max_u32 v33, v33, v34\nv_cmp_eq_u32 vcc, -1, v33")
poll(x4_loads, x4_chk)
STAMP(11)
for hp in range(2):
    for t in range(2):
        mfma(wD + 4*t, 16 + 4*hp, tE + 4*t, None if hp == 0 else wD + 4*t)
rowsum([wD, wD+4])
A(f"v_permlane16_swap_b32 v{wD}, v{wD+4}")
A(f"v_add_f32 v42, v{wD}, v{wD+4}")
A("v_mov_b32 v43, v42\nv_mul_f32 v44, v42, v42")
A("v_permlane16_swap_b32 v43, v44")
A("v_add_f32 v43, v43, v44")
for m in ("quad_perm:[1,0,3,2]", "quad_perm:[2,3,0,1]", "row_half_mirror", "row_mirror"):
    A(f"v_add_f32_dpp v43, v43, v43 {m} {DPPM}")
setexec(0x00010001, 0x00010001)
A(f"buffer_store_dword v43, v113, {RW}, s55 offen")
fullexec()
STAMP(12)
A(f"ds_bpermute_b32 v42, v{tBP}, v42\nds_bpermute_b32 v{wGA}, v{tBP}, v{wGA}")
def y6_loads():
    for i in range(4):
        A(f"buffer_load_dwordx4 v[{16+4*i}:{19+4*i}], v{tL16}, {RW}, s59 offen offset:{1024*i} sc1")
def y6_chk():
    for r in range(4):
        A(f"v_add_f32 v{16+r}, v{16+r}, v{20+r}\nv_add_f32 v{24+r}, v{24+r}, v{28+r}")
    for r in range(4):
        A(f"v_add_f32 v{16+r}, v{16+r}, v{24+r}")
    A("v_permlane32_swap_b32 v16, v17\nv_permlane32_swap_b32 v18, v19")
    A("v_add_f32 v16, v16, v17\nv_add_f32 v18, v18, v19")
    A("v_permlane16_swap_b32 v16, v18")
    A("v_add_f32 v16, v16, v18")
    A("v_cmp_u_f32 vcc, v16, v16")
await_any(lambda: A(f"buffer_load_dword v16, v{tL16}, {RW}, s59 offen sc1"), lambda: A("v_cmp_o_f32 vcc, v16, v16"), 2)
poll(y6_loads, y6_chk)
STAMP(13)
for m in ("row_ror:8", "row_ror:4", "row_ror:2"):
    A(f"v_add_f32_dpp v16, v16, v16 {m} {DPPM}")
A("s_waitcnt lgkmcnt(0)")
A(f"v_fma_f32 v16, v16, v{wGA}, v42")
A("v_cvt_pk_bf16_f32 v16, v16, v16")
setexec(0x00030003, 0x00030003)
A(f"buffer_store_short v16, v{tOUT}, {RF}, s62 offen")
A("s_cmp_lg_u32 s2, 128\ns_cbranch_scc1 L_exit")
A(f"s_sub_u32 s40, {sTAG}, {TAGC-1:#x}")
A("v_mov_b32 v17, s40\nv_mov_b32 v18, 0")
A("s_mov_b64 exec, 1")
A(f"buffer_store_dword v17, v18, {RW}, 0 offen sc1")

A("s_branch L_exit")
A.seg(40)
A.label("L_exit")
if STAMPS == 1:
    STAMP(15)
    A("s_waitcnt lgkmcnt(0)")
    A("s_mov_b64 exec, 1")
    SX("s40", DBG, ("s2", 9), ("s3", 6))
    A("v_mov_b32 v0, 0")
    for q in range(4):
        for i in range(4):
            A(f"v_mov_b32 v{4+4*q+i}, s{64+2*(4*q+i)}")
        A(f"buffer_store_dwordx4 v[{4+4*q}:{7+4*q}], v0, {RW}, s40 offen offset:{16*q}")
if STAMPS == 5:
    STAMP(15)
    A("s_waitcnt lgkmcnt(0)")
    A("s_mov_b64 exec, 1")
    SX("s40", DBG, ("s2", 6), ("s3", 3))
    A(f"v_mov_b32 v0, 0\nv_mov_b32 v4, s64\nv_mov_b32 v5, s{64+2*OPT['db']}")
    A(f"buffer_store_dwordx2 v[4:5], v0, {RW}, s40 offen sc1")
    SX("s40", 0, ("s2", 3), ("s3", 0))
    A(f"s_cmp_lg_u32 s40, {129*8+2}\ns_cbranch_scc1 L_end")
    A.label("L_w3")
    A("s_memrealtime s[42:43]\ns_waitcnt lgkmcnt(0)\ns_sub_u32 s41, s42, s94\ns_cmp_lt_u32 s41, 300\ns_cbranch_scc1 L_w3")
    fullexec()
    A("v_mbcnt_lo_u32_b32 v1, -1, 0\nv_mbcnt_hi_u32_b32 v1, -1, v1\nv_lshlrev_b32 v1, 4, v1")
    A(f"s_mov_b32 s40, {DBG + OPT['drole']*8192}")
    for i in range(8):
        if i == 4: A("s_add_u32 s40, s40, 4096")
        A(f"buffer_load_dwordx4 v[{8+4*i}:{11+4*i}], v1, {RW}, s40 offen offset:{(i%4)*1024} sc1")
    A("s_waitcnt vmcnt(0)")
    for i in range(1, 16):
        A(f"v_min_u32 v8, v8, v{8+2*i}\nv_max_u32 v9, v9, v{9+2*i}")
    A("v_readlane_b32 s44, v8, 0\nv_readlane_b32 s45, v9, 0")
    for l in range(1, 64):
        A(f"v_readlane_b32 s46, v8, {l}\nv_readlane_b32 s47, v9, {l}\ns_nop 3\ns_min_u32 s44, s44, s46\ns_max_u32 s45, s45, s47")
    A(f"s_sub_u32 s40, s45, s44\ns_mul_i32 s40, s40, {OPT['dm']}\ns_add_u32 s40, s40, 600\ns_min_u32 s40, s40, 30000")
    A.label("L_spin")
    A("s_memrealtime s[42:43]\ns_waitcnt lgkmcnt(0)\ns_sub_u32 s41, s42, s94\ns_cmp_lt_u32 s41, s40\ns_cbranch_scc1 L_spin")
if STAMPS == 3:
    STAMP(15)
    A("s_waitcnt lgkmcnt(0)")
    SX("s40", 0, ("s2", 3), ("s3", 0))
    A(f"s_cmp_lg_u32 s40, {OPT['dwg']*8 + OPT['dwv']}\ns_cbranch_scc1 L_end")
    A(f"s_sub_u32 s40, s{64+2*OPT['db']}, s{64+2*OPT['da']}")
    A(f"s_mul_i32 s40, s40, {OPT['dm']}")
    A("s_min_u32 s40, s40, 30000")
    A.label("L_spin")
    A("s_memrealtime s[42:43]\ns_waitcnt lgkmcnt(0)\ns_sub_u32 s41, s42, s94\ns_cmp_lt_u32 s41, s40\ns_cbranch_scc1 L_spin")
if STAMPS == 2:
    STAMP(15)
    A("s_load_dwordx2 s[32:33], s[0:1], 96")
    A("s_mov_b32 s34, 256\ns_mov_b32 s35, 0x00020000")
    A("s_waitcnt lgkmcnt(0)")
    fullexec()
    A("v_mov_b32 v4, 0\nv_mbcnt_lo_u32_b32 v5, -1, 0\nv_lshlrev_b32 v5, 2, v5")
    A("s_cmp_ge_u32 s2, 128\ns_cbranch_scc1 L_dw")
    A("s_cmp_lg_u32 s3, 0\ns_cbranch_scc1 L_end")
    A("s_not_b32 s40, s64\nv_writelane_b32 v4, s40, 0")
    for i, st in enumerate([9, 2, 5, 7, 10, 11, 8]):
        A(f"v_writelane_b32 v4, s{64+2*st}, {i+1}")
    A("s_branch L_dd")
    A.label("L_dw")
    A("s_cmp_lg_u32 s3, 2\ns_cbranch_scc1 L_end")
    for i, st in enumerate([0, 3, 4, 5, 7, 9, 11, 15]):
        A(f"v_writelane_b32 v4, s{64+2*st}, {i+8}")
    A.label("L_dd")
    A("s_mov_b64 exec, 0xffff")
    A("buffer_atomic_umax v4, v5, s[32:35], 0 offen")
A.label("L_end")
A("s_endpgm")
A.label("L_codeend")
A.raw(f".fill (16384 - (L_codeend - {NAME}_kernel)) / 4, 4, 0xbf810000")
A.raw(f""".section .rodata,"a"
.p2align 6
.amdhsa_kernel {NAME}_kernel
  .amdhsa_next_free_vgpr 152
  .amdhsa_next_free_sgpr 102
  .amdhsa_accum_offset 152
  .amdhsa_group_segment_fixed_size 0
  .amdhsa_kernarg_size 112
  .amdhsa_user_sgpr_count 2
  .amdhsa_user_sgpr_kernarg_segment_ptr 1
  .amdhsa_system_sgpr_workgroup_id_x 1
  .amdhsa_float_denorm_mode_32 3
.end_amdhsa_kernel""")
sys.stdout.write(A.text())
sys.stderr.write(f"instrs={A.ninstr} nops={A.nops}\n")
```

```python
import sys, math, struct
sys.path.insert(0, "work")
from asmlib import Asm

NAME = "adaLN_cond__sliding_block_cached__glu_gated_reglu__decode"
OPT = dict(stamps=0, nt="nt", limit=20000, refresh=255, smallnt="", s1=6, s2=1, sent=1, rot=7, r3=7, h1at=1, nv1=3,
           drole=0, dwg=10, dwv=1, da=0, db=15, dm=20, nore=0, reps=3, dnearly=0, force=-1, tw=-1, tmax=12, tany=0, fw=0, fmax=10, fany=0, flate=0, usearly=0, y6s=0, x4s=0, ysent=1)
for a in sys.argv[1:]:
    k, v = a.split("=")
    OPT[k] = int(v) if v.lstrip("-").isdigit() else v
STAMPS = OPT["stamps"]; NT = OPT["nt"] if OPT["nt"] != "-" else ""
LIMIT = OPT["limit"]; REFRESH = OPT["refresh"]; SNT = OPT["smallnt"]

def f32(x): return "0x%08x" % struct.unpack("<I", struct.pack("<f", x))[0]

TRG = 0x1000; VOTE = 0x1800; PROBE = 0x64000; SG = 0x2000; TOK = 0x4000; H1G = 0x8000; QG = 0x10000; MGT = 0x20000; OG = 0x80000
X4 = 0x40000; Y4 = 0x50000; ST5 = 0x60000
G5 = 0x100000; US5 = G5 + 0x4000
Y6 = 0x180000; DBG = 0x400000
WS_BYTES = 0x800000
TAGC = 0x9E3779B9
VREG = 65536; PA = 131072; XL = 147456; QL = XL + 1024; PL = QL + 2048; MISC = PL + 2048
FG = 0; FD = 32768; YL0 = 131072
WQL = 0; WOL = 32768; PB = 65536; RED = XL + 1024
LDS_BYTES = MISC + 256
C1 = 128 ** -0.5 * math.log2(math.e)

A = Asm()
hdr = open(f"cdna_kernels/{NAME}.s.ref").read().split("\n")
for ln in hdr:
    if ln.startswith("; @launch"):
        A.raw(f"; @launch grid=(256,1,1) block=(512,1,1) lds={LDS_BYTES}")
        break
    A.raw(ln)
A.raw('.amdgcn_target "amdgcn-amd-amdhsa--gfx950"')
A.raw(f".text\n.globl {NAME}_kernel\n.p2align 8\n.type {NAME}_kernel,@function\n{NAME}_kernel:")

RA, RB, RW, RC, RD, RE, RF = "s[8:11]", "s[12:15]", "s[16:19]", "s[20:23]", "s[24:27]", "s[28:31]", "s[32:35]"
sTAG, sCNT, sT = "s36", "s37", "s45"
def STAMP(n):
    if STAMPS:
        A(f"s_memrealtime s[{64+2*n}:{65+2*n}]")
DPPM = "row_mask:0xf bank_mask:0xf"
lbl = [0]
def L(p):
    lbl[0] += 1
    return f"L_{p}_{lbl[0]}"
def srd(r, nbytes):
    b = int(r[2:r.index(":")])
    A((f"s_movk_i32 s{b+2}, {nbytes}" if nbytes < 32768 else f"s_mov_b32 s{b+2}, {nbytes}") + f"\ns_mov_b32 s{b+3}, s11")
def kload(r, off):
    b = int(r[2:r.index(":")])
    A(f"s_load_dwordx2 s[{b}:{b+1}], s[0:1], {off}")

def SX(dst, const, *terms):
    first = True
    for t in terms:
        src, rs, w, ls = (t[0], 0, 0, t[1]) if len(t) == 2 else t
        d = dst if first else sT
        cur = src
        if w:
            if rs == 0: A(f"s_and_b32 {d}, {cur}, {(1<<w)-1}")
            else: A(f"s_bfe_u32 {d}, {cur}, {(w<<16)|rs:#x}")
            cur = d
        elif rs:
            A(f"s_lshr_b32 {d}, {cur}, {rs}"); cur = d
        if first:
            if ls: A(f"s_lshl_b32 {d}, {cur}, {ls}")
            elif cur != d: A(f"s_mov_b32 {d}, {cur}")
        else:
            if 1 <= ls <= 4: A(f"s_lshl{ls}_add_u32 {dst}, {cur}, {dst}")
            else:
                if ls: A(f"s_lshl_b32 {sT}, {cur}, {ls}"); cur = sT
                A(f"s_add_u32 {dst}, {dst}, {cur}")
        first = False
    if const: A(f"s_add_u32 {dst}, {dst}, {const:#x}")
def VX(dst, tmp, add, *terms):
    first = True
    for rs, w, ls in terms:
        if rs == 4 and w == 2: cur = "v1"
        elif rs == 0 and w == 4: cur = "v2"
        elif rs == 0 and w == 6: cur = "v0"
        else:
            d = f"v{dst}" if first else f"v{tmp}"
            if rs + w == 6: A(f"v_lshrrev_b32 {d}, {rs}, v0")
            elif rs == 0: A(f"v_and_b32 {d}, {(1<<w)-1}, v0")
            else: A(f"v_bfe_u32 {d}, v0, {rs}, {w}")
            cur = d
        if first:
            if ls: A(f"v_lshlrev_b32 v{dst}, {ls}, {cur}")
            elif cur != f"v{dst}": A(f"v_mov_b32 v{dst}, {cur}")
        else:
            if ls: A(f"v_lshl_or_b32 v{dst}, {cur}, {ls}, v{dst}")
            else: A(f"v_or_b32 v{dst}, {cur}, v{dst}")
        first = False
    if add: A(f"v_add_u32 v{dst}, {add}, v{dst}")

def cont(n):
    t = L("c")
    A(f"s_branch {t}")
    A.seg(n); A.label(t)
def await_any(load, valid, sleep):
    if not OPT["sent"]: return
    top, done = L("aw"), L("awd")
    A(f"s_mov_b32 {sCNT}, 0")
    A.label(top)
    load()
    A("s_waitcnt vmcnt(0)")
    valid()
    A(f"s_cbranch_vccnz {done}")
    A(f"s_sleep {sleep}\ns_add_u32 {sCNT}, {sCNT}, 1\ns_cmp_lt_u32 {sCNT}, 64\ns_cbranch_scc1 {top}")
    A.label(done)
def poll(loads, check, first_issued=False, first_wait=0, sleep=0):
    again, top, chk, done = L("again"), L("poll"), L("chk"), L("got")
    A(f"s_mov_b32 {sCNT}, 0")
    if first_issued:
        if first_wait: A(f"s_waitcnt vmcnt({first_wait})")
        A(f"s_branch {chk if first_wait else top + 'w'}")
    else:
        A(f"s_branch {top}")
    A.label(again)
    if sleep: A(f"s_sleep {sleep}")
    A(f"s_add_u32 {sCNT}, {sCNT}, 1")
    A(f"s_and_b32 {sT}, {sCNT}, {REFRESH}\ns_cbranch_scc1 {top}")
    A("buffer_wbl2 sc1")
    A(f"s_cmp_ge_u32 {sCNT}, {LIMIT}\ns_cbranch_scc1 {done}")
    A.label(top)
    loads()
    A.label(top + "w")
    A("s_waitcnt vmcnt(0)")
    A.label(chk)
    check()
    A(f"s_cbranch_vccnz {again}")
    A.label(done)
def chk_empty4(r, tmp):
    A(f"v_max3_u32 v{tmp}, v{r}, v{r+1}, v{r+2}\nv_max_u32 v{tmp}, v{tmp}, v{r+3}\nv_cmp_eq_u32 vcc, -1, v{tmp}")
def pack4(src, pk, pk2, tmp):
    A(f"v_mov_b32_dpp v{tmp}, v{src} quad_perm:[1,1,3,3] {DPPM}")
    A(f"v_cvt_pk_bf16_f32 v{pk}, v{src}, v{tmp}")
    A(f"v_mov_b32_dpp v{pk2}, v{pk} quad_perm:[2,2,2,2] {DPPM}")
def setexec(lo, hi):
    A(f"s_mov_b32 exec_lo, {lo:#x}\ns_mov_b32 exec_hi, {hi:#x}")
def fullexec():
    A("s_mov_b64 exec, -1")
def mfma(d, a, b, c):
    cc = "0" if c is None else f"v[{c}:{c+3}]"
    A(f"v_mfma_f32_16x16x32_bf16 v[{d}:{d+3}], v[{a}:{a+3}], v[{b}:{b+3}], {cc}")
def rowsum(ds):
    for d in ds: A(f"v_add_f32 v{d}, v{d}, v{d+1}\nv_add_f32 v{d+2}, v{d+2}, v{d+3}")
    for d in ds: A(f"v_add_f32 v{d}, v{d}, v{d+2}")
wM, wQ, wO, wTR, T0, T1, T2, T3, vPF = 3, 4, 5, 6, 7, 8, 9, 10, 11
wC = 12; wXS = 13; wX = 16; wXO = 24; wWF = 40; wD = 56
def tr_setup():
    VX(wTR, 32, 0, (2, 4, 7), (3, 2, 5), (0, 2, 3))
    SX("s40", XL, ("s3", 0, 2, 8))
    VX(82, 32, "s40", (0, 6, 2))
    VX(83, 32, "s40", (2, 1, 7), (4, 2, 3))
def silu_operand(cnt):
    A(f"s_waitcnt vmcnt({cnt})")
    A(f"v_lshlrev_b32 v32, 16, v{wC}\nv_and_b32 v33, 0xffff0000, v{wC}")
    A(f"v_mul_f32 v34, {f32(-math.log2(math.e))}, v32\nv_mul_f32 v35, {f32(-math.log2(math.e))}, v33")
    A("v_exp_f32 v34, v34\nv_exp_f32 v35, v35")
    A("v_add_f32 v34, 1.0, v34\nv_add_f32 v35, 1.0, v35")
    A("v_rcp_f32 v34, v34\nv_rcp_f32 v35, v35")
    A("v_mul_f32 v32, v32, v34\nv_mul_f32 v33, v33, v35")
    A("v_cvt_pk_bf16_f32 v32, v32, v33")
    A("ds_write_b32 v82, v32")
    A(f"ds_read2_b64 v[{wXO}:{wXO+3}], v83 offset0:0 offset1:4\nds_read2_b64 v[{wXO+4}:{wXO+7}], v83 offset0:8 offset1:12")
def unit_pre(s_c0, s_c1, base):
    SX("s40", 0, ("s3", 0, 2, 5)); A(f"v_xor_b32 v112, s40, v{wTR}\nv_add_u32 v112, {base}, v112")
    for i in range(4):
        A(f"v_mov_b32 v{wD+i}, {s_c0}\nv_mov_b32 v{wD+4+i}, {s_c1}")
def unit_go():
    if STAMPS: A("s_waitcnt lgkmcnt(0)")
    for k in range(2):
        for seg in range(2):
            for h in range(2):
                r = wWF + seg*8 + k*4 + h*2
                A(f"ds_read_b64_tr_b16 v[{r}:{r+1}], v112 offset:{seg*8192 + k*4096 + h*2048}")
    for k in range(2):
        for seg in range(2):
            A(f"s_waitcnt lgkmcnt({6 - 4*k - 2*seg})")
            mfma(wD + 4*seg, wXO + 4*k, wWF + seg*8 + k*4, wD + 4*seg)
def tagged_loads(r, va, so):
    A(f"buffer_load_dwordx4 v[{r}:{r+3}], v{va}, {RW}, {so} offen sc1")
    A(f"buffer_load_dwordx4 v[{r+4}:{r+7}], v{va}, {RW}, {so} offen offset:1024 sc1")
def tags_chk(tags, tmp):
    if len(tags) == 1:
        A(f"v_cmp_ne_u32 vcc, {sTAG}, v{tags[0]}"); return
    A(f"v_xor_b32 v{tmp}, {sTAG}, v{tags[0]}")
    for t in tags[1:]:
        A(f"v_bitop3_b32 v{tmp}, v{t}, {sTAG}, v{tmp} bitop3:0xbe")
    A(f"v_cmp_ne_u32 vcc, 0, v{tmp}")
def tagged_chk(rs, tmp):
    tags_chk([r + i for r in rs for i in (1, 3, 5, 7)], tmp)
def tagged_pack(r):
    A(f"v_mov_b32 v{r+1}, v{r+2}\nv_mov_b32 v{r+2}, v{r+4}\nv_mov_b32 v{r+3}, v{r+6}")
def near_bit(r, dst):
    A(f"s_xor_b32 {dst}, {sTAG}, 0x80000000")
    A(f"v_cmp_eq_u32 vcc, {dst}, v{r}")
    A(f"s_bcnt1_i32_b32 {sT}, vcc_lo")
    A(f"v_cmp_eq_u32 vcc, {sTAG}, v{r}")
    A(f"s_bcnt1_i32_b32 {dst}, vcc_lo")
    A(f"s_cmp_gt_u32 {sT}, {dst}\ns_cselect_b32 {dst}, 4, 0")
    if OPT["force"] >= 0: A(f"s_mov_b32 {dst}, {4*OPT['force']}")
    A(f"s_xor_b32 {dst}, {dst}, s2\ns_and_b32 {dst}, {dst}, 4\ns_lshl_b32 {dst}, {dst}, 11")
def settags(*regs):
    for r in regs: A(f"v_mov_b32 v{r}, {sTAG}")

STAMP(0)
A("s_cmp_ge_u32 s2, 256\ns_cbranch_scc1 L_end")
A("s_cmp_ge_u32 s2, 128\ns_cselect_b32 s40, 24, 8\ns_cselect_b32 s41, 0, 16")
A("s_load_dwordx2 s[8:9], s[0:1], s40")
kload(RC, 80)
A("s_load_dwordx2 s[24:25], s[0:1], s41")
kload(RE, 72); kload(RW, 104)
A("v_readfirstlane_b32 s3, v0")
sk = L("npf")
A(f"s_cbranch_scc1 {sk}")
A("s_getpc_b64 s[38:39]")
A(f"v_and_b32 v{vPF}, 0x1c0, v0\ns_lshl_b32 s40, s2, 7\ns_and_b32 s38, s38, 0xffffff00\ns_and_b32 s40, s40, 0x3c00\nv_lshl_or_b32 v{vPF}, v{vPF}, 1, s40")
A(f"global_load_dword v{vPF}, v{vPF}, s[38:39]")
A.label(sk)
A("v_and_b32 v0, 63, v0")
A("s_mov_b32 s11, 0x00020000")
A("v_lshrrev_b32 v1, 4, v0\nv_and_b32 v2, 15, v0")
A(f"s_add_u32 s4, s2, {OPT['rot']}\ns_and_b32 s4, s4, 7\ns_bfe_u32 s6, s2, 0x10006\ns_bfe_u32 s7, s2, 0x30003")
A(f"v_lshlrev_b32 v{T3}, 1, v1\nv_xor_b32 v{T3}, v2, v{T3}\nv_lshlrev_b32 v{T3}, 4, v{T3}")
A("s_mov_b32 s27, s11")
A(f"v_and_b32 v{T1}, 0x70, v{T3}\nv_lshrrev_b32 v{T0}, 3, v0")
A("s_cmp_lt_u32 s2, 128\ns_cbranch_scc1 L_KV")
def ids2():
    A("s_lshr_b32 s3, s3, 6\ns_bfe_u32 s5, s2, 0x40003\ns_lshl1_add_u32 s58, s4, s6")
    if STAMPS:
        for i in range(2, 16): A(f"s_mov_b32 s{64+2*i}, 0")
    srd(RW, WS_BYTES)

A.seg(3); A.label("L_KV")
vE, vO, vQO = 120, 121, 122
vKF = 16
vVF = 48
vQF = 80
vS = 96
vQ = 100
vP = 104
vKA = 108
vOA = 108
vST = 144
vOAD, vSAD = 116, 117
wG, wDO, fMF = 124, 125, 123
vMF = 128
A(f"v_lshl_or_b32 v{vE}, v1, 8, v{T3}\nv_xor_b32 v{vO}, 0x80, v{vE}")
A("s_lshl_b32 s43, s3, 7\ns_mov_b32 s10, 33554432\ns_mov_b32 s26, s10")
SX("s56", 6144*256, ("s6", 24), ("s4", 21), ("s7", 16), ("s43", 0))
A(f"s_add_u32 s57, s56, 4096\ns_add_u32 m0, s43, {VREG}")
def kv_dma(u):
    r = RA if u < 8 else RD
    A(f"buffer_load_dwordx4 v{vE if u%2==0 else vO}, {r}, {'s56' if u%8 < 4 else 's57'} offen offset:{(u%4)*1024} {NT} lds")
SX("s40", 0, ("s2", 4, 0, 9), ("s3", 0))
A(f"s_cmp_eq_u32 s40, {7*64}")
A("s_waitcnt lgkmcnt(0)")
A("s_cbranch_scc1 L_meas")
A.label("L_go")
kv_dma(8)
A("s_mov_b32 m0, s43")
A(f"s_load_dword {sTAG}, s[16:17], 0")
for u in range(16):
    if u in (4, 12): A("s_add_u32 m0, m0, 4096")
    if u == 8:
        A(f"s_add_u32 m0, s43, {VREG}")
        continue
    kv_dma(u)
cont(30)
ids2()
if STAMPS: A("s_mov_b32 s66, 0")
STAMP(2)
if OPT["tw"] >= 0 or OPT["fw"]:
    SX("s100", TRG + 64, ("s4", 7))
    A("v_lshlrev_b32 v149, 2, v2")
    sk = L("ntp")
    A(f"s_cmp_lg_u32 s3, 0\ns_cbranch_scc1 {sk}")
    A(f"buffer_load_dword v136, v149, {RW}, s100 offen sc1")
    A.label(sk)
if OPT["tw"] >= 0:
    sk = L("ntr")
    A(f"s_cmp_lg_u32 s3, {OPT['tw']}\ns_cbranch_scc1 {sk}")
    SX("s40", TRG, ("s4", 7), ("s5", 2))
    A(f"s_waitcnt lgkmcnt(0)\ns_add_u32 s41, {sTAG}, {TAGC:#x}\nv_mov_b32 v136, s41")
    A(f"s_mov_b64 exec, 1\nbuffer_store_dword v136, v0, {RW}, s40 offen")
    fullexec()
    A.label(sk)
SX("s63", 0, ("s4", 4), ("s5", 0))
SX("s96", G5, ("s4", 15), ("s5", 10))
A(f"s_add_u32 s97, s96, {US5-G5}")
SX("s98", ST5, ("s4", 7))
A(f"v_lshlrev_b32 v{vQO}, 4, v0\nv_lshlrev_b32 v148, 7, v0\ns_movk_i32 s99, {TOK}")
kload(RC, 48); kload(RB, 56); kload(RE, 64)
A(f"v_mul_u32_u24 v{wG}, 3584, v{T0}\nv_add_u32 v{wG}, v{wG}, v{T1}\nv_lshl_or_b32 v{wDO}, v{T0}, 10, v{T1}")
srd(RC, 1835008); srd(RB, 1835008); srd(RE, 1835008)
SX("s49", 0, ("s63", 0, 2, 7), ("s3", 4))
A("s_mul_i32 s49, s49, 3584")
SX("s50", 0, ("s63", 2, 0, 7))
A(f"s_add_u32 s49, s49, s50\ns_add_u32 s50, s49, {8*3584-1024}")
SX("s51", 0, ("s63", 14), ("s3", 7))
A(f"s_add_u32 s52, s51, {8*1024-1024}\ns_lshl_b32 s42, s3, 11")
SX("s44", QG, ("s58", 12), ("s3", 10))
VX(fMF, T2, 0, (0, 3, 7), (3, 1, 6), (4, 2, 4))
SX("s59", MGT + 2*32768, ("s63", 0, 2, 13), ("s3", 0, 2, 11))
SX("s40", 0, ("s3", 2, 0, 15)); A("s_sub_u32 s59, s59, s40")
VX(T2, 0, 0, (0, 3, 1))
A(f"v_xor_b32 v{T2}, v1, v{T2}\nv_lshlrev_b32 v{T2}, 4, v{T2}\nv_lshl_or_b32 v{T2}, v2, 8, v{T2}")
A(f"v_add_u32 v{vKA}, s43, v{T2}")
for t in range(1, 4):
    A(f"v_xor_b32 v{vKA+t}, {t*64:#x}, v{vKA}")
vQW, vQR, vVR, vMX, vPW, vPR, vMW = 3, 4, 5, 6, 113, 13, 112
SX("s40", QL, ("s3", 5))
VX(vQW, T2, "s40", (1, 4, 7), (5, 1, 4), (0, 1, 3))
VX(vQR, T2, QL, (4, 2, 7), (0, 3, 4))
A(f"v_bfe_u32 v{T0}, v0, 2, 3\nv_xor_b32 v{T0}, s3, v{T0}")
VX(vVR, T2, VREG, (2, 4, 8), (0, 2, 3))
A(f"v_lshl_or_b32 v{vVR}, v{T0}, 5, v{vVR}")
VX(vMX, T2, MISC, (0, 2, 5))
A(f"s_lshl_b32 s40, s3, 2\nv_add_u32 v{vMW}, s40, v{vMX}")
VX(vPR, T2, PL, (4, 2, 6), (0, 2, 4))
A(f"s_lshl_b32 s40, s3, 8\nv_and_b32 v{T2}, 12, v0\nv_add3_u32 v{vPW}, s40, v{vPR}, v{T2}")
A("s_mov_b32 s60, 0xf0f0f0f0\ns_mov_b32 s61, s60\ns_mov_b32 s46, 0xff00ff00\ns_mov_b32 s47, s46")
VX(vOAD, T2, 0, (0, 2, 13), (4, 2, 4))
SX("s53", OG, ("s4", 15), ("s3", 10), ("s5", 6))
VX(vSAD, T2, 0, (0, 2, 8))
SX("s54", SG, ("s4", 10), ("s5", 4))
A(f"s_mov_b32 s55, {f32(C1)}")
A("s_waitcnt vmcnt(7) lgkmcnt(0)")
A(f"s_add_u32 {sTAG}, {sTAG}, {TAGC:#x}")
for T in range(2):
    for t in range(4):
        r = vKF + (T*4+t)*4
        A(f"ds_read_b128 v[{r}:{r+3}], v{vKA+t} offset:{T*4096}")
settags(vP+1, vP+3, vST+1, vST+3)
A(f"v_lshlrev_b32 v150, 2, v2\ns_movk_i32 s101, {VOTE}")
sk = L("nqp")
A(f"s_cmp_ge_u32 s3, 4\ns_cbranch_scc1 {sk}")
poll(lambda: A(f"buffer_load_dwordx4 v[{vQ}:{vQ+3}], v{vQO}, {RW}, s44 offen sc1"), lambda: tags_chk([vQ+1, vQ+3], T0), sleep=OPT['s2'])
STAMP(4)
A(f"v_mov_b32 v{vQ+1}, v{vQ+2}\nds_write_b64 v{vQW}, v[{vQ}:{vQ+1}]")
A.label(sk)
A("s_waitcnt vmcnt(0) lgkmcnt(0)\ns_barrier")
STAMP(5)
if STAMPS: A("s_waitcnt lgkmcnt(0)")
for t in range(4):
    A(f"ds_read_b128 v[{vQF+4*t}:{vQF+4*t+3}], v{vQR} offset:{t*512}")
def v_tr(kb, T):
    r = vVF + kb*4 + T*2
    A(f"ds_read_b64_tr_b16 v[{r}:{r+1}], v{vVR} offset:{(32*kb+16*T)*256}")
NV1 = OPT["nv1"]
for t in range(4):
    A(f"s_waitcnt lgkmcnt({3-t})")
    for T in range(2):
        mfma(vS + 4*T, vKF + (T*4+t)*4, vQF + 4*t, None if t == 0 else vS + 4*T)
for kb in range(NV1):
    v_tr(kb, 0); v_tr(kb, 1)
def mf_loads():
    tagged_loads(vMF, fMF, "s59")
mf_loads()
A(f"buffer_load_dword v151, v150, {RW}, s101 offen sc1")
def dn_dma():
    A(f"s_add_u32 m0, s42, {FD}")
    A(f"buffer_load_dwordx4 v{wDO}, {RE}, s51 offen {NT} lds")
    A(f"buffer_load_dwordx4 v{wDO}, {RE}, s52 offen offset:1024 {NT} lds")
DE = OPT["dnearly"]
if DE == 1: dn_dma()
for i in range(8):
    A(f"v_add_f32_dpp v{vS+i}, v{vS+i}, v{vS+i} row_ror:4 {DPPM}")
A(f"v_max3_f32 v{T0}, v{vS}, v{vS+1}, v{vS+2}\nv_max3_f32 v{T2}, v{vS+3}, v{vS+4}, v{vS+5}")
A(f"v_max3_f32 v{T0}, v{T0}, v{vS+6}, v{vS+7}\nv_max_f32 v{T3}, v{T0}, v{T2}\nv_max_f32 v{T0}, v{T0}, v{T2}")
A(f"v_cndmask_b32 v{vS}, v{vS}, v{vS+2}, s[60:61]\nv_cndmask_b32 v{vS+1}, v{vS+1}, v{vS+3}, s[60:61]")
A(f"v_permlane32_swap_b32 v{T0}, v{T3}")
A(f"v_max_f32 v{T2}, v{T0}, v{T3}\nv_max_f32 v{T0}, v{T0}, v{T3}")
A(f"v_cndmask_b32 v{vS+4}, v{vS+4}, v{vS+6}, s[60:61]\nv_cndmask_b32 v{vS+5}, v{vS+5}, v{vS+7}, s[60:61]")
A(f"v_permlane16_swap_b32 v{T0}, v{T2}")
A(f"v_max_f32 v{T0}, v{T0}, v{T2}")
A(f"ds_write_b32 v{vMW}, v{T0}")
A(f"v_cndmask_b32 v{vS}, v{vS}, v{vS+4}, s[46:47]\nv_cndmask_b32 v{vS+1}, v{vS+1}, v{vS+5}, s[46:47]")
A(f"v_mul_f32 v{vS}, s55, v{vS}\nv_mul_f32 v{vS+1}, s55, v{vS+1}")
STAMP(14)
sk = L("nlt")
A(f"s_cmp_lg_u32 s3, 7\ns_cbranch_scc1 {sk}")
A(f"buffer_load_dwordx4 v[136:139], v{vQO}, {RW}, s96 offen sc1")
A(f"buffer_load_dwordx4 v[136:139], v{vQO}, {RW}, s97 offen sc1")
A(f"buffer_load_dword v136, v{wDO}, {RW}, s98 offen sc1")
A(f"buffer_load_dwordx4 v[140:143], v148, {RW}, s99 offen sc1")
A.label(sk)
A("s_waitcnt lgkmcnt(0)\ns_barrier")
A(f"ds_read_b128 v[{vQF}:{vQF+3}], v{vMX}\nds_read_b128 v[{vQF+4}:{vQF+7}], v{vMX} offset:16")
for kb in range(NV1, 8):
    v_tr(kb, 0); v_tr(kb, 1)
A(f"s_waitcnt lgkmcnt({2*(8 - NV1)})")
A(f"v_max3_f32 v{T0}, v{vQF}, v{vQF+1}, v{vQF+2}\nv_max3_f32 v{T2}, v{vQF+3}, v{vQF+4}, v{vQF+5}")
A(f"v_max3_f32 v{T0}, v{T0}, v{vQF+6}, v{vQF+7}\nv_max_f32 v{T0}, v{T0}, v{T2}")
A(f"v_fma_f32 v{vS}, -v{T0}, s55, v{vS}\nv_fma_f32 v{vS+1}, -v{T0}, s55, v{vS+1}")
A(f"v_exp_f32 v{vS}, v{vS}\nv_exp_f32 v{vS+1}, v{vS+1}")
A(f"v_mul_f32 v{vST}, s55, v{T0}")
A(f"v_cvt_pk_bf16_f32 v{T1}, v{vS}, v{vS+1}")
A(f"v_add_f32 v{T0}, v{vS}, v{vS+1}")
A(f"ds_write_b32 v{vPW}, v{T1}")
A(f"v_add_f32_dpp v{T0}, v{T0}, v{T0} row_ror:4 {DPPM}")
A(f"v_add_f32_dpp v{T3}, v{T0}, v{T0} row_ror:8 {DPPM}\nv_add_f32_dpp v{T0}, v{T0}, v{T0} row_ror:8 {DPPM}")
A(f"v_permlane32_swap_b32 v{T0}, v{T3}")
A(f"v_add_f32 v{T2}, v{T0}, v{T3}\nv_add_f32 v{T0}, v{T0}, v{T3}")
A(f"v_permlane16_swap_b32 v{T0}, v{T2}")
A(f"v_add_f32 v{T0}, v{T0}, v{T2}")
A(f"ds_write_b32 v{vMW}, v{T0} offset:128")
if DE == 2: dn_dma()
A("s_waitcnt lgkmcnt(0)\ns_barrier")
STAMP(3)
if STAMPS: A("s_waitcnt lgkmcnt(0)")
sk = L("nst"); sk2 = L("nsu")
A(f"s_cmp_lg_u32 s3, 0\ns_cbranch_scc1 {sk}")
A(f"ds_read_b128 v[{vQF}:{vQF+3}], v{vMX} offset:128\nds_read_b128 v[{vQF+4}:{vQF+7}], v{vMX} offset:144")
A.label(sk)
for kb in range(8):
    r = vKF + kb*4
    A(f"ds_read_b128 v[{r}:{r+3}], v{vPR} offset:{kb*256}")
A(f"s_cbranch_scc1 {sk2}")
A("s_waitcnt lgkmcnt(8)")
rowsum([vQF, vQF+4])
A(f"v_add_f32 v{vST+2}, v{vQF}, v{vQF+4}")
A("s_mov_b64 exec, 15")
A(f"buffer_store_dwordx4 v[{vST}:{vST+3}], v{vSAD}, {RW}, s54 offen")
fullexec()
A.label(sk2)
for kb in range(8):
    A(f"s_waitcnt lgkmcnt({7-kb})")
    mfma(vOA, vVF + kb*4, vKF + kb*4, None if kb == 0 else vOA)
setexec(0x000f000f, 0x000f000f)
A(f"s_add_u32 m0, s42, {FG}")
A(f"v_cvt_pk_bf16_f32 v{vP}, v{vOA}, v{vOA+1}\nv_cvt_pk_bf16_f32 v{vP+2}, v{vOA+2}, v{vOA+3}")
A(f"buffer_store_dwordx4 v[{vP}:{vP+3}], v{vOAD}, {RW}, s53 offen")
fullexec()
STAMP(7)
A("s_cmp_eq_u32 s4, 7\ns_cbranch_scc1 L_g7")
def ffn_dma():
    if OPT["fw"]:
        A("s_cmp_lg_u32 s3, 1\ns_cbranch_scc1 L_fwd")
        A(f"s_mov_b32 {sCNT}, 0")
        A.label("L_fw")
        A(f"buffer_load_dword v33, v149, {RW}, s100 offen sc1")
        A("s_waitcnt vmcnt(0)")
        A(f"v_cmp_eq_u32 vcc, {sTAG}, v33")
        A(f"s_bcnt1_i32_b32 s40, vcc_lo\ns_cmp_ge_u32 s40, {2*(16-OPT['fany'])}\ns_cbranch_scc1 L_fwd")
        A(f"s_sleep 1\ns_add_u32 {sCNT}, {sCNT}, 1\ns_cmp_lt_u32 {sCNT}, {OPT['fmax']}\ns_cbranch_scc1 L_fw")
        A.label("L_fwd")
    A("s_barrier")
    A(f"buffer_load_dwordx4 v{wG}, {RC}, s49 offen {NT} lds")
    A(f"buffer_load_dwordx4 v{wG}, {RC}, s50 offen offset:1024 {NT} lds")
    A(f"s_add_u32 m0, s42, {FG+16384}")
    A(f"buffer_load_dwordx4 v{wG}, {RB}, s49 offen {NT} lds")
    A(f"buffer_load_dwordx4 v{wG}, {RB}, s50 offen offset:1024 {NT} lds")
    if not DE:
        A("s_barrier")
        dn_dma()
if not OPT["flate"]: ffn_dma()
fYW, fYR, fWR, fGR, fSTA, fY6A = 113, 114, 115, 118, 119, 120
fGA = 116; fG = 144; fUS = 145
fU, fS = 121, 117
wTA = 108; fWF = 84; fDF = 64
VX(wTR, 32, 0, (2, 4, 7), (3, 2, 5), (0, 2, 3))
SX("s40", 0, ("s3", 0, 2, 5)); A(f"v_xor_b32 v{fWR}, s40, v{wTR}")
SX("s40", FG, ("s3", 2, 0, 14)); A(f"v_add_u32 v{fWR}, s40, v{fWR}")
A(f"s_add_u32 s40, s42, {FD}\nv_add_u32 v{wTA}, s40, v{wTR}")
for t in range(1, 4):
    A(f"v_xor_b32 v{wTA+t}, {t*32:#x}, v{wTA}")
A(f"v_add_u32 v{fYR}, {YL0}, v{vQO}")
A(f"s_lshl_b32 s40, s3, 10\nv_add_u32 v{fYW}, s40, v{fYR}")
VX(fGA, 32, 0, (0, 6, 2))
SX("s61", G5 - 64, ("s4", 15), ("s5", 2, 0, 12), ("s3", 0, 2, 10), ("s5", 0, 2, 8), ("s3", 2, 0, 7))
A(f"s_add_u32 s62, s61, {US5-G5}")
VX(fGR, 32, 0, (2, 1, 7), (3, 1, 6), (4, 2, 4), (0, 2, 2))
VX(fSTA, 32, 0, (0, 2, 5), (2, 1, 10), (3, 1, 4))
VX(fY6A, 32, 0, (3, 1, 13), (5, 1, 12), (4, 1, 4))
SX("s47", Y4, ("s3", 2, 0, 15), ("s5", 1, 1, 14), ("s5", 0, 1, 12), ("s3", 0, 2, 10))
if OPT["flate"] == 2: A("s_waitcnt vmcnt(0)")
if OPT["flate"]: ffn_dma()
SX("s49", Y6, ("s3", 16), ("s63", 5))
A("s_add_u32 s50, s49, 16384\ns_add_u32 s51, s49, 32768\ns_add_u32 s52, s49, 49152")
A(f"s_mov_b32 s41, {f32(1.0/512)}\ns_mov_b32 s43, {f32(1e-5)}")
poll(mf_loads, lambda: tagged_chk([vMF], 33), first_issued=True, first_wait=4 if DE else 6, sleep=4)
tagged_pack(vMF)
near_bit(151, "s40"); A("s_add_u32 s47, s47, s40")
A(f"ds_write_b128 v{fYW}, v[{vMF}:{vMF+3}]")
sk = L("ntk")
A(f"s_cmp_lg_u32 s3, 7\ns_cbranch_scc1 {sk}")
poll(lambda: A(f"buffer_load_dwordx4 v[140:143], v148, {RW}, s99 offen sc1"), lambda: tags_chk([140, 141, 142, 143], 33), first_issued=True, first_wait=4 if DE else 6, sleep=2)
A.label(sk)
vY = 76
y_load = lambda: A(f"buffer_load_dwordx4 v[{vY}:{vY+3}], v{fMF}, {RW}, s47 offen sc1")
A(f"s_waitcnt vmcnt({0 if DE else 2}) lgkmcnt(0)\ns_barrier")
STAMP(10)
y_load()
YO = [16, 20, 24, 28, 32, 36, 100, 104]
for k in range(4):
    for h in range(2):
        r = fWF + 4*k + 2*h
        A(f"ds_read_b64_tr_b16 v[{r}:{r+1}], v{fWR} offset:{k*4096 + h*2048}")
for u in range(8):
    A(f"ds_read_b128 v[{YO[u]}:{YO[u]+3}], v{fYR} offset:{u*1024}")
A("s_waitcnt lgkmcnt(0)")
for k in range(4):
    for pi in range(2):
        mfma(wD + 4*pi, YO[4*pi+k], fWF + 4*k, None if k == 0 else wD + 4*pi)
rowsum([wD, wD+4])
A(f"v_permlane16_swap_b32 v{wD}, v{wD+4}")
A(f"v_add_f32 v{wD+1}, v{wD}, v{wD+4}\nv_add_f32 v{wD}, v{wD}, v{wD+4}")
A(f"v_permlane16_swap_b32 v{wD}, v{wD+1}")
A(f"v_cvt_pk_bf16_f32 v{fUS}, v{wD}, v{wD+1}")
setexec(0xffff0000, 0x0000ffff)
A(f"buffer_store_dword v{fUS}, v{fGA}, {RW}, s62 offen")
fullexec()
STAMP(1)
def us_loads():
    for k in range(4):
        A(f"buffer_load_dword v{40+k}, v{fGR}, {RW}, s97 offen offset:{256*k} sc1")
def us_sum():
    A(f"v_mov_b32 v{fU}, 0\nv_mov_b32 v{fS}, 0\nv_mov_b32 v44, 0x3f80\nv_mov_b32 v45, 1.0\nv_mov_b32 v146, s43")
    for k in range(4):
        A(f"v_dot2c_f32_bf16 v{fU}, v{40+k}, v44\nv_dot2c_f32_bf16 v{fS}, v{40+k}, v45")
if OPT["usearly"]:
    poll(us_loads, lambda: chk_empty4(40, 33), sleep=1)
    us_sum()
poll(y_load, lambda: chk_empty4(vY, 33), first_issued=True, first_wait=1, sleep=OPT["x4s"])
STAMP(11)
A(f"ds_write_b128 v{fYW}, v[{vY}:{vY+3}] offset:8192")
A("s_waitcnt lgkmcnt(0)\ns_barrier")
for u in range(8):
    A(f"ds_read_b128 v[{YO[u]}:{YO[u]+3}], v{fYR} offset:{8192+u*1024}")
for u in range(8):
    A(f"s_waitcnt lgkmcnt({7-u})")
    mfma(wD, YO[u], fWF + 4*(u & 3), None if u == 0 else wD)
    if u % 2 == 1 and not OPT["usearly"]: A(f"buffer_load_dword v{40+u//2}, v{fGR}, {RW}, s97 offen offset:{256*(u//2)} sc1")
for tau in range(4):
    A(f"ds_read_b64_tr_b16 v[{fDF+2*tau}:{fDF+2*tau+1}], v{wTA+tau}")
A(f"v_add_f32 v{wD}, v{wD}, v{wD+1}\nv_add_f32 v{wD+2}, v{wD+2}, v{wD+3}")
A(f"v_add_f32 v{wD+1}, v{wD}, v{wD+2}\nv_add_f32 v{wD}, v{wD}, v{wD+2}")
A(f"v_permlane16_swap_b32 v{wD}, v{wD+1}")
setexec(0xffff0000, 0x0000ffff)
A(f"v_add_f32 v{fG}, v{wD}, v{wD+1}")
A(f"buffer_store_dword v{fG}, v{fGA}, {RW}, s61 offen")
fullexec()
STAMP(12)
def g_loads():
    A(f"buffer_load_dwordx4 v[24:27], v{fSTA}, {RW}, s98 offen sc1")
    for k in range(4):
        A(f"buffer_load_dword v{20+k}, v{fGR}, {RW}, s96 offen offset:{256*k} sc1")
if not OPT["usearly"]: poll(us_loads, lambda: chk_empty4(40, 33), first_issued=True, first_wait=1)
g_loads()
if not OPT["usearly"]: us_sum()
def g_chk():
    A("v_add_f32 v24, v24, v26\nv_add_f32 v25, v25, v27")
    A("v_add_f32 v20, v20, v21\nv_add_f32 v22, v22, v23")
    A(f"v_add_f32_dpp v24, v24, v24 quad_perm:[1,0,3,2] {DPPM}\nv_add_f32_dpp v25, v25, v25 quad_perm:[1,0,3,2] {DPPM}")
    A("v_add_f32 v20, v20, v22")
    A(f"v_add_f32_dpp v24, v24, v24 quad_perm:[2,3,0,1] {DPPM}\nv_add_f32_dpp v25, v25, v25 quad_perm:[2,3,0,1] {DPPM}")
    A("v_add_f32 v26, v24, v25")
    A(f"v_add_f32_dpp v24, v24, v24 row_half_mirror {DPPM}\nv_add_f32_dpp v25, v25, v25 row_half_mirror {DPPM}")
    A("v_cmp_u_f32 vcc, v20, v26")
    A("v_mul_f32 v24, s41, v24")
    A("v_fma_f32 v27, v25, s41, v146")
poll(g_loads, g_chk, first_issued=True)
STAMP(13)
A("v_fma_f32 v27, -v24, v24, v27")
A(f"v_fma_f32 v20, -v24, v{fU}, v20")
A("v_rsq_f32 v27, v27")
A(f"v_fma_f32 v20, v20, v27, v{fS}")
A("v_max_f32 v21, 0, v20")
A(f"v_mul_f32_dpp v22, v20, v21 row_shl:4 {DPPM}")
pack4(22, 24, 25, 23)
A("s_waitcnt lgkmcnt(0)")
for tau in range(4):
    d = 32 + 4*tau
    A(f"v_mfma_f32_16x16x16_bf16 v[{d}:{d+3}], v[{fDF+2*tau}:{fDF+2*tau+1}], v[24:25], 0")
setexec(0x01010101, 0x01010101)
for tau in range(4):
    d = 32 + 4*tau
    A(f"buffer_store_dwordx4 v[{d}:{d+3}], v{fY6A}, {RW}, s{49+tau} offen sc1")
STAMP(8)
if OPT["nore"]: A("s_branch L_exit")
A("s_waitcnt vmcnt(0)")
setexec(0xffff0000, 0x0000ffff)
A(f"buffer_store_dword v{fG}, v{fGA}, {RW}, s61 offen sc1")
A(f"buffer_store_dword v{fUS}, v{fGA}, {RW}, s62 offen sc1")
A("s_branch L_exit")
A.label("L_g7")
A("s_cmp_lg_u32 s3, 0\ns_cbranch_scc1 L_exit")
VX(T1, T2, 0, (3, 1, 15), (2, 1, 14), (0, 2, 11))
A(f"s_mov_b32 s46, {X4 + 7*128:#x}")
poll(lambda: A(f"buffer_load_dword v16, v{T1}, {RW}, s46 offen sc1"), lambda: A("v_cmp_eq_u32 vcc, -1, v16"), sleep=8)
A("s_branch L_exit")

A.seg(29)
A.label("L_meas")
SX("s48", PROBE, ("s2", 8), ("s2", 3, 1, 13))
A("s_xor_b32 s49, s48, 0x2000")
A(f"s_load_dword s40, s[16:17], s48 glc\ns_load_dword s41, s[16:17], s49 glc\ns_load_dword {sTAG}, s[16:17], 0")
A(f"s_mov_b32 s38, -1\ns_mov_b32 s39, -1\ns_mov_b32 {sCNT}, 0")
srd(RW, WS_BYTES)
A.label("L_ms")
for off, acc in (("s48", "s38"), ("s49", "s39")):
    A("s_waitcnt lgkmcnt(0)\ns_memtime s[32:33]\ns_waitcnt lgkmcnt(0)")
    A(f"s_load_dword s40, s[16:17], {off} glc\ns_waitcnt lgkmcnt(0)")
    A("s_memtime s[34:35]\ns_waitcnt lgkmcnt(0)")
    A(f"s_sub_u32 s40, s34, s32\ns_min_u32 {acc}, {acc}, s40")
A(f"s_add_u32 {sCNT}, {sCNT}, 1\ns_cmp_lt_u32 {sCNT}, {OPT['reps']}\ns_cbranch_scc1 L_ms")
A("s_cmp_lt_u32 s39, s38\ns_cselect_b32 s40, s49, s48")
A("s_lshr_b32 s40, s40, 11\ns_xor_b32 s40, s40, s2\ns_lshl_b32 s40, s40, 29\ns_and_b32 s40, s40, 0x80000000")
A(f"s_add_u32 s41, {sTAG}, {TAGC:#x}\ns_xor_b32 s40, s40, s41\nv_mov_b32 v136, s40")
SX("s40", VOTE, ("s2", 2))
A(f"s_mov_b64 exec, 1\nbuffer_store_dword v136, v0, {RW}, s40 offen sc1")
fullexec()
if STAMPS: A("s_memrealtime s[100:101]\ns_waitcnt lgkmcnt(0)")
A("s_branch L_go")

A.seg(0)
IS_NA = "s_cmp_lg_u32 s6, 0"; IS_A = "s_cmp_eq_u32 s6, 0"
R3 = OPT["r3"]
def w_common(first=True):
    kload(RB, 32); kload(RF, 88)
    if first:
        A(f"s_load_dword {sTAG}, s[16:17], 0")
        ids2()
    A(f"v_lshl_or_b32 v{wO}, v{T0}, 10, v{T1}")
    srd(RB, 4194304); A("s_movk_i32 s26, 2048")
def wq_setup(sh):
    A(f"v_lshl_or_b32 v{wQ}, v{T0}, 13, v{T1}")
    A("s_mov_b32 s10, 4194304")
    A(f"s_lshl_b32 s48, s3, {12-sh}")
    SX("s43", 0, ("s6", 8), ("s48", 7, 0, 0))
    SX("s44", 0, ("s43", 13), ("s4", 10), ("s46", 0))
def wq_dma():
    A(f"s_add_u32 m0, s48, {WQL}")
    for u in range(4):
        if u: A(f"s_add_u32 s44, s44, {8*8192-1024}")
        A(f"buffer_load_dwordx4 v{wQ}, {RA}, s44 offen offset:{u*1024} {NT} lds")
def c_setup():
    VX(T2, T3, 0, (5, 1, 10), (0, 5, 2))
    srd(RE, 2048)
srd(RC, 3145728)
A(f"v_mul_u32_u24 v{wM}, 6144, v{T0}\ns_lshl_b32 s46, s7, 7\nv_add_u32 v{wM}, v{wM}, v{T1}")
A(f"{IS_NA}\ns_cbranch_scc1 L_nA")
A("s_lshl_b32 s49, s4, 7")
A("s_cmp_lt_u32 s3, 256\ns_cbranch_scc1 L_A1")
A("s_sub_u32 s40, s3, 256")
SX("s61", 0, ("s7", 6), ("s40", 2, 0, 0))
A(f"s_mul_i32 s61, s61, 6144\ns_add_u32 s61, s61, s49\ns_add_u32 s62, s61, {8*6144-1024}")
A(f"s_lshl_b32 s40, s40, 5\ns_add_u32 m0, s40, {PA}")
A("s_waitcnt lgkmcnt(0)")
STAMP(1)
A(f"buffer_load_dwordx4 v{wM}, {RC}, s61 offen {NT} lds")
A(f"buffer_load_dwordx4 v{wM}, {RC}, s62 offen offset:1024 {NT} lds")
A(f"s_add_u32 m0, s40, {PA+8192-1024}")
A(f"buffer_load_dwordx4 v{wM}, {RC}, s61 offen offset:1024 {NT} lds")
A(f"buffer_load_dwordx4 v{wM}, {RC}, s62 offen offset:2048 {NT} lds")
wq_setup(6)
A("s_barrier")
wq_dma()
A("s_waitcnt vmcnt(4)\ns_barrier")
cont(5)
A("v_mov_b32 v32, -1\nv_mov_b32 v33, -1\nv_mov_b32 v34, -1\nv_mov_b32 v35, -1\nv_lshlrev_b32 v38, 4, v0")
SX("s54", G5, ("s4", 15), ("s7", 12), ("s40", 1, 0, 0))
srd(RW, WS_BYTES)
A(f"buffer_store_dwordx4 v[32:35], v38, {RW}, s54 offen sc1")
A(f"v_lshl_or_b32 v37, v{T0}, 10, v{T1}")
SX("s41", 0, ("s7", 14), ("s40", 1))
SX("s54", X4, ("s41", 0), ("s4", 7))
A(f"s_cmp_eq_u32 s41, {31*4096}\ns_cselect_b32 exec_hi, 0xffff, 0")
A(f"buffer_store_dwordx4 v[32:35], v37, {RW}, s54 offen sc1")
fullexec()
A.seg(1)
A.label("L_A1")
c_setup()
VX(36, T3, 0, (4, 1, 10), (5, 1, 8), (0, 4, 4))
A("s_movk_i32 s26, 2048")
A("s_waitcnt lgkmcnt(0)")
STAMP(1)
A(f"buffer_load_dword v{wC}, v{T2}, {RE}, s46 offen {SNT}")
A(f"buffer_load_dwordx4 v[{wX}:{wX+3}], v36, {RD}, 0 offen {SNT}")
A(f"buffer_load_dwordx4 v[{wX+4}:{wX+7}], v36, {RD}, 0 offen offset:512 {SNT}")
VX(37, T3, 0, (4, 1, 10), (0, 4, 1))
A(f"s_lshr_b32 s50, s3, 1\ns_add_u32 s50, s50, s49\nv_mov_b32 v{wXS}, 0")
A(f"buffer_load_short_d16_hi v{wXS}, v37, {RD}, s50 offen {SNT}")
A(f"s_load_dword {sTAG}, s[16:17], 0")
A("s_barrier")
cont(4)
ids2()
tr_setup()
VX(39, 32, 0, (4, 1, 6), (2, 2, 4))
SX("s53", H1G, ("s4", 12), ("s3", 10), ("s46", 0))
A("s_cmp_eq_u32 s7, 0\ns_cselect_b32 s54, 1.0, 0")
unit_pre("0", "s54", PA)
silu_operand(3)
A("v_mov_b32 v36, 0\nv_mov_b32 v37, 0\nv_mov_b32 v38, 0x3f803f80")
A(f"s_waitcnt vmcnt(0)")
for i in range(8):
    A(f"v_dot2c_f32_bf16 v36, v{wX+i}, v38\nv_dot2c_f32_bf16 v37, v{wX+i}, v{wX+i}")
for m in ("quad_perm:[1,0,3,2]", "quad_perm:[2,3,0,1]", "row_half_mirror", "row_mirror"):
    A(f"v_add_f32_dpp v36, v36, v36 {m} {DPPM}\nv_add_f32_dpp v37, v37, v37 {m} {DPPM}")
A("v_mov_b32 v38, v36\nv_mov_b32 v35, v37")
A("v_permlane32_swap_b32 v36, v38\nv_permlane32_swap_b32 v37, v35")
A("v_add_f32 v36, v36, v38\nv_add_f32 v37, v37, v35")
A(f"v_mul_f32 v36, {f32(1.0/512)}, v36\nv_mov_b32 v38, {f32(1e-5)}\nv_fmac_f32 v38, {f32(1.0/512)}, v37")
A("v_fma_f32 v38, -v36, v36, v38\nv_rsq_f32 v38, v38")
A(f"v_sub_f32 v{wXS}, v{wXS}, v36\nv_mul_f32 v{wXS}, v{wXS}, v38")
A("s_waitcnt lgkmcnt(0)")
A(f"s_add_u32 {sTAG}, {sTAG}, {TAGC:#x}")
settags(wD+9, wD+11)
wq_setup(0)
A("s_barrier")
unit_go()
A(f"v_fma_f32 v32, v{wXS}, v{wD+4}, v{wD}")
pack4(32, wD+8, wD+10, 33)
setexec(0x11111111, 0)
A(f"buffer_store_dwordx4 v[{wD+8}:{wD+11}], v39, {RW}, s53 offen sc1")
fullexec()
STAMP(14)
wq_dma()
w_common(False)
A("s_branch L_B")
A.seg(2)
A.label("L_nA")
wq_setup(6)
SX("s51", 0, ("s7", 6), ("s3", 3, 0, 0))
if R3 & 1: SX("s52", 384, ("s51", 13), ("s4", 10))
A("s_mul_i32 s51, s51, 6144")
A("s_waitcnt lgkmcnt(0)")
STAMP(1)
if R3 & 2:
    sk = L("n3a")
    A(f"s_cmp_lg_u32 s4, 3\ns_cbranch_scc1 {sk}")
    A(f"buffer_load_dword v{vPF}, v{wM}, {RC}, s51 offen offset:{1024+384}")
    A.label(sk)
if R3 & 1: A(f"buffer_load_dword v{vPF}, v{wQ}, {RA}, s52 offen")
wq_dma()
A("s_lshl_b32 s42, s3, 4")
SX("s40", 2048, ("s4", 8)); A("s_add_u32 s51, s51, s40")
c_setup()
A(f"buffer_load_dword v{wC}, v{T2}, {RE}, s46 offen {SNT}")
A("s_barrier")
for j, o in enumerate((0, 128, 2048, 2048+128)):
    A(f"s_add_u32 m0, s42, {PB + j*8192 - o}")
    A(f"buffer_load_dwordx4 v{wM}, {RC}, s51 offen offset:{o} {NT} lds")
A("s_branch L_wc")
A.seg(6)
A.label("L_wc")
w_common()
tr_setup()
A("s_waitcnt lgkmcnt(0)")
A(f"s_add_u32 {sTAG}, {sTAG}, {TAGC:#x}")
A.label("L_B")
srd(RF, 2048)
SX("s47", 0, ("s4", 19), ("s43", 10), ("s46", 0))
wRW, wRR, wOF, wTA = 14, 15, 72, 108
SX("s40", RED, ("s3", 9)); VX(wRW, 32, "s40", (0, 6, 2))
SX("s40", RED, ("s3", 8)); VX(wRR, 32, "s40", (0, 6, 2))
VX(wOF, 32, 0, (0, 3, 7), (3, 1, 6), (4, 2, 4))
SX("s53", H1G, ("s43", 6))
wQA = 73; wQD = 76; wYD = 92
VX(wQA, 32, 0, (5, 1, 12), (0, 5, 2))
SX("s56", QG, ("s4", 13), ("s5", 8), ("s3", 7))
A(f"v_add_u32 v{wTA}, s48, v{wTR}")
for t in range(1, 4):
    A(f"v_xor_b32 v{wTA+t}, {t*32:#x}, v{wTA}")
settags(wQD+1, wQD+3)
wGA, wCB, wXA, wXAD = 74, 75, 80, 81
tE, tOUT, tBP, tL16 = 84, 114, 115, 116
SX("s59", Y6, ("s5", 15), ("s4", 1, 1, 14), ("s4", 0, 1, 12))
A("s_cmp_eq_u32 s3, 7\ns_cselect_b32 s40, 0, -1")
A("v_mov_b32 v118, s40\nv_mov_b32 v119, s40\nv_lshlrev_b32 v121, 3, v0")
SX("s99", 0, ("s3", 9), ("s59", 0), ("s2", 2, 1, 13))
VX(T1, 32, 0, (0, 4, 6), (4, 2, 4))
SX("s51", OG, ("s4", 15), ("s43", 6))
SX("s54", SG, ("s4", 10), ("s43", 7, 0, 8))
A(f"v_lshlrev_b32 v{T0}, 2, v1\nv_xor_b32 v{T0}, v0, v{T0}\nv_and_b32 v{T0}, 7, v{T0}\nv_lshlrev_b32 v{T0}, 4, v{T0}")
A(f"v_lshrrev_b32 v32, 5, v0\nv_lshl_or_b32 v{T0}, v32, 7, v{T0}")
VX(wXAD, 32, 0, (5, 1, 6), (2, 2, 4), (4, 1, 3))
SX("s60", X4, ("s7", 2, 0, 14), ("s7", 0, 2, 11), ("s3", 0, 1, 10), ("s6", 15), ("s4", 7))
A(f"s_add_u32 s52, s60, {Y4-X4}\ns_add_u32 s100, s60, 8192\ns_add_u32 s101, s52, 8192")
A("v_and_b32 v32, 1, v0\nv_lshlrev_b32 v32, 4, v32\nv_mov_b32 v33, 0x3f80\nv_lshlrev_b32 v32, v32, v33")
A("v_lshrrev_b32 v33, 2, v2\nv_sub_u32 v33, v1, v33\nv_bfe_u32 v34, v0, 1, 1\nv_lshl_or_b32 v33, v33, 1, v34")
for r in range(2):
    A(f"v_cmp_eq_u32 vcc, {r}, v33")
    A(f"v_mov_b32 v{tE+2+r}, 0\nv_mov_b32 v{tE+4+r}, 0")
    A(f"v_cndmask_b32 v{tE+r}, 0, v32, vcc\nv_cndmask_b32 v{tE+6+r}, 0, v32, vcc")
VX(38, 33, 0, (0, 1, 3), (5, 1, 1), (4, 1, 2))
SX("s40", 0, ("s4", 0, 2, 4)); A(f"v_add_u32 v{tOUT}, s40, v38")
A(f"v_lshlrev_b32 v{tL16}, 4, v0")
SX("s49", X4, ("s6", 14), ("s7", 10))
SX("s55", ST5, ("s4", 7), ("s7", 0, 2, 5), ("s7", 2, 0, 10), ("s6", 3))
VX(113, 33, 0, (5, 1, 4), (4, 1, 2))
SX("s61", MGT, ("s7", 12), ("s3", 11))
SX("s40", MGT + 3*32768, ("s5", 11))
A("s_cmp_eq_u32 s3, 2\ns_cselect_b32 s61, s40, s61\ns_cselect_b32 s40, 0, 0x10000\ns_add_u32 s63, s61, s40")
VX(120, 33, 0, (5, 1, 10), (0, 5, 1))
SX("s42", 0, ("s7", 7), ("s3", 6))
A(f"v_mov_b32 v{wXA}, 0")
VX(39, 32, 0, (5, 1, 12), (4, 1, 6), (2, 2, 4))
SX("s41", OG, ("s4", 15), ("s5", 11))
A(f"v_lshlrev_b32 v{T3}, 7, v2\nv_lshlrev_b32 v117, 10, v1")
SX("s57", 384, ("s4", 19), ("s5", 15), ("s3", 12))
def blk_frags(off):
    for t in range(4):
        for h in range(2):
            r = wWF + 4*t + 2*h
            A(f"ds_read_b64_tr_b16 v[{r}:{r+1}], v{wTA+t} offset:{off + h*2048}")
h1_loads = lambda: tagged_loads(16, wOF, "s53")
A("v_lshlrev_b32 v122, 2, v2")
sk = L("nmb"); sk2 = L("nmc")
A(f"{IS_A}\ns_cbranch_scc1 {sk}")
SX("s96", MGT, ("s4", 13), ("s3", 2, 0, 16), ("s3", 0, 2, 10), ("s46", 0))
SX("s40", 0, ("s4", 2, 1, 3), ("s3", 2, 0, 4), ("s7", 0))
A("s_cmp_eq_u32 s40, 16\ns_cselect_b32 s97, 1.0, 0")
SX("s98", PB, ("s3", 2, 0, 14))
unit_pre("s97", "s97", "s98")
settags(wD+9, wD+11)
silu_operand(4)
A(f"s_waitcnt vmcnt({OPT['h1at']})")
h1_loads()
A("s_waitcnt vmcnt(2) lgkmcnt(0)\ns_barrier")
unit_go()
A("v_cmp_gt_u32 vcc, 32, v0")
A(f"v_cndmask_b32 v32, v{wD+4}, v{wD}, vcc")
blk_frags(WQL)
pack4(32, wD+8, wD+10, 34)
setexec(0x11111111, 0x11111111)
A(f"buffer_store_dwordx4 v[{wD+8}:{wD+11}], v39, {RW}, s96 offen sc1")
fullexec()
STAMP(6)
A(f"s_branch {sk2}")
A.label(sk)
sk3 = L("ntk")
A(f"s_cmp_lt_u32 s3, 4\ns_cbranch_scc1 {sk3}")
SX("s40", TOK - 16, ("s4", 10), ("s46", 0), ("s3", 2))
A("s_waitcnt vmcnt(0)")
A(f"s_mov_b64 exec, 1\nbuffer_store_dword v{wQD+1}, v0, {RW}, s40 offen sc1")
fullexec()
A.label(sk3)
A(f"s_waitcnt vmcnt({OPT['h1at']})")
h1_loads()
A("s_waitcnt vmcnt(2)")
blk_frags(WQL)
A("s_waitcnt vmcnt(0)")
A.label(sk2)
STAMP(3)
poll(h1_loads, lambda: tagged_chk([16], 33), first_issued=True, first_wait=1, sleep=OPT["s2"])
STAMP(4)
tagged_pack(16)
A("s_waitcnt lgkmcnt(0)")
def blk_mfma(op):
    for t in range(4):
        mfma(wD + 4*t, op, wWF + 4*t, None)
def blk_reduce():
    A(f"v_permlane16_swap_b32 v{wD}, v{wD+4}\nv_permlane16_swap_b32 v{wD+8}, v{wD+12}")
    A(f"v_add_f32 v{wD}, v{wD}, v{wD+4}\nv_add_f32 v{wD+8}, v{wD+8}, v{wD+12}")
    A(f"ds_write2st64_b32 v{wRW}, v{wD}, v{wD+8} offset0:0 offset1:1")
    A("s_cmp_ge_u32 s3, 2")
    A("s_waitcnt lgkmcnt(0)\ns_barrier")
def blk_final():
    for i in range(4):
        A(f"ds_read2st64_b32 v[{32+2*i}:{33+2*i}], v{wRR} offset0:{4*i} offset1:{4*i+2}")
    if STAMPS: A("s_waitcnt lgkmcnt(0)")
    A("s_waitcnt lgkmcnt(2)")
    A("v_add_f32 v32, v32, v33\nv_add_f32 v34, v34, v35\nv_add_f32 v32, v32, v34")
    A("s_waitcnt lgkmcnt(0)")
    A("v_add_f32 v36, v36, v37\nv_add_f32 v38, v38, v39\nv_add_f32 v36, v36, v38\nv_add_f32 v32, v32, v36")
blk_mfma(16)
rowsum([wD, wD+4, wD+8, wD+12])
blk_reduce()
sk = L("nq")
A(f"s_cbranch_scc1 {sk}")
blk_final()
pack4(32, wQD, wQD+2, 33)
setexec(0x11111111, 0x11111111)
A(f"buffer_store_dwordx4 v[{wQD}:{wQD+3}], v{wQA}, {RW}, s56 offen")
fullexec()
A.label(sk)
STAMP(5)
A(f"s_add_u32 m0, s48, {WOL}")
if OPT["tw"] >= 0:
    A("s_cmp_lg_u32 s3, 4\ns_cbranch_scc1 L_trgd")
    SX("s40", TRG, ("s4", 7))
    A(f"s_mov_b32 {sCNT}, 0")
    A.label("L_trg")
    A(f"buffer_load_dword v33, v122, {RW}, s40 offen sc1")
    A("s_waitcnt vmcnt(0)")
    A(f"v_cmp_eq_u32 vcc, {sTAG}, v33")
    A(f"s_bcnt1_i32_b32 s44, vcc_lo\ns_cmp_ge_u32 s44, {2*(16-OPT['tany'])}\ns_cbranch_scc1 L_trgd")
    A(f"s_sleep 1\ns_add_u32 {sCNT}, {sCNT}, 1\ns_cmp_lt_u32 {sCNT}, {OPT['tmax']}\ns_cbranch_scc1 L_trg")
    A.label("L_trgd")
A("s_barrier")
def mc_loads():
    tagged_loads(128, wOF, "s61"); tagged_loads(136, wOF, "s63")
sk = L("nc0"); sk2 = L("nc3")
A(f"s_cmp_ge_u32 s3, 3\ns_cbranch_scc1 {sk}")
mc_loads()
A(f"s_cmp_lg_u32 s58, 0\ns_cbranch_scc1 {sk2}")
A(f"buffer_load_short_d16_hi v{wXA}, v120, {RD}, s42 offen")
A(f"s_branch {sk2}")
A.label(sk)
A(f"s_cmp_lg_u32 s3, 3\ns_cbranch_scc1 {sk2}")
A(f"buffer_load_dword v{vPF}, v{T3}, {RW}, s41 offen sc1")
A.label(sk2)
if R3 & 4: A(f"buffer_load_dword v{vPF}, v117, {RB}, s57 offen")
for u in range(4):
    if u: A(f"s_add_u32 s47, s47, {8*1024-1024}")
    A(f"buffer_load_dwordx4 v{wO}, {RB}, s47 offen offset:{u*1024} {NT} lds")
A(f"buffer_store_dwordx2 v[118:119], v121, {RW}, s99 offen sc1")
sk = L("nc1")
A(f"s_cmp_ge_u32 s3, 3\ns_cbranch_scc1 {sk}")
poll(mc_loads, lambda: tagged_chk([128, 136], 33), first_issued=True, first_wait=5, sleep=2)
tagged_pack(128); tagged_pack(136)
for i in range(2):
    for t in range(2):
        mfma(wD + 8*i + 4*t, 128 + 8*i, tE + 4*t, None)
rowsum([wD, wD+4, wD+8, wD+12])
A(f"v_permlane16_swap_b32 v{wD}, v{wD+4}\nv_permlane16_swap_b32 v{wD+8}, v{wD+12}")
A(f"v_add_f32 v{wGA}, v{wD}, v{wD+4}\nv_add_f32 v{wCB}, v{wD+8}, v{wD+12}")
STAMP(2)
A.label(sk)
wF = 100
sg_load = lambda: A(f"buffer_load_dwordx4 v[16:19], v{T0}, {RW}, s54 offen sc1")
A("s_waitcnt vmcnt(1)")
if OPT["fw"]:
    sk = L("nfw")
    A(f"s_cmp_lg_u32 s3, 7\ns_cbranch_scc1 {sk}")
    SX("s40", TRG + 64, ("s4", 7), ("s5", 2))
    A(f"s_mov_b64 exec, 1\nbuffer_store_dword v{wQD+1}, v0, {RW}, s40 offen")
    fullexec()
    A.label(sk)
blk_frags(WOL)
STAMP(7)
await_any(sg_load, lambda: A(f"v_cmp_eq_u32 vcc, {sTAG}, v19"), OPT["s1"])
poll(sg_load, lambda: tags_chk([17, 19], 33), first_issued=True, sleep=2*OPT["s2"])
o_loads = lambda: tagged_loads(24, T1, "s51")
o_loads()
A(f"v_max_f32_dpp v17, v16, v16 quad_perm:[1,0,3,2] {DPPM}")
A(f"v_max_f32_dpp v17, v17, v17 quad_perm:[2,3,0,1] {DPPM}")
A(f"v_max_f32_dpp v17, v17, v17 row_half_mirror {DPPM}")
A("v_sub_f32 v16, v16, v17\nv_exp_f32 v16, v16\nv_mul_f32 v17, v16, v18")
for m in ("quad_perm:[1,0,3,2]", "quad_perm:[2,3,0,1]", "row_half_mirror"):
    A(f"v_add_f32_dpp v17, v17, v17 {m} {DPPM}")
A(f"v_rcp_f32 v17, v17\nv_mul_f32 v{wF}, v16, v17")
STAMP(8)
A("s_waitcnt lgkmcnt(0)")
poll(o_loads, lambda: tagged_chk([24], 33), first_issued=True, first_wait=0)
STAMP(9)
tagged_pack(24)
blk_mfma(24)
for t in range(4):
    A(f"v_mul_f32_dpp v{wD+4*t}, v{wF}, v{wD+4*t} row_newbcast:0 {DPPM}")
for r in range(1, 4):
    for t in range(4):
        A(f"v_fmac_f32_dpp v{wD+4*t}, v{wF}, v{wD+4*t+r} row_newbcast:{r} {DPPM}")
blk_reduce()
A("s_cbranch_scc1 L_fin")
blk_final()
A(f"v_fma_f32 v32, v32, v{wGA}, v{wXA}")
A(f"v_mul_f32 v36, v32, v{wCB}")
A(f"v_mov_b32_dpp v33, v32 quad_perm:[1,1,3,3] {DPPM}")
A(f"v_mov_b32_dpp v37, v36 quad_perm:[1,1,3,3] {DPPM}")
A("v_cvt_pk_bf16_f32 v34, v32, v33\nv_cvt_pk_bf16_f32 v38, v36, v37")
A(f"v_mov_b32_dpp v35, v34 quad_perm:[2,2,2,2] {DPPM}")
A(f"v_mov_b32_dpp v39, v38 quad_perm:[2,2,2,2] {DPPM}")
setexec(0x11111111, 0x11111111)
A(f"buffer_store_dwordx2 v[38:39], v{wXAD}, {RW}, s52 offen sc1")
A(f"buffer_store_dwordx2 v[38:39], v{wXAD}, {RW}, s101 offen sc1")
A(f"buffer_store_dwordx2 v[34:35], v{wXAD}, {RW}, s60 offen sc1")
A(f"buffer_store_dwordx2 v[34:35], v{wXAD}, {RW}, s100 offen sc1")
STAMP(10)
A("s_branch L_exit")
A.label("L_fin")
A("s_cmp_gt_u32 s3, 2\ns_cbranch_scc1 L_exit")
A(f"v_lshlrev_b32 v32, 7, v0\ns_movk_i32 s40, {TOK}\ns_movk_i32 s41, {VOTE}")
def tv_loads():
    A(f"buffer_load_dwordx4 v[16:19], v32, {RW}, s40 offen sc1")
    A(f"buffer_load_dword v20, v122, {RW}, s41 offen sc1")
def tv_chk():
    A(f"v_xor_b32 v33, {sTAG}, v20\nv_lshlrev_b32 v33, 1, v33")
    for t in (16, 17, 18, 19): A(f"v_bitop3_b32 v33, v{t}, {sTAG}, v33 bitop3:0xbe")
    A("v_cmp_ne_u32 vcc, 0, v33")
poll(tv_loads, tv_chk, sleep=2)
near_bit(20, "s44")
A("s_add_u32 s49, s49, s44\ns_add_u32 s50, s49, 32768\ns_add_u32 s59, s59, s44")
def x4_loads():
    A(f"buffer_load_dwordx4 v[16:19], v{wOF}, {RW}, s49 offen sc1")
    A(f"buffer_load_dwordx4 v[20:23], v{wOF}, {RW}, s50 offen sc1")
def x4_chk():
    A("v_max3_u32 v33, v16, v17, v18\nv_max3_u32 v34, v19, v20, v21\nv_max3_u32 v33, v33, v22, v23\nv_max_u32 v33, v33, v34\nv_cmp_eq_u32 vcc, -1, v33")
poll(x4_loads, x4_chk, sleep=OPT["x4s"])
STAMP(11)
for hp in range(2):
    for t in range(2):
        mfma(wD + 4*t, 16 + 4*hp, tE + 4*t, None if hp == 0 else wD + 4*t)
rowsum([wD, wD+4])
A(f"v_permlane16_swap_b32 v{wD}, v{wD+4}")
A(f"v_add_f32 v42, v{wD}, v{wD+4}\nv_add_f32 v43, v{wD}, v{wD+4}")
A("v_mul_f32 v44, v42, v42")
A("v_permlane16_swap_b32 v43, v44")
A(f"v_add_f32 v{wQD}, v43, v44")
for m in ("quad_perm:[1,0,3,2]", "quad_perm:[2,3,0,1]", "row_half_mirror", "row_mirror"):
    A(f"v_add_f32_dpp v{wQD}, v{wQD}, v{wQD} {m} {DPPM}")
setexec(0x00010001, 0x00010001)
A(f"buffer_store_dword v{wQD}, v113, {RW}, s55 offen")
fullexec()
STAMP(12)
A(f"s_lshr_b32 s40, s44, 6\nv_lshl_add_u32 v{tBP}, v{tOUT}, 1, s40")
SX("s62", 0, ("s44", 3, 0, 0), ("s5", 6))
A(f"ds_bpermute_b32 v42, v{tBP}, v42\nds_bpermute_b32 v{wGA}, v{tBP}, v{wGA}")
A("s_xor_b32 s40, s60, 512\ns_add_u32 s40, s40, s44\nv_mov_b32 v32, 0")
poll(lambda: A(f"buffer_load_dword v16, v32, {RW}, s40 offen sc1"), lambda: A("v_cmp_eq_u32 vcc, -1, v16"), sleep=1)
def y6_loads():
    for i in range(4):
        A(f"buffer_load_dwordx4 v[{16+4*i}:{19+4*i}], v{tL16}, {RW}, s59 offen offset:{1024*i} sc1")
def y6_chk():
    for r in range(4):
        A(f"v_add_f32 v{16+r}, v{16+r}, v{20+r}\nv_add_f32 v{24+r}, v{24+r}, v{28+r}")
    for r in range(4):
        A(f"v_add_f32 v{16+r}, v{16+r}, v{24+r}")
    A("v_permlane32_swap_b32 v16, v17\nv_permlane32_swap_b32 v18, v19")
    A("v_add_f32 v16, v16, v17\nv_add_f32 v18, v18, v19")
    A("v_permlane16_swap_b32 v16, v18")
    A("v_add_f32 v16, v16, v18")
    A("v_cmp_u_f32 vcc, v16, v16")
if OPT["ysent"]:
    await_any(lambda: A(f"buffer_load_dword v16, v{tL16}, {RW}, s59 offen sc1"), lambda: A("v_cmp_o_f32 vcc, v16, v16"), 2)
if OPT["ysent"] == 2:
    poll(lambda: A(f"buffer_load_dword v16, v{tL16}, {RW}, s59 offen sc1"), lambda: A("v_cmp_u_f32 vcc, v16, v16"), first_issued=True)
poll(y6_loads, y6_chk, sleep=OPT["y6s"])
STAMP(13)
for m in ("row_ror:8", "row_ror:4", "row_ror:2"):
    A(f"v_add_f32_dpp v16, v16, v16 {m} {DPPM}")
A("s_waitcnt lgkmcnt(0)")
setexec(0x00030003, 0x00030003)
A(f"v_fma_f32 v16, v16, v{wGA}, v42")
A("v_cvt_pk_bf16_f32 v16, v16, v16")
A(f"buffer_store_short v16, v{tOUT}, {RF}, s62 offen")
A("s_cmp_lg_u32 s2, 128\ns_cbranch_scc1 L_exit")
A(f"s_sub_u32 s40, {sTAG}, {TAGC-1:#x}")
A("v_mov_b32 v17, s40\nv_mov_b32 v18, 0")
A("s_mov_b64 exec, 1")
A(f"buffer_store_dword v17, v18, {RW}, 0 offen sc1")
A("s_branch L_exit")
A.seg(40)
A.label("L_exit")
if STAMPS == 1:
    STAMP(15)
    A("s_waitcnt lgkmcnt(0)")
    A("s_mov_b64 exec, 1")
    SX("s40", DBG, ("s2", 9), ("s3", 6))
    A("v_mov_b32 v0, 0")
    for q in range(4):
        for i in range(4):
            A(f"v_mov_b32 v{4+4*q+i}, s{64+2*(4*q+i)}")
        A(f"buffer_store_dwordx4 v[{4+4*q}:{7+4*q}], v0, {RW}, s40 offen offset:{16*q}")
if STAMPS == 5:
    STAMP(15)
    A("s_waitcnt lgkmcnt(0)")
    A("s_mov_b64 exec, 1")
    SX("s40", DBG, ("s2", 6), ("s3", 3))
    A(f"v_mov_b32 v0, 0\nv_mov_b32 v4, s64\nv_mov_b32 v5, s{64+2*OPT['db']}")
    A(f"buffer_store_dwordx2 v[4:5], v0, {RW}, s40 offen sc1")
    SX("s40", 0, ("s2", 3), ("s3", 0))
    A(f"s_cmp_lg_u32 s40, {129*8+2}\ns_cbranch_scc1 L_end")
    A.label("L_w3")
    A("s_memrealtime s[42:43]\ns_waitcnt lgkmcnt(0)\ns_sub_u32 s41, s42, s94\ns_cmp_lt_u32 s41, 300\ns_cbranch_scc1 L_w3")
    fullexec()
    A("v_mbcnt_lo_u32_b32 v1, -1, 0\nv_mbcnt_hi_u32_b32 v1, -1, v1\nv_lshlrev_b32 v1, 4, v1")
    A(f"s_mov_b32 s40, {DBG + OPT['drole']*8192}")
    for i in range(8):
        if i == 4: A("s_add_u32 s40, s40, 4096")
        A(f"buffer_load_dwordx4 v[{8+4*i}:{11+4*i}], v1, {RW}, s40 offen offset:{(i%4)*1024} sc1")
    A("s_waitcnt vmcnt(0)")
    for i in range(1, 16):
        A(f"v_min_u32 v8, v8, v{8+2*i}\nv_max_u32 v9, v9, v{9+2*i}")
    A("v_readlane_b32 s44, v8, 0\nv_readlane_b32 s45, v9, 0")
    for l in range(1, 64):
        A(f"v_readlane_b32 s46, v8, {l}\nv_readlane_b32 s47, v9, {l}\ns_nop 3\ns_min_u32 s44, s44, s46\ns_max_u32 s45, s45, s47")
    A(f"s_sub_u32 s40, s45, s44\ns_mul_i32 s40, s40, {OPT['dm']}\ns_add_u32 s40, s40, 600\ns_min_u32 s40, s40, 30000")
    A.label("L_spin")
    A("s_memrealtime s[42:43]\ns_waitcnt lgkmcnt(0)\ns_sub_u32 s41, s42, s94\ns_cmp_lt_u32 s41, s40\ns_cbranch_scc1 L_spin")
if STAMPS == 3:
    STAMP(15)
    A("s_waitcnt lgkmcnt(0)")
    SX("s40", 0, ("s2", 3), ("s3", 0))
    A(f"s_cmp_lg_u32 s40, {OPT['dwg']*8 + OPT['dwv']}\ns_cbranch_scc1 L_end")
    A(f"s_sub_u32 s40, s{64+2*OPT['db']}, s{64+2*OPT['da']}")
    A(f"s_mul_i32 s40, s40, {OPT['dm']}")
    A("s_min_u32 s40, s40, 30000")
    A.label("L_spin")
    A("s_memrealtime s[42:43]\ns_waitcnt lgkmcnt(0)\ns_sub_u32 s41, s42, s94\ns_cmp_lt_u32 s41, s40\ns_cbranch_scc1 L_spin")
A.label("L_end")
A("s_endpgm")
A.label("L_codeend")
A.raw(f".fill (16384 - (L_codeend - {NAME}_kernel)) / 4, 4, 0xbf810000")
A.raw(f""".section .rodata,"a"
.p2align 6
.amdhsa_kernel {NAME}_kernel
  .amdhsa_next_free_vgpr 152
  .amdhsa_next_free_sgpr 102
  .amdhsa_accum_offset 152
  .amdhsa_group_segment_fixed_size 0
  .amdhsa_kernarg_size 112
  .amdhsa_user_sgpr_count 2
  .amdhsa_user_sgpr_kernarg_segment_ptr 1
  .amdhsa_system_sgpr_workgroup_id_x 1
  .amdhsa_float_denorm_mode_32 3
.end_amdhsa_kernel""")
sys.stdout.write(A.text())
sys.stderr.write(f"instrs={A.ninstr} nops={A.nops}\n")
```

```python
import sys, math, struct
sys.path.insert(0, "work")
from asmlib import Asm

NAME = "adaLN_cond__sliding_block_cached__glu_gated_reglu__decode"
OPT = dict(stamps=0, nt="nt", limit=20000, refresh=255, smallnt="", s1=6, s2=1, sent=1, rot=7, r3=7, h1at=1, nv1=3,
           drole=0, dwg=10, dwv=1, da=0, db=15, dm=20, nore=0, reps=3, dtouch=0, ptk=1, ptw=1, clrpre=1, sgt=1, woe=8, dnearly=0, force=-1, tw=-1, tmax=12, tany=0, fw=0, fmax=10, fany=0, flate=0, usearly=0, y6s=0, x4s=0, ysent=1)
for a in sys.argv[1:]:
    k, v = a.split("=")
    OPT[k] = int(v) if v.lstrip("-").isdigit() else v
STAMPS = OPT["stamps"]; NT = OPT["nt"] if OPT["nt"] != "-" else ""
LIMIT = OPT["limit"]; REFRESH = OPT["refresh"]; SNT = OPT["smallnt"]

def f32(x): return "0x%08x" % struct.unpack("<I", struct.pack("<f", x))[0]

TRG = 0x1000; VOTE = 0x1800; PROBE = 0x64000; SG = 0x2000; TOK = 0x4000; H1G = 0x8000; QG = 0x10000; MGT = 0x20000; OG = 0x80000
X4 = 0x40000; Y4 = 0x50000; ST5 = 0x60000
G5 = 0x100000
Y6 = 0x180000; DBG = 0x400000
WS_BYTES = 0x800000
TAGC = 0x9E3779B9
VREG = 65536; PA = 131072; XL = 147456; QL = XL + 1024; PL = QL + 2048; MISC = PL + 2048
FG = 0; FD = 32768; YL0 = 131072
WQL = 0; WOL = 32768; PB = 65536; RED = XL + 1024
LDS_BYTES = MISC + 256
C1 = 128 ** -0.5 * math.log2(math.e)

A = Asm()
hdr = open(f"cdna_kernels/{NAME}.s.ref").read().split("\n")
for ln in hdr:
    if ln.startswith("; @launch"):
        A.raw(f"; @launch grid=(256,1,1) block=(512,1,1) lds={LDS_BYTES}")
        break
    A.raw(ln)
A.raw('.amdgcn_target "amdgcn-amd-amdhsa--gfx950"')
A.raw(f".text\n.globl {NAME}_kernel\n.p2align 8\n.type {NAME}_kernel,@function\n{NAME}_kernel:")

RA, RB, RW, RC, RD, RE, RF = "s[8:11]", "s[12:15]", "s[16:19]", "s[20:23]", "s[24:27]", "s[28:31]", "s[32:35]"
sTAG, sCNT, sT = "s36", "s37", "s45"
def STAMP(n):
    if STAMPS:
        A(f"s_memrealtime s[{64+2*n}:{65+2*n}]")
DPPM = "row_mask:0xf bank_mask:0xf"
lbl = [0]
def L(p):
    lbl[0] += 1
    return f"L_{p}_{lbl[0]}"
def srd(r, nbytes):
    b = int(r[2:r.index(":")])
    A((f"s_movk_i32 s{b+2}, {nbytes}" if nbytes < 32768 else f"s_mov_b32 s{b+2}, {nbytes}") + f"\ns_mov_b32 s{b+3}, s11")
def kload(r, off):
    b = int(r[2:r.index(":")])
    A(f"s_load_dwordx2 s[{b}:{b+1}], s[0:1], {off}")

def SX(dst, const, *terms):
    first = True
    for t in terms:
        src, rs, w, ls = (t[0], 0, 0, t[1]) if len(t) == 2 else t
        d = dst if first else sT
        cur = src
        if w:
            if rs == 0: A(f"s_and_b32 {d}, {cur}, {(1<<w)-1}")
            else: A(f"s_bfe_u32 {d}, {cur}, {(w<<16)|rs:#x}")
            cur = d
        elif rs:
            A(f"s_lshr_b32 {d}, {cur}, {rs}"); cur = d
        if first:
            if ls: A(f"s_lshl_b32 {d}, {cur}, {ls}")
            elif cur != d: A(f"s_mov_b32 {d}, {cur}")
        else:
            if 1 <= ls <= 4: A(f"s_lshl{ls}_add_u32 {dst}, {cur}, {dst}")
            else:
                if ls: A(f"s_lshl_b32 {sT}, {cur}, {ls}"); cur = sT
                A(f"s_add_u32 {dst}, {dst}, {cur}")
        first = False
    if const: A(f"s_add_u32 {dst}, {dst}, {const:#x}")
def VX(dst, tmp, add, *terms):
    first = True
    for rs, w, ls in terms:
        if rs == 4 and w == 2: cur = "v1"
        elif rs == 0 and w == 4: cur = "v2"
        elif rs == 0 and w == 6: cur = "v0"
        else:
            d = f"v{dst}" if first else f"v{tmp}"
            if rs + w == 6: A(f"v_lshrrev_b32 {d}, {rs}, v0")
            elif rs == 0: A(f"v_and_b32 {d}, {(1<<w)-1}, v0")
            else: A(f"v_bfe_u32 {d}, v0, {rs}, {w}")
            cur = d
        if first:
            if ls: A(f"v_lshlrev_b32 v{dst}, {ls}, {cur}")
            elif cur != f"v{dst}": A(f"v_mov_b32 v{dst}, {cur}")
        else:
            if ls: A(f"v_lshl_or_b32 v{dst}, {cur}, {ls}, v{dst}")
            else: A(f"v_or_b32 v{dst}, {cur}, v{dst}")
        first = False
    if add: A(f"v_add_u32 v{dst}, {add}, v{dst}")

def cont(n):
    t = L("c")
    A(f"s_branch {t}")
    A.seg(n); A.label(t)
def await_any(load, valid, sleep):
    if not OPT["sent"]: return
    top, done = L("aw"), L("awd")
    A(f"s_mov_b32 {sCNT}, 0")
    A.label(top)
    load()
    A("s_waitcnt vmcnt(0)")
    valid()
    A(f"s_cbranch_vccnz {done}")
    A(f"s_sleep {sleep}\ns_add_u32 {sCNT}, {sCNT}, 1\ns_cmp_lt_u32 {sCNT}, 64\ns_cbranch_scc1 {top}")
    A.label(done)
def poll(loads, check, first_issued=False, first_wait=0, sleep=0):
    again, top, chk, done = L("again"), L("poll"), L("chk"), L("got")
    A(f"s_mov_b32 {sCNT}, 0")
    if first_issued:
        if first_wait: A(f"s_waitcnt vmcnt({first_wait})")
        A(f"s_branch {chk if first_wait else top + 'w'}")
    else:
        A(f"s_branch {top}")
    A.label(again)
    if sleep: A(f"s_sleep {sleep}")
    A(f"s_add_u32 {sCNT}, {sCNT}, 1")
    A(f"s_and_b32 {sT}, {sCNT}, {REFRESH}\ns_cbranch_scc1 {top}")
    A("buffer_wbl2 sc1")
    A(f"s_cmp_ge_u32 {sCNT}, {LIMIT}\ns_cbranch_scc1 {done}")
    A.label(top)
    loads()
    A.label(top + "w")
    A("s_waitcnt vmcnt(0)")
    A.label(chk)
    check()
    A(f"s_cbranch_vccnz {again}")
    A.label(done)
def chk_empty4(r, tmp):
    A(f"v_max3_u32 v{tmp}, v{r}, v{r+1}, v{r+2}\nv_max_u32 v{tmp}, v{tmp}, v{r+3}\nv_cmp_eq_u32 vcc, -1, v{tmp}")
def pack4(src, pk, pk2, tmp):
    A(f"v_mov_b32_dpp v{tmp}, v{src} quad_perm:[1,1,3,3] {DPPM}")
    A(f"v_cvt_pk_bf16_f32 v{pk}, v{src}, v{tmp}")
    A(f"v_mov_b32_dpp v{pk2}, v{pk} quad_perm:[2,2,2,2] {DPPM}")
def setexec(lo, hi):
    A(f"s_mov_b32 exec_lo, {lo:#x}\ns_mov_b32 exec_hi, {hi:#x}")
def fullexec():
    A("s_mov_b64 exec, -1")
def mfma(d, a, b, c):
    cc = "0" if c is None else f"v[{c}:{c+3}]"
    A(f"v_mfma_f32_16x16x32_bf16 v[{d}:{d+3}], v[{a}:{a+3}], v[{b}:{b+3}], {cc}")
def rowsum(ds):
    for d in ds: A(f"v_add_f32 v{d}, v{d}, v{d+1}\nv_add_f32 v{d+2}, v{d+2}, v{d+3}")
    for d in ds: A(f"v_add_f32 v{d}, v{d}, v{d+2}")
wM, wQ, wO, wTR, T0, T1, T2, T3, vPF = 3, 4, 5, 6, 7, 8, 9, 10, 11
wC = 12; wXS = 13; wX = 16; wXO = 24; wWF = 40; wD = 56
def tr_setup():
    VX(wTR, 32, 0, (2, 4, 7), (3, 2, 5), (0, 2, 3))
    SX("s40", XL, ("s3", 0, 2, 8))
    VX(82, 32, "s40", (0, 6, 2))
    VX(83, 32, "s40", (2, 1, 7), (4, 2, 3))
def silu_operand(cnt):
    A(f"s_waitcnt vmcnt({cnt})")
    A(f"v_lshlrev_b32 v32, 16, v{wC}\nv_and_b32 v33, 0xffff0000, v{wC}")
    A(f"v_mul_f32 v34, {f32(-math.log2(math.e))}, v32\nv_mul_f32 v35, {f32(-math.log2(math.e))}, v33")
    A("v_exp_f32 v34, v34\nv_exp_f32 v35, v35")
    A("v_add_f32 v34, 1.0, v34\nv_add_f32 v35, 1.0, v35")
    A("v_rcp_f32 v34, v34\nv_rcp_f32 v35, v35")
    A("v_mul_f32 v32, v32, v34\nv_mul_f32 v33, v33, v35")
    A("v_cvt_pk_bf16_f32 v32, v32, v33")
    A("ds_write_b32 v82, v32")
    A(f"ds_read2_b64 v[{wXO}:{wXO+3}], v83 offset0:0 offset1:4\nds_read2_b64 v[{wXO+4}:{wXO+7}], v83 offset0:8 offset1:12")
def unit_pre(s_c0, s_c1, base):
    SX("s40", 0, ("s3", 0, 2, 5)); A(f"v_xor_b32 v112, s40, v{wTR}\nv_add_u32 v112, {base}, v112")
    for i in range(4):
        A(f"v_mov_b32 v{wD+i}, {s_c0}\nv_mov_b32 v{wD+4+i}, {s_c1}")
def unit_go():
    if STAMPS: A("s_waitcnt lgkmcnt(0)")
    for k in range(2):
        for seg in range(2):
            for h in range(2):
                r = wWF + seg*8 + k*4 + h*2
                A(f"ds_read_b64_tr_b16 v[{r}:{r+1}], v112 offset:{seg*8192 + k*4096 + h*2048}")
    for k in range(2):
        for seg in range(2):
            A(f"s_waitcnt lgkmcnt({6 - 4*k - 2*seg})")
            mfma(wD + 4*seg, wXO + 4*k, wWF + seg*8 + k*4, wD + 4*seg)
def tagged_loads(r, va, so):
    A(f"buffer_load_dwordx4 v[{r}:{r+3}], v{va}, {RW}, {so} offen sc1")
    A(f"buffer_load_dwordx4 v[{r+4}:{r+7}], v{va}, {RW}, {so} offen offset:1024 sc1")
def tags_chk(tags, tmp):
    if len(tags) == 1:
        A(f"v_cmp_ne_u32 vcc, {sTAG}, v{tags[0]}"); return
    A(f"v_xor_b32 v{tmp}, {sTAG}, v{tags[0]}")
    for t in tags[1:]:
        A(f"v_bitop3_b32 v{tmp}, v{t}, {sTAG}, v{tmp} bitop3:0xbe")
    A(f"v_cmp_ne_u32 vcc, 0, v{tmp}")
def tagged_chk(rs, tmp):
    tags_chk([r + i for r in rs for i in (1, 3, 5, 7)], tmp)
def tagged_pack(r):
    A(f"v_mov_b32 v{r+1}, v{r+2}\nv_mov_b32 v{r+2}, v{r+4}\nv_mov_b32 v{r+3}, v{r+6}")
def near_bit(r, dst):
    A(f"s_xor_b32 {dst}, {sTAG}, 0x80000000")
    A(f"v_cmp_eq_u32 vcc, {dst}, v{r}")
    A(f"s_bcnt1_i32_b32 {sT}, vcc_lo")
    A(f"v_cmp_eq_u32 vcc, {sTAG}, v{r}")
    A(f"s_bcnt1_i32_b32 {dst}, vcc_lo")
    A(f"s_cmp_gt_u32 {sT}, {dst}\ns_cselect_b32 {dst}, 4, 0")
    if OPT["force"] >= 0: A(f"s_mov_b32 {dst}, {4*OPT['force']}")
    A(f"s_xor_b32 {dst}, {dst}, s2\ns_and_b32 {dst}, {dst}, 4\ns_lshl_b32 {dst}, {dst}, 11")
def settags(*regs):
    for r in regs: A(f"v_mov_b32 v{r}, {sTAG}")

STAMP(0)
A("s_cmp_ge_u32 s2, 256\ns_cbranch_scc1 L_end")
A("s_cmp_ge_u32 s2, 128\ns_cselect_b32 s40, 24, 8\ns_cselect_b32 s41, 0, 16")
A("s_load_dwordx2 s[8:9], s[0:1], s40")
kload(RC, 80)
A("s_load_dwordx2 s[24:25], s[0:1], s41")
kload(RE, 72); kload(RW, 104)
A("v_readfirstlane_b32 s3, v0")
sk = L("npf")
A(f"s_cbranch_scc1 {sk}")
A("s_getpc_b64 s[38:39]")
A(f"v_and_b32 v{vPF}, 0x1c0, v0\ns_lshl_b32 s40, s2, 7\ns_and_b32 s38, s38, 0xffffff00\ns_and_b32 s40, s40, 0x3c00\nv_lshl_or_b32 v{vPF}, v{vPF}, 1, s40")
A(f"global_load_dword v{vPF}, v{vPF}, s[38:39]")
A.label(sk)
A("v_and_b32 v0, 63, v0")
A("s_mov_b32 s11, 0x00020000")
A("v_lshrrev_b32 v1, 4, v0\nv_and_b32 v2, 15, v0")
A(f"s_add_u32 s4, s2, {OPT['rot']}\ns_and_b32 s4, s4, 7\ns_bfe_u32 s6, s2, 0x10006\ns_bfe_u32 s7, s2, 0x30003")
A(f"v_lshlrev_b32 v{T3}, 1, v1\nv_xor_b32 v{T3}, v2, v{T3}\nv_lshlrev_b32 v{T3}, 4, v{T3}")
A("s_mov_b32 s27, s11")
A(f"v_and_b32 v{T1}, 0x70, v{T3}\nv_lshrrev_b32 v{T0}, 3, v0")
A("s_cmp_lt_u32 s2, 128\ns_cbranch_scc1 L_KV")
def ids2():
    A("s_lshr_b32 s3, s3, 6\ns_bfe_u32 s5, s2, 0x40003\ns_lshl1_add_u32 s58, s4, s6")
    if STAMPS:
        for i in range(2, 16): A(f"s_mov_b32 s{64+2*i}, 0")
    srd(RW, WS_BYTES)

A.seg(3); A.label("L_KV")
vE, vO, vQO = 120, 121, 122
vKF = 16
vVF = 48
vQF = 80
vS = 96
vQ = 100
vP = 104
vKA = 108
vOA = 108
vST = 144
vOAD, vSAD = 116, 117
wG, wDO, fMF = 124, 125, 123
vMF = 128
A(f"v_lshl_or_b32 v{vE}, v1, 8, v{T3}\nv_xor_b32 v{vO}, 0x80, v{vE}")
A("s_lshl_b32 s43, s3, 7\ns_mov_b32 s10, 33554432\ns_mov_b32 s26, s10")
SX("s56", 6144*256, ("s6", 24), ("s4", 21), ("s7", 16), ("s43", 0))
A(f"s_add_u32 s57, s56, 4096\ns_add_u32 m0, s43, {VREG}")
def kv_dma(u):
    r = RA if u < 8 else RD
    A(f"buffer_load_dwordx4 v{vE if u%2==0 else vO}, {r}, {'s56' if u%8 < 4 else 's57'} offen offset:{(u%4)*1024} {NT} lds")
SX("s40", 0, ("s2", 4, 0, 9), ("s3", 0))
A(f"s_cmp_eq_u32 s40, {7*64}")
A("s_waitcnt lgkmcnt(0)")
A("s_cbranch_scc1 L_meas")
A.label("L_go")
kv_dma(8)
A("s_mov_b32 m0, s43")
A(f"s_load_dword {sTAG}, s[16:17], 0")
for u in range(16):
    if u in (4, 12): A("s_add_u32 m0, m0, 4096")
    if u == 8:
        A(f"s_add_u32 m0, s43, {VREG}")
        continue
    kv_dma(u)
cont(30)
ids2()
if STAMPS: A("s_mov_b32 s66, 0")
STAMP(2)
if OPT["tw"] >= 0 or OPT["fw"]:
    SX("s100", TRG + 64, ("s4", 7))
    A("v_lshlrev_b32 v149, 2, v2")
    sk = L("ntp")
    A(f"s_cmp_lg_u32 s3, 0\ns_cbranch_scc1 {sk}")
    A(f"buffer_load_dword v136, v149, {RW}, s100 offen sc1")
    A.label(sk)
if OPT["tw"] >= 0:
    sk = L("ntr")
    A(f"s_cmp_lg_u32 s3, {OPT['tw']}\ns_cbranch_scc1 {sk}")
    SX("s40", TRG, ("s4", 7), ("s5", 2))
    A(f"s_waitcnt lgkmcnt(0)\ns_add_u32 s41, {sTAG}, {TAGC:#x}\nv_mov_b32 v136, s41")
    A(f"s_mov_b64 exec, 1\nbuffer_store_dword v136, v0, {RW}, s40 offen")
    fullexec()
    A.label(sk)
SX("s63", 0, ("s4", 4), ("s5", 0))
SX("s96", G5, ("s63", 10))
SX("s98", ST5, ("s4", 7))
A(f"v_lshlrev_b32 v{vQO}, 4, v0\nv_lshlrev_b32 v148, 7, v0\ns_movk_i32 s99, {TOK}")
kload(RC, 48); kload(RB, 56); kload(RE, 64)
A(f"v_mul_u32_u24 v{wG}, 3584, v{T0}\nv_add_u32 v{wG}, v{wG}, v{T1}\nv_lshl_or_b32 v{wDO}, v{T0}, 10, v{T1}")
srd(RC, 1835008); srd(RB, 1835008); srd(RE, 1835008)
SX("s49", 0, ("s63", 0, 2, 7), ("s3", 4))
A("s_mul_i32 s49, s49, 3584")
SX("s50", 0, ("s63", 2, 0, 7))
A(f"s_add_u32 s49, s49, s50\ns_add_u32 s50, s49, {8*3584-1024}")
SX("s51", 0, ("s63", 14), ("s3", 7))
A(f"s_add_u32 s52, s51, {8*1024-1024}\ns_lshl_b32 s42, s3, 11")
SX("s44", QG, ("s58", 12), ("s3", 10))
VX(fMF, T2, 0, (0, 3, 7), (3, 1, 6), (4, 2, 4))
SX("s59", MGT + 2*32768, ("s63", 0, 2, 13), ("s3", 0, 2, 11))
SX("s40", 0, ("s3", 2, 0, 15)); A("s_sub_u32 s59, s59, s40")
VX(T2, 0, 0, (0, 3, 1))
A(f"v_xor_b32 v{T2}, v1, v{T2}\nv_lshlrev_b32 v{T2}, 4, v{T2}\nv_lshl_or_b32 v{T2}, v2, 8, v{T2}")
A(f"v_add_u32 v{vKA}, s43, v{T2}")
for t in range(1, 4):
    A(f"v_xor_b32 v{vKA+t}, {t*64:#x}, v{vKA}")
vQW, vQR, vVR, vMX, vPW, vPR, vMW = 3, 4, 5, 6, 113, 13, 112
SX("s40", QL, ("s3", 5))
VX(vQW, T2, "s40", (1, 4, 7), (5, 1, 4), (0, 1, 3))
VX(vQR, T2, QL, (4, 2, 7), (0, 3, 4))
A(f"v_bfe_u32 v{T0}, v0, 2, 3\nv_xor_b32 v{T0}, s3, v{T0}")
VX(vVR, T2, VREG, (2, 4, 8), (0, 2, 3))
A(f"v_lshl_or_b32 v{vVR}, v{T0}, 5, v{vVR}")
VX(vMX, T2, MISC, (0, 2, 5))
A(f"s_lshl_b32 s40, s3, 2\nv_add_u32 v{vMW}, s40, v{vMX}")
VX(vPR, T2, PL, (4, 2, 6), (0, 2, 4))
A(f"s_lshl_b32 s40, s3, 8\nv_and_b32 v{T2}, 12, v0\nv_add3_u32 v{vPW}, s40, v{vPR}, v{T2}")
A("s_mov_b32 s60, 0xf0f0f0f0\ns_mov_b32 s61, s60\ns_mov_b32 s46, 0xff00ff00\ns_mov_b32 s47, s46")
VX(vOAD, T2, 0, (0, 2, 13), (4, 2, 4))
SX("s53", OG, ("s4", 15), ("s3", 10), ("s5", 6))
VX(vSAD, T2, 0, (0, 2, 8))
SX("s54", SG, ("s4", 10), ("s5", 4))
A(f"s_mov_b32 s55, {f32(C1)}")
A("s_waitcnt vmcnt(7) lgkmcnt(0)")
A(f"s_add_u32 {sTAG}, {sTAG}, {TAGC:#x}")
for T in range(2):
    for t in range(4):
        r = vKF + (T*4+t)*4
        A(f"ds_read_b128 v[{r}:{r+3}], v{vKA+t} offset:{T*4096}")
settags(vP+1, vP+3, vST+1, vST+3)
if OPT["ptk"]:
    sk = L("npt")
    A(f"s_cmp_lg_u32 s3, 5\ns_cbranch_scc1 {sk}")
    A("s_mov_b64 exec, 1")
    for r, so in ((RC, "s49"), (RB, "s49"), (RE, "s51")):
        A(f"buffer_load_dword v137, v0, {r}, {so} offen")
    fullexec()
    A.label(sk)
A(f"v_lshlrev_b32 v150, 2, v2\ns_movk_i32 s101, {VOTE}")
sk = L("nqp")
A(f"s_cmp_ge_u32 s3, 4\ns_cbranch_scc1 {sk}")
poll(lambda: A(f"buffer_load_dwordx4 v[{vQ}:{vQ+3}], v{vQO}, {RW}, s44 offen sc1"), lambda: tags_chk([vQ+1, vQ+3], T0), sleep=OPT['s2'])
STAMP(4)
A(f"v_mov_b32 v{vQ+1}, v{vQ+2}\nds_write_b64 v{vQW}, v[{vQ}:{vQ+1}]")
A.label(sk)
A("s_waitcnt vmcnt(0) lgkmcnt(0)\ns_barrier")
STAMP(5)
if STAMPS: A("s_waitcnt lgkmcnt(0)")
for t in range(4):
    A(f"ds_read_b128 v[{vQF+4*t}:{vQF+4*t+3}], v{vQR} offset:{t*512}")
def v_tr(kb, T):
    r = vVF + kb*4 + T*2
    A(f"ds_read_b64_tr_b16 v[{r}:{r+1}], v{vVR} offset:{(32*kb+16*T)*256}")
NV1 = OPT["nv1"]
for t in range(4):
    A(f"s_waitcnt lgkmcnt({3-t})")
    for T in range(2):
        mfma(vS + 4*T, vKF + (T*4+t)*4, vQF + 4*t, None if t == 0 else vS + 4*T)
for kb in range(NV1):
    v_tr(kb, 0); v_tr(kb, 1)
def mf_loads():
    tagged_loads(vMF, fMF, "s59")
mf_loads()
A(f"buffer_load_dword v151, v150, {RW}, s101 offen sc1")
def dn_dma():
    A(f"s_add_u32 m0, s42, {FD}")
    A(f"buffer_load_dwordx4 v{wDO}, {RE}, s51 offen {NT} lds")
    A(f"buffer_load_dwordx4 v{wDO}, {RE}, s52 offen offset:1024 {NT} lds")
DE = OPT["dnearly"]
if DE == 1: dn_dma()
if OPT["dtouch"]:
    A(f"v_lshlrev_b32 v137, 10, v2\nbuffer_load_dword v137, v137, {RE}, s51 offen")
for i in range(8):
    A(f"v_add_f32_dpp v{vS+i}, v{vS+i}, v{vS+i} row_ror:4 {DPPM}")
A(f"v_max3_f32 v{T0}, v{vS}, v{vS+1}, v{vS+2}\nv_max3_f32 v{T2}, v{vS+3}, v{vS+4}, v{vS+5}")
A(f"v_max3_f32 v{T0}, v{T0}, v{vS+6}, v{vS+7}\nv_max_f32 v{T3}, v{T0}, v{T2}\nv_max_f32 v{T0}, v{T0}, v{T2}")
A(f"v_cndmask_b32 v{vS}, v{vS}, v{vS+2}, s[60:61]\nv_cndmask_b32 v{vS+1}, v{vS+1}, v{vS+3}, s[60:61]")
A(f"v_permlane32_swap_b32 v{T0}, v{T3}")
A(f"v_max_f32 v{T2}, v{T0}, v{T3}\nv_max_f32 v{T0}, v{T0}, v{T3}")
A(f"v_cndmask_b32 v{vS+4}, v{vS+4}, v{vS+6}, s[60:61]\nv_cndmask_b32 v{vS+5}, v{vS+5}, v{vS+7}, s[60:61]")
A(f"v_permlane16_swap_b32 v{T0}, v{T2}")
A(f"v_max_f32 v{T0}, v{T0}, v{T2}")
A(f"ds_write_b32 v{vMW}, v{T0}")
A(f"v_cndmask_b32 v{vS}, v{vS}, v{vS+4}, s[46:47]\nv_cndmask_b32 v{vS+1}, v{vS+1}, v{vS+5}, s[46:47]")
A(f"v_mul_f32 v{vS}, s55, v{vS}\nv_mul_f32 v{vS+1}, s55, v{vS+1}")
STAMP(14)
sk = L("nlt")
A(f"s_cmp_lg_u32 s3, 7\ns_cbranch_scc1 {sk}")
A(f"buffer_load_dwordx4 v[136:139], v{vQO}, {RW}, s96 offen sc1")
A(f"buffer_load_dword v136, v{wDO}, {RW}, s98 offen sc1")
A(f"buffer_load_dwordx4 v[140:143], v148, {RW}, s99 offen sc1")
A.label(sk)
A("s_waitcnt lgkmcnt(0)\ns_barrier")
A(f"ds_read_b128 v[{vQF}:{vQF+3}], v{vMX}\nds_read_b128 v[{vQF+4}:{vQF+7}], v{vMX} offset:16")
for kb in range(NV1, 8):
    v_tr(kb, 0); v_tr(kb, 1)
A(f"s_waitcnt lgkmcnt({2*(8 - NV1)})")
A(f"v_max3_f32 v{T0}, v{vQF}, v{vQF+1}, v{vQF+2}\nv_max3_f32 v{T2}, v{vQF+3}, v{vQF+4}, v{vQF+5}")
A(f"v_max3_f32 v{T0}, v{T0}, v{vQF+6}, v{vQF+7}\nv_max_f32 v{T0}, v{T0}, v{T2}")
A(f"v_fma_f32 v{vS}, -v{T0}, s55, v{vS}\nv_fma_f32 v{vS+1}, -v{T0}, s55, v{vS+1}")
A(f"v_exp_f32 v{vS}, v{vS}\nv_exp_f32 v{vS+1}, v{vS+1}")
A(f"v_mul_f32 v{vST}, s55, v{T0}")
A(f"v_cvt_pk_bf16_f32 v{T1}, v{vS}, v{vS+1}")
A(f"v_add_f32 v{T0}, v{vS}, v{vS+1}")
A(f"ds_write_b32 v{vPW}, v{T1}")
A(f"v_add_f32_dpp v{T0}, v{T0}, v{T0} row_ror:4 {DPPM}")
A(f"v_add_f32_dpp v{T3}, v{T0}, v{T0} row_ror:8 {DPPM}\nv_add_f32_dpp v{T0}, v{T0}, v{T0} row_ror:8 {DPPM}")
A(f"v_permlane32_swap_b32 v{T0}, v{T3}")
A(f"v_add_f32 v{T2}, v{T0}, v{T3}\nv_add_f32 v{T0}, v{T0}, v{T3}")
A(f"v_permlane16_swap_b32 v{T0}, v{T2}")
A(f"v_add_f32 v{T0}, v{T0}, v{T2}")
A(f"ds_write_b32 v{vMW}, v{T0} offset:128")
if DE == 2: dn_dma()
A("s_waitcnt lgkmcnt(0)\ns_barrier")
STAMP(3)
if STAMPS: A("s_waitcnt lgkmcnt(0)")
sk = L("nst"); sk2 = L("nsu")
A(f"s_cmp_lg_u32 s3, 0\ns_cbranch_scc1 {sk}")
A(f"ds_read_b128 v[{vQF}:{vQF+3}], v{vMX} offset:128\nds_read_b128 v[{vQF+4}:{vQF+7}], v{vMX} offset:144")
A.label(sk)
for kb in range(8):
    r = vKF + kb*4
    A(f"ds_read_b128 v[{r}:{r+3}], v{vPR} offset:{kb*256}")
A(f"s_cbranch_scc1 {sk2}")
A("s_waitcnt lgkmcnt(8)")
rowsum([vQF, vQF+4])
A(f"v_add_f32 v{vST+2}, v{vQF}, v{vQF+4}")
A("s_mov_b64 exec, 15")
A(f"buffer_store_dwordx4 v[{vST}:{vST+3}], v{vSAD}, {RW}, s54 offen")
fullexec()
A.label(sk2)
for kb in range(8):
    A(f"s_waitcnt lgkmcnt({7-kb})")
    mfma(vOA, vVF + kb*4, vKF + kb*4, None if kb == 0 else vOA)
setexec(0x000f000f, 0x000f000f)
A(f"s_add_u32 m0, s42, {FG}")
A(f"v_cvt_pk_bf16_f32 v{vP}, v{vOA}, v{vOA+1}\nv_cvt_pk_bf16_f32 v{vP+2}, v{vOA+2}, v{vOA+3}")
A(f"buffer_store_dwordx4 v[{vP}:{vP+3}], v{vOAD}, {RW}, s53 offen")
fullexec()
STAMP(7)
A("s_cmp_eq_u32 s4, 7\ns_cbranch_scc1 L_g7")
def ffn_dma():
    if OPT["fw"]:
        A("s_cmp_lg_u32 s3, 1\ns_cbranch_scc1 L_fwd")
        A(f"s_mov_b32 {sCNT}, 0")
        A.label("L_fw")
        A(f"buffer_load_dword v33, v149, {RW}, s100 offen sc1")
        A("s_waitcnt vmcnt(0)")
        A(f"v_cmp_eq_u32 vcc, {sTAG}, v33")
        A(f"s_bcnt1_i32_b32 s40, vcc_lo\ns_cmp_ge_u32 s40, {2*(16-OPT['fany'])}\ns_cbranch_scc1 L_fwd")
        A(f"s_sleep 1\ns_add_u32 {sCNT}, {sCNT}, 1\ns_cmp_lt_u32 {sCNT}, {OPT['fmax']}\ns_cbranch_scc1 L_fw")
        A.label("L_fwd")
    A("s_barrier")
    A(f"buffer_load_dwordx4 v{wG}, {RC}, s49 offen {NT} lds")
    A(f"buffer_load_dwordx4 v{wG}, {RC}, s50 offen offset:1024 {NT} lds")
    A(f"s_add_u32 m0, s42, {FG+16384}")
    A(f"buffer_load_dwordx4 v{wG}, {RB}, s49 offen {NT} lds")
    A(f"buffer_load_dwordx4 v{wG}, {RB}, s50 offen offset:1024 {NT} lds")
    if not DE:
        A("s_barrier")
        dn_dma()
if not OPT["flate"]: ffn_dma()
fYW, fYR, fWR, fGR, fSTA, fY6A = 113, 114, 115, 118, 119, 120
fGA = 116; fG = 144; fUS = 145
fU, fS = 121, 117
wTA = 108; fWF = 84; fDF = 64
VX(wTR, 32, 0, (2, 4, 7), (3, 2, 5), (0, 2, 3))
SX("s40", 0, ("s3", 0, 2, 5)); A(f"v_xor_b32 v{fWR}, s40, v{wTR}")
SX("s40", FG, ("s3", 2, 0, 14)); A(f"v_add_u32 v{fWR}, s40, v{fWR}")
A(f"s_add_u32 s40, s42, {FD}\nv_add_u32 v{wTA}, s40, v{wTR}")
for t in range(1, 4):
    A(f"v_xor_b32 v{wTA+t}, {t*32:#x}, v{wTA}")
A(f"v_add_u32 v{fYR}, {YL0}, v{vQO}")
A(f"s_lshl_b32 s40, s3, 10\nv_add_u32 v{fYW}, s40, v{fYR}")
VX(fGA, 32, 0, (0, 6, 2))
SX("s61", G5 - 64, ("s63", 2, 0, 12), ("s3", 0, 2, 10), ("s5", 0, 2, 8), ("s3", 2, 0, 7))
VX(fGR, 32, 0, (2, 1, 7), (3, 1, 6), (4, 2, 4), (0, 2, 2))
VX(fSTA, 32, 0, (0, 2, 5), (2, 1, 10), (5, 1, 4))
VX(fY6A, 32, 0, (3, 1, 13), (5, 1, 12), (4, 1, 4))
SX("s47", Y4, ("s3", 2, 0, 15), ("s5", 1, 1, 14), ("s5", 0, 1, 12), ("s3", 0, 2, 10))
if OPT["flate"] == 2: A("s_waitcnt vmcnt(0)")
if OPT["flate"]: ffn_dma()
SX("s49", Y6, ("s3", 16), ("s63", 5))
A("s_add_u32 s50, s49, 16384\ns_add_u32 s51, s49, 32768\ns_add_u32 s52, s49, 49152")
A(f"s_mov_b32 s41, {f32(1.0/512)}\ns_mov_b32 s43, {f32(1e-5)}")
poll(mf_loads, lambda: tagged_chk([vMF], 33), first_issued=True, first_wait=4 if DE else 6, sleep=4)
tagged_pack(vMF)
near_bit(151, "s40"); A("s_add_u32 s47, s47, s40")
A(f"ds_write_b128 v{fYW}, v[{vMF}:{vMF+3}]")
sk = L("ntk")
A(f"s_cmp_lg_u32 s3, 7\ns_cbranch_scc1 {sk}")
poll(lambda: A(f"buffer_load_dwordx4 v[140:143], v148, {RW}, s99 offen sc1"), lambda: tags_chk([140, 141, 142, 143], 33), first_issued=True, first_wait=4 if DE else 6, sleep=2)
A.label(sk)
vY = 76
y_load = lambda: A(f"buffer_load_dwordx4 v[{vY}:{vY+3}], v{fMF}, {RW}, s47 offen sc1")
A(f"s_waitcnt vmcnt({0 if DE else 2}) lgkmcnt(0)\ns_barrier")
STAMP(10)
y_load()
YO = [16, 20, 24, 28, 32, 36, 100, 104]
for k in range(4):
    for h in range(2):
        r = fWF + 4*k + 2*h
        A(f"ds_read_b64_tr_b16 v[{r}:{r+1}], v{fWR} offset:{k*4096 + h*2048}")
for u in range(8):
    A(f"ds_read_b128 v[{YO[u]}:{YO[u]+3}], v{fYR} offset:{u*1024}")
A("s_waitcnt lgkmcnt(0)")
for k in range(4):
    for pi in range(2):
        mfma(wD + 4*pi, YO[4*pi+k], fWF + 4*k, None if k == 0 else wD + 4*pi)
rowsum([wD, wD+4])
A(f"v_permlane16_swap_b32 v{wD}, v{wD+4}")
A(f"v_add_f32 v{fU}, v{wD}, v{wD+4}\nv_add_f32 v{fS}, v{wD}, v{wD+4}\nv_mov_b32 v146, s43")
A(f"v_permlane16_swap_b32 v{fU}, v{fS}")
STAMP(1)
poll(y_load, lambda: chk_empty4(vY, 33), first_issued=True, sleep=OPT["x4s"])
STAMP(11)
A(f"ds_write_b128 v{fYW}, v[{vY}:{vY+3}] offset:8192")
A("s_waitcnt lgkmcnt(0)\ns_barrier")
for u in range(8):
    A(f"ds_read_b128 v[{YO[u]}:{YO[u]+3}], v{fYR} offset:{8192+u*1024}")
st_load = lambda: A(f"buffer_load_dwordx4 v[40:43], v{fSTA}, {RW}, s98 offen sc1")
st_load()
for u in range(8):
    A(f"s_waitcnt lgkmcnt({7-u})")
    mfma(wD, YO[u], fWF + 4*(u & 3), None if u == 0 else wD)
for tau in range(4):
    A(f"ds_read_b64_tr_b16 v[{fDF+2*tau}:{fDF+2*tau+1}], v{wTA+tau}")
def st_chk():
    A("v_add_f32 v40, v40, v42\nv_add_f32 v41, v41, v43")
    A("v_cmp_u_f32 vcc, v40, v41")
poll(st_load, st_chk, first_issued=True)
A(f"v_add_f32_dpp v40, v40, v40 quad_perm:[1,0,3,2] {DPPM}\nv_add_f32_dpp v41, v41, v41 quad_perm:[1,0,3,2] {DPPM}")
A(f"v_add_f32 v{wD}, v{wD}, v{wD+1}\nv_add_f32 v{wD+2}, v{wD+2}, v{wD+3}")
A(f"v_add_f32_dpp v40, v40, v40 quad_perm:[2,3,0,1] {DPPM}\nv_add_f32_dpp v41, v41, v41 quad_perm:[2,3,0,1] {DPPM}")
A(f"v_add_f32 v{wD+1}, v{wD}, v{wD+2}\nv_add_f32 v{wD}, v{wD}, v{wD+2}")
A(f"v_add_f32_dpp v40, v40, v40 row_half_mirror {DPPM}\nv_add_f32_dpp v41, v41, v41 row_half_mirror {DPPM}")
A(f"v_permlane16_swap_b32 v{wD}, v{wD+1}")
A("v_mul_f32 v40, s41, v40")
A("v_fma_f32 v41, v41, s41, v146")
A(f"v_add_f32 v{wD}, v{wD}, v{wD+1}")
A("v_fma_f32 v41, -v40, v40, v41")
A(f"v_fma_f32 v{wD}, -v40, v{fU}, v{wD}")
A("v_rsq_f32 v41, v41")
setexec(0xffff0000, 0x0000ffff)
A(f"v_fma_f32 v{fG}, v{wD}, v41, v{fS}")
A(f"buffer_store_dword v{fG}, v{fGA}, {RW}, s61 offen")
fullexec()
STAMP(12)
def g_loads():
    for k in range(4):
        A(f"buffer_load_dword v{20+k}, v{fGR}, {RW}, s96 offen offset:{256*k} sc1")
def g_chk():
    A("v_add_f32 v20, v20, v21\nv_add_f32 v22, v22, v23\nv_add_f32 v20, v20, v22")
    A("v_cmp_u_f32 vcc, v20, v20")
poll(g_loads, g_chk)
STAMP(13)
A("v_max_f32 v21, 0, v20")
A(f"v_mul_f32_dpp v22, v20, v21 row_shl:4 {DPPM}")
pack4(22, 24, 25, 23)
A("s_waitcnt lgkmcnt(0)")
for tau in range(4):
    d = 32 + 4*tau
    A(f"v_mfma_f32_16x16x16_bf16 v[{d}:{d+3}], v[{fDF+2*tau}:{fDF+2*tau+1}], v[24:25], 0")
setexec(0x01010101, 0x01010101)
for tau in range(4):
    d = 32 + 4*tau
    A(f"buffer_store_dwordx4 v[{d}:{d+3}], v{fY6A}, {RW}, s{49+tau} offen sc1")
STAMP(8)
if OPT["nore"]: A("s_branch L_exit")
A("s_waitcnt vmcnt(0)")
setexec(0xffff0000, 0x0000ffff)
A(f"buffer_store_dword v{fG}, v{fGA}, {RW}, s61 offen sc1")
A("s_branch L_exit")
A.label("L_g7")
A("s_cmp_lg_u32 s3, 0\ns_cbranch_scc1 L_exit")
VX(T1, T2, 0, (3, 1, 15), (2, 1, 14), (0, 2, 11))
A(f"s_mov_b32 s46, {X4 + 7*128:#x}")
poll(lambda: A(f"buffer_load_dword v16, v{T1}, {RW}, s46 offen sc1"), lambda: A("v_cmp_eq_u32 vcc, -1, v16"), sleep=8)
A("s_branch L_exit")

A.seg(4.5)
A.label("L_meas")
SX("s48", PROBE, ("s2", 8), ("s2", 3, 1, 13))
A("s_xor_b32 s49, s48, 0x2000")
A(f"s_load_dword s40, s[16:17], s48 glc\ns_load_dword s41, s[16:17], s49 glc\ns_load_dword {sTAG}, s[16:17], 0")
A(f"s_mov_b32 s38, -1\ns_mov_b32 s39, -1\ns_mov_b32 {sCNT}, 0")
srd(RW, WS_BYTES)
A.label("L_ms")
for off, acc in (("s48", "s38"), ("s49", "s39")):
    A("s_waitcnt lgkmcnt(0)\ns_memtime s[32:33]\ns_waitcnt lgkmcnt(0)")
    A(f"s_load_dword s40, s[16:17], {off} glc\ns_waitcnt lgkmcnt(0)")
    A("s_memtime s[34:35]\ns_waitcnt lgkmcnt(0)")
    A(f"s_sub_u32 s40, s34, s32\ns_min_u32 {acc}, {acc}, s40")
A(f"s_add_u32 {sCNT}, {sCNT}, 1\ns_cmp_lt_u32 {sCNT}, {OPT['reps']}\ns_cbranch_scc1 L_ms")
A("s_cmp_lt_u32 s39, s38\ns_cselect_b32 s40, s49, s48")
A("s_lshr_b32 s40, s40, 11\ns_xor_b32 s40, s40, s2\ns_lshl_b32 s40, s40, 29\ns_and_b32 s40, s40, 0x80000000")
A(f"s_add_u32 s41, {sTAG}, {TAGC:#x}\ns_xor_b32 s40, s40, s41\nv_mov_b32 v136, s40")
SX("s40", VOTE, ("s2", 2))
A(f"s_mov_b64 exec, 1\nbuffer_store_dword v136, v0, {RW}, s40 offen sc1")
fullexec()
if STAMPS: A("s_memrealtime s[100:101]\ns_waitcnt lgkmcnt(0)")
A("s_branch L_go")

A.seg(0)
IS_NA = "s_cmp_lg_u32 s6, 0"; IS_A = "s_cmp_eq_u32 s6, 0"
R3 = OPT["r3"]
def w_common(first=True):
    kload(RB, 32); kload(RF, 88)
    if first:
        A(f"s_load_dword {sTAG}, s[16:17], 0")
        ids2()
    A(f"v_lshl_or_b32 v{wO}, v{T0}, 10, v{T1}")
    srd(RB, 4194304); A("s_movk_i32 s26, 2048")
def wq_setup(sh):
    A(f"v_lshl_or_b32 v{wQ}, v{T0}, 13, v{T1}")
    A("s_mov_b32 s10, 4194304")
    A(f"s_lshl_b32 s48, s3, {12-sh}")
    SX("s43", 0, ("s6", 8), ("s48", 7, 0, 0))
    SX("s44", 0, ("s43", 13), ("s4", 10), ("s46", 0))
def wq_dma():
    A(f"s_add_u32 m0, s48, {WQL}")
    for u in range(4):
        if u: A(f"s_add_u32 s44, s44, {8*8192-1024}")
        A(f"buffer_load_dwordx4 v{wQ}, {RA}, s44 offen offset:{u*1024} {NT} lds")
def c_setup():
    VX(T2, T3, 0, (5, 1, 10), (0, 5, 2))
    srd(RE, 2048)
srd(RC, 3145728)
A(f"v_mul_u32_u24 v{wM}, 6144, v{T0}\ns_lshl_b32 s46, s7, 7\nv_add_u32 v{wM}, v{wM}, v{T1}")
A(f"{IS_NA}\ns_cbranch_scc1 L_nA")
A("s_lshl_b32 s49, s4, 7")
A("s_cmp_lt_u32 s3, 256\ns_cbranch_scc1 L_A1")
A("s_sub_u32 s40, s3, 256")
SX("s61", 0, ("s7", 6), ("s40", 2, 0, 0))
A(f"s_mul_i32 s61, s61, 6144\ns_add_u32 s61, s61, s49\ns_add_u32 s62, s61, {8*6144-1024}")
A(f"s_lshl_b32 s40, s40, 5\ns_add_u32 m0, s40, {PA}")
A("s_waitcnt lgkmcnt(0)")
STAMP(1)
A(f"buffer_load_dwordx4 v{wM}, {RC}, s61 offen {NT} lds")
A(f"buffer_load_dwordx4 v{wM}, {RC}, s62 offen offset:1024 {NT} lds")
A(f"s_add_u32 m0, s40, {PA+8192-1024}")
A(f"buffer_load_dwordx4 v{wM}, {RC}, s61 offen offset:1024 {NT} lds")
A(f"buffer_load_dwordx4 v{wM}, {RC}, s62 offen offset:2048 {NT} lds")
wq_setup(6)
A("s_barrier")
wq_dma()
A("s_waitcnt vmcnt(4)\ns_barrier")
cont(5)
A("v_mov_b32 v32, -1\nv_mov_b32 v33, -1\nv_mov_b32 v34, -1\nv_mov_b32 v35, -1\nv_lshlrev_b32 v38, 3, v0")
SX("s54", G5, ("s4", 14), ("s7", 11), ("s40", 2, 0, 0))
srd(RW, WS_BYTES)
A(f"buffer_store_dwordx2 v[32:33], v38, {RW}, s54 offen sc1")
A(f"v_lshl_or_b32 v37, v{T0}, 10, v{T1}")
SX("s41", 0, ("s7", 14), ("s40", 1))
SX("s54", X4, ("s41", 0), ("s4", 7))
A(f"s_cmp_eq_u32 s41, {31*4096}\ns_cselect_b32 exec_hi, 0xffff, 0")
A(f"buffer_store_dwordx4 v[32:35], v37, {RW}, s54 offen sc1")
fullexec()
A.seg(1)
A.label("L_A1")
c_setup()
VX(36, T3, 0, (4, 1, 10), (5, 1, 8), (0, 4, 4))
A("s_movk_i32 s26, 2048")
A("s_waitcnt lgkmcnt(0)")
STAMP(1)
A(f"buffer_load_dword v{wC}, v{T2}, {RE}, s46 offen {SNT}")
A(f"buffer_load_dwordx4 v[{wX}:{wX+3}], v36, {RD}, 0 offen {SNT}")
A(f"buffer_load_dwordx4 v[{wX+4}:{wX+7}], v36, {RD}, 0 offen offset:512 {SNT}")
VX(37, T3, 0, (4, 1, 10), (0, 4, 1))
A(f"s_lshr_b32 s50, s3, 1\ns_add_u32 s50, s50, s49\nv_mov_b32 v{wXS}, 0")
A(f"buffer_load_short_d16_hi v{wXS}, v37, {RD}, s50 offen {SNT}")
A(f"s_load_dword {sTAG}, s[16:17], 0")
A("s_barrier")
cont(4)
ids2()
tr_setup()
VX(39, 32, 0, (4, 1, 6), (2, 2, 4))
SX("s53", H1G, ("s4", 12), ("s3", 10), ("s46", 0))
A("s_cmp_eq_u32 s7, 0\ns_cselect_b32 s54, 1.0, 0")
unit_pre("0", "s54", PA)
silu_operand(3)
A("v_mov_b32 v36, 0\nv_mov_b32 v37, 0\nv_mov_b32 v38, 0x3f803f80")
A(f"s_waitcnt vmcnt(0)")
for i in range(8):
    A(f"v_dot2c_f32_bf16 v36, v{wX+i}, v38\nv_dot2c_f32_bf16 v37, v{wX+i}, v{wX+i}")
for m in ("quad_perm:[1,0,3,2]", "quad_perm:[2,3,0,1]", "row_half_mirror", "row_mirror"):
    A(f"v_add_f32_dpp v36, v36, v36 {m} {DPPM}\nv_add_f32_dpp v37, v37, v37 {m} {DPPM}")
A("v_mov_b32 v38, v36\nv_mov_b32 v35, v37")
A("v_permlane32_swap_b32 v36, v38\nv_permlane32_swap_b32 v37, v35")
A("v_add_f32 v36, v36, v38\nv_add_f32 v37, v37, v35")
A(f"v_mul_f32 v36, {f32(1.0/512)}, v36\nv_mov_b32 v38, {f32(1e-5)}\nv_fmac_f32 v38, {f32(1.0/512)}, v37")
A("v_fma_f32 v38, -v36, v36, v38\nv_rsq_f32 v38, v38")
A(f"v_sub_f32 v{wXS}, v{wXS}, v36\nv_mul_f32 v{wXS}, v{wXS}, v38")
A("s_waitcnt lgkmcnt(0)")
A(f"s_add_u32 {sTAG}, {sTAG}, {TAGC:#x}")
settags(wD+9, wD+11)
wq_setup(0)
A("s_barrier")
unit_go()
A(f"v_fma_f32 v32, v{wXS}, v{wD+4}, v{wD}")
pack4(32, wD+8, wD+10, 33)
setexec(0x11111111, 0)
A(f"buffer_store_dwordx4 v[{wD+8}:{wD+11}], v39, {RW}, s53 offen sc1")
fullexec()
STAMP(14)
wq_dma()
w_common(False)
A("s_branch L_B")
A.seg(2)
A.label("L_nA")
wq_setup(6)
SX("s51", 0, ("s7", 6), ("s3", 3, 0, 0))
if R3 & 1: SX("s52", 384, ("s51", 13), ("s4", 10))
A("s_mul_i32 s51, s51, 6144")
A("s_waitcnt lgkmcnt(0)")
STAMP(1)
if R3 & 2:
    sk = L("n3a")
    A(f"s_cmp_lg_u32 s4, 3\ns_cbranch_scc1 {sk}")
    A(f"buffer_load_dword v{vPF}, v{wM}, {RC}, s51 offen offset:{1024+384}")
    A.label(sk)
if R3 & 1: A(f"buffer_load_dword v{vPF}, v{wQ}, {RA}, s52 offen")
wq_dma()
A("s_lshl_b32 s42, s3, 4")
SX("s40", 2048, ("s4", 8)); A("s_add_u32 s51, s51, s40")
c_setup()
A(f"buffer_load_dword v{wC}, v{T2}, {RE}, s46 offen {SNT}")
A("s_barrier")
for j, o in enumerate((0, 128, 2048, 2048+128)):
    A(f"s_add_u32 m0, s42, {PB + j*8192 - o}")
    A(f"buffer_load_dwordx4 v{wM}, {RC}, s51 offen offset:{o} {NT} lds")
A("s_branch L_wc")
A.seg(6)
A.label("L_wc")
w_common()
tr_setup()
A("s_waitcnt lgkmcnt(0)")
A(f"s_add_u32 {sTAG}, {sTAG}, {TAGC:#x}")
A.label("L_B")
srd(RF, 2048)
SX("s47", 0, ("s4", 19), ("s43", 10), ("s46", 0))
wRW, wRR, wOF, wTA = 14, 15, 72, 108
SX("s40", RED, ("s3", 9)); VX(wRW, 32, "s40", (0, 6, 2))
SX("s40", RED, ("s3", 8)); VX(wRR, 32, "s40", (0, 6, 2))
VX(wOF, 32, 0, (0, 3, 7), (3, 1, 6), (4, 2, 4))
SX("s53", H1G, ("s43", 6))
wQA = 73; wQD = 76; wYD = 92
VX(wQA, 32, 0, (5, 1, 12), (0, 5, 2))
SX("s56", QG, ("s4", 13), ("s5", 8), ("s3", 7))
A(f"v_add_u32 v{wTA}, s48, v{wTR}")
for t in range(1, 4):
    A(f"v_xor_b32 v{wTA+t}, {t*32:#x}, v{wTA}")
settags(wQD+1, wQD+3)
wGA, wCB, wXA, wXAD = 74, 75, 80, 81
tE, tOUT, tBP, tL16 = 84, 114, 115, 116
SX("s59", Y6, ("s5", 15), ("s4", 1, 1, 14), ("s4", 0, 1, 12))
A("s_cmp_eq_u32 s3, 7\ns_cselect_b32 s40, 0, -1")
A("v_mov_b32 v118, s40\nv_mov_b32 v119, s40\nv_lshlrev_b32 v121, 3, v0")
SX("s99", 0, ("s3", 9), ("s59", 0), ("s2", 2, 1, 13))
VX(T1, 32, 0, (0, 4, 6), (4, 2, 4))
SX("s51", OG, ("s4", 15), ("s43", 6))
SX("s54", SG, ("s4", 10), ("s43", 7, 0, 8))
A(f"v_lshlrev_b32 v{T0}, 2, v1\nv_xor_b32 v{T0}, v0, v{T0}\nv_and_b32 v{T0}, 7, v{T0}\nv_lshlrev_b32 v{T0}, 4, v{T0}")
A(f"v_lshrrev_b32 v32, 5, v0\nv_lshl_or_b32 v{T0}, v32, 7, v{T0}")
VX(wXAD, 32, 0, (5, 1, 6), (2, 2, 4), (4, 1, 3))
SX("s60", X4, ("s7", 2, 0, 14), ("s7", 0, 2, 11), ("s3", 0, 1, 10), ("s6", 15), ("s4", 7))
A(f"s_add_u32 s52, s60, {Y4-X4}\ns_add_u32 s100, s60, 8192\ns_add_u32 s101, s52, 8192")
A("v_and_b32 v32, 1, v0\nv_lshlrev_b32 v32, 4, v32\nv_mov_b32 v33, 0x3f80\nv_lshlrev_b32 v32, v32, v33")
A("v_lshrrev_b32 v33, 2, v2\nv_sub_u32 v33, v1, v33\nv_bfe_u32 v34, v0, 1, 1\nv_lshl_or_b32 v33, v33, 1, v34")
for r in range(2):
    A(f"v_cmp_eq_u32 vcc, {r}, v33")
    A(f"v_mov_b32 v{tE+2+r}, 0\nv_mov_b32 v{tE+4+r}, 0")
    A(f"v_cndmask_b32 v{tE+r}, 0, v32, vcc\nv_cndmask_b32 v{tE+6+r}, 0, v32, vcc")
VX(38, 33, 0, (0, 1, 3), (5, 1, 1), (4, 1, 2))
SX("s40", 0, ("s4", 0, 2, 4)); A(f"v_add_u32 v{tOUT}, s40, v38")
A(f"v_lshlrev_b32 v{tL16}, 4, v0")
SX("s49", X4, ("s6", 14), ("s7", 10))
SX("s55", ST5, ("s4", 7), ("s7", 0, 2, 5), ("s7", 2, 0, 10), ("s6", 3))
VX(113, 33, 0, (5, 1, 4), (4, 1, 2))
SX("s61", MGT, ("s7", 12), ("s3", 11))
SX("s40", MGT + 3*32768, ("s5", 11))
A("s_cmp_eq_u32 s3, 2\ns_cselect_b32 s61, s40, s61\ns_cselect_b32 s40, 0, 0x10000\ns_add_u32 s63, s61, s40")
VX(120, 33, 0, (5, 1, 10), (0, 5, 1))
SX("s42", 0, ("s7", 7), ("s3", 6))
A(f"v_mov_b32 v{wXA}, 0")
VX(39, 32, 0, (5, 1, 12), (4, 1, 6), (2, 2, 4))
SX("s41", OG, ("s4", 15), ("s5", 11))
A(f"v_lshlrev_b32 v{T3}, 7, v2\nv_lshlrev_b32 v117, 10, v1")
SX("s57", 384, ("s4", 19), ("s5", 15), ("s3", 12))
def blk_frags(off):
    for t in range(4):
        for h in range(2):
            r = wWF + 4*t + 2*h
            A(f"ds_read_b64_tr_b16 v[{r}:{r+1}], v{wTA+t} offset:{off + h*2048}")
h1_loads = lambda: tagged_loads(16, wOF, "s53")
A("v_lshlrev_b32 v122, 2, v2")
if OPT["ptw"]:
    sk = L("npt")
    A(f"s_cmp_lg_u32 s3, 5\ns_cbranch_scc1 {sk}")
    A("s_mov_b64 exec, 1")
    A(f"buffer_load_dword v{vPF}, v0, {RB}, s47 offen")
    A(f"buffer_load_dword v{vPF}, v0, {RF}, 0 offen")
    fullexec()
    A.label(sk)
sk = L("nmb"); sk2 = L("nmc")
A(f"{IS_A}\ns_cbranch_scc1 {sk}")
SX("s96", MGT, ("s4", 13), ("s3", 2, 0, 16), ("s3", 0, 2, 10), ("s46", 0))
SX("s40", 0, ("s4", 2, 1, 3), ("s3", 2, 0, 4), ("s7", 0))
A("s_cmp_eq_u32 s40, 16\ns_cselect_b32 s97, 1.0, 0")
SX("s98", PB, ("s3", 2, 0, 14))
unit_pre("s97", "s97", "s98")
settags(wD+9, wD+11)
silu_operand(4)
A(f"s_waitcnt vmcnt({OPT['h1at']})")
h1_loads()
A("s_waitcnt vmcnt(2) lgkmcnt(0)\ns_barrier")
unit_go()
A("v_cmp_gt_u32 vcc, 32, v0")
A(f"v_cndmask_b32 v32, v{wD+4}, v{wD}, vcc")
blk_frags(WQL)
pack4(32, wD+8, wD+10, 34)
setexec(0x11111111, 0x11111111)
A(f"buffer_store_dwordx4 v[{wD+8}:{wD+11}], v39, {RW}, s96 offen sc1")
fullexec()
STAMP(6)
A(f"s_branch {sk2}")
A.label(sk)
sk3 = L("ntk")
A(f"s_cmp_lt_u32 s3, 4\ns_cbranch_scc1 {sk3}")
SX("s40", TOK - 16, ("s4", 10), ("s46", 0), ("s3", 2))
A("s_waitcnt vmcnt(0)")
A(f"s_mov_b64 exec, 1\nbuffer_store_dword v{wQD+1}, v0, {RW}, s40 offen sc1")
fullexec()
A.label(sk3)
A(f"s_waitcnt vmcnt({OPT['h1at']})")
h1_loads()
A("s_waitcnt vmcnt(2)")
blk_frags(WQL)
A("s_waitcnt vmcnt(0)")
A.label(sk2)
STAMP(3)
poll(h1_loads, lambda: tagged_chk([16], 33), first_issued=True, first_wait=1, sleep=OPT["s2"])
STAMP(4)
tagged_pack(16)
A("s_waitcnt lgkmcnt(0)")
def blk_mfma(op):
    for t in range(4):
        mfma(wD + 4*t, op, wWF + 4*t, None)
def blk_reduce():
    A(f"v_permlane16_swap_b32 v{wD}, v{wD+4}\nv_permlane16_swap_b32 v{wD+8}, v{wD+12}")
    A(f"v_add_f32 v{wD}, v{wD}, v{wD+4}\nv_add_f32 v{wD+8}, v{wD+8}, v{wD+12}")
    A(f"ds_write2st64_b32 v{wRW}, v{wD}, v{wD+8} offset0:0 offset1:1")
    A("s_cmp_ge_u32 s3, 2")
    A("s_waitcnt lgkmcnt(0)\ns_barrier")
def blk_final():
    for i in range(4):
        A(f"ds_read2st64_b32 v[{32+2*i}:{33+2*i}], v{wRR} offset0:{4*i} offset1:{4*i+2}")
    if STAMPS: A("s_waitcnt lgkmcnt(0)")
    A("s_waitcnt lgkmcnt(2)")
    A("v_add_f32 v32, v32, v33\nv_add_f32 v34, v34, v35\nv_add_f32 v32, v32, v34")
    A("s_waitcnt lgkmcnt(0)")
    A("v_add_f32 v36, v36, v37\nv_add_f32 v38, v38, v39\nv_add_f32 v36, v36, v38\nv_add_f32 v32, v32, v36")
blk_mfma(16)
rowsum([wD, wD+4, wD+8, wD+12])
blk_reduce()
sk = L("nq")
A(f"s_cbranch_scc1 {sk}")
blk_final()
pack4(32, wQD, wQD+2, 33)
setexec(0x11111111, 0x11111111)
A(f"buffer_store_dwordx4 v[{wQD}:{wQD+3}], v{wQA}, {RW}, s56 offen")
fullexec()
A.label(sk)
STAMP(5)
A(f"s_add_u32 m0, s48, {WOL}")
def wo_dma():
    if R3 & 4: A(f"buffer_load_dword v{vPF}, v117, {RB}, s57 offen")
    for u in range(4):
        if u: A(f"s_add_u32 s47, s47, {8*1024-1024}")
        A(f"buffer_load_dwordx4 v{wO}, {RB}, s47 offen offset:{u*1024} {NT} lds")
if OPT["woe"] < 8:
    sk = L("nwf")
    A(f"s_cmp_lt_u32 s3, {OPT['woe']}\ns_cbranch_scc1 {sk}")
    wo_dma()
    A.label(sk)
if OPT["tw"] >= 0:
    A("s_cmp_lg_u32 s3, 4\ns_cbranch_scc1 L_trgd")
    SX("s40", TRG, ("s4", 7))
    A(f"s_mov_b32 {sCNT}, 0")
    A.label("L_trg")
    A(f"buffer_load_dword v33, v122, {RW}, s40 offen sc1")
    A("s_waitcnt vmcnt(0)")
    A(f"v_cmp_eq_u32 vcc, {sTAG}, v33")
    A(f"s_bcnt1_i32_b32 s44, vcc_lo\ns_cmp_ge_u32 s44, {2*(16-OPT['tany'])}\ns_cbranch_scc1 L_trgd")
    A(f"s_sleep 1\ns_add_u32 {sCNT}, {sCNT}, 1\ns_cmp_lt_u32 {sCNT}, {OPT['tmax']}\ns_cbranch_scc1 L_trg")
    A.label("L_trgd")
A("s_barrier")
def mc_loads():
    tagged_loads(128, wOF, "s61"); tagged_loads(136, wOF, "s63")
sk = L("nc0"); sk2 = L("nc3")
A(f"s_cmp_ge_u32 s3, 3\ns_cbranch_scc1 {sk}")
mc_loads()
A(f"s_cmp_lg_u32 s58, 0\ns_cbranch_scc1 {sk2}")
A(f"buffer_load_short_d16_hi v{wXA}, v120, {RD}, s42 offen")
A(f"s_branch {sk2}")
A.label(sk)
A(f"s_cmp_lg_u32 s3, 3\ns_cbranch_scc1 {sk2}")
A(f"buffer_load_dword v{vPF}, v{T3}, {RW}, s41 offen sc1")
if OPT["sgt"]:
    SX("s40", SG, ("s4", 10))
    A(f"buffer_load_dword v{vPF}, v{tL16}, {RW}, s40 offen sc1")
A.label(sk2)
if OPT["clrpre"]: A(f"buffer_store_dwordx2 v[118:119], v121, {RW}, s99 offen sc1")
if OPT["woe"] < 8:
    sk = L("nwe")
    A(f"s_cmp_ge_u32 s3, {OPT['woe']}\ns_cbranch_scc1 {sk}")
wo_dma()
if OPT["woe"] < 8: A.label(sk)
if not OPT["clrpre"]: A(f"buffer_store_dwordx2 v[118:119], v121, {RW}, s99 offen sc1")
sk = L("nc1")
A(f"s_cmp_ge_u32 s3, 3\ns_cbranch_scc1 {sk}")
poll(mc_loads, lambda: tagged_chk([128, 136], 33), first_issued=True, first_wait=4 if OPT["clrpre"] else 5, sleep=2)
tagged_pack(128); tagged_pack(136)
for i in range(2):
    for t in range(2):
        mfma(wD + 8*i + 4*t, 128 + 8*i, tE + 4*t, None)
rowsum([wD, wD+4, wD+8, wD+12])
A(f"v_permlane16_swap_b32 v{wD}, v{wD+4}\nv_permlane16_swap_b32 v{wD+8}, v{wD+12}")
A(f"v_add_f32 v{wGA}, v{wD}, v{wD+4}\nv_add_f32 v{wCB}, v{wD+8}, v{wD+12}")
STAMP(2)
A.label(sk)
wF = 100
sg_load = lambda: A(f"buffer_load_dwordx4 v[16:19], v{T0}, {RW}, s54 offen sc1")
A(f"s_waitcnt vmcnt({0 if OPT['clrpre'] else 1})")
if OPT["fw"]:
    sk = L("nfw")
    A(f"s_cmp_lg_u32 s3, 7\ns_cbranch_scc1 {sk}")
    SX("s40", TRG + 64, ("s4", 7), ("s5", 2))
    A(f"s_mov_b64 exec, 1\nbuffer_store_dword v{wQD+1}, v0, {RW}, s40 offen")
    fullexec()
    A.label(sk)
blk_frags(WOL)
STAMP(7)
await_any(sg_load, lambda: A(f"v_cmp_eq_u32 vcc, {sTAG}, v19"), OPT["s1"])
poll(sg_load, lambda: tags_chk([17, 19], 33), first_issued=True, sleep=2*OPT["s2"])
o_loads = lambda: tagged_loads(24, T1, "s51")
o_loads()
A(f"v_max_f32_dpp v17, v16, v16 quad_perm:[1,0,3,2] {DPPM}")
A(f"v_max_f32_dpp v17, v17, v17 quad_perm:[2,3,0,1] {DPPM}")
A(f"v_max_f32_dpp v17, v17, v17 row_half_mirror {DPPM}")
A("v_sub_f32 v16, v16, v17\nv_exp_f32 v16, v16\nv_mul_f32 v17, v16, v18")
for m in ("quad_perm:[1,0,3,2]", "quad_perm:[2,3,0,1]", "row_half_mirror"):
    A(f"v_add_f32_dpp v17, v17, v17 {m} {DPPM}")
A(f"v_rcp_f32 v17, v17\nv_mul_f32 v{wF}, v16, v17")
STAMP(8)
A("s_waitcnt lgkmcnt(0)")
poll(o_loads, lambda: tagged_chk([24], 33), first_issued=True, first_wait=0)
STAMP(9)
tagged_pack(24)
blk_mfma(24)
for t in range(4):
    A(f"v_mul_f32_dpp v{wD+4*t}, v{wF}, v{wD+4*t} row_newbcast:0 {DPPM}")
for r in range(1, 4):
    for t in range(4):
        A(f"v_fmac_f32_dpp v{wD+4*t}, v{wF}, v{wD+4*t+r} row_newbcast:{r} {DPPM}")
blk_reduce()
A("s_cbranch_scc1 L_fin")
blk_final()
A(f"v_fma_f32 v32, v32, v{wGA}, v{wXA}")
A(f"v_mul_f32 v36, v32, v{wCB}")
A(f"v_mov_b32_dpp v33, v32 quad_perm:[1,1,3,3] {DPPM}")
A(f"v_mov_b32_dpp v37, v36 quad_perm:[1,1,3,3] {DPPM}")
A("v_cvt_pk_bf16_f32 v34, v32, v33\nv_cvt_pk_bf16_f32 v38, v36, v37")
A(f"v_mov_b32_dpp v35, v34 quad_perm:[2,2,2,2] {DPPM}")
A(f"v_mov_b32_dpp v39, v38 quad_perm:[2,2,2,2] {DPPM}")
setexec(0x11111111, 0x11111111)
A(f"buffer_store_dwordx2 v[38:39], v{wXAD}, {RW}, s52 offen sc1")
A(f"buffer_store_dwordx2 v[38:39], v{wXAD}, {RW}, s101 offen sc1")
A(f"buffer_store_dwordx2 v[34:35], v{wXAD}, {RW}, s60 offen sc1")
A(f"buffer_store_dwordx2 v[34:35], v{wXAD}, {RW}, s100 offen sc1")
STAMP(10)
A("s_branch L_exit")
A.label("L_fin")
A("s_cmp_gt_u32 s3, 2\ns_cbranch_scc1 L_exit")
A(f"v_lshlrev_b32 v32, 7, v0\ns_movk_i32 s40, {TOK}\ns_movk_i32 s41, {VOTE}")
def tv_loads():
    A(f"buffer_load_dwordx4 v[16:19], v32, {RW}, s40 offen sc1")
    A(f"buffer_load_dword v20, v122, {RW}, s41 offen sc1")
def tv_chk():
    A(f"v_xor_b32 v33, {sTAG}, v20\nv_lshlrev_b32 v33, 1, v33")
    for t in (16, 17, 18, 19): A(f"v_bitop3_b32 v33, v{t}, {sTAG}, v33 bitop3:0xbe")
    A("v_cmp_ne_u32 vcc, 0, v33")
poll(tv_loads, tv_chk, sleep=2)
near_bit(20, "s44")
A("s_add_u32 s49, s49, s44\ns_add_u32 s50, s49, 32768\ns_add_u32 s59, s59, s44")
def x4_loads():
    A(f"buffer_load_dwordx4 v[16:19], v{wOF}, {RW}, s49 offen sc1")
    A(f"buffer_load_dwordx4 v[20:23], v{wOF}, {RW}, s50 offen sc1")
def x4_chk():
    A("v_max3_u32 v33, v16, v17, v18\nv_max3_u32 v34, v19, v20, v21\nv_max3_u32 v33, v33, v22, v23\nv_max_u32 v33, v33, v34\nv_cmp_eq_u32 vcc, -1, v33")
poll(x4_loads, x4_chk, sleep=OPT["x4s"])
STAMP(11)
for hp in range(2):
    for t in range(2):
        mfma(wD + 4*t, 16 + 4*hp, tE + 4*t, None if hp == 0 else wD + 4*t)
rowsum([wD, wD+4])
A(f"v_permlane16_swap_b32 v{wD}, v{wD+4}")
A(f"v_add_f32 v42, v{wD}, v{wD+4}\nv_add_f32 v43, v{wD}, v{wD+4}")
A("v_mul_f32 v44, v42, v42")
A("v_permlane16_swap_b32 v43, v44")
A(f"v_add_f32 v{wQD}, v43, v44")
for m in ("quad_perm:[1,0,3,2]", "quad_perm:[2,3,0,1]", "row_half_mirror", "row_mirror"):
    A(f"v_add_f32_dpp v{wQD}, v{wQD}, v{wQD} {m} {DPPM}")
setexec(0x00010001, 0x00010001)
A(f"buffer_store_dword v{wQD}, v113, {RW}, s55 offen")
fullexec()
STAMP(12)
A(f"s_lshr_b32 s40, s44, 6\nv_lshl_add_u32 v{tBP}, v{tOUT}, 1, s40")
SX("s62", 0, ("s44", 3, 0, 0), ("s5", 6))
A(f"ds_bpermute_b32 v42, v{tBP}, v42\nds_bpermute_b32 v{wGA}, v{tBP}, v{wGA}")
A("s_xor_b32 s40, s60, 512\ns_add_u32 s40, s40, s44\nv_mov_b32 v32, 0")
poll(lambda: A(f"buffer_load_dword v16, v32, {RW}, s40 offen sc1"), lambda: A("v_cmp_eq_u32 vcc, -1, v16"), sleep=1)
def y6_loads():
    for i in range(4):
        A(f"buffer_load_dwordx4 v[{16+4*i}:{19+4*i}], v{tL16}, {RW}, s59 offen offset:{1024*i} sc1")
def y6_chk():
    for r in range(4):
        A(f"v_add_f32 v{16+r}, v{16+r}, v{20+r}\nv_add_f32 v{24+r}, v{24+r}, v{28+r}")
    for r in range(4):
        A(f"v_add_f32 v{16+r}, v{16+r}, v{24+r}")
    A("v_permlane32_swap_b32 v16, v17\nv_permlane32_swap_b32 v18, v19")
    A("v_add_f32 v16, v16, v17\nv_add_f32 v18, v18, v19")
    A("v_permlane16_swap_b32 v16, v18")
    A("v_add_f32 v16, v16, v18")
    A("v_cmp_u_f32 vcc, v16, v16")
if OPT["ysent"]:
    await_any(lambda: A(f"buffer_load_dword v16, v{tL16}, {RW}, s59 offen sc1"), lambda: A("v_cmp_o_f32 vcc, v16, v16"), 2)
if OPT["ysent"] == 2:
    poll(lambda: A(f"buffer_load_dword v16, v{tL16}, {RW}, s59 offen sc1"), lambda: A("v_cmp_u_f32 vcc, v16, v16"), first_issued=True)
poll(y6_loads, y6_chk, sleep=OPT["y6s"])
STAMP(13)
for m in ("row_ror:8", "row_ror:4", "row_ror:2"):
    A(f"v_add_f32_dpp v16, v16, v16 {m} {DPPM}")
A("s_waitcnt lgkmcnt(0)")
setexec(0x00030003, 0x00030003)
A(f"v_fma_f32 v16, v16, v{wGA}, v42")
A("v_cvt_pk_bf16_f32 v16, v16, v16")
A(f"buffer_store_short v16, v{tOUT}, {RF}, s62 offen")
A("s_cmp_lg_u32 s2, 128\ns_cbranch_scc1 L_exit")
A(f"s_sub_u32 s40, {sTAG}, {TAGC-1:#x}")
A("v_mov_b32 v17, s40\nv_mov_b32 v18, 0")
A("s_mov_b64 exec, 1")
A(f"buffer_store_dword v17, v18, {RW}, 0 offen sc1")
A("s_branch L_exit")
A.seg(40)
A.label("L_exit")
if STAMPS == 1:
    STAMP(15)
    A("s_waitcnt lgkmcnt(0)")
    A("s_mov_b64 exec, 1")
    SX("s40", DBG, ("s2", 9), ("s3", 6))
    A("v_mov_b32 v0, 0")
    for q in range(4):
        for i in range(4):
            A(f"v_mov_b32 v{4+4*q+i}, s{64+2*(4*q+i)}")
        A(f"buffer_store_dwordx4 v[{4+4*q}:{7+4*q}], v0, {RW}, s40 offen offset:{16*q}")
if STAMPS == 5:
    STAMP(15)
    A("s_waitcnt lgkmcnt(0)")
    A("s_mov_b64 exec, 1")
    SX("s40", DBG, ("s2", 6), ("s3", 3))
    A(f"v_mov_b32 v0, 0\nv_mov_b32 v4, s64\nv_mov_b32 v5, s{64+2*OPT['db']}")
    A(f"buffer_store_dwordx2 v[4:5], v0, {RW}, s40 offen sc1")
    SX("s40", 0, ("s2", 3), ("s3", 0))
    A(f"s_cmp_lg_u32 s40, {129*8+2}\ns_cbranch_scc1 L_end")
    A.label("L_w3")
    A("s_memrealtime s[42:43]\ns_waitcnt lgkmcnt(0)\ns_sub_u32 s41, s42, s94\ns_cmp_lt_u32 s41, 300\ns_cbranch_scc1 L_w3")
    fullexec()
    A("v_mbcnt_lo_u32_b32 v1, -1, 0\nv_mbcnt_hi_u32_b32 v1, -1, v1\nv_lshlrev_b32 v1, 4, v1")
    A(f"s_mov_b32 s40, {DBG + OPT['drole']*8192}")
    for i in range(8):
        if i == 4: A("s_add_u32 s40, s40, 4096")
        A(f"buffer_load_dwordx4 v[{8+4*i}:{11+4*i}], v1, {RW}, s40 offen offset:{(i%4)*1024} sc1")
    A("s_waitcnt vmcnt(0)")
    for i in range(1, 16):
        A(f"v_min_u32 v8, v8, v{8+2*i}\nv_max_u32 v9, v9, v{9+2*i}")
    A("v_readlane_b32 s44, v8, 0\nv_readlane_b32 s45, v9, 0")
    for l in range(1, 64):
        A(f"v_readlane_b32 s46, v8, {l}\nv_readlane_b32 s47, v9, {l}\ns_nop 3\ns_min_u32 s44, s44, s46\ns_max_u32 s45, s45, s47")
    A(f"s_sub_u32 s40, s45, s44\ns_mul_i32 s40, s40, {OPT['dm']}\ns_add_u32 s40, s40, 600\ns_min_u32 s40, s40, 30000")
    A.label("L_spin")
    A("s_memrealtime s[42:43]\ns_waitcnt lgkmcnt(0)\ns_sub_u32 s41, s42, s94\ns_cmp_lt_u32 s41, s40\ns_cbranch_scc1 L_spin")
if STAMPS == 3:
    STAMP(15)
    A("s_waitcnt lgkmcnt(0)")
    SX("s40", 0, ("s2", 3), ("s3", 0))
    A(f"s_cmp_lg_u32 s40, {OPT['dwg']*8 + OPT['dwv']}\ns_cbranch_scc1 L_end")
    A(f"s_sub_u32 s40, s{64+2*OPT['db']}, s{64+2*OPT['da']}")
    A(f"s_mul_i32 s40, s40, {OPT['dm']}")
    A("s_min_u32 s40, s40, 30000")
    A.label("L_spin")
    A("s_memrealtime s[42:43]\ns_waitcnt lgkmcnt(0)\ns_sub_u32 s41, s42, s94\ns_cmp_lt_u32 s41, s40\ns_cbranch_scc1 L_spin")
A.label("L_end")
A("s_endpgm")
A.label("L_codeend")
A.raw(f".fill (16384 - (L_codeend - {NAME}_kernel)) / 4, 4, 0xbf810000")
A.raw(f""".section .rodata,"a"
.p2align 6
.amdhsa_kernel {NAME}_kernel
  .amdhsa_next_free_vgpr 152
  .amdhsa_next_free_sgpr 102
  .amdhsa_accum_offset 152
  .amdhsa_group_segment_fixed_size 0
  .amdhsa_kernarg_size 112
  .amdhsa_user_sgpr_count 2
  .amdhsa_user_sgpr_kernarg_segment_ptr 1
  .amdhsa_system_sgpr_workgroup_id_x 1
  .amdhsa_float_denorm_mode_32 3
.end_amdhsa_kernel""")
sys.stdout.write(A.text())
sys.stderr.write(f"instrs={A.ninstr} nops={A.nops}\n")
```

```python
import sys, math, struct
sys.path.insert(0, "work")
from asmlib import Asm

NAME = "adaLN_cond__sliding_block_cached__glu_gated_reglu__decode"
OPT = dict(stamps=0, nt="nt", limit=20000, refresh=255, smallnt="", s1=6, s2=1, sent=1, rot=7, r3=7, h1at=1, nv1=3,
           drole=0, dwg=10, dwv=1, da=0, db=15, dm=20, nore=0, reps=3, phase=3, pbar=0, dtouch=0, ptk=1, ptw=0, clrpre=1, sgt=1, woe=8, dnearly=0, force=-1, tw=-1, tmax=12, tany=0, fw=0, fmax=10, fany=0, flate=0, usearly=0, y6s=0, x4s=0, ysent=1)
for a in sys.argv[1:]:
    k, v = a.split("=")
    OPT[k] = int(v) if v.lstrip("-").isdigit() else v
STAMPS = OPT["stamps"]; NT = OPT["nt"] if OPT["nt"] != "-" else ""
LIMIT = OPT["limit"]; REFRESH = OPT["refresh"]; SNT = OPT["smallnt"]

def f32(x): return "0x%08x" % struct.unpack("<I", struct.pack("<f", x))[0]

TRG = 0x1000; VOTE = 0x1800; PROBE = 0x64000; SG = 0x2000; TOK = 0x4000; H1G = 0x8000; QG = 0x10000; MGT = 0x20000; OG = 0x80000
X4 = 0x40000; Y4 = 0x50000; ST5 = 0x60000
G5 = 0x100000
Y6 = 0x180000; DBG = 0x400000
WS_BYTES = 0x800000
TAGC = 0x9E3779B9
VREG = 65536; PA = 131072; XL = 147456; QL = XL + 1024; PL = QL + 2048; MISC = PL + 2048
FG = 0; FD = 32768; YL0 = 131072
WQL = 0; WOL = 32768; PB = 65536; RED = XL + 1024
LDS_BYTES = MISC + 256
C1 = 128 ** -0.5 * math.log2(math.e)

A = Asm()
hdr = open(f"cdna_kernels/{NAME}.s.ref").read().split("\n")
for ln in hdr:
    if ln.startswith("; @launch"):
        A.raw(f"; @launch grid=(256,1,1) block=(512,1,1) lds={LDS_BYTES}")
        break
    A.raw(ln)
A.raw('.amdgcn_target "amdgcn-amd-amdhsa--gfx950"')
A.raw(f".text\n.globl {NAME}_kernel\n.p2align 8\n.type {NAME}_kernel,@function\n{NAME}_kernel:")

RA, RB, RW, RC, RD, RE, RF = "s[8:11]", "s[12:15]", "s[16:19]", "s[20:23]", "s[24:27]", "s[28:31]", "s[32:35]"
sTAG, sCNT, sT = "s36", "s37", "s45"
def STAMP(n):
    if STAMPS:
        A(f"s_memrealtime s[{64+2*n}:{65+2*n}]")
DPPM = "row_mask:0xf bank_mask:0xf"
lbl = [0]
def L(p):
    lbl[0] += 1
    return f"L_{p}_{lbl[0]}"
def srd(r, nbytes):
    b = int(r[2:r.index(":")])
    A((f"s_movk_i32 s{b+2}, {nbytes}" if nbytes < 32768 else f"s_mov_b32 s{b+2}, {nbytes}") + f"\ns_mov_b32 s{b+3}, s11")
def kload(r, off):
    b = int(r[2:r.index(":")])
    A(f"s_load_dwordx2 s[{b}:{b+1}], s[0:1], {off}")

def SX(dst, const, *terms):
    first = True
    for t in terms:
        src, rs, w, ls = (t[0], 0, 0, t[1]) if len(t) == 2 else t
        d = dst if first else sT
        cur = src
        if w:
            if rs == 0: A(f"s_and_b32 {d}, {cur}, {(1<<w)-1}")
            else: A(f"s_bfe_u32 {d}, {cur}, {(w<<16)|rs:#x}")
            cur = d
        elif rs:
            A(f"s_lshr_b32 {d}, {cur}, {rs}"); cur = d
        if first:
            if ls: A(f"s_lshl_b32 {d}, {cur}, {ls}")
            elif cur != d: A(f"s_mov_b32 {d}, {cur}")
        else:
            if 1 <= ls <= 4: A(f"s_lshl{ls}_add_u32 {dst}, {cur}, {dst}")
            else:
                if ls: A(f"s_lshl_b32 {sT}, {cur}, {ls}"); cur = sT
                A(f"s_add_u32 {dst}, {dst}, {cur}")
        first = False
    if const: A(f"s_add_u32 {dst}, {dst}, {const:#x}")
def VX(dst, tmp, add, *terms):
    first = True
    for rs, w, ls in terms:
        if rs == 4 and w == 2: cur = "v1"
        elif rs == 0 and w == 4: cur = "v2"
        elif rs == 0 and w == 6: cur = "v0"
        else:
            d = f"v{dst}" if first else f"v{tmp}"
            if rs + w == 6: A(f"v_lshrrev_b32 {d}, {rs}, v0")
            elif rs == 0: A(f"v_and_b32 {d}, {(1<<w)-1}, v0")
            else: A(f"v_bfe_u32 {d}, v0, {rs}, {w}")
            cur = d
        if first:
            if ls: A(f"v_lshlrev_b32 v{dst}, {ls}, {cur}")
            elif cur != f"v{dst}": A(f"v_mov_b32 v{dst}, {cur}")
        else:
            if ls: A(f"v_lshl_or_b32 v{dst}, {cur}, {ls}, v{dst}")
            else: A(f"v_or_b32 v{dst}, {cur}, v{dst}")
        first = False
    if add: A(f"v_add_u32 v{dst}, {add}, v{dst}")

def cont(n):
    t = L("c")
    A(f"s_branch {t}")
    A.seg(n); A.label(t)
def await_any(load, valid, sleep):
    if not OPT["sent"]: return
    top, done = L("aw"), L("awd")
    A(f"s_mov_b32 {sCNT}, 0")
    A.label(top)
    load()
    A("s_waitcnt vmcnt(0)")
    valid()
    A(f"s_cbranch_vccnz {done}")
    A(f"s_sleep {sleep}\ns_add_u32 {sCNT}, {sCNT}, 1\ns_cmp_lt_u32 {sCNT}, 64\ns_cbranch_scc1 {top}")
    A.label(done)
def poll(loads, check, first_issued=False, first_wait=0, sleep=0):
    again, top, chk, done = L("again"), L("poll"), L("chk"), L("got")
    A(f"s_mov_b32 {sCNT}, 0")
    if first_issued:
        if first_wait: A(f"s_waitcnt vmcnt({first_wait})")
        A(f"s_branch {chk if first_wait else top + 'w'}")
    else:
        A(f"s_branch {top}")
    A.label(again)
    if sleep: A(f"s_sleep {sleep}")
    A(f"s_add_u32 {sCNT}, {sCNT}, 1")
    A(f"s_and_b32 {sT}, {sCNT}, {REFRESH}\ns_cbranch_scc1 {top}")
    A("buffer_wbl2 sc1")
    A(f"s_cmp_ge_u32 {sCNT}, {LIMIT}\ns_cbranch_scc1 {done}")
    A.label(top)
    loads()
    A.label(top + "w")
    A("s_waitcnt vmcnt(0)")
    A.label(chk)
    check()
    A(f"s_cbranch_vccnz {again}")
    A.label(done)
def chk_empty4(r, tmp):
    A(f"v_max3_u32 v{tmp}, v{r}, v{r+1}, v{r+2}\nv_max_u32 v{tmp}, v{tmp}, v{r+3}\nv_cmp_eq_u32 vcc, -1, v{tmp}")
def pack4(src, pk, pk2, tmp):
    A(f"v_mov_b32_dpp v{tmp}, v{src} quad_perm:[1,1,3,3] {DPPM}")
    A(f"v_cvt_pk_bf16_f32 v{pk}, v{src}, v{tmp}")
    A(f"v_mov_b32_dpp v{pk2}, v{pk} quad_perm:[2,2,2,2] {DPPM}")
def setexec(lo, hi):
    A(f"s_mov_b32 exec_lo, {lo:#x}\ns_mov_b32 exec_hi, {hi:#x}")
def fullexec():
    A("s_mov_b64 exec, -1")
def mfma(d, a, b, c):
    cc = "0" if c is None else f"v[{c}:{c+3}]"
    A(f"v_mfma_f32_16x16x32_bf16 v[{d}:{d+3}], v[{a}:{a+3}], v[{b}:{b+3}], {cc}")
def rowsum(ds):
    for d in ds: A(f"v_add_f32 v{d}, v{d}, v{d+1}\nv_add_f32 v{d+2}, v{d+2}, v{d+3}")
    for d in ds: A(f"v_add_f32 v{d}, v{d}, v{d+2}")
wM, wQ, wO, wTR, T0, T1, T2, T3, vPF = 3, 4, 5, 6, 7, 8, 9, 10, 11
wC = 12; wXS = 13; wX = 16; wXO = 24; wWF = 40; wD = 56
def tr_setup():
    VX(wTR, 32, 0, (2, 4, 7), (3, 2, 5), (0, 2, 3))
    SX("s40", XL, ("s3", 0, 2, 8))
    VX(82, 32, "s40", (0, 6, 2))
    VX(83, 32, "s40", (2, 1, 7), (4, 2, 3))
def silu_operand(cnt):
    A(f"s_waitcnt vmcnt({cnt})")
    A(f"v_lshlrev_b32 v32, 16, v{wC}\nv_and_b32 v33, 0xffff0000, v{wC}")
    A(f"v_mul_f32 v34, {f32(-math.log2(math.e))}, v32\nv_mul_f32 v35, {f32(-math.log2(math.e))}, v33")
    A("v_exp_f32 v34, v34\nv_exp_f32 v35, v35")
    A("v_add_f32 v34, 1.0, v34\nv_add_f32 v35, 1.0, v35")
    A("v_rcp_f32 v34, v34\nv_rcp_f32 v35, v35")
    A("v_mul_f32 v32, v32, v34\nv_mul_f32 v33, v33, v35")
    A("v_cvt_pk_bf16_f32 v32, v32, v33")
    A("ds_write_b32 v82, v32")
    A(f"ds_read2_b64 v[{wXO}:{wXO+3}], v83 offset0:0 offset1:4\nds_read2_b64 v[{wXO+4}:{wXO+7}], v83 offset0:8 offset1:12")
def unit_pre(s_c0, s_c1, base):
    SX("s40", 0, ("s3", 0, 2, 5)); A(f"v_xor_b32 v112, s40, v{wTR}\nv_add_u32 v112, {base}, v112")
    for i in range(4):
        A(f"v_mov_b32 v{wD+i}, {s_c0}\nv_mov_b32 v{wD+4+i}, {s_c1}")
def unit_go():
    if STAMPS: A("s_waitcnt lgkmcnt(0)")
    for k in range(2):
        for seg in range(2):
            for h in range(2):
                r = wWF + seg*8 + k*4 + h*2
                A(f"ds_read_b64_tr_b16 v[{r}:{r+1}], v112 offset:{seg*8192 + k*4096 + h*2048}")
    for k in range(2):
        for seg in range(2):
            A(f"s_waitcnt lgkmcnt({6 - 4*k - 2*seg})")
            mfma(wD + 4*seg, wXO + 4*k, wWF + seg*8 + k*4, wD + 4*seg)
def tagged_loads(r, va, so):
    A(f"buffer_load_dwordx4 v[{r}:{r+3}], v{va}, {RW}, {so} offen sc1")
    A(f"buffer_load_dwordx4 v[{r+4}:{r+7}], v{va}, {RW}, {so} offen offset:1024 sc1")
def tags_chk(tags, tmp):
    if len(tags) == 1:
        A(f"v_cmp_ne_u32 vcc, {sTAG}, v{tags[0]}"); return
    A(f"v_xor_b32 v{tmp}, {sTAG}, v{tags[0]}")
    for t in tags[1:]:
        A(f"v_bitop3_b32 v{tmp}, v{t}, {sTAG}, v{tmp} bitop3:0xbe")
    A(f"v_cmp_ne_u32 vcc, 0, v{tmp}")
def tagged_chk(rs, tmp):
    tags_chk([r + i for r in rs for i in (1, 3, 5, 7)], tmp)
def tagged_pack(r):
    A(f"v_mov_b32 v{r+1}, v{r+2}\nv_mov_b32 v{r+2}, v{r+4}\nv_mov_b32 v{r+3}, v{r+6}")
def near_bit(r, dst):
    A(f"s_xor_b32 {dst}, {sTAG}, 0x80000000")
    A(f"v_cmp_eq_u32 vcc, {dst}, v{r}")
    A(f"s_bcnt1_i32_b32 {sT}, vcc_lo")
    A(f"v_cmp_eq_u32 vcc, {sTAG}, v{r}")
    A(f"s_bcnt1_i32_b32 {dst}, vcc_lo")
    A(f"s_cmp_gt_u32 {sT}, {dst}\ns_cselect_b32 {dst}, 4, 0")
    if OPT["force"] >= 0: A(f"s_mov_b32 {dst}, {4*OPT['force']}")
    A(f"s_xor_b32 {dst}, {dst}, s2\ns_and_b32 {dst}, {dst}, 4\ns_lshl_b32 {dst}, {dst}, 11")
def settags(*regs):
    for r in regs: A(f"v_mov_b32 v{r}, {sTAG}")

STAMP(0)
A("s_cmp_ge_u32 s2, 256\ns_cbranch_scc1 L_end")
A("s_cmp_ge_u32 s2, 128\ns_cselect_b32 s40, 24, 8\ns_cselect_b32 s41, 0, 16")
A("s_load_dwordx2 s[8:9], s[0:1], s40")
kload(RC, 80)
A("s_load_dwordx2 s[24:25], s[0:1], s41")
kload(RE, 72); kload(RW, 104)
A("v_readfirstlane_b32 s3, v0")
sk = L("npf")
A(f"s_cbranch_scc1 {sk}")
A("s_getpc_b64 s[38:39]")
A(f"v_and_b32 v{vPF}, 0x1c0, v0\ns_lshl_b32 s40, s2, 7\ns_and_b32 s38, s38, 0xffffff00\ns_and_b32 s40, s40, 0x3c00\nv_lshl_or_b32 v{vPF}, v{vPF}, 1, s40")
A(f"global_load_dword v{vPF}, v{vPF}, s[38:39]")
A.label(sk)
A("v_and_b32 v0, 63, v0")
A("s_mov_b32 s11, 0x00020000")
A("v_lshrrev_b32 v1, 4, v0\nv_and_b32 v2, 15, v0")
A(f"s_add_u32 s4, s2, {OPT['rot']}\ns_and_b32 s4, s4, 7\ns_bfe_u32 s6, s2, 0x10006\ns_bfe_u32 s7, s2, 0x30003")
A(f"v_lshlrev_b32 v{T3}, 1, v1\nv_xor_b32 v{T3}, v2, v{T3}\nv_lshlrev_b32 v{T3}, 4, v{T3}")
A("s_mov_b32 s27, s11")
A(f"v_and_b32 v{T1}, 0x70, v{T3}\nv_lshrrev_b32 v{T0}, 3, v0")
A("s_cmp_lt_u32 s2, 128\ns_cbranch_scc1 L_KV")
def ids2():
    A("s_lshr_b32 s3, s3, 6\ns_bfe_u32 s5, s2, 0x40003\ns_lshl1_add_u32 s58, s4, s6")
    if STAMPS:
        for i in range(2, 16): A(f"s_mov_b32 s{64+2*i}, 0")
    srd(RW, WS_BYTES)

A.seg(3); A.label("L_KV")
vE, vO, vQO = 120, 121, 122
vKF = 16
vVF = 48
vQF = 80
vS = 96
vQ = 100
vP = 104
vKA = 108
vOA = 108
vST = 144
vOAD, vSAD = 116, 117
wG, wDO, fMF = 124, 125, 123
vMF = 128
A(f"v_lshl_or_b32 v{vE}, v1, 8, v{T3}\nv_xor_b32 v{vO}, 0x80, v{vE}")
A("s_lshl_b32 s43, s3, 7\ns_mov_b32 s10, 33554432\ns_mov_b32 s26, s10")
PH = OPT["phase"]
if PH == 2 or PH == 3:
    SX("s56", 6144*256, ("s6", 24), ("s4", 21), ("s7", 16), ("s3", 7, 0, 14), ("s3", 6, 1, 12))
    A("s_add_u32 s57, s56, 8192")
elif PH == 4:
    SX("s56", 6144*256, ("s6", 24), ("s4", 21), ("s7", 16), ("s3", 6, 2, 14), ("s3", 8, 0, 13))
    A("s_add_u32 s57, s56, 4096")
else:
    SX("s56", 6144*256, ("s6", 24), ("s4", 21), ("s7", 16), ("s43", 0))
    A("s_add_u32 s57, s56, 4096")
A("s_mov_b32 m0, s43" if PH == 2 else f"s_add_u32 m0, s43, {VREG}")
def kv_dma(u):
    r = RA if u < 8 else RD
    A(f"buffer_load_dwordx4 v{vE if u%2==0 else vO}, {r}, {'s56' if u%8 < 4 else 's57'} offen offset:{(u%4)*1024} {NT} lds")
PB_ = OPT["pbar"]
SX("s50", 0, ("s2", 4, 0, 9), ("s3", 0))
if not PB_:
    A(f"s_cmp_eq_u32 s50, {7*64}")
    A("s_waitcnt lgkmcnt(0)")
    A("s_cbranch_scc1 L_meas")
    A.label("L_go")
else:
    A("s_waitcnt lgkmcnt(0)")
if PH == 2: A(f"buffer_load_dword v136, v2, {RD}, s56 offen {NT}")
else:
    kv_dma(8)
    A("s_mov_b32 m0, s43")
A(f"s_load_dword {sTAG}, s[16:17], 0")
for u in range(16):
    if PB_ and u and u % 4 == 0:
        A(f"s_cmp_eq_u32 s50, 0\ns_cbranch_scc1 L_m{u}")
        A.label(f"L_r{u}")
        A("s_barrier")
    if u in (4, 12): A("s_add_u32 m0, m0, 4096")
    if u == 8:
        A(f"s_add_u32 m0, s43, {VREG}")
        if PH != 2: continue
    kv_dma(u)
if PB_: A("s_cmp_eq_u32 s50, 0\ns_cbranch_scc1 L_m16")
cont(30)
if PB_: A.label("L_r16")
ids2()
if STAMPS: A("s_mov_b32 s66, 0")
STAMP(2)
if OPT["tw"] >= 0 or OPT["fw"]:
    SX("s100", TRG + 64, ("s4", 7))
    A("v_lshlrev_b32 v149, 2, v2")
    sk = L("ntp")
    A(f"s_cmp_lg_u32 s3, 0\ns_cbranch_scc1 {sk}")
    A(f"buffer_load_dword v136, v149, {RW}, s100 offen sc1")
    A.label(sk)
if OPT["tw"] >= 0:
    sk = L("ntr")
    A(f"s_cmp_lg_u32 s3, {OPT['tw']}\ns_cbranch_scc1 {sk}")
    SX("s40", TRG, ("s4", 7), ("s5", 2))
    A(f"s_waitcnt lgkmcnt(0)\ns_add_u32 s41, {sTAG}, {TAGC:#x}\nv_mov_b32 v136, s41")
    A(f"s_mov_b64 exec, 1\nbuffer_store_dword v136, v0, {RW}, s40 offen")
    fullexec()
    A.label(sk)
SX("s63", 0, ("s4", 4), ("s5", 0))
SX("s96", G5, ("s63", 10))
SX("s98", ST5, ("s4", 7))
A(f"v_lshlrev_b32 v{vQO}, 4, v0\nv_lshlrev_b32 v148, 7, v0\ns_movk_i32 s99, {TOK}")
kload(RC, 48); kload(RB, 56); kload(RE, 64)
A(f"v_mul_u32_u24 v{wG}, 3584, v{T0}\nv_add_u32 v{wG}, v{wG}, v{T1}\nv_lshl_or_b32 v{wDO}, v{T0}, 10, v{T1}")
srd(RC, 1835008); srd(RB, 1835008); srd(RE, 1835008)
SX("s49", 0, ("s63", 0, 2, 7), ("s3", 4))
A("s_mul_i32 s49, s49, 3584")
SX("s50", 0, ("s63", 2, 0, 7))
A(f"s_add_u32 s49, s49, s50\ns_add_u32 s50, s49, {8*3584-1024}")
SX("s51", 0, ("s63", 14), ("s3", 7))
A(f"s_add_u32 s52, s51, {8*1024-1024}\ns_lshl_b32 s42, s3, 11")
SX("s44", QG, ("s58", 12), ("s3", 10))
VX(fMF, T2, 0, (0, 3, 7), (3, 1, 6), (4, 2, 4))
SX("s59", MGT + 2*32768, ("s63", 0, 2, 13), ("s3", 0, 2, 11))
SX("s40", 0, ("s3", 2, 0, 15)); A("s_sub_u32 s59, s59, s40")
VX(T2, 0, 0, (0, 3, 1))
A(f"v_xor_b32 v{T2}, v1, v{T2}\nv_lshlrev_b32 v{T2}, 4, v{T2}\nv_lshl_or_b32 v{T2}, v2, 8, v{T2}")
A(f"v_add_u32 v{vKA}, s43, v{T2}")
for t in range(1, 4):
    A(f"v_xor_b32 v{vKA+t}, {t*64:#x}, v{vKA}")
vQW, vQR, vVR, vMX, vPW, vPR, vMW = 3, 4, 5, 6, 113, 13, 112
SX("s40", QL, ("s3", 5))
VX(vQW, T2, "s40", (1, 4, 7), (5, 1, 4), (0, 1, 3))
VX(vQR, T2, QL, (4, 2, 7), (0, 3, 4))
A(f"v_bfe_u32 v{T0}, v0, 2, 3\nv_xor_b32 v{T0}, s3, v{T0}")
VX(vVR, T2, VREG, (2, 4, 8), (0, 2, 3))
A(f"v_lshl_or_b32 v{vVR}, v{T0}, 5, v{vVR}")
VX(vMX, T2, MISC, (0, 2, 5))
A(f"s_lshl_b32 s40, s3, 2\nv_add_u32 v{vMW}, s40, v{vMX}")
VX(vPR, T2, PL, (4, 2, 6), (0, 2, 4))
A(f"s_lshl_b32 s40, s3, 8\nv_and_b32 v{T2}, 12, v0\nv_add3_u32 v{vPW}, s40, v{vPR}, v{T2}")
A("s_mov_b32 s60, 0xf0f0f0f0\ns_mov_b32 s61, s60\ns_mov_b32 s46, 0xff00ff00\ns_mov_b32 s47, s46")
VX(vOAD, T2, 0, (0, 2, 13), (4, 2, 4))
SX("s53", OG, ("s4", 15), ("s3", 10), ("s5", 6))
VX(vSAD, T2, 0, (0, 2, 8))
SX("s54", SG, ("s4", 10), ("s5", 4))
A(f"s_mov_b32 s55, {f32(C1)}")
A(f"s_waitcnt vmcnt({8 if PH == 2 else 7}) lgkmcnt(0)")
A(f"s_add_u32 {sTAG}, {sTAG}, {TAGC:#x}")
for T in range(2):
    for t in range(4):
        r = vKF + (T*4+t)*4
        A(f"ds_read_b128 v[{r}:{r+3}], v{vKA+t} offset:{T*4096}")
settags(vP+1, vP+3, vST+1, vST+3)
if OPT["ptk"]:
    sk = L("npt")
    A(f"s_cmp_lg_u32 s3, 5\ns_cbranch_scc1 {sk}")
    A("s_mov_b64 exec, 1")
    for r, so in ((RC, "s49"), (RB, "s49"), (RE, "s51")):
        A(f"buffer_load_dword v137, v0, {r}, {so} offen")
    fullexec()
    A.label(sk)
A(f"v_lshlrev_b32 v150, 2, v2\ns_movk_i32 s101, {VOTE}")
sk = L("nqp")
A(f"s_cmp_ge_u32 s3, 4\ns_cbranch_scc1 {sk}")
poll(lambda: A(f"buffer_load_dwordx4 v[{vQ}:{vQ+3}], v{vQO}, {RW}, s44 offen sc1"), lambda: tags_chk([vQ+1, vQ+3], T0), sleep=OPT['s2'])
STAMP(4)
A(f"v_mov_b32 v{vQ+1}, v{vQ+2}\nds_write_b64 v{vQW}, v[{vQ}:{vQ+1}]")
A.label(sk)
A("s_waitcnt vmcnt(0) lgkmcnt(0)\ns_barrier")
STAMP(5)
if STAMPS: A("s_waitcnt lgkmcnt(0)")
for t in range(4):
    A(f"ds_read_b128 v[{vQF+4*t}:{vQF+4*t+3}], v{vQR} offset:{t*512}")
def v_tr(kb, T):
    r = vVF + kb*4 + T*2
    A(f"ds_read_b64_tr_b16 v[{r}:{r+1}], v{vVR} offset:{(32*kb+16*T)*256}")
NV1 = OPT["nv1"]
for t in range(4):
    A(f"s_waitcnt lgkmcnt({3-t})")
    for T in range(2):
        mfma(vS + 4*T, vKF + (T*4+t)*4, vQF + 4*t, None if t == 0 else vS + 4*T)
for kb in range(NV1):
    v_tr(kb, 0); v_tr(kb, 1)
def mf_loads():
    tagged_loads(vMF, fMF, "s59")
mf_loads()
A(f"buffer_load_dword v151, v150, {RW}, s101 offen sc1")
def dn_dma():
    A(f"s_add_u32 m0, s42, {FD}")
    A(f"buffer_load_dwordx4 v{wDO}, {RE}, s51 offen {NT} lds")
    A(f"buffer_load_dwordx4 v{wDO}, {RE}, s52 offen offset:1024 {NT} lds")
DE = OPT["dnearly"]
if DE == 1: dn_dma()
if OPT["dtouch"]:
    A(f"v_lshlrev_b32 v137, 10, v2\nbuffer_load_dword v137, v137, {RE}, s51 offen")
for i in range(8):
    A(f"v_add_f32_dpp v{vS+i}, v{vS+i}, v{vS+i} row_ror:4 {DPPM}")
A(f"v_max3_f32 v{T0}, v{vS}, v{vS+1}, v{vS+2}\nv_max3_f32 v{T2}, v{vS+3}, v{vS+4}, v{vS+5}")
A(f"v_max3_f32 v{T0}, v{T0}, v{vS+6}, v{vS+7}\nv_max_f32 v{T3}, v{T0}, v{T2}\nv_max_f32 v{T0}, v{T0}, v{T2}")
A(f"v_cndmask_b32 v{vS}, v{vS}, v{vS+2}, s[60:61]\nv_cndmask_b32 v{vS+1}, v{vS+1}, v{vS+3}, s[60:61]")
A(f"v_permlane32_swap_b32 v{T0}, v{T3}")
A(f"v_max_f32 v{T2}, v{T0}, v{T3}\nv_max_f32 v{T0}, v{T0}, v{T3}")
A(f"v_cndmask_b32 v{vS+4}, v{vS+4}, v{vS+6}, s[60:61]\nv_cndmask_b32 v{vS+5}, v{vS+5}, v{vS+7}, s[60:61]")
A(f"v_permlane16_swap_b32 v{T0}, v{T2}")
A(f"v_max_f32 v{T0}, v{T0}, v{T2}")
A(f"ds_write_b32 v{vMW}, v{T0}")
A(f"v_cndmask_b32 v{vS}, v{vS}, v{vS+4}, s[46:47]\nv_cndmask_b32 v{vS+1}, v{vS+1}, v{vS+5}, s[46:47]")
A(f"v_mul_f32 v{vS}, s55, v{vS}\nv_mul_f32 v{vS+1}, s55, v{vS+1}")
STAMP(14)
sk = L("nlt")
A(f"s_cmp_lg_u32 s3, 7\ns_cbranch_scc1 {sk}")
A(f"buffer_load_dwordx4 v[136:139], v{vQO}, {RW}, s96 offen sc1")
A(f"buffer_load_dword v136, v{wDO}, {RW}, s98 offen sc1")
A(f"buffer_load_dwordx4 v[140:143], v148, {RW}, s99 offen sc1")
A.label(sk)
A("s_waitcnt lgkmcnt(0)\ns_barrier")
A(f"ds_read_b128 v[{vQF}:{vQF+3}], v{vMX}\nds_read_b128 v[{vQF+4}:{vQF+7}], v{vMX} offset:16")
for kb in range(NV1, 8):
    v_tr(kb, 0); v_tr(kb, 1)
A(f"s_waitcnt lgkmcnt({2*(8 - NV1)})")
A(f"v_max3_f32 v{T0}, v{vQF}, v{vQF+1}, v{vQF+2}\nv_max3_f32 v{T2}, v{vQF+3}, v{vQF+4}, v{vQF+5}")
A(f"v_max3_f32 v{T0}, v{T0}, v{vQF+6}, v{vQF+7}\nv_max_f32 v{T0}, v{T0}, v{T2}")
A(f"v_fma_f32 v{vS}, -v{T0}, s55, v{vS}\nv_fma_f32 v{vS+1}, -v{T0}, s55, v{vS+1}")
A(f"v_exp_f32 v{vS}, v{vS}\nv_exp_f32 v{vS+1}, v{vS+1}")
A(f"v_mul_f32 v{vST}, s55, v{T0}")
A(f"v_cvt_pk_bf16_f32 v{T1}, v{vS}, v{vS+1}")
A(f"v_add_f32 v{T0}, v{vS}, v{vS+1}")
A(f"ds_write_b32 v{vPW}, v{T1}")
A(f"v_add_f32_dpp v{T0}, v{T0}, v{T0} row_ror:4 {DPPM}")
A(f"v_add_f32_dpp v{T3}, v{T0}, v{T0} row_ror:8 {DPPM}\nv_add_f32_dpp v{T0}, v{T0}, v{T0} row_ror:8 {DPPM}")
A(f"v_permlane32_swap_b32 v{T0}, v{T3}")
A(f"v_add_f32 v{T2}, v{T0}, v{T3}\nv_add_f32 v{T0}, v{T0}, v{T3}")
A(f"v_permlane16_swap_b32 v{T0}, v{T2}")
A(f"v_add_f32 v{T0}, v{T0}, v{T2}")
A(f"ds_write_b32 v{vMW}, v{T0} offset:128")
if DE == 2: dn_dma()
A("s_waitcnt lgkmcnt(0)\ns_barrier")
STAMP(3)
if STAMPS: A("s_waitcnt lgkmcnt(0)")
sk = L("nst"); sk2 = L("nsu")
A(f"s_cmp_lg_u32 s3, 0\ns_cbranch_scc1 {sk}")
A(f"ds_read_b128 v[{vQF}:{vQF+3}], v{vMX} offset:128\nds_read_b128 v[{vQF+4}:{vQF+7}], v{vMX} offset:144")
A.label(sk)
for kb in range(8):
    r = vKF + kb*4
    A(f"ds_read_b128 v[{r}:{r+3}], v{vPR} offset:{kb*256}")
A(f"s_cbranch_scc1 {sk2}")
A("s_waitcnt lgkmcnt(8)")
rowsum([vQF, vQF+4])
A(f"v_add_f32 v{vST+2}, v{vQF}, v{vQF+4}")
A("s_mov_b64 exec, 15")
A(f"buffer_store_dwordx4 v[{vST}:{vST+3}], v{vSAD}, {RW}, s54 offen")
fullexec()
A.label(sk2)
for kb in range(8):
    A(f"s_waitcnt lgkmcnt({7-kb})")
    mfma(vOA, vVF + kb*4, vKF + kb*4, None if kb == 0 else vOA)
setexec(0x000f000f, 0x000f000f)
A(f"s_add_u32 m0, s42, {FG}")
A(f"v_cvt_pk_bf16_f32 v{vP}, v{vOA}, v{vOA+1}\nv_cvt_pk_bf16_f32 v{vP+2}, v{vOA+2}, v{vOA+3}")
A(f"buffer_store_dwordx4 v[{vP}:{vP+3}], v{vOAD}, {RW}, s53 offen")
fullexec()
STAMP(7)
A("s_cmp_eq_u32 s4, 7\ns_cbranch_scc1 L_g7")
def ffn_dma():
    if OPT["fw"]:
        A("s_cmp_lg_u32 s3, 1\ns_cbranch_scc1 L_fwd")
        A(f"s_mov_b32 {sCNT}, 0")
        A.label("L_fw")
        A(f"buffer_load_dword v33, v149, {RW}, s100 offen sc1")
        A("s_waitcnt vmcnt(0)")
        A(f"v_cmp_eq_u32 vcc, {sTAG}, v33")
        A(f"s_bcnt1_i32_b32 s40, vcc_lo\ns_cmp_ge_u32 s40, {2*(16-OPT['fany'])}\ns_cbranch_scc1 L_fwd")
        A(f"s_sleep 1\ns_add_u32 {sCNT}, {sCNT}, 1\ns_cmp_lt_u32 {sCNT}, {OPT['fmax']}\ns_cbranch_scc1 L_fw")
        A.label("L_fwd")
    A("s_barrier")
    A(f"buffer_load_dwordx4 v{wG}, {RC}, s49 offen {NT} lds")
    A(f"buffer_load_dwordx4 v{wG}, {RC}, s50 offen offset:1024 {NT} lds")
    A(f"s_add_u32 m0, s42, {FG+16384}")
    A(f"buffer_load_dwordx4 v{wG}, {RB}, s49 offen {NT} lds")
    A(f"buffer_load_dwordx4 v{wG}, {RB}, s50 offen offset:1024 {NT} lds")
    if not DE:
        A("s_barrier")
        dn_dma()
if not OPT["flate"]: ffn_dma()
fYW, fYR, fWR, fGR, fSTA, fY6A = 113, 114, 115, 118, 119, 120
fGA = 116; fG = 144; fUS = 145
fU, fS = 121, 117
wTA = 108; fWF = 84; fDF = 64
VX(wTR, 32, 0, (2, 4, 7), (3, 2, 5), (0, 2, 3))
SX("s40", 0, ("s3", 0, 2, 5)); A(f"v_xor_b32 v{fWR}, s40, v{wTR}")
SX("s40", FG, ("s3", 2, 0, 14)); A(f"v_add_u32 v{fWR}, s40, v{fWR}")
A(f"s_add_u32 s40, s42, {FD}\nv_add_u32 v{wTA}, s40, v{wTR}")
for t in range(1, 4):
    A(f"v_xor_b32 v{wTA+t}, {t*32:#x}, v{wTA}")
A(f"v_add_u32 v{fYR}, {YL0}, v{vQO}")
A(f"s_lshl_b32 s40, s3, 10\nv_add_u32 v{fYW}, s40, v{fYR}")
VX(fGA, 32, 0, (0, 6, 2))
SX("s61", G5 - 64, ("s63", 2, 0, 12), ("s3", 0, 2, 10), ("s5", 0, 2, 8), ("s3", 2, 0, 7))
VX(fGR, 32, 0, (2, 1, 7), (3, 1, 6), (4, 2, 4), (0, 2, 2))
VX(fSTA, 32, 0, (0, 2, 5), (2, 1, 10), (5, 1, 4))
VX(fY6A, 32, 0, (3, 1, 13), (5, 1, 12), (4, 1, 4))
SX("s47", Y4, ("s3", 2, 0, 15), ("s5", 1, 1, 14), ("s5", 0, 1, 12), ("s3", 0, 2, 10))
if OPT["flate"] == 2: A("s_waitcnt vmcnt(0)")
if OPT["flate"]: ffn_dma()
SX("s49", Y6, ("s3", 16), ("s63", 5))
A("s_add_u32 s50, s49, 16384\ns_add_u32 s51, s49, 32768\ns_add_u32 s52, s49, 49152")
A(f"s_mov_b32 s41, {f32(1.0/512)}\ns_mov_b32 s43, {f32(1e-5)}")
poll(mf_loads, lambda: tagged_chk([vMF], 33), first_issued=True, first_wait=4 if DE else 6, sleep=4)
tagged_pack(vMF)
near_bit(151, "s40"); A("s_add_u32 s47, s47, s40")
A(f"ds_write_b128 v{fYW}, v[{vMF}:{vMF+3}]")
sk = L("ntk")
A(f"s_cmp_lg_u32 s3, 7\ns_cbranch_scc1 {sk}")
poll(lambda: A(f"buffer_load_dwordx4 v[140:143], v148, {RW}, s99 offen sc1"), lambda: tags_chk([140, 141, 142, 143], 33), first_issued=True, first_wait=4 if DE else 6, sleep=2)
A.label(sk)
vY = 76
y_load = lambda: A(f"buffer_load_dwordx4 v[{vY}:{vY+3}], v{fMF}, {RW}, s47 offen sc1")
A(f"s_waitcnt vmcnt({0 if DE else 2}) lgkmcnt(0)\ns_barrier")
STAMP(10)
y_load()
YO = [16, 20, 24, 28, 32, 36, 100, 104]
for k in range(4):
    for h in range(2):
        r = fWF + 4*k + 2*h
        A(f"ds_read_b64_tr_b16 v[{r}:{r+1}], v{fWR} offset:{k*4096 + h*2048}")
for u in range(8):
    A(f"ds_read_b128 v[{YO[u]}:{YO[u]+3}], v{fYR} offset:{u*1024}")
A("s_waitcnt lgkmcnt(0)")
for k in range(4):
    for pi in range(2):
        mfma(wD + 4*pi, YO[4*pi+k], fWF + 4*k, None if k == 0 else wD + 4*pi)
rowsum([wD, wD+4])
A(f"v_permlane16_swap_b32 v{wD}, v{wD+4}")
A(f"v_add_f32 v{fU}, v{wD}, v{wD+4}\nv_add_f32 v{fS}, v{wD}, v{wD+4}\nv_mov_b32 v146, s43")
A(f"v_permlane16_swap_b32 v{fU}, v{fS}")
STAMP(1)
poll(y_load, lambda: chk_empty4(vY, 33), first_issued=True, sleep=OPT["x4s"])
STAMP(11)
A(f"ds_write_b128 v{fYW}, v[{vY}:{vY+3}] offset:8192")
A("s_waitcnt lgkmcnt(0)\ns_barrier")
for u in range(8):
    A(f"ds_read_b128 v[{YO[u]}:{YO[u]+3}], v{fYR} offset:{8192+u*1024}")
st_load = lambda: A(f"buffer_load_dwordx4 v[40:43], v{fSTA}, {RW}, s98 offen sc1")
st_load()
for u in range(8):
    A(f"s_waitcnt lgkmcnt({7-u})")
    mfma(wD, YO[u], fWF + 4*(u & 3), None if u == 0 else wD)
for tau in range(4):
    A(f"ds_read_b64_tr_b16 v[{fDF+2*tau}:{fDF+2*tau+1}], v{wTA+tau}")
def st_chk():
    A("v_add_f32 v40, v40, v42\nv_add_f32 v41, v41, v43")
    A("v_cmp_u_f32 vcc, v40, v41")
poll(st_load, st_chk, first_issued=True)
A(f"v_add_f32_dpp v40, v40, v40 quad_perm:[1,0,3,2] {DPPM}\nv_add_f32_dpp v41, v41, v41 quad_perm:[1,0,3,2] {DPPM}")
A(f"v_add_f32 v{wD}, v{wD}, v{wD+1}\nv_add_f32 v{wD+2}, v{wD+2}, v{wD+3}")
A(f"v_add_f32_dpp v40, v40, v40 quad_perm:[2,3,0,1] {DPPM}\nv_add_f32_dpp v41, v41, v41 quad_perm:[2,3,0,1] {DPPM}")
A(f"v_add_f32 v{wD+1}, v{wD}, v{wD+2}\nv_add_f32 v{wD}, v{wD}, v{wD+2}")
A(f"v_add_f32_dpp v40, v40, v40 row_half_mirror {DPPM}\nv_add_f32_dpp v41, v41, v41 row_half_mirror {DPPM}")
A(f"v_permlane16_swap_b32 v{wD}, v{wD+1}")
A("v_mul_f32 v40, s41, v40")
A("v_fma_f32 v41, v41, s41, v146")
A(f"v_add_f32 v{wD}, v{wD}, v{wD+1}")
A("v_fma_f32 v41, -v40, v40, v41")
A(f"v_fma_f32 v{wD}, -v40, v{fU}, v{wD}")
A("v_rsq_f32 v41, v41")
setexec(0xffff0000, 0x0000ffff)
A(f"v_fma_f32 v{fG}, v{wD}, v41, v{fS}")
A(f"buffer_store_dword v{fG}, v{fGA}, {RW}, s61 offen")
fullexec()
STAMP(12)
def g_loads():
    for k in range(4):
        A(f"buffer_load_dword v{20+k}, v{fGR}, {RW}, s96 offen offset:{256*k} sc1")
def g_chk():
    A("v_add_f32 v20, v20, v21\nv_add_f32 v22, v22, v23\nv_add_f32 v20, v20, v22")
    A("v_cmp_u_f32 vcc, v20, v20")
poll(g_loads, g_chk)
STAMP(13)
A("v_max_f32 v21, 0, v20")
A(f"v_mul_f32_dpp v22, v20, v21 row_shl:4 {DPPM}")
pack4(22, 24, 25, 23)
A("s_waitcnt lgkmcnt(0)")
for tau in range(4):
    d = 32 + 4*tau
    A(f"v_mfma_f32_16x16x16_bf16 v[{d}:{d+3}], v[{fDF+2*tau}:{fDF+2*tau+1}], v[24:25], 0")
setexec(0x01010101, 0x01010101)
for tau in range(4):
    d = 32 + 4*tau
    A(f"buffer_store_dwordx4 v[{d}:{d+3}], v{fY6A}, {RW}, s{49+tau} offen sc1")
STAMP(8)
if OPT["nore"]: A("s_branch L_exit")
A("s_waitcnt vmcnt(0)")
setexec(0xffff0000, 0x0000ffff)
A(f"buffer_store_dword v{fG}, v{fGA}, {RW}, s61 offen sc1")
A("s_branch L_exit")
A.label("L_g7")
A("s_cmp_lg_u32 s3, 0\ns_cbranch_scc1 L_exit")
VX(T1, T2, 0, (3, 1, 15), (2, 1, 14), (0, 2, 11))
A(f"s_mov_b32 s46, {X4 + 7*128:#x}")
poll(lambda: A(f"buffer_load_dword v16, v{T1}, {RW}, s46 offen sc1"), lambda: A("v_cmp_eq_u32 vcc, -1, v16"), sleep=8)
A("s_branch L_exit")

A.seg(4.5)
def m_init():
    SX("s48", PROBE, ("s2", 8), ("s2", 3, 1, 13))
    A("s_xor_b32 s49, s48, 0x2000")
    A(f"s_load_dword s40, s[16:17], s48 glc\ns_load_dword s41, s[16:17], s49 glc")
    A(f"s_mov_b32 s38, -1\ns_mov_b32 s39, -1\ns_mov_b32 {sCNT}, 0")
def m_rep():
    for off, acc in (("s48", "s38"), ("s49", "s39")):
        A("s_waitcnt lgkmcnt(0)\ns_memtime s[32:33]\ns_waitcnt lgkmcnt(0)")
        A(f"s_load_dword s40, s[16:17], {off} glc\ns_waitcnt lgkmcnt(0)")
        A("s_memtime s[34:35]\ns_waitcnt lgkmcnt(0)")
        A(f"s_sub_u32 s40, s34, s32\ns_min_u32 {acc}, {acc}, s40")
def m_vote():
    srd(RW, WS_BYTES)
    A("s_cmp_lt_u32 s39, s38\ns_cselect_b32 s40, s49, s48")
    A("s_lshr_b32 s40, s40, 11\ns_xor_b32 s40, s40, s2\ns_lshl_b32 s40, s40, 29\ns_and_b32 s40, s40, 0x80000000")
    A(f"s_add_u32 s41, {sTAG}, {TAGC:#x}\ns_xor_b32 s40, s40, s41\nv_mov_b32 v136, s40")
    SX("s40", VOTE, ("s2", 2))
    A(f"s_mov_b64 exec, 1\nbuffer_store_dword v136, v0, {RW}, s40 offen sc1")
    fullexec()
if not PB_:
    A.label("L_meas")
    m_init()
    A(f"s_load_dword {sTAG}, s[16:17], 0")
    A.label("L_ms")
    m_rep()
    A(f"s_add_u32 {sCNT}, {sCNT}, 1\ns_cmp_lt_u32 {sCNT}, {OPT['reps']}\ns_cbranch_scc1 L_ms")
    m_vote()
    A("s_branch L_go")
else:
    A.label("L_m4"); m_init(); A("s_branch L_r4")
    A.label("L_m8"); m_rep(); A("s_branch L_r8")
    A.label("L_m12"); m_rep()
    if PB_ == 2: m_vote()
    A("s_branch L_r12")
    A.label("L_m16")
    if PB_ == 1:
        m_rep(); m_vote()
    A("s_branch L_r16")

A.seg(0)
IS_NA = "s_cmp_lg_u32 s6, 0"; IS_A = "s_cmp_eq_u32 s6, 0"
R3 = OPT["r3"]
def w_common(first=True):
    kload(RB, 32); kload(RF, 88)
    if first:
        A(f"s_load_dword {sTAG}, s[16:17], 0")
        ids2()
    A(f"v_lshl_or_b32 v{wO}, v{T0}, 10, v{T1}")
    srd(RB, 4194304); A("s_movk_i32 s26, 2048")
def wq_setup(sh):
    A(f"v_lshl_or_b32 v{wQ}, v{T0}, 13, v{T1}")
    A("s_mov_b32 s10, 4194304")
    A(f"s_lshl_b32 s48, s3, {12-sh}")
    SX("s43", 0, ("s6", 8), ("s48", 7, 0, 0))
    SX("s44", 0, ("s43", 13), ("s4", 10), ("s46", 0))
def wq_dma():
    A(f"s_add_u32 m0, s48, {WQL}")
    for u in range(4):
        if u: A(f"s_add_u32 s44, s44, {8*8192-1024}")
        A(f"buffer_load_dwordx4 v{wQ}, {RA}, s44 offen offset:{u*1024} {NT} lds")
def c_setup():
    VX(T2, T3, 0, (5, 1, 10), (0, 5, 2))
    srd(RE, 2048)
srd(RC, 3145728)
A(f"v_mul_u32_u24 v{wM}, 6144, v{T0}\ns_lshl_b32 s46, s7, 7\nv_add_u32 v{wM}, v{wM}, v{T1}")
A(f"{IS_NA}\ns_cbranch_scc1 L_nA")
A("s_lshl_b32 s49, s4, 7")
A("s_cmp_lt_u32 s3, 256\ns_cbranch_scc1 L_A1")
A("s_sub_u32 s40, s3, 256")
SX("s61", 0, ("s7", 6), ("s40", 2, 0, 0))
A(f"s_mul_i32 s61, s61, 6144\ns_add_u32 s61, s61, s49\ns_add_u32 s62, s61, {8*6144-1024}")
A(f"s_lshl_b32 s40, s40, 5\ns_add_u32 m0, s40, {PA}")
A("s_waitcnt lgkmcnt(0)")
STAMP(1)
A(f"buffer_load_dwordx4 v{wM}, {RC}, s61 offen {NT} lds")
A(f"buffer_load_dwordx4 v{wM}, {RC}, s62 offen offset:1024 {NT} lds")
A(f"s_add_u32 m0, s40, {PA+8192-1024}")
A(f"buffer_load_dwordx4 v{wM}, {RC}, s61 offen offset:1024 {NT} lds")
A(f"buffer_load_dwordx4 v{wM}, {RC}, s62 offen offset:2048 {NT} lds")
wq_setup(6)
A("s_barrier")
wq_dma()
A("s_waitcnt vmcnt(4)\ns_barrier")
cont(5)
A("v_mov_b32 v32, -1\nv_mov_b32 v33, -1\nv_mov_b32 v34, -1\nv_mov_b32 v35, -1\nv_lshlrev_b32 v38, 3, v0")
SX("s54", G5, ("s4", 14), ("s7", 11), ("s40", 2, 0, 0))
srd(RW, WS_BYTES)
A(f"buffer_store_dwordx2 v[32:33], v38, {RW}, s54 offen sc1")
A(f"v_lshl_or_b32 v37, v{T0}, 10, v{T1}")
SX("s41", 0, ("s7", 14), ("s40", 1))
SX("s54", X4, ("s41", 0), ("s4", 7))
A(f"s_cmp_eq_u32 s41, {31*4096}\ns_cselect_b32 exec_hi, 0xffff, 0")
A(f"buffer_store_dwordx4 v[32:35], v37, {RW}, s54 offen sc1")
fullexec()
A.seg(1)
A.label("L_A1")
c_setup()
VX(36, T3, 0, (4, 1, 10), (5, 1, 8), (0, 4, 4))
A("s_movk_i32 s26, 2048")
A("s_waitcnt lgkmcnt(0)")
STAMP(1)
A(f"buffer_load_dword v{wC}, v{T2}, {RE}, s46 offen {SNT}")
A(f"buffer_load_dwordx4 v[{wX}:{wX+3}], v36, {RD}, 0 offen {SNT}")
A(f"buffer_load_dwordx4 v[{wX+4}:{wX+7}], v36, {RD}, 0 offen offset:512 {SNT}")
VX(37, T3, 0, (4, 1, 10), (0, 4, 1))
A(f"s_lshr_b32 s50, s3, 1\ns_add_u32 s50, s50, s49\nv_mov_b32 v{wXS}, 0")
A(f"buffer_load_short_d16_hi v{wXS}, v37, {RD}, s50 offen {SNT}")
A(f"s_load_dword {sTAG}, s[16:17], 0")
A("s_barrier")
cont(4)
ids2()
tr_setup()
VX(39, 32, 0, (4, 1, 6), (2, 2, 4))
SX("s53", H1G, ("s4", 12), ("s3", 10), ("s46", 0))
A("s_cmp_eq_u32 s7, 0\ns_cselect_b32 s54, 1.0, 0")
unit_pre("0", "s54", PA)
silu_operand(3)
A("v_mov_b32 v36, 0\nv_mov_b32 v37, 0\nv_mov_b32 v38, 0x3f803f80")
A(f"s_waitcnt vmcnt(0)")
for i in range(8):
    A(f"v_dot2c_f32_bf16 v36, v{wX+i}, v38\nv_dot2c_f32_bf16 v37, v{wX+i}, v{wX+i}")
for m in ("quad_perm:[1,0,3,2]", "quad_perm:[2,3,0,1]", "row_half_mirror", "row_mirror"):
    A(f"v_add_f32_dpp v36, v36, v36 {m} {DPPM}\nv_add_f32_dpp v37, v37, v37 {m} {DPPM}")
A("v_mov_b32 v38, v36\nv_mov_b32 v35, v37")
A("v_permlane32_swap_b32 v36, v38\nv_permlane32_swap_b32 v37, v35")
A("v_add_f32 v36, v36, v38\nv_add_f32 v37, v37, v35")
A(f"v_mul_f32 v36, {f32(1.0/512)}, v36\nv_mov_b32 v38, {f32(1e-5)}\nv_fmac_f32 v38, {f32(1.0/512)}, v37")
A("v_fma_f32 v38, -v36, v36, v38\nv_rsq_f32 v38, v38")
A(f"v_sub_f32 v{wXS}, v{wXS}, v36\nv_mul_f32 v{wXS}, v{wXS}, v38")
A("s_waitcnt lgkmcnt(0)")
A(f"s_add_u32 {sTAG}, {sTAG}, {TAGC:#x}")
settags(wD+9, wD+11)
wq_setup(0)
A("s_barrier")
unit_go()
A(f"v_fma_f32 v32, v{wXS}, v{wD+4}, v{wD}")
pack4(32, wD+8, wD+10, 33)
setexec(0x11111111, 0)
A(f"buffer_store_dwordx4 v[{wD+8}:{wD+11}], v39, {RW}, s53 offen sc1")
fullexec()
STAMP(14)
wq_dma()
w_common(False)
A("s_branch L_B")
A.seg(2)
A.label("L_nA")
wq_setup(6)
SX("s51", 0, ("s7", 6), ("s3", 3, 0, 0))
if R3 & 1: SX("s52", 384, ("s51", 13), ("s4", 10))
A("s_mul_i32 s51, s51, 6144")
A("s_waitcnt lgkmcnt(0)")
STAMP(1)
if R3 & 2:
    sk = L("n3a")
    A(f"s_cmp_lg_u32 s4, 3\ns_cbranch_scc1 {sk}")
    A(f"buffer_load_dword v{vPF}, v{wM}, {RC}, s51 offen offset:{1024+384}")
    A.label(sk)
if R3 & 1: A(f"buffer_load_dword v{vPF}, v{wQ}, {RA}, s52 offen")
wq_dma()
A("s_lshl_b32 s42, s3, 4")
SX("s40", 2048, ("s4", 8)); A("s_add_u32 s51, s51, s40")
c_setup()
A(f"buffer_load_dword v{wC}, v{T2}, {RE}, s46 offen {SNT}")
A("s_barrier")
for j, o in enumerate((0, 128, 2048, 2048+128)):
    A(f"s_add_u32 m0, s42, {PB + j*8192 - o}")
    A(f"buffer_load_dwordx4 v{wM}, {RC}, s51 offen offset:{o} {NT} lds")
A("s_branch L_wc")
A.seg(6)
A.label("L_wc")
w_common()
tr_setup()
A("s_waitcnt lgkmcnt(0)")
A(f"s_add_u32 {sTAG}, {sTAG}, {TAGC:#x}")
A.label("L_B")
srd(RF, 2048)
SX("s47", 0, ("s4", 19), ("s43", 10), ("s46", 0))
wRW, wRR, wOF, wTA = 14, 15, 72, 108
SX("s40", RED, ("s3", 9)); VX(wRW, 32, "s40", (0, 6, 2))
SX("s40", RED, ("s3", 8)); VX(wRR, 32, "s40", (0, 6, 2))
VX(wOF, 32, 0, (0, 3, 7), (3, 1, 6), (4, 2, 4))
SX("s53", H1G, ("s43", 6))
wQA = 73; wQD = 76; wYD = 92
VX(wQA, 32, 0, (5, 1, 12), (0, 5, 2))
SX("s56", QG, ("s4", 13), ("s5", 8), ("s3", 7))
A(f"v_add_u32 v{wTA}, s48, v{wTR}")
for t in range(1, 4):
    A(f"v_xor_b32 v{wTA+t}, {t*32:#x}, v{wTA}")
settags(wQD+1, wQD+3)
wGA, wCB, wXA, wXAD = 74, 75, 80, 81
tE, tOUT, tBP, tL16 = 84, 114, 115, 116
SX("s59", Y6, ("s5", 15), ("s4", 1, 1, 14), ("s4", 0, 1, 12))
A("s_cmp_eq_u32 s3, 7\ns_cselect_b32 s40, 0, -1")
A("v_mov_b32 v118, s40\nv_mov_b32 v119, s40\nv_lshlrev_b32 v121, 3, v0")
SX("s99", 0, ("s3", 9), ("s59", 0), ("s2", 2, 1, 13))
VX(T1, 32, 0, (0, 4, 6), (4, 2, 4))
SX("s51", OG, ("s4", 15), ("s43", 6))
SX("s54", SG, ("s4", 10), ("s43", 7, 0, 8))
A(f"v_lshlrev_b32 v{T0}, 2, v1\nv_xor_b32 v{T0}, v0, v{T0}\nv_and_b32 v{T0}, 7, v{T0}\nv_lshlrev_b32 v{T0}, 4, v{T0}")
A(f"v_lshrrev_b32 v32, 5, v0\nv_lshl_or_b32 v{T0}, v32, 7, v{T0}")
VX(wXAD, 32, 0, (5, 1, 6), (2, 2, 4), (4, 1, 3))
SX("s60", X4, ("s7", 2, 0, 14), ("s7", 0, 2, 11), ("s3", 0, 1, 10), ("s6", 15), ("s4", 7))
A(f"s_add_u32 s52, s60, {Y4-X4}\ns_add_u32 s100, s60, 8192\ns_add_u32 s101, s52, 8192")
A("v_and_b32 v32, 1, v0\nv_lshlrev_b32 v32, 4, v32\nv_mov_b32 v33, 0x3f80\nv_lshlrev_b32 v32, v32, v33")
A("v_lshrrev_b32 v33, 2, v2\nv_sub_u32 v33, v1, v33\nv_bfe_u32 v34, v0, 1, 1\nv_lshl_or_b32 v33, v33, 1, v34")
for r in range(2):
    A(f"v_cmp_eq_u32 vcc, {r}, v33")
    A(f"v_mov_b32 v{tE+2+r}, 0\nv_mov_b32 v{tE+4+r}, 0")
    A(f"v_cndmask_b32 v{tE+r}, 0, v32, vcc\nv_cndmask_b32 v{tE+6+r}, 0, v32, vcc")
VX(38, 33, 0, (0, 1, 3), (5, 1, 1), (4, 1, 2))
SX("s40", 0, ("s4", 0, 2, 4)); A(f"v_add_u32 v{tOUT}, s40, v38")
A(f"v_lshlrev_b32 v{tL16}, 4, v0")
SX("s49", X4, ("s6", 14), ("s7", 10))
SX("s55", ST5, ("s4", 7), ("s7", 0, 2, 5), ("s7", 2, 0, 10), ("s6", 3))
VX(113, 33, 0, (5, 1, 4), (4, 1, 2))
SX("s61", MGT, ("s7", 12), ("s3", 11))
SX("s40", MGT + 3*32768, ("s5", 11))
A("s_cmp_eq_u32 s3, 2\ns_cselect_b32 s61, s40, s61\ns_cselect_b32 s40, 0, 0x10000\ns_add_u32 s63, s61, s40")
VX(120, 33, 0, (5, 1, 10), (0, 5, 1))
SX("s42", 0, ("s7", 7), ("s3", 6))
A(f"v_mov_b32 v{wXA}, 0")
VX(39, 32, 0, (5, 1, 12), (4, 1, 6), (2, 2, 4))
SX("s41", OG, ("s4", 15), ("s5", 11))
A(f"v_lshlrev_b32 v{T3}, 7, v2\nv_lshlrev_b32 v117, 10, v1")
SX("s57", 384, ("s4", 19), ("s5", 15), ("s3", 12))
def blk_frags(off):
    for t in range(4):
        for h in range(2):
            r = wWF + 4*t + 2*h
            A(f"ds_read_b64_tr_b16 v[{r}:{r+1}], v{wTA+t} offset:{off + h*2048}")
h1_loads = lambda: tagged_loads(16, wOF, "s53")
A("v_lshlrev_b32 v122, 2, v2")
if OPT["ptw"]:
    sk = L("npt")
    A(f"s_cmp_lg_u32 s3, 5\ns_cbranch_scc1 {sk}")
    A("s_mov_b64 exec, 1")
    A(f"buffer_load_dword v{vPF}, v0, {RB}, s47 offen")
    A(f"buffer_load_dword v{vPF}, v0, {RF}, 0 offen")
    fullexec()
    A.label(sk)
sk = L("nmb"); sk2 = L("nmc")
A(f"{IS_A}\ns_cbranch_scc1 {sk}")
SX("s96", MGT, ("s4", 13), ("s3", 2, 0, 16), ("s3", 0, 2, 10), ("s46", 0))
SX("s40", 0, ("s4", 2, 1, 3), ("s3", 2, 0, 4), ("s7", 0))
A("s_cmp_eq_u32 s40, 16\ns_cselect_b32 s97, 1.0, 0")
SX("s98", PB, ("s3", 2, 0, 14))
unit_pre("s97", "s97", "s98")
settags(wD+9, wD+11)
silu_operand(4)
A(f"s_waitcnt vmcnt({OPT['h1at']})")
h1_loads()
A("s_waitcnt vmcnt(2) lgkmcnt(0)\ns_barrier")
unit_go()
A("v_cmp_gt_u32 vcc, 32, v0")
A(f"v_cndmask_b32 v32, v{wD+4}, v{wD}, vcc")
blk_frags(WQL)
pack4(32, wD+8, wD+10, 34)
setexec(0x11111111, 0x11111111)
A(f"buffer_store_dwordx4 v[{wD+8}:{wD+11}], v39, {RW}, s96 offen sc1")
fullexec()
STAMP(6)
A(f"s_branch {sk2}")
A.label(sk)
sk3 = L("ntk")
A(f"s_cmp_lt_u32 s3, 4\ns_cbranch_scc1 {sk3}")
SX("s40", TOK - 16, ("s4", 10), ("s46", 0), ("s3", 2))
A("s_waitcnt vmcnt(0)")
A(f"s_mov_b64 exec, 1\nbuffer_store_dword v{wQD+1}, v0, {RW}, s40 offen sc1")
fullexec()
A.label(sk3)
A(f"s_waitcnt vmcnt({OPT['h1at']})")
h1_loads()
A("s_waitcnt vmcnt(2)")
blk_frags(WQL)
A("s_waitcnt vmcnt(0)")
A.label(sk2)
STAMP(3)
poll(h1_loads, lambda: tagged_chk([16], 33), first_issued=True, first_wait=1, sleep=OPT["s2"])
STAMP(4)
tagged_pack(16)
A("s_waitcnt lgkmcnt(0)")
def blk_mfma(op):
    for t in range(4):
        mfma(wD + 4*t, op, wWF + 4*t, None)
def blk_reduce():
    A(f"v_permlane16_swap_b32 v{wD}, v{wD+4}\nv_permlane16_swap_b32 v{wD+8}, v{wD+12}")
    A(f"v_add_f32 v{wD}, v{wD}, v{wD+4}\nv_add_f32 v{wD+8}, v{wD+8}, v{wD+12}")
    A(f"ds_write2st64_b32 v{wRW}, v{wD}, v{wD+8} offset0:0 offset1:1")
    A("s_cmp_ge_u32 s3, 2")
    A("s_waitcnt lgkmcnt(0)\ns_barrier")
def blk_final():
    for i in range(4):
        A(f"ds_read2st64_b32 v[{32+2*i}:{33+2*i}], v{wRR} offset0:{4*i} offset1:{4*i+2}")
    if STAMPS: A("s_waitcnt lgkmcnt(0)")
    A("s_waitcnt lgkmcnt(2)")
    A("v_add_f32 v32, v32, v33\nv_add_f32 v34, v34, v35\nv_add_f32 v32, v32, v34")
    A("s_waitcnt lgkmcnt(0)")
    A("v_add_f32 v36, v36, v37\nv_add_f32 v38, v38, v39\nv_add_f32 v36, v36, v38\nv_add_f32 v32, v32, v36")
blk_mfma(16)
rowsum([wD, wD+4, wD+8, wD+12])
blk_reduce()
sk = L("nq")
A(f"s_cbranch_scc1 {sk}")
blk_final()
pack4(32, wQD, wQD+2, 33)
setexec(0x11111111, 0x11111111)
A(f"buffer_store_dwordx4 v[{wQD}:{wQD+3}], v{wQA}, {RW}, s56 offen")
fullexec()
A.label(sk)
STAMP(5)
A(f"s_add_u32 m0, s48, {WOL}")
def wo_dma():
    if R3 & 4: A(f"buffer_load_dword v{vPF}, v117, {RB}, s57 offen")
    for u in range(4):
        if u: A(f"s_add_u32 s47, s47, {8*1024-1024}")
        A(f"buffer_load_dwordx4 v{wO}, {RB}, s47 offen offset:{u*1024} {NT} lds")
if OPT["woe"] < 8:
    sk = L("nwf")
    A(f"s_cmp_lt_u32 s3, {OPT['woe']}\ns_cbranch_scc1 {sk}")
    wo_dma()
    A.label(sk)
if OPT["tw"] >= 0:
    A("s_cmp_lg_u32 s3, 4\ns_cbranch_scc1 L_trgd")
    SX("s40", TRG, ("s4", 7))
    A(f"s_mov_b32 {sCNT}, 0")
    A.label("L_trg")
    A(f"buffer_load_dword v33, v122, {RW}, s40 offen sc1")
    A("s_waitcnt vmcnt(0)")
    A(f"v_cmp_eq_u32 vcc, {sTAG}, v33")
    A(f"s_bcnt1_i32_b32 s44, vcc_lo\ns_cmp_ge_u32 s44, {2*(16-OPT['tany'])}\ns_cbranch_scc1 L_trgd")
    A(f"s_sleep 1\ns_add_u32 {sCNT}, {sCNT}, 1\ns_cmp_lt_u32 {sCNT}, {OPT['tmax']}\ns_cbranch_scc1 L_trg")
    A.label("L_trgd")
A("s_barrier")
def mc_loads():
    tagged_loads(128, wOF, "s61"); tagged_loads(136, wOF, "s63")
sk = L("nc0"); sk2 = L("nc3")
A(f"s_cmp_ge_u32 s3, 3\ns_cbranch_scc1 {sk}")
mc_loads()
A(f"s_cmp_lg_u32 s58, 0\ns_cbranch_scc1 {sk2}")
A(f"buffer_load_short_d16_hi v{wXA}, v120, {RD}, s42 offen")
A(f"s_branch {sk2}")
A.label(sk)
A(f"s_cmp_lg_u32 s3, 3\ns_cbranch_scc1 {sk2}")
A(f"buffer_load_dword v{vPF}, v{T3}, {RW}, s41 offen sc1")
if OPT["sgt"]:
    SX("s40", SG, ("s4", 10))
    A(f"buffer_load_dword v{vPF}, v{tL16}, {RW}, s40 offen sc1")
A.label(sk2)
if OPT["clrpre"]: A(f"buffer_store_dwordx2 v[118:119], v121, {RW}, s99 offen sc1")
if OPT["woe"] < 8:
    sk = L("nwe")
    A(f"s_cmp_ge_u32 s3, {OPT['woe']}\ns_cbranch_scc1 {sk}")
wo_dma()
if OPT["woe"] < 8: A.label(sk)
if not OPT["clrpre"]: A(f"buffer_store_dwordx2 v[118:119], v121, {RW}, s99 offen sc1")
sk = L("nc1")
A(f"s_cmp_ge_u32 s3, 3\ns_cbranch_scc1 {sk}")
poll(mc_loads, lambda: tagged_chk([128, 136], 33), first_issued=True, first_wait=4 if OPT["clrpre"] else 5, sleep=2)
tagged_pack(128); tagged_pack(136)
for i in range(2):
    for t in range(2):
        mfma(wD + 8*i + 4*t, 128 + 8*i, tE + 4*t, None)
rowsum([wD, wD+4, wD+8, wD+12])
A(f"v_permlane16_swap_b32 v{wD}, v{wD+4}\nv_permlane16_swap_b32 v{wD+8}, v{wD+12}")
A(f"v_add_f32 v{wGA}, v{wD}, v{wD+4}\nv_add_f32 v{wCB}, v{wD+8}, v{wD+12}")
STAMP(2)
A.label(sk)
wF = 100
sg_load = lambda: A(f"buffer_load_dwordx4 v[16:19], v{T0}, {RW}, s54 offen sc1")
A(f"s_waitcnt vmcnt({0 if OPT['clrpre'] else 1})")
if OPT["fw"]:
    sk = L("nfw")
    A(f"s_cmp_lg_u32 s3, 7\ns_cbranch_scc1 {sk}")
    SX("s40", TRG + 64, ("s4", 7), ("s5", 2))
    A(f"s_mov_b64 exec, 1\nbuffer_store_dword v{wQD+1}, v0, {RW}, s40 offen")
    fullexec()
    A.label(sk)
blk_frags(WOL)
STAMP(7)
await_any(sg_load, lambda: A(f"v_cmp_eq_u32 vcc, {sTAG}, v19"), OPT["s1"])
poll(sg_load, lambda: tags_chk([17, 19], 33), first_issued=True, sleep=2*OPT["s2"])
o_loads = lambda: tagged_loads(24, T1, "s51")
o_loads()
A(f"v_max_f32_dpp v17, v16, v16 quad_perm:[1,0,3,2] {DPPM}")
A(f"v_max_f32_dpp v17, v17, v17 quad_perm:[2,3,0,1] {DPPM}")
A(f"v_max_f32_dpp v17, v17, v17 row_half_mirror {DPPM}")
A("v_sub_f32 v16, v16, v17\nv_exp_f32 v16, v16\nv_mul_f32 v17, v16, v18")
for m in ("quad_perm:[1,0,3,2]", "quad_perm:[2,3,0,1]", "row_half_mirror"):
    A(f"v_add_f32_dpp v17, v17, v17 {m} {DPPM}")
A(f"v_rcp_f32 v17, v17\nv_mul_f32 v{wF}, v16, v17")
STAMP(8)
A("s_waitcnt lgkmcnt(0)")
poll(o_loads, lambda: tagged_chk([24], 33), first_issued=True, first_wait=0)
STAMP(9)
tagged_pack(24)
blk_mfma(24)
for t in range(4):
    A(f"v_mul_f32_dpp v{wD+4*t}, v{wF}, v{wD+4*t} row_newbcast:0 {DPPM}")
for r in range(1, 4):
    for t in range(4):
        A(f"v_fmac_f32_dpp v{wD+4*t}, v{wF}, v{wD+4*t+r} row_newbcast:{r} {DPPM}")
blk_reduce()
A("s_cbranch_scc1 L_fin")
blk_final()
A(f"v_fma_f32 v32, v32, v{wGA}, v{wXA}")
A(f"v_mul_f32 v36, v32, v{wCB}")
A(f"v_mov_b32_dpp v33, v32 quad_perm:[1,1,3,3] {DPPM}")
A(f"v_mov_b32_dpp v37, v36 quad_perm:[1,1,3,3] {DPPM}")
A("v_cvt_pk_bf16_f32 v34, v32, v33\nv_cvt_pk_bf16_f32 v38, v36, v37")
A(f"v_mov_b32_dpp v35, v34 quad_perm:[2,2,2,2] {DPPM}")
A(f"v_mov_b32_dpp v39, v38 quad_perm:[2,2,2,2] {DPPM}")
setexec(0x11111111, 0x11111111)
A(f"buffer_store_dwordx2 v[38:39], v{wXAD}, {RW}, s52 offen sc1")
A(f"buffer_store_dwordx2 v[38:39], v{wXAD}, {RW}, s101 offen sc1")
A(f"buffer_store_dwordx2 v[34:35], v{wXAD}, {RW}, s60 offen sc1")
A(f"buffer_store_dwordx2 v[34:35], v{wXAD}, {RW}, s100 offen sc1")
STAMP(10)
A("s_branch L_exit")
A.label("L_fin")
A("s_cmp_gt_u32 s3, 2\ns_cbranch_scc1 L_exit")
A(f"v_lshlrev_b32 v32, 7, v0\ns_movk_i32 s40, {TOK}\ns_movk_i32 s41, {VOTE}")
def tv_loads():
    A(f"buffer_load_dwordx4 v[16:19], v32, {RW}, s40 offen sc1")
    A(f"buffer_load_dword v20, v122, {RW}, s41 offen sc1")
def tv_chk():
    A(f"v_xor_b32 v33, {sTAG}, v20\nv_lshlrev_b32 v33, 1, v33")
    for t in (16, 17, 18, 19): A(f"v_bitop3_b32 v33, v{t}, {sTAG}, v33 bitop3:0xbe")
    A("v_cmp_ne_u32 vcc, 0, v33")
poll(tv_loads, tv_chk, sleep=2)
near_bit(20, "s44")
A("s_add_u32 s49, s49, s44\ns_add_u32 s50, s49, 32768\ns_add_u32 s59, s59, s44")
def x4_loads():
    A(f"buffer_load_dwordx4 v[16:19], v{wOF}, {RW}, s49 offen sc1")
    A(f"buffer_load_dwordx4 v[20:23], v{wOF}, {RW}, s50 offen sc1")
def x4_chk():
    A("v_max3_u32 v33, v16, v17, v18\nv_max3_u32 v34, v19, v20, v21\nv_max3_u32 v33, v33, v22, v23\nv_max_u32 v33, v33, v34\nv_cmp_eq_u32 vcc, -1, v33")
poll(x4_loads, x4_chk, sleep=OPT["x4s"])
STAMP(11)
for hp in range(2):
    for t in range(2):
        mfma(wD + 4*t, 16 + 4*hp, tE + 4*t, None if hp == 0 else wD + 4*t)
rowsum([wD, wD+4])
A(f"v_permlane16_swap_b32 v{wD}, v{wD+4}")
A(f"v_add_f32 v42, v{wD}, v{wD+4}\nv_add_f32 v43, v{wD}, v{wD+4}")
A("v_mul_f32 v44, v42, v42")
A("v_permlane16_swap_b32 v43, v44")
A(f"v_add_f32 v{wQD}, v43, v44")
for m in ("quad_perm:[1,0,3,2]", "quad_perm:[2,3,0,1]", "row_half_mirror", "row_mirror"):
    A(f"v_add_f32_dpp v{wQD}, v{wQD}, v{wQD} {m} {DPPM}")
setexec(0x00010001, 0x00010001)
A(f"buffer_store_dword v{wQD}, v113, {RW}, s55 offen")
fullexec()
STAMP(12)
A(f"s_lshr_b32 s40, s44, 6\nv_lshl_add_u32 v{tBP}, v{tOUT}, 1, s40")
SX("s62", 0, ("s44", 3, 0, 0), ("s5", 6))
A(f"ds_bpermute_b32 v42, v{tBP}, v42\nds_bpermute_b32 v{wGA}, v{tBP}, v{wGA}")
A("s_xor_b32 s40, s60, 512\ns_add_u32 s40, s40, s44\nv_mov_b32 v32, 0")
poll(lambda: A(f"buffer_load_dword v16, v32, {RW}, s40 offen sc1"), lambda: A("v_cmp_eq_u32 vcc, -1, v16"), sleep=1)
def y6_loads():
    for i in range(4):
        A(f"buffer_load_dwordx4 v[{16+4*i}:{19+4*i}], v{tL16}, {RW}, s59 offen offset:{1024*i} sc1")
def y6_chk():
    for r in range(4):
        A(f"v_add_f32 v{16+r}, v{16+r}, v{20+r}\nv_add_f32 v{24+r}, v{24+r}, v{28+r}")
    for r in range(4):
        A(f"v_add_f32 v{16+r}, v{16+r}, v{24+r}")
    A("v_permlane32_swap_b32 v16, v17\nv_permlane32_swap_b32 v18, v19")
    A("v_add_f32 v16, v16, v17\nv_add_f32 v18, v18, v19")
    A("v_permlane16_swap_b32 v16, v18")
    A("v_add_f32 v16, v16, v18")
    A("v_cmp_u_f32 vcc, v16, v16")
if OPT["ysent"]:
    await_any(lambda: A(f"buffer_load_dword v16, v{tL16}, {RW}, s59 offen sc1"), lambda: A("v_cmp_o_f32 vcc, v16, v16"), 2)
if OPT["ysent"] == 2:
    poll(lambda: A(f"buffer_load_dword v16, v{tL16}, {RW}, s59 offen sc1"), lambda: A("v_cmp_u_f32 vcc, v16, v16"), first_issued=True)
poll(y6_loads, y6_chk, sleep=OPT["y6s"])
STAMP(13)
for m in ("row_ror:8", "row_ror:4", "row_ror:2"):
    A(f"v_add_f32_dpp v16, v16, v16 {m} {DPPM}")
A("s_waitcnt lgkmcnt(0)")
setexec(0x00030003, 0x00030003)
A(f"v_fma_f32 v16, v16, v{wGA}, v42")
A("v_cvt_pk_bf16_f32 v16, v16, v16")
A(f"buffer_store_short v16, v{tOUT}, {RF}, s62 offen")
A("s_cmp_lg_u32 s2, 128\ns_cbranch_scc1 L_exit")
A(f"s_sub_u32 s40, {sTAG}, {TAGC-1:#x}")
A("v_mov_b32 v17, s40\nv_mov_b32 v18, 0")
A("s_mov_b64 exec, 1")
A(f"buffer_store_dword v17, v18, {RW}, 0 offen sc1")
A("s_branch L_exit")
A.seg(40)
A.label("L_exit")
if STAMPS == 1:
    STAMP(15)
    A("s_waitcnt lgkmcnt(0)")
    A("s_mov_b64 exec, 1")
    SX("s40", DBG, ("s2", 9), ("s3", 6))
    A("v_mov_b32 v0, 0")
    for q in range(4):
        for i in range(4):
            A(f"v_mov_b32 v{4+4*q+i}, s{64+2*(4*q+i)}")
        A(f"buffer_store_dwordx4 v[{4+4*q}:{7+4*q}], v0, {RW}, s40 offen offset:{16*q}")
if STAMPS == 5:
    STAMP(15)
    A("s_waitcnt lgkmcnt(0)")
    A("s_mov_b64 exec, 1")
    SX("s40", DBG, ("s2", 6), ("s3", 3))
    A(f"v_mov_b32 v0, 0\nv_mov_b32 v4, s64\nv_mov_b32 v5, s{64+2*OPT['db']}")
    A(f"buffer_store_dwordx2 v[4:5], v0, {RW}, s40 offen sc1")
    SX("s40", 0, ("s2", 3), ("s3", 0))
    A(f"s_cmp_lg_u32 s40, {129*8+2}\ns_cbranch_scc1 L_end")
    A.label("L_w3")
    A("s_memrealtime s[42:43]\ns_waitcnt lgkmcnt(0)\ns_sub_u32 s41, s42, s94\ns_cmp_lt_u32 s41, 300\ns_cbranch_scc1 L_w3")
    fullexec()
    A("v_mbcnt_lo_u32_b32 v1, -1, 0\nv_mbcnt_hi_u32_b32 v1, -1, v1\nv_lshlrev_b32 v1, 4, v1")
    A(f"s_mov_b32 s40, {DBG + OPT['drole']*8192}")
    for i in range(8):
        if i == 4: A("s_add_u32 s40, s40, 4096")
        A(f"buffer_load_dwordx4 v[{8+4*i}:{11+4*i}], v1, {RW}, s40 offen offset:{(i%4)*1024} sc1")
    A("s_waitcnt vmcnt(0)")
    for i in range(1, 16):
        A(f"v_min_u32 v8, v8, v{8+2*i}\nv_max_u32 v9, v9, v{9+2*i}")
    A("v_readlane_b32 s44, v8, 0\nv_readlane_b32 s45, v9, 0")
    for l in range(1, 64):
        A(f"v_readlane_b32 s46, v8, {l}\nv_readlane_b32 s47, v9, {l}\ns_nop 3\ns_min_u32 s44, s44, s46\ns_max_u32 s45, s45, s47")
    A(f"s_sub_u32 s40, s45, s44\ns_mul_i32 s40, s40, {OPT['dm']}\ns_add_u32 s40, s40, 600\ns_min_u32 s40, s40, 30000")
    A.label("L_spin")
    A("s_memrealtime s[42:43]\ns_waitcnt lgkmcnt(0)\ns_sub_u32 s41, s42, s94\ns_cmp_lt_u32 s41, s40\ns_cbranch_scc1 L_spin")
if STAMPS == 3:
    STAMP(15)
    A("s_waitcnt lgkmcnt(0)")
    SX("s40", 0, ("s2", 3), ("s3", 0))
    A(f"s_cmp_lg_u32 s40, {OPT['dwg']*8 + OPT['dwv']}\ns_cbranch_scc1 L_end")
    A(f"s_sub_u32 s40, s{64+2*OPT['db']}, s{64+2*OPT['da']}")
    A(f"s_mul_i32 s40, s40, {OPT['dm']}")
    A("s_min_u32 s40, s40, 30000")
    A.label("L_spin")
    A("s_memrealtime s[42:43]\ns_waitcnt lgkmcnt(0)\ns_sub_u32 s41, s42, s94\ns_cmp_lt_u32 s41, s40\ns_cbranch_scc1 L_spin")
A.label("L_end")
A("s_endpgm")
A.label("L_codeend")
A.raw(f".fill (16384 - (L_codeend - {NAME}_kernel)) / 4, 4, 0xbf810000")
A.raw(f""".section .rodata,"a"
.p2align 6
.amdhsa_kernel {NAME}_kernel
  .amdhsa_next_free_vgpr 152
  .amdhsa_next_free_sgpr 102
  .amdhsa_accum_offset 152
  .amdhsa_group_segment_fixed_size 0
  .amdhsa_kernarg_size 112
  .amdhsa_user_sgpr_count 2
  .amdhsa_user_sgpr_kernarg_segment_ptr 1
  .amdhsa_system_sgpr_workgroup_id_x 1
  .amdhsa_float_denorm_mode_32 3
.end_amdhsa_kernel""")
sys.stdout.write(A.text())
sys.stderr.write(f"instrs={A.ninstr} nops={A.nops}\n")
```

```python
import sys, math, struct
sys.path.insert(0, "work")
from asmlib import Asm

NAME = "adaLN_cond__sliding_block_cached__glu_gated_reglu__decode"
OPT = dict(stamps=0, nt="nt", limit=20000, refresh=255, smallnt="", s1=6, s2=1, sent=1, rot=7, r3=7, h1at=1, nv1=3,
           drole=0, dwg=10, dwv=1, da=0, db=15, dm=20, nore=0, reps=3, g4=0, phase=3, pbar=0, dtouch=0, ptk=1, ptw=0, clrpre=1, sgt=1, woe=8, dnearly=0, force=-1, tw=-1, tmax=12, tany=0, fw=0, fmax=10, fany=0, flate=0, usearly=0, y6s=0, x4s=0, ysent=1)
for a in sys.argv[1:]:
    k, v = a.split("=")
    OPT[k] = int(v) if v.lstrip("-").isdigit() else v
STAMPS = OPT["stamps"]; NT = OPT["nt"] if OPT["nt"] != "-" else ""
LIMIT = OPT["limit"]; REFRESH = OPT["refresh"]; SNT = OPT["smallnt"]

def f32(x): return "0x%08x" % struct.unpack("<I", struct.pack("<f", x))[0]

TRG = 0x1000; VOTE = 0x1800; PROBE = 0x64000; SG = 0x2000; TOK = 0x4000; H1G = 0x8000; QG = 0x10000; MGT = 0x20000; OG = 0x80000
X4 = 0x40000; Y4 = 0x50000; ST5 = 0x60000
G5 = 0x100000
Y6 = 0x180000; DBG = 0x400000
WS_BYTES = 0x800000
TAGC = 0x9E3779B9
VREG = 65536; PA = 131072; XL = 147456; QL = XL + 1024; PL = QL + 2048; MISC = PL + 2048
FG = 0; FD = 32768; YL0 = 131072
WQL = 0; WOL = 32768; PB = 65536; RED = XL + 1024
LDS_BYTES = MISC + 256
C1 = 128 ** -0.5 * math.log2(math.e)

A = Asm()
hdr = open(f"cdna_kernels/{NAME}.s.ref").read().split("\n")
for ln in hdr:
    if ln.startswith("; @launch"):
        A.raw(f"; @launch grid=(256,1,1) block=(512,1,1) lds={LDS_BYTES}")
        break
    A.raw(ln)
A.raw('.amdgcn_target "amdgcn-amd-amdhsa--gfx950"')
A.raw(f".text\n.globl {NAME}_kernel\n.p2align 8\n.type {NAME}_kernel,@function\n{NAME}_kernel:")

RA, RB, RW, RC, RD, RE, RF = "s[8:11]", "s[12:15]", "s[16:19]", "s[20:23]", "s[24:27]", "s[28:31]", "s[32:35]"
sTAG, sCNT, sT = "s36", "s37", "s45"
def STAMP(n):
    if STAMPS:
        A(f"s_memrealtime s[{64+2*n}:{65+2*n}]")
DPPM = "row_mask:0xf bank_mask:0xf"
lbl = [0]
def L(p):
    lbl[0] += 1
    return f"L_{p}_{lbl[0]}"
def srd(r, nbytes):
    b = int(r[2:r.index(":")])
    A((f"s_movk_i32 s{b+2}, {nbytes}" if nbytes < 32768 else f"s_mov_b32 s{b+2}, {nbytes}") + f"\ns_mov_b32 s{b+3}, s11")
def kload(r, off):
    b = int(r[2:r.index(":")])
    A(f"s_load_dwordx2 s[{b}:{b+1}], s[0:1], {off}")

def SX(dst, const, *terms):
    first = True
    for t in terms:
        src, rs, w, ls = (t[0], 0, 0, t[1]) if len(t) == 2 else t
        d = dst if first else sT
        cur = src
        if w:
            if rs == 0: A(f"s_and_b32 {d}, {cur}, {(1<<w)-1}")
            else: A(f"s_bfe_u32 {d}, {cur}, {(w<<16)|rs:#x}")
            cur = d
        elif rs:
            A(f"s_lshr_b32 {d}, {cur}, {rs}"); cur = d
        if first:
            if ls: A(f"s_lshl_b32 {d}, {cur}, {ls}")
            elif cur != d: A(f"s_mov_b32 {d}, {cur}")
        else:
            if 1 <= ls <= 4: A(f"s_lshl{ls}_add_u32 {dst}, {cur}, {dst}")
            else:
                if ls: A(f"s_lshl_b32 {sT}, {cur}, {ls}"); cur = sT
                A(f"s_add_u32 {dst}, {dst}, {cur}")
        first = False
    if const: A(f"s_add_u32 {dst}, {dst}, {const:#x}")
def VX(dst, tmp, add, *terms):
    first = True
    for rs, w, ls in terms:
        if rs == 4 and w == 2: cur = "v1"
        elif rs == 0 and w == 4: cur = "v2"
        elif rs == 0 and w == 6: cur = "v0"
        else:
            d = f"v{dst}" if first else f"v{tmp}"
            if rs + w == 6: A(f"v_lshrrev_b32 {d}, {rs}, v0")
            elif rs == 0: A(f"v_and_b32 {d}, {(1<<w)-1}, v0")
            else: A(f"v_bfe_u32 {d}, v0, {rs}, {w}")
            cur = d
        if first:
            if ls: A(f"v_lshlrev_b32 v{dst}, {ls}, {cur}")
            elif cur != f"v{dst}": A(f"v_mov_b32 v{dst}, {cur}")
        else:
            if ls: A(f"v_lshl_or_b32 v{dst}, {cur}, {ls}, v{dst}")
            else: A(f"v_or_b32 v{dst}, {cur}, v{dst}")
        first = False
    if add: A(f"v_add_u32 v{dst}, {add}, v{dst}")

def cont(n):
    t = L("c")
    A(f"s_branch {t}")
    A.seg(n); A.label(t)
def await_any(load, valid, sleep):
    if not OPT["sent"]: return
    top, done = L("aw"), L("awd")
    A(f"s_mov_b32 {sCNT}, 0")
    A.label(top)
    load()
    A("s_waitcnt vmcnt(0)")
    valid()
    A(f"s_cbranch_vccnz {done}")
    A(f"s_sleep {sleep}\ns_add_u32 {sCNT}, {sCNT}, 1\ns_cmp_lt_u32 {sCNT}, 64\ns_cbranch_scc1 {top}")
    A.label(done)
def poll(loads, check, first_issued=False, first_wait=0, sleep=0):
    again, top, chk, done = L("again"), L("poll"), L("chk"), L("got")
    A(f"s_mov_b32 {sCNT}, 0")
    if first_issued:
        if first_wait: A(f"s_waitcnt vmcnt({first_wait})")
        A(f"s_branch {chk if first_wait else top + 'w'}")
    else:
        A(f"s_branch {top}")
    A.label(again)
    if sleep: A(f"s_sleep {sleep}")
    A(f"s_add_u32 {sCNT}, {sCNT}, 1")
    A(f"s_and_b32 {sT}, {sCNT}, {REFRESH}\ns_cbranch_scc1 {top}")
    A("buffer_wbl2 sc1")
    A(f"s_cmp_ge_u32 {sCNT}, {LIMIT}\ns_cbranch_scc1 {done}")
    A.label(top)
    loads()
    A.label(top + "w")
    A("s_waitcnt vmcnt(0)")
    A.label(chk)
    check()
    A(f"s_cbranch_vccnz {again}")
    A.label(done)
def chk_empty4(r, tmp):
    A(f"v_max3_u32 v{tmp}, v{r}, v{r+1}, v{r+2}\nv_max_u32 v{tmp}, v{tmp}, v{r+3}\nv_cmp_eq_u32 vcc, -1, v{tmp}")
def pack4(src, pk, pk2, tmp):
    A(f"v_mov_b32_dpp v{tmp}, v{src} quad_perm:[1,1,3,3] {DPPM}")
    A(f"v_cvt_pk_bf16_f32 v{pk}, v{src}, v{tmp}")
    A(f"v_mov_b32_dpp v{pk2}, v{pk} quad_perm:[2,2,2,2] {DPPM}")
def setexec(lo, hi):
    A(f"s_mov_b32 exec_lo, {lo:#x}\ns_mov_b32 exec_hi, {hi:#x}")
def fullexec():
    A("s_mov_b64 exec, -1")
def mfma(d, a, b, c):
    cc = "0" if c is None else f"v[{c}:{c+3}]"
    A(f"v_mfma_f32_16x16x32_bf16 v[{d}:{d+3}], v[{a}:{a+3}], v[{b}:{b+3}], {cc}")
def rowsum(ds):
    for d in ds: A(f"v_add_f32 v{d}, v{d}, v{d+1}\nv_add_f32 v{d+2}, v{d+2}, v{d+3}")
    for d in ds: A(f"v_add_f32 v{d}, v{d}, v{d+2}")
wM, wQ, wO, wTR, T0, T1, T2, T3, vPF = 3, 4, 5, 6, 7, 8, 9, 10, 11
wC = 12; wXS = 13; wX = 16; wXO = 24; wWF = 40; wD = 56
def tr_setup():
    VX(wTR, 32, 0, (2, 4, 7), (3, 2, 5), (0, 2, 3))
    SX("s40", XL, ("s3", 0, 2, 8))
    VX(82, 32, "s40", (0, 6, 2))
    VX(83, 32, "s40", (2, 1, 7), (4, 2, 3))
def silu_operand(cnt):
    A(f"s_waitcnt vmcnt({cnt})")
    A(f"v_lshlrev_b32 v32, 16, v{wC}\nv_and_b32 v33, 0xffff0000, v{wC}")
    A(f"v_mul_f32 v34, {f32(-math.log2(math.e))}, v32\nv_mul_f32 v35, {f32(-math.log2(math.e))}, v33")
    A("v_exp_f32 v34, v34\nv_exp_f32 v35, v35")
    A("v_add_f32 v34, 1.0, v34\nv_add_f32 v35, 1.0, v35")
    A("v_rcp_f32 v34, v34\nv_rcp_f32 v35, v35")
    A("v_mul_f32 v32, v32, v34\nv_mul_f32 v33, v33, v35")
    A("v_cvt_pk_bf16_f32 v32, v32, v33")
    A("ds_write_b32 v82, v32")
    A(f"ds_read2_b64 v[{wXO}:{wXO+3}], v83 offset0:0 offset1:4\nds_read2_b64 v[{wXO+4}:{wXO+7}], v83 offset0:8 offset1:12")
def unit_pre(s_c0, s_c1, base):
    SX("s40", 0, ("s3", 0, 2, 5)); A(f"v_xor_b32 v112, s40, v{wTR}\nv_add_u32 v112, {base}, v112")
    for i in range(4):
        A(f"v_mov_b32 v{wD+i}, {s_c0}\nv_mov_b32 v{wD+4+i}, {s_c1}")
def unit_go():
    if STAMPS: A("s_waitcnt lgkmcnt(0)")
    for k in range(2):
        for seg in range(2):
            for h in range(2):
                r = wWF + seg*8 + k*4 + h*2
                A(f"ds_read_b64_tr_b16 v[{r}:{r+1}], v112 offset:{seg*8192 + k*4096 + h*2048}")
    for k in range(2):
        for seg in range(2):
            A(f"s_waitcnt lgkmcnt({6 - 4*k - 2*seg})")
            mfma(wD + 4*seg, wXO + 4*k, wWF + seg*8 + k*4, wD + 4*seg)
def tagged_loads(r, va, so):
    A(f"buffer_load_dwordx4 v[{r}:{r+3}], v{va}, {RW}, {so} offen sc1")
    A(f"buffer_load_dwordx4 v[{r+4}:{r+7}], v{va}, {RW}, {so} offen offset:1024 sc1")
def tags_chk(tags, tmp):
    if len(tags) == 1:
        A(f"v_cmp_ne_u32 vcc, {sTAG}, v{tags[0]}"); return
    A(f"v_xor_b32 v{tmp}, {sTAG}, v{tags[0]}")
    for t in tags[1:]:
        A(f"v_bitop3_b32 v{tmp}, v{t}, {sTAG}, v{tmp} bitop3:0xbe")
    A(f"v_cmp_ne_u32 vcc, 0, v{tmp}")
def tagged_chk(rs, tmp):
    tags_chk([r + i for r in rs for i in (1, 3, 5, 7)], tmp)
def tagged_pack(r):
    A(f"v_mov_b32 v{r+1}, v{r+2}\nv_mov_b32 v{r+2}, v{r+4}\nv_mov_b32 v{r+3}, v{r+6}")
def near_bit(r, dst):
    A(f"s_xor_b32 {dst}, {sTAG}, 0x80000000")
    A(f"v_cmp_eq_u32 vcc, {dst}, v{r}")
    A(f"s_bcnt1_i32_b32 {sT}, vcc_lo")
    A(f"v_cmp_eq_u32 vcc, {sTAG}, v{r}")
    A(f"s_bcnt1_i32_b32 {dst}, vcc_lo")
    A(f"s_cmp_gt_u32 {sT}, {dst}\ns_cselect_b32 {dst}, 4, 0")
    if OPT["force"] >= 0: A(f"s_mov_b32 {dst}, {4*OPT['force']}")
    A(f"s_xor_b32 {dst}, {dst}, s2\ns_and_b32 {dst}, {dst}, 4\ns_lshl_b32 {dst}, {dst}, 11")
def settags(*regs):
    for r in regs: A(f"v_mov_b32 v{r}, {sTAG}")

STAMP(0)
A("s_cmp_ge_u32 s2, 256\ns_cbranch_scc1 L_end")
A("s_cmp_ge_u32 s2, 128\ns_cselect_b32 s40, 24, 8\ns_cselect_b32 s41, 0, 16")
A("s_load_dwordx2 s[8:9], s[0:1], s40")
kload(RC, 80)
A("s_load_dwordx2 s[24:25], s[0:1], s41")
kload(RE, 72); kload(RW, 104)
A("v_readfirstlane_b32 s3, v0")
sk = L("npf")
A(f"s_cbranch_scc1 {sk}")
A("s_getpc_b64 s[38:39]")
A(f"v_and_b32 v{vPF}, 0x1c0, v0\ns_lshl_b32 s40, s2, 7\ns_and_b32 s38, s38, 0xffffff00\ns_and_b32 s40, s40, 0x3c00\nv_lshl_or_b32 v{vPF}, v{vPF}, 1, s40")
A(f"global_load_dword v{vPF}, v{vPF}, s[38:39]")
A.label(sk)
A("v_and_b32 v0, 63, v0")
A("s_mov_b32 s11, 0x00020000")
A("v_lshrrev_b32 v1, 4, v0\nv_and_b32 v2, 15, v0")
A(f"s_add_u32 s4, s2, {OPT['rot']}\ns_and_b32 s4, s4, 7\ns_bfe_u32 s6, s2, 0x10006\ns_bfe_u32 s7, s2, 0x30003")
A(f"v_lshlrev_b32 v{T3}, 1, v1\nv_xor_b32 v{T3}, v2, v{T3}\nv_lshlrev_b32 v{T3}, 4, v{T3}")
A("s_mov_b32 s27, s11")
A(f"v_and_b32 v{T1}, 0x70, v{T3}\nv_lshrrev_b32 v{T0}, 3, v0")
A("s_cmp_lt_u32 s2, 128\ns_cbranch_scc1 L_KV")
def ids2():
    A("s_lshr_b32 s3, s3, 6\ns_bfe_u32 s5, s2, 0x40003\ns_lshl1_add_u32 s58, s4, s6")
    if STAMPS:
        for i in range(2, 16): A(f"s_mov_b32 s{64+2*i}, 0")
    srd(RW, WS_BYTES)

A.seg(3); A.label("L_KV")
vE, vO, vQO = 120, 121, 122
vKF = 16
vVF = 48
vQF = 80
vS = 96
vQ = 100
vP = 104
vKA = 108
vOA = 108
vST = 144
vOAD, vSAD = 116, 117
wG, wDO, fMF = 124, 125, 123
vMF = 128
A(f"v_lshl_or_b32 v{vE}, v1, 8, v{T3}\nv_xor_b32 v{vO}, 0x80, v{vE}")
A("s_lshl_b32 s43, s3, 7\ns_mov_b32 s10, 33554432\ns_mov_b32 s26, s10")
PH = OPT["phase"]
if PH == 2 or PH == 3:
    SX("s56", 6144*256, ("s6", 24), ("s4", 21), ("s7", 16), ("s3", 7, 0, 14), ("s3", 6, 1, 12))
    A("s_add_u32 s57, s56, 8192")
elif PH == 4:
    SX("s56", 6144*256, ("s6", 24), ("s4", 21), ("s7", 16), ("s3", 6, 2, 14), ("s3", 8, 0, 13))
    A("s_add_u32 s57, s56, 4096")
else:
    SX("s56", 6144*256, ("s6", 24), ("s4", 21), ("s7", 16), ("s43", 0))
    A("s_add_u32 s57, s56, 4096")
A("s_mov_b32 m0, s43" if PH == 2 else f"s_add_u32 m0, s43, {VREG}")
def kv_dma(u):
    r = RA if u < 8 else RD
    A(f"buffer_load_dwordx4 v{vE if u%2==0 else vO}, {r}, {'s56' if u%8 < 4 else 's57'} offen offset:{(u%4)*1024} {NT} lds")
PB_ = OPT["pbar"]
SX("s50", 0, ("s2", 4, 0, 9), ("s3", 0))
if not PB_:
    A(f"s_cmp_eq_u32 s50, {7*64}")
    A("s_waitcnt lgkmcnt(0)")
    A("s_cbranch_scc1 L_meas")
    A.label("L_go")
else:
    A("s_waitcnt lgkmcnt(0)")
if PH == 2: A(f"buffer_load_dword v136, v2, {RD}, s56 offen {NT}")
else:
    kv_dma(8)
    A("s_mov_b32 m0, s43")
A(f"s_load_dword {sTAG}, s[16:17], 0")
for u in range(16):
    if PB_ and u and u % 4 == 0:
        A(f"s_cmp_eq_u32 s50, 0\ns_cbranch_scc1 L_m{u}")
        A.label(f"L_r{u}")
        A("s_barrier")
    if u in (4, 12): A("s_add_u32 m0, m0, 4096")
    if u == 8:
        A(f"s_add_u32 m0, s43, {VREG}")
        if PH != 2: continue
    kv_dma(u)
if PB_: A("s_cmp_eq_u32 s50, 0\ns_cbranch_scc1 L_m16")
cont(30)
if PB_: A.label("L_r16")
ids2()
if STAMPS: A("s_mov_b32 s66, 0")
STAMP(2)
if OPT["tw"] >= 0 or OPT["fw"]:
    SX("s100", TRG + 64, ("s4", 7))
    A("v_lshlrev_b32 v149, 2, v2")
    sk = L("ntp")
    A(f"s_cmp_lg_u32 s3, 0\ns_cbranch_scc1 {sk}")
    A(f"buffer_load_dword v136, v149, {RW}, s100 offen sc1")
    A.label(sk)
if OPT["tw"] >= 0:
    sk = L("ntr")
    A(f"s_cmp_lg_u32 s3, {OPT['tw']}\ns_cbranch_scc1 {sk}")
    SX("s40", TRG, ("s4", 7), ("s5", 2))
    A(f"s_waitcnt lgkmcnt(0)\ns_add_u32 s41, {sTAG}, {TAGC:#x}\nv_mov_b32 v136, s41")
    A(f"s_mov_b64 exec, 1\nbuffer_store_dword v136, v0, {RW}, s40 offen")
    fullexec()
    A.label(sk)
SX("s63", 0, ("s4", 4), ("s5", 0))
SX("s96", G5, ("s63", 10))
SX("s98", ST5, ("s4", 7))
A(f"v_lshlrev_b32 v{vQO}, 4, v0\nv_lshlrev_b32 v148, 7, v0\ns_movk_i32 s99, {TOK}")
kload(RC, 48); kload(RB, 56); kload(RE, 64)
A(f"v_mul_u32_u24 v{wG}, 3584, v{T0}\nv_add_u32 v{wG}, v{wG}, v{T1}\nv_lshl_or_b32 v{wDO}, v{T0}, 10, v{T1}")
srd(RC, 1835008); srd(RB, 1835008); srd(RE, 1835008)
SX("s49", 0, ("s63", 0, 2, 7), ("s3", 4))
A("s_mul_i32 s49, s49, 3584")
SX("s50", 0, ("s63", 2, 0, 7))
A(f"s_add_u32 s49, s49, s50\ns_add_u32 s50, s49, {8*3584-1024}")
SX("s51", 0, ("s63", 14), ("s3", 7))
A(f"s_add_u32 s52, s51, {8*1024-1024}\ns_lshl_b32 s42, s3, 11")
SX("s44", QG, ("s58", 12), ("s3", 10))
VX(fMF, T2, 0, (0, 3, 7), (3, 1, 6), (4, 2, 4))
SX("s59", MGT + 2*32768, ("s63", 0, 2, 13), ("s3", 0, 2, 11))
SX("s40", 0, ("s3", 2, 0, 15)); A("s_sub_u32 s59, s59, s40")
VX(T2, 0, 0, (0, 3, 1))
A(f"v_xor_b32 v{T2}, v1, v{T2}\nv_lshlrev_b32 v{T2}, 4, v{T2}\nv_lshl_or_b32 v{T2}, v2, 8, v{T2}")
A(f"v_add_u32 v{vKA}, s43, v{T2}")
for t in range(1, 4):
    A(f"v_xor_b32 v{vKA+t}, {t*64:#x}, v{vKA}")
vQW, vQR, vVR, vMX, vPW, vPR, vMW = 3, 4, 5, 6, 113, 13, 112
SX("s40", QL, ("s3", 5))
VX(vQW, T2, "s40", (1, 4, 7), (5, 1, 4), (0, 1, 3))
VX(vQR, T2, QL, (4, 2, 7), (0, 3, 4))
A(f"v_bfe_u32 v{T0}, v0, 2, 3\nv_xor_b32 v{T0}, s3, v{T0}")
VX(vVR, T2, VREG, (2, 4, 8), (0, 2, 3))
A(f"v_lshl_or_b32 v{vVR}, v{T0}, 5, v{vVR}")
VX(vMX, T2, MISC, (0, 2, 5))
A(f"s_lshl_b32 s40, s3, 2\nv_add_u32 v{vMW}, s40, v{vMX}")
VX(vPR, T2, PL, (4, 2, 6), (0, 2, 4))
A(f"s_lshl_b32 s40, s3, 8\nv_and_b32 v{T2}, 12, v0\nv_add3_u32 v{vPW}, s40, v{vPR}, v{T2}")
A("s_mov_b32 s60, 0xf0f0f0f0\ns_mov_b32 s61, s60\ns_mov_b32 s46, 0xff00ff00\ns_mov_b32 s47, s46")
VX(vOAD, T2, 0, (0, 2, 13), (4, 2, 4))
SX("s53", OG, ("s4", 15), ("s3", 10), ("s5", 6))
VX(vSAD, T2, 0, (0, 2, 8))
SX("s54", SG, ("s4", 10), ("s5", 4))
A(f"s_mov_b32 s55, {f32(C1)}")
A(f"s_waitcnt vmcnt({8 if PH == 2 else 7}) lgkmcnt(0)")
A(f"s_add_u32 {sTAG}, {sTAG}, {TAGC:#x}")
for T in range(2):
    for t in range(4):
        r = vKF + (T*4+t)*4
        A(f"ds_read_b128 v[{r}:{r+3}], v{vKA+t} offset:{T*4096}")
settags(vP+1, vP+3, vST+1, vST+3)
if OPT["ptk"]:
    sk = L("npt")
    A(f"s_cmp_lg_u32 s3, 5\ns_cbranch_scc1 {sk}")
    A("s_mov_b64 exec, 1")
    for r, so in ((RC, "s49"), (RB, "s49"), (RE, "s51")):
        A(f"buffer_load_dword v137, v0, {r}, {so} offen")
    fullexec()
    A.label(sk)
A(f"v_lshlrev_b32 v150, 2, v2\ns_movk_i32 s101, {VOTE}")
sk = L("nqp")
A(f"s_cmp_ge_u32 s3, 4\ns_cbranch_scc1 {sk}")
poll(lambda: A(f"buffer_load_dwordx4 v[{vQ}:{vQ+3}], v{vQO}, {RW}, s44 offen sc1"), lambda: tags_chk([vQ+1, vQ+3], T0), sleep=OPT['s2'])
STAMP(4)
A(f"v_mov_b32 v{vQ+1}, v{vQ+2}\nds_write_b64 v{vQW}, v[{vQ}:{vQ+1}]")
A.label(sk)
A("s_waitcnt vmcnt(0) lgkmcnt(0)\ns_barrier")
STAMP(5)
if STAMPS: A("s_waitcnt lgkmcnt(0)")
for t in range(4):
    A(f"ds_read_b128 v[{vQF+4*t}:{vQF+4*t+3}], v{vQR} offset:{t*512}")
def v_tr(kb, T):
    r = vVF + kb*4 + T*2
    A(f"ds_read_b64_tr_b16 v[{r}:{r+1}], v{vVR} offset:{(32*kb+16*T)*256}")
NV1 = OPT["nv1"]
for t in range(4):
    A(f"s_waitcnt lgkmcnt({3-t})")
    for T in range(2):
        mfma(vS + 4*T, vKF + (T*4+t)*4, vQF + 4*t, None if t == 0 else vS + 4*T)
for kb in range(NV1):
    v_tr(kb, 0); v_tr(kb, 1)
def mf_loads():
    tagged_loads(vMF, fMF, "s59")
mf_loads()
A(f"buffer_load_dword v151, v150, {RW}, s101 offen sc1")
def dn_dma():
    A(f"s_add_u32 m0, s42, {FD}")
    A(f"buffer_load_dwordx4 v{wDO}, {RE}, s51 offen {NT} lds")
    A(f"buffer_load_dwordx4 v{wDO}, {RE}, s52 offen offset:1024 {NT} lds")
DE = OPT["dnearly"]
if DE == 1: dn_dma()
if OPT["dtouch"]:
    A(f"v_lshlrev_b32 v137, 10, v2\nbuffer_load_dword v137, v137, {RE}, s51 offen")
for i in range(8):
    A(f"v_add_f32_dpp v{vS+i}, v{vS+i}, v{vS+i} row_ror:4 {DPPM}")
A(f"v_max3_f32 v{T0}, v{vS}, v{vS+1}, v{vS+2}\nv_max3_f32 v{T2}, v{vS+3}, v{vS+4}, v{vS+5}")
A(f"v_max3_f32 v{T0}, v{T0}, v{vS+6}, v{vS+7}\nv_max_f32 v{T3}, v{T0}, v{T2}\nv_max_f32 v{T0}, v{T0}, v{T2}")
A(f"v_cndmask_b32 v{vS}, v{vS}, v{vS+2}, s[60:61]\nv_cndmask_b32 v{vS+1}, v{vS+1}, v{vS+3}, s[60:61]")
A(f"v_permlane32_swap_b32 v{T0}, v{T3}")
A(f"v_max_f32 v{T2}, v{T0}, v{T3}\nv_max_f32 v{T0}, v{T0}, v{T3}")
A(f"v_cndmask_b32 v{vS+4}, v{vS+4}, v{vS+6}, s[60:61]\nv_cndmask_b32 v{vS+5}, v{vS+5}, v{vS+7}, s[60:61]")
A(f"v_permlane16_swap_b32 v{T0}, v{T2}")
A(f"v_max_f32 v{T0}, v{T0}, v{T2}")
A(f"ds_write_b32 v{vMW}, v{T0}")
A(f"v_cndmask_b32 v{vS}, v{vS}, v{vS+4}, s[46:47]\nv_cndmask_b32 v{vS+1}, v{vS+1}, v{vS+5}, s[46:47]")
A(f"v_mul_f32 v{vS}, s55, v{vS}\nv_mul_f32 v{vS+1}, s55, v{vS+1}")
STAMP(14)
sk = L("nlt")
A(f"s_cmp_lg_u32 s3, 7\ns_cbranch_scc1 {sk}")
A(f"buffer_load_dwordx4 v[136:139], v{vQO}, {RW}, s96 offen sc1")
A(f"buffer_load_dword v136, v{wDO}, {RW}, s98 offen sc1")
A(f"buffer_load_dwordx4 v[140:143], v148, {RW}, s99 offen sc1")
A.label(sk)
A("s_waitcnt lgkmcnt(0)\ns_barrier")
A(f"ds_read_b128 v[{vQF}:{vQF+3}], v{vMX}\nds_read_b128 v[{vQF+4}:{vQF+7}], v{vMX} offset:16")
for kb in range(NV1, 8):
    v_tr(kb, 0); v_tr(kb, 1)
A(f"s_waitcnt lgkmcnt({2*(8 - NV1)})")
A(f"v_max3_f32 v{T0}, v{vQF}, v{vQF+1}, v{vQF+2}\nv_max3_f32 v{T2}, v{vQF+3}, v{vQF+4}, v{vQF+5}")
A(f"v_max3_f32 v{T0}, v{T0}, v{vQF+6}, v{vQF+7}\nv_max_f32 v{T0}, v{T0}, v{T2}")
A(f"v_fma_f32 v{vS}, -v{T0}, s55, v{vS}\nv_fma_f32 v{vS+1}, -v{T0}, s55, v{vS+1}")
A(f"v_exp_f32 v{vS}, v{vS}\nv_exp_f32 v{vS+1}, v{vS+1}")
A(f"v_mul_f32 v{vST}, s55, v{T0}")
A(f"v_cvt_pk_bf16_f32 v{T1}, v{vS}, v{vS+1}")
A(f"v_add_f32 v{T0}, v{vS}, v{vS+1}")
A(f"ds_write_b32 v{vPW}, v{T1}")
A(f"v_add_f32_dpp v{T0}, v{T0}, v{T0} row_ror:4 {DPPM}")
A(f"v_add_f32_dpp v{T3}, v{T0}, v{T0} row_ror:8 {DPPM}\nv_add_f32_dpp v{T0}, v{T0}, v{T0} row_ror:8 {DPPM}")
A(f"v_permlane32_swap_b32 v{T0}, v{T3}")
A(f"v_add_f32 v{T2}, v{T0}, v{T3}\nv_add_f32 v{T0}, v{T0}, v{T3}")
A(f"v_permlane16_swap_b32 v{T0}, v{T2}")
A(f"v_add_f32 v{T0}, v{T0}, v{T2}")
A(f"ds_write_b32 v{vMW}, v{T0} offset:128")
if DE == 2: dn_dma()
A("s_waitcnt lgkmcnt(0)\ns_barrier")
STAMP(3)
if STAMPS: A("s_waitcnt lgkmcnt(0)")
sk = L("nst"); sk2 = L("nsu")
A(f"s_cmp_lg_u32 s3, 0\ns_cbranch_scc1 {sk}")
A(f"ds_read_b128 v[{vQF}:{vQF+3}], v{vMX} offset:128\nds_read_b128 v[{vQF+4}:{vQF+7}], v{vMX} offset:144")
A.label(sk)
for kb in range(8):
    r = vKF + kb*4
    A(f"ds_read_b128 v[{r}:{r+3}], v{vPR} offset:{kb*256}")
A(f"s_cbranch_scc1 {sk2}")
A("s_waitcnt lgkmcnt(8)")
rowsum([vQF, vQF+4])
A(f"v_add_f32 v{vST+2}, v{vQF}, v{vQF+4}")
A("s_mov_b64 exec, 15")
A(f"buffer_store_dwordx4 v[{vST}:{vST+3}], v{vSAD}, {RW}, s54 offen")
fullexec()
A.label(sk2)
for kb in range(8):
    A(f"s_waitcnt lgkmcnt({7-kb})")
    mfma(vOA, vVF + kb*4, vKF + kb*4, None if kb == 0 else vOA)
setexec(0x000f000f, 0x000f000f)
A(f"s_add_u32 m0, s42, {FG}")
A(f"v_cvt_pk_bf16_f32 v{vP}, v{vOA}, v{vOA+1}\nv_cvt_pk_bf16_f32 v{vP+2}, v{vOA+2}, v{vOA+3}")
A(f"buffer_store_dwordx4 v[{vP}:{vP+3}], v{vOAD}, {RW}, s53 offen")
fullexec()
STAMP(7)
A("s_cmp_eq_u32 s4, 7\ns_cbranch_scc1 L_g7")
def ffn_dma():
    if OPT["fw"]:
        A("s_cmp_lg_u32 s3, 1\ns_cbranch_scc1 L_fwd")
        A(f"s_mov_b32 {sCNT}, 0")
        A.label("L_fw")
        A(f"buffer_load_dword v33, v149, {RW}, s100 offen sc1")
        A("s_waitcnt vmcnt(0)")
        A(f"v_cmp_eq_u32 vcc, {sTAG}, v33")
        A(f"s_bcnt1_i32_b32 s40, vcc_lo\ns_cmp_ge_u32 s40, {2*(16-OPT['fany'])}\ns_cbranch_scc1 L_fwd")
        A(f"s_sleep 1\ns_add_u32 {sCNT}, {sCNT}, 1\ns_cmp_lt_u32 {sCNT}, {OPT['fmax']}\ns_cbranch_scc1 L_fw")
        A.label("L_fwd")
    A("s_barrier")
    A(f"buffer_load_dwordx4 v{wG}, {RC}, s49 offen {NT} lds")
    A(f"buffer_load_dwordx4 v{wG}, {RC}, s50 offen offset:1024 {NT} lds")
    A(f"s_add_u32 m0, s42, {FG+16384}")
    A(f"buffer_load_dwordx4 v{wG}, {RB}, s49 offen {NT} lds")
    A(f"buffer_load_dwordx4 v{wG}, {RB}, s50 offen offset:1024 {NT} lds")
    if not DE:
        A("s_barrier")
        dn_dma()
if not OPT["flate"]: ffn_dma()
fYW, fYR, fWR, fGR, fSTA, fY6A = 113, 114, 115, 118, 119, 120
fGA = 116; fG = 144; fUS = 145
fU, fS = 121, 117
wTA = 108; fWF = 84; fDF = 64
VX(wTR, 32, 0, (2, 4, 7), (3, 2, 5), (0, 2, 3))
SX("s40", 0, ("s3", 0, 2, 5)); A(f"v_xor_b32 v{fWR}, s40, v{wTR}")
SX("s40", FG, ("s3", 2, 0, 14)); A(f"v_add_u32 v{fWR}, s40, v{fWR}")
A(f"s_add_u32 s40, s42, {FD}\nv_add_u32 v{wTA}, s40, v{wTR}")
for t in range(1, 4):
    A(f"v_xor_b32 v{wTA+t}, {t*32:#x}, v{wTA}")
A(f"v_add_u32 v{fYR}, {YL0}, v{vQO}")
A(f"s_lshl_b32 s40, s3, 10\nv_add_u32 v{fYW}, s40, v{fYR}")
if OPT["g4"]:
    VX(fGA, 32, 0, (2, 2, 8), (5, 1, 7), (0, 2, 4))
    SX("s61", G5, ("s63", 2, 0, 12), ("s3", 0, 2, 10), ("s5", 0, 2, 2), ("s3", 2, 0, 6))
else:
    VX(fGA, 32, 0, (0, 6, 2))
    SX("s61", G5 - 64, ("s63", 2, 0, 12), ("s3", 0, 2, 10), ("s5", 0, 2, 8), ("s3", 2, 0, 7))
VX(fGR, 32, 0, (2, 1, 7), (3, 1, 6), (4, 2, 4), (0, 2, 2))
VX(fSTA, 32, 0, (0, 2, 5), (2, 1, 10), (5, 1, 4))
VX(fY6A, 32, 0, (3, 1, 13), (5, 1, 12), (4, 1, 4))
SX("s47", Y4, ("s3", 2, 0, 15), ("s5", 1, 1, 14), ("s5", 0, 1, 12), ("s3", 0, 2, 10))
if OPT["flate"] == 2: A("s_waitcnt vmcnt(0)")
if OPT["flate"]: ffn_dma()
SX("s49", Y6, ("s3", 16), ("s63", 5))
A("s_add_u32 s50, s49, 16384\ns_add_u32 s51, s49, 32768\ns_add_u32 s52, s49, 49152")
A(f"s_mov_b32 s41, {f32(1.0/512)}\ns_mov_b32 s43, {f32(1e-5)}")
poll(mf_loads, lambda: tagged_chk([vMF], 33), first_issued=True, first_wait=4 if DE else 6, sleep=4)
tagged_pack(vMF)
near_bit(151, "s40"); A("s_add_u32 s47, s47, s40")
A(f"ds_write_b128 v{fYW}, v[{vMF}:{vMF+3}]")
sk = L("ntk")
A(f"s_cmp_lg_u32 s3, 7\ns_cbranch_scc1 {sk}")
poll(lambda: A(f"buffer_load_dwordx4 v[140:143], v148, {RW}, s99 offen sc1"), lambda: tags_chk([140, 141, 142, 143], 33), first_issued=True, first_wait=4 if DE else 6, sleep=2)
A.label(sk)
vY = 76
y_load = lambda: A(f"buffer_load_dwordx4 v[{vY}:{vY+3}], v{fMF}, {RW}, s47 offen sc1")
A(f"s_waitcnt vmcnt({0 if DE else 2}) lgkmcnt(0)\ns_barrier")
STAMP(10)
y_load()
YO = [16, 20, 24, 28, 32, 36, 100, 104]
for k in range(4):
    for h in range(2):
        r = fWF + 4*k + 2*h
        A(f"ds_read_b64_tr_b16 v[{r}:{r+1}], v{fWR} offset:{k*4096 + h*2048}")
for u in range(8):
    A(f"ds_read_b128 v[{YO[u]}:{YO[u]+3}], v{fYR} offset:{u*1024}")
A("s_waitcnt lgkmcnt(0)")
for k in range(4):
    for pi in range(2):
        mfma(wD + 4*pi, YO[4*pi+k], fWF + 4*k, None if k == 0 else wD + 4*pi)
rowsum([wD, wD+4])
A(f"v_permlane16_swap_b32 v{wD}, v{wD+4}")
A(f"v_add_f32 v{fU}, v{wD}, v{wD+4}\nv_add_f32 v{fS}, v{wD}, v{wD+4}\nv_mov_b32 v146, s43")
A(f"v_permlane16_swap_b32 v{fU}, v{fS}")
STAMP(1)
poll(y_load, lambda: chk_empty4(vY, 33), first_issued=True, sleep=OPT["x4s"])
STAMP(11)
A(f"ds_write_b128 v{fYW}, v[{vY}:{vY+3}] offset:8192")
A("s_waitcnt lgkmcnt(0)\ns_barrier")
for u in range(8):
    A(f"ds_read_b128 v[{YO[u]}:{YO[u]+3}], v{fYR} offset:{8192+u*1024}")
st_load = lambda: A(f"buffer_load_dwordx4 v[40:43], v{fSTA}, {RW}, s98 offen sc1")
st_load()
for u in range(8):
    A(f"s_waitcnt lgkmcnt({7-u})")
    mfma(wD, YO[u], fWF + 4*(u & 3), None if u == 0 else wD)
for tau in range(4):
    A(f"ds_read_b64_tr_b16 v[{fDF+2*tau}:{fDF+2*tau+1}], v{wTA+tau}")
def st_chk():
    A("v_add_f32 v40, v40, v42\nv_add_f32 v41, v41, v43")
    A("v_cmp_u_f32 vcc, v40, v41")
poll(st_load, st_chk, first_issued=True)
A(f"v_add_f32_dpp v40, v40, v40 quad_perm:[1,0,3,2] {DPPM}\nv_add_f32_dpp v41, v41, v41 quad_perm:[1,0,3,2] {DPPM}")
A(f"v_add_f32 v{wD}, v{wD}, v{wD+1}\nv_add_f32 v{wD+2}, v{wD+2}, v{wD+3}")
A(f"v_add_f32_dpp v40, v40, v40 quad_perm:[2,3,0,1] {DPPM}\nv_add_f32_dpp v41, v41, v41 quad_perm:[2,3,0,1] {DPPM}")
A(f"v_add_f32 v{wD+1}, v{wD}, v{wD+2}\nv_add_f32 v{wD}, v{wD}, v{wD+2}")
A(f"v_add_f32_dpp v40, v40, v40 row_half_mirror {DPPM}\nv_add_f32_dpp v41, v41, v41 row_half_mirror {DPPM}")
A(f"v_permlane16_swap_b32 v{wD}, v{wD+1}")
A("v_mul_f32 v40, s41, v40")
A("v_fma_f32 v41, v41, s41, v146")
A(f"v_add_f32 v{wD}, v{wD}, v{wD+1}")
A("v_fma_f32 v41, -v40, v40, v41")
A(f"v_fma_f32 v{wD}, -v40, v{fU}, v{wD}")
A("v_rsq_f32 v41, v41")
setexec(0xffff0000, 0x0000ffff)
A(f"v_fma_f32 v{fG}, v{wD}, v41, v{fS}")
A(f"buffer_store_dword v{fG}, v{fGA}, {RW}, s61 offen")
fullexec()
STAMP(12)
def g_loads():
    if OPT["g4"]:
        A(f"buffer_load_dwordx4 v[20:23], v{vQO}, {RW}, s96 offen sc1"); return
    for k in range(4):
        A(f"buffer_load_dword v{20+k}, v{fGR}, {RW}, s96 offen offset:{256*k} sc1")
def g_chk():
    A("v_add_f32 v20, v20, v21\nv_add_f32 v22, v22, v23\nv_add_f32 v20, v20, v22")
    A("v_cmp_u_f32 vcc, v20, v20")
poll(g_loads, g_chk)
STAMP(13)
A("v_max_f32 v21, 0, v20")
A(f"v_mul_f32_dpp v22, v20, v21 row_shl:4 {DPPM}")
pack4(22, 24, 25, 23)
A("s_waitcnt lgkmcnt(0)")
for tau in range(4):
    d = 32 + 4*tau
    A(f"v_mfma_f32_16x16x16_bf16 v[{d}:{d+3}], v[{fDF+2*tau}:{fDF+2*tau+1}], v[24:25], 0")
setexec(0x01010101, 0x01010101)
for tau in range(4):
    d = 32 + 4*tau
    A(f"buffer_store_dwordx4 v[{d}:{d+3}], v{fY6A}, {RW}, s{49+tau} offen sc1")
STAMP(8)
if OPT["nore"]: A("s_branch L_exit")
A("s_waitcnt vmcnt(0)")
setexec(0xffff0000, 0x0000ffff)
A(f"buffer_store_dword v{fG}, v{fGA}, {RW}, s61 offen sc1")
A("s_branch L_exit")
A.label("L_g7")
A("s_cmp_lg_u32 s3, 0\ns_cbranch_scc1 L_exit")
VX(T1, T2, 0, (3, 1, 15), (2, 1, 14), (0, 2, 11))
A(f"s_mov_b32 s46, {X4 + 7*128:#x}")
poll(lambda: A(f"buffer_load_dword v16, v{T1}, {RW}, s46 offen sc1"), lambda: A("v_cmp_eq_u32 vcc, -1, v16"), sleep=8)
A("s_branch L_exit")

A.seg(4.5)
def m_init():
    SX("s48", PROBE, ("s2", 8), ("s2", 3, 1, 13))
    A("s_xor_b32 s49, s48, 0x2000")
    A(f"s_load_dword s40, s[16:17], s48 glc\ns_load_dword s41, s[16:17], s49 glc")
    A(f"s_mov_b32 s38, -1\ns_mov_b32 s39, -1\ns_mov_b32 {sCNT}, 0")
def m_rep():
    for off, acc in (("s48", "s38"), ("s49", "s39")):
        A("s_waitcnt lgkmcnt(0)\ns_memtime s[32:33]\ns_waitcnt lgkmcnt(0)")
        A(f"s_load_dword s40, s[16:17], {off} glc\ns_waitcnt lgkmcnt(0)")
        A("s_memtime s[34:35]\ns_waitcnt lgkmcnt(0)")
        A(f"s_sub_u32 s40, s34, s32\ns_min_u32 {acc}, {acc}, s40")
def m_vote():
    srd(RW, WS_BYTES)
    A("s_cmp_lt_u32 s39, s38\ns_cselect_b32 s40, s49, s48")
    A("s_lshr_b32 s40, s40, 11\ns_xor_b32 s40, s40, s2\ns_lshl_b32 s40, s40, 29\ns_and_b32 s40, s40, 0x80000000")
    A(f"s_add_u32 s41, {sTAG}, {TAGC:#x}\ns_xor_b32 s40, s40, s41\nv_mov_b32 v136, s40")
    SX("s40", VOTE, ("s2", 2))
    A(f"s_mov_b64 exec, 1\nbuffer_store_dword v136, v0, {RW}, s40 offen sc1")
    fullexec()
if not PB_:
    A.label("L_meas")
    m_init()
    A(f"s_load_dword {sTAG}, s[16:17], 0")
    A.label("L_ms")
    m_rep()
    A(f"s_add_u32 {sCNT}, {sCNT}, 1\ns_cmp_lt_u32 {sCNT}, {OPT['reps']}\ns_cbranch_scc1 L_ms")
    m_vote()
    A("s_branch L_go")
else:
    A.label("L_m4"); m_init(); A("s_branch L_r4")
    A.label("L_m8"); m_rep(); A("s_branch L_r8")
    A.label("L_m12"); m_rep()
    if PB_ == 2: m_vote()
    A("s_branch L_r12")
    A.label("L_m16")
    if PB_ == 1:
        m_rep(); m_vote()
    A("s_branch L_r16")

A.seg(0)
IS_NA = "s_cmp_lg_u32 s6, 0"; IS_A = "s_cmp_eq_u32 s6, 0"
R3 = OPT["r3"]
def w_common(first=True):
    kload(RB, 32); kload(RF, 88)
    if first:
        A(f"s_load_dword {sTAG}, s[16:17], 0")
        ids2()
    A(f"v_lshl_or_b32 v{wO}, v{T0}, 10, v{T1}")
    srd(RB, 4194304); A("s_movk_i32 s26, 2048")
def wq_setup(sh):
    A(f"v_lshl_or_b32 v{wQ}, v{T0}, 13, v{T1}")
    A("s_mov_b32 s10, 4194304")
    A(f"s_lshl_b32 s48, s3, {12-sh}")
    SX("s43", 0, ("s6", 8), ("s48", 7, 0, 0))
    SX("s44", 0, ("s43", 13), ("s4", 10), ("s46", 0))
def wq_dma():
    A(f"s_add_u32 m0, s48, {WQL}")
    for u in range(4):
        if u: A(f"s_add_u32 s44, s44, {8*8192-1024}")
        A(f"buffer_load_dwordx4 v{wQ}, {RA}, s44 offen offset:{u*1024} {NT} lds")
def c_setup():
    VX(T2, T3, 0, (5, 1, 10), (0, 5, 2))
    srd(RE, 2048)
srd(RC, 3145728)
A(f"v_mul_u32_u24 v{wM}, 6144, v{T0}\ns_lshl_b32 s46, s7, 7\nv_add_u32 v{wM}, v{wM}, v{T1}")
A(f"{IS_NA}\ns_cbranch_scc1 L_nA")
A("s_lshl_b32 s49, s4, 7")
A("s_cmp_lt_u32 s3, 256\ns_cbranch_scc1 L_A1")
A("s_sub_u32 s40, s3, 256")
SX("s61", 0, ("s7", 6), ("s40", 2, 0, 0))
A(f"s_mul_i32 s61, s61, 6144\ns_add_u32 s61, s61, s49\ns_add_u32 s62, s61, {8*6144-1024}")
A(f"s_lshl_b32 s40, s40, 5\ns_add_u32 m0, s40, {PA}")
A("s_waitcnt lgkmcnt(0)")
STAMP(1)
A(f"buffer_load_dwordx4 v{wM}, {RC}, s61 offen {NT} lds")
A(f"buffer_load_dwordx4 v{wM}, {RC}, s62 offen offset:1024 {NT} lds")
A(f"s_add_u32 m0, s40, {PA+8192-1024}")
A(f"buffer_load_dwordx4 v{wM}, {RC}, s61 offen offset:1024 {NT} lds")
A(f"buffer_load_dwordx4 v{wM}, {RC}, s62 offen offset:2048 {NT} lds")
wq_setup(6)
A("s_barrier")
wq_dma()
A("s_waitcnt vmcnt(4)\ns_barrier")
cont(5)
A("v_mov_b32 v32, -1\nv_mov_b32 v33, -1\nv_mov_b32 v34, -1\nv_mov_b32 v35, -1\nv_lshlrev_b32 v38, 3, v0")
SX("s54", G5, ("s4", 14), ("s7", 11), ("s40", 2, 0, 0))
srd(RW, WS_BYTES)
A(f"buffer_store_dwordx2 v[32:33], v38, {RW}, s54 offen sc1")
A(f"v_lshl_or_b32 v37, v{T0}, 10, v{T1}")
SX("s41", 0, ("s7", 14), ("s40", 1))
SX("s54", X4, ("s41", 0), ("s4", 7))
A(f"s_cmp_eq_u32 s41, {31*4096}\ns_cselect_b32 exec_hi, 0xffff, 0")
A(f"buffer_store_dwordx4 v[32:35], v37, {RW}, s54 offen sc1")
fullexec()
A.seg(1)
A.label("L_A1")
c_setup()
VX(36, T3, 0, (4, 1, 10), (5, 1, 8), (0, 4, 4))
A("s_movk_i32 s26, 2048")
A("s_waitcnt lgkmcnt(0)")
STAMP(1)
A(f"buffer_load_dword v{wC}, v{T2}, {RE}, s46 offen {SNT}")
A(f"buffer_load_dwordx4 v[{wX}:{wX+3}], v36, {RD}, 0 offen {SNT}")
A(f"buffer_load_dwordx4 v[{wX+4}:{wX+7}], v36, {RD}, 0 offen offset:512 {SNT}")
VX(37, T3, 0, (4, 1, 10), (0, 4, 1))
A(f"s_lshr_b32 s50, s3, 1\ns_add_u32 s50, s50, s49\nv_mov_b32 v{wXS}, 0")
A(f"buffer_load_short_d16_hi v{wXS}, v37, {RD}, s50 offen {SNT}")
A(f"s_load_dword {sTAG}, s[16:17], 0")
A("s_barrier")
cont(4)
ids2()
tr_setup()
VX(39, 32, 0, (4, 1, 6), (2, 2, 4))
SX("s53", H1G, ("s4", 12), ("s3", 10), ("s46", 0))
A("s_cmp_eq_u32 s7, 0\ns_cselect_b32 s54, 1.0, 0")
unit_pre("0", "s54", PA)
silu_operand(3)
A("v_mov_b32 v36, 0\nv_mov_b32 v37, 0\nv_mov_b32 v38, 0x3f803f80")
A(f"s_waitcnt vmcnt(0)")
for i in range(8):
    A(f"v_dot2c_f32_bf16 v36, v{wX+i}, v38\nv_dot2c_f32_bf16 v37, v{wX+i}, v{wX+i}")
for m in ("quad_perm:[1,0,3,2]", "quad_perm:[2,3,0,1]", "row_half_mirror", "row_mirror"):
    A(f"v_add_f32_dpp v36, v36, v36 {m} {DPPM}\nv_add_f32_dpp v37, v37, v37 {m} {DPPM}")
A("v_mov_b32 v38, v36\nv_mov_b32 v35, v37")
A("v_permlane32_swap_b32 v36, v38\nv_permlane32_swap_b32 v37, v35")
A("v_add_f32 v36, v36, v38\nv_add_f32 v37, v37, v35")
A(f"v_mul_f32 v36, {f32(1.0/512)}, v36\nv_mov_b32 v38, {f32(1e-5)}\nv_fmac_f32 v38, {f32(1.0/512)}, v37")
A("v_fma_f32 v38, -v36, v36, v38\nv_rsq_f32 v38, v38")
A(f"v_sub_f32 v{wXS}, v{wXS}, v36\nv_mul_f32 v{wXS}, v{wXS}, v38")
A("s_waitcnt lgkmcnt(0)")
A(f"s_add_u32 {sTAG}, {sTAG}, {TAGC:#x}")
settags(wD+9, wD+11)
wq_setup(0)
A("s_barrier")
unit_go()
A(f"v_fma_f32 v32, v{wXS}, v{wD+4}, v{wD}")
pack4(32, wD+8, wD+10, 33)
setexec(0x11111111, 0)
A(f"buffer_store_dwordx4 v[{wD+8}:{wD+11}], v39, {RW}, s53 offen sc1")
fullexec()
STAMP(14)
wq_dma()
w_common(False)
A("s_branch L_B")
A.seg(2)
A.label("L_nA")
wq_setup(6)
SX("s51", 0, ("s7", 6), ("s3", 3, 0, 0))
if R3 & 1: SX("s52", 384, ("s51", 13), ("s4", 10))
A("s_mul_i32 s51, s51, 6144")
A("s_waitcnt lgkmcnt(0)")
STAMP(1)
if R3 & 2:
    sk = L("n3a")
    A(f"s_cmp_lg_u32 s4, 3\ns_cbranch_scc1 {sk}")
    A(f"buffer_load_dword v{vPF}, v{wM}, {RC}, s51 offen offset:{1024+384}")
    A.label(sk)
if R3 & 1: A(f"buffer_load_dword v{vPF}, v{wQ}, {RA}, s52 offen")
wq_dma()
A("s_lshl_b32 s42, s3, 4")
SX("s40", 2048, ("s4", 8)); A("s_add_u32 s51, s51, s40")
c_setup()
A(f"buffer_load_dword v{wC}, v{T2}, {RE}, s46 offen {SNT}")
A("s_barrier")
for j, o in enumerate((0, 128, 2048, 2048+128)):
    A(f"s_add_u32 m0, s42, {PB + j*8192 - o}")
    A(f"buffer_load_dwordx4 v{wM}, {RC}, s51 offen offset:{o} {NT} lds")
A("s_branch L_wc")
A.seg(6)
A.label("L_wc")
w_common()
tr_setup()
A("s_waitcnt lgkmcnt(0)")
A(f"s_add_u32 {sTAG}, {sTAG}, {TAGC:#x}")
A.label("L_B")
srd(RF, 2048)
SX("s47", 0, ("s4", 19), ("s43", 10), ("s46", 0))
wRW, wRR, wOF, wTA = 14, 15, 72, 108
SX("s40", RED, ("s3", 9)); VX(wRW, 32, "s40", (0, 6, 2))
SX("s40", RED, ("s3", 8)); VX(wRR, 32, "s40", (0, 6, 2))
VX(wOF, 32, 0, (0, 3, 7), (3, 1, 6), (4, 2, 4))
SX("s53", H1G, ("s43", 6))
wQA = 73; wQD = 76; wYD = 92
VX(wQA, 32, 0, (5, 1, 12), (0, 5, 2))
SX("s56", QG, ("s4", 13), ("s5", 8), ("s3", 7))
A(f"v_add_u32 v{wTA}, s48, v{wTR}")
for t in range(1, 4):
    A(f"v_xor_b32 v{wTA+t}, {t*32:#x}, v{wTA}")
settags(wQD+1, wQD+3)
wGA, wCB, wXA, wXAD = 74, 75, 80, 81
tE, tOUT, tBP, tL16 = 84, 114, 115, 116
SX("s59", Y6, ("s5", 15), ("s4", 1, 1, 14), ("s4", 0, 1, 12))
A("s_cmp_eq_u32 s3, 7\ns_cselect_b32 s40, 0, -1")
A("v_mov_b32 v118, s40\nv_mov_b32 v119, s40\nv_lshlrev_b32 v121, 3, v0")
SX("s99", 0, ("s3", 9), ("s59", 0), ("s2", 2, 1, 13))
VX(T1, 32, 0, (0, 4, 6), (4, 2, 4))
SX("s51", OG, ("s4", 15), ("s43", 6))
SX("s54", SG, ("s4", 10), ("s43", 7, 0, 8))
A(f"v_lshlrev_b32 v{T0}, 2, v1\nv_xor_b32 v{T0}, v0, v{T0}\nv_and_b32 v{T0}, 7, v{T0}\nv_lshlrev_b32 v{T0}, 4, v{T0}")
A(f"v_lshrrev_b32 v32, 5, v0\nv_lshl_or_b32 v{T0}, v32, 7, v{T0}")
VX(wXAD, 32, 0, (5, 1, 6), (2, 2, 4), (4, 1, 3))
SX("s60", X4, ("s7", 2, 0, 14), ("s7", 0, 2, 11), ("s3", 0, 1, 10), ("s6", 15), ("s4", 7))
A(f"s_add_u32 s52, s60, {Y4-X4}\ns_add_u32 s100, s60, 8192\ns_add_u32 s101, s52, 8192")
A("v_and_b32 v32, 1, v0\nv_lshlrev_b32 v32, 4, v32\nv_mov_b32 v33, 0x3f80\nv_lshlrev_b32 v32, v32, v33")
A("v_lshrrev_b32 v33, 2, v2\nv_sub_u32 v33, v1, v33\nv_bfe_u32 v34, v0, 1, 1\nv_lshl_or_b32 v33, v33, 1, v34")
for r in range(2):
    A(f"v_cmp_eq_u32 vcc, {r}, v33")
    A(f"v_mov_b32 v{tE+2+r}, 0\nv_mov_b32 v{tE+4+r}, 0")
    A(f"v_cndmask_b32 v{tE+r}, 0, v32, vcc\nv_cndmask_b32 v{tE+6+r}, 0, v32, vcc")
VX(38, 33, 0, (0, 1, 3), (5, 1, 1), (4, 1, 2))
SX("s40", 0, ("s4", 0, 2, 4)); A(f"v_add_u32 v{tOUT}, s40, v38")
A(f"v_lshlrev_b32 v{tL16}, 4, v0")
SX("s49", X4, ("s6", 14), ("s7", 10))
SX("s55", ST5, ("s4", 7), ("s7", 0, 2, 5), ("s7", 2, 0, 10), ("s6", 3))
VX(113, 33, 0, (5, 1, 4), (4, 1, 2))
SX("s61", MGT, ("s7", 12), ("s3", 11))
SX("s40", MGT + 3*32768, ("s5", 11))
A("s_cmp_eq_u32 s3, 2\ns_cselect_b32 s61, s40, s61\ns_cselect_b32 s40, 0, 0x10000\ns_add_u32 s63, s61, s40")
VX(120, 33, 0, (5, 1, 10), (0, 5, 1))
SX("s42", 0, ("s7", 7), ("s3", 6))
A(f"v_mov_b32 v{wXA}, 0")
VX(39, 32, 0, (5, 1, 12), (4, 1, 6), (2, 2, 4))
SX("s41", OG, ("s4", 15), ("s5", 11))
A(f"v_lshlrev_b32 v{T3}, 7, v2\nv_lshlrev_b32 v117, 10, v1")
SX("s57", 384, ("s4", 19), ("s5", 15), ("s3", 12))
def blk_frags(off):
    for t in range(4):
        for h in range(2):
            r = wWF + 4*t + 2*h
            A(f"ds_read_b64_tr_b16 v[{r}:{r+1}], v{wTA+t} offset:{off + h*2048}")
h1_loads = lambda: tagged_loads(16, wOF, "s53")
A("v_lshlrev_b32 v122, 2, v2")
if OPT["ptw"]:
    sk = L("npt")
    A(f"s_cmp_lg_u32 s3, 5\ns_cbranch_scc1 {sk}")
    A("s_mov_b64 exec, 1")
    A(f"buffer_load_dword v{vPF}, v0, {RB}, s47 offen")
    A(f"buffer_load_dword v{vPF}, v0, {RF}, 0 offen")
    fullexec()
    A.label(sk)
sk = L("nmb"); sk2 = L("nmc")
A(f"{IS_A}\ns_cbranch_scc1 {sk}")
SX("s96", MGT, ("s4", 13), ("s3", 2, 0, 16), ("s3", 0, 2, 10), ("s46", 0))
SX("s40", 0, ("s4", 2, 1, 3), ("s3", 2, 0, 4), ("s7", 0))
A("s_cmp_eq_u32 s40, 16\ns_cselect_b32 s97, 1.0, 0")
SX("s98", PB, ("s3", 2, 0, 14))
unit_pre("s97", "s97", "s98")
settags(wD+9, wD+11)
silu_operand(4)
A(f"s_waitcnt vmcnt({OPT['h1at']})")
h1_loads()
A("s_waitcnt vmcnt(2) lgkmcnt(0)\ns_barrier")
unit_go()
A("v_cmp_gt_u32 vcc, 32, v0")
A(f"v_cndmask_b32 v32, v{wD+4}, v{wD}, vcc")
blk_frags(WQL)
pack4(32, wD+8, wD+10, 34)
setexec(0x11111111, 0x11111111)
A(f"buffer_store_dwordx4 v[{wD+8}:{wD+11}], v39, {RW}, s96 offen sc1")
fullexec()
STAMP(6)
A(f"s_branch {sk2}")
A.label(sk)
sk3 = L("ntk")
A(f"s_cmp_lt_u32 s3, 4\ns_cbranch_scc1 {sk3}")
SX("s40", TOK - 16, ("s4", 10), ("s46", 0), ("s3", 2))
A("s_waitcnt vmcnt(0)")
A(f"s_mov_b64 exec, 1\nbuffer_store_dword v{wQD+1}, v0, {RW}, s40 offen sc1")
fullexec()
A.label(sk3)
A(f"s_waitcnt vmcnt({OPT['h1at']})")
h1_loads()
A("s_waitcnt vmcnt(2)")
blk_frags(WQL)
A("s_waitcnt vmcnt(0)")
A.label(sk2)
STAMP(3)
poll(h1_loads, lambda: tagged_chk([16], 33), first_issued=True, first_wait=1, sleep=OPT["s2"])
STAMP(4)
tagged_pack(16)
A("s_waitcnt lgkmcnt(0)")
def blk_mfma(op):
    for t in range(4):
        mfma(wD + 4*t, op, wWF + 4*t, None)
def blk_reduce():
    A(f"v_permlane16_swap_b32 v{wD}, v{wD+4}\nv_permlane16_swap_b32 v{wD+8}, v{wD+12}")
    A(f"v_add_f32 v{wD}, v{wD}, v{wD+4}\nv_add_f32 v{wD+8}, v{wD+8}, v{wD+12}")
    A(f"ds_write2st64_b32 v{wRW}, v{wD}, v{wD+8} offset0:0 offset1:1")
    A("s_cmp_ge_u32 s3, 2")
    A("s_waitcnt lgkmcnt(0)\ns_barrier")
def blk_final():
    for i in range(4):
        A(f"ds_read2st64_b32 v[{32+2*i}:{33+2*i}], v{wRR} offset0:{4*i} offset1:{4*i+2}")
    if STAMPS: A("s_waitcnt lgkmcnt(0)")
    A("s_waitcnt lgkmcnt(2)")
    A("v_add_f32 v32, v32, v33\nv_add_f32 v34, v34, v35\nv_add_f32 v32, v32, v34")
    A("s_waitcnt lgkmcnt(0)")
    A("v_add_f32 v36, v36, v37\nv_add_f32 v38, v38, v39\nv_add_f32 v36, v36, v38\nv_add_f32 v32, v32, v36")
blk_mfma(16)
rowsum([wD, wD+4, wD+8, wD+12])
blk_reduce()
sk = L("nq")
A(f"s_cbranch_scc1 {sk}")
blk_final()
pack4(32, wQD, wQD+2, 33)
setexec(0x11111111, 0x11111111)
A(f"buffer_store_dwordx4 v[{wQD}:{wQD+3}], v{wQA}, {RW}, s56 offen")
fullexec()
A.label(sk)
STAMP(5)
A(f"s_add_u32 m0, s48, {WOL}")
def wo_dma():
    if R3 & 4: A(f"buffer_load_dword v{vPF}, v117, {RB}, s57 offen")
    for u in range(4):
        if u: A(f"s_add_u32 s47, s47, {8*1024-1024}")
        A(f"buffer_load_dwordx4 v{wO}, {RB}, s47 offen offset:{u*1024} {NT} lds")
if OPT["woe"] < 8:
    sk = L("nwf")
    A(f"s_cmp_lt_u32 s3, {OPT['woe']}\ns_cbranch_scc1 {sk}")
    wo_dma()
    A.label(sk)
if OPT["tw"] >= 0:
    A("s_cmp_lg_u32 s3, 4\ns_cbranch_scc1 L_trgd")
    SX("s40", TRG, ("s4", 7))
    A(f"s_mov_b32 {sCNT}, 0")
    A.label("L_trg")
    A(f"buffer_load_dword v33, v122, {RW}, s40 offen sc1")
    A("s_waitcnt vmcnt(0)")
    A(f"v_cmp_eq_u32 vcc, {sTAG}, v33")
    A(f"s_bcnt1_i32_b32 s44, vcc_lo\ns_cmp_ge_u32 s44, {2*(16-OPT['tany'])}\ns_cbranch_scc1 L_trgd")
    A(f"s_sleep 1\ns_add_u32 {sCNT}, {sCNT}, 1\ns_cmp_lt_u32 {sCNT}, {OPT['tmax']}\ns_cbranch_scc1 L_trg")
    A.label("L_trgd")
A("s_barrier")
def mc_loads():
    tagged_loads(128, wOF, "s61"); tagged_loads(136, wOF, "s63")
sk = L("nc0"); sk2 = L("nc3")
A(f"s_cmp_ge_u32 s3, 3\ns_cbranch_scc1 {sk}")
mc_loads()
A(f"s_cmp_lg_u32 s58, 0\ns_cbranch_scc1 {sk2}")
A(f"buffer_load_short_d16_hi v{wXA}, v120, {RD}, s42 offen")
A(f"s_branch {sk2}")
A.label(sk)
A(f"s_cmp_lg_u32 s3, 3\ns_cbranch_scc1 {sk2}")
A(f"buffer_load_dword v{vPF}, v{T3}, {RW}, s41 offen sc1")
if OPT["sgt"]:
    SX("s40", SG, ("s4", 10))
    A(f"buffer_load_dword v{vPF}, v{tL16}, {RW}, s40 offen sc1")
A.label(sk2)
if OPT["clrpre"]: A(f"buffer_store_dwordx2 v[118:119], v121, {RW}, s99 offen sc1")
if OPT["woe"] < 8:
    sk = L("nwe")
    A(f"s_cmp_ge_u32 s3, {OPT['woe']}\ns_cbranch_scc1 {sk}")
wo_dma()
if OPT["woe"] < 8: A.label(sk)
if not OPT["clrpre"]: A(f"buffer_store_dwordx2 v[118:119], v121, {RW}, s99 offen sc1")
sk = L("nc1")
A(f"s_cmp_ge_u32 s3, 3\ns_cbranch_scc1 {sk}")
poll(mc_loads, lambda: tagged_chk([128, 136], 33), first_issued=True, first_wait=4 if OPT["clrpre"] else 5, sleep=2)
tagged_pack(128); tagged_pack(136)
for i in range(2):
    for t in range(2):
        mfma(wD + 8*i + 4*t, 128 + 8*i, tE + 4*t, None)
rowsum([wD, wD+4, wD+8, wD+12])
A(f"v_permlane16_swap_b32 v{wD}, v{wD+4}\nv_permlane16_swap_b32 v{wD+8}, v{wD+12}")
A(f"v_add_f32 v{wGA}, v{wD}, v{wD+4}\nv_add_f32 v{wCB}, v{wD+8}, v{wD+12}")
STAMP(2)
A.label(sk)
wF = 100
sg_load = lambda: A(f"buffer_load_dwordx4 v[16:19], v{T0}, {RW}, s54 offen sc1")
A(f"s_waitcnt vmcnt({0 if OPT['clrpre'] else 1})")
if OPT["fw"]:
    sk = L("nfw")
    A(f"s_cmp_lg_u32 s3, 7\ns_cbranch_scc1 {sk}")
    SX("s40", TRG + 64, ("s4", 7), ("s5", 2))
    A(f"s_mov_b64 exec, 1\nbuffer_store_dword v{wQD+1}, v0, {RW}, s40 offen")
    fullexec()
    A.label(sk)
blk_frags(WOL)
STAMP(7)
await_any(sg_load, lambda: A(f"v_cmp_eq_u32 vcc, {sTAG}, v19"), OPT["s1"])
poll(sg_load, lambda: tags_chk([17, 19], 33), first_issued=True, sleep=2*OPT["s2"])
o_loads = lambda: tagged_loads(24, T1, "s51")
o_loads()
A(f"v_max_f32_dpp v17, v16, v16 quad_perm:[1,0,3,2] {DPPM}")
A(f"v_max_f32_dpp v17, v17, v17 quad_perm:[2,3,0,1] {DPPM}")
A(f"v_max_f32_dpp v17, v17, v17 row_half_mirror {DPPM}")
A("v_sub_f32 v16, v16, v17\nv_exp_f32 v16, v16\nv_mul_f32 v17, v16, v18")
for m in ("quad_perm:[1,0,3,2]", "quad_perm:[2,3,0,1]", "row_half_mirror"):
    A(f"v_add_f32_dpp v17, v17, v17 {m} {DPPM}")
A(f"v_rcp_f32 v17, v17\nv_mul_f32 v{wF}, v16, v17")
STAMP(8)
A("s_waitcnt lgkmcnt(0)")
poll(o_loads, lambda: tagged_chk([24], 33), first_issued=True, first_wait=0)
STAMP(9)
tagged_pack(24)
blk_mfma(24)
for t in range(4):
    A(f"v_mul_f32_dpp v{wD+4*t}, v{wF}, v{wD+4*t} row_newbcast:0 {DPPM}")
for r in range(1, 4):
    for t in range(4):
        A(f"v_fmac_f32_dpp v{wD+4*t}, v{wF}, v{wD+4*t+r} row_newbcast:{r} {DPPM}")
blk_reduce()
A("s_cbranch_scc1 L_fin")
blk_final()
A(f"v_fma_f32 v32, v32, v{wGA}, v{wXA}")
A(f"v_mul_f32 v36, v32, v{wCB}")
A(f"v_mov_b32_dpp v33, v32 quad_perm:[1,1,3,3] {DPPM}")
A(f"v_mov_b32_dpp v37, v36 quad_perm:[1,1,3,3] {DPPM}")
A("v_cvt_pk_bf16_f32 v34, v32, v33\nv_cvt_pk_bf16_f32 v38, v36, v37")
A(f"v_mov_b32_dpp v35, v34 quad_perm:[2,2,2,2] {DPPM}")
A(f"v_mov_b32_dpp v39, v38 quad_perm:[2,2,2,2] {DPPM}")
setexec(0x11111111, 0x11111111)
A(f"buffer_store_dwordx2 v[38:39], v{wXAD}, {RW}, s52 offen sc1")
A(f"buffer_store_dwordx2 v[38:39], v{wXAD}, {RW}, s101 offen sc1")
A(f"buffer_store_dwordx2 v[34:35], v{wXAD}, {RW}, s60 offen sc1")
A(f"buffer_store_dwordx2 v[34:35], v{wXAD}, {RW}, s100 offen sc1")
STAMP(10)
A("s_branch L_exit")
A.label("L_fin")
A("s_cmp_gt_u32 s3, 2\ns_cbranch_scc1 L_exit")
A(f"v_lshlrev_b32 v32, 7, v0\ns_movk_i32 s40, {TOK}\ns_movk_i32 s41, {VOTE}")
def tv_loads():
    A(f"buffer_load_dwordx4 v[16:19], v32, {RW}, s40 offen sc1")
    A(f"buffer_load_dword v20, v122, {RW}, s41 offen sc1")
def tv_chk():
    A(f"v_xor_b32 v33, {sTAG}, v20\nv_lshlrev_b32 v33, 1, v33")
    for t in (16, 17, 18, 19): A(f"v_bitop3_b32 v33, v{t}, {sTAG}, v33 bitop3:0xbe")
    A("v_cmp_ne_u32 vcc, 0, v33")
poll(tv_loads, tv_chk, sleep=2)
near_bit(20, "s44")
A("s_add_u32 s49, s49, s44\ns_add_u32 s50, s49, 32768\ns_add_u32 s59, s59, s44")
def x4_loads():
    A(f"buffer_load_dwordx4 v[16:19], v{wOF}, {RW}, s49 offen sc1")
    A(f"buffer_load_dwordx4 v[20:23], v{wOF}, {RW}, s50 offen sc1")
def x4_chk():
    A("v_max3_u32 v33, v16, v17, v18\nv_max3_u32 v34, v19, v20, v21\nv_max3_u32 v33, v33, v22, v23\nv_max_u32 v33, v33, v34\nv_cmp_eq_u32 vcc, -1, v33")
poll(x4_loads, x4_chk, sleep=OPT["x4s"])
STAMP(11)
for hp in range(2):
    for t in range(2):
        mfma(wD + 4*t, 16 + 4*hp, tE + 4*t, None if hp == 0 else wD + 4*t)
rowsum([wD, wD+4])
A(f"v_permlane16_swap_b32 v{wD}, v{wD+4}")
A(f"v_add_f32 v42, v{wD}, v{wD+4}\nv_add_f32 v43, v{wD}, v{wD+4}")
A("v_mul_f32 v44, v42, v42")
A("v_permlane16_swap_b32 v43, v44")
A(f"v_add_f32 v{wQD}, v43, v44")
for m in ("quad_perm:[1,0,3,2]", "quad_perm:[2,3,0,1]", "row_half_mirror", "row_mirror"):
    A(f"v_add_f32_dpp v{wQD}, v{wQD}, v{wQD} {m} {DPPM}")
setexec(0x00010001, 0x00010001)
A(f"buffer_store_dword v{wQD}, v113, {RW}, s55 offen")
fullexec()
STAMP(12)
A(f"s_lshr_b32 s40, s44, 6\nv_lshl_add_u32 v{tBP}, v{tOUT}, 1, s40")
SX("s62", 0, ("s44", 3, 0, 0), ("s5", 6))
A(f"ds_bpermute_b32 v42, v{tBP}, v42\nds_bpermute_b32 v{wGA}, v{tBP}, v{wGA}")
A("s_xor_b32 s40, s60, 512\ns_add_u32 s40, s40, s44\nv_mov_b32 v32, 0")
poll(lambda: A(f"buffer_load_dword v16, v32, {RW}, s40 offen sc1"), lambda: A("v_cmp_eq_u32 vcc, -1, v16"), sleep=1)
def y6_loads():
    for i in range(4):
        A(f"buffer_load_dwordx4 v[{16+4*i}:{19+4*i}], v{tL16}, {RW}, s59 offen offset:{1024*i} sc1")
def y6_chk():
    for r in range(4):
        A(f"v_add_f32 v{16+r}, v{16+r}, v{20+r}\nv_add_f32 v{24+r}, v{24+r}, v{28+r}")
    for r in range(4):
        A(f"v_add_f32 v{16+r}, v{16+r}, v{24+r}")
    A("v_permlane32_swap_b32 v16, v17\nv_permlane32_swap_b32 v18, v19")
    A("v_add_f32 v16, v16, v17\nv_add_f32 v18, v18, v19")
    A("v_permlane16_swap_b32 v16, v18")
    A("v_add_f32 v16, v16, v18")
    A("v_cmp_u_f32 vcc, v16, v16")
if OPT["ysent"]:
    await_any(lambda: A(f"buffer_load_dword v16, v{tL16}, {RW}, s59 offen sc1"), lambda: A("v_cmp_o_f32 vcc, v16, v16"), 2)
if OPT["ysent"] == 2:
    poll(lambda: A(f"buffer_load_dword v16, v{tL16}, {RW}, s59 offen sc1"), lambda: A("v_cmp_u_f32 vcc, v16, v16"), first_issued=True)
poll(y6_loads, y6_chk, sleep=OPT["y6s"])
STAMP(13)
for m in ("row_ror:8", "row_ror:4", "row_ror:2"):
    A(f"v_add_f32_dpp v16, v16, v16 {m} {DPPM}")
A("s_waitcnt lgkmcnt(0)")
setexec(0x00030003, 0x00030003)
A(f"v_fma_f32 v16, v16, v{wGA}, v42")
A("v_cvt_pk_bf16_f32 v16, v16, v16")
A(f"buffer_store_short v16, v{tOUT}, {RF}, s62 offen")
A("s_cmp_lg_u32 s2, 128\ns_cbranch_scc1 L_exit")
A(f"s_sub_u32 s40, {sTAG}, {TAGC-1:#x}")
A("v_mov_b32 v17, s40\nv_mov_b32 v18, 0")
A("s_mov_b64 exec, 1")
A(f"buffer_store_dword v17, v18, {RW}, 0 offen sc1")
A("s_branch L_exit")
A.seg(40)
A.label("L_exit")
if STAMPS == 1:
    STAMP(15)
    A("s_waitcnt lgkmcnt(0)")
    A("s_mov_b64 exec, 1")
    SX("s40", DBG, ("s2", 9), ("s3", 6))
    A("v_mov_b32 v0, 0")
    for q in range(4):
        for i in range(4):
            A(f"v_mov_b32 v{4+4*q+i}, s{64+2*(4*q+i)}")
        A(f"buffer_store_dwordx4 v[{4+4*q}:{7+4*q}], v0, {RW}, s40 offen offset:{16*q}")
if STAMPS == 5:
    STAMP(15)
    A("s_waitcnt lgkmcnt(0)")
    A("s_mov_b64 exec, 1")
    SX("s40", DBG, ("s2", 6), ("s3", 3))
    A(f"v_mov_b32 v0, 0\nv_mov_b32 v4, s64\nv_mov_b32 v5, s{64+2*OPT['db']}")
    A(f"buffer_store_dwordx2 v[4:5], v0, {RW}, s40 offen sc1")
    SX("s40", 0, ("s2", 3), ("s3", 0))
    A(f"s_cmp_lg_u32 s40, {129*8+2}\ns_cbranch_scc1 L_end")
    A.label("L_w3")
    A("s_memrealtime s[42:43]\ns_waitcnt lgkmcnt(0)\ns_sub_u32 s41, s42, s94\ns_cmp_lt_u32 s41, 300\ns_cbranch_scc1 L_w3")
    fullexec()
    A("v_mbcnt_lo_u32_b32 v1, -1, 0\nv_mbcnt_hi_u32_b32 v1, -1, v1\nv_lshlrev_b32 v1, 4, v1")
    A(f"s_mov_b32 s40, {DBG + OPT['drole']*8192}")
    for i in range(8):
        if i == 4: A("s_add_u32 s40, s40, 4096")
        A(f"buffer_load_dwordx4 v[{8+4*i}:{11+4*i}], v1, {RW}, s40 offen offset:{(i%4)*1024} sc1")
    A("s_waitcnt vmcnt(0)")
    for i in range(1, 16):
        A(f"v_min_u32 v8, v8, v{8+2*i}\nv_max_u32 v9, v9, v{9+2*i}")
    A("v_readlane_b32 s44, v8, 0\nv_readlane_b32 s45, v9, 0")
    for l in range(1, 64):
        A(f"v_readlane_b32 s46, v8, {l}\nv_readlane_b32 s47, v9, {l}\ns_nop 3\ns_min_u32 s44, s44, s46\ns_max_u32 s45, s45, s47")
    A(f"s_sub_u32 s40, s45, s44\ns_mul_i32 s40, s40, {OPT['dm']}\ns_add_u32 s40, s40, 600\ns_min_u32 s40, s40, 30000")
    A.label("L_spin")
    A("s_memrealtime s[42:43]\ns_waitcnt lgkmcnt(0)\ns_sub_u32 s41, s42, s94\ns_cmp_lt_u32 s41, s40\ns_cbranch_scc1 L_spin")
if STAMPS == 3:
    STAMP(15)
    A("s_waitcnt lgkmcnt(0)")
    SX("s40", 0, ("s2", 3), ("s3", 0))
    A(f"s_cmp_lg_u32 s40, {OPT['dwg']*8 + OPT['dwv']}\ns_cbranch_scc1 L_end")
    A(f"s_sub_u32 s40, s{64+2*OPT['db']}, s{64+2*OPT['da']}")
    A(f"s_mul_i32 s40, s40, {OPT['dm']}")
    A("s_min_u32 s40, s40, 30000")
    A.label("L_spin")
    A("s_memrealtime s[42:43]\ns_waitcnt lgkmcnt(0)\ns_sub_u32 s41, s42, s94\ns_cmp_lt_u32 s41, s40\ns_cbranch_scc1 L_spin")
A.label("L_end")
A("s_endpgm")
A.label("L_codeend")
A.raw(f".fill (16384 - (L_codeend - {NAME}_kernel)) / 4, 4, 0xbf810000")
A.raw(f""".section .rodata,"a"
.p2align 6
.amdhsa_kernel {NAME}_kernel
  .amdhsa_next_free_vgpr 152
  .amdhsa_next_free_sgpr 102
  .amdhsa_accum_offset 152
  .amdhsa_group_segment_fixed_size 0
  .amdhsa_kernarg_size 112
  .amdhsa_user_sgpr_count 2
  .amdhsa_user_sgpr_kernarg_segment_ptr 1
  .amdhsa_system_sgpr_workgroup_id_x 1
  .amdhsa_float_denorm_mode_32 3
.end_amdhsa_kernel""")
sys.stdout.write(A.text())
sys.stderr.write(f"instrs={A.ninstr} nops={A.nops}\n")
```

```python
import sys, math, struct
sys.path.insert(0, "work")
from asmlib import Asm

NAME = "adaLN_cond__sliding_block_cached__glu_gated_reglu__decode"
OPT = dict(stamps=0, nt="nt", limit=200000, refresh=255, smallnt="", s1=6, s2=1, sent=1, rot=7, r3=7, h1at=1, nv1=3,
           drole=0, dwg=10, dwv=1, da=0, db=15, dm=20, nore=0, reps=3, rotp=0, otouch=1, ofl="", tvearly=0, g4=0, phase=3, pbar=0, dtouch=0, ptk=1, ptw=0, clrpre=1, sgt=1, woe=8, dnearly=0, force=-1, tw=-1, tmax=12, tany=0, fw=0, fmax=10, fany=0, flate=0, usearly=0, y6s=0, x4s=0, ysent=1)
for a in sys.argv[1:]:
    k, v = a.split("=")
    OPT[k] = int(v) if v.lstrip("-").isdigit() else v
STAMPS = OPT["stamps"]; NT = OPT["nt"] if OPT["nt"] != "-" else ""
LIMIT = OPT["limit"]; REFRESH = OPT["refresh"]; SNT = OPT["smallnt"]

def f32(x): return "0x%08x" % struct.unpack("<I", struct.pack("<f", x))[0]

TRG = 0x1000; VOTE = 0x1800; PROBE = 0x64000; SG = 0x2000; TOK = 0x4000; H1G = 0x8000; QG = 0x10000; MGT = 0x20000; OG = 0x80000
X4 = 0x40000; Y4 = 0x50000; ST5 = 0x60000
G5 = 0x100000
Y6 = 0x180000; DBG = 0x400000
WS_BYTES = 0x800000
TAGC = 0x9E3779B9
VREG = 65536; PA = 131072; XL = 147456; QL = XL + 1024; PL = QL + 2048; MISC = PL + 2048
FG = 0; FD = 32768; YL0 = 131072
WQL = 0; WOL = 32768; PB = 65536; RED = XL + 1024
LDS_BYTES = MISC + 256
C1 = 128 ** -0.5 * math.log2(math.e)

A = Asm()
hdr = open(f"cdna_kernels/{NAME}.s.ref").read().split("\n")
for ln in hdr:
    if ln.startswith("; @launch"):
        A.raw(f"; @launch grid=(256,1,1) block=(512,1,1) lds={LDS_BYTES}")
        break
    A.raw(ln)
A.raw('.amdgcn_target "amdgcn-amd-amdhsa--gfx950"')
A.raw(f".text\n.globl {NAME}_kernel\n.p2align 8\n.type {NAME}_kernel,@function\n{NAME}_kernel:")

RA, RB, RW, RC, RD, RE, RF = "s[8:11]", "s[12:15]", "s[16:19]", "s[20:23]", "s[24:27]", "s[28:31]", "s[32:35]"
sTAG, sCNT, sT = "s36", "s37", "s45"
def STAMP(n):
    if STAMPS:
        A(f"s_memrealtime s[{64+2*n}:{65+2*n}]")
DPPM = "row_mask:0xf bank_mask:0xf"
lbl = [0]
def L(p):
    lbl[0] += 1
    return f"L_{p}_{lbl[0]}"
def srd(r, nbytes):
    b = int(r[2:r.index(":")])
    A((f"s_movk_i32 s{b+2}, {nbytes}" if nbytes < 32768 else f"s_mov_b32 s{b+2}, {nbytes}") + f"\ns_mov_b32 s{b+3}, s11")
def kload(r, off):
    b = int(r[2:r.index(":")])
    A(f"s_load_dwordx2 s[{b}:{b+1}], s[0:1], {off}")

def SX(dst, const, *terms):
    first = True
    for t in terms:
        src, rs, w, ls = (t[0], 0, 0, t[1]) if len(t) == 2 else t
        d = dst if first else sT
        cur = src
        if w:
            if rs == 0: A(f"s_and_b32 {d}, {cur}, {(1<<w)-1}")
            else: A(f"s_bfe_u32 {d}, {cur}, {(w<<16)|rs:#x}")
            cur = d
        elif rs:
            A(f"s_lshr_b32 {d}, {cur}, {rs}"); cur = d
        if first:
            if ls: A(f"s_lshl_b32 {d}, {cur}, {ls}")
            elif cur != d: A(f"s_mov_b32 {d}, {cur}")
        else:
            if 1 <= ls <= 4: A(f"s_lshl{ls}_add_u32 {dst}, {cur}, {dst}")
            else:
                if ls: A(f"s_lshl_b32 {sT}, {cur}, {ls}"); cur = sT
                A(f"s_add_u32 {dst}, {dst}, {cur}")
        first = False
    if const: A(f"s_add_u32 {dst}, {dst}, {const:#x}")
def VX(dst, tmp, add, *terms):
    first = True
    for rs, w, ls in terms:
        if rs == 4 and w == 2: cur = "v1"
        elif rs == 0 and w == 4: cur = "v2"
        elif rs == 0 and w == 6: cur = "v0"
        else:
            d = f"v{dst}" if first else f"v{tmp}"
            if rs + w == 6: A(f"v_lshrrev_b32 {d}, {rs}, v0")
            elif rs == 0: A(f"v_and_b32 {d}, {(1<<w)-1}, v0")
            else: A(f"v_bfe_u32 {d}, v0, {rs}, {w}")
            cur = d
        if first:
            if ls: A(f"v_lshlrev_b32 v{dst}, {ls}, {cur}")
            elif cur != f"v{dst}": A(f"v_mov_b32 v{dst}, {cur}")
        else:
            if ls: A(f"v_lshl_or_b32 v{dst}, {cur}, {ls}, v{dst}")
            else: A(f"v_or_b32 v{dst}, {cur}, v{dst}")
        first = False
    if add: A(f"v_add_u32 v{dst}, {add}, v{dst}")

def cont(n):
    t = L("c")
    A(f"s_branch {t}")
    A.seg(n); A.label(t)
def await_any(load, valid, sleep):
    if not OPT["sent"]: return
    top, done = L("aw"), L("awd")
    A(f"s_mov_b32 {sCNT}, 0")
    A.label(top)
    load()
    A("s_waitcnt vmcnt(0)")
    valid()
    A(f"s_cbranch_vccnz {done}")
    A(f"s_sleep {sleep}\ns_add_u32 {sCNT}, {sCNT}, 1\ns_cmp_lt_u32 {sCNT}, 64\ns_cbranch_scc1 {top}")
    A.label(done)
def poll(loads, check, first_issued=False, first_wait=0, sleep=0):
    again, top, chk, done = L("again"), L("poll"), L("chk"), L("got")
    A(f"s_mov_b32 {sCNT}, 0")
    if first_issued:
        if first_wait: A(f"s_waitcnt vmcnt({first_wait})")
        A(f"s_branch {chk if first_wait else top + 'w'}")
    else:
        A(f"s_branch {top}")
    A.label(again)
    if sleep: A(f"s_sleep {sleep}")
    A(f"s_add_u32 {sCNT}, {sCNT}, 1")
    A(f"s_and_b32 {sT}, {sCNT}, {REFRESH}\ns_cbranch_scc1 {top}")
    A("buffer_wbl2 sc1")
    A(f"s_cmp_ge_u32 {sCNT}, {LIMIT}\ns_cbranch_scc1 {done}")
    A.label(top)
    loads()
    A.label(top + "w")
    A("s_waitcnt vmcnt(0)")
    A.label(chk)
    check()
    A(f"s_cbranch_vccnz {again}")
    A.label(done)
def chk_empty4(r, tmp):
    A(f"v_max3_u32 v{tmp}, v{r}, v{r+1}, v{r+2}\nv_max_u32 v{tmp}, v{tmp}, v{r+3}\nv_cmp_eq_u32 vcc, -1, v{tmp}")
def pack4(src, pk, pk2, tmp):
    A(f"v_mov_b32_dpp v{tmp}, v{src} quad_perm:[1,1,3,3] {DPPM}")
    A(f"v_cvt_pk_bf16_f32 v{pk}, v{src}, v{tmp}")
    A(f"v_mov_b32_dpp v{pk2}, v{pk} quad_perm:[2,2,2,2] {DPPM}")
def setexec(lo, hi):
    A(f"s_mov_b32 exec_lo, {lo:#x}\ns_mov_b32 exec_hi, {hi:#x}")
def fullexec():
    A("s_mov_b64 exec, -1")
def mfma(d, a, b, c):
    cc = "0" if c is None else f"v[{c}:{c+3}]"
    A(f"v_mfma_f32_16x16x32_bf16 v[{d}:{d+3}], v[{a}:{a+3}], v[{b}:{b+3}], {cc}")
def rowsum(ds):
    for d in ds: A(f"v_add_f32 v{d}, v{d}, v{d+1}\nv_add_f32 v{d+2}, v{d+2}, v{d+3}")
    for d in ds: A(f"v_add_f32 v{d}, v{d}, v{d+2}")
wM, wQ, wO, wTR, T0, T1, T2, T3, vPF = 3, 4, 5, 6, 7, 8, 9, 10, 11
wC = 12; wXS = 13; wX = 16; wXO = 24; wWF = 40; wD = 56
def tr_setup():
    VX(wTR, 32, 0, (2, 4, 7), (3, 2, 5), (0, 2, 3))
    SX("s40", XL, ("s3", 0, 2, 8))
    VX(82, 32, "s40", (0, 6, 2))
    VX(83, 32, "s40", (2, 1, 7), (4, 2, 3))
def silu_operand(cnt):
    A(f"s_waitcnt vmcnt({cnt})")
    A(f"v_lshlrev_b32 v32, 16, v{wC}\nv_and_b32 v33, 0xffff0000, v{wC}")
    A(f"v_mul_f32 v34, {f32(-math.log2(math.e))}, v32\nv_mul_f32 v35, {f32(-math.log2(math.e))}, v33")
    A("v_exp_f32 v34, v34\nv_exp_f32 v35, v35")
    A("v_add_f32 v34, 1.0, v34\nv_add_f32 v35, 1.0, v35")
    A("v_rcp_f32 v34, v34\nv_rcp_f32 v35, v35")
    A("v_mul_f32 v32, v32, v34\nv_mul_f32 v33, v33, v35")
    A("v_cvt_pk_bf16_f32 v32, v32, v33")
    A("ds_write_b32 v82, v32")
    A(f"ds_read2_b64 v[{wXO}:{wXO+3}], v83 offset0:0 offset1:4\nds_read2_b64 v[{wXO+4}:{wXO+7}], v83 offset0:8 offset1:12")
def unit_pre(s_c0, s_c1, base):
    SX("s40", 0, ("s3", 0, 2, 5)); A(f"v_xor_b32 v112, s40, v{wTR}\nv_add_u32 v112, {base}, v112")
    for i in range(4):
        A(f"v_mov_b32 v{wD+i}, {s_c0}\nv_mov_b32 v{wD+4+i}, {s_c1}")
def unit_go():
    if STAMPS: A("s_waitcnt lgkmcnt(0)")
    for k in range(2):
        for seg in range(2):
            for h in range(2):
                r = wWF + seg*8 + k*4 + h*2
                A(f"ds_read_b64_tr_b16 v[{r}:{r+1}], v112 offset:{seg*8192 + k*4096 + h*2048}")
    for k in range(2):
        for seg in range(2):
            A(f"s_waitcnt lgkmcnt({6 - 4*k - 2*seg})")
            mfma(wD + 4*seg, wXO + 4*k, wWF + seg*8 + k*4, wD + 4*seg)
def tagged_loads(r, va, so):
    A(f"buffer_load_dwordx4 v[{r}:{r+3}], v{va}, {RW}, {so} offen sc1")
    A(f"buffer_load_dwordx4 v[{r+4}:{r+7}], v{va}, {RW}, {so} offen offset:1024 sc1")
def tags_chk(tags, tmp):
    if len(tags) == 1:
        A(f"v_cmp_ne_u32 vcc, {sTAG}, v{tags[0]}"); return
    A(f"v_xor_b32 v{tmp}, {sTAG}, v{tags[0]}")
    for t in tags[1:]:
        A(f"v_bitop3_b32 v{tmp}, v{t}, {sTAG}, v{tmp} bitop3:0xbe")
    A(f"v_cmp_ne_u32 vcc, 0, v{tmp}")
def tagged_chk(rs, tmp):
    tags_chk([r + i for r in rs for i in (1, 3, 5, 7)], tmp)
def tagged_pack(r):
    A(f"v_mov_b32 v{r+1}, v{r+2}\nv_mov_b32 v{r+2}, v{r+4}\nv_mov_b32 v{r+3}, v{r+6}")
def near_bit(r, dst):
    A(f"s_xor_b32 {dst}, {sTAG}, 0x80000000")
    A(f"v_cmp_eq_u32 vcc, {dst}, v{r}")
    A(f"s_bcnt1_i32_b32 {sT}, vcc_lo")
    A(f"v_cmp_eq_u32 vcc, {sTAG}, v{r}")
    A(f"s_bcnt1_i32_b32 {dst}, vcc_lo")
    A(f"s_cmp_gt_u32 {sT}, {dst}\ns_cselect_b32 {dst}, 4, 0")
    if OPT["force"] >= 0: A(f"s_mov_b32 {dst}, {4*OPT['force']}")
    A(f"s_xor_b32 {dst}, {dst}, s2\ns_and_b32 {dst}, {dst}, 4\ns_lshl_b32 {dst}, {dst}, 11")
def settags(*regs):
    for r in regs: A(f"v_mov_b32 v{r}, {sTAG}")

STAMP(0)
A("s_cmp_ge_u32 s2, 256\ns_cbranch_scc1 L_end")
A("s_cmp_ge_u32 s2, 128\ns_cselect_b32 s40, 24, 8\ns_cselect_b32 s41, 0, 16")
A("s_load_dwordx2 s[8:9], s[0:1], s40")
kload(RC, 80)
A("s_load_dwordx2 s[24:25], s[0:1], s41")
kload(RE, 72); kload(RW, 104)
A("v_readfirstlane_b32 s3, v0")
sk = L("npf")
A(f"s_cbranch_scc1 {sk}")
A("s_getpc_b64 s[38:39]")
A(f"v_and_b32 v{vPF}, 0x1c0, v0\ns_lshl_b32 s40, s2, 7\ns_and_b32 s38, s38, 0xffffff00\ns_and_b32 s40, s40, 0x3c00\nv_lshl_or_b32 v{vPF}, v{vPF}, 1, s40")
A(f"global_load_dword v{vPF}, v{vPF}, s[38:39]")
A.label(sk)
A("v_and_b32 v0, 63, v0")
A("s_mov_b32 s11, 0x00020000")
A("v_lshrrev_b32 v1, 4, v0\nv_and_b32 v2, 15, v0")
A(f"s_add_u32 s4, s2, {OPT['rot']}\ns_and_b32 s4, s4, 7\ns_bfe_u32 s6, s2, 0x10006\ns_bfe_u32 s7, s2, 0x30003")
A(f"v_lshlrev_b32 v{T3}, 1, v1\nv_xor_b32 v{T3}, v2, v{T3}\nv_lshlrev_b32 v{T3}, 4, v{T3}")
A("s_mov_b32 s27, s11")
A(f"v_and_b32 v{T1}, 0x70, v{T3}\nv_lshrrev_b32 v{T0}, 3, v0")
A("s_cmp_lt_u32 s2, 128\ns_cbranch_scc1 L_KV")
def ids2():
    A("s_lshr_b32 s3, s3, 6\ns_bfe_u32 s5, s2, 0x40003\ns_lshl1_add_u32 s58, s4, s6")
    if STAMPS:
        for i in range(2, 16): A(f"s_mov_b32 s{64+2*i}, 0")
    srd(RW, WS_BYTES)

A.seg(3); A.label("L_KV")
vE, vO, vQO = 120, 121, 122
vKF = 16
vVF = 48
vQF = 80
vS = 96
vQ = 100
vP = 104
vKA = 108
vOA = 108
vST = 144
vOAD, vSAD = 116, 117
wG, wDO, fMF = 124, 125, 123
vMF = 128
A(f"v_lshl_or_b32 v{vE}, v1, 8, v{T3}\nv_xor_b32 v{vO}, 0x80, v{vE}")
A("s_lshl_b32 s43, s3, 7\ns_mov_b32 s10, 33554432\ns_mov_b32 s26, s10")
PH = OPT["phase"]
if PH == 2 or PH == 3:
    SX("s56", 6144*256, ("s6", 24), ("s4", 21), ("s7", 16), ("s3", 7, 0, 14), ("s3", 6, 1, 12))
    A("s_add_u32 s57, s56, 8192")
elif PH == 5:
    SX("s56", 6144*256, ("s6", 24), ("s4", 21), ("s7", 1, 0, 17), ("s3", 8), ("s7", 0, 1, 13))
    A("s_add_u32 s57, s56, 4096")
elif PH == 6:
    SX("s56", 6144*256, ("s6", 24), ("s4", 21), ("s7", 16), ("s3", 7, 0, 14), ("s3", 6, 1, 12), ("s7", 0, 1, 13))
    A("s_xor_b32 s57, s56, 0x2000")
elif PH == 4:
    SX("s56", 6144*256, ("s6", 24), ("s4", 21), ("s7", 16), ("s3", 6, 2, 14), ("s3", 8, 0, 13))
    A("s_add_u32 s57, s56, 4096")
else:
    SX("s56", 6144*256, ("s6", 24), ("s4", 21), ("s7", 16), ("s43", 0))
    A("s_add_u32 s57, s56, 4096")
A("s_mov_b32 m0, s43" if PH == 2 else f"s_add_u32 m0, s43, {VREG}")
VO = [vE, vO, vE, vO]
if OPT["rotp"]:
    VO = [vE, vO, 126, 127]
    if OPT["rotp"] == 1: A("s_lshl_b32 s40, s3, 3\ns_and_b32 s40, s40, 0xc00")
    else: A("s_lshl_b32 s40, s3, 3\ns_lshl_b32 s41, s7, 10\ns_xor_b32 s40, s40, s41\ns_and_b32 s40, s40, 0xc00")
    A(f"s_xor_b32 s41, s40, 0x800\ns_add_u32 s41, s41, 0x400\nv_add_u32 v126, s41, v{vE}")
    A(f"s_xor_b32 s41, s40, 0xc00\nv_add_u32 v127, s41, v{vO}")
    A(f"s_xor_b32 s41, s40, 0x400\ns_add_u32 s41, s41, 0x800\nv_add_u32 v{vO}, s41, v{vO}")
    A(f"s_add_u32 s41, s40, 0xc00\nv_add_u32 v{vE}, s41, v{vE}")
    A("s_sub_u32 s56, s56, 0xc00\ns_sub_u32 s57, s57, 0xc00")
def kv_dma(u):
    r = RA if u < 8 else RD
    A(f"buffer_load_dwordx4 v{VO[u%4]}, {r}, {'s56' if u%8 < 4 else 's57'} offen offset:{(u%4)*1024} {NT} lds")
PB_ = OPT["pbar"]
SX("s50", 0, ("s2", 4, 0, 9), ("s3", 0))
if not PB_:
    A(f"s_cmp_eq_u32 s50, {7*64}")
    A("s_waitcnt lgkmcnt(0)")
    A("s_cbranch_scc1 L_meas")
    A.label("L_go")
else:
    A("s_waitcnt lgkmcnt(0)")
if PH == 2: A(f"buffer_load_dword v136, v2, {RD}, s56 offen {NT}")
else:
    kv_dma(8)
    A("s_mov_b32 m0, s43")
A(f"s_load_dword {sTAG}, s[16:17], 0")
for u in range(16):
    if PB_ and u and u % 4 == 0:
        A(f"s_cmp_eq_u32 s50, 0\ns_cbranch_scc1 L_m{u}")
        A.label(f"L_r{u}")
        A("s_barrier")
    if u in (4, 12): A("s_add_u32 m0, m0, 4096")
    if u == 8:
        A(f"s_add_u32 m0, s43, {VREG}")
        if PH != 2: continue
    kv_dma(u)
if PB_: A("s_cmp_eq_u32 s50, 0\ns_cbranch_scc1 L_m16")
cont(30)
if PB_: A.label("L_r16")
ids2()
if STAMPS: A("s_mov_b32 s66, 0")
STAMP(2)
if OPT["tw"] >= 0 or OPT["fw"]:
    SX("s100", TRG + 64, ("s4", 7))
    A("v_lshlrev_b32 v149, 2, v2")
    sk = L("ntp")
    A(f"s_cmp_lg_u32 s3, 0\ns_cbranch_scc1 {sk}")
    A(f"buffer_load_dword v136, v149, {RW}, s100 offen sc1")
    A.label(sk)
if OPT["tw"] >= 0:
    sk = L("ntr")
    A(f"s_cmp_lg_u32 s3, {OPT['tw']}\ns_cbranch_scc1 {sk}")
    SX("s40", TRG, ("s4", 7), ("s5", 2))
    A(f"s_waitcnt lgkmcnt(0)\ns_add_u32 s41, {sTAG}, {TAGC:#x}\nv_mov_b32 v136, s41")
    A(f"s_mov_b64 exec, 1\nbuffer_store_dword v136, v0, {RW}, s40 offen")
    fullexec()
    A.label(sk)
SX("s63", 0, ("s4", 4), ("s5", 0))
SX("s96", G5, ("s63", 10))
SX("s98", ST5, ("s4", 7))
A(f"v_lshlrev_b32 v{vQO}, 4, v0\nv_lshlrev_b32 v148, 7, v0\ns_movk_i32 s99, {TOK}")
kload(RC, 48); kload(RB, 56); kload(RE, 64)
A(f"v_mul_u32_u24 v{wG}, 3584, v{T0}\nv_add_u32 v{wG}, v{wG}, v{T1}\nv_lshl_or_b32 v{wDO}, v{T0}, 10, v{T1}")
srd(RC, 1835008); srd(RB, 1835008); srd(RE, 1835008)
SX("s49", 0, ("s63", 0, 2, 7), ("s3", 4))
A("s_mul_i32 s49, s49, 3584")
SX("s50", 0, ("s63", 2, 0, 7))
A(f"s_add_u32 s49, s49, s50\ns_add_u32 s50, s49, {8*3584-1024}")
SX("s51", 0, ("s63", 14), ("s3", 7))
A(f"s_add_u32 s52, s51, {8*1024-1024}\ns_lshl_b32 s42, s3, 11")
SX("s44", QG, ("s58", 12), ("s3", 10))
VX(fMF, T2, 0, (0, 3, 7), (3, 1, 6), (4, 2, 4))
SX("s59", MGT + 2*32768, ("s63", 0, 2, 13), ("s3", 0, 2, 11))
SX("s40", 0, ("s3", 2, 0, 15)); A("s_sub_u32 s59, s59, s40")
VX(T2, 0, 0, (0, 3, 1))
A(f"v_xor_b32 v{T2}, v1, v{T2}\nv_lshlrev_b32 v{T2}, 4, v{T2}\nv_lshl_or_b32 v{T2}, v2, 8, v{T2}")
A(f"v_add_u32 v{vKA}, s43, v{T2}")
for t in range(1, 4):
    A(f"v_xor_b32 v{vKA+t}, {t*64:#x}, v{vKA}")
vQW, vQR, vVR, vMX, vPW, vPR, vMW = 3, 4, 5, 6, 113, 13, 112
SX("s40", QL, ("s3", 5))
VX(vQW, T2, "s40", (1, 4, 7), (5, 1, 4), (0, 1, 3))
VX(vQR, T2, QL, (4, 2, 7), (0, 3, 4))
A(f"v_bfe_u32 v{T0}, v0, 2, 3\nv_xor_b32 v{T0}, s3, v{T0}")
VX(vVR, T2, VREG, (2, 4, 8), (0, 2, 3))
A(f"v_lshl_or_b32 v{vVR}, v{T0}, 5, v{vVR}")
VX(vMX, T2, MISC, (0, 2, 5))
A(f"s_lshl_b32 s40, s3, 2\nv_add_u32 v{vMW}, s40, v{vMX}")
VX(vPR, T2, PL, (4, 2, 6), (0, 2, 4))
A(f"s_lshl_b32 s40, s3, 8\nv_and_b32 v{T2}, 12, v0\nv_add3_u32 v{vPW}, s40, v{vPR}, v{T2}")
A("s_mov_b32 s60, 0xf0f0f0f0\ns_mov_b32 s61, s60\ns_mov_b32 s46, 0xff00ff00\ns_mov_b32 s47, s46")
VX(vOAD, T2, 0, (0, 2, 13), (4, 2, 4))
SX("s53", OG, ("s4", 15), ("s3", 10), ("s5", 6))
VX(vSAD, T2, 0, (0, 2, 8))
SX("s54", SG, ("s4", 10), ("s5", 4))
A(f"s_mov_b32 s55, {f32(C1)}")
A(f"s_waitcnt vmcnt({8 if PH == 2 else 7}) lgkmcnt(0)")
A(f"s_add_u32 {sTAG}, {sTAG}, {TAGC:#x}")
for T in range(2):
    for t in range(4):
        r = vKF + (T*4+t)*4
        A(f"ds_read_b128 v[{r}:{r+3}], v{vKA+t} offset:{T*4096}")
settags(vP+1, vP+3, vST+1, vST+3)
if OPT["ptk"]:
    sk = L("npt")
    A(f"s_cmp_lg_u32 s3, 5\ns_cbranch_scc1 {sk}")
    A("s_mov_b64 exec, 1")
    for r, so in ((RC, "s49"), (RB, "s49"), (RE, "s51")):
        A(f"buffer_load_dword v137, v0, {r}, {so} offen")
    fullexec()
    A.label(sk)
A(f"v_lshlrev_b32 v150, 2, v2\ns_movk_i32 s101, {VOTE}")
sk = L("nqp")
A(f"s_cmp_ge_u32 s3, 4\ns_cbranch_scc1 {sk}")
poll(lambda: A(f"buffer_load_dwordx4 v[{vQ}:{vQ+3}], v{vQO}, {RW}, s44 offen sc1"), lambda: tags_chk([vQ+1, vQ+3], T0), sleep=OPT['s2'])
STAMP(4)
A(f"v_mov_b32 v{vQ+1}, v{vQ+2}\nds_write_b64 v{vQW}, v[{vQ}:{vQ+1}]")
A.label(sk)
A("s_waitcnt vmcnt(0) lgkmcnt(0)\ns_barrier")
STAMP(5)
if STAMPS: A("s_waitcnt lgkmcnt(0)")
for t in range(4):
    A(f"ds_read_b128 v[{vQF+4*t}:{vQF+4*t+3}], v{vQR} offset:{t*512}")
def v_tr(kb, T):
    r = vVF + kb*4 + T*2
    A(f"ds_read_b64_tr_b16 v[{r}:{r+1}], v{vVR} offset:{(32*kb+16*T)*256}")
NV1 = OPT["nv1"]
for t in range(4):
    A(f"s_waitcnt lgkmcnt({3-t})")
    for T in range(2):
        mfma(vS + 4*T, vKF + (T*4+t)*4, vQF + 4*t, None if t == 0 else vS + 4*T)
for kb in range(NV1):
    v_tr(kb, 0); v_tr(kb, 1)
def mf_loads():
    tagged_loads(vMF, fMF, "s59")
mf_loads()
A(f"buffer_load_dword v151, v150, {RW}, s101 offen sc1")
def dn_dma():
    A(f"s_add_u32 m0, s42, {FD}")
    A(f"buffer_load_dwordx4 v{wDO}, {RE}, s51 offen {NT} lds")
    A(f"buffer_load_dwordx4 v{wDO}, {RE}, s52 offen offset:1024 {NT} lds")
DE = OPT["dnearly"]
if DE == 1: dn_dma()
if OPT["dtouch"]:
    A(f"v_lshlrev_b32 v137, 10, v2\nbuffer_load_dword v137, v137, {RE}, s51 offen")
for i in range(8):
    A(f"v_add_f32_dpp v{vS+i}, v{vS+i}, v{vS+i} row_ror:4 {DPPM}")
A(f"v_max3_f32 v{T0}, v{vS}, v{vS+1}, v{vS+2}\nv_max3_f32 v{T2}, v{vS+3}, v{vS+4}, v{vS+5}")
A(f"v_max3_f32 v{T0}, v{T0}, v{vS+6}, v{vS+7}\nv_max_f32 v{T3}, v{T0}, v{T2}\nv_max_f32 v{T0}, v{T0}, v{T2}")
A(f"v_cndmask_b32 v{vS}, v{vS}, v{vS+2}, s[60:61]\nv_cndmask_b32 v{vS+1}, v{vS+1}, v{vS+3}, s[60:61]")
A(f"v_permlane32_swap_b32 v{T0}, v{T3}")
A(f"v_max_f32 v{T2}, v{T0}, v{T3}\nv_max_f32 v{T0}, v{T0}, v{T3}")
A(f"v_cndmask_b32 v{vS+4}, v{vS+4}, v{vS+6}, s[60:61]\nv_cndmask_b32 v{vS+5}, v{vS+5}, v{vS+7}, s[60:61]")
A(f"v_permlane16_swap_b32 v{T0}, v{T2}")
A(f"v_max_f32 v{T0}, v{T0}, v{T2}")
A(f"ds_write_b32 v{vMW}, v{T0}")
A(f"v_cndmask_b32 v{vS}, v{vS}, v{vS+4}, s[46:47]\nv_cndmask_b32 v{vS+1}, v{vS+1}, v{vS+5}, s[46:47]")
A(f"v_mul_f32 v{vS}, s55, v{vS}\nv_mul_f32 v{vS+1}, s55, v{vS+1}")
STAMP(14)
sk = L("nlt")
A(f"s_cmp_lg_u32 s3, 7\ns_cbranch_scc1 {sk}")
A(f"buffer_load_dwordx4 v[136:139], v{vQO}, {RW}, s96 offen sc1")
A(f"buffer_load_dword v136, v{wDO}, {RW}, s98 offen sc1")
A(f"buffer_load_dwordx4 v[140:143], v148, {RW}, s99 offen sc1")
A.label(sk)
A("s_waitcnt lgkmcnt(0)\ns_barrier")
A(f"ds_read_b128 v[{vQF}:{vQF+3}], v{vMX}\nds_read_b128 v[{vQF+4}:{vQF+7}], v{vMX} offset:16")
for kb in range(NV1, 8):
    v_tr(kb, 0); v_tr(kb, 1)
A(f"s_waitcnt lgkmcnt({2*(8 - NV1)})")
A(f"v_max3_f32 v{T0}, v{vQF}, v{vQF+1}, v{vQF+2}\nv_max3_f32 v{T2}, v{vQF+3}, v{vQF+4}, v{vQF+5}")
A(f"v_max3_f32 v{T0}, v{T0}, v{vQF+6}, v{vQF+7}\nv_max_f32 v{T0}, v{T0}, v{T2}")
A(f"v_fma_f32 v{vS}, -v{T0}, s55, v{vS}\nv_fma_f32 v{vS+1}, -v{T0}, s55, v{vS+1}")
A(f"v_exp_f32 v{vS}, v{vS}\nv_exp_f32 v{vS+1}, v{vS+1}")
A(f"v_mul_f32 v{vST}, s55, v{T0}")
A(f"v_cvt_pk_bf16_f32 v{T1}, v{vS}, v{vS+1}")
A(f"v_add_f32 v{T0}, v{vS}, v{vS+1}")
A(f"ds_write_b32 v{vPW}, v{T1}")
A(f"v_add_f32_dpp v{T0}, v{T0}, v{T0} row_ror:4 {DPPM}")
A(f"v_add_f32_dpp v{T3}, v{T0}, v{T0} row_ror:8 {DPPM}\nv_add_f32_dpp v{T0}, v{T0}, v{T0} row_ror:8 {DPPM}")
A(f"v_permlane32_swap_b32 v{T0}, v{T3}")
A(f"v_add_f32 v{T2}, v{T0}, v{T3}\nv_add_f32 v{T0}, v{T0}, v{T3}")
A(f"v_permlane16_swap_b32 v{T0}, v{T2}")
A(f"v_add_f32 v{T0}, v{T0}, v{T2}")
A(f"ds_write_b32 v{vMW}, v{T0} offset:128")
if DE == 2: dn_dma()
A("s_waitcnt lgkmcnt(0)\ns_barrier")
STAMP(3)
if STAMPS: A("s_waitcnt lgkmcnt(0)")
sk = L("nst"); sk2 = L("nsu")
A(f"s_cmp_lg_u32 s3, 0\ns_cbranch_scc1 {sk}")
A(f"ds_read_b128 v[{vQF}:{vQF+3}], v{vMX} offset:128\nds_read_b128 v[{vQF+4}:{vQF+7}], v{vMX} offset:144")
A.label(sk)
for kb in range(8):
    r = vKF + kb*4
    A(f"ds_read_b128 v[{r}:{r+3}], v{vPR} offset:{kb*256}")
A(f"s_cbranch_scc1 {sk2}")
A("s_waitcnt lgkmcnt(8)")
rowsum([vQF, vQF+4])
A(f"v_add_f32 v{vST+2}, v{vQF}, v{vQF+4}")
A("s_mov_b64 exec, 15")
A(f"buffer_store_dwordx4 v[{vST}:{vST+3}], v{vSAD}, {RW}, s54 offen")
fullexec()
A.label(sk2)
for kb in range(8):
    A(f"s_waitcnt lgkmcnt({7-kb})")
    mfma(vOA, vVF + kb*4, vKF + kb*4, None if kb == 0 else vOA)
setexec(0x000f000f, 0x000f000f)
A(f"s_add_u32 m0, s42, {FG}")
A(f"v_cvt_pk_bf16_f32 v{vP}, v{vOA}, v{vOA+1}\nv_cvt_pk_bf16_f32 v{vP+2}, v{vOA+2}, v{vOA+3}")
A(f"buffer_store_dwordx4 v[{vP}:{vP+3}], v{vOAD}, {RW}, s53 offen")
fullexec()
STAMP(7)
A("s_cmp_eq_u32 s4, 7\ns_cbranch_scc1 L_g7")
def ffn_dma():
    if OPT["fw"]:
        A("s_cmp_lg_u32 s3, 1\ns_cbranch_scc1 L_fwd")
        A(f"s_mov_b32 {sCNT}, 0")
        A.label("L_fw")
        A(f"buffer_load_dword v33, v149, {RW}, s100 offen sc1")
        A("s_waitcnt vmcnt(0)")
        A(f"v_cmp_eq_u32 vcc, {sTAG}, v33")
        A(f"s_bcnt1_i32_b32 s40, vcc_lo\ns_cmp_ge_u32 s40, {2*(16-OPT['fany'])}\ns_cbranch_scc1 L_fwd")
        A(f"s_sleep 1\ns_add_u32 {sCNT}, {sCNT}, 1\ns_cmp_lt_u32 {sCNT}, {OPT['fmax']}\ns_cbranch_scc1 L_fw")
        A.label("L_fwd")
    A("s_barrier")
    A(f"buffer_load_dwordx4 v{wG}, {RC}, s49 offen {NT} lds")
    A(f"buffer_load_dwordx4 v{wG}, {RC}, s50 offen offset:1024 {NT} lds")
    A(f"s_add_u32 m0, s42, {FG+16384}")
    A(f"buffer_load_dwordx4 v{wG}, {RB}, s49 offen {NT} lds")
    A(f"buffer_load_dwordx4 v{wG}, {RB}, s50 offen offset:1024 {NT} lds")
    if not DE:
        A("s_barrier")
        dn_dma()
if not OPT["flate"]: ffn_dma()
fYW, fYR, fWR, fGR, fSTA, fY6A = 113, 114, 115, 118, 119, 120
fGA = 116; fG = 144; fUS = 145
fU, fS = 121, 117
wTA = 108; fWF = 84; fDF = 64
VX(wTR, 32, 0, (2, 4, 7), (3, 2, 5), (0, 2, 3))
SX("s40", 0, ("s3", 0, 2, 5)); A(f"v_xor_b32 v{fWR}, s40, v{wTR}")
SX("s40", FG, ("s3", 2, 0, 14)); A(f"v_add_u32 v{fWR}, s40, v{fWR}")
A(f"s_add_u32 s40, s42, {FD}\nv_add_u32 v{wTA}, s40, v{wTR}")
for t in range(1, 4):
    A(f"v_xor_b32 v{wTA+t}, {t*32:#x}, v{wTA}")
A(f"v_add_u32 v{fYR}, {YL0}, v{vQO}")
A(f"s_lshl_b32 s40, s3, 10\nv_add_u32 v{fYW}, s40, v{fYR}")
if OPT["g4"]:
    VX(fGA, 32, 0, (2, 2, 8), (5, 1, 7), (0, 2, 4))
    SX("s61", G5, ("s63", 2, 0, 12), ("s3", 0, 2, 10), ("s5", 0, 2, 2), ("s3", 2, 0, 6))
else:
    VX(fGA, 32, 0, (0, 6, 2))
    SX("s61", G5 - 64, ("s63", 2, 0, 12), ("s3", 0, 2, 10), ("s5", 0, 2, 8), ("s3", 2, 0, 7))
VX(fGR, 32, 0, (2, 1, 7), (3, 1, 6), (4, 2, 4), (0, 2, 2))
VX(fSTA, 32, 0, (0, 2, 5), (2, 1, 10), (5, 1, 4))
VX(fY6A, 32, 0, (3, 1, 13), (5, 1, 12), (4, 1, 4))
SX("s47", Y4, ("s3", 2, 0, 15), ("s5", 1, 1, 14), ("s5", 0, 1, 12), ("s3", 0, 2, 10))
if OPT["flate"] == 2: A("s_waitcnt vmcnt(0)")
if OPT["flate"]: ffn_dma()
SX("s49", Y6, ("s3", 16), ("s63", 5))
A("s_add_u32 s50, s49, 16384\ns_add_u32 s51, s49, 32768\ns_add_u32 s52, s49, 49152")
A(f"s_mov_b32 s41, {f32(1.0/512)}\ns_mov_b32 s43, {f32(1e-5)}")
poll(mf_loads, lambda: tagged_chk([vMF], 33), first_issued=True, first_wait=4 if DE else 6, sleep=4)
tagged_pack(vMF)
near_bit(151, "s40"); A("s_add_u32 s47, s47, s40")
A(f"ds_write_b128 v{fYW}, v[{vMF}:{vMF+3}]")
sk = L("ntk")
A(f"s_cmp_lg_u32 s3, 7\ns_cbranch_scc1 {sk}")
poll(lambda: A(f"buffer_load_dwordx4 v[140:143], v148, {RW}, s99 offen sc1"), lambda: tags_chk([140, 141, 142, 143], 33), first_issued=True, first_wait=4 if DE else 6, sleep=2)
A.label(sk)
vY = 76
y_load = lambda: A(f"buffer_load_dwordx4 v[{vY}:{vY+3}], v{fMF}, {RW}, s47 offen sc1")
A(f"s_waitcnt vmcnt({0 if DE else 2}) lgkmcnt(0)\ns_barrier")
STAMP(10)
y_load()
YO = [16, 20, 24, 28, 32, 36, 100, 104]
for k in range(4):
    for h in range(2):
        r = fWF + 4*k + 2*h
        A(f"ds_read_b64_tr_b16 v[{r}:{r+1}], v{fWR} offset:{k*4096 + h*2048}")
for u in range(8):
    A(f"ds_read_b128 v[{YO[u]}:{YO[u]+3}], v{fYR} offset:{u*1024}")
A("s_waitcnt lgkmcnt(0)")
for k in range(4):
    for pi in range(2):
        mfma(wD + 4*pi, YO[4*pi+k], fWF + 4*k, None if k == 0 else wD + 4*pi)
rowsum([wD, wD+4])
A(f"v_permlane16_swap_b32 v{wD}, v{wD+4}")
A(f"v_add_f32 v{fU}, v{wD}, v{wD+4}\nv_add_f32 v{fS}, v{wD}, v{wD+4}\nv_mov_b32 v146, s43")
A(f"v_permlane16_swap_b32 v{fU}, v{fS}")
STAMP(1)
poll(y_load, lambda: chk_empty4(vY, 33), first_issued=True, sleep=OPT["x4s"])
STAMP(11)
A(f"ds_write_b128 v{fYW}, v[{vY}:{vY+3}] offset:8192")
A("s_waitcnt lgkmcnt(0)\ns_barrier")
for u in range(8):
    A(f"ds_read_b128 v[{YO[u]}:{YO[u]+3}], v{fYR} offset:{8192+u*1024}")
st_load = lambda: A(f"buffer_load_dwordx4 v[40:43], v{fSTA}, {RW}, s98 offen sc1")
st_load()
for u in range(8):
    A(f"s_waitcnt lgkmcnt({7-u})")
    mfma(wD, YO[u], fWF + 4*(u & 3), None if u == 0 else wD)
for tau in range(4):
    A(f"ds_read_b64_tr_b16 v[{fDF+2*tau}:{fDF+2*tau+1}], v{wTA+tau}")
def st_chk():
    A("v_add_f32 v40, v40, v42\nv_add_f32 v41, v41, v43")
    A("v_cmp_u_f32 vcc, v40, v41")
poll(st_load, st_chk, first_issued=True)
A(f"v_add_f32_dpp v40, v40, v40 quad_perm:[1,0,3,2] {DPPM}\nv_add_f32_dpp v41, v41, v41 quad_perm:[1,0,3,2] {DPPM}")
A(f"v_add_f32 v{wD}, v{wD}, v{wD+1}\nv_add_f32 v{wD+2}, v{wD+2}, v{wD+3}")
A(f"v_add_f32_dpp v40, v40, v40 quad_perm:[2,3,0,1] {DPPM}\nv_add_f32_dpp v41, v41, v41 quad_perm:[2,3,0,1] {DPPM}")
A(f"v_add_f32 v{wD+1}, v{wD}, v{wD+2}\nv_add_f32 v{wD}, v{wD}, v{wD+2}")
A(f"v_add_f32_dpp v40, v40, v40 row_half_mirror {DPPM}\nv_add_f32_dpp v41, v41, v41 row_half_mirror {DPPM}")
A(f"v_permlane16_swap_b32 v{wD}, v{wD+1}")
A("v_mul_f32 v40, s41, v40")
A("v_fma_f32 v41, v41, s41, v146")
A(f"v_add_f32 v{wD}, v{wD}, v{wD+1}")
A("v_fma_f32 v41, -v40, v40, v41")
A(f"v_fma_f32 v{wD}, -v40, v{fU}, v{wD}")
A("v_rsq_f32 v41, v41")
setexec(0xffff0000, 0x0000ffff)
A(f"v_fma_f32 v{fG}, v{wD}, v41, v{fS}")
A(f"buffer_store_dword v{fG}, v{fGA}, {RW}, s61 offen")
fullexec()
STAMP(12)
def g_loads():
    if OPT["g4"]:
        A(f"buffer_load_dwordx4 v[20:23], v{vQO}, {RW}, s96 offen sc1"); return
    for k in range(4):
        A(f"buffer_load_dword v{20+k}, v{fGR}, {RW}, s96 offen offset:{256*k} sc1")
def g_chk():
    A("v_add_f32 v20, v20, v21\nv_add_f32 v22, v22, v23\nv_add_f32 v20, v20, v22")
    A("v_cmp_u_f32 vcc, v20, v20")
poll(g_loads, g_chk)
STAMP(13)
A("v_max_f32 v21, 0, v20")
A(f"v_mul_f32_dpp v22, v20, v21 row_shl:4 {DPPM}")
pack4(22, 24, 25, 23)
A("s_waitcnt lgkmcnt(0)")
for tau in range(4):
    d = 32 + 4*tau
    A(f"v_mfma_f32_16x16x16_bf16 v[{d}:{d+3}], v[{fDF+2*tau}:{fDF+2*tau+1}], v[24:25], 0")
setexec(0x01010101, 0x01010101)
for tau in range(4):
    d = 32 + 4*tau
    A(f"buffer_store_dwordx4 v[{d}:{d+3}], v{fY6A}, {RW}, s{49+tau} offen sc1")
STAMP(8)
if OPT["nore"]: A("s_branch L_exit")
A("s_waitcnt vmcnt(0)")
setexec(0xffff0000, 0x0000ffff)
A(f"buffer_store_dword v{fG}, v{fGA}, {RW}, s61 offen sc1")
A("s_branch L_exit")
A.label("L_g7")
A("s_cmp_lg_u32 s3, 0\ns_cbranch_scc1 L_exit")
VX(T1, T2, 0, (3, 1, 15), (2, 1, 14), (0, 2, 11))
A(f"s_mov_b32 s46, {X4 + 7*128:#x}")
poll(lambda: A(f"buffer_load_dword v16, v{T1}, {RW}, s46 offen sc1"), lambda: A("v_cmp_eq_u32 vcc, -1, v16"), sleep=8)
A("s_branch L_exit")

A.seg(4.5)
def m_init():
    SX("s48", PROBE, ("s2", 8), ("s2", 3, 1, 13))
    A("s_xor_b32 s49, s48, 0x2000")
    A(f"s_load_dword s40, s[16:17], s48 glc\ns_load_dword s41, s[16:17], s49 glc")
    A(f"s_mov_b32 s38, -1\ns_mov_b32 s39, -1\ns_mov_b32 {sCNT}, 0")
def m_rep():
    for off, acc in (("s48", "s38"), ("s49", "s39")):
        A("s_waitcnt lgkmcnt(0)\ns_memtime s[32:33]\ns_waitcnt lgkmcnt(0)")
        A(f"s_load_dword s40, s[16:17], {off} glc\ns_waitcnt lgkmcnt(0)")
        A("s_memtime s[34:35]\ns_waitcnt lgkmcnt(0)")
        A(f"s_sub_u32 s40, s34, s32\ns_min_u32 {acc}, {acc}, s40")
def m_vote():
    srd(RW, WS_BYTES)
    A("s_cmp_lt_u32 s39, s38\ns_cselect_b32 s40, s49, s48")
    A("s_lshr_b32 s40, s40, 11\ns_xor_b32 s40, s40, s2\ns_lshl_b32 s40, s40, 29\ns_and_b32 s40, s40, 0x80000000")
    A(f"s_add_u32 s41, {sTAG}, {TAGC:#x}\ns_xor_b32 s40, s40, s41\nv_mov_b32 v136, s40")
    SX("s40", VOTE, ("s2", 2))
    A(f"s_mov_b64 exec, 1\nbuffer_store_dword v136, v0, {RW}, s40 offen sc1")
    fullexec()
if not PB_:
    A.label("L_meas")
    m_init()
    A(f"s_load_dword {sTAG}, s[16:17], 0")
    A.label("L_ms")
    m_rep()
    A(f"s_add_u32 {sCNT}, {sCNT}, 1\ns_cmp_lt_u32 {sCNT}, {OPT['reps']}\ns_cbranch_scc1 L_ms")
    m_vote()
    A("s_branch L_go")
else:
    A.label("L_m4"); m_init(); A("s_branch L_r4")
    A.label("L_m8"); m_rep(); A("s_branch L_r8")
    A.label("L_m12"); m_rep()
    if PB_ == 2: m_vote()
    A("s_branch L_r12")
    A.label("L_m16")
    if PB_ == 1:
        m_rep(); m_vote()
    A("s_branch L_r16")

A.seg(0)
IS_NA = "s_cmp_lg_u32 s6, 0"; IS_A = "s_cmp_eq_u32 s6, 0"
R3 = OPT["r3"]
def w_common(first=True):
    kload(RB, 32); kload(RF, 88)
    if first:
        A(f"s_load_dword {sTAG}, s[16:17], 0")
        ids2()
    A(f"v_lshl_or_b32 v{wO}, v{T0}, 10, v{T1}")
    srd(RB, 4194304); A("s_movk_i32 s26, 2048")
def wq_setup(sh):
    A(f"v_lshl_or_b32 v{wQ}, v{T0}, 13, v{T1}")
    A("s_mov_b32 s10, 4194304")
    A(f"s_lshl_b32 s48, s3, {12-sh}")
    SX("s43", 0, ("s6", 8), ("s48", 7, 0, 0))
    SX("s44", 0, ("s43", 13), ("s4", 10), ("s46", 0))
def wq_dma():
    A(f"s_add_u32 m0, s48, {WQL}")
    for u in range(4):
        if u: A(f"s_add_u32 s44, s44, {8*8192-1024}")
        A(f"buffer_load_dwordx4 v{wQ}, {RA}, s44 offen offset:{u*1024} {NT} lds")
def c_setup():
    VX(T2, T3, 0, (5, 1, 10), (0, 5, 2))
    srd(RE, 2048)
srd(RC, 3145728)
A(f"v_mul_u32_u24 v{wM}, 6144, v{T0}\ns_lshl_b32 s46, s7, 7\nv_add_u32 v{wM}, v{wM}, v{T1}")
A(f"{IS_NA}\ns_cbranch_scc1 L_nA")
A("s_lshl_b32 s49, s4, 7")
A("s_cmp_lt_u32 s3, 256\ns_cbranch_scc1 L_A1")
A("s_sub_u32 s40, s3, 256")
SX("s61", 0, ("s7", 6), ("s40", 2, 0, 0))
A(f"s_mul_i32 s61, s61, 6144\ns_add_u32 s61, s61, s49\ns_add_u32 s62, s61, {8*6144-1024}")
A(f"s_lshl_b32 s40, s40, 5\ns_add_u32 m0, s40, {PA}")
A("s_waitcnt lgkmcnt(0)")
STAMP(1)
A(f"buffer_load_dwordx4 v{wM}, {RC}, s61 offen {NT} lds")
A(f"buffer_load_dwordx4 v{wM}, {RC}, s62 offen offset:1024 {NT} lds")
A(f"s_add_u32 m0, s40, {PA+8192-1024}")
A(f"buffer_load_dwordx4 v{wM}, {RC}, s61 offen offset:1024 {NT} lds")
A(f"buffer_load_dwordx4 v{wM}, {RC}, s62 offen offset:2048 {NT} lds")
wq_setup(6)
A("s_barrier")
wq_dma()
A("s_waitcnt vmcnt(4)\ns_barrier")
cont(5)
A("v_mov_b32 v32, -1\nv_mov_b32 v33, -1\nv_mov_b32 v34, -1\nv_mov_b32 v35, -1\nv_lshlrev_b32 v38, 3, v0")
SX("s54", G5, ("s4", 14), ("s7", 11), ("s40", 2, 0, 0))
srd(RW, WS_BYTES)
A(f"buffer_store_dwordx2 v[32:33], v38, {RW}, s54 offen sc1")
A(f"v_lshl_or_b32 v37, v{T0}, 10, v{T1}")
SX("s41", 0, ("s7", 14), ("s40", 1))
SX("s54", X4, ("s41", 0), ("s4", 7))
A(f"s_cmp_eq_u32 s41, {31*4096}\ns_cselect_b32 exec_hi, 0xffff, 0")
A(f"buffer_store_dwordx4 v[32:35], v37, {RW}, s54 offen sc1")
fullexec()
A.seg(1)
A.label("L_A1")
c_setup()
VX(36, T3, 0, (4, 1, 10), (5, 1, 8), (0, 4, 4))
A("s_movk_i32 s26, 2048")
A("s_waitcnt lgkmcnt(0)")
STAMP(1)
A(f"buffer_load_dword v{wC}, v{T2}, {RE}, s46 offen {SNT}")
A(f"buffer_load_dwordx4 v[{wX}:{wX+3}], v36, {RD}, 0 offen {SNT}")
A(f"buffer_load_dwordx4 v[{wX+4}:{wX+7}], v36, {RD}, 0 offen offset:512 {SNT}")
VX(37, T3, 0, (4, 1, 10), (0, 4, 1))
A(f"s_lshr_b32 s50, s3, 1\ns_add_u32 s50, s50, s49\nv_mov_b32 v{wXS}, 0")
A(f"buffer_load_short_d16_hi v{wXS}, v37, {RD}, s50 offen {SNT}")
A(f"s_load_dword {sTAG}, s[16:17], 0")
A("s_barrier")
cont(4)
ids2()
tr_setup()
VX(39, 32, 0, (4, 1, 6), (2, 2, 4))
SX("s53", H1G, ("s4", 12), ("s3", 10), ("s46", 0))
A("s_cmp_eq_u32 s7, 0\ns_cselect_b32 s54, 1.0, 0")
unit_pre("0", "s54", PA)
silu_operand(3)
A("v_mov_b32 v36, 0\nv_mov_b32 v37, 0\nv_mov_b32 v38, 0x3f803f80")
A(f"s_waitcnt vmcnt(0)")
for i in range(8):
    A(f"v_dot2c_f32_bf16 v36, v{wX+i}, v38\nv_dot2c_f32_bf16 v37, v{wX+i}, v{wX+i}")
for m in ("quad_perm:[1,0,3,2]", "quad_perm:[2,3,0,1]", "row_half_mirror", "row_mirror"):
    A(f"v_add_f32_dpp v36, v36, v36 {m} {DPPM}\nv_add_f32_dpp v37, v37, v37 {m} {DPPM}")
A("v_mov_b32 v38, v36\nv_mov_b32 v35, v37")
A("v_permlane32_swap_b32 v36, v38\nv_permlane32_swap_b32 v37, v35")
A("v_add_f32 v36, v36, v38\nv_add_f32 v37, v37, v35")
A(f"v_mul_f32 v36, {f32(1.0/512)}, v36\nv_mov_b32 v38, {f32(1e-5)}\nv_fmac_f32 v38, {f32(1.0/512)}, v37")
A("v_fma_f32 v38, -v36, v36, v38\nv_rsq_f32 v38, v38")
A(f"v_sub_f32 v{wXS}, v{wXS}, v36\nv_mul_f32 v{wXS}, v{wXS}, v38")
A("s_waitcnt lgkmcnt(0)")
A(f"s_add_u32 {sTAG}, {sTAG}, {TAGC:#x}")
settags(wD+9, wD+11)
wq_setup(0)
A("s_barrier")
unit_go()
A(f"v_fma_f32 v32, v{wXS}, v{wD+4}, v{wD}")
pack4(32, wD+8, wD+10, 33)
setexec(0x11111111, 0)
A(f"buffer_store_dwordx4 v[{wD+8}:{wD+11}], v39, {RW}, s53 offen sc1")
fullexec()
STAMP(14)
wq_dma()
w_common(False)
A("s_branch L_B")
A.seg(2)
A.label("L_nA")
wq_setup(6)
SX("s51", 0, ("s7", 6), ("s3", 3, 0, 0))
if R3 & 1: SX("s52", 384, ("s51", 13), ("s4", 10))
A("s_mul_i32 s51, s51, 6144")
A("s_waitcnt lgkmcnt(0)")
STAMP(1)
if R3 & 2:
    sk = L("n3a")
    A(f"s_cmp_lg_u32 s4, 3\ns_cbranch_scc1 {sk}")
    A(f"buffer_load_dword v{vPF}, v{wM}, {RC}, s51 offen offset:{1024+384}")
    A.label(sk)
if R3 & 1: A(f"buffer_load_dword v{vPF}, v{wQ}, {RA}, s52 offen")
wq_dma()
A("s_lshl_b32 s42, s3, 4")
SX("s40", 2048, ("s4", 8)); A("s_add_u32 s51, s51, s40")
c_setup()
A(f"buffer_load_dword v{wC}, v{T2}, {RE}, s46 offen {SNT}")
A("s_barrier")
for j, o in enumerate((0, 128, 2048, 2048+128)):
    A(f"s_add_u32 m0, s42, {PB + j*8192 - o}")
    A(f"buffer_load_dwordx4 v{wM}, {RC}, s51 offen offset:{o} {NT} lds")
A("s_branch L_wc")
A.seg(6)
A.label("L_wc")
w_common()
tr_setup()
A("s_waitcnt lgkmcnt(0)")
A(f"s_add_u32 {sTAG}, {sTAG}, {TAGC:#x}")
A.label("L_B")
srd(RF, 2048)
SX("s47", 0, ("s4", 19), ("s43", 10), ("s46", 0))
wRW, wRR, wOF, wTA = 14, 15, 72, 108
SX("s40", RED, ("s3", 9)); VX(wRW, 32, "s40", (0, 6, 2))
SX("s40", RED, ("s3", 8)); VX(wRR, 32, "s40", (0, 6, 2))
VX(wOF, 32, 0, (0, 3, 7), (3, 1, 6), (4, 2, 4))
SX("s53", H1G, ("s43", 6))
wQA = 73; wQD = 76; wYD = 92
VX(wQA, 32, 0, (5, 1, 12), (0, 5, 2))
SX("s56", QG, ("s4", 13), ("s5", 8), ("s3", 7))
A(f"v_add_u32 v{wTA}, s48, v{wTR}")
for t in range(1, 4):
    A(f"v_xor_b32 v{wTA+t}, {t*32:#x}, v{wTA}")
settags(wQD+1, wQD+3)
wGA, wCB, wXA, wXAD = 74, 75, 80, 81
tE, tOUT, tBP, tL16 = 84, 114, 115, 116
SX("s59", Y6, ("s5", 15), ("s4", 1, 1, 14), ("s4", 0, 1, 12))
A("s_cmp_eq_u32 s3, 7\ns_cselect_b32 s40, 0, -1")
A("v_mov_b32 v118, s40\nv_mov_b32 v119, s40\nv_lshlrev_b32 v121, 3, v0")
SX("s99", 0, ("s3", 9), ("s59", 0), ("s2", 2, 1, 13))
VX(T1, 32, 0, (0, 4, 6), (4, 2, 4))
SX("s51", OG, ("s4", 15), ("s43", 6))
SX("s54", SG, ("s4", 10), ("s43", 7, 0, 8))
A(f"v_lshlrev_b32 v{T0}, 2, v1\nv_xor_b32 v{T0}, v0, v{T0}\nv_and_b32 v{T0}, 7, v{T0}\nv_lshlrev_b32 v{T0}, 4, v{T0}")
A(f"v_lshrrev_b32 v32, 5, v0\nv_lshl_or_b32 v{T0}, v32, 7, v{T0}")
VX(wXAD, 32, 0, (5, 1, 6), (2, 2, 4), (4, 1, 3))
SX("s60", X4, ("s7", 2, 0, 14), ("s7", 0, 2, 11), ("s3", 0, 1, 10), ("s6", 15), ("s4", 7))
A(f"s_add_u32 s52, s60, {Y4-X4}\ns_add_u32 s100, s60, 8192\ns_add_u32 s101, s52, 8192")
A("v_and_b32 v32, 1, v0\nv_lshlrev_b32 v32, 4, v32\nv_mov_b32 v33, 0x3f80\nv_lshlrev_b32 v32, v32, v33")
A("v_lshrrev_b32 v33, 2, v2\nv_sub_u32 v33, v1, v33\nv_bfe_u32 v34, v0, 1, 1\nv_lshl_or_b32 v33, v33, 1, v34")
for r in range(2):
    A(f"v_cmp_eq_u32 vcc, {r}, v33")
    A(f"v_mov_b32 v{tE+2+r}, 0\nv_mov_b32 v{tE+4+r}, 0")
    A(f"v_cndmask_b32 v{tE+r}, 0, v32, vcc\nv_cndmask_b32 v{tE+6+r}, 0, v32, vcc")
VX(38, 33, 0, (0, 1, 3), (5, 1, 1), (4, 1, 2))
SX("s40", 0, ("s4", 0, 2, 4)); A(f"v_add_u32 v{tOUT}, s40, v38")
A(f"v_lshlrev_b32 v{tL16}, 4, v0")
SX("s49", X4, ("s6", 14), ("s7", 10))
SX("s55", ST5, ("s4", 7), ("s7", 0, 2, 5), ("s7", 2, 0, 10), ("s6", 3))
VX(113, 33, 0, (5, 1, 4), (4, 1, 2))
SX("s61", MGT, ("s7", 12), ("s3", 11))
SX("s40", MGT + 3*32768, ("s5", 11))
A("s_cmp_eq_u32 s3, 2\ns_cselect_b32 s61, s40, s61\ns_cselect_b32 s40, 0, 0x10000\ns_add_u32 s63, s61, s40")
VX(120, 33, 0, (5, 1, 10), (0, 5, 1))
SX("s42", 0, ("s7", 7), ("s3", 6))
A(f"v_mov_b32 v{wXA}, 0")
VX(39, 32, 0, (5, 1, 12), (4, 1, 6), (2, 2, 4))
SX("s41", OG, ("s4", 15), ("s5", 11))
A(f"v_lshlrev_b32 v{T3}, 7, v2\nv_lshlrev_b32 v117, 10, v1")
SX("s57", 384, ("s4", 19), ("s5", 15), ("s3", 12))
def blk_frags(off):
    for t in range(4):
        for h in range(2):
            r = wWF + 4*t + 2*h
            A(f"ds_read_b64_tr_b16 v[{r}:{r+1}], v{wTA+t} offset:{off + h*2048}")
h1_loads = lambda: tagged_loads(16, wOF, "s53")
A("v_lshlrev_b32 v122, 2, v2")
if OPT["ptw"]:
    sk = L("npt")
    A(f"s_cmp_lg_u32 s3, 5\ns_cbranch_scc1 {sk}")
    A("s_mov_b64 exec, 1")
    A(f"buffer_load_dword v{vPF}, v0, {RB}, s47 offen")
    A(f"buffer_load_dword v{vPF}, v0, {RF}, 0 offen")
    fullexec()
    A.label(sk)
sk = L("nmb"); sk2 = L("nmc")
A(f"{IS_A}\ns_cbranch_scc1 {sk}")
SX("s96", MGT, ("s4", 13), ("s3", 2, 0, 16), ("s3", 0, 2, 10), ("s46", 0))
SX("s40", 0, ("s4", 2, 1, 3), ("s3", 2, 0, 4), ("s7", 0))
A("s_cmp_eq_u32 s40, 16\ns_cselect_b32 s97, 1.0, 0")
SX("s98", PB, ("s3", 2, 0, 14))
unit_pre("s97", "s97", "s98")
settags(wD+9, wD+11)
silu_operand(4)
A(f"s_waitcnt vmcnt({OPT['h1at']})")
h1_loads()
A("s_waitcnt vmcnt(2) lgkmcnt(0)\ns_barrier")
unit_go()
A("v_cmp_gt_u32 vcc, 32, v0")
A(f"v_cndmask_b32 v32, v{wD+4}, v{wD}, vcc")
blk_frags(WQL)
pack4(32, wD+8, wD+10, 34)
setexec(0x11111111, 0x11111111)
A(f"buffer_store_dwordx4 v[{wD+8}:{wD+11}], v39, {RW}, s96 offen sc1")
fullexec()
STAMP(6)
A(f"s_branch {sk2}")
A.label(sk)
sk3 = L("ntk")
A(f"s_cmp_lt_u32 s3, 4\ns_cbranch_scc1 {sk3}")
SX("s40", TOK - 16, ("s4", 10), ("s46", 0), ("s3", 2))
A("s_waitcnt vmcnt(0)")
A(f"s_mov_b64 exec, 1\nbuffer_store_dword v{wQD+1}, v0, {RW}, s40 offen sc1")
fullexec()
A.label(sk3)
A(f"s_waitcnt vmcnt({OPT['h1at']})")
h1_loads()
A("s_waitcnt vmcnt(2)")
blk_frags(WQL)
A("s_waitcnt vmcnt(0)")
A.label(sk2)
STAMP(3)
poll(h1_loads, lambda: tagged_chk([16], 33), first_issued=True, first_wait=1, sleep=OPT["s2"])
STAMP(4)
tagged_pack(16)
A("s_waitcnt lgkmcnt(0)")
def blk_mfma(op):
    for t in range(4):
        mfma(wD + 4*t, op, wWF + 4*t, None)
def blk_reduce():
    A(f"v_permlane16_swap_b32 v{wD}, v{wD+4}\nv_permlane16_swap_b32 v{wD+8}, v{wD+12}")
    A(f"v_add_f32 v{wD}, v{wD}, v{wD+4}\nv_add_f32 v{wD+8}, v{wD+8}, v{wD+12}")
    A(f"ds_write2st64_b32 v{wRW}, v{wD}, v{wD+8} offset0:0 offset1:1")
    A("s_cmp_ge_u32 s3, 2")
    A("s_waitcnt lgkmcnt(0)\ns_barrier")
def blk_final():
    for i in range(4):
        A(f"ds_read2st64_b32 v[{32+2*i}:{33+2*i}], v{wRR} offset0:{4*i} offset1:{4*i+2}")
    if STAMPS: A("s_waitcnt lgkmcnt(0)")
    A("s_waitcnt lgkmcnt(2)")
    A("v_add_f32 v32, v32, v33\nv_add_f32 v34, v34, v35\nv_add_f32 v32, v32, v34")
    A("s_waitcnt lgkmcnt(0)")
    A("v_add_f32 v36, v36, v37\nv_add_f32 v38, v38, v39\nv_add_f32 v36, v36, v38\nv_add_f32 v32, v32, v36")
blk_mfma(16)
rowsum([wD, wD+4, wD+8, wD+12])
blk_reduce()
sk = L("nq")
A(f"s_cbranch_scc1 {sk}")
blk_final()
pack4(32, wQD, wQD+2, 33)
setexec(0x11111111, 0x11111111)
A(f"buffer_store_dwordx4 v[{wQD}:{wQD+3}], v{wQA}, {RW}, s56 offen")
fullexec()
A.label(sk)
STAMP(5)
A(f"s_add_u32 m0, s48, {WOL}")
def wo_dma():
    if R3 & 4: A(f"buffer_load_dword v{vPF}, v117, {RB}, s57 offen")
    for u in range(4):
        if u: A(f"s_add_u32 s47, s47, {8*1024-1024}")
        A(f"buffer_load_dwordx4 v{wO}, {RB}, s47 offen offset:{u*1024} {NT} lds")
if OPT["woe"] < 8:
    sk = L("nwf")
    A(f"s_cmp_lt_u32 s3, {OPT['woe']}\ns_cbranch_scc1 {sk}")
    wo_dma()
    A.label(sk)
if OPT["tw"] >= 0:
    A("s_cmp_lg_u32 s3, 4\ns_cbranch_scc1 L_trgd")
    SX("s40", TRG, ("s4", 7))
    A(f"s_mov_b32 {sCNT}, 0")
    A.label("L_trg")
    A(f"buffer_load_dword v33, v122, {RW}, s40 offen sc1")
    A("s_waitcnt vmcnt(0)")
    A(f"v_cmp_eq_u32 vcc, {sTAG}, v33")
    A(f"s_bcnt1_i32_b32 s44, vcc_lo\ns_cmp_ge_u32 s44, {2*(16-OPT['tany'])}\ns_cbranch_scc1 L_trgd")
    A(f"s_sleep 1\ns_add_u32 {sCNT}, {sCNT}, 1\ns_cmp_lt_u32 {sCNT}, {OPT['tmax']}\ns_cbranch_scc1 L_trg")
    A.label("L_trgd")
A("s_barrier")
def mc_loads():
    tagged_loads(128, wOF, "s61"); tagged_loads(136, wOF, "s63")
sk = L("nc0"); sk2 = L("nc3")
A(f"s_cmp_ge_u32 s3, 3\ns_cbranch_scc1 {sk}")
mc_loads()
A(f"s_cmp_lg_u32 s58, 0\ns_cbranch_scc1 {sk2}")
A(f"buffer_load_short_d16_hi v{wXA}, v120, {RD}, s42 offen")
A(f"s_branch {sk2}")
A.label(sk)
A(f"s_cmp_lg_u32 s3, 3\ns_cbranch_scc1 {sk2}")
A(f"buffer_load_dword v{vPF}, v{T3}, {RW}, s41 offen sc1")
if OPT["sgt"]:
    SX("s40", SG, ("s4", 10))
    A(f"buffer_load_dword v{vPF}, v{tL16}, {RW}, s40 offen sc1")
A.label(sk2)
if OPT["clrpre"]: A(f"buffer_store_dwordx2 v[118:119], v121, {RW}, s99 offen sc1")
if OPT["woe"] < 8:
    sk = L("nwe")
    A(f"s_cmp_ge_u32 s3, {OPT['woe']}\ns_cbranch_scc1 {sk}")
wo_dma()
if OPT["woe"] < 8: A.label(sk)
if not OPT["clrpre"]: A(f"buffer_store_dwordx2 v[118:119], v121, {RW}, s99 offen sc1")
sk = L("nc1")
A(f"s_cmp_ge_u32 s3, 3\ns_cbranch_scc1 {sk}")
poll(mc_loads, lambda: tagged_chk([128, 136], 33), first_issued=True, first_wait=4 if OPT["clrpre"] else 5, sleep=2)
tagged_pack(128); tagged_pack(136)
for i in range(2):
    for t in range(2):
        mfma(wD + 8*i + 4*t, 128 + 8*i, tE + 4*t, None)
rowsum([wD, wD+4, wD+8, wD+12])
A(f"v_permlane16_swap_b32 v{wD}, v{wD+4}\nv_permlane16_swap_b32 v{wD+8}, v{wD+12}")
A(f"v_add_f32 v{wGA}, v{wD}, v{wD+4}\nv_add_f32 v{wCB}, v{wD+8}, v{wD+12}")
def tv_block():
    A(f"v_lshlrev_b32 v32, 7, v0\ns_movk_i32 s40, {TOK}\ns_movk_i32 s41, {VOTE}")
    def tv_loads():
        A(f"buffer_load_dwordx4 v[16:19], v32, {RW}, s40 offen sc1")
        A(f"buffer_load_dword v20, v122, {RW}, s41 offen sc1")
    def tv_chk():
        A(f"v_xor_b32 v33, {sTAG}, v20\nv_lshlrev_b32 v33, 1, v33")
        for t in (16, 17, 18, 19): A(f"v_bitop3_b32 v33, v{t}, {sTAG}, v33 bitop3:0xbe")
        A("v_cmp_ne_u32 vcc, 0, v33")
    poll(tv_loads, tv_chk, sleep=2)
    near_bit(20, "s44")
    A("s_add_u32 s49, s49, s44\ns_add_u32 s50, s49, 32768\ns_add_u32 s59, s59, s44")
if OPT["tvearly"]:
    A(f"s_cmp_lg_u32 s3, 2\ns_cbranch_scc1 {sk}")
    tv_block()
STAMP(2)
A.label(sk)
wF = 100
sg_load = lambda: A(f"buffer_load_dwordx4 v[16:19], v{T0}, {RW}, s54 offen sc1")
A(f"s_waitcnt vmcnt({0 if OPT['clrpre'] else 1})")
if OPT["fw"]:
    sk = L("nfw")
    A(f"s_cmp_lg_u32 s3, 7\ns_cbranch_scc1 {sk}")
    SX("s40", TRG + 64, ("s4", 7), ("s5", 2))
    A(f"s_mov_b64 exec, 1\nbuffer_store_dword v{wQD+1}, v0, {RW}, s40 offen")
    fullexec()
    A.label(sk)
blk_frags(WOL)
STAMP(7)
await_any(sg_load, lambda: A(f"v_cmp_eq_u32 vcc, {sTAG}, v19"), OPT["s1"])
poll(sg_load, lambda: tags_chk([17, 19], 33), first_issued=True, sleep=2*OPT["s2"])
o_loads = lambda: tagged_loads(24, T1, "s51")
o_loads()
A(f"v_max_f32_dpp v17, v16, v16 quad_perm:[1,0,3,2] {DPPM}")
A(f"v_max_f32_dpp v17, v17, v17 quad_perm:[2,3,0,1] {DPPM}")
A(f"v_max_f32_dpp v17, v17, v17 row_half_mirror {DPPM}")
A("v_sub_f32 v16, v16, v17\nv_exp_f32 v16, v16\nv_mul_f32 v17, v16, v18")
for m in ("quad_perm:[1,0,3,2]", "quad_perm:[2,3,0,1]", "row_half_mirror"):
    A(f"v_add_f32_dpp v17, v17, v17 {m} {DPPM}")
A(f"v_rcp_f32 v17, v17\nv_mul_f32 v{wF}, v16, v17")
STAMP(8)
A("s_waitcnt lgkmcnt(0)")
poll(o_loads, lambda: tagged_chk([24], 33), first_issued=True, first_wait=0)
STAMP(9)
tagged_pack(24)
blk_mfma(24)
for t in range(4):
    A(f"v_mul_f32_dpp v{wD+4*t}, v{wF}, v{wD+4*t} row_newbcast:0 {DPPM}")
for r in range(1, 4):
    for t in range(4):
        A(f"v_fmac_f32_dpp v{wD+4*t}, v{wF}, v{wD+4*t+r} row_newbcast:{r} {DPPM}")
blk_reduce()
A("s_cbranch_scc1 L_fin")
blk_final()
A(f"v_fma_f32 v32, v32, v{wGA}, v{wXA}")
A(f"v_mul_f32 v36, v32, v{wCB}")
A(f"v_mov_b32_dpp v33, v32 quad_perm:[1,1,3,3] {DPPM}")
A(f"v_mov_b32_dpp v37, v36 quad_perm:[1,1,3,3] {DPPM}")
A("v_cvt_pk_bf16_f32 v34, v32, v33\nv_cvt_pk_bf16_f32 v38, v36, v37")
A(f"v_mov_b32_dpp v35, v34 quad_perm:[2,2,2,2] {DPPM}")
A(f"v_mov_b32_dpp v39, v38 quad_perm:[2,2,2,2] {DPPM}")
setexec(0x11111111, 0x11111111)
A(f"buffer_store_dwordx2 v[38:39], v{wXAD}, {RW}, s52 offen sc1")
A(f"buffer_store_dwordx2 v[38:39], v{wXAD}, {RW}, s101 offen sc1")
A(f"buffer_store_dwordx2 v[34:35], v{wXAD}, {RW}, s60 offen sc1")
A(f"buffer_store_dwordx2 v[34:35], v{wXAD}, {RW}, s100 offen sc1")
STAMP(10)
A("s_branch L_exit")
A.label("L_fin")
A("s_cmp_gt_u32 s3, 2\ns_cbranch_scc1 L_exit")
if not OPT["tvearly"]: tv_block()
def x4_loads():
    A(f"buffer_load_dwordx4 v[16:19], v{wOF}, {RW}, s49 offen sc1")
    A(f"buffer_load_dwordx4 v[20:23], v{wOF}, {RW}, s50 offen sc1")
def x4_chk():
    A("v_max3_u32 v33, v16, v17, v18\nv_max3_u32 v34, v19, v20, v21\nv_max3_u32 v33, v33, v22, v23\nv_max_u32 v33, v33, v34\nv_cmp_eq_u32 vcc, -1, v33")
poll(x4_loads, x4_chk, sleep=OPT["x4s"])
STAMP(11)
for hp in range(2):
    for t in range(2):
        mfma(wD + 4*t, 16 + 4*hp, tE + 4*t, None if hp == 0 else wD + 4*t)
rowsum([wD, wD+4])
A(f"v_permlane16_swap_b32 v{wD}, v{wD+4}")
A(f"v_add_f32 v42, v{wD}, v{wD+4}\nv_add_f32 v43, v{wD}, v{wD+4}")
A("v_mul_f32 v44, v42, v42")
A("v_permlane16_swap_b32 v43, v44")
A(f"v_add_f32 v{wQD}, v43, v44")
for m in ("quad_perm:[1,0,3,2]", "quad_perm:[2,3,0,1]", "row_half_mirror", "row_mirror"):
    A(f"v_add_f32_dpp v{wQD}, v{wQD}, v{wQD} {m} {DPPM}")
setexec(0x00010001, 0x00010001)
A(f"buffer_store_dword v{wQD}, v113, {RW}, s55 offen")
fullexec()
STAMP(12)
A(f"s_lshr_b32 s40, s44, 6\nv_lshl_add_u32 v{tBP}, v{tOUT}, 1, s40")
SX("s62", 0, ("s44", 3, 0, 0), ("s5", 6))
A(f"ds_bpermute_b32 v42, v{tBP}, v42\nds_bpermute_b32 v{wGA}, v{tBP}, v{wGA}")
if OPT["otouch"]: A(f"buffer_load_ushort v{vPF}, v{tOUT}, {RF}, s62 offen")
A("s_xor_b32 s40, s60, 512\ns_add_u32 s40, s40, s44\nv_mov_b32 v32, 0")
poll(lambda: A(f"buffer_load_dword v16, v32, {RW}, s40 offen sc1"), lambda: A("v_cmp_eq_u32 vcc, -1, v16"), sleep=1)
def y6_loads():
    for i in range(4):
        A(f"buffer_load_dwordx4 v[{16+4*i}:{19+4*i}], v{tL16}, {RW}, s59 offen offset:{1024*i} sc1")
def y6_chk():
    for r in range(4):
        A(f"v_add_f32 v{16+r}, v{16+r}, v{20+r}\nv_add_f32 v{24+r}, v{24+r}, v{28+r}")
    for r in range(4):
        A(f"v_add_f32 v{16+r}, v{16+r}, v{24+r}")
    A("v_permlane32_swap_b32 v16, v17\nv_permlane32_swap_b32 v18, v19")
    A("v_add_f32 v16, v16, v17\nv_add_f32 v18, v18, v19")
    A("v_permlane16_swap_b32 v16, v18")
    A("v_add_f32 v16, v16, v18")
    A("v_cmp_u_f32 vcc, v16, v16")
if OPT["ysent"]:
    await_any(lambda: A(f"buffer_load_dword v16, v{tL16}, {RW}, s59 offen sc1"), lambda: A("v_cmp_o_f32 vcc, v16, v16"), 2)
if OPT["ysent"] == 2:
    poll(lambda: A(f"buffer_load_dword v16, v{tL16}, {RW}, s59 offen sc1"), lambda: A("v_cmp_u_f32 vcc, v16, v16"), first_issued=True)
poll(y6_loads, y6_chk, sleep=OPT["y6s"])
STAMP(13)
for m in ("row_ror:8", "row_ror:4", "row_ror:2"):
    A(f"v_add_f32_dpp v16, v16, v16 {m} {DPPM}")
A("s_waitcnt lgkmcnt(0)")
setexec(0x00030003, 0x00030003)
A(f"v_fma_f32 v16, v16, v{wGA}, v42")
A("v_cvt_pk_bf16_f32 v16, v16, v16")
A(f"buffer_store_short v16, v{tOUT}, {RF}, s62 offen {OPT['ofl']}")
A("s_cmp_lg_u32 s2, 128\ns_cbranch_scc1 L_exit")
A(f"s_sub_u32 s40, {sTAG}, {TAGC-1:#x}")
A("v_mov_b32 v17, s40\nv_mov_b32 v18, 0")
A("s_mov_b64 exec, 1")
A(f"buffer_store_dword v17, v18, {RW}, 0 offen sc1")
A("s_branch L_exit")
A.seg(40)
A.label("L_exit")
if STAMPS == 1:
    STAMP(15)
    A("s_waitcnt lgkmcnt(0)")
    A("s_mov_b64 exec, 1")
    SX("s40", DBG, ("s2", 9), ("s3", 6))
    A("v_mov_b32 v0, 0")
    for q in range(4):
        for i in range(4):
            A(f"v_mov_b32 v{4+4*q+i}, s{64+2*(4*q+i)}")
        A(f"buffer_store_dwordx4 v[{4+4*q}:{7+4*q}], v0, {RW}, s40 offen offset:{16*q}")
if STAMPS == 5:
    STAMP(15)
    A("s_waitcnt lgkmcnt(0)")
    A("s_mov_b64 exec, 1")
    SX("s40", DBG, ("s2", 6), ("s3", 3))
    A(f"v_mov_b32 v0, 0\nv_mov_b32 v4, s64\nv_mov_b32 v5, s{64+2*OPT['db']}")
    A(f"buffer_store_dwordx2 v[4:5], v0, {RW}, s40 offen sc1")
    SX("s40", 0, ("s2", 3), ("s3", 0))
    A(f"s_cmp_lg_u32 s40, {129*8+2}\ns_cbranch_scc1 L_end")
    A.label("L_w3")
    A("s_memrealtime s[42:43]\ns_waitcnt lgkmcnt(0)\ns_sub_u32 s41, s42, s94\ns_cmp_lt_u32 s41, 300\ns_cbranch_scc1 L_w3")
    fullexec()
    A("v_mbcnt_lo_u32_b32 v1, -1, 0\nv_mbcnt_hi_u32_b32 v1, -1, v1\nv_lshlrev_b32 v1, 4, v1")
    A(f"s_mov_b32 s40, {DBG + OPT['drole']*8192}")
    for i in range(8):
        if i == 4: A("s_add_u32 s40, s40, 4096")
        A(f"buffer_load_dwordx4 v[{8+4*i}:{11+4*i}], v1, {RW}, s40 offen offset:{(i%4)*1024} sc1")
    A("s_waitcnt vmcnt(0)")
    for i in range(1, 16):
        A(f"v_min_u32 v8, v8, v{8+2*i}\nv_max_u32 v9, v9, v{9+2*i}")
    A("v_readlane_b32 s44, v8, 0\nv_readlane_b32 s45, v9, 0")
    for l in range(1, 64):
        A(f"v_readlane_b32 s46, v8, {l}\nv_readlane_b32 s47, v9, {l}\ns_nop 3\ns_min_u32 s44, s44, s46\ns_max_u32 s45, s45, s47")
    A(f"s_sub_u32 s40, s45, s44\ns_mul_i32 s40, s40, {OPT['dm']}\ns_add_u32 s40, s40, 600\ns_min_u32 s40, s40, 30000")
    A.label("L_spin")
    A("s_memrealtime s[42:43]\ns_waitcnt lgkmcnt(0)\ns_sub_u32 s41, s42, s94\ns_cmp_lt_u32 s41, s40\ns_cbranch_scc1 L_spin")
if STAMPS == 3:
    STAMP(15)
    A("s_waitcnt lgkmcnt(0)")
    SX("s40", 0, ("s2", 3), ("s3", 0))
    A(f"s_cmp_lg_u32 s40, {OPT['dwg']*8 + OPT['dwv']}\ns_cbranch_scc1 L_end")
    A(f"s_sub_u32 s40, s{64+2*OPT['db']}, s{64+2*OPT['da']}")
    A(f"s_mul_i32 s40, s40, {OPT['dm']}")
    A("s_min_u32 s40, s40, 30000")
    A.label("L_spin")
    A("s_memrealtime s[42:43]\ns_waitcnt lgkmcnt(0)\ns_sub_u32 s41, s42, s94\ns_cmp_lt_u32 s41, s40\ns_cbranch_scc1 L_spin")
A.label("L_end")
A("s_endpgm")
A.label("L_codeend")
A.raw(f".fill (16384 - (L_codeend - {NAME}_kernel)) / 4, 4, 0xbf810000")
A.raw(f""".section .rodata,"a"
.p2align 6
.amdhsa_kernel {NAME}_kernel
  .amdhsa_next_free_vgpr 152
  .amdhsa_next_free_sgpr 102
  .amdhsa_accum_offset 152
  .amdhsa_group_segment_fixed_size 0
  .amdhsa_kernarg_size 112
  .amdhsa_user_sgpr_count 2
  .amdhsa_user_sgpr_kernarg_segment_ptr 1
  .amdhsa_system_sgpr_workgroup_id_x 1
  .amdhsa_float_denorm_mode_32 3
.end_amdhsa_kernel""")
sys.stdout.write(A.text())
sys.stderr.write(f"instrs={A.ninstr} nops={A.nops}\n")
```

```python
import sys, math, struct
sys.path.insert(0, "work")
from asmlib import Asm

NAME = "adaLN_cond__sliding_block_cached__glu_gated_reglu__decode"
OPT = dict(stamps=0, nt="nt", limit=200000, refresh=255, smallnt="", s1=6, s2=1, sent=1, rot=7, r3=7, h1at=1, nv1=3,
           drole=0, dwg=10, dwv=1, da=0, db=15, dm=20, nore=0, reps=3, rotp=0, otouch=0, oline=1, pwb=0, ofl="", tvearly=0, g4=0, phase=3, pbar=0, dtouch=0, ptk=1, ptw=0, clrpre=1, sgt=1, woe=8, dnearly=0, force=-1, tw=-1, tmax=12, tany=0, fw=0, fmax=10, fany=0, flate=0, usearly=0, y6s=0, x4s=0, ysent=1)
for a in sys.argv[1:]:
    k, v = a.split("=")
    OPT[k] = int(v) if v.lstrip("-").isdigit() else v
STAMPS = OPT["stamps"]; NT = OPT["nt"] if OPT["nt"] != "-" else ""
LIMIT = OPT["limit"]; REFRESH = OPT["refresh"]; SNT = OPT["smallnt"]

def f32(x): return "0x%08x" % struct.unpack("<I", struct.pack("<f", x))[0]

TRG = 0x1000; VOTE = 0x1800; PROBE = 0x64000; SG = 0x2000; TOK = 0x4000; H1G = 0x8000; QG = 0x10000; MGT = 0x20000; OG = 0x80000
X4 = 0x40000; Y4 = 0x50000; ST5 = 0x60000
G5 = 0x100000
Y6 = 0x180000; DBG = 0x400000
WS_BYTES = 0x800000
TAGC = 0x9E3779B9
VREG = 65536; PA = 131072; XL = 147456; QL = XL + 1024; PL = QL + 2048; MISC = PL + 2048
FG = 0; FD = 32768; YL0 = 131072
WQL = 0; WOL = 32768; PB = 65536; RED = XL + 1024
LDS_BYTES = MISC + 256
C1 = 128 ** -0.5 * math.log2(math.e)

A = Asm()
hdr = open(f"cdna_kernels/{NAME}.s.ref").read().split("\n")
for ln in hdr:
    if ln.startswith("; @launch"):
        A.raw(f"; @launch grid=(256,1,1) block=(512,1,1) lds={LDS_BYTES}")
        break
    A.raw(ln)
A.raw('.amdgcn_target "amdgcn-amd-amdhsa--gfx950"')
A.raw(f".text\n.globl {NAME}_kernel\n.p2align 8\n.type {NAME}_kernel,@function\n{NAME}_kernel:")

RA, RB, RW, RC, RD, RE, RF = "s[8:11]", "s[12:15]", "s[16:19]", "s[20:23]", "s[24:27]", "s[28:31]", "s[32:35]"
sTAG, sCNT, sT = "s36", "s37", "s45"
def STAMP(n):
    if STAMPS:
        A(f"s_memrealtime s[{64+2*n}:{65+2*n}]")
DPPM = "row_mask:0xf bank_mask:0xf"
lbl = [0]
def L(p):
    lbl[0] += 1
    return f"L_{p}_{lbl[0]}"
def srd(r, nbytes):
    b = int(r[2:r.index(":")])
    A((f"s_movk_i32 s{b+2}, {nbytes}" if nbytes < 32768 else f"s_mov_b32 s{b+2}, {nbytes}") + f"\ns_mov_b32 s{b+3}, s11")
def kload(r, off):
    b = int(r[2:r.index(":")])
    A(f"s_load_dwordx2 s[{b}:{b+1}], s[0:1], {off}")

def SX(dst, const, *terms):
    first = True
    for t in terms:
        src, rs, w, ls = (t[0], 0, 0, t[1]) if len(t) == 2 else t
        d = dst if first else sT
        cur = src
        if w:
            if rs == 0: A(f"s_and_b32 {d}, {cur}, {(1<<w)-1}")
            else: A(f"s_bfe_u32 {d}, {cur}, {(w<<16)|rs:#x}")
            cur = d
        elif rs:
            A(f"s_lshr_b32 {d}, {cur}, {rs}"); cur = d
        if first:
            if ls: A(f"s_lshl_b32 {d}, {cur}, {ls}")
            elif cur != d: A(f"s_mov_b32 {d}, {cur}")
        else:
            if 1 <= ls <= 4: A(f"s_lshl{ls}_add_u32 {dst}, {cur}, {dst}")
            else:
                if ls: A(f"s_lshl_b32 {sT}, {cur}, {ls}"); cur = sT
                A(f"s_add_u32 {dst}, {dst}, {cur}")
        first = False
    if const: A(f"s_add_u32 {dst}, {dst}, {const:#x}")
def VX(dst, tmp, add, *terms):
    first = True
    for rs, w, ls in terms:
        if rs == 4 and w == 2: cur = "v1"
        elif rs == 0 and w == 4: cur = "v2"
        elif rs == 0 and w == 6: cur = "v0"
        else:
            d = f"v{dst}" if first else f"v{tmp}"
            if rs + w == 6: A(f"v_lshrrev_b32 {d}, {rs}, v0")
            elif rs == 0: A(f"v_and_b32 {d}, {(1<<w)-1}, v0")
            else: A(f"v_bfe_u32 {d}, v0, {rs}, {w}")
            cur = d
        if first:
            if ls: A(f"v_lshlrev_b32 v{dst}, {ls}, {cur}")
            elif cur != f"v{dst}": A(f"v_mov_b32 v{dst}, {cur}")
        else:
            if ls: A(f"v_lshl_or_b32 v{dst}, {cur}, {ls}, v{dst}")
            else: A(f"v_or_b32 v{dst}, {cur}, v{dst}")
        first = False
    if add: A(f"v_add_u32 v{dst}, {add}, v{dst}")

def cont(n):
    t = L("c")
    A(f"s_branch {t}")
    A.seg(n); A.label(t)
def await_any(load, valid, sleep):
    if not OPT["sent"]: return
    top, done = L("aw"), L("awd")
    A(f"s_mov_b32 {sCNT}, 0")
    A.label(top)
    load()
    A("s_waitcnt vmcnt(0)")
    valid()
    A(f"s_cbranch_vccnz {done}")
    A(f"s_sleep {sleep}\ns_add_u32 {sCNT}, {sCNT}, 1\ns_cmp_lt_u32 {sCNT}, 64\ns_cbranch_scc1 {top}")
    A.label(done)
def poll(loads, check, first_issued=False, first_wait=0, sleep=0):
    again, top, chk, done = L("again"), L("poll"), L("chk"), L("got")
    A(f"s_mov_b32 {sCNT}, 0")
    if first_issued:
        if first_wait: A(f"s_waitcnt vmcnt({first_wait})")
        A(f"s_branch {chk if first_wait else top + 'w'}")
    else:
        A(f"s_branch {top}")
    A.label(again)
    if sleep: A(f"s_sleep {sleep}")
    A(f"s_add_u32 {sCNT}, {sCNT}, 1")
    A(f"s_and_b32 {sT}, {sCNT}, {REFRESH}\ns_cbranch_scc1 {top}")
    A("buffer_wbl2 sc1")
    A(f"s_cmp_ge_u32 {sCNT}, {LIMIT}\ns_cbranch_scc1 {done}")
    A.label(top)
    loads()
    A.label(top + "w")
    A("s_waitcnt vmcnt(0)")
    A.label(chk)
    check()
    A(f"s_cbranch_vccnz {again}")
    A.label(done)
def chk_empty4(r, tmp):
    A(f"v_max3_u32 v{tmp}, v{r}, v{r+1}, v{r+2}\nv_max_u32 v{tmp}, v{tmp}, v{r+3}\nv_cmp_eq_u32 vcc, -1, v{tmp}")
def pack4(src, pk, pk2, tmp):
    A(f"v_mov_b32_dpp v{tmp}, v{src} quad_perm:[1,1,3,3] {DPPM}")
    A(f"v_cvt_pk_bf16_f32 v{pk}, v{src}, v{tmp}")
    A(f"v_mov_b32_dpp v{pk2}, v{pk} quad_perm:[2,2,2,2] {DPPM}")
def setexec(lo, hi):
    A(f"s_mov_b32 exec_lo, {lo:#x}\ns_mov_b32 exec_hi, {hi:#x}")
def fullexec():
    A("s_mov_b64 exec, -1")
def mfma(d, a, b, c):
    cc = "0" if c is None else f"v[{c}:{c+3}]"
    A(f"v_mfma_f32_16x16x32_bf16 v[{d}:{d+3}], v[{a}:{a+3}], v[{b}:{b+3}], {cc}")
def rowsum(ds):
    for d in ds: A(f"v_add_f32 v{d}, v{d}, v{d+1}\nv_add_f32 v{d+2}, v{d+2}, v{d+3}")
    for d in ds: A(f"v_add_f32 v{d}, v{d}, v{d+2}")
wM, wQ, wO, wTR, T0, T1, T2, T3, vPF = 3, 4, 5, 6, 7, 8, 9, 10, 11
wC = 12; wXS = 13; wX = 16; wXO = 24; wWF = 40; wD = 56
def tr_setup():
    VX(wTR, 32, 0, (2, 4, 7), (3, 2, 5), (0, 2, 3))
    SX("s40", XL, ("s3", 0, 2, 8))
    VX(82, 32, "s40", (0, 6, 2))
    VX(83, 32, "s40", (2, 1, 7), (4, 2, 3))
def silu_operand(cnt):
    A(f"s_waitcnt vmcnt({cnt})")
    A(f"v_lshlrev_b32 v32, 16, v{wC}\nv_and_b32 v33, 0xffff0000, v{wC}")
    A(f"v_mul_f32 v34, {f32(-math.log2(math.e))}, v32\nv_mul_f32 v35, {f32(-math.log2(math.e))}, v33")
    A("v_exp_f32 v34, v34\nv_exp_f32 v35, v35")
    A("v_add_f32 v34, 1.0, v34\nv_add_f32 v35, 1.0, v35")
    A("v_rcp_f32 v34, v34\nv_rcp_f32 v35, v35")
    A("v_mul_f32 v32, v32, v34\nv_mul_f32 v33, v33, v35")
    A("v_cvt_pk_bf16_f32 v32, v32, v33")
    A("ds_write_b32 v82, v32")
    A(f"ds_read2_b64 v[{wXO}:{wXO+3}], v83 offset0:0 offset1:4\nds_read2_b64 v[{wXO+4}:{wXO+7}], v83 offset0:8 offset1:12")
def unit_pre(s_c0, s_c1, base):
    SX("s40", 0, ("s3", 0, 2, 5)); A(f"v_xor_b32 v112, s40, v{wTR}\nv_add_u32 v112, {base}, v112")
    for i in range(4):
        A(f"v_mov_b32 v{wD+i}, {s_c0}\nv_mov_b32 v{wD+4+i}, {s_c1}")
def unit_go():
    if STAMPS: A("s_waitcnt lgkmcnt(0)")
    for k in range(2):
        for seg in range(2):
            for h in range(2):
                r = wWF + seg*8 + k*4 + h*2
                A(f"ds_read_b64_tr_b16 v[{r}:{r+1}], v112 offset:{seg*8192 + k*4096 + h*2048}")
    for k in range(2):
        for seg in range(2):
            A(f"s_waitcnt lgkmcnt({6 - 4*k - 2*seg})")
            mfma(wD + 4*seg, wXO + 4*k, wWF + seg*8 + k*4, wD + 4*seg)
def tagged_loads(r, va, so):
    A(f"buffer_load_dwordx4 v[{r}:{r+3}], v{va}, {RW}, {so} offen sc1")
    A(f"buffer_load_dwordx4 v[{r+4}:{r+7}], v{va}, {RW}, {so} offen offset:1024 sc1")
def tags_chk(tags, tmp):
    if len(tags) == 1:
        A(f"v_cmp_ne_u32 vcc, {sTAG}, v{tags[0]}"); return
    A(f"v_xor_b32 v{tmp}, {sTAG}, v{tags[0]}")
    for t in tags[1:]:
        A(f"v_bitop3_b32 v{tmp}, v{t}, {sTAG}, v{tmp} bitop3:0xbe")
    A(f"v_cmp_ne_u32 vcc, 0, v{tmp}")
def tagged_chk(rs, tmp):
    tags_chk([r + i for r in rs for i in (1, 3, 5, 7)], tmp)
def tagged_pack(r):
    A(f"v_mov_b32 v{r+1}, v{r+2}\nv_mov_b32 v{r+2}, v{r+4}\nv_mov_b32 v{r+3}, v{r+6}")
def near_bit(r, dst):
    A(f"s_xor_b32 {dst}, {sTAG}, 0x80000000")
    A(f"v_cmp_eq_u32 vcc, {dst}, v{r}")
    A(f"s_bcnt1_i32_b32 {sT}, vcc_lo")
    A(f"v_cmp_eq_u32 vcc, {sTAG}, v{r}")
    A(f"s_bcnt1_i32_b32 {dst}, vcc_lo")
    A(f"s_cmp_gt_u32 {sT}, {dst}\ns_cselect_b32 {dst}, 4, 0")
    if OPT["force"] >= 0: A(f"s_mov_b32 {dst}, {4*OPT['force']}")
    A(f"s_xor_b32 {dst}, {dst}, s2\ns_and_b32 {dst}, {dst}, 4\ns_lshl_b32 {dst}, {dst}, 11")
def settags(*regs):
    for r in regs: A(f"v_mov_b32 v{r}, {sTAG}")

STAMP(0)
A("s_cmp_ge_u32 s2, 256\ns_cbranch_scc1 L_end")
A("s_cmp_ge_u32 s2, 128\ns_cselect_b32 s40, 24, 8\ns_cselect_b32 s41, 0, 16")
A("s_load_dwordx2 s[8:9], s[0:1], s40")
kload(RC, 80)
A("s_load_dwordx2 s[24:25], s[0:1], s41")
kload(RE, 72); kload(RW, 104)
A("v_readfirstlane_b32 s3, v0")
sk = L("npf")
A(f"s_cbranch_scc1 {sk}")
A("s_getpc_b64 s[38:39]")
A(f"v_and_b32 v{vPF}, 0x1c0, v0\ns_lshl_b32 s40, s2, 7\ns_and_b32 s38, s38, 0xffffff00\ns_and_b32 s40, s40, 0x3c00\nv_lshl_or_b32 v{vPF}, v{vPF}, 1, s40")
A(f"global_load_dword v{vPF}, v{vPF}, s[38:39]")
A.label(sk)
A("v_and_b32 v0, 63, v0")
A("s_mov_b32 s11, 0x00020000")
A("v_lshrrev_b32 v1, 4, v0\nv_and_b32 v2, 15, v0")
A(f"s_add_u32 s4, s2, {OPT['rot']}\ns_and_b32 s4, s4, 7\ns_bfe_u32 s6, s2, 0x10006\ns_bfe_u32 s7, s2, 0x30003")
A(f"v_lshlrev_b32 v{T3}, 1, v1\nv_xor_b32 v{T3}, v2, v{T3}\nv_lshlrev_b32 v{T3}, 4, v{T3}")
A("s_mov_b32 s27, s11")
A(f"v_and_b32 v{T1}, 0x70, v{T3}\nv_lshrrev_b32 v{T0}, 3, v0")
A("s_cmp_lt_u32 s2, 128\ns_cbranch_scc1 L_KV")
def ids2():
    A("s_lshr_b32 s3, s3, 6\ns_bfe_u32 s5, s2, 0x40003\ns_lshl1_add_u32 s58, s4, s6")
    if STAMPS:
        for i in range(2, 16): A(f"s_mov_b32 s{64+2*i}, 0")
    srd(RW, WS_BYTES)

A.seg(3); A.label("L_KV")
vE, vO, vQO = 120, 121, 122
vKF = 16
vVF = 48
vQF = 80
vS = 96
vQ = 100
vP = 104
vKA = 108
vOA = 108
vST = 144
vOAD, vSAD = 116, 117
wG, wDO, fMF = 124, 125, 123
vMF = 128
A(f"v_lshl_or_b32 v{vE}, v1, 8, v{T3}\nv_xor_b32 v{vO}, 0x80, v{vE}")
A("s_lshl_b32 s43, s3, 7\ns_mov_b32 s10, 33554432\ns_mov_b32 s26, s10")
PH = OPT["phase"]
if PH == 2 or PH == 3:
    SX("s56", 6144*256, ("s6", 24), ("s4", 21), ("s7", 16), ("s3", 7, 0, 14), ("s3", 6, 1, 12))
    A("s_add_u32 s57, s56, 8192")
elif PH == 5:
    SX("s56", 6144*256, ("s6", 24), ("s4", 21), ("s7", 1, 0, 17), ("s3", 8), ("s7", 0, 1, 13))
    A("s_add_u32 s57, s56, 4096")
elif PH == 6:
    SX("s56", 6144*256, ("s6", 24), ("s4", 21), ("s7", 16), ("s3", 7, 0, 14), ("s3", 6, 1, 12), ("s7", 0, 1, 13))
    A("s_xor_b32 s57, s56, 0x2000")
elif PH == 4:
    SX("s56", 6144*256, ("s6", 24), ("s4", 21), ("s7", 16), ("s3", 6, 2, 14), ("s3", 8, 0, 13))
    A("s_add_u32 s57, s56, 4096")
else:
    SX("s56", 6144*256, ("s6", 24), ("s4", 21), ("s7", 16), ("s43", 0))
    A("s_add_u32 s57, s56, 4096")
A("s_mov_b32 m0, s43" if PH == 2 else f"s_add_u32 m0, s43, {VREG}")
VO = [vE, vO, vE, vO]
if OPT["rotp"]:
    VO = [vE, vO, 126, 127]
    if OPT["rotp"] == 1: A("s_lshl_b32 s40, s3, 3\ns_and_b32 s40, s40, 0xc00")
    else: A("s_lshl_b32 s40, s3, 3\ns_lshl_b32 s41, s7, 10\ns_xor_b32 s40, s40, s41\ns_and_b32 s40, s40, 0xc00")
    A(f"s_xor_b32 s41, s40, 0x800\ns_add_u32 s41, s41, 0x400\nv_add_u32 v126, s41, v{vE}")
    A(f"s_xor_b32 s41, s40, 0xc00\nv_add_u32 v127, s41, v{vO}")
    A(f"s_xor_b32 s41, s40, 0x400\ns_add_u32 s41, s41, 0x800\nv_add_u32 v{vO}, s41, v{vO}")
    A(f"s_add_u32 s41, s40, 0xc00\nv_add_u32 v{vE}, s41, v{vE}")
    A("s_sub_u32 s56, s56, 0xc00\ns_sub_u32 s57, s57, 0xc00")
def kv_dma(u):
    r = RA if u < 8 else RD
    A(f"buffer_load_dwordx4 v{VO[u%4]}, {r}, {'s56' if u%8 < 4 else 's57'} offen offset:{(u%4)*1024} {NT} lds")
PB_ = OPT["pbar"]
SX("s50", 0, ("s2", 4, 0, 9), ("s3", 0))
if not PB_:
    A(f"s_cmp_eq_u32 s50, {7*64}")
    A("s_waitcnt lgkmcnt(0)")
    A("s_cbranch_scc1 L_meas")
    A.label("L_go")
else:
    A("s_waitcnt lgkmcnt(0)")
if PH == 2: A(f"buffer_load_dword v136, v2, {RD}, s56 offen {NT}")
else:
    kv_dma(8)
    A("s_mov_b32 m0, s43")
A(f"s_load_dword {sTAG}, s[16:17], 0")
for u in range(16):
    if PB_ and u and u % 4 == 0:
        A(f"s_cmp_eq_u32 s50, 0\ns_cbranch_scc1 L_m{u}")
        A.label(f"L_r{u}")
        A("s_barrier")
    if u in (4, 12): A("s_add_u32 m0, m0, 4096")
    if u == 8:
        A(f"s_add_u32 m0, s43, {VREG}")
        if PH != 2: continue
    kv_dma(u)
if PB_: A("s_cmp_eq_u32 s50, 0\ns_cbranch_scc1 L_m16")
cont(30)
if PB_: A.label("L_r16")
ids2()
if STAMPS: A("s_mov_b32 s66, 0")
STAMP(2)
if OPT["tw"] >= 0 or OPT["fw"]:
    SX("s100", TRG + 64, ("s4", 7))
    A("v_lshlrev_b32 v149, 2, v2")
    sk = L("ntp")
    A(f"s_cmp_lg_u32 s3, 0\ns_cbranch_scc1 {sk}")
    A(f"buffer_load_dword v136, v149, {RW}, s100 offen sc1")
    A.label(sk)
if OPT["tw"] >= 0:
    sk = L("ntr")
    A(f"s_cmp_lg_u32 s3, {OPT['tw']}\ns_cbranch_scc1 {sk}")
    SX("s40", TRG, ("s4", 7), ("s5", 2))
    A(f"s_waitcnt lgkmcnt(0)\ns_add_u32 s41, {sTAG}, {TAGC:#x}\nv_mov_b32 v136, s41")
    A(f"s_mov_b64 exec, 1\nbuffer_store_dword v136, v0, {RW}, s40 offen")
    fullexec()
    A.label(sk)
SX("s63", 0, ("s4", 4), ("s5", 0))
SX("s96", G5, ("s63", 10))
SX("s98", ST5, ("s4", 7))
A(f"v_lshlrev_b32 v{vQO}, 4, v0\nv_lshlrev_b32 v148, 7, v0\ns_movk_i32 s99, {TOK}")
kload(RC, 48); kload(RB, 56); kload(RE, 64)
A(f"v_mul_u32_u24 v{wG}, 3584, v{T0}\nv_add_u32 v{wG}, v{wG}, v{T1}\nv_lshl_or_b32 v{wDO}, v{T0}, 10, v{T1}")
srd(RC, 1835008); srd(RB, 1835008); srd(RE, 1835008)
SX("s49", 0, ("s63", 0, 2, 7), ("s3", 4))
A("s_mul_i32 s49, s49, 3584")
SX("s50", 0, ("s63", 2, 0, 7))
A(f"s_add_u32 s49, s49, s50\ns_add_u32 s50, s49, {8*3584-1024}")
SX("s51", 0, ("s63", 14), ("s3", 7))
A(f"s_add_u32 s52, s51, {8*1024-1024}\ns_lshl_b32 s42, s3, 11")
SX("s44", QG, ("s58", 12), ("s3", 10))
VX(fMF, T2, 0, (0, 3, 7), (3, 1, 6), (4, 2, 4))
SX("s59", MGT + 2*32768, ("s63", 0, 2, 13), ("s3", 0, 2, 11))
SX("s40", 0, ("s3", 2, 0, 15)); A("s_sub_u32 s59, s59, s40")
VX(T2, 0, 0, (0, 3, 1))
A(f"v_xor_b32 v{T2}, v1, v{T2}\nv_lshlrev_b32 v{T2}, 4, v{T2}\nv_lshl_or_b32 v{T2}, v2, 8, v{T2}")
A(f"v_add_u32 v{vKA}, s43, v{T2}")
for t in range(1, 4):
    A(f"v_xor_b32 v{vKA+t}, {t*64:#x}, v{vKA}")
vQW, vQR, vVR, vMX, vPW, vPR, vMW = 3, 4, 5, 6, 113, 13, 112
SX("s40", QL, ("s3", 5))
VX(vQW, T2, "s40", (1, 4, 7), (5, 1, 4), (0, 1, 3))
VX(vQR, T2, QL, (4, 2, 7), (0, 3, 4))
A(f"v_bfe_u32 v{T0}, v0, 2, 3\nv_xor_b32 v{T0}, s3, v{T0}")
VX(vVR, T2, VREG, (2, 4, 8), (0, 2, 3))
A(f"v_lshl_or_b32 v{vVR}, v{T0}, 5, v{vVR}")
VX(vMX, T2, MISC, (0, 2, 5))
A(f"s_lshl_b32 s40, s3, 2\nv_add_u32 v{vMW}, s40, v{vMX}")
VX(vPR, T2, PL, (4, 2, 6), (0, 2, 4))
A(f"s_lshl_b32 s40, s3, 8\nv_and_b32 v{T2}, 12, v0\nv_add3_u32 v{vPW}, s40, v{vPR}, v{T2}")
A("s_mov_b32 s60, 0xf0f0f0f0\ns_mov_b32 s61, s60\ns_mov_b32 s46, 0xff00ff00\ns_mov_b32 s47, s46")
VX(vOAD, T2, 0, (0, 2, 13), (4, 2, 4))
SX("s53", OG, ("s4", 15), ("s3", 10), ("s5", 6))
VX(vSAD, T2, 0, (0, 2, 8))
SX("s54", SG, ("s4", 10), ("s5", 4))
A(f"s_mov_b32 s55, {f32(C1)}")
A(f"s_waitcnt vmcnt({8 if PH == 2 else 7}) lgkmcnt(0)")
A(f"s_add_u32 {sTAG}, {sTAG}, {TAGC:#x}")
for T in range(2):
    for t in range(4):
        r = vKF + (T*4+t)*4
        A(f"ds_read_b128 v[{r}:{r+3}], v{vKA+t} offset:{T*4096}")
settags(vP+1, vP+3, vST+1, vST+3)
if OPT["ptk"]:
    sk = L("npt")
    A(f"s_cmp_lg_u32 s3, 5\ns_cbranch_scc1 {sk}")
    A("s_mov_b64 exec, 1")
    for r, so in ((RC, "s49"), (RB, "s49"), (RE, "s51")):
        A(f"buffer_load_dword v137, v0, {r}, {so} offen")
    fullexec()
    A.label(sk)
A(f"v_lshlrev_b32 v150, 2, v2\ns_movk_i32 s101, {VOTE}")
sk = L("nqp")
A(f"s_cmp_ge_u32 s3, 4\ns_cbranch_scc1 {sk}")
poll(lambda: A(f"buffer_load_dwordx4 v[{vQ}:{vQ+3}], v{vQO}, {RW}, s44 offen sc1"), lambda: tags_chk([vQ+1, vQ+3], T0), sleep=OPT['s2'])
STAMP(4)
A(f"v_mov_b32 v{vQ+1}, v{vQ+2}\nds_write_b64 v{vQW}, v[{vQ}:{vQ+1}]")
A.label(sk)
A("s_waitcnt vmcnt(0) lgkmcnt(0)\ns_barrier")
STAMP(5)
if STAMPS: A("s_waitcnt lgkmcnt(0)")
for t in range(4):
    A(f"ds_read_b128 v[{vQF+4*t}:{vQF+4*t+3}], v{vQR} offset:{t*512}")
def v_tr(kb, T):
    r = vVF + kb*4 + T*2
    A(f"ds_read_b64_tr_b16 v[{r}:{r+1}], v{vVR} offset:{(32*kb+16*T)*256}")
NV1 = OPT["nv1"]
for t in range(4):
    A(f"s_waitcnt lgkmcnt({3-t})")
    for T in range(2):
        mfma(vS + 4*T, vKF + (T*4+t)*4, vQF + 4*t, None if t == 0 else vS + 4*T)
for kb in range(NV1):
    v_tr(kb, 0); v_tr(kb, 1)
def mf_loads():
    tagged_loads(vMF, fMF, "s59")
mf_loads()
A(f"buffer_load_dword v151, v150, {RW}, s101 offen sc1")
def dn_dma():
    A(f"s_add_u32 m0, s42, {FD}")
    A(f"buffer_load_dwordx4 v{wDO}, {RE}, s51 offen {NT} lds")
    A(f"buffer_load_dwordx4 v{wDO}, {RE}, s52 offen offset:1024 {NT} lds")
DE = OPT["dnearly"]
if DE == 1: dn_dma()
if OPT["dtouch"]:
    A(f"v_lshlrev_b32 v137, 10, v2\nbuffer_load_dword v137, v137, {RE}, s51 offen")
for i in range(8):
    A(f"v_add_f32_dpp v{vS+i}, v{vS+i}, v{vS+i} row_ror:4 {DPPM}")
A(f"v_max3_f32 v{T0}, v{vS}, v{vS+1}, v{vS+2}\nv_max3_f32 v{T2}, v{vS+3}, v{vS+4}, v{vS+5}")
A(f"v_max3_f32 v{T0}, v{T0}, v{vS+6}, v{vS+7}\nv_max_f32 v{T3}, v{T0}, v{T2}\nv_max_f32 v{T0}, v{T0}, v{T2}")
A(f"v_cndmask_b32 v{vS}, v{vS}, v{vS+2}, s[60:61]\nv_cndmask_b32 v{vS+1}, v{vS+1}, v{vS+3}, s[60:61]")
A(f"v_permlane32_swap_b32 v{T0}, v{T3}")
A(f"v_max_f32 v{T2}, v{T0}, v{T3}\nv_max_f32 v{T0}, v{T0}, v{T3}")
A(f"v_cndmask_b32 v{vS+4}, v{vS+4}, v{vS+6}, s[60:61]\nv_cndmask_b32 v{vS+5}, v{vS+5}, v{vS+7}, s[60:61]")
A(f"v_permlane16_swap_b32 v{T0}, v{T2}")
A(f"v_max_f32 v{T0}, v{T0}, v{T2}")
A(f"ds_write_b32 v{vMW}, v{T0}")
A(f"v_cndmask_b32 v{vS}, v{vS}, v{vS+4}, s[46:47]\nv_cndmask_b32 v{vS+1}, v{vS+1}, v{vS+5}, s[46:47]")
A(f"v_mul_f32 v{vS}, s55, v{vS}\nv_mul_f32 v{vS+1}, s55, v{vS+1}")
STAMP(14)
sk = L("nlt")
A(f"s_cmp_lg_u32 s3, 7\ns_cbranch_scc1 {sk}")
A(f"buffer_load_dwordx4 v[136:139], v{vQO}, {RW}, s96 offen sc1")
A(f"buffer_load_dword v136, v{wDO}, {RW}, s98 offen sc1")
A(f"buffer_load_dwordx4 v[140:143], v148, {RW}, s99 offen sc1")
A.label(sk)
A("s_waitcnt lgkmcnt(0)\ns_barrier")
A(f"ds_read_b128 v[{vQF}:{vQF+3}], v{vMX}\nds_read_b128 v[{vQF+4}:{vQF+7}], v{vMX} offset:16")
for kb in range(NV1, 8):
    v_tr(kb, 0); v_tr(kb, 1)
A(f"s_waitcnt lgkmcnt({2*(8 - NV1)})")
A(f"v_max3_f32 v{T0}, v{vQF}, v{vQF+1}, v{vQF+2}\nv_max3_f32 v{T2}, v{vQF+3}, v{vQF+4}, v{vQF+5}")
A(f"v_max3_f32 v{T0}, v{T0}, v{vQF+6}, v{vQF+7}\nv_max_f32 v{T0}, v{T0}, v{T2}")
A(f"v_fma_f32 v{vS}, -v{T0}, s55, v{vS}\nv_fma_f32 v{vS+1}, -v{T0}, s55, v{vS+1}")
A(f"v_exp_f32 v{vS}, v{vS}\nv_exp_f32 v{vS+1}, v{vS+1}")
A(f"v_mul_f32 v{vST}, s55, v{T0}")
A(f"v_cvt_pk_bf16_f32 v{T1}, v{vS}, v{vS+1}")
A(f"v_add_f32 v{T0}, v{vS}, v{vS+1}")
A(f"ds_write_b32 v{vPW}, v{T1}")
A(f"v_add_f32_dpp v{T0}, v{T0}, v{T0} row_ror:4 {DPPM}")
A(f"v_add_f32_dpp v{T3}, v{T0}, v{T0} row_ror:8 {DPPM}\nv_add_f32_dpp v{T0}, v{T0}, v{T0} row_ror:8 {DPPM}")
A(f"v_permlane32_swap_b32 v{T0}, v{T3}")
A(f"v_add_f32 v{T2}, v{T0}, v{T3}\nv_add_f32 v{T0}, v{T0}, v{T3}")
A(f"v_permlane16_swap_b32 v{T0}, v{T2}")
A(f"v_add_f32 v{T0}, v{T0}, v{T2}")
A(f"ds_write_b32 v{vMW}, v{T0} offset:128")
if DE == 2: dn_dma()
A("s_waitcnt lgkmcnt(0)\ns_barrier")
STAMP(3)
if STAMPS: A("s_waitcnt lgkmcnt(0)")
sk = L("nst"); sk2 = L("nsu")
A(f"s_cmp_lg_u32 s3, 0\ns_cbranch_scc1 {sk}")
A(f"ds_read_b128 v[{vQF}:{vQF+3}], v{vMX} offset:128\nds_read_b128 v[{vQF+4}:{vQF+7}], v{vMX} offset:144")
A.label(sk)
for kb in range(8):
    r = vKF + kb*4
    A(f"ds_read_b128 v[{r}:{r+3}], v{vPR} offset:{kb*256}")
A(f"s_cbranch_scc1 {sk2}")
A("s_waitcnt lgkmcnt(8)")
rowsum([vQF, vQF+4])
A(f"v_add_f32 v{vST+2}, v{vQF}, v{vQF+4}")
A("s_mov_b64 exec, 15")
A(f"buffer_store_dwordx4 v[{vST}:{vST+3}], v{vSAD}, {RW}, s54 offen")
fullexec()
A.label(sk2)
for kb in range(8):
    A(f"s_waitcnt lgkmcnt({7-kb})")
    mfma(vOA, vVF + kb*4, vKF + kb*4, None if kb == 0 else vOA)
setexec(0x000f000f, 0x000f000f)
A(f"s_add_u32 m0, s42, {FG}")
A(f"v_cvt_pk_bf16_f32 v{vP}, v{vOA}, v{vOA+1}\nv_cvt_pk_bf16_f32 v{vP+2}, v{vOA+2}, v{vOA+3}")
A(f"buffer_store_dwordx4 v[{vP}:{vP+3}], v{vOAD}, {RW}, s53 offen")
fullexec()
STAMP(7)
A("s_cmp_eq_u32 s4, 7\ns_cbranch_scc1 L_g7")
def ffn_dma():
    if OPT["fw"]:
        A("s_cmp_lg_u32 s3, 1\ns_cbranch_scc1 L_fwd")
        A(f"s_mov_b32 {sCNT}, 0")
        A.label("L_fw")
        A(f"buffer_load_dword v33, v149, {RW}, s100 offen sc1")
        A("s_waitcnt vmcnt(0)")
        A(f"v_cmp_eq_u32 vcc, {sTAG}, v33")
        A(f"s_bcnt1_i32_b32 s40, vcc_lo\ns_cmp_ge_u32 s40, {2*(16-OPT['fany'])}\ns_cbranch_scc1 L_fwd")
        A(f"s_sleep 1\ns_add_u32 {sCNT}, {sCNT}, 1\ns_cmp_lt_u32 {sCNT}, {OPT['fmax']}\ns_cbranch_scc1 L_fw")
        A.label("L_fwd")
    A("s_barrier")
    A(f"buffer_load_dwordx4 v{wG}, {RC}, s49 offen {NT} lds")
    A(f"buffer_load_dwordx4 v{wG}, {RC}, s50 offen offset:1024 {NT} lds")
    A(f"s_add_u32 m0, s42, {FG+16384}")
    A(f"buffer_load_dwordx4 v{wG}, {RB}, s49 offen {NT} lds")
    A(f"buffer_load_dwordx4 v{wG}, {RB}, s50 offen offset:1024 {NT} lds")
    if not DE:
        A("s_barrier")
        dn_dma()
if not OPT["flate"]: ffn_dma()
fYW, fYR, fWR, fGR, fSTA, fY6A = 113, 114, 115, 118, 119, 120
fGA = 116; fG = 144; fUS = 145
fU, fS = 121, 117
wTA = 108; fWF = 84; fDF = 64
VX(wTR, 32, 0, (2, 4, 7), (3, 2, 5), (0, 2, 3))
SX("s40", 0, ("s3", 0, 2, 5)); A(f"v_xor_b32 v{fWR}, s40, v{wTR}")
SX("s40", FG, ("s3", 2, 0, 14)); A(f"v_add_u32 v{fWR}, s40, v{fWR}")
A(f"s_add_u32 s40, s42, {FD}\nv_add_u32 v{wTA}, s40, v{wTR}")
for t in range(1, 4):
    A(f"v_xor_b32 v{wTA+t}, {t*32:#x}, v{wTA}")
A(f"v_add_u32 v{fYR}, {YL0}, v{vQO}")
A(f"s_lshl_b32 s40, s3, 10\nv_add_u32 v{fYW}, s40, v{fYR}")
if OPT["g4"]:
    VX(fGA, 32, 0, (2, 2, 8), (5, 1, 7), (0, 2, 4))
    SX("s61", G5, ("s63", 2, 0, 12), ("s3", 0, 2, 10), ("s5", 0, 2, 2), ("s3", 2, 0, 6))
else:
    VX(fGA, 32, 0, (0, 6, 2))
    SX("s61", G5 - 64, ("s63", 2, 0, 12), ("s3", 0, 2, 10), ("s5", 0, 2, 8), ("s3", 2, 0, 7))
VX(fGR, 32, 0, (2, 1, 7), (3, 1, 6), (4, 2, 4), (0, 2, 2))
VX(fSTA, 32, 0, (0, 2, 5), (2, 1, 10), (5, 1, 4))
VX(fY6A, 32, 0, (3, 1, 13), (5, 1, 12), (4, 1, 4))
SX("s47", Y4, ("s3", 2, 0, 15), ("s5", 1, 1, 14), ("s5", 0, 1, 12), ("s3", 0, 2, 10))
if OPT["flate"] == 2: A("s_waitcnt vmcnt(0)")
if OPT["flate"]: ffn_dma()
SX("s49", Y6, ("s3", 16), ("s63", 5))
A("s_add_u32 s50, s49, 16384\ns_add_u32 s51, s49, 32768\ns_add_u32 s52, s49, 49152")
A(f"s_mov_b32 s41, {f32(1.0/512)}\ns_mov_b32 s43, {f32(1e-5)}")
poll(mf_loads, lambda: tagged_chk([vMF], 33), first_issued=True, first_wait=4 if DE else 6, sleep=4)
tagged_pack(vMF)
near_bit(151, "s40"); A("s_add_u32 s47, s47, s40")
A(f"ds_write_b128 v{fYW}, v[{vMF}:{vMF+3}]")
sk = L("ntk")
A(f"s_cmp_lg_u32 s3, 7\ns_cbranch_scc1 {sk}")
poll(lambda: A(f"buffer_load_dwordx4 v[140:143], v148, {RW}, s99 offen sc1"), lambda: tags_chk([140, 141, 142, 143], 33), first_issued=True, first_wait=4 if DE else 6, sleep=2)
A.label(sk)
vY = 76
y_load = lambda: A(f"buffer_load_dwordx4 v[{vY}:{vY+3}], v{fMF}, {RW}, s47 offen sc1")
A(f"s_waitcnt vmcnt({0 if DE else 2}) lgkmcnt(0)\ns_barrier")
STAMP(10)
y_load()
YO = [16, 20, 24, 28, 32, 36, 100, 104]
for k in range(4):
    for h in range(2):
        r = fWF + 4*k + 2*h
        A(f"ds_read_b64_tr_b16 v[{r}:{r+1}], v{fWR} offset:{k*4096 + h*2048}")
for u in range(8):
    A(f"ds_read_b128 v[{YO[u]}:{YO[u]+3}], v{fYR} offset:{u*1024}")
A("s_waitcnt lgkmcnt(0)")
for k in range(4):
    for pi in range(2):
        mfma(wD + 4*pi, YO[4*pi+k], fWF + 4*k, None if k == 0 else wD + 4*pi)
rowsum([wD, wD+4])
A(f"v_permlane16_swap_b32 v{wD}, v{wD+4}")
A(f"v_add_f32 v{fU}, v{wD}, v{wD+4}\nv_add_f32 v{fS}, v{wD}, v{wD+4}\nv_mov_b32 v146, s43")
A(f"v_permlane16_swap_b32 v{fU}, v{fS}")
STAMP(1)
poll(y_load, lambda: chk_empty4(vY, 33), first_issued=True, sleep=OPT["x4s"])
STAMP(11)
A(f"ds_write_b128 v{fYW}, v[{vY}:{vY+3}] offset:8192")
A("s_waitcnt lgkmcnt(0)\ns_barrier")
for u in range(8):
    A(f"ds_read_b128 v[{YO[u]}:{YO[u]+3}], v{fYR} offset:{8192+u*1024}")
st_load = lambda: A(f"buffer_load_dwordx4 v[40:43], v{fSTA}, {RW}, s98 offen sc1")
st_load()
for u in range(8):
    A(f"s_waitcnt lgkmcnt({7-u})")
    mfma(wD, YO[u], fWF + 4*(u & 3), None if u == 0 else wD)
for tau in range(4):
    A(f"ds_read_b64_tr_b16 v[{fDF+2*tau}:{fDF+2*tau+1}], v{wTA+tau}")
def st_chk():
    A("v_add_f32 v40, v40, v42\nv_add_f32 v41, v41, v43")
    A("v_cmp_u_f32 vcc, v40, v41")
poll(st_load, st_chk, first_issued=True)
A(f"v_add_f32_dpp v40, v40, v40 quad_perm:[1,0,3,2] {DPPM}\nv_add_f32_dpp v41, v41, v41 quad_perm:[1,0,3,2] {DPPM}")
A(f"v_add_f32 v{wD}, v{wD}, v{wD+1}\nv_add_f32 v{wD+2}, v{wD+2}, v{wD+3}")
A(f"v_add_f32_dpp v40, v40, v40 quad_perm:[2,3,0,1] {DPPM}\nv_add_f32_dpp v41, v41, v41 quad_perm:[2,3,0,1] {DPPM}")
A(f"v_add_f32 v{wD+1}, v{wD}, v{wD+2}\nv_add_f32 v{wD}, v{wD}, v{wD+2}")
A(f"v_add_f32_dpp v40, v40, v40 row_half_mirror {DPPM}\nv_add_f32_dpp v41, v41, v41 row_half_mirror {DPPM}")
A(f"v_permlane16_swap_b32 v{wD}, v{wD+1}")
A("v_mul_f32 v40, s41, v40")
A("v_fma_f32 v41, v41, s41, v146")
A(f"v_add_f32 v{wD}, v{wD}, v{wD+1}")
A("v_fma_f32 v41, -v40, v40, v41")
A(f"v_fma_f32 v{wD}, -v40, v{fU}, v{wD}")
A("v_rsq_f32 v41, v41")
setexec(0xffff0000, 0x0000ffff)
A(f"v_fma_f32 v{fG}, v{wD}, v41, v{fS}")
A(f"buffer_store_dword v{fG}, v{fGA}, {RW}, s61 offen")
fullexec()
STAMP(12)
def g_loads():
    if OPT["g4"]:
        A(f"buffer_load_dwordx4 v[20:23], v{vQO}, {RW}, s96 offen sc1"); return
    for k in range(4):
        A(f"buffer_load_dword v{20+k}, v{fGR}, {RW}, s96 offen offset:{256*k} sc1")
def g_chk():
    A("v_add_f32 v20, v20, v21\nv_add_f32 v22, v22, v23\nv_add_f32 v20, v20, v22")
    A("v_cmp_u_f32 vcc, v20, v20")
poll(g_loads, g_chk)
STAMP(13)
A("v_max_f32 v21, 0, v20")
A(f"v_mul_f32_dpp v22, v20, v21 row_shl:4 {DPPM}")
pack4(22, 24, 25, 23)
A("s_waitcnt lgkmcnt(0)")
for tau in range(4):
    d = 32 + 4*tau
    A(f"v_mfma_f32_16x16x16_bf16 v[{d}:{d+3}], v[{fDF+2*tau}:{fDF+2*tau+1}], v[24:25], 0")
setexec(0x01010101, 0x01010101)
for tau in range(4):
    d = 32 + 4*tau
    A(f"buffer_store_dwordx4 v[{d}:{d+3}], v{fY6A}, {RW}, s{49+tau} offen sc1")
STAMP(8)
if OPT["nore"]: A("s_branch L_exit")
A("s_waitcnt vmcnt(0)")
setexec(0xffff0000, 0x0000ffff)
A(f"buffer_store_dword v{fG}, v{fGA}, {RW}, s61 offen sc1")
A("s_branch L_exit")
A.label("L_g7")
A("s_cmp_lg_u32 s3, 0\ns_cbranch_scc1 L_exit")
VX(T1, T2, 0, (3, 1, 15), (2, 1, 14), (0, 2, 11))
A(f"s_mov_b32 s46, {X4 + 7*128:#x}")
poll(lambda: A(f"buffer_load_dword v16, v{T1}, {RW}, s46 offen sc1"), lambda: A("v_cmp_eq_u32 vcc, -1, v16"), sleep=8)
A("s_branch L_exit")

A.seg(4.5)
def m_init():
    SX("s48", PROBE, ("s2", 8), ("s2", 3, 1, 13))
    A("s_xor_b32 s49, s48, 0x2000")
    A(f"s_load_dword s40, s[16:17], s48 glc\ns_load_dword s41, s[16:17], s49 glc")
    A(f"s_mov_b32 s38, -1\ns_mov_b32 s39, -1\ns_mov_b32 {sCNT}, 0")
def m_rep():
    for off, acc in (("s48", "s38"), ("s49", "s39")):
        A("s_waitcnt lgkmcnt(0)\ns_memtime s[32:33]\ns_waitcnt lgkmcnt(0)")
        A(f"s_load_dword s40, s[16:17], {off} glc\ns_waitcnt lgkmcnt(0)")
        A("s_memtime s[34:35]\ns_waitcnt lgkmcnt(0)")
        A(f"s_sub_u32 s40, s34, s32\ns_min_u32 {acc}, {acc}, s40")
def m_vote():
    srd(RW, WS_BYTES)
    A("s_cmp_lt_u32 s39, s38\ns_cselect_b32 s40, s49, s48")
    A("s_lshr_b32 s40, s40, 11\ns_xor_b32 s40, s40, s2\ns_lshl_b32 s40, s40, 29\ns_and_b32 s40, s40, 0x80000000")
    A(f"s_add_u32 s41, {sTAG}, {TAGC:#x}\ns_xor_b32 s40, s40, s41\nv_mov_b32 v136, s40")
    SX("s40", VOTE, ("s2", 2))
    A(f"s_mov_b64 exec, 1\nbuffer_store_dword v136, v0, {RW}, s40 offen sc1")
    fullexec()
if not PB_:
    A.label("L_meas")
    m_init()
    A(f"s_load_dword {sTAG}, s[16:17], 0")
    A.label("L_ms")
    m_rep()
    A(f"s_add_u32 {sCNT}, {sCNT}, 1\ns_cmp_lt_u32 {sCNT}, {OPT['reps']}\ns_cbranch_scc1 L_ms")
    m_vote()
    A("s_branch L_go")
else:
    A.label("L_m4"); m_init(); A("s_branch L_r4")
    A.label("L_m8"); m_rep(); A("s_branch L_r8")
    A.label("L_m12"); m_rep()
    if PB_ == 2: m_vote()
    A("s_branch L_r12")
    A.label("L_m16")
    if PB_ == 1:
        m_rep(); m_vote()
    A("s_branch L_r16")

A.seg(0)
IS_NA = "s_cmp_lg_u32 s6, 0"; IS_A = "s_cmp_eq_u32 s6, 0"
R3 = OPT["r3"]
def w_common(first=True):
    kload(RB, 32); kload(RF, 88)
    if first:
        A(f"s_load_dword {sTAG}, s[16:17], 0")
        ids2()
    A(f"v_lshl_or_b32 v{wO}, v{T0}, 10, v{T1}")
    srd(RB, 4194304); A("s_movk_i32 s26, 2048")
def wq_setup(sh):
    A(f"v_lshl_or_b32 v{wQ}, v{T0}, 13, v{T1}")
    A("s_mov_b32 s10, 4194304")
    A(f"s_lshl_b32 s48, s3, {12-sh}")
    SX("s43", 0, ("s6", 8), ("s48", 7, 0, 0))
    SX("s44", 0, ("s43", 13), ("s4", 10), ("s46", 0))
def wq_dma():
    A(f"s_add_u32 m0, s48, {WQL}")
    for u in range(4):
        if u: A(f"s_add_u32 s44, s44, {8*8192-1024}")
        A(f"buffer_load_dwordx4 v{wQ}, {RA}, s44 offen offset:{u*1024} {NT} lds")
def c_setup():
    VX(T2, T3, 0, (5, 1, 10), (0, 5, 2))
    srd(RE, 2048)
srd(RC, 3145728)
A(f"v_mul_u32_u24 v{wM}, 6144, v{T0}\ns_lshl_b32 s46, s7, 7\nv_add_u32 v{wM}, v{wM}, v{T1}")
A(f"{IS_NA}\ns_cbranch_scc1 L_nA")
A("s_lshl_b32 s49, s4, 7")
A("s_cmp_lt_u32 s3, 256\ns_cbranch_scc1 L_A1")
A("s_sub_u32 s40, s3, 256")
SX("s61", 0, ("s7", 6), ("s40", 2, 0, 0))
A(f"s_mul_i32 s61, s61, 6144\ns_add_u32 s61, s61, s49\ns_add_u32 s62, s61, {8*6144-1024}")
A(f"s_lshl_b32 s40, s40, 5\ns_add_u32 m0, s40, {PA}")
A("s_waitcnt lgkmcnt(0)")
STAMP(1)
A(f"buffer_load_dwordx4 v{wM}, {RC}, s61 offen {NT} lds")
A(f"buffer_load_dwordx4 v{wM}, {RC}, s62 offen offset:1024 {NT} lds")
A(f"s_add_u32 m0, s40, {PA+8192-1024}")
A(f"buffer_load_dwordx4 v{wM}, {RC}, s61 offen offset:1024 {NT} lds")
A(f"buffer_load_dwordx4 v{wM}, {RC}, s62 offen offset:2048 {NT} lds")
wq_setup(6)
A("s_barrier")
wq_dma()
A("s_waitcnt vmcnt(4)\ns_barrier")
cont(5)
A("v_mov_b32 v32, -1\nv_mov_b32 v33, -1\nv_mov_b32 v34, -1\nv_mov_b32 v35, -1\nv_lshlrev_b32 v38, 3, v0")
SX("s54", G5, ("s4", 14), ("s7", 11), ("s40", 2, 0, 0))
srd(RW, WS_BYTES)
A(f"buffer_store_dwordx2 v[32:33], v38, {RW}, s54 offen sc1")
A(f"v_lshl_or_b32 v37, v{T0}, 10, v{T1}")
SX("s41", 0, ("s7", 14), ("s40", 1))
SX("s54", X4, ("s41", 0), ("s4", 7))
A(f"s_cmp_eq_u32 s41, {31*4096}\ns_cselect_b32 exec_hi, 0xffff, 0")
A(f"buffer_store_dwordx4 v[32:35], v37, {RW}, s54 offen sc1")
fullexec()
A.seg(1)
A.label("L_A1")
c_setup()
VX(36, T3, 0, (4, 1, 10), (5, 1, 8), (0, 4, 4))
A("s_movk_i32 s26, 2048")
A("s_waitcnt lgkmcnt(0)")
STAMP(1)
A(f"buffer_load_dword v{wC}, v{T2}, {RE}, s46 offen {SNT}")
A(f"buffer_load_dwordx4 v[{wX}:{wX+3}], v36, {RD}, 0 offen {SNT}")
A(f"buffer_load_dwordx4 v[{wX+4}:{wX+7}], v36, {RD}, 0 offen offset:512 {SNT}")
VX(37, T3, 0, (4, 1, 10), (0, 4, 1))
A(f"s_lshr_b32 s50, s3, 1\ns_add_u32 s50, s50, s49\nv_mov_b32 v{wXS}, 0")
A(f"buffer_load_short_d16_hi v{wXS}, v37, {RD}, s50 offen {SNT}")
A(f"s_load_dword {sTAG}, s[16:17], 0")
A("s_barrier")
cont(4)
ids2()
tr_setup()
VX(39, 32, 0, (4, 1, 6), (2, 2, 4))
SX("s53", H1G, ("s4", 12), ("s3", 10), ("s46", 0))
A("s_cmp_eq_u32 s7, 0\ns_cselect_b32 s54, 1.0, 0")
unit_pre("0", "s54", PA)
silu_operand(3)
A("v_mov_b32 v36, 0\nv_mov_b32 v37, 0\nv_mov_b32 v38, 0x3f803f80")
A(f"s_waitcnt vmcnt(0)")
for i in range(8):
    A(f"v_dot2c_f32_bf16 v36, v{wX+i}, v38\nv_dot2c_f32_bf16 v37, v{wX+i}, v{wX+i}")
for m in ("quad_perm:[1,0,3,2]", "quad_perm:[2,3,0,1]", "row_half_mirror", "row_mirror"):
    A(f"v_add_f32_dpp v36, v36, v36 {m} {DPPM}\nv_add_f32_dpp v37, v37, v37 {m} {DPPM}")
A("v_mov_b32 v38, v36\nv_mov_b32 v35, v37")
A("v_permlane32_swap_b32 v36, v38\nv_permlane32_swap_b32 v37, v35")
A("v_add_f32 v36, v36, v38\nv_add_f32 v37, v37, v35")
A(f"v_mul_f32 v36, {f32(1.0/512)}, v36\nv_mov_b32 v38, {f32(1e-5)}\nv_fmac_f32 v38, {f32(1.0/512)}, v37")
A("v_fma_f32 v38, -v36, v36, v38\nv_rsq_f32 v38, v38")
A(f"v_sub_f32 v{wXS}, v{wXS}, v36\nv_mul_f32 v{wXS}, v{wXS}, v38")
A("s_waitcnt lgkmcnt(0)")
A(f"s_add_u32 {sTAG}, {sTAG}, {TAGC:#x}")
settags(wD+9, wD+11)
wq_setup(0)
A("s_barrier")
unit_go()
A(f"v_fma_f32 v32, v{wXS}, v{wD+4}, v{wD}")
pack4(32, wD+8, wD+10, 33)
setexec(0x11111111, 0)
A(f"buffer_store_dwordx4 v[{wD+8}:{wD+11}], v39, {RW}, s53 offen sc1")
fullexec()
STAMP(14)
wq_dma()
w_common(False)
A("s_branch L_B")
A.seg(2)
A.label("L_nA")
wq_setup(6)
SX("s51", 0, ("s7", 6), ("s3", 3, 0, 0))
if R3 & 1: SX("s52", 384, ("s51", 13), ("s4", 10))
A("s_mul_i32 s51, s51, 6144")
A("s_waitcnt lgkmcnt(0)")
STAMP(1)
if R3 & 2:
    sk = L("n3a")
    A(f"s_cmp_lg_u32 s4, 3\ns_cbranch_scc1 {sk}")
    A(f"buffer_load_dword v{vPF}, v{wM}, {RC}, s51 offen offset:{1024+384}")
    A.label(sk)
if R3 & 1: A(f"buffer_load_dword v{vPF}, v{wQ}, {RA}, s52 offen")
wq_dma()
A("s_lshl_b32 s42, s3, 4")
SX("s40", 2048, ("s4", 8)); A("s_add_u32 s51, s51, s40")
c_setup()
A(f"buffer_load_dword v{wC}, v{T2}, {RE}, s46 offen {SNT}")
A("s_barrier")
for j, o in enumerate((0, 128, 2048, 2048+128)):
    A(f"s_add_u32 m0, s42, {PB + j*8192 - o}")
    A(f"buffer_load_dwordx4 v{wM}, {RC}, s51 offen offset:{o} {NT} lds")
A("s_branch L_wc")
A.seg(6)
A.label("L_wc")
w_common()
tr_setup()
A("s_waitcnt lgkmcnt(0)")
A(f"s_add_u32 {sTAG}, {sTAG}, {TAGC:#x}")
A.label("L_B")
srd(RF, 2048)
SX("s47", 0, ("s4", 19), ("s43", 10), ("s46", 0))
wRW, wRR, wOF, wTA = 14, 15, 72, 108
SX("s40", RED, ("s3", 9)); VX(wRW, 32, "s40", (0, 6, 2))
SX("s40", RED, ("s3", 8)); VX(wRR, 32, "s40", (0, 6, 2))
VX(wOF, 32, 0, (0, 3, 7), (3, 1, 6), (4, 2, 4))
SX("s53", H1G, ("s43", 6))
wQA = 73; wQD = 76; wYD = 92
VX(wQA, 32, 0, (5, 1, 12), (0, 5, 2))
SX("s56", QG, ("s4", 13), ("s5", 8), ("s3", 7))
A(f"v_add_u32 v{wTA}, s48, v{wTR}")
for t in range(1, 4):
    A(f"v_xor_b32 v{wTA+t}, {t*32:#x}, v{wTA}")
settags(wQD+1, wQD+3)
wGA, wCB, wXA, wXAD = 74, 75, 80, 81
tE, tOUT, tBP, tL16 = 84, 114, 115, 116
OL = OPT["oline"]
if OL: SX("s59", Y6, ("s4", 0, 2, 17), ("s5", 1, 0, 14), ("s5", 0, 1, 12))
else: SX("s59", Y6, ("s5", 15), ("s4", 1, 1, 14), ("s4", 0, 1, 12))
A("s_cmp_eq_u32 s3, 7\ns_cselect_b32 s40, 0, -1")
A("v_mov_b32 v118, s40\nv_mov_b32 v119, s40\nv_lshlrev_b32 v121, 3, v0")
SX("s99", 0, ("s3", 9), ("s59", 0), ("s2", 2, 1, 13))
VX(T1, 32, 0, (0, 4, 6), (4, 2, 4))
SX("s51", OG, ("s4", 15), ("s43", 6))
SX("s54", SG, ("s4", 10), ("s43", 7, 0, 8))
A(f"v_lshlrev_b32 v{T0}, 2, v1\nv_xor_b32 v{T0}, v0, v{T0}\nv_and_b32 v{T0}, 7, v{T0}\nv_lshlrev_b32 v{T0}, 4, v{T0}")
A(f"v_lshrrev_b32 v32, 5, v0\nv_lshl_or_b32 v{T0}, v32, 7, v{T0}")
VX(wXAD, 32, 0, (5, 1, 6), (2, 2, 4), (4, 1, 3))
SX("s60", X4, ("s7", 2, 0, 14), ("s7", 0, 2, 11), ("s3", 0, 1, 10), ("s6", 15), ("s4", 7))
A(f"s_add_u32 s52, s60, {Y4-X4}\ns_add_u32 s100, s60, 8192\ns_add_u32 s101, s52, 8192")
A("v_and_b32 v32, 1, v0\nv_lshlrev_b32 v32, 4, v32\nv_mov_b32 v33, 0x3f80\nv_lshlrev_b32 v32, v32, v33")
A("v_lshrrev_b32 v33, 2, v2\nv_sub_u32 v33, v1, v33\nv_bfe_u32 v34, v0, 1, 1\nv_lshl_or_b32 v33, v33, 1, v34")
for r in range(2):
    A(f"v_cmp_eq_u32 vcc, {r}, v33")
    A(f"v_mov_b32 v{tE+2+r}, 0\nv_mov_b32 v{tE+4+r}, 0")
    A(f"v_cndmask_b32 v{tE+r}, 0, v32, vcc\nv_cndmask_b32 v{tE+6+r}, 0, v32, vcc")
VX(38, 33, 0, (0, 1, 3), (5, 1, 1), (4, 1, 2))
SX("s40", 0, ("s5" if OL else "s4", 0, 2, 4)); A(f"v_add_u32 v{tOUT}, s40, v38")
A(f"v_lshlrev_b32 v{tL16}, 4, v0")
SX("s49", X4, ("s6", 14), ("s7", 10))
SX("s55", ST5, ("s4", 7), ("s7", 0, 2, 5), ("s7", 2, 0, 10), ("s6", 3))
VX(113, 33, 0, (5, 1, 4), (4, 1, 2))
SX("s61", MGT, ("s7", 12), ("s3", 11))
if OL: SX("s40", MGT + 3*32768, ("s4", 0, 2, 13), ("s5", 2, 0, 11))
else: SX("s40", MGT + 3*32768, ("s5", 11))
A("s_cmp_eq_u32 s3, 2\ns_cselect_b32 s61, s40, s61\ns_cselect_b32 s40, 0, 0x10000\ns_add_u32 s63, s61, s40")
VX(120, 33, 0, (5, 1, 10), (0, 5, 1))
SX("s42", 0, ("s7", 7), ("s3", 6))
A(f"v_mov_b32 v{wXA}, 0")
VX(39, 32, 0, (5, 1, 12), (4, 1, 6), (2, 2, 4))
SX("s41", OG, ("s4", 15), ("s5", 11))
A(f"v_lshlrev_b32 v{T3}, 7, v2\nv_lshlrev_b32 v117, 10, v1")
SX("s57", 384, ("s4", 19), ("s5", 15), ("s3", 12))
def blk_frags(off):
    for t in range(4):
        for h in range(2):
            r = wWF + 4*t + 2*h
            A(f"ds_read_b64_tr_b16 v[{r}:{r+1}], v{wTA+t} offset:{off + h*2048}")
h1_loads = lambda: tagged_loads(16, wOF, "s53")
A("v_lshlrev_b32 v122, 2, v2")
if OPT["ptw"]:
    sk = L("npt")
    A(f"s_cmp_lg_u32 s3, 5\ns_cbranch_scc1 {sk}")
    A("s_mov_b64 exec, 1")
    A(f"buffer_load_dword v{vPF}, v0, {RB}, s47 offen")
    A(f"buffer_load_dword v{vPF}, v0, {RF}, 0 offen")
    fullexec()
    A.label(sk)
sk = L("nmb"); sk2 = L("nmc")
A(f"{IS_A}\ns_cbranch_scc1 {sk}")
SX("s96", MGT, ("s4", 13), ("s3", 2, 0, 16), ("s3", 0, 2, 10), ("s46", 0))
SX("s40", 0, ("s4", 2, 1, 3), ("s3", 2, 0, 4), ("s7", 0))
A("s_cmp_eq_u32 s40, 16\ns_cselect_b32 s97, 1.0, 0")
SX("s98", PB, ("s3", 2, 0, 14))
unit_pre("s97", "s97", "s98")
settags(wD+9, wD+11)
silu_operand(4)
A(f"s_waitcnt vmcnt({OPT['h1at']})")
h1_loads()
A("s_waitcnt vmcnt(2) lgkmcnt(0)\ns_barrier")
unit_go()
A("v_cmp_gt_u32 vcc, 32, v0")
A(f"v_cndmask_b32 v32, v{wD+4}, v{wD}, vcc")
blk_frags(WQL)
pack4(32, wD+8, wD+10, 34)
setexec(0x11111111, 0x11111111)
A(f"buffer_store_dwordx4 v[{wD+8}:{wD+11}], v39, {RW}, s96 offen sc1")
fullexec()
STAMP(6)
A(f"s_branch {sk2}")
A.label(sk)
sk3 = L("ntk")
A(f"s_cmp_lt_u32 s3, 4\ns_cbranch_scc1 {sk3}")
SX("s40", TOK - 16, ("s4", 10), ("s46", 0), ("s3", 2))
A("s_waitcnt vmcnt(0)")
A(f"s_mov_b64 exec, 1\nbuffer_store_dword v{wQD+1}, v0, {RW}, s40 offen sc1")
fullexec()
A.label(sk3)
A(f"s_waitcnt vmcnt({OPT['h1at']})")
h1_loads()
A("s_waitcnt vmcnt(2)")
blk_frags(WQL)
A("s_waitcnt vmcnt(0)")
A.label(sk2)
STAMP(3)
poll(h1_loads, lambda: tagged_chk([16], 33), first_issued=True, first_wait=1, sleep=OPT["s2"])
STAMP(4)
tagged_pack(16)
A("s_waitcnt lgkmcnt(0)")
def blk_mfma(op):
    for t in range(4):
        mfma(wD + 4*t, op, wWF + 4*t, None)
def blk_reduce():
    A(f"v_permlane16_swap_b32 v{wD}, v{wD+4}\nv_permlane16_swap_b32 v{wD+8}, v{wD+12}")
    A(f"v_add_f32 v{wD}, v{wD}, v{wD+4}\nv_add_f32 v{wD+8}, v{wD+8}, v{wD+12}")
    A(f"ds_write2st64_b32 v{wRW}, v{wD}, v{wD+8} offset0:0 offset1:1")
    A("s_cmp_ge_u32 s3, 2")
    A("s_waitcnt lgkmcnt(0)\ns_barrier")
def blk_final():
    for i in range(4):
        A(f"ds_read2st64_b32 v[{32+2*i}:{33+2*i}], v{wRR} offset0:{4*i} offset1:{4*i+2}")
    if STAMPS: A("s_waitcnt lgkmcnt(0)")
    A("s_waitcnt lgkmcnt(2)")
    A("v_add_f32 v32, v32, v33\nv_add_f32 v34, v34, v35\nv_add_f32 v32, v32, v34")
    A("s_waitcnt lgkmcnt(0)")
    A("v_add_f32 v36, v36, v37\nv_add_f32 v38, v38, v39\nv_add_f32 v36, v36, v38\nv_add_f32 v32, v32, v36")
blk_mfma(16)
rowsum([wD, wD+4, wD+8, wD+12])
blk_reduce()
sk = L("nq")
A(f"s_cbranch_scc1 {sk}")
blk_final()
pack4(32, wQD, wQD+2, 33)
setexec(0x11111111, 0x11111111)
A(f"buffer_store_dwordx4 v[{wQD}:{wQD+3}], v{wQA}, {RW}, s56 offen")
fullexec()
A.label(sk)
STAMP(5)
A(f"s_add_u32 m0, s48, {WOL}")
def wo_dma():
    if R3 & 4: A(f"buffer_load_dword v{vPF}, v117, {RB}, s57 offen")
    for u in range(4):
        if u: A(f"s_add_u32 s47, s47, {8*1024-1024}")
        A(f"buffer_load_dwordx4 v{wO}, {RB}, s47 offen offset:{u*1024} {NT} lds")
if OPT["woe"] < 8:
    sk = L("nwf")
    A(f"s_cmp_lt_u32 s3, {OPT['woe']}\ns_cbranch_scc1 {sk}")
    wo_dma()
    A.label(sk)
if OPT["tw"] >= 0:
    A("s_cmp_lg_u32 s3, 4\ns_cbranch_scc1 L_trgd")
    SX("s40", TRG, ("s4", 7))
    A(f"s_mov_b32 {sCNT}, 0")
    A.label("L_trg")
    A(f"buffer_load_dword v33, v122, {RW}, s40 offen sc1")
    A("s_waitcnt vmcnt(0)")
    A(f"v_cmp_eq_u32 vcc, {sTAG}, v33")
    A(f"s_bcnt1_i32_b32 s44, vcc_lo\ns_cmp_ge_u32 s44, {2*(16-OPT['tany'])}\ns_cbranch_scc1 L_trgd")
    A(f"s_sleep 1\ns_add_u32 {sCNT}, {sCNT}, 1\ns_cmp_lt_u32 {sCNT}, {OPT['tmax']}\ns_cbranch_scc1 L_trg")
    A.label("L_trgd")
A("s_barrier")
def mc_loads():
    tagged_loads(128, wOF, "s61"); tagged_loads(136, wOF, "s63")
sk = L("nc0"); sk2 = L("nc3")
A(f"s_cmp_ge_u32 s3, 3\ns_cbranch_scc1 {sk}")
mc_loads()
A(f"s_cmp_lg_u32 s58, 0\ns_cbranch_scc1 {sk2}")
A(f"buffer_load_short_d16_hi v{wXA}, v120, {RD}, s42 offen")
A(f"s_branch {sk2}")
A.label(sk)
A(f"s_cmp_lg_u32 s3, 3\ns_cbranch_scc1 {sk2}")
A(f"buffer_load_dword v{vPF}, v{T3}, {RW}, s41 offen sc1")
if OPT["sgt"]:
    SX("s40", SG, ("s4", 10))
    A(f"buffer_load_dword v{vPF}, v{tL16}, {RW}, s40 offen sc1")
A.label(sk2)
if OPT["clrpre"]: A(f"buffer_store_dwordx2 v[118:119], v121, {RW}, s99 offen sc1")
if OPT["woe"] < 8:
    sk = L("nwe")
    A(f"s_cmp_ge_u32 s3, {OPT['woe']}\ns_cbranch_scc1 {sk}")
wo_dma()
if OPT["woe"] < 8: A.label(sk)
if not OPT["clrpre"]: A(f"buffer_store_dwordx2 v[118:119], v121, {RW}, s99 offen sc1")
sk = L("nc1")
A(f"s_cmp_ge_u32 s3, 3\ns_cbranch_scc1 {sk}")
poll(mc_loads, lambda: tagged_chk([128, 136], 33), first_issued=True, first_wait=4 if OPT["clrpre"] else 5, sleep=2)
tagged_pack(128); tagged_pack(136)
for i in range(2):
    for t in range(2):
        mfma(wD + 8*i + 4*t, 128 + 8*i, tE + 4*t, None)
rowsum([wD, wD+4, wD+8, wD+12])
A(f"v_permlane16_swap_b32 v{wD}, v{wD+4}\nv_permlane16_swap_b32 v{wD+8}, v{wD+12}")
A(f"v_add_f32 v{wGA}, v{wD}, v{wD+4}\nv_add_f32 v{wCB}, v{wD+8}, v{wD+12}")
def tv_block():
    A(f"v_lshlrev_b32 v32, 7, v0\ns_movk_i32 s40, {TOK}\ns_movk_i32 s41, {VOTE}")
    def tv_loads():
        A(f"buffer_load_dwordx4 v[16:19], v32, {RW}, s40 offen sc1")
        A(f"buffer_load_dword v20, v122, {RW}, s41 offen sc1")
    def tv_chk():
        A(f"v_xor_b32 v33, {sTAG}, v20\nv_lshlrev_b32 v33, 1, v33")
        for t in (16, 17, 18, 19): A(f"v_bitop3_b32 v33, v{t}, {sTAG}, v33 bitop3:0xbe")
        A("v_cmp_ne_u32 vcc, 0, v33")
    poll(tv_loads, tv_chk, sleep=2)
    near_bit(20, "s44")
    A("s_add_u32 s49, s49, s44\ns_add_u32 s50, s49, 32768\ns_add_u32 s59, s59, s44")
if OPT["tvearly"]:
    A(f"s_cmp_lg_u32 s3, 2\ns_cbranch_scc1 {sk}")
    tv_block()
STAMP(2)
A.label(sk)
wF = 100
sg_load = lambda: A(f"buffer_load_dwordx4 v[16:19], v{T0}, {RW}, s54 offen sc1")
A(f"s_waitcnt vmcnt({0 if OPT['clrpre'] else 1})")
if OPT["fw"]:
    sk = L("nfw")
    A(f"s_cmp_lg_u32 s3, 7\ns_cbranch_scc1 {sk}")
    SX("s40", TRG + 64, ("s4", 7), ("s5", 2))
    A(f"s_mov_b64 exec, 1\nbuffer_store_dword v{wQD+1}, v0, {RW}, s40 offen")
    fullexec()
    A.label(sk)
blk_frags(WOL)
STAMP(7)
await_any(sg_load, lambda: A(f"v_cmp_eq_u32 vcc, {sTAG}, v19"), OPT["s1"])
poll(sg_load, lambda: tags_chk([17, 19], 33), first_issued=True, sleep=2*OPT["s2"])
o_loads = lambda: tagged_loads(24, T1, "s51")
o_loads()
A(f"v_max_f32_dpp v17, v16, v16 quad_perm:[1,0,3,2] {DPPM}")
A(f"v_max_f32_dpp v17, v17, v17 quad_perm:[2,3,0,1] {DPPM}")
A(f"v_max_f32_dpp v17, v17, v17 row_half_mirror {DPPM}")
A("v_sub_f32 v16, v16, v17\nv_exp_f32 v16, v16\nv_mul_f32 v17, v16, v18")
for m in ("quad_perm:[1,0,3,2]", "quad_perm:[2,3,0,1]", "row_half_mirror"):
    A(f"v_add_f32_dpp v17, v17, v17 {m} {DPPM}")
A(f"v_rcp_f32 v17, v17\nv_mul_f32 v{wF}, v16, v17")
STAMP(8)
A("s_waitcnt lgkmcnt(0)")
poll(o_loads, lambda: tagged_chk([24], 33), first_issued=True, first_wait=0)
STAMP(9)
tagged_pack(24)
blk_mfma(24)
for t in range(4):
    A(f"v_mul_f32_dpp v{wD+4*t}, v{wF}, v{wD+4*t} row_newbcast:0 {DPPM}")
for r in range(1, 4):
    for t in range(4):
        A(f"v_fmac_f32_dpp v{wD+4*t}, v{wF}, v{wD+4*t+r} row_newbcast:{r} {DPPM}")
blk_reduce()
A("s_cbranch_scc1 L_fin")
blk_final()
A(f"v_fma_f32 v32, v32, v{wGA}, v{wXA}")
A(f"v_mul_f32 v36, v32, v{wCB}")
A(f"v_mov_b32_dpp v33, v32 quad_perm:[1,1,3,3] {DPPM}")
A(f"v_mov_b32_dpp v37, v36 quad_perm:[1,1,3,3] {DPPM}")
A("v_cvt_pk_bf16_f32 v34, v32, v33\nv_cvt_pk_bf16_f32 v38, v36, v37")
A(f"v_mov_b32_dpp v35, v34 quad_perm:[2,2,2,2] {DPPM}")
A(f"v_mov_b32_dpp v39, v38 quad_perm:[2,2,2,2] {DPPM}")
setexec(0x11111111, 0x11111111)
A(f"buffer_store_dwordx2 v[38:39], v{wXAD}, {RW}, s52 offen sc1")
A(f"buffer_store_dwordx2 v[38:39], v{wXAD}, {RW}, s101 offen sc1")
A(f"buffer_store_dwordx2 v[34:35], v{wXAD}, {RW}, s60 offen sc1")
A(f"buffer_store_dwordx2 v[34:35], v{wXAD}, {RW}, s100 offen sc1")
STAMP(10)
A("s_branch L_exit")
A.label("L_fin")
if OPT["pwb"]:
    sk = L("nwb")
    SX("s40", 0, ("s5", 3), ("s3", 0))
    A(f"s_cmp_lg_u32 s40, 3\ns_cbranch_scc1 {sk}")
    A("buffer_wbl2 sc1")
    A.label(sk)
A("s_cmp_gt_u32 s3, 2\ns_cbranch_scc1 L_exit")
if not OPT["tvearly"]: tv_block()
def x4_loads():
    A(f"buffer_load_dwordx4 v[16:19], v{wOF}, {RW}, s49 offen sc1")
    A(f"buffer_load_dwordx4 v[20:23], v{wOF}, {RW}, s50 offen sc1")
def x4_chk():
    A("v_max3_u32 v33, v16, v17, v18\nv_max3_u32 v34, v19, v20, v21\nv_max3_u32 v33, v33, v22, v23\nv_max_u32 v33, v33, v34\nv_cmp_eq_u32 vcc, -1, v33")
poll(x4_loads, x4_chk, sleep=OPT["x4s"])
STAMP(11)
for hp in range(2):
    for t in range(2):
        mfma(wD + 4*t, 16 + 4*hp, tE + 4*t, None if hp == 0 else wD + 4*t)
rowsum([wD, wD+4])
A(f"v_permlane16_swap_b32 v{wD}, v{wD+4}")
A(f"v_add_f32 v42, v{wD}, v{wD+4}\nv_add_f32 v43, v{wD}, v{wD+4}")
A("v_mul_f32 v44, v42, v42")
A("v_permlane16_swap_b32 v43, v44")
A(f"v_add_f32 v{wQD}, v43, v44")
for m in ("quad_perm:[1,0,3,2]", "quad_perm:[2,3,0,1]", "row_half_mirror", "row_mirror"):
    A(f"v_add_f32_dpp v{wQD}, v{wQD}, v{wQD} {m} {DPPM}")
setexec(0x00010001, 0x00010001)
A(f"buffer_store_dword v{wQD}, v113, {RW}, s55 offen")
fullexec()
STAMP(12)
A(f"s_lshr_b32 s40, s44, 6\nv_lshl_add_u32 v{tBP}, v{tOUT}, 1, s40")
if OL:
    SX("s62", 0, ("s44", 3, 0, 0), ("s4", 0, 2, 8), ("s5", 2, 0, 6))
    SX("s49", X4, ("s4", 1, 1, 14), ("s4", 0, 1, 12), ("s5", 2, 0, 10), ("s44", 0))
    A("s_add_u32 s50, s49, 32768")
    poll(x4_loads, x4_chk, sleep=1)
    for hp in range(2):
        for t in range(2):
            mfma(wD + 4*t, 16 + 4*hp, tE + 4*t, None if hp == 0 else wD + 4*t)
    rowsum([wD, wD+4])
    A(f"v_permlane16_swap_b32 v{wD}, v{wD+4}")
    A(f"v_add_f32 v42, v{wD}, v{wD+4}")
else:
    SX("s62", 0, ("s44", 3, 0, 0), ("s5", 6))
A(f"ds_bpermute_b32 v42, v{tBP}, v42\nds_bpermute_b32 v{wGA}, v{tBP}, v{wGA}")
if OPT["otouch"]: A(f"buffer_load_ushort v{vPF}, v{tOUT}, {RF}, s62 offen")
A("s_xor_b32 s40, s60, 512\ns_add_u32 s40, s40, s44\nv_mov_b32 v32, 0")
poll(lambda: A(f"buffer_load_dword v16, v32, {RW}, s40 offen sc1"), lambda: A("v_cmp_eq_u32 vcc, -1, v16"), sleep=1)
def y6_loads():
    for i in range(4):
        A(f"buffer_load_dwordx4 v[{16+4*i}:{19+4*i}], v{tL16}, {RW}, s59 offen offset:{1024*i} sc1")
def y6_chk():
    for r in range(4):
        A(f"v_add_f32 v{16+r}, v{16+r}, v{20+r}\nv_add_f32 v{24+r}, v{24+r}, v{28+r}")
    for r in range(4):
        A(f"v_add_f32 v{16+r}, v{16+r}, v{24+r}")
    A("v_permlane32_swap_b32 v16, v17\nv_permlane32_swap_b32 v18, v19")
    A("v_add_f32 v16, v16, v17\nv_add_f32 v18, v18, v19")
    A("v_permlane16_swap_b32 v16, v18")
    A("v_add_f32 v16, v16, v18")
    A("v_cmp_u_f32 vcc, v16, v16")
if OPT["ysent"]:
    await_any(lambda: A(f"buffer_load_dword v16, v{tL16}, {RW}, s59 offen sc1"), lambda: A("v_cmp_o_f32 vcc, v16, v16"), 2)
if OPT["ysent"] == 2:
    poll(lambda: A(f"buffer_load_dword v16, v{tL16}, {RW}, s59 offen sc1"), lambda: A("v_cmp_u_f32 vcc, v16, v16"), first_issued=True)
poll(y6_loads, y6_chk, sleep=OPT["y6s"])
STAMP(13)
for m in ("row_ror:8", "row_ror:4", "row_ror:2"):
    A(f"v_add_f32_dpp v16, v16, v16 {m} {DPPM}")
A("s_waitcnt lgkmcnt(0)")
setexec(0x00030003, 0x00030003)
A(f"v_fma_f32 v16, v16, v{wGA}, v42")
A("v_cvt_pk_bf16_f32 v16, v16, v16")
A(f"buffer_store_short v16, v{tOUT}, {RF}, s62 offen {OPT['ofl']}")
A("s_cmp_lg_u32 s2, 128\ns_cbranch_scc1 L_exit")
A(f"s_sub_u32 s40, {sTAG}, {TAGC-1:#x}")
A("v_mov_b32 v17, s40\nv_mov_b32 v18, 0")
A("s_mov_b64 exec, 1")
A(f"buffer_store_dword v17, v18, {RW}, 0 offen sc1")
A("s_branch L_exit")
A.seg(40)
A.label("L_exit")
if STAMPS == 1:
    STAMP(15)
    A("s_waitcnt lgkmcnt(0)")
    A("s_mov_b64 exec, 1")
    SX("s40", DBG, ("s2", 9), ("s3", 6))
    A("v_mov_b32 v0, 0")
    for q in range(4):
        for i in range(4):
            A(f"v_mov_b32 v{4+4*q+i}, s{64+2*(4*q+i)}")
        A(f"buffer_store_dwordx4 v[{4+4*q}:{7+4*q}], v0, {RW}, s40 offen offset:{16*q}")
if STAMPS == 5:
    STAMP(15)
    A("s_waitcnt lgkmcnt(0)")
    A("s_mov_b64 exec, 1")
    SX("s40", DBG, ("s2", 6), ("s3", 3))
    A(f"v_mov_b32 v0, 0\nv_mov_b32 v4, s64\nv_mov_b32 v5, s{64+2*OPT['db']}")
    A(f"buffer_store_dwordx2 v[4:5], v0, {RW}, s40 offen sc1")
    SX("s40", 0, ("s2", 3), ("s3", 0))
    A(f"s_cmp_lg_u32 s40, {129*8+2}\ns_cbranch_scc1 L_end")
    A.label("L_w3")
    A("s_memrealtime s[42:43]\ns_waitcnt lgkmcnt(0)\ns_sub_u32 s41, s42, s94\ns_cmp_lt_u32 s41, 300\ns_cbranch_scc1 L_w3")
    fullexec()
    A("v_mbcnt_lo_u32_b32 v1, -1, 0\nv_mbcnt_hi_u32_b32 v1, -1, v1\nv_lshlrev_b32 v1, 4, v1")
    A(f"s_mov_b32 s40, {DBG + OPT['drole']*8192}")
    for i in range(8):
        if i == 4: A("s_add_u32 s40, s40, 4096")
        A(f"buffer_load_dwordx4 v[{8+4*i}:{11+4*i}], v1, {RW}, s40 offen offset:{(i%4)*1024} sc1")
    A("s_waitcnt vmcnt(0)")
    for i in range(1, 16):
        A(f"v_min_u32 v8, v8, v{8+2*i}\nv_max_u32 v9, v9, v{9+2*i}")
    A("v_readlane_b32 s44, v8, 0\nv_readlane_b32 s45, v9, 0")
    for l in range(1, 64):
        A(f"v_readlane_b32 s46, v8, {l}\nv_readlane_b32 s47, v9, {l}\ns_nop 3\ns_min_u32 s44, s44, s46\ns_max_u32 s45, s45, s47")
    A(f"s_sub_u32 s40, s45, s44\ns_mul_i32 s40, s40, {OPT['dm']}\ns_add_u32 s40, s40, 600\ns_min_u32 s40, s40, 30000")
    A.label("L_spin")
    A("s_memrealtime s[42:43]\ns_waitcnt lgkmcnt(0)\ns_sub_u32 s41, s42, s94\ns_cmp_lt_u32 s41, s40\ns_cbranch_scc1 L_spin")
if STAMPS == 3:
    STAMP(15)
    A("s_waitcnt lgkmcnt(0)")
    SX("s40", 0, ("s2", 3), ("s3", 0))
    A(f"s_cmp_lg_u32 s40, {OPT['dwg']*8 + OPT['dwv']}\ns_cbranch_scc1 L_end")
    A(f"s_sub_u32 s40, s{64+2*OPT['db']}, s{64+2*OPT['da']}")
    A(f"s_mul_i32 s40, s40, {OPT['dm']}")
    A("s_min_u32 s40, s40, 30000")
    A.label("L_spin")
    A("s_memrealtime s[42:43]\ns_waitcnt lgkmcnt(0)\ns_sub_u32 s41, s42, s94\ns_cmp_lt_u32 s41, s40\ns_cbranch_scc1 L_spin")
A.label("L_end")
A("s_endpgm")
A.label("L_codeend")
A.raw(f".fill (16384 - (L_codeend - {NAME}_kernel)) / 4, 4, 0xbf810000")
A.raw(f""".section .rodata,"a"
.p2align 6
.amdhsa_kernel {NAME}_kernel
  .amdhsa_next_free_vgpr 152
  .amdhsa_next_free_sgpr 102
  .amdhsa_accum_offset 152
  .amdhsa_group_segment_fixed_size 0
  .amdhsa_kernarg_size 112
  .amdhsa_user_sgpr_count 2
  .amdhsa_user_sgpr_kernarg_segment_ptr 1
  .amdhsa_system_sgpr_workgroup_id_x 1
  .amdhsa_float_denorm_mode_32 3
.end_amdhsa_kernel""")
sys.stdout.write(A.text())
sys.stderr.write(f"instrs={A.ninstr} nops={A.nops}\n")
```
